```python
import torch

def _softmax(x, axis=-1):
    return torch.softmax(x, dim=axis)
def _gelu(x):
    return torch.nn.functional.gelu(x, approximate="tanh")
def _silu(x):
    return torch.nn.functional.silu(x)
def _sigmoid(x):
    return torch.sigmoid(x)
def _layernorm(x, axis=-1, eps=1e-5):
    m = x.mean(dim=axis, keepdim=True)
    v = x.var(dim=axis, keepdim=True, unbiased=False)
    return (x - m) / torch.sqrt(v + eps)
def _scatter_add(tgt, idx, src, axis=0):
    return tgt.clone().index_add_(axis, idx, src)
def _segment_sum(src, seg, n):
    out = torch.zeros((n,) + src.shape[1:], dtype=src.dtype)
    return out.index_add_(0, seg, src)
def _pad(x, pw):
    flat = tuple(v for pair in reversed(pw) for v in pair)
    return torch.nn.functional.pad(x, flat)

kernel_name = 'concat_heads__mha_block_cached__gqa_block_cached__near_ridge'

def setup_inputs():

    _w = (lambda a: (lambda t: t.to(torch.bfloat16) if t.is_floating_point() else t)(torch.as_tensor(a)))
    def _A_setup():
        B, Sq, D = 8, 144, 512
        H, Sk, Dh = 32, 1024, 128
        return {
            "x": _w((lambda *s: torch.randn(*s, dtype=torch.bfloat16) * 0.8)(B, Sq, D)),
            "k_cache": _w((lambda *s: torch.randn(*s, dtype=torch.bfloat16) * 0.8)(B, H, Sk, Dh)),
            "v_cache": _w((lambda *s: torch.randn(*s, dtype=torch.bfloat16) * 0.05)(B, H, Sk, Dh)),
            "wq": _w((lambda *s: torch.randn(*s, dtype=torch.bfloat16) * 0.8)(D, H * Dh) * (D ** -0.5)),
            "wo": _w((lambda *s: torch.randn(*s, dtype=torch.bfloat16) * 0.05)(H * Dh, D) * ((H * Dh) ** -0.5)),
        }
    _A_in = _A_setup()

    def _B_setup():
        B, Sq, D = 8, 144, 512
        Hq, Hkv, Sk, Dh = 32, 32, 1024, 128
        assert Hq % Hkv == 0, (Hq, Hkv)
        return {
            "x": _w((lambda *s: torch.randn(*s, dtype=torch.bfloat16) * 0.8)(B, Sq, D)),
            "k_cache": _w((lambda *s: torch.randn(*s, dtype=torch.bfloat16) * 0.8)(B, Hkv, Sk, Dh)),
            "v_cache": _w((lambda *s: torch.randn(*s, dtype=torch.bfloat16) * 0.05)(B, Hkv, Sk, Dh)),
            "wq": _w((lambda *s: torch.randn(*s, dtype=torch.bfloat16) * 0.8)(D, Hq * Dh) * (D ** -0.5)),
            "wo": _w((lambda *s: torch.randn(*s, dtype=torch.bfloat16) * 0.05)(Hq * Dh, D) * ((Hq * Dh) ** -0.5)),
        }
    _B_in = _B_setup()

    return {
        "A_x": _A_in["x"],
        "A_k_cache": _A_in["k_cache"],
        "A_v_cache": _A_in["v_cache"],
        "A_wq": _A_in["wq"],
        "A_wo": _A_in["wo"],
        "B_x": _B_in["x"],
        "B_k_cache": _B_in["k_cache"],
        "B_v_cache": _B_in["v_cache"],
        "B_wq": _B_in["wq"],
        "B_wo": _B_in["wo"],
    }

def reference(A_x, A_k_cache, A_v_cache, A_wq, A_wo, B_x, B_k_cache, B_v_cache, B_wq, B_wo):
    def _A_ref(x, k_cache, v_cache, wq, wo):
        B, Sq, D = x.shape
        H, Dh = 32, 128
        q = (lambda x, *d: x.permute(*d))((x @ wq).reshape(B, Sq, H, Dh), 0, 2, 1, 3)
        scores = torch.einsum("bhqd,bhkd->bhqk", q, k_cache) * (Dh ** -0.5)
        p = _softmax(scores, axis=-1)
        o = torch.einsum("bhqk,bhkd->bhqd", p, v_cache)
        return (lambda x, *d: x.permute(*d))(o, 0, 2, 1, 3).reshape(B, Sq, H * Dh) @ wo

    def _B_ref(x, k_cache, v_cache, wq, wo):
        B, Sq, D = x.shape
        Hq, Dh = 32, 128
        Hkv = k_cache.shape[1]
        rep = Hq // Hkv
        q = (lambda x, *d: x.permute(*d))((x @ wq).reshape(B, Sq, Hq, Dh), 0, 2, 1, 3)
        k = (lambda x, n, axis: torch.repeat_interleave(x, n, dim=axis))(k_cache, rep, axis=1)
        v = (lambda x, n, axis: torch.repeat_interleave(x, n, dim=axis))(v_cache, rep, axis=1)
        scores = torch.einsum("bhqd,bhkd->bhqk", q, k) * (Dh ** -0.5)
        p = _softmax(scores, axis=-1)
        o = torch.einsum("bhqk,bhkd->bhqd", p, v)
        return (lambda x, *d: x.permute(*d))(o, 0, 2, 1, 3).reshape(B, Sq, Hq * Dh) @ wo

    a = _A_ref(A_x, A_k_cache, A_v_cache, A_wq, A_wo)
    b = _B_ref(B_x, B_k_cache, B_v_cache, B_wq, B_wo)
    return torch.concatenate([a, b], axis=-1)
```

```python
import re

def vr(a, n=1):
    return "v%d" % a if n == 1 else "v[%d:%d]" % (a, a + n - 1)
def ar(a, n=1):
    return "a%d" % a if n == 1 else "a[%d:%d]" % (a, a + n - 1)
def sr(a, n=1):
    return "s%d" % a if n == 1 else "s[%d:%d]" % (a, a + n - 1)

_REG = re.compile(r"\b([vas])(\d+)\b|\b([vas])\[(\d+):(\d+)\]")
def regs_of(tok):
    out = []
    for m in _REG.finditer(tok):
        if m.group(1):
            out.append((m.group(1), int(m.group(2))))
        else:
            out += [(m.group(3), i) for i in range(int(m.group(4)), int(m.group(5)) + 1)]
    if re.search(r"\bvcc\b", tok): out.append(("s", "vcc"))
    if re.search(r"\bm0\b", tok): out.append(("s", "m0"))
    if re.search(r"\bexec\b", tok): out.append(("s", "exec"))
    return out

TRANS = ("v_exp_f32", "v_log_f32", "v_rcp_f32", "v_rsq_f32", "v_sqrt_f32")
VOP3_ONLY = ("v_max3_f32", "v_min3_f32", "v_fma_f32", "v_cvt_pk_bf16_f32", "v_add3_u32", "v_lshl_add_u32",
             "v_lshl_or_b32", "v_and_or_b32", "v_bfe_u32", "v_mul_lo_u32", "v_mad_u32_u24", "v_perm_b32",
             "v_pk_mul_f32", "v_pk_add_f32", "v_accvgpr_read_b32", "v_accvgpr_write_b32", "v_add_lshl_u32",
             "v_readlane_b32", "v_or3_b32", "v_xad_u32", "v_med3_f32", "v_mbcnt_lo_u32_b32", "v_mbcnt_hi_u32_b32",
             "v_pk_fma_f32", "v_mul_hi_u32", "v_bitop3_b32")
INLINE_F = {"0.5", "-0.5", "1.0", "-1.0", "2.0", "-2.0", "4.0", "-4.0"}

def is_literal(tok):
    tok = tok.strip()
    if tok in INLINE_F: return False
    try:
        v = int(tok, 0)
    except ValueError:
        return False
    if v in (0x3f000000, 0xbf000000, 0x3f800000, 0xbf800000, 0x40000000, 0xc0000000, 0x40800000, 0xc0800000, 0x3e22f983): return False
    if v >= 0xfffffff0: return False
    return not (-16 <= v <= 64)

class I:
    __slots__ = ("op", "args", "kind", "wr", "rd", "size", "text", "srcC", "e64ok", "mods")

class Asm:
    def __init__(self):
        self.items = []
        self.lgkm = []
        self.vm = []
        self.autowait = True

    def raw(self, s): self.items.append(s)
    def label(self, l): self.items.append(l + ":")
    def comment(self, s): self.items.append("; " + s)

    def ins(self, line, tag=None):
        line = line.strip()
        op, _, rest = line.partition(" ")
        toks = [t.strip() for t in rest.split(",")] if rest else []
        i = I(); i.op = op; i.text = line; i.srcC = []; i.e64ok = False
        base = op.replace("_e32", "").replace("_e64", "").replace("_dpp", "")
        R = [regs_of(t) for t in toks]
        flat = lambda xs: [r for x in xs for r in x]
        if op.startswith("v_mfma"):
            i.kind = "mfma"; i.wr = R[0]; i.rd = flat(R[1:]); i.srcC = R[3]; i.size = 8
        elif op.startswith("ds_read") or op.startswith("ds_bpermute") or op.startswith("ds_swizzle"):
            i.kind = "ds"; i.wr = R[0]; i.rd = flat(R[1:]); i.size = 8
        elif op.startswith("ds_"):
            i.kind = "ds"; i.wr = []; i.rd = flat(R); i.size = 8
        elif op.startswith("buffer_load") or op.startswith("global_load"):
            i.size = 8; i.kind = "vmem"
            if re.search(r"\blds\b", line):
                i.wr = []; i.rd = flat(R) + [("s", "m0")]; i.kind = "dma"
            else:
                i.wr = R[0]; i.rd = flat(R[1:])
        elif op.startswith("buffer_store") or op.startswith("global_store"):
            i.size = 8; i.kind = "store"; i.wr = []; i.rd = flat(R)
        elif op.startswith("buffer_atomic") or op.startswith("global_atomic"):
            i.size = 8; i.kind = "store"; i.rd = flat(R); i.wr = R[0] if " sc0" in line else []
        elif op.startswith("buffer_"):
            i.size = 8; i.kind = "vmem"; i.wr = []; i.rd = []
        elif op.startswith("v_"):
            i.kind = "trans" if base in TRANS else "valu"
            if op.startswith("v_cmp"):
                i.wr = R[0]; i.rd = flat(R[1:])
                e32 = toks[0] == "vcc"
            elif base in ("v_permlane16_swap_b32", "v_permlane32_swap_b32"):
                i.kind = "perm"; i.wr = R[0] + R[1]; i.rd = R[0] + R[1]; e32 = True
            elif base in ("v_readfirstlane_b32", "v_readlane_b32"):
                i.kind = "rdlane"; i.wr = R[0]; i.rd = flat(R[1:]); e32 = True
            else:
                i.wr = R[0]; i.rd = flat(R[1:]); e32 = True
                if base in ("v_fmac_f32",): i.rd = i.rd + R[0]
                if base in ("v_add_co_u32", "v_addc_co_u32"): i.wr = R[0] + R[1]; i.rd = flat(R[2:])
            lit = any(is_literal(t) for t in toks[1:])
            if "_dpp" in op:
                i.size = 8; i.kind = "dpp"
            elif base in VOP3_ONLY or op.endswith("_e64") or not e32:
                i.size = 8
            else:
                force3 = False
                if len(toks) >= 3 and base not in ("v_cndmask_b32", "v_add_co_u32", "v_addc_co_u32"):
                    if not re.fullmatch(r"v\d+", toks[2]): force3 = True
                if any(t.startswith("-v") or t.startswith("-s") or "abs(" in t or "|" in t for t in toks[1:]): force3 = True
                if force3: i.size = 8
                else:
                    i.size = 8 if lit else 4
                    i.e64ok = (not lit) and i.kind in ("valu", "trans") and base not in ("v_fmac_f32", "v_add_co_u32", "v_addc_co_u32", "v_cndmask_b32") and not op.endswith("_e32")
        elif op.startswith("s_load") or op in ("s_memtime", "s_memrealtime") or op.startswith("s_atomic"):
            i.kind = "smem"; i.wr = R[0]; i.rd = flat(R[1:]); i.size = 8
        elif op.startswith("s_"):
            sopp = op in ("s_nop", "s_waitcnt", "s_barrier", "s_branch", "s_endpgm", "s_sleep", "s_setprio") or op.startswith("s_cbranch")
            if sopp:
                i.kind = "sopp"; i.wr = []; i.rd = []; i.size = 4
            else:
                i.kind = "salu"
                if op.startswith("s_cmp"):
                    i.wr = []; i.rd = flat(R)
                else:
                    i.wr = R[0]; i.rd = flat(R[1:])
                lit = any(is_literal(t) for t in toks) and not op.endswith("k_i32") and not op.startswith("s_getreg")
                i.size = 8 if lit else 4
        else:
            raise ValueError(line)
        if self.autowait: self._autowait(i)
        self.items.append(i)
        if i.kind == "ds": self.lgkm.append(set(i.wr))
        if i.kind in ("vmem", "dma", "store"): self.vm.append((tag, set(i.wr)))
        if op == "s_waitcnt":
            m = re.search(r"lgkmcnt\((\d+)\)", line)
            if m:
                n = int(m.group(1)); self.lgkm = self.lgkm[len(self.lgkm) - n:] if n and n < len(self.lgkm) else ([] if n == 0 else self.lgkm)
            m = re.search(r"vmcnt\((\d+)\)", line)
            if m:
                n = int(m.group(1)); self.vm = self.vm[len(self.vm) - n:] if n and n < len(self.vm) else ([] if n == 0 else self.vm)
        return i

    def __call__(self, text, tag=None):
        for l in text.strip().split("\n"):
            l = l.split(";")[0].strip()
            if not l: continue
            if l.startswith("WAIT "): self.wait_regs(l[5:])
            elif l.startswith("RAW "): self.items.append(self._mk(l[4:]))
            elif l.endswith(":"): self.label(l[:-1])
            else: self.ins(l, tag)

    def _autowait(self, i):
        touched = set(i.rd) | set(i.wr)
        need = None
        for k, d in enumerate(self.lgkm):
            if d & touched: need = k
        w = []
        if need is not None:
            n = len(self.lgkm) - 1 - need
            w.append("lgkmcnt(%d)" % min(n, 14))
        need = None
        for k, (t, d) in enumerate(self.vm):
            if d & touched: need = k
        if need is not None:
            n = len(self.vm) - 1 - need
            w.insert(0, "vmcnt(%d)" % min(n, 63))
        if w:
            self.autowait = False
            self.ins("s_waitcnt " + " ".join(w))
            self.autowait = True

    def wait_regs(self, tok):
        i = I(); i.rd = regs_of(tok); i.wr = []
        self._autowait(i)

    def wait_vm_tag(self, tag):
        need = None
        for k, (t, d) in enumerate(self.vm):
            if t == tag: need = k
        if need is not None:
            n = len(self.vm) - 1 - need
            assert n <= 63
            self.ins("s_waitcnt vmcnt(%d)" % n)

    @staticmethod
    def _need(p, c):
        n = 0
        pw = set(p.wr); cr = set(c.rd); cw = set(c.wr)
        vw = {r for r in pw if r[0] in "va"}
        sw = {r for r in pw if r[0] == "s"}
        valu_like = ("valu", "trans", "perm", "dpp", "rdlane")
        if p.kind in valu_like:
            if c.kind == "mfma" and vw & cr: n = max(n, 2)
            if c.kind in ("perm", "dpp") and vw & cr: n = max(n, 2)
            if c.kind == "rdlane" and vw & cr: n = max(n, 1)
            if p.kind == "trans" and c.kind in valu_like and c.kind != "trans" and vw & cr: n = max(n, 1)
            if sw & cr:
                if c.kind in valu_like: n = max(n, 2 if c.kind != "rdlane" else 4)
                if c.kind in ("vmem", "dma", "store"): n = max(n, 5)
                if c.kind in ("salu", "smem"): n = max(n, 1)
        if p.kind == "mfma":
            passes = 8 if "32x32" in p.op else 4
            big = {4: 8, 8: 12}[passes]
            if c.kind == "mfma":
                ab = cr - set(c.srcC)
                if vw & ab: n = max(n, big)
                if vw & set(c.srcC) and set(c.srcC) != vw: n = max(n, {4: 6, 8: 10}[passes])
                if vw & cw and not (set(c.srcC) == vw): n = max(n, big)
            elif c.kind in valu_like or c.kind in ("ds", "vmem", "dma", "store"):
                if vw & (cr | cw): n = max(n, big)
            if c.kind in valu_like and set(p.srcC) & cw: n = max(n, {4: 3, 8: 7}[passes])
        if p.kind == "salu" and ("s", "m0") in pw and c.kind == "dma": n = max(n, 1)
        if p.kind == "store" and ("x4" in p.op or "x3" in p.op):
            if {r for r in p.rd if r[0] in "va"} & cw: n = max(n, 2)
        return n

    @staticmethod
    def _states(i):
        if i.op == "s_nop": return int(i.text.split()[1], 0) + 1
        return 1

    def pad_hazards(self):
        out = []; hist = []
        for it in self.items:
            if isinstance(it, str):
                out.append(it); continue
            need = 0; dist = 0
            for p in reversed(hist):
                r = self._need(p, it)
                if r > dist: need = max(need, r - dist)
                dist += self._states(p)
                if dist >= 16: break
            while need > 0:
                k = min(need, 16)
                nop = self._mk("s_nop %d" % (k - 1)); out.append(nop); hist.append(nop); need -= k
            out.append(it); hist.append(it)
            if len(hist) > 40: hist = hist[-24:]
        self.items = out

    def check_backedge(self, head, branch_idx_text):
        idx_h = next(k for k, it in enumerate(self.items) if it == head + ":")
        idx_b = max(k for k, it in enumerate(self.items) if not isinstance(it, str) and it.text == branch_idx_text)
        tail = [it for it in self.items[idx_h:idx_b + 1] if not isinstance(it, str)][-20:]
        headl = [it for it in self.items[idx_h:idx_b + 1] if not isinstance(it, str)][:20]
        seq = tail + headl
        for ci in range(len(tail), len(seq)):
            dist = 0
            for pi in range(ci - 1, -1, -1):
                r = self._need(seq[pi], seq[ci])
                assert r <= dist, ("backedge hazard", seq[pi].text, seq[ci].text, r, dist)
                dist += self._states(seq[pi])

    def _mk(self, line):
        t = Asm(); t.autowait = False
        return t.ins(line)

    def align8(self):
        out = []; pc = 0
        cand = []
        for it in self.items:
            if isinstance(it, str):
                if it.startswith(".p2align"):
                    pc = 0; cand = []
                out.append(it); continue
            if it.size == 8 and pc % 8 == 4:
                good = [c for c in cand if c[1] % 8 == 0]
                pick = good[-1] if good else (cand[-1] if cand else None)
                if pick is not None:
                    p = out[pick[0]]
                    p.text = p.text.replace(p.op, p.op + "_e64", 1); p.op = p.op + "_e64"; p.size = 8; p.e64ok = False
                else:
                    out.append(self._mk("s_nop 0"))
                pc += 4
            if it.size == 8: cand = []
            elif it.e64ok: cand.append((len(out), pc))
            out.append(it); pc += it.size
        self.items = out

    def text(self):
        o = []
        for it in self.items:
            o.append(it if isinstance(it, str) else "    " + it.text)
        return "\n".join(o) + "\n"
```

```python
import sys, math, struct
sys.path.insert(0, "dev")
from asmlib import *

OPT = dict(stamps=0, nt=1, map=1, nocompute=0)
for a in sys.argv[1:]:
    k, v = a.split("="); OPT[k] = int(v)

NAME = "concat_heads__mha_block_cached__gqa_block_cached__near_ridge"
K1 = "attn_kernel"; K2 = "oproj_kernel"
def f32(x): return "0x%08x" % struct.unpack("<I", struct.pack("<f", x))[0]
CSCALE = math.log2(math.e) / math.sqrt(128.0)
THR = 8.0
SLOT = 32768; NSLOT = 5
STAMP_OFF = 0x10000000
NTF = " nt" if OPT["nt"] else ""

def header(a, name):
    a.raw(".globl %s\n.p2align 8\n.type %s,@function" % (name, name)); a.label(name)

def srd(a, d, lo, hi, nrec):
    a("s_mov_b32 s%d, s%d\ns_mov_b32 s%d, s%d" % (d, lo, d + 1, hi))
    a("s_mov_b32 s%d, %s\ns_mov_b32 s%d, 0x20000" % (d + 2, nrec, d + 3))

def code_prefetch(a, start, end):
    a("s_getpc_b64 s[60:61]")
    a.label(start)
    a("v_lshlrev_b32 v12, 6, v0")
    a.items.append(a._mk("v_min_u32 v12, 0x1234, v12")); a.items[-1].text = "v_min_u32 v12, %s-%s, v12" % (end, start)
    a("global_load_dword v253, v12, s[60:61]")

def stamp(a, k):
    if OPT["stamps"]:
        a("s_memrealtime s[%d:%d]" % (64 + 2 * k, 65 + 2 * k))

def stamp_store(a, nst, base_off, lbl):
    if not OPT["stamps"]: return
    a("s_waitcnt lgkmcnt(0)")
    a("s_add_u32 s92, s92, 0x%x\ns_addc_u32 s93, s93, 0" % base_off)
    a("s_mov_b32 s94, 0x100000\ns_mov_b32 s95, 0x20000")
    a("s_mul_i32 s3, s2, %d" % (nst * 8))
    a("v_mov_b32 v12, s3")
    a("s_mov_b64 exec, 1")
    for k in range(nst):
        a("v_mov_b32 v14, s%d\nv_mov_b32 v15, s%d" % (64 + 2 * k, 65 + 2 * k))
        a("buffer_store_dwordx2 v[14:15], v12, s[92:95], 0 offen offset:%d" % (8 * k))
        a("s_nop 1")

vK, vVa, vVb = 1, 2, 3
vD = 4
vONE = 8
vT = 12
vQ = 16
vO = 64
vL = 160
vM = 172
vS = 184
vF = 208
def Q(t, s): return vr(vQ + 16 * t + 4 * s, 4)
def O(t, dt): return vr(vO + 32 * t + 4 * dt, 4)
def L(t): return vr(vL + 4 * t, 4)
def M(t): return vr(vM + 4 * t, 4)
def S(t, kt): return vr(vS + 8 * t + 4 * kt, 4)
def F(i): return vF + 4 * i
MF = "v_mfma_f32_16x16x32_bf16"
sW = 20
sSlot = 21
sCnt = 22
sT0 = 23
sFl = 24
sLd = 25
sGo = 26
sTmp = 27
sT0row = 28
sSub = 29
sDelta = 30

def k1_role(a, NT, wload, role):
    kvload = not wload
    lab = lambda s: "L1_%s_%s" % (role, s)
    XD = 6 if NT == 3 else 12
    vA = [16, 160]
    if NT == 3: vX = [48, 192]
    else: vX = [48, 192]
    xslots = [48 + 4 * i for i in range(4)] + [192 + 4 * i for i in range(14)]
    if NT == 2: xslots = [48 + 4 * i for i in range(4)] + [128 + 4 * i for i in range(8)] + [192 + 4 * i for i in range(12)]
    assert len(xslots) >= XD * NT
    vXo = 248
    vWa, vWb = 249, 250
    def xreg(ks, t): return xslots[(ks % XD) * NT + t]
    def xload(ks):
        for t in range(NT):
            a("buffer_load_dwordx4 %s, v%d, s[12:15], s%d offen offset:%d" % (vr(xreg(ks, t), 4), vXo, 40 + t, ks * 64), tag="x")
    wslot = [3, 4, 2, 3, 4, 2, 3, 4]
    def wdma(j):
        for q in range(8):
            a("s_add_u32 m0, s%d, %d" % (sSub, wslot[j] * SLOT + q * 1024))
            a("s_add_u32 s%d, s%d, %d" % (sTmp, sGo, (j * 64 + q * 4) * 8192))
            a("buffer_load_dwordx4 v%d, s[8:11], s%d offen lds" % (vD + ((q >> 1) & 1), sTmp), tag="w%d" % j)
    def kvdma(slot_imm=None, tile=None):
        for half in range(2):
            if slot_imm is not None:
                a("s_add_u32 m0, s%d, %d" % (sSub, slot_imm * SLOT + half * 4096))
                a("s_mov_b32 s%d, %d" % (sTmp, tile * 8192 + half * 4096))
            for q in range(4):
                a("buffer_load_dwordx4 v%d, s[8:11], s%d offen offset:%d%s lds" % (vD + q, sTmp, q * 1024, NTF), tag="kv")
    a("v_and_b32 v12, 63, v0")
    a("v_lshrrev_b32 v13, 4, v12")
    a("v_and_b32 v14, 15, v12")
    a("v_lshlrev_b32 v%d, 10, v14" % vXo)
    a("v_lshl_add_u32 v%d, v13, 4, v%d" % (vXo, vXo))
    for t in range(NT):
        a("s_add_u32 s%d, s%d, %d" % (40 + t, sT0row, t))
        a("s_lshl_b32 s%d, s%d, 14" % (40 + t, 40 + t))
    a("v_bfe_u32 v15, v12, 2, 2")
    a("v_and_b32 v%d, 3, v12" % vD)
    a("v_lshlrev_b32 v%d, 4, v%d" % (vD, vD))
    a("v_lshl_add_u32 v%d, v13, 6, v%d" % (vD, vD))
    if wload:
        a("v_lshl_add_u32 v%d, v15, 13, v%d" % (vD, vD))
        a("v_xor_b32 v%d, 32, v%d" % (vD + 1, vD))
        for j in range(3): wdma(j) if j == 0 else None
    else:
        a("v_lshl_add_u32 v%d, v15, 8, v%d" % (vD, vD))
        a("s_and_b32 s%d, s%d, 1" % (sTmp, sW))
        a("s_cmp_eq_u32 s%d, 0" % sTmp)
        a("s_cselect_b32 s44, 0, 32\ns_cselect_b32 s45, 16, 0\ns_cselect_b32 s46, 16, 32")
        a("v_xor_b32 v%d, s44, v%d" % (vD + 1, vD))
        a("v_xor_b32 v%d, s45, v%d" % (vD + 2, vD))
        a("v_xor_b32 v%d, s46, v%d" % (vD + 3, vD))
    for ks in range(2): xload(ks)
    if wload: wdma(1)
    for ks in range(2, 4): xload(ks)
    if wload: wdma(2)
    for ks in range(4, XD): xload(ks)
    if kvload:
        kvdma(0, 0); kvdma(1, 1)
    a("s_lshr_b32 s47, s%d, 2\ns_lshl_b32 s47, s47, 14" % sW)
    a("v_and_b32 v%d, 3, v12" % vVa)
    a("v_lshlrev_b32 v%d, 3, v%d" % (vVa, vVa))
    a("v_lshl_add_u32 v%d, v15, 6, v%d" % (vVa, vVa))
    a("v_and_b32 v%d, 1, v13" % vVb)
    a("v_lshl_add_u32 v%d, v%d, 5, v%d" % (vVa, vVb, vVa))
    a("v_add_u32 v%d, s47, v%d" % (vVa, vVa))
    a("v_lshl_add_u32 v%d, v13, 11, v%d" % (vWa, vVa))
    a("v_xor_b32 v%d, 32, v%d" % (vWb, vWa))
    a("v_lshl_add_u32 v%d, v13, 10, v%d" % (vVa, vVa))
    a("v_add_u32 v%d, 8192, v%d" % (vVa, vVa))
    a("v_xor_b32 v%d, 32, v%d" % (vVb, vVa))
    a("v_lshrrev_b32 v%d, 2, v14" % vK)
    a("v_lshlrev_b32 v%d, 10, v%d" % (vK, vK))
    a("v_and_b32 v15, 3, v14")
    a("v_lshl_add_u32 v%d, v15, 6, v%d" % (vK, vK))
    a("v_lshrrev_b32 v15, 1, v13")
    a("v_and_b32 v13, 1, v13")
    a("v_lshl_or_b32 v15, v13, 1, v15")
    a("v_lshrrev_b32 v13, 3, v14")
    a("v_xor_b32 v15, v15, v13")
    a("v_lshl_add_u32 v%d, v15, 4, v%d" % (vK, vK))
    a("v_add_u32 v%d, s47, v%d" % (vK, vK))
    vW1, vW2 = 251, 252
    def wreads(j, u):
        buf = vA[u]
        for dt in range(8):
            for rd in range(2):
                a("ds_read_b64_tr_b16 %s, v%d offset:%d" % (vr(buf + 4 * dt + 2 * rd, 2), vW2 if dt & 1 else vW1,
                                                             u * 8192 + rd * 1024 + (dt >> 1) * 256))
    def qmfma(ks):
        buf = vA[ks & 1]
        for dt in range(8):
            for t in range(NT):
                a("%s %s, %s, %s, %s" % (MF, O(t, dt), vr(buf + 4 * dt, 4), vr(xreg(ks, t), 4), "0" if ks == 0 else O(t, dt)))
        if ks + XD < 16: xload(ks + XD)
    stamp(a, 1)
    for j in range(8):
        if wload: a.wait_vm_tag("w%d" % j)
        a("v_add_u32 v%d, %d, v%d" % (vW1, wslot[j] * SLOT, vWa))
        a("v_add_u32 v%d, %d, v%d" % (vW2, wslot[j] * SLOT, vWb))
        a("s_waitcnt lgkmcnt(0)")
        a("s_barrier")
        if j == 0: stamp(a, 2)
        wreads(j, 0)
        if wload and j >= 1 and j + 2 < 8: wdma(j + 2)
        if kvload and j >= 6: kvdma(j - 4, j - 4)
        if j > 0: qmfma(2 * j - 1)
        wreads(j, 1)
        qmfma(2 * j)
    qmfma(15)
    a("s_mov_b32 s48, %s" % f32(CSCALE))
    for t in range(NT):
        for s in range(4):
            b = vO + 32 * t + 8 * s
            for r in range(8): a("v_mul_f32 v%d, s48, v%d" % (b + r, b + r))
            q = vQ + 16 * t + 4 * s
            for r in range(4): a("v_cvt_pk_bf16_f32 v%d, v%d, v%d" % (q + r, b + 2 * r, b + 2 * r + 1))
    for t in range(NT):
        for s in range(4):
            q = vQ + 16 * t + 4 * s
            a("v_permlane16_swap_b32 v%d, v%d" % (q, q + 2))
            a("v_permlane16_swap_b32 v%d, v%d" % (q + 1, q + 3))
    for r in range(vO, vO + 32 * NT): a("v_mov_b32 v%d, 0" % r)
    for r in list(range(vL, vL + 4 * NT)) + list(range(vM, vM + 4 * NT)) + list(range(vS, vS + 8 * NT)) + list(range(vF, vF + 32)):
        a("v_mov_b32 v%d, 0" % r)
    for r in range(4): a("v_mov_b32 v%d, 0x3f803f80" % (vONE + r))
    a("s_mov_b32 s%d, 0xff800000" % sT0)
    a("s_mov_b32 s%d, 0xff800000" % sFl)
    a("s_mov_b32 s%d, 0" % sCnt)
    a("s_mov_b32 s%d, 0" % sSlot)
    a("s_add_u32 s%d, s%d, %d" % (sLd, sSub, 4 * SLOT))
    a("s_mov_b32 s%d, %d" % (sGo, 4 * 8192))
    stamp(a, 3)
    TL = NT - 1
    Ga, Gb, Gc = 0, 4, 8
    def kread(kt, s):
        slot = (Gc + s) if kt == 0 else (Gb + s)
        return "ds_read_b128 %s, v%d offset:%d" % (vr(F(slot), 4), vK, kt * 4096 + s * 256)
    def vslot(dt): return (Ga + dt) if dt < 4 else (Gb + dt - 4)
    def vread(dt, rd):
        return "ds_read_b64_tr_b16 %s, v%d offset:%d" % (vr(F(vslot(dt)) + 2 * rd, 2), vVb if dt & 1 else vVa, rd * 4096 + (dt >> 1) * 256)
    def pv(t, dt): return "%s %s, %s, %s, %s" % (MF, O(t, dt), vr(F(vslot(dt)), 4), S(t, 0), O(t, dt))
    def lsum(t): return "%s %s, %s, %s, %s" % (MF, L(t), vr(vONE, 4), S(t, 0), L(t))
    def qk(t, kt, s):
        slot = (Gc + s) if kt == 0 else (Gb + s)
        return "%s %s, %s, %s, %s" % (MF, S(t, kt), vr(F(slot), 4), Q(t, s), M(t) if s == 0 else S(t, kt))
    def sm(t):
        b = vS + 8 * t
        o = ["v_max3_f32 v%d, v%d, v%d, v%d" % (vT, b, b + 1, b + 2),
             "v_max3_f32 v%d, v%d, v%d, v%d" % (vT + 1, b + 3, b + 4, b + 5),
             "v_max3_f32 v%d, v%d, v%d, v%d" % (vT, vT, b + 6, b + 7),
             "v_max_f32 v%d, v%d, v%d" % (vT, vT, vT + 1),
             "v_cmp_lt_f32 vcc, s%d, v%d" % (sT0, vT),
             "s_cbranch_vccnz %s\n%s:" % (lab("rare%d" % t), lab("back%d" % t))]
        for r in range(8): o.append("v_exp_f32 v%d, v%d" % (b + r, b + r))
        for r in range(4): o.append("v_cvt_pk_bf16_f32 v%d, v%d, v%d" % (b + r, b + 2 * r, b + 2 * r + 1))
        return o
    a.raw(".p2align 6")
    a.label(lab("loop"))
    if kvload: a("s_waitcnt vmcnt(24)")
    a("s_barrier")
    mf = []; fill = {}
    def put(idx, ops): fill.setdefault(idx, []).extend(ops)
    mf += [pv(TL, dt) for dt in (4, 5, 6, 7)] + [pv(TL, dt) for dt in (0, 1, 2, 3)] + [lsum(TL)]
    qk_end = {}
    for t in range(NT):
        order = (0, 1) if t < TL else (1, 0)
        for kt in order:
            mf += [qk(t, kt, s) for s in range(4)]
            if t == TL and kt == 1: v47_at = len(mf) - 1
        qk_end[t] = len(mf) - 1
    pv_start = {}
    for t in range(TL):
        pv_start[t] = len(mf)
        mf += [pv(t, dt) for dt in range(4)] + [lsum(t)] + [pv(t, dt) for dt in range(4, 8)]
    n = len(mf)
    put(8, ["WAIT " + vr(F(Gc), 16)])
    put(12, ["WAIT " + vr(F(Gb), 16)])
    pre = [kread(0, s) for s in range(4)]
    if kvload:
        d = []
        for half in range(2):
            d.append(("s_mov_b32 m0, s%d" % sLd) if half == 0 else ("s_add_u32 m0, s%d, 4096" % sLd))
            d.append(("s_mov_b32 s%d, s%d" % (sTmp, sGo)) if half == 0 else ("s_add_u32 s%d, s%d, 4096" % (sTmp, sGo)))
            for q in range(4):
                d.append("buffer_load_dwordx4 v%d, s[8:11], s%d offen offset:%d%s lds" % (vD + q, sTmp, q * 1024, NTF))
        pre += d[:3]
        for k, x in enumerate(d[3:]): put(k, [x])
        put(9, ["s_add_u32 s%d, s%d, 8192" % (sGo, sGo),
                "s_add_u32 s%d, s%d, %d" % (sLd, sLd, SLOT),
                "s_cmp_ge_u32 s%d, %d" % (sLd, NSLOT * SLOT),
                "s_cselect_b32 s%d, %d, 0" % (sTmp, NSLOT * SLOT),
                "s_sub_u32 s%d, s%d, s%d" % (sLd, sLd, sTmp)])
    for s in range(4): put(s, [kread(1, s)])
    for dt in range(4): put(4 + dt, [vread(dt, 0), vread(dt, 1)])
    for dt in range(4, 8): put(v47_at - 3 + (dt - 4), [vread(dt, 0), vread(dt, 1)])
    for t in range(NT):
        ops = sm(t)
        lo = qk_end[t] + 3
        hi = (pv_start[t] - 1) if t < TL else n - 1
        if t + 1 < NT: hi = min(hi, qk_end[t + 1] + 2)
        span = hi - lo + 1
        for k, x in enumerate(ops): put(lo + (k * span) // len(ops), [x])
    put(pv_start[0] - 1, ["WAIT " + vr(F(Ga), 16)])
    put(pv_start[0] + 4, ["WAIT " + vr(F(Gb), 16)])
    adv = ["s_add_u32 s%d, s%d, 1" % (sSlot, sSlot),
           "s_cmp_eq_u32 s%d, %d" % (sSlot, NSLOT),
           "s_cselect_b32 s%d, %d, %d" % (sDelta, (-(NSLOT - 1) * SLOT) & 0xffffffff, SLOT) if False else "s_cselect_b32 s%d, s50, s51" % sDelta,
           "s_cselect_b32 s%d, 0, s%d" % (sSlot, sSlot)]
    put(10, adv)
    put(v47_at + 1, ["v_add_u32 v%d, s%d, v%d" % (r, sDelta, r) for r in (vK, vVa, vVb)])
    if not OPT["nocompute"]:
        for x in pre: a(x)
        for k, m in enumerate(mf):
            a(m)
            for x in fill.get(k, []): a(x)
    else:
        for x in pre:
            if not x.startswith("ds_"): a(x)
        for k, m in enumerate(mf):
            for x in fill.get(k, []):
                if x.startswith("s_") and not x.startswith("s_cbranch") or x.startswith("buffer"): a(x)
    a("s_mov_b32 s%d, %s" % (sT0, f32(THR)))
    a("s_mov_b32 s%d, 0" % sFl)
    a("s_add_u32 s%d, s%d, 1" % (sCnt, sCnt))
    a("s_cmp_lt_u32 s%d, 32" % sCnt)
    a("s_waitcnt lgkmcnt(0)")
    a("s_cbranch_scc1 %s" % lab("loop"))
    a.vm = []
    stamp(a, 4)
    for dt in range(8): a(pv(TL, dt))
    a(lsum(TL))
    a("v_and_b32 v12, 63, v0\nv_lshlrev_b32 v12, 4, v12")
    for t in range(NT):
        a("v_rcp_f32 v13, v%d" % (vL + 4 * t))
        for s in range(4):
            b = vO + 32 * t + 8 * s
            for r in range(8): a("v_mul_f32 v%d, v13, v%d" % (b + r, b + r))
            for r in range(4): a("v_cvt_pk_bf16_f32 v%d, v%d, v%d" % (b + r, b + 2 * r, b + 2 * r + 1))
            a("s_add_u32 s%d, s52, %d" % (sTmp, (s * 9 + t) * 1024))
            a("buffer_store_dwordx4 %s, v12, s[16:19], s%d offen" % (vr(b, 4), sTmp))
    if OPT["stamps"]:
        a("s_waitcnt vmcnt(0)")
        stamp(a, 5)
        a("s_cmp_lg_u32 s%d, 0" % sW)
        a("s_cbranch_scc1 L1_end")
        stamp_store(a, 6, STAMP_OFF, lab("st"))
    a("s_endpgm")
    if not OPT["nocompute"]:
      for t in range(NT):
        b = vS + 8 * t
        a.label(lab("rare%d" % t))
        a("s_nop 15")
        a("v_mov_b32 v%d, v%d" % (vT + 1, vT))
        a("v_permlane16_swap_b32 v%d, v%d" % (vT, vT + 1))
        a("v_max_f32 v%d, v%d, v%d" % (vT, vT, vT + 1))
        a("v_mov_b32 v%d, v%d" % (vT + 1, vT))
        a("v_permlane32_swap_b32 v%d, v%d" % (vT, vT + 1))
        a("v_max_f32 v%d, v%d, v%d" % (vT, vT, vT + 1))
        a("v_max_f32 v%d, s%d, v%d" % (vT, sFl, vT))
        a("v_max_f32 v%d, 0, v%d" % (vT + 1, vT))
        a("v_exp_f32 v%d, -v%d" % (vT + 1, vT + 1))
        for r in range(8): a("v_sub_f32 v%d, v%d, v%d" % (b + r, b + r, vT))
        for r in range(4): a("v_sub_f32 v%d, v%d, v%d" % (vM + 4 * t + r, vM + 4 * t + r, vT))
        for r in range(4): a("v_mul_f32 v%d, v%d, v%d" % (vL + 4 * t + r, vL + 4 * t + r, vT + 1))
        for r in range(32): a("v_mul_f32 v%d, v%d, v%d" % (vO + 32 * t + r, vO + 32 * t + r, vT + 1))
        a("s_nop 3")
        a("s_branch %s" % lab("back%d" % t))
    return lab("loop")

def kernel1():
    a = Asm()
    header(a, K1)
    a("s_cmp_ge_u32 s2, 256\ns_cbranch_scc1 L1_end")
    stamp(a, 0)
    a("s_and_b32 s31, s2, 7\ns_lshr_b32 s32, s2, 3")
    if OPT["map"] == 1:
        a("s_lshr_b32 s33, s32, 4\ns_lshl_b32 s34, s31, 1\ns_add_u32 s33, s33, s34")
        a("s_and_b32 s35, s32, 15")
    else:
        a("s_lshr_b32 s33, s31, 2\ns_lshl_b32 s33, s33, 3\ns_lshr_b32 s34, s32, 2\ns_add_u32 s33, s33, s34")
        a("s_and_b32 s35, s31, 3\ns_lshl_b32 s35, s35, 2\ns_and_b32 s34, s32, 3\ns_add_u32 s35, s35, s34")
    a("s_lshr_b32 s36, s33, 3\ns_and_b32 s37, s33, 7")
    a("s_mul_i32 s34, s36, 40")
    a("s_add_u32 s4, s0, s34\ns_addc_u32 s5, s1, 0")
    a("s_load_dwordx8 s[80:87], s[4:5], 0")
    a("s_load_dwordx2 s[92:93], s[0:1], 96")
    code_prefetch(a, "L1_pf", "L1_end")
    a("v_lshrrev_b32 v12, 6, v0")
    a("v_readfirstlane_b32 s%d, v12" % sW)
    a("s_lshr_b32 s38, s%d, 2" % sW)
    a("s_and_b32 s39, s%d, 3" % sW)
    a("s_lshl_b32 s%d, s39, 1\ns_add_u32 s%d, s%d, 1" % (sT0row, sT0row, sT0row))
    a("s_cmp_eq_u32 s%d, 5\ns_cselect_b32 s%d, 2, s%d" % (sW, sT0row, sT0row))
    a("s_cmp_eq_u32 s39, 0\ns_cselect_b32 s%d, 0, s%d" % (sT0row, sT0row))
    a("s_and_b32 s34, s%d, 1\ns_lshl_b32 s34, s34, 13\ns_lshl_b32 s%d, s38, 14\ns_add_u32 s%d, s%d, s34" % (sW, sSub, sSub, sSub))
    a("s_lshl_b32 s53, s35, 1\ns_add_u32 s53, s53, s38")
    a("s_mul_i32 s52, s53, 36\ns_add_u32 s52, s52, s%d\ns_lshl_b32 s52, s52, 10" % sT0row)
    a("s_mov_b32 s50, 0x%x\ns_mov_b32 s51, %d" % ((-(NSLOT - 1) * SLOT) & 0xffffffff, SLOT))
    a("s_waitcnt lgkmcnt(0)")
    a("s_mul_i32 s34, s37, 147456")
    a("s_add_u32 s80, s80, s34\ns_addc_u32 s81, s81, 0")
    srd(a, 12, 80, 81, "147456")
    a("s_mul_i32 s34, s33, %d" % (128 * 9 * 1024))
    a("s_add_u32 s54, s92, s34\ns_addc_u32 s55, s93, 0")
    srd(a, 16, 54, 55, "%d" % (128 * 9 * 1024))
    a("s_cmp_ge_u32 s39, 2\ns_cbranch_scc1 L1_kv")
    srd(a, 8, 86, 87, "%d" % (512 * 8192))
    a("s_and_b32 s34, s%d, 1\ns_lshl_b32 s34, s34, 18\ns_lshl_b32 s%d, s53, 8\ns_add_u32 s%d, s%d, s34" % (sW, sGo, sGo, sGo))
    a("s_cmp_eq_u32 s39, s38\ns_cbranch_scc0 L1_w2")
    loops = []
    st = (list(a.lgkm), list(a.vm))
    loops.append(k1_role(a, 3, True, "a"))
    a.lgkm, a.vm = list(st[0]), list(st[1])
    a.raw(".p2align 3"); a.label("L1_w2")
    loops.append(k1_role(a, 2, True, "b"))
    a.lgkm, a.vm = list(st[0]), list(st[1])
    a.raw(".p2align 3"); a.label("L1_kv")
    a("s_and_b32 s34, s%d, 1\ns_cmp_eq_u32 s34, 0" % sW)
    a("s_cselect_b32 s56, s82, s84\ns_cselect_b32 s57, s83, s85")
    a("s_lshl_b32 s34, s37, 5\ns_add_u32 s34, s34, s53")
    a("s_lshl_b32 s58, s34, 18\ns_lshr_b32 s59, s34, 14")
    a("s_add_u32 s56, s56, s58\ns_addc_u32 s57, s57, s59")
    srd(a, 8, 56, 57, "262144")
    loops.append(k1_role(a, 2, False, "c"))
    a.label("L1_end"); a("s_endpgm")
    a.pad_hazards()
    for l in loops: a.check_backedge(l, "s_cbranch_scc1 " + l)
    a.align8()
    return a.text()

def k2_path(a, NR, role):
    lab = lambda s: "L2_%s_%s" % (role, s)
    D = 8
    vB = 16
    vAf = 176
    def B(k, t): return vr(vB + ((k % D) * NR + t) * 4, 4)
    def ACC(t, ct): return ar((t * 4 + ct) * 4, 4)
    def issue(k):
        a("s_add_u32 m0, s33, %d" % ((k % D) * 4096))
        a("s_add_u32 s34, s31, %d" % (k * 9216))
        a("s_add_u32 s35, s32, %d" % (k * 32768))
        for q in range(4):
            a("buffer_load_dwordx4 v%d, s[8:11], s35 offen offset:%d lds" % (4 + q, q * 1024), tag="k%d" % (k % D))
        for t in range(NR):
            if t < 4: a("buffer_load_dwordx4 %s, v1, s[12:15], s34 offen offset:%d" % (B(k, t), t * 1024), tag="k%d" % (k % D))
            else: a("buffer_load_dwordx4 %s, v8, s[12:15], s34 offen" % (B(k, t)), tag="k%d" % (k % D))
    for k in range(D - 1): issue(k)
    for i in range(NR * 16): a("v_accvgpr_write_b32 a%d, 0" % i)
    a("s_mov_b32 s36, 0")
    a.raw(".p2align 6")
    a.label(lab("loop"))
    save = list(a.vm)
    a.autowait = True
    for k in range(D):
        a("s_waitcnt vmcnt(%d)" % ((D - 2) * (NR + 4)))
        a.vm = []
        buf = vAf + 16 * (k & 1)
        for ct in range(4):
            for rd in range(2):
                a("ds_read_b64_tr_b16 %s, v%d offset:%d" % (vr(buf + 4 * ct + 2 * rd, 2), 3 if ct & 1 else 2,
                                                             k * 4096 + rd * 2048 + (ct >> 1) * 256))
        issue(k + D - 1)
        a.vm = []
        for ct in range(4):
            for t in range(NR):
                a("%s %s, %s, %s, %s" % (MF, ACC(t, ct), vr(buf + 4 * ct, 4), B(k, t), ACC(t, ct)))
    a("s_add_u32 s31, s31, %d" % (D * 9216))
    a("s_add_u32 s32, s32, %d" % (D * 32768))
    a("s_add_u32 s36, s36, 1")
    a("s_cmp_lt_u32 s36, %d" % (32 // D))
    a("s_cbranch_scc1 %s" % lab("loop"))
    a("s_waitcnt vmcnt(0)")
    stamp(a, 1)
    for i in range(NR * 4):
        a("ds_write_b128 v9, %s offset:%d" % (ar(i * 4, 4), i * 1024))
    a("s_waitcnt lgkmcnt(0)")
    a("s_barrier")
    for t in range(NR):
        for w in range(4):
            a("ds_read_b128 %s, v%d offset:%d" % (vr(16 + (t * 4 + w) * 4, 4), 10 + (w >> 1), (w & 1) * 32768 + t * 4096))
    for t in range(NR):
        b = 16 + t * 16
        for r in range(4):
            a("v_add_f32 v%d, v%d, v%d" % (b + r, b + r, b + 4 + r))
            a("v_add_f32 v%d, v%d, v%d" % (b + 8 + r, b + 8 + r, b + 12 + r))
            a("v_add_f32 v%d, v%d, v%d" % (b + r, b + r, b + 8 + r))
        a("v_cvt_pk_bf16_f32 v%d, v%d, v%d" % (b, b, b + 1))
        a("v_cvt_pk_bf16_f32 v%d, v%d, v%d" % (b + 1, b + 2, b + 3))
        a("s_add_u32 s34, s37, %d" % (t * 32768))
        a("buffer_store_dwordx2 %s, v12, s[16:19], s34 offen" % vr(b, 2))
    if OPT["stamps"]:
        a("s_waitcnt vmcnt(0)")
        stamp(a, 2)
        a("s_cmp_lg_u32 s20, 0")
        a("s_cbranch_scc1 L2_end")
        stamp_store(a, 6, STAMP_OFF + 256 * 48, lab("st"))
    a("s_endpgm")
    return lab("loop")

def kernel2():
    a = Asm()
    header(a, K2)
    a("s_cmp_ge_u32 s2, 256\ns_cbranch_scc1 L2_end")
    stamp(a, 0)
    if OPT["stamps"]:
        for k in range(3, 6): stamp(a, k)
    a("s_and_b32 s40, s2, 7\ns_lshr_b32 s41, s2, 3")
    a("s_lshr_b32 s42, s41, 4\ns_lshl_b32 s43, s40, 1\ns_add_u32 s42, s42, s43")
    a("s_and_b32 s44, s41, 7")
    a("s_bfe_u32 s45, s41, 0x10003")
    a("s_lshr_b32 s46, s42, 3\ns_and_b32 s47, s42, 7")
    a("s_mul_i32 s43, s46, 40")
    a("s_add_u32 s4, s0, s43\ns_addc_u32 s5, s1, 0")
    a("s_load_dwordx2 s[80:81], s[4:5], 32")
    a("s_load_dwordx2 s[82:83], s[0:1], 80")
    a("s_load_dwordx2 s[92:93], s[0:1], 96")
    code_prefetch(a, "L2_pf", "L2_end")
    a("v_lshrrev_b32 v12, 6, v0")
    a("v_readfirstlane_b32 s20, v12")
    a("v_and_b32 v12, 63, v0")
    a("v_lshlrev_b32 v1, 4, v12")
    a("v_add_u32 v8, 4096, v1")
    a("v_lshrrev_b32 v13, 4, v12")
    a("v_bfe_u32 v15, v12, 2, 2")
    a("v_lshrrev_b32 v14, 5, v12")
    a("v_and_b32 v4, 3, v12")
    a("v_lshlrev_b32 v5, 1, v14")
    a("v_xor_b32 v4, v4, v5")
    a("v_lshlrev_b32 v4, 4, v4")
    a("v_and_b32 v5, 1, v13")
    a("v_lshl_add_u32 v4, v5, 6, v4")
    a("v_lshl_add_u32 v4, v15, 10, v4")
    a("v_lshl_add_u32 v4, v14, 12, v4")
    a("s_lshl_b32 s33, s20, 15")
    a("v_and_b32 v2, 3, v12\nv_lshlrev_b32 v2, 3, v2")
    a("v_lshl_add_u32 v2, v15, 6, v2")
    a("v_lshl_add_u32 v2, v5, 5, v2")
    a("v_lshl_add_u32 v2, v13, 9, v2")
    a("v_add_u32 v2, s33, v2")
    a("v_xor_b32 v3, 32, v2")
    for q in range(1, 4): a("v_add_u32 v%d, %d, v4" % (4 + q, 7168 * q))
    a("v_add_u32 v9, s33, v1")
    a("s_lshl_b32 s43, s20, 10")
    a("v_add_u32 v10, s43, v1")
    a("v_add_u32 v11, 65536, v10")
    a("v_and_b32 v14, 15, v12")
    a("v_lshlrev_b32 v12, 11, v14")
    a("v_lshl_add_u32 v12, v13, 3, v12")
    a("s_mul_i32 s48, s45, 5")
    a("s_mul_i32 s37, s47, 144\ns_lshl_b32 s43, s48, 4\ns_add_u32 s37, s37, s43\ns_lshl_b32 s37, s37, 11")
    a("s_lshl_b32 s43, s46, 10\ns_add_u32 s37, s37, s43")
    a("s_lshl_b32 s43, s44, 7\ns_add_u32 s37, s37, s43")
    a("s_lshl_b32 s43, s20, 5\ns_add_u32 s37, s37, s43")
    a("s_mul_i32 s31, s20, %d\ns_lshl_b32 s43, s48, 10\ns_add_u32 s31, s31, s43" % (32 * 9216))
    a("s_lshl_b32 s32, s20, 20\ns_lshl_b32 s43, s44, 7\ns_add_u32 s32, s32, s43")
    a("s_add_u32 s49, s20, 1")
    a("s_waitcnt lgkmcnt(0)")
    a("s_lshl_b32 s50, s49, 20")
    srd(a, 8, 80, 81, "s50")
    a("s_mul_i32 s43, s42, %d" % (128 * 9 * 1024))
    a("s_add_u32 s54, s92, s43\ns_addc_u32 s55, s93, 0")
    a("s_mul_i32 s51, s49, %d" % (32 * 9216))
    srd(a, 12, 54, 55, "s51")
    srd(a, 16, 82, 83, "%d" % (8 * 144 * 1024 * 2))
    a("s_cmp_eq_u32 s45, 0\ns_cbranch_scc0 L2_r1")
    st = (list(a.lgkm), list(a.vm))
    loops = [k2_path(a, 5, "a")]
    a.lgkm, a.vm = list(st[0]), list(st[1])
    a.raw(".p2align 3"); a.label("L2_r1")
    loops.append(k2_path(a, 4, "b"))
    a.label("L2_end"); a("s_endpgm")
    a.pad_hazards()
    for l in loops: a.check_backedge(l, "s_cbranch_scc1 " + l)
    a.align8()
    return a.text()

def desc(name, nv, acc):
    return """.amdhsa_kernel %s
  .amdhsa_next_free_vgpr %d
  .amdhsa_next_free_sgpr 102
  .amdhsa_accum_offset %d
  .amdhsa_group_segment_fixed_size 0
  .amdhsa_kernarg_size 104
  .amdhsa_user_sgpr_count 2
  .amdhsa_user_sgpr_kernarg_segment_ptr 1
  .amdhsa_system_sgpr_workgroup_id_x 1
.end_amdhsa_kernel
""" % (name, nv, acc)

out = []
out.append("; @launch kernel=%s grid=(256,1,1) block=(512,1,1) lds=163840" % K1)
out.append("; @launch kernel=%s grid=(256,1,1) block=(256,1,1) lds=131072" % K2)
out.append('.amdgcn_target "amdgcn-amd-amdhsa--gfx950"\n.text')
out.append(kernel1())
out.append(kernel2())
out.append("s_nop 0\n" * 0)
out.append('.section .rodata,"a"\n.p2align 6')
out.append(desc(K1, 256, 256))
out.append(".p2align 6")
out.append(desc(K2, 336, 256))
print("\n".join(out))
```

```python
import sys, math, struct
sys.path.insert(0, "dev")
from asmlib import *

OPT = dict(stamps=0, samekv=0, clk=0, prio=0, noop=0, hst=0, nopoll=0, polo=2, polw=0, polx=0, polwo=0, pols=2, norot=0, hnl=0, hnc=0, hnx=0, hnw=0, nhin=2, pfwo=1, pfo=1, slp=4, oponly=0, pfm=1, t1=99, ast=0)
for a_ in sys.argv[1:]:
    k, v = a_.split("="); OPT[k] = int(v)

NAME = "concat_heads__mha_block_cached__gqa_block_cached__near_ridge_kernel"
def f32(x): return "0x%08x" % struct.unpack("<I", struct.pack("<f", x))[0]
CSCALE = math.log2(math.e) / math.sqrt(128.0)
THR = 8.0
KB = 1024
SLOT = 32 * KB
HB = [0, 51200, 102400]
Q2B = 96 * KB; Q1A = 132 * KB; Q1C = 32 * KB
MLB = 156 * KB; CNT = 160 * KB - 64
STAMP_OFF = 0x10000000
FLAG_OFF = 0x2000000
TAGW = CNT + 8
OOB = 0x40000000
MF = "v_mfma_f32_16x16x32_bf16"
NST = 8
POL = ["", " nt", " sc1", " sc0 sc1", " sc1 nt"]

S_WQ, S_X, S_O, S_KV, S_WO, S_OUT, S_DBG, S_FL = 8, 12, 16, 20, 24, 28, 32, 4
sW, sG, sJJ, sBlk, sB, sRot, sT, sT2, sT3 = 36, 37, 38, 39, 40, 41, 42, 43, 44
sCnt, sThr, sFl, sSlot, sDelta, sItem, sPub, sBar, sExch, sOoff = 45, 46, 47, 48, 49, 50, 51, 52, 53, 54
sNeg, sPos, sLd, sGo, sKg, sRho = 55, 56, 57, 58, 59, 62
sOc, sOn, sWn, sIo, sIw, sEnd, sOpL, sBlkP, sBlkE, sM1, sM2 = 46, 47, 48, 49, 50, 51, 52, 53, 54, 55, 56
sOb, sWb, sOutOff, sOpIdx, sTag, sWant = 80, 81, 82, 83, 84, 85

def srd(a, d, lo, hi, nrec):
    a("s_mov_b32 s%d, s%d\ns_mov_b32 s%d, s%d" % (d, lo, d + 1, hi))
    a("s_mov_b32 s%d, %s\ns_mov_b32 s%d, 0x20000" % (d + 2, nrec, d + 3))
def SR(d): return "s[%d:%d]" % (d, d + 3)

def astamp(a, k):
    if OPT["ast"]: a("s_memrealtime s[%d:%d]" % (64 + 2 * k, 65 + 2 * k))
def stamp(a, k, clk=False, hs=False):
    if OPT["ast"] and k and k != 7: return
    if OPT["hst"] and k and not hs: return
    if hs and not OPT["hst"]: return
    if OPT["stamps"]:
        a("%s s[%d:%d]" % ("s_memtime" if clk else "s_memrealtime", 64 + 2 * k, 65 + 2 * k))

def stamp_store(a):
    if not OPT["stamps"]: return
    a("s_waitcnt vmcnt(0) lgkmcnt(0)")
    a("s_cmp_eq_u32 s%d, 6\ns_cselect_b32 s%d, 256, 0" % (sW, sT))
    a("s_mul_i32 s%d, s%d, 43\ns_lshr_b32 s%d, s%d, 8\ns_mul_i32 s%d, s%d, 6" % (sT2, sW, sT2, sT2, sT2, sT2))
    a("s_cmp_lg_u32 s%d, s%d\ns_cbranch_scc1 L_end" % (sT2, sW))
    a("s_add_u32 s92, s92, 0x%x\ns_addc_u32 s93, s93, 0" % STAMP_OFF)
    a("s_mov_b32 s94, 0x100000\ns_mov_b32 s95, 0x20000")
    a("s_add_u32 s3, s2, s%d\ns_mul_i32 s3, s3, %d" % (sT, NST * 8))
    a("v_mov_b32 v12, s3")
    a("s_mov_b64 exec, 1")
    for k in range(NST):
        a("v_mov_b32 v14, s%d\nv_mov_b32 v15, s%d" % (64 + 2 * k, 65 + 2 * k))
        a("buffer_store_dwordx2 v[14:15], v12, s[92:95], 0 offen offset:%d" % (8 * k))
        a("s_nop 1")

def lanes(a):
    a("v_and_b32 v12, 63, v0")
    a("v_lshrrev_b32 v13, 4, v12")
    a("v_and_b32 v14, 15, v12")
    a("v_bfe_u32 v15, v12, 2, 2")

vK, vVa, vVb = 1, 2, 3
vX1, vX2, vX3, vX4 = 4, 5, 6, 7
vONE, vT, vQ, vO, vL, vM, vS, vF = 8, 12, 16, 64, 160, 172, 184, 208
def Q(t, s): return vr(vQ + 16 * t + 4 * s, 4)
def O(t, dt): return vr(vO + 32 * t + 4 * dt, 4)
def L(t): return vr(vL + 4 * t, 4)
def M(t): return vr(vM + 4 * t, 4)
def S(t, kt): return vr(vS + 8 * t + 4 * kt, 4)
def F(i): return vF + 4 * i
vD = 240

def kv_tile(a, dreg, imm=None):
    ops = []
    for grp in range(4):
        if imm is not None:
            ops.append("s_add_u32 m0, s%d, %d" % (sKg, imm[0] * SLOT + grp * 4096))
            ops.append("s_mov_b32 s%d, %d" % (sT, imm[1] * 16384 + grp * 4096))
        else:
            ops.append("s_add_u32 m0, s%d, %d" % (sLd, grp * 4096))
            ops.append("s_add_u32 s%d, s%d, %d" % (sT, sGo, grp * 4096))
        for q in range(4):
            ops.append("buffer_load_dwordx4 v%d, %s, s%d offen offset:%d nt lds" % (dreg + q + (4 if grp >= 2 else 0), SR(S_KV), sT, q * 1024))
    for o in ops: a(o, tag="kv")

def head(a, att):
    vHW, vHX = 224, 228
    vA1, vA2, vBx = 231, 232, 233
    cA1, cA2, cBx = 234, 235, 236
    ACC = lambda t, d: vr(64 + 8 * t + 4 * d, 4)
    BF = lambda u, t: vr(136 + 36 * u + 4 * t, 4)
    AF = lambda u, d: 208 + 8 * u + 4 * d
    lanes(a)
    a("v_and_b32 v%d, 3, v12\nv_lshlrev_b32 v%d, 4, v%d" % (vHW, vHW, vHW))
    a("v_mov_b32 v%d, v%d" % (vHX, vHW))
    a("v_lshl_add_u32 v%d, v13, 6, v%d" % (vHW, vHW))
    if not att: a("v_lshl_add_u32 v%d, v15, 8, v%d" % (vD, vHW))
    a("v_lshl_add_u32 v%d, v15, 13, v%d" % (vHW, vHW))
    a("s_and_b32 s%d, s%d, 1\ns_lshl_b32 s%d, s%d, 5" % (sT, sW, sT, sT))
    a("v_xor_b32 v%d, s%d, v%d" % (vHW, sT, vHW))
    a("s_lshl_b32 s%d, s%d, 16\ns_lshl_b32 s%d, s%d, 9\ns_add_u32 s%d, s%d, s%d" % (sT, sW, sT2, sJJ, sT, sT, sT2))
    a("v_add_u32 v%d, s%d, v%d" % (vHW, sT, vHW))
    a("v_add_u32 v%d, %d, v%d" % (vHW + 1, 32768 - 1024, vHW))
    a("v_add_u32 v%d, %d, v%d" % (vHW + 2, 256, vHW))
    a("v_add_u32 v%d, %d, v%d" % (vHW + 3, 32768 - 1024 + 256, vHW))
    a("s_lshl_b32 s63, s%d, 11" % sW)
    if att:
        a("v_and_b32 v%d, 1, v13\nv_lshl_add_u32 v%d, v%d, 6, v%d" % (vA1, vHX, vA1, vHX))
        a("v_lshl_add_u32 v%d, v15, 10, v%d" % (vHX, vHX))
        a("v_lshrrev_b32 v%d, 5, v12\nv_lshl_add_u32 v%d, v%d, 12, v%d" % (vA1, vHX, vA1, vHX))
        a("s_mul_i32 s%d, s%d, %d" % (sT, sW, 3 * 8192))
        a("v_add_u32 v%d, s%d, v%d" % (vHX, sT, vHX))
        a("s_and_b32 s%d, s%d, 1\ns_lshl_b32 s%d, s%d, 5" % (sT, sW, sT, sT))
        a("v_xor_b32 v%d, s%d, v%d" % (vHX, sT, vHX))
        a("v_add_u32 v%d, 7168, v%d\nv_xor_b32 v%d, 32, v%d" % (vHX + 1, vHX, vHX + 1, vHX + 1))
        a("v_add_u32 v%d, 14336, v%d" % (vHX + 2, vHX))
        a("s_mul_i32 s61, s%d, 3072" % sW)
    def stage_load(j):
        buf = HB[(-j) % 3]
        a("s_add_u32 s%d, s%d, %d\ns_and_b32 s%d, s%d, 7" % (sT2, sRot, j, sT2, sT2))
        a("s_lshl_b32 s%d, s%d, 19" % (sT, sT2))
        for hp in range(0 if OPT["hnw"] else 2):
            a("s_add_u32 m0, s63, %d" % (buf + hp * 16384))
            for qq in range(2):
                a("buffer_load_dwordx4 v%d, %s, s%d offen offset:%d%s lds" % (vHW + qq + 2 * hp, SR(S_WQ), sT, qq * 1024, POL[OPT["polw"]]), tag="h%d" % j)
        if att and not OPT["hnx"]:
            a("s_lshl_b32 s%d, s%d, 7" % (sT, sT2))
            a("s_add_u32 m0, s61, %d" % (buf + 32768))
            for e in range(3):
                a("buffer_load_dwordx4 v%d, %s, s%d offen offset:%d%s lds" % (vHX + e, SR(S_X), sT, e * 1024, POL[OPT["polx"]]), tag="h%d" % j)
    stage_load(0); stage_load(1); stage_load(2)
    a("v_and_b32 v%d, 3, v12\nv_lshlrev_b32 v%d, 3, v%d" % (vA1, vA1, vA1))
    a("v_lshl_add_u32 v%d, v15, 6, v%d" % (vA1, vA1))
    a("v_and_b32 v%d, 1, v13\nv_lshl_add_u32 v%d, v%d, 5, v%d" % (vA2, vA1, vA2, vA1))
    if att:
        a("v_lshl_add_u32 v%d, v13, 10, v%d" % (vVa, vA1))
    a("v_lshl_add_u32 v%d, v13, 11, v%d" % (vA1, vA1))
    a("s_lshr_b32 s%d, s%d, 2\ns_lshl_b32 s%d, s%d, 14\ns_and_b32 s%d, s%d, 3\ns_lshl_b32 s%d, s%d, 8\ns_add_u32 s%d, s%d, s%d" % (sT, sW, sT, sT, sT2, sW, sT2, sT2, sT, sT, sT2))
    a("v_add_u32 v%d, s%d, v%d" % (vA1, sT, vA1))
    a("v_xor_b32 v%d, 32, v%d" % (vA2, vA1))
    a("v_lshrrev_b32 v%d, 3, v14\nv_lshlrev_b32 v%d, 1, v%d\nv_xor_b32 v%d, v%d, v13\nv_lshlrev_b32 v%d, 4, v%d" % (vBx, vBx, vBx, vBx, vBx, vBx, vBx))
    a("v_and_b32 v%d, 3, v14\nv_lshl_add_u32 v%d, v%d, 6, v%d" % (cBx, vBx, cBx, vBx))
    a("v_lshl_add_u32 v%d, v15, 9, v%d" % (vBx, vBx))
    a("v_add_u32 v%d, 32768, v%d" % (vBx, vBx))
    if att:
        a("s_lshl_b32 s%d, s%d, 13\ns_add_u32 s%d, s%d, %d" % (sT, sKg, sT, sT, 2 * SLOT))
        a("v_add_u32 v%d, s%d, v%d\nv_add_u32 v%d, 16384, v%d\nv_xor_b32 v%d, 32, v%d" % (vVa, sT, vVa, vVa, vVa, vVb, vVa))
        a("v_lshlrev_b32 v%d, 10, v15" % vK)
        a("v_lshl_add_u32 v%d, v%d, 6, v%d" % (vK, cBx, vK))
        a("v_lshrrev_b32 v%d, 1, v13\nv_and_b32 v%d, 1, v13\nv_lshl_or_b32 v%d, v%d, 1, v%d" % (cA1, cA2, cA1, cA2, cA1))
        a("v_lshrrev_b32 v%d, 3, v14\nv_xor_b32 v%d, v%d, v%d" % (cA2, cA1, cA1, cA2))
        a("v_lshl_add_u32 v%d, v%d, 4, v%d\nv_add_u32 v%d, s%d, v%d" % (vK, cA1, vK, vK, sT, vK))
    else:
        a("s_cmp_eq_u32 s%d, 6" % sW)
        a("s_cselect_b32 s%d, 0, 32\ns_cselect_b32 s%d, 16, 0\ns_cselect_b32 s%d, 16, 32\ns_cselect_b32 s60, 0, 128\ns_cselect_b32 s%d, 0, 16384" % (sT, sT2, sT3, sKg))
        a("v_xor_b32 v%d, s%d, v%d\nv_xor_b32 v%d, s%d, v%d\nv_xor_b32 v%d, s%d, v%d" % (vD + 1, sT, vD, vD + 2, sT2, vD, vD + 3, sT3, vD))
        for q in range(4): a("v_xor_b32 v%d, s60, v%d" % (vD + 4 + q, vD + q))
    def reads(u):
        o = []
        if OPT["hnc"]: return o
        for d in range(2):
            for rd in range(2):
                o.append("ds_read_b64_tr_b16 %s, v%d offset:%d" % (vr(AF(u, d) + 2 * rd, 2), cA2 if d else cA1, u * 8192 + rd * 1024))
        for t in range(9):
            o.append("ds_read_b128 %s, v%d offset:%d" % (BF(u, t), cBx, t * 2048 + u * 256))
        return o
    def mfmas(u, first):
        if OPT["hnc"]: return []
        return ["%s %s, %s, %s, %s" % (MF, ACC(t, d), vr(AF(u, d), 4), BF(u, t), "0" if first else ACC(t, d)) for t in range(9) for d in range(2)]
    stamp(a, 1)
    for j in range(8):
        buf = HB[(-j) % 3]
        a.wait_vm_tag("h%d" % j)
        a("v_add_u32 v%d, %d, v%d\nv_add_u32 v%d, %d, v%d\nv_add_u32 v%d, %d, v%d" % (cA1, buf, vA1, cA2, buf, vA2, cBx, buf, vBx))
        a("s_waitcnt lgkmcnt(0)")
        a("s_barrier")
        if j < 7: stamp(a, j + 1, hs=True)
        for x in reads(0): a(x)
        if 1 <= j and j + 2 < 8 and not OPT["hnl"]: stage_load(j + 2)
        if not att and j == 5 and OPT["pfm"]:
            a("s_lshl_b32 s%d, s%d, 4\ns_add_u32 s%d, s%d, s%d\ns_lshl_b32 s%d, s%d, 1\ns_and_b32 s%d, s%d, 1\ns_add_u32 s%d, s%d, s%d\ns_lshl_b32 s%d, s%d, 14" % (sT, sB, sT, sT, sJJ, sT, sT, sT2, sW, sT, sT, sT2, sT, sT))
            a("v_lshlrev_b32 v250, 7, v12\nv_add_u32 v251, 8192, v250")
            a("buffer_load_dword v252, v250, %s, s%d offen" % (SR(S_WO), sT))
            a("buffer_load_dword v254, v251, %s, s%d offen" % (SR(S_WO), sT))
        if not att and j == 6: kv_tile(a, vD, (2, 0))
        if not att and j == 7: kv_tile(a, vD, (0, 1))
        r1 = reads(1)
        if j > 0:
            m = mfmas(1, False)
            for k, x in enumerate(m): a(x)
        for x in r1: a(x)
        a("WAIT " + vr(AF(0, 0), 8) + " " + vr(136, 12))
        for k, x in enumerate(mfmas(0, j == 0)):
            if k == 6: a("WAIT " + vr(136, 36))
            a(x)
    a("s_waitcnt lgkmcnt(0)")
    a("s_barrier")
    for x in mfmas(1, False): a(x)
    a("s_mov_b32 s%d, %s" % (sT3, f32(CSCALE)))
    a("s_cmp_lt_u32 s%d, 4" % sW)
    a("s_cselect_b32 s%d, %d, %d" % (sT, Q1A, Q2B) if False else "s_cselect_b32 s%d, %d, 0" % (sT, Q1A - Q2B))
    a("s_cselect_b32 s%d, 0, %d" % (sT2, Q2B + 24 * KB - Q1C))
    a("s_add_u32 s%d, s%d, %d\ns_add_u32 s%d, s%d, %d" % (sT, sT, Q2B, sT2, sT2, Q1C))
    a("s_and_b32 s60, s%d, 3\ns_lshl_b32 s60, s60, 10" % sW)
    a("v_lshlrev_b32 v%d, 4, v12\nv_add_u32 v%d, s60, v%d" % (cBx, cBx, cBx))
    a("v_add_u32 v%d, s%d, v%d\nv_add_u32 v%d, s%d, v%d" % (cA1, sT, cBx, cA2, sT2, cBx))
    for t in range(9):
        b = 64 + 8 * t
        for r in range(8): a("v_mul_f32 v%d, s%d, v%d" % (b + r, sT3, b + r))
        for r in range(4): a("v_cvt_pk_bf16_f32 v%d, v%d, v%d" % (b + r, b + 2 * r, b + 2 * r + 1))
    for t in range(9):
        b = 64 + 8 * t
        a("v_permlane16_swap_b32 v%d, v%d\nv_permlane16_swap_b32 v%d, v%d" % (b, b + 2, b + 1, b + 3))
    for t in range(9):
        b = 64 + 8 * t
        a("ds_write_b128 v%d, %s offset:%d" % (cA1 if t < 6 else cA2, vr(b, 4), (t if t < 6 else t - 6) * 4096))
    a("s_waitcnt lgkmcnt(0)")
    a("s_barrier")
    stamp(a, 2)

def soft_barrier(a, name):
    a("s_waitcnt lgkmcnt(0)")
    a("s_add_u32 s%d, s%d, 6" % (sBar, sBar))
    a("s_mov_b64 exec, 1")
    a("ds_add_u32 v%d, v%d" % (vX3, vX4))
    a("s_mov_b64 exec, -1")
    a.label(name)
    a("ds_read_b32 v%d, v%d" % (vT, vX3))
    a("s_waitcnt lgkmcnt(0)")
    a("v_readfirstlane_b32 s%d, v%d" % (sT, vT))
    a("s_cmp_lt_u32 s%d, s%d" % (sT, sBar))
    a("s_cbranch_scc1 %s" % name)

def publish(a, name, last, bit):
    a("s_waitcnt vmcnt(0)")
    if OPT["pfo"]:
        a("v_and_b32 v%d, 63, v0\nv_min_u32 v%d, 47, v%d" % (vT, vT, vT))
        a("v_lshlrev_b32 v%d, 7, v%d" % (vT + 1, vT))
        a("v_cmp_lt_u32 vcc, 23, v%d\nv_mov_b32 v%d, 0\nv_mov_b32 v%d, 6144" % (vT, vT, vT + 2))
        a("v_cndmask_b32 v%d, v%d, v%d, vcc" % (vT, vT, vT + 2))
        a("v_add_u32 v%d, v%d, v%d" % (vT + 1, vT + 1, vT))
        a("s_sub_u32 s%d, s%d, %d" % (sT, sOoff, 0 if bit else 36 * KB))
        a("buffer_load_dword v%d, v%d, %s, s%d offen sc1" % (vT + 3, vT + 1, SR(S_O), sT))
    a("s_mov_b64 exec, 1")
    a("ds_add_rtn_u32 v%d, v%d, v%d offset:4" % (vT, vX3, vX4))
    a("ds_read_b32 v%d, v%d offset:8" % (vT + 1, vX3))
    a("s_waitcnt lgkmcnt(0)")
    a("v_readfirstlane_b32 s%d, v%d" % (sT, vT))
    a("s_cmp_lg_u32 s%d, %d" % (sT, last))
    a("s_cbranch_scc1 %s" % name)
    if bit: a("v_or_b32 v%d, 0x40000000, v%d" % (vT + 1, vT + 1))
    a("s_lshl_b32 s%d, s%d, 2" % (sT2, sJJ))
    a("v_mov_b32 v%d, s%d" % (vT, sT2))
    a("buffer_store_dword v%d, v%d, %s, 0 offen sc1" % (vT + 1, vT, SR(S_FL)))
    a.label(name)
    a("s_mov_b64 exec, -1")
    a.vm = []

def attention(a):
    NT = 3; TL = 2
    a("v_lshlrev_b32 v%d, 4, v12" % vX1)
    a("s_mul_i32 s%d, s%d, %d\ns_add_u32 s%d, s%d, %d" % (sT, sRho, 12 * KB, sT, sT, Q1A))
    a("s_cmp_eq_u32 s%d, 2\ns_cselect_b32 s%d, %d, s%d" % (sRho, sT, Q1C, sT))
    a("v_add_u32 v%d, s%d, v%d" % (vX2, sT, vX1))
    for t in range(3):
        for s in range(4): a("ds_read_b128 %s, v%d offset:%d" % (Q(t, s), vX2, t * 4096 + s * 1024))
    a("v_mov_b32 v%d, %d\nv_mov_b32 v%d, 1" % (vX3, CNT, vX4))
    for r in range(4): a("v_mov_b32 v%d, 0x3f803f80" % (vONE + r))
    a("s_mov_b32 s%d, 0\ns_mov_b32 s%d, -1\ns_mov_b32 s%d, 0\ns_mov_b32 s%d, %d\ns_mov_b32 s%d, 2" % (sItem, sPub, sBar, sExch, 64 * KB, sSlot))
    a("s_mov_b32 s%d, 0x%x\ns_mov_b32 s%d, %d" % (sNeg, (-2 * SLOT) & 0xffffffff, sPos, SLOT))
    a("s_lshl_b32 s%d, s%d, 3\ns_lshl_b32 s%d, s%d, 1\ns_add_u32 s%d, s%d, s%d\ns_mul_i32 s%d, s%d, 9" % (sT, sJJ, sT2, sKg, sT, sT, sT2, sT, sT))
    a("s_mul_i32 s%d, s%d, 3\ns_add_u32 s%d, s%d, s%d\ns_lshl_b32 s%d, s%d, 10" % (sT2, sRho, sT, sT, sT2, sOoff, sT))
    if OPT["prio"]: a("s_setprio %d" % OPT["prio"])
    a.label("L_item")
    for r in list(range(vO, vO + 96, 2)) + list(range(vL, vL + 24, 2)) + list(range(vS + 16, vS + 20, 2)) + list(range(vF, vF + 32, 2)):
        a("v_mov_b64 %s, 0" % vr(r, 2))
    a("s_mov_b32 s%d, 0xff800000\ns_mov_b32 s%d, 0xff800000\ns_mov_b32 s%d, 0" % (sThr, sFl, sCnt))
    a("s_waitcnt lgkmcnt(0)")
    Ga, Gb, Gc = 0, 4, 8
    def kread(kt, s):
        slot = (Gc + s) if kt == 0 else (Gb + s)
        return "ds_read_b128 %s, v%d offset:%d" % (vr(F(slot), 4), vK, kt * 4096 + s * 256)
    def vslot(dt): return (Ga + dt) if dt < 4 else (Gb + dt - 4)
    def vread(dt, rd):
        return "ds_read_b64_tr_b16 %s, v%d offset:%d" % (vr(F(vslot(dt)) + 2 * rd, 2), vVb if dt & 1 else vVa, rd * 4096 + (dt >> 1) * 256)
    def pv(t, dt): return "%s %s, %s, %s, %s" % (MF, O(t, dt), vr(F(vslot(dt)), 4), S(t, 0), O(t, dt))
    def lsum(t): return "%s %s, %s, %s, %s" % (MF, L(t), vr(vONE, 4), S(t, 0), L(t))
    def qk(t, kt, s):
        slot = (Gc + s) if kt == 0 else (Gb + s)
        return "%s %s, %s, %s, %s" % (MF, S(t, kt), vr(F(slot), 4), Q(t, s), M(t) if s == 0 else S(t, kt))
    def sm(t):
        b = vS + 8 * t
        g = [["v_max3_f32 v%d, v%d, v%d, v%d" % (vT, b, b + 1, b + 2), "v_max3_f32 v%d, v%d, v%d, v%d" % (vT + 1, b + 3, b + 4, b + 5)],
             ["v_max3_f32 v%d, v%d, v%d, v%d" % (vT, vT, b + 6, b + 7), "v_max_f32 v%d, v%d, v%d" % (vT, vT, vT + 1)],
             ["v_cmp_lt_f32 vcc, s%d, v%d" % (sThr, vT)],
             ["s_cbranch_vccnz L_rare%d\nL_back%d:" % (t, t), "v_exp_f32 v%d, v%d" % (b, b)]]
        for r in range(1, 8): g.append(["v_exp_f32 v%d, v%d" % (b + r, b + r)])
        cv = ["v_cvt_pk_bf16_f32 v%d, v%d, v%d" % (b + r, b + 2 * r, b + 2 * r + 1) for r in range(4)]
        g.append(cv[:2]); g.append(cv[2:])
        return g
    a.raw(".p2align 6")
    a.label("L_loop")
    a("s_barrier")
    mf = []; fill = {}
    def put(idx, ops): fill.setdefault(idx, []).extend(ops)
    mf += [pv(TL, dt) for dt in (4, 5, 6, 7)] + [pv(TL, dt) for dt in (0, 1, 2, 3)] + [lsum(TL)]
    qk_end = {}
    for t in range(NT):
        for kt in ((0, 1) if t < TL else (1, 0)):
            mf += [qk(t, kt, s) for s in range(4)]
            if t == TL and kt == 1: v47_at = len(mf) - 1
        qk_end[t] = len(mf) - 1
    pv_start = {}
    for t in range(TL):
        pv_start[t] = len(mf)
        mf += [pv(t, dt) for dt in range(4)] + [lsum(t)] + [pv(t, dt) for dt in range(4, 8)]
    n = len(mf)
    pre = [kread(0, s) for s in range(4)]
    for s in range(4): put(s, [kread(1, s)])
    for dt in range(4): put(4 + dt, [vread(dt, 0), vread(dt, 1)])
    put(8, ["WAIT " + vr(F(Gc), 16)])
    put(9, ["s_add_u32 s%d, s%d, 1" % (sSlot, sSlot), "s_cmp_eq_u32 s%d, 3" % sSlot])
    put(10, ["s_cselect_b32 s%d, s%d, s%d" % (sDelta, sNeg, sPos), "s_cselect_b32 s%d, 0, s%d" % (sSlot, sSlot)])
    put(12, ["WAIT " + vr(F(Gb), 16), "v_add_u32 v%d, s%d, v%d" % (vK, sDelta, vK)])
    for dt in range(4, 8): put(v47_at - 3 + (dt - 4), [vread(dt, 0), vread(dt, 1)])
    groups = [(t, g) for t in range(NT) for g in sm(t)]
    lo = qk_end[0] + 4
    span = n - lo
    for k, (t, g) in enumerate(groups):
        idx = lo + (k * span) // len(groups)
        assert idx >= qk_end[t] + 2 and (t == TL or idx < pv_start[t]), (t, idx)
        put(idx, g)
    put(pv_start[0] - 1, ["WAIT " + vr(F(Ga), 16)])
    put(pv_start[0] + 4, ["WAIT " + vr(F(Gb), 16)])
    put(lo - 2, ["s_add_u32 s%d, s%d, 1" % (sCnt, sCnt)])
    for x in pre: a(x)
    for k, m in enumerate(mf):
        a(m)
        for x in fill.get(k, []): a(x)
    a("v_add_u32 v%d, s%d, v%d\nv_add_u32 v%d, s%d, v%d" % (vVa, sDelta, vVa, vVb, sDelta, vVb))
    a("s_mov_b32 s%d, %s\ns_mov_b32 s%d, 0" % (sThr, f32(THR), sFl))
    a("s_cmp_eq_u32 s%d, s%d" % (sCnt, sPub))
    a("s_cbranch_scc1 L_pub1")
    a.label("L_pub1_back")
    a("s_cmp_lt_u32 s%d, 16" % sCnt)
    a("s_cbranch_scc1 L_loop")
    a("s_cmp_eq_u32 s%d, 0" % sItem)
    a("s_cbranch_scc0 L_st4")
    stamp(a, 3)
    a("s_branch L_st4b")
    a.label("L_st4"); stamp(a, 4)
    a.label("L_st4b")
    a("s_mul_i32 s%d, s%d, %d\ns_add_u32 s%d, s%d, %d" % (sT, sRho, 12 * KB, sT, sT, Q2B))
    a("v_add_u32 v%d, s%d, v%d" % (vX2, sT, vX1))
    for t in range(3):
        for s in range(4): a("ds_read_b128 %s, v%d offset:%d" % (Q(t, s), vX2, t * 4096 + s * 1024))
    a(lsum(TL))
    for dt in range(8): a(pv(TL, dt))
    a("v_and_b32 v%d, 15, v0\nv_lshlrev_b32 v%d, 3, v%d" % (vT + 2, vT + 2, vT + 2))
    a("s_mul_i32 s%d, s%d, 384\ns_add_u32 s%d, s%d, %d" % (sT, sW, sT, sT, MLB))
    a("v_add_u32 v%d, s%d, v%d" % (vT + 3, sT, vT + 2))
    for t in range(3):
        a("v_mov_b32 v%d, v%d" % (vM + 4 * t + 1, vL + 4 * t))
        a("ds_write_b64 v%d, %s offset:%d" % (vT + 3, vr(vM + 4 * t, 2), t * 128))
    a("s_add_u32 s%d, s%d, 3\ns_cmp_ge_u32 s%d, 6\ns_cselect_b32 s%d, 6, 0\ns_sub_u32 s%d, s%d, s%d" % (sT3, sW, sT3, sT2, sT3, sT3, sT2))
    a("s_mul_i32 s%d, s%d, 384\ns_add_u32 s%d, s%d, %d" % (sT2, sT3, sT2, sT2, MLB))
    a("v_add_u32 v%d, s%d, v%d" % (vT + 3, sT2, vT + 2))
    soft_barrier(a, "L_sb1")
    for t in range(3): a("ds_read_b64 %s, v%d offset:%d" % (vr(vM + 4 * t + 2, 2), vT + 3, t * 128))
    a("s_mul_i32 s%d, s%d, %d\ns_add_u32 s%d, s%d, s%d" % (sT, sW, 12 * KB, sT, sT, sExch))
    a("v_add_u32 v%d, s%d, v%d" % (vX2, sT, vX1))
    for t in range(3):
        m = vM + 4 * t; l = vL + 4 * t
        a("v_min_f32 v%d, v%d, v%d" % (l, m, m + 2))
        a("v_sub_f32 v%d, v%d, v%d\nv_sub_f32 v%d, v%d, v%d" % (l + 1, l, m, l + 2, l, m + 2))
        a("v_exp_f32 v%d, v%d\nv_exp_f32 v%d, v%d" % (l + 1, l + 1, l + 2, l + 2))
        a("v_mul_f32 v%d, v%d, v%d" % (l + 3, l + 1, m + 1))
        a("v_fma_f32 v%d, v%d, v%d, v%d" % (l + 3, l + 2, m + 3, l + 3))
        a("v_rcp_f32 v%d, v%d" % (l + 3, l + 3))
        a("v_mul_f32 v%d, v%d, v%d" % (l, l + 1, l + 3))
    for t in range(3):
        for i in range(4):
            b = vO + 32 * t + 16 + 4 * i
            for r in range(4): a("v_mul_f32 v%d, v%d, v%d" % (b + r, vL + 4 * t, b + r))
            a("ds_write_b128 v%d, %s offset:%d" % (vX2, vr(b, 4), (t * 4 + i) * 1024))
    a("s_mul_i32 s%d, s%d, %d\ns_add_u32 s%d, s%d, s%d" % (sT2, sT3, 12 * KB, sT2, sT2, sExch))
    a("v_add_u32 v%d, s%d, v%d" % (vX2, sT2, vX1))
    soft_barrier(a, "L_sb2")
    for t in range(3):
        for i in range(4): a("ds_read_b128 %s, v%d offset:%d" % (vr(vO + 32 * t + 16 + 4 * i, 4), vX2, (t * 4 + i) * 1024))
    for t in range(3):
        for s in range(2):
            b = vO + 32 * t + 8 * s
            for r in range(8): a("v_fma_f32 v%d, v%d, v%d, v%d" % (b + r, b + r, vL + 4 * t, b + 16 + r))
            d = vF + 32 + 4 * ((t * 2 + s) % 4) if False else b
            for r in range(4): a("v_cvt_pk_bf16_f32 v%d, v%d, v%d" % (vS + 4 * (t * 2 + s) + r, b + 2 * r, b + 2 * r + 1))
            a("s_add_u32 s%d, s%d, %d" % (sT, sOoff, (s * 9 + t) * 1024))
            a("buffer_store_dwordx4 %s, v%d, %s, s%d offen%s" % (vr(vS + 4 * (t * 2 + s), 4), vX1, SR(S_O), sT, POL[OPT["pols"]]))
    a("s_cmp_eq_u32 s%d, 0" % sItem)
    a("s_cbranch_scc0 L_att_done")
    a("s_mov_b32 s%d, 1\ns_mov_b32 s%d, 2\ns_mov_b32 s%d, 0\ns_add_u32 s%d, s%d, %d" % (sItem, sPub, sExch, sOoff, sOoff, 36 * KB))
    a("s_nop 1")
    a("s_branch L_item")
    a.vm = []; a.lgkm = []
    a.label("L_pub1")
    publish(a, "L_pub1_x", 5, 0)
    a("s_branch L_pub1_back")
    for t in range(NT):
        b = vS + 8 * t
        a.label("L_rare%d" % t)
        a("s_nop 15")
        a("v_mov_b32 v%d, v%d" % (vT + 1, vT))
        a("v_permlane16_swap_b32 v%d, v%d" % (vT, vT + 1))
        a("v_max_f32 v%d, v%d, v%d" % (vT, vT, vT + 1))
        a("v_mov_b32 v%d, v%d" % (vT + 1, vT))
        a("v_permlane32_swap_b32 v%d, v%d" % (vT, vT + 1))
        a("v_max_f32 v%d, v%d, v%d" % (vT, vT, vT + 1))
        a("v_max_f32 v%d, s%d, v%d" % (vT, sFl, vT))
        for r in range(8): a("v_sub_f32 v%d, v%d, v%d" % (b + r, b + r, vT))
        for r in range(4): a("v_sub_f32 v%d, v%d, v%d" % (vM + 4 * t + r, vM + 4 * t + r, vT))
        a("s_cmp_lg_u32 s%d, 0" % sFl)
        a("s_cbranch_scc1 L_rare%d_x" % t)
        a("v_exp_f32 v%d, -v%d" % (vT + 1, vT))
        for r in range(4): a("v_mul_f32 v%d, v%d, v%d" % (vL + 4 * t + r, vL + 4 * t + r, vT + 1))
        for r in range(32): a("v_mul_f32 v%d, v%d, v%d" % (vO + 32 * t + r, vO + 32 * t + r, vT + 1))
        a.label("L_rare%d_x" % t)
        a("s_nop 3")
        a("s_branch L_back%d" % t)
    a.label("L_att_done")
    publish(a, "L_pub2_x", 11, 1)
    stamp(a, 5)
    a("s_cmp_ge_u32 s%d, 2" % sW)
    a("s_cbranch_scc1 L_end")
    a.label("L_w12")
    a("ds_read_b64 %s, v%d offset:4" % (vr(vT, 2), vX3) if False else "ds_read_b32 v%d, v%d offset:4" % (vT, vX3))
    a("ds_read_b32 v%d, v%d offset:8" % (vT + 1, vX3))
    a("s_waitcnt lgkmcnt(0)")
    a("v_readfirstlane_b32 s%d, v%d\nv_readfirstlane_b32 s%d, v%d" % (sT, vT, sTag, vT + 1))
    a("s_cmp_lt_u32 s%d, 12" % sT)
    a("s_cbranch_scc1 L_w12")
    a("s_waitcnt vmcnt(0)")
    a("s_mov_b32 s%d, s%d" % (sOpIdx, sW))
    a("s_mul_i32 s%d, s%d, %d" % (sOpL, sW, 48 * KB))
    op_setup(a, 3, 8)
    a("s_cmp_eq_u32 s60, 0\ns_cbranch_scc1 L_op_a_join\ns_branch L_op_b_join")

def aux_adv(a):
    a("s_add_u32 s%d, s%d, 16384\ns_add_u32 s%d, s%d, %d" % (sGo, sGo, sLd, sLd, SLOT))
    a("s_cmp_ge_u32 s%d, %d\ns_cselect_b32 s%d, %d, 0\ns_sub_u32 s%d, s%d, s%d" % (sLd, 3 * SLOT, sT, 3 * SLOT, sLd, sLd, sT))

def aux_steps(a, upto, name):
    a.raw(".p2align 3")
    a.label(name)
    a("s_waitcnt vmcnt(16)")
    a("s_barrier")
    kv_tile(a, 128)
    aux_adv(a)
    a("s_add_u32 s%d, s%d, 1\ns_cmp_lt_u32 s%d, %d\ns_cbranch_scc1 %s" % (sCnt, sCnt, sCnt, upto, name))
    a.vm = []

def wo_touch(a, phase):
    if not OPT["pfwo"]: return
    a("s_and_b32 s%d, s%d, 1\ns_lshl_b32 s%d, s%d, 4\ns_add_u32 s%d, s%d, s%d" % (sT, sG, sT, sT, sT, sT, sJJ))
    a("s_lshr_b32 s%d, s%d, 1\ns_lshl_b32 s%d, s%d, 18\ns_and_b32 s%d, s%d, 1\ns_lshl_b32 s%d, s%d, 16\ns_add_u32 s%d, s%d, s%d" % (sT2, sT, sT2, sT2, sT, sT, sT, sT, sT, sT, sT2))
    a("s_and_b32 s%d, s%d, 1\ns_lshl_b32 s%d, s%d, 15\ns_add_u32 s%d, s%d, s%d" % (sT2, sW, sT2, sT2, sT, sT, sT2))
    for i in range(4):
        a("s_add_u32 s%d, s%d, %d" % (sT2, sT, phase * 131072 + i * 8192))
        a("buffer_load_dword v137, v136, %s, s%d offen" % (SR(S_WO), sT2))
        a.vm = []

def aux(a):
    for q in range(8): a("v_mov_b32 v%d, v%d" % (128 + q, vD + q))
    a("v_lshlrev_b32 v136, 7, v12")
    a("v_lshlrev_b32 v138, 2, v14")
    a("s_lshl_b32 s%d, s%d, 4\nv_mov_b32 v139, s%d" % (sT, sG, sT))
    a("s_add_u32 s%d, s%d, %d\ns_mov_b32 s%d, %d\ns_mov_b32 s%d, 0" % (sLd, sKg, 1 * SLOT, sGo, 2 * 16384, sCnt))
    a("s_sub_u32 s%d, s%d, 4" % (sOpIdx, sW))
    a("s_sub_u32 s%d, s%d, 6\ns_lshl_b32 s%d, s%d, 14\ns_add_u32 s%d, s%d, %d" % (sOpL, sW, sOpL, sOpL, sOpL, sOpL, 96 * KB))
    a("buffer_load_dword v140, v138, %s, 0 offen sc1" % SR(S_FL))
    a.vm = []
    aux_steps(a, 3, "L_aux0")
    a("s_lshl_b32 s%d, s%d, 3\ns_add_u32 s%d, s%d, s%d\ns_cmp_lg_u32 s%d, 6\ns_cbranch_scc1 L_aux1" % (sT, sJJ, sT, sT, sW, sT))
    a("v_lshrrev_b32 v140, v14, v140\nv_and_b32 v140, 1, v140\nv_cmp_eq_u32 vcc, 0, v140")
    a("s_nop 1")
    a("s_and_b32 s%d, vcc_lo, 0xffff\ns_or_b32 s%d, s%d, 0x80000000" % (sT, sT, sT))
    a("v_mov_b32 v140, s%d" % sT)
    a("buffer_store_dword v140, v139, %s, 0 offen sc1" % SR(S_DBG))
    a.vm = []
    aux_steps(a, 9, "L_aux1")
    a("buffer_load_dword v140, v139, %s, 0 offen sc1" % SR(S_DBG))
    a.vm = []
    aux_steps(a, 12, "L_aux2")
    a.label("L_tag")
    a("v_readfirstlane_b32 s%d, v140" % sTag)
    a("s_cmp_lg_u32 s%d, 0\ns_cbranch_scc1 L_tag_ok" % sTag)
    a("s_sleep 8")
    a("buffer_load_dword v140, v139, %s, 0 offen sc1" % SR(S_DBG))
    a("s_waitcnt vmcnt(0)")
    a("s_branch L_tag")
    a.label("L_tag_ok")
    a("v_mov_b32 v141, %d" % TAGW)
    a("ds_write_b32 v141, v140")
    a("s_waitcnt lgkmcnt(0)")
    s0 = 32 - 4 * OPT["nhin"]
    astamp(a, 1)
    aux_steps(a, s0 - 6, "L_aux3")
    astamp(a, 2)
    wo_touch(a, 0)
    op_setup(a, 1, 0)
    aux_steps(a, s0 - 4, "L_aux4")
    a("buffer_load_dword v140, v138, %s, 0 offen sc1" % SR(S_FL))
    a.vm = []
    aux_steps(a, s0 - 1, "L_aux5")
    astamp(a, 3)
    a("s_cmp_eq_u32 s60, 0\ns_cbranch_scc0 L_op_b_aux")

def op_setup(a, nblk, i0):
    lanes(a)
    a("v_lshlrev_b32 v1, 4, v12\nv_add_u32 v8, 4096, v1")
    a("v_lshrrev_b32 v9, 5, v12")
    a("v_and_b32 v4, 3, v12\nv_lshlrev_b32 v5, 1, v9\nv_xor_b32 v4, v4, v5\nv_lshlrev_b32 v4, 4, v4")
    a("v_and_b32 v5, 1, v13")
    a("v_lshl_add_u32 v4, v5, 6, v4\nv_lshl_add_u32 v4, v15, 10, v4\nv_lshl_add_u32 v4, v9, 12, v4")
    a("v_and_b32 v2, 3, v12\nv_lshlrev_b32 v2, 3, v2\nv_lshl_add_u32 v2, v15, 6, v2\nv_lshl_add_u32 v2, v5, 5, v2\nv_lshl_add_u32 v2, v13, 9, v2")
    a("v_add_u32 v2, s%d, v2\nv_xor_b32 v3, 32, v2" % sOpL)
    for q in range(1, 4): a("v_add_u32 v%d, %d, v4" % (4 + q, 7168 * q))
    for r in range(176, 256, 2): a("v_mov_b64 %s, 0" % vr(r, 2))
    a("s_lshr_b32 s60, s%d, 3\ns_and_b32 s61, s%d, 7" % (sJJ, sJJ))
    a("s_mul_i32 s%d, s60, 5120" % sOb)
    a("s_lshl_b32 s%d, s61, 7" % sWb)
    a("s_mul_i32 s%d, s%d, 144\ns_mul_i32 s%d, s60, 80\ns_add_u32 s%d, s%d, s%d\ns_lshl_b32 s%d, s%d, 11" % (sOutOff, sB, sT, sOutOff, sOutOff, sT, sOutOff, sOutOff))
    a("s_lshl_b32 s%d, s%d, 10\ns_add_u32 s%d, s%d, s%d\ns_add_u32 s%d, s%d, s%d" % (sT, sBlk, sOutOff, sOutOff, sT, sOutOff, sOutOff, sWb))
    a("s_lshl_b32 s%d, s%d, 5\ns_add_u32 s%d, s%d, s%d" % (sT, sOpIdx, sOutOff, sOutOff, sT))
    a("v_lshlrev_b32 v10, 11, v14\nv_lshl_add_u32 v10, v13, 3, v10")
    a("v_lshlrev_b32 v11, 2, v14")
    a("s_and_b32 s%d, s%d, 1\ns_lshl_b32 s%d, s%d, 1\ns_add_u32 s%d, s%d, s60\ns_lshl_b32 s%d, s%d, 2\ns_add_u32 s%d, s%d, s%d" % (sT, sG, sT, sT, sT, sT, sT, sT, sT, sT, sOpIdx))
    a("s_lshl_b32 s%d, s61, 1\ns_add_u32 s%d, s%d, s%d\ns_add_u32 s%d, s%d, s%d" % (sT2, sM1, sT, sT2, sM2, sM1, sT2))
    a("s_mov_b32 s%d, %d\ns_mov_b32 s%d, %d" % (sIo, i0, sIw, i0))
    a("s_mov_b32 s%d, s%d\ns_add_u32 s%d, s%d, %d" % (sBlkP, sOpL, sBlkE, sOpL, nblk * 16384))

def op_path(a, NR, role):
    lab = lambda s: "L_op_%s_%s" % (role, s)
    B = lambda k, t: vr(16 + ((k % 4) * 5 + t) * 4, 4)
    ACC = lambda t, ct: vr(176 + (t * 4 + ct) * 4, 4)
    G = NR + 4
    def kbase(si):
        a("s_cmp_lt_u32 s%d, 8" % si)
        a("s_cselect_b32 s%d, 1, 2\ns_cselect_b32 s%d, s%d, s%d\ns_cselect_b32 s%d, 0, 4" % (sT, sT2, sM1, sM2, sT3))
        a("s_lshl_b32 s%d, s%d, s%d\ns_add_u32 s%d, s%d, s%d\ns_and_b32 s%d, s%d, 15" % (sT, si, sT, sT, sT, sT2, sT, sT))
        a("s_lshl_b32 s%d, s%d, 3\ns_add_u32 s%d, s%d, s%d" % (sT, sT, sT, sT, sT3))
    def next_o(dst):
        kbase(sIo)
        a("s_mul_i32 s%d, s%d, 9216\ns_add_u32 s%d, s%d, s%d" % (dst, sT, dst, dst, sOb))
        a("s_cmp_lt_u32 s%d, s%d\ns_cselect_b32 s%d, s%d, 0x%x" % (sIo, sEnd, dst, dst, OOB))
    def next_w():
        kbase(sIw)
        a("s_lshl_b32 s%d, s%d, 15\ns_add_u32 s%d, s%d, s%d" % (sWn, sT, sWn, sWn, sWb))
        a("s_cmp_lt_u32 s%d, 12\ns_cselect_b32 s%d, s%d, 0x%x\ns_add_u32 s%d, s%d, 1" % (sIw, sWn, sWn, OOB, sIw, sIw))
    def w_ops(k, blk):
        o = ["s_add_u32 m0, s%d, %d" % (blk, k * 4096), "s_add_u32 s%d, s%d, %d" % (sT2, sWn, k * 32768)]
        for q in range(4):
            o.append("buffer_load_dwordx4 v%d, %s, s%d offen offset:%d%s lds" % (4 + q, SR(S_WO), sT2, q * 1024, POL[OPT["polwo"]]))
        return o
    def o_ops(k, so):
        o = ["s_add_u32 s%d, s%d, %d" % (sT3, so, k * 9216)]
        for t in range(NR):
            if t < 4: o.append("buffer_load_dwordx4 %s, v1, %s, s%d offen offset:%d%s" % (B(k, t), SR(S_O), sT3, t * 1024, POL[OPT["polo"]]))
            else: o.append("buffer_load_dwordx4 %s, v8, %s, s%d offen%s" % (B(k, t), SR(S_O), sT3, POL[OPT["polo"]]))
        return o
    def reads(k):
        buf = 96 + 16 * (k & 1)
        return ["ds_read_b64_tr_b16 %s, v%d offset:%d" % (vr(buf + 4 * ct + 2 * rd, 2), 3 if ct & 1 else 2, k * 4096 + rd * 2048 + (ct >> 1) * 256)
                for ct in range(4) for rd in range(2)]
    def run(ops):
        for x in ops: a(x); a.vm = []
    def prime_w(nblk):
        for bI in range(nblk):
            next_w()
            a("s_add_u32 s%d, s%d, %d" % (sOn, sOpL, bI * 16384))
            for k in range(4): run(w_ops(k, sOn))
    def check_flags(first_loaded, name, mask30):
        a("s_or_b32 s%d, s%d, 0x40000000" % (sWant, sTag))
        if first_loaded: a("v_mov_b32 v9, v140\ns_branch %s" % (name + "_c"))
        a.label(name)
        a("buffer_load_dword v9, v11, %s, 0 offen sc1" % SR(S_FL))
        a("s_waitcnt vmcnt(0)")
        a.label(name + "_c")
        if mask30: a("v_or_b32 v9, 0x40000000, v9")
        a("v_cmp_ne_u32 vcc, s%d, v9" % sWant)
        if OPT["nopoll"]: a("s_branch %s" % (name + "_ok"))
        a("s_cbranch_vccz %s" % (name + "_ok"))
        a("s_sleep %d" % OPT["slp"])
        a("s_branch %s" % name)
        a.label(name + "_ok")
        a.vm = []
    def prime_o(pad=True):
        next_o(sOc)
        a("s_mov_b32 s%d, 0x%x" % (sT2, OOB))
        for k in range(3):
            for q in range(4 if pad and k else 0): run(["buffer_load_dword v9, v1, %s, s%d offen" % (SR(S_O), sT2)])
            run(o_ops(k, sOc))
    def head_top():
        a("s_add_u32 s%d, s%d, 1" % (sIo, sIo))
        next_o(sOn)
        next_w()
    def kstep(k, wait=True):
        if wait: a("s_waitcnt vmcnt(%d)" % (2 * G))
        if k == 3:
            a("s_add_u32 s%d, s%d, 16384\ns_cmp_ge_u32 s%d, s%d\ns_cselect_b32 s%d, s%d, s%d\ns_sub_u32 s%d, s%d, s%d" % (sT, sBlkP, sT, sBlkE, sT, sOpL, sT, sT3, sT, sBlkP))
            a("s_waitcnt lgkmcnt(0)")
            a("v_add_u32 v2, s%d, v2\nv_add_u32 v3, s%d, v3" % (sT3, sT3))
            a("s_mov_b32 s63, s%d" % sT)
        else:
            a("s_waitcnt lgkmcnt(0)")
        fillers = reads((k + 1) % 4) + w_ops(k, sBlkP) + (o_ops(3, sOc) if k == 0 else o_ops(k - 1, sOn))
        buf = 96 + 16 * (k & 1)
        ms = ["%s %s, %s, %s, %s" % (MF, ACC(t, ct), vr(buf + 4 * ct, 4), B(k, t), ACC(t, ct)) for ct in range(4) for t in range(NR)]
        fi = 0
        for i, m in enumerate(ms):
            a(m)
            tgt = ((i + 1) * len(fillers) + len(ms) - 3) // (len(ms) - 2)
            while fi < min(tgt, len(fillers)):
                a(fillers[fi]); a.vm = []; fi += 1
        a.lgkm = []
        if k == 3: a("s_mov_b32 s%d, s63\ns_mov_b32 s%d, s%d" % (sBlkP, sOc, sOn))
    a.label(lab("aux"))
    a("s_mov_b32 s%d, 8" % sEnd)
    check_flags(True, lab("f1"), True)
    astamp(a, 4)
    prime_w(1)
    prime_o(False)
    P = 16 + 3 * NR
    a("s_waitcnt vmcnt(%d)\ns_barrier" % (16 + P))
    kv_tile(a, 128); aux_adv(a); a.vm = []
    nh = OPT["nhin"]
    for hI in range(nh):
        for k in range(4):
            step = 32 - 4 * nh + 4 * hI + k
            first = hI == 0 and k == 0
            if first: a("s_waitcnt vmcnt(%d)" % (16 + P))
            elif hI == 0 and k == 1: a("s_waitcnt vmcnt(%d)" % (16 + G))
            elif step <= 30: a("s_waitcnt vmcnt(%d)" % (16 + 2 * G))
            else: a("s_waitcnt vmcnt(%d)" % (2 * G))
            a("s_barrier")
            if step < 30:
                kv_tile(a, 128); aux_adv(a); a.vm = []
            if step == OPT["t1"]: wo_touch(a, 1)
            if first: astamp(a, 5)
            if k == 0: head_top()
            if first:
                a("s_waitcnt vmcnt(32)")
                run(reads(0))
            kstep(k, wait=False)
    stamp(a, 3); astamp(a, 6)
    a("s_branch %s" % lab("loop"))
    a.label(lab("join"))
    prime_w(1 if OPT["oponly"] else 3)
    a.label(lab("ph2"))
    a("s_mov_b32 s%d, 12" % sEnd)
    check_flags(False, lab("f2"), False)
    stamp(a, 6)
    prime_o()
    run(reads(0))
    a.raw(".p2align 3")
    a.label(lab("loop"))
    head_top()
    for k in range(4): kstep(k)
    a("s_cmp_lt_u32 s%d, s%d" % (sIo, sEnd))
    a("s_cbranch_scc1 %s" % lab("loop"))
    a("s_waitcnt lgkmcnt(0)")
    a("s_cmp_eq_u32 s%d, 8" % sEnd)
    if OPT["stamps"]:
        a("s_cbranch_scc0 %s" % lab("fin"))
        stamp(a, 4)
        a("s_branch %s" % lab("ph2"))
        a.label(lab("fin"))
    else:
        a("s_cbranch_scc1 %s" % lab("ph2"))
    a("s_waitcnt vmcnt(0)")
    if OPT["oponly"]:
        for r in range(3):
            a("s_cmp_lg_u32 s62, %d\ns_cbranch_scc1 %s" % (r, lab("oo%d" % r)))
            stamp(a, 1 + r)
            a.label(lab("oo%d" % r))
        a("s_add_u32 s62, s62, 1\ns_cmp_lt_u32 s62, 3\ns_cbranch_scc1 L_oponly")
    a("s_barrier")
    a("s_mul_i32 s%d, s%d, %d" % (sT, sOpIdx, 20 * KB))
    a("v_add_u32 v9, s%d, v1" % sT)
    for i in range(NR * 4): a("ds_write_b128 v9, %s offset:%d" % (vr(176 + i * 4, 4), i * 1024))
    a("s_lshl_b32 s%d, s%d, 10" % (sT, sOpIdx))
    a("v_add_u32 v9, s%d, v1\nv_add_u32 v8, %d, v9" % (sT, 40 * KB))
    a("s_waitcnt lgkmcnt(0)")
    a("s_barrier")
    for t in range(NR):
        for w in range(4):
            a("ds_read_b128 %s, v%d offset:%d" % (vr(16 + (t * 4 + w) * 4, 4), 9 if w < 2 else 8, (w & 1) * 20 * KB + t * 4096))
    for t in range(NR):
        b = 16 + t * 16
        for r in range(4):
            a("v_add_f32 v%d, v%d, v%d" % (b + r, b + r, b + 4 + r))
            a("v_add_f32 v%d, v%d, v%d" % (b + 8 + r, b + 8 + r, b + 12 + r))
            a("v_add_f32 v%d, v%d, v%d" % (b + r, b + r, b + 8 + r))
        a("v_cvt_pk_bf16_f32 v%d, v%d, v%d\nv_cvt_pk_bf16_f32 v%d, v%d, v%d" % (b, b, b + 1, b + 1, b + 2, b + 3))
        a("s_add_u32 s%d, s%d, %d" % (sT, sOutOff, t * 32768))
        a("buffer_store_dwordx2 %s, v10, %s, s%d offen" % (vr(b, 2), SR(S_OUT), sT))
    if OPT["stamps"]:
        a("s_waitcnt vmcnt(0)")
        stamp(a, 7)
        stamp_store(a)
    a("s_endpgm")
    a.vm = []; a.lgkm = []
    return lab("loop")

def kernel():
    a = Asm()
    a.raw(".globl %s\n.p2align 8\n.type %s,@function" % (NAME, NAME)); a.label(NAME)
    a("s_cmp_ge_u32 s2, 256\ns_cbranch_scc1 L_end")
    if OPT["stamps"]:
        for k in range(NST): stamp(a, k)
    a("s_and_b32 s%d, s2, 7\ns_lshr_b32 s%d, s2, 3" % (sT, sT2))
    a("s_lshr_b32 s%d, s%d, 4\ns_lshl_b32 s%d, s%d, 1\ns_add_u32 s%d, s%d, s%d" % (sG, sT2, sT, sT, sG, sG, sT))
    a("s_and_b32 s%d, s%d, 15" % (sJJ, sT2))
    a("s_lshr_b32 s%d, s%d, 3\ns_and_b32 s%d, s%d, 7" % (sBlk, sG, sB, sG))
    a("s_mul_i32 s%d, s%d, 40" % (sT, sBlk))
    a("s_add_u32 s4, s0, s%d\ns_addc_u32 s5, s1, 0" % sT)
    a("s_load_dwordx8 s[80:87], s[4:5], 0")
    a("s_load_dwordx2 s[88:89], s[4:5], 32")
    a("s_load_dwordx4 s[96:99], s[0:1], 80")
    a("s_load_dwordx2 s[92:93], s[0:1], 96")
    a("s_getpc_b64 s[60:61]")
    a.label("L_pf")
    a("v_lshlrev_b32 v12, 7, v0")
    a.items.append(a._mk("v_min_u32 v12, 0x1234, v12")); a.items[-1].text = "v_min_u32 v12, L_end-L_pf, v12"
    a("global_load_dword v253, v12, s[60:61]")
    a("v_lshrrev_b32 v12, 6, v0")
    a("v_readfirstlane_b32 s%d, v12" % sW)
    a("v_mov_b32 v12, %d\nv_mov_b32 v14, 0\nv_mov_b32 v15, 0" % CNT)
    a("ds_write_b64 v12, v[14:15]")
    a("s_and_b32 s%d, s%d, 1\ns_lshl_b32 s%d, s%d, 2\ns_add_u32 s%d, s%d, s%d" % (sRot, sG, sRot, sRot, sRot, sRot, sJJ))
    if OPT["norot"]: a("s_mov_b32 s%d, 0" % sRot)
    a("s_cmp_ge_u32 s%d, 3\ns_cselect_b32 s%d, 1, 0\ns_mul_i32 s%d, s%d, 3\ns_sub_u32 s%d, s%d, s%d" % (sW, sKg, sT, sKg, sRho, sW, sT))
    a("s_waitcnt lgkmcnt(0)")
    srd(a, S_WQ, 86, 87, "%d" % (512 * 8192))
    a("s_mul_i32 s%d, s%d, 147456\ns_add_u32 s80, s80, s%d\ns_addc_u32 s81, s81, 0" % (sT, sB, sT))
    srd(a, S_X, 80, 81, "147456")
    a("s_mul_i32 s%d, s%d, %d\ns_add_u32 s90, s92, s%d\ns_addc_u32 s91, s93, 0" % (sT, sG, 128 * 9216, sT))
    srd(a, S_O, 90, 91, "%d" % (128 * 9216))
    a("s_cmp_eq_u32 s%d, 6\ns_cselect_b32 s82, s82, s84\ns_cselect_b32 s83, s83, s85" % sW)
    a("s_lshl_b32 s%d, s%d, 4\ns_add_u32 s%d, s%d, s%d" % (sT, sB, sT, sT, sJJ))
    if OPT["samekv"]: a("s_mov_b32 s%d, 0" % sT)
    a("s_lshl_b32 s%d, s%d, 19" % (sT, sT))
    a("s_add_u32 s82, s82, s%d\ns_addc_u32 s83, s83, 0" % sT)
    srd(a, S_KV, 82, 83, "524288")
    srd(a, S_WO, 88, 89, "%d" % (4096 * 1024))
    srd(a, S_OUT, 96, 97, "%d" % (8 * 144 * 1024 * 2))
    srd(a, S_DBG, 98, 99, "256")
    a("s_lshl_b32 s%d, s%d, 8\ns_add_u32 s%d, s%d, 0x%x\ns_add_u32 s90, s92, s%d\ns_addc_u32 s91, s93, 0" % (sT, sG, sT, sT, FLAG_OFF, sT))
    srd(a, S_FL, 90, 91, "64")
    if OPT["oponly"]:
        a("s_add_u32 s%d, s%d, 2\ns_and_b32 s%d, s%d, 7\ns_cmp_ge_u32 s%d, 4\ns_cbranch_scc1 L_end" % (sT, sW, sT, sT, sT))
        if OPT["oponly"] == 2: a("s_cmp_ge_u32 s%d, 2\ns_cbranch_scc1 L_end" % sT)
        a("s_mov_b32 s%d, s%d\ns_mul_i32 s%d, s%d, %d\ns_mov_b32 s62, 0" % (sOpIdx, sT, sOpL, sT, 32 * KB))
        a.label("L_oponly")
        op_setup(a, 1, 8)
        a("s_cmp_eq_u32 s60, 0\ns_cbranch_scc1 L_op_a_join\ns_branch L_op_b_join")
    a("s_cmp_ge_u32 s%d, 6\ns_cbranch_scc1 L_auxrole" % sW)
    st = (list(a.lgkm), list(a.vm))
    head(a, True)
    attention(a)
    a.lgkm, a.vm = list(st[0]), list(st[1])
    a.raw(".p2align 3"); a.label("L_auxrole")
    head(a, False)
    aux(a)
    loops = ["L_loop"]
    loops.append(op_path(a, 5, "a"))
    loops.append(op_path(a, 4, "b"))
    a.label("L_end"); a("s_endpgm")
    a.pad_hazards()
    for l in loops: a.check_backedge(l, "s_cbranch_scc1 " + l)
    a.align8()
    return a.text()

out = []
out.append("; @launch grid=(256,1,1) block=(512,1,1) lds=163840")
out.append('.amdgcn_target "amdgcn-amd-amdhsa--gfx950"\n.text')
out.append(kernel())
out.append('.section .rodata,"a"\n.p2align 6')
out.append(""".amdhsa_kernel %s
  .amdhsa_next_free_vgpr 256
  .amdhsa_next_free_sgpr 102
  .amdhsa_accum_offset 256
  .amdhsa_group_segment_fixed_size 0
  .amdhsa_kernarg_size 104
  .amdhsa_user_sgpr_count 2
  .amdhsa_user_sgpr_kernarg_segment_ptr 1
  .amdhsa_system_sgpr_workgroup_id_x 1
.end_amdhsa_kernel
""" % NAME)
print("\n".join(out))
```

```python
import sys, math, struct
sys.path.insert(0, "dev")
from asmlib import *

OPT = dict(stamps=0, samekv=0, clk=0, prio=0, noop=0, hst=0, nopoll=0, polo=2, polw=0, polx=0, polwo=0, pols=2, norot=0, hnl=0, hnc=0, hnx=0, hnw=0, nhin=2, pfwo=1, pfo=1, slp=4, oponly=0, pfm=1, t1=99, ast=0, dbgst=0)
for a_ in sys.argv[1:]:
    k, v = a_.split("="); OPT[k] = int(v)

NAME = "concat_heads__mha_block_cached__gqa_block_cached__near_ridge_kernel"
def f32(x): return "0x%08x" % struct.unpack("<I", struct.pack("<f", x))[0]
CSCALE = math.log2(math.e) / math.sqrt(128.0)
THR = 8.0
KB = 1024
SLOT = 32 * KB
HB = [0, 51200, 102400]
Q2B = 96 * KB; Q1A = 132 * KB; Q1C = 32 * KB
MLB = 156 * KB; CNT = 160 * KB - 64
STAMP_OFF = 0x10000000
FLAG_OFF = 0x2000000
TAGW = CNT + 8
OOB = 0x40000000
MF = "v_mfma_f32_16x16x32_bf16"
NST = 8
POL = ["", " nt", " sc1", " sc0 sc1", " sc1 nt"]

S_WQ, S_X, S_O, S_KV, S_WO, S_OUT, S_DBG, S_FL = 8, 12, 16, 20, 24, 28, 32, 4
sW, sG, sJJ, sBlk, sB, sRot, sT, sT2, sT3 = 36, 37, 38, 39, 40, 41, 42, 43, 44
sCnt, sThr, sFl, sSlot, sDelta, sItem, sPub, sBar, sExch, sOoff = 45, 46, 47, 48, 49, 50, 51, 52, 53, 54
sNeg, sPos, sLd, sGo, sKg, sRho = 55, 56, 57, 58, 59, 62
sOc, sOn, sWn, sIo, sIw, sEnd, sOpL, sBlkP, sBlkE, sM1, sM2 = 46, 47, 48, 49, 50, 51, 52, 53, 54, 55, 56
sOb, sWb, sOutOff, sOpIdx, sTag, sWant = 80, 81, 82, 83, 84, 85

def srd(a, d, lo, hi, nrec):
    a("s_mov_b32 s%d, s%d\ns_mov_b32 s%d, s%d" % (d, lo, d + 1, hi))
    a("s_mov_b32 s%d, %s\ns_mov_b32 s%d, 0x20000" % (d + 2, nrec, d + 3))
def SR(d): return "s[%d:%d]" % (d, d + 3)

def astamp(a, k):
    if OPT["ast"] == 1: a("s_memrealtime s[%d:%d]" % (64 + 2 * k, 65 + 2 * k))
def stamp(a, k, clk=False, hs=False):
    if OPT["ast"] and k and k != 7: return
    if OPT["hst"] and k and not hs: return
    if hs and not OPT["hst"]: return
    if OPT["stamps"]:
        a("%s s[%d:%d]" % ("s_memtime" if clk else "s_memrealtime", 64 + 2 * k, 65 + 2 * k))

def stamp_store(a):
    if not OPT["stamps"]: return
    a("s_waitcnt vmcnt(0) lgkmcnt(0)")
    a("s_cmp_eq_u32 s%d, 6\ns_cselect_b32 s%d, 256, 0" % (sW, sT))
    a("s_mul_i32 s%d, s%d, 43\ns_lshr_b32 s%d, s%d, 8\ns_mul_i32 s%d, s%d, 6" % (sT2, sW, sT2, sT2, sT2, sT2))
    a("s_cmp_lg_u32 s%d, s%d\ns_cbranch_scc1 L_end" % (sT2, sW))
    if OPT["dbgst"]:
        a("s_cmp_lg_u32 s%d, 0\ns_cbranch_scc1 L_end" % sW)
        a("s_mov_b64 exec, 1\nv_mov_b32 v12, 0")
        words = [1, 2, 3, 5, 6, 7, 9, 10]
        for k in range(NST):
            a("v_mov_b32 v14, s%d" % (64 + 2 * k))
            a("buffer_atomic_umax v14, v12, %s, 0 offen offset:%d" % (SR(S_DBG), 4 * words[k]))
            a("s_nop 1")
        a("s_not_b32 s64, s64\nv_mov_b32 v14, s64")
        a("buffer_atomic_umax v14, v12, %s, 0 offen offset:44" % SR(S_DBG))
        a("s_not_b32 s78, s78\nv_mov_b32 v15, s78")
        a("buffer_atomic_umax v15, v12, %s, 0 offen offset:52" % SR(S_DBG))
        return
    a("s_add_u32 s92, s92, 0x%x\ns_addc_u32 s93, s93, 0" % STAMP_OFF)
    a("s_mov_b32 s94, 0x100000\ns_mov_b32 s95, 0x20000")
    a("s_add_u32 s3, s2, s%d\ns_mul_i32 s3, s3, %d" % (sT, NST * 8))
    a("v_mov_b32 v12, s3")
    a("s_mov_b64 exec, 1")
    for k in range(NST):
        a("v_mov_b32 v14, s%d\nv_mov_b32 v15, s%d" % (64 + 2 * k, 65 + 2 * k))
        a("buffer_store_dwordx2 v[14:15], v12, s[92:95], 0 offen offset:%d" % (8 * k))
        a("s_nop 1")

def lanes(a):
    a("v_and_b32 v12, 63, v0")
    a("v_lshrrev_b32 v13, 4, v12")
    a("v_and_b32 v14, 15, v12")
    a("v_bfe_u32 v15, v12, 2, 2")

vK, vVa, vVb = 1, 2, 3
vX1, vX2, vX3, vX4 = 4, 5, 6, 7
vONE, vT, vQ, vO, vL, vM, vS, vF = 8, 12, 16, 64, 160, 172, 184, 208
def Q(t, s): return vr(vQ + 16 * t + 4 * s, 4)
def O(t, dt): return vr(vO + 32 * t + 4 * dt, 4)
def L(t): return vr(vL + 4 * t, 4)
def M(t): return vr(vM + 4 * t, 4)
def S(t, kt): return vr(vS + 8 * t + 4 * kt, 4)
def F(i): return vF + 4 * i
vD = 240

def kv_tile(a, dreg, imm=None):
    ops = []
    for grp in range(4):
        if imm is not None:
            ops.append("s_add_u32 m0, s%d, %d" % (sKg, imm[0] * SLOT + grp * 4096))
            ops.append("s_mov_b32 s%d, %d" % (sT, imm[1] * 16384 + grp * 4096))
        else:
            ops.append("s_add_u32 m0, s%d, %d" % (sLd, grp * 4096))
            ops.append("s_add_u32 s%d, s%d, %d" % (sT, sGo, grp * 4096))
        for q in range(4):
            ops.append("buffer_load_dwordx4 v%d, %s, s%d offen offset:%d nt lds" % (dreg + q + (4 if grp >= 2 else 0), SR(S_KV), sT, q * 1024))
    for o in ops: a(o, tag="kv")

def head(a, att):
    vHW, vHX = 224, 228
    vA1, vA2, vBx = 231, 232, 233
    cA1, cA2, cBx = 234, 235, 236
    ACC = lambda t, d: vr(64 + 8 * t + 4 * d, 4)
    BF = lambda u, t: vr(136 + 36 * u + 4 * t, 4)
    AF = lambda u, d: 208 + 8 * u + 4 * d
    lanes(a)
    a("v_and_b32 v%d, 3, v12\nv_lshlrev_b32 v%d, 4, v%d" % (vHW, vHW, vHW))
    a("v_mov_b32 v%d, v%d" % (vHX, vHW))
    a("v_lshl_add_u32 v%d, v13, 6, v%d" % (vHW, vHW))
    if not att: a("v_lshl_add_u32 v%d, v15, 8, v%d" % (vD, vHW))
    a("v_lshl_add_u32 v%d, v15, 13, v%d" % (vHW, vHW))
    a("s_and_b32 s%d, s%d, 1\ns_lshl_b32 s%d, s%d, 5" % (sT, sW, sT, sT))
    a("v_xor_b32 v%d, s%d, v%d" % (vHW, sT, vHW))
    a("s_lshl_b32 s%d, s%d, 16\ns_lshl_b32 s%d, s%d, 9\ns_add_u32 s%d, s%d, s%d" % (sT, sW, sT2, sJJ, sT, sT, sT2))
    a("v_add_u32 v%d, s%d, v%d" % (vHW, sT, vHW))
    a("v_add_u32 v%d, %d, v%d" % (vHW + 1, 32768 - 1024, vHW))
    a("v_add_u32 v%d, %d, v%d" % (vHW + 2, 256, vHW))
    a("v_add_u32 v%d, %d, v%d" % (vHW + 3, 32768 - 1024 + 256, vHW))
    a("s_lshl_b32 s63, s%d, 11" % sW)
    if att:
        a("v_and_b32 v%d, 1, v13\nv_lshl_add_u32 v%d, v%d, 6, v%d" % (vA1, vHX, vA1, vHX))
        a("v_lshl_add_u32 v%d, v15, 10, v%d" % (vHX, vHX))
        a("v_lshrrev_b32 v%d, 5, v12\nv_lshl_add_u32 v%d, v%d, 12, v%d" % (vA1, vHX, vA1, vHX))
        a("s_mul_i32 s%d, s%d, %d" % (sT, sW, 3 * 8192))
        a("v_add_u32 v%d, s%d, v%d" % (vHX, sT, vHX))
        a("s_and_b32 s%d, s%d, 1\ns_lshl_b32 s%d, s%d, 5" % (sT, sW, sT, sT))
        a("v_xor_b32 v%d, s%d, v%d" % (vHX, sT, vHX))
        a("v_add_u32 v%d, 7168, v%d\nv_xor_b32 v%d, 32, v%d" % (vHX + 1, vHX, vHX + 1, vHX + 1))
        a("v_add_u32 v%d, 14336, v%d" % (vHX + 2, vHX))
        a("s_mul_i32 s61, s%d, 3072" % sW)
    def stage_load(j):
        buf = HB[(-j) % 3]
        a("s_add_u32 s%d, s%d, %d\ns_and_b32 s%d, s%d, 7" % (sT2, sRot, j, sT2, sT2))
        a("s_lshl_b32 s%d, s%d, 19" % (sT, sT2))
        for hp in range(0 if OPT["hnw"] else 2):
            a("s_add_u32 m0, s63, %d" % (buf + hp * 16384))
            for qq in range(2):
                a("buffer_load_dwordx4 v%d, %s, s%d offen offset:%d%s lds" % (vHW + qq + 2 * hp, SR(S_WQ), sT, qq * 1024, POL[OPT["polw"]]), tag="h%d" % j)
        if att and not OPT["hnx"]:
            a("s_lshl_b32 s%d, s%d, 7" % (sT, sT2))
            a("s_add_u32 m0, s61, %d" % (buf + 32768))
            for e in range(3):
                a("buffer_load_dwordx4 v%d, %s, s%d offen offset:%d%s lds" % (vHX + e, SR(S_X), sT, e * 1024, POL[OPT["polx"]]), tag="h%d" % j)
    stage_load(0); stage_load(1); stage_load(2)
    a("v_and_b32 v%d, 3, v12\nv_lshlrev_b32 v%d, 3, v%d" % (vA1, vA1, vA1))
    a("v_lshl_add_u32 v%d, v15, 6, v%d" % (vA1, vA1))
    a("v_and_b32 v%d, 1, v13\nv_lshl_add_u32 v%d, v%d, 5, v%d" % (vA2, vA1, vA2, vA1))
    if att:
        a("v_lshl_add_u32 v%d, v13, 10, v%d" % (vVa, vA1))
    a("v_lshl_add_u32 v%d, v13, 11, v%d" % (vA1, vA1))
    a("s_lshr_b32 s%d, s%d, 2\ns_lshl_b32 s%d, s%d, 14\ns_and_b32 s%d, s%d, 3\ns_lshl_b32 s%d, s%d, 8\ns_add_u32 s%d, s%d, s%d" % (sT, sW, sT, sT, sT2, sW, sT2, sT2, sT, sT, sT2))
    a("v_add_u32 v%d, s%d, v%d" % (vA1, sT, vA1))
    a("v_xor_b32 v%d, 32, v%d" % (vA2, vA1))
    a("v_lshrrev_b32 v%d, 3, v14\nv_lshlrev_b32 v%d, 1, v%d\nv_xor_b32 v%d, v%d, v13\nv_lshlrev_b32 v%d, 4, v%d" % (vBx, vBx, vBx, vBx, vBx, vBx, vBx))
    a("v_and_b32 v%d, 3, v14\nv_lshl_add_u32 v%d, v%d, 6, v%d" % (cBx, vBx, cBx, vBx))
    a("v_lshl_add_u32 v%d, v15, 9, v%d" % (vBx, vBx))
    a("v_add_u32 v%d, 32768, v%d" % (vBx, vBx))
    if att:
        a("s_lshl_b32 s%d, s%d, 13\ns_add_u32 s%d, s%d, %d" % (sT, sKg, sT, sT, 2 * SLOT))
        a("v_add_u32 v%d, s%d, v%d\nv_add_u32 v%d, 16384, v%d\nv_xor_b32 v%d, 32, v%d" % (vVa, sT, vVa, vVa, vVa, vVb, vVa))
        a("v_lshlrev_b32 v%d, 10, v15" % vK)
        a("v_lshl_add_u32 v%d, v%d, 6, v%d" % (vK, cBx, vK))
        a("v_lshrrev_b32 v%d, 1, v13\nv_and_b32 v%d, 1, v13\nv_lshl_or_b32 v%d, v%d, 1, v%d" % (cA1, cA2, cA1, cA2, cA1))
        a("v_lshrrev_b32 v%d, 3, v14\nv_xor_b32 v%d, v%d, v%d" % (cA2, cA1, cA1, cA2))
        a("v_lshl_add_u32 v%d, v%d, 4, v%d\nv_add_u32 v%d, s%d, v%d" % (vK, cA1, vK, vK, sT, vK))
    else:
        a("s_cmp_eq_u32 s%d, 6" % sW)
        a("s_cselect_b32 s%d, 0, 32\ns_cselect_b32 s%d, 16, 0\ns_cselect_b32 s%d, 16, 32\ns_cselect_b32 s60, 0, 128\ns_cselect_b32 s%d, 0, 16384" % (sT, sT2, sT3, sKg))
        a("v_xor_b32 v%d, s%d, v%d\nv_xor_b32 v%d, s%d, v%d\nv_xor_b32 v%d, s%d, v%d" % (vD + 1, sT, vD, vD + 2, sT2, vD, vD + 3, sT3, vD))
        for q in range(4): a("v_xor_b32 v%d, s60, v%d" % (vD + 4 + q, vD + q))
    def reads(u):
        o = []
        if OPT["hnc"]: return o
        for d in range(2):
            for rd in range(2):
                o.append("ds_read_b64_tr_b16 %s, v%d offset:%d" % (vr(AF(u, d) + 2 * rd, 2), cA2 if d else cA1, u * 8192 + rd * 1024))
        for t in range(9):
            o.append("ds_read_b128 %s, v%d offset:%d" % (BF(u, t), cBx, t * 2048 + u * 256))
        return o
    def mfmas(u, first):
        if OPT["hnc"]: return []
        return ["%s %s, %s, %s, %s" % (MF, ACC(t, d), vr(AF(u, d), 4), BF(u, t), "0" if first else ACC(t, d)) for t in range(9) for d in range(2)]
    stamp(a, 1)
    for j in range(8):
        buf = HB[(-j) % 3]
        a.wait_vm_tag("h%d" % j)
        a("v_add_u32 v%d, %d, v%d\nv_add_u32 v%d, %d, v%d\nv_add_u32 v%d, %d, v%d" % (cA1, buf, vA1, cA2, buf, vA2, cBx, buf, vBx))
        a("s_waitcnt lgkmcnt(0)")
        a("s_barrier")
        if j < 7: stamp(a, j + 1, hs=True)
        for x in reads(0): a(x)
        if 1 <= j and j + 2 < 8 and not OPT["hnl"]: stage_load(j + 2)
        if not att and j == 5 and OPT["pfm"]:
            a("s_lshl_b32 s%d, s%d, 4\ns_add_u32 s%d, s%d, s%d\ns_lshl_b32 s%d, s%d, 1\ns_and_b32 s%d, s%d, 1\ns_add_u32 s%d, s%d, s%d\ns_lshl_b32 s%d, s%d, 14" % (sT, sB, sT, sT, sJJ, sT, sT, sT2, sW, sT, sT, sT2, sT, sT))
            a("v_lshlrev_b32 v250, 7, v12\nv_add_u32 v251, 8192, v250")
            a("buffer_load_dword v252, v250, %s, s%d offen" % (SR(S_WO), sT))
            a("buffer_load_dword v254, v251, %s, s%d offen" % (SR(S_WO), sT))
        if not att and j == 6: kv_tile(a, vD, (2, 0))
        if not att and j == 7: kv_tile(a, vD, (0, 1))
        r1 = reads(1)
        if j > 0:
            m = mfmas(1, False)
            for k, x in enumerate(m): a(x)
        for x in r1: a(x)
        a("WAIT " + vr(AF(0, 0), 8) + " " + vr(136, 12))
        for k, x in enumerate(mfmas(0, j == 0)):
            if k == 6: a("WAIT " + vr(136, 36))
            a(x)
    a("s_waitcnt lgkmcnt(0)")
    a("s_barrier")
    for x in mfmas(1, False): a(x)
    a("s_mov_b32 s%d, %s" % (sT3, f32(CSCALE)))
    a("s_cmp_lt_u32 s%d, 4" % sW)
    a("s_cselect_b32 s%d, %d, %d" % (sT, Q1A, Q2B) if False else "s_cselect_b32 s%d, %d, 0" % (sT, Q1A - Q2B))
    a("s_cselect_b32 s%d, 0, %d" % (sT2, Q2B + 24 * KB - Q1C))
    a("s_add_u32 s%d, s%d, %d\ns_add_u32 s%d, s%d, %d" % (sT, sT, Q2B, sT2, sT2, Q1C))
    a("s_and_b32 s60, s%d, 3\ns_lshl_b32 s60, s60, 10" % sW)
    a("v_lshlrev_b32 v%d, 4, v12\nv_add_u32 v%d, s60, v%d" % (cBx, cBx, cBx))
    a("v_add_u32 v%d, s%d, v%d\nv_add_u32 v%d, s%d, v%d" % (cA1, sT, cBx, cA2, sT2, cBx))
    for t in range(9):
        b = 64 + 8 * t
        for r in range(8): a("v_mul_f32 v%d, s%d, v%d" % (b + r, sT3, b + r))
        for r in range(4): a("v_cvt_pk_bf16_f32 v%d, v%d, v%d" % (b + r, b + 2 * r, b + 2 * r + 1))
    for t in range(9):
        b = 64 + 8 * t
        a("v_permlane16_swap_b32 v%d, v%d\nv_permlane16_swap_b32 v%d, v%d" % (b, b + 2, b + 1, b + 3))
    for t in range(9):
        b = 64 + 8 * t
        a("ds_write_b128 v%d, %s offset:%d" % (cA1 if t < 6 else cA2, vr(b, 4), (t if t < 6 else t - 6) * 4096))
    a("s_waitcnt lgkmcnt(0)")
    a("s_barrier")
    stamp(a, 2)

def soft_barrier(a, name):
    a("s_waitcnt lgkmcnt(0)")
    a("s_add_u32 s%d, s%d, 6" % (sBar, sBar))
    a("s_mov_b64 exec, 1")
    a("ds_add_u32 v%d, v%d" % (vX3, vX4))
    a("s_mov_b64 exec, -1")
    a.label(name)
    a("ds_read_b32 v%d, v%d" % (vT, vX3))
    a("s_waitcnt lgkmcnt(0)")
    a("v_readfirstlane_b32 s%d, v%d" % (sT, vT))
    a("s_cmp_lt_u32 s%d, s%d" % (sT, sBar))
    a("s_cbranch_scc1 %s" % name)

def publish(a, name, last, bit):
    a("s_waitcnt vmcnt(0)")
    if OPT["pfo"]:
        a("v_and_b32 v%d, 63, v0\nv_min_u32 v%d, 47, v%d" % (vT, vT, vT))
        a("v_lshlrev_b32 v%d, 7, v%d" % (vT + 1, vT))
        a("v_cmp_lt_u32 vcc, 23, v%d\nv_mov_b32 v%d, 0\nv_mov_b32 v%d, 6144" % (vT, vT, vT + 2))
        a("v_cndmask_b32 v%d, v%d, v%d, vcc" % (vT, vT, vT + 2))
        a("v_add_u32 v%d, v%d, v%d" % (vT + 1, vT + 1, vT))
        a("s_sub_u32 s%d, s%d, %d" % (sT, sOoff, 0 if bit else 36 * KB))
        a("buffer_load_dword v%d, v%d, %s, s%d offen sc1" % (vT + 3, vT + 1, SR(S_O), sT))
    a("s_mov_b64 exec, 1")
    a("ds_add_rtn_u32 v%d, v%d, v%d offset:4" % (vT, vX3, vX4))
    a("ds_read_b32 v%d, v%d offset:8" % (vT + 1, vX3))
    a("s_waitcnt lgkmcnt(0)")
    a("v_readfirstlane_b32 s%d, v%d" % (sT, vT))
    a("s_cmp_lg_u32 s%d, %d" % (sT, last))
    a("s_cbranch_scc1 %s" % name)
    if bit: a("v_or_b32 v%d, 0x40000000, v%d" % (vT + 1, vT + 1))
    a("s_lshl_b32 s%d, s%d, 2" % (sT2, sJJ))
    a("v_mov_b32 v%d, s%d" % (vT, sT2))
    a("buffer_store_dword v%d, v%d, %s, 0 offen sc1" % (vT + 1, vT, SR(S_FL)))
    a.label(name)
    a("s_mov_b64 exec, -1")
    a.vm = []

def attention(a):
    NT = 3; TL = 2
    a("v_lshlrev_b32 v%d, 4, v12" % vX1)
    a("s_mul_i32 s%d, s%d, %d\ns_add_u32 s%d, s%d, %d" % (sT, sRho, 12 * KB, sT, sT, Q1A))
    a("s_cmp_eq_u32 s%d, 2\ns_cselect_b32 s%d, %d, s%d" % (sRho, sT, Q1C, sT))
    a("v_add_u32 v%d, s%d, v%d" % (vX2, sT, vX1))
    for t in range(3):
        for s in range(4): a("ds_read_b128 %s, v%d offset:%d" % (Q(t, s), vX2, t * 4096 + s * 1024))
    a("v_mov_b32 v%d, %d\nv_mov_b32 v%d, 1" % (vX3, CNT, vX4))
    for r in range(4): a("v_mov_b32 v%d, 0x3f803f80" % (vONE + r))
    a("s_mov_b32 s%d, 0\ns_mov_b32 s%d, -1\ns_mov_b32 s%d, 0\ns_mov_b32 s%d, %d\ns_mov_b32 s%d, 2" % (sItem, sPub, sBar, sExch, 64 * KB, sSlot))
    a("s_mov_b32 s%d, 0x%x\ns_mov_b32 s%d, %d" % (sNeg, (-2 * SLOT) & 0xffffffff, sPos, SLOT))
    a("s_lshl_b32 s%d, s%d, 3\ns_lshl_b32 s%d, s%d, 1\ns_add_u32 s%d, s%d, s%d\ns_mul_i32 s%d, s%d, 9" % (sT, sJJ, sT2, sKg, sT, sT, sT2, sT, sT))
    a("s_mul_i32 s%d, s%d, 3\ns_add_u32 s%d, s%d, s%d\ns_lshl_b32 s%d, s%d, 10" % (sT2, sRho, sT, sT, sT2, sOoff, sT))
    if OPT["prio"]: a("s_setprio %d" % OPT["prio"])
    a.label("L_item")
    for r in list(range(vO, vO + 96, 2)) + list(range(vL, vL + 24, 2)) + list(range(vS + 16, vS + 20, 2)) + list(range(vF, vF + 32, 2)):
        a("v_mov_b64 %s, 0" % vr(r, 2))
    a("s_mov_b32 s%d, 0xff800000\ns_mov_b32 s%d, 0xff800000\ns_mov_b32 s%d, 0" % (sThr, sFl, sCnt))
    a("s_waitcnt lgkmcnt(0)")
    Ga, Gb, Gc = 0, 4, 8
    def kread(kt, s):
        slot = (Gc + s) if kt == 0 else (Gb + s)
        return "ds_read_b128 %s, v%d offset:%d" % (vr(F(slot), 4), vK, kt * 4096 + s * 256)
    def vslot(dt): return (Ga + dt) if dt < 4 else (Gb + dt - 4)
    def vread(dt, rd):
        return "ds_read_b64_tr_b16 %s, v%d offset:%d" % (vr(F(vslot(dt)) + 2 * rd, 2), vVb if dt & 1 else vVa, rd * 4096 + (dt >> 1) * 256)
    def pv(t, dt): return "%s %s, %s, %s, %s" % (MF, O(t, dt), vr(F(vslot(dt)), 4), S(t, 0), O(t, dt))
    def lsum(t): return "%s %s, %s, %s, %s" % (MF, L(t), vr(vONE, 4), S(t, 0), L(t))
    def qk(t, kt, s):
        slot = (Gc + s) if kt == 0 else (Gb + s)
        return "%s %s, %s, %s, %s" % (MF, S(t, kt), vr(F(slot), 4), Q(t, s), M(t) if s == 0 else S(t, kt))
    def sm(t):
        b = vS + 8 * t
        g = [["v_max3_f32 v%d, v%d, v%d, v%d" % (vT, b, b + 1, b + 2), "v_max3_f32 v%d, v%d, v%d, v%d" % (vT + 1, b + 3, b + 4, b + 5)],
             ["v_max3_f32 v%d, v%d, v%d, v%d" % (vT, vT, b + 6, b + 7), "v_max_f32 v%d, v%d, v%d" % (vT, vT, vT + 1)],
             ["v_cmp_lt_f32 vcc, s%d, v%d" % (sThr, vT)],
             ["s_cbranch_vccnz L_rare%d\nL_back%d:" % (t, t), "v_exp_f32 v%d, v%d" % (b, b)]]
        for r in range(1, 8): g.append(["v_exp_f32 v%d, v%d" % (b + r, b + r)])
        cv = ["v_cvt_pk_bf16_f32 v%d, v%d, v%d" % (b + r, b + 2 * r, b + 2 * r + 1) for r in range(4)]
        g.append(cv[:2]); g.append(cv[2:])
        return g
    a.raw(".p2align 6")
    a.label("L_loop")
    a("s_barrier")
    mf = []; fill = {}
    def put(idx, ops): fill.setdefault(idx, []).extend(ops)
    mf += [pv(TL, dt) for dt in (4, 5, 6, 7)] + [pv(TL, dt) for dt in (0, 1, 2, 3)] + [lsum(TL)]
    qk_end = {}
    for t in range(NT):
        for kt in ((0, 1) if t < TL else (1, 0)):
            mf += [qk(t, kt, s) for s in range(4)]
            if t == TL and kt == 1: v47_at = len(mf) - 1
        qk_end[t] = len(mf) - 1
    pv_start = {}
    for t in range(TL):
        pv_start[t] = len(mf)
        mf += [pv(t, dt) for dt in range(4)] + [lsum(t)] + [pv(t, dt) for dt in range(4, 8)]
    n = len(mf)
    pre = [kread(0, s) for s in range(4)]
    for s in range(4): put(s, [kread(1, s)])
    for dt in range(4): put(4 + dt, [vread(dt, 0), vread(dt, 1)])
    put(8, ["WAIT " + vr(F(Gc), 16)])
    put(9, ["s_add_u32 s%d, s%d, 1" % (sSlot, sSlot), "s_cmp_eq_u32 s%d, 3" % sSlot])
    put(10, ["s_cselect_b32 s%d, s%d, s%d" % (sDelta, sNeg, sPos), "s_cselect_b32 s%d, 0, s%d" % (sSlot, sSlot)])
    put(12, ["WAIT " + vr(F(Gb), 16), "v_add_u32 v%d, s%d, v%d" % (vK, sDelta, vK)])
    for dt in range(4, 8): put(v47_at - 3 + (dt - 4), [vread(dt, 0), vread(dt, 1)])
    groups = [(t, g) for t in range(NT) for g in sm(t)]
    lo = qk_end[0] + 4
    span = n - lo
    for k, (t, g) in enumerate(groups):
        idx = lo + (k * span) // len(groups)
        assert idx >= qk_end[t] + 2 and (t == TL or idx < pv_start[t]), (t, idx)
        put(idx, g)
    put(pv_start[0] - 1, ["WAIT " + vr(F(Ga), 16)])
    put(pv_start[0] + 4, ["WAIT " + vr(F(Gb), 16)])
    put(lo - 2, ["s_add_u32 s%d, s%d, 1" % (sCnt, sCnt)])
    for x in pre: a(x)
    for k, m in enumerate(mf):
        a(m)
        for x in fill.get(k, []): a(x)
    a("v_add_u32 v%d, s%d, v%d\nv_add_u32 v%d, s%d, v%d" % (vVa, sDelta, vVa, vVb, sDelta, vVb))
    a("s_mov_b32 s%d, %s\ns_mov_b32 s%d, 0" % (sThr, f32(THR), sFl))
    a("s_cmp_eq_u32 s%d, s%d" % (sCnt, sPub))
    a("s_cbranch_scc1 L_pub1")
    a.label("L_pub1_back")
    a("s_cmp_lt_u32 s%d, 16" % sCnt)
    a("s_cbranch_scc1 L_loop")
    a("s_cmp_eq_u32 s%d, 0" % sItem)
    a("s_cbranch_scc0 L_st4")
    stamp(a, 3)
    a("s_branch L_st4b")
    a.label("L_st4"); stamp(a, 4)
    a.label("L_st4b")
    a("s_mul_i32 s%d, s%d, %d\ns_add_u32 s%d, s%d, %d" % (sT, sRho, 12 * KB, sT, sT, Q2B))
    a("v_add_u32 v%d, s%d, v%d" % (vX2, sT, vX1))
    for t in range(3):
        for s in range(4): a("ds_read_b128 %s, v%d offset:%d" % (Q(t, s), vX2, t * 4096 + s * 1024))
    a(lsum(TL))
    for dt in range(8): a(pv(TL, dt))
    a("v_and_b32 v%d, 15, v0\nv_lshlrev_b32 v%d, 3, v%d" % (vT + 2, vT + 2, vT + 2))
    a("s_mul_i32 s%d, s%d, 384\ns_add_u32 s%d, s%d, %d" % (sT, sW, sT, sT, MLB))
    a("v_add_u32 v%d, s%d, v%d" % (vT + 3, sT, vT + 2))
    for t in range(3):
        a("v_mov_b32 v%d, v%d" % (vM + 4 * t + 1, vL + 4 * t))
        a("ds_write_b64 v%d, %s offset:%d" % (vT + 3, vr(vM + 4 * t, 2), t * 128))
    a("s_add_u32 s%d, s%d, 3\ns_cmp_ge_u32 s%d, 6\ns_cselect_b32 s%d, 6, 0\ns_sub_u32 s%d, s%d, s%d" % (sT3, sW, sT3, sT2, sT3, sT3, sT2))
    a("s_mul_i32 s%d, s%d, 384\ns_add_u32 s%d, s%d, %d" % (sT2, sT3, sT2, sT2, MLB))
    a("v_add_u32 v%d, s%d, v%d" % (vT + 3, sT2, vT + 2))
    soft_barrier(a, "L_sb1")
    for t in range(3): a("ds_read_b64 %s, v%d offset:%d" % (vr(vM + 4 * t + 2, 2), vT + 3, t * 128))
    a("s_mul_i32 s%d, s%d, %d\ns_add_u32 s%d, s%d, s%d" % (sT, sW, 12 * KB, sT, sT, sExch))
    a("v_add_u32 v%d, s%d, v%d" % (vX2, sT, vX1))
    for t in range(3):
        m = vM + 4 * t; l = vL + 4 * t
        a("v_min_f32 v%d, v%d, v%d" % (l, m, m + 2))
        a("v_sub_f32 v%d, v%d, v%d\nv_sub_f32 v%d, v%d, v%d" % (l + 1, l, m, l + 2, l, m + 2))
        a("v_exp_f32 v%d, v%d\nv_exp_f32 v%d, v%d" % (l + 1, l + 1, l + 2, l + 2))
        a("v_mul_f32 v%d, v%d, v%d" % (l + 3, l + 1, m + 1))
        a("v_fma_f32 v%d, v%d, v%d, v%d" % (l + 3, l + 2, m + 3, l + 3))
        a("v_rcp_f32 v%d, v%d" % (l + 3, l + 3))
        a("v_mul_f32 v%d, v%d, v%d" % (l, l + 1, l + 3))
    for t in range(3):
        for i in range(4):
            b = vO + 32 * t + 16 + 4 * i
            for r in range(4): a("v_mul_f32 v%d, v%d, v%d" % (b + r, vL + 4 * t, b + r))
            a("ds_write_b128 v%d, %s offset:%d" % (vX2, vr(b, 4), (t * 4 + i) * 1024))
    a("s_mul_i32 s%d, s%d, %d\ns_add_u32 s%d, s%d, s%d" % (sT2, sT3, 12 * KB, sT2, sT2, sExch))
    a("v_add_u32 v%d, s%d, v%d" % (vX2, sT2, vX1))
    soft_barrier(a, "L_sb2")
    for t in range(3):
        for i in range(4): a("ds_read_b128 %s, v%d offset:%d" % (vr(vO + 32 * t + 16 + 4 * i, 4), vX2, (t * 4 + i) * 1024))
    for t in range(3):
        for s in range(2):
            b = vO + 32 * t + 8 * s
            for r in range(8): a("v_fma_f32 v%d, v%d, v%d, v%d" % (b + r, b + r, vL + 4 * t, b + 16 + r))
            d = vF + 32 + 4 * ((t * 2 + s) % 4) if False else b
            for r in range(4): a("v_cvt_pk_bf16_f32 v%d, v%d, v%d" % (vS + 4 * (t * 2 + s) + r, b + 2 * r, b + 2 * r + 1))
            a("s_add_u32 s%d, s%d, %d" % (sT, sOoff, (s * 9 + t) * 1024))
            a("buffer_store_dwordx4 %s, v%d, %s, s%d offen%s" % (vr(vS + 4 * (t * 2 + s), 4), vX1, SR(S_O), sT, POL[OPT["pols"]]))
    a("s_cmp_eq_u32 s%d, 0" % sItem)
    a("s_cbranch_scc0 L_att_done")
    a("s_mov_b32 s%d, 1\ns_mov_b32 s%d, 2\ns_mov_b32 s%d, 0\ns_add_u32 s%d, s%d, %d" % (sItem, sPub, sExch, sOoff, sOoff, 36 * KB))
    a("s_nop 1")
    a("s_branch L_item")
    a.vm = []; a.lgkm = []
    a.label("L_pub1")
    publish(a, "L_pub1_x", 5, 0)
    a("s_branch L_pub1_back")
    for t in range(NT):
        b = vS + 8 * t
        a.label("L_rare%d" % t)
        a("s_nop 15")
        a("v_mov_b32 v%d, v%d" % (vT + 1, vT))
        a("v_permlane16_swap_b32 v%d, v%d" % (vT, vT + 1))
        a("v_max_f32 v%d, v%d, v%d" % (vT, vT, vT + 1))
        a("v_mov_b32 v%d, v%d" % (vT + 1, vT))
        a("v_permlane32_swap_b32 v%d, v%d" % (vT, vT + 1))
        a("v_max_f32 v%d, v%d, v%d" % (vT, vT, vT + 1))
        a("v_max_f32 v%d, s%d, v%d" % (vT, sFl, vT))
        for r in range(8): a("v_sub_f32 v%d, v%d, v%d" % (b + r, b + r, vT))
        for r in range(4): a("v_sub_f32 v%d, v%d, v%d" % (vM + 4 * t + r, vM + 4 * t + r, vT))
        a("s_cmp_lg_u32 s%d, 0" % sFl)
        a("s_cbranch_scc1 L_rare%d_x" % t)
        a("v_exp_f32 v%d, -v%d" % (vT + 1, vT))
        for r in range(4): a("v_mul_f32 v%d, v%d, v%d" % (vL + 4 * t + r, vL + 4 * t + r, vT + 1))
        for r in range(32): a("v_mul_f32 v%d, v%d, v%d" % (vO + 32 * t + r, vO + 32 * t + r, vT + 1))
        a.label("L_rare%d_x" % t)
        a("s_nop 3")
        a("s_branch L_back%d" % t)
    a.label("L_att_done")
    publish(a, "L_pub2_x", 11, 1)
    stamp(a, 5)
    a("s_cmp_ge_u32 s%d, 2" % sW)
    a("s_cbranch_scc1 L_end")
    a.label("L_w12")
    a("ds_read_b64 %s, v%d offset:4" % (vr(vT, 2), vX3) if False else "ds_read_b32 v%d, v%d offset:4" % (vT, vX3))
    a("ds_read_b32 v%d, v%d offset:8" % (vT + 1, vX3))
    a("s_waitcnt lgkmcnt(0)")
    a("v_readfirstlane_b32 s%d, v%d\nv_readfirstlane_b32 s%d, v%d" % (sT, vT, sTag, vT + 1))
    a("s_cmp_lt_u32 s%d, 12" % sT)
    a("s_cbranch_scc1 L_w12")
    a("s_waitcnt vmcnt(0)")
    a("s_mov_b32 s%d, s%d" % (sOpIdx, sW))
    a("s_mul_i32 s%d, s%d, %d" % (sOpL, sW, 48 * KB))
    op_setup(a, 3, 8)
    a("s_cmp_eq_u32 s60, 0\ns_cbranch_scc1 L_op_a_join\ns_branch L_op_b_join")

def aux_adv(a):
    a("s_add_u32 s%d, s%d, 16384\ns_add_u32 s%d, s%d, %d" % (sGo, sGo, sLd, sLd, SLOT))
    a("s_cmp_ge_u32 s%d, %d\ns_cselect_b32 s%d, %d, 0\ns_sub_u32 s%d, s%d, s%d" % (sLd, 3 * SLOT, sT, 3 * SLOT, sLd, sLd, sT))

def aux_steps(a, upto, name):
    a.raw(".p2align 3")
    a.label(name)
    a("s_waitcnt vmcnt(16)")
    a("s_barrier")
    kv_tile(a, 128)
    aux_adv(a)
    a("s_add_u32 s%d, s%d, 1\ns_cmp_lt_u32 s%d, %d\ns_cbranch_scc1 %s" % (sCnt, sCnt, sCnt, upto, name))
    a.vm = []

def wo_touch(a, phase):
    if not OPT["pfwo"]: return
    a("s_and_b32 s%d, s%d, 1\ns_lshl_b32 s%d, s%d, 4\ns_add_u32 s%d, s%d, s%d" % (sT, sG, sT, sT, sT, sT, sJJ))
    a("s_lshr_b32 s%d, s%d, 1\ns_lshl_b32 s%d, s%d, 18\ns_and_b32 s%d, s%d, 1\ns_lshl_b32 s%d, s%d, 16\ns_add_u32 s%d, s%d, s%d" % (sT2, sT, sT2, sT2, sT, sT, sT, sT, sT, sT, sT2))
    a("s_and_b32 s%d, s%d, 1\ns_lshl_b32 s%d, s%d, 15\ns_add_u32 s%d, s%d, s%d" % (sT2, sW, sT2, sT2, sT, sT, sT2))
    for i in range(4):
        a("s_add_u32 s%d, s%d, %d" % (sT2, sT, phase * 131072 + i * 8192))
        a("buffer_load_dword v137, v136, %s, s%d offen" % (SR(S_WO), sT2))
        a.vm = []

def aux(a):
    for q in range(8): a("v_mov_b32 v%d, v%d" % (128 + q, vD + q))
    a("v_lshlrev_b32 v136, 7, v12")
    a("v_lshlrev_b32 v138, 2, v14")
    a("s_lshl_b32 s%d, s%d, 4\nv_mov_b32 v139, s%d" % (sT, sG, sT))
    a("s_add_u32 s%d, s%d, %d\ns_mov_b32 s%d, %d\ns_mov_b32 s%d, 0" % (sLd, sKg, 1 * SLOT, sGo, 2 * 16384, sCnt))
    a("s_sub_u32 s%d, s%d, 4" % (sOpIdx, sW))
    a("s_sub_u32 s%d, s%d, 6\ns_lshl_b32 s%d, s%d, 14\ns_add_u32 s%d, s%d, %d" % (sOpL, sW, sOpL, sOpL, sOpL, sOpL, 96 * KB))
    a("buffer_load_dword v140, v138, %s, 0 offen sc1" % SR(S_FL))
    a.vm = []
    aux_steps(a, 3, "L_aux0")
    a("s_lshl_b32 s%d, s%d, 3\ns_add_u32 s%d, s%d, s%d\ns_cmp_lg_u32 s%d, 6\ns_cbranch_scc1 L_aux1" % (sT, sJJ, sT, sT, sW, sT))
    a("v_lshrrev_b32 v140, v14, v140\nv_and_b32 v140, 1, v140\nv_cmp_eq_u32 vcc, 0, v140")
    a("s_nop 1")
    a("s_and_b32 s%d, vcc_lo, 0xffff\ns_or_b32 s%d, s%d, 0x80000000" % (sT, sT, sT))
    a("v_mov_b32 v140, s%d" % sT)
    a("buffer_store_dword v140, v139, %s, 0 offen sc1" % SR(S_DBG))
    a.vm = []
    aux_steps(a, 9, "L_aux1")
    a("buffer_load_dword v140, v139, %s, 0 offen sc1" % SR(S_DBG))
    a.vm = []
    aux_steps(a, 12, "L_aux2")
    a.label("L_tag")
    a("v_readfirstlane_b32 s%d, v140" % sTag)
    a("s_cmp_lg_u32 s%d, 0\ns_cbranch_scc1 L_tag_ok" % sTag)
    a("s_sleep 8")
    a("buffer_load_dword v140, v139, %s, 0 offen sc1" % SR(S_DBG))
    a("s_waitcnt vmcnt(0)")
    a("s_branch L_tag")
    a.label("L_tag_ok")
    a("v_mov_b32 v141, %d" % TAGW)
    a("ds_write_b32 v141, v140")
    a("s_waitcnt lgkmcnt(0)")
    s0 = 32 - 4 * OPT["nhin"]
    astamp(a, 1)
    aux_steps(a, s0 - 6, "L_aux3")
    astamp(a, 2)
    wo_touch(a, 0)
    op_setup(a, 1, 0)
    aux_steps(a, s0 - 4, "L_aux4")
    a("buffer_load_dword v140, v138, %s, 0 offen sc1" % SR(S_FL))
    a.vm = []
    aux_steps(a, s0 - 1, "L_aux5")
    astamp(a, 3)
    a("s_cmp_eq_u32 s60, 0\ns_cbranch_scc0 L_op_b_aux")

def op_setup(a, nblk, i0):
    lanes(a)
    a("v_lshlrev_b32 v1, 4, v12\nv_add_u32 v8, 4096, v1")
    a("v_lshrrev_b32 v9, 5, v12")
    a("v_and_b32 v4, 3, v12\nv_lshlrev_b32 v5, 1, v9\nv_xor_b32 v4, v4, v5\nv_lshlrev_b32 v4, 4, v4")
    a("v_and_b32 v5, 1, v13")
    a("v_lshl_add_u32 v4, v5, 6, v4\nv_lshl_add_u32 v4, v15, 10, v4\nv_lshl_add_u32 v4, v9, 12, v4")
    a("v_and_b32 v2, 3, v12\nv_lshlrev_b32 v2, 3, v2\nv_lshl_add_u32 v2, v15, 6, v2\nv_lshl_add_u32 v2, v5, 5, v2\nv_lshl_add_u32 v2, v13, 9, v2")
    a("v_add_u32 v2, s%d, v2\nv_xor_b32 v3, 32, v2" % sOpL)
    for q in range(1, 4): a("v_add_u32 v%d, %d, v4" % (4 + q, 7168 * q))
    for r in range(176, 256, 2): a("v_mov_b64 %s, 0" % vr(r, 2))
    a("s_lshr_b32 s60, s%d, 3\ns_and_b32 s61, s%d, 7" % (sJJ, sJJ))
    a("s_mul_i32 s%d, s60, 5120" % sOb)
    a("s_lshl_b32 s%d, s61, 7" % sWb)
    a("s_mul_i32 s%d, s%d, 144\ns_mul_i32 s%d, s60, 80\ns_add_u32 s%d, s%d, s%d\ns_lshl_b32 s%d, s%d, 11" % (sOutOff, sB, sT, sOutOff, sOutOff, sT, sOutOff, sOutOff))
    a("s_lshl_b32 s%d, s%d, 10\ns_add_u32 s%d, s%d, s%d\ns_add_u32 s%d, s%d, s%d" % (sT, sBlk, sOutOff, sOutOff, sT, sOutOff, sOutOff, sWb))
    a("s_lshl_b32 s%d, s%d, 5\ns_add_u32 s%d, s%d, s%d" % (sT, sOpIdx, sOutOff, sOutOff, sT))
    a("v_lshlrev_b32 v10, 11, v14\nv_lshl_add_u32 v10, v13, 3, v10")
    a("v_lshlrev_b32 v11, 2, v14")
    a("s_and_b32 s%d, s%d, 1\ns_lshl_b32 s%d, s%d, 1\ns_add_u32 s%d, s%d, s60\ns_lshl_b32 s%d, s%d, 2\ns_add_u32 s%d, s%d, s%d" % (sT, sG, sT, sT, sT, sT, sT, sT, sT, sT, sOpIdx))
    a("s_lshl_b32 s%d, s61, 1\ns_add_u32 s%d, s%d, s%d\ns_add_u32 s%d, s%d, s%d" % (sT2, sM1, sT, sT2, sM2, sM1, sT2))
    a("s_mov_b32 s%d, %d\ns_mov_b32 s%d, %d" % (sIo, i0, sIw, i0))
    a("s_mov_b32 s%d, s%d\ns_add_u32 s%d, s%d, %d" % (sBlkP, sOpL, sBlkE, sOpL, nblk * 16384))

def op_path(a, NR, role):
    lab = lambda s: "L_op_%s_%s" % (role, s)
    B = lambda k, t: vr(16 + ((k % 4) * 5 + t) * 4, 4)
    ACC = lambda t, ct: vr(176 + (t * 4 + ct) * 4, 4)
    G = NR + 4
    def kbase(si):
        a("s_cmp_lt_u32 s%d, 8" % si)
        a("s_cselect_b32 s%d, 1, 2\ns_cselect_b32 s%d, s%d, s%d\ns_cselect_b32 s%d, 0, 4" % (sT, sT2, sM1, sM2, sT3))
        a("s_lshl_b32 s%d, s%d, s%d\ns_add_u32 s%d, s%d, s%d\ns_and_b32 s%d, s%d, 15" % (sT, si, sT, sT, sT, sT2, sT, sT))
        a("s_lshl_b32 s%d, s%d, 3\ns_add_u32 s%d, s%d, s%d" % (sT, sT, sT, sT, sT3))
    def next_o(dst):
        kbase(sIo)
        a("s_mul_i32 s%d, s%d, 9216\ns_add_u32 s%d, s%d, s%d" % (dst, sT, dst, dst, sOb))
        a("s_cmp_lt_u32 s%d, s%d\ns_cselect_b32 s%d, s%d, 0x%x" % (sIo, sEnd, dst, dst, OOB))
    def next_w():
        kbase(sIw)
        a("s_lshl_b32 s%d, s%d, 15\ns_add_u32 s%d, s%d, s%d" % (sWn, sT, sWn, sWn, sWb))
        a("s_cmp_lt_u32 s%d, 12\ns_cselect_b32 s%d, s%d, 0x%x\ns_add_u32 s%d, s%d, 1" % (sIw, sWn, sWn, OOB, sIw, sIw))
    def w_ops(k, blk):
        o = ["s_add_u32 m0, s%d, %d" % (blk, k * 4096), "s_add_u32 s%d, s%d, %d" % (sT2, sWn, k * 32768)]
        for q in range(4):
            o.append("buffer_load_dwordx4 v%d, %s, s%d offen offset:%d%s lds" % (4 + q, SR(S_WO), sT2, q * 1024, POL[OPT["polwo"]]))
        return o
    def o_ops(k, so):
        o = ["s_add_u32 s%d, s%d, %d" % (sT3, so, k * 9216)]
        for t in range(NR):
            if t < 4: o.append("buffer_load_dwordx4 %s, v1, %s, s%d offen offset:%d%s" % (B(k, t), SR(S_O), sT3, t * 1024, POL[OPT["polo"]]))
            else: o.append("buffer_load_dwordx4 %s, v8, %s, s%d offen%s" % (B(k, t), SR(S_O), sT3, POL[OPT["polo"]]))
        return o
    def reads(k):
        buf = 96 + 16 * (k & 1)
        return ["ds_read_b64_tr_b16 %s, v%d offset:%d" % (vr(buf + 4 * ct + 2 * rd, 2), 3 if ct & 1 else 2, k * 4096 + rd * 2048 + (ct >> 1) * 256)
                for ct in range(4) for rd in range(2)]
    def run(ops):
        for x in ops: a(x); a.vm = []
    def prime_w(nblk):
        for bI in range(nblk):
            next_w()
            a("s_add_u32 s%d, s%d, %d" % (sOn, sOpL, bI * 16384))
            for k in range(4): run(w_ops(k, sOn))
    def check_flags(first_loaded, name, mask30):
        a("s_or_b32 s%d, s%d, 0x40000000" % (sWant, sTag))
        if first_loaded: a("v_mov_b32 v9, v140\ns_branch %s" % (name + "_c"))
        a.label(name)
        a("buffer_load_dword v9, v11, %s, 0 offen sc1" % SR(S_FL))
        a("s_waitcnt vmcnt(0)")
        a.label(name + "_c")
        if mask30: a("v_or_b32 v9, 0x40000000, v9")
        a("v_cmp_ne_u32 vcc, s%d, v9" % sWant)
        if OPT["nopoll"]: a("s_branch %s" % (name + "_ok"))
        a("s_cbranch_vccz %s" % (name + "_ok"))
        a("s_sleep %d" % OPT["slp"])
        a("s_branch %s" % name)
        a.label(name + "_ok")
        a.vm = []
    def prime_o(pad=True):
        next_o(sOc)
        a("s_mov_b32 s%d, 0x%x" % (sT2, OOB))
        for k in range(3):
            for q in range(4 if pad and k else 0): run(["buffer_load_dword v9, v1, %s, s%d offen" % (SR(S_O), sT2)])
            run(o_ops(k, sOc))
    def head_top():
        a("s_add_u32 s%d, s%d, 1" % (sIo, sIo))
        next_o(sOn)
        next_w()
    def kstep(k, wait=True):
        if wait: a("s_waitcnt vmcnt(%d)" % (2 * G))
        if k == 3:
            a("s_add_u32 s%d, s%d, 16384\ns_cmp_ge_u32 s%d, s%d\ns_cselect_b32 s%d, s%d, s%d\ns_sub_u32 s%d, s%d, s%d" % (sT, sBlkP, sT, sBlkE, sT, sOpL, sT, sT3, sT, sBlkP))
            a("s_waitcnt lgkmcnt(0)")
            a("v_add_u32 v2, s%d, v2\nv_add_u32 v3, s%d, v3" % (sT3, sT3))
            a("s_mov_b32 s63, s%d" % sT)
        else:
            a("s_waitcnt lgkmcnt(0)")
        fillers = reads((k + 1) % 4) + w_ops(k, sBlkP) + (o_ops(3, sOc) if k == 0 else o_ops(k - 1, sOn))
        buf = 96 + 16 * (k & 1)
        ms = ["%s %s, %s, %s, %s" % (MF, ACC(t, ct), vr(buf + 4 * ct, 4), B(k, t), ACC(t, ct)) for ct in range(4) for t in range(NR)]
        fi = 0
        for i, m in enumerate(ms):
            a(m)
            tgt = ((i + 1) * len(fillers) + len(ms) - 3) // (len(ms) - 2)
            while fi < min(tgt, len(fillers)):
                a(fillers[fi]); a.vm = []; fi += 1
        a.lgkm = []
        if k == 3: a("s_mov_b32 s%d, s63\ns_mov_b32 s%d, s%d" % (sBlkP, sOc, sOn))
    a.label(lab("aux"))
    a("s_mov_b32 s%d, 8" % sEnd)
    check_flags(True, lab("f1"), True)
    astamp(a, 4)
    prime_w(1)
    prime_o(False)
    P = 16 + 3 * NR
    a("s_waitcnt vmcnt(%d)\ns_barrier" % (16 + P))
    kv_tile(a, 128); aux_adv(a); a.vm = []
    nh = OPT["nhin"]
    for hI in range(nh):
        for k in range(4):
            step = 32 - 4 * nh + 4 * hI + k
            first = hI == 0 and k == 0
            if first: a("s_waitcnt vmcnt(%d)" % (16 + P))
            elif hI == 0 and k == 1: a("s_waitcnt vmcnt(%d)" % (16 + G))
            elif step <= 30: a("s_waitcnt vmcnt(%d)" % (16 + 2 * G))
            else: a("s_waitcnt vmcnt(%d)" % (2 * G))
            a("s_barrier")
            if step < 30:
                kv_tile(a, 128); aux_adv(a); a.vm = []
            if step == OPT["t1"]: wo_touch(a, 1)
            if first: astamp(a, 5)
            if k == 0: head_top()
            if first:
                a("s_waitcnt vmcnt(32)")
                run(reads(0))
            kstep(k, wait=False)
    stamp(a, 3); astamp(a, 6)
    a("s_branch %s" % lab("loop"))
    a.label(lab("join"))
    prime_w(1 if OPT["oponly"] else 3)
    a.label(lab("ph2"))
    a("s_mov_b32 s%d, 12" % sEnd)
    check_flags(False, lab("f2"), False)
    stamp(a, 6)
    prime_o()
    run(reads(0))
    a.raw(".p2align 3")
    a.label(lab("loop"))
    if OPT["ast"] >= 2:
        for r in range(6):
            a("s_cmp_lg_u32 s%d, %d\ns_cbranch_scc1 %s" % (sIo, OPT["ast"] + r, lab("as%d" % r)))
            a("s_memrealtime s[%d:%d]" % (66 + 2 * r, 67 + 2 * r))
            a.label(lab("as%d" % r))
    head_top()
    for k in range(4): kstep(k)
    a("s_cmp_lt_u32 s%d, s%d" % (sIo, sEnd))
    a("s_cbranch_scc1 %s" % lab("loop"))
    a("s_waitcnt lgkmcnt(0)")
    a("s_cmp_eq_u32 s%d, 8" % sEnd)
    if OPT["stamps"]:
        a("s_cbranch_scc0 %s" % lab("fin"))
        stamp(a, 4)
        a("s_branch %s" % lab("ph2"))
        a.label(lab("fin"))
    else:
        a("s_cbranch_scc1 %s" % lab("ph2"))
    a("s_waitcnt vmcnt(0)")
    if OPT["oponly"]:
        for r in range(3):
            a("s_cmp_lg_u32 s62, %d\ns_cbranch_scc1 %s" % (r, lab("oo%d" % r)))
            stamp(a, 1 + r)
            a.label(lab("oo%d" % r))
        a("s_add_u32 s62, s62, 1\ns_cmp_lt_u32 s62, 3\ns_cbranch_scc1 L_oponly")
    a("s_barrier")
    a("s_mul_i32 s%d, s%d, %d" % (sT, sOpIdx, 20 * KB))
    a("v_add_u32 v9, s%d, v1" % sT)
    for i in range(NR * 4): a("ds_write_b128 v9, %s offset:%d" % (vr(176 + i * 4, 4), i * 1024))
    a("s_lshl_b32 s%d, s%d, 10" % (sT, sOpIdx))
    a("v_add_u32 v9, s%d, v1\nv_add_u32 v8, %d, v9" % (sT, 40 * KB))
    a("s_waitcnt lgkmcnt(0)")
    a("s_barrier")
    for t in range(NR):
        for w in range(4):
            a("ds_read_b128 %s, v%d offset:%d" % (vr(16 + (t * 4 + w) * 4, 4), 9 if w < 2 else 8, (w & 1) * 20 * KB + t * 4096))
    for t in range(NR):
        b = 16 + t * 16
        for r in range(4):
            a("v_add_f32 v%d, v%d, v%d" % (b + r, b + r, b + 4 + r))
            a("v_add_f32 v%d, v%d, v%d" % (b + 8 + r, b + 8 + r, b + 12 + r))
            a("v_add_f32 v%d, v%d, v%d" % (b + r, b + r, b + 8 + r))
        a("v_cvt_pk_bf16_f32 v%d, v%d, v%d\nv_cvt_pk_bf16_f32 v%d, v%d, v%d" % (b, b, b + 1, b + 1, b + 2, b + 3))
        a("s_add_u32 s%d, s%d, %d" % (sT, sOutOff, t * 32768))
        a("buffer_store_dwordx2 %s, v10, %s, s%d offen" % (vr(b, 2), SR(S_OUT), sT))
    if OPT["stamps"]:
        a("s_waitcnt vmcnt(0)")
        stamp(a, 7)
        stamp_store(a)
    a("s_endpgm")
    a.vm = []; a.lgkm = []
    return lab("loop")

def kernel():
    a = Asm()
    a.raw(".globl %s\n.p2align 8\n.type %s,@function" % (NAME, NAME)); a.label(NAME)
    a("s_cmp_ge_u32 s2, 256\ns_cbranch_scc1 L_end")
    if OPT["stamps"]:
        for k in range(NST): stamp(a, k)
    a("s_and_b32 s%d, s2, 7\ns_lshr_b32 s%d, s2, 3" % (sT, sT2))
    a("s_lshr_b32 s%d, s%d, 4\ns_lshl_b32 s%d, s%d, 1\ns_add_u32 s%d, s%d, s%d" % (sG, sT2, sT, sT, sG, sG, sT))
    a("s_and_b32 s%d, s%d, 15" % (sJJ, sT2))
    a("s_lshr_b32 s%d, s%d, 3\ns_and_b32 s%d, s%d, 7" % (sBlk, sG, sB, sG))
    a("s_mul_i32 s%d, s%d, 40" % (sT, sBlk))
    a("s_add_u32 s4, s0, s%d\ns_addc_u32 s5, s1, 0" % sT)
    a("s_load_dwordx8 s[80:87], s[4:5], 0")
    a("s_load_dwordx2 s[88:89], s[4:5], 32")
    a("s_load_dwordx4 s[96:99], s[0:1], 80")
    a("s_load_dwordx2 s[92:93], s[0:1], 96")
    a("s_getpc_b64 s[60:61]")
    a.label("L_pf")
    a("v_lshlrev_b32 v12, 7, v0")
    a.items.append(a._mk("v_min_u32 v12, 0x1234, v12")); a.items[-1].text = "v_min_u32 v12, L_end-L_pf, v12"
    a("global_load_dword v253, v12, s[60:61]")
    a("v_lshrrev_b32 v12, 6, v0")
    a("v_readfirstlane_b32 s%d, v12" % sW)
    a("v_mov_b32 v12, %d\nv_mov_b32 v14, 0\nv_mov_b32 v15, 0" % CNT)
    a("ds_write_b64 v12, v[14:15]")
    a("s_and_b32 s%d, s%d, 1\ns_lshl_b32 s%d, s%d, 2\ns_add_u32 s%d, s%d, s%d" % (sRot, sG, sRot, sRot, sRot, sRot, sJJ))
    if OPT["norot"]: a("s_mov_b32 s%d, 0" % sRot)
    a("s_cmp_ge_u32 s%d, 3\ns_cselect_b32 s%d, 1, 0\ns_mul_i32 s%d, s%d, 3\ns_sub_u32 s%d, s%d, s%d" % (sW, sKg, sT, sKg, sRho, sW, sT))
    a("s_waitcnt lgkmcnt(0)")
    srd(a, S_WQ, 86, 87, "%d" % (512 * 8192))
    a("s_mul_i32 s%d, s%d, 147456\ns_add_u32 s80, s80, s%d\ns_addc_u32 s81, s81, 0" % (sT, sB, sT))
    srd(a, S_X, 80, 81, "147456")
    a("s_mul_i32 s%d, s%d, %d\ns_add_u32 s90, s92, s%d\ns_addc_u32 s91, s93, 0" % (sT, sG, 128 * 9216, sT))
    srd(a, S_O, 90, 91, "%d" % (128 * 9216))
    a("s_cmp_eq_u32 s%d, 6\ns_cselect_b32 s82, s82, s84\ns_cselect_b32 s83, s83, s85" % sW)
    a("s_lshl_b32 s%d, s%d, 4\ns_add_u32 s%d, s%d, s%d" % (sT, sB, sT, sT, sJJ))
    if OPT["samekv"]: a("s_mov_b32 s%d, 0" % sT)
    a("s_lshl_b32 s%d, s%d, 19" % (sT, sT))
    a("s_add_u32 s82, s82, s%d\ns_addc_u32 s83, s83, 0" % sT)
    srd(a, S_KV, 82, 83, "524288")
    srd(a, S_WO, 88, 89, "%d" % (4096 * 1024))
    srd(a, S_OUT, 96, 97, "%d" % (8 * 144 * 1024 * 2))
    srd(a, S_DBG, 98, 99, "256")
    a("s_lshl_b32 s%d, s%d, 8\ns_add_u32 s%d, s%d, 0x%x\ns_add_u32 s90, s92, s%d\ns_addc_u32 s91, s93, 0" % (sT, sG, sT, sT, FLAG_OFF, sT))
    srd(a, S_FL, 90, 91, "64")
    if OPT["oponly"]:
        a("s_add_u32 s%d, s%d, 2\ns_and_b32 s%d, s%d, 7\ns_cmp_ge_u32 s%d, 4\ns_cbranch_scc1 L_end" % (sT, sW, sT, sT, sT))
        if OPT["oponly"] == 2: a("s_and_b32 s%d, s%d, 1\ns_cmp_eq_u32 s%d, 1\ns_cbranch_scc1 L_end" % (sT2, sT, sT2))
        a("s_mov_b32 s%d, s%d\ns_mul_i32 s%d, s%d, %d\ns_mov_b32 s62, 0" % (sOpIdx, sT, sOpL, sT, 32 * KB))
        a.label("L_oponly")
        op_setup(a, 1, 8)
        a("s_cmp_eq_u32 s60, 0\ns_cbranch_scc1 L_op_a_join\ns_branch L_op_b_join")
    a("s_cmp_ge_u32 s%d, 6\ns_cbranch_scc1 L_auxrole" % sW)
    st = (list(a.lgkm), list(a.vm))
    head(a, True)
    attention(a)
    a.lgkm, a.vm = list(st[0]), list(st[1])
    a.raw(".p2align 3"); a.label("L_auxrole")
    head(a, False)
    aux(a)
    loops = ["L_loop"]
    loops.append(op_path(a, 5, "a"))
    loops.append(op_path(a, 4, "b"))
    a.label("L_end"); a("s_endpgm")
    a.pad_hazards()
    for l in loops: a.check_backedge(l, "s_cbranch_scc1 " + l)
    a.align8()
    return a.text()

out = []
out.append("; @launch grid=(256,1,1) block=(512,1,1) lds=163840")
out.append('.amdgcn_target "amdgcn-amd-amdhsa--gfx950"\n.text')
out.append(kernel())
out.append('.section .rodata,"a"\n.p2align 6')
out.append(""".amdhsa_kernel %s
  .amdhsa_next_free_vgpr 256
  .amdhsa_next_free_sgpr 102
  .amdhsa_accum_offset 256
  .amdhsa_group_segment_fixed_size 0
  .amdhsa_kernarg_size 104
  .amdhsa_user_sgpr_count 2
  .amdhsa_user_sgpr_kernarg_segment_ptr 1
  .amdhsa_system_sgpr_workgroup_id_x 1
.end_amdhsa_kernel
""" % NAME)
print("\n".join(out))
```

```python
import sys, math, struct
sys.path.insert(0, "dev")
from asmlib import *

OPT = dict(stamps=0, samekv=0, clk=0, hst=0, ast=0, dbgst=0, nopoll=0, polo=2, polw=0, polx=0, polwo=0, pols=2,
           polkv=1, norot=0, xrot=1, nopf=0, hnl=0, hnc=0, slp=4, lo=2, auxprio=3, sbs=1,
           s0=22, kp="3333333344", rotw=1, sst=-1, sstd=1, polf=2, lowp=1, pols2=2, cbr=0, xo=0, xw=0, th=0, t1=-1, map=2, ths=4)
for a_ in sys.argv[1:]:
    k, v = a_.split("="); assert k in OPT, k; OPT[k] = v if k == "kp" else int(v)

NAME = "concat_heads__mha_block_cached__gqa_block_cached__near_ridge_kernel"
def f32(x): return "0x%08x" % struct.unpack("<I", struct.pack("<f", x))[0]
CSCALE = math.log2(math.e) / math.sqrt(128.0)
THR = 8.0
KB = 1024
SLOT = 32 * KB
HB = [0, 51200, 102400]
Q2B = 96 * KB; Q1A = 132 * KB; Q1C = 32 * KB; EX2 = 80 * KB
MLB = 156 * KB; CNT = 160 * KB - 128; PFL = CNT + 32
STAMP_OFF = 0x10000000
FLAG_OFF = 0x2000000
TAGW = CNT + 8
OOB = 0x40000000
PHM = 0x40000000
S_OL, S_FLL = 8, 12
sGo, sJo, sTagA = 94, 95, 87
MF = "v_mfma_f32_16x16x32_bf16"
NST = 8
POL = ["", " nt", " sc1", " sc0 sc1", " sc1 nt"]

S_WQ, S_X, S_O, S_KV, S_WO, S_OUT, S_DBG, S_FL = 8, 12, 16, 20, 24, 28, 32, 4
sW, sG, sJJ, sBlk, sB, sRot, sT, sT2, sT3 = 36, 37, 38, 39, 40, 41, 42, 43, 44
sCnt, sThr, sFl, sSlot, sDelta, sItem, sPub, sBar, sExch, sOoff = 45, 46, 47, 48, 49, 50, 51, 52, 53, 54
sNeg, sPos, sPart, sKg, sRho = 55, 56, 57, 59, 62
sOc, sOn, sWn, sBlkP, sBlkD, sM1, sM2 = 46, 47, 48, 49, 51, 55, 56
HEAD_FIN = [None]
sOb, sWb, sOutOff, sOpIdx, sTag, sWant, sEnd2 = 80, 81, 82, 83, 84, 85, 86

def srd(a, d, lo, hi, nrec):
    a("s_mov_b32 s%d, s%d\ns_mov_b32 s%d, s%d" % (d, lo, d + 1, hi))
    a("s_mov_b32 s%d, %s\ns_mov_b32 s%d, 0x20000" % (d + 2, nrec, d + 3))
def SR(d): return "s[%d:%d]" % (d, d + 3)

def astamp(a, k):
    if OPT["ast"] == 1: a("s_memrealtime s[%d:%d]" % (64 + 2 * k, 65 + 2 * k))
def cstamp(a, e):
    if OPT["clk"]:
        a("s_memtime s[%d:%d]\ns_memrealtime s[%d:%d]" % (66 + 2 * e, 67 + 2 * e, 70 + 2 * e, 71 + 2 * e))
def stamp(a, k, clk=False, hs=False):
    if OPT["clk"] and 1 <= k <= 4: return
    if (OPT["ast"] or OPT["sst"] >= 0) and k and k != 7: return
    if OPT["hst"] and k and not hs: return
    if hs and not OPT["hst"]: return
    if OPT["stamps"]:
        a("%s s[%d:%d]" % ("s_memtime" if clk else "s_memrealtime", 64 + 2 * k, 65 + 2 * k))

def stamp_store(a):
    if not OPT["stamps"]: return
    a("s_waitcnt vmcnt(0) lgkmcnt(0)")
    a("s_cmp_eq_u32 s%d, 6\ns_cselect_b32 s%d, 256, 0" % (sW, sT))
    a("s_mul_i32 s%d, s%d, 43\ns_lshr_b32 s%d, s%d, 8\ns_mul_i32 s%d, s%d, 6" % (sT2, sW, sT2, sT2, sT2, sT2))
    a("s_cmp_lg_u32 s%d, s%d\ns_cbranch_scc1 L_end" % (sT2, sW))
    if OPT["dbgst"]:
        a("s_cmp_lg_u32 s%d, 0\ns_cbranch_scc1 L_end" % sW)
        a("s_mov_b64 exec, 1\nv_mov_b32 v12, 0")
        words = [1, 2, 3, 5, 6, 7, 9, 10]
        for k in range(NST):
            a("v_mov_b32 v14, s%d" % (64 + 2 * k))
            a("buffer_atomic_umax v14, v12, %s, 0 offen offset:%d" % (SR(S_DBG), 4 * words[k]))
            a("s_nop 1")
        a("s_not_b32 s64, s64\nv_mov_b32 v14, s64")
        a("buffer_atomic_umax v14, v12, %s, 0 offen offset:44" % SR(S_DBG))
        a("s_not_b32 s78, s78\nv_mov_b32 v15, s78")
        a("buffer_atomic_umax v15, v12, %s, 0 offen offset:52" % SR(S_DBG))
        return
    a("s_add_u32 s96, s100, 0x%x\ns_addc_u32 s97, s101, 0" % STAMP_OFF)
    a("s_mov_b32 s98, 0x100000\ns_mov_b32 s99, 0x20000")
    a("s_add_u32 s3, s2, s%d\ns_mul_i32 s3, s3, %d" % (sT, NST * 8))
    a("v_mov_b32 v12, s3")
    a("s_mov_b64 exec, 1")
    for k in range(NST):
        a("v_mov_b32 v14, s%d\nv_mov_b32 v15, s%d" % (64 + 2 * k, 65 + 2 * k))
        a("buffer_store_dwordx2 v[14:15], v12, s[96:99], 0 offen offset:%d" % (8 * k))
        a("s_nop 1")

def lanes(a):
    a("v_and_b32 v12, 63, v0")
    a("v_lshrrev_b32 v13, 4, v12")
    a("v_and_b32 v14, 15, v12")
    a("v_bfe_u32 v15, v12, 2, 2")

vK, vVa, vVb = 1, 2, 3
vX1, vX2, vX3, vX4 = 4, 5, 6, 7
vONE, vT, vQ, vO, vL, vM, vS, vF = 8, 12, 16, 64, 160, 172, 184, 208
def Q(t, s): return vr(vQ + 16 * t + 4 * s, 4)
def O(t, dt): return vr(vO + 32 * t + 4 * dt, 4)
def L(t): return vr(vL + 4 * t, 4)
def M(t): return vr(vM + 4 * t, 4)
def S(t, kt): return vr(vS + 8 * t + 4 * kt, 4)
def F(i): return vF + 4 * i
vD = 240

def kv_tile(a, dreg, tile):
    slot = (tile + 2) % 3
    for grp in range(4):
        a("s_add_u32 m0, s%d, %d" % (sKg, slot * SLOT + grp * 4096))
        a("s_mov_b32 s%d, %d" % (sT, tile * 16384 + grp * 4096))
        for q in range(4):
            a("buffer_load_dwordx4 v%d, %s, s%d offen offset:%d%s lds" % (dreg + q + (4 if grp >= 2 else 0), SR(S_KV), sT, q * 1024, POL[OPT["polkv"]]), tag="t%d" % tile)

def srds_first(a):
    a("s_waitcnt lgkmcnt(0)")
    srd(a, S_WQ, 86, 87, "%d" % (512 * 8192))
    a("s_add_u32 s80, s80, s62\ns_addc_u32 s81, s81, 0")
    srd(a, S_X, 80, 81, "147456")

def srds_rest(a):
    a("s_mul_i32 s%d, s%d, %d\ns_add_u32 s90, s92, s%d\ns_addc_u32 s91, s93, 0" % (sT, sG, 128 * 9216, sT))
    srd(a, S_O, 90, 91, "%d" % (128 * 9216))
    a("s_cmp_eq_u32 s%d, 6\ns_cselect_b32 s82, s82, s84\ns_cselect_b32 s83, s83, s85" % sW)
    a("s_lshl_b32 s%d, s%d, 4\ns_add_u32 s%d, s%d, s%d" % (sT, sB, sT, sT, sJJ))
    if OPT["samekv"]: a("s_mov_b32 s%d, 0" % sT)
    a("s_lshl_b32 s%d, s%d, 19" % (sT, sT))
    a("s_add_u32 s82, s82, s%d\ns_addc_u32 s83, s83, 0" % sT)
    srd(a, S_KV, 82, 83, "524288")
    srd(a, S_WO, 88, 89, "%d" % (4096 * 1024))
    srd(a, S_OUT, 96, 97, "%d" % (8 * 144 * 1024 * 2))
    srd(a, S_DBG, 98, 99, "256")
    a("s_lshl_b32 s%d, s%d, 8\ns_add_u32 s%d, s%d, 0x%x\ns_add_u32 s90, s92, s%d\ns_addc_u32 s91, s93, 0" % (sT, sG, sT, sT, FLAG_OFF, sT))
    srd(a, S_FL, 90, 91, "64")
    a("s_mov_b32 s100, s92\ns_mov_b32 s101, s93")
    a("s_cmp_ge_u32 s%d, 3\ns_cselect_b32 s%d, 1, 0\ns_mul_i32 s%d, s%d, 3\ns_sub_u32 s%d, s%d, s%d" % (sW, sKg, sT, sKg, sRho, sW, sT))
    a("v_and_b32 v236, 31, v0\nv_lshlrev_b32 v236, 2, v236\nv_add_u32 v236, %d, v236\nv_mov_b32 v234, 0" % CNT)
    a("ds_write_b32 v236, v234")

def head(a, att):
    vHW, vHX = 224, 248
    vA1, vA2, vBx = 231, 232, 233
    cA1, cA2, cBx = 234, 235, 236
    ACC = lambda t, d: vr(64 + 8 * t + 4 * d, 4)
    BF = lambda u, t: vr(136 + 36 * u + 4 * t, 4)
    AF = lambda u, d: 208 + 8 * u + 4 * d
    NX = 5 if att else 4
    R = "A" if att else "X"
    lanes(a)
    a("s_and_b32 s60, s%d, 3" % sW)
    a("v_and_b32 v%d, 3, v12\nv_lshlrev_b32 v%d, 4, v%d" % (vHX, vHX, vHX))
    a("v_lshl_add_u32 v%d, v13, 6, v%d" % (vHW, vHX))
    if not att: a("v_lshl_add_u32 v%d, v15, 8, v%d" % (vD, vHW))
    a("v_lshl_add_u32 v%d, v15, 13, v%d" % (vHW, vHW))
    a("s_lshl_b32 s%d, s60, 17\ns_lshl_b32 s%d, s%d, 9\ns_add_u32 s%d, s%d, s%d" % (sT, sT2, sJJ, sT, sT, sT2))
    a("v_add_u32 v%d, s%d, v%d" % (vHW, sT, vHW))
    a("v_add_u32 v%d, %d, v%d" % (vHW + 1, 31744, vHW))
    a("v_add_u32 v%d, %d, v%d\nv_xor_b32 v%d, 32, v%d" % (vHW + 2, 2 * 31744, vHW, vHW + 2, vHW + 2))
    a("v_add_u32 v%d, %d, v%d" % (vHW + 3, 31744, vHW + 2))
    a("s_lshl_b32 s63, s60, 12")
    a("s_mul_i32 s61, s60, %d" % NX)
    if not att: a("s_add_u32 s61, s61, 2")
    a("v_and_b32 v%d, 1, v13\nv_lshl_add_u32 v%d, v%d, 6, v%d" % (vA1, vHX, vA1, vHX))
    a("v_lshl_add_u32 v%d, v15, 10, v%d" % (vHX, vHX))
    a("v_lshrrev_b32 v%d, 5, v12\nv_lshl_add_u32 v%d, v%d, 12, v%d" % (vA1, vHX, vA1, vHX))
    a("s_lshl_b32 s%d, s61, 13\ns_and_b32 s%d, s61, 1\ns_lshl_b32 s%d, s%d, 5" % (sT, sT2, sT2, sT2))
    a("v_add_u32 v%d, s%d, v%d\nv_xor_b32 v%d, s%d, v%d" % (vHX, sT, vHX, vHX, sT2, vHX))
    a("v_add_u32 v%d, 7168, v%d\nv_xor_b32 v%d, 32, v%d" % (vHX + 1, vHX, vHX + 1, vHX + 1))
    a("v_add_u32 v%d, 14336, v%d\nv_add_u32 v%d, 14336, v%d" % (vHX + 2, vHX, vHX + 3, vHX + 1))
    if att: a("v_add_u32 v%d, 32768, v%d" % (vHX + 4, vHX))
    a("s_lshl_b32 s61, s61, 10")
    def stage_load(j):
        buf = HB[(-j) % 3]
        if att: a("s_cmp_lt_u32 s%d, 4\ns_cbranch_scc1 L_h%s_skip%d" % (sW, R, j))
        a("s_add_u32 s%d, s%d, %d\ns_and_b32 s%d, s%d, 7" % (sT2, sRot, j, sT2, sT2))
        a("s_lshl_b32 s%d, s%d, 7" % (sT, sT2))
        a("s_add_u32 m0, s61, %d" % (buf + 32768))
        for e in range(NX):
            if e == 4: a("s_add_u32 m0, s61, %d" % (buf + 32768 + 4096))
            a("buffer_load_dwordx4 v%d, %s, s%d offen offset:%d%s lds" % (vHX + e, SR(S_X), sT, (e & 3) * 1024, POL[OPT["polx"]]), tag="h%d" % j)
        a("s_lshl_b32 s%d, s%d, 19" % (sT, sT2))
        for hp in range(2):
            a("s_add_u32 m0, s63, %d" % (buf + hp * 16384))
            if hp: a("s_add_u32 s%d, s%d, 256" % (sT, sT))
            for qq in range(4):
                a("buffer_load_dwordx4 v%d, %s, s%d offen offset:%d%s lds" % (vHW + qq, SR(S_WQ), sT, qq * 1024, POL[OPT["polw"]]), tag="h%d" % j)
        if att: a.label("L_h%s_skip%d" % (R, j))
    srds_first(a)
    stage_load(0)
    srds_rest(a)
    a("v_and_b32 v%d, 3, v12\nv_lshlrev_b32 v%d, 3, v%d" % (vA1, vA1, vA1))
    a("v_lshl_add_u32 v%d, v15, 6, v%d" % (vA1, vA1))
    a("v_and_b32 v%d, 1, v13\nv_lshl_add_u32 v%d, v%d, 5, v%d" % (vA2, vA1, vA2, vA1))
    if att:
        a("v_lshl_add_u32 v%d, v13, 10, v%d" % (vVa, vA1))
    a("v_lshl_add_u32 v%d, v13, 11, v%d" % (vA1, vA1))
    a("s_lshr_b32 s%d, s%d, 2\ns_lshl_b32 s%d, s%d, 14\ns_and_b32 s%d, s%d, 3\ns_lshl_b32 s%d, s%d, 8\ns_add_u32 s%d, s%d, s%d" % (sT, sW, sT, sT, sT2, sW, sT2, sT2, sT, sT, sT2))
    a("v_add_u32 v%d, s%d, v%d" % (vA1, sT, vA1))
    a("v_xor_b32 v%d, 32, v%d" % (vA2, vA1))
    a("v_lshrrev_b32 v%d, 3, v14\nv_lshlrev_b32 v%d, 1, v%d\nv_xor_b32 v%d, v%d, v13\nv_lshlrev_b32 v%d, 4, v%d" % (vBx, vBx, vBx, vBx, vBx, vBx, vBx))
    a("v_and_b32 v%d, 3, v14\nv_lshl_add_u32 v%d, v%d, 6, v%d" % (cBx, vBx, cBx, vBx))
    a("v_lshl_add_u32 v%d, v15, 9, v%d" % (vBx, vBx))
    a("v_add_u32 v%d, 32768, v%d" % (vBx, vBx))
    if att:
        a("s_lshl_b32 s%d, s%d, 13\ns_add_u32 s%d, s%d, %d" % (sT, sKg, sT, sT, 2 * SLOT))
        a("v_add_u32 v%d, s%d, v%d\nv_add_u32 v%d, 16384, v%d\nv_xor_b32 v%d, 32, v%d" % (vVa, sT, vVa, vVa, vVa, vVb, vVa))
        a("v_lshlrev_b32 v%d, 10, v15" % vK)
        a("v_lshl_add_u32 v%d, v%d, 6, v%d" % (vK, cBx, vK))
        a("v_lshrrev_b32 v%d, 1, v13\nv_and_b32 v%d, 1, v13\nv_lshl_or_b32 v%d, v%d, 1, v%d" % (cA1, cA2, cA1, cA2, cA1))
        a("v_lshrrev_b32 v%d, 3, v14\nv_xor_b32 v%d, v%d, v%d" % (cA2, cA1, cA1, cA2))
        a("v_lshl_add_u32 v%d, v%d, 4, v%d\nv_add_u32 v%d, s%d, v%d" % (vK, cA1, vK, vK, sT, vK))
    else:
        a("s_cmp_eq_u32 s%d, 6" % sW)
        a("s_cselect_b32 s%d, 0, 32\ns_cselect_b32 s%d, 16, 0\ns_cselect_b32 s%d, 16, 32\ns_cselect_b32 s60, 0, 128\ns_cselect_b32 s%d, 0, 16384" % (sT, sT2, sT3, sKg))
        a("v_xor_b32 v%d, s%d, v%d\nv_xor_b32 v%d, s%d, v%d\nv_xor_b32 v%d, s%d, v%d" % (vD + 1, sT, vD, vD + 2, sT2, vD, vD + 3, sT3, vD))
        for q in range(4): a("v_xor_b32 v%d, s60, v%d" % (vD + 4 + q, vD + q))
    def reads(u):
        o = []
        if OPT["hnc"]: return o
        for d in range(2):
            for rd in range(2):
                o.append("ds_read_b64_tr_b16 %s, v%d offset:%d" % (vr(AF(u, d) + 2 * rd, 2), cA2 if d else cA1, u * 8192 + rd * 1024))
        for t in range(9):
            o.append("ds_read_b128 %s, v%d offset:%d" % (BF(u, t), cBx, t * 2048 + u * 256))
        return o
    def mfmas(u, first):
        if OPT["hnc"]: return []
        return ["%s %s, %s, %s, %s" % (MF, ACC(t, d), vr(AF(u, d), 4), BF(u, t), "0" if first else ACC(t, d)) for t in range(9) for d in range(2)]
    if not att: a("v_lshlrev_b32 v254, 7, v12")
    stage_load(1)
    stamp(a, 1)
    def mix(ms, rs):
        for k, x in enumerate(ms):
            a(x)
            if k < len(rs): a(rs[k])
        for x in rs[len(ms):]: a(x)
    for j in range(8):
        buf = HB[(-j) % 3]
        a.wait_vm_tag("h%d" % j)
        a("v_add_u32 v%d, %d, v%d\nv_add_u32 v%d, %d, v%d\nv_add_u32 v%d, %d, v%d" % (cA1, buf, vA1, cA2, buf, vA2, cBx, buf, vBx))
        a("s_waitcnt lgkmcnt(0)")
        a("s_barrier")
        if j < 7: stamp(a, j + 1, hs=True)
        if j == 0:
            for x in reads(0): a(x)
        if j + 2 < 8 and not OPT["hnl"]: stage_load(j + 2)
        if not att and OPT["th"] == 2 and 2 <= j < 6: wo_touch(a, 0, 1, 254, j - 2)
        if not att and OPT["th"] == 3 and 4 <= j < 6: wo_touch(a, 0, 2, 254, 2 * (j - 4))
        if j > 0: mix(mfmas(1, False), reads(0))
        if not att and j == 6: kv_tile(a, vD, 0)
        a("s_waitcnt lgkmcnt(0)")
        mix(mfmas(0, j == 0), reads(1))
    a("s_waitcnt lgkmcnt(0)")
    a("s_barrier")
    if not att:
        kv_tile(a, vD, 1)
        if OPT["th"] == 1:
            wo_touch(a, 0, 4, 254)
        a("s_barrier")
    def fin():
        for x in mfmas(1, False): a(x)
        a("v_mov_b32 v238, %s\nv_mov_b32 v239, %s" % (f32(CSCALE), f32(CSCALE)))
        a("s_cmp_lt_u32 s%d, 4" % sW)
        a("s_cselect_b32 s%d, %d, %d" % (sT, Q1A, Q2B) if False else "s_cselect_b32 s%d, %d, 0" % (sT, Q1A - Q2B))
        a("s_cselect_b32 s%d, 0, %d" % (sT2, Q2B + 24 * KB - Q1C))
        a("s_add_u32 s%d, s%d, %d\ns_add_u32 s%d, s%d, %d" % (sT, sT, Q2B, sT2, sT2, Q1C))
        a("s_and_b32 s60, s%d, 3\ns_lshl_b32 s60, s60, 10" % sW)
        a("v_lshlrev_b32 v%d, 4, v12\nv_add_u32 v%d, s60, v%d" % (cBx, cBx, cBx))
        a("v_add_u32 v%d, s%d, v%d\nv_add_u32 v%d, s%d, v%d" % (cA1, sT, cBx, cA2, sT2, cBx))
        for t in range(9):
            b = 64 + 8 * t
            for r in range(0, 8, 2): a("v_pk_mul_f32 %s, %s, v[238:239]" % (vr(b + r, 2), vr(b + r, 2)))
            for r in range(4): a("v_cvt_pk_bf16_f32 v%d, v%d, v%d" % (b + r, b + 2 * r, b + 2 * r + 1))
        for t in range(9):
            b = 64 + 8 * t
            a("v_permlane16_swap_b32 v%d, v%d\nv_permlane16_swap_b32 v%d, v%d" % (b, b + 2, b + 1, b + 3))
        for t in range(9):
            b = 64 + 8 * t
            a("ds_write_b128 v%d, %s offset:%d" % (cA1 if t < 6 else cA2, vr(b, 4), (t if t < 6 else t - 6) * 4096))
        a("s_waitcnt lgkmcnt(0)")
    if att:
        fin()
        a("s_barrier")
    else:
        HEAD_FIN[0] = fin
    stamp(a, 2)

def pair_signal(a):
    a("s_add_u32 s%d, s%d, 1" % (sBar, sBar))
    a("v_mov_b32 v%d, s%d" % (vT, sBar))
    a("ds_write_b32 v%d, v%d" % (vX3, vT))

def pair_wait(a, name, reads):
    a.label(name)
    a("ds_read_b32 v%d, v%d" % (vT, vX4))
    for x in reads: a(x)
    a("s_waitcnt lgkmcnt(%d)" % len(reads))
    a("v_readfirstlane_b32 s%d, v%d" % (sT, vT))
    a("s_cmp_ge_u32 s%d, s%d" % (sT, sBar))
    a("s_cbranch_scc1 %s_ok" % name)
    a("s_waitcnt lgkmcnt(0)")
    if OPT["sbs"]: a("s_sleep %d" % OPT["sbs"])
    a("s_branch %s" % name)
    a.label(name + "_ok")
    a("s_waitcnt lgkmcnt(0)")

def lds_count(a, off):
    a("s_mov_b64 exec, 1")
    a("v_mov_b32 v%d, %d\nv_mov_b32 v%d, 1" % (vT + 2, CNT, vT + 1))
    a("ds_add_rtn_u32 v%d, v%d, v%d offset:%d" % (vT, vT + 2, vT + 1, off))
    a("ds_read_b32 v%d, v%d offset:8" % (vT + 1, vT + 2))
    a("s_waitcnt lgkmcnt(0)")
    a("v_readfirstlane_b32 s%d, v%d" % (sT, vT))

def publish(a, name, nwait):
    a("s_waitcnt vmcnt(%d)" % nwait)
    lds_count(a, 4)
    a("s_cmp_lg_u32 s%d, 5" % sT)
    a("s_cbranch_scc1 %s" % name)
    a("v_or_b32 v%d, 0x%x, v%d" % (vT + 1, PHM, vT + 1))
    a("s_lshl_b32 s%d, s%d, 2" % (sT2, sJJ))
    a("v_mov_b32 v%d, s%d" % (vT, sT2))
    a("buffer_store_dword v%d, v%d, %s, 0 offen%s" % (vT + 1, vT, SR(S_FL), POL[OPT["polf"]]))
    a.label(name)
    a("s_mov_b64 exec, -1")

def attention(a):
    NT = 3; TL = 2
    a("v_lshlrev_b32 v%d, 4, v12" % vX1)
    a("s_mul_i32 s%d, s%d, %d\ns_add_u32 s%d, s%d, %d" % (sT, sRho, 12 * KB, sT, sT, Q1A))
    a("s_cmp_eq_u32 s%d, 2\ns_cselect_b32 s%d, %d, s%d" % (sRho, sT, Q1C, sT))
    a("v_add_u32 v%d, s%d, v%d" % (vX2, sT, vX1))
    for t in range(3):
        for s in range(4): a("ds_read_b128 %s, v%d offset:%d" % (Q(t, s), vX2, t * 4096 + s * 1024))
    a("s_add_u32 s%d, s%d, 3\ns_cmp_ge_u32 s%d, 6\ns_cselect_b32 s%d, 6, 0\ns_sub_u32 s%d, s%d, s%d" % (sPart, sW, sPart, sT2, sPart, sPart, sT2))
    a("s_lshl_b32 s%d, s%d, 2\ns_add_u32 s%d, s%d, %d\ns_lshl_b32 s%d, s%d, 2\ns_add_u32 s%d, s%d, %d" % (sT, sW, sT, sT, PFL, sT2, sPart, sT2, sT2, PFL))
    a("v_mov_b32 v%d, s%d\nv_mov_b32 v%d, s%d" % (vX3, sT, vX4, sT2))
    for r in range(vF, vF + 32, 2): a("v_mov_b64 %s, 0" % vr(r, 2))
    for r in range(4): a("v_mov_b32 v%d, 0x3f803f80" % (vONE + r))
    a("s_mov_b32 s%d, 0\ns_mov_b32 s%d, -1\ns_mov_b32 s%d, 0\ns_mov_b32 s%d, %d\ns_mov_b32 s%d, 2" % (sItem, sPub, sBar, sExch, Q2B, sSlot))
    a("s_mov_b32 s%d, 0x%x\ns_mov_b32 s%d, %d" % (sNeg, (-2 * SLOT) & 0xffffffff, sPos, SLOT))
    a("s_lshl_b32 s%d, s%d, 3\ns_lshl_b32 s%d, s%d, 1\ns_add_u32 s%d, s%d, s%d\ns_mul_i32 s%d, s%d, 9" % (sT, sJJ, sT2, sKg, sT, sT, sT2, sT, sT))
    a("s_mul_i32 s%d, s%d, 3\ns_add_u32 s%d, s%d, s%d\ns_lshl_b32 s%d, s%d, 10\ns_add_u32 s%d, s%d, %d" % (sT2, sRho, sT, sT, sT2, sOoff, sT, sOoff, sOoff, 36 * KB))
    cstamp(a, 0)
    a.label("L_item")
    for r in list(range(vO, vO + 96, 2)) + list(range(vL, vL + 24, 2)) + list(range(vS + 16, vS + 20, 2)):
        a("v_mov_b64 %s, 0" % vr(r, 2))
    a("s_mov_b32 s%d, 0xff800000\ns_mov_b32 s%d, 0xff800000\ns_mov_b32 s%d, 0" % (sThr, sFl, sCnt))
    a("s_waitcnt lgkmcnt(0)")
    Ga, Gb, Gc = 0, 4, 8
    def kread(kt, s):
        slot = (Gc + s) if kt == 0 else (Gb + s)
        return "ds_read_b128 %s, v%d offset:%d" % (vr(F(slot), 4), vK, kt * 4096 + s * 256)
    def vslot(dt): return (Ga + dt) if dt < 4 else (Gb + dt - 4)
    def vread(dt, rd):
        return "ds_read_b64_tr_b16 %s, v%d offset:%d" % (vr(F(vslot(dt)) + 2 * rd, 2), vVb if dt & 1 else vVa, rd * 4096 + (dt >> 1) * 256)
    def pv(t, dt): return "%s %s, %s, %s, %s" % (MF, O(t, dt), vr(F(vslot(dt)), 4), S(t, 0), O(t, dt))
    def lsum(t): return "%s %s, %s, %s, %s" % (MF, L(t), vr(vONE, 4), S(t, 0), L(t))
    def qk(t, kt, s):
        slot = (Gc + s) if kt == 0 else (Gb + s)
        return "%s %s, %s, %s, %s" % (MF, S(t, kt), vr(F(slot), 4), Q(t, s), M(t) if s == 0 else S(t, kt))
    def sm(t):
        b = vS + 8 * t
        g = [["v_max3_f32 v%d, v%d, v%d, v%d" % (vT, b, b + 1, b + 2), "v_max3_f32 v%d, v%d, v%d, v%d" % (vT + 1, b + 3, b + 4, b + 5)],
             ["v_max3_f32 v%d, v%d, v%d, v%d" % (vT, vT, b + 6, b + 7), "v_max_f32 v%d, v%d, v%d" % (vT, vT, vT + 1)],
             ["v_cmp_lt_f32 vcc, s%d, v%d" % (sThr, vT)],
             ["s_cbranch_vccnz L_rare%d\nL_back%d:" % (t, t), "v_exp_f32 v%d, v%d" % (b, b)]]
        for r in range(1, 8): g.append(["v_exp_f32 v%d, v%d" % (b + r, b + r)])
        cv = ["v_cvt_pk_bf16_f32 v%d, v%d, v%d" % (b + r, b + 2 * r, b + 2 * r + 1) for r in range(4)]
        g.append(cv[:2]); g.append(cv[2:])
        return g
    a.raw(".p2align 6")
    a.label("L_loop")
    a("s_barrier")
    mf = []; fill = {}
    def put(idx, ops): fill.setdefault(idx, []).extend(ops)
    mf += [pv(TL, dt) for dt in (4, 5, 6, 7)] + [pv(TL, dt) for dt in (0, 1, 2, 3)] + [lsum(TL)]
    qk_end = {}
    for t in range(NT):
        for kt in ((0, 1) if t < TL else (1, 0)):
            mf += [qk(t, kt, s) for s in range(4)]
            if t == TL and kt == 1: v47_at = len(mf) - 1
        qk_end[t] = len(mf) - 1
    pv_start = {}
    for t in range(TL):
        pv_start[t] = len(mf)
        mf += [pv(t, dt) for dt in range(4)] + [lsum(t)] + [pv(t, dt) for dt in range(4, 8)]
    n = len(mf)
    pre = [kread(0, s) for s in range(4)]
    for s in range(4): put(s, [kread(1, s)])
    for dt in range(4): put(4 + dt, [vread(dt, 0), vread(dt, 1)])
    put(8, ["WAIT " + vr(F(Gc), 16)])
    put(9, ["s_add_u32 s%d, s%d, 1" % (sSlot, sSlot), "s_cmp_eq_u32 s%d, 3" % sSlot])
    put(10, ["s_cselect_b32 s%d, s%d, s%d" % (sDelta, sNeg, sPos), "s_cselect_b32 s%d, 0, s%d" % (sSlot, sSlot)])
    put(12, ["WAIT " + vr(F(Gb), 16), "v_add_u32 v%d, s%d, v%d" % (vK, sDelta, vK)])
    for dt in range(4, 8): put(v47_at - 3 + (dt - 4), [vread(dt, 0), vread(dt, 1)])
    groups = [(t, g) for t in range(NT) for g in sm(t)]
    lo = qk_end[0] + OPT["lo"]
    span = n - lo
    for k, (t, g) in enumerate(groups):
        idx = lo + (k * span) // len(groups)
        assert idx >= qk_end[t] + 2 and (t == TL or idx < pv_start[t]), (t, idx)
        put(idx, g)
    put(pv_start[0] - 1, ["WAIT " + vr(F(Ga), 16)])
    put(pv_start[0] + 4, ["WAIT " + vr(F(Gb), 16)])
    put(lo - 2, ["s_add_u32 s%d, s%d, 1" % (sCnt, sCnt)])
    for x in pre: a(x)
    for k, m in enumerate(mf):
        a(m)
        for x in fill.get(k, []): a(x)
    a("v_add_u32 v%d, s%d, v%d\nv_add_u32 v%d, s%d, v%d" % (vVa, sDelta, vVa, vVb, sDelta, vVb))
    a("s_mov_b32 s%d, %s\ns_mov_b32 s%d, 0" % (sThr, f32(THR), sFl))
    a("s_cmp_lt_u32 s%d, 16" % sCnt)
    a("s_cbranch_scc1 L_loop")
    a("s_cmp_eq_u32 s%d, 0" % sItem)
    a("s_cbranch_scc0 L_st4")
    stamp(a, 3); cstamp(a, 1)
    a("s_branch L_st4b")
    a.label("L_st4"); stamp(a, 4)
    a.label("L_st4b")
    a("s_mul_i32 s%d, s%d, %d\ns_add_u32 s%d, s%d, %d" % (sT, sRho, 12 * KB, sT, sT, Q2B))
    a("v_add_u32 v%d, s%d, v%d" % (vX2, sT, vX1))
    for t in range(3):
        for s in range(4): a("ds_read_b128 %s, v%d offset:%d" % (Q(t, s), vX2, t * 4096 + s * 1024))
    a("s_lshl_b32 s%d, s%d, 12\ns_add_u32 s%d, s%d, %d" % (sT, sW, sT, sT, Q1A))
    a("v_add_u32 v%d, s%d, v%d" % (vX2, sT, vX1))
    def send(t, areg, off):
        o = []
        for h in range(2):
            b = vO + 32 * t + 16 + 8 * h
            o += ["v_cvt_pk_bf16_f32 v%d, v%d, v%d" % (b + r, b + 2 * r, b + 2 * r + 1) for r in range(4)]
            o.append("ds_write_b128 v%d, %s offset:%d" % (areg, vr(b, 4), off + h * 1024))
        return o
    fin = [lsum(TL)] + [pv(TL, dt) for dt in (4, 5, 6, 7, 0, 1, 2, 3)]
    ex = send(0, vX2, 0) + send(1, vX2, 2048)
    for k, m in enumerate(fin):
        a(m)
        for x in ex[k * len(ex) // 9:(k + 1) * len(ex) // 9]: a(x)
    a("v_and_b32 v%d, 15, v0\nv_lshlrev_b32 v%d, 3, v%d" % (vT + 2, vT + 2, vT + 2))
    a("s_mul_i32 s%d, s%d, 384\ns_add_u32 s%d, s%d, %d" % (sT, sW, sT, sT, MLB))
    a("v_add_u32 v%d, s%d, v%d" % (vT + 3, sT, vT + 2))
    for t in range(3):
        a("v_mov_b32 v%d, v%d" % (vM + 4 * t + 1, vL + 4 * t))
        a("ds_write_b64 v%d, %s offset:%d" % (vT + 3, vr(vM + 4 * t, 2), t * 128))
    a("s_lshl_b32 s%d, s%d, 11\ns_add_u32 s%d, s%d, s%d" % (sT, sW, sT, sT, sExch))
    a("v_add_u32 v%d, s%d, v%d" % (vX2, sT, vX1))
    a("s_cmp_eq_u32 s%d, 0" % sItem)
    a("s_cbranch_scc0 L_nomx")
    a("s_waitcnt lgkmcnt(0)")
    a("s_barrier")
    a.label("L_nomx")
    for x in send(2, vX2, 0): a(x)
    pair_signal(a)
    a("s_mul_i32 s%d, s%d, 384\ns_add_u32 s%d, s%d, %d" % (sT2, sPart, sT2, sT2, MLB))
    a("v_add_u32 v%d, s%d, v%d" % (vT + 3, sT2, vT + 2))
    a("s_lshl_b32 s%d, s%d, 11\ns_add_u32 s%d, s%d, s%d" % (sT, sPart, sT, sT, sExch))
    a("v_add_u32 v%d, s%d, v%d" % (vX2, sT, vX1))
    a("s_lshl_b32 s%d, s%d, 12\ns_add_u32 s%d, s%d, %d" % (sT, sPart, sT, sT, Q1A))
    a("v_add_u32 v%d, s%d, v%d" % (vT + 2, sT, vX1))
    a("s_waitcnt lgkmcnt(0)")
    rd = ["ds_read_b64 %s, v%d offset:%d" % (vr(vM + 4 * t + 2, 2), vT + 3, t * 128) for t in range(3)]
    for t in range(3):
        for h in range(2):
            rd.append("ds_read_b128 %s, v%d offset:%d" % (vr(vS + 8 * t + 4 * h, 4), vT + 2 if t < 2 else vX2, (t * 2048 if t < 2 else 0) + h * 1024))
    pair_wait(a, "L_pw", rd)
    for t in range(3):
        m = vM + 4 * t; l = vL + 4 * t
        a("v_min_f32 v%d, v%d, v%d" % (l, m, m + 2))
        a("v_sub_f32 v%d, v%d, v%d\nv_sub_f32 v%d, v%d, v%d" % (l + 1, l, m, l + 2, l, m + 2))
        a("v_exp_f32 v%d, v%d\nv_exp_f32 v%d, v%d" % (l + 1, l + 1, l + 2, l + 2))
        a("v_mul_f32 v%d, v%d, v%d" % (l + 3, l + 1, m + 1))
        a("v_fma_f32 v%d, v%d, v%d, v%d" % (l + 3, l + 2, m + 3, l + 3))
        a("v_rcp_f32 v%d, v%d" % (l, l + 3))
        a("v_mul_f32 v%d, v%d, v%d\nv_mul_f32 v%d, v%d, v%d" % (l + 3, l + 2, l, l + 2, l + 2, l))
        a("v_mul_f32 v%d, v%d, v%d\nv_mov_b32 v%d, v%d" % (l + 1, l + 1, l, l, l + 1))
    for t in range(3):
        l = vL + 4 * t
        for h in range(2):
            b = vO + 32 * t + 8 * h; u = b + 16; pk = vS + 8 * t + 4 * h
            for r in range(4):
                a("v_lshlrev_b32 v%d, 16, v%d\nv_and_b32 v%d, 0xffff0000, v%d" % (u + 2 * r, pk + r, u + 2 * r + 1, pk + r))
            for r in range(0, 8, 2): a("v_pk_mul_f32 %s, %s, %s" % (vr(b + r, 2), vr(b + r, 2), vr(l, 2)))
            for r in range(0, 8, 2): a("v_pk_fma_f32 %s, %s, %s, %s" % (vr(b + r, 2), vr(u + r, 2), vr(l + 2, 2), vr(b + r, 2)))
            for r in range(4): a("v_cvt_pk_bf16_f32 v%d, v%d, v%d" % (pk + r, b + 2 * r, b + 2 * r + 1))
    a("s_cmp_eq_u32 s%d, 0" % sItem)
    a("s_cbranch_scc0 L_att_done")
    for t in range(3):
        for h in range(2):
            a("ds_write_b128 v%d, %s offset:%d" % (vT + 2 if t < 2 else vX2, vr(vS + 8 * t + 4 * h, 4), (t * 2048 if t < 2 else 0) + h * 1024))
    a("s_mov_b32 s%d, 1\ns_mov_b32 s%d, %d" % (sItem, sExch, EX2))
    a("s_waitcnt lgkmcnt(0)")
    a("s_branch L_item")
    a.vm = []; a.lgkm = []
    for t in range(NT):
        b = vS + 8 * t
        a.label("L_rare%d" % t)
        a("s_nop 15")
        a("v_mov_b32 v%d, v%d" % (vT + 1, vT))
        a("v_permlane16_swap_b32 v%d, v%d" % (vT, vT + 1))
        a("v_max_f32 v%d, v%d, v%d" % (vT, vT, vT + 1))
        a("v_mov_b32 v%d, v%d" % (vT + 1, vT))
        a("v_permlane32_swap_b32 v%d, v%d" % (vT, vT + 1))
        a("v_max_f32 v%d, v%d, v%d" % (vT, vT, vT + 1))
        a("v_max_f32 v%d, s%d, v%d" % (vT, sFl, vT))
        for r in range(8): a("v_sub_f32 v%d, v%d, v%d" % (b + r, b + r, vT))
        for r in range(4): a("v_sub_f32 v%d, v%d, v%d" % (vM + 4 * t + r, vM + 4 * t + r, vT))
        a("s_cmp_lg_u32 s%d, 0" % sFl)
        a("s_cbranch_scc1 L_rare%d_x" % t)
        a("v_exp_f32 v%d, -v%d" % (vT + 1, vT))
        for r in range(4): a("v_mul_f32 v%d, v%d, v%d" % (vL + 4 * t + r, vL + 4 * t + r, vT + 1))
        for r in range(32): a("v_mul_f32 v%d, v%d, v%d" % (vO + 32 * t + r, vO + 32 * t + r, vT + 1))
        a.label("L_rare%d_x" % t)
        a("s_nop 3")
        a("s_branch L_back%d" % t)
    a.label("L_att_done")
    for t in range(3):
        for h in range(2):
            a("s_add_u32 s%d, s%d, %d" % (sT, sOoff, (h * 9 + t) * 1024))
            a("buffer_store_dwordx4 %s, v%d, %s, s%d offen%s" % (vr(vS + 8 * t + 4 * h, 4), vX1, SR(S_O), sT, POL[OPT["pols2"]]))
    lds_count(a, 0)
    a("s_mov_b64 exec, -1")
    publish(a, "L_pub_x", 0)
    stamp(a, 5)
    a("s_cmp_ge_u32 s%d, 2" % sW)
    a("s_cbranch_scc1 L_end")
    a("s_mov_b32 s%d, s%d" % (sOpIdx, sW))
    a("s_lshl_b32 s%d, s%d, 14" % (sBlkP, sW))
    a("s_cmp_eq_u32 s%d, 0\ns_cselect_b32 s%d, %d, %d" % (sW, sBlkD, 64 * KB, 0) + "\ns_cselect_b32 s%d, 0, %d\ns_add_u32 s%d, s%d, s%d" % (sT, 132 * KB - 16 * KB, sBlkD, sBlkD, sT))
    op_setup(a, False)
    a("v_mov_b32 v9, %d" % CNT)
    a.label("L_w12")
    a("ds_read_b32 v96, v9")
    a("ds_read_b32 v97, v9 offset:12")
    a("s_waitcnt lgkmcnt(0)")
    a("v_readfirstlane_b32 s%d, v96\nv_readfirstlane_b32 s%d, v97" % (sT, sT2))
    a("s_cmp_lt_u32 s%d, 6" % sT)
    a("s_cbranch_scc1 L_w12")
    a("s_mov_b32 s%d, s%d" % (sTag, sT2))
    a("s_cmp_eq_u32 s60, 0\ns_cbranch_scc1 L_op_a_join\ns_branch L_op_b_join")
    a.vm = []; a.lgkm = []

def wo_touch(a, phase, n=4, vl=136, i0=0):
    a("s_and_b32 s%d, s%d, 1\ns_lshl_b32 s%d, s%d, 4\ns_add_u32 s%d, s%d, s%d" % (sT, sGo, sT, sT, sT, sT, sJo))
    a("s_lshr_b32 s%d, s%d, 1\ns_lshl_b32 s%d, s%d, 18\ns_and_b32 s%d, s%d, 1\ns_lshl_b32 s%d, s%d, 16\ns_add_u32 s%d, s%d, s%d" % (sT2, sT, sT2, sT2, sT, sT, sT, sT, sT, sT, sT2))
    a("s_and_b32 s%d, s%d, 1\ns_lshl_b32 s%d, s%d, 15\ns_add_u32 s%d, s%d, s%d" % (sT2, sW, sT2, sT2, sT, sT, sT2))
    for i in range(n):
        a("s_add_u32 s%d, s%d, %d" % (sT2, sT, phase * 131072 + (i0 + i) * 8192))
        a.autowait = False
        a("buffer_load_dword v%d, v%d, %s, s%d offen" % (vl + 1, vl, SR(S_WO), sT2), tag="x")
        a.autowait = True

def aux_step(a, step, extra=None, pre=None):
    a.wait_vm_tag("t%d" % step)
    a("s_barrier")
    if OPT["sst"] >= 0 and step >= OPT["sst"] and (step - OPT["sst"]) % OPT["sstd"] == 0 and (step - OPT["sst"]) // OPT["sstd"] < 6:
        k_ = 1 + (step - OPT["sst"]) // OPT["sstd"]
        a("s_memrealtime s[%d:%d]" % (64 + 2 * k_, 65 + 2 * k_))
    if pre: pre()
    nxt = step + 2
    if nxt < 32 and nxt != 18: kv_tile(a, 144, nxt)
    if extra: extra()
    if step == 15:
        a("s_barrier")
        kv_tile(a, 144, 18)

def aux_extra(a, step):
    if step == 0:
        a("buffer_load_dword v140, v138, %s, 0 offen sc1" % SR(S_FL), tag="fl")
        HEAD_FIN[0]()
    if step == 3:
        cstamp(a, 0)
        a("s_lshl_b32 s%d, s%d, 3\ns_add_u32 s%d, s%d, s%d\ns_cmp_lg_u32 s%d, 6\ns_cbranch_scc1 L_nolead" % (sT, sJJ, sT, sT, sW, sT))
        a("v_lshrrev_b32 v140, v14, v140\nv_and_b32 v140, 1, v140\nv_cmp_eq_u32 vcc, 0, v140")
        a("s_nop 1")
        a("s_and_b32 s%d, vcc_lo, 0xffff\ns_or_b32 s%d, s%d, 0x80000000" % (sT, sT, sT))
        a("v_mov_b32 v140, s%d" % sT)
        keep = list(a.vm)
        a("buffer_store_dword v140, v139, %s, 0 offen sc1" % SR(S_DBG))
        a.vm = keep
        a.label("L_nolead")
    if step == 9:
        a("buffer_load_dword v140, v156, %s, 0 offen sc1" % SR(S_DBG), tag="fl")
    if step == 12:
        cstamp(a, 1)
        keep = list(a.vm)
        a.label("L_tag")
        a("v_cmp_eq_u32 vcc, 0, v140")
        a("s_cbranch_vccz L_tag_ok")
        a("s_sleep 8")
        a("buffer_load_dword v140, v156, %s, 0 offen sc1" % SR(S_DBG))
        a("s_waitcnt vmcnt(0)")
        a("s_branch L_tag")
        a.label("L_tag_ok")
        a.vm = keep
        a("v_readlane_b32 s%d, v140, 0\nv_readlane_b32 s%d, v140, 1" % (sTagA, sTag))
        a("v_min_u32 v141, 1, v12\nv_lshlrev_b32 v141, 2, v141\nv_add_u32 v141, %d, v141" % TAGW)
        a("ds_write_b32 v141, v140")
        a("s_waitcnt lgkmcnt(0)")
        astamp(a, 1)
    if step == 1: op_setup(a, True)
    if step == 16:
        a("s_and_b32 s%d, s%d, 1" % (sT3, sW))
        a("s_mul_i32 s%d, s%d, %d\ns_add_u32 s%d, s%d, %d\nv_add_u32 v142, s%d, v1" % (sT, sT3, 3 * 4096, sT, sT, Q1A, sT))
        a("s_mul_i32 s%d, s%d, %d\ns_add_u32 s%d, s%d, %d\nv_add_u32 v143, s%d, v1" % (sT, sT3, 3 * 2048, sT, sT, Q2B, sT))
        fr = [(i, t, h) for i in range(3) for t in range(3) for h in range(2)]
        for n, (i, t, h) in enumerate(fr):
            if t < 2: a("ds_read_b128 %s, v142 offset:%d" % (vr(16 + 4 * n, 4), i * 4096 + t * 2048 + h * 1024))
            else: a("ds_read_b128 %s, v143 offset:%d" % (vr(16 + 4 * n, 4), i * 2048 + h * 1024))
        a("s_mul_i32 s%d, s%d, %d\ns_mul_i32 s%d, s%d, %d\ns_add_u32 s%d, s%d, %d\ns_sub_u32 s%d, s%d, s%d" % (sT2, sJJ, 8 * 9216, sT3, sT3, 2 * 9216, sT2, sT2, 2 * 9216, sT2, sT2, sT3))
        for n, (i, t, h) in enumerate(fr):
            a("s_add_u32 s%d, s%d, %d" % (sT, sT2, (h * 9 + 3 * i + t) * 1024))
            a("buffer_store_dwordx4 %s, v1, %s, s%d offen%s" % (vr(16 + 4 * n, 4), SR(S_O), sT, POL[OPT["pols"]]), tag="st")
    if step == 17: a.wait_vm_tag("st")
    if step == 18: astamp(a, 2)

def aux_pre(a, step):
    if step == 18:
        a("s_cmp_lg_u32 s%d, 6\ns_cbranch_scc1 L_nopub%d" % (sW, step))
        a("s_lshl_b32 s%d, s%d, 2\nv_mov_b32 v142, s%d\nv_mov_b32 v143, s%d" % (sT, sJJ, sT, sTagA))
        keep = list(a.vm)
        a("buffer_store_dword v143, v142, %s, 0 offen sc1" % SR(S_FL))
        a.vm = keep
        a.label("L_nopub%d" % step)

def aux(a):
    if OPT["auxprio"]: a("s_setprio %d" % OPT["auxprio"])
    for q in range(8): a("v_mov_b32 v%d, v%d" % (144 + q, vD + q))
    a("v_lshlrev_b32 v136, 7, v12")
    a("v_lshlrev_b32 v138, 2, v14")
    a("s_lshl_b32 s%d, s%d, 4\nv_mov_b32 v139, s%d" % (sT, sG, sT))
    a("s_lshl_b32 s%d, s%d, 4\nv_mov_b32 v156, s%d\nv_cmp_eq_u32 vcc, 0, v12\nv_cndmask_b32 v156, v156, v139, vcc" % (sT, sGo, sT))
    a("s_sub_u32 s%d, s%d, 4" % (sOpIdx, sW))
    a("s_sub_u32 s%d, s%d, 6\ns_lshl_b32 s%d, s%d, 14\ns_add_u32 s%d, s%d, %d" % (sBlkP, sW, sBlkP, sBlkP, sBlkP, sBlkP, 96 * KB))
    a("s_mov_b32 s%d, 0x%x" % (sBlkD, (-64 * KB) & 0xffffffff))
    for step in range(19):
        aux_step(a, step, extra=lambda: aux_extra(a, step), pre=lambda: aux_pre(a, step))
    a("s_cmp_eq_u32 s60, 0\ns_cbranch_scc0 L_op_b_aux")

def op_setup(a, isaux):
    lanes(a)
    a("v_lshlrev_b32 v1, 4, v12\nv_add_u32 v8, 4096, v1")
    a("v_lshrrev_b32 v9, 5, v12")
    a("v_and_b32 v4, 3, v12\nv_lshlrev_b32 v5, 1, v9\nv_xor_b32 v4, v4, v5\nv_lshlrev_b32 v4, 4, v4")
    a("v_and_b32 v5, 1, v13")
    a("v_lshl_add_u32 v4, v5, 6, v4\nv_lshl_add_u32 v4, v15, 10, v4\nv_lshl_add_u32 v4, v9, 12, v4")
    a("v_and_b32 v2, 3, v12\nv_lshlrev_b32 v2, 3, v2\nv_lshl_add_u32 v2, v15, 6, v2\nv_lshl_add_u32 v2, v5, 5, v2\nv_lshl_add_u32 v2, v13, 9, v2")
    a("v_add_u32 v2, s%d, v2\nv_xor_b32 v3, 32, v2" % sBlkP)
    for q in range(1, 4): a("v_add_u32 v%d, %d, v4" % (4 + q, 7168 * q))
    for r in range(176, 256, 2): a("v_mov_b64 %s, 0" % vr(r, 2))
    a("s_lshr_b32 s60, s%d, 3\ns_add_u32 s61, s%d, %d\ns_and_b32 s61, s61, 7" % (sJo, sJo, OPT["cbr"]))
    a("s_mul_i32 s%d, s60, 5120" % sOb)
    a("s_lshl_b32 s%d, s61, 7" % sWb)
    a("s_and_b32 s%d, s%d, 7" % (sOutOff, sGo))
    a("s_mul_i32 s%d, s%d, 144\ns_mul_i32 s%d, s60, 80\ns_add_u32 s%d, s%d, s%d\ns_lshl_b32 s%d, s%d, 11" % (sOutOff, sOutOff, sT, sOutOff, sOutOff, sT, sOutOff, sOutOff))
    a("s_lshl_b32 s%d, s%d, 10\ns_add_u32 s%d, s%d, s%d\ns_add_u32 s%d, s%d, s%d" % (sT, sBlk, sOutOff, sOutOff, sT, sOutOff, sOutOff, sWb))
    a("s_lshl_b32 s%d, s%d, 5\ns_add_u32 s%d, s%d, s%d" % (sT, sOpIdx, sOutOff, sOutOff, sT))
    a("v_lshlrev_b32 v10, 11, v14\nv_lshl_add_u32 v10, v13, 3, v10")
    a("v_lshlrev_b32 v11, 2, v14")
    a("s_and_b32 s%d, s%d, 1\ns_lshl_b32 s%d, s%d, 1\ns_add_u32 s%d, s%d, s60\ns_lshl_b32 s%d, s%d, 2" % (sT, sGo, sT, sT, sT, sT, sT, sT))
    if not OPT["rotw"]: a("s_mov_b32 s%d, 0" % sT)
    a("s_and_b32 s%d, s%d, 1\ns_add_u32 s%d, s%d, s%d" % (sT2, sOpIdx, sT, sT, sT2))
    a("s_lshl_b32 s%d, s61, 1\ns_add_u32 s%d, s%d, s%d" % (sT2, sM1, sT, sT2))
    a("s_add_u32 s%d, s%d, %d" % (sM2, sM1, 8 if isaux else 0))
    a("s_mul_i32 s%d, s%d, %d\ns_add_u32 s90, s100, s%d\ns_addc_u32 s91, s101, 0" % (sT, sGo, 128 * 9216, sT))
    srd(a, S_OL, 90, 91, "%d" % (128 * 9216))
    a("s_lshl_b32 s%d, s%d, 8\ns_add_u32 s%d, s%d, 0x%x\ns_add_u32 s90, s100, s%d\ns_addc_u32 s91, s101, 0" % (sT, sGo, sT, sT, FLAG_OFF, sT))
    srd(a, S_FLL, 90, 91, "64")

def op_path(a, NR, role, vm0):
    lab = lambda s: "L_op_%s_%s" % (role, s)
    B = lambda k, t: vr(16 + ((k % 4) * 5 + t) * 4, 4)
    ACC = lambda t, ct: vr(176 + (t * 4 + ct) * 4, 4)
    def kbase(i):
        a("s_add_u32 s%d, s%d, %d\ns_and_b32 s%d, s%d, 15\ns_lshl_b32 s%d, s%d, 3" % (sT, sM1 if i < 8 else sM2, 2 * (i & 7), sT, sT, sT, sT))
        if i >= 8: a("s_add_u32 s%d, s%d, 4" % (sT, sT))
    def off_o(i):
        d = sOc if i & 1 else sOn
        kbase(i); a("s_mul_i32 s%d, s%d, 9216\ns_add_u32 s%d, s%d, s%d" % (d, sT, d, d, sOb))
        if OPT["xo"]: a("s_mov_b32 s%d, s%d" % (d, sOb))
    def off_w(i):
        kbase(i); a("s_lshl_b32 s%d, s%d, 15\ns_add_u32 s%d, s%d, s%d" % (sWn, sT, sWn, sWn, sWb))
        if OPT["xw"]: a("s_mov_b32 s%d, s%d" % (sWn, sWb))
    def w_ops(n, blk=sBlkP):
        k = n % 4
        o = ["s_add_u32 m0, s%d, %d" % (blk, k * 4096), "s_add_u32 s%d, s%d, %d" % (sT2, sWn, k * 32768)]
        for q in range(4):
            o.append(("buffer_load_dwordx4 v%d, %s, s%d offen offset:%d%s lds" % (4 + q, SR(S_WO), sT2, q * 1024, POL[OPT["polwo"]]), "w%d" % n))
        return o
    def o_ops(n):
        k = n % 4
        o = ["s_add_u32 s%d, s%d, %d" % (sT3, sOc if (n // 4) & 1 else sOn, k * 9216)]
        for t in range(NR):
            if t < 4: o.append(("buffer_load_dwordx4 %s, v1, %s, s%d offen offset:%d%s" % (B(k, t), SR(S_OL), sT3, t * 1024, POL[OPT["polo"]]), "o%d" % n))
            else: o.append(("buffer_load_dwordx4 %s, v8, %s, s%d offen%s" % (B(k, t), SR(S_OL), sT3, POL[OPT["polo"]]), "o%d" % n))
        return o
    def reads(n):
        k = n % 4; buf = 96 + 16 * (k & 1)
        return ["ds_read_b64_tr_b16 %s, v%d offset:%d" % (vr(buf + 4 * ct + 2 * rd, 2), 3 if ct & 1 else 2, k * 4096 + rd * 2048 + (ct >> 1) * 256)
                for ct in range(4) for rd in range(2)]
    def run(ops):
        for x in ops:
            a.autowait = False
            if isinstance(x, tuple): a(x[0], tag=x[1])
            else: a(x)
            a.autowait = True
    def wait_tags(*tags):
        need = None
        for k_, (t_, d_) in enumerate(a.vm):
            if t_ in tags: need = k_
        if need is not None: a("s_waitcnt vmcnt(%d)" % (len(a.vm) - 1 - need))
    def check_flags(first_loaded, name, mask30):
        keep = list(a.vm)
        a("s_or_b32 s%d, s%d, 0x%x" % (sWant, sTag, PHM))
        if first_loaded: a("v_mov_b32 v9, v140\ns_branch %s" % (name + "_c"))
        a.label(name)
        a("buffer_load_dword v9, v11, %s, 0 offen sc1" % SR(S_FLL))
        a("s_waitcnt vmcnt(0)")
        a.label(name + "_c")
        if mask30: a("v_or_b32 v9, 0x40000000, v9")
        a("v_cmp_ne_u32 vcc, s%d, v9" % sWant)
        if OPT["nopoll"]: a("s_branch %s" % (name + "_ok"))
        a("s_cbranch_vccz %s" % (name + "_ok"))
        a("s_sleep %d" % OPT["slp"])
        a("s_branch %s" % name)
        a.label(name + "_ok")
        a.vm = keep if first_loaded else []
    def kstep(n, lw, wend, oend, toggle):
        k = n % 4
        if k == 0:
            if n + lw < wend: off_w((n + lw) // 4)
            if n + 4 < oend: off_o(n // 4 + 1)
        last = n + 1 >= oend
        wait_tags("o%d" % n, *([] if last else ["w%d" % (n + 1)]))
        a("s_waitcnt lgkmcnt(0)")
        if k == 3 and toggle and not last:
            a("v_add_u32 v2, s%d, v2\nv_add_u32 v3, s%d, v3" % (sBlkD, sBlkD))
        fillers = ([] if last else reads(n + 1)) + (w_ops(n + lw) if n + lw < wend else []) + (o_ops(n + 3) if n + 3 < oend else [])
        buf = 96 + 16 * (k & 1)
        ms = ["%s %s, %s, %s, %s" % (MF, ACC(t, ct), vr(buf + 4 * ct, 4), B(k, t), ACC(t, ct)) for ct in range(4) for t in range(NR)]
        fi = 0
        for i, m in enumerate(ms):
            run([m])
            tgt = ((i + 1) * len(fillers) + len(ms) - 3) // (len(ms) - 2)
            while fi < min(tgt, len(fillers)):
                run([fillers[fi]]); fi += 1
        a.lgkm = []
        if k == 3 and toggle:
            a("s_add_u32 s%d, s%d, s%d\ns_sub_u32 s%d, 0, s%d" % (sBlkP, sBlkP, sBlkD, sBlkD, sBlkD))
    a.vm = list(vm0)
    a.label(lab("aux"))
    s0 = OPT["s0"]; kp = [int(c) for c in OPT["kp"]]
    assert len(kp) == 32 - s0 and sum(kp) <= 32 and s0 >= 22
    cnt = [0]
    def pre(step):
        def f():
            if step == s0 - 3: off_w(0); run(w_ops(0) + w_ops(1))
            if step == s0 - 2:
                run([("buffer_load_dword v140, v138, %s, 0 offen sc1" % SR(S_FLL), "fl")])
                run(w_ops(2) + w_ops(3))
            if step == s0 - 1:
                wait_tags("fl")
                astamp(a, 3)
                check_flags(True, lab("f1"), True)
                astamp(a, 4)
                off_o(0); run(o_ops(0) + o_ops(1) + o_ops(2))
                wait_tags("w0"); run(reads(0))
            if step == OPT["t1"]: wo_touch(a, 1)
            if step == 31:
                if OPT["lowp"]: a("s_setprio 0")
                a("s_mov_b32 s63, s%d" % sWn)
                off_w(9); a("s_add_u32 s62, s%d, s%d" % (sBlkP, sBlkD))
                for n in range(36, 40): run(w_ops(n, 62))
                a("s_mov_b32 s%d, s63" % sWn)
            if step >= s0:
                for _ in range(kp[step - s0]):
                    kstep(cnt[0], 4, 36, 32, False); cnt[0] += 1
        return f
    for step in range(19, 32): aux_step(a, step, pre=pre(step))
    stamp(a, 3); astamp(a, 6)
    while cnt[0] < 32:
        kstep(cnt[0], 4, 36, 32, False); cnt[0] += 1
    stamp(a, 4)
    a("s_branch %s" % lab("ph2"))
    a.vm = []
    a.label(lab("join"))
    off_w(8)
    for n in range(32, 36): run(w_ops(n))
    off_w(9); a("s_add_u32 s62, s%d, s%d" % (sBlkP, sBlkD))
    for n in range(36, 40): run(w_ops(n, 62))
    a.label(lab("ph2"))
    check_flags(False, lab("f2"), False)
    stamp(a, 6)
    off_o(8); run(o_ops(32) + o_ops(33) + o_ops(34))
    run(reads(32))
    for n in range(32, 48): kstep(n, 8, 48, 48, True)
    stamp(a, 1)
    a("s_barrier")
    a("s_mul_i32 s%d, s%d, %d" % (sT, sOpIdx, 20 * KB))
    a("v_add_u32 v9, s%d, v1" % sT)
    for i in range(NR * 4): a("ds_write_b128 v9, %s offset:%d" % (vr(176 + i * 4, 4), i * 1024))
    a("s_lshl_b32 s%d, s%d, 10" % (sT, sOpIdx))
    a("v_add_u32 v9, s%d, v1\nv_add_u32 v8, %d, v9" % (sT, 40 * KB))
    a("s_waitcnt lgkmcnt(0)")
    a("s_barrier")
    for t in range(NR):
        for w in range(4):
            a("ds_read_b128 %s, v%d offset:%d" % (vr(16 + (t * 4 + w) * 4, 4), 9 if w < 2 else 8, (w & 1) * 20 * KB + t * 4096))
    for t in range(NR):
        b = 16 + t * 16
        for r in range(4):
            a("v_add_f32 v%d, v%d, v%d" % (b + r, b + r, b + 4 + r))
            a("v_add_f32 v%d, v%d, v%d" % (b + 8 + r, b + 8 + r, b + 12 + r))
            a("v_add_f32 v%d, v%d, v%d" % (b + r, b + r, b + 8 + r))
        a("v_cvt_pk_bf16_f32 v%d, v%d, v%d\nv_cvt_pk_bf16_f32 v%d, v%d, v%d" % (b, b, b + 1, b + 1, b + 2, b + 3))
        a("s_add_u32 s%d, s%d, %d" % (sT, sOutOff, t * 32768))
        a("buffer_store_dwordx2 %s, v10, %s, s%d offen" % (vr(b, 2), SR(S_OUT), sT))
    if OPT["stamps"]:
        a("s_waitcnt vmcnt(0)")
        stamp(a, 7)
        stamp_store(a)
    a("s_endpgm")
    a.vm = []; a.lgkm = []

def kernel():
    a = Asm()
    a.raw(".globl %s\n.p2align 8\n.type %s,@function" % (NAME, NAME)); a.label(NAME)
    a("s_cmp_ge_u32 s2, 256\ns_cbranch_scc1 L_end")
    if OPT["stamps"]:
        for k in range(NST): stamp(a, k)
    a("s_and_b32 s%d, s2, 7\ns_lshr_b32 s%d, s2, 3" % (sT, sT2))
    a("s_lshr_b32 s%d, s%d, 4\ns_lshl_b32 s%d, s%d, 1\ns_add_u32 s%d, s%d, s%d" % (sGo, sT2, sT3, sT, sGo, sGo, sT3))
    a("s_and_b32 s%d, s%d, 15\ns_lshr_b32 s%d, s%d, 2" % (sJo, sT2, sBlk, sT))
    if OPT["map"] == 0:
        a("s_mov_b32 s%d, s%d\ns_mov_b32 s%d, s%d\ns_and_b32 s%d, s%d, 7" % (sG, sGo, sJJ, sJo, sB, sGo))
        a("s_and_b32 s%d, s%d, 1\ns_lshl_b32 s%d, s%d, 2\ns_add_u32 s%d, s%d, s%d" % (sRot, sG, sRot, sRot, sRot, sRot, sJJ))
    elif OPT["map"] == 1:
        a("s_and_b32 s%d, s%d, 7\ns_and_b32 s%d, s%d, 1\ns_lshl_b32 s%d, s%d, 3\ns_add_u32 s%d, s%d, s%d" % (sRot, sT2, sJJ, sT, sJJ, sJJ, sJJ, sJJ, sRot))
        a("s_lshr_b32 s%d, s%d, 3\ns_lshl_b32 s%d, s%d, 1\ns_add_u32 s%d, s%d, s%d" % (sB, sT2, sT3, sB, sRot, sRot, sT3))
        a("s_and_b32 s%d, s%d, 2\ns_lshl_b32 s%d, s%d, 1\ns_add_u32 s%d, s%d, s%d" % (sT3, sT, sT3, sT3, sB, sB, sT3))
        a("s_lshl_b32 s%d, s%d, 3\ns_add_u32 s%d, s%d, s%d" % (sG, sBlk, sG, sG, sB))
    else:
        a("s_and_b32 s%d, s%d, 3\ns_and_b32 s%d, s%d, 3\ns_lshl_b32 s%d, s%d, 2\ns_add_u32 s%d, s%d, s%d" % (sRot, sT2, sJJ, sT, sJJ, sJJ, sJJ, sJJ, sRot))
        a("s_lshr_b32 s%d, s%d, 2\ns_lshl_b32 s%d, s%d, 1\ns_add_u32 s%d, s%d, s%d" % (sB, sT2, sRot, sRot, sRot, sRot, sB))
        a("s_lshl_b32 s%d, s%d, 3\ns_add_u32 s%d, s%d, s%d" % (sG, sBlk, sG, sG, sB))
    a("s_mul_i32 s%d, s%d, 40" % (sT, sBlk))
    a("s_add_u32 s4, s0, s%d\ns_addc_u32 s5, s1, 0" % sT)
    a("s_load_dwordx8 s[80:87], s[4:5], 0")
    a("s_load_dwordx2 s[88:89], s[4:5], 32")
    a("s_load_dwordx4 s[96:99], s[0:1], 80")
    a("s_load_dwordx2 s[92:93], s[0:1], 96")
    a("s_getpc_b64 s[60:61]")
    a.label("L_pf")
    a("v_lshlrev_b32 v12, 7, v0")
    a.items.append(a._mk("v_min_u32 v12, 0x1234, v12")); a.items[-1].text = "v_min_u32 v12, L_end-L_pf, v12"
    if not OPT["nopf"]: a("global_load_dword v253, v12, s[60:61]")
    a("v_lshrrev_b32 v12, 6, v0")
    a("v_readfirstlane_b32 s%d, v12" % sW)
    if OPT["norot"]: a("s_mov_b32 s%d, 0" % sRot)
    a("s_mul_i32 s62, s%d, 147456" % sB)
    a("s_cmp_ge_u32 s%d, 6\ns_cbranch_scc1 L_auxrole" % sW)
    st = (list(a.lgkm), list(a.vm))
    head(a, True)
    attention(a)
    a.lgkm, a.vm = list(st[0]), list(st[1])
    a.raw(".p2align 3"); a.label("L_auxrole")
    head(a, False)
    aux(a)
    loops = ["L_loop"]
    vm0 = list(a.vm)
    op_path(a, 5, "a", vm0)
    op_path(a, 4, "b", vm0)
    a.label("L_end"); a("s_endpgm")
    a.pad_hazards()
    for l in loops: a.check_backedge(l, "s_cbranch_scc1 " + l)
    a.align8()
    return a.text()

out = []
out.append("; @launch grid=(256,1,1) block=(512,1,1) lds=163840")
out.append('.amdgcn_target "amdgcn-amd-amdhsa--gfx950"\n.text')
out.append(kernel())
out.append('.section .rodata,"a"\n.p2align 6')
out.append(""".amdhsa_kernel %s
  .amdhsa_next_free_vgpr 256
  .amdhsa_next_free_sgpr 102
  .amdhsa_accum_offset 256
  .amdhsa_group_segment_fixed_size 0
  .amdhsa_kernarg_size 104
  .amdhsa_user_sgpr_count 2
  .amdhsa_user_sgpr_kernarg_segment_ptr 1
  .amdhsa_system_sgpr_workgroup_id_x 1
.end_amdhsa_kernel
""" % NAME)
print("\n".join(out))
```

```python
import sys, math, struct
sys.path.insert(0, "dev")
from asmlib import *

OPT = dict(stamps=0, samekv=0, clk=0, hst=0, nopoll=0, polo=2, polw=0, polx=0, polwo=0, pols=2, polkv=1, slp=4, lo=2,
           auxprio=0, sbs=1, s0=22, kp="3333333322", sst=-1, sstd=1, xo=0, xw=0, map=2, park=2, hprio=1, kv0=5, kv1=7, pk14=0)
for a_ in sys.argv[1:]:
    k, v = a_.split("="); assert k in OPT, k; OPT[k] = v if k == "kp" else int(v)

NAME = "concat_heads__mha_block_cached__gqa_block_cached__near_ridge_kernel"
def f32(x): return "0x%08x" % struct.unpack("<I", struct.pack("<f", x))[0]
CSCALE = math.log2(math.e) / math.sqrt(128.0)
THR = 8.0
KB = 1024
SLOT = 32 * KB
XB = [96 * KB, 114 * KB, 132 * KB]
WB = [32 * KB, 48 * KB, 0]
Q2B = 96 * KB; Q1A = 132 * KB; Q1C = 32 * KB; EX1 = 132 * KB; EX2 = 80 * KB; W2R = 132 * KB
MLB = 156 * KB; CNT = 160 * KB - 128; TAGW = CNT + 8; CLAIM = CNT + 16; PFL = CNT + 32
STAMP_OFF = 0x10000000; FLAG_OFF = 0x2000000
PHM = 0x40000000
MF = "v_mfma_f32_16x16x32_bf16"
NST = 8
POL = ["", " nt", " sc1", " sc0 sc1", " sc1 nt"]
NIN = sum(int(c) for c in OPT["kp"]) // 4
assert NIN * 4 == sum(int(c) for c in OPT["kp"]) and NIN <= 7

S_FL, S_WQ, S_X, S_O, S_KV, S_WO, S_OUT, S_DBG = 4, 8, 12, 16, 20, 24, 28, 32
S_OL, S_FLL = 8, 12
sW, sG, sJJ, sBlk, sB, sRot, sT, sT2, sT3 = 36, 37, 38, 39, 40, 41, 42, 43, 44
sCnt, sThr, sFl, sSlot, sDelta, sItem, sExS, sBar, sExch, sOoff = 45, 46, 47, 48, 49, 50, 51, 52, 53, 54
sNeg, sPos, sPart, sKg, sRho = 55, 56, 57, 59, 62
sHk, sHo = 46, 47
sOc, sOn, sWn, sBlkP, sRm, sBit, sR, sC = 46, 47, 48, 49, 51, 52, 55, 56
sOb, sWb, sOutOff, sOpIdx, sTag, sWant, sTagA = 80, 81, 82, 83, 84, 85, 87
sGo, sJo = 94, 95

def srd(a, d, lo, hi, nrec):
    a("s_mov_b32 s%d, s%d\ns_mov_b32 s%d, s%d" % (d, lo, d + 1, hi))
    a("s_mov_b32 s%d, %s\ns_mov_b32 s%d, 0x20000" % (d + 2, nrec, d + 3))
def SR(d): return "s[%d:%d]" % (d, d + 3)

def cstamp(a, e):
    if OPT["clk"]: a("s_memtime s[%d:%d]\ns_memrealtime s[%d:%d]" % (66 + 2 * e, 67 + 2 * e, 70 + 2 * e, 71 + 2 * e))
def stamp(a, k, hs=False):
    if not OPT["stamps"]: return
    if OPT["clk"] and 1 <= k <= 4: return
    if OPT["sst"] >= 0 and k and k != 7: return
    if OPT["hst"] and k and not hs: return
    if hs and not OPT["hst"]: return
    a("s_memrealtime s[%d:%d]" % (64 + 2 * k, 65 + 2 * k))
def stamp_store(a):
    a("s_waitcnt vmcnt(0) lgkmcnt(0)")
    a("s_cmp_eq_u32 s%d, 6\ns_cselect_b32 s%d, 256, 0" % (sW, sT))
    a("s_mul_i32 s%d, s%d, 43\ns_lshr_b32 s%d, s%d, 8\ns_mul_i32 s%d, s%d, 6" % (sT2, sW, sT2, sT2, sT2, sT2))
    a("s_cmp_lg_u32 s%d, s%d\ns_cbranch_scc1 L_end" % (sT2, sW))
    a("s_add_u32 s96, s100, 0x%x\ns_addc_u32 s97, s101, 0" % STAMP_OFF)
    a("s_mov_b32 s98, 0x100000\ns_mov_b32 s99, 0x20000")
    a("s_add_u32 s3, s2, s%d\ns_mul_i32 s3, s3, %d" % (sT, NST * 8))
    a("v_mov_b32 v12, s3\ns_mov_b64 exec, 1")
    for k in range(NST):
        a("v_mov_b32 v14, s%d\nv_mov_b32 v15, s%d" % (64 + 2 * k, 65 + 2 * k))
        a("buffer_store_dwordx2 v[14:15], v12, s[96:99], 0 offen offset:%d" % (8 * k))
        a("s_nop 1")

def lanes(a):
    a("v_and_b32 v12, 63, v0\nv_lshrrev_b32 v13, 4, v12\nv_and_b32 v14, 15, v12\nv_bfe_u32 v15, v12, 2, 2")

vK, vVa, vVb = 1, 2, 3
vX1, vX2, vX3, vX4 = 4, 5, 6, 7
vONE, vT, vQ, vO, vL, vM, vS, vF = 8, 12, 16, 64, 160, 172, 184, 208
def Q(t, s): return vr(vQ + 16 * t + 4 * s, 4)
def O(t, dt): return vr(vO + 32 * t + 4 * dt, 4)
def L(t): return vr(vL + 4 * t, 4)
def M(t): return vr(vM + 4 * t, 4)
def S(t, kt): return vr(vS + 8 * t + 4 * kt, 4)
def F(i): return vF + 4 * i
vD = 128
vFo, vDg, vDg2, vFl, vA_, vB_, vOr, vCl, vCr, vCb = 136, 137, 138, 139, 140, 141, 142, 143, 144, 145

def kv_tile(a, tile):
    slot = (tile + 2) % 3
    for grp in range(4):
        a("s_add_u32 m0, s%d, %d" % (sKg, slot * SLOT + grp * 4096))
        a("s_mov_b32 s%d, %d" % (sT, tile * 16384 + grp * 4096))
        for q in range(4):
            a("buffer_load_dwordx4 v%d, %s, s%d offen offset:%d%s lds" % (vD + q + (4 if grp >= 2 else 0), SR(S_KV), sT, q * 1024, POL[OPT["polkv"]]), tag="t%d" % tile)

def srds_first(a):
    a("s_waitcnt lgkmcnt(0)")
    srd(a, S_WQ, 86, 87, "%d" % (512 * 8192))
    a("s_add_u32 s80, s80, s62\ns_addc_u32 s81, s81, 0")
    srd(a, S_X, 80, 81, "147456")

def srds_rest(a):
    a("s_mul_i32 s%d, s%d, %d\ns_add_u32 s90, s92, s%d\ns_addc_u32 s91, s93, 0" % (sT, sG, 128 * 9216, sT))
    srd(a, S_O, 90, 91, "%d" % (128 * 9216))
    a("s_cmp_eq_u32 s%d, 6\ns_cselect_b32 s82, s82, s84\ns_cselect_b32 s83, s83, s85" % sW)
    a("s_lshl_b32 s%d, s%d, 4\ns_add_u32 s%d, s%d, s%d" % (sT, sB, sT, sT, sJJ))
    if OPT["samekv"]: a("s_mov_b32 s%d, 0" % sT)
    a("s_lshl_b32 s%d, s%d, 19" % (sT, sT))
    a("s_add_u32 s82, s82, s%d\ns_addc_u32 s83, s83, 0" % sT)
    srd(a, S_KV, 82, 83, "524288")
    srd(a, S_WO, 88, 89, "%d" % (4096 * 1024))
    srd(a, S_OUT, 96, 97, "%d" % (8 * 144 * 1024 * 2))
    srd(a, S_DBG, 98, 99, "256")
    a("s_lshl_b32 s%d, s%d, 8\ns_add_u32 s%d, s%d, 0x%x\ns_add_u32 s90, s92, s%d\ns_addc_u32 s91, s93, 0" % (sT, sG, sT, sT, FLAG_OFF, sT))
    srd(a, S_FL, 90, 91, "64")
    a("s_mov_b32 s100, s92\ns_mov_b32 s101, s93")
    a("s_cmp_ge_u32 s%d, 3\ns_cselect_b32 s%d, 1, 0\ns_mul_i32 s%d, s%d, 3\ns_sub_u32 s%d, s%d, s%d" % (sW, sKg, sT, sKg, sRho, sW, sT))
    a("v_and_b32 v236, 31, v0\nv_lshlrev_b32 v236, 2, v236\nv_add_u32 v236, %d, v236\nv_mov_b32 v234, 0" % CNT)
    a("ds_write_b32 v236, v234")

def q_pack(a, b, scale):
    for r in range(0, 8, 2): a("v_pk_mul_f32 %s, %s, %s" % (vr(b + r, 2), vr(b + r, 2), scale))
    for r in range(4): a("v_cvt_pk_bf16_f32 v%d, v%d, v%d" % (b + r, b + 2 * r, b + 2 * r + 1))
def q_swap(a, b):
    a("v_permlane16_swap_b32 v%d, v%d\nv_permlane16_swap_b32 v%d, v%d" % (b, b + 2, b + 1, b + 3))

def head(a, role):
    att = role != "X"; ldr = role != "A"
    NRT = 4 if ldr else 5; T0 = 5 if ldr else 0
    vHW, vHX = 224, 248
    vA1, vA2, vBx = 231, 232, 233
    cA1, cA2, cBx = 234, 235, 236
    ACC = lambda t, d: vr(16 + 8 * t + 4 * d, 4)
    BF = lambda u, t: vr(56 + 20 * u + 4 * t, 4)
    AF = lambda u, d: 96 + 8 * u + 4 * d
    NX = 5 if att else 4
    lanes(a)
    if ldr:
        a("s_and_b32 s60, s%d, 3" % sW)
        a("v_and_b32 v%d, 3, v12\nv_lshlrev_b32 v%d, 4, v%d" % (vHX, vHX, vHX))
        a("v_lshl_add_u32 v%d, v13, 6, v%d" % (vHW, vHX))
        if not att: a("v_lshl_add_u32 v%d, v15, 8, v%d" % (vD, vHW))
        a("v_lshl_add_u32 v%d, v15, 13, v%d" % (vHW, vHW))
        a("s_lshl_b32 s%d, s60, 17\ns_lshl_b32 s%d, s%d, 9\ns_add_u32 s%d, s%d, s%d" % (sT, sT2, sJJ, sT, sT, sT2))
        a("v_add_u32 v%d, s%d, v%d" % (vHW, sT, vHW))
        a("v_add_u32 v%d, %d, v%d" % (vHW + 1, 31744, vHW))
        a("v_add_u32 v%d, %d, v%d\nv_xor_b32 v%d, 32, v%d" % (vHW + 2, 2 * 31744, vHW, vHW + 2, vHW + 2))
        a("v_add_u32 v%d, %d, v%d" % (vHW + 3, 31744, vHW + 2))
        a("s_lshl_b32 s63, s60, 12")
        a("s_mul_i32 s61, s60, %d" % NX)
        if not att: a("s_add_u32 s61, s61, 2")
        a("v_and_b32 v%d, 1, v13\nv_lshl_add_u32 v%d, v%d, 6, v%d" % (vA1, vHX, vA1, vHX))
        if not att: a("v_mov_b32 v4, v%d" % vHX)
        a("v_lshl_add_u32 v%d, v15, 10, v%d" % (vHX, vHX))
        a("v_lshrrev_b32 v%d, 5, v12\nv_lshl_add_u32 v%d, v%d, 12, v%d" % (vA1, vHX, vA1, vHX))
        if not att: a("v_mov_b32 v8, v%d" % vHX)
        a("s_lshl_b32 s%d, s61, 13\ns_and_b32 s%d, s61, 1\ns_lshl_b32 s%d, s%d, 5" % (sT, sT2, sT2, sT2))
        a("v_add_u32 v%d, s%d, v%d\nv_xor_b32 v%d, s%d, v%d" % (vHX, sT, vHX, vHX, sT2, vHX))
        a("v_add_u32 v%d, 7168, v%d\nv_xor_b32 v%d, 32, v%d" % (vHX + 1, vHX, vHX + 1, vHX + 1))
        a("v_add_u32 v%d, 14336, v%d\nv_add_u32 v%d, 14336, v%d" % (vHX + 2, vHX, vHX + 3, vHX + 1))
        if att: a("v_add_u32 v%d, 32768, v%d" % (vHX + 4, vHX))
        a("s_lshl_b32 s61, s61, 10")
    def stage_ops(j):
        if not ldr: return []
        xb = XB[j % 3]; wb = WB[j % 3]
        o = []
        for qq in range(4):
            pre_ = "s_add_u32 s%d, s%d, %d\ns_and_b32 s%d, s%d, 7\ns_lshl_b32 s%d, s%d, 19\ns_add_u32 m0, s63, %d\n" % (sHk, sRot, j, sHk, sHk, sHo, sHk, wb) if qq == 0 else ""
            o.append(pre_ + "buffer_load_dwordx4 v%d, %s, s%d offen offset:%d%s lds" % (vHW + qq, SR(S_WQ), sHo, qq * 1024, POL[OPT["polw"]]))
        for e in range(NX):
            pre_ = "s_add_u32 m0, s61, %d\n" % (xb + 4096) if e == 4 else ("s_add_u32 m0, s61, %d\ns_lshl_b32 s%d, s%d, 7\n" % (xb, sHo, sHk) if e == 0 else "")
            o.append(pre_ + "buffer_load_dwordx4 v%d, %s, s%d offen offset:%d%s lds" % (vHX + e, SR(S_X), sHo, (e & 3) * 1024, POL[OPT["polx"]]))
        return [(x, "h%d" % j) for x in o]
    def stage_load(j):
        for x, t in stage_ops(j): a(x, tag=t)
    srds_first(a)
    stage_load(0)
    srds_rest(a)
    a("v_and_b32 v%d, 3, v12\nv_lshlrev_b32 v%d, 3, v%d" % (vA1, vA1, vA1))
    a("v_lshl_add_u32 v%d, v15, 6, v%d" % (vA1, vA1))
    a("v_and_b32 v%d, 1, v13\nv_lshl_add_u32 v%d, v%d, 5, v%d" % (vA2, vA1, vA2, vA1))
    a("v_lshl_add_u32 v%d, v13, 10, v%d" % (vVa, vA1))
    a("v_lshl_add_u32 v%d, v13, 11, v%d" % (vA1, vA1))
    a("s_and_b32 s%d, s%d, 3\ns_lshl_b32 s%d, s%d, 8" % (sT, sW, sT, sT))
    a("v_add_u32 v%d, s%d, v%d\nv_xor_b32 v%d, 32, v%d" % (vA1, sT, vA1, vA2, vA1))
    a("v_lshrrev_b32 v%d, 3, v14\nv_lshlrev_b32 v%d, 1, v%d\nv_xor_b32 v%d, v%d, v13\nv_lshlrev_b32 v%d, 4, v%d" % (vBx, vBx, vBx, vBx, vBx, vBx, vBx))
    a("v_and_b32 v%d, 3, v14\nv_lshl_add_u32 v%d, v%d, 6, v%d" % (cBx, vBx, cBx, vBx))
    a("v_lshl_add_u32 v%d, v15, 9, v%d" % (vBx, vBx))
    if att:
        a("s_lshl_b32 s%d, s%d, 13\ns_add_u32 s%d, s%d, %d" % (sT, sKg, sT, sT, 2 * SLOT))
        a("v_add_u32 v%d, s%d, v%d\nv_add_u32 v%d, 16384, v%d\nv_xor_b32 v%d, 32, v%d" % (vVa, sT, vVa, vVa, vVa, vVb, vVa))
        a("v_lshlrev_b32 v%d, 10, v15" % vK)
        a("v_lshl_add_u32 v%d, v%d, 6, v%d" % (vK, cBx, vK))
        a("v_lshrrev_b32 v%d, 1, v13\nv_and_b32 v%d, 1, v13\nv_lshl_or_b32 v%d, v%d, 1, v%d" % (cA1, cA2, cA1, cA2, cA1))
        a("v_lshrrev_b32 v%d, 3, v14\nv_xor_b32 v%d, v%d, v%d" % (cA2, cA1, cA1, cA2))
        a("v_lshl_add_u32 v%d, v%d, 4, v%d\nv_add_u32 v%d, s%d, v%d" % (vK, cA1, vK, vK, sT, vK))
        for r in list(range(112, vO + 96, 2)) + list(range(vL, vL + 24, 2)) + list(range(vS + 16, vS + 20, 2)) + list(range(vF, vF + 16, 2)):
            a("v_mov_b64 %s, 0" % vr(r, 2))
        for r in range(4): a("v_mov_b32 v%d, 0x3f803f80" % (vONE + r))
    else:
        a("s_cmp_eq_u32 s%d, 6" % sW)
        a("s_cselect_b32 s%d, 0, 32\ns_cselect_b32 s%d, 16, 0\ns_cselect_b32 s%d, 16, 32\ns_cselect_b32 s60, 0, 128\ns_cselect_b32 s%d, 0, 16384" % (sT, sT2, sT3, sKg))
        a("v_xor_b32 v%d, s%d, v%d\nv_xor_b32 v%d, s%d, v%d\nv_xor_b32 v%d, s%d, v%d" % (vD + 1, sT, vD, vD + 2, sT2, vD, vD + 3, sT3, vD))
        for q in range(4): a("v_xor_b32 v%d, s60, v%d" % (vD + 4 + q, vD + q))
        a("v_add_u32 v1, %d, v%d" % (XB[0], vBx))
    a("v_mov_b32 v238, %s\nv_mov_b32 v239, %s" % (f32(CSCALE), f32(CSCALE)))
    def reads(u):
        tr = lambda d: ["ds_read_b64_tr_b16 %s, v%d offset:%d" % (vr(AF(u, d) + 2 * rd, 2), cA2 if d else cA1, u * 8192 + rd * 1024) for rd in range(2)]
        return tr(0) + ["ds_read_b128 %s, v%d offset:%d" % (BF(u, t), cBx, (T0 + t) * 2048 + u * 256) for t in range(NRT)] + tr(1)
    def mfmas(u, first):
        return ["%s %s, %s, %s, %s" % (MF, ACC(t, d), vr(AF(u, d), 4), BF(u, t), "0" if first else ACC(t, d)) for d in range(2) for t in range(NRT)]
    stage_load(1)
    stamp(a, 1)
    def mix(ms, rs, ds=()):
        di = 0; ri = 0
        for k, x in enumerate(ms):
            a(x)
            for _ in range(2):
                if ri < len(rs): a(rs[ri]); ri += 1
            while di < len(ds) and di * len(ms) <= k * len(ds):
                a(ds[di][0], tag=ds[di][1]); di += 1
        for x, t in ds[di:]: a(x, tag=t)
    if ldr and OPT["hprio"]: a("s_setprio %d" % OPT["hprio"])
    for j in range(8):
        a.wait_vm_tag("h%d" % j)
        a("v_add_u32 v%d, %d, v%d\nv_add_u32 v%d, %d, v%d\nv_add_u32 v%d, %d, v%d" % (cA1, WB[j % 3], vA1, cA2, WB[j % 3], vA2, cBx, XB[j % 3], vBx))
        a("s_waitcnt lgkmcnt(0)")
        a("s_barrier")
        if j < 7: stamp(a, j + 1, hs=True)
        d = stage_ops(j + 2) if j + 2 < 8 else []
        cut = (len(d) + 1) // 2
        if j == 0:
            for x in reads(0): a(x)
            for x, t in d[:cut]: a(x, tag=t)
        else: mix(mfmas(1, False), reads(0), d[:cut])
        a("s_waitcnt lgkmcnt(0)")
        mix(mfmas(0, j == 0), reads(1), d[cut:])
        if not att and j == OPT["kv0"]: kv_tile(a, 0)
        if not att and j == OPT["kv1"] and j < 7: kv_tile(a, 1)
    for x in mfmas(1, False): a(x)
    a("s_and_b32 s60, s%d, 3\ns_lshl_b32 s60, s60, 10" % sW)
    a("v_lshlrev_b32 v%d, 4, v12\nv_add_u32 v%d, s60, v%d" % (cBx, cBx, cBx))
    a("v_add_u32 v%d, %d, v%d\nv_add_u32 v%d, %d, v%d" % (cA1, Q1A, cBx, cA2, Q1C, cBx))
    for t in range(NRT): q_pack(a, 16 + 8 * t, "v[238:239]")
    for t in range(NRT): q_swap(a, 16 + 8 * t)
    for t in range(NRT):
        tg = T0 + t
        a("ds_write_b128 v%d, %s offset:%d" % (cA1 if tg < 6 else cA2, vr(16 + 8 * t, 4), (tg if tg < 6 else tg - 6) * 4096))
    if ldr and OPT["hprio"]: a("s_setprio 0")
    if att:
        for r in list(range(vO, 112, 2)): a("v_mov_b64 %s, 0" % vr(r, 2))
    a("s_waitcnt lgkmcnt(0)")
    a("s_barrier")
    if not att and OPT["kv1"] >= 7: kv_tile(a, 1)
    stamp(a, 2)

def pair_signal(a):
    a("s_add_u32 s%d, s%d, 1" % (sBar, sBar))
    a("v_mov_b32 v%d, s%d" % (vT, sBar))
    a("ds_write_b32 v%d, v%d" % (vX3, vT))

def pair_wait(a, name, reads):
    a.label(name)
    a("ds_read_b32 v%d, v%d" % (vT, vX4))
    for x in reads: a(x)
    a("s_waitcnt lgkmcnt(%d)" % len(reads))
    a("v_readfirstlane_b32 s%d, v%d" % (sT, vT))
    a("s_cmp_ge_u32 s%d, s%d" % (sT, sBar))
    a("s_cbranch_scc1 %s_ok" % name)
    a("s_waitcnt lgkmcnt(0)")
    if OPT["sbs"]: a("s_sleep %d" % OPT["sbs"])
    a("s_branch %s" % name)
    a.label(name + "_ok")
    a("s_waitcnt lgkmcnt(0)")

def publish(a, name, t0):
    a("s_waitcnt vmcnt(0)")
    a("s_mov_b64 exec, 1")
    a("v_mov_b32 v%d, %d\nv_mov_b32 v%d, 1" % (t0 + 2, CNT, t0 + 1))
    a("ds_add_rtn_u32 v%d, v%d, v%d offset:4" % (t0, t0 + 2, t0 + 1))
    a("ds_read_b32 v%d, v%d offset:8" % (t0 + 1, t0 + 2))
    a("s_waitcnt lgkmcnt(0)")
    a("v_readfirstlane_b32 s%d, v%d" % (sT, t0))
    a("s_cmp_lg_u32 s%d, 5" % sT)
    a("s_cbranch_scc1 %s" % name)
    a("v_or_b32 v%d, 0x%x, v%d" % (t0 + 1, PHM, t0 + 1))
    a("s_lshl_b32 s%d, s%d, 2" % (sT2, sJJ))
    a("v_mov_b32 v%d, s%d" % (t0, sT2))
    a("buffer_store_dword v%d, v%d, %s, 0 offen sc1" % (t0 + 1, t0, SR(S_FL)))
    a.label(name)
    a("s_mov_b64 exec, -1")

def attention(a):
    NT = 3; TL = 2
    a("s_waitcnt vmcnt(0)")
    a("v_lshlrev_b32 v%d, 4, v12" % vX1)
    a("s_mul_i32 s%d, s%d, %d\ns_add_u32 s%d, s%d, %d" % (sT, sRho, 12 * KB, sT, sT, Q1A))
    a("s_cmp_eq_u32 s%d, 2\ns_cselect_b32 s%d, %d, s%d" % (sRho, sT, Q1C, sT))
    a("v_add_u32 v%d, s%d, v%d" % (vX2, sT, vX1))
    for t in range(3):
        for s in range(4): a("ds_read_b128 %s, v%d offset:%d" % (Q(t, s), vX2, t * 4096 + s * 1024))
    a("s_add_u32 s%d, s%d, 3\ns_cmp_ge_u32 s%d, 6\ns_cselect_b32 s%d, 6, 0\ns_sub_u32 s%d, s%d, s%d" % (sPart, sW, sPart, sT2, sPart, sPart, sT2))
    a("s_lshl_b32 s%d, s%d, 2\ns_add_u32 s%d, s%d, %d\ns_lshl_b32 s%d, s%d, 2\ns_add_u32 s%d, s%d, %d" % (sT, sW, sT, sT, PFL, sT2, sPart, sT2, sT2, PFL))
    a("v_mov_b32 v%d, s%d\nv_mov_b32 v%d, s%d" % (vX3, sT, vX4, sT2))
    for r in range(vF + 16, vF + 32, 2): a("v_mov_b64 %s, 0" % vr(r, 2))
    a("s_mov_b32 s%d, 0\ns_mov_b32 s%d, 0\ns_mov_b32 s%d, 2" % (sItem, sBar, sSlot))
    a("s_mul_i32 s%d, s%d, %d\ns_add_u32 s%d, s%d, %d" % (sExch, sRho, 12 * KB, sExch, sExch, Q2B))
    a("s_mov_b32 s%d, 0x%x\ns_mov_b32 s%d, %d" % (sNeg, (-2 * SLOT) & 0xffffffff, sPos, SLOT))
    a("s_lshl_b32 s%d, s%d, 3\ns_lshl_b32 s%d, s%d, 1\ns_add_u32 s%d, s%d, s%d\ns_mul_i32 s%d, s%d, 9" % (sT, sJJ, sT2, sKg, sT, sT, sT2, sT, sT))
    a("s_mul_i32 s%d, s%d, 3\ns_add_u32 s%d, s%d, s%d\ns_lshl_b32 s%d, s%d, 10\ns_add_u32 s%d, s%d, %d" % (sT2, sRho, sT, sT, sT2, sOoff, sT, sOoff, sOoff, 36 * KB))
    cstamp(a, 0)
    a("s_branch L_item1")
    a.label("L_item")
    for r in list(range(vO, vO + 96, 2)) + list(range(vL, vL + 24, 2)) + list(range(vS + 16, vS + 20, 2)):
        a("v_mov_b64 %s, 0" % vr(r, 2))
    a.label("L_item1")
    a("s_mov_b32 s%d, 0xff800000\ns_mov_b32 s%d, 0xff800000\ns_mov_b32 s%d, 0" % (sThr, sFl, sCnt))
    a("s_waitcnt lgkmcnt(0)")
    Ga, Gb, Gc = 0, 4, 8
    def kread(kt, s):
        slot = (Gc + s) if kt == 0 else (Gb + s)
        return "ds_read_b128 %s, v%d offset:%d" % (vr(F(slot), 4), vK, kt * 4096 + s * 256)
    def vslot(dt): return (Ga + dt) if dt < 4 else (Gb + dt - 4)
    def vread(dt, rd):
        return "ds_read_b64_tr_b16 %s, v%d offset:%d" % (vr(F(vslot(dt)) + 2 * rd, 2), vVb if dt & 1 else vVa, rd * 4096 + (dt >> 1) * 256)
    def pv(t, dt): return "%s %s, %s, %s, %s" % (MF, O(t, dt), vr(F(vslot(dt)), 4), S(t, 0), O(t, dt))
    def lsum(t): return "%s %s, %s, %s, %s" % (MF, L(t), vr(vONE, 4), S(t, 0), L(t))
    def qk(t, kt, s):
        slot = (Gc + s) if kt == 0 else (Gb + s)
        return "%s %s, %s, %s, %s" % (MF, S(t, kt), vr(F(slot), 4), Q(t, s), M(t) if s == 0 else S(t, kt))
    def sm(t):
        b = vS + 8 * t
        g = [["v_max3_f32 v%d, v%d, v%d, v%d" % (vT, b, b + 1, b + 2), "v_max3_f32 v%d, v%d, v%d, v%d" % (vT + 1, b + 3, b + 4, b + 5)],
             ["v_max3_f32 v%d, v%d, v%d, v%d" % (vT, vT, b + 6, b + 7), "v_max_f32 v%d, v%d, v%d" % (vT, vT, vT + 1)],
             ["v_cmp_lt_f32 vcc, s%d, v%d" % (sThr, vT)],
             ["s_cbranch_vccnz L_rare%d\nL_back%d:" % (t, t), "v_exp_f32 v%d, v%d" % (b, b)]]
        for r in range(1, 8): g.append(["v_exp_f32 v%d, v%d" % (b + r, b + r)])
        cv = ["v_cvt_pk_bf16_f32 v%d, v%d, v%d" % (b + r, b + 2 * r, b + 2 * r + 1) for r in range(4)]
        g.append(cv[:2]); g.append(cv[2:])
        return g
    a.raw(".p2align 6")
    a.label("L_loop")
    a("s_barrier")
    mf = []; fill = {}
    def put(idx, ops): fill.setdefault(idx, []).extend(ops)
    mf += [pv(TL, dt) for dt in (4, 5, 6, 7)] + [pv(TL, dt) for dt in (0, 1, 2, 3)] + [lsum(TL)]
    qk_end = {}
    for t in range(NT):
        for kt in ((0, 1) if t < TL else (1, 0)):
            mf += [qk(t, kt, s) for s in range(4)]
            if t == TL and kt == 1: v47_at = len(mf) - 1
        qk_end[t] = len(mf) - 1
    pv_start = {}
    for t in range(TL):
        pv_start[t] = len(mf)
        mf += [pv(t, dt) for dt in range(4)] + [lsum(t)] + [pv(t, dt) for dt in range(4, 8)]
    n = len(mf)
    pre = [kread(0, s) for s in range(4)]
    for s in range(4): put(s, [kread(1, s)])
    for dt in range(4): put(4 + dt, [vread(dt, 0), vread(dt, 1)])
    put(8, ["WAIT " + vr(F(Gc), 16)])
    put(9, ["s_add_u32 s%d, s%d, 1" % (sSlot, sSlot), "s_cmp_eq_u32 s%d, 3" % sSlot])
    put(10, ["s_cselect_b32 s%d, s%d, s%d" % (sDelta, sNeg, sPos), "s_cselect_b32 s%d, 0, s%d" % (sSlot, sSlot)])
    put(12, ["WAIT " + vr(F(Gb), 16), "v_add_u32 v%d, s%d, v%d" % (vK, sDelta, vK)])
    for dt in range(4, 8): put(v47_at - 3 + (dt - 4), [vread(dt, 0), vread(dt, 1)])
    groups = [(t, g) for t in range(NT) for g in sm(t)]
    lo = qk_end[0] + OPT["lo"]
    span = n - lo
    for k, (t, g) in enumerate(groups):
        idx = lo + (k * span) // len(groups)
        assert idx >= qk_end[t] + 2 and (t == TL or idx < pv_start[t]), (t, idx)
        put(idx, g)
    put(pv_start[0] - 1, ["WAIT " + vr(F(Ga), 16)])
    put(pv_start[0] + 4, ["WAIT " + vr(F(Gb), 16)])
    put(lo - 2, ["s_add_u32 s%d, s%d, 1" % (sCnt, sCnt)])
    for x in pre: a(x)
    for k, m in enumerate(mf):
        a(m)
        for x in fill.get(k, []): a(x)
    a("v_add_u32 v%d, s%d, v%d\nv_add_u32 v%d, s%d, v%d" % (vVa, sDelta, vVa, vVb, sDelta, vVb))
    a("s_mov_b32 s%d, %s\ns_mov_b32 s%d, 0" % (sThr, f32(THR), sFl))
    a("s_cmp_lt_u32 s%d, 16" % sCnt)
    a("s_cbranch_scc1 L_loop")
    if OPT["stamps"]:
        a("s_cmp_eq_u32 s%d, 0\ns_cbranch_scc0 L_st4" % sItem)
        stamp(a, 3); cstamp(a, 1)
        a("s_branch L_st4b")
        a.label("L_st4"); stamp(a, 4)
        a.label("L_st4b")
    a("s_cmp_eq_u32 s%d, 0" % sItem)
    a("s_cbranch_scc0 L_nomx")
    a("s_barrier")
    a("v_add_u32 v%d, s%d, v%d" % (vX2, sExch, vX1))
    for t in range(3):
        for s in range(4): a("ds_read_b128 %s, v%d offset:%d" % (Q(t, s), vX2, t * 4096 + s * 1024))
    pair_signal(a)
    a.label("L_nomx")
    a("s_lshl_b32 s%d, s%d, 12\ns_add_u32 s%d, s%d, %d" % (sT, sW, sT, sT, EX1))
    a("v_add_u32 v%d, s%d, v%d" % (vX2, sT, vX1))
    def send(t, areg, off):
        o = []
        for h in range(2):
            b = vO + 32 * t + 16 + 8 * h
            o += ["v_cvt_pk_bf16_f32 v%d, v%d, v%d" % (b + r, b + 2 * r, b + 2 * r + 1) for r in range(4)]
            o.append("ds_write_b128 v%d, %s offset:%d" % (areg, vr(b, 4), off + h * 1024))
        return o
    fin = [lsum(TL)] + [pv(TL, dt) for dt in (4, 5, 6, 7, 0, 1, 2, 3)]
    ex = send(0, vX2, 0) + send(1, vX2, 2048)
    for k, m in enumerate(fin):
        a(m)
        for x in ex[k * len(ex) // 9:(k + 1) * len(ex) // 9]: a(x)
    a("v_and_b32 v%d, 15, v0\nv_lshlrev_b32 v%d, 3, v%d" % (vT + 2, vT + 2, vT + 2))
    a("s_mul_i32 s%d, s%d, 384\ns_add_u32 s%d, s%d, %d" % (sT, sW, sT, sT, MLB))
    a("v_add_u32 v%d, s%d, v%d" % (vT + 3, sT, vT + 2))
    for t in range(3):
        a("v_mov_b32 v%d, v%d" % (vM + 4 * t + 1, vL + 4 * t))
        a("ds_write_b64 v%d, %s offset:%d" % (vT + 3, vr(vM + 4 * t, 2), t * 128))
    a("s_lshl_b32 s%d, s%d, 11\ns_add_u32 s%d, s%d, s%d" % (sT, sKg, sT, sT, sExch))
    a("v_add_u32 v%d, s%d, v%d" % (vX2, sT, vX1))
    a("s_waitcnt lgkmcnt(0)")
    pair_wait(a, "L_pw0", [])
    for x in send(2, vX2, 0): a(x)
    pair_signal(a)
    a("s_mul_i32 s%d, s%d, 384\ns_add_u32 s%d, s%d, %d" % (sT2, sPart, sT2, sT2, MLB))
    a("v_add_u32 v%d, s%d, v%d" % (vT + 3, sT2, vT + 2))
    a("v_xor_b32 v%d, 2048, v%d" % (vX2, vX2))
    a("s_lshl_b32 s%d, s%d, 12\ns_add_u32 s%d, s%d, %d" % (sT, sPart, sT, sT, EX1))
    a("v_add_u32 v%d, s%d, v%d" % (vT + 2, sT, vX1))
    a("s_waitcnt lgkmcnt(0)")
    rd = ["ds_read_b64 %s, v%d offset:%d" % (vr(vM + 4 * t + 2, 2), vT + 3, t * 128) for t in range(3)]
    for t in range(3):
        for h in range(2):
            rd.append("ds_read_b128 %s, v%d offset:%d" % (vr(vS + 8 * t + 4 * h, 4), vT + 2 if t < 2 else vX2, (t * 2048 if t < 2 else 0) + h * 1024))
    pair_wait(a, "L_pw", rd)
    for t in range(3):
        m = vM + 4 * t; l = vL + 4 * t
        a("v_min_f32 v%d, v%d, v%d" % (l, m, m + 2))
        a("v_sub_f32 v%d, v%d, v%d\nv_sub_f32 v%d, v%d, v%d" % (l + 1, l, m, l + 2, l, m + 2))
        a("v_exp_f32 v%d, v%d\nv_exp_f32 v%d, v%d" % (l + 1, l + 1, l + 2, l + 2))
        a("v_mul_f32 v%d, v%d, v%d" % (l + 3, l + 1, m + 1))
        a("v_fma_f32 v%d, v%d, v%d, v%d" % (l + 3, l + 2, m + 3, l + 3))
        a("v_rcp_f32 v%d, v%d" % (l, l + 3))
        a("v_mul_f32 v%d, v%d, v%d\nv_mul_f32 v%d, v%d, v%d" % (l + 3, l + 2, l, l + 2, l + 2, l))
        a("v_mul_f32 v%d, v%d, v%d\nv_mov_b32 v%d, v%d" % (l + 1, l + 1, l, l, l + 1))
    for t in range(3):
        l = vL + 4 * t
        for h in range(2):
            b = vO + 32 * t + 8 * h; u = b + 16; pk = vS + 8 * t + 4 * h
            for r in range(4):
                a("v_lshlrev_b32 v%d, 16, v%d\nv_and_b32 v%d, 0xffff0000, v%d" % (u + 2 * r, pk + r, u + 2 * r + 1, pk + r))
            for r in range(0, 8, 2): a("v_pk_mul_f32 %s, %s, %s" % (vr(b + r, 2), vr(b + r, 2), vr(l, 2)))
            for r in range(0, 8, 2): a("v_pk_fma_f32 %s, %s, %s, %s" % (vr(b + r, 2), vr(u + r, 2), vr(l + 2, 2), vr(b + r, 2)))
            for r in range(4): a("v_cvt_pk_bf16_f32 v%d, v%d, v%d" % (pk + r, b + 2 * r, b + 2 * r + 1))
    a("s_cmp_eq_u32 s%d, 0" % sItem)
    a("s_cbranch_scc0 L_att_done")
    for t in range(3):
        for h in range(2):
            a("ds_write_b128 v%d, %s offset:%d" % (vT + 2 if t < 2 else vX2, vr(vS + 8 * t + 4 * h, 4), (t * 2048 if t < 2 else 0) + h * 1024))
    a("s_mov_b32 s%d, 1\ns_lshl_b32 s%d, s%d, 12\ns_add_u32 s%d, s%d, %d" % (sItem, sExch, sRho, sExch, sExch, EX2))
    a("s_waitcnt lgkmcnt(0)")
    a("s_branch L_item")
    a.vm = []; a.lgkm = []
    for t in range(NT):
        b = vS + 8 * t
        a.label("L_rare%d" % t)
        a("s_nop 15")
        a("v_mov_b32 v%d, v%d" % (vT + 1, vT))
        a("v_permlane16_swap_b32 v%d, v%d" % (vT, vT + 1))
        a("v_max_f32 v%d, v%d, v%d" % (vT, vT, vT + 1))
        a("v_mov_b32 v%d, v%d" % (vT + 1, vT))
        a("v_permlane32_swap_b32 v%d, v%d" % (vT, vT + 1))
        a("v_max_f32 v%d, v%d, v%d" % (vT, vT, vT + 1))
        a("v_max_f32 v%d, s%d, v%d" % (vT, sFl, vT))
        for r in range(8): a("v_sub_f32 v%d, v%d, v%d" % (b + r, b + r, vT))
        for r in range(4): a("v_sub_f32 v%d, v%d, v%d" % (vM + 4 * t + r, vM + 4 * t + r, vT))
        a("s_cmp_lg_u32 s%d, 0" % sFl)
        a("s_cbranch_scc1 L_rare%d_x" % t)
        a("v_exp_f32 v%d, -v%d" % (vT + 1, vT))
        for r in range(4): a("v_mul_f32 v%d, v%d, v%d" % (vL + 4 * t + r, vL + 4 * t + r, vT + 1))
        for r in range(32): a("v_mul_f32 v%d, v%d, v%d" % (vO + 32 * t + r, vO + 32 * t + r, vT + 1))
        a.label("L_rare%d_x" % t)
        a("s_nop 3")
        a("s_branch L_back%d" % t)
    a.label("L_att_done")
    for t in range(3):
        for h in range(2):
            a("s_add_u32 s%d, s%d, %d" % (sT, sOoff, (h * 9 + t) * 1024))
            a("buffer_store_dwordx4 %s, v%d, %s, s%d offen%s" % (vr(vS + 8 * t + 4 * h, 4), vX1, SR(S_O), sT, POL[OPT["pols"]]))
    a("s_cmp_lt_u32 s%d, 2" % sW)
    a("s_cbranch_scc1 L_join")
    publish(a, "L_pub_x", vT)
    a("s_endpgm")
    a.label("L_join")
    a("v_mov_b32 v96, %d" % CNT)
    a("ds_read_b32 v97, v96 offset:12")
    a("s_mov_b32 s%d, s%d" % (sOpIdx, sW))
    a("s_lshl_b32 s%d, s%d, 14\ns_add_u32 s%d, s%d, %d" % (sBlkP, sW, sBlkP, sBlkP, 32 * KB))
    op_setup(a)
    a("v_readfirstlane_b32 s%d, v97" % sTag)
    a("s_or_b32 s%d, s%d, 0x%x" % (sWant, sTag, PHM))
    publish(a, "L_pub_y", 100)
    stamp(a, 5)
    a("s_cmp_eq_u32 s60, 0\ns_cbranch_scc1 L_op_a_idle\ns_branch L_op_b_idle")
    a.vm = []; a.lgkm = []

def aux_step(a, step, pre=None, extra=None):
    a.wait_vm_tag("t%d" % step)
    a("s_barrier")
    if OPT["sst"] >= 0 and step >= OPT["sst"] and (step - OPT["sst"]) % OPT["sstd"] == 0 and (step - OPT["sst"]) // OPT["sstd"] < 6:
        k_ = 1 + (step - OPT["sst"]) // OPT["sstd"]
        a("s_memrealtime s[%d:%d]" % (64 + 2 * k_, 65 + 2 * k_))
    if pre: pre()
    nxt = step + 2
    if nxt < 32 and nxt != 18: kv_tile(a, nxt)
    if extra: extra()

def aux(a):
    if OPT["auxprio"]: a("s_setprio %d" % OPT["auxprio"])
    a("v_lshlrev_b32 v%d, 2, v14" % vFo)
    a("s_lshl_b32 s%d, s%d, 4\nv_mov_b32 v%d, s%d" % (sT, sG, vDg, sT))
    a("s_lshl_b32 s%d, s%d, 4\nv_mov_b32 v%d, s%d\nv_cmp_eq_u32 vcc, 0, v12\nv_cndmask_b32 v%d, v%d, v%d, vcc" % (sT, sGo, vDg2, sT, vDg2, vDg2, vDg))
    a("s_sub_u32 s%d, s%d, 4" % (sOpIdx, sW))
    def ACC(t, d):
        i = t * 4 + d
        return 16 + 4 * i if i < 28 else 176 + 4 * (i - 28)
    BF = lambda t: vr(208 + 4 * t, 4)
    AF = lambda d: 156 + 4 * d
    sW2, sXq = 60, 61
    a("s_and_b32 s%d, s%d, 1" % (sT3, sW))
    a("v_lshrrev_b32 v9, 5, v12\nv_lshl_add_u32 v4, v15, 13, v4\nv_lshl_add_u32 v4, v9, 15, v4")
    a("s_lshl_b32 s%d, s%d, 9\ns_lshl_b32 s%d, s%d, 7\ns_add_u32 s%d, s%d, s%d\ns_add_u32 s%d, s%d, 256" % (sT, sJJ, sT2, sT3, sT, sT, sT2, sT, sT))
    a("v_add_u32 v4, s%d, v4" % sT)
    a("v_add_u32 v5, 64512, v4\nv_xor_b32 v5, 32, v5\nv_add_u32 v6, 129024, v4\nv_add_u32 v7, 129024, v5")
    a("s_mul_i32 s%d, s%d, %d\ns_add_u32 s%d, s%d, %d" % (sW2, sT3, 12 * KB, sW2, sW2, W2R))
    a("v_add_u32 v2, s%d, v2\nv_xor_b32 v3, 32, v2" % sW2)
    a("s_lshl_b32 s%d, s%d, 5\nv_xor_b32 v8, s%d, v8\nv_xor_b32 v9, 32, v8" % (sT, sT3, sT))
    a("s_mul_i32 s%d, s%d, 9" % (sXq, sT3))
    a("v_mov_b32 v10, %s\nv_mov_b32 v11, %s" % (f32(CSCALE), f32(CSCALE)))
    def chunk(m): a("s_add_u32 s%d, s%d, %d\ns_and_b32 s%d, s%d, 7" % (sT3, sRot, (6 + m) & 7, sT3, sT3))
    def w2_load(n):
        chunk(n // 2)
        a("s_lshl_b32 s%d, s%d, 19\ns_add_u32 s%d, s%d, %d\ns_add_u32 m0, s%d, %d" % (sT2, sT3, sT2, sT2, (n & 1) << 18, sW2, (n % 3) * 4096))
        for q in range(4):
            a("buffer_load_dwordx4 v%d, %s, s%d offen offset:%d%s lds" % (4 + q, SR(S_WQ), sT2, q * 1024, POL[OPT["polw"]]), tag="q%d" % n)
    def x2_load(m):
        chunk(m)
        a("s_lshl_b32 s%d, s%d, 7\ns_lshl_b32 s%d, s%d, 13\ns_add_u32 s%d, s%d, s%d\ns_lshl_b32 s63, s%d, 10" % (sT3, sT3, sT2, sXq, sT3, sT3, sT2, sXq))
        for e in range(9):
            a("s_add_u32 m0, s63, %d\ns_add_u32 s%d, s%d, %d" % (XB[m & 1] + e * 1024, sT2, sT3, e * 8192))
            a("buffer_load_dwordx4 v%d, %s, s%d offen%s lds" % (8 + (e & 1), SR(S_X), sT2, POL[OPT["polx"]]), tag="x%d" % m)
    def q2_step(n):
        a.wait_vm_tag("q%d" % n)
        for d in range(4):
            for rd in range(2):
                a("ds_read_b64_tr_b16 %s, v%d offset:%d" % (vr(AF(d) + 2 * rd, 2), 3 if d & 1 else 2, (n % 3) * 4096 + rd * 512 + (d >> 1) * 256))
        for t in range(9): a("ds_read_b128 %s, v1 offset:%d" % (BF(t), ((n // 2) & 1) * 18 * KB + t * 2048 + (n & 1) * 256))
        a("WAIT " + vr(AF(0), 16))
        if n + 3 < 16: w2_load(n + 3)
        a("s_waitcnt lgkmcnt(0)")
        for t in range(9):
            for d in range(4):
                c = vr(ACC(t, d), 4)
                a("%s %s, %s, %s, %s" % (MF, c, vr(AF(d), 4), BF(t), "0" if n == 0 else c))
    sched = {1: [0, 1], 2: [2, 3]}
    for s_ in range(3, 15): sched[s_] = [s_ + 1]
    def pre(step):
        if step == 0:
            for n in range(3): w2_load(n)
        if step == 2: x2_load(2)
        if 3 <= step <= 11 and step % 2 == 1: x2_load((step + 3) // 2)
        for n in sched.get(step, []): q2_step(n)
        if step == 15:
            a("s_and_b32 s%d, s%d, 1\ns_lshl_b32 s%d, s%d, 11\ns_add_u32 s%d, s%d, %d" % (sT, sW, sT, sT, sT, sT, Q2B))
            a("v_lshlrev_b32 v1, 4, v12\nv_add_u32 v2, s%d, v1" % sT)
            fr = [(t, h) for t in range(9) for h in range(2)]
            for t, h in fr[OPT["pk14"]:]: q_pack(a, ACC(t, 2 * h), "v[10:11]")
            for t, h in fr: q_swap(a, ACC(t, 2 * h))
            for t, h in fr: a("ds_write_b128 v2, %s offset:%d" % (vr(ACC(t, 2 * h), 4), t * 4096 + h * 1024))
        if step == 18:
            a("s_cmp_lg_u32 s%d, 6\ns_cbranch_scc1 L_nopub" % sW)
            a("s_lshl_b32 s%d, s%d, 2\nv_mov_b32 v%d, s%d\nv_mov_b32 v%d, s%d" % (sT, sJJ, vA_, sT, vB_, sTagA))
            keep = list(a.vm)
            a("buffer_store_dword v%d, v%d, %s, 0 offen sc1" % (vB_, vA_, SR(S_FL)))
            a.vm = keep
            a.label("L_nopub")
    def extra(step):
        if step == 0:
            a("buffer_load_dword v%d, v%d, %s, 0 offen sc1" % (vFl, vFo, SR(S_FL)), tag="fl")
        if step == 3:
            cstamp(a, 0)
            a("s_lshl_b32 s%d, s%d, 3\ns_add_u32 s%d, s%d, s%d\ns_cmp_lg_u32 s%d, 6\ns_cbranch_scc1 L_nolead" % (sT, sJJ, sT, sT, sW, sT))
            a("v_lshrrev_b32 v%d, v14, v%d\nv_and_b32 v%d, 1, v%d\nv_cmp_eq_u32 vcc, 0, v%d" % (vFl, vFl, vFl, vFl, vFl))
            a("s_nop 1")
            a("s_and_b32 s%d, vcc_lo, 0xffff\ns_or_b32 s%d, s%d, 0x80000000" % (sT, sT, sT))
            a("v_mov_b32 v%d, s%d" % (vFl, sT))
            keep = list(a.vm)
            a("buffer_store_dword v%d, v%d, %s, 0 offen sc1" % (vFl, vDg, SR(S_DBG)))
            a.vm = keep
            a.label("L_nolead")
        if step == 9:
            a("buffer_load_dword v%d, v%d, %s, 0 offen sc1" % (vFl, vDg2, SR(S_DBG)), tag="fl")
        if step == 12:
            cstamp(a, 1)
            keep = list(a.vm)
            a.label("L_tag")
            a("v_cmp_eq_u32 vcc, 0, v%d" % vFl)
            a("s_cbranch_vccz L_tag_ok")
            a("s_sleep 8")
            a("buffer_load_dword v%d, v%d, %s, 0 offen sc1" % (vFl, vDg2, SR(S_DBG)))
            a("s_waitcnt vmcnt(0)")
            a("s_branch L_tag")
            a.label("L_tag_ok")
            a.vm = keep
            a("v_readlane_b32 s%d, v%d, 0\nv_readlane_b32 s%d, v%d, 1" % (sTagA, vFl, sTag, vFl))
            a("v_min_u32 v%d, 1, v12\nv_lshlrev_b32 v%d, 2, v%d\nv_add_u32 v%d, %d, v%d" % (vA_, vA_, vA_, vA_, TAGW, vA_))
            a("ds_write_b32 v%d, v%d" % (vA_, vFl))
            a("s_mov_b32 s%d, 0x%x\nv_mov_b32 v%d, s%d\nv_mov_b32 v%d, %d" % (sC, (1 << (2 * (NIN + 1))) - 1, vB_, sC, vCl, CLAIM))
            a("ds_write_b32 v%d, v%d" % (vCl, vB_))
            a("s_or_b32 s%d, s%d, 0x%x" % (sWant, sTag, PHM))
            a("s_waitcnt lgkmcnt(0)")
        if step == 2: a.wait_vm_tag("x2")
        if step == 14:
            for t, h in [(t, h) for t in range(9) for h in range(2)][:OPT["pk14"]]: q_pack(a, ACC(t, 2 * h), "v[10:11]")
        if step == 15:
            a("s_waitcnt lgkmcnt(0)")
            a("s_barrier")
            kv_tile(a, 18)
        if step == 16:
            a("s_and_b32 s%d, s%d, 1" % (sT3, sW))
            a("s_mul_i32 s%d, s%d, %d\ns_add_u32 s%d, s%d, %d\nv_add_u32 v%d, s%d, v1" % (sT, sT3, 3 * 4096, sT, sT, EX1, vA_, sT))
            a("s_lshl_b32 s%d, s%d, 11\ns_add_u32 s%d, s%d, %d\nv_add_u32 v%d, s%d, v1" % (sT, sT3, sT, sT, Q2B, vB_, sT))
            fr = [(i, t, h) for i in range(3) for t in range(3) for h in range(2)]
            for n, (i, t, h) in enumerate(fr):
                if t < 2: a("ds_read_b128 %s, v%d offset:%d" % (vr(16 + 4 * n, 4), vA_, i * 4096 + t * 2048 + h * 1024))
                else: a("ds_read_b128 %s, v%d offset:%d" % (vr(16 + 4 * n, 4), vB_, i * 12 * KB + h * 1024))
            a("s_mul_i32 s%d, s%d, %d\ns_mul_i32 s%d, s%d, %d\ns_add_u32 s%d, s%d, %d\ns_sub_u32 s%d, s%d, s%d" % (sT2, sJJ, 8 * 9216, sT3, sT3, 2 * 9216, sT2, sT2, 2 * 9216, sT2, sT2, sT3))
            for n, (i, t, h) in enumerate(fr):
                a("s_add_u32 s%d, s%d, %d" % (sT, sT2, (h * 9 + 3 * i + t) * 1024))
                a("buffer_store_dwordx4 %s, v1, %s, s%d offen%s" % (vr(16 + 4 * n, 4), SR(S_O), sT, POL[OPT["pols"]]), tag="st")
            a("s_sub_u32 s%d, s%d, 6\ns_lshl_b32 s%d, s%d, 14\ns_add_u32 s%d, s%d, %d" % (sBlkP, sW, sBlkP, sBlkP, sBlkP, sBlkP, 96 * KB))
            op_setup(a)
        if step == 17: a.wait_vm_tag("st")
    for step in range(19):
        aux_step(a, step, pre=lambda: pre(step), extra=lambda: extra(step))
    a("s_cmp_eq_u32 s60, 0\ns_cbranch_scc0 L_op_b_aux")

def op_setup(a):
    lanes(a)
    a("v_lshlrev_b32 v1, 4, v12\nv_add_u32 v8, 4096, v1")
    a("v_lshrrev_b32 v9, 5, v12")
    a("v_and_b32 v4, 3, v12\nv_lshlrev_b32 v5, 1, v9\nv_xor_b32 v4, v4, v5\nv_lshlrev_b32 v4, 4, v4")
    a("v_and_b32 v5, 1, v13")
    a("v_lshl_add_u32 v4, v5, 6, v4\nv_lshl_add_u32 v4, v15, 10, v4\nv_lshl_add_u32 v4, v9, 12, v4")
    a("v_and_b32 v2, 3, v12\nv_lshlrev_b32 v2, 3, v2\nv_lshl_add_u32 v2, v15, 6, v2\nv_lshl_add_u32 v2, v5, 5, v2\nv_lshl_add_u32 v2, v13, 9, v2")
    a("v_add_u32 v2, s%d, v2\nv_xor_b32 v3, 32, v2" % sBlkP)
    a("v_xor_b32 v%d, 1, v5\nv_lshlrev_b32 v%d, 30, v%d" % (vOr, vOr, vOr))
    for q in range(1, 4): a("v_add_u32 v%d, %d, v4" % (4 + q, 7168 * q))
    for r in range(176, 256, 2): a("v_mov_b64 %s, 0" % vr(r, 2))
    a("s_lshr_b32 s60, s%d, 3\ns_and_b32 s61, s%d, 7" % (sJo, sJo))
    a("s_mul_i32 s%d, s60, 5120\ns_lshl_b32 s%d, s61, 7" % (sOb, sWb))
    a("s_and_b32 s%d, s%d, 7" % (sOutOff, sGo))
    a("s_mul_i32 s%d, s%d, 144\ns_mul_i32 s%d, s60, 80\ns_add_u32 s%d, s%d, s%d\ns_lshl_b32 s%d, s%d, 11" % (sOutOff, sOutOff, sT, sOutOff, sOutOff, sT, sOutOff, sOutOff))
    a("s_lshl_b32 s%d, s%d, 10\ns_add_u32 s%d, s%d, s%d\ns_add_u32 s%d, s%d, s%d" % (sT, sBlk, sOutOff, sOutOff, sT, sOutOff, sOutOff, sWb))
    a("s_lshl_b32 s%d, s%d, 5\ns_add_u32 s%d, s%d, s%d" % (sT, sOpIdx, sOutOff, sOutOff, sT))
    a("v_lshlrev_b32 v10, 11, v14\nv_lshl_add_u32 v10, v13, 3, v10")
    a("s_and_b32 s%d, s%d, 1\ns_lshl_b32 s%d, s%d, 1\ns_add_u32 s%d, s%d, s60\ns_lshl_b32 s%d, s%d, 2" % (sT, sGo, sT, sT, sT, sT, sT, sT))
    a("s_lshl_b32 s%d, s61, 1\ns_add_u32 s%d, s%d, s%d" % (sT2, sRm, sT, sT2))
    a("v_add_u32 v11, s%d, v14\nv_and_b32 v11, 15, v11\nv_lshlrev_b32 v11, 2, v11" % sRm)
    a("v_mov_b32 v%d, %d" % (vCl, CLAIM))
    a("s_mul_i32 s%d, s%d, %d\ns_add_u32 s90, s100, s%d\ns_addc_u32 s91, s101, 0" % (sT, sGo, 128 * 9216, sT))
    srd(a, S_OL, 90, 91, "%d" % (128 * 9216))
    a("s_lshl_b32 s%d, s%d, 8\ns_add_u32 s%d, s%d, 0x%x\ns_add_u32 s90, s100, s%d\ns_addc_u32 s91, s101, 0" % (sT, sGo, sT, sT, FLAG_OFF, sT))
    srd(a, S_FLL, 90, 91, "64")

def op_path(a, NR, role, vm0):
    lab = lambda s: "L_op_%s_%s" % (role, s)
    B = lambda k, t: vr(16 + ((k % 4) * 5 + t) * 4, 4)
    ACC = lambda t, ct: vr(176 + (t * 4 + ct) * 4, 4)
    G = NR + 4
    def offs(so, static=None):
        if static is not None:
            a("s_and_b32 s%d, s%d, 1\ns_add_u32 s%d, s%d, s%d\ns_add_u32 s%d, s%d, %d" % (sT, sW, sT, sT, sRm, sT, sT, 2 * static))
            a("s_and_b32 s%d, s%d, 15\ns_lshl_b32 s%d, s%d, 3" % (sT, sT, sT, sT))
        else:
            a("s_ff1_i32_b32 s%d, s%d" % (sT2, sBit))
            a("s_add_u32 s%d, s%d, s%d\ns_and_b32 s%d, s%d, 15\ns_lshl_b32 s%d, s%d, 3" % (sT, sT2, sRm, sT, sT, sT, sT))
            a("s_lshr_b32 s%d, s%d, 4\ns_lshl_b32 s%d, s%d, 2\ns_add_u32 s%d, s%d, s%d" % (sT2, sT2, sT2, sT2, sT, sT, sT2))
        a("s_mul_i32 s%d, s%d, 9216\ns_add_u32 s%d, s%d, s%d" % (so, sT, so, so, sOb))
        a("s_lshl_b32 s%d, s%d, 15\ns_add_u32 s%d, s%d, s%d" % (sWn, sT, sWn, sWn, sWb))
        if OPT["xo"]: a("s_mov_b32 s%d, s%d" % (so, sOb))
        if OPT["xw"]: a("s_mov_b32 s%d, s%d" % (sWn, sWb))
    def w_ops(n):
        k = n % 4
        o = ["s_add_u32 m0, s%d, %d" % (sBlkP, k * 4096), "s_add_u32 s%d, s%d, %d" % (sT2, sWn, k * 32768)]
        for q in range(4):
            o.append(("buffer_load_dwordx4 v%d, %s, s%d offen offset:%d%s lds" % (4 + q, SR(S_WO), sT2, q * 1024, POL[OPT["polwo"]]), "w%d" % n))
        return o
    def o_ops(n, so):
        k = n % 4
        o = ["s_add_u32 s%d, s%d, %d" % (sT3, so, k * 9216)]
        for t in range(NR):
            if t < 4: o.append(("buffer_load_dwordx4 %s, v1, %s, s%d offen offset:%d%s" % (B(k, t), SR(S_OL), sT3, t * 1024, POL[OPT["polo"]]), "o%d" % n))
            else: o.append(("buffer_load_dwordx4 %s, v8, %s, s%d offen%s" % (B(k, t), SR(S_OL), sT3, POL[OPT["polo"]]), "o%d" % n))
        return o
    def reads(n):
        k = n % 4; buf = 96 + 16 * (k & 1)
        return ["ds_read_b64_tr_b16 %s, v%d offset:%d" % (vr(buf + 4 * ct + 2 * rd, 2), 3 if ct & 1 else 2, k * 4096 + rd * 2048 + (ct >> 1) * 256)
                for ct in range(4) for rd in range(2)]
    def run(ops):
        for x in ops:
            a.autowait = False
            if isinstance(x, tuple): a(x[0], tag=x[1])
            else: a(x)
            a.autowait = True
    def wait_tags(*tags):
        need = None
        for k_, (t_, d_) in enumerate(a.vm):
            if t_ in tags: need = k_
        if need is not None: a("s_waitcnt vmcnt(%d)" % (len(a.vm) - 1 - need))
    FLOAD = "buffer_load_dword v9, v11, %s, 0 offen sc1" % SR(S_FLL)
    def ready():
        run(["v_or_b32 v9, v%d, v9" % vOr, "v_cmp_eq_u32 vcc, s%d, v9" % sWant, "s_nop 1", "s_mov_b32 s%d, vcc_lo" % sR])
        if OPT["nopoll"]: a("s_mov_b32 s%d, -1" % sR)
    def attempt():
        run(["s_sub_u32 s%d, 0, s%d" % (sT2, sT), "s_and_b32 s%d, s%d, s%d" % (sBit, sT, sT2),
             "v_mov_b32 v%d, s%d" % (vCb, sBit), "s_mov_b64 exec, 1", "ds_or_rtn_b32 v%d, v%d, v%d" % (vCr, vCl, vCb), "s_mov_b64 exec, -1"])
    def resolve(fail):
        run(["v_readfirstlane_b32 s%d, v%d" % (sT, vCr), "s_or_b32 s%d, s%d, s%d" % (sC, sC, sT), "s_or_b32 s%d, s%d, s%d" % (sC, sC, sBit),
             "s_and_b32 s%d, s%d, s%d" % (sT, sT, sBit), "s_cbranch_scc1 %s" % fail])
    def kstep(n, nxt, wait, hooks=False):
        k = n % 4
        wait()
        a("s_waitcnt lgkmcnt(0)")
        if hooks and k == 0:
            keep = list(a.vm)
            run(["s_cmp_eq_u32 s%d, -1" % sR, "s_cbranch_scc1 %s" % lab("nf"), FLOAD]); a.label(lab("nf"))
            a.vm = keep
        if hooks and k == 2: run(["ds_read_b32 v%d, v%d" % (vCr, vCl)])
        if hooks and k == 3:
            run(["s_cmp_eq_u32 s%d, -1" % sR, "s_cbranch_scc1 %s" % lab("nr")]); ready(); a.label(lab("nr"))
            run(["v_readfirstlane_b32 s%d, v%d" % (sT, vCr), "s_or_b32 s%d, s%d, s%d" % (sC, sC, sT), "s_andn2_b32 s%d, s%d, s%d" % (sT, sR, sC)])
            attempt()
        fillers = (reads(n + 1) if (nxt or k < 3) else []) + (w_ops(n + 4) if nxt else []) + (o_ops(n + 3, sOc) if k == 0 else (o_ops(n + 3, sOn) if nxt else []))
        buf = 96 + 16 * (k & 1)
        ms = ["%s %s, %s, %s, %s" % (MF, ACC(t, ct), vr(buf + 4 * ct, 4), B(k, t), ACC(t, ct)) for ct in range(4) for t in range(NR)]
        fi = 0
        for i, m in enumerate(ms):
            run([m])
            tgt = ((i + 1) * len(fillers) + len(ms) - 3) // (len(ms) - 2)
            while fi < min(tgt, len(fillers)):
                run([fillers[fi]]); fi += 1
        a.lgkm = []
        if k == 3 and nxt: a("s_mov_b32 s%d, s%d" % (sOc, sOn))
    a.vm = list(vm0)
    a.label(lab("aux"))
    s0 = OPT["s0"]; kp = [int(c) for c in OPT["kp"]]
    assert len(kp) == 32 - s0 and s0 >= 22
    cnt = [0]
    def pre(step):
        def f():
            if step == s0 - 3: offs(sOc, 0); run(w_ops(0) + w_ops(1))
            if step == s0 - 2:
                run([(FLOAD, "fl")])
                run(w_ops(2) + w_ops(3))
            if step == s0 - 1:
                wait_tags("fl")
                keep = list(a.vm)
                a.label(lab("f1"))
                ready()
                a("s_andn2_b32 s%d, s%d, s%d" % (sT, sC, sR))
                a("s_cbranch_scc0 %s" % lab("f1ok"))
                run(["s_sleep %d" % OPT["slp"], FLOAD, "s_waitcnt vmcnt(0)", "s_branch %s" % lab("f1")])
                a.label(lab("f1ok"))
                a.vm = keep
                run(o_ops(0, sOc) + o_ops(1, sOc) + o_ops(2, sOc))
                wait_tags("w0"); run(reads(0))
            if step == 31:
                if OPT["auxprio"]: a("s_setprio 0")
                run([(FLOAD, "fl")])
            if step >= s0:
                for _ in range(kp[step - s0]):
                    n = cnt[0]
                    if n % 4 == 0: offs(sOn, n // 4 + 1)
                    kstep(n, True, lambda: wait_tags("o%d" % n, "w%d" % (n + 1))); cnt[0] += 1
        return f
    for step in range(19, 32): aux_step(a, step, pre=pre(step))
    stamp(a, 3)
    wait_tags("fl")
    ready()
    a.vm = []
    a.label(lab("retry"))
    a("s_andn2_b32 s%d, s%d, s%d" % (sT, sR, sC))
    attempt()
    a.raw(".p2align 3")
    a.label(lab("top"))
    a("s_waitcnt lgkmcnt(0)")
    a("s_cmp_eq_u32 s%d, 0\ns_cbranch_scc1 %s" % (sBit, lab("last")))
    resolve(lab("retry"))
    offs(sOn)
    for k in range(4): kstep(k, True, lambda: a("s_waitcnt vmcnt(%d)" % (2 * G)), hooks=True)
    a("s_branch %s" % lab("top"))
    a.label(lab("last"))
    for k in range(4): kstep(k, False, lambda: a("s_waitcnt vmcnt(%d)" % [2 * G, G + NR, NR, 0][k]))
    a.vm = []
    a.label(lab("idle"))
    run([FLOAD, "ds_read_b32 v%d, v%d" % (vCr, vCl), "s_waitcnt vmcnt(0) lgkmcnt(0)", "v_readfirstlane_b32 s%d, v%d" % (sC, vCr)])
    ready()
    a.label(lab("idle2"))
    a("s_cmp_eq_u32 s%d, -1\ns_cbranch_scc1 %s" % (sC, lab("done")))
    a("s_not_b32 s%d, s%d\ns_and_b32 s%d, s%d, s%d" % (sT2, sC, sT, sR, sT2))
    a("s_cbranch_scc1 %s" % lab("cl"))
    a("s_bcnt1_i32_b32 s%d, s%d\ns_mov_b32 s%d, s%d\ns_cmp_le_u32 s%d, %d\ns_cbranch_scc1 %s" % (sT3, sT2, sT, sT2, sT3, OPT["park"], lab("cl")))
    a("s_sleep %d\ns_branch %s" % (OPT["slp"], lab("idle")))
    a.label(lab("cl"))
    attempt()
    a("s_waitcnt lgkmcnt(0)")
    resolve(lab("idle2"))
    offs(sOc)
    run(w_ops(0) + w_ops(1) + w_ops(2) + w_ops(3))
    a.label(lab("park"))
    a("s_and_b32 s%d, s%d, s%d\ns_cbranch_scc1 %s" % (sT, sR, sBit, lab("go")))
    run(["s_sleep %d" % OPT["slp"], FLOAD, "s_waitcnt vmcnt(0)"])
    ready()
    a("s_branch %s" % lab("park"))
    a.label(lab("go"))
    stamp(a, 6)
    run(o_ops(0, sOc) + o_ops(1, sOc) + o_ops(2, sOc))
    a("s_waitcnt vmcnt(%d)" % (3 * NR))
    run(reads(0))
    a("s_waitcnt vmcnt(0)")
    a("s_branch %s" % lab("retry"))
    a.label(lab("done"))
    a.vm = []; a.lgkm = []
    stamp(a, 1)
    a("s_barrier")
    a("s_mul_i32 s%d, s%d, %d" % (sT, sOpIdx, 20 * KB))
    a("v_add_u32 v9, s%d, v1" % sT)
    for i in range(NR * 4): a("ds_write_b128 v9, %s offset:%d" % (vr(176 + i * 4, 4), i * 1024))
    a("s_lshl_b32 s%d, s%d, 10" % (sT, sOpIdx))
    a("v_add_u32 v9, s%d, v1\nv_add_u32 v8, %d, v9" % (sT, 40 * KB))
    a("s_waitcnt lgkmcnt(0)")
    a("s_barrier")
    for t in range(NR):
        for w in range(4):
            a("ds_read_b128 %s, v%d offset:%d" % (vr(16 + (t * 4 + w) * 4, 4), 9 if w < 2 else 8, (w & 1) * 20 * KB + t * 4096))
    for t in range(NR):
        b = 16 + t * 16
        for r in range(0, 4, 2):
            a("v_pk_add_f32 %s, %s, %s" % (vr(b + r, 2), vr(b + r, 2), vr(b + 4 + r, 2)))
            a("v_pk_add_f32 %s, %s, %s" % (vr(b + 8 + r, 2), vr(b + 8 + r, 2), vr(b + 12 + r, 2)))
            a("v_pk_add_f32 %s, %s, %s" % (vr(b + r, 2), vr(b + r, 2), vr(b + 8 + r, 2)))
        a("v_cvt_pk_bf16_f32 v%d, v%d, v%d\nv_cvt_pk_bf16_f32 v%d, v%d, v%d" % (b, b, b + 1, b + 1, b + 2, b + 3))
        a("s_add_u32 s%d, s%d, %d" % (sT, sOutOff, t * 32768))
        a("buffer_store_dwordx2 %s, v10, %s, s%d offen" % (vr(b, 2), SR(S_OUT), sT))
    if OPT["stamps"]:
        a("s_waitcnt vmcnt(0)")
        stamp(a, 7)
        stamp_store(a)
    a("s_endpgm")
    a.vm = []; a.lgkm = []

def kernel():
    a = Asm()
    a.raw(".globl %s\n.p2align 8\n.type %s,@function" % (NAME, NAME)); a.label(NAME)
    a("s_cmp_ge_u32 s2, 256\ns_cbranch_scc1 L_end")
    if OPT["stamps"]:
        for k in range(NST): a("s_memrealtime s[%d:%d]" % (64 + 2 * k, 65 + 2 * k))
    a("s_and_b32 s%d, s2, 7\ns_lshr_b32 s%d, s2, 3\ns_lshr_b32 s%d, s%d, 2" % (sT, sT2, sBlk, sT))
    a("s_mul_i32 s%d, s%d, 40" % (sT3, sBlk))
    a("s_add_u32 s4, s0, s%d\ns_addc_u32 s5, s1, 0" % sT3)
    a("s_load_dwordx8 s[80:87], s[4:5], 0")
    a("s_load_dwordx2 s[88:89], s[4:5], 32")
    a("s_load_dwordx4 s[96:99], s[0:1], 80")
    a("s_load_dwordx2 s[92:93], s[0:1], 96")
    a("s_lshr_b32 s%d, s%d, 4\ns_lshl_b32 s%d, s%d, 1\ns_add_u32 s%d, s%d, s%d" % (sGo, sT2, sT3, sT, sGo, sGo, sT3))
    a("s_and_b32 s%d, s%d, 15" % (sJo, sT2))
    if OPT["map"] == 0:
        a("s_mov_b32 s%d, s%d\ns_mov_b32 s%d, s%d\ns_and_b32 s%d, s%d, 7" % (sG, sGo, sJJ, sJo, sB, sGo))
        a("s_and_b32 s%d, s%d, 1\ns_lshl_b32 s%d, s%d, 2\ns_add_u32 s%d, s%d, s%d" % (sRot, sG, sRot, sRot, sRot, sRot, sJJ))
    elif OPT["map"] == 1:
        a("s_and_b32 s%d, s%d, 7\ns_and_b32 s%d, s%d, 1\ns_lshl_b32 s%d, s%d, 3\ns_add_u32 s%d, s%d, s%d" % (sRot, sT2, sJJ, sT, sJJ, sJJ, sJJ, sJJ, sRot))
        a("s_lshr_b32 s%d, s%d, 3\ns_lshl_b32 s%d, s%d, 1\ns_add_u32 s%d, s%d, s%d" % (sB, sT2, sT3, sB, sRot, sRot, sT3))
        a("s_and_b32 s%d, s%d, 2\ns_lshl_b32 s%d, s%d, 1\ns_add_u32 s%d, s%d, s%d" % (sT3, sT, sT3, sT3, sB, sB, sT3))
        a("s_lshl_b32 s%d, s%d, 3\ns_add_u32 s%d, s%d, s%d" % (sG, sBlk, sG, sG, sB))
    else:
        a("s_and_b32 s%d, s%d, 3\ns_and_b32 s%d, s%d, 3\ns_lshl_b32 s%d, s%d, 2\ns_add_u32 s%d, s%d, s%d" % (sRot, sT2, sJJ, sT, sJJ, sJJ, sJJ, sJJ, sRot))
        a("s_lshr_b32 s%d, s%d, 2\ns_lshl_b32 s%d, s%d, 1\ns_add_u32 s%d, s%d, s%d" % (sB, sT2, sRot, sRot, sRot, sRot, sB))
        a("s_lshl_b32 s%d, s%d, 3\ns_add_u32 s%d, s%d, s%d" % (sG, sBlk, sG, sG, sB))
    a("s_getpc_b64 s[60:61]")
    a.label("L_pf")
    a("v_lshlrev_b32 v12, 7, v0")
    a.items.append(a._mk("v_min_u32 v12, 0x1234, v12")); a.items[-1].text = "v_min_u32 v12, L_end-L_pf, v12"
    a("global_load_dword v253, v12, s[60:61]")
    a("v_lshrrev_b32 v12, 6, v0")
    a("v_readfirstlane_b32 s%d, v12" % sW)
    a("s_mul_i32 s62, s%d, 147456" % sB)
    a("s_cmp_ge_u32 s%d, 6\ns_cbranch_scc1 L_auxrole" % sW)
    st = (list(a.lgkm), list(a.vm))
    a("s_cmp_ge_u32 s%d, 4\ns_cbranch_scc1 L_brole" % sW)
    head(a, "A")
    a("s_branch L_att")
    a.lgkm, a.vm = list(st[0]), list(st[1])
    a.raw(".p2align 3"); a.label("L_brole")
    head(a, "B")
    a.label("L_att")
    attention(a)
    a.lgkm, a.vm = list(st[0]), list(st[1])
    a.raw(".p2align 3"); a.label("L_auxrole")
    head(a, "X")
    aux(a)
    vm0 = list(a.vm)
    op_path(a, 5, "a", vm0)
    op_path(a, 4, "b", vm0)
    a.label("L_end"); a("s_endpgm")
    a.pad_hazards()
    a.check_backedge("L_loop", "s_cbranch_scc1 L_loop")
    a.align8()
    return a.text()

out = []
out.append("; " + " ".join(sys.argv[1:]) + " : fused Q-projection + attention + O-projection, one launch (generated by dev/gen8.py)")
out.append("; @launch grid=(256,1,1) block=(512,1,1) lds=163840")
out.append('.amdgcn_target "amdgcn-amd-amdhsa--gfx950"\n.text')
out.append(kernel())
out.append('.section .rodata,"a"\n.p2align 6')
out.append(""".amdhsa_kernel %s
  .amdhsa_next_free_vgpr 256
  .amdhsa_next_free_sgpr 102
  .amdhsa_accum_offset 256
  .amdhsa_group_segment_fixed_size 0
  .amdhsa_kernarg_size 104
  .amdhsa_user_sgpr_count 2
  .amdhsa_user_sgpr_kernarg_segment_ptr 1
  .amdhsa_system_sgpr_workgroup_id_x 1
.end_amdhsa_kernel
""" % NAME)
print("\n".join(out))
```

```python
import sys, math, struct
sys.path.insert(0, "dev")
from asmlib import *

OPT = dict(stamps=0, samekv=0, clk=0, hst=0, ast=0, dbgst=0, nopoll=0, polo=2, polw=0, polx=0, polwo=2, pols=2,
           polkv=1, norot=0, xrot=1, nopf=0, hnl=0, hnc=0, slp=4, lo=2, auxprio=0, sbs=1,
           s0=22, kp="3333333322", rotw=1, sst=-1, sstd=1, polf=2, lowp=1, pols2=2, cbr=0, xo=0, xw=0, th=3, t1=-1, map=2, ths=4, park=2, t3a=-1, t3b=-1, pack=0, packfail=0, hpre=1, hmix=0)
for a_ in sys.argv[1:]:
    k, v = a_.split("="); assert k in OPT, k; OPT[k] = v if k == "kp" else int(v)

NAME = "concat_heads__mha_block_cached__gqa_block_cached__near_ridge_kernel"
def f32(x): return "0x%08x" % struct.unpack("<I", struct.pack("<f", x))[0]
CSCALE = math.log2(math.e) / math.sqrt(128.0)
THR = 8.0
KB = 1024
SLOT = 32 * KB
HB = [0, 51200, 102400]
Q2B = 96 * KB; Q1A = 132 * KB; Q1C = 32 * KB; EX2 = 80 * KB
MLB = 156 * KB; CNT = 160 * KB - 128; PFL = CNT + 32
STAMP_OFF = 0x10000000
FLAG_OFF = 0x2000000
TAGW = CNT + 8
OOB = 0x40000000
PH1 = 0x20000000; PH2 = 0x40000000; PHM = 0x60000000
PK_OFF = 0x3000000
S_TMP = 88
sWsh, sWs1, sWs2, sWs3, sCbs = 86, 45, 58, 53, 54
S_OL, S_FLL = 8, 12
sGo, sJo, sTagA = 94, 95, 87
MF = "v_mfma_f32_16x16x32_bf16"
NST = 8
NIN = sum(int(c) for c in OPT["kp"]) // 4
assert NIN * 4 == sum(int(c) for c in OPT["kp"]) and NIN <= 7
POL = ["", " nt", " sc1", " sc0 sc1", " sc1 nt"]

S_WQ, S_X, S_O, S_KV, S_WO, S_OUT, S_DBG, S_FL = 8, 12, 16, 20, 24, 28, 32, 4
sW, sG, sJJ, sBlk, sB, sRot, sT, sT2, sT3 = 36, 37, 38, 39, 40, 41, 42, 43, 44
sCnt, sThr, sFl, sSlot, sDelta, sItem, sPub, sBar, sExch, sOoff = 45, 46, 47, 48, 49, 50, 51, 52, 53, 54
sNeg, sPos, sPart, sKg, sRho = 55, 56, 57, 59, 62
sOc, sOn, sWn, sBlkP, sRm, sR, sC, sBit = 46, 47, 48, 49, 51, 55, 56, 52
CLAIM = CNT + 16
HEAD_FIN = [None]
sOb, sWb, sOutOff, sOpIdx, sTag, sWant, sEnd2 = 80, 81, 82, 83, 84, 85, 86

def srd(a, d, lo, hi, nrec):
    a("s_mov_b32 s%d, s%d\ns_mov_b32 s%d, s%d" % (d, lo, d + 1, hi))
    a("s_mov_b32 s%d, %s\ns_mov_b32 s%d, 0x20000" % (d + 2, nrec, d + 3))
def SR(d): return "s[%d:%d]" % (d, d + 3)

def astamp(a, k):
    if OPT["ast"] == 1: a("s_memrealtime s[%d:%d]" % (64 + 2 * k, 65 + 2 * k))
def cstamp(a, e):
    if OPT["clk"]:
        a("s_memtime s[%d:%d]\ns_memrealtime s[%d:%d]" % (66 + 2 * e, 67 + 2 * e, 70 + 2 * e, 71 + 2 * e))
def stamp(a, k, clk=False, hs=False):
    if OPT["clk"] and 1 <= k <= 4: return
    if (OPT["ast"] or OPT["sst"] >= 0) and k and k != 7: return
    if OPT["hst"] and k and not hs: return
    if hs and not OPT["hst"]: return
    if OPT["stamps"]:
        a("%s s[%d:%d]" % ("s_memtime" if clk else "s_memrealtime", 64 + 2 * k, 65 + 2 * k))

def stamp_store(a):
    if not OPT["stamps"]: return
    a("s_waitcnt vmcnt(0) lgkmcnt(0)")
    a("s_cmp_eq_u32 s%d, 6\ns_cselect_b32 s%d, 256, 0" % (sW, sT))
    a("s_mul_i32 s%d, s%d, 43\ns_lshr_b32 s%d, s%d, 8\ns_mul_i32 s%d, s%d, 6" % (sT2, sW, sT2, sT2, sT2, sT2))
    a("s_cmp_lg_u32 s%d, s%d\ns_cbranch_scc1 L_end" % (sT2, sW))
    if OPT["dbgst"]:
        a("s_cmp_lg_u32 s%d, 0\ns_cbranch_scc1 L_end" % sW)
        a("s_mov_b64 exec, 1\nv_mov_b32 v12, 0")
        words = [1, 2, 3, 5, 6, 7, 9, 10]
        for k in range(NST):
            a("v_mov_b32 v14, s%d" % (64 + 2 * k))
            a("buffer_atomic_umax v14, v12, %s, 0 offen offset:%d" % (SR(S_DBG), 4 * words[k]))
            a("s_nop 1")
        a("s_not_b32 s64, s64\nv_mov_b32 v14, s64")
        a("buffer_atomic_umax v14, v12, %s, 0 offen offset:44" % SR(S_DBG))
        a("s_not_b32 s78, s78\nv_mov_b32 v15, s78")
        a("buffer_atomic_umax v15, v12, %s, 0 offen offset:52" % SR(S_DBG))
        return
    a("s_add_u32 s96, s100, 0x%x\ns_addc_u32 s97, s101, 0" % STAMP_OFF)
    a("s_mov_b32 s98, 0x100000\ns_mov_b32 s99, 0x20000")
    a("s_add_u32 s3, s2, s%d\ns_mul_i32 s3, s3, %d" % (sT, NST * 8))
    a("v_mov_b32 v12, s3")
    a("s_mov_b64 exec, 1")
    for k in range(NST):
        a("v_mov_b32 v14, s%d\nv_mov_b32 v15, s%d" % (64 + 2 * k, 65 + 2 * k))
        a("buffer_store_dwordx2 v[14:15], v12, s[96:99], 0 offen offset:%d" % (8 * k))
        a("s_nop 1")

def lanes(a):
    a("v_and_b32 v12, 63, v0")
    a("v_lshrrev_b32 v13, 4, v12")
    a("v_and_b32 v14, 15, v12")
    a("v_bfe_u32 v15, v12, 2, 2")

vK, vVa, vVb = 1, 2, 3
vX1, vX2, vX3, vX4 = 4, 5, 6, 7
vONE, vT, vQ, vO, vL, vM, vS, vF = 8, 12, 16, 64, 160, 172, 184, 208
def Q(t, s): return vr(vQ + 16 * t + 4 * s, 4)
def O(t, dt): return vr(vO + 32 * t + 4 * dt, 4)
def L(t): return vr(vL + 4 * t, 4)
def M(t): return vr(vM + 4 * t, 4)
def S(t, kt): return vr(vS + 8 * t + 4 * kt, 4)
def F(i): return vF + 4 * i
vD = 240

def kv_tile(a, dreg, tile):
    slot = (tile + 2) % 3
    for grp in range(4):
        a("s_add_u32 m0, s%d, %d" % (sKg, slot * SLOT + grp * 4096))
        a("s_mov_b32 s%d, %d" % (sT, tile * 16384 + grp * 4096))
        for q in range(4):
            a("buffer_load_dwordx4 v%d, %s, s%d offen offset:%d%s lds" % (dreg + q + (4 if grp >= 2 else 0), SR(S_KV), sT, q * 1024, POL[OPT["polkv"]]), tag="t%d" % tile)

def srds_first(a):
    a("s_waitcnt lgkmcnt(0)")
    srd(a, S_WQ, 86, 87, "%d" % (512 * 8192))
    a("s_add_u32 s80, s80, s62\ns_addc_u32 s81, s81, 0")
    srd(a, S_X, 80, 81, "147456")

def srds_rest(a):
    a("s_mul_i32 s%d, s%d, %d\ns_add_u32 s90, s92, s%d\ns_addc_u32 s91, s93, 0" % (sT, sG, 128 * 9216, sT))
    srd(a, S_O, 90, 91, "%d" % (128 * 9216))
    a("s_cmp_eq_u32 s%d, 6\ns_cselect_b32 s82, s82, s84\ns_cselect_b32 s83, s83, s85" % sW)
    a("s_lshl_b32 s%d, s%d, 4\ns_add_u32 s%d, s%d, s%d" % (sT, sB, sT, sT, sJJ))
    if OPT["samekv"]: a("s_mov_b32 s%d, 0" % sT)
    a("s_lshl_b32 s%d, s%d, 19" % (sT, sT))
    a("s_add_u32 s82, s82, s%d\ns_addc_u32 s83, s83, 0" % sT)
    srd(a, S_KV, 82, 83, "524288")
    srd(a, S_WO, 88, 89, "%d" % (4096 * 1024))
    srd(a, S_OUT, 96, 97, "%d" % (8 * 144 * 1024 * 2))
    srd(a, S_DBG, 98, 99, "256")
    a("s_lshl_b32 s%d, s%d, 8\ns_add_u32 s%d, s%d, 0x%x\ns_add_u32 s90, s92, s%d\ns_addc_u32 s91, s93, 0" % (sT, sG, sT, sT, FLAG_OFF, sT))
    srd(a, S_FL, 90, 91, "64")
    a("s_mov_b32 s100, s92\ns_mov_b32 s101, s93")
    a("s_cmp_ge_u32 s%d, 3\ns_cselect_b32 s%d, 1, 0\ns_mul_i32 s%d, s%d, 3\ns_sub_u32 s%d, s%d, s%d" % (sW, sKg, sT, sKg, sRho, sW, sT))
    a("v_and_b32 v236, 31, v0\nv_lshlrev_b32 v236, 2, v236\nv_add_u32 v236, %d, v236\nv_mov_b32 v234, 0" % CNT)
    a("ds_write_b32 v236, v234")

def head(a, role):
    att = role != "X"; ldr = role != "A"
    NRT = 4 if ldr else 5; T0 = 5 if ldr else 0
    vHW, vHX = 224, 248
    vA1, vA2, vBx = 231, 232, 233
    cA1, cA2, cBx = 234, 235, 236
    ACC = lambda t, d: vr(16 + 16 * t + 4 * d, 4)
    BF = lambda u, t: vr(96 + 20 * u + 4 * t, 4)
    AF = lambda u, d: 164 + 16 * u + 4 * d
    NX = 5 if att else 4
    lanes(a)
    a("s_and_b32 s60, s%d, 3" % sW)
    a("v_and_b32 v%d, 3, v12\nv_lshlrev_b32 v%d, 4, v%d" % (vHX, vHX, vHX))
    a("v_lshl_add_u32 v%d, v13, 6, v%d" % (vHW, vHX))
    if not att: a("v_lshl_add_u32 v%d, v15, 8, v%d" % (vD, vHW))
    a("v_lshl_add_u32 v%d, v15, 13, v%d" % (vHW, vHW))
    a("s_lshl_b32 s%d, s60, 17\ns_lshl_b32 s%d, s%d, 9\ns_add_u32 s%d, s%d, s%d" % (sT, sT2, sJJ, sT, sT, sT2))
    a("v_add_u32 v%d, s%d, v%d" % (vHW, sT, vHW))
    a("v_add_u32 v%d, %d, v%d" % (vHW + 1, 31744, vHW))
    a("v_add_u32 v%d, %d, v%d\nv_xor_b32 v%d, 32, v%d" % (vHW + 2, 2 * 31744, vHW, vHW + 2, vHW + 2))
    a("v_add_u32 v%d, %d, v%d" % (vHW + 3, 31744, vHW + 2))
    a("s_lshl_b32 s63, s60, 12")
    a("s_mul_i32 s61, s60, %d" % NX)
    if not att: a("s_add_u32 s61, s61, 2")
    a("v_and_b32 v%d, 1, v13\nv_lshl_add_u32 v%d, v%d, 6, v%d" % (vA1, vHX, vA1, vHX))
    a("v_lshl_add_u32 v%d, v15, 10, v%d" % (vHX, vHX))
    a("v_lshrrev_b32 v%d, 5, v12\nv_lshl_add_u32 v%d, v%d, 12, v%d" % (vA1, vHX, vA1, vHX))
    a("s_lshl_b32 s%d, s61, 13\ns_and_b32 s%d, s61, 1\ns_lshl_b32 s%d, s%d, 5" % (sT, sT2, sT2, sT2))
    a("v_add_u32 v%d, s%d, v%d\nv_xor_b32 v%d, s%d, v%d" % (vHX, sT, vHX, vHX, sT2, vHX))
    a("v_add_u32 v%d, 7168, v%d\nv_xor_b32 v%d, 32, v%d" % (vHX + 1, vHX, vHX + 1, vHX + 1))
    a("v_add_u32 v%d, 14336, v%d\nv_add_u32 v%d, 14336, v%d" % (vHX + 2, vHX, vHX + 3, vHX + 1))
    if att: a("v_add_u32 v%d, 32768, v%d" % (vHX + 4, vHX))
    a("s_lshl_b32 s61, s61, 10")
    def stage_load(j):
        buf = HB[(-j) % 3]
        if not ldr: return
        a("s_add_u32 s%d, s%d, %d\ns_and_b32 s%d, s%d, 7" % (sT2, sRot, j, sT2, sT2))
        a("s_lshl_b32 s%d, s%d, 7" % (sT, sT2))
        a("s_add_u32 m0, s61, %d" % (buf + 32768))
        for e in range(NX):
            if e == 4: a("s_add_u32 m0, s61, %d" % (buf + 32768 + 4096))
            a("buffer_load_dwordx4 v%d, %s, s%d offen offset:%d%s lds" % (vHX + e, SR(S_X), sT, (e & 3) * 1024, POL[OPT["polx"]]), tag="h%d" % j)
        a("s_lshl_b32 s%d, s%d, 19" % (sT, sT2))
        for hp in range(2):
            a("s_add_u32 m0, s63, %d" % (buf + hp * 16384))
            if hp: a("s_add_u32 s%d, s%d, 256" % (sT, sT))
            for qq in range(4):
                a("buffer_load_dwordx4 v%d, %s, s%d offen offset:%d%s lds" % (vHW + qq, SR(S_WQ), sT, qq * 1024, POL[OPT["polw"]]), tag="h%d" % j)
    srds_first(a)
    stage_load(0)
    srds_rest(a)
    a("v_and_b32 v%d, 3, v12\nv_lshlrev_b32 v%d, 3, v%d" % (vA1, vA1, vA1))
    a("v_lshl_add_u32 v%d, v15, 6, v%d" % (vA1, vA1))
    a("v_and_b32 v%d, 1, v13\nv_lshl_add_u32 v%d, v%d, 5, v%d" % (vA2, vA1, vA2, vA1))
    if att:
        a("v_lshl_add_u32 v%d, v13, 10, v%d" % (vVa, vA1))
    a("v_lshl_add_u32 v%d, v13, 11, v%d" % (vA1, vA1))
    a("s_and_b32 s%d, s%d, 2\ns_lshl_b32 s%d, s%d, 13\ns_and_b32 s%d, s%d, 1\ns_lshl_b32 s%d, s%d, 9\ns_add_u32 s%d, s%d, s%d" % (sT, sW, sT, sT, sT2, sW, sT2, sT2, sT, sT, sT2))
    a("v_add_u32 v%d, s%d, v%d" % (vA1, sT, vA1))
    a("v_xor_b32 v%d, 32, v%d" % (vA2, vA1))
    a("v_lshrrev_b32 v%d, 3, v14\nv_lshlrev_b32 v%d, 1, v%d\nv_xor_b32 v%d, v%d, v13\nv_lshlrev_b32 v%d, 4, v%d" % (vBx, vBx, vBx, vBx, vBx, vBx, vBx))
    a("v_and_b32 v%d, 3, v14\nv_lshl_add_u32 v%d, v%d, 6, v%d" % (cBx, vBx, cBx, vBx))
    a("v_lshl_add_u32 v%d, v15, 9, v%d" % (vBx, vBx))
    a("v_add_u32 v%d, %d, v%d" % (vBx, 32768 + T0 * 2048, vBx))
    if att:
        a("s_lshl_b32 s%d, s%d, 13\ns_add_u32 s%d, s%d, %d" % (sT, sKg, sT, sT, 2 * SLOT))
        a("v_add_u32 v%d, s%d, v%d\nv_add_u32 v%d, 16384, v%d\nv_xor_b32 v%d, 32, v%d" % (vVa, sT, vVa, vVa, vVa, vVb, vVa))
        a("v_lshlrev_b32 v%d, 10, v15" % vK)
        a("v_lshl_add_u32 v%d, v%d, 6, v%d" % (vK, cBx, vK))
        a("v_lshrrev_b32 v%d, 1, v13\nv_and_b32 v%d, 1, v13\nv_lshl_or_b32 v%d, v%d, 1, v%d" % (cA1, cA2, cA1, cA2, cA1))
        a("v_lshrrev_b32 v%d, 3, v14\nv_xor_b32 v%d, v%d, v%d" % (cA2, cA1, cA1, cA2))
        a("v_lshl_add_u32 v%d, v%d, 4, v%d\nv_add_u32 v%d, s%d, v%d" % (vK, cA1, vK, vK, sT, vK))
    else:
        a("s_cmp_eq_u32 s%d, 6" % sW)
        a("s_cselect_b32 s%d, 0, 32\ns_cselect_b32 s%d, 16, 0\ns_cselect_b32 s%d, 16, 32\ns_cselect_b32 s60, 0, 128\ns_cselect_b32 s%d, 0, 16384" % (sT, sT2, sT3, sKg))
        a("v_xor_b32 v%d, s%d, v%d\nv_xor_b32 v%d, s%d, v%d\nv_xor_b32 v%d, s%d, v%d" % (vD + 1, sT, vD, vD + 2, sT2, vD, vD + 3, sT3, vD))
        for q in range(4): a("v_xor_b32 v%d, s60, v%d" % (vD + 4 + q, vD + q))
    def reads(u):
        o = []
        if OPT["hnc"]: return o
        tr = lambda d: ["ds_read_b64_tr_b16 %s, v%d offset:%d" % (vr(AF(u, d) + 2 * rd, 2), cA2 if d & 1 else cA1, u * 8192 + rd * 1024 + (d >> 1) * 256) for rd in range(2)]
        o += tr(0)
        for t in range(NRT):
            o.append("ds_read_b128 %s, v%d offset:%d" % (BF(u, t), cBx, t * 2048 + u * 256))
        o += tr(1) + tr(2) + tr(3)
        return o
    def mfmas(u, first):
        if OPT["hnc"]: return []
        return ["%s %s, %s, %s, %s" % (MF, ACC(t, d), vr(AF(u, d), 4), BF(u, t), "0" if first else ACC(t, d)) for d in range(4) for t in range(NRT)]
    if not att: a("v_lshlrev_b32 v254, 7, v12")
    if OPT["hpre"]: stage_load(1)
    stamp(a, 1)
    def mix(ms, rs):
        for k, x in enumerate(ms):
            a(x)
            if k < len(rs): a(rs[k])
        for x in rs[len(ms):]: a(x)
    for j in range(8):
        buf = HB[(-j) % 3]
        a.wait_vm_tag("h%d" % j)
        a("v_add_u32 v%d, %d, v%d\nv_add_u32 v%d, %d, v%d\nv_add_u32 v%d, %d, v%d" % (cA1, buf, vA1, cA2, buf, vA2, cBx, buf, vBx))
        a("s_waitcnt lgkmcnt(0)")
        a("s_barrier")
        if j < 7: stamp(a, j + 1, hs=True)
        if j == 0:
            for x in reads(0): a(x)
        if j == 0 and not OPT["hpre"]: stage_load(1)
        if j + 2 < 8 and not OPT["hnl"]: stage_load(j + 2)
        if not att and OPT["th"] == 2 and 2 <= j < 6: wo_touch(a, 0, 1, 254, j - 2)
        if not att and OPT["th"] == 3 and 4 <= j < 6: wo_touch(a, 0, 2, 254, 2 * (j - 4))
        if j > 0: mix(mfmas(1, False), reads(0))
        if not att and j == 6: kv_tile(a, vD, 0)
        a("s_waitcnt lgkmcnt(0)")
        mix(mfmas(0, j == 0), reads(1))
    a("s_waitcnt lgkmcnt(0)")
    a("s_barrier")
    if not att:
        kv_tile(a, vD, 1)
        if OPT["th"] == 1:
            wo_touch(a, 0, 4, 254)
        a("s_barrier")
    def fin():
        for x in mfmas(1, False): a(x)
        a("v_mov_b32 v238, %s\nv_mov_b32 v239, %s" % (f32(CSCALE), f32(CSCALE)))
        a("s_and_b32 s%d, s%d, 2\ns_cmp_eq_u32 s%d, 0" % (sT, sW, sT))
        a("s_cselect_b32 s%d, %d, 0" % (sT, Q1A - Q2B))
        a("s_cselect_b32 s%d, 0, %d" % (sT2, Q2B + 24 * KB - Q1C))
        a("s_add_u32 s%d, s%d, %d\ns_add_u32 s%d, s%d, %d" % (sT, sT, Q2B, sT2, sT2, Q1C))
        a("s_and_b32 s60, s%d, 1\ns_lshl_b32 s60, s60, 11" % sW)
        a("v_lshlrev_b32 v%d, 4, v12\nv_add_u32 v%d, s60, v%d" % (cBx, cBx, cBx))
        a("v_add_u32 v%d, s%d, v%d\nv_add_u32 v%d, s%d, v%d" % (cA1, sT, cBx, cA2, sT2, cBx))
        fr = [(t, h) for h in range(2) for t in range(NRT)]
        for t, h in fr:
            b = 16 + 16 * t + 8 * h
            for r in range(0, 8, 2): a("v_pk_mul_f32 %s, %s, v[238:239]" % (vr(b + r, 2), vr(b + r, 2)))
            for r in range(4): a("v_cvt_pk_bf16_f32 v%d, v%d, v%d" % (b + r, b + 2 * r, b + 2 * r + 1))
        for t, h in fr:
            b = 16 + 16 * t + 8 * h
            a("v_permlane16_swap_b32 v%d, v%d\nv_permlane16_swap_b32 v%d, v%d" % (b, b + 2, b + 1, b + 3))
        for t, h in fr:
            b = 16 + 16 * t + 8 * h; tg = T0 + t
            a("ds_write_b128 v%d, %s offset:%d" % (cA1 if tg < 6 else cA2, vr(b, 4), (tg if tg < 6 else tg - 6) * 4096 + h * 1024))
        if att:
            for r in list(range(96, vO + 96, 2)) + list(range(vL, vL + 24, 2)) + list(range(vS + 16, vS + 20, 2)) + list(range(vF, vF + 16, 2)):
                a("v_mov_b64 %s, 0" % vr(r, 2))
        a("s_waitcnt lgkmcnt(0)")
    if att:
        fin()
        a("s_barrier")
    else:
        HEAD_FIN[0] = fin
    stamp(a, 2)

def pair_signal(a):
    a("s_add_u32 s%d, s%d, 1" % (sBar, sBar))
    a("v_mov_b32 v%d, s%d" % (vT, sBar))
    a("ds_write_b32 v%d, v%d" % (vX3, vT))

def pair_wait(a, name, reads):
    a.label(name)
    a("ds_read_b32 v%d, v%d" % (vT, vX4))
    for x in reads: a(x)
    a("s_waitcnt lgkmcnt(%d)" % len(reads))
    a("v_readfirstlane_b32 s%d, v%d" % (sT, vT))
    a("s_cmp_ge_u32 s%d, s%d" % (sT, sBar))
    a("s_cbranch_scc1 %s_ok" % name)
    a("s_waitcnt lgkmcnt(0)")
    if OPT["sbs"]: a("s_sleep %d" % OPT["sbs"])
    a("s_branch %s" % name)
    a.label(name + "_ok")
    a("s_waitcnt lgkmcnt(0)")

def lds_count(a, off):
    a("s_mov_b64 exec, 1")
    a("v_mov_b32 v%d, %d\nv_mov_b32 v%d, 1" % (vT + 2, CNT, vT + 1))
    a("ds_add_rtn_u32 v%d, v%d, v%d offset:%d" % (vT, vT + 2, vT + 1, off))
    a("ds_read_b32 v%d, v%d offset:8" % (vT + 1, vT + 2))
    a("s_waitcnt lgkmcnt(0)")
    a("v_readfirstlane_b32 s%d, v%d" % (sT, vT))

def publish(a, name, nwait):
    a("s_waitcnt vmcnt(%d)" % nwait)
    lds_count(a, 4)
    a("s_cmp_lg_u32 s%d, 5" % sT)
    a("s_cbranch_scc1 %s" % name)
    a("v_or_b32 v%d, 0x%x, v%d" % (vT + 1, PHM, vT + 1))
    a("s_lshl_b32 s%d, s%d, 2" % (sT2, sJJ))
    a("v_mov_b32 v%d, s%d" % (vT, sT2))
    a("buffer_store_dword v%d, v%d, %s, 0 offen%s" % (vT + 1, vT, SR(S_FL), POL[OPT["polf"]]))
    a.label(name)
    a("s_mov_b64 exec, -1")

def attention(a):
    NT = 3; TL = 2
    a("v_lshlrev_b32 v%d, 4, v12" % vX1)
    a("s_mul_i32 s%d, s%d, %d\ns_add_u32 s%d, s%d, %d" % (sT, sRho, 12 * KB, sT, sT, Q1A))
    a("s_cmp_eq_u32 s%d, 2\ns_cselect_b32 s%d, %d, s%d" % (sRho, sT, Q1C, sT))
    a("v_add_u32 v%d, s%d, v%d" % (vX2, sT, vX1))
    for t in range(3):
        for s in range(4): a("ds_read_b128 %s, v%d offset:%d" % (Q(t, s), vX2, t * 4096 + s * 1024))
    a("s_add_u32 s%d, s%d, 3\ns_cmp_ge_u32 s%d, 6\ns_cselect_b32 s%d, 6, 0\ns_sub_u32 s%d, s%d, s%d" % (sPart, sW, sPart, sT2, sPart, sPart, sT2))
    a("s_lshl_b32 s%d, s%d, 2\ns_add_u32 s%d, s%d, %d\ns_lshl_b32 s%d, s%d, 2\ns_add_u32 s%d, s%d, %d" % (sT, sW, sT, sT, PFL, sT2, sPart, sT2, sT2, PFL))
    a("v_mov_b32 v%d, s%d\nv_mov_b32 v%d, s%d" % (vX3, sT, vX4, sT2))
    for r in list(range(vF + 16, vF + 32, 2)) + list(range(vO, 96, 2)): a("v_mov_b64 %s, 0" % vr(r, 2))
    for r in range(4): a("v_mov_b32 v%d, 0x3f803f80" % (vONE + r))
    a("s_mov_b32 s%d, 0\ns_mov_b32 s%d, -1\ns_mov_b32 s%d, 0\ns_mov_b32 s%d, %d\ns_mov_b32 s%d, 2" % (sItem, sPub, sBar, sExch, Q2B, sSlot))
    a("s_mov_b32 s%d, 0x%x\ns_mov_b32 s%d, %d" % (sNeg, (-2 * SLOT) & 0xffffffff, sPos, SLOT))
    a("s_lshl_b32 s%d, s%d, 3\ns_lshl_b32 s%d, s%d, 1\ns_add_u32 s%d, s%d, s%d\ns_mul_i32 s%d, s%d, 9" % (sT, sJJ, sT2, sKg, sT, sT, sT2, sT, sT))
    a("s_mul_i32 s%d, s%d, 3\ns_add_u32 s%d, s%d, s%d\ns_lshl_b32 s%d, s%d, 10\ns_add_u32 s%d, s%d, %d" % (sT2, sRho, sT, sT, sT2, sOoff, sT, sOoff, sOoff, 36 * KB))
    cstamp(a, 0)
    a("s_branch L_item1")
    a.label("L_item")
    for r in list(range(vO, vO + 96, 2)) + list(range(vL, vL + 24, 2)) + list(range(vS + 16, vS + 20, 2)):
        a("v_mov_b64 %s, 0" % vr(r, 2))
    a.label("L_item1")
    a("s_mov_b32 s%d, 0xff800000\ns_mov_b32 s%d, 0xff800000\ns_mov_b32 s%d, 0" % (sThr, sFl, sCnt))
    a("s_waitcnt lgkmcnt(0)")
    Ga, Gb, Gc = 0, 4, 8
    def kread(kt, s):
        slot = (Gc + s) if kt == 0 else (Gb + s)
        return "ds_read_b128 %s, v%d offset:%d" % (vr(F(slot), 4), vK, kt * 4096 + s * 256)
    def vslot(dt): return (Ga + dt) if dt < 4 else (Gb + dt - 4)
    def vread(dt, rd):
        return "ds_read_b64_tr_b16 %s, v%d offset:%d" % (vr(F(vslot(dt)) + 2 * rd, 2), vVb if dt & 1 else vVa, rd * 4096 + (dt >> 1) * 256)
    def pv(t, dt): return "%s %s, %s, %s, %s" % (MF, O(t, dt), vr(F(vslot(dt)), 4), S(t, 0), O(t, dt))
    def lsum(t): return "%s %s, %s, %s, %s" % (MF, L(t), vr(vONE, 4), S(t, 0), L(t))
    def qk(t, kt, s):
        slot = (Gc + s) if kt == 0 else (Gb + s)
        return "%s %s, %s, %s, %s" % (MF, S(t, kt), vr(F(slot), 4), Q(t, s), M(t) if s == 0 else S(t, kt))
    def sm(t):
        b = vS + 8 * t
        g = [["v_max3_f32 v%d, v%d, v%d, v%d" % (vT, b, b + 1, b + 2), "v_max3_f32 v%d, v%d, v%d, v%d" % (vT + 1, b + 3, b + 4, b + 5)],
             ["v_max3_f32 v%d, v%d, v%d, v%d" % (vT, vT, b + 6, b + 7), "v_max_f32 v%d, v%d, v%d" % (vT, vT, vT + 1)],
             ["v_cmp_lt_f32 vcc, s%d, v%d" % (sThr, vT)],
             ["s_cbranch_vccnz L_rare%d\nL_back%d:" % (t, t), "v_exp_f32 v%d, v%d" % (b, b)]]
        for r in range(1, 8): g.append(["v_exp_f32 v%d, v%d" % (b + r, b + r)])
        cv = ["v_cvt_pk_bf16_f32 v%d, v%d, v%d" % (b + r, b + 2 * r, b + 2 * r + 1) for r in range(4)]
        g.append(cv[:2]); g.append(cv[2:])
        return g
    a.raw(".p2align 6")
    a.label("L_loop")
    a("s_barrier")
    mf = []; fill = {}
    def put(idx, ops): fill.setdefault(idx, []).extend(ops)
    mf += [pv(TL, dt) for dt in (4, 5, 6, 7)] + [pv(TL, dt) for dt in (0, 1, 2, 3)] + [lsum(TL)]
    qk_end = {}
    for t in range(NT):
        for kt in ((0, 1) if t < TL else (1, 0)):
            mf += [qk(t, kt, s) for s in range(4)]
            if t == TL and kt == 1: v47_at = len(mf) - 1
        qk_end[t] = len(mf) - 1
    pv_start = {}
    for t in range(TL):
        pv_start[t] = len(mf)
        mf += [pv(t, dt) for dt in range(4)] + [lsum(t)] + [pv(t, dt) for dt in range(4, 8)]
    n = len(mf)
    pre = [kread(0, s) for s in range(4)]
    for s in range(4): put(s, [kread(1, s)])
    for dt in range(4): put(4 + dt, [vread(dt, 0), vread(dt, 1)])
    put(8, ["WAIT " + vr(F(Gc), 16)])
    put(9, ["s_add_u32 s%d, s%d, 1" % (sSlot, sSlot), "s_cmp_eq_u32 s%d, 3" % sSlot])
    put(10, ["s_cselect_b32 s%d, s%d, s%d" % (sDelta, sNeg, sPos), "s_cselect_b32 s%d, 0, s%d" % (sSlot, sSlot)])
    put(12, ["WAIT " + vr(F(Gb), 16), "v_add_u32 v%d, s%d, v%d" % (vK, sDelta, vK)])
    for dt in range(4, 8): put(v47_at - 3 + (dt - 4), [vread(dt, 0), vread(dt, 1)])
    groups = [(t, g) for t in range(NT) for g in sm(t)]
    lo = qk_end[0] + OPT["lo"]
    span = n - lo
    for k, (t, g) in enumerate(groups):
        idx = lo + (k * span) // len(groups)
        assert idx >= qk_end[t] + 2 and (t == TL or idx < pv_start[t]), (t, idx)
        put(idx, g)
    put(pv_start[0] - 1, ["WAIT " + vr(F(Ga), 16)])
    put(pv_start[0] + 4, ["WAIT " + vr(F(Gb), 16)])
    put(lo - 2, ["s_add_u32 s%d, s%d, 1" % (sCnt, sCnt)])
    for x in pre: a(x)
    for k, m in enumerate(mf):
        a(m)
        for x in fill.get(k, []): a(x)
    a("v_add_u32 v%d, s%d, v%d\nv_add_u32 v%d, s%d, v%d" % (vVa, sDelta, vVa, vVb, sDelta, vVb))
    a("s_mov_b32 s%d, %s\ns_mov_b32 s%d, 0" % (sThr, f32(THR), sFl))
    a("s_cmp_lt_u32 s%d, 16" % sCnt)
    a("s_cbranch_scc1 L_loop")
    a("s_cmp_eq_u32 s%d, 0" % sItem)
    a("s_cbranch_scc0 L_st4")
    stamp(a, 3); cstamp(a, 1)
    a("s_branch L_st4b")
    a.label("L_st4"); stamp(a, 4)
    a.label("L_st4b")
    a("s_mul_i32 s%d, s%d, %d\ns_add_u32 s%d, s%d, %d" % (sT, sRho, 12 * KB, sT, sT, Q2B))
    a("v_add_u32 v%d, s%d, v%d" % (vX2, sT, vX1))
    for t in range(3):
        for s in range(4): a("ds_read_b128 %s, v%d offset:%d" % (Q(t, s), vX2, t * 4096 + s * 1024))
    a("s_lshl_b32 s%d, s%d, 12\ns_add_u32 s%d, s%d, %d" % (sT, sW, sT, sT, Q1A))
    a("v_add_u32 v%d, s%d, v%d" % (vX2, sT, vX1))
    def send(t, areg, off):
        o = []
        for h in range(2):
            b = vO + 32 * t + 16 + 8 * h
            o += ["v_cvt_pk_bf16_f32 v%d, v%d, v%d" % (b + r, b + 2 * r, b + 2 * r + 1) for r in range(4)]
            o.append("ds_write_b128 v%d, %s offset:%d" % (areg, vr(b, 4), off + h * 1024))
        return o
    fin = [lsum(TL)] + [pv(TL, dt) for dt in (4, 5, 6, 7, 0, 1, 2, 3)]
    ex = send(0, vX2, 0) + send(1, vX2, 2048)
    for k, m in enumerate(fin):
        a(m)
        for x in ex[k * len(ex) // 9:(k + 1) * len(ex) // 9]: a(x)
    a("v_and_b32 v%d, 15, v0\nv_lshlrev_b32 v%d, 3, v%d" % (vT + 2, vT + 2, vT + 2))
    a("s_mul_i32 s%d, s%d, 384\ns_add_u32 s%d, s%d, %d" % (sT, sW, sT, sT, MLB))
    a("v_add_u32 v%d, s%d, v%d" % (vT + 3, sT, vT + 2))
    for t in range(3):
        a("v_mov_b32 v%d, v%d" % (vM + 4 * t + 1, vL + 4 * t))
        a("ds_write_b64 v%d, %s offset:%d" % (vT + 3, vr(vM + 4 * t, 2), t * 128))
    a("s_lshl_b32 s%d, s%d, 11\ns_add_u32 s%d, s%d, s%d" % (sT, sW, sT, sT, sExch))
    a("v_add_u32 v%d, s%d, v%d" % (vX2, sT, vX1))
    a("s_cmp_eq_u32 s%d, 0" % sItem)
    a("s_cbranch_scc0 L_nomx")
    a("s_waitcnt lgkmcnt(0)")
    a("s_barrier")
    a.label("L_nomx")
    for x in send(2, vX2, 0): a(x)
    pair_signal(a)
    a("s_mul_i32 s%d, s%d, 384\ns_add_u32 s%d, s%d, %d" % (sT2, sPart, sT2, sT2, MLB))
    a("v_add_u32 v%d, s%d, v%d" % (vT + 3, sT2, vT + 2))
    a("s_lshl_b32 s%d, s%d, 11\ns_add_u32 s%d, s%d, s%d" % (sT, sPart, sT, sT, sExch))
    a("v_add_u32 v%d, s%d, v%d" % (vX2, sT, vX1))
    a("s_lshl_b32 s%d, s%d, 12\ns_add_u32 s%d, s%d, %d" % (sT, sPart, sT, sT, Q1A))
    a("v_add_u32 v%d, s%d, v%d" % (vT + 2, sT, vX1))
    a("s_waitcnt lgkmcnt(0)")
    rd = ["ds_read_b64 %s, v%d offset:%d" % (vr(vM + 4 * t + 2, 2), vT + 3, t * 128) for t in range(3)]
    for t in range(3):
        for h in range(2):
            rd.append("ds_read_b128 %s, v%d offset:%d" % (vr(vS + 8 * t + 4 * h, 4), vT + 2 if t < 2 else vX2, (t * 2048 if t < 2 else 0) + h * 1024))
    pair_wait(a, "L_pw", rd)
    for t in range(3):
        m = vM + 4 * t; l = vL + 4 * t
        a("v_min_f32 v%d, v%d, v%d" % (l, m, m + 2))
        a("v_sub_f32 v%d, v%d, v%d\nv_sub_f32 v%d, v%d, v%d" % (l + 1, l, m, l + 2, l, m + 2))
        a("v_exp_f32 v%d, v%d\nv_exp_f32 v%d, v%d" % (l + 1, l + 1, l + 2, l + 2))
        a("v_mul_f32 v%d, v%d, v%d" % (l + 3, l + 1, m + 1))
        a("v_fma_f32 v%d, v%d, v%d, v%d" % (l + 3, l + 2, m + 3, l + 3))
        a("v_rcp_f32 v%d, v%d" % (l, l + 3))
        a("v_mul_f32 v%d, v%d, v%d\nv_mul_f32 v%d, v%d, v%d" % (l + 3, l + 2, l, l + 2, l + 2, l))
        a("v_mul_f32 v%d, v%d, v%d\nv_mov_b32 v%d, v%d" % (l + 1, l + 1, l, l, l + 1))
    for t in range(3):
        l = vL + 4 * t
        for h in range(2):
            b = vO + 32 * t + 8 * h; u = b + 16; pk = vS + 8 * t + 4 * h
            for r in range(4):
                a("v_lshlrev_b32 v%d, 16, v%d\nv_and_b32 v%d, 0xffff0000, v%d" % (u + 2 * r, pk + r, u + 2 * r + 1, pk + r))
            for r in range(0, 8, 2): a("v_pk_mul_f32 %s, %s, %s" % (vr(b + r, 2), vr(b + r, 2), vr(l, 2)))
            for r in range(0, 8, 2): a("v_pk_fma_f32 %s, %s, %s, %s" % (vr(b + r, 2), vr(u + r, 2), vr(l + 2, 2), vr(b + r, 2)))
            for r in range(4): a("v_cvt_pk_bf16_f32 v%d, v%d, v%d" % (pk + r, b + 2 * r, b + 2 * r + 1))
    a("s_cmp_eq_u32 s%d, 0" % sItem)
    a("s_cbranch_scc0 L_att_done")
    for t in range(3):
        for h in range(2):
            a("ds_write_b128 v%d, %s offset:%d" % (vT + 2 if t < 2 else vX2, vr(vS + 8 * t + 4 * h, 4), (t * 2048 if t < 2 else 0) + h * 1024))
    a("s_mov_b32 s%d, 1\ns_mov_b32 s%d, %d" % (sItem, sExch, EX2))
    a("s_waitcnt lgkmcnt(0)")
    a("s_branch L_item")
    a.vm = []; a.lgkm = []
    for t in range(NT):
        b = vS + 8 * t
        a.label("L_rare%d" % t)
        a("s_nop 15")
        a("v_mov_b32 v%d, v%d" % (vT + 1, vT))
        a("v_permlane16_swap_b32 v%d, v%d" % (vT, vT + 1))
        a("v_max_f32 v%d, v%d, v%d" % (vT, vT, vT + 1))
        a("v_mov_b32 v%d, v%d" % (vT + 1, vT))
        a("v_permlane32_swap_b32 v%d, v%d" % (vT, vT + 1))
        a("v_max_f32 v%d, v%d, v%d" % (vT, vT, vT + 1))
        a("v_max_f32 v%d, s%d, v%d" % (vT, sFl, vT))
        for r in range(8): a("v_sub_f32 v%d, v%d, v%d" % (b + r, b + r, vT))
        for r in range(4): a("v_sub_f32 v%d, v%d, v%d" % (vM + 4 * t + r, vM + 4 * t + r, vT))
        a("s_cmp_lg_u32 s%d, 0" % sFl)
        a("s_cbranch_scc1 L_rare%d_x" % t)
        a("v_exp_f32 v%d, -v%d" % (vT + 1, vT))
        for r in range(4): a("v_mul_f32 v%d, v%d, v%d" % (vL + 4 * t + r, vL + 4 * t + r, vT + 1))
        for r in range(32): a("v_mul_f32 v%d, v%d, v%d" % (vO + 32 * t + r, vO + 32 * t + r, vT + 1))
        a.label("L_rare%d_x" % t)
        a("s_nop 3")
        a("s_branch L_back%d" % t)
    a.label("L_att_done")
    for t in range(3):
        for h in range(2):
            a("s_add_u32 s%d, s%d, %d" % (sT, sOoff, (h * 9 + t) * 1024))
            a("buffer_store_dwordx4 %s, v%d, %s, s%d offen%s" % (vr(vS + 8 * t + 4 * h, 4), vX1, SR(S_O), sT, POL[OPT["pols2"]]))
    publish(a, "L_pub_x", 0)
    stamp(a, 5)
    a("s_cmp_ge_u32 s%d, 2" % sW)
    a("s_cbranch_scc1 L_end")
    a("v_mov_b32 v9, %d" % CNT)
    a("ds_read_b32 v97, v9 offset:12")
    a("ds_read_b32 v98, v9 offset:20")
    a("s_mov_b32 s%d, s%d" % (sOpIdx, sW))
    a("s_lshl_b32 s%d, s%d, 14\ns_add_u32 s%d, s%d, %d" % (sBlkP, sW, sBlkP, sBlkP, 32 * KB))
    op_setup(a, False)
    a("v_readfirstlane_b32 s%d, v97\nv_readfirstlane_b32 s%d, v98" % (sTag, sT2))
    a("s_cmp_eq_u32 s%d, 1" % sT2)
    pack_select(a, "L_pk_att")
    a("s_or_b32 s%d, s%d, 0x%x" % (sWant, sTag, PHM))
    a("s_cmp_eq_u32 s60, 0\ns_cbranch_scc1 L_op_a_idle\ns_branch L_op_b_idle")
    a.vm = []; a.lgkm = []

def wo_touch(a, phase, n=4, vl=136, i0=0):
    a("s_and_b32 s%d, s%d, 1\ns_lshl_b32 s%d, s%d, 4\ns_add_u32 s%d, s%d, s%d" % (sT, sGo, sT, sT, sT, sT, sJo))
    a("s_lshr_b32 s%d, s%d, 1\ns_lshl_b32 s%d, s%d, 18\ns_and_b32 s%d, s%d, 1\ns_lshl_b32 s%d, s%d, 16\ns_add_u32 s%d, s%d, s%d" % (sT2, sT, sT2, sT2, sT, sT, sT, sT, sT, sT, sT2))
    a("s_and_b32 s%d, s%d, 1\ns_lshl_b32 s%d, s%d, 15\ns_add_u32 s%d, s%d, s%d" % (sT2, sW, sT2, sT2, sT, sT, sT2))
    for i in range(n):
        a("s_add_u32 s%d, s%d, %d" % (sT2, sT, phase * 131072 + (i0 + i) * 8192))
        a.autowait = False
        a("buffer_load_dword v%d, v%d, %s, s%d offen" % (vl + 1, vl, SR(S_WO), sT2), tag="x")
        a.autowait = True

def aux_step(a, step, extra=None, pre=None):
    a.wait_vm_tag("t%d" % step)
    a("s_barrier")
    if step in (OPT["t3a"], OPT["t3b"]):
        a("v_and_b32 v142, 31, v12\nv_lshlrev_b32 v142, 10, v142\nv_add_u32 v142, 384, v142")
        wo_touch(a, 0 if step == OPT["t3a"] else 1, 1, 142)
    if OPT["sst"] >= 0 and step >= OPT["sst"] and (step - OPT["sst"]) % OPT["sstd"] == 0 and (step - OPT["sst"]) // OPT["sstd"] < 6:
        k_ = 1 + (step - OPT["sst"]) // OPT["sstd"]
        a("s_memrealtime s[%d:%d]" % (64 + 2 * k_, 65 + 2 * k_))
    if pre: pre()
    nxt = step + 2
    if nxt < 32 and nxt != 18: kv_tile(a, 144, nxt)
    if extra: extra()
    if step == 15:
        a("s_barrier")
        kv_tile(a, 144, 18)

def aux_extra(a, step):
    if step == 0:
        a("buffer_load_dword v140, v138, %s, 0 offen sc1" % SR(S_FL), tag="fl")
        HEAD_FIN[0]()
    if step == 3:
        cstamp(a, 0)
        a("s_lshl_b32 s%d, s%d, 3\ns_add_u32 s%d, s%d, s%d\ns_cmp_lg_u32 s%d, 6\ns_cbranch_scc1 L_nolead" % (sT, sJJ, sT, sT, sW, sT))
        a("v_lshrrev_b32 v140, v14, v140\nv_and_b32 v140, 1, v140\nv_cmp_eq_u32 vcc, 0, v140")
        a("s_nop 1")
        a("s_and_b32 s%d, vcc_lo, 0xffff\ns_or_b32 s%d, s%d, 0x80000000" % (sT, sT, sT))
        a("v_mov_b32 v140, s%d" % sT)
        keep = list(a.vm)
        a("buffer_store_dword v140, v139, %s, 0 offen sc1" % SR(S_DBG))
        a.vm = keep
        a.label("L_nolead")
    if step == 9:
        a("buffer_load_dword v140, v156, %s, 0 offen sc1" % SR(S_DBG), tag="fl")
    if step == 12:
        cstamp(a, 1)
        keep = list(a.vm)
        a.label("L_tag")
        a("v_cmp_eq_u32 vcc, 0, v140")
        a("s_cbranch_vccz L_tag_ok")
        a("s_sleep 8")
        a("buffer_load_dword v140, v156, %s, 0 offen sc1" % SR(S_DBG))
        a("s_waitcnt vmcnt(0)")
        a("s_branch L_tag")
        a.label("L_tag_ok")
        a.vm = keep
        a("v_readlane_b32 s%d, v140, 0\nv_readlane_b32 s%d, v140, 1" % (sTagA, sTag))
        a("v_min_u32 v141, 1, v12\nv_lshlrev_b32 v141, 2, v141\nv_add_u32 v141, %d, v141" % TAGW)
        a("ds_write_b32 v141, v140")
        a("s_mov_b32 s%d, 0x%x\nv_mov_b32 v159, s%d" % (sC, (1 << (2 * (NIN + 1))) - 1, sC))
        a("ds_write_b32 v158, v159")
        a("s_or_b32 s%d, s%d, 0x%x" % (sWant, sTag, PHM))
        a("s_waitcnt lgkmcnt(0)")
        astamp(a, 1)
    if step == 1: op_setup(a, True)
    if OPT["pack"] and step in (2, 5):
        a("s_lshl_b32 s%d, s%d, 4\ns_add_u32 s%d, s%d, s%d\ns_and_b32 s%d, s%d, 1" % (sT3, sB, sT3, sT3, sJJ, sT2, sW))
        if step == 2:
            a("s_lshl_b32 s%d, s%d, 15\ns_lshl_b32 s%d, s%d, 14\ns_add_u32 s%d, s%d, s%d\ns_lshl_b32 s%d, s%d, 7\ns_add_u32 s%d, s%d, s%d" % (sT3, sT3, sT2, sT2, sT3, sT3, sT2, sT2, sCbs, sT3, sT3, sT2))
            for q in range(2): a("buffer_load_dwordx4 %s, v%d, %s, s%d offen offset:%d" % (vr(16 + 4 * q, 4), 4 + q, SR(S_WO), sT3, q * 1024), tag="pl")
        else:
            a("s_lshl_b32 s%d, s%d, 12\ns_lshl_b32 s%d, s%d, 11\ns_add_u32 s%d, s%d, s%d" % (sT3, sT3, sT2, sT2, sT3, sT3, sT2))
            pack_base(a, S_TMP)
            a("s_mov_b32 s%d, %d\ns_mov_b32 s%d, 0x20000" % (S_TMP + 2, 512 * KB, S_TMP + 3))
            for q in range(2): a("buffer_store_dwordx4 %s, v1, %s, s%d offen offset:%d sc1" % (vr(16 + 4 * q, 4), SR(S_TMP), sT3, q * 1024), tag="ps")
    if OPT["pack"] and step == 8: a.wait_vm_tag("ps")
    if OPT["pack"] and step == 18:
        a("s_cmp_lg_u32 s61, s%d\ns_cbranch_scc1 L_pk_aux" % sCbs)
        keep = list(a.vm)
        a("s_waitcnt vmcnt(32)")
        a.vm = keep
        a("v_or_b32 v152, 0x%x, v152\nv_or_b32 v153, 0x%x, v153\nv_or_b32 v155, 0x%x, v154" % (PHM, PHM, PHM))
        a("v_xor_b32 v152, v152, v155\nv_xor_b32 v153, v153, v155\nv_lshrrev_b32 v154, 31, v154\nv_xor_b32 v154, 1, v154")
        a("v_or3_b32 v152, v152, v153, v154")
        a("v_cmp_ne_u32 vcc, 0, v152")
        a("s_nop 1")
        a("s_cmp_eq_u64 vcc, 0")
        if OPT["packfail"]: a("s_cmp_eq_u32 s%d, 99" % sW)
        a("s_cselect_b32 s%d, 1, 0" % sT)
        a("v_mov_b32 v152, s%d\ns_lshl_b32 s%d, s%d, 2\ns_add_u32 s%d, s%d, %d\nv_mov_b32 v153, s%d" % (sT, sT2, sW, sT2, sT2, CNT + 20 - 24, sT2))
        a("ds_write_b32 v153, v152")
        a("s_waitcnt lgkmcnt(0)")
        a("s_cmp_eq_u32 s%d, 1" % sT)
        pack_select(a, "L_pk_aux")
    if step == 16:
        a("s_and_b32 s%d, s%d, 1" % (sT3, sW))
        a("s_mul_i32 s%d, s%d, %d\ns_add_u32 s%d, s%d, %d\nv_add_u32 v142, s%d, v1" % (sT, sT3, 3 * 4096, sT, sT, Q1A, sT))
        a("s_mul_i32 s%d, s%d, %d\ns_add_u32 s%d, s%d, %d\nv_add_u32 v143, s%d, v1" % (sT, sT3, 3 * 2048, sT, sT, Q2B, sT))
        fr = [(i, t, h) for i in range(3) for t in range(3) for h in range(2)]
        for n, (i, t, h) in enumerate(fr):
            if t < 2: a("ds_read_b128 %s, v142 offset:%d" % (vr(16 + 4 * n, 4), i * 4096 + t * 2048 + h * 1024))
            else: a("ds_read_b128 %s, v143 offset:%d" % (vr(16 + 4 * n, 4), i * 2048 + h * 1024))
        a("s_mul_i32 s%d, s%d, %d\ns_mul_i32 s%d, s%d, %d\ns_add_u32 s%d, s%d, %d\ns_sub_u32 s%d, s%d, s%d" % (sT2, sJJ, 8 * 9216, sT3, sT3, 2 * 9216, sT2, sT2, 2 * 9216, sT2, sT2, sT3))
        for n, (i, t, h) in enumerate(fr):
            a("s_add_u32 s%d, s%d, %d" % (sT, sT2, (h * 9 + 3 * i + t) * 1024))
            a("buffer_store_dwordx4 %s, v1, %s, s%d offen%s" % (vr(16 + 4 * n, 4), SR(S_O), sT, POL[OPT["pols"]]), tag="st")
    if step == 17: a.wait_vm_tag("st")
    if step == 18: astamp(a, 2)

def aux_pre(a, step):
    if step == 18 or (step == 13 and OPT["pack"]):
        a("s_cmp_lg_u32 s%d, 6\ns_cbranch_scc1 L_nopub%d" % (sW, step))
        a("s_lshl_b32 s%d, s%d, 2\ns_or_b32 s%d, s%d, 0x%x\nv_mov_b32 v142, s%d\nv_mov_b32 v143, s%d" % (sT, sJJ, sT2, sTagA, PH1 if step == 18 else 0, sT, sT2))
        keep = list(a.vm)
        a("buffer_store_dword v143, v142, %s, 0 offen sc1" % SR(S_FL))
        a.vm = keep
        a.label("L_nopub%d" % step)
    if step == 17 and OPT["pack"]:
        a("s_cmp_lg_u32 s61, s%d\ns_cbranch_scc1 L_nofb" % sCbs)
        a("s_lshl_b32 s%d, s%d, 11\ns_add_u32 s%d, s%d, 0x%x\ns_add_u32 s%d, s100, s%d\ns_addc_u32 s%d, s101, 0" % (sT, sBlk, sT, sT, FLAG_OFF, S_TMP, sT, S_TMP + 1))
        a("s_mov_b32 s%d, 2048\ns_mov_b32 s%d, 0x20000" % (S_TMP + 2, S_TMP + 3))
        a("v_lshrrev_b32 v142, 3, v12\nv_and_b32 v143, 7, v12\nv_lshlrev_b32 v143, 3, v143\nv_lshl_add_u32 v143, v142, 8, v143")
        a("s_lshl_b32 s%d, s%d, 7\nv_lshlrev_b32 v142, 4, v142" % (sT, sBlk))
        keep = list(a.vm)
        a("buffer_load_dwordx2 v[152:153], v143, %s, 0 offen sc1" % SR(S_TMP))
        a("buffer_load_dword v154, v142, %s, s%d offen sc1" % (SR(S_DBG), sT))
        a.vm = keep
        a.label("L_nofb")

def pack_base(a, lo):
    a("s_lshl_b32 s%d, s%d, 19\ns_add_u32 s%d, s%d, 0x%x\ns_add_u32 s%d, s100, s%d\ns_addc_u32 s%d, s101, 0" % (sT, sBlk, sT, sT, PK_OFF, lo, sT, lo + 1))

def pack_select(a, name):
    a("s_cbranch_scc0 %s" % name)
    pack_base(a, S_WO)
    a("s_mov_b32 s%d, 12\ns_mov_b32 s%d, 4096\ns_mov_b32 s%d, 8192\ns_mov_b32 s%d, 12288\ns_mov_b32 s%d, 0" % (sWsh, sWs1, sWs2, sWs3, sWb))
    for q in range(4): a("v_mov_b32 v%d, v1" % (4 + q))
    a.label(name)

def aux(a):
    if OPT["auxprio"]: a("s_setprio %d" % OPT["auxprio"])
    for q in range(8): a("v_mov_b32 v%d, v%d" % (144 + q, vD + q))
    a("v_lshlrev_b32 v136, 7, v12")
    a("v_lshlrev_b32 v138, 2, v14")
    a("s_lshl_b32 s%d, s%d, 4\nv_mov_b32 v139, s%d" % (sT, sG, sT))
    a("s_lshl_b32 s%d, s%d, 4\nv_mov_b32 v156, s%d\nv_cmp_eq_u32 vcc, 0, v12\nv_cndmask_b32 v156, v156, v139, vcc" % (sT, sGo, sT))
    a("s_sub_u32 s%d, s%d, 4" % (sOpIdx, sW))
    a("s_sub_u32 s%d, s%d, 6\ns_lshl_b32 s%d, s%d, 14\ns_add_u32 s%d, s%d, %d" % (sBlkP, sW, sBlkP, sBlkP, sBlkP, sBlkP, 96 * KB))
    for step in range(19):
        aux_step(a, step, extra=lambda: aux_extra(a, step), pre=lambda: aux_pre(a, step))
    a("s_cmp_eq_u32 s60, 0\ns_cbranch_scc0 L_op_b_aux")

def op_setup(a, isaux):
    lanes(a)
    a("v_lshlrev_b32 v1, 4, v12\nv_add_u32 v8, 4096, v1")
    a("v_lshrrev_b32 v9, 5, v12")
    a("v_and_b32 v4, 3, v12\nv_lshlrev_b32 v5, 1, v9\nv_xor_b32 v4, v4, v5\nv_lshlrev_b32 v4, 4, v4")
    a("v_and_b32 v5, 1, v13")
    a("v_lshl_add_u32 v4, v5, 6, v4\nv_lshl_add_u32 v4, v15, 10, v4\nv_lshl_add_u32 v4, v9, 12, v4")
    a("v_and_b32 v2, 3, v12\nv_lshlrev_b32 v2, 3, v2\nv_lshl_add_u32 v2, v15, 6, v2\nv_lshl_add_u32 v2, v5, 5, v2\nv_lshl_add_u32 v2, v13, 9, v2")
    a("v_add_u32 v2, s%d, v2\nv_xor_b32 v3, 32, v2" % sBlkP)
    for q in range(1, 4): a("v_add_u32 v%d, %d, v4" % (4 + q, 7168 * q))
    for r in range(176, 256, 2): a("v_mov_b64 %s, 0" % vr(r, 2))
    a("s_lshr_b32 s60, s%d, 3\ns_add_u32 s61, s%d, %d\ns_and_b32 s61, s61, 7" % (sJo, sJo, OPT["cbr"]))
    a("s_mul_i32 s%d, s60, 5120" % sOb)
    a("s_lshl_b32 s%d, s61, 7" % sWb)
    a("s_and_b32 s%d, s%d, 7" % (sOutOff, sGo))
    a("s_mul_i32 s%d, s%d, 144\ns_mul_i32 s%d, s60, 80\ns_add_u32 s%d, s%d, s%d\ns_lshl_b32 s%d, s%d, 11" % (sOutOff, sOutOff, sT, sOutOff, sOutOff, sT, sOutOff, sOutOff))
    a("s_lshl_b32 s%d, s%d, 10\ns_add_u32 s%d, s%d, s%d\ns_add_u32 s%d, s%d, s%d" % (sT, sBlk, sOutOff, sOutOff, sT, sOutOff, sOutOff, sWb))
    a("s_lshl_b32 s%d, s%d, 5\ns_add_u32 s%d, s%d, s%d" % (sT, sOpIdx, sOutOff, sOutOff, sT))
    a("v_lshlrev_b32 v10, 11, v14\nv_lshl_add_u32 v10, v13, 3, v10")
    a("s_and_b32 s%d, s%d, 1\ns_lshl_b32 s%d, s%d, 1\ns_add_u32 s%d, s%d, s60\ns_lshl_b32 s%d, s%d, 2" % (sT, sGo, sT, sT, sT, sT, sT, sT))
    a("s_lshl_b32 s%d, s61, 1\ns_add_u32 s%d, s%d, s%d" % (sT2, sRm, sT, sT2))
    a("v_add_u32 v11, s%d, v14\nv_and_b32 v11, 15, v11\nv_lshlrev_b32 v11, 2, v11" % sRm)
    a("v_xor_b32 v157, 1, v5\nv_lshlrev_b32 v157, 30, v157" if False else "v_and_b32 v157, 1, v13\nv_xor_b32 v157, 1, v157\nv_lshlrev_b32 v157, 30, v157")
    a("v_mov_b32 v158, %d" % CLAIM)
    a("s_mov_b32 s%d, 15\ns_mov_b32 s%d, 32768\ns_mov_b32 s%d, 65536\ns_mov_b32 s%d, 98304" % (sWsh, sWs1, sWs2, sWs3))
    a("s_lshr_b32 s%d, s%d, 7\ns_sub_u32 s%d, 3, s%d\ns_and_b32 s%d, s%d, 7" % (sCbs, S_WO, sCbs, sCbs, sCbs, sCbs))
    a("s_mul_i32 s%d, s%d, %d\ns_add_u32 s90, s100, s%d\ns_addc_u32 s91, s101, 0" % (sT, sGo, 128 * 9216, sT))
    srd(a, S_OL, 90, 91, "%d" % (128 * 9216))
    a("s_lshl_b32 s%d, s%d, 8\ns_add_u32 s%d, s%d, 0x%x\ns_add_u32 s90, s100, s%d\ns_addc_u32 s91, s101, 0" % (sT, sGo, sT, sT, FLAG_OFF, sT))
    srd(a, S_FLL, 90, 91, "64")

def op_path(a, NR, role, vm0):
    lab = lambda s: "L_op_%s_%s" % (role, s)
    B = lambda k, t: vr(16 + ((k % 4) * 5 + t) * 4, 4)
    ACC = lambda t, ct: vr(176 + (t * 4 + ct) * 4, 4)
    G = NR + 4
    def offs(so, static=None):
        if static is not None:
            a("s_and_b32 s%d, s%d, 1\ns_add_u32 s%d, s%d, s%d\ns_add_u32 s%d, s%d, %d" % (sT, sW, sT, sT, sRm, sT, sT, 2 * static))
            a("s_and_b32 s%d, s%d, 15\ns_lshl_b32 s%d, s%d, 3" % (sT, sT, sT, sT))
        else:
            a("s_ff1_i32_b32 s%d, s%d" % (sT2, sBit))
            a("s_add_u32 s%d, s%d, s%d\ns_and_b32 s%d, s%d, 15\ns_lshl_b32 s%d, s%d, 3" % (sT, sT2, sRm, sT, sT, sT, sT))
            a("s_lshr_b32 s%d, s%d, 4\ns_lshl_b32 s%d, s%d, 2\ns_add_u32 s%d, s%d, s%d" % (sT2, sT2, sT2, sT2, sT, sT, sT2))
        a("s_mul_i32 s%d, s%d, 9216\ns_add_u32 s%d, s%d, s%d" % (so, sT, so, so, sOb))
        a("s_lshl_b32 s%d, s%d, s%d\ns_add_u32 s%d, s%d, s%d" % (sWn, sT, sWsh, sWn, sWn, sWb))
        if OPT["xo"]: a("s_mov_b32 s%d, s%d" % (so, sOb))
        if OPT["xw"]: a("s_mov_b32 s%d, s%d" % (sWn, sWb))
    def w_ops(n):
        k = n % 4
        o = ["s_add_u32 m0, s%d, %d" % (sBlkP, k * 4096), "s_add_u32 s%d, s%d, %s" % (sT2, sWn, ["0", "s%d" % sWs1, "s%d" % sWs2, "s%d" % sWs3][k])]
        for q in range(4):
            o.append(("buffer_load_dwordx4 v%d, %s, s%d offen offset:%d%s lds" % (4 + q, SR(S_WO), sT2, q * 1024, POL[OPT["polwo"]]), "w%d" % n))
        return o
    def o_ops(n, so):
        k = n % 4
        o = ["s_add_u32 s%d, s%d, %d" % (sT3, so, k * 9216)]
        for t in range(NR):
            if t < 4: o.append(("buffer_load_dwordx4 %s, v1, %s, s%d offen offset:%d%s" % (B(k, t), SR(S_OL), sT3, t * 1024, POL[OPT["polo"]]), "o%d" % n))
            else: o.append(("buffer_load_dwordx4 %s, v8, %s, s%d offen%s" % (B(k, t), SR(S_OL), sT3, POL[OPT["polo"]]), "o%d" % n))
        return o
    def reads(n):
        k = n % 4; buf = 96 + 16 * (k & 1)
        return ["ds_read_b64_tr_b16 %s, v%d offset:%d" % (vr(buf + 4 * ct + 2 * rd, 2), 3 if ct & 1 else 2, k * 4096 + rd * 2048 + (ct >> 1) * 256)
                for ct in range(4) for rd in range(2)]
    def run(ops):
        for x in ops:
            a.autowait = False
            if isinstance(x, tuple): a(x[0], tag=x[1])
            else: a(x)
            a.autowait = True
    def wait_tags(*tags):
        need = None
        for k_, (t_, d_) in enumerate(a.vm):
            if t_ in tags: need = k_
        if need is not None: a("s_waitcnt vmcnt(%d)" % (len(a.vm) - 1 - need))
    FLOAD = "buffer_load_dword v9, v11, %s, 0 offen sc1" % SR(S_FLL)
    def ready():
        run(["v_or_b32 v9, v157, v9", "v_cmp_eq_u32 vcc, s%d, v9" % sWant, "s_nop 1", "s_mov_b32 s%d, vcc_lo" % sR])
        if OPT["nopoll"]: a("s_mov_b32 s%d, -1" % sR)
    def attempt():
        run(["s_sub_u32 s%d, 0, s%d" % (sT2, sT), "s_and_b32 s%d, s%d, s%d" % (sBit, sT, sT2),
             "v_mov_b32 v160, s%d" % sBit, "s_mov_b64 exec, 1", "ds_or_rtn_b32 v159, v158, v160", "s_mov_b64 exec, -1"])
    def resolve(fail):
        run(["v_readfirstlane_b32 s%d, v159" % sT, "s_or_b32 s%d, s%d, s%d" % (sC, sC, sT), "s_or_b32 s%d, s%d, s%d" % (sC, sC, sBit),
             "s_and_b32 s%d, s%d, s%d" % (sT, sT, sBit), "s_cbranch_scc1 %s" % fail])
    def kstep(n, nxt, wait, hooks=False):
        k = n % 4
        wait()
        a("s_waitcnt lgkmcnt(0)")
        if hooks and k == 0:
            keep = list(a.vm)
            run(["s_cmp_eq_u32 s%d, -1" % sR, "s_cbranch_scc1 %s" % lab("nf"), FLOAD]); a.label(lab("nf"))
            a.vm = keep
        if hooks and k == 2: run(["ds_read_b32 v159, v158"])
        if hooks and k == 3:
            run(["s_cmp_eq_u32 s%d, -1" % sR, "s_cbranch_scc1 %s" % lab("nr")]); ready(); a.label(lab("nr"))
            run(["v_readfirstlane_b32 s%d, v159" % sT, "s_or_b32 s%d, s%d, s%d" % (sC, sC, sT), "s_andn2_b32 s%d, s%d, s%d" % (sT, sR, sC)])
            attempt()
        fillers = (reads(n + 1) if (nxt or k < 3) else []) + (w_ops(n + 4) if nxt else []) + (o_ops(n + 3, sOc) if k == 0 else (o_ops(n + 3, sOn) if nxt else []))
        buf = 96 + 16 * (k & 1)
        ms = ["%s %s, %s, %s, %s" % (MF, ACC(t, ct), vr(buf + 4 * ct, 4), B(k, t), ACC(t, ct)) for ct in range(4) for t in range(NR)]
        fi = 0
        for i, m in enumerate(ms):
            run([m])
            tgt = ((i + 1) * len(fillers) + len(ms) - 3) // (len(ms) - 2)
            while fi < min(tgt, len(fillers)):
                run([fillers[fi]]); fi += 1
        a.lgkm = []
        if k == 3 and nxt: a("s_mov_b32 s%d, s%d" % (sOc, sOn))
    a.vm = list(vm0)
    a.label(lab("aux"))
    s0 = OPT["s0"]; kp = [int(c) for c in OPT["kp"]]
    assert len(kp) == 32 - s0 and s0 >= 22
    cnt = [0]
    def pre(step):
        def f():
            if step == s0 - 3: offs(sOc, 0); run(w_ops(0) + w_ops(1))
            if step == s0 - 2:
                run([(FLOAD, "fl")])
                run(w_ops(2) + w_ops(3))
            if step == s0 - 1:
                wait_tags("fl")
                astamp(a, 3)
                keep = list(a.vm)
                a.label(lab("f1"))
                ready()
                a("s_andn2_b32 s%d, s%d, s%d" % (sT, sC, sR))
                a("s_cbranch_scc0 %s" % lab("f1ok"))
                run(["s_sleep %d" % OPT["slp"], FLOAD, "s_waitcnt vmcnt(0)", "s_branch %s" % lab("f1")])
                a.label(lab("f1ok"))
                a.vm = keep
                astamp(a, 4)
                run(o_ops(0, sOc) + o_ops(1, sOc) + o_ops(2, sOc))
                wait_tags("w0"); run(reads(0))
            if step == OPT["t1"]: wo_touch(a, 1)
            if step == 31:
                if OPT["lowp"]: a("s_setprio 0")
                run([(FLOAD, "fl")])
            if step >= s0:
                for _ in range(kp[step - s0]):
                    n = cnt[0]
                    if n % 4 == 0: offs(sOn, n // 4 + 1)
                    kstep(n, True, lambda: wait_tags("o%d" % n, "w%d" % (n + 1))); cnt[0] += 1
        return f
    for step in range(19, 32): aux_step(a, step, pre=pre(step))
    stamp(a, 3); astamp(a, 6)
    wait_tags("fl")
    ready()
    a.vm = []
    a.label(lab("retry"))
    a("s_andn2_b32 s%d, s%d, s%d" % (sT, sR, sC))
    attempt()
    a.raw(".p2align 3")
    a.label(lab("top"))
    a("s_waitcnt lgkmcnt(0)")
    a("s_cmp_eq_u32 s%d, 0\ns_cbranch_scc1 %s" % (sBit, lab("last")))
    resolve(lab("retry"))
    offs(sOn)
    for k in range(4): kstep(k, True, lambda: a("s_waitcnt vmcnt(%d)" % (2 * G)), hooks=True)
    a("s_branch %s" % lab("top"))
    a.label(lab("last"))
    for k in range(4): kstep(k, False, lambda: a("s_waitcnt vmcnt(%d)" % [2 * G, G + NR, NR, 0][k]))
    a.vm = []
    a.label(lab("idle"))
    run([FLOAD, "ds_read_b32 v159, v158", "s_waitcnt vmcnt(0) lgkmcnt(0)", "v_readfirstlane_b32 s%d, v159" % sC])
    ready()
    a.label(lab("idle2"))
    a("s_cmp_eq_u32 s%d, -1\ns_cbranch_scc1 %s" % (sC, lab("done")))
    a("s_not_b32 s%d, s%d\ns_and_b32 s%d, s%d, s%d" % (sT2, sC, sT, sR, sT2))
    a("s_cbranch_scc1 %s" % lab("cl"))
    a("s_bcnt1_i32_b32 s%d, s%d\ns_mov_b32 s%d, s%d\ns_cmp_le_u32 s%d, %d\ns_cbranch_scc1 %s" % (sT3, sT2, sT, sT2, sT3, OPT["park"], lab("cl")))
    a("s_sleep %d\ns_branch %s" % (OPT["slp"], lab("idle")))
    a.label(lab("cl"))
    attempt()
    a("s_waitcnt lgkmcnt(0)")
    resolve(lab("idle2"))
    offs(sOc)
    run(w_ops(0) + w_ops(1) + w_ops(2) + w_ops(3))
    a.label(lab("park"))
    a("s_and_b32 s%d, s%d, s%d\ns_cbranch_scc1 %s" % (sT, sR, sBit, lab("go")))
    run(["s_sleep %d" % OPT["slp"], FLOAD, "s_waitcnt vmcnt(0)"])
    ready()
    a("s_branch %s" % lab("park"))
    a.label(lab("go"))
    stamp(a, 6)
    run(o_ops(0, sOc) + o_ops(1, sOc) + o_ops(2, sOc))
    a("s_waitcnt vmcnt(%d)" % (3 * NR))
    run(reads(0))
    a("s_waitcnt vmcnt(0)")
    a("s_branch %s" % lab("retry"))
    a.label(lab("done"))
    a.vm = []; a.lgkm = []
    stamp(a, 1)
    a("s_barrier")
    a("s_mul_i32 s%d, s%d, %d" % (sT, sOpIdx, 20 * KB))
    a("v_add_u32 v9, s%d, v1" % sT)
    for i in range(NR * 4): a("ds_write_b128 v9, %s offset:%d" % (vr(176 + i * 4, 4), i * 1024))
    a("s_lshl_b32 s%d, s%d, 10" % (sT, sOpIdx))
    a("v_add_u32 v9, s%d, v1\nv_add_u32 v8, %d, v9" % (sT, 40 * KB))
    a("s_waitcnt lgkmcnt(0)")
    a("s_barrier")
    for t in range(NR):
        for w in range(4):
            a("ds_read_b128 %s, v%d offset:%d" % (vr(16 + (t * 4 + w) * 4, 4), 9 if w < 2 else 8, (w & 1) * 20 * KB + t * 4096))
    for t in range(NR):
        b = 16 + t * 16
        for r in range(4):
            a("v_add_f32 v%d, v%d, v%d" % (b + r, b + r, b + 4 + r))
            a("v_add_f32 v%d, v%d, v%d" % (b + 8 + r, b + 8 + r, b + 12 + r))
            a("v_add_f32 v%d, v%d, v%d" % (b + r, b + r, b + 8 + r))
        a("v_cvt_pk_bf16_f32 v%d, v%d, v%d\nv_cvt_pk_bf16_f32 v%d, v%d, v%d" % (b, b, b + 1, b + 1, b + 2, b + 3))
        a("s_add_u32 s%d, s%d, %d" % (sT, sOutOff, t * 32768))
        a("buffer_store_dwordx2 %s, v10, %s, s%d offen" % (vr(b, 2), SR(S_OUT), sT))
    if OPT["stamps"]:
        a("s_waitcnt vmcnt(0)")
        stamp(a, 7)
        stamp_store(a)
    a("s_endpgm")
    a.vm = []; a.lgkm = []

def kernel():
    a = Asm()
    a.raw(".globl %s\n.p2align 8\n.type %s,@function" % (NAME, NAME)); a.label(NAME)
    a("s_cmp_ge_u32 s2, 256\ns_cbranch_scc1 L_end")
    if OPT["stamps"]:
        for k in range(NST): stamp(a, k)
    a("s_and_b32 s%d, s2, 7\ns_lshr_b32 s%d, s2, 3" % (sT, sT2))
    a("s_lshr_b32 s%d, s%d, 4\ns_lshl_b32 s%d, s%d, 1\ns_add_u32 s%d, s%d, s%d" % (sGo, sT2, sT3, sT, sGo, sGo, sT3))
    a("s_and_b32 s%d, s%d, 15\ns_lshr_b32 s%d, s%d, 2" % (sJo, sT2, sBlk, sT))
    if OPT["map"] == 0:
        a("s_mov_b32 s%d, s%d\ns_mov_b32 s%d, s%d\ns_and_b32 s%d, s%d, 7" % (sG, sGo, sJJ, sJo, sB, sGo))
        a("s_and_b32 s%d, s%d, 1\ns_lshl_b32 s%d, s%d, 2\ns_add_u32 s%d, s%d, s%d" % (sRot, sG, sRot, sRot, sRot, sRot, sJJ))
    elif OPT["map"] == 1:
        a("s_and_b32 s%d, s%d, 7\ns_and_b32 s%d, s%d, 1\ns_lshl_b32 s%d, s%d, 3\ns_add_u32 s%d, s%d, s%d" % (sRot, sT2, sJJ, sT, sJJ, sJJ, sJJ, sJJ, sRot))
        a("s_lshr_b32 s%d, s%d, 3\ns_lshl_b32 s%d, s%d, 1\ns_add_u32 s%d, s%d, s%d" % (sB, sT2, sT3, sB, sRot, sRot, sT3))
        a("s_and_b32 s%d, s%d, 2\ns_lshl_b32 s%d, s%d, 1\ns_add_u32 s%d, s%d, s%d" % (sT3, sT, sT3, sT3, sB, sB, sT3))
        a("s_lshl_b32 s%d, s%d, 3\ns_add_u32 s%d, s%d, s%d" % (sG, sBlk, sG, sG, sB))
    else:
        a("s_and_b32 s%d, s%d, 3\ns_and_b32 s%d, s%d, 3\ns_lshl_b32 s%d, s%d, 2\ns_add_u32 s%d, s%d, s%d" % (sRot, sT2, sJJ, sT, sJJ, sJJ, sJJ, sJJ, sRot))
        a("s_lshr_b32 s%d, s%d, 2\ns_lshl_b32 s%d, s%d, 1\ns_add_u32 s%d, s%d, s%d" % (sB, sT2, sRot, sRot, sRot, sRot, sB))
        a("s_lshl_b32 s%d, s%d, 3\ns_add_u32 s%d, s%d, s%d" % (sG, sBlk, sG, sG, sB))
    a("s_mul_i32 s%d, s%d, 40" % (sT, sBlk))
    a("s_add_u32 s4, s0, s%d\ns_addc_u32 s5, s1, 0" % sT)
    a("s_load_dwordx8 s[80:87], s[4:5], 0")
    a("s_load_dwordx2 s[88:89], s[4:5], 32")
    a("s_load_dwordx4 s[96:99], s[0:1], 80")
    a("s_load_dwordx2 s[92:93], s[0:1], 96")
    a("s_getpc_b64 s[60:61]")
    a.label("L_pf")
    a("v_lshlrev_b32 v12, 7, v0")
    a.items.append(a._mk("v_min_u32 v12, 0x1234, v12")); a.items[-1].text = "v_min_u32 v12, L_end-L_pf, v12"
    if not OPT["nopf"]: a("global_load_dword v253, v12, s[60:61]")
    a("v_lshrrev_b32 v12, 6, v0")
    a("v_readfirstlane_b32 s%d, v12" % sW)
    if OPT["norot"]: a("s_mov_b32 s%d, 0" % sRot)
    a("s_mul_i32 s62, s%d, 147456" % sB)
    a("s_cmp_ge_u32 s%d, 6\ns_cbranch_scc1 L_auxrole" % sW)
    st = (list(a.lgkm), list(a.vm))
    a("s_cmp_ge_u32 s%d, 4\ns_cbranch_scc1 L_brole" % sW)
    head(a, "A")
    a("s_branch L_att")
    a.lgkm, a.vm = list(st[0]), list(st[1])
    a.raw(".p2align 3"); a.label("L_brole")
    head(a, "B")
    a.label("L_att")
    a("s_waitcnt vmcnt(0)")
    attention(a)
    a.lgkm, a.vm = list(st[0]), list(st[1])
    a.raw(".p2align 3"); a.label("L_auxrole")
    head(a, "X")
    aux(a)
    loops = ["L_loop"]
    vm0 = list(a.vm)
    op_path(a, 5, "a", vm0)
    op_path(a, 4, "b", vm0)
    a.label("L_end"); a("s_endpgm")
    a.pad_hazards()
    for l in loops: a.check_backedge(l, "s_cbranch_scc1 " + l)
    a.align8()
    return a.text()

out = []
out.append("; " + " ".join(sys.argv[1:]) + " : fused Q-projection + attention + O-projection, one launch (generated by dev/gen7.py)")
out.append("; @launch grid=(256,1,1) block=(512,1,1) lds=163840")
out.append('.amdgcn_target "amdgcn-amd-amdhsa--gfx950"\n.text')
out.append(kernel())
out.append('.section .rodata,"a"\n.p2align 6')
out.append(""".amdhsa_kernel %s
  .amdhsa_next_free_vgpr 256
  .amdhsa_next_free_sgpr 102
  .amdhsa_accum_offset 256
  .amdhsa_group_segment_fixed_size 0
  .amdhsa_kernarg_size 104
  .amdhsa_user_sgpr_count 2
  .amdhsa_user_sgpr_kernarg_segment_ptr 1
  .amdhsa_system_sgpr_workgroup_id_x 1
.end_amdhsa_kernel
""" % NAME)
print("\n".join(out))
```

```python
import sys, math, struct
sys.path.insert(0, "dev")
from asmlib import *

OPT = dict(stamps=0, samekv=0, clk=0, hst=0, nopoll=0, polo=2, polw=0, polx=0, polwo=0, pols=2, polkv=1, slp=4, lo=2,
           auxprio=0, sbs=1, s0=22, kp="3333333322", sst=-1, sstd=1, xo=0, xw=0, map=2, park=2, hprio=1, kv0=5, kv1=7, pk14=0, ck=0, polout=0, ptouch=0, tw0="", tw1="", g0=15, cap=0, capto=16, nol=0)
for a_ in sys.argv[1:]:
    k, v = a_.split("="); assert k in OPT, k; OPT[k] = v if k in ("kp", "tw0", "tw1") else int(v)

NAME = "concat_heads__mha_block_cached__gqa_block_cached__near_ridge_kernel"
def f32(x): return "0x%08x" % struct.unpack("<I", struct.pack("<f", x))[0]
CSCALE = math.log2(math.e) / math.sqrt(128.0)
THR = 8.0
KB = 1024
SLOT = 32 * KB
XB = [96 * KB, 114 * KB, 132 * KB]
WB = [32 * KB, 48 * KB, 0]
Q2B = 96 * KB; Q1A = 132 * KB; Q1C = 32 * KB; EX1 = 132 * KB; EX2 = 80 * KB; W2R = 132 * KB
MLB = 156 * KB; CNT = 160 * KB - 128; TAGW = CNT + 8; CLAIM = CNT + 16; PFL = CNT + 32
STAMP_OFF = 0x10000000; FLAG_OFF = 0x2000000
PHM = 0x40000000
OSTR = 128 * 9216 + 1024
MF = "v_mfma_f32_16x16x32_bf16"
NST = 8
POL = ["", " nt", " sc1", " sc0 sc1", " sc1 nt"]
NIN = sum(int(c) for c in OPT["kp"]) // 4
assert NIN * 4 == sum(int(c) for c in OPT["kp"]) and NIN <= 7

S_FL, S_WQ, S_X, S_O, S_KV, S_WO, S_OUT, S_DBG = 4, 8, 12, 16, 20, 24, 28, 32
S_OL, S_FLL = 8, 12
sW, sG, sJJ, sBlk, sB, sRot, sT, sT2, sT3 = 36, 37, 38, 39, 40, 41, 42, 43, 44
sCnt, sThr, sFl, sSlot, sDelta, sItem, sExS, sBar, sExch, sOoff = 45, 46, 47, 48, 49, 50, 51, 52, 53, 54
sNeg, sPos, sPart, sKg, sRho = 55, 56, 57, 59, 62
sHk, sHo = 46, 47
sOc, sOn, sWn, sBlkP, sRm, sBit, sR, sC = 46, 47, 48, 49, 51, 52, 55, 56
sBlkD, sBc, sBn, sOnn = 45, 53, 58, 86
sOb, sWb, sOutOff, sOpIdx, sTag, sWant, sTagA = 80, 81, 82, 83, 84, 85, 87
sGo, sJo = 94, 95

def srd(a, d, lo, hi, nrec):
    a("s_mov_b32 s%d, s%d\ns_mov_b32 s%d, s%d" % (d, lo, d + 1, hi))
    a("s_mov_b32 s%d, %s\ns_mov_b32 s%d, 0x20000" % (d + 2, nrec, d + 3))
def SR(d): return "s[%d:%d]" % (d, d + 3)

def cstamp(a, e):
    if OPT["clk"]: a("s_memtime s[%d:%d]\ns_memrealtime s[%d:%d]" % (66 + 2 * e, 67 + 2 * e, 70 + 2 * e, 71 + 2 * e))
def stamp(a, k, hs=False):
    if not OPT["stamps"] or OPT["ck"]: return
    if OPT["clk"] and 1 <= k <= 4: return
    if OPT["sst"] >= 0 and k and k != 7: return
    if OPT["hst"] and k and not hs: return
    if hs and not OPT["hst"]: return
    a("s_memrealtime s[%d:%d]" % (64 + 2 * k, 65 + 2 * k))
def stamp_store(a):
    a("s_waitcnt vmcnt(0) lgkmcnt(0)")
    a("s_cmp_eq_u32 s%d, 6\ns_cselect_b32 s%d, 256, 0" % (sW, sT))
    a("s_mul_i32 s%d, s%d, 43\ns_lshr_b32 s%d, s%d, 8\ns_mul_i32 s%d, s%d, 6" % (sT2, sW, sT2, sT2, sT2, sT2))
    a("s_cmp_lg_u32 s%d, s%d\ns_cbranch_scc1 L_end" % (sT2, sW))
    a("s_add_u32 s96, s100, 0x%x\ns_addc_u32 s97, s101, 0" % STAMP_OFF)
    a("s_mov_b32 s98, 0x100000\ns_mov_b32 s99, 0x20000")
    a("s_add_u32 s3, s2, s%d\ns_mul_i32 s3, s3, %d" % (sT, NST * 8))
    a("v_mov_b32 v12, s3\ns_mov_b64 exec, 1")
    for k in range(NST):
        a("v_mov_b32 v14, s%d\nv_mov_b32 v15, s%d" % (64 + 2 * k, 65 + 2 * k))
        a("buffer_store_dwordx2 v[14:15], v12, s[96:99], 0 offen offset:%d" % (8 * k))
        a("s_nop 1")

def lanes(a):
    a("v_and_b32 v12, 63, v0\nv_lshrrev_b32 v13, 4, v12\nv_and_b32 v14, 15, v12\nv_bfe_u32 v15, v12, 2, 2")

vK, vVa, vVb = 1, 2, 3
vX1, vX2, vX3, vX4 = 4, 5, 6, 7
vONE, vT, vQ, vO, vL, vM, vS, vF = 8, 12, 16, 64, 160, 172, 184, 208
def Q(t, s): return vr(vQ + 16 * t + 4 * s, 4)
def O(t, dt): return vr(vO + 32 * t + 4 * dt, 4)
def L(t): return vr(vL + 4 * t, 4)
def M(t): return vr(vM + 4 * t, 4)
def S(t, kt): return vr(vS + 8 * t + 4 * kt, 4)
def F(i): return vF + 4 * i
vD = 128
vFo, vDg, vDg2, vFl, vA_, vB_, vOr, vCl, vCr, vCb = 136, 137, 138, 139, 140, 141, 142, 143, 144, 145

def kv_tile(a, tile):
    slot = (tile + 2) % 3
    for grp in range(4):
        if OPT["cap"] and 2 <= tile <= OPT["capto"] + 2 and len(a.vm) > OPT["cap"] - 4: a("s_waitcnt vmcnt(%d)" % (OPT["cap"] - 4))
        a("s_add_u32 m0, s%d, %d" % (sKg, slot * SLOT + grp * 4096))
        a("s_mov_b32 s%d, %d" % (sT, tile * 16384 + grp * 4096))
        for q in range(4):
            a("buffer_load_dwordx4 v%d, %s, s%d offen offset:%d%s lds" % (vD + q + (4 if grp >= 2 else 0), SR(S_KV), sT, q * 1024, POL[OPT["polkv"]]), tag="t%d" % tile)

def srds_first(a):
    a("s_waitcnt lgkmcnt(0)")
    srd(a, S_WQ, 86, 87, "%d" % (512 * 8192))
    a("s_add_u32 s80, s80, s62\ns_addc_u32 s81, s81, 0")
    srd(a, S_X, 80, 81, "147456")

def srds_rest(a):
    a("s_mul_i32 s%d, s%d, %d\ns_add_u32 s%d, s%d, 1024\ns_add_u32 s90, s92, s%d\ns_addc_u32 s91, s93, 0" % (sT, sG, OSTR, sT, sT, sT))
    srd(a, S_O, 90, 91, "%d" % (128 * 9216))
    a("s_cmp_eq_u32 s%d, 6\ns_cselect_b32 s82, s82, s84\ns_cselect_b32 s83, s83, s85" % sW)
    a("s_lshl_b32 s%d, s%d, 4\ns_add_u32 s%d, s%d, s%d" % (sT, sB, sT, sT, sJJ))
    if OPT["samekv"]: a("s_mov_b32 s%d, 0" % sT)
    a("s_lshl_b32 s%d, s%d, 19" % (sT, sT))
    a("s_add_u32 s82, s82, s%d\ns_addc_u32 s83, s83, 0" % sT)
    srd(a, S_KV, 82, 83, "524288")
    srd(a, S_WO, 88, 89, "%d" % (4096 * 1024))
    srd(a, S_OUT, 96, 97, "%d" % (8 * 144 * 1024 * 2))
    srd(a, S_DBG, 98, 99, "256")
    a("s_lshl_b32 s%d, s%d, 8\ns_add_u32 s%d, s%d, 0x%x\ns_add_u32 s90, s92, s%d\ns_addc_u32 s91, s93, 0" % (sT, sG, sT, sT, FLAG_OFF, sT))
    srd(a, S_FL, 90, 91, "64")
    a("s_mov_b32 s100, s92\ns_mov_b32 s101, s93")
    a("s_cmp_ge_u32 s%d, 3\ns_cselect_b32 s%d, 1, 0\ns_mul_i32 s%d, s%d, 3\ns_sub_u32 s%d, s%d, s%d" % (sW, sKg, sT, sKg, sRho, sW, sT))
    a("v_and_b32 v236, 31, v0\nv_lshlrev_b32 v236, 2, v236\nv_add_u32 v236, %d, v236\nv_mov_b32 v234, 0" % CNT)
    a("ds_write_b32 v236, v234")

def q_pack(a, b, scale):
    for r in range(0, 8, 2): a("v_pk_mul_f32 %s, %s, %s" % (vr(b + r, 2), vr(b + r, 2), scale))
    for r in range(4): a("v_cvt_pk_bf16_f32 v%d, v%d, v%d" % (b + r, b + 2 * r, b + 2 * r + 1))
def q_swap(a, b):
    a("v_permlane16_swap_b32 v%d, v%d\nv_permlane16_swap_b32 v%d, v%d" % (b, b + 2, b + 1, b + 3))

def head(a, role):
    att = role != "X"; ldr = role != "A"
    NRT = 4 if ldr else 5; T0 = 5 if ldr else 0
    vHW, vHX = 224, 248
    vA1, vA2, vBx = 231, 232, 233
    cA1, cA2, cBx = 234, 235, 236
    ACC = lambda t, d: vr(16 + 8 * t + 4 * d, 4)
    BF = lambda u, t: vr(56 + 20 * u + 4 * t, 4)
    AF = lambda u, d: 96 + 8 * u + 4 * d
    NX = 5 if att else 4
    lanes(a)
    if ldr:
        a("s_and_b32 s60, s%d, 3" % sW)
        a("v_and_b32 v%d, 3, v12\nv_lshlrev_b32 v%d, 4, v%d" % (vHX, vHX, vHX))
        a("v_lshl_add_u32 v%d, v13, 6, v%d" % (vHW, vHX))
        if not att: a("v_lshl_add_u32 v%d, v15, 8, v%d" % (vD, vHW))
        a("v_lshl_add_u32 v%d, v15, 13, v%d" % (vHW, vHW))
        a("s_lshl_b32 s%d, s60, 17\ns_lshl_b32 s%d, s%d, 9\ns_add_u32 s%d, s%d, s%d" % (sT, sT2, sJJ, sT, sT, sT2))
        a("v_add_u32 v%d, s%d, v%d" % (vHW, sT, vHW))
        a("v_add_u32 v%d, %d, v%d" % (vHW + 1, 31744, vHW))
        a("v_add_u32 v%d, %d, v%d\nv_xor_b32 v%d, 32, v%d" % (vHW + 2, 2 * 31744, vHW, vHW + 2, vHW + 2))
        a("v_add_u32 v%d, %d, v%d" % (vHW + 3, 31744, vHW + 2))
        a("s_lshl_b32 s63, s60, 12")
        a("s_mul_i32 s61, s60, %d" % NX)
        if not att: a("s_add_u32 s61, s61, 2")
        a("v_and_b32 v%d, 1, v13\nv_lshl_add_u32 v%d, v%d, 6, v%d" % (vA1, vHX, vA1, vHX))
        if not att: a("v_mov_b32 v4, v%d" % vHX)
        a("v_lshl_add_u32 v%d, v15, 10, v%d" % (vHX, vHX))
        a("v_lshrrev_b32 v%d, 5, v12\nv_lshl_add_u32 v%d, v%d, 12, v%d" % (vA1, vHX, vA1, vHX))
        if not att: a("v_mov_b32 v8, v%d" % vHX)
        a("s_lshl_b32 s%d, s61, 13\ns_and_b32 s%d, s61, 1\ns_lshl_b32 s%d, s%d, 5" % (sT, sT2, sT2, sT2))
        a("v_add_u32 v%d, s%d, v%d\nv_xor_b32 v%d, s%d, v%d" % (vHX, sT, vHX, vHX, sT2, vHX))
        a("v_add_u32 v%d, 7168, v%d\nv_xor_b32 v%d, 32, v%d" % (vHX + 1, vHX, vHX + 1, vHX + 1))
        a("v_add_u32 v%d, 14336, v%d\nv_add_u32 v%d, 14336, v%d" % (vHX + 2, vHX, vHX + 3, vHX + 1))
        if att: a("v_add_u32 v%d, 32768, v%d" % (vHX + 4, vHX))
        a("s_lshl_b32 s61, s61, 10")
    def stage_ops(j):
        if not ldr: return []
        xb = XB[j % 3]; wb = WB[j % 3]
        o = []
        for qq in range(4):
            pre_ = "s_add_u32 s%d, s%d, %d\ns_and_b32 s%d, s%d, 7\ns_lshl_b32 s%d, s%d, 19\ns_add_u32 m0, s63, %d\n" % (sHk, sRot, j, sHk, sHk, sHo, sHk, wb) if qq == 0 else ""
            o.append(pre_ + "buffer_load_dwordx4 v%d, %s, s%d offen offset:%d%s lds" % (vHW + qq, SR(S_WQ), sHo, qq * 1024, POL[OPT["polw"]]))
        for e in range(NX):
            pre_ = "s_add_u32 m0, s61, %d\n" % (xb + 4096) if e == 4 else ("s_add_u32 m0, s61, %d\ns_lshl_b32 s%d, s%d, 7\n" % (xb, sHo, sHk) if e == 0 else "")
            o.append(pre_ + "buffer_load_dwordx4 v%d, %s, s%d offen offset:%d%s lds" % (vHX + e, SR(S_X), sHo, (e & 3) * 1024, POL[OPT["polx"]]))
        return [(x, "h%d" % j) for x in o]
    def stage_load(j):
        for x, t in stage_ops(j): a(x, tag=t)
    srds_first(a)
    stage_load(0)
    if role == "A" and OPT["ptouch"]:
        a("s_cmp_lg_u32 s%d, 0\ns_cbranch_scc1 L_nopt" % sW)
        a("s_lshl_b32 s%d, s%d, 4\ns_add_u32 s%d, s%d, s%d\ns_lshl_b32 s%d, s%d, 19" % (sT, sB, sT, sT, sJJ, sT, sT))
        a("v_mov_b32 v240, s%d" % sT)
        a.autowait = False
        a("global_load_dword v244, v240, s[82:83]\nglobal_load_dword v245, v240, s[84:85]")
        a("v_and_b32 v240, 1, v12\nv_lshlrev_b32 v241, 21, v240")
        a("global_load_dword v246, v241, s[88:89]\nglobal_load_dword v247, v241, s[96:97]")
        a("v_add_u32 v241, s%d, v240\nv_add_u32 v242, s%d, v240\nv_and_b32 v243, 2, v12\nv_cmp_eq_u32 vcc, 0, v243" % (sG, sGo))
        a("v_cndmask_b32 v241, v241, v242, vcc\ns_mov_b32 s%d, %d\nv_mul_lo_u32 v241, s%d, v241" % (sT, OSTR, sT))
        a("v_mov_b32 v242, 0x%x\nv_cmp_lt_u32 vcc, 3, v12\nv_cndmask_b32 v241, v241, v242, vcc" % (FLAG_OFF + 8192))
        a("global_load_dword v248, v241, s[92:93]")
        a.autowait = True
        a.label("L_nopt")
    srds_rest(a)
    a("v_and_b32 v%d, 3, v12\nv_lshlrev_b32 v%d, 3, v%d" % (vA1, vA1, vA1))
    a("v_lshl_add_u32 v%d, v15, 6, v%d" % (vA1, vA1))
    a("v_and_b32 v%d, 1, v13\nv_lshl_add_u32 v%d, v%d, 5, v%d" % (vA2, vA1, vA2, vA1))
    a("v_lshl_add_u32 v%d, v13, 10, v%d" % (vVa, vA1))
    a("v_lshl_add_u32 v%d, v13, 11, v%d" % (vA1, vA1))
    a("s_and_b32 s%d, s%d, 3\ns_lshl_b32 s%d, s%d, 8" % (sT, sW, sT, sT))
    a("v_add_u32 v%d, s%d, v%d\nv_xor_b32 v%d, 32, v%d" % (vA1, sT, vA1, vA2, vA1))
    a("v_lshrrev_b32 v%d, 3, v14\nv_lshlrev_b32 v%d, 1, v%d\nv_xor_b32 v%d, v%d, v13\nv_lshlrev_b32 v%d, 4, v%d" % (vBx, vBx, vBx, vBx, vBx, vBx, vBx))
    a("v_and_b32 v%d, 3, v14\nv_lshl_add_u32 v%d, v%d, 6, v%d" % (cBx, vBx, cBx, vBx))
    a("v_lshl_add_u32 v%d, v15, 9, v%d" % (vBx, vBx))
    if att:
        a("s_lshl_b32 s%d, s%d, 13\ns_add_u32 s%d, s%d, %d" % (sT, sKg, sT, sT, 2 * SLOT))
        a("v_add_u32 v%d, s%d, v%d\nv_add_u32 v%d, 16384, v%d\nv_xor_b32 v%d, 32, v%d" % (vVa, sT, vVa, vVa, vVa, vVb, vVa))
        a("v_lshlrev_b32 v%d, 10, v15" % vK)
        a("v_lshl_add_u32 v%d, v%d, 6, v%d" % (vK, cBx, vK))
        a("v_lshrrev_b32 v%d, 1, v13\nv_and_b32 v%d, 1, v13\nv_lshl_or_b32 v%d, v%d, 1, v%d" % (cA1, cA2, cA1, cA2, cA1))
        a("v_lshrrev_b32 v%d, 3, v14\nv_xor_b32 v%d, v%d, v%d" % (cA2, cA1, cA1, cA2))
        a("v_lshl_add_u32 v%d, v%d, 4, v%d\nv_add_u32 v%d, s%d, v%d" % (vK, cA1, vK, vK, sT, vK))
        for r in range(4): a("v_mov_b32 v%d, 0x3f803f80" % (vONE + r))
    else:
        a("s_cmp_eq_u32 s%d, 6" % sW)
        a("s_cselect_b32 s%d, 0, 32\ns_cselect_b32 s%d, 16, 0\ns_cselect_b32 s%d, 16, 32\ns_cselect_b32 s60, 0, 128\ns_cselect_b32 s%d, 0, 16384" % (sT, sT2, sT3, sKg))
        a("v_xor_b32 v%d, s%d, v%d\nv_xor_b32 v%d, s%d, v%d\nv_xor_b32 v%d, s%d, v%d" % (vD + 1, sT, vD, vD + 2, sT2, vD, vD + 3, sT3, vD))
        for q in range(4): a("v_xor_b32 v%d, s60, v%d" % (vD + 4 + q, vD + q))
        a("v_add_u32 v1, %d, v%d" % (XB[0], vBx))
    a("v_mov_b32 v238, %s\nv_mov_b32 v239, %s" % (f32(CSCALE), f32(CSCALE)))
    def reads(u):
        tr = lambda d: ["ds_read_b64_tr_b16 %s, v%d offset:%d" % (vr(AF(u, d) + 2 * rd, 2), cA2 if d else cA1, u * 8192 + rd * 1024) for rd in range(2)]
        return tr(0) + ["ds_read_b128 %s, v%d offset:%d" % (BF(u, t), cBx, (T0 + t) * 2048 + u * 256) for t in range(NRT)] + tr(1)
    def mfmas(u, first):
        return ["%s %s, %s, %s, %s" % (MF, ACC(t, d), vr(AF(u, d), 4), BF(u, t), "0" if first else ACC(t, d)) for d in range(2) for t in range(NRT)]
    stage_load(1)
    stamp(a, 1)
    def mix(ms, rs, ds=()):
        di = 0; ri = 0
        for k, x in enumerate(ms):
            a(x)
            for _ in range(2):
                if ri < len(rs): a(rs[ri]); ri += 1
            while di < len(ds) and di * len(ms) <= k * len(ds):
                a(ds[di][0], tag=ds[di][1]); di += 1
        for x, t in ds[di:]: a(x, tag=t)
    if ldr and OPT["hprio"]: a("s_setprio %d" % OPT["hprio"])
    for j in range(8):
        a.wait_vm_tag("h%d" % j)
        a("v_add_u32 v%d, %d, v%d\nv_add_u32 v%d, %d, v%d\nv_add_u32 v%d, %d, v%d" % (cA1, WB[j % 3], vA1, cA2, WB[j % 3], vA2, cBx, XB[j % 3], vBx))
        a("s_waitcnt lgkmcnt(0)")
        a("s_barrier")
        if j < 7: stamp(a, j + 1, hs=True)
        d = stage_ops(j + 2) if j + 2 < 8 else []
        cut = (len(d) + 1) // 2
        if j == 0:
            for x in reads(0): a(x)
            for x, t in d[:cut]: a(x, tag=t)
        else: mix(mfmas(1, False), reads(0), d[:cut])
        a("s_waitcnt lgkmcnt(0)")
        mix(mfmas(0, j == 0), reads(1), d[cut:])
        if not att and j == OPT["kv0"]: kv_tile(a, 0)
        if not att and j == OPT["kv1"] and j < 7: kv_tile(a, 1)
    for x in mfmas(1, False): a(x)
    a("s_and_b32 s60, s%d, 3\ns_lshl_b32 s60, s60, 10" % sW)
    a("v_lshlrev_b32 v%d, 4, v12\nv_add_u32 v%d, s60, v%d" % (cBx, cBx, cBx))
    a("v_add_u32 v%d, %d, v%d\nv_add_u32 v%d, %d, v%d" % (cA1, Q1A, cBx, cA2, Q1C, cBx))
    for t in range(NRT): q_pack(a, 16 + 8 * t, "v[238:239]")
    for t in range(NRT): q_swap(a, 16 + 8 * t)
    for t in range(NRT):
        tg = T0 + t
        a("ds_write_b128 v%d, %s offset:%d" % (cA1 if tg < 6 else cA2, vr(16 + 8 * t, 4), (tg if tg < 6 else tg - 6) * 4096))
    if ldr and OPT["hprio"]: a("s_setprio 0")
    a("s_waitcnt lgkmcnt(0)")
    a("s_barrier")
    if not att and OPT["kv1"] >= 7: kv_tile(a, 1)
    stamp(a, 2)

def pair_signal(a):
    a("s_add_u32 s%d, s%d, 1" % (sBar, sBar))
    a("v_mov_b32 v%d, s%d" % (vT, sBar))
    a("ds_write_b32 v%d, v%d" % (vX3, vT))

def pair_wait(a, name, reads):
    a.label(name)
    a("ds_read_b32 v%d, v%d" % (vT, vX4))
    for x in reads: a(x)
    a("s_waitcnt lgkmcnt(%d)" % len(reads))
    a("v_readfirstlane_b32 s%d, v%d" % (sT, vT))
    a("s_cmp_ge_u32 s%d, s%d" % (sT, sBar))
    a("s_cbranch_scc1 %s_ok" % name)
    a("s_waitcnt lgkmcnt(0)")
    if OPT["sbs"]: a("s_sleep %d" % OPT["sbs"])
    a("s_branch %s" % name)
    a.label(name + "_ok")
    a("s_waitcnt lgkmcnt(0)")

def publish(a, name, t0):
    a("s_waitcnt vmcnt(0)")
    a("s_mov_b64 exec, 1")
    a("v_mov_b32 v%d, %d\nv_mov_b32 v%d, 1" % (t0 + 2, CNT, t0 + 1))
    a("ds_add_rtn_u32 v%d, v%d, v%d offset:4" % (t0, t0 + 2, t0 + 1))
    a("ds_read_b32 v%d, v%d offset:8" % (t0 + 1, t0 + 2))
    a("s_waitcnt lgkmcnt(0)")
    a("v_readfirstlane_b32 s%d, v%d" % (sT, t0))
    a("s_cmp_lg_u32 s%d, 5" % sT)
    a("s_cbranch_scc1 %s" % name)
    a("v_or_b32 v%d, 0x%x, v%d" % (t0 + 1, PHM, t0 + 1))
    a("s_lshl_b32 s%d, s%d, 2" % (sT2, sJJ))
    a("v_mov_b32 v%d, s%d" % (t0, sT2))
    a("buffer_store_dword v%d, v%d, %s, 0 offen sc1" % (t0 + 1, t0, SR(S_FL)))
    a.label(name)
    a("s_mov_b64 exec, -1")

def attention(a):
    NT = 3; TL = 2
    a("s_waitcnt vmcnt(0)")
    a("v_lshlrev_b32 v%d, 4, v12" % vX1)
    a("s_mul_i32 s%d, s%d, %d\ns_add_u32 s%d, s%d, %d" % (sT, sRho, 12 * KB, sT, sT, Q1A))
    a("s_cmp_eq_u32 s%d, 2\ns_cselect_b32 s%d, %d, s%d" % (sRho, sT, Q1C, sT))
    a("v_add_u32 v%d, s%d, v%d" % (vX2, sT, vX1))
    for t in range(3):
        for s in range(4): a("ds_read_b128 %s, v%d offset:%d" % (Q(t, s), vX2, t * 4096 + s * 1024))
    a("s_add_u32 s%d, s%d, 3\ns_cmp_ge_u32 s%d, 6\ns_cselect_b32 s%d, 6, 0\ns_sub_u32 s%d, s%d, s%d" % (sPart, sW, sPart, sT2, sPart, sPart, sT2))
    a("s_lshl_b32 s%d, s%d, 2\ns_add_u32 s%d, s%d, %d\ns_lshl_b32 s%d, s%d, 2\ns_add_u32 s%d, s%d, %d" % (sT, sW, sT, sT, PFL, sT2, sPart, sT2, sT2, PFL))
    a("v_mov_b32 v%d, s%d\nv_mov_b32 v%d, s%d" % (vX3, sT, vX4, sT2))
    a("s_mov_b32 s%d, 0x40004000\ns_mov_b32 s%d, %s" % (sThr, sFl, f32(THR)))
    a("s_mov_b32 s%d, 0\ns_mov_b32 s%d, 0\ns_mov_b32 s%d, 2" % (sItem, sBar, sSlot))
    a("s_mul_i32 s%d, s%d, %d\ns_add_u32 s%d, s%d, %d" % (sExch, sRho, 12 * KB, sExch, sExch, Q2B))
    a("s_mov_b32 s%d, 0x%x\ns_mov_b32 s%d, %d" % (sNeg, (-2 * SLOT) & 0xffffffff, sPos, SLOT))
    a("s_lshl_b32 s%d, s%d, 3\ns_lshl_b32 s%d, s%d, 1\ns_add_u32 s%d, s%d, s%d\ns_mul_i32 s%d, s%d, 9" % (sT, sJJ, sT2, sKg, sT, sT, sT2, sT, sT))
    a("s_mul_i32 s%d, s%d, 3\ns_add_u32 s%d, s%d, s%d\ns_lshl_b32 s%d, s%d, 10\ns_add_u32 s%d, s%d, %d" % (sT2, sRho, sT, sT, sT2, sOoff, sT, sOoff, sOoff, 36 * KB))
    cstamp(a, 0)
    a.label("L_item")
    a("s_mov_b32 s%d, 0" % sCnt)
    a("s_waitcnt lgkmcnt(0)")
    Ga, Gb, Gc = 0, 4, 8
    def kread(kt, s):
        slot = (Gc + s) if kt == 0 else (Gb + s)
        return "ds_read_b128 %s, v%d offset:%d" % (vr(F(slot), 4), vK, kt * 4096 + s * 256)
    def vslot(dt): return (Ga + dt) if dt < 4 else (Gb + dt - 4)
    def vread(dt, rd):
        return "ds_read_b64_tr_b16 %s, v%d offset:%d" % (vr(F(vslot(dt)) + 2 * rd, 2), vVb if dt & 1 else vVa, rd * 4096 + (dt >> 1) * 256)
    def pv(t, dt, z=False): return "%s %s, %s, %s, %s" % (MF, O(t, dt), vr(F(vslot(dt)), 4), S(t, 0), "0" if z else O(t, dt))
    def lsum(t, z=False): return "%s %s, %s, %s, %s" % (MF, L(t), vr(vONE, 4), S(t, 0), "0" if z else L(t))
    def qk(t, kt, s, z=False):
        slot = (Gc + s) if kt == 0 else (Gb + s)
        return "%s %s, %s, %s, %s" % (MF, S(t, kt), vr(F(slot), 4), Q(t, s), ("0" if z else M(t)) if s == 0 else S(t, kt))
    EXP = lambda r: "v_exp_f32 v%d, v%d" % (r, r)
    def CVT(b, r): return "v_cvt_pk_bf16_f32 v%d, v%d, v%d" % (b + r, b + 2 * r, b + 2 * r + 1)
    def rowmax(b):
        return ["v_max3_f32 v%d, v%d, v%d, v%d" % (vT, b, b + 1, b + 2), "v_max3_f32 v%d, v%d, v%d, v%d" % (vT + 1, b + 3, b + 4, b + 5),
                "v_max3_f32 v%d, v%d, v%d, v%d" % (vT, vT, b + 6, b + 7), "v_max_f32 v%d, v%d, v%d" % (vT, vT, vT + 1),
                "v_mov_b32 v%d, v%d" % (vT + 1, vT), "v_permlane16_swap_b32 v%d, v%d" % (vT, vT + 1), "v_max_f32 v%d, v%d, v%d" % (vT, vT, vT + 1),
                "v_mov_b32 v%d, v%d" % (vT + 1, vT), "v_permlane32_swap_b32 v%d, v%d" % (vT, vT + 1), "v_max_f32 v%d, v%d, v%d" % (vT, vT, vT + 1)]
    def sm(t):
        b = vS + 8 * t
        g = [[EXP(b + r)] for r in range(4)] + [[CVT(b, 0), CVT(b, 1)]] + [[EXP(b + r)] for r in range(4, 8)] + [[CVT(b, 2), CVT(b, 3)]]
        g.append(["v_or3_b32 v%d, v%d, v%d, v%d" % (b + 4, b, b + 1, b + 2), "v_bitop3_b32 v%d, v%d, v%d, s%d bitop3:0xa8" % (b + 4, b + 4, b + 3, sThr)])
        g.append(["v_cmp_ne_u32 vcc, 0, v%d" % (b + 4)])
        return g
    def step(first):
        mf = []; fill = {}
        def put(idx, ops): fill.setdefault(idx, []).extend(ops)
        if not first: mf += [pv(TL, dt) for dt in (4, 5, 6, 7)] + [pv(TL, dt) for dt in (0, 1, 2, 3)] + [lsum(TL)]
        q0 = len(mf)
        qk_end = {}
        for t in range(NT):
            for kt in ((0, 1) if t < TL else (1, 0)):
                mf += [qk(t, kt, s, first) for s in range(4)]
                if t == TL and kt == 1: v47_at = len(mf) - 1
            qk_end[t] = len(mf) - 1
        pv_start = {}
        for t in range(TL):
            pv_start[t] = len(mf)
            mf += [pv(t, dt, first) for dt in range(4)] + [lsum(t, first)] + [pv(t, dt, first) for dt in range(4, 8)]
        n = len(mf)
        pre = [kread(0, s) for s in range(4)]
        if first:
            pre += [kread(1, s) for s in range(4)] + [vread(dt, rd) for dt in range(4) for rd in range(2)]
            pre += ["v_mov_b64 %s, 0" % vr(r, 2) for r in list(range(vO + 64, vO + 96, 2)) + [vL + 8, vL + 10]]
            pre += ["WAIT " + vr(F(Gc), 16)]
        else:
            for s in range(4): put(s, [kread(1, s)])
            for dt in range(4): put(4 + dt, [vread(dt, 0), vread(dt, 1)])
            put(8, ["WAIT " + vr(F(Gc), 16)])
        put(q0 + 3, ["WAIT " + vr(F(Gb), 16), "s_add_u32 s%d, s%d, 1" % (sSlot, sSlot)])
        put(q0 + 4, ["s_cmp_eq_u32 s%d, 3" % sSlot, "s_cselect_b32 s%d, s%d, s%d" % (sDelta, sNeg, sPos)])
        put(q0 + 5, ["s_cselect_b32 s%d, 0, s%d" % (sSlot, sSlot), "s_add_u32 s%d, s%d, 1" % (sCnt, sCnt)])
        for dt in range(4, 8): put(v47_at - 3 + (dt - 4), [vread(dt, 0), vread(dt, 1)])
        adv = ["v_add_u32 v%d, s%d, v%d" % (r, sDelta, r) for r in (vK, vVa, vVb)]
        tail = []
        if first:
            for t in range(NT):
                b = vS + 8 * t
                ops = rowmax(b) + ["v_add_f32 v%d, s%d, v%d" % (vT, sFl, vT)]
                ops += ["v_sub_f32 v%d, v%d, v%d" % (b + r, b + r, vT) for r in range(8)]
                ops += ["v_sub_f32 v%d, 0, v%d" % (vM + 4 * t + r, vT) for r in range(4)]
                ops += [EXP(b + r) for r in range(8)] + [CVT(b, r) for r in range(4)]
                lo = max(qk_end[t] + 3, [0, 21, 32][t]); hi = [20, 31, n - 1][t]
                for k, x in enumerate(ops): put(lo + k * (hi - lo + 1) // len(ops), [x])
            tail = adv
        else:
            groups = [(t, g) for t in range(NT) for g in sm(t)]
            lo = OPT["g0"]; span = n - lo
            for k, (t, g) in enumerate(groups):
                idx = lo + (k * span) // len(groups)
                assert t == TL or idx + 1 < pv_start[t], (t, idx)
                put(idx, g)
                if k % 12 == 11:
                    br = "s_cbranch_vccnz L_rare%d\nL_back%d:" % (t, t)
                    if t == 0: put(idx, [adv[0]])
                    if t == 1: put(idx, [adv[1]])
                    if t < TL: fill.setdefault(idx + 1, []).insert(0, br)
                    else: tail = [adv[2], "s_cmp_lt_u32 s%d, 16" % sCnt, br]
        put(pv_start[0] - 1, ["WAIT " + vr(F(Ga), 16)])
        put(pv_start[0] + 4, ["WAIT " + vr(F(Gb), 16)])
        a("s_barrier")
        for x in pre: a(x)
        for k, m in enumerate(mf):
            a(m)
            for x in fill.get(k, []): a(x)
        for x in tail: a(x)
    step(True)
    a.raw(".p2align 6")
    a.label("L_loop")
    step(False)
    a("s_cbranch_scc1 L_loop")
    if OPT["stamps"]:
        a("s_cmp_eq_u32 s%d, 0\ns_cbranch_scc0 L_st4" % sItem)
        stamp(a, 3); cstamp(a, 1)
        a("s_branch L_st4b")
        a.label("L_st4"); stamp(a, 4)
        a.label("L_st4b")
    a("s_cmp_eq_u32 s%d, 0" % sItem)
    a("s_cbranch_scc0 L_nomx")
    a("s_barrier")
    a("v_add_u32 v%d, s%d, v%d" % (vX2, sExch, vX1))
    for t in range(3):
        for s in range(4): a("ds_read_b128 %s, v%d offset:%d" % (Q(t, s), vX2, t * 4096 + s * 1024))
    pair_signal(a)
    a.label("L_nomx")
    a("s_lshl_b32 s%d, s%d, 12\ns_add_u32 s%d, s%d, %d" % (sT, sW, sT, sT, EX1))
    a("v_add_u32 v%d, s%d, v%d" % (vX2, sT, vX1))
    def send(t, areg, off):
        o = []
        for h in range(2):
            b = vO + 32 * t + 16 + 8 * h
            o += ["v_cvt_pk_bf16_f32 v%d, v%d, v%d" % (b + r, b + 2 * r, b + 2 * r + 1) for r in range(4)]
            o.append("ds_write_b128 v%d, %s offset:%d" % (areg, vr(b, 4), off + h * 1024))
        return o
    fin = [lsum(TL)] + [pv(TL, dt) for dt in (4, 5, 6, 7, 0, 1, 2, 3)]
    ex = send(0, vX2, 0) + send(1, vX2, 2048)
    for k, m in enumerate(fin):
        a(m)
        for x in ex[k * len(ex) // 9:(k + 1) * len(ex) // 9]: a(x)
    a("v_and_b32 v%d, 15, v0\nv_lshlrev_b32 v%d, 3, v%d" % (vT + 2, vT + 2, vT + 2))
    a("s_mul_i32 s%d, s%d, 384\ns_add_u32 s%d, s%d, %d" % (sT, sW, sT, sT, MLB))
    a("v_add_u32 v%d, s%d, v%d" % (vT + 3, sT, vT + 2))
    for t in range(3):
        a("v_mov_b32 v%d, v%d" % (vM + 4 * t + 1, vL + 4 * t))
        a("ds_write_b64 v%d, %s offset:%d" % (vT + 3, vr(vM + 4 * t, 2), t * 128))
    a("s_lshl_b32 s%d, s%d, 11\ns_add_u32 s%d, s%d, s%d" % (sT, sKg, sT, sT, sExch))
    a("v_add_u32 v%d, s%d, v%d" % (vX2, sT, vX1))
    a("s_waitcnt lgkmcnt(0)")
    pair_wait(a, "L_pw0", [])
    for x in send(2, vX2, 0): a(x)
    pair_signal(a)
    a("s_mul_i32 s%d, s%d, 384\ns_add_u32 s%d, s%d, %d" % (sT2, sPart, sT2, sT2, MLB))
    a("v_add_u32 v%d, s%d, v%d" % (vT + 3, sT2, vT + 2))
    a("v_xor_b32 v%d, 2048, v%d" % (vX2, vX2))
    a("s_lshl_b32 s%d, s%d, 12\ns_add_u32 s%d, s%d, %d" % (sT, sPart, sT, sT, EX1))
    a("v_add_u32 v%d, s%d, v%d" % (vT + 2, sT, vX1))
    a("s_waitcnt lgkmcnt(0)")
    rd = ["ds_read_b64 %s, v%d offset:%d" % (vr(vM + 4 * t + 2, 2), vT + 3, t * 128) for t in range(3)]
    for t in range(3):
        for h in range(2):
            rd.append("ds_read_b128 %s, v%d offset:%d" % (vr(vS + 8 * t + 4 * h, 4), vT + 2 if t < 2 else vX2, (t * 2048 if t < 2 else 0) + h * 1024))
    pair_wait(a, "L_pw", rd)
    for t in range(3):
        m = vM + 4 * t; l = vL + 4 * t
        a("v_min_f32 v%d, v%d, v%d" % (l, m, m + 2))
        a("v_sub_f32 v%d, v%d, v%d\nv_sub_f32 v%d, v%d, v%d" % (l + 1, l, m, l + 2, l, m + 2))
        a("v_exp_f32 v%d, v%d\nv_exp_f32 v%d, v%d" % (l + 1, l + 1, l + 2, l + 2))
        a("v_mul_f32 v%d, v%d, v%d" % (l + 3, l + 1, m + 1))
        a("v_fma_f32 v%d, v%d, v%d, v%d" % (l + 3, l + 2, m + 3, l + 3))
        a("v_rcp_f32 v%d, v%d" % (l, l + 3))
        a("v_mul_f32 v%d, v%d, v%d\nv_mul_f32 v%d, v%d, v%d" % (l + 3, l + 2, l, l + 2, l + 2, l))
        a("v_mul_f32 v%d, v%d, v%d\nv_mov_b32 v%d, v%d" % (l + 1, l + 1, l, l, l + 1))
    for t in range(3):
        l = vL + 4 * t
        for h in range(2):
            b = vO + 32 * t + 8 * h; u = b + 16; pk = vS + 8 * t + 4 * h
            for r in range(4):
                a("v_lshlrev_b32 v%d, 16, v%d\nv_and_b32 v%d, 0xffff0000, v%d" % (u + 2 * r, pk + r, u + 2 * r + 1, pk + r))
            for r in range(0, 8, 2): a("v_pk_mul_f32 %s, %s, %s" % (vr(b + r, 2), vr(b + r, 2), vr(l, 2)))
            for r in range(0, 8, 2): a("v_pk_fma_f32 %s, %s, %s, %s" % (vr(b + r, 2), vr(u + r, 2), vr(l + 2, 2), vr(b + r, 2)))
            for r in range(4): a("v_cvt_pk_bf16_f32 v%d, v%d, v%d" % (pk + r, b + 2 * r, b + 2 * r + 1))
    a("s_cmp_eq_u32 s%d, 0" % sItem)
    a("s_cbranch_scc0 L_att_done")
    for t in range(3):
        for h in range(2):
            a("ds_write_b128 v%d, %s offset:%d" % (vT + 2 if t < 2 else vX2, vr(vS + 8 * t + 4 * h, 4), (t * 2048 if t < 2 else 0) + h * 1024))
    a("s_mov_b32 s%d, 1\ns_lshl_b32 s%d, s%d, 12\ns_add_u32 s%d, s%d, %d" % (sItem, sExch, sRho, sExch, sExch, EX2))
    a("s_waitcnt lgkmcnt(0)")
    a("s_branch L_item")
    a.vm = []; a.lgkm = []
    for t in range(NT):
        b = vS + 8 * t
        a.label("L_rare%d" % t)
        a("s_nop 15")
        a("v_subrev_u32 v%d, s%d, v%d" % (vX2, sDelta, vK))
        for kt in range(2):
            for s in range(4):
                a("ds_read_b128 %s, v%d offset:%d" % (vr(vT, 4), vX2, kt * 4096 + s * 256))
                a("s_waitcnt lgkmcnt(0)")
                a("%s %s, %s, %s, %s" % (MF, S(t, kt), vr(vT, 4), Q(t, s), M(t) if s == 0 else S(t, kt)))
                a("s_nop 3")
        for x in rowmax(b): a(x)
        a("v_add_f32 v%d, s%d, v%d\nv_max_f32 v%d, 0, v%d" % (vT, sFl, vT, vT, vT))
        for r in range(8): a("v_sub_f32 v%d, v%d, v%d" % (b + r, b + r, vT))
        for r in range(4): a("v_sub_f32 v%d, v%d, v%d" % (vM + 4 * t + r, vM + 4 * t + r, vT))
        a("v_exp_f32 v%d, -v%d" % (vT + 1, vT))
        for r in range(4): a("v_mul_f32 v%d, v%d, v%d" % (vL + 4 * t + r, vL + 4 * t + r, vT + 1))
        for r in range(32): a("v_mul_f32 v%d, v%d, v%d" % (vO + 32 * t + r, vO + 32 * t + r, vT + 1))
        for r in range(8): a(EXP(b + r))
        for r in range(4): a(CVT(b, r))
        a("s_nop 3")
        a("s_branch L_back%d" % t)
    a.label("L_att_done")
    for t in range(3):
        for h in range(2):
            a("s_add_u32 s%d, s%d, %d" % (sT, sOoff, (h * 9 + t) * 1024))
            a("buffer_store_dwordx4 %s, v%d, %s, s%d offen%s" % (vr(vS + 8 * t + 4 * h, 4), vX1, SR(S_O), sT, POL[OPT["pols"]]))
    a("s_mov_b64 exec, 1")
    a("v_mov_b32 v%d, %d\nv_mov_b32 v%d, 1" % (vT + 2, CNT, vT + 1))
    a("ds_add_u32 v%d, v%d" % (vT + 2, vT + 1))
    a("s_mov_b64 exec, -1")
    a("s_cmp_lt_u32 s%d, 2" % sW)
    a("s_cbranch_scc1 L_join")
    publish(a, "L_pub_x", vT)
    a("s_endpgm")
    a.label("L_join")
    a("s_mov_b32 s%d, s%d" % (sOpIdx, sW))
    a("s_lshl_b32 s%d, s%d, 14" % (sBlkP, sW))
    a("s_cmp_eq_u32 s%d, 0\ns_cselect_b32 s%d, %d, 0\ns_cselect_b32 s%d, 0, %d\ns_add_u32 s%d, s%d, s%d" % (sW, sBlkD, 64 * KB, sT, 116 * KB, sBlkD, sBlkD, sT))
    op_setup(a)
    publish(a, "L_pub_y", 100)
    stamp(a, 5)
    a("v_mov_b32 v96, %d" % CNT)
    a.label("L_w6")
    a("ds_read_b32 v98, v96")
    a("ds_read_b32 v97, v96 offset:12")
    a("s_waitcnt lgkmcnt(0)")
    a("v_readfirstlane_b32 s%d, v98\nv_readfirstlane_b32 s%d, v97" % (sT, sTag))
    a("s_cmp_lt_u32 s%d, 6\ns_cbranch_scc1 L_w6" % sT)
    a("s_or_b32 s%d, s%d, 0x%x" % (sWant, sTag, PHM))
    a("s_cmp_eq_u32 s60, 0\ns_cbranch_scc1 L_op_a_join\ns_branch L_op_b_join")
    a.vm = []; a.lgkm = []

def wo_touch(a, phase, i):
    a("s_and_b32 s%d, s%d, 1\ns_lshl_b32 s%d, s%d, 4\ns_add_u32 s%d, s%d, s%d" % (sT, sGo, sT, sT, sT, sT, sJo))
    a("s_lshr_b32 s%d, s%d, 1\ns_lshl_b32 s%d, s%d, 18\ns_and_b32 s%d, s%d, 1\ns_lshl_b32 s%d, s%d, 16\ns_add_u32 s%d, s%d, s%d" % (sT2, sT, sT2, sT2, sT, sT, sT, sT, sT, sT, sT2))
    a("s_and_b32 s%d, s%d, 1\ns_lshl_b32 s%d, s%d, 15\ns_add_u32 s%d, s%d, s%d" % (sT2, sW, sT2, sT2, sT, sT, sT2))
    a("s_add_u32 s%d, s%d, %d" % (sT2, sT, phase * 131072 + i * 8192))
    a.autowait = False
    a("buffer_load_dword v147, v146, %s, s%d offen" % (SR(S_WO), sT2), tag="x")
    a.autowait = True

def aux_step(a, step, pre=None, extra=None):
    a.wait_vm_tag("t%d" % step)
    a("s_barrier")
    if OPT["sst"] >= 0 and step >= OPT["sst"] and (step - OPT["sst"]) % OPT["sstd"] == 0 and (step - OPT["sst"]) // OPT["sstd"] < 6:
        k_ = 1 + (step - OPT["sst"]) // OPT["sstd"]
        a("s_memrealtime s[%d:%d]" % (64 + 2 * k_, 65 + 2 * k_))
    if OPT["ck"] and step in (1, 8, 15, 31):
        k_ = (1, 8, 15, 31).index(step)
        a("s_memrealtime s[%d:%d]\ns_memtime s[%d:%d]" % (64 + 4 * k_, 65 + 4 * k_, 66 + 4 * k_, 67 + 4 * k_))
    for ph in (0, 1):
        lst = [int(x) for x in OPT["tw%d" % ph].split(",") if x]
        for i, st_ in enumerate(lst):
            if st_ == step: wo_touch(a, ph, i)
    if pre: pre()
    nxt = step + 2
    if nxt < 32 and nxt != 18: kv_tile(a, nxt)
    if extra: extra()

def aux(a):
    if OPT["auxprio"]: a("s_setprio %d" % OPT["auxprio"])
    a("v_lshlrev_b32 v%d, 2, v14\nv_lshlrev_b32 v146, 7, v12" % vFo)
    a("s_lshl_b32 s%d, s%d, 4\nv_mov_b32 v%d, s%d" % (sT, sG, vDg, sT))
    a("s_lshl_b32 s%d, s%d, 4\nv_mov_b32 v%d, s%d\nv_cmp_eq_u32 vcc, 0, v12\nv_cndmask_b32 v%d, v%d, v%d, vcc" % (sT, sGo, vDg2, sT, vDg2, vDg2, vDg))
    a("s_sub_u32 s%d, s%d, 4" % (sOpIdx, sW))
    def ACC(t, d):
        i = t * 4 + d
        return 16 + 4 * i if i < 28 else 176 + 4 * (i - 28)
    BF = lambda t: vr(208 + 4 * t, 4)
    AF = lambda d: 156 + 4 * d
    sW2, sXq = 60, 61
    a("s_and_b32 s%d, s%d, 1" % (sT3, sW))
    a("v_lshrrev_b32 v9, 5, v12\nv_lshl_add_u32 v4, v15, 13, v4\nv_lshl_add_u32 v4, v9, 15, v4")
    a("s_lshl_b32 s%d, s%d, 9\ns_lshl_b32 s%d, s%d, 7\ns_add_u32 s%d, s%d, s%d\ns_add_u32 s%d, s%d, 256" % (sT, sJJ, sT2, sT3, sT, sT, sT2, sT, sT))
    a("v_add_u32 v4, s%d, v4" % sT)
    a("v_add_u32 v5, 64512, v4\nv_xor_b32 v5, 32, v5\nv_add_u32 v6, 129024, v4\nv_add_u32 v7, 129024, v5")
    a("s_mul_i32 s%d, s%d, %d\ns_add_u32 s%d, s%d, %d" % (sW2, sT3, 12 * KB, sW2, sW2, W2R))
    a("v_add_u32 v2, s%d, v2\nv_xor_b32 v3, 32, v2" % sW2)
    a("s_lshl_b32 s%d, s%d, 5\nv_xor_b32 v8, s%d, v8\nv_xor_b32 v9, 32, v8" % (sT, sT3, sT))
    a("s_mul_i32 s%d, s%d, 9" % (sXq, sT3))
    a("v_mov_b32 v10, %s\nv_mov_b32 v11, %s" % (f32(CSCALE), f32(CSCALE)))
    def chunk(m): a("s_add_u32 s%d, s%d, %d\ns_and_b32 s%d, s%d, 7" % (sT3, sRot, (6 + m) & 7, sT3, sT3))
    def w2_load(n):
        chunk(n // 2)
        a("s_lshl_b32 s%d, s%d, 19\ns_add_u32 s%d, s%d, %d\ns_add_u32 m0, s%d, %d" % (sT2, sT3, sT2, sT2, (n & 1) << 18, sW2, (n % 3) * 4096))
        for q in range(4):
            a("buffer_load_dwordx4 v%d, %s, s%d offen offset:%d%s lds" % (4 + q, SR(S_WQ), sT2, q * 1024, POL[OPT["polw"]]), tag="q%d" % n)
    def x2_load(m):
        chunk(m)
        a("s_lshl_b32 s%d, s%d, 7\ns_lshl_b32 s%d, s%d, 13\ns_add_u32 s%d, s%d, s%d\ns_lshl_b32 s63, s%d, 10" % (sT3, sT3, sT2, sXq, sT3, sT3, sT2, sXq))
        for e in range(9):
            a("s_add_u32 m0, s63, %d\ns_add_u32 s%d, s%d, %d" % (XB[m & 1] + e * 1024, sT2, sT3, e * 8192))
            a("buffer_load_dwordx4 v%d, %s, s%d offen%s lds" % (8 + (e & 1), SR(S_X), sT2, POL[OPT["polx"]]), tag="x%d" % m)
    def q2_step(n):
        a.wait_vm_tag("q%d" % n)
        for d in range(4):
            for rd in range(2):
                a("ds_read_b64_tr_b16 %s, v%d offset:%d" % (vr(AF(d) + 2 * rd, 2), 3 if d & 1 else 2, (n % 3) * 4096 + rd * 512 + (d >> 1) * 256))
        for t in range(9): a("ds_read_b128 %s, v1 offset:%d" % (BF(t), ((n // 2) & 1) * 18 * KB + t * 2048 + (n & 1) * 256))
        a("WAIT " + vr(AF(0), 16))
        if n + 3 < 16: w2_load(n + 3)
        a("s_waitcnt lgkmcnt(0)")
        for t in range(9):
            for d in range(4):
                c = vr(ACC(t, d), 4)
                a("%s %s, %s, %s, %s" % (MF, c, vr(AF(d), 4), BF(t), "0" if n == 0 else c))
    sched = {1: [0, 1], 2: [2, 3]}
    for s_ in range(3, 15): sched[s_] = [s_ + 1]
    def pre(step):
        if step == 0:
            for n in range(3): w2_load(n)
        if step == 2: x2_load(2)
        if 3 <= step <= 11 and step % 2 == 1: x2_load((step + 3) // 2)
        for n in sched.get(step, []): q2_step(n)
        if step == 15:
            a("s_and_b32 s%d, s%d, 1\ns_lshl_b32 s%d, s%d, 11\ns_add_u32 s%d, s%d, %d" % (sT, sW, sT, sT, sT, sT, Q2B))
            a("v_lshlrev_b32 v1, 4, v12\nv_add_u32 v2, s%d, v1" % sT)
            fr = [(t, h) for t in range(9) for h in range(2)]
            for t, h in fr[OPT["pk14"]:]: q_pack(a, ACC(t, 2 * h), "v[10:11]")
            for t, h in fr: q_swap(a, ACC(t, 2 * h))
            for t, h in fr: a("ds_write_b128 v2, %s offset:%d" % (vr(ACC(t, 2 * h), 4), t * 4096 + h * 1024))
        if step == 18:
            a("s_cmp_lg_u32 s%d, 6\ns_cbranch_scc1 L_nopub" % sW)
            a("s_lshl_b32 s%d, s%d, 2\nv_mov_b32 v%d, s%d\nv_mov_b32 v%d, s%d" % (sT, sJJ, vA_, sT, vB_, sTagA))
            keep = list(a.vm)
            a("buffer_store_dword v%d, v%d, %s, 0 offen sc1" % (vB_, vA_, SR(S_FL)))
            a.vm = keep
            a.label("L_nopub")
    def extra(step):
        if step == 0:
            a("buffer_load_dword v%d, v%d, %s, 0 offen sc1" % (vFl, vFo, SR(S_FL)), tag="fl")
        if step == 3:
            cstamp(a, 0)
            a("s_lshl_b32 s%d, s%d, 3\ns_add_u32 s%d, s%d, s%d\ns_cmp_lg_u32 s%d, 6\ns_cbranch_scc1 L_nolead" % (sT, sJJ, sT, sT, sW, sT))
            a("v_lshrrev_b32 v%d, v14, v%d\nv_and_b32 v%d, 1, v%d\nv_cmp_eq_u32 vcc, 0, v%d" % (vFl, vFl, vFl, vFl, vFl))
            a("s_nop 1")
            a("s_and_b32 s%d, vcc_lo, 0xffff\ns_or_b32 s%d, s%d, 0x80000000" % (sT, sT, sT))
            a("v_mov_b32 v%d, s%d" % (vFl, sT))
            keep = list(a.vm)
            a("buffer_store_dword v%d, v%d, %s, 0 offen sc1" % (vFl, vDg, SR(S_DBG)))
            a.vm = keep
            a.label("L_nolead")
        if step == 9:
            a("buffer_load_dword v%d, v%d, %s, 0 offen sc1" % (vFl, vDg2, SR(S_DBG)), tag="fl")
        if step == 12:
            cstamp(a, 1)
            keep = list(a.vm)
            a.label("L_tag")
            a("v_cmp_eq_u32 vcc, 0, v%d" % vFl)
            a("s_cbranch_vccz L_tag_ok")
            a("s_sleep 8")
            a("buffer_load_dword v%d, v%d, %s, 0 offen sc1" % (vFl, vDg2, SR(S_DBG)))
            a("s_waitcnt vmcnt(0)")
            a("s_branch L_tag")
            a.label("L_tag_ok")
            a.vm = keep
            a("v_readlane_b32 s%d, v%d, 0\nv_readlane_b32 s%d, v%d, 1" % (sTagA, vFl, sTag, vFl))
            a("v_min_u32 v%d, 1, v12\nv_lshlrev_b32 v%d, 2, v%d\nv_add_u32 v%d, %d, v%d" % (vA_, vA_, vA_, vA_, TAGW, vA_))
            a("ds_write_b32 v%d, v%d" % (vA_, vFl))
            a("s_mov_b32 s%d, 0x%x\nv_mov_b32 v%d, s%d\nv_mov_b32 v%d, %d" % (sC, ((1 << (2 * (NIN + 1))) - 1) | (0x3f << 16), vB_, sC, vCl, CLAIM))
            a("ds_write_b32 v%d, v%d" % (vCl, vB_))
            a("s_or_b32 s%d, s%d, 0x%x" % (sWant, sTag, PHM))
            a("s_waitcnt lgkmcnt(0)")
        if step == 2: a.wait_vm_tag("x2")
        if step == 14:
            for t, h in [(t, h) for t in range(9) for h in range(2)][:OPT["pk14"]]: q_pack(a, ACC(t, 2 * h), "v[10:11]")
        if step == 15:
            a("s_waitcnt lgkmcnt(0)")
            a("s_barrier")
            kv_tile(a, 18)
        if step == 16:
            a("s_and_b32 s%d, s%d, 1" % (sT3, sW))
            a("s_mul_i32 s%d, s%d, %d\ns_add_u32 s%d, s%d, %d\nv_add_u32 v%d, s%d, v1" % (sT, sT3, 3 * 4096, sT, sT, EX1, vA_, sT))
            a("s_lshl_b32 s%d, s%d, 11\ns_add_u32 s%d, s%d, %d\nv_add_u32 v%d, s%d, v1" % (sT, sT3, sT, sT, Q2B, vB_, sT))
            fr = [(i, t, h) for i in range(3) for t in range(3) for h in range(2)]
            for n, (i, t, h) in enumerate(fr):
                if t < 2: a("ds_read_b128 %s, v%d offset:%d" % (vr(16 + 4 * n, 4), vA_, i * 4096 + t * 2048 + h * 1024))
                else: a("ds_read_b128 %s, v%d offset:%d" % (vr(16 + 4 * n, 4), vB_, i * 12 * KB + h * 1024))
            a("s_mul_i32 s%d, s%d, %d\ns_mul_i32 s%d, s%d, %d\ns_add_u32 s%d, s%d, %d\ns_sub_u32 s%d, s%d, s%d" % (sT2, sJJ, 8 * 9216, sT3, sT3, 2 * 9216, sT2, sT2, 2 * 9216, sT2, sT2, sT3))
            for n, (i, t, h) in enumerate(fr):
                a("s_add_u32 s%d, s%d, %d" % (sT, sT2, (h * 9 + 3 * i + t) * 1024))
                a("buffer_store_dwordx4 %s, v1, %s, s%d offen%s" % (vr(16 + 4 * n, 4), SR(S_O), sT, POL[OPT["pols"]]), tag="st")
            a("s_sub_u32 s%d, s%d, 6\ns_lshl_b32 s%d, s%d, 14\ns_add_u32 s%d, s%d, %d" % (sBlkP, sW, sBlkP, sBlkP, sBlkP, sBlkP, 96 * KB))
            a("s_mov_b32 s%d, 0x%x" % (sBlkD, (-64 * KB) & 0xffffffff))
            op_setup(a)
        if step == 17: a.wait_vm_tag("st")
    for step in range(19):
        aux_step(a, step, pre=lambda: pre(step), extra=lambda: extra(step))
    a("s_cmp_eq_u32 s60, 0\ns_cbranch_scc0 L_op_b_aux")

def op_setup(a):
    lanes(a)
    a("v_lshlrev_b32 v1, 4, v12\nv_add_u32 v8, 4096, v1")
    a("v_lshrrev_b32 v9, 5, v12")
    a("v_and_b32 v4, 3, v12\nv_lshlrev_b32 v5, 1, v9\nv_xor_b32 v4, v4, v5\nv_lshlrev_b32 v4, 4, v4")
    a("v_and_b32 v5, 1, v13")
    a("v_lshl_add_u32 v4, v5, 6, v4\nv_lshl_add_u32 v4, v15, 10, v4\nv_lshl_add_u32 v4, v9, 12, v4")
    a("v_and_b32 v2, 3, v12\nv_lshlrev_b32 v2, 3, v2\nv_lshl_add_u32 v2, v15, 6, v2\nv_lshl_add_u32 v2, v5, 5, v2\nv_lshl_add_u32 v2, v13, 9, v2")
    a("v_add_u32 v2, s%d, v2\nv_xor_b32 v3, 32, v2" % sBlkP)
    a("v_xor_b32 v%d, 1, v5\nv_lshlrev_b32 v%d, 30, v%d" % (vOr, vOr, vOr))
    for q in range(1, 4): a("v_add_u32 v%d, %d, v4" % (4 + q, 7168 * q))
    for r in range(176, 256, 2): a("v_mov_b64 %s, 0" % vr(r, 2))
    a("s_lshr_b32 s60, s%d, 3\ns_and_b32 s61, s%d, 7" % (sJo, sJo))
    a("s_mul_i32 s%d, s60, 5120\ns_lshl_b32 s%d, s61, 7" % (sOb, sWb))
    a("s_and_b32 s%d, s%d, 7" % (sOutOff, sGo))
    a("s_mul_i32 s%d, s%d, 144\ns_mul_i32 s%d, s60, 80\ns_add_u32 s%d, s%d, s%d\ns_lshl_b32 s%d, s%d, 11" % (sOutOff, sOutOff, sT, sOutOff, sOutOff, sT, sOutOff, sOutOff))
    a("s_lshl_b32 s%d, s%d, 10\ns_add_u32 s%d, s%d, s%d\ns_add_u32 s%d, s%d, s%d" % (sT, sBlk, sOutOff, sOutOff, sT, sOutOff, sOutOff, sWb))
    a("s_lshl_b32 s%d, s%d, 5\ns_add_u32 s%d, s%d, s%d" % (sT, sOpIdx, sOutOff, sOutOff, sT))
    a("v_lshlrev_b32 v10, 11, v14\nv_lshl_add_u32 v10, v13, 3, v10")
    a("s_and_b32 s%d, s%d, 1\ns_lshl_b32 s%d, s%d, 1\ns_add_u32 s%d, s%d, s60\ns_lshl_b32 s%d, s%d, 2" % (sT, sGo, sT, sT, sT, sT, sT, sT))
    a("s_lshl_b32 s%d, s61, 1\ns_add_u32 s%d, s%d, s%d" % (sT2, sRm, sT, sT2))
    a("v_add_u32 v11, s%d, v14\nv_and_b32 v11, 15, v11\nv_lshlrev_b32 v11, 2, v11" % sRm)
    a("v_mov_b32 v%d, %d" % (vCl, CLAIM))
    a("s_mul_i32 s%d, s%d, %d\ns_add_u32 s%d, s%d, 1024\ns_add_u32 s90, s100, s%d\ns_addc_u32 s91, s101, 0" % (sT, sGo, OSTR, sT, sT, sT))
    srd(a, S_OL, 90, 91, "%d" % (128 * 9216))
    a("s_lshl_b32 s%d, s%d, 8\ns_add_u32 s%d, s%d, 0x%x\ns_add_u32 s90, s100, s%d\ns_addc_u32 s91, s101, 0" % (sT, sGo, sT, sT, FLAG_OFF, sT))
    srd(a, S_FLL, 90, 91, "64")

def op_path(a, NR, role, vm0):
    lab = lambda s: "L_op_%s_%s" % (role, s)
    B = lambda k, t: vr(16 + ((k % 4) * 5 + t) * 4, 4)
    ACC = lambda t, ct: vr(176 + (t * 4 + ct) * 4, 4)
    G = NR + 4
    def offs(so, static=None):
        if static is not None:
            a("s_and_b32 s%d, s%d, 1\ns_add_u32 s%d, s%d, s%d\ns_add_u32 s%d, s%d, %d" % (sT, sW, sT, sT, sRm, sT, sT, 2 * static))
            a("s_and_b32 s%d, s%d, 15\ns_lshl_b32 s%d, s%d, 3" % (sT, sT, sT, sT))
        else:
            a("s_ff1_i32_b32 s%d, s%d" % (sT2, sBit))
            a("s_add_u32 s%d, s%d, s%d\ns_and_b32 s%d, s%d, 15\ns_lshl_b32 s%d, s%d, 3" % (sT, sT2, sRm, sT, sT, sT, sT))
            a("s_lshr_b32 s%d, s%d, 4\ns_lshl_b32 s%d, s%d, 2\ns_add_u32 s%d, s%d, s%d" % (sT2, sT2, sT2, sT2, sT, sT, sT2))
        a("s_mul_i32 s%d, s%d, 9216\ns_add_u32 s%d, s%d, s%d" % (so, sT, so, so, sOb))
        a("s_lshl_b32 s%d, s%d, 15\ns_add_u32 s%d, s%d, s%d" % (sWn, sT, sWn, sWn, sWb))
        if OPT["xo"]: a("s_mov_b32 s%d, s%d" % (so, sOb))
        if OPT["xw"]: a("s_mov_b32 s%d, s%d" % (sWn, sWb))
    def w_ops(n, blk=sBlkP):
        k = n % 4
        o = ["s_add_u32 m0, s%d, %d" % (blk, k * 4096), "s_add_u32 s%d, s%d, %d" % (sT2, sWn, k * 32768)]
        for q in range(4):
            o.append(("buffer_load_dwordx4 v%d, %s, s%d offen offset:%d%s lds" % (4 + q, SR(S_WO), sT2, q * 1024, POL[OPT["polwo"]]), "w%d" % n))
        return o
    def o_ops(n, so):
        k = n % 4
        o = ["s_add_u32 s%d, s%d, %d" % (sT3, so, k * 9216)]
        for t in range(NR):
            if t < 4: o.append(("buffer_load_dwordx4 %s, v1, %s, s%d offen offset:%d%s" % (B(k, t), SR(S_OL), sT3, t * 1024, POL[OPT["polo"]]), "o%d" % n))
            else: o.append(("buffer_load_dwordx4 %s, v8, %s, s%d offen%s" % (B(k, t), SR(S_OL), sT3, POL[OPT["polo"]]), "o%d" % n))
        return o
    def reads(n):
        k = n % 4; buf = 96 + 16 * (k & 1)
        return ["ds_read_b64_tr_b16 %s, v%d offset:%d" % (vr(buf + 4 * ct + 2 * rd, 2), 3 if ct & 1 else 2, k * 4096 + rd * 2048 + (ct >> 1) * 256)
                for ct in range(4) for rd in range(2)]
    def run(ops):
        for x in ops:
            a.autowait = False
            if isinstance(x, tuple): a(x[0], tag=x[1])
            else: a(x)
            a.autowait = True
    def wait_tags(*tags):
        need = None
        for k_, (t_, d_) in enumerate(a.vm):
            if t_ in tags: need = k_
        if need is not None: a("s_waitcnt vmcnt(%d)" % (len(a.vm) - 1 - need))
    FLOAD = "buffer_load_dword v9, v11, %s, 0 offen sc1" % SR(S_FLL)
    def ready():
        run(["v_or_b32 v9, v%d, v9" % vOr, "v_cmp_eq_u32 vcc, s%d, v9" % sWant, "s_nop 1", "s_mov_b32 s%d, vcc_lo" % sR])
        if OPT["nopoll"]: a("s_mov_b32 s%d, -1" % sR)
    def attempt():
        run(["s_sub_u32 s%d, 0, s%d" % (sT2, sT), "s_and_b32 s%d, s%d, s%d" % (sBit, sT, sT2),
             "v_mov_b32 v%d, s%d" % (vCb, sBit), "s_mov_b64 exec, 1", "ds_or_rtn_b32 v%d, v%d, v%d" % (vCr, vCl, vCb), "s_mov_b64 exec, -1"])
    def resolve(fail):
        run(["v_readfirstlane_b32 s%d, v%d" % (sT, vCr), "s_or_b32 s%d, s%d, s%d" % (sC, sC, sT), "s_or_b32 s%d, s%d, s%d" % (sC, sC, sBit),
             "s_and_b32 s%d, s%d, s%d" % (sT, sT, sBit), "s_cbranch_scc1 %s" % fail])
    def cands():
        run(["s_not_b32 s%d, s%d" % (sT2, sC), "s_and_b32 s%d, s%d, s%d" % (sT, sR, sT2), "s_cselect_b32 s%d, s%d, s%d" % (sT, sT, sT2)])
    def toggle(): return ["v_add_u32 v2, s%d, v2" % sBlkD, "v_add_u32 v3, s%d, v3" % sBlkD]
    def toggle_s(): return ["s_add_u32 s%d, s%d, s%d" % (sBlkP, sBlkP, sBlkD), "s_sub_u32 s%d, 0, s%d" % (sBlkD, sBlkD)]
    def kstep(n, hw, ho, wait, dyn=None):
        k = n % 4
        wait()
        a("s_waitcnt lgkmcnt(0)")
        if dyn and k == 0:
            keep = list(a.vm)
            run(["s_cmp_eq_u32 s%d, -1" % sR, "s_cbranch_scc1 %s" % lab("nf" + dyn), FLOAD]); a.label(lab("nf" + dyn))
            a.vm = keep
        if dyn and hw and k == 2: run(["ds_read_b32 v%d, v%d" % (vCr, vCl)])
        if dyn and k == 3:
            run(["s_cmp_eq_u32 s%d, -1" % sR, "s_cbranch_scc1 %s" % lab("nr" + dyn)]); ready(); a.label(lab("nr" + dyn))
            run(["s_mov_b32 s%d, s%d" % (sBc, sBn), "s_mov_b32 s%d, s%d" % (sBn, sBit)])
            if hw:
                run(["v_readfirstlane_b32 s%d, v%d" % (sT, vCr), "s_or_b32 s%d, s%d, s%d" % (sC, sC, sT)])
                cands(); attempt()
            run(toggle())
        fillers = (reads(n + 1) if (ho or k < 3) else []) + (w_ops(n + 4) if hw else []) + (o_ops(n + 3, sOc) if k == 0 else (o_ops(n + 3, sOn) if ho else []))
        buf = 96 + 16 * (k & 1)
        ms = ["%s %s, %s, %s, %s" % (MF, ACC(t, ct), vr(buf + 4 * ct, 4), B(k, t), ACC(t, ct)) for ct in range(4) for t in range(NR)]
        fi = 0
        for i, m in enumerate(ms):
            run([m])
            tgt = ((i + 1) * len(fillers) + len(ms) - 3) // (len(ms) - 2)
            while fi < min(tgt, len(fillers)):
                run([fillers[fi]]); fi += 1
        a.lgkm = []
        if k == 3:
            a("s_mov_b32 s%d, s%d" % (sOc, sOn))
            if dyn: run(["s_mov_b32 s%d, s%d" % (sOn, sOnn)] + toggle_s())
    a.vm = list(vm0)
    a.label(lab("aux"))
    s0 = OPT["s0"]; kp = [int(c) for c in OPT["kp"]]
    assert len(kp) == 32 - s0 and s0 >= 22
    cnt = [0]
    def pre(step):
        def f():
            if step == s0 - 3: offs(sOc, 0); run(w_ops(0) + w_ops(1))
            if step == s0 - 2:
                run([(FLOAD, "fl")])
                run(w_ops(2) + w_ops(3))
            if step == s0 - 1:
                wait_tags("fl")
                keep = list(a.vm)
                a.label(lab("f1"))
                ready()
                a("s_andn2_b32 s%d, 0x%x, s%d" % (sT, (1 << (2 * (NIN + 1))) - 1, sR))
                a("s_cbranch_scc0 %s" % lab("f1ok"))
                run(["s_sleep %d" % OPT["slp"], FLOAD, "s_waitcnt vmcnt(0)", "s_branch %s" % lab("f1")])
                a.label(lab("f1ok"))
                a.vm = keep
                run(o_ops(0, sOc) + o_ops(1, sOc) + o_ops(2, sOc))
                wait_tags("w0"); run(reads(0))
            if step == 31:
                if OPT["auxprio"]: a("s_setprio 0")
                run([(FLOAD, "fl")])
            if step >= s0:
                for _ in range(kp[step - s0]):
                    n = cnt[0]
                    if n % 4 == 0: offs(sOn, n // 4 + 1)
                    kstep(n, True, True, lambda: wait_tags("o%d" % n, "w%d" % (n + 1))); cnt[0] += 1
        return f
    for step in range(19, 32): aux_step(a, step, pre=pre(step))
    stamp(a, 3)
    a("s_and_b32 s%d, s%d, 1\ns_lshl_b32 s%d, 0x10000, s%d\ns_mov_b32 s%d, s%d" % (sT, sW, sBit, sT, sBn, sBit))
    offs(sOn)
    a("s_add_u32 s63, s%d, s%d" % (sBlkP, sBlkD))
    for n in range(4): run(w_ops(n, 63))
    wait_tags("fl", "o%d" % (cnt[0] + 2), "w%d" % (cnt[0] + 3))
    ready()
    a.vm = []
    a.label(lab("retry"))
    cands(); attempt()
    a.raw(".p2align 3")
    a.label(lab("top"))
    a("s_waitcnt lgkmcnt(0)")
    a("s_cmp_eq_u32 s%d, 0\ns_cbranch_scc1 %s" % (sBit, lab("now")))
    resolve(lab("retry"))
    offs(sOnn)
    def body(hw, ho):
        g0 = 4 * hw + NR; g = 4 * hw + NR * ho
        for k in range(4): kstep(k, hw, ho, lambda: a("s_waitcnt vmcnt(%d)" % [2 * g0, 2 * g0, g0 + g, 2 * g][k]), dyn="%d%d" % (hw, ho))
        a("s_branch %s" % lab("top" if ho else "wait"))
    a("s_and_b32 s%d, s%d, s%d\ns_cbranch_scc0 %s" % (sT, sR, sBn, lab("b10")))
    body(1, 1)
    a.label(lab("b10")); body(1, 0)
    a.label(lab("now"))
    a("s_and_b32 s%d, s%d, s%d\ns_cbranch_scc0 %s" % (sT, sR, sBn, lab("b00")))
    body(0, 1)
    a.label(lab("b00")); body(0, 0)
    a.vm = []
    a.label(lab("join"))
    run([FLOAD])
    a("s_lshl_b32 s%d, 0x40000, s%d\ns_mov_b32 s%d, s%d" % (sBit, sW, sBc, sBit))
    offs(sOc)
    for n in range(4): run(w_ops(n))
    a("s_lshl_b32 s%d, 0x100000, s%d\ns_mov_b32 s%d, s%d" % (sBit, sW, sBn, sBit))
    offs(sOn)
    a("s_add_u32 s63, s%d, s%d" % (sBlkP, sBlkD))
    for n in range(4): run(w_ops(n, 63))
    run(["ds_read_b32 v%d, v%d" % (vCr, vCl), "s_waitcnt vmcnt(32) lgkmcnt(0)", "v_readfirstlane_b32 s%d, v%d" % (sC, vCr)])
    ready()
    cands(); attempt()
    a.label(lab("wait"))
    a("s_and_b32 s%d, s%d, s%d\ns_cbranch_scc1 %s" % (sT, sR, sBc, lab("go")))
    a("s_and_b32 s%d, s%d, s%d\ns_cbranch_scc1 %s" % (sT, sR, sBn, lab("swap")))
    a("s_or_b32 s%d, s%d, s%d\ns_cbranch_scc0 %s" % (sT, sBc, sBn, lab("done")))
    run(["s_sleep %d" % OPT["slp"], FLOAD, "s_waitcnt vmcnt(0)"])
    ready()
    a("s_branch %s" % lab("wait"))
    a.label(lab("swap"))
    run(["s_mov_b32 s%d, s%d" % (sT, sBc), "s_mov_b32 s%d, s%d" % (sBc, sBn), "s_mov_b32 s%d, s%d" % (sBn, sT),
         "s_mov_b32 s%d, s%d" % (sT, sOc), "s_mov_b32 s%d, s%d" % (sOc, sOn), "s_mov_b32 s%d, s%d" % (sOn, sT)] + toggle() + toggle_s())
    a.label(lab("go"))
    stamp(a, 6)
    run(o_ops(0, sOc) + o_ops(1, sOc) + o_ops(2, sOc))
    a("s_waitcnt vmcnt(%d)" % (3 * NR))
    run(reads(0))
    a("s_waitcnt vmcnt(0)")
    a("s_branch %s" % lab("top"))
    a.label(lab("done"))
    a.vm = []; a.lgkm = []
    stamp(a, 1)
    a("s_barrier")
    a("s_mul_i32 s%d, s%d, %d" % (sT, sOpIdx, 20 * KB))
    a("v_add_u32 v9, s%d, v1" % sT)
    for i in range(NR * 4): a("ds_write_b128 v9, %s offset:%d" % (vr(176 + i * 4, 4), i * 1024))
    a("s_lshl_b32 s%d, s%d, 10" % (sT, sOpIdx))
    a("v_add_u32 v9, s%d, v1\nv_add_u32 v8, %d, v9" % (sT, 40 * KB))
    a("s_waitcnt lgkmcnt(0)")
    a("s_barrier")
    for t in range(NR):
        for w in range(4):
            a("ds_read_b128 %s, v%d offset:%d" % (vr(16 + (t * 4 + w) * 4, 4), 9 if w < 2 else 8, (w & 1) * 20 * KB + t * 4096))
    for t in range(NR):
        b = 16 + t * 16
        for r in range(0, 4, 2):
            a("v_pk_add_f32 %s, %s, %s" % (vr(b + r, 2), vr(b + r, 2), vr(b + 4 + r, 2)))
            a("v_pk_add_f32 %s, %s, %s" % (vr(b + 8 + r, 2), vr(b + 8 + r, 2), vr(b + 12 + r, 2)))
            a("v_pk_add_f32 %s, %s, %s" % (vr(b + r, 2), vr(b + r, 2), vr(b + 8 + r, 2)))
        a("v_cvt_pk_bf16_f32 v%d, v%d, v%d\nv_cvt_pk_bf16_f32 v%d, v%d, v%d" % (b, b, b + 1, b + 1, b + 2, b + 3))
        a("s_add_u32 s%d, s%d, %d" % (sT, sOutOff, t * 32768))
        a("buffer_store_dwordx2 %s, v10, %s, s%d offen%s" % (vr(b, 2), SR(S_OUT), sT, POL[OPT["polout"]]))
    if OPT["stamps"]:
        a("s_waitcnt vmcnt(0)")
        stamp(a, 7)
        stamp_store(a)
    a("s_endpgm")
    a.vm = []; a.lgkm = []

def kernel():
    a = Asm()
    a.raw(".globl %s\n.p2align 8\n.type %s,@function" % (NAME, NAME)); a.label(NAME)
    a("s_cmp_ge_u32 s2, 256\ns_cbranch_scc1 L_end")
    if OPT["stamps"]:
        for k in range(NST): a("s_memrealtime s[%d:%d]" % (64 + 2 * k, 65 + 2 * k))
    a("s_and_b32 s%d, s2, 7\ns_lshr_b32 s%d, s2, 3\ns_lshr_b32 s%d, s%d, 2" % (sT, sT2, sBlk, sT))
    a("s_mul_i32 s%d, s%d, 40" % (sT3, sBlk))
    a("s_add_u32 s4, s0, s%d\ns_addc_u32 s5, s1, 0" % sT3)
    a("s_load_dwordx8 s[80:87], s[4:5], 0")
    a("s_load_dwordx2 s[88:89], s[4:5], 32")
    a("s_load_dwordx4 s[96:99], s[0:1], 80")
    a("s_load_dwordx2 s[92:93], s[0:1], 96")
    a("s_lshr_b32 s%d, s%d, 4\ns_lshl_b32 s%d, s%d, 1\ns_add_u32 s%d, s%d, s%d" % (sGo, sT2, sT3, sT, sGo, sGo, sT3))
    a("s_and_b32 s%d, s%d, 15" % (sJo, sT2))
    if OPT["map"] == 0:
        a("s_mov_b32 s%d, s%d\ns_mov_b32 s%d, s%d\ns_and_b32 s%d, s%d, 7" % (sG, sGo, sJJ, sJo, sB, sGo))
        a("s_and_b32 s%d, s%d, 1\ns_lshl_b32 s%d, s%d, 2\ns_add_u32 s%d, s%d, s%d" % (sRot, sG, sRot, sRot, sRot, sRot, sJJ))
    elif OPT["map"] == 1:
        a("s_and_b32 s%d, s%d, 7\ns_and_b32 s%d, s%d, 1\ns_lshl_b32 s%d, s%d, 3\ns_add_u32 s%d, s%d, s%d" % (sRot, sT2, sJJ, sT, sJJ, sJJ, sJJ, sJJ, sRot))
        a("s_lshr_b32 s%d, s%d, 3\ns_lshl_b32 s%d, s%d, 1\ns_add_u32 s%d, s%d, s%d" % (sB, sT2, sT3, sB, sRot, sRot, sT3))
        a("s_and_b32 s%d, s%d, 2\ns_lshl_b32 s%d, s%d, 1\ns_add_u32 s%d, s%d, s%d" % (sT3, sT, sT3, sT3, sB, sB, sT3))
        a("s_lshl_b32 s%d, s%d, 3\ns_add_u32 s%d, s%d, s%d" % (sG, sBlk, sG, sG, sB))
    else:
        a("s_and_b32 s%d, s%d, 3\ns_and_b32 s%d, s%d, 3\ns_lshl_b32 s%d, s%d, 2\ns_add_u32 s%d, s%d, s%d" % (sRot, sT2, sJJ, sT, sJJ, sJJ, sJJ, sJJ, sRot))
        a("s_lshr_b32 s%d, s%d, 2\ns_lshl_b32 s%d, s%d, 1\ns_add_u32 s%d, s%d, s%d" % (sB, sT2, sRot, sRot, sRot, sRot, sB))
        a("s_lshl_b32 s%d, s%d, 3\ns_add_u32 s%d, s%d, s%d" % (sG, sBlk, sG, sG, sB))
    a("s_getpc_b64 s[60:61]")
    a.label("L_pf")
    a("v_lshlrev_b32 v12, 7, v0")
    a.items.append(a._mk("v_min_u32 v12, 0x1234, v12")); a.items[-1].text = "v_min_u32 v12, L_end-L_pf, v12"
    a("global_load_dword v253, v12, s[60:61]")
    a("v_lshrrev_b32 v12, 6, v0")
    a("v_readfirstlane_b32 s%d, v12" % sW)
    a("s_mul_i32 s62, s%d, 147456" % sB)
    a("s_cmp_ge_u32 s%d, 6\ns_cbranch_scc1 L_auxrole" % sW)
    st = (list(a.lgkm), list(a.vm))
    a("s_cmp_ge_u32 s%d, 4\ns_cbranch_scc1 L_brole" % sW)
    head(a, "A")
    a("s_branch L_att")
    a.lgkm, a.vm = list(st[0]), list(st[1])
    a.raw(".p2align 3"); a.label("L_brole")
    head(a, "B")
    a.label("L_att")
    attention(a)
    a.lgkm, a.vm = list(st[0]), list(st[1])
    a.raw(".p2align 3"); a.label("L_auxrole")
    head(a, "X")
    aux(a)
    vm0 = list(a.vm)
    op_path(a, 5, "a", vm0)
    op_path(a, 4, "b", vm0)
    a.label("L_end"); a("s_endpgm")
    a.pad_hazards()
    a.check_backedge("L_loop", "s_cbranch_scc1 L_loop")
    a.align8()
    return a.text()

out = []
out.append("; " + " ".join(sys.argv[1:]) + " : fused Q-projection + attention + O-projection, one launch (generated by dev/gen10.py)")
out.append("; @launch grid=(256,1,1) block=(512,1,1) lds=163840")
out.append('.amdgcn_target "amdgcn-amd-amdhsa--gfx950"\n.text')
out.append(kernel())
out.append('.section .rodata,"a"\n.p2align 6')
out.append(""".amdhsa_kernel %s
  .amdhsa_next_free_vgpr 256
  .amdhsa_next_free_sgpr 102
  .amdhsa_accum_offset 256
  .amdhsa_group_segment_fixed_size 0
  .amdhsa_kernarg_size 104
  .amdhsa_user_sgpr_count 2
  .amdhsa_user_sgpr_kernarg_segment_ptr 1
  .amdhsa_system_sgpr_workgroup_id_x 1
.end_amdhsa_kernel
""" % NAME)
print("\n".join(out))
```

```python
import sys, math, struct
sys.path.insert(0, "dev")
from asmlib import *

OPT = dict(stamps=0, samekv=0, clk=0, hst=0, nopoll=0, polo=2, polw=0, polx=0, polwo=0, pols=2, polkv=1, slp=4, lo=2,
           auxprio=0, sbs=1, s0=22, kp="3333333322", sst=-1, sstd=1, xo=0, xw=0, map=2, park=2, hprio=1, kv0=5, kv1=7, pk14=0, ck=0, polout=0, ptouch=0, tw0="", tw1="", g0=15, cap=0, capto=16, nol=0, nq2m=0, nq2r=0)
for a_ in sys.argv[1:]:
    k, v = a_.split("="); assert k in OPT, k; OPT[k] = v if k in ("kp", "tw0", "tw1") else int(v)

NAME = "concat_heads__mha_block_cached__gqa_block_cached__near_ridge_kernel"
def f32(x): return "0x%08x" % struct.unpack("<I", struct.pack("<f", x))[0]
CSCALE = math.log2(math.e) / math.sqrt(128.0)
THR = 8.0
KB = 1024
SLOT = 32 * KB
XB = [96 * KB, 114 * KB, 132 * KB]
WB = [32 * KB, 48 * KB, 0]
Q2B = 96 * KB; Q1A = 132 * KB; Q1C = 32 * KB; EX1 = 132 * KB; EX2 = 80 * KB; W2R = 132 * KB
MLB = 156 * KB; CNT = 160 * KB - 128; TAGW = CNT + 8; CLAIM = CNT + 16; PFL = CNT + 32
STAMP_OFF = 0x10000000; FLAG_OFF = 0x2000000
PHM = 0x40000000
OSTR = 128 * 9216 + 1024
MF = "v_mfma_f32_16x16x32_bf16"
NST = 8
POL = ["", " nt", " sc1", " sc0 sc1", " sc1 nt"]
NIN = sum(int(c) for c in OPT["kp"]) // 4
assert NIN * 4 == sum(int(c) for c in OPT["kp"]) and NIN <= 7

S_FL, S_WQ, S_X, S_O, S_KV, S_WO, S_OUT, S_DBG = 4, 8, 12, 16, 20, 24, 28, 32
S_OL, S_FLL = 8, 12
sW, sG, sJJ, sBlk, sB, sRot, sT, sT2, sT3 = 36, 37, 38, 39, 40, 41, 42, 43, 44
sCnt, sThr, sFl, sSlot, sDelta, sItem, sExS, sBar, sExch, sOoff = 45, 46, 47, 48, 49, 50, 51, 52, 53, 54
sNeg, sPos, sPart, sKg, sRho = 55, 56, 57, 59, 62
sHk, sHo = 46, 47
sOc, sOn, sWn, sBlkP, sRm, sBit, sR, sC = 46, 47, 48, 49, 51, 52, 55, 56
sOb, sWb, sOutOff, sOpIdx, sTag, sWant, sTagA = 80, 81, 82, 83, 84, 85, 87
sGo, sJo = 94, 95

def srd(a, d, lo, hi, nrec):
    a("s_mov_b32 s%d, s%d\ns_mov_b32 s%d, s%d" % (d, lo, d + 1, hi))
    a("s_mov_b32 s%d, %s\ns_mov_b32 s%d, 0x20000" % (d + 2, nrec, d + 3))
def SR(d): return "s[%d:%d]" % (d, d + 3)

def cstamp(a, e):
    if OPT["clk"]: a("s_memtime s[%d:%d]\ns_memrealtime s[%d:%d]" % (66 + 2 * e, 67 + 2 * e, 70 + 2 * e, 71 + 2 * e))
def stamp(a, k, hs=False):
    if not OPT["stamps"] or OPT["ck"]: return
    if OPT["clk"] and 1 <= k <= 4: return
    if OPT["sst"] >= 0 and k and k != 7: return
    if OPT["hst"] and k and not hs: return
    if hs and not OPT["hst"]: return
    a("s_memrealtime s[%d:%d]" % (64 + 2 * k, 65 + 2 * k))
def stamp_store(a):
    a("s_waitcnt vmcnt(0) lgkmcnt(0)")
    a("s_cmp_eq_u32 s%d, 6\ns_cselect_b32 s%d, 256, 0" % (sW, sT))
    a("s_mul_i32 s%d, s%d, 43\ns_lshr_b32 s%d, s%d, 8\ns_mul_i32 s%d, s%d, 6" % (sT2, sW, sT2, sT2, sT2, sT2))
    a("s_cmp_lg_u32 s%d, s%d\ns_cbranch_scc1 L_end" % (sT2, sW))
    a("s_add_u32 s96, s100, 0x%x\ns_addc_u32 s97, s101, 0" % STAMP_OFF)
    a("s_mov_b32 s98, 0x100000\ns_mov_b32 s99, 0x20000")
    a("s_add_u32 s3, s2, s%d\ns_mul_i32 s3, s3, %d" % (sT, NST * 8))
    a("v_mov_b32 v12, s3\ns_mov_b64 exec, 1")
    for k in range(NST):
        a("v_mov_b32 v14, s%d\nv_mov_b32 v15, s%d" % (64 + 2 * k, 65 + 2 * k))
        a("buffer_store_dwordx2 v[14:15], v12, s[96:99], 0 offen offset:%d" % (8 * k))
        a("s_nop 1")

def lanes(a):
    a("v_and_b32 v12, 63, v0\nv_lshrrev_b32 v13, 4, v12\nv_and_b32 v14, 15, v12\nv_bfe_u32 v15, v12, 2, 2")

vK, vVa, vVb = 1, 2, 3
vX1, vX2, vX3, vX4 = 4, 5, 6, 7
vONE, vT, vQ, vO, vL, vM, vS, vF = 8, 12, 16, 64, 160, 172, 184, 208
def Q(t, s): return vr(vQ + 16 * t + 4 * s, 4)
def O(t, dt): return vr(vO + 32 * t + 4 * dt, 4)
def L(t): return vr(vL + 4 * t, 4)
def M(t): return vr(vM + 4 * t, 4)
def S(t, kt): return vr(vS + 8 * t + 4 * kt, 4)
def F(i): return vF + 4 * i
vD = 128
vFo, vDg, vDg2, vFl, vA_, vB_, vOr, vCl, vCr, vCb = 136, 137, 138, 139, 140, 141, 142, 143, 144, 145

def kv_tile(a, tile):
    slot = (tile + 2) % 3
    for grp in range(4):
        if OPT["cap"] and 2 <= tile <= OPT["capto"] + 2 and len(a.vm) > OPT["cap"] - 4: a("s_waitcnt vmcnt(%d)" % (OPT["cap"] - 4))
        a("s_add_u32 m0, s%d, %d" % (sKg, slot * SLOT + grp * 4096))
        a("s_mov_b32 s%d, %d" % (sT, tile * 16384 + grp * 4096))
        for q in range(4):
            a("buffer_load_dwordx4 v%d, %s, s%d offen offset:%d%s lds" % (vD + q + (4 if grp >= 2 else 0), SR(S_KV), sT, q * 1024, POL[OPT["polkv"]]), tag="t%d" % tile)

def srds_first(a):
    a("s_waitcnt lgkmcnt(0)")
    srd(a, S_WQ, 86, 87, "%d" % (512 * 8192))
    a("s_add_u32 s80, s80, s62\ns_addc_u32 s81, s81, 0")
    srd(a, S_X, 80, 81, "147456")

def srds_rest(a):
    a("s_mul_i32 s%d, s%d, %d\ns_add_u32 s%d, s%d, 1024\ns_add_u32 s90, s92, s%d\ns_addc_u32 s91, s93, 0" % (sT, sG, OSTR, sT, sT, sT))
    srd(a, S_O, 90, 91, "%d" % (128 * 9216))
    a("s_cmp_eq_u32 s%d, 6\ns_cselect_b32 s82, s82, s84\ns_cselect_b32 s83, s83, s85" % sW)
    a("s_lshl_b32 s%d, s%d, 4\ns_add_u32 s%d, s%d, s%d" % (sT, sB, sT, sT, sJJ))
    if OPT["samekv"]: a("s_mov_b32 s%d, 0" % sT)
    a("s_lshl_b32 s%d, s%d, 19" % (sT, sT))
    a("s_add_u32 s82, s82, s%d\ns_addc_u32 s83, s83, 0" % sT)
    srd(a, S_KV, 82, 83, "524288")
    srd(a, S_WO, 88, 89, "%d" % (4096 * 1024))
    srd(a, S_OUT, 96, 97, "%d" % (8 * 144 * 1024 * 2))
    srd(a, S_DBG, 98, 99, "256")
    a("s_lshl_b32 s%d, s%d, 8\ns_add_u32 s%d, s%d, 0x%x\ns_add_u32 s90, s92, s%d\ns_addc_u32 s91, s93, 0" % (sT, sG, sT, sT, FLAG_OFF, sT))
    srd(a, S_FL, 90, 91, "64")
    a("s_mov_b32 s100, s92\ns_mov_b32 s101, s93")
    a("s_cmp_ge_u32 s%d, 3\ns_cselect_b32 s%d, 1, 0\ns_mul_i32 s%d, s%d, 3\ns_sub_u32 s%d, s%d, s%d" % (sW, sKg, sT, sKg, sRho, sW, sT))
    a("v_and_b32 v236, 31, v0\nv_lshlrev_b32 v236, 2, v236\nv_add_u32 v236, %d, v236\nv_mov_b32 v234, 0" % CNT)
    a("ds_write_b32 v236, v234")

def q_pack(a, b, scale):
    for r in range(0, 8, 2): a("v_pk_mul_f32 %s, %s, %s" % (vr(b + r, 2), vr(b + r, 2), scale))
    for r in range(4): a("v_cvt_pk_bf16_f32 v%d, v%d, v%d" % (b + r, b + 2 * r, b + 2 * r + 1))
def q_swap(a, b):
    a("v_permlane16_swap_b32 v%d, v%d\nv_permlane16_swap_b32 v%d, v%d" % (b, b + 2, b + 1, b + 3))

def head(a, role):
    att = role != "X"; ldr = role != "A"
    NRT = 4 if ldr else 5; T0 = 5 if ldr else 0
    vHW, vHX = 224, 248
    vA1, vA2, vBx = 231, 232, 233
    cA1, cA2, cBx = 234, 235, 236
    ACC = lambda t, d: vr(16 + 8 * t + 4 * d, 4)
    BF = lambda u, t: vr(56 + 20 * u + 4 * t, 4)
    AF = lambda u, d: 96 + 8 * u + 4 * d
    NX = 5 if att else 4
    lanes(a)
    if ldr:
        a("s_and_b32 s60, s%d, 3" % sW)
        a("v_and_b32 v%d, 3, v12\nv_lshlrev_b32 v%d, 4, v%d" % (vHX, vHX, vHX))
        a("v_lshl_add_u32 v%d, v13, 6, v%d" % (vHW, vHX))
        if not att: a("v_lshl_add_u32 v%d, v15, 8, v%d" % (vD, vHW))
        a("v_lshl_add_u32 v%d, v15, 13, v%d" % (vHW, vHW))
        a("s_lshl_b32 s%d, s60, 17\ns_lshl_b32 s%d, s%d, 9\ns_add_u32 s%d, s%d, s%d" % (sT, sT2, sJJ, sT, sT, sT2))
        a("v_add_u32 v%d, s%d, v%d" % (vHW, sT, vHW))
        a("v_add_u32 v%d, %d, v%d" % (vHW + 1, 31744, vHW))
        a("v_add_u32 v%d, %d, v%d\nv_xor_b32 v%d, 32, v%d" % (vHW + 2, 2 * 31744, vHW, vHW + 2, vHW + 2))
        a("v_add_u32 v%d, %d, v%d" % (vHW + 3, 31744, vHW + 2))
        a("s_lshl_b32 s63, s60, 12")
        a("s_mul_i32 s61, s60, %d" % NX)
        if not att: a("s_add_u32 s61, s61, 2")
        a("v_and_b32 v%d, 1, v13\nv_lshl_add_u32 v%d, v%d, 6, v%d" % (vA1, vHX, vA1, vHX))
        if not att: a("v_mov_b32 v4, v%d" % vHX)
        a("v_lshl_add_u32 v%d, v15, 10, v%d" % (vHX, vHX))
        a("v_lshrrev_b32 v%d, 5, v12\nv_lshl_add_u32 v%d, v%d, 12, v%d" % (vA1, vHX, vA1, vHX))
        if not att: a("v_mov_b32 v8, v%d" % vHX)
        a("s_lshl_b32 s%d, s61, 13\ns_and_b32 s%d, s61, 1\ns_lshl_b32 s%d, s%d, 5" % (sT, sT2, sT2, sT2))
        a("v_add_u32 v%d, s%d, v%d\nv_xor_b32 v%d, s%d, v%d" % (vHX, sT, vHX, vHX, sT2, vHX))
        a("v_add_u32 v%d, 7168, v%d\nv_xor_b32 v%d, 32, v%d" % (vHX + 1, vHX, vHX + 1, vHX + 1))
        a("v_add_u32 v%d, 14336, v%d\nv_add_u32 v%d, 14336, v%d" % (vHX + 2, vHX, vHX + 3, vHX + 1))
        if att: a("v_add_u32 v%d, 32768, v%d" % (vHX + 4, vHX))
        a("s_lshl_b32 s61, s61, 10")
    def stage_ops(j):
        if not ldr: return []
        xb = XB[j % 3]; wb = WB[j % 3]
        o = []
        for qq in range(4):
            pre_ = "s_add_u32 s%d, s%d, %d\ns_and_b32 s%d, s%d, 7\ns_lshl_b32 s%d, s%d, 19\ns_add_u32 m0, s63, %d\n" % (sHk, sRot, j, sHk, sHk, sHo, sHk, wb) if qq == 0 else ""
            o.append(pre_ + "buffer_load_dwordx4 v%d, %s, s%d offen offset:%d%s lds" % (vHW + qq, SR(S_WQ), sHo, qq * 1024, POL[OPT["polw"]]))
        for e in range(NX):
            pre_ = "s_add_u32 m0, s61, %d\n" % (xb + 4096) if e == 4 else ("s_add_u32 m0, s61, %d\ns_lshl_b32 s%d, s%d, 7\n" % (xb, sHo, sHk) if e == 0 else "")
            o.append(pre_ + "buffer_load_dwordx4 v%d, %s, s%d offen offset:%d%s lds" % (vHX + e, SR(S_X), sHo, (e & 3) * 1024, POL[OPT["polx"]]))
        return [(x, "h%d" % j) for x in o]
    def stage_load(j):
        for x, t in stage_ops(j): a(x, tag=t)
    srds_first(a)
    stage_load(0)
    if role == "A" and OPT["ptouch"]:
        a("s_cmp_lg_u32 s%d, 0\ns_cbranch_scc1 L_nopt" % sW)
        a("s_lshl_b32 s%d, s%d, 4\ns_add_u32 s%d, s%d, s%d\ns_lshl_b32 s%d, s%d, 19" % (sT, sB, sT, sT, sJJ, sT, sT))
        a("v_mov_b32 v240, s%d" % sT)
        a.autowait = False
        a("global_load_dword v244, v240, s[82:83]\nglobal_load_dword v245, v240, s[84:85]")
        a("v_and_b32 v240, 1, v12\nv_lshlrev_b32 v241, 21, v240")
        a("global_load_dword v246, v241, s[88:89]\nglobal_load_dword v247, v241, s[96:97]")
        a("v_add_u32 v241, s%d, v240\nv_add_u32 v242, s%d, v240\nv_and_b32 v243, 2, v12\nv_cmp_eq_u32 vcc, 0, v243" % (sG, sGo))
        a("v_cndmask_b32 v241, v241, v242, vcc\ns_mov_b32 s%d, %d\nv_mul_lo_u32 v241, s%d, v241" % (sT, OSTR, sT))
        a("v_mov_b32 v242, 0x%x\nv_cmp_lt_u32 vcc, 3, v12\nv_cndmask_b32 v241, v241, v242, vcc" % (FLAG_OFF + 8192))
        a("global_load_dword v248, v241, s[92:93]")
        a.autowait = True
        a.label("L_nopt")
    srds_rest(a)
    a("v_and_b32 v%d, 3, v12\nv_lshlrev_b32 v%d, 3, v%d" % (vA1, vA1, vA1))
    a("v_lshl_add_u32 v%d, v15, 6, v%d" % (vA1, vA1))
    a("v_and_b32 v%d, 1, v13\nv_lshl_add_u32 v%d, v%d, 5, v%d" % (vA2, vA1, vA2, vA1))
    a("v_lshl_add_u32 v%d, v13, 10, v%d" % (vVa, vA1))
    a("v_lshl_add_u32 v%d, v13, 11, v%d" % (vA1, vA1))
    a("s_and_b32 s%d, s%d, 3\ns_lshl_b32 s%d, s%d, 8" % (sT, sW, sT, sT))
    a("v_add_u32 v%d, s%d, v%d\nv_xor_b32 v%d, 32, v%d" % (vA1, sT, vA1, vA2, vA1))
    a("v_lshrrev_b32 v%d, 3, v14\nv_lshlrev_b32 v%d, 1, v%d\nv_xor_b32 v%d, v%d, v13\nv_lshlrev_b32 v%d, 4, v%d" % (vBx, vBx, vBx, vBx, vBx, vBx, vBx))
    a("v_and_b32 v%d, 3, v14\nv_lshl_add_u32 v%d, v%d, 6, v%d" % (cBx, vBx, cBx, vBx))
    a("v_lshl_add_u32 v%d, v15, 9, v%d" % (vBx, vBx))
    if att:
        a("s_lshl_b32 s%d, s%d, 13\ns_add_u32 s%d, s%d, %d" % (sT, sKg, sT, sT, 2 * SLOT))
        a("v_add_u32 v%d, s%d, v%d\nv_add_u32 v%d, 16384, v%d\nv_xor_b32 v%d, 32, v%d" % (vVa, sT, vVa, vVa, vVa, vVb, vVa))
        a("v_lshlrev_b32 v%d, 10, v15" % vK)
        a("v_lshl_add_u32 v%d, v%d, 6, v%d" % (vK, cBx, vK))
        a("v_lshrrev_b32 v%d, 1, v13\nv_and_b32 v%d, 1, v13\nv_lshl_or_b32 v%d, v%d, 1, v%d" % (cA1, cA2, cA1, cA2, cA1))
        a("v_lshrrev_b32 v%d, 3, v14\nv_xor_b32 v%d, v%d, v%d" % (cA2, cA1, cA1, cA2))
        a("v_lshl_add_u32 v%d, v%d, 4, v%d\nv_add_u32 v%d, s%d, v%d" % (vK, cA1, vK, vK, sT, vK))
        for r in range(4): a("v_mov_b32 v%d, 0x3f803f80" % (vONE + r))
    else:
        a("s_cmp_eq_u32 s%d, 6" % sW)
        a("s_cselect_b32 s%d, 0, 32\ns_cselect_b32 s%d, 16, 0\ns_cselect_b32 s%d, 16, 32\ns_cselect_b32 s60, 0, 128\ns_cselect_b32 s%d, 0, 16384" % (sT, sT2, sT3, sKg))
        a("v_xor_b32 v%d, s%d, v%d\nv_xor_b32 v%d, s%d, v%d\nv_xor_b32 v%d, s%d, v%d" % (vD + 1, sT, vD, vD + 2, sT2, vD, vD + 3, sT3, vD))
        for q in range(4): a("v_xor_b32 v%d, s60, v%d" % (vD + 4 + q, vD + q))
        a("v_add_u32 v1, %d, v%d" % (XB[0], vBx))
    a("v_mov_b32 v238, %s\nv_mov_b32 v239, %s" % (f32(CSCALE), f32(CSCALE)))
    def reads(u):
        tr = lambda d: ["ds_read_b64_tr_b16 %s, v%d offset:%d" % (vr(AF(u, d) + 2 * rd, 2), cA2 if d else cA1, u * 8192 + rd * 1024) for rd in range(2)]
        return tr(0) + ["ds_read_b128 %s, v%d offset:%d" % (BF(u, t), cBx, (T0 + t) * 2048 + u * 256) for t in range(NRT)] + tr(1)
    def mfmas(u, first):
        return ["%s %s, %s, %s, %s" % (MF, ACC(t, d), vr(AF(u, d), 4), BF(u, t), "0" if first else ACC(t, d)) for d in range(2) for t in range(NRT)]
    stage_load(1)
    stamp(a, 1)
    def mix(ms, rs, ds=()):
        di = 0; ri = 0
        for k, x in enumerate(ms):
            a(x)
            for _ in range(2):
                if ri < len(rs): a(rs[ri]); ri += 1
            while di < len(ds) and di * len(ms) <= k * len(ds):
                a(ds[di][0], tag=ds[di][1]); di += 1
        for x, t in ds[di:]: a(x, tag=t)
    if ldr and OPT["hprio"]: a("s_setprio %d" % OPT["hprio"])
    for j in range(8):
        a.wait_vm_tag("h%d" % j)
        a("v_add_u32 v%d, %d, v%d\nv_add_u32 v%d, %d, v%d\nv_add_u32 v%d, %d, v%d" % (cA1, WB[j % 3], vA1, cA2, WB[j % 3], vA2, cBx, XB[j % 3], vBx))
        a("s_waitcnt lgkmcnt(0)")
        a("s_barrier")
        if j < 7: stamp(a, j + 1, hs=True)
        d = stage_ops(j + 2) if j + 2 < 8 else []
        cut = (len(d) + 1) // 2
        if j == 0:
            for x in reads(0): a(x)
            for x, t in d[:cut]: a(x, tag=t)
        else: mix(mfmas(1, False), reads(0), d[:cut])
        a("s_waitcnt lgkmcnt(0)")
        mix(mfmas(0, j == 0), reads(1), d[cut:])
        if not att and j == OPT["kv0"]: kv_tile(a, 0)
        if not att and j == OPT["kv1"] and j < 7: kv_tile(a, 1)
    for x in mfmas(1, False): a(x)
    a("s_and_b32 s60, s%d, 3\ns_lshl_b32 s60, s60, 10" % sW)
    a("v_lshlrev_b32 v%d, 4, v12\nv_add_u32 v%d, s60, v%d" % (cBx, cBx, cBx))
    a("v_add_u32 v%d, %d, v%d\nv_add_u32 v%d, %d, v%d" % (cA1, Q1A, cBx, cA2, Q1C, cBx))
    for t in range(NRT): q_pack(a, 16 + 8 * t, "v[238:239]")
    for t in range(NRT): q_swap(a, 16 + 8 * t)
    for t in range(NRT):
        tg = T0 + t
        a("ds_write_b128 v%d, %s offset:%d" % (cA1 if tg < 6 else cA2, vr(16 + 8 * t, 4), (tg if tg < 6 else tg - 6) * 4096))
    if ldr and OPT["hprio"]: a("s_setprio 0")
    a("s_waitcnt lgkmcnt(0)")
    a("s_barrier")
    if not att and OPT["kv1"] >= 7: kv_tile(a, 1)
    stamp(a, 2)

def pair_signal(a):
    a("s_add_u32 s%d, s%d, 1" % (sBar, sBar))
    a("v_mov_b32 v%d, s%d" % (vT, sBar))
    a("ds_write_b32 v%d, v%d" % (vX3, vT))

def pair_wait(a, name, reads):
    a.label(name)
    a("ds_read_b32 v%d, v%d" % (vT, vX4))
    for x in reads: a(x)
    a("s_waitcnt lgkmcnt(%d)" % len(reads))
    a("v_readfirstlane_b32 s%d, v%d" % (sT, vT))
    a("s_cmp_ge_u32 s%d, s%d" % (sT, sBar))
    a("s_cbranch_scc1 %s_ok" % name)
    a("s_waitcnt lgkmcnt(0)")
    if OPT["sbs"]: a("s_sleep %d" % OPT["sbs"])
    a("s_branch %s" % name)
    a.label(name + "_ok")
    a("s_waitcnt lgkmcnt(0)")

def publish(a, name, t0):
    a("s_waitcnt vmcnt(0)")
    a("s_mov_b64 exec, 1")
    a("v_mov_b32 v%d, %d\nv_mov_b32 v%d, 1" % (t0 + 2, CNT, t0 + 1))
    a("ds_add_rtn_u32 v%d, v%d, v%d offset:4" % (t0, t0 + 2, t0 + 1))
    a("ds_read_b32 v%d, v%d offset:8" % (t0 + 1, t0 + 2))
    a("s_waitcnt lgkmcnt(0)")
    a("v_readfirstlane_b32 s%d, v%d" % (sT, t0))
    a("s_cmp_lg_u32 s%d, 5" % sT)
    a("s_cbranch_scc1 %s" % name)
    a("v_or_b32 v%d, 0x%x, v%d" % (t0 + 1, PHM, t0 + 1))
    a("s_lshl_b32 s%d, s%d, 2" % (sT2, sJJ))
    a("v_mov_b32 v%d, s%d" % (t0, sT2))
    a("buffer_store_dword v%d, v%d, %s, 0 offen sc1" % (t0 + 1, t0, SR(S_FL)))
    a.label(name)
    a("s_mov_b64 exec, -1")

def attention(a):
    NT = 3; TL = 2
    a("s_waitcnt vmcnt(0)")
    a("v_lshlrev_b32 v%d, 4, v12" % vX1)
    a("s_mul_i32 s%d, s%d, %d\ns_add_u32 s%d, s%d, %d" % (sT, sRho, 12 * KB, sT, sT, Q1A))
    a("s_cmp_eq_u32 s%d, 2\ns_cselect_b32 s%d, %d, s%d" % (sRho, sT, Q1C, sT))
    a("v_add_u32 v%d, s%d, v%d" % (vX2, sT, vX1))
    for t in range(3):
        for s in range(4): a("ds_read_b128 %s, v%d offset:%d" % (Q(t, s), vX2, t * 4096 + s * 1024))
    a("s_add_u32 s%d, s%d, 3\ns_cmp_ge_u32 s%d, 6\ns_cselect_b32 s%d, 6, 0\ns_sub_u32 s%d, s%d, s%d" % (sPart, sW, sPart, sT2, sPart, sPart, sT2))
    a("s_lshl_b32 s%d, s%d, 2\ns_add_u32 s%d, s%d, %d\ns_lshl_b32 s%d, s%d, 2\ns_add_u32 s%d, s%d, %d" % (sT, sW, sT, sT, PFL, sT2, sPart, sT2, sT2, PFL))
    a("v_mov_b32 v%d, s%d\nv_mov_b32 v%d, s%d" % (vX3, sT, vX4, sT2))
    a("s_mov_b32 s%d, 0x40004000\ns_mov_b32 s%d, %s" % (sThr, sFl, f32(THR)))
    a("s_mov_b32 s%d, 0\ns_mov_b32 s%d, 0\ns_mov_b32 s%d, 2" % (sItem, sBar, sSlot))
    a("s_mul_i32 s%d, s%d, %d\ns_add_u32 s%d, s%d, %d" % (sExch, sRho, 12 * KB, sExch, sExch, Q2B))
    a("s_mov_b32 s%d, 0x%x\ns_mov_b32 s%d, %d" % (sNeg, (-2 * SLOT) & 0xffffffff, sPos, SLOT))
    a("s_lshl_b32 s%d, s%d, 3\ns_lshl_b32 s%d, s%d, 1\ns_add_u32 s%d, s%d, s%d\ns_mul_i32 s%d, s%d, 9" % (sT, sJJ, sT2, sKg, sT, sT, sT2, sT, sT))
    a("s_mul_i32 s%d, s%d, 3\ns_add_u32 s%d, s%d, s%d\ns_lshl_b32 s%d, s%d, 10\ns_add_u32 s%d, s%d, %d" % (sT2, sRho, sT, sT, sT2, sOoff, sT, sOoff, sOoff, 36 * KB))
    cstamp(a, 0)
    a.label("L_item")
    a("s_mov_b32 s%d, 0" % sCnt)
    a("s_waitcnt lgkmcnt(0)")
    Ga, Gb, Gc = 0, 4, 8
    def kread(kt, s):
        slot = (Gc + s) if kt == 0 else (Gb + s)
        return "ds_read_b128 %s, v%d offset:%d" % (vr(F(slot), 4), vK, kt * 4096 + s * 256)
    def vslot(dt): return (Ga + dt) if dt < 4 else (Gb + dt - 4)
    def vread(dt, rd):
        return "ds_read_b64_tr_b16 %s, v%d offset:%d" % (vr(F(vslot(dt)) + 2 * rd, 2), vVb if dt & 1 else vVa, rd * 4096 + (dt >> 1) * 256)
    def pv(t, dt, z=False): return "%s %s, %s, %s, %s" % (MF, O(t, dt), vr(F(vslot(dt)), 4), S(t, 0), "0" if z else O(t, dt))
    def lsum(t, z=False): return "s_nop 0" if OPT["nol"] and not z else "%s %s, %s, %s, %s" % (MF, L(t), vr(vONE, 4), S(t, 0), "0" if z else L(t))
    def qk(t, kt, s, z=False):
        slot = (Gc + s) if kt == 0 else (Gb + s)
        return "%s %s, %s, %s, %s" % (MF, S(t, kt), vr(F(slot), 4), Q(t, s), ("0" if z else M(t)) if s == 0 else S(t, kt))
    EXP = lambda r: "v_exp_f32 v%d, v%d" % (r, r)
    def CVT(b, r): return "v_cvt_pk_bf16_f32 v%d, v%d, v%d" % (b + r, b + 2 * r, b + 2 * r + 1)
    def rowmax(b):
        return ["v_max3_f32 v%d, v%d, v%d, v%d" % (vT, b, b + 1, b + 2), "v_max3_f32 v%d, v%d, v%d, v%d" % (vT + 1, b + 3, b + 4, b + 5),
                "v_max3_f32 v%d, v%d, v%d, v%d" % (vT, vT, b + 6, b + 7), "v_max_f32 v%d, v%d, v%d" % (vT, vT, vT + 1),
                "v_mov_b32 v%d, v%d" % (vT + 1, vT), "v_permlane16_swap_b32 v%d, v%d" % (vT, vT + 1), "v_max_f32 v%d, v%d, v%d" % (vT, vT, vT + 1),
                "v_mov_b32 v%d, v%d" % (vT + 1, vT), "v_permlane32_swap_b32 v%d, v%d" % (vT, vT + 1), "v_max_f32 v%d, v%d, v%d" % (vT, vT, vT + 1)]
    def sm(t):
        b = vS + 8 * t
        g = [[EXP(b + r)] for r in range(4)] + [[CVT(b, 0), CVT(b, 1)]] + [[EXP(b + r)] for r in range(4, 8)] + [[CVT(b, 2), CVT(b, 3)]]
        g.append(["v_or3_b32 v%d, v%d, v%d, v%d" % (b + 4, b, b + 1, b + 2), "v_bitop3_b32 v%d, v%d, v%d, s%d bitop3:0xa8" % (b + 4, b + 4, b + 3, sThr)])
        g.append(["v_cmp_ne_u32 vcc, 0, v%d" % (b + 4)])
        return g
    def step(first):
        mf = []; fill = {}
        def put(idx, ops): fill.setdefault(idx, []).extend(ops)
        if not first: mf += [pv(TL, dt) for dt in (4, 5, 6, 7)] + [pv(TL, dt) for dt in (0, 1, 2, 3)] + [lsum(TL)]
        q0 = len(mf)
        qk_end = {}
        for t in range(NT):
            for kt in ((0, 1) if t < TL else (1, 0)):
                mf += [qk(t, kt, s, first) for s in range(4)]
                if t == TL and kt == 1: v47_at = len(mf) - 1
            qk_end[t] = len(mf) - 1
        pv_start = {}
        for t in range(TL):
            pv_start[t] = len(mf)
            mf += [pv(t, dt, first) for dt in range(4)] + [lsum(t, first)] + [pv(t, dt, first) for dt in range(4, 8)]
        n = len(mf)
        pre = [kread(0, s) for s in range(4)]
        if first:
            pre += [kread(1, s) for s in range(4)] + [vread(dt, rd) for dt in range(4) for rd in range(2)]
            pre += ["v_mov_b64 %s, 0" % vr(r, 2) for r in list(range(vO + 64, vO + 96, 2)) + [vL + 8, vL + 10]]
            pre += ["WAIT " + vr(F(Gc), 16)]
        else:
            for s in range(4): put(s, [kread(1, s)])
            for dt in range(4): put(4 + dt, [vread(dt, 0), vread(dt, 1)])
            put(8, ["WAIT " + vr(F(Gc), 16)])
        put(q0 + 3, ["WAIT " + vr(F(Gb), 16), "s_add_u32 s%d, s%d, 1" % (sSlot, sSlot)])
        put(q0 + 4, ["s_cmp_eq_u32 s%d, 3" % sSlot, "s_cselect_b32 s%d, s%d, s%d" % (sDelta, sNeg, sPos)])
        put(q0 + 5, ["s_cselect_b32 s%d, 0, s%d" % (sSlot, sSlot), "s_add_u32 s%d, s%d, 1" % (sCnt, sCnt)])
        for dt in range(4, 8): put(v47_at - 3 + (dt - 4), [vread(dt, 0), vread(dt, 1)])
        adv = ["v_add_u32 v%d, s%d, v%d" % (r, sDelta, r) for r in (vK, vVa, vVb)]
        tail = []
        if first:
            for t in range(NT):
                b = vS + 8 * t
                ops = rowmax(b) + ["v_add_f32 v%d, s%d, v%d" % (vT, sFl, vT)]
                ops += ["v_sub_f32 v%d, v%d, v%d" % (b + r, b + r, vT) for r in range(8)]
                ops += ["v_sub_f32 v%d, 0, v%d" % (vM + 4 * t + r, vT) for r in range(4)]
                ops += [EXP(b + r) for r in range(8)] + [CVT(b, r) for r in range(4)]
                lo = max(qk_end[t] + 3, [0, 21, 32][t]); hi = [20, 31, n - 1][t]
                for k, x in enumerate(ops): put(lo + k * (hi - lo + 1) // len(ops), [x])
            tail = adv
        else:
            groups = [(t, g) for t in range(NT) for g in sm(t)]
            lo = OPT["g0"]; span = n - lo
            for k, (t, g) in enumerate(groups):
                idx = lo + (k * span) // len(groups)
                assert t == TL or idx + 1 < pv_start[t], (t, idx)
                put(idx, g)
                if k % 12 == 11:
                    br = "s_cbranch_vccnz L_rare%d\nL_back%d:" % (t, t)
                    if t == 0: put(idx, [adv[0]])
                    if t == 1: put(idx, [adv[1]])
                    if t < TL: fill.setdefault(idx + 1, []).insert(0, br)
                    else: tail = [adv[2], "s_cmp_lt_u32 s%d, 16" % sCnt, br]
        put(pv_start[0] - 1, ["WAIT " + vr(F(Ga), 16)])
        put(pv_start[0] + 4, ["WAIT " + vr(F(Gb), 16)])
        a("s_barrier")
        for x in pre: a(x)
        for k, m in enumerate(mf):
            a(m)
            for x in fill.get(k, []): a(x)
        for x in tail: a(x)
    step(True)
    a.raw(".p2align 6")
    a.label("L_loop")
    step(False)
    a("s_cbranch_scc1 L_loop")
    if OPT["stamps"]:
        a("s_cmp_eq_u32 s%d, 0\ns_cbranch_scc0 L_st4" % sItem)
        stamp(a, 3); cstamp(a, 1)
        a("s_branch L_st4b")
        a.label("L_st4"); stamp(a, 4)
        a.label("L_st4b")
    a("s_cmp_eq_u32 s%d, 0" % sItem)
    a("s_cbranch_scc0 L_nomx")
    a("s_barrier")
    a("v_add_u32 v%d, s%d, v%d" % (vX2, sExch, vX1))
    for t in range(3):
        for s in range(4): a("ds_read_b128 %s, v%d offset:%d" % (Q(t, s), vX2, t * 4096 + s * 1024))
    pair_signal(a)
    a.label("L_nomx")
    a("s_lshl_b32 s%d, s%d, 12\ns_add_u32 s%d, s%d, %d" % (sT, sW, sT, sT, EX1))
    a("v_add_u32 v%d, s%d, v%d" % (vX2, sT, vX1))
    def send(t, areg, off):
        o = []
        for h in range(2):
            b = vO + 32 * t + 16 + 8 * h
            o += ["v_cvt_pk_bf16_f32 v%d, v%d, v%d" % (b + r, b + 2 * r, b + 2 * r + 1) for r in range(4)]
            o.append("ds_write_b128 v%d, %s offset:%d" % (areg, vr(b, 4), off + h * 1024))
        return o
    fin = [lsum(TL)] + [pv(TL, dt) for dt in (4, 5, 6, 7, 0, 1, 2, 3)]
    ex = send(0, vX2, 0) + send(1, vX2, 2048)
    for k, m in enumerate(fin):
        a(m)
        for x in ex[k * len(ex) // 9:(k + 1) * len(ex) // 9]: a(x)
    a("v_and_b32 v%d, 15, v0\nv_lshlrev_b32 v%d, 3, v%d" % (vT + 2, vT + 2, vT + 2))
    a("s_mul_i32 s%d, s%d, 384\ns_add_u32 s%d, s%d, %d" % (sT, sW, sT, sT, MLB))
    a("v_add_u32 v%d, s%d, v%d" % (vT + 3, sT, vT + 2))
    for t in range(3):
        a("v_mov_b32 v%d, v%d" % (vM + 4 * t + 1, vL + 4 * t))
        a("ds_write_b64 v%d, %s offset:%d" % (vT + 3, vr(vM + 4 * t, 2), t * 128))
    a("s_lshl_b32 s%d, s%d, 11\ns_add_u32 s%d, s%d, s%d" % (sT, sKg, sT, sT, sExch))
    a("v_add_u32 v%d, s%d, v%d" % (vX2, sT, vX1))
    a("s_waitcnt lgkmcnt(0)")
    pair_wait(a, "L_pw0", [])
    for x in send(2, vX2, 0): a(x)
    pair_signal(a)
    a("s_mul_i32 s%d, s%d, 384\ns_add_u32 s%d, s%d, %d" % (sT2, sPart, sT2, sT2, MLB))
    a("v_add_u32 v%d, s%d, v%d" % (vT + 3, sT2, vT + 2))
    a("v_xor_b32 v%d, 2048, v%d" % (vX2, vX2))
    a("s_lshl_b32 s%d, s%d, 12\ns_add_u32 s%d, s%d, %d" % (sT, sPart, sT, sT, EX1))
    a("v_add_u32 v%d, s%d, v%d" % (vT + 2, sT, vX1))
    a("s_waitcnt lgkmcnt(0)")
    rd = ["ds_read_b64 %s, v%d offset:%d" % (vr(vM + 4 * t + 2, 2), vT + 3, t * 128) for t in range(3)]
    for t in range(3):
        for h in range(2):
            rd.append("ds_read_b128 %s, v%d offset:%d" % (vr(vS + 8 * t + 4 * h, 4), vT + 2 if t < 2 else vX2, (t * 2048 if t < 2 else 0) + h * 1024))
    pair_wait(a, "L_pw", rd)
    for t in range(3):
        m = vM + 4 * t; l = vL + 4 * t
        a("v_min_f32 v%d, v%d, v%d" % (l, m, m + 2))
        a("v_sub_f32 v%d, v%d, v%d\nv_sub_f32 v%d, v%d, v%d" % (l + 1, l, m, l + 2, l, m + 2))
        a("v_exp_f32 v%d, v%d\nv_exp_f32 v%d, v%d" % (l + 1, l + 1, l + 2, l + 2))
        a("v_mul_f32 v%d, v%d, v%d" % (l + 3, l + 1, m + 1))
        a("v_fma_f32 v%d, v%d, v%d, v%d" % (l + 3, l + 2, m + 3, l + 3))
        a("v_rcp_f32 v%d, v%d" % (l, l + 3))
        a("v_mul_f32 v%d, v%d, v%d\nv_mul_f32 v%d, v%d, v%d" % (l + 3, l + 2, l, l + 2, l + 2, l))
        a("v_mul_f32 v%d, v%d, v%d\nv_mov_b32 v%d, v%d" % (l + 1, l + 1, l, l, l + 1))
    for t in range(3):
        l = vL + 4 * t
        for h in range(2):
            b = vO + 32 * t + 8 * h; u = b + 16; pk = vS + 8 * t + 4 * h
            for r in range(4):
                a("v_lshlrev_b32 v%d, 16, v%d\nv_and_b32 v%d, 0xffff0000, v%d" % (u + 2 * r, pk + r, u + 2 * r + 1, pk + r))
            for r in range(0, 8, 2): a("v_pk_mul_f32 %s, %s, %s" % (vr(b + r, 2), vr(b + r, 2), vr(l, 2)))
            for r in range(0, 8, 2): a("v_pk_fma_f32 %s, %s, %s, %s" % (vr(b + r, 2), vr(u + r, 2), vr(l + 2, 2), vr(b + r, 2)))
            for r in range(4): a("v_cvt_pk_bf16_f32 v%d, v%d, v%d" % (pk + r, b + 2 * r, b + 2 * r + 1))
    a("s_cmp_eq_u32 s%d, 0" % sItem)
    a("s_cbranch_scc0 L_att_done")
    for t in range(3):
        for h in range(2):
            a("ds_write_b128 v%d, %s offset:%d" % (vT + 2 if t < 2 else vX2, vr(vS + 8 * t + 4 * h, 4), (t * 2048 if t < 2 else 0) + h * 1024))
    a("s_mov_b32 s%d, 1\ns_lshl_b32 s%d, s%d, 12\ns_add_u32 s%d, s%d, %d" % (sItem, sExch, sRho, sExch, sExch, EX2))
    a("s_waitcnt lgkmcnt(0)")
    a("s_branch L_item")
    a.vm = []; a.lgkm = []
    for t in range(NT):
        b = vS + 8 * t
        a.label("L_rare%d" % t)
        a("s_nop 15")
        a("v_subrev_u32 v%d, s%d, v%d" % (vX2, sDelta, vK))
        for kt in range(2):
            for s in range(4):
                a("ds_read_b128 %s, v%d offset:%d" % (vr(vT, 4), vX2, kt * 4096 + s * 256))
                a("s_waitcnt lgkmcnt(0)")
                a("%s %s, %s, %s, %s" % (MF, S(t, kt), vr(vT, 4), Q(t, s), M(t) if s == 0 else S(t, kt)))
                a("s_nop 3")
        for x in rowmax(b): a(x)
        a("v_add_f32 v%d, s%d, v%d\nv_max_f32 v%d, 0, v%d" % (vT, sFl, vT, vT, vT))
        for r in range(8): a("v_sub_f32 v%d, v%d, v%d" % (b + r, b + r, vT))
        for r in range(4): a("v_sub_f32 v%d, v%d, v%d" % (vM + 4 * t + r, vM + 4 * t + r, vT))
        a("v_exp_f32 v%d, -v%d" % (vT + 1, vT))
        for r in range(4): a("v_mul_f32 v%d, v%d, v%d" % (vL + 4 * t + r, vL + 4 * t + r, vT + 1))
        for r in range(32): a("v_mul_f32 v%d, v%d, v%d" % (vO + 32 * t + r, vO + 32 * t + r, vT + 1))
        for r in range(8): a(EXP(b + r))
        for r in range(4): a(CVT(b, r))
        a("s_nop 3")
        a("s_branch L_back%d" % t)
    a.label("L_att_done")
    for t in range(3):
        for h in range(2):
            a("s_add_u32 s%d, s%d, %d" % (sT, sOoff, (h * 9 + t) * 1024))
            a("buffer_store_dwordx4 %s, v%d, %s, s%d offen%s" % (vr(vS + 8 * t + 4 * h, 4), vX1, SR(S_O), sT, POL[OPT["pols"]]))
    a("s_cmp_lt_u32 s%d, 2" % sW)
    a("s_cbranch_scc1 L_join")
    publish(a, "L_pub_x", vT)
    a("s_endpgm")
    a.label("L_join")
    a("v_mov_b32 v96, %d" % CNT)
    a("ds_read_b32 v97, v96 offset:12")
    a("s_mov_b32 s%d, s%d" % (sOpIdx, sW))
    a("s_lshl_b32 s%d, s%d, 14\ns_add_u32 s%d, s%d, %d" % (sBlkP, sW, sBlkP, sBlkP, 32 * KB))
    op_setup(a)
    a("v_readfirstlane_b32 s%d, v97" % sTag)
    a("s_or_b32 s%d, s%d, 0x%x" % (sWant, sTag, PHM))
    publish(a, "L_pub_y", 100)
    stamp(a, 5)
    a("s_cmp_eq_u32 s60, 0\ns_cbranch_scc1 L_op_a_idle\ns_branch L_op_b_idle")
    a.vm = []; a.lgkm = []

def wo_touch(a, phase, i):
    a("s_and_b32 s%d, s%d, 1\ns_lshl_b32 s%d, s%d, 4\ns_add_u32 s%d, s%d, s%d" % (sT, sGo, sT, sT, sT, sT, sJo))
    a("s_lshr_b32 s%d, s%d, 1\ns_lshl_b32 s%d, s%d, 18\ns_and_b32 s%d, s%d, 1\ns_lshl_b32 s%d, s%d, 16\ns_add_u32 s%d, s%d, s%d" % (sT2, sT, sT2, sT2, sT, sT, sT, sT, sT, sT, sT2))
    a("s_and_b32 s%d, s%d, 1\ns_lshl_b32 s%d, s%d, 15\ns_add_u32 s%d, s%d, s%d" % (sT2, sW, sT2, sT2, sT, sT, sT2))
    a("s_add_u32 s%d, s%d, %d" % (sT2, sT, phase * 131072 + i * 8192))
    a.autowait = False
    a("buffer_load_dword v147, v146, %s, s%d offen" % (SR(S_WO), sT2), tag="x")
    a.autowait = True

def aux_step(a, step, pre=None, extra=None):
    a.wait_vm_tag("t%d" % step)
    a("s_barrier")
    if OPT["sst"] >= 0 and step >= OPT["sst"] and (step - OPT["sst"]) % OPT["sstd"] == 0 and (step - OPT["sst"]) // OPT["sstd"] < 6:
        k_ = 1 + (step - OPT["sst"]) // OPT["sstd"]
        a("s_memrealtime s[%d:%d]" % (64 + 2 * k_, 65 + 2 * k_))
    if OPT["ck"] and step in (1, 8, 15, 31):
        k_ = (1, 8, 15, 31).index(step)
        a("s_memrealtime s[%d:%d]\ns_memtime s[%d:%d]" % (64 + 4 * k_, 65 + 4 * k_, 66 + 4 * k_, 67 + 4 * k_))
    for ph in (0, 1):
        lst = [int(x) for x in OPT["tw%d" % ph].split(",") if x]
        for i, st_ in enumerate(lst):
            if st_ == step: wo_touch(a, ph, i)
    if pre: pre()
    nxt = step + 2
    if nxt < 32 and nxt != 18: kv_tile(a, nxt)
    if extra: extra()

def aux(a):
    if OPT["auxprio"]: a("s_setprio %d" % OPT["auxprio"])
    a("v_lshlrev_b32 v%d, 2, v14\nv_lshlrev_b32 v146, 7, v12" % vFo)
    a("s_lshl_b32 s%d, s%d, 4\nv_mov_b32 v%d, s%d" % (sT, sG, vDg, sT))
    a("s_lshl_b32 s%d, s%d, 4\nv_mov_b32 v%d, s%d\nv_cmp_eq_u32 vcc, 0, v12\nv_cndmask_b32 v%d, v%d, v%d, vcc" % (sT, sGo, vDg2, sT, vDg2, vDg2, vDg))
    a("s_sub_u32 s%d, s%d, 4" % (sOpIdx, sW))
    def ACC(t, d):
        i = t * 4 + d
        return 16 + 4 * i if i < 28 else 176 + 4 * (i - 28)
    BF = lambda t: vr(208 + 4 * t, 4)
    AF = lambda d: 156 + 4 * d
    sW2, sXq = 60, 61
    a("s_and_b32 s%d, s%d, 1" % (sT3, sW))
    a("v_lshrrev_b32 v9, 5, v12\nv_lshl_add_u32 v4, v15, 13, v4\nv_lshl_add_u32 v4, v9, 15, v4")
    a("s_lshl_b32 s%d, s%d, 9\ns_lshl_b32 s%d, s%d, 7\ns_add_u32 s%d, s%d, s%d\ns_add_u32 s%d, s%d, 256" % (sT, sJJ, sT2, sT3, sT, sT, sT2, sT, sT))
    a("v_add_u32 v4, s%d, v4" % sT)
    a("v_add_u32 v5, 64512, v4\nv_xor_b32 v5, 32, v5\nv_add_u32 v6, 129024, v4\nv_add_u32 v7, 129024, v5")
    a("s_mul_i32 s%d, s%d, %d\ns_add_u32 s%d, s%d, %d" % (sW2, sT3, 12 * KB, sW2, sW2, W2R))
    a("v_add_u32 v2, s%d, v2\nv_xor_b32 v3, 32, v2" % sW2)
    a("s_lshl_b32 s%d, s%d, 5\nv_xor_b32 v8, s%d, v8\nv_xor_b32 v9, 32, v8" % (sT, sT3, sT))
    a("s_mul_i32 s%d, s%d, 9" % (sXq, sT3))
    a("v_mov_b32 v10, %s\nv_mov_b32 v11, %s" % (f32(CSCALE), f32(CSCALE)))
    def chunk(m): a("s_add_u32 s%d, s%d, %d\ns_and_b32 s%d, s%d, 7" % (sT3, sRot, (6 + m) & 7, sT3, sT3))
    def w2_load(n):
        chunk(n // 2)
        a("s_lshl_b32 s%d, s%d, 19\ns_add_u32 s%d, s%d, %d\ns_add_u32 m0, s%d, %d" % (sT2, sT3, sT2, sT2, (n & 1) << 18, sW2, (n % 3) * 4096))
        for q in range(4):
            a("buffer_load_dwordx4 v%d, %s, s%d offen offset:%d%s lds" % (4 + q, SR(S_WQ), sT2, q * 1024, POL[OPT["polw"]]), tag="q%d" % n)
    def x2_load(m):
        chunk(m)
        a("s_lshl_b32 s%d, s%d, 7\ns_lshl_b32 s%d, s%d, 13\ns_add_u32 s%d, s%d, s%d\ns_lshl_b32 s63, s%d, 10" % (sT3, sT3, sT2, sXq, sT3, sT3, sT2, sXq))
        for e in range(9):
            a("s_add_u32 m0, s63, %d\ns_add_u32 s%d, s%d, %d" % (XB[m & 1] + e * 1024, sT2, sT3, e * 8192))
            a("buffer_load_dwordx4 v%d, %s, s%d offen%s lds" % (8 + (e & 1), SR(S_X), sT2, POL[OPT["polx"]]), tag="x%d" % m)
    def q2_step(n):
        a.wait_vm_tag("q%d" % n)
        for d in range(4):
            for rd in range(2):
                a("ds_read_b64_tr_b16 %s, v%d offset:%d" % (vr(AF(d) + 2 * rd, 2), 3 if d & 1 else 2, (n % 3) * 4096 + rd * 512 + (d >> 1) * 256))
        for t in range(9 if not OPT["nq2r"] or n == 0 else 0): a("ds_read_b128 %s, v1 offset:%d" % (BF(t), ((n // 2) & 1) * 18 * KB + t * 2048 + (n & 1) * 256))
        a("WAIT " + vr(AF(0), 16))
        if n + 3 < 16: w2_load(n + 3)
        a("s_waitcnt lgkmcnt(0)")
        for t in range(9 if not OPT["nq2m"] or n == 0 else 0):
            for d in range(4):
                c = vr(ACC(t, d), 4)
                a("%s %s, %s, %s, %s" % (MF, c, vr(AF(d), 4), BF(t), "0" if n == 0 else c))
    sched = {1: [0, 1], 2: [2, 3]}
    for s_ in range(3, 15): sched[s_] = [s_ + 1]
    def pre(step):
        if step == 0:
            for n in range(3): w2_load(n)
        if step == 2: x2_load(2)
        if 3 <= step <= 11 and step % 2 == 1: x2_load((step + 3) // 2)
        for n in sched.get(step, []): q2_step(n)
        if step == 15:
            a("s_and_b32 s%d, s%d, 1\ns_lshl_b32 s%d, s%d, 11\ns_add_u32 s%d, s%d, %d" % (sT, sW, sT, sT, sT, sT, Q2B))
            a("v_lshlrev_b32 v1, 4, v12\nv_add_u32 v2, s%d, v1" % sT)
            fr = [(t, h) for t in range(9) for h in range(2)]
            for t, h in fr[OPT["pk14"]:]: q_pack(a, ACC(t, 2 * h), "v[10:11]")
            for t, h in fr: q_swap(a, ACC(t, 2 * h))
            for t, h in fr: a("ds_write_b128 v2, %s offset:%d" % (vr(ACC(t, 2 * h), 4), t * 4096 + h * 1024))
        if step == 18:
            a("s_cmp_lg_u32 s%d, 6\ns_cbranch_scc1 L_nopub" % sW)
            a("s_lshl_b32 s%d, s%d, 2\nv_mov_b32 v%d, s%d\nv_mov_b32 v%d, s%d" % (sT, sJJ, vA_, sT, vB_, sTagA))
            keep = list(a.vm)
            a("buffer_store_dword v%d, v%d, %s, 0 offen sc1" % (vB_, vA_, SR(S_FL)))
            a.vm = keep
            a.label("L_nopub")
    def extra(step):
        if step == 0:
            a("buffer_load_dword v%d, v%d, %s, 0 offen sc1" % (vFl, vFo, SR(S_FL)), tag="fl")
        if step == 3:
            cstamp(a, 0)
            a("s_lshl_b32 s%d, s%d, 3\ns_add_u32 s%d, s%d, s%d\ns_cmp_lg_u32 s%d, 6\ns_cbranch_scc1 L_nolead" % (sT, sJJ, sT, sT, sW, sT))
            a("v_lshrrev_b32 v%d, v14, v%d\nv_and_b32 v%d, 1, v%d\nv_cmp_eq_u32 vcc, 0, v%d" % (vFl, vFl, vFl, vFl, vFl))
            a("s_nop 1")
            a("s_and_b32 s%d, vcc_lo, 0xffff\ns_or_b32 s%d, s%d, 0x80000000" % (sT, sT, sT))
            a("v_mov_b32 v%d, s%d" % (vFl, sT))
            keep = list(a.vm)
            a("buffer_store_dword v%d, v%d, %s, 0 offen sc1" % (vFl, vDg, SR(S_DBG)))
            a.vm = keep
            a.label("L_nolead")
        if step == 9:
            a("buffer_load_dword v%d, v%d, %s, 0 offen sc1" % (vFl, vDg2, SR(S_DBG)), tag="fl")
        if step == 12:
            cstamp(a, 1)
            keep = list(a.vm)
            a.label("L_tag")
            a("v_cmp_eq_u32 vcc, 0, v%d" % vFl)
            a("s_cbranch_vccz L_tag_ok")
            a("s_sleep 8")
            a("buffer_load_dword v%d, v%d, %s, 0 offen sc1" % (vFl, vDg2, SR(S_DBG)))
            a("s_waitcnt vmcnt(0)")
            a("s_branch L_tag")
            a.label("L_tag_ok")
            a.vm = keep
            a("v_readlane_b32 s%d, v%d, 0\nv_readlane_b32 s%d, v%d, 1" % (sTagA, vFl, sTag, vFl))
            a("v_min_u32 v%d, 1, v12\nv_lshlrev_b32 v%d, 2, v%d\nv_add_u32 v%d, %d, v%d" % (vA_, vA_, vA_, vA_, TAGW, vA_))
            a("ds_write_b32 v%d, v%d" % (vA_, vFl))
            a("s_mov_b32 s%d, 0x%x\nv_mov_b32 v%d, s%d\nv_mov_b32 v%d, %d" % (sC, (1 << (2 * (NIN + 1))) - 1, vB_, sC, vCl, CLAIM))
            a("ds_write_b32 v%d, v%d" % (vCl, vB_))
            a("s_or_b32 s%d, s%d, 0x%x" % (sWant, sTag, PHM))
            a("s_waitcnt lgkmcnt(0)")
        if step == 2: a.wait_vm_tag("x2")
        if step == 14:
            for t, h in [(t, h) for t in range(9) for h in range(2)][:OPT["pk14"]]: q_pack(a, ACC(t, 2 * h), "v[10:11]")
        if step == 15:
            a("s_waitcnt lgkmcnt(0)")
            a("s_barrier")
            kv_tile(a, 18)
        if step == 16:
            a("s_and_b32 s%d, s%d, 1" % (sT3, sW))
            a("s_mul_i32 s%d, s%d, %d\ns_add_u32 s%d, s%d, %d\nv_add_u32 v%d, s%d, v1" % (sT, sT3, 3 * 4096, sT, sT, EX1, vA_, sT))
            a("s_lshl_b32 s%d, s%d, 11\ns_add_u32 s%d, s%d, %d\nv_add_u32 v%d, s%d, v1" % (sT, sT3, sT, sT, Q2B, vB_, sT))
            fr = [(i, t, h) for i in range(3) for t in range(3) for h in range(2)]
            for n, (i, t, h) in enumerate(fr):
                if t < 2: a("ds_read_b128 %s, v%d offset:%d" % (vr(16 + 4 * n, 4), vA_, i * 4096 + t * 2048 + h * 1024))
                else: a("ds_read_b128 %s, v%d offset:%d" % (vr(16 + 4 * n, 4), vB_, i * 12 * KB + h * 1024))
            a("s_mul_i32 s%d, s%d, %d\ns_mul_i32 s%d, s%d, %d\ns_add_u32 s%d, s%d, %d\ns_sub_u32 s%d, s%d, s%d" % (sT2, sJJ, 8 * 9216, sT3, sT3, 2 * 9216, sT2, sT2, 2 * 9216, sT2, sT2, sT3))
            for n, (i, t, h) in enumerate(fr):
                a("s_add_u32 s%d, s%d, %d" % (sT, sT2, (h * 9 + 3 * i + t) * 1024))
                a("buffer_store_dwordx4 %s, v1, %s, s%d offen%s" % (vr(16 + 4 * n, 4), SR(S_O), sT, POL[OPT["pols"]]), tag="st")
            a("s_sub_u32 s%d, s%d, 6\ns_lshl_b32 s%d, s%d, 14\ns_add_u32 s%d, s%d, %d" % (sBlkP, sW, sBlkP, sBlkP, sBlkP, sBlkP, 96 * KB))
            op_setup(a)
        if step == 17: a.wait_vm_tag("st")
    for step in range(19):
        aux_step(a, step, pre=lambda: pre(step), extra=lambda: extra(step))
    a("s_cmp_eq_u32 s60, 0\ns_cbranch_scc0 L_op_b_aux")

def op_setup(a):
    lanes(a)
    a("v_lshlrev_b32 v1, 4, v12\nv_add_u32 v8, 4096, v1")
    a("v_lshrrev_b32 v9, 5, v12")
    a("v_and_b32 v4, 3, v12\nv_lshlrev_b32 v5, 1, v9\nv_xor_b32 v4, v4, v5\nv_lshlrev_b32 v4, 4, v4")
    a("v_and_b32 v5, 1, v13")
    a("v_lshl_add_u32 v4, v5, 6, v4\nv_lshl_add_u32 v4, v15, 10, v4\nv_lshl_add_u32 v4, v9, 12, v4")
    a("v_and_b32 v2, 3, v12\nv_lshlrev_b32 v2, 3, v2\nv_lshl_add_u32 v2, v15, 6, v2\nv_lshl_add_u32 v2, v5, 5, v2\nv_lshl_add_u32 v2, v13, 9, v2")
    a("v_add_u32 v2, s%d, v2\nv_xor_b32 v3, 32, v2" % sBlkP)
    a("v_xor_b32 v%d, 1, v5\nv_lshlrev_b32 v%d, 30, v%d" % (vOr, vOr, vOr))
    for q in range(1, 4): a("v_add_u32 v%d, %d, v4" % (4 + q, 7168 * q))
    for r in range(176, 256, 2): a("v_mov_b64 %s, 0" % vr(r, 2))
    a("s_lshr_b32 s60, s%d, 3\ns_and_b32 s61, s%d, 7" % (sJo, sJo))
    a("s_mul_i32 s%d, s60, 5120\ns_lshl_b32 s%d, s61, 7" % (sOb, sWb))
    a("s_and_b32 s%d, s%d, 7" % (sOutOff, sGo))
    a("s_mul_i32 s%d, s%d, 144\ns_mul_i32 s%d, s60, 80\ns_add_u32 s%d, s%d, s%d\ns_lshl_b32 s%d, s%d, 11" % (sOutOff, sOutOff, sT, sOutOff, sOutOff, sT, sOutOff, sOutOff))
    a("s_lshl_b32 s%d, s%d, 10\ns_add_u32 s%d, s%d, s%d\ns_add_u32 s%d, s%d, s%d" % (sT, sBlk, sOutOff, sOutOff, sT, sOutOff, sOutOff, sWb))
    a("s_lshl_b32 s%d, s%d, 5\ns_add_u32 s%d, s%d, s%d" % (sT, sOpIdx, sOutOff, sOutOff, sT))
    a("v_lshlrev_b32 v10, 11, v14\nv_lshl_add_u32 v10, v13, 3, v10")
    a("s_and_b32 s%d, s%d, 1\ns_lshl_b32 s%d, s%d, 1\ns_add_u32 s%d, s%d, s60\ns_lshl_b32 s%d, s%d, 2" % (sT, sGo, sT, sT, sT, sT, sT, sT))
    a("s_lshl_b32 s%d, s61, 1\ns_add_u32 s%d, s%d, s%d" % (sT2, sRm, sT, sT2))
    a("v_add_u32 v11, s%d, v14\nv_and_b32 v11, 15, v11\nv_lshlrev_b32 v11, 2, v11" % sRm)
    a("v_mov_b32 v%d, %d" % (vCl, CLAIM))
    a("s_mul_i32 s%d, s%d, %d\ns_add_u32 s%d, s%d, 1024\ns_add_u32 s90, s100, s%d\ns_addc_u32 s91, s101, 0" % (sT, sGo, OSTR, sT, sT, sT))
    srd(a, S_OL, 90, 91, "%d" % (128 * 9216))
    a("s_lshl_b32 s%d, s%d, 8\ns_add_u32 s%d, s%d, 0x%x\ns_add_u32 s90, s100, s%d\ns_addc_u32 s91, s101, 0" % (sT, sGo, sT, sT, FLAG_OFF, sT))
    srd(a, S_FLL, 90, 91, "64")

def op_path(a, NR, role, vm0):
    lab = lambda s: "L_op_%s_%s" % (role, s)
    B = lambda k, t: vr(16 + ((k % 4) * 5 + t) * 4, 4)
    ACC = lambda t, ct: vr(176 + (t * 4 + ct) * 4, 4)
    G = NR + 4
    def offs(so, static=None):
        if static is not None:
            a("s_and_b32 s%d, s%d, 1\ns_add_u32 s%d, s%d, s%d\ns_add_u32 s%d, s%d, %d" % (sT, sW, sT, sT, sRm, sT, sT, 2 * static))
            a("s_and_b32 s%d, s%d, 15\ns_lshl_b32 s%d, s%d, 3" % (sT, sT, sT, sT))
        else:
            a("s_ff1_i32_b32 s%d, s%d" % (sT2, sBit))
            a("s_add_u32 s%d, s%d, s%d\ns_and_b32 s%d, s%d, 15\ns_lshl_b32 s%d, s%d, 3" % (sT, sT2, sRm, sT, sT, sT, sT))
            a("s_lshr_b32 s%d, s%d, 4\ns_lshl_b32 s%d, s%d, 2\ns_add_u32 s%d, s%d, s%d" % (sT2, sT2, sT2, sT2, sT, sT, sT2))
        a("s_mul_i32 s%d, s%d, 9216\ns_add_u32 s%d, s%d, s%d" % (so, sT, so, so, sOb))
        a("s_lshl_b32 s%d, s%d, 15\ns_add_u32 s%d, s%d, s%d" % (sWn, sT, sWn, sWn, sWb))
        if OPT["xo"]: a("s_mov_b32 s%d, s%d" % (so, sOb))
        if OPT["xw"]: a("s_mov_b32 s%d, s%d" % (sWn, sWb))
    def w_ops(n):
        k = n % 4
        o = ["s_add_u32 m0, s%d, %d" % (sBlkP, k * 4096), "s_add_u32 s%d, s%d, %d" % (sT2, sWn, k * 32768)]
        for q in range(4):
            o.append(("buffer_load_dwordx4 v%d, %s, s%d offen offset:%d%s lds" % (4 + q, SR(S_WO), sT2, q * 1024, POL[OPT["polwo"]]), "w%d" % n))
        return o
    def o_ops(n, so):
        k = n % 4
        o = ["s_add_u32 s%d, s%d, %d" % (sT3, so, k * 9216)]
        for t in range(NR):
            if t < 4: o.append(("buffer_load_dwordx4 %s, v1, %s, s%d offen offset:%d%s" % (B(k, t), SR(S_OL), sT3, t * 1024, POL[OPT["polo"]]), "o%d" % n))
            else: o.append(("buffer_load_dwordx4 %s, v8, %s, s%d offen%s" % (B(k, t), SR(S_OL), sT3, POL[OPT["polo"]]), "o%d" % n))
        return o
    def reads(n):
        k = n % 4; buf = 96 + 16 * (k & 1)
        return ["ds_read_b64_tr_b16 %s, v%d offset:%d" % (vr(buf + 4 * ct + 2 * rd, 2), 3 if ct & 1 else 2, k * 4096 + rd * 2048 + (ct >> 1) * 256)
                for ct in range(4) for rd in range(2)]
    def run(ops):
        for x in ops:
            a.autowait = False
            if isinstance(x, tuple): a(x[0], tag=x[1])
            else: a(x)
            a.autowait = True
    def wait_tags(*tags):
        need = None
        for k_, (t_, d_) in enumerate(a.vm):
            if t_ in tags: need = k_
        if need is not None: a("s_waitcnt vmcnt(%d)" % (len(a.vm) - 1 - need))
    FLOAD = "buffer_load_dword v9, v11, %s, 0 offen sc1" % SR(S_FLL)
    def ready():
        run(["v_or_b32 v9, v%d, v9" % vOr, "v_cmp_eq_u32 vcc, s%d, v9" % sWant, "s_nop 1", "s_mov_b32 s%d, vcc_lo" % sR])
        if OPT["nopoll"]: a("s_mov_b32 s%d, -1" % sR)
    def attempt():
        run(["s_sub_u32 s%d, 0, s%d" % (sT2, sT), "s_and_b32 s%d, s%d, s%d" % (sBit, sT, sT2),
             "v_mov_b32 v%d, s%d" % (vCb, sBit), "s_mov_b64 exec, 1", "ds_or_rtn_b32 v%d, v%d, v%d" % (vCr, vCl, vCb), "s_mov_b64 exec, -1"])
    def resolve(fail):
        run(["v_readfirstlane_b32 s%d, v%d" % (sT, vCr), "s_or_b32 s%d, s%d, s%d" % (sC, sC, sT), "s_or_b32 s%d, s%d, s%d" % (sC, sC, sBit),
             "s_and_b32 s%d, s%d, s%d" % (sT, sT, sBit), "s_cbranch_scc1 %s" % fail])
    def kstep(n, nxt, wait, hooks=False):
        k = n % 4
        wait()
        a("s_waitcnt lgkmcnt(0)")
        if hooks and k == 0:
            keep = list(a.vm)
            run(["s_cmp_eq_u32 s%d, -1" % sR, "s_cbranch_scc1 %s" % lab("nf"), FLOAD]); a.label(lab("nf"))
            a.vm = keep
        if hooks and k == 2: run(["ds_read_b32 v%d, v%d" % (vCr, vCl)])
        if hooks and k == 3:
            run(["s_cmp_eq_u32 s%d, -1" % sR, "s_cbranch_scc1 %s" % lab("nr")]); ready(); a.label(lab("nr"))
            run(["v_readfirstlane_b32 s%d, v%d" % (sT, vCr), "s_or_b32 s%d, s%d, s%d" % (sC, sC, sT), "s_andn2_b32 s%d, s%d, s%d" % (sT, sR, sC)])
            attempt()
        fillers = (reads(n + 1) if (nxt or k < 3) else []) + (w_ops(n + 4) if nxt else []) + (o_ops(n + 3, sOc) if k == 0 else (o_ops(n + 3, sOn) if nxt else []))
        buf = 96 + 16 * (k & 1)
        ms = ["%s %s, %s, %s, %s" % (MF, ACC(t, ct), vr(buf + 4 * ct, 4), B(k, t), ACC(t, ct)) for ct in range(4) for t in range(NR)]
        fi = 0
        for i, m in enumerate(ms):
            run([m])
            tgt = ((i + 1) * len(fillers) + len(ms) - 3) // (len(ms) - 2)
            while fi < min(tgt, len(fillers)):
                run([fillers[fi]]); fi += 1
        a.lgkm = []
        if k == 3 and nxt: a("s_mov_b32 s%d, s%d" % (sOc, sOn))
    a.vm = list(vm0)
    a.label(lab("aux"))
    s0 = OPT["s0"]; kp = [int(c) for c in OPT["kp"]]
    assert len(kp) == 32 - s0 and s0 >= 22
    cnt = [0]
    def pre(step):
        def f():
            if step == s0 - 3: offs(sOc, 0); run(w_ops(0) + w_ops(1))
            if step == s0 - 2:
                run([(FLOAD, "fl")])
                run(w_ops(2) + w_ops(3))
            if step == s0 - 1:
                wait_tags("fl")
                keep = list(a.vm)
                a.label(lab("f1"))
                ready()
                a("s_andn2_b32 s%d, s%d, s%d" % (sT, sC, sR))
                a("s_cbranch_scc0 %s" % lab("f1ok"))
                run(["s_sleep %d" % OPT["slp"], FLOAD, "s_waitcnt vmcnt(0)", "s_branch %s" % lab("f1")])
                a.label(lab("f1ok"))
                a.vm = keep
                run(o_ops(0, sOc) + o_ops(1, sOc) + o_ops(2, sOc))
                wait_tags("w0"); run(reads(0))
            if step == 31:
                if OPT["auxprio"]: a("s_setprio 0")
                run([(FLOAD, "fl")])
            if step >= s0:
                for _ in range(kp[step - s0]):
                    n = cnt[0]
                    if n % 4 == 0: offs(sOn, n // 4 + 1)
                    kstep(n, True, lambda: wait_tags("o%d" % n, "w%d" % (n + 1))); cnt[0] += 1
        return f
    for step in range(19, 32): aux_step(a, step, pre=pre(step))
    stamp(a, 3)
    wait_tags("fl")
    ready()
    a.vm = []
    a.label(lab("retry"))
    a("s_andn2_b32 s%d, s%d, s%d" % (sT, sR, sC))
    attempt()
    a.raw(".p2align 3")
    a.label(lab("top"))
    a("s_waitcnt lgkmcnt(0)")
    a("s_cmp_eq_u32 s%d, 0\ns_cbranch_scc1 %s" % (sBit, lab("last")))
    resolve(lab("retry"))
    offs(sOn)
    for k in range(4): kstep(k, True, lambda: a("s_waitcnt vmcnt(%d)" % (2 * G)), hooks=True)
    a("s_branch %s" % lab("top"))
    a.label(lab("last"))
    for k in range(4): kstep(k, False, lambda: a("s_waitcnt vmcnt(%d)" % [2 * G, G + NR, NR, 0][k]))
    a.vm = []
    a.label(lab("idle"))
    run([FLOAD, "ds_read_b32 v%d, v%d" % (vCr, vCl), "s_waitcnt vmcnt(0) lgkmcnt(0)", "v_readfirstlane_b32 s%d, v%d" % (sC, vCr)])
    ready()
    a.label(lab("idle2"))
    a("s_cmp_eq_u32 s%d, -1\ns_cbranch_scc1 %s" % (sC, lab("done")))
    a("s_not_b32 s%d, s%d\ns_and_b32 s%d, s%d, s%d" % (sT2, sC, sT, sR, sT2))
    a("s_cbranch_scc1 %s" % lab("cl"))
    a("s_bcnt1_i32_b32 s%d, s%d\ns_mov_b32 s%d, s%d\ns_cmp_le_u32 s%d, %d\ns_cbranch_scc1 %s" % (sT3, sT2, sT, sT2, sT3, OPT["park"], lab("cl")))
    a("s_sleep %d\ns_branch %s" % (OPT["slp"], lab("idle")))
    a.label(lab("cl"))
    attempt()
    a("s_waitcnt lgkmcnt(0)")
    resolve(lab("idle2"))
    offs(sOc)
    run(w_ops(0) + w_ops(1) + w_ops(2) + w_ops(3))
    a.label(lab("park"))
    a("s_and_b32 s%d, s%d, s%d\ns_cbranch_scc1 %s" % (sT, sR, sBit, lab("go")))
    run(["s_sleep %d" % OPT["slp"], FLOAD, "s_waitcnt vmcnt(0)"])
    ready()
    a("s_branch %s" % lab("park"))
    a.label(lab("go"))
    stamp(a, 6)
    run(o_ops(0, sOc) + o_ops(1, sOc) + o_ops(2, sOc))
    a("s_waitcnt vmcnt(%d)" % (3 * NR))
    run(reads(0))
    a("s_waitcnt vmcnt(0)")
    a("s_branch %s" % lab("retry"))
    a.label(lab("done"))
    a.vm = []; a.lgkm = []
    stamp(a, 1)
    a("s_barrier")
    a("s_mul_i32 s%d, s%d, %d" % (sT, sOpIdx, 20 * KB))
    a("v_add_u32 v9, s%d, v1" % sT)
    for i in range(NR * 4): a("ds_write_b128 v9, %s offset:%d" % (vr(176 + i * 4, 4), i * 1024))
    a("s_lshl_b32 s%d, s%d, 10" % (sT, sOpIdx))
    a("v_add_u32 v9, s%d, v1\nv_add_u32 v8, %d, v9" % (sT, 40 * KB))
    a("s_waitcnt lgkmcnt(0)")
    a("s_barrier")
    for t in range(NR):
        for w in range(4):
            a("ds_read_b128 %s, v%d offset:%d" % (vr(16 + (t * 4 + w) * 4, 4), 9 if w < 2 else 8, (w & 1) * 20 * KB + t * 4096))
    for t in range(NR):
        b = 16 + t * 16
        for r in range(0, 4, 2):
            a("v_pk_add_f32 %s, %s, %s" % (vr(b + r, 2), vr(b + r, 2), vr(b + 4 + r, 2)))
            a("v_pk_add_f32 %s, %s, %s" % (vr(b + 8 + r, 2), vr(b + 8 + r, 2), vr(b + 12 + r, 2)))
            a("v_pk_add_f32 %s, %s, %s" % (vr(b + r, 2), vr(b + r, 2), vr(b + 8 + r, 2)))
        a("v_cvt_pk_bf16_f32 v%d, v%d, v%d\nv_cvt_pk_bf16_f32 v%d, v%d, v%d" % (b, b, b + 1, b + 1, b + 2, b + 3))
        a("s_add_u32 s%d, s%d, %d" % (sT, sOutOff, t * 32768))
        a("buffer_store_dwordx2 %s, v10, %s, s%d offen%s" % (vr(b, 2), SR(S_OUT), sT, POL[OPT["polout"]]))
    if OPT["stamps"]:
        a("s_waitcnt vmcnt(0)")
        stamp(a, 7)
        stamp_store(a)
    a("s_endpgm")
    a.vm = []; a.lgkm = []

def kernel():
    a = Asm()
    a.raw(".globl %s\n.p2align 8\n.type %s,@function" % (NAME, NAME)); a.label(NAME)
    a("s_cmp_ge_u32 s2, 256\ns_cbranch_scc1 L_end")
    if OPT["stamps"]:
        for k in range(NST): a("s_memrealtime s[%d:%d]" % (64 + 2 * k, 65 + 2 * k))
    a("s_and_b32 s%d, s2, 7\ns_lshr_b32 s%d, s2, 3\ns_lshr_b32 s%d, s%d, 2" % (sT, sT2, sBlk, sT))
    a("s_mul_i32 s%d, s%d, 40" % (sT3, sBlk))
    a("s_add_u32 s4, s0, s%d\ns_addc_u32 s5, s1, 0" % sT3)
    a("s_load_dwordx8 s[80:87], s[4:5], 0")
    a("s_load_dwordx2 s[88:89], s[4:5], 32")
    a("s_load_dwordx4 s[96:99], s[0:1], 80")
    a("s_load_dwordx2 s[92:93], s[0:1], 96")
    a("s_lshr_b32 s%d, s%d, 4\ns_lshl_b32 s%d, s%d, 1\ns_add_u32 s%d, s%d, s%d" % (sGo, sT2, sT3, sT, sGo, sGo, sT3))
    a("s_and_b32 s%d, s%d, 15" % (sJo, sT2))
    if OPT["map"] == 0:
        a("s_mov_b32 s%d, s%d\ns_mov_b32 s%d, s%d\ns_and_b32 s%d, s%d, 7" % (sG, sGo, sJJ, sJo, sB, sGo))
        a("s_and_b32 s%d, s%d, 1\ns_lshl_b32 s%d, s%d, 2\ns_add_u32 s%d, s%d, s%d" % (sRot, sG, sRot, sRot, sRot, sRot, sJJ))
    elif OPT["map"] == 1:
        a("s_and_b32 s%d, s%d, 7\ns_and_b32 s%d, s%d, 1\ns_lshl_b32 s%d, s%d, 3\ns_add_u32 s%d, s%d, s%d" % (sRot, sT2, sJJ, sT, sJJ, sJJ, sJJ, sJJ, sRot))
        a("s_lshr_b32 s%d, s%d, 3\ns_lshl_b32 s%d, s%d, 1\ns_add_u32 s%d, s%d, s%d" % (sB, sT2, sT3, sB, sRot, sRot, sT3))
        a("s_and_b32 s%d, s%d, 2\ns_lshl_b32 s%d, s%d, 1\ns_add_u32 s%d, s%d, s%d" % (sT3, sT, sT3, sT3, sB, sB, sT3))
        a("s_lshl_b32 s%d, s%d, 3\ns_add_u32 s%d, s%d, s%d" % (sG, sBlk, sG, sG, sB))
    else:
        a("s_and_b32 s%d, s%d, 3\ns_and_b32 s%d, s%d, 3\ns_lshl_b32 s%d, s%d, 2\ns_add_u32 s%d, s%d, s%d" % (sRot, sT2, sJJ, sT, sJJ, sJJ, sJJ, sJJ, sRot))
        a("s_lshr_b32 s%d, s%d, 2\ns_lshl_b32 s%d, s%d, 1\ns_add_u32 s%d, s%d, s%d" % (sB, sT2, sRot, sRot, sRot, sRot, sB))
        a("s_lshl_b32 s%d, s%d, 3\ns_add_u32 s%d, s%d, s%d" % (sG, sBlk, sG, sG, sB))
    a("s_getpc_b64 s[60:61]")
    a.label("L_pf")
    a("v_lshlrev_b32 v12, 7, v0")
    a.items.append(a._mk("v_min_u32 v12, 0x1234, v12")); a.items[-1].text = "v_min_u32 v12, L_end-L_pf, v12"
    a("global_load_dword v253, v12, s[60:61]")
    a("v_lshrrev_b32 v12, 6, v0")
    a("v_readfirstlane_b32 s%d, v12" % sW)
    a("s_mul_i32 s62, s%d, 147456" % sB)
    a("s_cmp_ge_u32 s%d, 6\ns_cbranch_scc1 L_auxrole" % sW)
    st = (list(a.lgkm), list(a.vm))
    a("s_cmp_ge_u32 s%d, 4\ns_cbranch_scc1 L_brole" % sW)
    head(a, "A")
    a("s_branch L_att")
    a.lgkm, a.vm = list(st[0]), list(st[1])
    a.raw(".p2align 3"); a.label("L_brole")
    head(a, "B")
    a.label("L_att")
    attention(a)
    a.lgkm, a.vm = list(st[0]), list(st[1])
    a.raw(".p2align 3"); a.label("L_auxrole")
    head(a, "X")
    aux(a)
    vm0 = list(a.vm)
    op_path(a, 5, "a", vm0)
    op_path(a, 4, "b", vm0)
    a.label("L_end"); a("s_endpgm")
    a.pad_hazards()
    a.check_backedge("L_loop", "s_cbranch_scc1 L_loop")
    a.align8()
    return a.text()

out = []
out.append("; " + " ".join(sys.argv[1:]) + " : fused Q-projection + attention + O-projection, one launch (generated by dev/gen9.py)")
out.append("; @launch grid=(256,1,1) block=(512,1,1) lds=163840")
out.append('.amdgcn_target "amdgcn-amd-amdhsa--gfx950"\n.text')
out.append(kernel())
out.append('.section .rodata,"a"\n.p2align 6')
out.append(""".amdhsa_kernel %s
  .amdhsa_next_free_vgpr 256
  .amdhsa_next_free_sgpr 102
  .amdhsa_accum_offset 256
  .amdhsa_group_segment_fixed_size 0
  .amdhsa_kernarg_size 104
  .amdhsa_user_sgpr_count 2
  .amdhsa_user_sgpr_kernarg_segment_ptr 1
  .amdhsa_system_sgpr_workgroup_id_x 1
.end_amdhsa_kernel
""" % NAME)
print("\n".join(out))
```

```python
import sys, math, struct
sys.path.insert(0, "dev")
from asmlib import *

OPT = dict(stamps=0, samekv=0, clk=0, hst=0, nopoll=0, polo=2, polw=0, polx=0, polwo=0, pols=2, polkv=1, slp=4, lo=2,
           auxprio=0, sbs=1, s0=22, kp="3333333322", sst=-1, sstd=1, xo=0, xw=0, map=2, park=2, hprio=1, kv0=5, kv1=6, pk14=0, ck=0, polout=0, ptouch=0, tw0="", tw1="", g0=15, cap=0, capto=16, nol=0, q2mix=2, bst=-1, bw=0, pair=1, mxf=1, p14=1, early=8, tst=0, cpf=0, pfm=-1)
for a_ in sys.argv[1:]:
    k, v = a_.split("="); assert k in OPT, k; OPT[k] = v if k in ("kp", "tw0", "tw1") else int(v)

NAME = "concat_heads__mha_block_cached__gqa_block_cached__near_ridge_kernel"
def f32(x): return "0x%08x" % struct.unpack("<I", struct.pack("<f", x))[0]
CSCALE = math.log2(math.e) / math.sqrt(128.0)
THR = 8.0
KB = 1024
SLOT = 32 * KB
XB = [96 * KB, 114 * KB, 132 * KB]
WB = [32 * KB, 48 * KB, 0]
Q2B = 96 * KB; Q1A = 132 * KB; Q1C = 32 * KB; EX1 = 132 * KB; EX2 = 80 * KB; W2R = 132 * KB
MLB = 156 * KB; CNT = 160 * KB - 128; TAGW = CNT + 8; CLAIM = CNT + 16; PFL = CNT + 32
STAMP_OFF = 0x10000000; FLAG_OFF = 0x2000000
PHM = 0x40000000
OSTR = 128 * 9216 + 1024
MF = "v_mfma_f32_16x16x32_bf16"
NST = 8
POL = ["", " nt", " sc1", " sc0 sc1", " sc1 nt"]
NIN = sum(int(c) for c in OPT["kp"]) // 4
assert NIN * 4 == sum(int(c) for c in OPT["kp"]) and NIN <= 7

S_FL, S_WQ, S_X, S_O, S_KV, S_WO, S_OUT, S_DBG = 4, 8, 12, 16, 20, 24, 28, 32
S_OL, S_FLL = 8, 12
sW, sG, sJJ, sBlk, sB, sRot, sT, sT2, sT3 = 36, 37, 38, 39, 40, 41, 42, 43, 44
sCnt, sThr, sFl, sSlot, sDelta, sItem, sExS, sBar, sExch, sOoff = 45, 46, 47, 48, 49, 50, 51, 52, 53, 54
sNeg, sPos, sPart, sKg, sRho = 55, 56, 57, 59, 62
sHk, sHo = 46, 47
sOc, sOn, sWn, sBlkP, sRm, sBit, sR, sC = 46, 47, 48, 49, 51, 52, 55, 56
sBlkD, sBc, sBn, sOnn = 45, 53, 58, 86
sOb, sWb, sOutOff, sOpIdx, sTag, sWant, sTagA = 80, 81, 82, 83, 84, 85, 87
sGo, sJo = 94, 95

def srd(a, d, lo, hi, nrec):
    a("s_mov_b32 s%d, s%d\ns_mov_b32 s%d, s%d" % (d, lo, d + 1, hi))
    a("s_mov_b32 s%d, %s\ns_mov_b32 s%d, 0x20000" % (d + 2, nrec, d + 3))
def SR(d): return "s[%d:%d]" % (d, d + 3)

def cstamp(a, e):
    if OPT["clk"]: a("s_memtime s[%d:%d]\ns_memrealtime s[%d:%d]" % (66 + 2 * e, 67 + 2 * e, 70 + 2 * e, 71 + 2 * e))
def stamp(a, k, hs=False):
    if not OPT["stamps"] or OPT["ck"]: return
    if OPT["clk"] and 1 <= k <= 4: return
    if (OPT["sst"] >= 0 or OPT["bst"] >= 0 or OPT["tst"]) and k and k != 7: return
    if OPT["hst"] and k and not hs: return
    if hs and not OPT["hst"]: return
    a("s_memrealtime s[%d:%d]" % (64 + 2 * k, 65 + 2 * k))
BSN = [0]
def bstamp(a, k):
    if OPT["bst"] < 0: return
    BSN[0] += 1
    a("s_cmp_lg_u32 s%d, %d\ns_cbranch_scc1 L_bs%d\ns_memrealtime s[%d:%d]\nL_bs%d:" % (sItem, OPT["bst"], BSN[0], 64 + 2 * k, 65 + 2 * k, BSN[0]))
def stamp_store(a):
    a("s_waitcnt vmcnt(0) lgkmcnt(0)")
    a("s_cmp_eq_u32 s%d, 6\ns_cselect_b32 s%d, 256, 0" % (sW, sT))
    a("s_mul_i32 s%d, s%d, 43\ns_lshr_b32 s%d, s%d, 8\ns_mul_i32 s%d, s%d, 6" % (sT2, sW, sT2, sT2, sT2, sT2))
    a("s_cmp_lg_u32 s%d, s%d\ns_cbranch_scc1 L_end" % (sT2, sW))
    a("s_add_u32 s96, s100, 0x%x\ns_addc_u32 s97, s101, 0" % STAMP_OFF)
    a("s_mov_b32 s98, 0x100000\ns_mov_b32 s99, 0x20000")
    a("s_add_u32 s3, s2, s%d\ns_mul_i32 s3, s3, %d" % (sT, NST * 8))
    a("v_mov_b32 v12, s3\ns_mov_b64 exec, 1")
    for k in range(NST):
        a("v_mov_b32 v14, s%d\nv_mov_b32 v15, s%d" % (64 + 2 * k, 65 + 2 * k))
        a("buffer_store_dwordx2 v[14:15], v12, s[96:99], 0 offen offset:%d" % (8 * k))
        a("s_nop 1")

def lanes(a):
    a("v_and_b32 v12, 63, v0\nv_lshrrev_b32 v13, 4, v12\nv_and_b32 v14, 15, v12\nv_bfe_u32 v15, v12, 2, 2")

vK, vVa, vVb = 1, 2, 3
vX1, vX2, vX3, vX4 = 4, 5, 6, 7
vONE, vT, vQ, vO, vL, vM, vS, vF = 8, 12, 16, 64, 160, 172, 184, 208
def Q(t, s): return vr(vQ + 16 * t + 4 * s, 4)
def O(t, dt): return vr(vO + 32 * t + 4 * dt, 4)
def L(t): return vr(vL + 4 * t, 4)
def M(t): return vr(vM + 4 * t, 4)
def S(t, kt): return vr(vS + 8 * t + 4 * kt, 4)
def F(i): return vF + 4 * i
vD = 128
vFo, vDg, vDg2, vFl, vA_, vB_, vOr, vCl, vCr, vCb = 136, 137, 138, 139, 140, 141, 142, 143, 144, 145

sKo = 50
def kv_ops(tile):
    slot = (tile + 2) % 3
    o = []
    for grp in range(4):
        for q in range(4):
            pre_ = "s_add_u32 m0, s%d, %d\ns_mov_b32 s%d, %d\n" % (sKg, slot * SLOT + grp * 4096, sKo, tile * 16384 + grp * 4096) if q == 0 else ""
            o.append((pre_ + "buffer_load_dwordx4 v%d, %s, s%d offen offset:%d%s lds" % (vD + q + (4 if grp >= 2 else 0), SR(S_KV), sKo, q * 1024, POL[OPT["polkv"]]), "t%d" % tile))
    return o
KV_DONE = set()
def kv_tile(a, tile):
    if tile in KV_DONE and tile < 17: return
    for x, t in kv_ops(tile): a(x, tag=t)

def srds_first(a):
    a("s_waitcnt lgkmcnt(0)")
    srd(a, S_WQ, 86, 87, "%d" % (512 * 8192))
    a("s_add_u32 s80, s80, s62\ns_addc_u32 s81, s81, 0")
    srd(a, S_X, 80, 81, "147456")

def srds_rest(a):
    a("s_mul_i32 s%d, s%d, %d\ns_add_u32 s%d, s%d, 1024\ns_add_u32 s90, s92, s%d\ns_addc_u32 s91, s93, 0" % (sT, sG, OSTR, sT, sT, sT))
    srd(a, S_O, 90, 91, "%d" % (128 * 9216))
    a("s_cmp_eq_u32 s%d, 6\ns_cselect_b32 s82, s82, s84\ns_cselect_b32 s83, s83, s85" % sW)
    a("s_lshl_b32 s%d, s%d, 4\ns_add_u32 s%d, s%d, s%d" % (sT, sB, sT, sT, sJJ))
    if OPT["samekv"]: a("s_mov_b32 s%d, 0" % sT)
    a("s_lshl_b32 s%d, s%d, 19" % (sT, sT))
    a("s_add_u32 s82, s82, s%d\ns_addc_u32 s83, s83, 0" % sT)
    srd(a, S_KV, 82, 83, "524288")
    srd(a, S_WO, 88, 89, "%d" % (4096 * 1024))
    srd(a, S_OUT, 96, 97, "%d" % (8 * 144 * 1024 * 2))
    srd(a, S_DBG, 98, 99, "256")
    a("s_lshl_b32 s%d, s%d, 8\ns_add_u32 s%d, s%d, 0x%x\ns_add_u32 s90, s92, s%d\ns_addc_u32 s91, s93, 0" % (sT, sG, sT, sT, FLAG_OFF, sT))
    srd(a, S_FL, 90, 91, "64")
    a("s_mov_b32 s100, s92\ns_mov_b32 s101, s93")
    if OPT["pair"]: a("s_and_b32 s%d, s%d, 1\ns_lshr_b32 s%d, s%d, 1" % (sKg, sW, sRho, sW))
    else: a("s_cmp_ge_u32 s%d, 3\ns_cselect_b32 s%d, 1, 0\ns_mul_i32 s%d, s%d, 3\ns_sub_u32 s%d, s%d, s%d" % (sW, sKg, sT, sKg, sRho, sW, sT))
    a("v_and_b32 v236, 31, v0\nv_lshlrev_b32 v236, 2, v236\nv_add_u32 v236, %d, v236\nv_mov_b32 v234, 0" % CNT)
    a("ds_write_b32 v236, v234")

def q_pack(a, b, scale):
    for r in range(0, 8, 2): a("v_pk_mul_f32 %s, %s, %s" % (vr(b + r, 2), vr(b + r, 2), scale))
    for r in range(4): a("v_cvt_pk_bf16_f32 v%d, v%d, v%d" % (b + r, b + 2 * r, b + 2 * r + 1))
def q_swap(a, b):
    a("v_permlane16_swap_b32 v%d, v%d\nv_permlane16_swap_b32 v%d, v%d" % (b, b + 2, b + 1, b + 3))

def head(a, role):
    att = role != "X"; ldr = role != "A"
    NRT = 4 if ldr else 5; T0 = 5 if ldr else 0
    vHW, vHX = 224, 248
    vA1, vA2, vBx = 231, 232, 233
    cA1, cA2, cBx = 234, 235, 236
    ACC = lambda t, d: vr(16 + 8 * t + 4 * d, 4)
    BF = lambda u, t: vr(56 + 20 * u + 4 * t, 4)
    AF = lambda u, d: 96 + 8 * u + 4 * d
    NX = 5 if att else 4
    lanes(a)
    if ldr:
        a("s_and_b32 s60, s%d, 3" % sW)
        a("v_and_b32 v%d, 3, v12\nv_lshlrev_b32 v%d, 4, v%d" % (vHX, vHX, vHX))
        a("v_lshl_add_u32 v%d, v13, 6, v%d" % (vHW, vHX))
        if not att: a("v_lshl_add_u32 v%d, v15, 8, v%d" % (vD, vHW))
        a("v_lshl_add_u32 v%d, v15, 13, v%d" % (vHW, vHW))
        a("s_lshl_b32 s%d, s60, 17\ns_lshl_b32 s%d, s%d, 9\ns_add_u32 s%d, s%d, s%d" % (sT, sT2, sJJ, sT, sT, sT2))
        a("v_add_u32 v%d, s%d, v%d" % (vHW, sT, vHW))
        a("v_add_u32 v%d, %d, v%d" % (vHW + 1, 31744, vHW))
        a("v_add_u32 v%d, %d, v%d\nv_xor_b32 v%d, 32, v%d" % (vHW + 2, 2 * 31744, vHW, vHW + 2, vHW + 2))
        a("v_add_u32 v%d, %d, v%d" % (vHW + 3, 31744, vHW + 2))
        a("s_lshl_b32 s63, s60, 12")
        a("s_mul_i32 s61, s60, %d" % NX)
        if not att: a("s_add_u32 s61, s61, 2")
        a("v_and_b32 v%d, 1, v13\nv_lshl_add_u32 v%d, v%d, 6, v%d" % (vA1, vHX, vA1, vHX))
        if not att: a("v_mov_b32 v4, v%d" % vHX)
        a("v_lshl_add_u32 v%d, v15, 10, v%d" % (vHX, vHX))
        a("v_lshrrev_b32 v%d, 5, v12\nv_lshl_add_u32 v%d, v%d, 12, v%d" % (vA1, vHX, vA1, vHX))
        if not att: a("v_mov_b32 v8, v%d" % vHX)
        a("s_lshl_b32 s%d, s61, 13\ns_and_b32 s%d, s61, 1\ns_lshl_b32 s%d, s%d, 5" % (sT, sT2, sT2, sT2))
        a("v_add_u32 v%d, s%d, v%d\nv_xor_b32 v%d, s%d, v%d" % (vHX, sT, vHX, vHX, sT2, vHX))
        a("v_add_u32 v%d, 7168, v%d\nv_xor_b32 v%d, 32, v%d" % (vHX + 1, vHX, vHX + 1, vHX + 1))
        a("v_add_u32 v%d, 14336, v%d\nv_add_u32 v%d, 14336, v%d" % (vHX + 2, vHX, vHX + 3, vHX + 1))
        if att: a("v_add_u32 v%d, 32768, v%d" % (vHX + 4, vHX))
        a("s_lshl_b32 s61, s61, 10")
    def stage_ops(j):
        if not ldr: return []
        xb = XB[j % 3]; wb = WB[j % 3]
        o = []
        for qq in range(4):
            pre_ = "s_add_u32 s%d, s%d, %d\ns_and_b32 s%d, s%d, 7\ns_lshl_b32 s%d, s%d, 19\ns_add_u32 m0, s63, %d\n" % (sHk, sRot, j, sHk, sHk, sHo, sHk, wb) if qq == 0 else ""
            o.append(pre_ + "buffer_load_dwordx4 v%d, %s, s%d offen offset:%d%s lds" % (vHW + qq, SR(S_WQ), sHo, qq * 1024, POL[OPT["polw"]]))
        for e in range(NX):
            pre_ = "s_add_u32 m0, s61, %d\n" % (xb + 4096) if e == 4 else ("s_add_u32 m0, s61, %d\ns_lshl_b32 s%d, s%d, 7\n" % (xb, sHo, sHk) if e == 0 else "")
            o.append(pre_ + "buffer_load_dwordx4 v%d, %s, s%d offen offset:%d%s lds" % (vHX + e, SR(S_X), sHo, (e & 3) * 1024, POL[OPT["polx"]]))
        return [(x, "h%d" % j) for x in o]
    def stage_load(j):
        for x, t in stage_ops(j): a(x, tag=t)
    srds_first(a)
    stage_load(0)
    if role == "A" and OPT["ptouch"]:
        a("s_cmp_lg_u32 s%d, 0\ns_cbranch_scc1 L_nopt" % sW)
        a("s_lshl_b32 s%d, s%d, 4\ns_add_u32 s%d, s%d, s%d\ns_lshl_b32 s%d, s%d, 19" % (sT, sB, sT, sT, sJJ, sT, sT))
        a("v_mov_b32 v240, s%d" % sT)
        a.autowait = False
        a("global_load_dword v244, v240, s[82:83]\nglobal_load_dword v245, v240, s[84:85]")
        a("v_and_b32 v240, 1, v12\nv_lshlrev_b32 v241, 21, v240")
        a("global_load_dword v246, v241, s[88:89]\nglobal_load_dword v247, v241, s[96:97]")
        a("v_add_u32 v241, s%d, v240\nv_add_u32 v242, s%d, v240\nv_and_b32 v243, 2, v12\nv_cmp_eq_u32 vcc, 0, v243" % (sG, sGo))
        a("v_cndmask_b32 v241, v241, v242, vcc\ns_mov_b32 s%d, %d\nv_mul_lo_u32 v241, s%d, v241" % (sT, OSTR, sT))
        a("v_mov_b32 v242, 0x%x\nv_cmp_lt_u32 vcc, 3, v12\nv_cndmask_b32 v241, v241, v242, vcc" % (FLAG_OFF + 8192))
        a("global_load_dword v248, v241, s[92:93]")
        a.autowait = True
        a.label("L_nopt")
    srds_rest(a)
    a("v_and_b32 v%d, 3, v12\nv_lshlrev_b32 v%d, 3, v%d" % (vA1, vA1, vA1))
    a("v_lshl_add_u32 v%d, v15, 6, v%d" % (vA1, vA1))
    a("v_and_b32 v%d, 1, v13\nv_lshl_add_u32 v%d, v%d, 5, v%d" % (vA2, vA1, vA2, vA1))
    a("v_lshl_add_u32 v%d, v13, 10, v%d" % (vVa, vA1))
    a("v_lshl_add_u32 v%d, v13, 11, v%d" % (vA1, vA1))
    a("s_and_b32 s%d, s%d, 3\ns_lshl_b32 s%d, s%d, 8" % (sT, sW, sT, sT))
    a("v_add_u32 v%d, s%d, v%d\nv_xor_b32 v%d, 32, v%d" % (vA1, sT, vA1, vA2, vA1))
    a("v_lshrrev_b32 v%d, 3, v14\nv_lshlrev_b32 v%d, 1, v%d\nv_xor_b32 v%d, v%d, v13\nv_lshlrev_b32 v%d, 4, v%d" % (vBx, vBx, vBx, vBx, vBx, vBx, vBx))
    a("v_and_b32 v%d, 3, v14\nv_lshl_add_u32 v%d, v%d, 6, v%d" % (cBx, vBx, cBx, vBx))
    a("v_lshl_add_u32 v%d, v15, 9, v%d" % (vBx, vBx))
    if att:
        a("s_lshl_b32 s%d, s%d, 13\ns_add_u32 s%d, s%d, %d" % (sT, sKg, sT, sT, 2 * SLOT))
        a("v_add_u32 v%d, s%d, v%d\nv_add_u32 v%d, 16384, v%d\nv_xor_b32 v%d, 32, v%d" % (vVa, sT, vVa, vVa, vVa, vVb, vVa))
        a("v_lshlrev_b32 v%d, 10, v15" % vK)
        a("v_lshl_add_u32 v%d, v%d, 6, v%d" % (vK, cBx, vK))
        a("v_lshrrev_b32 v%d, 1, v13\nv_and_b32 v%d, 1, v13\nv_lshl_or_b32 v%d, v%d, 1, v%d" % (cA1, cA2, cA1, cA2, cA1))
        a("v_lshrrev_b32 v%d, 3, v14\nv_xor_b32 v%d, v%d, v%d" % (cA2, cA1, cA1, cA2))
        a("v_lshl_add_u32 v%d, v%d, 4, v%d\nv_add_u32 v%d, s%d, v%d" % (vK, cA1, vK, vK, sT, vK))
        for r in range(4): a("v_mov_b32 v%d, 0x3f803f80" % (vONE + r))
    else:
        a("s_cmp_eq_u32 s%d, 6" % sW)
        a("s_cselect_b32 s%d, 0, 32\ns_cselect_b32 s%d, 16, 0\ns_cselect_b32 s%d, 16, 32\ns_cselect_b32 s60, 0, 128\ns_cselect_b32 s%d, 0, 16384" % (sT, sT2, sT3, sKg))
        a("v_xor_b32 v%d, s%d, v%d\nv_xor_b32 v%d, s%d, v%d\nv_xor_b32 v%d, s%d, v%d" % (vD + 1, sT, vD, vD + 2, sT2, vD, vD + 3, sT3, vD))
        for q in range(4): a("v_xor_b32 v%d, s60, v%d" % (vD + 4 + q, vD + q))
        a("v_add_u32 v1, %d, v%d" % (XB[0], vBx))
    a("v_mov_b32 v238, %s\nv_mov_b32 v239, %s" % (f32(CSCALE), f32(CSCALE)))
    def reads(u):
        tr = lambda d: ["ds_read_b64_tr_b16 %s, v%d offset:%d" % (vr(AF(u, d) + 2 * rd, 2), cA2 if d else cA1, u * 8192 + rd * 1024) for rd in range(2)]
        return tr(0) + ["ds_read_b128 %s, v%d offset:%d" % (BF(u, t), cBx, (T0 + t) * 2048 + u * 256) for t in range(NRT)] + tr(1)
    def mfmas(u, first):
        return ["%s %s, %s, %s, %s" % (MF, ACC(t, d), vr(AF(u, d), 4), BF(u, t), "0" if first else ACC(t, d)) for d in range(2) for t in range(NRT)]
    stage_load(1)
    stamp(a, 1)
    def mix(ms, rs, ds=()):
        di = 0; ri = 0
        for k, x in enumerate(ms):
            a(x)
            for _ in range(2):
                if ri < len(rs): a(rs[ri]); ri += 1
            while di < len(ds) and di * len(ms) <= k * len(ds):
                a(ds[di][0], tag=ds[di][1]); di += 1
        for x, t in ds[di:]: a(x, tag=t)
    if ldr and OPT["hprio"]: a("s_setprio %d" % OPT["hprio"])
    for j in range(8):
        a.wait_vm_tag("h%d" % j)
        a("v_add_u32 v%d, %d, v%d\nv_add_u32 v%d, %d, v%d\nv_add_u32 v%d, %d, v%d" % (cA1, WB[j % 3], vA1, cA2, WB[j % 3], vA2, cBx, XB[j % 3], vBx))
        a("s_waitcnt lgkmcnt(0)")
        a("s_barrier")
        if j < 7: stamp(a, j + 1, hs=True)
        d = stage_ops(j + 2) if j + 2 < 8 else []
        cut = (len(d) + 1) // 2
        if j == 0:
            for x in reads(0): a(x)
            for x, t in d[:cut]: a(x, tag=t)
        else: mix(mfmas(1, False), reads(0), d[:cut])
        a("s_waitcnt lgkmcnt(0)")
        mix(mfmas(0, j == 0), reads(1), d[cut:])
        if not att and j == OPT["kv0"]: kv_tile(a, 0)
        if not att and j == OPT["kv1"] and j < 7: kv_tile(a, 1)
    for x in mfmas(1, False): a(x)
    a("s_and_b32 s60, s%d, 3\ns_lshl_b32 s60, s60, 10" % sW)
    a("v_lshlrev_b32 v%d, 4, v12\nv_add_u32 v%d, s60, v%d" % (cBx, cBx, cBx))
    a("v_add_u32 v%d, %d, v%d\nv_add_u32 v%d, %d, v%d" % (cA1, Q1A, cBx, cA2, Q1C, cBx))
    for t in range(NRT): q_pack(a, 16 + 8 * t, "v[238:239]")
    for t in range(NRT): q_swap(a, 16 + 8 * t)
    for t in range(NRT):
        tg = T0 + t
        a("ds_write_b128 v%d, %s offset:%d" % (cA1 if tg < 6 else cA2, vr(16 + 8 * t, 4), (tg if tg < 6 else tg - 6) * 4096))
    if ldr and OPT["hprio"]: a("s_setprio 0")
    a("s_waitcnt lgkmcnt(0)")
    a("s_barrier")
    if not att and OPT["kv1"] >= 7: kv_tile(a, 1)
    stamp(a, 2)

def pair_signal(a):
    a("s_add_u32 s%d, s%d, 1" % (sBar, sBar))
    a("v_mov_b32 v%d, s%d" % (vT, sBar))
    a("ds_write_b32 v%d, v%d" % (vX3, vT))

def pair_wait(a, name, reads):
    a.label(name)
    a("ds_read_b32 v%d, v%d" % (vT, vX4))
    for x in reads: a(x)
    a("s_waitcnt lgkmcnt(%d)" % len(reads))
    a("v_readfirstlane_b32 s%d, v%d" % (sT, vT))
    a("s_cmp_ge_u32 s%d, s%d" % (sT, sBar))
    a("s_cbranch_scc1 %s_ok" % name)
    a("s_waitcnt lgkmcnt(0)")
    if OPT["sbs"]: a("s_sleep %d" % OPT["sbs"])
    a("s_branch %s" % name)
    a.label(name + "_ok")
    a("s_waitcnt lgkmcnt(0)")

def publish(a, name, t0):
    a("s_waitcnt vmcnt(0)")
    a("s_mov_b64 exec, 1")
    a("v_mov_b32 v%d, %d\nv_mov_b32 v%d, 1" % (t0 + 2, CNT, t0 + 1))
    a("ds_add_rtn_u32 v%d, v%d, v%d offset:4" % (t0, t0 + 2, t0 + 1))
    a("ds_read_b32 v%d, v%d offset:8" % (t0 + 1, t0 + 2))
    a("s_waitcnt lgkmcnt(0)")
    a("v_readfirstlane_b32 s%d, v%d" % (sT, t0))
    a("s_cmp_lg_u32 s%d, 5" % sT)
    a("s_cbranch_scc1 %s" % name)
    a("v_or_b32 v%d, 0x%x, v%d" % (t0 + 1, PHM, t0 + 1))
    a("s_lshl_b32 s%d, s%d, 2" % (sT2, sJJ))
    a("v_mov_b32 v%d, s%d" % (t0, sT2))
    a("buffer_store_dword v%d, v%d, %s, 0 offen sc1" % (t0 + 1, t0, SR(S_FL)))
    a.label(name)
    a("s_mov_b64 exec, -1")

def attention(a):
    NT = 3; TL = 2
    a("s_waitcnt vmcnt(0)")
    a("v_lshlrev_b32 v%d, 4, v12" % vX1)
    a("s_mul_i32 s%d, s%d, %d\ns_add_u32 s%d, s%d, %d" % (sT, sRho, 12 * KB, sT, sT, Q1A))
    a("s_cmp_eq_u32 s%d, 2\ns_cselect_b32 s%d, %d, s%d" % (sRho, sT, Q1C, sT))
    a("v_add_u32 v%d, s%d, v%d" % (vX2, sT, vX1))
    for t in range(3):
        for s in range(4): a("ds_read_b128 %s, v%d offset:%d" % (Q(t, s), vX2, t * 4096 + s * 1024))
    if OPT["pair"]: a("s_xor_b32 s%d, s%d, 1" % (sPart, sW))
    else: a("s_add_u32 s%d, s%d, 3\ns_cmp_ge_u32 s%d, 6\ns_cselect_b32 s%d, 6, 0\ns_sub_u32 s%d, s%d, s%d" % (sPart, sW, sPart, sT2, sPart, sPart, sT2))
    a("s_lshl_b32 s%d, s%d, 2\ns_add_u32 s%d, s%d, %d\ns_lshl_b32 s%d, s%d, 2\ns_add_u32 s%d, s%d, %d" % (sT, sW, sT, sT, PFL, sT2, sPart, sT2, sT2, PFL))
    a("v_mov_b32 v%d, s%d\nv_mov_b32 v%d, s%d" % (vX3, sT, vX4, sT2))
    a("s_mov_b32 s%d, 0x40004000\ns_mov_b32 s%d, %s" % (sThr, sFl, f32(THR)))
    a("s_mov_b32 s%d, 0\ns_mov_b32 s%d, 0\ns_mov_b32 s%d, 2" % (sItem, sBar, sSlot))
    a("s_mul_i32 s%d, s%d, %d\ns_add_u32 s%d, s%d, %d" % (sExch, sRho, 12 * KB, sExch, sExch, Q2B))
    a("s_mov_b32 s%d, 0x%x\ns_mov_b32 s%d, %d" % (sNeg, (-2 * SLOT) & 0xffffffff, sPos, SLOT))
    a("s_lshl_b32 s%d, s%d, 3\ns_lshl_b32 s%d, s%d, 1\ns_add_u32 s%d, s%d, s%d\ns_mul_i32 s%d, s%d, 9" % (sT, sJJ, sT2, sKg, sT, sT, sT2, sT, sT))
    a("s_mul_i32 s%d, s%d, 3\ns_add_u32 s%d, s%d, s%d\ns_lshl_b32 s%d, s%d, 10\ns_add_u32 s%d, s%d, %d" % (sT2, sRho, sT, sT, sT2, sOoff, sT, sOoff, sOoff, 36 * KB))
    cstamp(a, 0)
    a.label("L_item")
    a("s_mov_b32 s%d, 0" % sCnt)
    a("s_waitcnt lgkmcnt(0)")
    Ga, Gb, Gc = 0, 4, 8
    def kread(kt, s):
        slot = (Gc + s) if kt == 0 else (Gb + s)
        return "ds_read_b128 %s, v%d offset:%d" % (vr(F(slot), 4), vK, kt * 4096 + s * 256)
    def vslot(dt): return (Ga + dt) if dt < 4 else (Gb + dt - 4)
    def vread(dt, rd):
        return "ds_read_b64_tr_b16 %s, v%d offset:%d" % (vr(F(vslot(dt)) + 2 * rd, 2), vVb if dt & 1 else vVa, rd * 4096 + (dt >> 1) * 256)
    def pv(t, dt, z=False): return "%s %s, %s, %s, %s" % (MF, O(t, dt), vr(F(vslot(dt)), 4), S(t, 0), "0" if z else O(t, dt))
    def lsum(t, z=False): return "%s %s, %s, %s, %s" % (MF, L(t), vr(vONE, 4), S(t, 0), "0" if z else L(t))
    def qk(t, kt, s, z=False):
        slot = (Gc + s) if kt == 0 else (Gb + s)
        return "%s %s, %s, %s, %s" % (MF, S(t, kt), vr(F(slot), 4), Q(t, s), ("0" if z else M(t)) if s == 0 else S(t, kt))
    EXP = lambda r: "v_exp_f32 v%d, v%d" % (r, r)
    def CVT(b, r): return "v_cvt_pk_bf16_f32 v%d, v%d, v%d" % (b + r, b + 2 * r, b + 2 * r + 1)
    def rowmax(b):
        return ["v_max3_f32 v%d, v%d, v%d, v%d" % (vT, b, b + 1, b + 2), "v_max3_f32 v%d, v%d, v%d, v%d" % (vT + 1, b + 3, b + 4, b + 5),
                "v_max3_f32 v%d, v%d, v%d, v%d" % (vT, vT, b + 6, b + 7), "v_max_f32 v%d, v%d, v%d" % (vT, vT, vT + 1),
                "v_mov_b32 v%d, v%d" % (vT + 1, vT), "v_permlane16_swap_b32 v%d, v%d" % (vT, vT + 1), "v_max_f32 v%d, v%d, v%d" % (vT, vT, vT + 1),
                "v_mov_b32 v%d, v%d" % (vT + 1, vT), "v_permlane32_swap_b32 v%d, v%d" % (vT, vT + 1), "v_max_f32 v%d, v%d, v%d" % (vT, vT, vT + 1)]
    def sm(t):
        b = vS + 8 * t
        g = [[EXP(b + r)] for r in range(4)] + [[CVT(b, 0), CVT(b, 1)]] + [[EXP(b + r)] for r in range(4, 8)] + [[CVT(b, 2), CVT(b, 3)]]
        g.append(["v_or3_b32 v%d, v%d, v%d, v%d" % (b + 4, b, b + 1, b + 2), "v_bitop3_b32 v%d, v%d, v%d, s%d bitop3:0xa8" % (b + 4, b + 4, b + 3, sThr)])
        g.append(["v_cmp_ne_u32 vcc, 0, v%d" % (b + 4)])
        return g
    def step(first):
        mf = []; fill = {}
        def put(idx, ops): fill.setdefault(idx, []).extend(ops)
        if not first: mf += [pv(TL, dt) for dt in (4, 5, 6, 7)] + [pv(TL, dt) for dt in (0, 1, 2, 3)] + [lsum(TL)]
        q0 = len(mf)
        qk_end = {}
        for t in range(NT):
            for kt in ((0, 1) if t < TL else (1, 0)):
                mf += [qk(t, kt, s, first) for s in range(4)]
                if t == TL and kt == 1: v47_at = len(mf) - 1
            qk_end[t] = len(mf) - 1
        pv_start = {}
        for t in range(TL):
            pv_start[t] = len(mf)
            mf += [pv(t, dt, first) for dt in range(4)] + [lsum(t, first)] + [pv(t, dt, first) for dt in range(4, 8)]
        n = len(mf)
        pre = [kread(0, s) for s in range(4)]
        if first:
            pre += [kread(1, s) for s in range(4)] + [vread(dt, rd) for dt in range(4) for rd in range(2)]
            pre += ["v_mov_b64 %s, 0" % vr(r, 2) for r in list(range(vO + 64, vO + 96, 2)) + [vL + 8, vL + 10]]
            pre += ["WAIT " + vr(F(Gc), 16)]
        else:
            for s in range(4): put(s, [kread(1, s)])
            for dt in range(4): put(4 + dt, [vread(dt, 0), vread(dt, 1)])
            put(8, ["WAIT " + vr(F(Gc), 16)])
        put(q0 + 3, ["WAIT " + vr(F(Gb), 16), "s_add_u32 s%d, s%d, 1" % (sSlot, sSlot)])
        put(q0 + 4, ["s_cmp_eq_u32 s%d, 3" % sSlot, "s_cselect_b32 s%d, s%d, s%d" % (sDelta, sNeg, sPos)])
        put(q0 + 5, ["s_cselect_b32 s%d, 0, s%d" % (sSlot, sSlot), "s_add_u32 s%d, s%d, 1" % (sCnt, sCnt)])
        for dt in range(4, 8): put(v47_at - 3 + (dt - 4), [vread(dt, 0), vread(dt, 1)])
        adv = ["v_add_u32 v%d, s%d, v%d" % (r, sDelta, r) for r in (vK, vVa, vVb)]
        tail = []
        if first:
            for t in range(NT):
                b = vS + 8 * t
                ops = rowmax(b) + ["v_add_f32 v%d, s%d, v%d" % (vT, sFl, vT)]
                ops += ["v_sub_f32 v%d, v%d, v%d" % (b + r, b + r, vT) for r in range(8)]
                ops += ["v_sub_f32 v%d, 0, v%d" % (vM + 4 * t + r, vT) for r in range(4)]
                ops += [EXP(b + r) for r in range(8)] + [CVT(b, r) for r in range(4)]
                lo = max(qk_end[t] + 3, [0, 21, 32][t]); hi = [20, 31, n - 1][t]
                for k, x in enumerate(ops): put(lo + k * (hi - lo + 1) // len(ops), [x])
            tail = adv
        else:
            groups = [(t, g) for t in range(NT) for g in sm(t)]
            lo = OPT["g0"]; span = n - lo
            for k, (t, g) in enumerate(groups):
                idx = lo + (k * span) // len(groups)
                assert t == TL or idx + 1 < pv_start[t], (t, idx)
                put(idx, g)
                if k % 12 == 11:
                    br = "s_cbranch_vccnz L_rare%d\nL_back%d:" % (t, t)
                    if t == 0: put(idx, [adv[0]])
                    if t == 1: put(idx, [adv[1]])
                    if t < TL: fill.setdefault(idx + 1, []).insert(0, br)
                    else: tail = [adv[2], "s_cmp_lt_u32 s%d, 16" % sCnt, br]
        put(pv_start[0] - 1, ["WAIT " + vr(F(Ga), 16)])
        put(pv_start[0] + 4, ["WAIT " + vr(F(Gb), 16)])
        a("s_barrier")
        if first and OPT["bst"] == 0:
            a("s_cmp_lg_u32 s%d, 1\ns_cbranch_scc1 L_bsx\ns_memrealtime s[76:77]\nL_bsx:" % sItem)
        for x in pre: a(x)
        for k, m in enumerate(mf):
            a(m)
            for x in fill.get(k, []): a(x)
        for x in tail: a(x)
    step(True)
    a.raw(".p2align 6")
    a.label("L_loop")
    step(False)
    a("s_cbranch_scc1 L_loop")
    a.label("L_bnd")
    if OPT["stamps"]:
        a("s_cmp_eq_u32 s%d, 0\ns_cbranch_scc0 L_st4" % sItem)
        stamp(a, 3); cstamp(a, 1)
        a("s_branch L_st4b")
        a.label("L_st4"); stamp(a, 4)
        a.label("L_st4b")
    bstamp(a, 1)
    a("s_cmp_eq_u32 s%d, 0" % sItem)
    a("s_cbranch_scc0 L_nomx")
    if OPT["mxf"]:
        a("s_mov_b64 exec, 1")
        a("v_mov_b32 v%d, %d\nv_mov_b32 v%d, 1" % (vT + 2, CNT, vT + 1))
        a("ds_add_u32 v%d, v%d offset:20" % (vT + 2, vT + 1))
        a.label("L_q2w")
        a("ds_read_b32 v%d, v%d offset:24" % (vT, vT + 2))
        a("s_waitcnt lgkmcnt(0)")
        a("v_readfirstlane_b32 s%d, v%d" % (sT, vT))
        a("s_cmp_lt_u32 s%d, 2\ns_cbranch_scc1 L_q2w" % sT)
        a("s_mov_b64 exec, -1")
    else:
        a("s_barrier")
    a("v_add_u32 v%d, s%d, v%d" % (vX2, sExch, vX1))
    for t in range(3):
        for s in range(4): a("ds_read_b128 %s, v%d offset:%d" % (Q(t, s), vX2, t * 4096 + s * 1024))
    pair_signal(a)
    a.label("L_nomx")
    bstamp(a, 2)
    a("s_lshl_b32 s%d, s%d, 12\ns_add_u32 s%d, s%d, %d" % (sT, sW, sT, sT, EX1))
    a("v_add_u32 v%d, s%d, v%d" % (vX2, sT, vX1))
    def send(t, areg, off):
        o = []
        for h in range(2):
            b = vO + 32 * t + 16 + 8 * h
            o += ["v_cvt_pk_bf16_f32 v%d, v%d, v%d" % (b + r, b + 2 * r, b + 2 * r + 1) for r in range(4)]
            o.append("ds_write_b128 v%d, %s offset:%d" % (areg, vr(b, 4), off + h * 1024))
        return o
    fin = [lsum(TL)] + [pv(TL, dt) for dt in (4, 5, 6, 7, 0, 1, 2, 3)]
    ex = send(0, vX2, 0) + send(1, vX2, 2048)
    for k, m in enumerate(fin):
        a(m)
        for x in ex[k * len(ex) // 9:(k + 1) * len(ex) // 9]: a(x)
    a("v_and_b32 v%d, 15, v0\nv_lshlrev_b32 v%d, 3, v%d" % (vT + 2, vT + 2, vT + 2))
    a("s_mul_i32 s%d, s%d, 384\ns_add_u32 s%d, s%d, %d" % (sT, sW, sT, sT, MLB))
    a("v_add_u32 v%d, s%d, v%d" % (vT + 3, sT, vT + 2))
    for t in range(3):
        a("v_mov_b32 v%d, v%d" % (vM + 4 * t + 1, vL + 4 * t))
        a("ds_write_b64 v%d, %s offset:%d" % (vT + 3, vr(vM + 4 * t, 2), t * 128))
    a("s_lshl_b32 s%d, s%d, 11\ns_add_u32 s%d, s%d, s%d" % (sT, sKg, sT, sT, sExch))
    a("v_add_u32 v%d, s%d, v%d" % (vX2, sT, vX1))
    a("s_waitcnt lgkmcnt(0)")
    pair_wait(a, "L_pw0", [])
    bstamp(a, 3)
    for x in send(2, vX2, 0): a(x)
    pair_signal(a)
    a("s_mul_i32 s%d, s%d, 384\ns_add_u32 s%d, s%d, %d" % (sT2, sPart, sT2, sT2, MLB))
    a("v_add_u32 v%d, s%d, v%d" % (vT + 3, sT2, vT + 2))
    a("v_xor_b32 v%d, 2048, v%d" % (vX2, vX2))
    a("s_lshl_b32 s%d, s%d, 12\ns_add_u32 s%d, s%d, %d" % (sT, sPart, sT, sT, EX1))
    a("v_add_u32 v%d, s%d, v%d" % (vT + 2, sT, vX1))
    a("s_waitcnt lgkmcnt(0)")
    rd = ["ds_read_b64 %s, v%d offset:%d" % (vr(vM + 4 * t + 2, 2), vT + 3, t * 128) for t in range(3)]
    for t in range(3):
        for h in range(2):
            rd.append("ds_read_b128 %s, v%d offset:%d" % (vr(vS + 8 * t + 4 * h, 4), vT + 2 if t < 2 else vX2, (t * 2048 if t < 2 else 0) + h * 1024))
    pair_wait(a, "L_pw", rd)
    bstamp(a, 4)
    for t in range(3):
        m = vM + 4 * t; l = vL + 4 * t
        a("v_min_f32 v%d, v%d, v%d" % (l, m, m + 2))
        a("v_sub_f32 v%d, v%d, v%d\nv_sub_f32 v%d, v%d, v%d" % (l + 1, l, m, l + 2, l, m + 2))
        a("v_exp_f32 v%d, v%d\nv_exp_f32 v%d, v%d" % (l + 1, l + 1, l + 2, l + 2))
        a("v_mul_f32 v%d, v%d, v%d" % (l + 3, l + 1, m + 1))
        a("v_fma_f32 v%d, v%d, v%d, v%d" % (l + 3, l + 2, m + 3, l + 3))
        a("v_rcp_f32 v%d, v%d" % (l, l + 3))
        a("v_mul_f32 v%d, v%d, v%d\nv_mul_f32 v%d, v%d, v%d" % (l + 3, l + 2, l, l + 2, l + 2, l))
        a("v_mul_f32 v%d, v%d, v%d\nv_mov_b32 v%d, v%d" % (l + 1, l + 1, l, l, l + 1))
    def combine(out):
        for t in range(3):
            l = vL + 4 * t
            for h in range(2):
                b = vO + 32 * t + 8 * h; u = b + 16; pk = vS + 8 * t + 4 * h
                for r in range(4):
                    a("v_lshlrev_b32 v%d, 16, v%d\nv_and_b32 v%d, 0xffff0000, v%d" % (u + 2 * r, pk + r, u + 2 * r + 1, pk + r))
                for r in range(0, 8, 2): a("v_pk_mul_f32 %s, %s, %s" % (vr(b + r, 2), vr(b + r, 2), vr(l, 2)))
                for r in range(0, 8, 2): a("v_pk_fma_f32 %s, %s, %s, %s" % (vr(b + r, 2), vr(u + r, 2), vr(l + 2, 2), vr(b + r, 2)))
                for r in range(4): a("v_cvt_pk_bf16_f32 v%d, v%d, v%d" % (pk + r, b + 2 * r, b + 2 * r + 1))
                out(t, h, pk)
    a("s_cmp_eq_u32 s%d, 0" % sItem)
    a("s_cbranch_scc0 L_att_done")
    combine(lambda t, h, pk: a("ds_write_b128 v%d, %s offset:%d" % (vT + 2 if t < 2 else vX2, vr(pk, 4), (t * 2048 if t < 2 else 0) + h * 1024)))
    bstamp(a, 5)
    a("s_mov_b32 s%d, 1\ns_lshl_b32 s%d, s%d, 12\ns_add_u32 s%d, s%d, %d" % (sItem, sExch, sRho, sExch, sExch, EX2))
    a("s_waitcnt lgkmcnt(0)")
    a("s_branch L_item")
    a.vm = []; a.lgkm = []
    for t in range(NT):
        b = vS + 8 * t
        a.label("L_rare%d" % t)
        a("s_nop 15")
        a("v_subrev_u32 v%d, s%d, v%d" % (vX2, sDelta, vK))
        for kt in range(2):
            for s in range(4):
                a("ds_read_b128 %s, v%d offset:%d" % (vr(vT, 4), vX2, kt * 4096 + s * 256))
                a("s_waitcnt lgkmcnt(0)")
                a("%s %s, %s, %s, %s" % (MF, S(t, kt), vr(vT, 4), Q(t, s), M(t) if s == 0 else S(t, kt)))
                a("s_nop 3")
        for x in rowmax(b): a(x)
        a("v_add_f32 v%d, s%d, v%d\nv_max_f32 v%d, 0, v%d" % (vT, sFl, vT, vT, vT))
        for r in range(8): a("v_sub_f32 v%d, v%d, v%d" % (b + r, b + r, vT))
        for r in range(4): a("v_sub_f32 v%d, v%d, v%d" % (vM + 4 * t + r, vM + 4 * t + r, vT))
        a("v_exp_f32 v%d, -v%d" % (vT + 1, vT))
        for r in range(4): a("v_mul_f32 v%d, v%d, v%d" % (vL + 4 * t + r, vL + 4 * t + r, vT + 1))
        for r in range(32): a("v_mul_f32 v%d, v%d, v%d" % (vO + 32 * t + r, vO + 32 * t + r, vT + 1))
        for r in range(8): a(EXP(b + r))
        for r in range(4): a(CVT(b, r))
        a("s_nop 3")
        a("s_branch L_back%d" % t)
    a.label("L_att_done")
    a("s_mov_b64 exec, 1")
    a("v_mov_b32 v%d, %d\nv_mov_b32 v%d, 1" % (vT + 2, CNT, vT + 1))
    a("ds_add_u32 v%d, v%d" % (vT + 2, vT + 1))
    a("s_mov_b64 exec, -1")
    combine(lambda t, h, pk: a("s_add_u32 s%d, s%d, %d\nbuffer_store_dwordx4 %s, v%d, %s, s%d offen%s" % (sT, sOoff, (h * 9 + t) * 1024, vr(pk, 4), vX1, SR(S_O), sT, POL[OPT["pols"]])))
    bstamp(a, 5)
    a("s_cmp_lt_u32 s%d, 2" % sW)
    a("s_cbranch_scc1 L_join")
    publish(a, "L_pub_x", vT)
    a("s_endpgm")
    a.label("L_join")
    a("s_mov_b32 s%d, s%d" % (sOpIdx, sW))
    a("s_lshl_b32 s%d, s%d, 14" % (sBlkP, sW))
    a("s_cmp_eq_u32 s%d, 0\ns_cselect_b32 s%d, %d, 0\ns_cselect_b32 s%d, 0, %d\ns_add_u32 s%d, s%d, s%d" % (sW, sBlkD, 64 * KB, sT, 116 * KB, sBlkD, sBlkD, sT))
    op_setup(a)
    publish(a, "L_pub_y", 100)
    bstamp(a, 6)
    stamp(a, 5)
    a("v_mov_b32 v96, %d" % CNT)
    a.label("L_w6")
    a("ds_read_b32 v98, v96")
    a("ds_read_b32 v97, v96 offset:12")
    a("s_waitcnt lgkmcnt(0)")
    a("v_readfirstlane_b32 s%d, v98\nv_readfirstlane_b32 s%d, v97" % (sT, sTag))
    a("s_cmp_lt_u32 s%d, 6\ns_cbranch_scc1 L_w6" % sT)
    a("s_or_b32 s%d, s%d, 0x%x" % (sWant, sTag, PHM))
    a("s_cmp_eq_u32 s60, 0\ns_cbranch_scc1 L_op_a_join\ns_branch L_op_b_join")
    a.vm = []; a.lgkm = []

def wo_touch(a, phase, i):
    a("s_and_b32 s%d, s%d, 1\ns_lshl_b32 s%d, s%d, 4\ns_add_u32 s%d, s%d, s%d" % (sT, sGo, sT, sT, sT, sT, sJo))
    a("s_lshr_b32 s%d, s%d, 1\ns_lshl_b32 s%d, s%d, 18\ns_and_b32 s%d, s%d, 1\ns_lshl_b32 s%d, s%d, 16\ns_add_u32 s%d, s%d, s%d" % (sT2, sT, sT2, sT2, sT, sT, sT, sT, sT, sT, sT2))
    a("s_and_b32 s%d, s%d, 1\ns_lshl_b32 s%d, s%d, 15\ns_add_u32 s%d, s%d, s%d" % (sT2, sW, sT2, sT2, sT, sT, sT2))
    a("s_add_u32 s%d, s%d, %d" % (sT2, sT, phase * 131072 + i * 8192))
    a.autowait = False
    a("buffer_load_dword v147, v146, %s, s%d offen" % (SR(S_WO), sT2), tag="x")
    a.autowait = True

def aux_step(a, step, pre=None, extra=None):
    a.wait_vm_tag("t%d" % step)
    a("s_barrier")
    if OPT["sst"] >= 0 and step >= OPT["sst"] and (step - OPT["sst"]) % OPT["sstd"] == 0 and (step - OPT["sst"]) // OPT["sstd"] < 6:
        k_ = 1 + (step - OPT["sst"]) // OPT["sstd"]
        a("s_memrealtime s[%d:%d]" % (64 + 2 * k_, 65 + 2 * k_))
    if OPT["ck"] and step in (1, 8, 15, 31):
        k_ = (1, 8, 15, 31).index(step)
        a("s_memrealtime s[%d:%d]\ns_memtime s[%d:%d]" % (64 + 4 * k_, 65 + 4 * k_, 66 + 4 * k_, 67 + 4 * k_))
    for ph in (0, 1):
        lst = [int(x) for x in OPT["tw%d" % ph].split(",") if x]
        for i, st_ in enumerate(lst):
            if st_ == step: wo_touch(a, ph, i)
    if pre: pre()
    nxt = step + 2
    if nxt < 32 and nxt != 18: kv_tile(a, nxt)
    if nxt == 18:
        for x, t in kv_ops(18)[OPT["early"]:]: a(x, tag=t)
    if step == OPT["pfm"]:
        a("s_lshl_b32 s%d, s%d, 4\ns_add_u32 s%d, s%d, s%d\ns_lshl_b32 s%d, s%d, 1\ns_and_b32 s%d, s%d, 1\ns_add_u32 s%d, s%d, s%d\ns_lshl_b32 s%d, s%d, 14" % (sT, sB, sT, sT, sJJ, sT, sT, sT2, sW, sT, sT, sT2, sT, sT))
        a.autowait = False
        a("buffer_load_dword v147, v146, %s, s%d offen" % (SR(S_WO), sT), tag="x")
        a("s_add_u32 s%d, s%d, 8192" % (sT, sT))
        a("buffer_load_dword v147, v146, %s, s%d offen" % (SR(S_WO), sT), tag="x")
        a.autowait = True
    if extra: extra()

def aux(a):
    if OPT["auxprio"]: a("s_setprio %d" % OPT["auxprio"])
    a("v_lshlrev_b32 v%d, 2, v14\nv_lshlrev_b32 v146, 7, v12" % vFo)
    a("s_lshl_b32 s%d, s%d, 4\nv_mov_b32 v%d, s%d" % (sT, sG, vDg, sT))
    a("s_lshl_b32 s%d, s%d, 4\nv_mov_b32 v%d, s%d\nv_cmp_eq_u32 vcc, 0, v12\nv_cndmask_b32 v%d, v%d, v%d, vcc" % (sT, sGo, vDg2, sT, vDg2, vDg2, vDg))
    a("s_sub_u32 s%d, s%d, 4" % (sOpIdx, sW))
    def ACC(t, d):
        i = t * 4 + d
        return 16 + 4 * i if i < 28 else 176 + 4 * (i - 28)
    BF = lambda t: vr(208 + 4 * t, 4)
    AF = lambda d: 156 + 4 * d
    sW2, sXq = 60, 61
    a("s_and_b32 s%d, s%d, 1" % (sT3, sW))
    a("v_lshrrev_b32 v9, 5, v12\nv_lshl_add_u32 v4, v15, 13, v4\nv_lshl_add_u32 v4, v9, 15, v4")
    a("s_lshl_b32 s%d, s%d, 9\ns_lshl_b32 s%d, s%d, 7\ns_add_u32 s%d, s%d, s%d\ns_add_u32 s%d, s%d, 256" % (sT, sJJ, sT2, sT3, sT, sT, sT2, sT, sT))
    a("v_add_u32 v4, s%d, v4" % sT)
    a("v_add_u32 v5, 64512, v4\nv_xor_b32 v5, 32, v5\nv_add_u32 v6, 129024, v4\nv_add_u32 v7, 129024, v5")
    a("s_mul_i32 s%d, s%d, %d\ns_add_u32 s%d, s%d, %d" % (sW2, sT3, 12 * KB, sW2, sW2, W2R))
    a("v_add_u32 v2, s%d, v2\nv_xor_b32 v3, 32, v2" % sW2)
    a("s_lshl_b32 s%d, s%d, 5\nv_xor_b32 v8, s%d, v8\nv_xor_b32 v9, 32, v8" % (sT, sT3, sT))
    a("s_mul_i32 s%d, s%d, 9" % (sXq, sT3))
    a("v_mov_b32 v10, %s\nv_mov_b32 v11, %s" % (f32(CSCALE), f32(CSCALE)))
    def chunk(m): a("s_add_u32 s%d, s%d, %d\ns_and_b32 s%d, s%d, 7" % (sT3, sRot, (6 + m) & 7, sT3, sT3))
    def w2_load(n):
        chunk(n // 2)
        a("s_lshl_b32 s%d, s%d, 19\ns_add_u32 s%d, s%d, %d\ns_add_u32 m0, s%d, %d" % (sT2, sT3, sT2, sT2, (n & 1) << 18, sW2, (n % 3) * 4096))
        for q in range(4):
            a("buffer_load_dwordx4 v%d, %s, s%d offen offset:%d%s lds" % (4 + q, SR(S_WQ), sT2, q * 1024, POL[OPT["polw"]]), tag="q%d" % n)
    def x2_load(m):
        chunk(m)
        a("s_lshl_b32 s%d, s%d, 7\ns_lshl_b32 s%d, s%d, 13\ns_add_u32 s%d, s%d, s%d\ns_lshl_b32 s63, s%d, 10" % (sT3, sT3, sT2, sXq, sT3, sT3, sT2, sXq))
        for e in range(9):
            a("s_add_u32 m0, s63, %d\ns_add_u32 s%d, s%d, %d" % (XB[m & 1] + e * 1024, sT2, sT3, e * 8192))
            a("buffer_load_dwordx4 v%d, %s, s%d offen%s lds" % (8 + (e & 1), SR(S_X), sT2, POL[OPT["polx"]]), tag="x%d" % m)
    def q2_step(n, fill=()):
        a.wait_vm_tag("q%d" % n)
        for d in range(4):
            for rd in range(2):
                a("ds_read_b64_tr_b16 %s, v%d offset:%d" % (vr(AF(d) + 2 * rd, 2), 3 if d & 1 else 2, (n % 3) * 4096 + rd * 512 + (d >> 1) * 256))
        for t in range(9): a("ds_read_b128 %s, v1 offset:%d" % (BF(t), ((n // 2) & 1) * 18 * KB + t * 2048 + (n & 1) * 256))
        a("WAIT " + vr(AF(0), 16))
        if n + 3 < 16: w2_load(n + 3)
        a("s_waitcnt lgkmcnt(0)")
        fi = 0
        def pack_ops(t):
            o = []
            for h in range(2):
                b = ACC(t, 2 * h)
                o += ["v_mul_f32 v%d, v10, v%d" % (b + r, b + r) for r in range(8)]
                o += ["v_cvt_pk_bf16_f32 v%d, v%d, v%d" % (b + r, b + 2 * r, b + 2 * r + 1) for r in range(4)]
            for h in range(2):
                b = ACC(t, 2 * h)
                o += ["v_permlane16_swap_b32 v%d, v%d" % (b, b + 2), "v_permlane16_swap_b32 v%d, v%d" % (b + 1, b + 3)]
            return o
        if n == 15 and OPT["p14"]: a("s_setprio %d" % OPT["p14"])
        for t in range(9):
            po = pack_ops(t - 2) if n == 15 and t >= 2 else []
            for d in range(4):
                c = vr(ACC(t, d), 4)
                a("%s %s, %s, %s, %s" % (MF, c, vr(AF(d), 4), BF(t), "0" if n == 0 else c))
                i = t * 4 + d
                if i >= 36 - OPT["q2mix"] * len(fill) and (36 - i) % OPT["q2mix"] == 0 and fi < len(fill):
                    a(fill[fi][0], tag=fill[fi][1]); fi += 1
                for x in po[7 * d:7 * d + 7]: a(x)
        assert fi == len(fill)
        if n == 15:
            for x in pack_ops(7) + pack_ops(8): a(x)
    sched = {1: [0, 1], 2: [2, 3]}
    for s_ in range(3, 15): sched[s_] = [s_ + 1]
    def pre(step):
        if step == 0:
            for n in range(3): w2_load(n)
        if step == 2: x2_load(2)
        if 3 <= step <= 11 and step % 2 == 1: x2_load((step + 3) // 2)
        ns = sched.get(step, [])
        for n in ns:
            if OPT["q2mix"] and n == ns[-1]:
                q2_step(n, kv_ops(step + 2)); KV_DONE.add(step + 2)
            else: q2_step(n)
        if step == 15:
            a("s_and_b32 s%d, s%d, 1\ns_lshl_b32 s%d, s%d, 11\ns_add_u32 s%d, s%d, %d" % (sT, sW, sT, sT, sT, sT, Q2B))
            a("v_lshlrev_b32 v1, 4, v12\nv_add_u32 v2, s%d, v1" % sT)
            fr = [(t, h) for t in range(9) for h in range(2)]
            for t, h in fr: a("ds_write_b128 v2, %s offset:%d" % (vr(ACC(t, 2 * h), 4), t * 4096 + h * 1024))
            if OPT["mxf"]:
                a("s_mov_b64 exec, 1")
                a("v_mov_b32 v%d, %d\nv_mov_b32 v%d, 1" % (vA_, CNT, vB_))
                a("ds_add_u32 v%d, v%d offset:24" % (vA_, vB_))
                a("s_mov_b64 exec, -1")
            if OPT["p14"]: a("s_setprio %d" % OPT["auxprio"])
        if step == 18:
            a("s_cmp_lg_u32 s%d, 6\ns_cbranch_scc1 L_nopub" % sW)
            a("s_lshl_b32 s%d, s%d, 2\nv_mov_b32 v%d, s%d\nv_mov_b32 v%d, s%d" % (sT, sJJ, vA_, sT, vB_, sTagA))
            keep = list(a.vm)
            a("buffer_store_dword v%d, v%d, %s, 0 offen sc1" % (vB_, vA_, SR(S_FL)))
            a.vm = keep
            a.label("L_nopub")
    def extra(step):
        if step == 0:
            a("buffer_load_dword v%d, v%d, %s, 0 offen sc1" % (vFl, vFo, SR(S_FL)), tag="fl")
        if step == 3:
            cstamp(a, 0)
            a("s_lshl_b32 s%d, s%d, 3\ns_add_u32 s%d, s%d, s%d\ns_cmp_lg_u32 s%d, 6\ns_cbranch_scc1 L_nolead" % (sT, sJJ, sT, sT, sW, sT))
            a("v_lshrrev_b32 v%d, v14, v%d\nv_and_b32 v%d, 1, v%d\nv_cmp_eq_u32 vcc, 0, v%d" % (vFl, vFl, vFl, vFl, vFl))
            a("s_nop 1")
            a("s_and_b32 s%d, vcc_lo, 0xffff\ns_or_b32 s%d, s%d, 0x80000000" % (sT, sT, sT))
            a("v_mov_b32 v%d, s%d" % (vFl, sT))
            keep = list(a.vm)
            a("buffer_store_dword v%d, v%d, %s, 0 offen sc1" % (vFl, vDg, SR(S_DBG)))
            a.vm = keep
            a.label("L_nolead")
        if step == 9:
            a("buffer_load_dword v%d, v%d, %s, 0 offen sc1" % (vFl, vDg2, SR(S_DBG)), tag="fl")
        if step == 12:
            cstamp(a, 1)
            keep = list(a.vm)
            a.label("L_tag")
            a("v_cmp_eq_u32 vcc, 0, v%d" % vFl)
            a("s_cbranch_vccz L_tag_ok")
            a("s_sleep 8")
            a("buffer_load_dword v%d, v%d, %s, 0 offen sc1" % (vFl, vDg2, SR(S_DBG)))
            a("s_waitcnt vmcnt(0)")
            a("s_branch L_tag")
            a.label("L_tag_ok")
            a.vm = keep
            a("v_readlane_b32 s%d, v%d, 0\nv_readlane_b32 s%d, v%d, 1" % (sTagA, vFl, sTag, vFl))
            a("v_min_u32 v%d, 1, v12\nv_lshlrev_b32 v%d, 2, v%d\nv_add_u32 v%d, %d, v%d" % (vA_, vA_, vA_, vA_, TAGW, vA_))
            a("ds_write_b32 v%d, v%d" % (vA_, vFl))
            a("s_mov_b32 s%d, 0x%x\nv_mov_b32 v%d, s%d\nv_mov_b32 v%d, %d" % (sC, ((1 << (2 * (NIN + 1))) - 1) | (0x3f << 16), vB_, sC, vCl, CLAIM))
            a("ds_write_b32 v%d, v%d" % (vCl, vB_))
            a("s_or_b32 s%d, s%d, 0x%x" % (sWant, sTag, PHM))
            a("s_waitcnt lgkmcnt(0)")
        if step == 2: a.wait_vm_tag("x2")
        if step == 15:
            a("s_waitcnt lgkmcnt(0)")
            if OPT["mxf"] and not OPT["early"]: pass
            elif OPT["mxf"]:
                a("v_mov_b32 v%d, %d" % (vA_, CNT))
                a.label("L_mxw")
                a("s_sleep 1")
                a("ds_read_b32 v%d, v%d offset:20" % (vB_, vA_))
                a("s_waitcnt lgkmcnt(0)")
                a("v_readfirstlane_b32 s%d, v%d" % (sT, vB_))
                a("s_cmp_lt_u32 s%d, 6\ns_cbranch_scc1 L_mxw" % sT)
            else: a("s_barrier")
            for x, t in kv_ops(18)[:OPT["early"]]: a(x, tag=t)
        if step == 16:
            a("s_and_b32 s%d, s%d, 1" % (sT3, sW))
            a("s_mul_i32 s%d, s%d, %d\ns_add_u32 s%d, s%d, %d\nv_add_u32 v%d, s%d, v1" % (sT, sT3, 4096 if OPT["pair"] else 3 * 4096, sT, sT, EX1, vA_, sT))
            a("s_lshl_b32 s%d, s%d, 11\ns_add_u32 s%d, s%d, %d\nv_add_u32 v%d, s%d, v1" % (sT, sT3, sT, sT, Q2B, vB_, sT))
            fr = [(i, t, h) for i in range(3) for t in range(3) for h in range(2)]
            for n, (i, t, h) in enumerate(fr):
                if t < 2: a("ds_read_b128 %s, v%d offset:%d" % (vr(16 + 4 * n, 4), vA_, i * (8192 if OPT["pair"] else 4096) + t * 2048 + h * 1024))
                else: a("ds_read_b128 %s, v%d offset:%d" % (vr(16 + 4 * n, 4), vB_, i * 12 * KB + h * 1024))
            a("s_mul_i32 s%d, s%d, %d\ns_mul_i32 s%d, s%d, %d\ns_add_u32 s%d, s%d, %d\ns_sub_u32 s%d, s%d, s%d" % (sT2, sJJ, 8 * 9216, sT3, sT3, 2 * 9216, sT2, sT2, 2 * 9216, sT2, sT2, sT3))
            for n, (i, t, h) in enumerate(fr):
                a("s_add_u32 s%d, s%d, %d" % (sT, sT2, (h * 9 + 3 * i + t) * 1024))
                a("buffer_store_dwordx4 %s, v1, %s, s%d offen%s" % (vr(16 + 4 * n, 4), SR(S_O), sT, POL[OPT["pols"]]), tag="st")
            a("s_sub_u32 s%d, s%d, 6\ns_lshl_b32 s%d, s%d, 14\ns_add_u32 s%d, s%d, %d" % (sBlkP, sW, sBlkP, sBlkP, sBlkP, sBlkP, 96 * KB))
            a("s_mov_b32 s%d, 0x%x" % (sBlkD, (-64 * KB) & 0xffffffff))
            op_setup(a)
        if step == 17: a.wait_vm_tag("st")
    for step in range(19):
        aux_step(a, step, pre=lambda: pre(step), extra=lambda: extra(step))
    a("s_cmp_eq_u32 s60, 0\ns_cbranch_scc0 L_op_b_aux")

def code_touch(a, start, end, n, uniq):
    a("s_getpc_b64 s[88:89]")
    a.label(uniq)
    for i in range(n):
        a.items.append(a._mk("v_add_u32 v148, 0x1234, v146")); a.items[-1].text = "v_add_u32 v148, %s-%s+%d, v146" % (start, uniq, i * 8192)
        a.items.append(a._mk("v_min_i32 v148, 0x1234, v148")); a.items[-1].text = "v_min_i32 v148, %s-%s, v148" % (end, uniq)
        a("v_ashrrev_i32 v149, 31, v148")
        a("v_mov_b32 v151, s89\nv_add_co_u32 v150, vcc, s88, v148\nv_addc_co_u32 v151, vcc, v151, v149, vcc")
        a.autowait = False
        a("global_load_dword v147, v[150:151], off", tag="x")
        a.autowait = True

def op_setup(a):
    if OPT["tst"]: a("s_mov_b32 s62, 0")
    lanes(a)
    a("v_lshlrev_b32 v1, 4, v12\nv_add_u32 v8, 4096, v1")
    a("v_lshrrev_b32 v9, 5, v12")
    a("v_and_b32 v4, 3, v12\nv_lshlrev_b32 v5, 1, v9\nv_xor_b32 v4, v4, v5\nv_lshlrev_b32 v4, 4, v4")
    a("v_and_b32 v5, 1, v13")
    a("v_lshl_add_u32 v4, v5, 6, v4\nv_lshl_add_u32 v4, v15, 10, v4\nv_lshl_add_u32 v4, v9, 12, v4")
    a("v_and_b32 v2, 3, v12\nv_lshlrev_b32 v2, 3, v2\nv_lshl_add_u32 v2, v15, 6, v2\nv_lshl_add_u32 v2, v5, 5, v2\nv_lshl_add_u32 v2, v13, 9, v2")
    a("v_add_u32 v2, s%d, v2\nv_xor_b32 v3, 32, v2" % sBlkP)
    a("v_xor_b32 v%d, 1, v5\nv_lshlrev_b32 v%d, 30, v%d" % (vOr, vOr, vOr))
    for q in range(1, 4): a("v_add_u32 v%d, %d, v4" % (4 + q, 7168 * q))
    for r in range(176, 256, 2): a("v_mov_b64 %s, 0" % vr(r, 2))
    a("s_lshr_b32 s60, s%d, 3\ns_and_b32 s61, s%d, 7" % (sJo, sJo))
    a("s_mul_i32 s%d, s60, 5120\ns_lshl_b32 s%d, s61, 7" % (sOb, sWb))
    a("s_and_b32 s%d, s%d, 7" % (sOutOff, sGo))
    a("s_mul_i32 s%d, s%d, 144\ns_mul_i32 s%d, s60, 80\ns_add_u32 s%d, s%d, s%d\ns_lshl_b32 s%d, s%d, 11" % (sOutOff, sOutOff, sT, sOutOff, sOutOff, sT, sOutOff, sOutOff))
    a("s_lshl_b32 s%d, s%d, 10\ns_add_u32 s%d, s%d, s%d\ns_add_u32 s%d, s%d, s%d" % (sT, sBlk, sOutOff, sOutOff, sT, sOutOff, sOutOff, sWb))
    a("s_lshl_b32 s%d, s%d, 5\ns_add_u32 s%d, s%d, s%d" % (sT, sOpIdx, sOutOff, sOutOff, sT))
    a("v_lshlrev_b32 v10, 11, v14\nv_lshl_add_u32 v10, v13, 3, v10")
    a("s_and_b32 s%d, s%d, 1\ns_lshl_b32 s%d, s%d, 1\ns_add_u32 s%d, s%d, s60\ns_lshl_b32 s%d, s%d, 2" % (sT, sGo, sT, sT, sT, sT, sT, sT))
    a("s_lshl_b32 s%d, s61, 1\ns_add_u32 s%d, s%d, s%d" % (sT2, sRm, sT, sT2))
    a("v_add_u32 v11, s%d, v14\nv_and_b32 v11, 15, v11\nv_lshlrev_b32 v11, 2, v11" % sRm)
    a("v_mov_b32 v%d, %d" % (vCl, CLAIM))
    a("s_mul_i32 s%d, s%d, %d\ns_add_u32 s%d, s%d, 1024\ns_add_u32 s90, s100, s%d\ns_addc_u32 s91, s101, 0" % (sT, sGo, OSTR, sT, sT, sT))
    srd(a, S_OL, 90, 91, "%d" % (128 * 9216))
    a("s_lshl_b32 s%d, s%d, 8\ns_add_u32 s%d, s%d, 0x%x\ns_add_u32 s90, s100, s%d\ns_addc_u32 s91, s101, 0" % (sT, sGo, sT, sT, FLAG_OFF, sT))
    srd(a, S_FLL, 90, 91, "64")

def op_path(a, NR, role, vm0):
    lab = lambda s: "L_op_%s_%s" % (role, s)
    B = lambda k, t: vr(16 + ((k % 4) * 5 + t) * 4, 4)
    ACC = lambda t, ct: vr(176 + (t * 4 + ct) * 4, 4)
    G = NR + 4
    def offs(so, static=None):
        if static is not None:
            a("s_and_b32 s%d, s%d, 1\ns_add_u32 s%d, s%d, s%d\ns_add_u32 s%d, s%d, %d" % (sT, sW, sT, sT, sRm, sT, sT, 2 * static))
            a("s_and_b32 s%d, s%d, 15\ns_lshl_b32 s%d, s%d, 3" % (sT, sT, sT, sT))
        else:
            a("s_ff1_i32_b32 s%d, s%d" % (sT2, sBit))
            a("s_add_u32 s%d, s%d, s%d\ns_and_b32 s%d, s%d, 15\ns_lshl_b32 s%d, s%d, 3" % (sT, sT2, sRm, sT, sT, sT, sT))
            a("s_lshr_b32 s%d, s%d, 4\ns_lshl_b32 s%d, s%d, 2\ns_add_u32 s%d, s%d, s%d" % (sT2, sT2, sT2, sT2, sT, sT, sT2))
        a("s_mul_i32 s%d, s%d, 9216\ns_add_u32 s%d, s%d, s%d" % (so, sT, so, so, sOb))
        a("s_lshl_b32 s%d, s%d, 15\ns_add_u32 s%d, s%d, s%d" % (sWn, sT, sWn, sWn, sWb))
        ph = 1 if static is not None else 2
        if OPT["xo"] & ph: a("s_mov_b32 s%d, s%d" % (so, sOb))
        if OPT["xw"] & ph: a("s_mov_b32 s%d, s%d" % (sWn, sWb))
    def w_ops(n, blk=sBlkP):
        k = n % 4
        o = ["s_add_u32 m0, s%d, %d" % (blk, k * 4096), "s_add_u32 s%d, s%d, %d" % (sT2, sWn, k * 32768)]
        for q in range(4):
            o.append(("buffer_load_dwordx4 v%d, %s, s%d offen offset:%d%s lds" % (4 + q, SR(S_WO), sT2, q * 1024, POL[OPT["polwo"]]), "w%d" % n))
        return o
    def o_ops(n, so):
        k = n % 4
        o = ["s_add_u32 s%d, s%d, %d" % (sT3, so, k * 9216)]
        for t in range(NR):
            if t < 4: o.append(("buffer_load_dwordx4 %s, v1, %s, s%d offen offset:%d%s" % (B(k, t), SR(S_OL), sT3, t * 1024, POL[OPT["polo"]]), "o%d" % n))
            else: o.append(("buffer_load_dwordx4 %s, v8, %s, s%d offen%s" % (B(k, t), SR(S_OL), sT3, POL[OPT["polo"]]), "o%d" % n))
        return o
    def reads(n):
        k = n % 4; buf = 96 + 16 * (k & 1)
        return ["ds_read_b64_tr_b16 %s, v%d offset:%d" % (vr(buf + 4 * ct + 2 * rd, 2), 3 if ct & 1 else 2, k * 4096 + rd * 2048 + (ct >> 1) * 256)
                for ct in range(4) for rd in range(2)]
    def run(ops):
        for x in ops:
            a.autowait = False
            if isinstance(x, tuple): a(x[0], tag=x[1])
            else: a(x)
            a.autowait = True
    def wait_tags(*tags):
        need = None
        for k_, (t_, d_) in enumerate(a.vm):
            if t_ in tags: need = k_
        if need is not None: a("s_waitcnt vmcnt(%d)" % (len(a.vm) - 1 - need))
    FLOAD = "buffer_load_dword v9, v11, %s, 0 offen sc1" % SR(S_FLL)
    def ready():
        run(["v_or_b32 v9, v%d, v9" % vOr, "v_cmp_eq_u32 vcc, s%d, v9" % sWant, "s_nop 1", "s_mov_b32 s%d, vcc_lo" % sR])
        if OPT["nopoll"]: a("s_mov_b32 s%d, -1" % sR)
    def attempt():
        run(["s_sub_u32 s%d, 0, s%d" % (sT2, sT), "s_and_b32 s%d, s%d, s%d" % (sBit, sT, sT2),
             "v_mov_b32 v%d, s%d" % (vCb, sBit), "s_mov_b64 exec, 1", "ds_or_rtn_b32 v%d, v%d, v%d" % (vCr, vCl, vCb), "s_mov_b64 exec, -1"])
    def resolve(fail):
        run(["v_readfirstlane_b32 s%d, v%d" % (sT, vCr), "s_or_b32 s%d, s%d, s%d" % (sC, sC, sT), "s_or_b32 s%d, s%d, s%d" % (sC, sC, sBit),
             "s_and_b32 s%d, s%d, s%d" % (sT, sT, sBit), "s_cbranch_scc1 %s" % fail])
    def cands():
        run(["s_not_b32 s%d, s%d" % (sT2, sC), "s_and_b32 s%d, s%d, s%d" % (sT, sR, sT2), "s_cselect_b32 s%d, s%d, s%d" % (sT, sT, sT2)])
    def toggle(): return ["v_add_u32 v2, s%d, v2" % sBlkD, "v_add_u32 v3, s%d, v3" % sBlkD]
    def toggle_s(): return ["s_add_u32 s%d, s%d, s%d" % (sBlkP, sBlkP, sBlkD), "s_sub_u32 s%d, 0, s%d" % (sBlkD, sBlkD)]
    def kstep(n, hw, ho, wait, dyn=None):
        k = n % 4
        wait()
        a("s_waitcnt lgkmcnt(0)")
        if dyn and k == 0:
            keep = list(a.vm)
            run(["s_cmp_eq_u32 s%d, -1" % sR, "s_cbranch_scc1 %s" % lab("nf" + dyn), FLOAD]); a.label(lab("nf" + dyn))
            a.vm = keep
        if dyn and hw and k == 2: run(["ds_read_b32 v%d, v%d" % (vCr, vCl)])
        if dyn and k == 3:
            run(["s_cmp_eq_u32 s%d, -1" % sR, "s_cbranch_scc1 %s" % lab("nr" + dyn)]); ready(); a.label(lab("nr" + dyn))
            run(["s_mov_b32 s%d, s%d" % (sBc, sBn), "s_mov_b32 s%d, s%d" % (sBn, sBit)])
            if hw:
                run(["v_readfirstlane_b32 s%d, v%d" % (sT, vCr), "s_or_b32 s%d, s%d, s%d" % (sC, sC, sT)])
                cands(); attempt()
            run(toggle())
        fillers = (reads(n + 1) if (ho or k < 3) else []) + (w_ops(n + 4) if hw else []) + (o_ops(n + 3, sOc) if k == 0 else (o_ops(n + 3, sOn) if ho else []))
        buf = 96 + 16 * (k & 1)
        ms = ["%s %s, %s, %s, %s" % (MF, ACC(t, ct), vr(buf + 4 * ct, 4), B(k, t), ACC(t, ct)) for ct in range(4) for t in range(NR)]
        fi = 0
        for i, m in enumerate(ms):
            run([m])
            tgt = ((i + 1) * len(fillers) + len(ms) - 3) // (len(ms) - 2)
            while fi < min(tgt, len(fillers)):
                run([fillers[fi]]); fi += 1
        a.lgkm = []
        if k == 3:
            a("s_mov_b32 s%d, s%d" % (sOc, sOn))
            if dyn: run(["s_mov_b32 s%d, s%d" % (sOn, sOnn)] + toggle_s())
    a.vm = list(vm0)
    a.label(lab("aux"))
    s0 = OPT["s0"]; kp = [int(c) for c in OPT["kp"]]
    assert len(kp) == 32 - s0 and s0 >= 22
    cnt = [0]
    def pre(step):
        def f():
            if step == 19 and OPT["cpf"] & 1: code_touch(a, lab("aux"), lab("retry"), 2, lab("c1"))
            if step == 28 and OPT["cpf"] & 2:
                code_touch(a, lab("retry"), lab("fin"), 1, lab("c2"))
                code_touch(a, "L_bnd", "L_auxrole", 1, lab("c3"))
            if step == s0 - 3: offs(sOc, 0); run(w_ops(0) + w_ops(1))
            if step == s0 - 2:
                run([(FLOAD, "fl")])
                run(w_ops(2) + w_ops(3))
            if step == s0 - 1:
                wait_tags("fl")
                keep = list(a.vm)
                a.label(lab("f1"))
                ready()
                a("s_andn2_b32 s%d, 0x%x, s%d" % (sT, (1 << (2 * (NIN + 1))) - 1, sR))
                a("s_cbranch_scc0 %s" % lab("f1ok"))
                run(["s_sleep %d" % OPT["slp"], FLOAD, "s_waitcnt vmcnt(0)", "s_branch %s" % lab("f1")])
                a.label(lab("f1ok"))
                a.vm = keep
                run(o_ops(0, sOc) + o_ops(1, sOc) + o_ops(2, sOc))
                wait_tags("w0"); run(reads(0))
            if step == 31:
                if OPT["auxprio"]: a("s_setprio 0")
                run([(FLOAD, "fl")])
            if step >= s0:
                for _ in range(kp[step - s0]):
                    n = cnt[0]
                    if n % 4 == 0: offs(sOn, n // 4 + 1)
                    kstep(n, True, True, lambda: wait_tags("o%d" % n, "w%d" % (n + 1))); cnt[0] += 1
        return f
    for step in range(19, 32): aux_step(a, step, pre=pre(step))
    stamp(a, 3)
    a("s_and_b32 s%d, s%d, 1\ns_lshl_b32 s%d, 0x10000, s%d\ns_mov_b32 s%d, s%d" % (sT, sW, sBit, sT, sBn, sBit))
    offs(sOn)
    a("s_add_u32 s63, s%d, s%d" % (sBlkP, sBlkD))
    for n in range(4): run(w_ops(n, 63))
    wait_tags("fl", "o%d" % (cnt[0] + 2), "w%d" % (cnt[0] + 3))
    ready()
    a.vm = []
    a.label(lab("retry"))
    cands(); attempt()
    a.raw(".p2align 3")
    a.label(lab("top"))
    if OPT["tst"]:
        for r in range(6):
            a("s_cmp_lg_u32 s62, %d\ns_cbranch_scc1 %s\ns_memrealtime s[%d:%d]\n%s:" % (r, lab("ts%d" % r), 66 + 2 * r, 67 + 2 * r, lab("ts%d" % r)))
        a("s_add_u32 s62, s62, 1")
    a("s_waitcnt lgkmcnt(0)")
    a("s_cmp_eq_u32 s%d, 0\ns_cbranch_scc1 %s" % (sBit, lab("now")))
    resolve(lab("retry"))
    offs(sOnn)
    def body(hw, ho):
        g0 = 4 * hw + NR; g = 4 * hw + NR * ho
        for k in range(4): kstep(k, hw, ho, lambda: a("s_waitcnt vmcnt(%d)" % [2 * g0, 2 * g0, g0 + g, 2 * g][k]), dyn="%d%d" % (hw, ho))
        a("s_branch %s" % lab("top" if ho else "wait"))
    a("s_and_b32 s%d, s%d, s%d\ns_cbranch_scc0 %s" % (sT, sR, sBn, lab("b10")))
    body(1, 1)
    a.label(lab("b10")); body(1, 0)
    a.label(lab("now"))
    a("s_and_b32 s%d, s%d, s%d\ns_cbranch_scc0 %s" % (sT, sR, sBn, lab("b00")))
    body(0, 1)
    a.label(lab("b00")); body(0, 0)
    a.vm = []
    a.label(lab("join"))
    run([FLOAD])
    a("s_lshl_b32 s%d, 0x40000, s%d\ns_mov_b32 s%d, s%d" % (sBit, sW, sBc, sBit))
    offs(sOc)
    for n in range(4): run(w_ops(n))
    a("s_lshl_b32 s%d, 0x100000, s%d\ns_mov_b32 s%d, s%d" % (sBit, sW, sBn, sBit))
    offs(sOn)
    a("s_add_u32 s63, s%d, s%d" % (sBlkP, sBlkD))
    for n in range(4): run(w_ops(n, 63))
    run(["ds_read_b32 v%d, v%d" % (vCr, vCl), "s_waitcnt vmcnt(32) lgkmcnt(0)", "v_readfirstlane_b32 s%d, v%d" % (sC, vCr)])
    ready()
    cands(); attempt()
    a.label(lab("wait"))
    a("s_and_b32 s%d, s%d, s%d\ns_cbranch_scc1 %s" % (sT, sR, sBc, lab("go")))
    a("s_and_b32 s%d, s%d, s%d\ns_cbranch_scc1 %s" % (sT, sR, sBn, lab("swap")))
    a("s_or_b32 s%d, s%d, s%d\ns_cbranch_scc0 %s" % (sT, sBc, sBn, lab("done")))
    run(["s_sleep %d" % OPT["slp"], FLOAD, "s_waitcnt vmcnt(0)"])
    ready()
    a("s_branch %s" % lab("wait"))
    a.label(lab("swap"))
    run(["s_mov_b32 s%d, s%d" % (sT, sBc), "s_mov_b32 s%d, s%d" % (sBc, sBn), "s_mov_b32 s%d, s%d" % (sBn, sT),
         "s_mov_b32 s%d, s%d" % (sT, sOc), "s_mov_b32 s%d, s%d" % (sOc, sOn), "s_mov_b32 s%d, s%d" % (sOn, sT)] + toggle() + toggle_s())
    a.label(lab("go"))
    stamp(a, 6)
    run(o_ops(0, sOc) + o_ops(1, sOc) + o_ops(2, sOc))
    a("s_waitcnt vmcnt(%d)" % (3 * NR))
    run(reads(0))
    a("s_waitcnt vmcnt(0)")
    a("s_branch %s" % lab("top"))
    a.label(lab("done"))
    a("s_nop 7")
    a.vm = []; a.lgkm = []
    stamp(a, 1)
    a("s_add_u32 s%d, s%d, s%d\ns_min_u32 s%d, s%d, s%d\ns_max_u32 s%d, s%d, s%d" % (sT, sBlkP, sBlkD, sT2, sT, sBlkP, sT3, sT, sBlkP))
    a("v_add_u32 v9, s%d, v1\nv_add_u32 v8, s%d, v1" % (sT2, sT3))
    for t in range(NR):
        for ct in range(4): a("ds_write_b128 v%d, %s offset:%d" % (9 if ct < 2 else 8, ACC(t, ct), (ct & 1) * 8192 + t * 1024))
    a("s_and_b32 s%d, s%d, 1\ns_lshl_b32 s%d, s%d, 13\ns_cmp_lt_u32 s%d, 2" % (sT, sOpIdx, sT, sT, sOpIdx))
    a("s_cselect_b32 s%d, 0, %d\ns_cselect_b32 s%d, %d, %d" % (sT2, 64 * KB, sT3, 16 * KB, 0) + "\ns_cselect_b32 s63, 0, %d" % (132 * KB))
    a("s_add_u32 s%d, s%d, s%d\ns_add_u32 s%d, s%d, s%d\ns_add_u32 s%d, s%d, s63" % (sT2, sT2, sT, sT3, sT3, sT, sT3, sT3))
    a("v_add_u32 v9, s%d, v1\nv_add_u32 v8, s%d, v1" % (sT2, sT3))
    a("s_waitcnt lgkmcnt(0)")
    a("s_barrier")
    for t in range(NR):
        for w in range(4):
            a("ds_read_b128 %s, v%d offset:%d" % (vr(16 + (t * 4 + w) * 4, 4), 8 if w == 1 else 9, [0, 0, 32 * KB, 48 * KB][w] + t * 1024))
    for t in range(NR):
        b = 16 + t * 16
        for r in range(0, 4, 2):
            a("v_pk_add_f32 %s, %s, %s" % (vr(b + r, 2), vr(b + r, 2), vr(b + 4 + r, 2)))
            a("v_pk_add_f32 %s, %s, %s" % (vr(b + 8 + r, 2), vr(b + 8 + r, 2), vr(b + 12 + r, 2)))
            a("v_pk_add_f32 %s, %s, %s" % (vr(b + r, 2), vr(b + r, 2), vr(b + 8 + r, 2)))
        a("v_cvt_pk_bf16_f32 v%d, v%d, v%d\nv_cvt_pk_bf16_f32 v%d, v%d, v%d" % (b, b, b + 1, b + 1, b + 2, b + 3))
        a("s_add_u32 s%d, s%d, %d" % (sT, sOutOff, t * 32768))
        a("buffer_store_dwordx2 %s, v10, %s, s%d offen%s" % (vr(b, 2), SR(S_OUT), sT, POL[OPT["polout"]]))
    if OPT["stamps"]:
        a("s_waitcnt vmcnt(0)")
        stamp(a, 7)
        stamp_store(a)
    a.label(lab("fin"))
    a("s_endpgm")
    a.vm = []; a.lgkm = []

def kernel():
    a = Asm()
    a.raw(".globl %s\n.p2align 8\n.type %s,@function" % (NAME, NAME)); a.label(NAME)
    a("s_cmp_ge_u32 s2, 256\ns_cbranch_scc1 L_end")
    if OPT["stamps"]:
        for k in range(NST): a("s_memrealtime s[%d:%d]" % (64 + 2 * k, 65 + 2 * k))
    a("s_and_b32 s%d, s2, 7\ns_lshr_b32 s%d, s2, 3\ns_lshr_b32 s%d, s%d, 2" % (sT, sT2, sBlk, sT))
    a("s_mul_i32 s%d, s%d, 40" % (sT3, sBlk))
    a("s_add_u32 s4, s0, s%d\ns_addc_u32 s5, s1, 0" % sT3)
    a("s_load_dwordx8 s[80:87], s[4:5], 0")
    a("s_load_dwordx2 s[88:89], s[4:5], 32")
    a("s_load_dwordx4 s[96:99], s[0:1], 80")
    a("s_load_dwordx2 s[92:93], s[0:1], 96")
    a("s_lshr_b32 s%d, s%d, 4\ns_lshl_b32 s%d, s%d, 1\ns_add_u32 s%d, s%d, s%d" % (sGo, sT2, sT3, sT, sGo, sGo, sT3))
    a("s_and_b32 s%d, s%d, 15" % (sJo, sT2))
    if OPT["map"] == 0:
        a("s_mov_b32 s%d, s%d\ns_mov_b32 s%d, s%d\ns_and_b32 s%d, s%d, 7" % (sG, sGo, sJJ, sJo, sB, sGo))
        a("s_and_b32 s%d, s%d, 1\ns_lshl_b32 s%d, s%d, 2\ns_add_u32 s%d, s%d, s%d" % (sRot, sG, sRot, sRot, sRot, sRot, sJJ))
    elif OPT["map"] == 1:
        a("s_and_b32 s%d, s%d, 7\ns_and_b32 s%d, s%d, 1\ns_lshl_b32 s%d, s%d, 3\ns_add_u32 s%d, s%d, s%d" % (sRot, sT2, sJJ, sT, sJJ, sJJ, sJJ, sJJ, sRot))
        a("s_lshr_b32 s%d, s%d, 3\ns_lshl_b32 s%d, s%d, 1\ns_add_u32 s%d, s%d, s%d" % (sB, sT2, sT3, sB, sRot, sRot, sT3))
        a("s_and_b32 s%d, s%d, 2\ns_lshl_b32 s%d, s%d, 1\ns_add_u32 s%d, s%d, s%d" % (sT3, sT, sT3, sT3, sB, sB, sT3))
        a("s_lshl_b32 s%d, s%d, 3\ns_add_u32 s%d, s%d, s%d" % (sG, sBlk, sG, sG, sB))
    else:
        a("s_and_b32 s%d, s%d, 3\ns_and_b32 s%d, s%d, 3\ns_lshl_b32 s%d, s%d, 2\ns_add_u32 s%d, s%d, s%d" % (sRot, sT2, sJJ, sT, sJJ, sJJ, sJJ, sJJ, sRot))
        a("s_lshr_b32 s%d, s%d, 2\ns_lshl_b32 s%d, s%d, 1\ns_add_u32 s%d, s%d, s%d" % (sB, sT2, sRot, sRot, sRot, sRot, sB))
        a("s_lshl_b32 s%d, s%d, 3\ns_add_u32 s%d, s%d, s%d" % (sG, sBlk, sG, sG, sB))
    a("s_getpc_b64 s[60:61]")
    a.label("L_pf")
    a("v_lshlrev_b32 v12, 7, v0")
    a.items.append(a._mk("v_min_u32 v12, 0x1234, v12")); a.items[-1].text = "v_min_u32 v12, L_end-L_pf, v12"
    a("global_load_dword v253, v12, s[60:61]")
    a("v_lshrrev_b32 v12, 6, v0")
    a("v_readfirstlane_b32 s%d, v12" % sW)
    a("s_mul_i32 s62, s%d, 147456" % sB)
    a("s_cmp_ge_u32 s%d, 6\ns_cbranch_scc1 L_auxrole" % sW)
    st = (list(a.lgkm), list(a.vm))
    a("s_cmp_ge_u32 s%d, 4\ns_cbranch_scc1 L_brole" % sW)
    head(a, "A")
    a("s_branch L_att")
    a.lgkm, a.vm = list(st[0]), list(st[1])
    a.raw(".p2align 3"); a.label("L_brole")
    head(a, "B")
    a.label("L_att")
    attention(a)
    a.lgkm, a.vm = list(st[0]), list(st[1])
    a.raw(".p2align 3"); a.label("L_auxrole")
    head(a, "X")
    aux(a)
    vm0 = list(a.vm)
    op_path(a, 5, "a", vm0)
    op_path(a, 4, "b", vm0)
    a.label("L_end"); a("s_endpgm")
    a.pad_hazards()
    a.check_backedge("L_loop", "s_cbranch_scc1 L_loop")
    a.align8()
    return a.text()

out = []
out.append("; " + " ".join(sys.argv[1:]) + " : fused Q-projection + attention + O-projection, one launch (generated by dev/gen11.py)")
out.append("; @launch grid=(256,1,1) block=(512,1,1) lds=163840")
out.append('.amdgcn_target "amdgcn-amd-amdhsa--gfx950"\n.text')
out.append(kernel())
out.append('.section .rodata,"a"\n.p2align 6')
out.append(""".amdhsa_kernel %s
  .amdhsa_next_free_vgpr 256
  .amdhsa_next_free_sgpr 102
  .amdhsa_accum_offset 256
  .amdhsa_group_segment_fixed_size 0
  .amdhsa_kernarg_size 104
  .amdhsa_user_sgpr_count 2
  .amdhsa_user_sgpr_kernarg_segment_ptr 1
  .amdhsa_system_sgpr_workgroup_id_x 1
.end_amdhsa_kernel
""" % NAME)
print("\n".join(out))
```

```python
import sys, math, struct
sys.path.insert(0, "dev")
from asmlib import *

OPT = dict(stamps=0, samekv=0, clk=0, hst=0, nopoll=0, polo=2, polw=0, polx=0, polwo=0, pols=2, polkv=1, slp=4, lo=2,
           auxprio=0, sbs=1, s0=22, kp="3333333322", sst=-1, sstd=1, xo=0, xw=0, map=2, park=2, hprio=1, kv0=5, kv1=6, pk14=0, ck=0, polout=0, ptouch=0, tw0="", tw1="", g0=15, cap=0, capto=16, nol=0, q2mix=2, bst=-1, bw=0, pair=1, mxf=1, p14=1, early=8, tst=0, cpf=1, pfm=-1, pst=0, pfw=1, fast0=1, q2s="22111111111111", q2p=1, q2pr=0, kvc=0, xmf=0)
for a_ in sys.argv[1:]:
    k, v = a_.split("="); assert k in OPT, k; OPT[k] = v if k in ("kp", "tw0", "tw1", "q2s") else int(v)

NAME = "concat_heads__mha_block_cached__gqa_block_cached__near_ridge_kernel"
def f32(x): return "0x%08x" % struct.unpack("<I", struct.pack("<f", x))[0]
CSCALE = math.log2(math.e) / math.sqrt(128.0)
THR = 8.0
KB = 1024
SLOT = 32 * KB
XB = [96 * KB, 114 * KB, 132 * KB]
WB = [32 * KB, 48 * KB, 0]
Q2B = 96 * KB; Q1A = 132 * KB; Q1C = 32 * KB; EX1 = 132 * KB; EX2 = 80 * KB; W2R = 132 * KB
MLB = 156 * KB; CNT = 160 * KB - 128; TAGW = CNT + 8; CLAIM = CNT + 16; PFL = CNT + 32
STAMP_OFF = 0x10000000; FLAG_OFF = 0x2000000
PHM = 0x40000000
OSTR = 128 * 9216 + 1024
MF = "v_mfma_f32_16x16x32_bf16"
NST = 8
POL = ["", " nt", " sc1", " sc0 sc1", " sc1 nt"]
NIN = sum(int(c) for c in OPT["kp"]) // 4
assert NIN * 4 == sum(int(c) for c in OPT["kp"]) and NIN <= 7

S_FL, S_WQ, S_X, S_O, S_KV, S_WO, S_OUT, S_DBG = 4, 8, 12, 16, 20, 24, 28, 32
S_OL, S_FLL = 8, 12
sW, sG, sJJ, sBlk, sB, sRot, sT, sT2, sT3 = 36, 37, 38, 39, 40, 41, 42, 43, 44
sCnt, sThr, sFl, sSlot, sDelta, sItem, sExS, sBar, sExch, sOoff = 45, 46, 47, 48, 49, 50, 51, 52, 53, 54
sNeg, sPos, sPart, sKg, sRho = 55, 56, 57, 59, 62
sHk, sHo = 46, 47
sOc, sOn, sWn, sBlkP, sRm, sBit, sR, sC = 46, 47, 48, 49, 51, 52, 55, 56
sBlkD, sBc, sBn, sOnn = 45, 53, 58, 86
sOb, sWb, sOutOff, sOpIdx, sTag, sWant, sTagA = 80, 81, 82, 83, 84, 85, 87
sGo, sJo = 94, 95

def srd(a, d, lo, hi, nrec):
    a("s_mov_b32 s%d, s%d\ns_mov_b32 s%d, s%d" % (d, lo, d + 1, hi))
    a("s_mov_b32 s%d, %s\ns_mov_b32 s%d, 0x20000" % (d + 2, nrec, d + 3))
def SR(d): return "s[%d:%d]" % (d, d + 3)

def cstamp(a, e):
    if OPT["clk"]: a("s_memtime s[%d:%d]\ns_memrealtime s[%d:%d]" % (66 + 2 * e, 67 + 2 * e, 70 + 2 * e, 71 + 2 * e))
def stamp(a, k, hs=False):
    if not OPT["stamps"] or OPT["ck"]: return
    if OPT["clk"] and 1 <= k <= 4: return
    if (OPT["sst"] >= 0 or OPT["bst"] >= 0 or OPT["tst"] or OPT["pst"]) and k and k != 7: return
    if OPT["hst"] and k and not hs: return
    if hs and not OPT["hst"]: return
    a("s_memrealtime s[%d:%d]" % (64 + 2 * k, 65 + 2 * k))
BSN = [0]
def bstamp(a, k):
    if OPT["bst"] < 0: return
    BSN[0] += 1
    a("s_cmp_lg_u32 s%d, %d\ns_cbranch_scc1 L_bs%d\ns_memrealtime s[%d:%d]\nL_bs%d:" % (sItem, OPT["bst"], BSN[0], 64 + 2 * k, 65 + 2 * k, BSN[0]))
def stamp_store(a):
    a("s_waitcnt vmcnt(0) lgkmcnt(0)")
    a("s_cmp_eq_u32 s%d, 6\ns_cselect_b32 s%d, 256, 0" % (sW, sT))
    a("s_mul_i32 s%d, s%d, 43\ns_lshr_b32 s%d, s%d, 8\ns_mul_i32 s%d, s%d, 6" % (sT2, sW, sT2, sT2, sT2, sT2))
    a("s_cmp_lg_u32 s%d, s%d\ns_cbranch_scc1 L_end" % (sT2, sW))
    a("s_add_u32 s96, s100, 0x%x\ns_addc_u32 s97, s101, 0" % STAMP_OFF)
    a("s_mov_b32 s98, 0x100000\ns_mov_b32 s99, 0x20000")
    a("s_add_u32 s3, s2, s%d\ns_mul_i32 s3, s3, %d" % (sT, NST * 8))
    a("v_mov_b32 v12, s3\ns_mov_b64 exec, 1")
    for k in range(NST):
        a("v_mov_b32 v14, s%d\nv_mov_b32 v15, s%d" % (64 + 2 * k, 65 + 2 * k))
        a("buffer_store_dwordx2 v[14:15], v12, s[96:99], 0 offen offset:%d" % (8 * k))
        a("s_nop 1")

def lanes(a):
    a("v_and_b32 v12, 63, v0\nv_lshrrev_b32 v13, 4, v12\nv_and_b32 v14, 15, v12\nv_bfe_u32 v15, v12, 2, 2")

vK, vVa, vVb = 1, 2, 3
vX1, vX2, vX3, vX4 = 4, 5, 6, 7
vONE, vT, vQ, vO, vL, vM, vS, vF = 8, 12, 16, 64, 160, 172, 184, 208
def Q(t, s): return vr(vQ + 16 * t + 4 * s, 4)
def O(t, dt): return vr(vO + 32 * t + 4 * dt, 4)
def L(t): return vr(vL + 4 * t, 4)
def M(t): return vr(vM + 4 * t, 4)
def S(t, kt): return vr(vS + 8 * t + 4 * kt, 4)
def F(i): return vF + 4 * i
vD = 128
vFo, vDg, vDg2, vFl, vA_, vB_, vOr, vCl, vCr, vCb = 136, 137, 138, 139, 140, 141, 142, 143, 144, 145

sKo = 50
S_V = 96
def kv_ops(tile):
    slot = (tile + 2) % 3
    o = []
    for grp in range(4):
        for q in range(4):
            if OPT["kvc"]:
                pre_ = "s_add_u32 m0, s%d, %d\ns_add_u32 s%d, s%d, %d\n" % (sKg, slot * SLOT + (grp >> 1) * 16384 + (grp & 1) * 4096, sKo, sKg, tile * 16384 + (grp & 1) * 4096) if q == 0 else ""
                sr_ = SR(S_V if grp >= 2 else S_KV)
            else:
                pre_ = "s_add_u32 m0, s%d, %d\ns_mov_b32 s%d, %d\n" % (sKg, slot * SLOT + grp * 4096, sKo, tile * 16384 + grp * 4096) if q == 0 else ""
                sr_ = SR(S_KV)
            o.append((pre_ + "buffer_load_dwordx4 v%d, %s, s%d offen offset:%d%s lds" % (vD + q + (4 if grp >= 2 else 0), sr_, sKo, q * 1024, POL[OPT["polkv"]]), "t%d" % tile))
    return o
KV_DONE = set()
def kv_tile(a, tile):
    if tile in KV_DONE and tile < 17: return
    for x, t in kv_ops(tile): a(x, tag=t)

def srds_first(a):
    a("s_waitcnt lgkmcnt(0)")
    srd(a, S_WQ, 86, 87, "%d" % (512 * 8192))
    a("s_add_u32 s80, s80, s62\ns_addc_u32 s81, s81, 0")
    srd(a, S_X, 80, 81, "147456")

def srds_rest(a):
    a("s_mul_i32 s%d, s%d, %d\ns_add_u32 s%d, s%d, 1024\ns_add_u32 s90, s92, s%d\ns_addc_u32 s91, s93, 0" % (sT, sG, OSTR, sT, sT, sT))
    srd(a, S_O, 90, 91, "%d" % (128 * 9216))
    if not OPT["kvc"]: a("s_cmp_eq_u32 s%d, 6\ns_cselect_b32 s82, s82, s84\ns_cselect_b32 s83, s83, s85" % sW)
    a("s_lshl_b32 s%d, s%d, 4\ns_add_u32 s%d, s%d, s%d" % (sT, sB, sT, sT, sJJ))
    if OPT["samekv"]: a("s_mov_b32 s%d, 0" % sT)
    a("s_lshl_b32 s%d, s%d, 19" % (sT, sT))
    a("s_add_u32 s82, s82, s%d\ns_addc_u32 s83, s83, 0" % sT)
    srd(a, S_KV, 82, 83, "524288")
    srd(a, S_WO, 88, 89, "%d" % (4096 * 1024))
    srd(a, S_OUT, 96, 97, "%d" % (8 * 144 * 1024 * 2))
    srd(a, S_DBG, 98, 99, "256")
    if OPT["kvc"]:
        a("s_add_u32 s84, s84, s%d\ns_addc_u32 s85, s85, 0" % sT)
        srd(a, S_V, 84, 85, "524288")
    a("s_lshl_b32 s%d, s%d, 8\ns_add_u32 s%d, s%d, 0x%x\ns_add_u32 s90, s92, s%d\ns_addc_u32 s91, s93, 0" % (sT, sG, sT, sT, FLAG_OFF, sT))
    srd(a, S_FL, 90, 91, "64")
    a("s_mov_b32 s100, s92\ns_mov_b32 s101, s93")
    if OPT["pair"]: a("s_and_b32 s%d, s%d, 1\ns_lshr_b32 s%d, s%d, 1" % (sKg, sW, sRho, sW))
    else: a("s_cmp_ge_u32 s%d, 3\ns_cselect_b32 s%d, 1, 0\ns_mul_i32 s%d, s%d, 3\ns_sub_u32 s%d, s%d, s%d" % (sW, sKg, sT, sKg, sRho, sW, sT))
    a("v_and_b32 v236, 31, v0\nv_lshlrev_b32 v236, 2, v236\nv_add_u32 v236, %d, v236\nv_mov_b32 v234, 0" % CNT)
    a("ds_write_b32 v236, v234")

def q_pack(a, b, scale):
    for r in range(0, 8, 2): a("v_pk_mul_f32 %s, %s, %s" % (vr(b + r, 2), vr(b + r, 2), scale))
    for r in range(4): a("v_cvt_pk_bf16_f32 v%d, v%d, v%d" % (b + r, b + 2 * r, b + 2 * r + 1))
def q_swap(a, b):
    a("v_permlane16_swap_b32 v%d, v%d\nv_permlane16_swap_b32 v%d, v%d" % (b, b + 2, b + 1, b + 3))

def loader_setup(a):
    vHW, vHX, vA1 = 224, 248, 231
    lanes(a)
    a("s_and_b32 s60, s%d, 3" % sW)
    a("v_and_b32 v%d, 3, v12\nv_lshlrev_b32 v%d, 4, v%d" % (vHX, vHX, vHX))
    a("v_lshl_add_u32 v%d, v13, 6, v%d" % (vHW, vHX))
    a("v_lshl_add_u32 v%d, v15, 8, v%d" % (vD, vHW))
    a("v_lshl_add_u32 v%d, v15, 13, v%d" % (vHW, vHW))
    a("s_lshl_b32 s%d, s60, 17\ns_lshl_b32 s%d, s%d, 9\ns_add_u32 s%d, s%d, s%d" % (sT, sT2, sJJ, sT, sT, sT2))
    a("v_add_u32 v%d, s%d, v%d" % (vHW, sT, vHW))
    a("v_add_u32 v%d, %d, v%d" % (vHW + 1, 31744, vHW))
    a("v_add_u32 v%d, %d, v%d\nv_xor_b32 v%d, 32, v%d" % (vHW + 2, 2 * 31744, vHW, vHW + 2, vHW + 2))
    a("v_add_u32 v%d, %d, v%d" % (vHW + 3, 31744, vHW + 2))
    a("s_lshl_b32 s63, s60, 12")
    a("s_mul_i32 s61, s60, 5\ns_min_u32 s61, s61, 14")
    a("v_and_b32 v%d, 1, v13\nv_lshl_add_u32 v4, v%d, 6, v%d" % (vA1, vA1, vHX))
    a("v_lshl_add_u32 v%d, v15, 10, v4" % vHX)
    a("v_lshrrev_b32 v%d, 5, v12\nv_lshl_add_u32 v8, v%d, 12, v%d" % (vA1, vA1, vHX))
    a("s_lshl_b32 s%d, s61, 13\ns_and_b32 s%d, s61, 1\ns_lshl_b32 s%d, s%d, 5" % (sT, sT2, sT2, sT2))
    a("v_add_u32 v%d, s%d, v8\nv_xor_b32 v%d, s%d, v%d" % (vHX, sT, vHX, sT2, vHX))
    a("v_add_u32 v%d, 7168, v%d\nv_xor_b32 v%d, 32, v%d" % (vHX + 1, vHX, vHX + 1, vHX + 1))
    a("v_add_u32 v%d, 14336, v%d\nv_add_u32 v%d, 14336, v%d" % (vHX + 2, vHX, vHX + 3, vHX + 1))
    a("v_add_u32 v%d, 32768, v%d" % (vHX + 4, vHX))
    a("s_lshl_b32 s61, s61, 10")

def stage_ops_(j, NX):
    vHW, vHX = 224, 248
    xb = XB[j % 3]; wb = WB[j % 3]
    o = []
    for qq in range(4):
        pre_ = "s_add_u32 s%d, s%d, %d\ns_and_b32 s%d, s%d, 7\ns_lshl_b32 s%d, s%d, 19\ns_add_u32 m0, s63, %d\n" % (sHk, sRot, j, sHk, sHk, sHo, sHk, wb) if qq == 0 else ""
        o.append(pre_ + "buffer_load_dwordx4 v%d, %s, s%d offen offset:%d%s lds" % (vHW + qq, SR(S_WQ), sHo, qq * 1024, POL[OPT["polw"]]))
    for e in range(NX):
        pre_ = "s_add_u32 m0, s61, %d\n" % (xb + 4096) if e == 4 else ("s_add_u32 m0, s61, %d\ns_lshl_b32 s%d, s%d, 7\n" % (xb, sHo, sHk) if e == 0 else "")
        o.append(pre_ + "buffer_load_dwordx4 v%d, %s, s%d offen offset:%d%s lds" % (vHX + e, SR(S_X), sHo, (e & 3) * 1024, POL[OPT["polx"]]))
    return [(x, "h%d" % j) for x in o]

def head(a, role):
    att = role != "X"; ldr = role != "A"
    NRT = 4 if ldr else 5; T0 = 5 if ldr else 0
    vHW, vHX = 224, 248
    vA1, vA2, vBx = 231, 232, 233
    cA1, cA2, cBx = 234, 235, 236
    ACC = lambda t, d: vr(16 + 8 * t + 4 * d, 4)
    BF = lambda u, t: vr(56 + 20 * u + 4 * t, 4)
    AF = lambda u, d: 96 + 8 * u + 4 * d
    NX = 5 if att else 4
    if not OPT["fast0"]: loader_setup(a)
    def stage_ops(j): return stage_ops_(j, NX) if ldr else []
    def stage_load(j):
        for x, t in stage_ops(j): a(x, tag=t)
    if not OPT["fast0"]:
        srds_first(a)
        stage_load(0)
    elif role == "B":
        x, t = stage_ops(0)[8]; a(x, tag=t)
    if OPT["pst"]: a("s_memrealtime s[70:71]")
    if role == "A" and OPT["ptouch"]:
        a("s_cmp_lg_u32 s%d, 0\ns_cbranch_scc1 L_nopt" % sW)
        a("s_lshl_b32 s%d, s%d, 4\ns_add_u32 s%d, s%d, s%d\ns_lshl_b32 s%d, s%d, 19" % (sT, sB, sT, sT, sJJ, sT, sT))
        a("v_mov_b32 v240, s%d" % sT)
        a.autowait = False
        a("global_load_dword v244, v240, s[82:83]\nglobal_load_dword v245, v240, s[84:85]")
        a("v_and_b32 v240, 1, v12\nv_lshlrev_b32 v241, 21, v240")
        a("global_load_dword v246, v241, s[88:89]\nglobal_load_dword v247, v241, s[96:97]")
        a("v_add_u32 v241, s%d, v240\nv_add_u32 v242, s%d, v240\nv_and_b32 v243, 2, v12\nv_cmp_eq_u32 vcc, 0, v243" % (sG, sGo))
        a("v_cndmask_b32 v241, v241, v242, vcc\ns_mov_b32 s%d, %d\nv_mul_lo_u32 v241, s%d, v241" % (sT, OSTR, sT))
        a("v_mov_b32 v242, 0x%x\nv_cmp_lt_u32 vcc, 3, v12\nv_cndmask_b32 v241, v241, v242, vcc" % (FLAG_OFF + 8192))
        a("global_load_dword v248, v241, s[92:93]")
        a.autowait = True
        a.label("L_nopt")
    srds_rest(a)
    a("v_and_b32 v%d, 3, v12\nv_lshlrev_b32 v%d, 3, v%d" % (vA1, vA1, vA1))
    a("v_lshl_add_u32 v%d, v15, 6, v%d" % (vA1, vA1))
    a("v_and_b32 v%d, 1, v13\nv_lshl_add_u32 v%d, v%d, 5, v%d" % (vA2, vA1, vA2, vA1))
    a("v_lshl_add_u32 v%d, v13, 10, v%d" % (vVa, vA1))
    a("v_lshl_add_u32 v%d, v13, 11, v%d" % (vA1, vA1))
    a("s_and_b32 s%d, s%d, 3\ns_lshl_b32 s%d, s%d, 8" % (sT, sW, sT, sT))
    a("v_add_u32 v%d, s%d, v%d\nv_xor_b32 v%d, 32, v%d" % (vA1, sT, vA1, vA2, vA1))
    a("v_lshrrev_b32 v%d, 3, v14\nv_lshlrev_b32 v%d, 1, v%d\nv_xor_b32 v%d, v%d, v13\nv_lshlrev_b32 v%d, 4, v%d" % (vBx, vBx, vBx, vBx, vBx, vBx, vBx))
    a("v_and_b32 v%d, 3, v14\nv_lshl_add_u32 v%d, v%d, 6, v%d" % (cBx, vBx, cBx, vBx))
    a("v_lshl_add_u32 v%d, v15, 9, v%d" % (vBx, vBx))
    if att:
        a("s_lshl_b32 s%d, s%d, 13\ns_add_u32 s%d, s%d, %d" % (sT, sKg, sT, sT, 2 * SLOT))
        a("v_add_u32 v%d, s%d, v%d\nv_add_u32 v%d, 16384, v%d\nv_xor_b32 v%d, 32, v%d" % (vVa, sT, vVa, vVa, vVa, vVb, vVa))
        a("v_lshlrev_b32 v%d, 10, v15" % vK)
        a("v_lshl_add_u32 v%d, v%d, 6, v%d" % (vK, cBx, vK))
        a("v_lshrrev_b32 v%d, 1, v13\nv_and_b32 v%d, 1, v13\nv_lshl_or_b32 v%d, v%d, 1, v%d" % (cA1, cA2, cA1, cA2, cA1))
        a("v_lshrrev_b32 v%d, 3, v14\nv_xor_b32 v%d, v%d, v%d" % (cA2, cA1, cA1, cA2))
        a("v_lshl_add_u32 v%d, v%d, 4, v%d\nv_add_u32 v%d, s%d, v%d" % (vK, cA1, vK, vK, sT, vK))
        for r in range(4): a("v_mov_b32 v%d, 0x3f803f80" % (vONE + r))
    else:
        a("s_cmp_eq_u32 s%d, 6" % sW)
        if OPT["kvc"]:
            a("s_cselect_b32 s60, 0, 128\ns_cselect_b32 s%d, 0, 8192" % sKg)
            a("v_mov_b32 v%d, v%d\nv_xor_b32 v%d, 16, v%d\nv_xor_b32 v%d, 16, v%d" % (vD + 1, vD, vD + 2, vD, vD + 3, vD))
            a("v_xor_b32 v%d, s60, v%d\nv_xor_b32 v%d, 32, v%d\nv_mov_b32 v%d, v%d\nv_mov_b32 v%d, v%d" % (vD + 4, vD, vD + 5, vD + 4, vD + 6, vD + 4, vD + 7, vD + 5))
        else:
            a("s_cselect_b32 s%d, 0, 32\ns_cselect_b32 s%d, 16, 0\ns_cselect_b32 s%d, 16, 32\ns_cselect_b32 s60, 0, 128\ns_cselect_b32 s%d, 0, 16384" % (sT, sT2, sT3, sKg))
            a("v_xor_b32 v%d, s%d, v%d\nv_xor_b32 v%d, s%d, v%d\nv_xor_b32 v%d, s%d, v%d" % (vD + 1, sT, vD, vD + 2, sT2, vD, vD + 3, sT3, vD))
            for q in range(4): a("v_xor_b32 v%d, s60, v%d" % (vD + 4 + q, vD + q))
        a("v_add_u32 v1, %d, v%d" % (XB[0], vBx))
    a("v_mov_b32 v238, %s\nv_mov_b32 v239, %s" % (f32(CSCALE), f32(CSCALE)))
    def reads(u):
        tr = lambda d: ["ds_read_b64_tr_b16 %s, v%d offset:%d" % (vr(AF(u, d) + 2 * rd, 2), cA2 if d else cA1, u * 8192 + rd * 1024) for rd in range(2)]
        return tr(0) + ["ds_read_b128 %s, v%d offset:%d" % (BF(u, t), cBx, (T0 + t) * 2048 + u * 256) for t in range(NRT)] + tr(1)
    def mfmas(u, first):
        return ["%s %s, %s, %s, %s" % (MF, ACC(t, d), vr(AF(u, d), 4), BF(u, t), "0" if first else ACC(t, d)) for d in range(2) for t in range(NRT)]
    if OPT["pst"]: a("s_memrealtime s[72:73]")
    stage_load(1)
    if OPT["pst"]: a("s_memrealtime s[74:75]")
    stamp(a, 1)
    def mix(ms, rs, ds=()):
        di = 0; ri = 0
        for k, x in enumerate(ms):
            a(x)
            for _ in range(2):
                if ri < len(rs): a(rs[ri]); ri += 1
            while di < len(ds) and di * len(ms) <= k * len(ds):
                a(ds[di][0], tag=ds[di][1]); di += 1
        for x, t in ds[di:]: a(x, tag=t)
    if ldr and OPT["hprio"]: a("s_setprio %d" % OPT["hprio"])
    for j in range(8):
        a.wait_vm_tag("h%d" % j)
        if OPT["pst"] and j == 0: a("s_memrealtime s[76:77]")
        a("v_add_u32 v%d, %d, v%d\nv_add_u32 v%d, %d, v%d\nv_add_u32 v%d, %d, v%d" % (cA1, WB[j % 3], vA1, cA2, WB[j % 3], vA2, cBx, XB[j % 3], vBx))
        a("s_waitcnt lgkmcnt(0)")
        a("s_barrier")
        if j < 7: stamp(a, j + 1, hs=True)
        d = stage_ops(j + 2) if j + 2 < 8 else []
        cut = (len(d) + 1) // 2
        if j == 0:
            for x in reads(0): a(x)
            for x, t in d[:cut]: a(x, tag=t)
        else: mix(mfmas(1, False), reads(0), d[:cut])
        a("s_waitcnt lgkmcnt(0)")
        mix(mfmas(0, j == 0), reads(1), d[cut:])
        if not att and j == OPT["kv0"]: kv_tile(a, 0)
        if not att and j == OPT["kv1"] and j < 7: kv_tile(a, 1)
    for x in mfmas(1, False): a(x)
    a("s_and_b32 s60, s%d, 3\ns_lshl_b32 s60, s60, 10" % sW)
    a("v_lshlrev_b32 v%d, 4, v12\nv_add_u32 v%d, s60, v%d" % (cBx, cBx, cBx))
    a("v_add_u32 v%d, %d, v%d\nv_add_u32 v%d, %d, v%d" % (cA1, Q1A, cBx, cA2, Q1C, cBx))
    for t in range(NRT): q_pack(a, 16 + 8 * t, "v[238:239]")
    for t in range(NRT): q_swap(a, 16 + 8 * t)
    for t in range(NRT):
        tg = T0 + t
        a("ds_write_b128 v%d, %s offset:%d" % (cA1 if tg < 6 else cA2, vr(16 + 8 * t, 4), (tg if tg < 6 else tg - 6) * 4096))
    if ldr and OPT["hprio"]: a("s_setprio 0")
    a("s_waitcnt lgkmcnt(0)")
    a("s_barrier")
    if not att and OPT["kv1"] >= 7: kv_tile(a, 1)
    stamp(a, 2)

def pair_signal(a):
    a("s_add_u32 s%d, s%d, 1" % (sBar, sBar))
    a("v_mov_b32 v%d, s%d" % (vT, sBar))
    a("ds_write_b32 v%d, v%d" % (vX3, vT))

def pair_wait(a, name, reads):
    a.label(name)
    a("ds_read_b32 v%d, v%d" % (vT, vX4))
    for x in reads: a(x)
    a("s_waitcnt lgkmcnt(%d)" % len(reads))
    a("v_readfirstlane_b32 s%d, v%d" % (sT, vT))
    a("s_cmp_ge_u32 s%d, s%d" % (sT, sBar))
    a("s_cbranch_scc1 %s_ok" % name)
    a("s_waitcnt lgkmcnt(0)")
    if OPT["sbs"]: a("s_sleep %d" % OPT["sbs"])
    a("s_branch %s" % name)
    a.label(name + "_ok")
    a("s_waitcnt lgkmcnt(0)")

def publish(a, name, t0):
    a("s_waitcnt vmcnt(0)")
    a("s_mov_b64 exec, 1")
    a("v_mov_b32 v%d, %d\nv_mov_b32 v%d, 1" % (t0 + 2, CNT, t0 + 1))
    a("ds_add_rtn_u32 v%d, v%d, v%d offset:4" % (t0, t0 + 2, t0 + 1))
    a("ds_read_b32 v%d, v%d offset:8" % (t0 + 1, t0 + 2))
    a("s_waitcnt lgkmcnt(0)")
    a("v_readfirstlane_b32 s%d, v%d" % (sT, t0))
    a("s_cmp_lg_u32 s%d, 5" % sT)
    a("s_cbranch_scc1 %s" % name)
    a("v_or_b32 v%d, 0x%x, v%d" % (t0 + 1, PHM, t0 + 1))
    a("s_lshl_b32 s%d, s%d, 2" % (sT2, sJJ))
    a("v_mov_b32 v%d, s%d" % (t0, sT2))
    a("buffer_store_dword v%d, v%d, %s, 0 offen sc1" % (t0 + 1, t0, SR(S_FL)))
    a.label(name)
    a("s_mov_b64 exec, -1")

def attention(a):
    NT = 3; TL = 2
    a("s_waitcnt vmcnt(0)")
    a("v_lshlrev_b32 v%d, 4, v12" % vX1)
    a("s_mul_i32 s%d, s%d, %d\ns_add_u32 s%d, s%d, %d" % (sT, sRho, 12 * KB, sT, sT, Q1A))
    a("s_cmp_eq_u32 s%d, 2\ns_cselect_b32 s%d, %d, s%d" % (sRho, sT, Q1C, sT))
    a("v_add_u32 v%d, s%d, v%d" % (vX2, sT, vX1))
    for t in range(3):
        for s in range(4): a("ds_read_b128 %s, v%d offset:%d" % (Q(t, s), vX2, t * 4096 + s * 1024))
    if OPT["pair"]: a("s_xor_b32 s%d, s%d, 1" % (sPart, sW))
    else: a("s_add_u32 s%d, s%d, 3\ns_cmp_ge_u32 s%d, 6\ns_cselect_b32 s%d, 6, 0\ns_sub_u32 s%d, s%d, s%d" % (sPart, sW, sPart, sT2, sPart, sPart, sT2))
    a("s_lshl_b32 s%d, s%d, 2\ns_add_u32 s%d, s%d, %d\ns_lshl_b32 s%d, s%d, 2\ns_add_u32 s%d, s%d, %d" % (sT, sW, sT, sT, PFL, sT2, sPart, sT2, sT2, PFL))
    a("v_mov_b32 v%d, s%d\nv_mov_b32 v%d, s%d" % (vX3, sT, vX4, sT2))
    a("s_mov_b32 s%d, 0x40004000\ns_mov_b32 s%d, %s" % (sThr, sFl, f32(THR)))
    a("s_mov_b32 s%d, 0\ns_mov_b32 s%d, 0\ns_mov_b32 s%d, 2" % (sItem, sBar, sSlot))
    a("s_mul_i32 s%d, s%d, %d\ns_add_u32 s%d, s%d, %d" % (sExch, sRho, 12 * KB, sExch, sExch, Q2B))
    a("s_mov_b32 s%d, 0x%x\ns_mov_b32 s%d, %d" % (sNeg, (-2 * SLOT) & 0xffffffff, sPos, SLOT))
    a("s_lshl_b32 s%d, s%d, 3\ns_lshl_b32 s%d, s%d, 1\ns_add_u32 s%d, s%d, s%d\ns_mul_i32 s%d, s%d, 9" % (sT, sJJ, sT2, sKg, sT, sT, sT2, sT, sT))
    a("s_mul_i32 s%d, s%d, 3\ns_add_u32 s%d, s%d, s%d\ns_lshl_b32 s%d, s%d, 10\ns_add_u32 s%d, s%d, %d" % (sT2, sRho, sT, sT, sT2, sOoff, sT, sOoff, sOoff, 36 * KB))
    cstamp(a, 0)
    a.label("L_item")
    a("s_mov_b32 s%d, 0" % sCnt)
    a("s_waitcnt lgkmcnt(0)")
    Ga, Gb, Gc = 0, 4, 8
    def kread(kt, s):
        slot = (Gc + s) if kt == 0 else (Gb + s)
        return "ds_read_b128 %s, v%d offset:%d" % (vr(F(slot), 4), vK, kt * 4096 + s * 256)
    def vslot(dt): return (Ga + dt) if dt < 4 else (Gb + dt - 4)
    def vread(dt, rd):
        return "ds_read_b64_tr_b16 %s, v%d offset:%d" % (vr(F(vslot(dt)) + 2 * rd, 2), vVb if dt & 1 else vVa, rd * 4096 + (dt >> 1) * 256)
    def pv(t, dt, z=False): return "%s %s, %s, %s, %s" % (MF, O(t, dt), vr(F(vslot(dt)), 4), S(t, 0), "0" if z else O(t, dt))
    def lsum(t, z=False): return "%s %s, %s, %s, %s" % (MF, L(t), vr(vONE, 4), S(t, 0), "0" if z else L(t))
    def qk(t, kt, s, z=False):
        slot = (Gc + s) if kt == 0 else (Gb + s)
        return "%s %s, %s, %s, %s" % (MF, S(t, kt), vr(F(slot), 4), Q(t, s), ("0" if z else M(t)) if s == 0 else S(t, kt))
    EXP = lambda r: "v_exp_f32 v%d, v%d" % (r, r)
    def CVT(b, r): return "v_cvt_pk_bf16_f32 v%d, v%d, v%d" % (b + r, b + 2 * r, b + 2 * r + 1)
    def rowmax(b):
        return ["v_max3_f32 v%d, v%d, v%d, v%d" % (vT, b, b + 1, b + 2), "v_max3_f32 v%d, v%d, v%d, v%d" % (vT + 1, b + 3, b + 4, b + 5),
                "v_max3_f32 v%d, v%d, v%d, v%d" % (vT, vT, b + 6, b + 7), "v_max_f32 v%d, v%d, v%d" % (vT, vT, vT + 1),
                "v_mov_b32 v%d, v%d" % (vT + 1, vT), "v_permlane16_swap_b32 v%d, v%d" % (vT, vT + 1), "v_max_f32 v%d, v%d, v%d" % (vT, vT, vT + 1),
                "v_mov_b32 v%d, v%d" % (vT + 1, vT), "v_permlane32_swap_b32 v%d, v%d" % (vT, vT + 1), "v_max_f32 v%d, v%d, v%d" % (vT, vT, vT + 1)]
    def sm(t):
        b = vS + 8 * t
        g = [[EXP(b + r)] for r in range(4)] + [[CVT(b, 0), CVT(b, 1)]] + [[EXP(b + r)] for r in range(4, 8)] + [[CVT(b, 2), CVT(b, 3)]]
        g.append(["v_or3_b32 v%d, v%d, v%d, v%d" % (b + 4, b, b + 1, b + 2), "v_bitop3_b32 v%d, v%d, v%d, s%d bitop3:0xa8" % (b + 4, b + 4, b + 3, sThr)])
        g.append(["v_cmp_ne_u32 vcc, 0, v%d" % (b + 4)])
        return g
    def step(first):
        mf = []; fill = {}
        def put(idx, ops): fill.setdefault(idx, []).extend(ops)
        if not first: mf += [pv(TL, dt) for dt in (4, 5, 6, 7)] + [pv(TL, dt) for dt in (0, 1, 2, 3)] + [lsum(TL)]
        q0 = len(mf)
        qk_end = {}
        for t in range(NT):
            for kt in ((0, 1) if t < TL else (1, 0)):
                mf += [qk(t, kt, s, first) for s in range(4)]
                if t == TL and kt == 1: v47_at = len(mf) - 1
            qk_end[t] = len(mf) - 1
        pv_start = {}
        for t in range(TL):
            pv_start[t] = len(mf)
            mf += [pv(t, dt, first) for dt in range(4)] + [lsum(t, first)] + [pv(t, dt, first) for dt in range(4, 8)]
        n = len(mf)
        pre = [kread(0, s) for s in range(4)]
        if first:
            pre += [kread(1, s) for s in range(4)] + [vread(dt, rd) for dt in range(4) for rd in range(2)]
            pre += ["v_mov_b64 %s, 0" % vr(r, 2) for r in list(range(vO + 64, vO + 96, 2)) + [vL + 8, vL + 10]]
            pre += ["WAIT " + vr(F(Gc), 16)]
        else:
            for s in range(4): put(s, [kread(1, s)])
            for dt in range(4): put(4 + dt, [vread(dt, 0), vread(dt, 1)])
            put(8, ["WAIT " + vr(F(Gc), 16)])
        put(q0 + 3, ["WAIT " + vr(F(Gb), 16), "s_add_u32 s%d, s%d, 1" % (sSlot, sSlot)])
        put(q0 + 4, ["s_cmp_eq_u32 s%d, 3" % sSlot, "s_cselect_b32 s%d, s%d, s%d" % (sDelta, sNeg, sPos)])
        put(q0 + 5, ["s_cselect_b32 s%d, 0, s%d" % (sSlot, sSlot), "s_add_u32 s%d, s%d, 1" % (sCnt, sCnt)])
        for dt in range(4, 8): put(v47_at - 3 + (dt - 4), [vread(dt, 0), vread(dt, 1)])
        adv = ["v_add_u32 v%d, s%d, v%d" % (r, sDelta, r) for r in (vK, vVa, vVb)]
        tail = []
        if first:
            for t in range(NT):
                b = vS + 8 * t
                ops = rowmax(b) + ["v_add_f32 v%d, s%d, v%d" % (vT, sFl, vT)]
                ops += ["v_sub_f32 v%d, v%d, v%d" % (b + r, b + r, vT) for r in range(8)]
                ops += ["v_sub_f32 v%d, 0, v%d" % (vM + 4 * t + r, vT) for r in range(4)]
                ops += [EXP(b + r) for r in range(8)] + [CVT(b, r) for r in range(4)]
                lo = max(qk_end[t] + 3, [0, 21, 32][t]); hi = [20, 31, n - 1][t]
                for k, x in enumerate(ops): put(lo + k * (hi - lo + 1) // len(ops), [x])
            tail = adv
        else:
            groups = [(t, g) for t in range(NT) for g in sm(t)]
            lo = OPT["g0"]; span = n - lo
            for k, (t, g) in enumerate(groups):
                idx = lo + (k * span) // len(groups)
                assert t == TL or idx + 1 < pv_start[t], (t, idx)
                put(idx, g)
                if k % 12 == 11:
                    br = "s_cbranch_vccnz L_rare%d\nL_back%d:" % (t, t)
                    if t == 0: put(idx, [adv[0]])
                    if t == 1: put(idx, [adv[1]])
                    if t < TL: fill.setdefault(idx + 1, []).insert(0, br)
                    else: tail = [adv[2], "s_cmp_lt_u32 s%d, 16" % sCnt, br]
        put(pv_start[0] - 1, ["WAIT " + vr(F(Ga), 16)])
        put(pv_start[0] + 4, ["WAIT " + vr(F(Gb), 16)])
        a("s_barrier")
        if first and OPT["bst"] == 0:
            a("s_cmp_lg_u32 s%d, 1\ns_cbranch_scc1 L_bsx\ns_memrealtime s[76:77]\nL_bsx:" % sItem)
        for x in pre: a(x)
        for k, m in enumerate(mf):
            a(m)
            for x in fill.get(k, []): a(x)
        if not first:
            for _ in range(OPT["xmf"]): a("%s %s, %s, %s, 0" % (MF, vr(vT, 4), vr(F(0), 4), S(1, 0)))
        for x in tail: a(x)
    step(True)
    a.raw(".p2align 6")
    a.label("L_loop")
    step(False)
    a("s_cbranch_scc1 L_loop")
    a.label("L_bnd")
    if OPT["stamps"]:
        a("s_cmp_eq_u32 s%d, 0\ns_cbranch_scc0 L_st4" % sItem)
        stamp(a, 3); cstamp(a, 1)
        a("s_branch L_st4b")
        a.label("L_st4"); stamp(a, 4)
        a.label("L_st4b")
    bstamp(a, 1)
    a("s_cmp_eq_u32 s%d, 0" % sItem)
    a("s_cbranch_scc0 L_nomx")
    if OPT["mxf"]:
        a("s_mov_b64 exec, 1")
        a("v_mov_b32 v%d, %d\nv_mov_b32 v%d, 1" % (vT + 2, CNT, vT + 1))
        a("ds_add_u32 v%d, v%d offset:20" % (vT + 2, vT + 1))
        a.label("L_q2w")
        a("ds_read_b32 v%d, v%d offset:24" % (vT, vT + 2))
        a("s_waitcnt lgkmcnt(0)")
        a("v_readfirstlane_b32 s%d, v%d" % (sT, vT))
        a("s_cmp_lt_u32 s%d, 2\ns_cbranch_scc1 L_q2w" % sT)
        a("s_mov_b64 exec, -1")
    else:
        a("s_barrier")
    a("v_add_u32 v%d, s%d, v%d" % (vX2, sExch, vX1))
    for t in range(3):
        for s in range(4): a("ds_read_b128 %s, v%d offset:%d" % (Q(t, s), vX2, t * 4096 + s * 1024))
    pair_signal(a)
    a.label("L_nomx")
    bstamp(a, 2)
    a("s_lshl_b32 s%d, s%d, 12\ns_add_u32 s%d, s%d, %d" % (sT, sW, sT, sT, EX1))
    a("v_add_u32 v%d, s%d, v%d" % (vX2, sT, vX1))
    def send(t, areg, off):
        o = []
        for h in range(2):
            b = vO + 32 * t + 16 + 8 * h
            o += ["v_cvt_pk_bf16_f32 v%d, v%d, v%d" % (b + r, b + 2 * r, b + 2 * r + 1) for r in range(4)]
            o.append("ds_write_b128 v%d, %s offset:%d" % (areg, vr(b, 4), off + h * 1024))
        return o
    fin = [lsum(TL)] + [pv(TL, dt) for dt in (4, 5, 6, 7, 0, 1, 2, 3)]
    ex = send(0, vX2, 0) + send(1, vX2, 2048)
    for k, m in enumerate(fin):
        a(m)
        for x in ex[k * len(ex) // 9:(k + 1) * len(ex) // 9]: a(x)
    a("v_and_b32 v%d, 15, v0\nv_lshlrev_b32 v%d, 3, v%d" % (vT + 2, vT + 2, vT + 2))
    a("s_mul_i32 s%d, s%d, 384\ns_add_u32 s%d, s%d, %d" % (sT, sW, sT, sT, MLB))
    a("v_add_u32 v%d, s%d, v%d" % (vT + 3, sT, vT + 2))
    for t in range(3):
        a("v_mov_b32 v%d, v%d" % (vM + 4 * t + 1, vL + 4 * t))
        a("ds_write_b64 v%d, %s offset:%d" % (vT + 3, vr(vM + 4 * t, 2), t * 128))
    a("s_lshl_b32 s%d, s%d, 11\ns_add_u32 s%d, s%d, s%d" % (sT, sKg, sT, sT, sExch))
    a("v_add_u32 v%d, s%d, v%d" % (vX2, sT, vX1))
    a("s_waitcnt lgkmcnt(0)")
    pair_wait(a, "L_pw0", [])
    bstamp(a, 3)
    for x in send(2, vX2, 0): a(x)
    pair_signal(a)
    a("s_mul_i32 s%d, s%d, 384\ns_add_u32 s%d, s%d, %d" % (sT2, sPart, sT2, sT2, MLB))
    a("v_add_u32 v%d, s%d, v%d" % (vT + 3, sT2, vT + 2))
    a("v_xor_b32 v%d, 2048, v%d" % (vX2, vX2))
    a("s_lshl_b32 s%d, s%d, 12\ns_add_u32 s%d, s%d, %d" % (sT, sPart, sT, sT, EX1))
    a("v_add_u32 v%d, s%d, v%d" % (vT + 2, sT, vX1))
    a("s_waitcnt lgkmcnt(0)")
    rd = ["ds_read_b64 %s, v%d offset:%d" % (vr(vM + 4 * t + 2, 2), vT + 3, t * 128) for t in range(3)]
    for t in range(3):
        for h in range(2):
            rd.append("ds_read_b128 %s, v%d offset:%d" % (vr(vS + 8 * t + 4 * h, 4), vT + 2 if t < 2 else vX2, (t * 2048 if t < 2 else 0) + h * 1024))
    pair_wait(a, "L_pw", rd)
    bstamp(a, 4)
    for t in range(3):
        m = vM + 4 * t; l = vL + 4 * t
        a("v_min_f32 v%d, v%d, v%d" % (l, m, m + 2))
        a("v_sub_f32 v%d, v%d, v%d\nv_sub_f32 v%d, v%d, v%d" % (l + 1, l, m, l + 2, l, m + 2))
        a("v_exp_f32 v%d, v%d\nv_exp_f32 v%d, v%d" % (l + 1, l + 1, l + 2, l + 2))
        a("v_mul_f32 v%d, v%d, v%d" % (l + 3, l + 1, m + 1))
        a("v_fma_f32 v%d, v%d, v%d, v%d" % (l + 3, l + 2, m + 3, l + 3))
        a("v_rcp_f32 v%d, v%d" % (l, l + 3))
        a("v_mul_f32 v%d, v%d, v%d\nv_mul_f32 v%d, v%d, v%d" % (l + 3, l + 2, l, l + 2, l + 2, l))
        a("v_mul_f32 v%d, v%d, v%d\nv_mov_b32 v%d, v%d" % (l + 1, l + 1, l, l, l + 1))
    def combine(out):
        for t in range(3):
            l = vL + 4 * t
            for h in range(2):
                b = vO + 32 * t + 8 * h; u = b + 16; pk = vS + 8 * t + 4 * h
                for r in range(4):
                    a("v_lshlrev_b32 v%d, 16, v%d\nv_and_b32 v%d, 0xffff0000, v%d" % (u + 2 * r, pk + r, u + 2 * r + 1, pk + r))
                for r in range(0, 8, 2): a("v_pk_mul_f32 %s, %s, %s" % (vr(b + r, 2), vr(b + r, 2), vr(l, 2)))
                for r in range(0, 8, 2): a("v_pk_fma_f32 %s, %s, %s, %s" % (vr(b + r, 2), vr(u + r, 2), vr(l + 2, 2), vr(b + r, 2)))
                for r in range(4): a("v_cvt_pk_bf16_f32 v%d, v%d, v%d" % (pk + r, b + 2 * r, b + 2 * r + 1))
                out(t, h, pk)
    a("s_cmp_eq_u32 s%d, 0" % sItem)
    a("s_cbranch_scc0 L_att_done")
    combine(lambda t, h, pk: a("ds_write_b128 v%d, %s offset:%d" % (vT + 2 if t < 2 else vX2, vr(pk, 4), (t * 2048 if t < 2 else 0) + h * 1024)))
    bstamp(a, 5)
    a("s_mov_b32 s%d, 1\ns_lshl_b32 s%d, s%d, 12\ns_add_u32 s%d, s%d, %d" % (sItem, sExch, sRho, sExch, sExch, EX2))
    a("s_waitcnt lgkmcnt(0)")
    a("s_branch L_item")
    a.vm = []; a.lgkm = []
    for t in range(NT):
        b = vS + 8 * t
        a.label("L_rare%d" % t)
        a("s_nop 15")
        a("v_subrev_u32 v%d, s%d, v%d" % (vX2, sDelta, vK))
        for kt in range(2):
            for s in range(4):
                a("ds_read_b128 %s, v%d offset:%d" % (vr(vT, 4), vX2, kt * 4096 + s * 256))
                a("s_waitcnt lgkmcnt(0)")
                a("%s %s, %s, %s, %s" % (MF, S(t, kt), vr(vT, 4), Q(t, s), M(t) if s == 0 else S(t, kt)))
                a("s_nop 3")
        for x in rowmax(b): a(x)
        a("v_add_f32 v%d, s%d, v%d\nv_max_f32 v%d, 0, v%d" % (vT, sFl, vT, vT, vT))
        for r in range(8): a("v_sub_f32 v%d, v%d, v%d" % (b + r, b + r, vT))
        for r in range(4): a("v_sub_f32 v%d, v%d, v%d" % (vM + 4 * t + r, vM + 4 * t + r, vT))
        a("v_exp_f32 v%d, -v%d" % (vT + 1, vT))
        for r in range(4): a("v_mul_f32 v%d, v%d, v%d" % (vL + 4 * t + r, vL + 4 * t + r, vT + 1))
        for r in range(32): a("v_mul_f32 v%d, v%d, v%d" % (vO + 32 * t + r, vO + 32 * t + r, vT + 1))
        for r in range(8): a(EXP(b + r))
        for r in range(4): a(CVT(b, r))
        a("s_nop 3")
        a("s_branch L_back%d" % t)
    a.label("L_att_done")
    a("s_mov_b64 exec, 1")
    a("v_mov_b32 v%d, %d\nv_mov_b32 v%d, 1" % (vT + 2, CNT, vT + 1))
    a("ds_add_u32 v%d, v%d" % (vT + 2, vT + 1))
    a("s_mov_b64 exec, -1")
    combine(lambda t, h, pk: a("s_add_u32 s%d, s%d, %d\nbuffer_store_dwordx4 %s, v%d, %s, s%d offen%s" % (sT, sOoff, (h * 9 + t) * 1024, vr(pk, 4), vX1, SR(S_O), sT, POL[OPT["pols"]])))
    bstamp(a, 5)
    a("s_cmp_lt_u32 s%d, 2" % sW)
    a("s_cbranch_scc1 L_join")
    publish(a, "L_pub_x", vT)
    a("s_endpgm")
    a.label("L_join")
    a("s_mov_b32 s%d, s%d" % (sOpIdx, sW))
    a("s_lshl_b32 s%d, s%d, 14" % (sBlkP, sW))
    a("s_cmp_eq_u32 s%d, 0\ns_cselect_b32 s%d, %d, 0\ns_cselect_b32 s%d, 0, %d\ns_add_u32 s%d, s%d, s%d" % (sW, sBlkD, 64 * KB, sT, 116 * KB, sBlkD, sBlkD, sT))
    op_setup(a)
    publish(a, "L_pub_y", 100)
    bstamp(a, 6)
    stamp(a, 5)
    a("v_mov_b32 v96, %d" % CNT)
    a.label("L_w6")
    a("ds_read_b32 v98, v96")
    a("ds_read_b32 v97, v96 offset:12")
    a("s_waitcnt lgkmcnt(0)")
    a("v_readfirstlane_b32 s%d, v98\nv_readfirstlane_b32 s%d, v97" % (sT, sTag))
    a("s_cmp_lt_u32 s%d, 6\ns_cbranch_scc1 L_w6" % sT)
    a("s_or_b32 s%d, s%d, 0x%x" % (sWant, sTag, PHM))
    a("s_cmp_eq_u32 s60, 0\ns_cbranch_scc1 L_op_a_join\ns_branch L_op_b_join")
    a.vm = []; a.lgkm = []

def wo_touch(a, phase, i):
    a("s_and_b32 s%d, s%d, 1\ns_lshl_b32 s%d, s%d, 4\ns_add_u32 s%d, s%d, s%d" % (sT, sGo, sT, sT, sT, sT, sJo))
    a("s_lshr_b32 s%d, s%d, 1\ns_lshl_b32 s%d, s%d, 18\ns_and_b32 s%d, s%d, 1\ns_lshl_b32 s%d, s%d, 16\ns_add_u32 s%d, s%d, s%d" % (sT2, sT, sT2, sT2, sT, sT, sT, sT, sT, sT, sT2))
    a("s_and_b32 s%d, s%d, 1\ns_lshl_b32 s%d, s%d, 15\ns_add_u32 s%d, s%d, s%d" % (sT2, sW, sT2, sT2, sT, sT, sT2))
    a("s_add_u32 s%d, s%d, %d" % (sT2, sT, phase * 131072 + i * 8192))
    a.autowait = False
    a("buffer_load_dword v147, v146, %s, s%d offen" % (SR(S_WO), sT2), tag="x")
    a.autowait = True

def aux_step(a, step, pre=None, extra=None):
    a.wait_vm_tag("t%d" % step)
    a("s_barrier")
    if OPT["sst"] >= 0 and step >= OPT["sst"] and (step - OPT["sst"]) % OPT["sstd"] == 0 and (step - OPT["sst"]) // OPT["sstd"] < 6:
        k_ = 1 + (step - OPT["sst"]) // OPT["sstd"]
        a("s_memrealtime s[%d:%d]" % (64 + 2 * k_, 65 + 2 * k_))
    if OPT["ck"] and step in (1, 8, 15, 31):
        k_ = (1, 8, 15, 31).index(step)
        a("s_memrealtime s[%d:%d]\ns_memtime s[%d:%d]" % (64 + 4 * k_, 65 + 4 * k_, 66 + 4 * k_, 67 + 4 * k_))
    for ph in (0, 1):
        lst = [int(x) for x in OPT["tw%d" % ph].split(",") if x]
        for i, st_ in enumerate(lst):
            if st_ == step: wo_touch(a, ph, i)
    if pre: pre()
    nxt = step + 2
    if nxt < 32 and nxt != 18: kv_tile(a, nxt)
    if nxt == 18:
        for x, t in kv_ops(18)[OPT["early"]:]: a(x, tag=t)
    if step == OPT["pfm"]:
        a("s_lshl_b32 s%d, s%d, 4\ns_add_u32 s%d, s%d, s%d\ns_lshl_b32 s%d, s%d, 1\ns_and_b32 s%d, s%d, 1\ns_add_u32 s%d, s%d, s%d\ns_lshl_b32 s%d, s%d, 14" % (sT, sB, sT, sT, sJJ, sT, sT, sT2, sW, sT, sT, sT2, sT, sT))
        a.autowait = False
        a("buffer_load_dword v147, v146, %s, s%d offen" % (SR(S_WO), sT), tag="x")
        a("s_add_u32 s%d, s%d, 8192" % (sT, sT))
        a("buffer_load_dword v147, v146, %s, s%d offen" % (SR(S_WO), sT), tag="x")
        a.autowait = True
    if extra: extra()

def aux(a):
    if OPT["auxprio"]: a("s_setprio %d" % OPT["auxprio"])
    a("v_lshlrev_b32 v%d, 2, v14\nv_lshlrev_b32 v146, 7, v12" % vFo)
    a("s_lshl_b32 s%d, s%d, 4\nv_mov_b32 v%d, s%d" % (sT, sG, vDg, sT))
    a("s_lshl_b32 s%d, s%d, 4\nv_mov_b32 v%d, s%d\nv_cmp_eq_u32 vcc, 0, v12\nv_cndmask_b32 v%d, v%d, v%d, vcc" % (sT, sGo, vDg2, sT, vDg2, vDg2, vDg))
    a("s_sub_u32 s%d, s%d, 4" % (sOpIdx, sW))
    def ACC(t, d):
        i = t * 4 + d
        return 16 + 4 * i if i < 28 else 176 + 4 * (i - 28)
    BF = lambda t: vr(208 + 4 * t, 4)
    AF = lambda d: 156 + 4 * d
    sW2, sXq = 60, 61
    a("s_and_b32 s%d, s%d, 1" % (sT3, sW))
    a("v_lshrrev_b32 v9, 5, v12\nv_lshl_add_u32 v4, v15, 13, v4\nv_lshl_add_u32 v4, v9, 15, v4")
    a("s_lshl_b32 s%d, s%d, 9\ns_lshl_b32 s%d, s%d, 7\ns_add_u32 s%d, s%d, s%d\ns_add_u32 s%d, s%d, 256" % (sT, sJJ, sT2, sT3, sT, sT, sT2, sT, sT))
    a("v_add_u32 v4, s%d, v4" % sT)
    a("v_add_u32 v5, 64512, v4\nv_xor_b32 v5, 32, v5\nv_add_u32 v6, 129024, v4\nv_add_u32 v7, 129024, v5")
    a("s_mul_i32 s%d, s%d, %d\ns_add_u32 s%d, s%d, %d" % (sW2, sT3, 12 * KB, sW2, sW2, W2R))
    a("v_add_u32 v2, s%d, v2\nv_xor_b32 v3, 32, v2" % sW2)
    a("s_lshl_b32 s%d, s%d, 5\nv_xor_b32 v8, s%d, v8\nv_xor_b32 v9, 32, v8" % (sT, sT3, sT))
    a("s_mul_i32 s%d, s%d, 9" % (sXq, sT3))
    a("v_mov_b32 v10, %s\nv_mov_b32 v11, %s" % (f32(CSCALE), f32(CSCALE)))
    def chunk(m): a("s_add_u32 s%d, s%d, %d\ns_and_b32 s%d, s%d, 7" % (sT3, sRot, (6 + m) & 7, sT3, sT3))
    def w2_load(n):
        chunk(n // 2)
        a("s_lshl_b32 s%d, s%d, 19\ns_add_u32 s%d, s%d, %d\ns_add_u32 m0, s%d, %d" % (sT2, sT3, sT2, sT2, (n & 1) << 18, sW2, (n % 3) * 4096))
        for q in range(4):
            a("buffer_load_dwordx4 v%d, %s, s%d offen offset:%d%s lds" % (4 + q, SR(S_WQ), sT2, q * 1024, POL[OPT["polw"]]), tag="q%d" % n)
    def x2_load(m):
        chunk(m)
        a("s_lshl_b32 s%d, s%d, 7\ns_lshl_b32 s%d, s%d, 13\ns_add_u32 s%d, s%d, s%d\ns_lshl_b32 s63, s%d, 10" % (sT3, sT3, sT2, sXq, sT3, sT3, sT2, sXq))
        for e in range(9):
            a("s_add_u32 m0, s63, %d\ns_add_u32 s%d, s%d, %d" % (XB[m & 1] + e * 1024, sT2, sT3, e * 8192))
            a("buffer_load_dwordx4 v%d, %s, s%d offen%s lds" % (8 + (e & 1), SR(S_X), sT2, POL[OPT["polx"]]), tag="x%d" % m)
    AF2 = [172, 244, 248, 252]
    def q2_a(n, alt):
        a.wait_vm_tag("q%d" % n)
        for d in range(4):
            for rd in range(2):
                a("ds_read_b64_tr_b16 %s, v%d offset:%d" % (vr((AF2[d] if alt else AF(d)) + 2 * rd, 2), 3 if d & 1 else 2, (n % 3) * 4096 + rd * 512 + (d >> 1) * 256))
    def q2_b(n, t): a("ds_read_b128 %s, v1 offset:%d" % (BF(t), ((n // 2) & 1) * 18 * KB + t * 2048 + (n & 1) * 256))
    def q2_step(n, fill=(), chain=False, chained=False):
        A_ = (lambda d: AF2[d]) if chained else AF
        if not chained:
            q2_a(n, False)
            for t in range(9): q2_b(n, t)
            a("WAIT " + vr(AF(0), 16))
        else: a("WAIT " + " ".join(vr(r, 4) for r in AF2))
        if n + 3 < 16: w2_load(n + 3)
        if not chained: a("s_waitcnt lgkmcnt(0)")
        fi = 0
        def pack_ops(t):
            o = []
            for h in range(2):
                b = ACC(t, 2 * h)
                o += ["v_mul_f32 v%d, v10, v%d" % (b + r, b + r) for r in range(8)]
                o += ["v_cvt_pk_bf16_f32 v%d, v%d, v%d" % (b + r, b + 2 * r, b + 2 * r + 1) for r in range(4)]
            for h in range(2):
                b = ACC(t, 2 * h)
                o += ["v_permlane16_swap_b32 v%d, v%d" % (b, b + 2), "v_permlane16_swap_b32 v%d, v%d" % (b + 1, b + 3)]
            return o
        if n == 15 and OPT["p14"]: a("s_setprio %d" % OPT["p14"])
        for t in range(9):
            po = pack_ops(t - 2) if n == 15 and t >= 2 else []
            for d in range(4):
                c = vr(ACC(t, d), 4)
                a("%s %s, %s, %s, %s" % (MF, c, vr(A_(d), 4), BF(t), "0" if n == 0 else c))
                if chain and d == 3: q2_b(n + 1, t)
                if chain and t == 4 and d == 0: q2_a(n + 1, True)
                i = t * 4 + d
                if i >= 36 - OPT["q2mix"] * len(fill) and (36 - i) % OPT["q2mix"] == 0 and fi < len(fill):
                    a(fill[fi][0], tag=fill[fi][1]); fi += 1
                for x in po[7 * d:7 * d + 7]: a(x)
        assert fi == len(fill)
        if n == 15:
            for x in pack_ops(7) + pack_ops(8): a(x)
    sched = {}; n_ = 0
    for i_, c_ in enumerate(OPT["q2s"]):
        sched[i_ + 1] = list(range(n_, n_ + int(c_))); n_ += int(c_)
    assert n_ == 16 and len(OPT["q2s"]) <= 14
    at = {n: s_ for s_, l_ in sched.items() for n in l_}
    xiss = {m: at[2 * (m - 2) + 1] + 1 for m in range(2, 8)}
    for m in xiss: assert at[2 * m] > xiss[m], m
    QW = at[15] + 1
    def pre(step):
        if step == 0:
            for n in range(3): w2_load(n)
        for m in xiss:
            if xiss[m] == step: x2_load(m)
        ns = sched.get(step, [])
        ch = OPT["q2p"] and len(ns) == 2 and ns[0] % 2 == 0
        if ns and OPT["q2pr"] and ns[0] == 0: a("s_setprio %d" % OPT["q2pr"])
        for n in ns:
            if OPT["q2mix"] and n == ns[-1]:
                q2_step(n, kv_ops(step + 2), False, ch); KV_DONE.add(step + 2)
            else: q2_step(n, (), ch, False)
        if step == QW:
            a("s_and_b32 s%d, s%d, 1\ns_lshl_b32 s%d, s%d, 11\ns_add_u32 s%d, s%d, %d" % (sT, sW, sT, sT, sT, sT, Q2B))
            a("v_lshlrev_b32 v1, 4, v12\nv_add_u32 v2, s%d, v1" % sT)
            fr = [(t, h) for t in range(9) for h in range(2)]
            for t, h in fr: a("ds_write_b128 v2, %s offset:%d" % (vr(ACC(t, 2 * h), 4), t * 4096 + h * 1024))
            if OPT["mxf"]:
                a("s_mov_b64 exec, 1")
                a("v_mov_b32 v%d, %d\nv_mov_b32 v%d, 1" % (vA_, CNT, vB_))
                a("ds_add_u32 v%d, v%d offset:24" % (vA_, vB_))
                a("s_mov_b64 exec, -1")
            if OPT["p14"]: a("s_setprio %d" % OPT["auxprio"])
        if step == 18:
            a("s_cmp_lg_u32 s%d, 6\ns_cbranch_scc1 L_nopub" % sW)
            a("s_lshl_b32 s%d, s%d, 2\nv_mov_b32 v%d, s%d\nv_mov_b32 v%d, s%d" % (sT, sJJ, vA_, sT, vB_, sTagA))
            keep = list(a.vm)
            a("buffer_store_dword v%d, v%d, %s, 0 offen sc1" % (vB_, vA_, SR(S_FL)))
            a.vm = keep
            a.label("L_nopub")
    def extra(step):
        if step == 0:
            a("buffer_load_dword v%d, v%d, %s, 0 offen sc1" % (vFl, vFo, SR(S_FL)), tag="fl")
        if step == 3:
            cstamp(a, 0)
            a("s_lshl_b32 s%d, s%d, 3\ns_add_u32 s%d, s%d, s%d\ns_cmp_lg_u32 s%d, 6\ns_cbranch_scc1 L_nolead" % (sT, sJJ, sT, sT, sW, sT))
            a("v_lshrrev_b32 v%d, v14, v%d\nv_and_b32 v%d, 1, v%d\nv_cmp_eq_u32 vcc, 0, v%d" % (vFl, vFl, vFl, vFl, vFl))
            a("s_nop 1")
            a("s_and_b32 s%d, vcc_lo, 0xffff\ns_or_b32 s%d, s%d, 0x80000000" % (sT, sT, sT))
            a("v_mov_b32 v%d, s%d" % (vFl, sT))
            keep = list(a.vm)
            a("buffer_store_dword v%d, v%d, %s, 0 offen sc1" % (vFl, vDg, SR(S_DBG)))
            a.vm = keep
            a.label("L_nolead")
        if step == 9:
            a("buffer_load_dword v%d, v%d, %s, 0 offen sc1" % (vFl, vDg2, SR(S_DBG)), tag="fl")
        if step == 12:
            cstamp(a, 1)
            keep = list(a.vm)
            a.label("L_tag")
            a("v_cmp_eq_u32 vcc, 0, v%d" % vFl)
            a("s_cbranch_vccz L_tag_ok")
            a("s_sleep 8")
            a("buffer_load_dword v%d, v%d, %s, 0 offen sc1" % (vFl, vDg2, SR(S_DBG)))
            a("s_waitcnt vmcnt(0)")
            a("s_branch L_tag")
            a.label("L_tag_ok")
            a.vm = keep
            a("v_readlane_b32 s%d, v%d, 0\nv_readlane_b32 s%d, v%d, 1" % (sTagA, vFl, sTag, vFl))
            a("v_min_u32 v%d, 1, v12\nv_lshlrev_b32 v%d, 2, v%d\nv_add_u32 v%d, %d, v%d" % (vA_, vA_, vA_, vA_, TAGW, vA_))
            a("ds_write_b32 v%d, v%d" % (vA_, vFl))
            a("s_mov_b32 s%d, 0x%x\nv_mov_b32 v%d, s%d\nv_mov_b32 v%d, %d" % (sC, ((1 << (2 * (NIN + 1))) - 1) | (0x3f << 16), vB_, sC, vCl, CLAIM))
            a("ds_write_b32 v%d, v%d" % (vCl, vB_))
            a("s_or_b32 s%d, s%d, 0x%x" % (sWant, sTag, PHM))
            a("s_waitcnt lgkmcnt(0)")
        for m in xiss:
            if xiss[m] == step and at[2 * m] == step + 1: a.wait_vm_tag("x%d" % m)
        if step == 15:
            a("s_waitcnt lgkmcnt(0)")
            if OPT["mxf"] and not OPT["early"]: pass
            elif OPT["mxf"]:
                a("v_mov_b32 v%d, %d" % (vA_, CNT))
                a.label("L_mxw")
                a("s_sleep 1")
                a("ds_read_b32 v%d, v%d offset:20" % (vB_, vA_))
                a("s_waitcnt lgkmcnt(0)")
                a("v_readfirstlane_b32 s%d, v%d" % (sT, vB_))
                a("s_cmp_lt_u32 s%d, 6\ns_cbranch_scc1 L_mxw" % sT)
            else: a("s_barrier")
            for x, t in kv_ops(18)[:OPT["early"]]: a(x, tag=t)
        if step == 16:
            a("s_and_b32 s%d, s%d, 1" % (sT3, sW))
            a("s_mul_i32 s%d, s%d, %d\ns_add_u32 s%d, s%d, %d\nv_add_u32 v%d, s%d, v1" % (sT, sT3, 4096 if OPT["pair"] else 3 * 4096, sT, sT, EX1, vA_, sT))
            a("s_lshl_b32 s%d, s%d, 11\ns_add_u32 s%d, s%d, %d\nv_add_u32 v%d, s%d, v1" % (sT, sT3, sT, sT, Q2B, vB_, sT))
            fr = [(i, t, h) for i in range(3) for t in range(3) for h in range(2)]
            for n, (i, t, h) in enumerate(fr):
                if t < 2: a("ds_read_b128 %s, v%d offset:%d" % (vr(16 + 4 * n, 4), vA_, i * (8192 if OPT["pair"] else 4096) + t * 2048 + h * 1024))
                else: a("ds_read_b128 %s, v%d offset:%d" % (vr(16 + 4 * n, 4), vB_, i * 12 * KB + h * 1024))
            a("s_mul_i32 s%d, s%d, %d\ns_mul_i32 s%d, s%d, %d\ns_add_u32 s%d, s%d, %d\ns_sub_u32 s%d, s%d, s%d" % (sT2, sJJ, 8 * 9216, sT3, sT3, 2 * 9216, sT2, sT2, 2 * 9216, sT2, sT2, sT3))
            for n, (i, t, h) in enumerate(fr):
                a("s_add_u32 s%d, s%d, %d" % (sT, sT2, (h * 9 + 3 * i + t) * 1024))
                a("buffer_store_dwordx4 %s, v1, %s, s%d offen%s" % (vr(16 + 4 * n, 4), SR(S_O), sT, POL[OPT["pols"]]), tag="st")
            a("s_sub_u32 s%d, s%d, 6\ns_lshl_b32 s%d, s%d, 14\ns_add_u32 s%d, s%d, %d" % (sBlkP, sW, sBlkP, sBlkP, sBlkP, sBlkP, 96 * KB))
            a("s_mov_b32 s%d, 0x%x" % (sBlkD, (-64 * KB) & 0xffffffff))
            op_setup(a)
        if step == 17: a.wait_vm_tag("st")
    for step in range(19):
        aux_step(a, step, pre=lambda: pre(step), extra=lambda: extra(step))
    a("s_cmp_eq_u32 s60, 0\ns_cbranch_scc0 L_op_b_aux")

def code_touch(a, start, end, n, uniq):
    a("s_getpc_b64 s[88:89]")
    a.label(uniq)
    for i in range(n):
        a.items.append(a._mk("v_add_u32 v148, 0x1234, v146")); a.items[-1].text = "v_add_u32 v148, %s-%s+%d, v146" % (start, uniq, i * 8192)
        a.items.append(a._mk("v_min_i32 v148, 0x1234, v148")); a.items[-1].text = "v_min_i32 v148, %s-%s, v148" % (end, uniq)
        a("v_ashrrev_i32 v149, 31, v148")
        a("v_mov_b32 v151, s89\nv_add_co_u32 v150, vcc, s88, v148\nv_addc_co_u32 v151, vcc, v151, v149, vcc")
        a.autowait = False
        a("global_load_dword v147, v[150:151], off", tag="x")
        a.autowait = True

def op_setup(a):
    if OPT["tst"]: a("s_mov_b32 s62, 0")
    lanes(a)
    a("v_lshlrev_b32 v1, 4, v12\nv_add_u32 v8, 4096, v1")
    a("v_lshrrev_b32 v9, 5, v12")
    a("v_and_b32 v4, 3, v12\nv_lshlrev_b32 v5, 1, v9\nv_xor_b32 v4, v4, v5\nv_lshlrev_b32 v4, 4, v4")
    a("v_and_b32 v5, 1, v13")
    a("v_lshl_add_u32 v4, v5, 6, v4\nv_lshl_add_u32 v4, v15, 10, v4\nv_lshl_add_u32 v4, v9, 12, v4")
    a("v_and_b32 v2, 3, v12\nv_lshlrev_b32 v2, 3, v2\nv_lshl_add_u32 v2, v15, 6, v2\nv_lshl_add_u32 v2, v5, 5, v2\nv_lshl_add_u32 v2, v13, 9, v2")
    a("v_add_u32 v2, s%d, v2\nv_xor_b32 v3, 32, v2" % sBlkP)
    a("v_xor_b32 v%d, 1, v5\nv_lshlrev_b32 v%d, 30, v%d" % (vOr, vOr, vOr))
    for q in range(1, 4): a("v_add_u32 v%d, %d, v4" % (4 + q, 7168 * q))
    for r in range(176, 256, 2): a("v_mov_b64 %s, 0" % vr(r, 2))
    a("s_lshr_b32 s60, s%d, 3\ns_and_b32 s61, s%d, 7" % (sJo, sJo))
    a("s_mul_i32 s%d, s60, 5120\ns_lshl_b32 s%d, s61, 7" % (sOb, sWb))
    a("s_and_b32 s%d, s%d, 7" % (sOutOff, sGo))
    a("s_mul_i32 s%d, s%d, 144\ns_mul_i32 s%d, s60, 80\ns_add_u32 s%d, s%d, s%d\ns_lshl_b32 s%d, s%d, 11" % (sOutOff, sOutOff, sT, sOutOff, sOutOff, sT, sOutOff, sOutOff))
    a("s_lshl_b32 s%d, s%d, 10\ns_add_u32 s%d, s%d, s%d\ns_add_u32 s%d, s%d, s%d" % (sT, sBlk, sOutOff, sOutOff, sT, sOutOff, sOutOff, sWb))
    a("s_lshl_b32 s%d, s%d, 5\ns_add_u32 s%d, s%d, s%d" % (sT, sOpIdx, sOutOff, sOutOff, sT))
    a("v_lshlrev_b32 v10, 11, v14\nv_lshl_add_u32 v10, v13, 3, v10")
    a("s_and_b32 s%d, s%d, 1\ns_lshl_b32 s%d, s%d, 1\ns_add_u32 s%d, s%d, s60\ns_lshl_b32 s%d, s%d, 2" % (sT, sGo, sT, sT, sT, sT, sT, sT))
    a("s_lshl_b32 s%d, s61, 1\ns_add_u32 s%d, s%d, s%d" % (sT2, sRm, sT, sT2))
    a("v_add_u32 v11, s%d, v14\nv_and_b32 v11, 15, v11\nv_lshlrev_b32 v11, 2, v11" % sRm)
    a("v_mov_b32 v%d, %d" % (vCl, CLAIM))
    a("s_mul_i32 s%d, s%d, %d\ns_add_u32 s%d, s%d, 1024\ns_add_u32 s90, s100, s%d\ns_addc_u32 s91, s101, 0" % (sT, sGo, OSTR, sT, sT, sT))
    srd(a, S_OL, 90, 91, "%d" % (128 * 9216))
    a("s_lshl_b32 s%d, s%d, 8\ns_add_u32 s%d, s%d, 0x%x\ns_add_u32 s90, s100, s%d\ns_addc_u32 s91, s101, 0" % (sT, sGo, sT, sT, FLAG_OFF, sT))
    srd(a, S_FLL, 90, 91, "64")

def op_path(a, NR, role, vm0):
    lab = lambda s: "L_op_%s_%s" % (role, s)
    B = lambda k, t: vr(16 + ((k % 4) * 5 + t) * 4, 4)
    ACC = lambda t, ct: vr(176 + (t * 4 + ct) * 4, 4)
    G = NR + 4
    def offs(so, static=None):
        if static is not None:
            a("s_and_b32 s%d, s%d, 1\ns_add_u32 s%d, s%d, s%d\ns_add_u32 s%d, s%d, %d" % (sT, sW, sT, sT, sRm, sT, sT, 2 * static))
            a("s_and_b32 s%d, s%d, 15\ns_lshl_b32 s%d, s%d, 3" % (sT, sT, sT, sT))
        else:
            a("s_ff1_i32_b32 s%d, s%d" % (sT2, sBit))
            a("s_add_u32 s%d, s%d, s%d\ns_and_b32 s%d, s%d, 15\ns_lshl_b32 s%d, s%d, 3" % (sT, sT2, sRm, sT, sT, sT, sT))
            a("s_lshr_b32 s%d, s%d, 4\ns_lshl_b32 s%d, s%d, 2\ns_add_u32 s%d, s%d, s%d" % (sT2, sT2, sT2, sT2, sT, sT, sT2))
        a("s_mul_i32 s%d, s%d, 9216\ns_add_u32 s%d, s%d, s%d" % (so, sT, so, so, sOb))
        a("s_lshl_b32 s%d, s%d, 15\ns_add_u32 s%d, s%d, s%d" % (sWn, sT, sWn, sWn, sWb))
        ph = 1 if static is not None else 2
        if OPT["xo"] & ph: a("s_mov_b32 s%d, s%d" % (so, sOb))
        if OPT["xw"] & ph: a("s_mov_b32 s%d, s%d" % (sWn, sWb))
    def w_ops(n, blk=sBlkP):
        k = n % 4
        o = ["s_add_u32 m0, s%d, %d" % (blk, k * 4096), "s_add_u32 s%d, s%d, %d" % (sT2, sWn, k * 32768)]
        for q in range(4):
            o.append(("buffer_load_dwordx4 v%d, %s, s%d offen offset:%d%s lds" % (4 + q, SR(S_WO), sT2, q * 1024, POL[OPT["polwo"]]), "w%d" % n))
        return o
    def o_ops(n, so):
        k = n % 4
        o = ["s_add_u32 s%d, s%d, %d" % (sT3, so, k * 9216)]
        for t in range(NR):
            if t < 4: o.append(("buffer_load_dwordx4 %s, v1, %s, s%d offen offset:%d%s" % (B(k, t), SR(S_OL), sT3, t * 1024, POL[OPT["polo"]]), "o%d" % n))
            else: o.append(("buffer_load_dwordx4 %s, v8, %s, s%d offen%s" % (B(k, t), SR(S_OL), sT3, POL[OPT["polo"]]), "o%d" % n))
        return o
    def reads(n):
        k = n % 4; buf = 96 + 16 * (k & 1)
        return ["ds_read_b64_tr_b16 %s, v%d offset:%d" % (vr(buf + 4 * ct + 2 * rd, 2), 3 if ct & 1 else 2, k * 4096 + rd * 2048 + (ct >> 1) * 256)
                for ct in range(4) for rd in range(2)]
    def run(ops):
        for x in ops:
            a.autowait = False
            if isinstance(x, tuple): a(x[0], tag=x[1])
            else: a(x)
            a.autowait = True
    def wait_tags(*tags):
        need = None
        for k_, (t_, d_) in enumerate(a.vm):
            if t_ in tags: need = k_
        if need is not None: a("s_waitcnt vmcnt(%d)" % (len(a.vm) - 1 - need))
    FLOAD = "buffer_load_dword v9, v11, %s, 0 offen sc1" % SR(S_FLL)
    def ready():
        run(["v_or_b32 v9, v%d, v9" % vOr, "v_cmp_eq_u32 vcc, s%d, v9" % sWant, "s_nop 1", "s_mov_b32 s%d, vcc_lo" % sR])
        if OPT["nopoll"]: a("s_mov_b32 s%d, -1" % sR)
    def attempt():
        run(["s_sub_u32 s%d, 0, s%d" % (sT2, sT), "s_and_b32 s%d, s%d, s%d" % (sBit, sT, sT2),
             "v_mov_b32 v%d, s%d" % (vCb, sBit), "s_mov_b64 exec, 1", "ds_or_rtn_b32 v%d, v%d, v%d" % (vCr, vCl, vCb), "s_mov_b64 exec, -1"])
    def resolve(fail):
        run(["v_readfirstlane_b32 s%d, v%d" % (sT, vCr), "s_or_b32 s%d, s%d, s%d" % (sC, sC, sT), "s_or_b32 s%d, s%d, s%d" % (sC, sC, sBit),
             "s_and_b32 s%d, s%d, s%d" % (sT, sT, sBit), "s_cbranch_scc1 %s" % fail])
    def cands():
        run(["s_not_b32 s%d, s%d" % (sT2, sC), "s_and_b32 s%d, s%d, s%d" % (sT, sR, sT2), "s_cselect_b32 s%d, s%d, s%d" % (sT, sT, sT2)])
    def toggle(): return ["v_add_u32 v2, s%d, v2" % sBlkD, "v_add_u32 v3, s%d, v3" % sBlkD]
    def toggle_s(): return ["s_add_u32 s%d, s%d, s%d" % (sBlkP, sBlkP, sBlkD), "s_sub_u32 s%d, 0, s%d" % (sBlkD, sBlkD)]
    def kstep(n, hw, ho, wait, dyn=None):
        k = n % 4
        wait()
        a("s_waitcnt lgkmcnt(0)")
        if dyn and k == 0:
            keep = list(a.vm)
            run(["s_cmp_eq_u32 s%d, -1" % sR, "s_cbranch_scc1 %s" % lab("nf" + dyn), FLOAD]); a.label(lab("nf" + dyn))
            a.vm = keep
        if dyn and hw and k == 2: run(["ds_read_b32 v%d, v%d" % (vCr, vCl)])
        if dyn and k == 3:
            run(["s_cmp_eq_u32 s%d, -1" % sR, "s_cbranch_scc1 %s" % lab("nr" + dyn)]); ready(); a.label(lab("nr" + dyn))
            run(["s_mov_b32 s%d, s%d" % (sBc, sBn), "s_mov_b32 s%d, s%d" % (sBn, sBit)])
            if hw:
                run(["v_readfirstlane_b32 s%d, v%d" % (sT, vCr), "s_or_b32 s%d, s%d, s%d" % (sC, sC, sT)])
                cands(); attempt()
            run(toggle())
        fillers = (reads(n + 1) if (ho or k < 3) else []) + (w_ops(n + 4) if hw else []) + (o_ops(n + 3, sOc) if k == 0 else (o_ops(n + 3, sOn) if ho else []))
        buf = 96 + 16 * (k & 1)
        ms = ["%s %s, %s, %s, %s" % (MF, ACC(t, ct), vr(buf + 4 * ct, 4), B(k, t), ACC(t, ct)) for ct in range(4) for t in range(NR)]
        fi = 0
        for i, m in enumerate(ms):
            run([m])
            tgt = ((i + 1) * len(fillers) + len(ms) - 3) // (len(ms) - 2)
            while fi < min(tgt, len(fillers)):
                run([fillers[fi]]); fi += 1
        a.lgkm = []
        if k == 3:
            a("s_mov_b32 s%d, s%d" % (sOc, sOn))
            if dyn: run(["s_mov_b32 s%d, s%d" % (sOn, sOnn)] + toggle_s())
    a.vm = list(vm0)
    a.label(lab("aux"))
    s0 = OPT["s0"]; kp = [int(c) for c in OPT["kp"]]
    assert len(kp) == 32 - s0 and s0 >= 22
    cnt = [0]
    def pre(step):
        def f():
            if step == 19 and OPT["cpf"] & 1: code_touch(a, lab("aux"), lab("retry"), 2, lab("c1"))
            if step == 28 and OPT["cpf"] & 2:
                code_touch(a, lab("retry"), lab("fin"), 1, lab("c2"))
                code_touch(a, "L_bnd", "L_auxrole", 1, lab("c3"))
            if step == s0 - 3: offs(sOc, 0); run(w_ops(0) + w_ops(1))
            if step == s0 - 2:
                run([(FLOAD, "fl")])
                run(w_ops(2) + w_ops(3))
            if step == s0 - 1:
                wait_tags("fl")
                keep = list(a.vm)
                a.label(lab("f1"))
                ready()
                a("s_andn2_b32 s%d, 0x%x, s%d" % (sT, (1 << (2 * (NIN + 1))) - 1, sR))
                a("s_cbranch_scc0 %s" % lab("f1ok"))
                run(["s_sleep %d" % OPT["slp"], FLOAD, "s_waitcnt vmcnt(0)", "s_branch %s" % lab("f1")])
                a.label(lab("f1ok"))
                a.vm = keep
                run(o_ops(0, sOc) + o_ops(1, sOc) + o_ops(2, sOc))
                wait_tags("w0"); run(reads(0))
            if step == 31:
                if OPT["auxprio"]: a("s_setprio 0")
                run([(FLOAD, "fl")])
            if step >= s0:
                for _ in range(kp[step - s0]):
                    n = cnt[0]
                    if n % 4 == 0: offs(sOn, n // 4 + 1)
                    kstep(n, True, True, lambda: wait_tags("o%d" % n, "w%d" % (n + 1))); cnt[0] += 1
        return f
    for step in range(19, 32): aux_step(a, step, pre=pre(step))
    stamp(a, 3)
    a("s_and_b32 s%d, s%d, 1\ns_lshl_b32 s%d, 0x10000, s%d\ns_mov_b32 s%d, s%d" % (sT, sW, sBit, sT, sBn, sBit))
    offs(sOn)
    a("s_add_u32 s63, s%d, s%d" % (sBlkP, sBlkD))
    for n in range(4): run(w_ops(n, 63))
    wait_tags("fl", "o%d" % (cnt[0] + 2), "w%d" % (cnt[0] + 3))
    ready()
    a.vm = []
    a.label(lab("retry"))
    cands(); attempt()
    a.raw(".p2align 3")
    a.label(lab("top"))
    if OPT["tst"]:
        for r in range(6):
            a("s_cmp_lg_u32 s62, %d\ns_cbranch_scc1 %s\ns_memrealtime s[%d:%d]\n%s:" % (r, lab("ts%d" % r), 66 + 2 * r, 67 + 2 * r, lab("ts%d" % r)))
        a("s_add_u32 s62, s62, 1")
    a("s_waitcnt lgkmcnt(0)")
    a("s_cmp_eq_u32 s%d, 0\ns_cbranch_scc1 %s" % (sBit, lab("now")))
    resolve(lab("retry"))
    offs(sOnn)
    def body(hw, ho):
        g0 = 4 * hw + NR; g = 4 * hw + NR * ho
        for k in range(4): kstep(k, hw, ho, lambda: a("s_waitcnt vmcnt(%d)" % [2 * g0, 2 * g0, g0 + g, 2 * g][k]), dyn="%d%d" % (hw, ho))
        a("s_branch %s" % lab("top" if ho else "wait"))
    a("s_and_b32 s%d, s%d, s%d\ns_cbranch_scc0 %s" % (sT, sR, sBn, lab("b10")))
    body(1, 1)
    a.label(lab("b10")); body(1, 0)
    a.label(lab("now"))
    a("s_and_b32 s%d, s%d, s%d\ns_cbranch_scc0 %s" % (sT, sR, sBn, lab("b00")))
    body(0, 1)
    a.label(lab("b00")); body(0, 0)
    a.vm = []
    a.label(lab("join"))
    run([FLOAD])
    a("s_lshl_b32 s%d, 0x40000, s%d\ns_mov_b32 s%d, s%d" % (sBit, sW, sBc, sBit))
    offs(sOc)
    for n in range(4): run(w_ops(n))
    a("s_lshl_b32 s%d, 0x100000, s%d\ns_mov_b32 s%d, s%d" % (sBit, sW, sBn, sBit))
    offs(sOn)
    a("s_add_u32 s63, s%d, s%d" % (sBlkP, sBlkD))
    for n in range(4): run(w_ops(n, 63))
    run(["ds_read_b32 v%d, v%d" % (vCr, vCl), "s_waitcnt vmcnt(32) lgkmcnt(0)", "v_readfirstlane_b32 s%d, v%d" % (sC, vCr)])
    ready()
    cands(); attempt()
    a.label(lab("wait"))
    a("s_and_b32 s%d, s%d, s%d\ns_cbranch_scc1 %s" % (sT, sR, sBc, lab("go")))
    a("s_and_b32 s%d, s%d, s%d\ns_cbranch_scc1 %s" % (sT, sR, sBn, lab("swap")))
    a("s_or_b32 s%d, s%d, s%d\ns_cbranch_scc0 %s" % (sT, sBc, sBn, lab("done")))
    run(["s_sleep %d" % OPT["slp"], FLOAD, "s_waitcnt vmcnt(0)"])
    ready()
    a("s_branch %s" % lab("wait"))
    a.label(lab("swap"))
    run(["s_mov_b32 s%d, s%d" % (sT, sBc), "s_mov_b32 s%d, s%d" % (sBc, sBn), "s_mov_b32 s%d, s%d" % (sBn, sT),
         "s_mov_b32 s%d, s%d" % (sT, sOc), "s_mov_b32 s%d, s%d" % (sOc, sOn), "s_mov_b32 s%d, s%d" % (sOn, sT)] + toggle() + toggle_s())
    a.label(lab("go"))
    stamp(a, 6)
    run(o_ops(0, sOc) + o_ops(1, sOc) + o_ops(2, sOc))
    a("s_waitcnt vmcnt(%d)" % (3 * NR))
    run(reads(0))
    a("s_waitcnt vmcnt(0)")
    a("s_branch %s" % lab("top"))
    a.label(lab("done"))
    a("s_nop 7")
    a.vm = []; a.lgkm = []
    stamp(a, 1)
    a("s_add_u32 s%d, s%d, s%d\ns_min_u32 s%d, s%d, s%d\ns_max_u32 s%d, s%d, s%d" % (sT, sBlkP, sBlkD, sT2, sT, sBlkP, sT3, sT, sBlkP))
    a("v_add_u32 v9, s%d, v1\nv_add_u32 v8, s%d, v1" % (sT2, sT3))
    for t in range(NR):
        for ct in range(4): a("ds_write_b128 v%d, %s offset:%d" % (9 if ct < 2 else 8, ACC(t, ct), (ct & 1) * 8192 + t * 1024))
    a("s_and_b32 s%d, s%d, 1\ns_lshl_b32 s%d, s%d, 13\ns_cmp_lt_u32 s%d, 2" % (sT, sOpIdx, sT, sT, sOpIdx))
    a("s_cselect_b32 s%d, 0, %d\ns_cselect_b32 s%d, %d, %d" % (sT2, 64 * KB, sT3, 16 * KB, 0) + "\ns_cselect_b32 s63, 0, %d" % (132 * KB))
    a("s_add_u32 s%d, s%d, s%d\ns_add_u32 s%d, s%d, s%d\ns_add_u32 s%d, s%d, s63" % (sT2, sT2, sT, sT3, sT3, sT, sT3, sT3))
    a("v_add_u32 v9, s%d, v1\nv_add_u32 v8, s%d, v1" % (sT2, sT3))
    a("s_waitcnt lgkmcnt(0)")
    a("s_barrier")
    for t in range(NR):
        for w in range(4):
            a("ds_read_b128 %s, v%d offset:%d" % (vr(16 + (t * 4 + w) * 4, 4), 8 if w == 1 else 9, [0, 0, 32 * KB, 48 * KB][w] + t * 1024))
    for t in range(NR):
        b = 16 + t * 16
        for r in range(0, 4, 2):
            a("v_pk_add_f32 %s, %s, %s" % (vr(b + r, 2), vr(b + r, 2), vr(b + 4 + r, 2)))
            a("v_pk_add_f32 %s, %s, %s" % (vr(b + 8 + r, 2), vr(b + 8 + r, 2), vr(b + 12 + r, 2)))
            a("v_pk_add_f32 %s, %s, %s" % (vr(b + r, 2), vr(b + r, 2), vr(b + 8 + r, 2)))
        a("v_cvt_pk_bf16_f32 v%d, v%d, v%d\nv_cvt_pk_bf16_f32 v%d, v%d, v%d" % (b, b, b + 1, b + 1, b + 2, b + 3))
        a("s_add_u32 s%d, s%d, %d" % (sT, sOutOff, t * 32768))
        a("buffer_store_dwordx2 %s, v10, %s, s%d offen%s" % (vr(b, 2), SR(S_OUT), sT, POL[OPT["polout"]]))
    if OPT["stamps"]:
        a("s_waitcnt vmcnt(0)")
        stamp(a, 7)
        stamp_store(a)
    a.label(lab("fin"))
    a("s_endpgm")
    a.vm = []; a.lgkm = []

def kernel():
    a = Asm()
    a.raw(".globl %s\n.p2align 8\n.type %s,@function" % (NAME, NAME)); a.label(NAME)
    a("s_cmp_ge_u32 s2, 256\ns_cbranch_scc1 L_end")
    if OPT["stamps"]:
        for k in range(1 if OPT["pst"] else NST): a("s_memrealtime s[%d:%d]" % (64 + 2 * k, 65 + 2 * k))
    a("s_and_b32 s%d, s2, 7\ns_lshr_b32 s%d, s2, 3\ns_lshr_b32 s%d, s%d, 2" % (sT, sT2, sBlk, sT))
    a("s_mul_i32 s%d, s%d, 40" % (sT3, sBlk))
    a("s_add_u32 s4, s0, s%d\ns_addc_u32 s5, s1, 0" % sT3)
    a("s_load_dwordx8 s[80:87], s[4:5], 0")
    a("s_load_dwordx2 s[88:89], s[4:5], 32")
    a("s_load_dwordx4 s[96:99], s[0:1], 80")
    a("s_load_dwordx2 s[92:93], s[0:1], 96")
    a("s_lshr_b32 s%d, s%d, 4\ns_lshl_b32 s%d, s%d, 1\ns_add_u32 s%d, s%d, s%d" % (sGo, sT2, sT3, sT, sGo, sGo, sT3))
    a("s_and_b32 s%d, s%d, 15" % (sJo, sT2))
    if OPT["map"] == 0:
        a("s_mov_b32 s%d, s%d\ns_mov_b32 s%d, s%d\ns_and_b32 s%d, s%d, 7" % (sG, sGo, sJJ, sJo, sB, sGo))
        a("s_and_b32 s%d, s%d, 1\ns_lshl_b32 s%d, s%d, 2\ns_add_u32 s%d, s%d, s%d" % (sRot, sG, sRot, sRot, sRot, sRot, sJJ))
    elif OPT["map"] == 1:
        a("s_and_b32 s%d, s%d, 7\ns_and_b32 s%d, s%d, 1\ns_lshl_b32 s%d, s%d, 3\ns_add_u32 s%d, s%d, s%d" % (sRot, sT2, sJJ, sT, sJJ, sJJ, sJJ, sJJ, sRot))
        a("s_lshr_b32 s%d, s%d, 3\ns_lshl_b32 s%d, s%d, 1\ns_add_u32 s%d, s%d, s%d" % (sB, sT2, sT3, sB, sRot, sRot, sT3))
        a("s_and_b32 s%d, s%d, 2\ns_lshl_b32 s%d, s%d, 1\ns_add_u32 s%d, s%d, s%d" % (sT3, sT, sT3, sT3, sB, sB, sT3))
        a("s_lshl_b32 s%d, s%d, 3\ns_add_u32 s%d, s%d, s%d" % (sG, sBlk, sG, sG, sB))
    else:
        a("s_and_b32 s%d, s%d, 3\ns_and_b32 s%d, s%d, 3\ns_lshl_b32 s%d, s%d, 2\ns_add_u32 s%d, s%d, s%d" % (sRot, sT2, sJJ, sT, sJJ, sJJ, sJJ, sJJ, sRot))
        a("s_lshr_b32 s%d, s%d, 2\ns_lshl_b32 s%d, s%d, 1\ns_add_u32 s%d, s%d, s%d" % (sB, sT2, sRot, sRot, sRot, sRot, sB))
        a("s_lshl_b32 s%d, s%d, 3\ns_add_u32 s%d, s%d, s%d" % (sG, sBlk, sG, sG, sB))
    a("v_lshrrev_b32 v12, 6, v0")
    a("v_readfirstlane_b32 s%d, v12" % sW)
    a("s_mul_i32 s62, s%d, 147456" % sB)
    def code_pf():
        a("s_getpc_b64 s[90:91]")
        a.label("L_pf")
        if OPT["pfw"]:
            a("s_lshr_b32 s%d, s2, 3\ns_and_b32 s%d, s%d, 3\ns_min_u32 s%d, s%d, 2\ns_lshl_b32 s%d, s%d, 15" % (sT, sT, sT, sT, sT, sT, sT))
            a("v_lshlrev_b32 v240, 7, v0\nv_add_u32 v240, s%d, v240" % sT)
        else: a("v_lshlrev_b32 v240, 7, v0")
        a.items.append(a._mk("v_min_u32 v240, 0x1234, v240")); a.items[-1].text = "v_min_u32 v240, L_end-L_pf, v240"
        if OPT["pfw"] == 2: a("s_cmp_ge_u32 s2, 32\ns_cbranch_scc1 L_nopf")
        a("global_load_dword v253, v240, s[90:91]")
        if OPT["pfw"] == 2: a.label("L_nopf")
    if not OPT["pfw"]: code_pf()
    if OPT["fast0"]:
        loader_setup(a)
        if OPT["pst"]: a("s_memrealtime s[66:67]")
        srds_first(a)
        if OPT["pst"]: a("s_memrealtime s[68:69]")
        a("s_cmp_lt_u32 s%d, 4\ns_cbranch_scc1 L_arole" % sW)
        st0 = (list(a.lgkm), list(a.vm))
        for x, t in stage_ops_(0, 4): a(x, tag=t)
        st = (list(a.lgkm), list(a.vm))
        a("s_cmp_ge_u32 s%d, 6\ns_cbranch_scc1 L_auxrole\ns_branch L_brole" % sW)
        a.label("L_arole")
        a.lgkm, a.vm = list(st0[0]), list(st0[1])
    else:
        a("s_cmp_ge_u32 s%d, 6\ns_cbranch_scc1 L_auxrole" % sW)
        st = (list(a.lgkm), list(a.vm))
        a("s_cmp_ge_u32 s%d, 4\ns_cbranch_scc1 L_brole" % sW)
    if OPT["pfw"]: code_pf()
    head(a, "A")
    a("s_branch L_att")
    a.lgkm, a.vm = list(st[0]), list(st[1])
    a.raw(".p2align 3"); a.label("L_brole")
    head(a, "B")
    a.label("L_att")
    attention(a)
    a.lgkm, a.vm = list(st[0]), list(st[1])
    a.raw(".p2align 3"); a.label("L_auxrole")
    head(a, "X")
    aux(a)
    vm0 = list(a.vm)
    op_path(a, 5, "a", vm0)
    op_path(a, 4, "b", vm0)
    a.label("L_end"); a("s_endpgm")
    a.pad_hazards()
    a.check_backedge("L_loop", "s_cbranch_scc1 L_loop")
    a.align8()
    return a.text()

out = []
out.append("; " + " ".join(sys.argv[1:]) + " : fused Q-projection + attention + O-projection, one launch (generated by dev/gen11.py)")
out.append("; @launch grid=(256,1,1) block=(512,1,1) lds=163840")
out.append('.amdgcn_target "amdgcn-amd-amdhsa--gfx950"\n.text')
out.append(kernel())
out.append('.section .rodata,"a"\n.p2align 6')
out.append(""".amdhsa_kernel %s
  .amdhsa_next_free_vgpr 256
  .amdhsa_next_free_sgpr 102
  .amdhsa_accum_offset 256
  .amdhsa_group_segment_fixed_size 0
  .amdhsa_kernarg_size 104
  .amdhsa_user_sgpr_count 2
  .amdhsa_user_sgpr_kernarg_segment_ptr 1
  .amdhsa_system_sgpr_workgroup_id_x 1
.end_amdhsa_kernel
""" % NAME)
print("\n".join(out))
```

```python
import sys, math, struct
sys.path.insert(0, "dev")
from asmlib import *

OPT = dict(stamps=0, samekv=0, clk=0, hst=0, nopoll=0, polo=2, polw=0, polx=0, polwo=0, pols=2, polkv=1, slp=4, lo=2,
           auxprio=0, sbs=1, s0=22, kp="3333333322", sst=-1, sstd=1, xo=0, xw=0, map=2, park=2, hprio=1, kv0=5, kv1=6, pk14=0, ck=0, polout=0, ptouch=0, tw0="", tw1="", g0=15, cap=0, capto=16, nol=0, q2mix=2, bst=-1, bw=0, pair=1, mxf=1, p14=1, early=8, tst=0, cpf=1, pfm=-1, pst=0, pfw=1, fast0=1, q2s="22111111111111", q2p=1, q2pr=0, kvc=0, xmf=0, cls=0, capl=0, capl0=2, capl1=17, pubat=18, st1=0, hb=3, k1a=8, k1b=8, pad=0, ypr=0)
for a_ in sys.argv[1:]:
    k, v = a_.split("="); assert k in OPT, k; OPT[k] = v if k in ("kp", "tw0", "tw1", "q2s") else int(v)

NAME = "concat_heads__mha_block_cached__gqa_block_cached__near_ridge_kernel"
def f32(x): return "0x%08x" % struct.unpack("<I", struct.pack("<f", x))[0]
CSCALE = math.log2(math.e) / math.sqrt(128.0)
THR = 8.0
KB = 1024
SLOT = 32 * KB
XB = [96 * KB, 114 * KB, 132 * KB]
WB = [32 * KB, 48 * KB, 0]
Q2B = 96 * KB; Q1A = 132 * KB; Q1C = 32 * KB; EX1 = 132 * KB; EX2 = 80 * KB; W2R = 132 * KB
MLB = 156 * KB; CNT = 160 * KB - 128; TAGW = CNT + 8; CLAIM = CNT + 16; PFL = CNT + 32
STAMP_OFF = 0x10000000; FLAG_OFF = 0x2000000
PHM = 0x40000000
OSTR = 128 * 9216 + 1024
MF = "v_mfma_f32_16x16x32_bf16"
NST = 8
POL = ["", " nt", " sc1", " sc0 sc1", " sc1 nt"]
NIN = sum(int(c) for c in OPT["kp"]) // 4
assert NIN * 4 == sum(int(c) for c in OPT["kp"]) and NIN <= 7

HD = OPT["hb"]
HX = XB if HD == 3 else [64 * KB, 132 * KB, 96 * KB, 114 * KB]
HW = WB if HD == 3 else [0, 16 * KB, 32 * KB, 48 * KB]
SPLIT = OPT["pubat"] + 1
S_FL, S_WQ, S_X, S_O, S_KV, S_WO, S_OUT, S_DBG = 4, 8, 12, 16, 20, 24, 28, 32
S_OL, S_FLL = 8, 12
sW, sG, sJJ, sBlk, sB, sRot, sT, sT2, sT3 = 36, 37, 38, 39, 40, 41, 42, 43, 44
sCnt, sThr, sFl, sSlot, sDelta, sItem, sExS, sBar, sExch, sOoff = 45, 46, 47, 48, 49, 50, 51, 52, 53, 54
sNeg, sPos, sPart, sKg, sRho = 55, 56, 57, 59, 62
sHk, sHo = 46, 47
sOc, sOn, sWn, sBlkP, sRm, sBit, sR, sC = 46, 47, 48, 49, 51, 52, 55, 56
sBlkD, sBc, sBn, sOnn = 45, 53, 58, 86
sOb, sWb, sOutOff, sOpIdx, sTag, sWant, sTagA = 80, 81, 82, 83, 84, 85, 87
sGo, sJo = 94, 95

def srd(a, d, lo, hi, nrec):
    a("s_mov_b32 s%d, s%d\ns_mov_b32 s%d, s%d" % (d, lo, d + 1, hi))
    a("s_mov_b32 s%d, %s\ns_mov_b32 s%d, 0x20000" % (d + 2, nrec, d + 3))
def SR(d): return "s[%d:%d]" % (d, d + 3)

def cstamp(a, e):
    if OPT["clk"]: a("s_memtime s[%d:%d]\ns_memrealtime s[%d:%d]" % (66 + 2 * e, 67 + 2 * e, 70 + 2 * e, 71 + 2 * e))
def stamp(a, k, hs=False):
    if not OPT["stamps"] or OPT["ck"]: return
    if OPT["clk"] and 1 <= k <= 4: return
    if (OPT["sst"] >= 0 or OPT["bst"] >= 0 or OPT["tst"] or OPT["pst"]) and k and k != 7: return
    if OPT["hst"] and k and not hs: return
    if hs and not OPT["hst"]: return
    a("s_memrealtime s[%d:%d]" % (64 + 2 * k, 65 + 2 * k))
BSN = [0]
def bstamp(a, k):
    if OPT["bst"] < 0: return
    BSN[0] += 1
    a("s_cmp_lg_u32 s%d, %d\ns_cbranch_scc1 L_bs%d\ns_memrealtime s[%d:%d]\nL_bs%d:" % (sItem, OPT["bst"], BSN[0], 64 + 2 * k, 65 + 2 * k, BSN[0]))
def stamp_store(a):
    a("s_waitcnt vmcnt(0) lgkmcnt(0)")
    a("s_cmp_eq_u32 s%d, 6\ns_cselect_b32 s%d, 256, 0" % (sW, sT))
    a("s_mul_i32 s%d, s%d, 43\ns_lshr_b32 s%d, s%d, 8\ns_mul_i32 s%d, s%d, 6" % (sT2, sW, sT2, sT2, sT2, sT2))
    a("s_cmp_lg_u32 s%d, s%d\ns_cbranch_scc1 L_end" % (sT2, sW))
    a("s_add_u32 s96, s100, 0x%x\ns_addc_u32 s97, s101, 0" % STAMP_OFF)
    a("s_mov_b32 s98, 0x100000\ns_mov_b32 s99, 0x20000")
    a("s_add_u32 s3, s2, s%d\ns_mul_i32 s3, s3, %d" % (sT, NST * 8))
    a("v_mov_b32 v12, s3\ns_mov_b64 exec, 1")
    for k in range(NST):
        a("v_mov_b32 v14, s%d\nv_mov_b32 v15, s%d" % (64 + 2 * k, 65 + 2 * k))
        a("buffer_store_dwordx2 v[14:15], v12, s[96:99], 0 offen offset:%d" % (8 * k))
        a("s_nop 1")

def lanes(a):
    a("v_and_b32 v12, 63, v0\nv_lshrrev_b32 v13, 4, v12\nv_and_b32 v14, 15, v12\nv_bfe_u32 v15, v12, 2, 2")

vK, vVa, vVb = 1, 2, 3
vX1, vX2, vX3, vX4 = 4, 5, 6, 7
vONE, vT, vQ, vO, vL, vM, vS, vF = 8, 12, 16, 64, 160, 172, 184, 208
def Q(t, s): return vr(vQ + 16 * t + 4 * s, 4)
def O(t, dt): return vr(vO + 32 * t + 4 * dt, 4)
def L(t): return vr(vL + 4 * t, 4)
def M(t): return vr(vM + 4 * t, 4)
def S(t, kt): return vr(vS + 8 * t + 4 * kt, 4)
def F(i): return vF + 4 * i
vD = 128
vFo, vDg, vDg2, vFl, vA_, vB_, vOr, vCl, vCr, vCb = 136, 137, 138, 139, 140, 141, 142, 143, 144, 145

sKo = 50
S_V = 96
CAPN = [0]
def kv_ops(tile):
    slot = (tile + 2) % 3
    o = []
    for grp in range(4):
        for q in range(4):
            if OPT["kvc"]:
                pre_ = "s_add_u32 m0, s%d, %d\ns_add_u32 s%d, s%d, %d\n" % (sKg, slot * SLOT + (grp >> 1) * 16384 + (grp & 1) * 4096, sKo, sKg, tile * 16384 + (grp & 1) * 4096) if q == 0 else ""
                sr_ = SR(S_V if grp >= 2 else S_KV)
            else:
                pre_ = "s_add_u32 m0, s%d, %d\ns_mov_b32 s%d, %d\n" % (sKg, slot * SLOT + grp * 4096, sKo, tile * 16384 + grp * 4096) if q == 0 else ""
                sr_ = SR(S_KV)
            if q == 0 and OPT["capl"] and OPT["capl0"] <= tile <= OPT["capl1"]:
                CAPN[0] += 1
                pre_ = "s_cmp_eq_u32 s3, 0\ns_cbranch_scc1 L_cap%d\nRAW s_waitcnt vmcnt(%d)\nL_cap%d:\n" % (CAPN[0], OPT["capl"] - 4, CAPN[0]) + pre_
            o.append((pre_ + "buffer_load_dwordx4 v%d, %s, s%d offen offset:%d%s lds" % (vD + q + (4 if grp >= 2 else 0), sr_, sKo, q * 1024, POL[OPT["polkv"]]), "t%d" % tile))
    return o
KV_DONE = set()
def kv_tile(a, tile):
    if tile in KV_DONE and tile < 17: return
    for x, t in kv_ops(tile): a(x, tag=t)

def srds_first(a):
    a("s_waitcnt lgkmcnt(0)")
    srd(a, S_WQ, 86, 87, "%d" % (512 * 8192))
    a("s_add_u32 s80, s80, s62\ns_addc_u32 s81, s81, 0")
    srd(a, S_X, 80, 81, "147456")

def srds_rest(a):
    a("s_mul_i32 s%d, s%d, %d\ns_add_u32 s%d, s%d, 1024\ns_add_u32 s90, s92, s%d\ns_addc_u32 s91, s93, 0" % (sT, sG, OSTR, sT, sT, sT))
    srd(a, S_O, 90, 91, "%d" % (128 * 9216))
    if not OPT["kvc"]: a("s_cmp_eq_u32 s%d, 6\ns_cselect_b32 s82, s82, s84\ns_cselect_b32 s83, s83, s85" % sW)
    a("s_lshl_b32 s%d, s%d, 4\ns_add_u32 s%d, s%d, s%d" % (sT, sB, sT, sT, sJJ))
    if OPT["samekv"]: a("s_mov_b32 s%d, 0" % sT)
    a("s_lshl_b32 s%d, s%d, 19" % (sT, sT))
    a("s_add_u32 s82, s82, s%d\ns_addc_u32 s83, s83, 0" % sT)
    srd(a, S_KV, 82, 83, "524288")
    srd(a, S_WO, 88, 89, "%d" % (4096 * 1024))
    srd(a, S_OUT, 96, 97, "%d" % (8 * 144 * 1024 * 2))
    srd(a, S_DBG, 98, 99, "256")
    if OPT["kvc"]:
        a("s_add_u32 s84, s84, s%d\ns_addc_u32 s85, s85, 0" % sT)
        srd(a, S_V, 84, 85, "524288")
    a("s_lshl_b32 s%d, s%d, 8\ns_add_u32 s%d, s%d, 0x%x\ns_add_u32 s90, s92, s%d\ns_addc_u32 s91, s93, 0" % (sT, sG, sT, sT, FLAG_OFF, sT))
    srd(a, S_FL, 90, 91, "64")
    a("s_mov_b32 s100, s92\ns_mov_b32 s101, s93")
    if OPT["pair"]: a("s_and_b32 s%d, s%d, 1\ns_lshr_b32 s%d, s%d, 1" % (sKg, sW, sRho, sW))
    else: a("s_cmp_ge_u32 s%d, 3\ns_cselect_b32 s%d, 1, 0\ns_mul_i32 s%d, s%d, 3\ns_sub_u32 s%d, s%d, s%d" % (sW, sKg, sT, sKg, sRho, sW, sT))
    a("v_and_b32 v236, 31, v0\nv_lshlrev_b32 v236, 2, v236\nv_add_u32 v236, %d, v236\nv_mov_b32 v234, 0" % CNT)
    a("ds_write_b32 v236, v234")

def q_pack(a, b, scale):
    for r in range(0, 8, 2): a("v_pk_mul_f32 %s, %s, %s" % (vr(b + r, 2), vr(b + r, 2), scale))
    for r in range(4): a("v_cvt_pk_bf16_f32 v%d, v%d, v%d" % (b + r, b + 2 * r, b + 2 * r + 1))
def q_swap(a, b):
    a("v_permlane16_swap_b32 v%d, v%d\nv_permlane16_swap_b32 v%d, v%d" % (b, b + 2, b + 1, b + 3))

def loader_setup(a):
    vHW, vHX, vA1 = 224, 248, 231
    lanes(a)
    a("s_and_b32 s60, s%d, 3" % sW)
    a("v_and_b32 v%d, 3, v12\nv_lshlrev_b32 v%d, 4, v%d" % (vHX, vHX, vHX))
    a("v_lshl_add_u32 v%d, v13, 6, v%d" % (vHW, vHX))
    a("v_lshl_add_u32 v%d, v15, 8, v%d" % (vD, vHW))
    a("v_lshl_add_u32 v%d, v15, 13, v%d" % (vHW, vHW))
    a("s_lshl_b32 s%d, s60, 17\ns_lshl_b32 s%d, s%d, 9\ns_add_u32 s%d, s%d, s%d" % (sT, sT2, sJJ, sT, sT, sT2))
    a("v_add_u32 v%d, s%d, v%d" % (vHW, sT, vHW))
    a("v_add_u32 v%d, %d, v%d" % (vHW + 1, 31744, vHW))
    a("v_add_u32 v%d, %d, v%d\nv_xor_b32 v%d, 32, v%d" % (vHW + 2, 2 * 31744, vHW, vHW + 2, vHW + 2))
    a("v_add_u32 v%d, %d, v%d" % (vHW + 3, 31744, vHW + 2))
    a("s_lshl_b32 s63, s60, 12")
    a("s_mul_i32 s61, s60, 5\ns_min_u32 s61, s61, 14")
    a("v_and_b32 v%d, 1, v13\nv_lshl_add_u32 v4, v%d, 6, v%d" % (vA1, vA1, vHX))
    a("v_lshl_add_u32 v%d, v15, 10, v4" % vHX)
    a("v_lshrrev_b32 v%d, 5, v12\nv_lshl_add_u32 v8, v%d, 12, v%d" % (vA1, vA1, vHX))
    a("s_lshl_b32 s%d, s61, 13\ns_and_b32 s%d, s61, 1\ns_lshl_b32 s%d, s%d, 5" % (sT, sT2, sT2, sT2))
    a("v_add_u32 v%d, s%d, v8\nv_xor_b32 v%d, s%d, v%d" % (vHX, sT, vHX, sT2, vHX))
    a("v_add_u32 v%d, 7168, v%d\nv_xor_b32 v%d, 32, v%d" % (vHX + 1, vHX, vHX + 1, vHX + 1))
    a("v_add_u32 v%d, 14336, v%d\nv_add_u32 v%d, 14336, v%d" % (vHX + 2, vHX, vHX + 3, vHX + 1))
    a("v_add_u32 v%d, 32768, v%d" % (vHX + 4, vHX))
    a("s_lshl_b32 s61, s61, 10")

def stage_ops_(j, NX):
    vHW, vHX = 224, 248
    xb = HX[j % HD]; wb = HW[j % HD]
    o = []
    for qq in range(4):
        pre_ = "s_add_u32 s%d, s%d, %d\ns_and_b32 s%d, s%d, 7\ns_lshl_b32 s%d, s%d, 19\ns_add_u32 m0, s63, %d\n" % (sHk, sRot, j, sHk, sHk, sHo, sHk, wb) if qq == 0 else ""
        o.append(pre_ + "buffer_load_dwordx4 v%d, %s, s%d offen offset:%d%s lds" % (vHW + qq, SR(S_WQ), sHo, qq * 1024, POL[OPT["polw"]]))
    for e in range(NX):
        pre_ = "s_add_u32 m0, s61, %d\n" % (xb + 4096) if e == 4 else ("s_add_u32 m0, s61, %d\ns_lshl_b32 s%d, s%d, 7\n" % (xb, sHo, sHk) if e == 0 else "")
        o.append(pre_ + "buffer_load_dwordx4 v%d, %s, s%d offen offset:%d%s lds" % (vHX + e, SR(S_X), sHo, (e & 3) * 1024, POL[OPT["polx"]]))
    return [(x, "h%d" % j) for x in o]

def head(a, role):
    att = role != "X"; ldr = role != "A"
    NRT = 4 if ldr else 5; T0 = 5 if ldr else 0
    vHW, vHX = 224, 248
    vA1, vA2, vBx = 231, 232, 233
    cA1, cA2, cBx = 234, 235, 236
    ACC = lambda t, d: vr(16 + 8 * t + 4 * d, 4)
    BF = lambda u, t: vr(56 + 20 * u + 4 * t, 4)
    AF = lambda u, d: 96 + 8 * u + 4 * d
    NX = 5 if att else 4
    if not OPT["fast0"]: loader_setup(a)
    def stage_ops(j): return stage_ops_(j, NX) if ldr else []
    def stage_load(j):
        for x, t in stage_ops(j): a(x, tag=t)
    if not OPT["fast0"]:
        srds_first(a)
        stage_load(0)
    elif role == "B":
        x, t = stage_ops(0)[8]; a(x, tag=t)
    if OPT["pst"]: a("s_memrealtime s[70:71]")
    if role == "A" and OPT["ptouch"]:
        a("s_cmp_lg_u32 s%d, 0\ns_cbranch_scc1 L_nopt" % sW)
        a("s_lshl_b32 s%d, s%d, 4\ns_add_u32 s%d, s%d, s%d\ns_lshl_b32 s%d, s%d, 19" % (sT, sB, sT, sT, sJJ, sT, sT))
        a("v_mov_b32 v240, s%d" % sT)
        a.autowait = False
        a("global_load_dword v244, v240, s[82:83]\nglobal_load_dword v245, v240, s[84:85]")
        a("v_and_b32 v240, 1, v12\nv_lshlrev_b32 v241, 21, v240")
        a("global_load_dword v246, v241, s[88:89]\nglobal_load_dword v247, v241, s[96:97]")
        a("v_add_u32 v241, s%d, v240\nv_add_u32 v242, s%d, v240\nv_and_b32 v243, 2, v12\nv_cmp_eq_u32 vcc, 0, v243" % (sG, sGo))
        a("v_cndmask_b32 v241, v241, v242, vcc\ns_mov_b32 s%d, %d\nv_mul_lo_u32 v241, s%d, v241" % (sT, OSTR, sT))
        a("v_mov_b32 v242, 0x%x\nv_cmp_lt_u32 vcc, 3, v12\nv_cndmask_b32 v241, v241, v242, vcc" % (FLAG_OFF + 8192))
        a("global_load_dword v248, v241, s[92:93]")
        a.autowait = True
        a.label("L_nopt")
    srds_rest(a)
    a("v_and_b32 v%d, 3, v12\nv_lshlrev_b32 v%d, 3, v%d" % (vA1, vA1, vA1))
    a("v_lshl_add_u32 v%d, v15, 6, v%d" % (vA1, vA1))
    a("v_and_b32 v%d, 1, v13\nv_lshl_add_u32 v%d, v%d, 5, v%d" % (vA2, vA1, vA2, vA1))
    a("v_lshl_add_u32 v%d, v13, 10, v%d" % (vVa, vA1))
    a("v_lshl_add_u32 v%d, v13, 11, v%d" % (vA1, vA1))
    a("s_and_b32 s%d, s%d, 3\ns_lshl_b32 s%d, s%d, 8" % (sT, sW, sT, sT))
    a("v_add_u32 v%d, s%d, v%d\nv_xor_b32 v%d, 32, v%d" % (vA1, sT, vA1, vA2, vA1))
    a("v_lshrrev_b32 v%d, 3, v14\nv_lshlrev_b32 v%d, 1, v%d\nv_xor_b32 v%d, v%d, v13\nv_lshlrev_b32 v%d, 4, v%d" % (vBx, vBx, vBx, vBx, vBx, vBx, vBx))
    a("v_and_b32 v%d, 3, v14\nv_lshl_add_u32 v%d, v%d, 6, v%d" % (cBx, vBx, cBx, vBx))
    a("v_lshl_add_u32 v%d, v15, 9, v%d" % (vBx, vBx))
    if att:
        a("s_lshl_b32 s%d, s%d, 13\ns_add_u32 s%d, s%d, %d" % (sT, sKg, sT, sT, 2 * SLOT))
        a("v_add_u32 v%d, s%d, v%d\nv_add_u32 v%d, 16384, v%d\nv_xor_b32 v%d, 32, v%d" % (vVa, sT, vVa, vVa, vVa, vVb, vVa))
        a("v_lshlrev_b32 v%d, 10, v15" % vK)
        a("v_lshl_add_u32 v%d, v%d, 6, v%d" % (vK, cBx, vK))
        a("v_lshrrev_b32 v%d, 1, v13\nv_and_b32 v%d, 1, v13\nv_lshl_or_b32 v%d, v%d, 1, v%d" % (cA1, cA2, cA1, cA2, cA1))
        a("v_lshrrev_b32 v%d, 3, v14\nv_xor_b32 v%d, v%d, v%d" % (cA2, cA1, cA1, cA2))
        a("v_lshl_add_u32 v%d, v%d, 4, v%d\nv_add_u32 v%d, s%d, v%d" % (vK, cA1, vK, vK, sT, vK))
        for r in range(4): a("v_mov_b32 v%d, 0x3f803f80" % (vONE + r))
    else:
        a("s_cmp_eq_u32 s%d, 6" % sW)
        if OPT["kvc"]:
            a("s_cselect_b32 s60, 0, 128\ns_cselect_b32 s%d, 0, 8192" % sKg)
            a("v_mov_b32 v%d, v%d\nv_xor_b32 v%d, 16, v%d\nv_xor_b32 v%d, 16, v%d" % (vD + 1, vD, vD + 2, vD, vD + 3, vD))
            a("v_xor_b32 v%d, s60, v%d\nv_xor_b32 v%d, 32, v%d\nv_mov_b32 v%d, v%d\nv_mov_b32 v%d, v%d" % (vD + 4, vD, vD + 5, vD + 4, vD + 6, vD + 4, vD + 7, vD + 5))
        else:
            a("s_cselect_b32 s%d, 0, 32\ns_cselect_b32 s%d, 16, 0\ns_cselect_b32 s%d, 16, 32\ns_cselect_b32 s60, 0, 128\ns_cselect_b32 s%d, 0, 16384" % (sT, sT2, sT3, sKg))
            a("v_xor_b32 v%d, s%d, v%d\nv_xor_b32 v%d, s%d, v%d\nv_xor_b32 v%d, s%d, v%d" % (vD + 1, sT, vD, vD + 2, sT2, vD, vD + 3, sT3, vD))
            for q in range(4): a("v_xor_b32 v%d, s60, v%d" % (vD + 4 + q, vD + q))
        a("v_add_u32 v1, %d, v%d" % (XB[0], vBx))
    a("v_mov_b32 v238, %s\nv_mov_b32 v239, %s" % (f32(CSCALE), f32(CSCALE)))
    def reads(u):
        tr = lambda d: ["ds_read_b64_tr_b16 %s, v%d offset:%d" % (vr(AF(u, d) + 2 * rd, 2), cA2 if d else cA1, u * 8192 + rd * 1024) for rd in range(2)]
        return tr(0) + ["ds_read_b128 %s, v%d offset:%d" % (BF(u, t), cBx, (T0 + t) * 2048 + u * 256) for t in range(NRT)] + tr(1)
    def mfmas(u, first):
        return ["%s %s, %s, %s, %s" % (MF, ACC(t, d), vr(AF(u, d), 4), BF(u, t), "0" if first else ACC(t, d)) for d in range(2) for t in range(NRT)]
    if OPT["pst"]: a("s_memrealtime s[72:73]")
    stage_load(1)
    if OPT["pst"]: a("s_memrealtime s[74:75]")
    stamp(a, 1)
    def mix(ms, rs, ds=()):
        di = 0; ri = 0
        for k, x in enumerate(ms):
            a(x)
            for _ in range(2):
                if ri < len(rs): a(rs[ri]); ri += 1
            while di < len(ds) and di * len(ms) <= k * len(ds):
                a(ds[di][0], tag=ds[di][1]); di += 1
        for x, t in ds[di:]: a(x, tag=t)
    if ldr and OPT["hprio"]: a("s_setprio %d" % OPT["hprio"])
    for j in range(8):
        a.wait_vm_tag("h%d" % j)
        if OPT["pst"] and j == 0: a("s_memrealtime s[76:77]")
        a("v_add_u32 v%d, %d, v%d\nv_add_u32 v%d, %d, v%d\nv_add_u32 v%d, %d, v%d" % (cA1, HW[j % HD], vA1, cA2, HW[j % HD], vA2, cBx, HX[j % HD], vBx))
        a("s_waitcnt lgkmcnt(0)")
        a("s_barrier")
        if j < 7: stamp(a, j + 1, hs=True)
        d = stage_ops(j + HD - 1) if j + HD - 1 < 8 else []
        if j == 0 and HD == 4: d = stage_ops(2) + d
        cut = (len(d) + 1) // 2
        if j == 0:
            for x in reads(0): a(x)
            for x, t in d[:cut]: a(x, tag=t)
        else: mix(mfmas(1, False), reads(0), d[:cut])
        a("s_waitcnt lgkmcnt(0)")
        mix(mfmas(0, j == 0), reads(1), d[cut:])
        if not att and j == OPT["kv0"]: kv_tile(a, 0)
        if not att and j == 6:
            for x, t in kv_ops(1)[:OPT["k1a"]]: a(x, tag=t)
        if not att and j == 7:
            for x, t in kv_ops(1)[OPT["k1a"]:OPT["k1a"] + OPT["k1b"]]: a(x, tag=t)
    for x in mfmas(1, False): a(x)
    a("s_and_b32 s60, s%d, 3\ns_lshl_b32 s60, s60, 10" % sW)
    a("v_lshlrev_b32 v%d, 4, v12\nv_add_u32 v%d, s60, v%d" % (cBx, cBx, cBx))
    a("v_add_u32 v%d, %d, v%d\nv_add_u32 v%d, %d, v%d" % (cA1, Q1A, cBx, cA2, Q1C, cBx))
    for t in range(NRT): q_pack(a, 16 + 8 * t, "v[238:239]")
    for t in range(NRT): q_swap(a, 16 + 8 * t)
    for t in range(NRT):
        tg = T0 + t
        a("ds_write_b128 v%d, %s offset:%d" % (cA1 if tg < 6 else cA2, vr(16 + 8 * t, 4), (tg if tg < 6 else tg - 6) * 4096))
    if ldr and OPT["hprio"]: a("s_setprio 0")
    a("s_waitcnt lgkmcnt(0)")
    a("s_barrier")
    if not att:
        for x, t in kv_ops(1)[OPT["k1a"] + OPT["k1b"]:]: a(x, tag=t)
    stamp(a, 2)

def pair_signal(a):
    a("s_add_u32 s%d, s%d, 1" % (sBar, sBar))
    a("v_mov_b32 v%d, s%d" % (vT, sBar))
    a("ds_write_b32 v%d, v%d" % (vX3, vT))

def pair_wait(a, name, reads):
    a.label(name)
    a("ds_read_b32 v%d, v%d" % (vT, vX4))
    for x in reads: a(x)
    a("s_waitcnt lgkmcnt(%d)" % len(reads))
    a("v_readfirstlane_b32 s%d, v%d" % (sT, vT))
    a("s_cmp_ge_u32 s%d, s%d" % (sT, sBar))
    a("s_cbranch_scc1 %s_ok" % name)
    a("s_waitcnt lgkmcnt(0)")
    if OPT["sbs"]: a("s_sleep %d" % OPT["sbs"])
    a("s_branch %s" % name)
    a.label(name + "_ok")
    a("s_waitcnt lgkmcnt(0)")

def publish(a, name, t0):
    a("s_waitcnt vmcnt(0)")
    a("s_mov_b64 exec, 1")
    a("v_mov_b32 v%d, %d\nv_mov_b32 v%d, 1" % (t0 + 2, CNT, t0 + 1))
    a("ds_add_rtn_u32 v%d, v%d, v%d offset:4" % (t0, t0 + 2, t0 + 1))
    a("ds_read_b32 v%d, v%d offset:8" % (t0 + 1, t0 + 2))
    a("s_waitcnt lgkmcnt(0)")
    a("v_readfirstlane_b32 s%d, v%d" % (sT, t0))
    a("s_cmp_lg_u32 s%d, 5" % sT)
    a("s_cbranch_scc1 %s" % name)
    a("v_or_b32 v%d, 0x%x, v%d" % (t0 + 1, PHM, t0 + 1))
    a("s_lshl_b32 s%d, s%d, 2" % (sT2, sJJ))
    a("v_mov_b32 v%d, s%d" % (t0, sT2))
    a("buffer_store_dword v%d, v%d, %s, 0 offen sc1" % (t0 + 1, t0, SR(S_FL)))
    a.label(name)
    a("s_mov_b64 exec, -1")

def attention(a):
    NT = 3; TL = 2
    a("s_waitcnt vmcnt(0)")
    a("v_lshlrev_b32 v%d, 4, v12" % vX1)
    a("s_mul_i32 s%d, s%d, %d\ns_add_u32 s%d, s%d, %d" % (sT, sRho, 12 * KB, sT, sT, Q1A))
    a("s_cmp_eq_u32 s%d, 2\ns_cselect_b32 s%d, %d, s%d" % (sRho, sT, Q1C, sT))
    a("v_add_u32 v%d, s%d, v%d" % (vX2, sT, vX1))
    for t in range(3):
        for s in range(4): a("ds_read_b128 %s, v%d offset:%d" % (Q(t, s), vX2, t * 4096 + s * 1024))
    if OPT["pair"]: a("s_xor_b32 s%d, s%d, 1" % (sPart, sW))
    else: a("s_add_u32 s%d, s%d, 3\ns_cmp_ge_u32 s%d, 6\ns_cselect_b32 s%d, 6, 0\ns_sub_u32 s%d, s%d, s%d" % (sPart, sW, sPart, sT2, sPart, sPart, sT2))
    a("s_lshl_b32 s%d, s%d, 2\ns_add_u32 s%d, s%d, %d\ns_lshl_b32 s%d, s%d, 2\ns_add_u32 s%d, s%d, %d" % (sT, sW, sT, sT, PFL, sT2, sPart, sT2, sT2, PFL))
    a("v_mov_b32 v%d, s%d\nv_mov_b32 v%d, s%d" % (vX3, sT, vX4, sT2))
    a("s_mov_b32 s%d, 0x40004000\ns_mov_b32 s%d, %s" % (sThr, sFl, f32(THR)))
    a("s_mov_b32 s%d, 0\ns_mov_b32 s%d, 0\ns_mov_b32 s%d, 2" % (sItem, sBar, sSlot))
    a("s_mul_i32 s%d, s%d, %d\ns_add_u32 s%d, s%d, %d" % (sExch, sRho, 12 * KB, sExch, sExch, Q2B))
    a("s_mov_b32 s%d, 0x%x\ns_mov_b32 s%d, %d" % (sNeg, (-2 * SLOT) & 0xffffffff, sPos, SLOT))
    a("s_lshl_b32 s%d, s%d, 3\ns_lshl_b32 s%d, s%d, 1\ns_add_u32 s%d, s%d, s%d\ns_mul_i32 s%d, s%d, 9" % (sT, sJJ, sT2, sKg, sT, sT, sT2, sT, sT))
    a("s_mul_i32 s%d, s%d, 3\ns_add_u32 s%d, s%d, s%d\ns_lshl_b32 s%d, s%d, 10\ns_add_u32 s%d, s%d, %d" % (sT2, sRho, sT, sT, sT2, sOoff, sT, sOoff, sOoff, 36 * KB))
    cstamp(a, 0)
    a.label("L_item")
    if OPT["ypr"] == 1: a("s_setprio 0")
    if OPT["ypr"] == 2: a("s_setprio 1")
    a("s_mov_b32 s%d, 0" % sCnt)
    a("s_waitcnt lgkmcnt(0)")
    Ga, Gb, Gc = 0, 4, 8
    def kread(kt, s):
        slot = (Gc + s) if kt == 0 else (Gb + s)
        return "ds_read_b128 %s, v%d offset:%d" % (vr(F(slot), 4), vK, kt * 4096 + s * 256)
    def vslot(dt): return (Ga + dt) if dt < 4 else (Gb + dt - 4)
    def vread(dt, rd):
        return "ds_read_b64_tr_b16 %s, v%d offset:%d" % (vr(F(vslot(dt)) + 2 * rd, 2), vVb if dt & 1 else vVa, rd * 4096 + (dt >> 1) * 256)
    def pv(t, dt, z=False): return "%s %s, %s, %s, %s" % (MF, O(t, dt), vr(F(vslot(dt)), 4), S(t, 0), "0" if z else O(t, dt))
    def lsum(t, z=False): return "%s %s, %s, %s, %s" % (MF, L(t), vr(vONE, 4), S(t, 0), "0" if z else L(t))
    def qk(t, kt, s, z=False):
        slot = (Gc + s) if kt == 0 else (Gb + s)
        return "%s %s, %s, %s, %s" % (MF, S(t, kt), vr(F(slot), 4), Q(t, s), ("0" if z else M(t)) if s == 0 else S(t, kt))
    EXP = lambda r: "v_exp_f32 v%d, v%d" % (r, r)
    def CVT(b, r): return "v_cvt_pk_bf16_f32 v%d, v%d, v%d" % (b + r, b + 2 * r, b + 2 * r + 1)
    def rowmax(b):
        return ["v_max3_f32 v%d, v%d, v%d, v%d" % (vT, b, b + 1, b + 2), "v_max3_f32 v%d, v%d, v%d, v%d" % (vT + 1, b + 3, b + 4, b + 5),
                "v_max3_f32 v%d, v%d, v%d, v%d" % (vT, vT, b + 6, b + 7), "v_max_f32 v%d, v%d, v%d" % (vT, vT, vT + 1),
                "v_mov_b32 v%d, v%d" % (vT + 1, vT), "v_permlane16_swap_b32 v%d, v%d" % (vT, vT + 1), "v_max_f32 v%d, v%d, v%d" % (vT, vT, vT + 1),
                "v_mov_b32 v%d, v%d" % (vT + 1, vT), "v_permlane32_swap_b32 v%d, v%d" % (vT, vT + 1), "v_max_f32 v%d, v%d, v%d" % (vT, vT, vT + 1)]
    def sm(t):
        b = vS + 8 * t
        g = [[EXP(b + r)] for r in range(4)] + [[CVT(b, 0), CVT(b, 1)]] + [[EXP(b + r)] for r in range(4, 8)] + [[CVT(b, 2), CVT(b, 3)]]
        g.append(["v_or3_b32 v%d, v%d, v%d, v%d" % (b + 4, b, b + 1, b + 2), "v_bitop3_b32 v%d, v%d, v%d, s%d bitop3:0xa8" % (b + 4, b + 4, b + 3, sThr)])
        g.append(["v_cmp_ne_u32 vcc, 0, v%d" % (b + 4)])
        return g
    def step(first):
        mf = []; fill = {}
        def put(idx, ops): fill.setdefault(idx, []).extend(ops)
        if not first: mf += [pv(TL, dt) for dt in (4, 5, 6, 7)] + [pv(TL, dt) for dt in (0, 1, 2, 3)] + [lsum(TL)]
        q0 = len(mf)
        qk_end = {}
        for t in range(NT):
            for kt in ((0, 1) if t < TL else (1, 0)):
                mf += [qk(t, kt, s, first) for s in range(4)]
                if t == TL and kt == 1: v47_at = len(mf) - 1
            qk_end[t] = len(mf) - 1
        pv_start = {}
        for t in range(TL):
            pv_start[t] = len(mf)
            mf += [pv(t, dt, first) for dt in range(4)] + [lsum(t, first)] + [pv(t, dt, first) for dt in range(4, 8)]
        n = len(mf)
        pre = [kread(0, s) for s in range(4)]
        if first:
            pre += [kread(1, s) for s in range(4)] + [vread(dt, rd) for dt in range(4) for rd in range(2)]
            pre += ["v_mov_b64 %s, 0" % vr(r, 2) for r in list(range(vO + 64, vO + 96, 2)) + [vL + 8, vL + 10]]
            pre += ["WAIT " + vr(F(Gc), 16)]
        else:
            for s in range(4): put(s, [kread(1, s)])
            for dt in range(4): put(4 + dt, [vread(dt, 0), vread(dt, 1)])
            put(8, ["WAIT " + vr(F(Gc), 16)])
        put(q0 + 3, ["WAIT " + vr(F(Gb), 16), "s_add_u32 s%d, s%d, 1" % (sSlot, sSlot)])
        put(q0 + 4, ["s_cmp_eq_u32 s%d, 3" % sSlot, "s_cselect_b32 s%d, s%d, s%d" % (sDelta, sNeg, sPos)])
        put(q0 + 5, ["s_cselect_b32 s%d, 0, s%d" % (sSlot, sSlot), "s_add_u32 s%d, s%d, 1" % (sCnt, sCnt)])
        for dt in range(4, 8): put(v47_at - 3 + (dt - 4), [vread(dt, 0), vread(dt, 1)])
        adv = ["v_add_u32 v%d, s%d, v%d" % (r, sDelta, r) for r in (vK, vVa, vVb)]
        tail = []
        if first:
            for t in range(NT):
                b = vS + 8 * t
                ops = rowmax(b) + ["v_add_f32 v%d, s%d, v%d" % (vT, sFl, vT)]
                ops += ["v_sub_f32 v%d, v%d, v%d" % (b + r, b + r, vT) for r in range(8)]
                ops += ["v_sub_f32 v%d, 0, v%d" % (vM + 4 * t + r, vT) for r in range(4)]
                ops += [EXP(b + r) for r in range(8)] + [CVT(b, r) for r in range(4)]
                lo = max(qk_end[t] + 3, [0, 21, 32][t]); hi = [20, 31, n - 1][t]
                for k, x in enumerate(ops): put(lo + k * (hi - lo + 1) // len(ops), [x])
            tail = adv
        else:
            groups = [(t, g) for t in range(NT) for g in sm(t)]
            lo = OPT["g0"]; span = n - lo
            for k, (t, g) in enumerate(groups):
                idx = lo + (k * span) // len(groups)
                assert t == TL or idx + 1 < pv_start[t], (t, idx)
                put(idx, g)
                if k % 12 == 11:
                    br = "s_cbranch_vccnz L_rare%d\nL_back%d:" % (t, t)
                    if t == 0: put(idx, [adv[0]])
                    if t == 1: put(idx, [adv[1]])
                    if t < TL: fill.setdefault(idx + 1, []).insert(0, br)
                    else: tail = [adv[2], "s_cmp_lt_u32 s%d, 16" % sCnt, br]
        put(pv_start[0] - 1, ["WAIT " + vr(F(Ga), 16)])
        put(pv_start[0] + 4, ["WAIT " + vr(F(Gb), 16)])
        a("s_barrier")
        if first and OPT["bst"] == 0:
            a("s_cmp_lg_u32 s%d, 1\ns_cbranch_scc1 L_bsx\ns_memrealtime s[76:77]\nL_bsx:" % sItem)
        for x in pre: a(x)
        for k, m in enumerate(mf):
            a(m)
            for x in fill.get(k, []): a(x)
        if not first:
            for _ in range(OPT["xmf"]): a("%s %s, %s, %s, %s" % (MF, vr(vT, 4), vr(F(0), 4), S(1, 0), vr(vT, 4) if _ else "0"))
        for x in tail: a(x)
    step(True)
    a.raw(".p2align 6")
    a.label("L_loop")
    step(False)
    a("s_cbranch_scc1 L_loop")
    a.label("L_bnd")
    if OPT["ypr"] == 1: a("s_cmp_lt_u32 s%d, 4\ns_cbranch_scc1 L_ypr\ns_setprio 1\nL_ypr:" % sW)
    if OPT["stamps"]:
        a("s_cmp_eq_u32 s%d, 0\ns_cbranch_scc0 L_st4" % sItem)
        stamp(a, 3); cstamp(a, 1)
        a("s_branch L_st4b")
        a.label("L_st4"); stamp(a, 4)
        a.label("L_st4b")
    if OPT["ypr"] == 2: a("s_setprio 0")
    bstamp(a, 1)
    a("s_cmp_eq_u32 s%d, 0" % sItem)
    a("s_cbranch_scc0 L_nomx")
    if OPT["mxf"]:
        a("s_mov_b64 exec, 1")
        a("v_mov_b32 v%d, %d\nv_mov_b32 v%d, 1" % (vT + 2, CNT, vT + 1))
        a("ds_add_u32 v%d, v%d offset:20" % (vT + 2, vT + 1))
        a.label("L_q2w")
        a("ds_read_b32 v%d, v%d offset:24" % (vT, vT + 2))
        a("s_waitcnt lgkmcnt(0)")
        a("v_readfirstlane_b32 s%d, v%d" % (sT, vT))
        a("s_cmp_lt_u32 s%d, 2\ns_cbranch_scc1 L_q2w" % sT)
        a("s_mov_b64 exec, -1")
    else:
        a("s_barrier")
    a("v_add_u32 v%d, s%d, v%d" % (vX2, sExch, vX1))
    for t in range(3):
        for s in range(4): a("ds_read_b128 %s, v%d offset:%d" % (Q(t, s), vX2, t * 4096 + s * 1024))
    pair_signal(a)
    a.label("L_nomx")
    bstamp(a, 2)
    a("s_lshl_b32 s%d, s%d, 12\ns_add_u32 s%d, s%d, %d" % (sT, sW, sT, sT, EX1))
    a("v_add_u32 v%d, s%d, v%d" % (vX2, sT, vX1))
    def send(t, areg, off):
        o = []
        for h in range(2):
            b = vO + 32 * t + 16 + 8 * h
            o += ["v_cvt_pk_bf16_f32 v%d, v%d, v%d" % (b + r, b + 2 * r, b + 2 * r + 1) for r in range(4)]
            o.append("ds_write_b128 v%d, %s offset:%d" % (areg, vr(b, 4), off + h * 1024))
        return o
    fin = [lsum(TL)] + [pv(TL, dt) for dt in (4, 5, 6, 7, 0, 1, 2, 3)]
    ex = send(0, vX2, 0) + send(1, vX2, 2048)
    for k, m in enumerate(fin):
        a(m)
        for x in ex[k * len(ex) // 9:(k + 1) * len(ex) // 9]: a(x)
    a("v_and_b32 v%d, 15, v0\nv_lshlrev_b32 v%d, 3, v%d" % (vT + 2, vT + 2, vT + 2))
    a("s_mul_i32 s%d, s%d, 384\ns_add_u32 s%d, s%d, %d" % (sT, sW, sT, sT, MLB))
    a("v_add_u32 v%d, s%d, v%d" % (vT + 3, sT, vT + 2))
    for t in range(3):
        a("v_mov_b32 v%d, v%d" % (vM + 4 * t + 1, vL + 4 * t))
        a("ds_write_b64 v%d, %s offset:%d" % (vT + 3, vr(vM + 4 * t, 2), t * 128))
    a("s_lshl_b32 s%d, s%d, 11\ns_add_u32 s%d, s%d, s%d" % (sT, sKg, sT, sT, sExch))
    a("v_add_u32 v%d, s%d, v%d" % (vX2, sT, vX1))
    a("s_waitcnt lgkmcnt(0)")
    pair_wait(a, "L_pw0", [])
    bstamp(a, 3)
    for x in send(2, vX2, 0): a(x)
    pair_signal(a)
    a("s_mul_i32 s%d, s%d, 384\ns_add_u32 s%d, s%d, %d" % (sT2, sPart, sT2, sT2, MLB))
    a("v_add_u32 v%d, s%d, v%d" % (vT + 3, sT2, vT + 2))
    a("v_xor_b32 v%d, 2048, v%d" % (vX2, vX2))
    a("s_lshl_b32 s%d, s%d, 12\ns_add_u32 s%d, s%d, %d" % (sT, sPart, sT, sT, EX1))
    a("v_add_u32 v%d, s%d, v%d" % (vT + 2, sT, vX1))
    a("s_waitcnt lgkmcnt(0)")
    rd = ["ds_read_b64 %s, v%d offset:%d" % (vr(vM + 4 * t + 2, 2), vT + 3, t * 128) for t in range(3)]
    for t in range(3):
        for h in range(2):
            rd.append("ds_read_b128 %s, v%d offset:%d" % (vr(vS + 8 * t + 4 * h, 4), vT + 2 if t < 2 else vX2, (t * 2048 if t < 2 else 0) + h * 1024))
    pair_wait(a, "L_pw", rd)
    bstamp(a, 4)
    for t in range(3):
        m = vM + 4 * t; l = vL + 4 * t
        a("v_min_f32 v%d, v%d, v%d" % (l, m, m + 2))
        a("v_sub_f32 v%d, v%d, v%d\nv_sub_f32 v%d, v%d, v%d" % (l + 1, l, m, l + 2, l, m + 2))
        a("v_exp_f32 v%d, v%d\nv_exp_f32 v%d, v%d" % (l + 1, l + 1, l + 2, l + 2))
        a("v_mul_f32 v%d, v%d, v%d" % (l + 3, l + 1, m + 1))
        a("v_fma_f32 v%d, v%d, v%d, v%d" % (l + 3, l + 2, m + 3, l + 3))
        a("v_rcp_f32 v%d, v%d" % (l, l + 3))
        a("v_mul_f32 v%d, v%d, v%d\nv_mul_f32 v%d, v%d, v%d" % (l + 3, l + 2, l, l + 2, l + 2, l))
        a("v_mul_f32 v%d, v%d, v%d\nv_mov_b32 v%d, v%d" % (l + 1, l + 1, l, l, l + 1))
    def combine(out):
        for t in range(3):
            l = vL + 4 * t
            for h in range(2):
                b = vO + 32 * t + 8 * h; u = b + 16; pk = vS + 8 * t + 4 * h
                for r in range(4):
                    a("v_lshlrev_b32 v%d, 16, v%d\nv_and_b32 v%d, 0xffff0000, v%d" % (u + 2 * r, pk + r, u + 2 * r + 1, pk + r))
                for r in range(0, 8, 2): a("v_pk_mul_f32 %s, %s, %s" % (vr(b + r, 2), vr(b + r, 2), vr(l, 2)))
                for r in range(0, 8, 2): a("v_pk_fma_f32 %s, %s, %s, %s" % (vr(b + r, 2), vr(u + r, 2), vr(l + 2, 2), vr(b + r, 2)))
                for r in range(4): a("v_cvt_pk_bf16_f32 v%d, v%d, v%d" % (pk + r, b + 2 * r, b + 2 * r + 1))
                out(t, h, pk)
    a("s_cmp_eq_u32 s%d, 0" % sItem)
    a("s_cbranch_scc0 L_att_done")
    combine(lambda t, h, pk: a("ds_write_b128 v%d, %s offset:%d" % (vT + 2 if t < 2 else vX2, vr(pk, 4), (t * 2048 if t < 2 else 0) + h * 1024)))
    bstamp(a, 5)
    a("s_mov_b32 s%d, 1\ns_lshl_b32 s%d, s%d, 12\ns_add_u32 s%d, s%d, %d" % (sItem, sExch, sRho, sExch, sExch, EX2))
    a("s_waitcnt lgkmcnt(0)")
    a("s_branch L_item")
    a.vm = []; a.lgkm = []
    for t in range(NT):
        b = vS + 8 * t
        a.label("L_rare%d" % t)
        a("s_nop 15")
        a("v_subrev_u32 v%d, s%d, v%d" % (vX2, sDelta, vK))
        for kt in range(2):
            for s in range(4):
                a("ds_read_b128 %s, v%d offset:%d" % (vr(vT, 4), vX2, kt * 4096 + s * 256))
                a("s_waitcnt lgkmcnt(0)")
                a("%s %s, %s, %s, %s" % (MF, S(t, kt), vr(vT, 4), Q(t, s), M(t) if s == 0 else S(t, kt)))
                a("s_nop 3")
        for x in rowmax(b): a(x)
        a("v_add_f32 v%d, s%d, v%d\nv_max_f32 v%d, 0, v%d" % (vT, sFl, vT, vT, vT))
        for r in range(8): a("v_sub_f32 v%d, v%d, v%d" % (b + r, b + r, vT))
        for r in range(4): a("v_sub_f32 v%d, v%d, v%d" % (vM + 4 * t + r, vM + 4 * t + r, vT))
        a("v_exp_f32 v%d, -v%d" % (vT + 1, vT))
        for r in range(4): a("v_mul_f32 v%d, v%d, v%d" % (vL + 4 * t + r, vL + 4 * t + r, vT + 1))
        for r in range(32): a("v_mul_f32 v%d, v%d, v%d" % (vO + 32 * t + r, vO + 32 * t + r, vT + 1))
        for r in range(8): a(EXP(b + r))
        for r in range(4): a(CVT(b, r))
        a("s_nop 3")
        a("s_branch L_back%d" % t)
    a.label("L_att_done")
    a("s_mov_b64 exec, 1")
    a("v_mov_b32 v%d, %d\nv_mov_b32 v%d, 1" % (vT + 2, CNT, vT + 1))
    a("ds_add_u32 v%d, v%d" % (vT + 2, vT + 1))
    a("s_mov_b64 exec, -1")
    combine(lambda t, h, pk: a("s_add_u32 s%d, s%d, %d\nbuffer_store_dwordx4 %s, v%d, %s, s%d offen%s" % (sT, sOoff, (h * 9 + t) * 1024, vr(pk, 4), vX1, SR(S_O), sT, POL[OPT["pols"]])))
    bstamp(a, 5)
    a("s_cmp_lt_u32 s%d, 2" % sW)
    a("s_cbranch_scc1 L_join")
    publish(a, "L_pub_x", vT)
    a("s_endpgm")
    a.label("L_join")
    a("s_mov_b32 s%d, s%d" % (sOpIdx, sW))
    a("s_lshl_b32 s%d, s%d, 14" % (sBlkP, sW))
    a("s_cmp_eq_u32 s%d, 0\ns_cselect_b32 s%d, %d, 0\ns_cselect_b32 s%d, 0, %d\ns_add_u32 s%d, s%d, s%d" % (sW, sBlkD, 64 * KB, sT, 116 * KB, sBlkD, sBlkD, sT))
    op_setup(a)
    publish(a, "L_pub_y", 100)
    bstamp(a, 6)
    stamp(a, 5)
    a("v_mov_b32 v96, %d" % CNT)
    a.label("L_w6")
    a("ds_read_b32 v98, v96")
    a("ds_read_b32 v97, v96 offset:12")
    a("s_waitcnt lgkmcnt(0)")
    a("v_readfirstlane_b32 s%d, v98\nv_readfirstlane_b32 s%d, v97" % (sT, sTag))
    a("s_cmp_lt_u32 s%d, 6\ns_cbranch_scc1 L_w6" % sT)
    a("s_or_b32 s%d, s%d, 0x%x" % (sWant, sTag, PHM))
    a("s_cmp_eq_u32 s60, 0\ns_cbranch_scc1 L_op_a_join\ns_branch L_op_b_join")
    a.vm = []; a.lgkm = []

def wo_touch(a, phase, i):
    a("s_and_b32 s%d, s%d, 1\ns_lshl_b32 s%d, s%d, 4\ns_add_u32 s%d, s%d, s%d" % (sT, sGo, sT, sT, sT, sT, sJo))
    a("s_lshr_b32 s%d, s%d, 1\ns_lshl_b32 s%d, s%d, 18\ns_and_b32 s%d, s%d, 1\ns_lshl_b32 s%d, s%d, 16\ns_add_u32 s%d, s%d, s%d" % (sT2, sT, sT2, sT2, sT, sT, sT, sT, sT, sT, sT2))
    a("s_and_b32 s%d, s%d, 1\ns_lshl_b32 s%d, s%d, 15\ns_add_u32 s%d, s%d, s%d" % (sT2, sW, sT2, sT2, sT, sT, sT2))
    a("s_add_u32 s%d, s%d, %d" % (sT2, sT, phase * 131072 + i * 8192))
    a.autowait = False
    a("buffer_load_dword v147, v146, %s, s%d offen" % (SR(S_WO), sT2), tag="x")
    a.autowait = True

def aux_step(a, step, pre=None, extra=None):
    a.wait_vm_tag("t%d" % step)
    a("s_barrier")
    if OPT["sst"] >= 0 and step >= OPT["sst"] and (step - OPT["sst"]) % OPT["sstd"] == 0 and (step - OPT["sst"]) // OPT["sstd"] < 6:
        k_ = 1 + (step - OPT["sst"]) // OPT["sstd"]
        a("s_memrealtime s[%d:%d]" % (64 + 2 * k_, 65 + 2 * k_))
    if OPT["ck"] and step in (1, 8, 15, 31):
        k_ = (1, 8, 15, 31).index(step)
        a("s_memrealtime s[%d:%d]\ns_memtime s[%d:%d]" % (64 + 4 * k_, 65 + 4 * k_, 66 + 4 * k_, 67 + 4 * k_))
    for ph in (0, 1):
        lst = [int(x) for x in OPT["tw%d" % ph].split(",") if x]
        for i, st_ in enumerate(lst):
            if st_ == step: wo_touch(a, ph, i)
    if pre: pre()
    nxt = step + 2
    if nxt < 32 and nxt != 18: kv_tile(a, nxt)
    if nxt == 18:
        for x, t in kv_ops(18)[OPT["early"]:]: a(x, tag=t)
    if step == OPT["pfm"]:
        a("s_lshl_b32 s%d, s%d, 4\ns_add_u32 s%d, s%d, s%d\ns_lshl_b32 s%d, s%d, 1\ns_and_b32 s%d, s%d, 1\ns_add_u32 s%d, s%d, s%d\ns_lshl_b32 s%d, s%d, 14" % (sT, sB, sT, sT, sJJ, sT, sT, sT2, sW, sT, sT, sT2, sT, sT))
        a.autowait = False
        a("buffer_load_dword v147, v146, %s, s%d offen" % (SR(S_WO), sT), tag="x")
        a("s_add_u32 s%d, s%d, 8192" % (sT, sT))
        a("buffer_load_dword v147, v146, %s, s%d offen" % (SR(S_WO), sT), tag="x")
        a.autowait = True
    if extra: extra()

def aux(a):
    if OPT["auxprio"]: a("s_setprio %d" % OPT["auxprio"])
    a("v_lshlrev_b32 v%d, 2, v14\nv_lshlrev_b32 v146, 7, v12" % vFo)
    a("s_lshl_b32 s%d, s%d, 4\nv_mov_b32 v%d, s%d" % (sT, sG, vDg, sT))
    a("s_lshl_b32 s%d, s%d, 4\nv_mov_b32 v%d, s%d\nv_cmp_eq_u32 vcc, 0, v12\nv_cndmask_b32 v%d, v%d, v%d, vcc" % (sT, sGo, vDg2, sT, vDg2, vDg2, vDg))
    a("s_sub_u32 s%d, s%d, 4" % (sOpIdx, sW))
    def ACC(t, d):
        i = t * 4 + d
        return 16 + 4 * i if i < 28 else 176 + 4 * (i - 28)
    BF = lambda t: vr(208 + 4 * t, 4)
    AF = lambda d: 156 + 4 * d
    sW2, sXq = 60, 61
    a("s_and_b32 s%d, s%d, 1" % (sT3, sW))
    a("v_lshrrev_b32 v9, 5, v12\nv_lshl_add_u32 v4, v15, 13, v4\nv_lshl_add_u32 v4, v9, 15, v4")
    a("s_lshl_b32 s%d, s%d, 9\ns_lshl_b32 s%d, s%d, 7\ns_add_u32 s%d, s%d, s%d\ns_add_u32 s%d, s%d, 256" % (sT, sJJ, sT2, sT3, sT, sT, sT2, sT, sT))
    a("v_add_u32 v4, s%d, v4" % sT)
    a("v_add_u32 v5, 64512, v4\nv_xor_b32 v5, 32, v5\nv_add_u32 v6, 129024, v4\nv_add_u32 v7, 129024, v5")
    a("s_mul_i32 s%d, s%d, %d\ns_add_u32 s%d, s%d, %d" % (sW2, sT3, 12 * KB, sW2, sW2, W2R))
    a("v_add_u32 v2, s%d, v2\nv_xor_b32 v3, 32, v2" % sW2)
    a("s_lshl_b32 s%d, s%d, 5\nv_xor_b32 v8, s%d, v8\nv_xor_b32 v9, 32, v8" % (sT, sT3, sT))
    a("s_mul_i32 s%d, s%d, 9" % (sXq, sT3))
    a("v_mov_b32 v10, %s\nv_mov_b32 v11, %s" % (f32(CSCALE), f32(CSCALE)))
    def chunk(m): a("s_add_u32 s%d, s%d, %d\ns_and_b32 s%d, s%d, 7" % (sT3, sRot, (6 + m) & 7, sT3, sT3))
    def w2_load(n):
        chunk(n // 2)
        a("s_lshl_b32 s%d, s%d, 19\ns_add_u32 s%d, s%d, %d\ns_add_u32 m0, s%d, %d" % (sT2, sT3, sT2, sT2, (n & 1) << 18, sW2, (n % 3) * 4096))
        for q in range(4):
            a("buffer_load_dwordx4 v%d, %s, s%d offen offset:%d%s lds" % (4 + q, SR(S_WQ), sT2, q * 1024, POL[OPT["polw"]]), tag="q%d" % n)
    def x2_load(m):
        chunk(m)
        a("s_lshl_b32 s%d, s%d, 7\ns_lshl_b32 s%d, s%d, 13\ns_add_u32 s%d, s%d, s%d\ns_lshl_b32 s63, s%d, 10" % (sT3, sT3, sT2, sXq, sT3, sT3, sT2, sXq))
        for e in range(9):
            a("s_add_u32 m0, s63, %d\ns_add_u32 s%d, s%d, %d" % (XB[m & 1] + e * 1024, sT2, sT3, e * 8192))
            a("buffer_load_dwordx4 v%d, %s, s%d offen%s lds" % (8 + (e & 1), SR(S_X), sT2, POL[OPT["polx"]]), tag="x%d" % m)
    AF2 = [172, 244, 248, 252]
    def q2_a(n, alt):
        a.wait_vm_tag("q%d" % n)
        for d in range(4):
            for rd in range(2):
                a("ds_read_b64_tr_b16 %s, v%d offset:%d" % (vr((AF2[d] if alt else AF(d)) + 2 * rd, 2), 3 if d & 1 else 2, (n % 3) * 4096 + rd * 512 + (d >> 1) * 256))
    def q2_b(n, t): a("ds_read_b128 %s, v1 offset:%d" % (BF(t), ((n // 2) & 1) * 18 * KB + t * 2048 + (n & 1) * 256))
    def q2_step(n, fill=(), chain=False, chained=False):
        A_ = (lambda d: AF2[d]) if chained else AF
        if not chained:
            q2_a(n, False)
            for t in range(9): q2_b(n, t)
            a("WAIT " + vr(AF(0), 16))
        else: a("WAIT " + " ".join(vr(r, 4) for r in AF2))
        if n + 3 < 16: w2_load(n + 3)
        if not chained: a("s_waitcnt lgkmcnt(0)")
        fi = 0
        def pack_ops(t):
            o = []
            for h in range(2):
                b = ACC(t, 2 * h)
                o += ["v_mul_f32 v%d, v10, v%d" % (b + r, b + r) for r in range(8)]
                o += ["v_cvt_pk_bf16_f32 v%d, v%d, v%d" % (b + r, b + 2 * r, b + 2 * r + 1) for r in range(4)]
            for h in range(2):
                b = ACC(t, 2 * h)
                o += ["v_permlane16_swap_b32 v%d, v%d" % (b, b + 2), "v_permlane16_swap_b32 v%d, v%d" % (b + 1, b + 3)]
            return o
        if n == 15 and OPT["p14"]: a("s_setprio %d" % OPT["p14"])
        for t in range(9):
            po = pack_ops(t - 2) if n == 15 and t >= 2 else []
            for d in range(4):
                c = vr(ACC(t, d), 4)
                a("%s %s, %s, %s, %s" % (MF, c, vr(A_(d), 4), BF(t), "0" if n == 0 else c))
                if chain and d == 3: q2_b(n + 1, t)
                if chain and t == 4 and d == 0: q2_a(n + 1, True)
                i = t * 4 + d
                if i >= 36 - OPT["q2mix"] * len(fill) and (36 - i) % OPT["q2mix"] == 0 and fi < len(fill):
                    a(fill[fi][0], tag=fill[fi][1]); fi += 1
                for x in po[7 * d:7 * d + 7]: a(x)
        assert fi == len(fill)
        if n == 15:
            for x in pack_ops(7) + pack_ops(8): a(x)
    sched = {}; n_ = 0
    for i_, c_ in enumerate(OPT["q2s"]):
        sched[i_ + 1] = list(range(n_, n_ + int(c_))); n_ += int(c_)
    assert n_ == 16 and len(OPT["q2s"]) <= 14
    at = {n: s_ for s_, l_ in sched.items() for n in l_}
    xiss = {m: at[2 * (m - 2) + 1] + 1 for m in range(2, 8)}
    for m in xiss: assert at[2 * m] > xiss[m], m
    QW = at[15] + 1
    def o1_store():
        a("s_and_b32 s%d, s%d, 1" % (sT3, sW))
        a("s_mul_i32 s%d, s%d, %d\ns_add_u32 s%d, s%d, %d\nv_add_u32 v%d, s%d, v1" % (sT, sT3, 4096 if OPT["pair"] else 3 * 4096, sT, sT, EX1, vA_, sT))
        a("s_lshl_b32 s%d, s%d, 11\ns_add_u32 s%d, s%d, %d\nv_add_u32 v%d, s%d, v1" % (sT, sT3, sT, sT, Q2B, vB_, sT))
        fr = [(i, t, h) for i in range(3) for t in range(3) for h in range(2)]
        for n, (i, t, h) in enumerate(fr):
            if t < 2: a("ds_read_b128 %s, v%d offset:%d" % (vr(16 + 4 * n, 4), vA_, i * (8192 if OPT["pair"] else 4096) + t * 2048 + h * 1024))
            else: a("ds_read_b128 %s, v%d offset:%d" % (vr(16 + 4 * n, 4), vB_, i * 12 * KB + h * 1024))
        a("s_mul_i32 s%d, s%d, %d\ns_mul_i32 s%d, s%d, %d\ns_add_u32 s%d, s%d, %d\ns_sub_u32 s%d, s%d, s%d" % (sT2, sJJ, 8 * 9216, sT3, sT3, 2 * 9216, sT2, sT2, 2 * 9216, sT2, sT2, sT3))
        for n, (i, t, h) in enumerate(fr):
            a("s_add_u32 s%d, s%d, %d" % (sT, sT2, (h * 9 + 3 * i + t) * 1024))
            a("buffer_store_dwordx4 %s, v1, %s, s%d offen%s" % (vr(16 + 4 * n, 4), SR(S_O), sT, POL[OPT["pols"]]), tag="st")
    def pre(step):
        if step == 0:
            for n in range(3): w2_load(n)
        for m in xiss:
            if xiss[m] == step: x2_load(m)
        ns = sched.get(step, [])
        ch = OPT["q2p"] and len(ns) == 2 and ns[0] % 2 == 0
        if ns and OPT["q2pr"] and ns[0] == 0: a("s_setprio %d" % OPT["q2pr"])
        for n in ns:
            if OPT["q2mix"] and n == ns[-1]:
                q2_step(n, kv_ops(step + 2), False, ch); KV_DONE.add(step + 2)
            else: q2_step(n, (), ch, False)
        if step == QW:
            a("s_and_b32 s%d, s%d, 1\ns_lshl_b32 s%d, s%d, 11\ns_add_u32 s%d, s%d, %d" % (sT, sW, sT, sT, sT, sT, Q2B))
            a("v_lshlrev_b32 v1, 4, v12\nv_add_u32 v2, s%d, v1" % sT)
            fr = [(t, h) for t in range(9) for h in range(2)]
            for t, h in fr: a("ds_write_b128 v2, %s offset:%d" % (vr(ACC(t, 2 * h), 4), t * 4096 + h * 1024))
            if OPT["mxf"]:
                a("s_mov_b64 exec, 1")
                a("v_mov_b32 v%d, %d\nv_mov_b32 v%d, 1" % (vA_, CNT, vB_))
                a("ds_add_u32 v%d, v%d offset:24" % (vA_, vB_))
                a("s_mov_b64 exec, -1")
            if OPT["p14"]: a("s_setprio %d" % OPT["auxprio"])
        if step == 16 and OPT["st1"]: o1_store()
        if step == OPT["pubat"]:
            a("s_cmp_lg_u32 s%d, 6\ns_cbranch_scc1 L_nopub" % sW)
            a("s_lshl_b32 s%d, s%d, 2\nv_mov_b32 v%d, s%d\nv_mov_b32 v%d, s%d" % (sT, sJJ, vA_, sT, vB_, sTagA))
            keep = list(a.vm)
            a("buffer_store_dword v%d, v%d, %s, 0 offen sc1" % (vB_, vA_, SR(S_FL)))
            a.vm = keep
            a.label("L_nopub")
    def extra(step):
        if step == 0:
            a("buffer_load_dword v%d, v%d, %s, 0 offen sc1" % (vFl, vFo, SR(S_FL)), tag="fl")
        if step == 3:
            cstamp(a, 0)
            a("s_lshl_b32 s%d, s%d, 3\ns_add_u32 s%d, s%d, s%d\ns_cmp_lg_u32 s%d, 6\ns_cbranch_scc1 L_nolead" % (sT, sJJ, sT, sT, sW, sT))
            a("v_lshrrev_b32 v%d, v14, v%d\nv_and_b32 v%d, 1, v%d\nv_cmp_eq_u32 vcc, 0, v%d" % (vFl, vFl, vFl, vFl, vFl))
            a("s_nop 1")
            a("s_and_b32 s%d, vcc_lo, 0xffff\ns_or_b32 s%d, s%d, 0x80000000" % (sT, sT, sT))
            a("v_mov_b32 v%d, s%d" % (vFl, sT))
            keep = list(a.vm)
            a("buffer_store_dword v%d, v%d, %s, 0 offen sc1" % (vFl, vDg, SR(S_DBG)))
            a.vm = keep
            a.label("L_nolead")
        if step == 9:
            a("buffer_load_dword v%d, v%d, %s, 0 offen sc1" % (vFl, vDg2, SR(S_DBG)), tag="fl")
        if step == 12:
            cstamp(a, 1)
            keep = list(a.vm)
            a.label("L_tag")
            a("v_cmp_eq_u32 vcc, 0, v%d" % vFl)
            a("s_cbranch_vccz L_tag_ok")
            a("s_sleep 8")
            a("buffer_load_dword v%d, v%d, %s, 0 offen sc1" % (vFl, vDg2, SR(S_DBG)))
            a("s_waitcnt vmcnt(0)")
            a("s_branch L_tag")
            a.label("L_tag_ok")
            a.vm = keep
            a("v_readlane_b32 s%d, v%d, 0\nv_readlane_b32 s%d, v%d, 1" % (sTagA, vFl, sTag, vFl))
            a("v_min_u32 v%d, 1, v12\nv_lshlrev_b32 v%d, 2, v%d\nv_add_u32 v%d, %d, v%d" % (vA_, vA_, vA_, vA_, TAGW, vA_))
            a("ds_write_b32 v%d, v%d" % (vA_, vFl))
            a("s_mov_b32 s%d, 0x%x\nv_mov_b32 v%d, s%d\nv_mov_b32 v%d, %d" % (sC, ((1 << (2 * (NIN + 1))) - 1) | (0x3f << 16), vB_, sC, vCl, CLAIM))
            a("ds_write_b32 v%d, v%d" % (vCl, vB_))
            a("s_or_b32 s%d, s%d, 0x%x" % (sWant, sTag, PHM))
            a("s_waitcnt lgkmcnt(0)")
        for m in xiss:
            if xiss[m] == step and at[2 * m] == step + 1: a.wait_vm_tag("x%d" % m)
        if step == 15:
            a("s_waitcnt lgkmcnt(0)")
            if OPT["mxf"] and not OPT["early"]: pass
            elif OPT["mxf"]:
                a("v_mov_b32 v%d, %d" % (vA_, CNT))
                a.label("L_mxw")
                a("s_sleep 1")
                a("ds_read_b32 v%d, v%d offset:20" % (vB_, vA_))
                a("s_waitcnt lgkmcnt(0)")
                a("v_readfirstlane_b32 s%d, v%d" % (sT, vB_))
                a("s_cmp_lt_u32 s%d, 6\ns_cbranch_scc1 L_mxw" % sT)
            else: a("s_barrier")
            for x, t in kv_ops(18)[:OPT["early"]]: a(x, tag=t)
        if step == 16:
            if not OPT["st1"]: o1_store()
            a("s_sub_u32 s%d, s%d, 6\ns_lshl_b32 s%d, s%d, 14\ns_add_u32 s%d, s%d, %d" % (sBlkP, sW, sBlkP, sBlkP, sBlkP, sBlkP, 96 * KB))
            a("s_mov_b32 s%d, 0x%x" % (sBlkD, (-64 * KB) & 0xffffffff))
            op_setup(a)
        if step == OPT["pubat"] - 1: a.wait_vm_tag("st")
    for step in range(SPLIT):
        aux_step(a, step, pre=lambda: pre(step), extra=lambda: extra(step))
    a("s_cmp_eq_u32 s60, 0\ns_cbranch_scc0 L_op_b_aux")

def code_touch(a, start, end, n, uniq):
    a("s_getpc_b64 s[88:89]")
    a.label(uniq)
    for i in range(n):
        a.items.append(a._mk("v_add_u32 v148, 0x1234, v146")); a.items[-1].text = "v_add_u32 v148, %s-%s+%d, v146" % (start, uniq, i * 8192)
        a.items.append(a._mk("v_min_i32 v148, 0x1234, v148")); a.items[-1].text = "v_min_i32 v148, %s-%s, v148" % (end, uniq)
        a("v_ashrrev_i32 v149, 31, v148")
        a("v_mov_b32 v151, s89\nv_add_co_u32 v150, vcc, s88, v148\nv_addc_co_u32 v151, vcc, v151, v149, vcc")
        a.autowait = False
        a("global_load_dword v147, v[150:151], off", tag="x")
        a.autowait = True

def op_setup(a):
    if OPT["tst"]: a("s_mov_b32 s62, 0")
    lanes(a)
    a("v_lshlrev_b32 v1, 4, v12\nv_add_u32 v8, 4096, v1")
    a("v_lshrrev_b32 v9, 5, v12")
    a("v_and_b32 v4, 3, v12\nv_lshlrev_b32 v5, 1, v9\nv_xor_b32 v4, v4, v5\nv_lshlrev_b32 v4, 4, v4")
    a("v_and_b32 v5, 1, v13")
    a("v_lshl_add_u32 v4, v5, 6, v4\nv_lshl_add_u32 v4, v15, 10, v4\nv_lshl_add_u32 v4, v9, 12, v4")
    a("v_and_b32 v2, 3, v12\nv_lshlrev_b32 v2, 3, v2\nv_lshl_add_u32 v2, v15, 6, v2\nv_lshl_add_u32 v2, v5, 5, v2\nv_lshl_add_u32 v2, v13, 9, v2")
    a("v_add_u32 v2, s%d, v2\nv_xor_b32 v3, 32, v2" % sBlkP)
    a("v_xor_b32 v%d, 1, v5\nv_lshlrev_b32 v%d, 30, v%d" % (vOr, vOr, vOr))
    for q in range(1, 4): a("v_add_u32 v%d, %d, v4" % (4 + q, 7168 * q))
    for r in range(176, 256, 2): a("v_mov_b64 %s, 0" % vr(r, 2))
    a("s_lshr_b32 s60, s%d, 3\ns_and_b32 s61, s%d, 7" % (sJo, sJo))
    a("s_mul_i32 s%d, s60, 5120\ns_lshl_b32 s%d, s61, 7" % (sOb, sWb))
    a("s_and_b32 s%d, s%d, 7" % (sOutOff, sGo))
    a("s_mul_i32 s%d, s%d, 144\ns_mul_i32 s%d, s60, 80\ns_add_u32 s%d, s%d, s%d\ns_lshl_b32 s%d, s%d, 11" % (sOutOff, sOutOff, sT, sOutOff, sOutOff, sT, sOutOff, sOutOff))
    a("s_lshl_b32 s%d, s%d, 10\ns_add_u32 s%d, s%d, s%d\ns_add_u32 s%d, s%d, s%d" % (sT, sBlk, sOutOff, sOutOff, sT, sOutOff, sOutOff, sWb))
    a("s_lshl_b32 s%d, s%d, 5\ns_add_u32 s%d, s%d, s%d" % (sT, sOpIdx, sOutOff, sOutOff, sT))
    a("v_lshlrev_b32 v10, 11, v14\nv_lshl_add_u32 v10, v13, 3, v10")
    a("s_and_b32 s%d, s%d, 1\ns_lshl_b32 s%d, s%d, 1\ns_add_u32 s%d, s%d, s60\ns_lshl_b32 s%d, s%d, 2" % (sT, sGo, sT, sT, sT, sT, sT, sT))
    a("s_lshl_b32 s%d, s61, 1\ns_add_u32 s%d, s%d, s%d" % (sT2, sRm, sT, sT2))
    a("v_add_u32 v11, s%d, v14\nv_and_b32 v11, 15, v11\nv_lshlrev_b32 v11, 2, v11" % sRm)
    a("v_mov_b32 v%d, %d" % (vCl, CLAIM))
    a("s_mul_i32 s%d, s%d, %d\ns_add_u32 s%d, s%d, 1024\ns_add_u32 s90, s100, s%d\ns_addc_u32 s91, s101, 0" % (sT, sGo, OSTR, sT, sT, sT))
    srd(a, S_OL, 90, 91, "%d" % (128 * 9216))
    a("s_lshl_b32 s%d, s%d, 8\ns_add_u32 s%d, s%d, 0x%x\ns_add_u32 s90, s100, s%d\ns_addc_u32 s91, s101, 0" % (sT, sGo, sT, sT, FLAG_OFF, sT))
    srd(a, S_FLL, 90, 91, "64")

def op_path(a, NR, role, vm0):
    lab = lambda s: "L_op_%s_%s" % (role, s)
    B = lambda k, t: vr(16 + ((k % 4) * 5 + t) * 4, 4)
    ACC = lambda t, ct: vr(176 + (t * 4 + ct) * 4, 4)
    G = NR + 4
    def offs(so, static=None):
        if static is not None:
            a("s_and_b32 s%d, s%d, 1\ns_add_u32 s%d, s%d, s%d\ns_add_u32 s%d, s%d, %d" % (sT, sW, sT, sT, sRm, sT, sT, 2 * static))
            a("s_and_b32 s%d, s%d, 15\ns_lshl_b32 s%d, s%d, 3" % (sT, sT, sT, sT))
        else:
            a("s_ff1_i32_b32 s%d, s%d" % (sT2, sBit))
            a("s_add_u32 s%d, s%d, s%d\ns_and_b32 s%d, s%d, 15\ns_lshl_b32 s%d, s%d, 3" % (sT, sT2, sRm, sT, sT, sT, sT))
            a("s_lshr_b32 s%d, s%d, 4\ns_lshl_b32 s%d, s%d, 2\ns_add_u32 s%d, s%d, s%d" % (sT2, sT2, sT2, sT2, sT, sT, sT2))
        a("s_mul_i32 s%d, s%d, 9216\ns_add_u32 s%d, s%d, s%d" % (so, sT, so, so, sOb))
        a("s_lshl_b32 s%d, s%d, 15\ns_add_u32 s%d, s%d, s%d" % (sWn, sT, sWn, sWn, sWb))
        ph = 1 if static is not None else 2
        if OPT["xo"] & ph: a("s_mov_b32 s%d, s%d" % (so, sOb))
        if OPT["xw"] & ph: a("s_mov_b32 s%d, s%d" % (sWn, sWb))
    def w_ops(n, blk=sBlkP):
        k = n % 4
        o = ["s_add_u32 m0, s%d, %d" % (blk, k * 4096), "s_add_u32 s%d, s%d, %d" % (sT2, sWn, k * 32768)]
        for q in range(4):
            o.append(("buffer_load_dwordx4 v%d, %s, s%d offen offset:%d%s lds" % (4 + q, SR(S_WO), sT2, q * 1024, POL[OPT["polwo"]]), "w%d" % n))
        return o
    def o_ops(n, so):
        k = n % 4
        o = ["s_add_u32 s%d, s%d, %d" % (sT3, so, k * 9216)]
        for t in range(NR):
            if t < 4: o.append(("buffer_load_dwordx4 %s, v1, %s, s%d offen offset:%d%s" % (B(k, t), SR(S_OL), sT3, t * 1024, POL[OPT["polo"]]), "o%d" % n))
            else: o.append(("buffer_load_dwordx4 %s, v8, %s, s%d offen%s" % (B(k, t), SR(S_OL), sT3, POL[OPT["polo"]]), "o%d" % n))
        return o
    def reads(n):
        k = n % 4; buf = 96 + 16 * (k & 1)
        return ["ds_read_b64_tr_b16 %s, v%d offset:%d" % (vr(buf + 4 * ct + 2 * rd, 2), 3 if ct & 1 else 2, k * 4096 + rd * 2048 + (ct >> 1) * 256)
                for ct in range(4) for rd in range(2)]
    def run(ops):
        for x in ops:
            a.autowait = False
            if isinstance(x, tuple): a(x[0], tag=x[1])
            else: a(x)
            a.autowait = True
    def wait_tags(*tags):
        need = None
        for k_, (t_, d_) in enumerate(a.vm):
            if t_ in tags: need = k_
        if need is not None: a("s_waitcnt vmcnt(%d)" % (len(a.vm) - 1 - need))
    FLOAD = "buffer_load_dword v9, v11, %s, 0 offen sc1" % SR(S_FLL)
    def ready():
        run(["v_or_b32 v9, v%d, v9" % vOr, "v_cmp_eq_u32 vcc, s%d, v9" % sWant, "s_nop 1", "s_mov_b32 s%d, vcc_lo" % sR])
        if OPT["nopoll"]: a("s_mov_b32 s%d, -1" % sR)
    def attempt():
        run(["s_sub_u32 s%d, 0, s%d" % (sT2, sT), "s_and_b32 s%d, s%d, s%d" % (sBit, sT, sT2),
             "v_mov_b32 v%d, s%d" % (vCb, sBit), "s_mov_b64 exec, 1", "ds_or_rtn_b32 v%d, v%d, v%d" % (vCr, vCl, vCb), "s_mov_b64 exec, -1"])
    def resolve(fail):
        run(["v_readfirstlane_b32 s%d, v%d" % (sT, vCr), "s_or_b32 s%d, s%d, s%d" % (sC, sC, sT), "s_or_b32 s%d, s%d, s%d" % (sC, sC, sBit),
             "s_and_b32 s%d, s%d, s%d" % (sT, sT, sBit), "s_cbranch_scc1 %s" % fail])
    def cands():
        run(["s_not_b32 s%d, s%d" % (sT2, sC), "s_and_b32 s%d, s%d, s%d" % (sT, sR, sT2), "s_cselect_b32 s%d, s%d, s%d" % (sT, sT, sT2)])
    def toggle(): return ["v_add_u32 v2, s%d, v2" % sBlkD, "v_add_u32 v3, s%d, v3" % sBlkD]
    def toggle_s(): return ["s_add_u32 s%d, s%d, s%d" % (sBlkP, sBlkP, sBlkD), "s_sub_u32 s%d, 0, s%d" % (sBlkD, sBlkD)]
    def kstep(n, hw, ho, wait, dyn=None):
        k = n % 4
        wait()
        a("s_waitcnt lgkmcnt(0)")
        if dyn and k == 0:
            keep = list(a.vm)
            run(["s_cmp_eq_u32 s%d, -1" % sR, "s_cbranch_scc1 %s" % lab("nf" + dyn), FLOAD]); a.label(lab("nf" + dyn))
            a.vm = keep
        if dyn and hw and k == 2: run(["ds_read_b32 v%d, v%d" % (vCr, vCl)])
        if dyn and k == 3:
            run(["s_cmp_eq_u32 s%d, -1" % sR, "s_cbranch_scc1 %s" % lab("nr" + dyn)]); ready(); a.label(lab("nr" + dyn))
            run(["s_mov_b32 s%d, s%d" % (sBc, sBn), "s_mov_b32 s%d, s%d" % (sBn, sBit)])
            if hw:
                run(["v_readfirstlane_b32 s%d, v%d" % (sT, vCr), "s_or_b32 s%d, s%d, s%d" % (sC, sC, sT)])
                cands(); attempt()
            run(toggle())
        fillers = (reads(n + 1) if (ho or k < 3) else []) + (w_ops(n + 4) if hw else []) + (o_ops(n + 3, sOc) if k == 0 else (o_ops(n + 3, sOn) if ho else []))
        buf = 96 + 16 * (k & 1)
        ms = ["%s %s, %s, %s, %s" % (MF, ACC(t, ct), vr(buf + 4 * ct, 4), B(k, t), ACC(t, ct)) for ct in range(4) for t in range(NR)]
        fi = 0
        for i, m in enumerate(ms):
            run([m])
            tgt = ((i + 1) * len(fillers) + len(ms) - 3) // (len(ms) - 2)
            while fi < min(tgt, len(fillers)):
                run([fillers[fi]]); fi += 1
        a.lgkm = []
        if k == 3:
            a("s_mov_b32 s%d, s%d" % (sOc, sOn))
            if dyn: run(["s_mov_b32 s%d, s%d" % (sOn, sOnn)] + toggle_s())
    a.vm = list(vm0)
    a.label(lab("aux"))
    s0 = OPT["s0"]; kp = [int(c) for c in OPT["kp"]]
    assert len(kp) == 32 - s0 and s0 - 3 >= SPLIT
    cnt = [0]
    def pre(step):
        def f():
            if step == SPLIT and OPT["cpf"] & 1: code_touch(a, lab("aux"), lab("retry"), 2, lab("c1"))
            if step == 28 and OPT["cpf"] & 2:
                code_touch(a, lab("retry"), lab("fin"), 1, lab("c2"))
                code_touch(a, "L_bnd", "L_auxrole", 1, lab("c3"))
            if step == s0 - 3: offs(sOc, 0); run(w_ops(0) + w_ops(1))
            if step == s0 - 2:
                run([(FLOAD, "fl")])
                run(w_ops(2) + w_ops(3))
            if step == s0 - 1:
                wait_tags("fl")
                keep = list(a.vm)
                a.label(lab("f1"))
                ready()
                a("s_andn2_b32 s%d, 0x%x, s%d" % (sT, (1 << (2 * (NIN + 1))) - 1, sR))
                a("s_cbranch_scc0 %s" % lab("f1ok"))
                run(["s_sleep %d" % OPT["slp"], FLOAD, "s_waitcnt vmcnt(0)", "s_branch %s" % lab("f1")])
                a.label(lab("f1ok"))
                a.vm = keep
                run(o_ops(0, sOc) + o_ops(1, sOc) + o_ops(2, sOc))
                wait_tags("w0"); run(reads(0))
            if step == 31:
                if OPT["auxprio"]: a("s_setprio 0")
                run([(FLOAD, "fl")])
            if step >= s0:
                for _ in range(kp[step - s0]):
                    n = cnt[0]
                    if n % 4 == 0: offs(sOn, n // 4 + 1)
                    kstep(n, True, True, lambda: wait_tags("o%d" % n, "w%d" % (n + 1))); cnt[0] += 1
        return f
    for step in range(SPLIT, 32): aux_step(a, step, pre=pre(step))
    stamp(a, 3)
    a("s_and_b32 s%d, s%d, 1\ns_lshl_b32 s%d, 0x10000, s%d\ns_mov_b32 s%d, s%d" % (sT, sW, sBit, sT, sBn, sBit))
    offs(sOn)
    a("s_add_u32 s63, s%d, s%d" % (sBlkP, sBlkD))
    for n in range(4): run(w_ops(n, 63))
    wait_tags("fl", "o%d" % (cnt[0] + 2), "w%d" % (cnt[0] + 3))
    ready()
    a.vm = []
    a.label(lab("retry"))
    cands(); attempt()
    a.raw(".p2align 3")
    a.label(lab("top"))
    if OPT["tst"]:
        for r in range(6):
            a("s_cmp_lg_u32 s62, %d\ns_cbranch_scc1 %s\ns_memrealtime s[%d:%d]\n%s:" % (r, lab("ts%d" % r), 66 + 2 * r, 67 + 2 * r, lab("ts%d" % r)))
        a("s_add_u32 s62, s62, 1")
    a("s_waitcnt lgkmcnt(0)")
    a("s_cmp_eq_u32 s%d, 0\ns_cbranch_scc1 %s" % (sBit, lab("now")))
    resolve(lab("retry"))
    offs(sOnn)
    def body(hw, ho):
        g0 = 4 * hw + NR; g = 4 * hw + NR * ho
        for k in range(4): kstep(k, hw, ho, lambda: a("s_waitcnt vmcnt(%d)" % [2 * g0, 2 * g0, g0 + g, 2 * g][k]), dyn="%d%d" % (hw, ho))
        a("s_branch %s" % lab("top" if ho else "wait"))
    a("s_and_b32 s%d, s%d, s%d\ns_cbranch_scc0 %s" % (sT, sR, sBn, lab("b10")))
    body(1, 1)
    a.label(lab("b10")); body(1, 0)
    a.label(lab("now"))
    a("s_and_b32 s%d, s%d, s%d\ns_cbranch_scc0 %s" % (sT, sR, sBn, lab("b00")))
    body(0, 1)
    a.label(lab("b00")); body(0, 0)
    a.vm = []
    a.label(lab("join"))
    run([FLOAD])
    a("s_lshl_b32 s%d, 0x40000, s%d\ns_mov_b32 s%d, s%d" % (sBit, sW, sBc, sBit))
    offs(sOc)
    for n in range(4): run(w_ops(n))
    a("s_lshl_b32 s%d, 0x100000, s%d\ns_mov_b32 s%d, s%d" % (sBit, sW, sBn, sBit))
    offs(sOn)
    a("s_add_u32 s63, s%d, s%d" % (sBlkP, sBlkD))
    for n in range(4): run(w_ops(n, 63))
    run(["ds_read_b32 v%d, v%d" % (vCr, vCl), "s_waitcnt vmcnt(32) lgkmcnt(0)", "v_readfirstlane_b32 s%d, v%d" % (sC, vCr)])
    ready()
    cands(); attempt()
    a.label(lab("wait"))
    a("s_and_b32 s%d, s%d, s%d\ns_cbranch_scc1 %s" % (sT, sR, sBc, lab("go")))
    a("s_and_b32 s%d, s%d, s%d\ns_cbranch_scc1 %s" % (sT, sR, sBn, lab("swap")))
    a("s_or_b32 s%d, s%d, s%d\ns_cbranch_scc0 %s" % (sT, sBc, sBn, lab("done")))
    run(["s_sleep %d" % OPT["slp"], FLOAD, "s_waitcnt vmcnt(0)"])
    ready()
    a("s_branch %s" % lab("wait"))
    a.label(lab("swap"))
    run(["s_mov_b32 s%d, s%d" % (sT, sBc), "s_mov_b32 s%d, s%d" % (sBc, sBn), "s_mov_b32 s%d, s%d" % (sBn, sT),
         "s_mov_b32 s%d, s%d" % (sT, sOc), "s_mov_b32 s%d, s%d" % (sOc, sOn), "s_mov_b32 s%d, s%d" % (sOn, sT)] + toggle() + toggle_s())
    a.label(lab("go"))
    stamp(a, 6)
    if OPT["pad"]:
        padl = ["s_mov_b64 exec, 1"] + ["buffer_load_dword v%d, v11, %s, 0 offen" % (vA_, SR(S_FLL))] * 4 + ["s_mov_b64 exec, -1"]
        run(o_ops(0, sOc) + padl + o_ops(1, sOc) + padl + o_ops(2, sOc))
        a("s_waitcnt vmcnt(%d)" % (3 * NR + 8))
        run(reads(0))
    else:
        run(o_ops(0, sOc) + o_ops(1, sOc) + o_ops(2, sOc))
        a("s_waitcnt vmcnt(%d)" % (3 * NR))
        run(reads(0))
        a("s_waitcnt vmcnt(0)")
    a("s_branch %s" % lab("top"))
    a.label(lab("done"))
    a("s_nop 7")
    a.vm = []; a.lgkm = []
    stamp(a, 1)
    a("s_add_u32 s%d, s%d, s%d\ns_min_u32 s%d, s%d, s%d\ns_max_u32 s%d, s%d, s%d" % (sT, sBlkP, sBlkD, sT2, sT, sBlkP, sT3, sT, sBlkP))
    a("v_add_u32 v9, s%d, v1\nv_add_u32 v8, s%d, v1" % (sT2, sT3))
    for t in range(NR):
        for ct in range(4): a("ds_write_b128 v%d, %s offset:%d" % (9 if ct < 2 else 8, ACC(t, ct), (ct & 1) * 8192 + t * 1024))
    a("s_and_b32 s%d, s%d, 1\ns_lshl_b32 s%d, s%d, 13\ns_cmp_lt_u32 s%d, 2" % (sT, sOpIdx, sT, sT, sOpIdx))
    a("s_cselect_b32 s%d, 0, %d\ns_cselect_b32 s%d, %d, %d" % (sT2, 64 * KB, sT3, 16 * KB, 0) + "\ns_cselect_b32 s63, 0, %d" % (132 * KB))
    a("s_add_u32 s%d, s%d, s%d\ns_add_u32 s%d, s%d, s%d\ns_add_u32 s%d, s%d, s63" % (sT2, sT2, sT, sT3, sT3, sT, sT3, sT3))
    a("v_add_u32 v9, s%d, v1\nv_add_u32 v8, s%d, v1" % (sT2, sT3))
    a("s_waitcnt lgkmcnt(0)")
    a("s_barrier")
    for t in range(NR):
        for w in range(4):
            a("ds_read_b128 %s, v%d offset:%d" % (vr(16 + (t * 4 + w) * 4, 4), 8 if w == 1 else 9, [0, 0, 32 * KB, 48 * KB][w] + t * 1024))
    for t in range(NR):
        b = 16 + t * 16
        for r in range(0, 4, 2):
            a("v_pk_add_f32 %s, %s, %s" % (vr(b + r, 2), vr(b + r, 2), vr(b + 4 + r, 2)))
            a("v_pk_add_f32 %s, %s, %s" % (vr(b + 8 + r, 2), vr(b + 8 + r, 2), vr(b + 12 + r, 2)))
            a("v_pk_add_f32 %s, %s, %s" % (vr(b + r, 2), vr(b + r, 2), vr(b + 8 + r, 2)))
        a("v_cvt_pk_bf16_f32 v%d, v%d, v%d\nv_cvt_pk_bf16_f32 v%d, v%d, v%d" % (b, b, b + 1, b + 1, b + 2, b + 3))
        a("s_add_u32 s%d, s%d, %d" % (sT, sOutOff, t * 32768))
        a("buffer_store_dwordx2 %s, v10, %s, s%d offen%s" % (vr(b, 2), SR(S_OUT), sT, POL[OPT["polout"]]))
    if OPT["stamps"]:
        a("s_waitcnt vmcnt(0)")
        stamp(a, 7)
        stamp_store(a)
    a.label(lab("fin"))
    a("s_endpgm")
    a.vm = []; a.lgkm = []

def kernel():
    a = Asm()
    a.raw(".globl %s\n.p2align 8\n.type %s,@function" % (NAME, NAME)); a.label(NAME)
    a("s_cmp_ge_u32 s2, 256\ns_cbranch_scc1 L_end")
    if OPT["stamps"]:
        for k in range(1 if OPT["pst"] else NST): a("s_memrealtime s[%d:%d]" % (64 + 2 * k, 65 + 2 * k))
    a("s_and_b32 s%d, s2, 7\ns_lshr_b32 s%d, s2, 3\ns_lshr_b32 s%d, s%d, 2" % (sT, sT2, sBlk, sT))
    a("s_mul_i32 s%d, s%d, 40" % (sT3, sBlk))
    a("s_add_u32 s4, s0, s%d\ns_addc_u32 s5, s1, 0" % sT3)
    a("s_load_dwordx8 s[80:87], s[4:5], 0")
    a("s_load_dwordx2 s[88:89], s[4:5], 32")
    a("s_load_dwordx4 s[96:99], s[0:1], 80")
    a("s_load_dwordx2 s[92:93], s[0:1], 96")
    a("s_lshr_b32 s%d, s%d, 4\ns_lshl_b32 s%d, s%d, 1\ns_add_u32 s%d, s%d, s%d" % (sGo, sT2, sT3, sT, sGo, sGo, sT3))
    a("s_and_b32 s%d, s%d, 15" % (sJo, sT2))
    if OPT["map"] == 0:
        a("s_mov_b32 s%d, s%d\ns_mov_b32 s%d, s%d\ns_and_b32 s%d, s%d, 7" % (sG, sGo, sJJ, sJo, sB, sGo))
        a("s_and_b32 s%d, s%d, 1\ns_lshl_b32 s%d, s%d, 2\ns_add_u32 s%d, s%d, s%d" % (sRot, sG, sRot, sRot, sRot, sRot, sJJ))
    elif OPT["map"] == 1:
        a("s_and_b32 s%d, s%d, 7\ns_and_b32 s%d, s%d, 1\ns_lshl_b32 s%d, s%d, 3\ns_add_u32 s%d, s%d, s%d" % (sRot, sT2, sJJ, sT, sJJ, sJJ, sJJ, sJJ, sRot))
        a("s_lshr_b32 s%d, s%d, 3\ns_lshl_b32 s%d, s%d, 1\ns_add_u32 s%d, s%d, s%d" % (sB, sT2, sT3, sB, sRot, sRot, sT3))
        a("s_and_b32 s%d, s%d, 2\ns_lshl_b32 s%d, s%d, 1\ns_add_u32 s%d, s%d, s%d" % (sT3, sT, sT3, sT3, sB, sB, sT3))
        a("s_lshl_b32 s%d, s%d, 3\ns_add_u32 s%d, s%d, s%d" % (sG, sBlk, sG, sG, sB))
    else:
        a("s_and_b32 s%d, s%d, 3\ns_and_b32 s%d, s%d, 3\ns_lshl_b32 s%d, s%d, 2\ns_add_u32 s%d, s%d, s%d" % (sRot, sT2, sJJ, sT, sJJ, sJJ, sJJ, sJJ, sRot))
        a("s_lshr_b32 s%d, s%d, 2\ns_lshl_b32 s%d, s%d, 1\ns_add_u32 s%d, s%d, s%d" % (sB, sT2, sRot, sRot, sRot, sRot, sB))
        if OPT["cls"] == 1: a("s_and_b32 s%d, s%d, 3\ns_lshl_b32 s%d, s%d, 1\ns_lshr_b32 s%d, s%d, 4\ns_add_u32 s%d, s%d, s%d" % (sB, sB, sB, sB, sT3, sT2, sB, sB, sT3))
        a("s_lshl_b32 s%d, s%d, 3\ns_add_u32 s%d, s%d, s%d" % (sG, sBlk, sG, sG, sB))
    if OPT["cls"] == 1: a("s_lshr_b32 s3, s2, 7")
    if OPT["cls"] == 2: a("s_mov_b32 s3, s%d" % sBlk)
    a("v_lshrrev_b32 v12, 6, v0")
    a("v_readfirstlane_b32 s%d, v12" % sW)
    a("s_mul_i32 s62, s%d, 147456" % sB)
    def code_pf():
        a("s_getpc_b64 s[90:91]")
        a.label("L_pf")
        if OPT["pfw"]:
            a("s_lshr_b32 s%d, s2, 3\ns_and_b32 s%d, s%d, 3\ns_min_u32 s%d, s%d, 2\ns_lshl_b32 s%d, s%d, 15" % (sT, sT, sT, sT, sT, sT, sT))
            a("v_lshlrev_b32 v240, 7, v0\nv_add_u32 v240, s%d, v240" % sT)
        else: a("v_lshlrev_b32 v240, 7, v0")
        a.items.append(a._mk("v_min_u32 v240, 0x1234, v240")); a.items[-1].text = "v_min_u32 v240, L_end-L_pf, v240"
        if OPT["pfw"] == 2: a("s_cmp_ge_u32 s2, 32\ns_cbranch_scc1 L_nopf")
        a("global_load_dword v253, v240, s[90:91]")
        if OPT["pfw"] == 2: a.label("L_nopf")
    if not OPT["pfw"]: code_pf()
    if OPT["fast0"]:
        loader_setup(a)
        if OPT["pst"]: a("s_memrealtime s[66:67]")
        srds_first(a)
        if OPT["pst"]: a("s_memrealtime s[68:69]")
        a("s_cmp_lt_u32 s%d, 4\ns_cbranch_scc1 L_arole" % sW)
        st0 = (list(a.lgkm), list(a.vm))
        for x, t in stage_ops_(0, 4): a(x, tag=t)
        st = (list(a.lgkm), list(a.vm))
        a("s_cmp_ge_u32 s%d, 6\ns_cbranch_scc1 L_auxrole\ns_branch L_brole" % sW)
        a.label("L_arole")
        a.lgkm, a.vm = list(st0[0]), list(st0[1])
    else:
        a("s_cmp_ge_u32 s%d, 6\ns_cbranch_scc1 L_auxrole" % sW)
        st = (list(a.lgkm), list(a.vm))
        a("s_cmp_ge_u32 s%d, 4\ns_cbranch_scc1 L_brole" % sW)
    if OPT["pfw"]: code_pf()
    head(a, "A")
    a("s_branch L_att")
    a.lgkm, a.vm = list(st[0]), list(st[1])
    a.raw(".p2align 3"); a.label("L_brole")
    head(a, "B")
    a.label("L_att")
    attention(a)
    a.lgkm, a.vm = list(st[0]), list(st[1])
    a.raw(".p2align 3"); a.label("L_auxrole")
    head(a, "X")
    aux(a)
    vm0 = list(a.vm)
    op_path(a, 5, "a", vm0)
    op_path(a, 4, "b", vm0)
    a.label("L_end"); a("s_endpgm")
    a.pad_hazards()
    a.check_backedge("L_loop", "s_cbranch_scc1 L_loop")
    a.align8()
    return a.text()

out = []
out.append("; " + " ".join(sys.argv[1:]) + " : fused Q-projection + attention + O-projection, one launch (generated by dev/gen11.py)")
out.append("; @launch grid=(256,1,1) block=(512,1,1) lds=163840")
out.append('.amdgcn_target "amdgcn-amd-amdhsa--gfx950"\n.text')
out.append(kernel())
out.append('.section .rodata,"a"\n.p2align 6')
out.append(""".amdhsa_kernel %s
  .amdhsa_next_free_vgpr 256
  .amdhsa_next_free_sgpr 102
  .amdhsa_accum_offset 256
  .amdhsa_group_segment_fixed_size 0
  .amdhsa_kernarg_size 104
  .amdhsa_user_sgpr_count 2
  .amdhsa_user_sgpr_kernarg_segment_ptr 1
  .amdhsa_system_sgpr_workgroup_id_x 1
.end_amdhsa_kernel
""" % NAME)
print("\n".join(out))
```

```python
import sys, math, struct
sys.path.insert(0, "dev")
from asmlib import *

OPT = dict(stamps=0, samekv=0, clk=0, hst=0, nopoll=0, polo=2, polw=0, polx=0, polwo=0, pols=2, polkv=1, slp=4, lo=2,
           auxprio=0, sbs=1, s0=22, kp="3333333322", sst=-1, sstd=1, xo=0, xw=0, map=2, park=2, hprio=1, kv0=5, kv1=6, pk14=0, ck=0, polout=0, ptouch=0, tw0="", tw1="", g0=15, cap=0, capto=16, nol=0, q2mix=2, bst=-1, bw=0, pair=1, mxf=1, p14=1, early=8, tst=0, cpf=1, pfm=-1, pst=0, pfw=1, fast0=1, q2s="22111111111111", q2p=1, q2pr=0, kvc=0, xmf=0, cls=0, capl=0, capl0=2, capl1=17, pubat=18, st1=0, hb=4)
for a_ in sys.argv[1:]:
    k, v = a_.split("="); assert k in OPT, k; OPT[k] = v if k in ("kp", "tw0", "tw1", "q2s") else int(v)

NAME = "concat_heads__mha_block_cached__gqa_block_cached__near_ridge_kernel"
def f32(x): return "0x%08x" % struct.unpack("<I", struct.pack("<f", x))[0]
CSCALE = math.log2(math.e) / math.sqrt(128.0)
THR = 8.0
KB = 1024
SLOT = 32 * KB
XB = [96 * KB, 114 * KB, 132 * KB]
WB = [32 * KB, 48 * KB, 0]
Q2B = 96 * KB; Q1A = 132 * KB; Q1C = 32 * KB; EX1 = 132 * KB; EX2 = 80 * KB; W2R = 132 * KB
MLB = 156 * KB; CNT = 160 * KB - 128; TAGW = CNT + 8; CLAIM = CNT + 16; PFL = CNT + 32
STAMP_OFF = 0x10000000; FLAG_OFF = 0x2000000
PHM = 0x40000000
OSTR = 128 * 9216 + 1024
MF = "v_mfma_f32_16x16x32_bf16"
NST = 8
POL = ["", " nt", " sc1", " sc0 sc1", " sc1 nt"]
NIN = sum(int(c) for c in OPT["kp"]) // 4
assert NIN * 4 == sum(int(c) for c in OPT["kp"]) and NIN <= 7

HD = OPT["hb"]
HX = XB if HD == 3 else [64 * KB, 132 * KB, 96 * KB, 114 * KB]
HW = WB if HD == 3 else [0, 16 * KB, 32 * KB, 48 * KB]
SPLIT = OPT["pubat"] + 1
S_FL, S_WQ, S_X, S_O, S_KV, S_WO, S_OUT, S_DBG = 4, 8, 12, 16, 20, 24, 28, 32
S_OL, S_FLL = 8, 12
sW, sG, sJJ, sBlk, sB, sRot, sT, sT2, sT3 = 36, 37, 38, 39, 40, 41, 42, 43, 44
sCnt, sThr, sFl, sSlot, sDelta, sItem, sExS, sBar, sExch, sOoff = 45, 46, 47, 48, 49, 50, 51, 52, 53, 54
sNeg, sPos, sPart, sKg, sRho = 55, 56, 57, 59, 62
sHk, sHo = 46, 47
sOc, sOn, sWn, sBlkP, sRm, sBit, sR, sC = 46, 47, 48, 49, 51, 52, 55, 56
sBlkD, sBc, sBn, sOnn = 45, 53, 58, 86
sOb, sWb, sOutOff, sOpIdx, sTag, sWant, sTagA = 80, 81, 82, 83, 84, 85, 87
sGo, sJo = 94, 95

def srd(a, d, lo, hi, nrec):
    a("s_mov_b32 s%d, s%d\ns_mov_b32 s%d, s%d" % (d, lo, d + 1, hi))
    a("s_mov_b32 s%d, %s\ns_mov_b32 s%d, 0x20000" % (d + 2, nrec, d + 3))
def SR(d): return "s[%d:%d]" % (d, d + 3)

def cstamp(a, e):
    if OPT["clk"]: a("s_memtime s[%d:%d]\ns_memrealtime s[%d:%d]" % (66 + 2 * e, 67 + 2 * e, 70 + 2 * e, 71 + 2 * e))
def stamp(a, k, hs=False):
    if not OPT["stamps"] or OPT["ck"]: return
    if OPT["clk"] and 1 <= k <= 4: return
    if (OPT["sst"] >= 0 or OPT["bst"] >= 0 or OPT["tst"] or OPT["pst"]) and k and k != 7: return
    if OPT["hst"] and k and not hs: return
    if hs and not OPT["hst"]: return
    a("s_memrealtime s[%d:%d]" % (64 + 2 * k, 65 + 2 * k))
BSN = [0]
def bstamp(a, k):
    if OPT["bst"] < 0: return
    BSN[0] += 1
    a("s_cmp_lg_u32 s%d, %d\ns_cbranch_scc1 L_bs%d\ns_memrealtime s[%d:%d]\nL_bs%d:" % (sItem, OPT["bst"], BSN[0], 64 + 2 * k, 65 + 2 * k, BSN[0]))
def stamp_store(a):
    a("s_waitcnt vmcnt(0) lgkmcnt(0)")
    a("s_cmp_eq_u32 s%d, 6\ns_cselect_b32 s%d, 256, 0" % (sW, sT))
    a("s_mul_i32 s%d, s%d, 43\ns_lshr_b32 s%d, s%d, 8\ns_mul_i32 s%d, s%d, 6" % (sT2, sW, sT2, sT2, sT2, sT2))
    a("s_cmp_lg_u32 s%d, s%d\ns_cbranch_scc1 L_end" % (sT2, sW))
    a("s_add_u32 s96, s100, 0x%x\ns_addc_u32 s97, s101, 0" % STAMP_OFF)
    a("s_mov_b32 s98, 0x100000\ns_mov_b32 s99, 0x20000")
    a("s_add_u32 s3, s2, s%d\ns_mul_i32 s3, s3, %d" % (sT, NST * 8))
    a("v_mov_b32 v12, s3\ns_mov_b64 exec, 1")
    for k in range(NST):
        a("v_mov_b32 v14, s%d\nv_mov_b32 v15, s%d" % (64 + 2 * k, 65 + 2 * k))
        a("buffer_store_dwordx2 v[14:15], v12, s[96:99], 0 offen offset:%d" % (8 * k))
        a("s_nop 1")

def lanes(a):
    a("v_and_b32 v12, 63, v0\nv_lshrrev_b32 v13, 4, v12\nv_and_b32 v14, 15, v12\nv_bfe_u32 v15, v12, 2, 2")

vK, vVa, vVb = 1, 2, 3
vX1, vX2, vX3, vX4 = 4, 5, 6, 7
vONE, vT, vQ, vO, vL, vM, vS, vF = 8, 12, 16, 64, 160, 172, 184, 208
def Q(t, s): return vr(vQ + 16 * t + 4 * s, 4)
def O(t, dt): return vr(vO + 32 * t + 4 * dt, 4)
def L(t): return vr(vL + 4 * t, 4)
def M(t): return vr(vM + 4 * t, 4)
def S(t, kt): return vr(vS + 8 * t + 4 * kt, 4)
def F(i): return vF + 4 * i
vD = 128
vFo, vDg, vDg2, vFl, vA_, vB_, vOr, vCl, vCr, vCb = 136, 137, 138, 139, 140, 141, 142, 143, 144, 145

sKo = 50
S_V = 96
CAPN = [0]
def kv_ops(tile):
    slot = (tile + 2) % 3
    o = []
    for grp in range(4):
        for q in range(4):
            if OPT["kvc"]:
                pre_ = "s_add_u32 m0, s%d, %d\ns_add_u32 s%d, s%d, %d\n" % (sKg, slot * SLOT + (grp >> 1) * 16384 + (grp & 1) * 4096, sKo, sKg, tile * 16384 + (grp & 1) * 4096) if q == 0 else ""
                sr_ = SR(S_V if grp >= 2 else S_KV)
            else:
                pre_ = "s_add_u32 m0, s%d, %d\ns_mov_b32 s%d, %d\n" % (sKg, slot * SLOT + grp * 4096, sKo, tile * 16384 + grp * 4096) if q == 0 else ""
                sr_ = SR(S_KV)
            if q == 0 and OPT["capl"] and OPT["capl0"] <= tile <= OPT["capl1"]:
                CAPN[0] += 1
                pre_ = "s_cmp_eq_u32 s3, 0\ns_cbranch_scc1 L_cap%d\nRAW s_waitcnt vmcnt(%d)\nL_cap%d:\n" % (CAPN[0], OPT["capl"] - 4, CAPN[0]) + pre_
            o.append((pre_ + "buffer_load_dwordx4 v%d, %s, s%d offen offset:%d%s lds" % (vD + q + (4 if grp >= 2 else 0), sr_, sKo, q * 1024, POL[OPT["polkv"]]), "t%d" % tile))
    return o
KV_DONE = set()
def kv_tile(a, tile):
    if tile in KV_DONE and tile < 17: return
    for x, t in kv_ops(tile): a(x, tag=t)

def srds_first(a):
    a("s_waitcnt lgkmcnt(0)")
    srd(a, S_WQ, 86, 87, "%d" % (512 * 8192))
    a("s_add_u32 s80, s80, s62\ns_addc_u32 s81, s81, 0")
    srd(a, S_X, 80, 81, "147456")

def srds_rest(a):
    a("s_mul_i32 s%d, s%d, %d\ns_add_u32 s%d, s%d, 1024\ns_add_u32 s90, s92, s%d\ns_addc_u32 s91, s93, 0" % (sT, sG, OSTR, sT, sT, sT))
    srd(a, S_O, 90, 91, "%d" % (128 * 9216))
    if not OPT["kvc"]: a("s_cmp_eq_u32 s%d, 6\ns_cselect_b32 s82, s82, s84\ns_cselect_b32 s83, s83, s85" % sW)
    a("s_lshl_b32 s%d, s%d, 4\ns_add_u32 s%d, s%d, s%d" % (sT, sB, sT, sT, sJJ))
    if OPT["samekv"]: a("s_mov_b32 s%d, 0" % sT)
    a("s_lshl_b32 s%d, s%d, 19" % (sT, sT))
    a("s_add_u32 s82, s82, s%d\ns_addc_u32 s83, s83, 0" % sT)
    srd(a, S_KV, 82, 83, "524288")
    srd(a, S_WO, 88, 89, "%d" % (4096 * 1024))
    srd(a, S_OUT, 96, 97, "%d" % (8 * 144 * 1024 * 2))
    srd(a, S_DBG, 98, 99, "256")
    if OPT["kvc"]:
        a("s_add_u32 s84, s84, s%d\ns_addc_u32 s85, s85, 0" % sT)
        srd(a, S_V, 84, 85, "524288")
    a("s_lshl_b32 s%d, s%d, 8\ns_add_u32 s%d, s%d, 0x%x\ns_add_u32 s90, s92, s%d\ns_addc_u32 s91, s93, 0" % (sT, sG, sT, sT, FLAG_OFF, sT))
    srd(a, S_FL, 90, 91, "64")
    a("s_mov_b32 s100, s92\ns_mov_b32 s101, s93")
    if OPT["pair"]: a("s_and_b32 s%d, s%d, 1\ns_lshr_b32 s%d, s%d, 1" % (sKg, sW, sRho, sW))
    else: a("s_cmp_ge_u32 s%d, 3\ns_cselect_b32 s%d, 1, 0\ns_mul_i32 s%d, s%d, 3\ns_sub_u32 s%d, s%d, s%d" % (sW, sKg, sT, sKg, sRho, sW, sT))
    a("v_and_b32 v236, 31, v0\nv_lshlrev_b32 v236, 2, v236\nv_add_u32 v236, %d, v236\nv_mov_b32 v234, 0" % CNT)
    a("ds_write_b32 v236, v234")

def q_pack(a, b, scale):
    for r in range(0, 8, 2): a("v_pk_mul_f32 %s, %s, %s" % (vr(b + r, 2), vr(b + r, 2), scale))
    for r in range(4): a("v_cvt_pk_bf16_f32 v%d, v%d, v%d" % (b + r, b + 2 * r, b + 2 * r + 1))
def q_swap(a, b):
    a("v_permlane16_swap_b32 v%d, v%d\nv_permlane16_swap_b32 v%d, v%d" % (b, b + 2, b + 1, b + 3))

def loader_setup(a):
    vHW, vHX, vA1 = 224, 248, 231
    lanes(a)
    a("s_and_b32 s60, s%d, 3" % sW)
    a("v_and_b32 v%d, 3, v12\nv_lshlrev_b32 v%d, 4, v%d" % (vHX, vHX, vHX))
    a("v_lshl_add_u32 v%d, v13, 6, v%d" % (vHW, vHX))
    a("v_lshl_add_u32 v%d, v15, 8, v%d" % (vD, vHW))
    a("v_lshl_add_u32 v%d, v15, 13, v%d" % (vHW, vHW))
    a("s_lshl_b32 s%d, s60, 17\ns_lshl_b32 s%d, s%d, 9\ns_add_u32 s%d, s%d, s%d" % (sT, sT2, sJJ, sT, sT, sT2))
    a("v_add_u32 v%d, s%d, v%d" % (vHW, sT, vHW))
    a("v_add_u32 v%d, %d, v%d" % (vHW + 1, 31744, vHW))
    a("v_add_u32 v%d, %d, v%d\nv_xor_b32 v%d, 32, v%d" % (vHW + 2, 2 * 31744, vHW, vHW + 2, vHW + 2))
    a("v_add_u32 v%d, %d, v%d" % (vHW + 3, 31744, vHW + 2))
    a("s_lshl_b32 s63, s60, 12")
    a("s_mul_i32 s61, s60, 5\ns_min_u32 s61, s61, 14")
    a("v_and_b32 v%d, 1, v13\nv_lshl_add_u32 v4, v%d, 6, v%d" % (vA1, vA1, vHX))
    a("v_lshl_add_u32 v%d, v15, 10, v4" % vHX)
    a("v_lshrrev_b32 v%d, 5, v12\nv_lshl_add_u32 v8, v%d, 12, v%d" % (vA1, vA1, vHX))
    a("s_lshl_b32 s%d, s61, 13\ns_and_b32 s%d, s61, 1\ns_lshl_b32 s%d, s%d, 5" % (sT, sT2, sT2, sT2))
    a("v_add_u32 v%d, s%d, v8\nv_xor_b32 v%d, s%d, v%d" % (vHX, sT, vHX, sT2, vHX))
    a("v_add_u32 v%d, 7168, v%d\nv_xor_b32 v%d, 32, v%d" % (vHX + 1, vHX, vHX + 1, vHX + 1))
    a("v_add_u32 v%d, 14336, v%d\nv_add_u32 v%d, 14336, v%d" % (vHX + 2, vHX, vHX + 3, vHX + 1))
    a("v_add_u32 v%d, 32768, v%d" % (vHX + 4, vHX))
    a("s_lshl_b32 s61, s61, 10")

def stage_ops_(j, NX):
    vHW, vHX = 224, 248
    xb = HX[j % HD]; wb = HW[j % HD]
    o = []
    for qq in range(4):
        pre_ = "s_add_u32 s%d, s%d, %d\ns_and_b32 s%d, s%d, 7\ns_lshl_b32 s%d, s%d, 19\ns_add_u32 m0, s63, %d\n" % (sHk, sRot, j, sHk, sHk, sHo, sHk, wb) if qq == 0 else ""
        o.append(pre_ + "buffer_load_dwordx4 v%d, %s, s%d offen offset:%d%s lds" % (vHW + qq, SR(S_WQ), sHo, qq * 1024, POL[OPT["polw"]]))
    for e in range(NX):
        pre_ = "s_add_u32 m0, s61, %d\n" % (xb + 4096) if e == 4 else ("s_add_u32 m0, s61, %d\ns_lshl_b32 s%d, s%d, 7\n" % (xb, sHo, sHk) if e == 0 else "")
        o.append(pre_ + "buffer_load_dwordx4 v%d, %s, s%d offen offset:%d%s lds" % (vHX + e, SR(S_X), sHo, (e & 3) * 1024, POL[OPT["polx"]]))
    return [(x, "h%d" % j) for x in o]

def head(a, role):
    att = role != "X"; ldr = role != "A"
    NRT = 4 if ldr else 5; T0 = 5 if ldr else 0
    vHW, vHX = 224, 248
    vA1, vA2, vBx = 231, 232, 233
    cA1, cA2, cBx = 234, 235, 236
    ACC = lambda t, d: vr(16 + 8 * t + 4 * d, 4)
    BF = lambda u, t: vr(56 + 20 * u + 4 * t, 4)
    AF = lambda u, d: 96 + 8 * u + 4 * d
    NX = 5 if att else 4
    if not OPT["fast0"]: loader_setup(a)
    def stage_ops(j): return stage_ops_(j, NX) if ldr else []
    def stage_load(j):
        for x, t in stage_ops(j): a(x, tag=t)
    if not OPT["fast0"]:
        srds_first(a)
        stage_load(0)
    elif role == "B":
        x, t = stage_ops(0)[8]; a(x, tag=t)
    if OPT["pst"]: a("s_memrealtime s[70:71]")
    if role == "A" and OPT["ptouch"]:
        a("s_cmp_lg_u32 s%d, 0\ns_cbranch_scc1 L_nopt" % sW)
        a("s_lshl_b32 s%d, s%d, 4\ns_add_u32 s%d, s%d, s%d\ns_lshl_b32 s%d, s%d, 19" % (sT, sB, sT, sT, sJJ, sT, sT))
        a("v_mov_b32 v240, s%d" % sT)
        a.autowait = False
        a("global_load_dword v244, v240, s[82:83]\nglobal_load_dword v245, v240, s[84:85]")
        a("v_and_b32 v240, 1, v12\nv_lshlrev_b32 v241, 21, v240")
        a("global_load_dword v246, v241, s[88:89]\nglobal_load_dword v247, v241, s[96:97]")
        a("v_add_u32 v241, s%d, v240\nv_add_u32 v242, s%d, v240\nv_and_b32 v243, 2, v12\nv_cmp_eq_u32 vcc, 0, v243" % (sG, sGo))
        a("v_cndmask_b32 v241, v241, v242, vcc\ns_mov_b32 s%d, %d\nv_mul_lo_u32 v241, s%d, v241" % (sT, OSTR, sT))
        a("v_mov_b32 v242, 0x%x\nv_cmp_lt_u32 vcc, 3, v12\nv_cndmask_b32 v241, v241, v242, vcc" % (FLAG_OFF + 8192))
        a("global_load_dword v248, v241, s[92:93]")
        a.autowait = True
        a.label("L_nopt")
    srds_rest(a)
    a("v_and_b32 v%d, 3, v12\nv_lshlrev_b32 v%d, 3, v%d" % (vA1, vA1, vA1))
    a("v_lshl_add_u32 v%d, v15, 6, v%d" % (vA1, vA1))
    a("v_and_b32 v%d, 1, v13\nv_lshl_add_u32 v%d, v%d, 5, v%d" % (vA2, vA1, vA2, vA1))
    a("v_lshl_add_u32 v%d, v13, 10, v%d" % (vVa, vA1))
    a("v_lshl_add_u32 v%d, v13, 11, v%d" % (vA1, vA1))
    a("s_and_b32 s%d, s%d, 3\ns_lshl_b32 s%d, s%d, 8" % (sT, sW, sT, sT))
    a("v_add_u32 v%d, s%d, v%d\nv_xor_b32 v%d, 32, v%d" % (vA1, sT, vA1, vA2, vA1))
    a("v_lshrrev_b32 v%d, 3, v14\nv_lshlrev_b32 v%d, 1, v%d\nv_xor_b32 v%d, v%d, v13\nv_lshlrev_b32 v%d, 4, v%d" % (vBx, vBx, vBx, vBx, vBx, vBx, vBx))
    a("v_and_b32 v%d, 3, v14\nv_lshl_add_u32 v%d, v%d, 6, v%d" % (cBx, vBx, cBx, vBx))
    a("v_lshl_add_u32 v%d, v15, 9, v%d" % (vBx, vBx))
    if att:
        a("s_lshl_b32 s%d, s%d, 13\ns_add_u32 s%d, s%d, %d" % (sT, sKg, sT, sT, 2 * SLOT))
        a("v_add_u32 v%d, s%d, v%d\nv_add_u32 v%d, 16384, v%d\nv_xor_b32 v%d, 32, v%d" % (vVa, sT, vVa, vVa, vVa, vVb, vVa))
        a("v_lshlrev_b32 v%d, 10, v15" % vK)
        a("v_lshl_add_u32 v%d, v%d, 6, v%d" % (vK, cBx, vK))
        a("v_lshrrev_b32 v%d, 1, v13\nv_and_b32 v%d, 1, v13\nv_lshl_or_b32 v%d, v%d, 1, v%d" % (cA1, cA2, cA1, cA2, cA1))
        a("v_lshrrev_b32 v%d, 3, v14\nv_xor_b32 v%d, v%d, v%d" % (cA2, cA1, cA1, cA2))
        a("v_lshl_add_u32 v%d, v%d, 4, v%d\nv_add_u32 v%d, s%d, v%d" % (vK, cA1, vK, vK, sT, vK))
        for r in range(4): a("v_mov_b32 v%d, 0x3f803f80" % (vONE + r))
    else:
        a("s_cmp_eq_u32 s%d, 6" % sW)
        if OPT["kvc"]:
            a("s_cselect_b32 s60, 0, 128\ns_cselect_b32 s%d, 0, 8192" % sKg)
            a("v_mov_b32 v%d, v%d\nv_xor_b32 v%d, 16, v%d\nv_xor_b32 v%d, 16, v%d" % (vD + 1, vD, vD + 2, vD, vD + 3, vD))
            a("v_xor_b32 v%d, s60, v%d\nv_xor_b32 v%d, 32, v%d\nv_mov_b32 v%d, v%d\nv_mov_b32 v%d, v%d" % (vD + 4, vD, vD + 5, vD + 4, vD + 6, vD + 4, vD + 7, vD + 5))
        else:
            a("s_cselect_b32 s%d, 0, 32\ns_cselect_b32 s%d, 16, 0\ns_cselect_b32 s%d, 16, 32\ns_cselect_b32 s60, 0, 128\ns_cselect_b32 s%d, 0, 16384" % (sT, sT2, sT3, sKg))
            a("v_xor_b32 v%d, s%d, v%d\nv_xor_b32 v%d, s%d, v%d\nv_xor_b32 v%d, s%d, v%d" % (vD + 1, sT, vD, vD + 2, sT2, vD, vD + 3, sT3, vD))
            for q in range(4): a("v_xor_b32 v%d, s60, v%d" % (vD + 4 + q, vD + q))
        a("v_add_u32 v1, %d, v%d" % (XB[0], vBx))
    a("v_mov_b32 v238, %s\nv_mov_b32 v239, %s" % (f32(CSCALE), f32(CSCALE)))
    def reads(u):
        tr = lambda d: ["ds_read_b64_tr_b16 %s, v%d offset:%d" % (vr(AF(u, d) + 2 * rd, 2), cA2 if d else cA1, u * 8192 + rd * 1024) for rd in range(2)]
        return tr(0) + ["ds_read_b128 %s, v%d offset:%d" % (BF(u, t), cBx, (T0 + t) * 2048 + u * 256) for t in range(NRT)] + tr(1)
    def mfmas(u, first):
        return ["%s %s, %s, %s, %s" % (MF, ACC(t, d), vr(AF(u, d), 4), BF(u, t), "0" if first else ACC(t, d)) for d in range(2) for t in range(NRT)]
    if OPT["pst"]: a("s_memrealtime s[72:73]")
    stage_load(1)
    if OPT["pst"]: a("s_memrealtime s[74:75]")
    stamp(a, 1)
    def mix(ms, rs, ds=()):
        di = 0; ri = 0
        for k, x in enumerate(ms):
            a(x)
            for _ in range(2):
                if ri < len(rs): a(rs[ri]); ri += 1
            while di < len(ds) and di * len(ms) <= k * len(ds):
                a(ds[di][0], tag=ds[di][1]); di += 1
        for x, t in ds[di:]: a(x, tag=t)
    if ldr and OPT["hprio"]: a("s_setprio %d" % OPT["hprio"])
    for j in range(8):
        a.wait_vm_tag("h%d" % j)
        if OPT["pst"] and j == 0: a("s_memrealtime s[76:77]")
        a("v_add_u32 v%d, %d, v%d\nv_add_u32 v%d, %d, v%d\nv_add_u32 v%d, %d, v%d" % (cA1, HW[j % HD], vA1, cA2, HW[j % HD], vA2, cBx, HX[j % HD], vBx))
        a("s_waitcnt lgkmcnt(0)")
        a("s_barrier")
        if j < 7: stamp(a, j + 1, hs=True)
        d = stage_ops(j + HD - 1) if j + HD - 1 < 8 else []
        if j == 0 and HD == 4: d = stage_ops(2) + d
        cut = (len(d) + 1) // 2
        if j == 0:
            for x in reads(0): a(x)
            for x, t in d[:cut]: a(x, tag=t)
        else: mix(mfmas(1, False), reads(0), d[:cut])
        a("s_waitcnt lgkmcnt(0)")
        mix(mfmas(0, j == 0), reads(1), d[cut:])
        if not att and j == OPT["kv0"]: kv_tile(a, 0)
        if not att and j == OPT["kv1"] and j < 7: kv_tile(a, 1)
    for x in mfmas(1, False): a(x)
    a("s_and_b32 s60, s%d, 3\ns_lshl_b32 s60, s60, 10" % sW)
    a("v_lshlrev_b32 v%d, 4, v12\nv_add_u32 v%d, s60, v%d" % (cBx, cBx, cBx))
    a("v_add_u32 v%d, %d, v%d\nv_add_u32 v%d, %d, v%d" % (cA1, Q1A, cBx, cA2, Q1C, cBx))
    for t in range(NRT): q_pack(a, 16 + 8 * t, "v[238:239]")
    for t in range(NRT): q_swap(a, 16 + 8 * t)
    for t in range(NRT):
        tg = T0 + t
        a("ds_write_b128 v%d, %s offset:%d" % (cA1 if tg < 6 else cA2, vr(16 + 8 * t, 4), (tg if tg < 6 else tg - 6) * 4096))
    if ldr and OPT["hprio"]: a("s_setprio 0")
    a("s_waitcnt lgkmcnt(0)")
    a("s_barrier")
    if not att and OPT["kv1"] >= 7: kv_tile(a, 1)
    stamp(a, 2)

def pair_signal(a):
    a("s_add_u32 s%d, s%d, 1" % (sBar, sBar))
    a("v_mov_b32 v%d, s%d" % (vT, sBar))
    a("ds_write_b32 v%d, v%d" % (vX3, vT))

def pair_wait(a, name, reads):
    a.label(name)
    a("ds_read_b32 v%d, v%d" % (vT, vX4))
    for x in reads: a(x)
    a("s_waitcnt lgkmcnt(%d)" % len(reads))
    a("v_readfirstlane_b32 s%d, v%d" % (sT, vT))
    a("s_cmp_ge_u32 s%d, s%d" % (sT, sBar))
    a("s_cbranch_scc1 %s_ok" % name)
    a("s_waitcnt lgkmcnt(0)")
    if OPT["sbs"]: a("s_sleep %d" % OPT["sbs"])
    a("s_branch %s" % name)
    a.label(name + "_ok")
    a("s_waitcnt lgkmcnt(0)")

def publish(a, name, t0):
    a("s_waitcnt vmcnt(0)")
    a("s_mov_b64 exec, 1")
    a("v_mov_b32 v%d, %d\nv_mov_b32 v%d, 1" % (t0 + 2, CNT, t0 + 1))
    a("ds_add_rtn_u32 v%d, v%d, v%d offset:4" % (t0, t0 + 2, t0 + 1))
    a("ds_read_b32 v%d, v%d offset:8" % (t0 + 1, t0 + 2))
    a("s_waitcnt lgkmcnt(0)")
    a("v_readfirstlane_b32 s%d, v%d" % (sT, t0))
    a("s_cmp_lg_u32 s%d, 5" % sT)
    a("s_cbranch_scc1 %s" % name)
    a("v_or_b32 v%d, 0x%x, v%d" % (t0 + 1, PHM, t0 + 1))
    a("s_lshl_b32 s%d, s%d, 2" % (sT2, sJJ))
    a("v_mov_b32 v%d, s%d" % (t0, sT2))
    a("buffer_store_dword v%d, v%d, %s, 0 offen sc1" % (t0 + 1, t0, SR(S_FL)))
    a.label(name)
    a("s_mov_b64 exec, -1")

def attention(a):
    NT = 3; TL = 2
    a("s_waitcnt vmcnt(0)")
    a("v_lshlrev_b32 v%d, 4, v12" % vX1)
    a("s_mul_i32 s%d, s%d, %d\ns_add_u32 s%d, s%d, %d" % (sT, sRho, 12 * KB, sT, sT, Q1A))
    a("s_cmp_eq_u32 s%d, 2\ns_cselect_b32 s%d, %d, s%d" % (sRho, sT, Q1C, sT))
    a("v_add_u32 v%d, s%d, v%d" % (vX2, sT, vX1))
    for t in range(3):
        for s in range(4): a("ds_read_b128 %s, v%d offset:%d" % (Q(t, s), vX2, t * 4096 + s * 1024))
    if OPT["pair"]: a("s_xor_b32 s%d, s%d, 1" % (sPart, sW))
    else: a("s_add_u32 s%d, s%d, 3\ns_cmp_ge_u32 s%d, 6\ns_cselect_b32 s%d, 6, 0\ns_sub_u32 s%d, s%d, s%d" % (sPart, sW, sPart, sT2, sPart, sPart, sT2))
    a("s_lshl_b32 s%d, s%d, 2\ns_add_u32 s%d, s%d, %d\ns_lshl_b32 s%d, s%d, 2\ns_add_u32 s%d, s%d, %d" % (sT, sW, sT, sT, PFL, sT2, sPart, sT2, sT2, PFL))
    a("v_mov_b32 v%d, s%d\nv_mov_b32 v%d, s%d" % (vX3, sT, vX4, sT2))
    a("s_mov_b32 s%d, 0x40004000\ns_mov_b32 s%d, %s" % (sThr, sFl, f32(THR)))
    a("s_mov_b32 s%d, 0\ns_mov_b32 s%d, 0\ns_mov_b32 s%d, 2" % (sItem, sBar, sSlot))
    a("s_mul_i32 s%d, s%d, %d\ns_add_u32 s%d, s%d, %d" % (sExch, sRho, 12 * KB, sExch, sExch, Q2B))
    a("s_mov_b32 s%d, 0x%x\ns_mov_b32 s%d, %d" % (sNeg, (-2 * SLOT) & 0xffffffff, sPos, SLOT))
    a("s_lshl_b32 s%d, s%d, 3\ns_lshl_b32 s%d, s%d, 1\ns_add_u32 s%d, s%d, s%d\ns_mul_i32 s%d, s%d, 9" % (sT, sJJ, sT2, sKg, sT, sT, sT2, sT, sT))
    a("s_mul_i32 s%d, s%d, 3\ns_add_u32 s%d, s%d, s%d\ns_lshl_b32 s%d, s%d, 10\ns_add_u32 s%d, s%d, %d" % (sT2, sRho, sT, sT, sT2, sOoff, sT, sOoff, sOoff, 36 * KB))
    cstamp(a, 0)
    a.label("L_item")
    a("s_mov_b32 s%d, 0" % sCnt)
    a("s_waitcnt lgkmcnt(0)")
    Ga, Gb, Gc = 0, 4, 8
    def kread(kt, s):
        slot = (Gc + s) if kt == 0 else (Gb + s)
        return "ds_read_b128 %s, v%d offset:%d" % (vr(F(slot), 4), vK, kt * 4096 + s * 256)
    def vslot(dt): return (Ga + dt) if dt < 4 else (Gb + dt - 4)
    def vread(dt, rd):
        return "ds_read_b64_tr_b16 %s, v%d offset:%d" % (vr(F(vslot(dt)) + 2 * rd, 2), vVb if dt & 1 else vVa, rd * 4096 + (dt >> 1) * 256)
    def pv(t, dt, z=False): return "%s %s, %s, %s, %s" % (MF, O(t, dt), vr(F(vslot(dt)), 4), S(t, 0), "0" if z else O(t, dt))
    def lsum(t, z=False): return "%s %s, %s, %s, %s" % (MF, L(t), vr(vONE, 4), S(t, 0), "0" if z else L(t))
    def qk(t, kt, s, z=False):
        slot = (Gc + s) if kt == 0 else (Gb + s)
        return "%s %s, %s, %s, %s" % (MF, S(t, kt), vr(F(slot), 4), Q(t, s), ("0" if z else M(t)) if s == 0 else S(t, kt))
    EXP = lambda r: "v_exp_f32 v%d, v%d" % (r, r)
    def CVT(b, r): return "v_cvt_pk_bf16_f32 v%d, v%d, v%d" % (b + r, b + 2 * r, b + 2 * r + 1)
    def rowmax(b):
        return ["v_max3_f32 v%d, v%d, v%d, v%d" % (vT, b, b + 1, b + 2), "v_max3_f32 v%d, v%d, v%d, v%d" % (vT + 1, b + 3, b + 4, b + 5),
                "v_max3_f32 v%d, v%d, v%d, v%d" % (vT, vT, b + 6, b + 7), "v_max_f32 v%d, v%d, v%d" % (vT, vT, vT + 1),
                "v_mov_b32 v%d, v%d" % (vT + 1, vT), "v_permlane16_swap_b32 v%d, v%d" % (vT, vT + 1), "v_max_f32 v%d, v%d, v%d" % (vT, vT, vT + 1),
                "v_mov_b32 v%d, v%d" % (vT + 1, vT), "v_permlane32_swap_b32 v%d, v%d" % (vT, vT + 1), "v_max_f32 v%d, v%d, v%d" % (vT, vT, vT + 1)]
    def sm(t):
        b = vS + 8 * t
        g = [[EXP(b + r)] for r in range(4)] + [[CVT(b, 0), CVT(b, 1)]] + [[EXP(b + r)] for r in range(4, 8)] + [[CVT(b, 2), CVT(b, 3)]]
        g.append(["v_or3_b32 v%d, v%d, v%d, v%d" % (b + 4, b, b + 1, b + 2), "v_bitop3_b32 v%d, v%d, v%d, s%d bitop3:0xa8" % (b + 4, b + 4, b + 3, sThr)])
        g.append(["v_cmp_ne_u32 vcc, 0, v%d" % (b + 4)])
        return g
    def step(first):
        mf = []; fill = {}
        def put(idx, ops): fill.setdefault(idx, []).extend(ops)
        if not first: mf += [pv(TL, dt) for dt in (4, 5, 6, 7)] + [pv(TL, dt) for dt in (0, 1, 2, 3)] + [lsum(TL)]
        q0 = len(mf)
        qk_end = {}
        for t in range(NT):
            for kt in ((0, 1) if t < TL else (1, 0)):
                mf += [qk(t, kt, s, first) for s in range(4)]
                if t == TL and kt == 1: v47_at = len(mf) - 1
            qk_end[t] = len(mf) - 1
        pv_start = {}
        for t in range(TL):
            pv_start[t] = len(mf)
            mf += [pv(t, dt, first) for dt in range(4)] + [lsum(t, first)] + [pv(t, dt, first) for dt in range(4, 8)]
        n = len(mf)
        pre = [kread(0, s) for s in range(4)]
        if first:
            pre += [kread(1, s) for s in range(4)] + [vread(dt, rd) for dt in range(4) for rd in range(2)]
            pre += ["v_mov_b64 %s, 0" % vr(r, 2) for r in list(range(vO + 64, vO + 96, 2)) + [vL + 8, vL + 10]]
            pre += ["WAIT " + vr(F(Gc), 16)]
        else:
            for s in range(4): put(s, [kread(1, s)])
            for dt in range(4): put(4 + dt, [vread(dt, 0), vread(dt, 1)])
            put(8, ["WAIT " + vr(F(Gc), 16)])
        put(q0 + 3, ["WAIT " + vr(F(Gb), 16), "s_add_u32 s%d, s%d, 1" % (sSlot, sSlot)])
        put(q0 + 4, ["s_cmp_eq_u32 s%d, 3" % sSlot, "s_cselect_b32 s%d, s%d, s%d" % (sDelta, sNeg, sPos)])
        put(q0 + 5, ["s_cselect_b32 s%d, 0, s%d" % (sSlot, sSlot), "s_add_u32 s%d, s%d, 1" % (sCnt, sCnt)])
        for dt in range(4, 8): put(v47_at - 3 + (dt - 4), [vread(dt, 0), vread(dt, 1)])
        adv = ["v_add_u32 v%d, s%d, v%d" % (r, sDelta, r) for r in (vK, vVa, vVb)]
        tail = []
        if first:
            for t in range(NT):
                b = vS + 8 * t
                ops = rowmax(b) + ["v_add_f32 v%d, s%d, v%d" % (vT, sFl, vT)]
                ops += ["v_sub_f32 v%d, v%d, v%d" % (b + r, b + r, vT) for r in range(8)]
                ops += ["v_sub_f32 v%d, 0, v%d" % (vM + 4 * t + r, vT) for r in range(4)]
                ops += [EXP(b + r) for r in range(8)] + [CVT(b, r) for r in range(4)]
                lo = max(qk_end[t] + 3, [0, 21, 32][t]); hi = [20, 31, n - 1][t]
                for k, x in enumerate(ops): put(lo + k * (hi - lo + 1) // len(ops), [x])
            tail = adv
        else:
            groups = [(t, g) for t in range(NT) for g in sm(t)]
            lo = OPT["g0"]; span = n - lo
            for k, (t, g) in enumerate(groups):
                idx = lo + (k * span) // len(groups)
                assert t == TL or idx + 1 < pv_start[t], (t, idx)
                put(idx, g)
                if k % 12 == 11:
                    br = "s_cbranch_vccnz L_rare%d\nL_back%d:" % (t, t)
                    if t == 0: put(idx, [adv[0]])
                    if t == 1: put(idx, [adv[1]])
                    if t < TL: fill.setdefault(idx + 1, []).insert(0, br)
                    else: tail = [adv[2], "s_cmp_lt_u32 s%d, 16" % sCnt, br]
        put(pv_start[0] - 1, ["WAIT " + vr(F(Ga), 16)])
        put(pv_start[0] + 4, ["WAIT " + vr(F(Gb), 16)])
        a("s_barrier")
        if first and OPT["bst"] == 0:
            a("s_cmp_lg_u32 s%d, 1\ns_cbranch_scc1 L_bsx\ns_memrealtime s[76:77]\nL_bsx:" % sItem)
        for x in pre: a(x)
        for k, m in enumerate(mf):
            a(m)
            for x in fill.get(k, []): a(x)
        if not first:
            for _ in range(OPT["xmf"]): a("%s %s, %s, %s, %s" % (MF, vr(vT, 4), vr(F(0), 4), S(1, 0), vr(vT, 4) if _ else "0"))
        for x in tail: a(x)
    step(True)
    a.raw(".p2align 6")
    a.label("L_loop")
    step(False)
    a("s_cbranch_scc1 L_loop")
    a.label("L_bnd")
    if OPT["stamps"]:
        a("s_cmp_eq_u32 s%d, 0\ns_cbranch_scc0 L_st4" % sItem)
        stamp(a, 3); cstamp(a, 1)
        a("s_branch L_st4b")
        a.label("L_st4"); stamp(a, 4)
        a.label("L_st4b")
    bstamp(a, 1)
    a("s_cmp_eq_u32 s%d, 0" % sItem)
    a("s_cbranch_scc0 L_nomx")
    if OPT["mxf"]:
        a("s_mov_b64 exec, 1")
        a("v_mov_b32 v%d, %d\nv_mov_b32 v%d, 1" % (vT + 2, CNT, vT + 1))
        a("ds_add_u32 v%d, v%d offset:20" % (vT + 2, vT + 1))
        a.label("L_q2w")
        a("ds_read_b32 v%d, v%d offset:24" % (vT, vT + 2))
        a("s_waitcnt lgkmcnt(0)")
        a("v_readfirstlane_b32 s%d, v%d" % (sT, vT))
        a("s_cmp_lt_u32 s%d, 2\ns_cbranch_scc1 L_q2w" % sT)
        a("s_mov_b64 exec, -1")
    else:
        a("s_barrier")
    a("v_add_u32 v%d, s%d, v%d" % (vX2, sExch, vX1))
    for t in range(3):
        for s in range(4): a("ds_read_b128 %s, v%d offset:%d" % (Q(t, s), vX2, t * 4096 + s * 1024))
    pair_signal(a)
    a.label("L_nomx")
    bstamp(a, 2)
    a("s_lshl_b32 s%d, s%d, 12\ns_add_u32 s%d, s%d, %d" % (sT, sW, sT, sT, EX1))
    a("v_add_u32 v%d, s%d, v%d" % (vX2, sT, vX1))
    def send(t, areg, off):
        o = []
        for h in range(2):
            b = vO + 32 * t + 16 + 8 * h
            o += ["v_cvt_pk_bf16_f32 v%d, v%d, v%d" % (b + r, b + 2 * r, b + 2 * r + 1) for r in range(4)]
            o.append("ds_write_b128 v%d, %s offset:%d" % (areg, vr(b, 4), off + h * 1024))
        return o
    fin = [lsum(TL)] + [pv(TL, dt) for dt in (4, 5, 6, 7, 0, 1, 2, 3)]
    ex = send(0, vX2, 0) + send(1, vX2, 2048)
    for k, m in enumerate(fin):
        a(m)
        for x in ex[k * len(ex) // 9:(k + 1) * len(ex) // 9]: a(x)
    a("v_and_b32 v%d, 15, v0\nv_lshlrev_b32 v%d, 3, v%d" % (vT + 2, vT + 2, vT + 2))
    a("s_mul_i32 s%d, s%d, 384\ns_add_u32 s%d, s%d, %d" % (sT, sW, sT, sT, MLB))
    a("v_add_u32 v%d, s%d, v%d" % (vT + 3, sT, vT + 2))
    for t in range(3):
        a("v_mov_b32 v%d, v%d" % (vM + 4 * t + 1, vL + 4 * t))
        a("ds_write_b64 v%d, %s offset:%d" % (vT + 3, vr(vM + 4 * t, 2), t * 128))
    a("s_lshl_b32 s%d, s%d, 11\ns_add_u32 s%d, s%d, s%d" % (sT, sKg, sT, sT, sExch))
    a("v_add_u32 v%d, s%d, v%d" % (vX2, sT, vX1))
    a("s_waitcnt lgkmcnt(0)")
    pair_wait(a, "L_pw0", [])
    bstamp(a, 3)
    for x in send(2, vX2, 0): a(x)
    pair_signal(a)
    a("s_mul_i32 s%d, s%d, 384\ns_add_u32 s%d, s%d, %d" % (sT2, sPart, sT2, sT2, MLB))
    a("v_add_u32 v%d, s%d, v%d" % (vT + 3, sT2, vT + 2))
    a("v_xor_b32 v%d, 2048, v%d" % (vX2, vX2))
    a("s_lshl_b32 s%d, s%d, 12\ns_add_u32 s%d, s%d, %d" % (sT, sPart, sT, sT, EX1))
    a("v_add_u32 v%d, s%d, v%d" % (vT + 2, sT, vX1))
    a("s_waitcnt lgkmcnt(0)")
    rd = ["ds_read_b64 %s, v%d offset:%d" % (vr(vM + 4 * t + 2, 2), vT + 3, t * 128) for t in range(3)]
    for t in range(3):
        for h in range(2):
            rd.append("ds_read_b128 %s, v%d offset:%d" % (vr(vS + 8 * t + 4 * h, 4), vT + 2 if t < 2 else vX2, (t * 2048 if t < 2 else 0) + h * 1024))
    pair_wait(a, "L_pw", rd)
    bstamp(a, 4)
    for t in range(3):
        m = vM + 4 * t; l = vL + 4 * t
        a("v_min_f32 v%d, v%d, v%d" % (l, m, m + 2))
        a("v_sub_f32 v%d, v%d, v%d\nv_sub_f32 v%d, v%d, v%d" % (l + 1, l, m, l + 2, l, m + 2))
        a("v_exp_f32 v%d, v%d\nv_exp_f32 v%d, v%d" % (l + 1, l + 1, l + 2, l + 2))
        a("v_mul_f32 v%d, v%d, v%d" % (l + 3, l + 1, m + 1))
        a("v_fma_f32 v%d, v%d, v%d, v%d" % (l + 3, l + 2, m + 3, l + 3))
        a("v_rcp_f32 v%d, v%d" % (l, l + 3))
        a("v_mul_f32 v%d, v%d, v%d\nv_mul_f32 v%d, v%d, v%d" % (l + 3, l + 2, l, l + 2, l + 2, l))
        a("v_mul_f32 v%d, v%d, v%d\nv_mov_b32 v%d, v%d" % (l + 1, l + 1, l, l, l + 1))
    def combine(out):
        for t in range(3):
            l = vL + 4 * t
            for h in range(2):
                b = vO + 32 * t + 8 * h; u = b + 16; pk = vS + 8 * t + 4 * h
                for r in range(4):
                    a("v_lshlrev_b32 v%d, 16, v%d\nv_and_b32 v%d, 0xffff0000, v%d" % (u + 2 * r, pk + r, u + 2 * r + 1, pk + r))
                for r in range(0, 8, 2): a("v_pk_mul_f32 %s, %s, %s" % (vr(b + r, 2), vr(b + r, 2), vr(l, 2)))
                for r in range(0, 8, 2): a("v_pk_fma_f32 %s, %s, %s, %s" % (vr(b + r, 2), vr(u + r, 2), vr(l + 2, 2), vr(b + r, 2)))
                for r in range(4): a("v_cvt_pk_bf16_f32 v%d, v%d, v%d" % (pk + r, b + 2 * r, b + 2 * r + 1))
                out(t, h, pk)
    a("s_cmp_eq_u32 s%d, 0" % sItem)
    a("s_cbranch_scc0 L_att_done")
    combine(lambda t, h, pk: a("ds_write_b128 v%d, %s offset:%d" % (vT + 2 if t < 2 else vX2, vr(pk, 4), (t * 2048 if t < 2 else 0) + h * 1024)))
    bstamp(a, 5)
    a("s_mov_b32 s%d, 1\ns_lshl_b32 s%d, s%d, 12\ns_add_u32 s%d, s%d, %d" % (sItem, sExch, sRho, sExch, sExch, EX2))
    a("s_waitcnt lgkmcnt(0)")
    a("s_branch L_item")
    a.vm = []; a.lgkm = []
    for t in range(NT):
        b = vS + 8 * t
        a.label("L_rare%d" % t)
        a("s_nop 15")
        a("v_subrev_u32 v%d, s%d, v%d" % (vX2, sDelta, vK))
        for kt in range(2):
            for s in range(4):
                a("ds_read_b128 %s, v%d offset:%d" % (vr(vT, 4), vX2, kt * 4096 + s * 256))
                a("s_waitcnt lgkmcnt(0)")
                a("%s %s, %s, %s, %s" % (MF, S(t, kt), vr(vT, 4), Q(t, s), M(t) if s == 0 else S(t, kt)))
                a("s_nop 3")
        for x in rowmax(b): a(x)
        a("v_add_f32 v%d, s%d, v%d\nv_max_f32 v%d, 0, v%d" % (vT, sFl, vT, vT, vT))
        for r in range(8): a("v_sub_f32 v%d, v%d, v%d" % (b + r, b + r, vT))
        for r in range(4): a("v_sub_f32 v%d, v%d, v%d" % (vM + 4 * t + r, vM + 4 * t + r, vT))
        a("v_exp_f32 v%d, -v%d" % (vT + 1, vT))
        for r in range(4): a("v_mul_f32 v%d, v%d, v%d" % (vL + 4 * t + r, vL + 4 * t + r, vT + 1))
        for r in range(32): a("v_mul_f32 v%d, v%d, v%d" % (vO + 32 * t + r, vO + 32 * t + r, vT + 1))
        for r in range(8): a(EXP(b + r))
        for r in range(4): a(CVT(b, r))
        a("s_nop 3")
        a("s_branch L_back%d" % t)
    a.label("L_att_done")
    a("s_mov_b64 exec, 1")
    a("v_mov_b32 v%d, %d\nv_mov_b32 v%d, 1" % (vT + 2, CNT, vT + 1))
    a("ds_add_u32 v%d, v%d" % (vT + 2, vT + 1))
    a("s_mov_b64 exec, -1")
    combine(lambda t, h, pk: a("s_add_u32 s%d, s%d, %d\nbuffer_store_dwordx4 %s, v%d, %s, s%d offen%s" % (sT, sOoff, (h * 9 + t) * 1024, vr(pk, 4), vX1, SR(S_O), sT, POL[OPT["pols"]])))
    bstamp(a, 5)
    a("s_cmp_lt_u32 s%d, 2" % sW)
    a("s_cbranch_scc1 L_join")
    publish(a, "L_pub_x", vT)
    a("s_endpgm")
    a.label("L_join")
    a("s_mov_b32 s%d, s%d" % (sOpIdx, sW))
    a("s_lshl_b32 s%d, s%d, 14" % (sBlkP, sW))
    a("s_cmp_eq_u32 s%d, 0\ns_cselect_b32 s%d, %d, 0\ns_cselect_b32 s%d, 0, %d\ns_add_u32 s%d, s%d, s%d" % (sW, sBlkD, 64 * KB, sT, 116 * KB, sBlkD, sBlkD, sT))
    op_setup(a)
    publish(a, "L_pub_y", 100)
    bstamp(a, 6)
    stamp(a, 5)
    a("v_mov_b32 v96, %d" % CNT)
    a.label("L_w6")
    a("ds_read_b32 v98, v96")
    a("ds_read_b32 v97, v96 offset:12")
    a("s_waitcnt lgkmcnt(0)")
    a("v_readfirstlane_b32 s%d, v98\nv_readfirstlane_b32 s%d, v97" % (sT, sTag))
    a("s_cmp_lt_u32 s%d, 6\ns_cbranch_scc1 L_w6" % sT)
    a("s_or_b32 s%d, s%d, 0x%x" % (sWant, sTag, PHM))
    a("s_cmp_eq_u32 s60, 0\ns_cbranch_scc1 L_op_a_join\ns_branch L_op_b_join")
    a.vm = []; a.lgkm = []

def wo_touch(a, phase, i):
    a("s_and_b32 s%d, s%d, 1\ns_lshl_b32 s%d, s%d, 4\ns_add_u32 s%d, s%d, s%d" % (sT, sGo, sT, sT, sT, sT, sJo))
    a("s_lshr_b32 s%d, s%d, 1\ns_lshl_b32 s%d, s%d, 18\ns_and_b32 s%d, s%d, 1\ns_lshl_b32 s%d, s%d, 16\ns_add_u32 s%d, s%d, s%d" % (sT2, sT, sT2, sT2, sT, sT, sT, sT, sT, sT, sT2))
    a("s_and_b32 s%d, s%d, 1\ns_lshl_b32 s%d, s%d, 15\ns_add_u32 s%d, s%d, s%d" % (sT2, sW, sT2, sT2, sT, sT, sT2))
    a("s_add_u32 s%d, s%d, %d" % (sT2, sT, phase * 131072 + i * 8192))
    a.autowait = False
    a("buffer_load_dword v147, v146, %s, s%d offen" % (SR(S_WO), sT2), tag="x")
    a.autowait = True

def aux_step(a, step, pre=None, extra=None):
    a.wait_vm_tag("t%d" % step)
    a("s_barrier")
    if OPT["sst"] >= 0 and step >= OPT["sst"] and (step - OPT["sst"]) % OPT["sstd"] == 0 and (step - OPT["sst"]) // OPT["sstd"] < 6:
        k_ = 1 + (step - OPT["sst"]) // OPT["sstd"]
        a("s_memrealtime s[%d:%d]" % (64 + 2 * k_, 65 + 2 * k_))
    if OPT["ck"] and step in (1, 8, 15, 31):
        k_ = (1, 8, 15, 31).index(step)
        a("s_memrealtime s[%d:%d]\ns_memtime s[%d:%d]" % (64 + 4 * k_, 65 + 4 * k_, 66 + 4 * k_, 67 + 4 * k_))
    for ph in (0, 1):
        lst = [int(x) for x in OPT["tw%d" % ph].split(",") if x]
        for i, st_ in enumerate(lst):
            if st_ == step: wo_touch(a, ph, i)
    if pre: pre()
    nxt = step + 2
    if nxt < 32 and nxt != 18: kv_tile(a, nxt)
    if nxt == 18:
        for x, t in kv_ops(18)[OPT["early"]:]: a(x, tag=t)
    if step == OPT["pfm"]:
        a("s_lshl_b32 s%d, s%d, 4\ns_add_u32 s%d, s%d, s%d\ns_lshl_b32 s%d, s%d, 1\ns_and_b32 s%d, s%d, 1\ns_add_u32 s%d, s%d, s%d\ns_lshl_b32 s%d, s%d, 14" % (sT, sB, sT, sT, sJJ, sT, sT, sT2, sW, sT, sT, sT2, sT, sT))
        a.autowait = False
        a("buffer_load_dword v147, v146, %s, s%d offen" % (SR(S_WO), sT), tag="x")
        a("s_add_u32 s%d, s%d, 8192" % (sT, sT))
        a("buffer_load_dword v147, v146, %s, s%d offen" % (SR(S_WO), sT), tag="x")
        a.autowait = True
    if extra: extra()

def aux(a):
    if OPT["auxprio"]: a("s_setprio %d" % OPT["auxprio"])
    a("v_lshlrev_b32 v%d, 2, v14\nv_lshlrev_b32 v146, 7, v12" % vFo)
    a("s_lshl_b32 s%d, s%d, 4\nv_mov_b32 v%d, s%d" % (sT, sG, vDg, sT))
    a("s_lshl_b32 s%d, s%d, 4\nv_mov_b32 v%d, s%d\nv_cmp_eq_u32 vcc, 0, v12\nv_cndmask_b32 v%d, v%d, v%d, vcc" % (sT, sGo, vDg2, sT, vDg2, vDg2, vDg))
    a("s_sub_u32 s%d, s%d, 4" % (sOpIdx, sW))
    def ACC(t, d):
        i = t * 4 + d
        return 16 + 4 * i if i < 28 else 176 + 4 * (i - 28)
    BF = lambda t: vr(208 + 4 * t, 4)
    AF = lambda d: 156 + 4 * d
    sW2, sXq = 60, 61
    a("s_and_b32 s%d, s%d, 1" % (sT3, sW))
    a("v_lshrrev_b32 v9, 5, v12\nv_lshl_add_u32 v4, v15, 13, v4\nv_lshl_add_u32 v4, v9, 15, v4")
    a("s_lshl_b32 s%d, s%d, 9\ns_lshl_b32 s%d, s%d, 7\ns_add_u32 s%d, s%d, s%d\ns_add_u32 s%d, s%d, 256" % (sT, sJJ, sT2, sT3, sT, sT, sT2, sT, sT))
    a("v_add_u32 v4, s%d, v4" % sT)
    a("v_add_u32 v5, 64512, v4\nv_xor_b32 v5, 32, v5\nv_add_u32 v6, 129024, v4\nv_add_u32 v7, 129024, v5")
    a("s_mul_i32 s%d, s%d, %d\ns_add_u32 s%d, s%d, %d" % (sW2, sT3, 12 * KB, sW2, sW2, W2R))
    a("v_add_u32 v2, s%d, v2\nv_xor_b32 v3, 32, v2" % sW2)
    a("s_lshl_b32 s%d, s%d, 5\nv_xor_b32 v8, s%d, v8\nv_xor_b32 v9, 32, v8" % (sT, sT3, sT))
    a("s_mul_i32 s%d, s%d, 9" % (sXq, sT3))
    a("v_mov_b32 v10, %s\nv_mov_b32 v11, %s" % (f32(CSCALE), f32(CSCALE)))
    def chunk(m): a("s_add_u32 s%d, s%d, %d\ns_and_b32 s%d, s%d, 7" % (sT3, sRot, (6 + m) & 7, sT3, sT3))
    def w2_load(n):
        chunk(n // 2)
        a("s_lshl_b32 s%d, s%d, 19\ns_add_u32 s%d, s%d, %d\ns_add_u32 m0, s%d, %d" % (sT2, sT3, sT2, sT2, (n & 1) << 18, sW2, (n % 3) * 4096))
        for q in range(4):
            a("buffer_load_dwordx4 v%d, %s, s%d offen offset:%d%s lds" % (4 + q, SR(S_WQ), sT2, q * 1024, POL[OPT["polw"]]), tag="q%d" % n)
    def x2_load(m):
        chunk(m)
        a("s_lshl_b32 s%d, s%d, 7\ns_lshl_b32 s%d, s%d, 13\ns_add_u32 s%d, s%d, s%d\ns_lshl_b32 s63, s%d, 10" % (sT3, sT3, sT2, sXq, sT3, sT3, sT2, sXq))
        for e in range(9):
            a("s_add_u32 m0, s63, %d\ns_add_u32 s%d, s%d, %d" % (XB[m & 1] + e * 1024, sT2, sT3, e * 8192))
            a("buffer_load_dwordx4 v%d, %s, s%d offen%s lds" % (8 + (e & 1), SR(S_X), sT2, POL[OPT["polx"]]), tag="x%d" % m)
    AF2 = [172, 244, 248, 252]
    def q2_a(n, alt):
        a.wait_vm_tag("q%d" % n)
        for d in range(4):
            for rd in range(2):
                a("ds_read_b64_tr_b16 %s, v%d offset:%d" % (vr((AF2[d] if alt else AF(d)) + 2 * rd, 2), 3 if d & 1 else 2, (n % 3) * 4096 + rd * 512 + (d >> 1) * 256))
    def q2_b(n, t): a("ds_read_b128 %s, v1 offset:%d" % (BF(t), ((n // 2) & 1) * 18 * KB + t * 2048 + (n & 1) * 256))
    def q2_step(n, fill=(), chain=False, chained=False):
        A_ = (lambda d: AF2[d]) if chained else AF
        if not chained:
            q2_a(n, False)
            for t in range(9): q2_b(n, t)
            a("WAIT " + vr(AF(0), 16))
        else: a("WAIT " + " ".join(vr(r, 4) for r in AF2))
        if n + 3 < 16: w2_load(n + 3)
        if not chained: a("s_waitcnt lgkmcnt(0)")
        fi = 0
        def pack_ops(t):
            o = []
            for h in range(2):
                b = ACC(t, 2 * h)
                o += ["v_mul_f32 v%d, v10, v%d" % (b + r, b + r) for r in range(8)]
                o += ["v_cvt_pk_bf16_f32 v%d, v%d, v%d" % (b + r, b + 2 * r, b + 2 * r + 1) for r in range(4)]
            for h in range(2):
                b = ACC(t, 2 * h)
                o += ["v_permlane16_swap_b32 v%d, v%d" % (b, b + 2), "v_permlane16_swap_b32 v%d, v%d" % (b + 1, b + 3)]
            return o
        if n == 15 and OPT["p14"]: a("s_setprio %d" % OPT["p14"])
        for t in range(9):
            po = pack_ops(t - 2) if n == 15 and t >= 2 else []
            for d in range(4):
                c = vr(ACC(t, d), 4)
                a("%s %s, %s, %s, %s" % (MF, c, vr(A_(d), 4), BF(t), "0" if n == 0 else c))
                if chain and d == 3: q2_b(n + 1, t)
                if chain and t == 4 and d == 0: q2_a(n + 1, True)
                i = t * 4 + d
                if i >= 36 - OPT["q2mix"] * len(fill) and (36 - i) % OPT["q2mix"] == 0 and fi < len(fill):
                    a(fill[fi][0], tag=fill[fi][1]); fi += 1
                for x in po[7 * d:7 * d + 7]: a(x)
        assert fi == len(fill)
        if n == 15:
            for x in pack_ops(7) + pack_ops(8): a(x)
    sched = {}; n_ = 0
    for i_, c_ in enumerate(OPT["q2s"]):
        sched[i_ + 1] = list(range(n_, n_ + int(c_))); n_ += int(c_)
    assert n_ == 16 and len(OPT["q2s"]) <= 14
    at = {n: s_ for s_, l_ in sched.items() for n in l_}
    xiss = {m: at[2 * (m - 2) + 1] + 1 for m in range(2, 8)}
    for m in xiss: assert at[2 * m] > xiss[m], m
    QW = at[15] + 1
    def o1_store():
        a("s_and_b32 s%d, s%d, 1" % (sT3, sW))
        a("s_mul_i32 s%d, s%d, %d\ns_add_u32 s%d, s%d, %d\nv_add_u32 v%d, s%d, v1" % (sT, sT3, 4096 if OPT["pair"] else 3 * 4096, sT, sT, EX1, vA_, sT))
        a("s_lshl_b32 s%d, s%d, 11\ns_add_u32 s%d, s%d, %d\nv_add_u32 v%d, s%d, v1" % (sT, sT3, sT, sT, Q2B, vB_, sT))
        fr = [(i, t, h) for i in range(3) for t in range(3) for h in range(2)]
        for n, (i, t, h) in enumerate(fr):
            if t < 2: a("ds_read_b128 %s, v%d offset:%d" % (vr(16 + 4 * n, 4), vA_, i * (8192 if OPT["pair"] else 4096) + t * 2048 + h * 1024))
            else: a("ds_read_b128 %s, v%d offset:%d" % (vr(16 + 4 * n, 4), vB_, i * 12 * KB + h * 1024))
        a("s_mul_i32 s%d, s%d, %d\ns_mul_i32 s%d, s%d, %d\ns_add_u32 s%d, s%d, %d\ns_sub_u32 s%d, s%d, s%d" % (sT2, sJJ, 8 * 9216, sT3, sT3, 2 * 9216, sT2, sT2, 2 * 9216, sT2, sT2, sT3))
        for n, (i, t, h) in enumerate(fr):
            a("s_add_u32 s%d, s%d, %d" % (sT, sT2, (h * 9 + 3 * i + t) * 1024))
            a("buffer_store_dwordx4 %s, v1, %s, s%d offen%s" % (vr(16 + 4 * n, 4), SR(S_O), sT, POL[OPT["pols"]]), tag="st")
    def pre(step):
        if step == 0:
            for n in range(3): w2_load(n)
        for m in xiss:
            if xiss[m] == step: x2_load(m)
        ns = sched.get(step, [])
        ch = OPT["q2p"] and len(ns) == 2 and ns[0] % 2 == 0
        if ns and OPT["q2pr"] and ns[0] == 0: a("s_setprio %d" % OPT["q2pr"])
        for n in ns:
            if OPT["q2mix"] and n == ns[-1]:
                q2_step(n, kv_ops(step + 2), False, ch); KV_DONE.add(step + 2)
            else: q2_step(n, (), ch, False)
        if step == QW:
            a("s_and_b32 s%d, s%d, 1\ns_lshl_b32 s%d, s%d, 11\ns_add_u32 s%d, s%d, %d" % (sT, sW, sT, sT, sT, sT, Q2B))
            a("v_lshlrev_b32 v1, 4, v12\nv_add_u32 v2, s%d, v1" % sT)
            fr = [(t, h) for t in range(9) for h in range(2)]
            for t, h in fr: a("ds_write_b128 v2, %s offset:%d" % (vr(ACC(t, 2 * h), 4), t * 4096 + h * 1024))
            if OPT["mxf"]:
                a("s_mov_b64 exec, 1")
                a("v_mov_b32 v%d, %d\nv_mov_b32 v%d, 1" % (vA_, CNT, vB_))
                a("ds_add_u32 v%d, v%d offset:24" % (vA_, vB_))
                a("s_mov_b64 exec, -1")
            if OPT["p14"]: a("s_setprio %d" % OPT["auxprio"])
        if step == 16 and OPT["st1"]: o1_store()
        if step == OPT["pubat"]:
            a("s_cmp_lg_u32 s%d, 6\ns_cbranch_scc1 L_nopub" % sW)
            a("s_lshl_b32 s%d, s%d, 2\nv_mov_b32 v%d, s%d\nv_mov_b32 v%d, s%d" % (sT, sJJ, vA_, sT, vB_, sTagA))
            keep = list(a.vm)
            a("buffer_store_dword v%d, v%d, %s, 0 offen sc1" % (vB_, vA_, SR(S_FL)))
            a.vm = keep
            a.label("L_nopub")
    def extra(step):
        if step == 0:
            a("buffer_load_dword v%d, v%d, %s, 0 offen sc1" % (vFl, vFo, SR(S_FL)), tag="fl")
        if step == 3:
            cstamp(a, 0)
            a("s_lshl_b32 s%d, s%d, 3\ns_add_u32 s%d, s%d, s%d\ns_cmp_lg_u32 s%d, 6\ns_cbranch_scc1 L_nolead" % (sT, sJJ, sT, sT, sW, sT))
            a("v_lshrrev_b32 v%d, v14, v%d\nv_and_b32 v%d, 1, v%d\nv_cmp_eq_u32 vcc, 0, v%d" % (vFl, vFl, vFl, vFl, vFl))
            a("s_nop 1")
            a("s_and_b32 s%d, vcc_lo, 0xffff\ns_or_b32 s%d, s%d, 0x80000000" % (sT, sT, sT))
            a("v_mov_b32 v%d, s%d" % (vFl, sT))
            keep = list(a.vm)
            a("buffer_store_dword v%d, v%d, %s, 0 offen sc1" % (vFl, vDg, SR(S_DBG)))
            a.vm = keep
            a.label("L_nolead")
        if step == 9:
            a("buffer_load_dword v%d, v%d, %s, 0 offen sc1" % (vFl, vDg2, SR(S_DBG)), tag="fl")
        if step == 12:
            cstamp(a, 1)
            keep = list(a.vm)
            a.label("L_tag")
            a("v_cmp_eq_u32 vcc, 0, v%d" % vFl)
            a("s_cbranch_vccz L_tag_ok")
            a("s_sleep 8")
            a("buffer_load_dword v%d, v%d, %s, 0 offen sc1" % (vFl, vDg2, SR(S_DBG)))
            a("s_waitcnt vmcnt(0)")
            a("s_branch L_tag")
            a.label("L_tag_ok")
            a.vm = keep
            a("v_readlane_b32 s%d, v%d, 0\nv_readlane_b32 s%d, v%d, 1" % (sTagA, vFl, sTag, vFl))
            a("v_min_u32 v%d, 1, v12\nv_lshlrev_b32 v%d, 2, v%d\nv_add_u32 v%d, %d, v%d" % (vA_, vA_, vA_, vA_, TAGW, vA_))
            a("ds_write_b32 v%d, v%d" % (vA_, vFl))
            a("s_mov_b32 s%d, 0x%x\nv_mov_b32 v%d, s%d\nv_mov_b32 v%d, %d" % (sC, ((1 << (2 * (NIN + 1))) - 1) | (0x3f << 16), vB_, sC, vCl, CLAIM))
            a("ds_write_b32 v%d, v%d" % (vCl, vB_))
            a("s_or_b32 s%d, s%d, 0x%x" % (sWant, sTag, PHM))
            a("s_waitcnt lgkmcnt(0)")
        for m in xiss:
            if xiss[m] == step and at[2 * m] == step + 1: a.wait_vm_tag("x%d" % m)
        if step == 15:
            a("s_waitcnt lgkmcnt(0)")
            if OPT["mxf"] and not OPT["early"]: pass
            elif OPT["mxf"]:
                a("v_mov_b32 v%d, %d" % (vA_, CNT))
                a.label("L_mxw")
                a("s_sleep 1")
                a("ds_read_b32 v%d, v%d offset:20" % (vB_, vA_))
                a("s_waitcnt lgkmcnt(0)")
                a("v_readfirstlane_b32 s%d, v%d" % (sT, vB_))
                a("s_cmp_lt_u32 s%d, 6\ns_cbranch_scc1 L_mxw" % sT)
            else: a("s_barrier")
            for x, t in kv_ops(18)[:OPT["early"]]: a(x, tag=t)
        if step == 16:
            if not OPT["st1"]: o1_store()
            a("s_sub_u32 s%d, s%d, 6\ns_lshl_b32 s%d, s%d, 14\ns_add_u32 s%d, s%d, %d" % (sBlkP, sW, sBlkP, sBlkP, sBlkP, sBlkP, 96 * KB))
            a("s_mov_b32 s%d, 0x%x" % (sBlkD, (-64 * KB) & 0xffffffff))
            op_setup(a)
        if step == OPT["pubat"] - 1: a.wait_vm_tag("st")
    for step in range(SPLIT):
        aux_step(a, step, pre=lambda: pre(step), extra=lambda: extra(step))
    a("s_cmp_eq_u32 s60, 0\ns_cbranch_scc0 L_op_b_aux")

def code_touch(a, start, end, n, uniq):
    a("s_getpc_b64 s[88:89]")
    a.label(uniq)
    for i in range(n):
        a.items.append(a._mk("v_add_u32 v148, 0x1234, v146")); a.items[-1].text = "v_add_u32 v148, %s-%s+%d, v146" % (start, uniq, i * 8192)
        a.items.append(a._mk("v_min_i32 v148, 0x1234, v148")); a.items[-1].text = "v_min_i32 v148, %s-%s, v148" % (end, uniq)
        a("v_ashrrev_i32 v149, 31, v148")
        a("v_mov_b32 v151, s89\nv_add_co_u32 v150, vcc, s88, v148\nv_addc_co_u32 v151, vcc, v151, v149, vcc")
        a.autowait = False
        a("global_load_dword v147, v[150:151], off", tag="x")
        a.autowait = True

def op_setup(a):
    if OPT["tst"]: a("s_mov_b32 s62, 0")
    lanes(a)
    a("v_lshlrev_b32 v1, 4, v12\nv_add_u32 v8, 4096, v1")
    a("v_lshrrev_b32 v9, 5, v12")
    a("v_and_b32 v4, 3, v12\nv_lshlrev_b32 v5, 1, v9\nv_xor_b32 v4, v4, v5\nv_lshlrev_b32 v4, 4, v4")
    a("v_and_b32 v5, 1, v13")
    a("v_lshl_add_u32 v4, v5, 6, v4\nv_lshl_add_u32 v4, v15, 10, v4\nv_lshl_add_u32 v4, v9, 12, v4")
    a("v_and_b32 v2, 3, v12\nv_lshlrev_b32 v2, 3, v2\nv_lshl_add_u32 v2, v15, 6, v2\nv_lshl_add_u32 v2, v5, 5, v2\nv_lshl_add_u32 v2, v13, 9, v2")
    a("v_add_u32 v2, s%d, v2\nv_xor_b32 v3, 32, v2" % sBlkP)
    a("v_xor_b32 v%d, 1, v5\nv_lshlrev_b32 v%d, 30, v%d" % (vOr, vOr, vOr))
    for q in range(1, 4): a("v_add_u32 v%d, %d, v4" % (4 + q, 7168 * q))
    for r in range(176, 256, 2): a("v_mov_b64 %s, 0" % vr(r, 2))
    a("s_lshr_b32 s60, s%d, 3\ns_and_b32 s61, s%d, 7" % (sJo, sJo))
    a("s_mul_i32 s%d, s60, 5120\ns_lshl_b32 s%d, s61, 7" % (sOb, sWb))
    a("s_and_b32 s%d, s%d, 7" % (sOutOff, sGo))
    a("s_mul_i32 s%d, s%d, 144\ns_mul_i32 s%d, s60, 80\ns_add_u32 s%d, s%d, s%d\ns_lshl_b32 s%d, s%d, 11" % (sOutOff, sOutOff, sT, sOutOff, sOutOff, sT, sOutOff, sOutOff))
    a("s_lshl_b32 s%d, s%d, 10\ns_add_u32 s%d, s%d, s%d\ns_add_u32 s%d, s%d, s%d" % (sT, sBlk, sOutOff, sOutOff, sT, sOutOff, sOutOff, sWb))
    a("s_lshl_b32 s%d, s%d, 5\ns_add_u32 s%d, s%d, s%d" % (sT, sOpIdx, sOutOff, sOutOff, sT))
    a("v_lshlrev_b32 v10, 11, v14\nv_lshl_add_u32 v10, v13, 3, v10")
    a("s_and_b32 s%d, s%d, 1\ns_lshl_b32 s%d, s%d, 1\ns_add_u32 s%d, s%d, s60\ns_lshl_b32 s%d, s%d, 2" % (sT, sGo, sT, sT, sT, sT, sT, sT))
    a("s_lshl_b32 s%d, s61, 1\ns_add_u32 s%d, s%d, s%d" % (sT2, sRm, sT, sT2))
    a("v_add_u32 v11, s%d, v14\nv_and_b32 v11, 15, v11\nv_lshlrev_b32 v11, 2, v11" % sRm)
    a("v_mov_b32 v%d, %d" % (vCl, CLAIM))
    a("s_mul_i32 s%d, s%d, %d\ns_add_u32 s%d, s%d, 1024\ns_add_u32 s90, s100, s%d\ns_addc_u32 s91, s101, 0" % (sT, sGo, OSTR, sT, sT, sT))
    srd(a, S_OL, 90, 91, "%d" % (128 * 9216))
    a("s_lshl_b32 s%d, s%d, 8\ns_add_u32 s%d, s%d, 0x%x\ns_add_u32 s90, s100, s%d\ns_addc_u32 s91, s101, 0" % (sT, sGo, sT, sT, FLAG_OFF, sT))
    srd(a, S_FLL, 90, 91, "64")

def op_path(a, NR, role, vm0):
    lab = lambda s: "L_op_%s_%s" % (role, s)
    B = lambda k, t: vr(16 + ((k % 4) * 5 + t) * 4, 4)
    ACC = lambda t, ct: vr(176 + (t * 4 + ct) * 4, 4)
    G = NR + 4
    def offs(so, static=None):
        if static is not None:
            a("s_and_b32 s%d, s%d, 1\ns_add_u32 s%d, s%d, s%d\ns_add_u32 s%d, s%d, %d" % (sT, sW, sT, sT, sRm, sT, sT, 2 * static))
            a("s_and_b32 s%d, s%d, 15\ns_lshl_b32 s%d, s%d, 3" % (sT, sT, sT, sT))
        else:
            a("s_ff1_i32_b32 s%d, s%d" % (sT2, sBit))
            a("s_add_u32 s%d, s%d, s%d\ns_and_b32 s%d, s%d, 15\ns_lshl_b32 s%d, s%d, 3" % (sT, sT2, sRm, sT, sT, sT, sT))
            a("s_lshr_b32 s%d, s%d, 4\ns_lshl_b32 s%d, s%d, 2\ns_add_u32 s%d, s%d, s%d" % (sT2, sT2, sT2, sT2, sT, sT, sT2))
        a("s_mul_i32 s%d, s%d, 9216\ns_add_u32 s%d, s%d, s%d" % (so, sT, so, so, sOb))
        a("s_lshl_b32 s%d, s%d, 15\ns_add_u32 s%d, s%d, s%d" % (sWn, sT, sWn, sWn, sWb))
        ph = 1 if static is not None else 2
        if OPT["xo"] & ph: a("s_mov_b32 s%d, s%d" % (so, sOb))
        if OPT["xw"] & ph: a("s_mov_b32 s%d, s%d" % (sWn, sWb))
    def w_ops(n, blk=sBlkP):
        k = n % 4
        o = ["s_add_u32 m0, s%d, %d" % (blk, k * 4096), "s_add_u32 s%d, s%d, %d" % (sT2, sWn, k * 32768)]
        for q in range(4):
            o.append(("buffer_load_dwordx4 v%d, %s, s%d offen offset:%d%s lds" % (4 + q, SR(S_WO), sT2, q * 1024, POL[OPT["polwo"]]), "w%d" % n))
        return o
    def o_ops(n, so):
        k = n % 4
        o = ["s_add_u32 s%d, s%d, %d" % (sT3, so, k * 9216)]
        for t in range(NR):
            if t < 4: o.append(("buffer_load_dwordx4 %s, v1, %s, s%d offen offset:%d%s" % (B(k, t), SR(S_OL), sT3, t * 1024, POL[OPT["polo"]]), "o%d" % n))
            else: o.append(("buffer_load_dwordx4 %s, v8, %s, s%d offen%s" % (B(k, t), SR(S_OL), sT3, POL[OPT["polo"]]), "o%d" % n))
        return o
    def reads(n):
        k = n % 4; buf = 96 + 16 * (k & 1)
        return ["ds_read_b64_tr_b16 %s, v%d offset:%d" % (vr(buf + 4 * ct + 2 * rd, 2), 3 if ct & 1 else 2, k * 4096 + rd * 2048 + (ct >> 1) * 256)
                for ct in range(4) for rd in range(2)]
    def run(ops):
        for x in ops:
            a.autowait = False
            if isinstance(x, tuple): a(x[0], tag=x[1])
            else: a(x)
            a.autowait = True
    def wait_tags(*tags):
        need = None
        for k_, (t_, d_) in enumerate(a.vm):
            if t_ in tags: need = k_
        if need is not None: a("s_waitcnt vmcnt(%d)" % (len(a.vm) - 1 - need))
    FLOAD = "buffer_load_dword v9, v11, %s, 0 offen sc1" % SR(S_FLL)
    def ready():
        run(["v_or_b32 v9, v%d, v9" % vOr, "v_cmp_eq_u32 vcc, s%d, v9" % sWant, "s_nop 1", "s_mov_b32 s%d, vcc_lo" % sR])
        if OPT["nopoll"]: a("s_mov_b32 s%d, -1" % sR)
    def attempt():
        run(["s_sub_u32 s%d, 0, s%d" % (sT2, sT), "s_and_b32 s%d, s%d, s%d" % (sBit, sT, sT2),
             "v_mov_b32 v%d, s%d" % (vCb, sBit), "s_mov_b64 exec, 1", "ds_or_rtn_b32 v%d, v%d, v%d" % (vCr, vCl, vCb), "s_mov_b64 exec, -1"])
    def resolve(fail):
        run(["v_readfirstlane_b32 s%d, v%d" % (sT, vCr), "s_or_b32 s%d, s%d, s%d" % (sC, sC, sT), "s_or_b32 s%d, s%d, s%d" % (sC, sC, sBit),
             "s_and_b32 s%d, s%d, s%d" % (sT, sT, sBit), "s_cbranch_scc1 %s" % fail])
    def cands():
        run(["s_not_b32 s%d, s%d" % (sT2, sC), "s_and_b32 s%d, s%d, s%d" % (sT, sR, sT2), "s_cselect_b32 s%d, s%d, s%d" % (sT, sT, sT2)])
    def toggle(): return ["v_add_u32 v2, s%d, v2" % sBlkD, "v_add_u32 v3, s%d, v3" % sBlkD]
    def toggle_s(): return ["s_add_u32 s%d, s%d, s%d" % (sBlkP, sBlkP, sBlkD), "s_sub_u32 s%d, 0, s%d" % (sBlkD, sBlkD)]
    def kstep(n, hw, ho, wait, dyn=None):
        k = n % 4
        wait()
        a("s_waitcnt lgkmcnt(0)")
        if dyn and k == 0:
            keep = list(a.vm)
            run(["s_cmp_eq_u32 s%d, -1" % sR, "s_cbranch_scc1 %s" % lab("nf" + dyn), FLOAD]); a.label(lab("nf" + dyn))
            a.vm = keep
        if dyn and hw and k == 2: run(["ds_read_b32 v%d, v%d" % (vCr, vCl)])
        if dyn and k == 3:
            run(["s_cmp_eq_u32 s%d, -1" % sR, "s_cbranch_scc1 %s" % lab("nr" + dyn)]); ready(); a.label(lab("nr" + dyn))
            run(["s_mov_b32 s%d, s%d" % (sBc, sBn), "s_mov_b32 s%d, s%d" % (sBn, sBit)])
            if hw:
                run(["v_readfirstlane_b32 s%d, v%d" % (sT, vCr), "s_or_b32 s%d, s%d, s%d" % (sC, sC, sT)])
                cands(); attempt()
            run(toggle())
        fillers = (reads(n + 1) if (ho or k < 3) else []) + (w_ops(n + 4) if hw else []) + (o_ops(n + 3, sOc) if k == 0 else (o_ops(n + 3, sOn) if ho else []))
        buf = 96 + 16 * (k & 1)
        ms = ["%s %s, %s, %s, %s" % (MF, ACC(t, ct), vr(buf + 4 * ct, 4), B(k, t), ACC(t, ct)) for ct in range(4) for t in range(NR)]
        fi = 0
        for i, m in enumerate(ms):
            run([m])
            tgt = ((i + 1) * len(fillers) + len(ms) - 3) // (len(ms) - 2)
            while fi < min(tgt, len(fillers)):
                run([fillers[fi]]); fi += 1
        a.lgkm = []
        if k == 3:
            a("s_mov_b32 s%d, s%d" % (sOc, sOn))
            if dyn: run(["s_mov_b32 s%d, s%d" % (sOn, sOnn)] + toggle_s())
    a.vm = list(vm0)
    a.label(lab("aux"))
    s0 = OPT["s0"]; kp = [int(c) for c in OPT["kp"]]
    assert len(kp) == 32 - s0 and s0 - 3 >= SPLIT
    cnt = [0]
    def pre(step):
        def f():
            if step == SPLIT and OPT["cpf"] & 1: code_touch(a, lab("aux"), lab("retry"), 2, lab("c1"))
            if step == 28 and OPT["cpf"] & 2:
                code_touch(a, lab("retry"), lab("fin"), 1, lab("c2"))
                code_touch(a, "L_bnd", "L_auxrole", 1, lab("c3"))
            if step == s0 - 3: offs(sOc, 0); run(w_ops(0) + w_ops(1))
            if step == s0 - 2:
                run([(FLOAD, "fl")])
                run(w_ops(2) + w_ops(3))
            if step == s0 - 1:
                wait_tags("fl")
                keep = list(a.vm)
                a.label(lab("f1"))
                ready()
                a("s_andn2_b32 s%d, 0x%x, s%d" % (sT, (1 << (2 * (NIN + 1))) - 1, sR))
                a("s_cbranch_scc0 %s" % lab("f1ok"))
                run(["s_sleep %d" % OPT["slp"], FLOAD, "s_waitcnt vmcnt(0)", "s_branch %s" % lab("f1")])
                a.label(lab("f1ok"))
                a.vm = keep
                run(o_ops(0, sOc) + o_ops(1, sOc) + o_ops(2, sOc))
                wait_tags("w0"); run(reads(0))
            if step == 31:
                if OPT["auxprio"]: a("s_setprio 0")
                run([(FLOAD, "fl")])
            if step >= s0:
                for _ in range(kp[step - s0]):
                    n = cnt[0]
                    if n % 4 == 0: offs(sOn, n // 4 + 1)
                    kstep(n, True, True, lambda: wait_tags("o%d" % n, "w%d" % (n + 1))); cnt[0] += 1
        return f
    for step in range(SPLIT, 32): aux_step(a, step, pre=pre(step))
    stamp(a, 3)
    a("s_and_b32 s%d, s%d, 1\ns_lshl_b32 s%d, 0x10000, s%d\ns_mov_b32 s%d, s%d" % (sT, sW, sBit, sT, sBn, sBit))
    offs(sOn)
    a("s_add_u32 s63, s%d, s%d" % (sBlkP, sBlkD))
    for n in range(4): run(w_ops(n, 63))
    wait_tags("fl", "o%d" % (cnt[0] + 2), "w%d" % (cnt[0] + 3))
    ready()
    a.vm = []
    a.label(lab("retry"))
    cands(); attempt()
    a.raw(".p2align 3")
    a.label(lab("top"))
    if OPT["tst"]:
        for r in range(6):
            a("s_cmp_lg_u32 s62, %d\ns_cbranch_scc1 %s\ns_memrealtime s[%d:%d]\n%s:" % (r, lab("ts%d" % r), 66 + 2 * r, 67 + 2 * r, lab("ts%d" % r)))
        a("s_add_u32 s62, s62, 1")
    a("s_waitcnt lgkmcnt(0)")
    a("s_cmp_eq_u32 s%d, 0\ns_cbranch_scc1 %s" % (sBit, lab("now")))
    resolve(lab("retry"))
    offs(sOnn)
    def body(hw, ho):
        g0 = 4 * hw + NR; g = 4 * hw + NR * ho
        for k in range(4): kstep(k, hw, ho, lambda: a("s_waitcnt vmcnt(%d)" % [2 * g0, 2 * g0, g0 + g, 2 * g][k]), dyn="%d%d" % (hw, ho))
        a("s_branch %s" % lab("top" if ho else "wait"))
    a("s_and_b32 s%d, s%d, s%d\ns_cbranch_scc0 %s" % (sT, sR, sBn, lab("b10")))
    body(1, 1)
    a.label(lab("b10")); body(1, 0)
    a.label(lab("now"))
    a("s_and_b32 s%d, s%d, s%d\ns_cbranch_scc0 %s" % (sT, sR, sBn, lab("b00")))
    body(0, 1)
    a.label(lab("b00")); body(0, 0)
    a.vm = []
    a.label(lab("join"))
    run([FLOAD])
    a("s_lshl_b32 s%d, 0x40000, s%d\ns_mov_b32 s%d, s%d" % (sBit, sW, sBc, sBit))
    offs(sOc)
    for n in range(4): run(w_ops(n))
    a("s_lshl_b32 s%d, 0x100000, s%d\ns_mov_b32 s%d, s%d" % (sBit, sW, sBn, sBit))
    offs(sOn)
    a("s_add_u32 s63, s%d, s%d" % (sBlkP, sBlkD))
    for n in range(4): run(w_ops(n, 63))
    run(["ds_read_b32 v%d, v%d" % (vCr, vCl), "s_waitcnt vmcnt(32) lgkmcnt(0)", "v_readfirstlane_b32 s%d, v%d" % (sC, vCr)])
    ready()
    cands(); attempt()
    a.label(lab("wait"))
    a("s_and_b32 s%d, s%d, s%d\ns_cbranch_scc1 %s" % (sT, sR, sBc, lab("go")))
    a("s_and_b32 s%d, s%d, s%d\ns_cbranch_scc1 %s" % (sT, sR, sBn, lab("swap")))
    a("s_or_b32 s%d, s%d, s%d\ns_cbranch_scc0 %s" % (sT, sBc, sBn, lab("done")))
    run(["s_sleep %d" % OPT["slp"], FLOAD, "s_waitcnt vmcnt(0)"])
    ready()
    a("s_branch %s" % lab("wait"))
    a.label(lab("swap"))
    run(["s_mov_b32 s%d, s%d" % (sT, sBc), "s_mov_b32 s%d, s%d" % (sBc, sBn), "s_mov_b32 s%d, s%d" % (sBn, sT),
         "s_mov_b32 s%d, s%d" % (sT, sOc), "s_mov_b32 s%d, s%d" % (sOc, sOn), "s_mov_b32 s%d, s%d" % (sOn, sT)] + toggle() + toggle_s())
    a.label(lab("go"))
    stamp(a, 6)
    run(o_ops(0, sOc) + o_ops(1, sOc) + o_ops(2, sOc))
    a("s_waitcnt vmcnt(%d)" % (3 * NR))
    run(reads(0))
    a("s_waitcnt vmcnt(0)")
    a("s_branch %s" % lab("top"))
    a.label(lab("done"))
    a("s_nop 7")
    a.vm = []; a.lgkm = []
    stamp(a, 1)
    a("s_add_u32 s%d, s%d, s%d\ns_min_u32 s%d, s%d, s%d\ns_max_u32 s%d, s%d, s%d" % (sT, sBlkP, sBlkD, sT2, sT, sBlkP, sT3, sT, sBlkP))
    a("v_add_u32 v9, s%d, v1\nv_add_u32 v8, s%d, v1" % (sT2, sT3))
    for t in range(NR):
        for ct in range(4): a("ds_write_b128 v%d, %s offset:%d" % (9 if ct < 2 else 8, ACC(t, ct), (ct & 1) * 8192 + t * 1024))
    a("s_and_b32 s%d, s%d, 1\ns_lshl_b32 s%d, s%d, 13\ns_cmp_lt_u32 s%d, 2" % (sT, sOpIdx, sT, sT, sOpIdx))
    a("s_cselect_b32 s%d, 0, %d\ns_cselect_b32 s%d, %d, %d" % (sT2, 64 * KB, sT3, 16 * KB, 0) + "\ns_cselect_b32 s63, 0, %d" % (132 * KB))
    a("s_add_u32 s%d, s%d, s%d\ns_add_u32 s%d, s%d, s%d\ns_add_u32 s%d, s%d, s63" % (sT2, sT2, sT, sT3, sT3, sT, sT3, sT3))
    a("v_add_u32 v9, s%d, v1\nv_add_u32 v8, s%d, v1" % (sT2, sT3))
    a("s_waitcnt lgkmcnt(0)")
    a("s_barrier")
    for t in range(NR):
        for w in range(4):
            a("ds_read_b128 %s, v%d offset:%d" % (vr(16 + (t * 4 + w) * 4, 4), 8 if w == 1 else 9, [0, 0, 32 * KB, 48 * KB][w] + t * 1024))
    for t in range(NR):
        b = 16 + t * 16
        for r in range(0, 4, 2):
            a("v_pk_add_f32 %s, %s, %s" % (vr(b + r, 2), vr(b + r, 2), vr(b + 4 + r, 2)))
            a("v_pk_add_f32 %s, %s, %s" % (vr(b + 8 + r, 2), vr(b + 8 + r, 2), vr(b + 12 + r, 2)))
            a("v_pk_add_f32 %s, %s, %s" % (vr(b + r, 2), vr(b + r, 2), vr(b + 8 + r, 2)))
        a("v_cvt_pk_bf16_f32 v%d, v%d, v%d\nv_cvt_pk_bf16_f32 v%d, v%d, v%d" % (b, b, b + 1, b + 1, b + 2, b + 3))
        a("s_add_u32 s%d, s%d, %d" % (sT, sOutOff, t * 32768))
        a("buffer_store_dwordx2 %s, v10, %s, s%d offen%s" % (vr(b, 2), SR(S_OUT), sT, POL[OPT["polout"]]))
    if OPT["stamps"]:
        a("s_waitcnt vmcnt(0)")
        stamp(a, 7)
        stamp_store(a)
    a.label(lab("fin"))
    a("s_endpgm")
    a.vm = []; a.lgkm = []

def kernel():
    a = Asm()
    a.raw(".globl %s\n.p2align 8\n.type %s,@function" % (NAME, NAME)); a.label(NAME)
    a("s_cmp_ge_u32 s2, 256\ns_cbranch_scc1 L_end")
    if OPT["stamps"]:
        for k in range(1 if OPT["pst"] else NST): a("s_memrealtime s[%d:%d]" % (64 + 2 * k, 65 + 2 * k))
    a("s_and_b32 s%d, s2, 7\ns_lshr_b32 s%d, s2, 3\ns_lshr_b32 s%d, s%d, 2" % (sT, sT2, sBlk, sT))
    a("s_mul_i32 s%d, s%d, 40" % (sT3, sBlk))
    a("s_add_u32 s4, s0, s%d\ns_addc_u32 s5, s1, 0" % sT3)
    a("s_load_dwordx8 s[80:87], s[4:5], 0")
    a("s_load_dwordx2 s[88:89], s[4:5], 32")
    a("s_load_dwordx4 s[96:99], s[0:1], 80")
    a("s_load_dwordx2 s[92:93], s[0:1], 96")
    a("s_lshr_b32 s%d, s%d, 4\ns_lshl_b32 s%d, s%d, 1\ns_add_u32 s%d, s%d, s%d" % (sGo, sT2, sT3, sT, sGo, sGo, sT3))
    a("s_and_b32 s%d, s%d, 15" % (sJo, sT2))
    if OPT["map"] == 0:
        a("s_mov_b32 s%d, s%d\ns_mov_b32 s%d, s%d\ns_and_b32 s%d, s%d, 7" % (sG, sGo, sJJ, sJo, sB, sGo))
        a("s_and_b32 s%d, s%d, 1\ns_lshl_b32 s%d, s%d, 2\ns_add_u32 s%d, s%d, s%d" % (sRot, sG, sRot, sRot, sRot, sRot, sJJ))
    elif OPT["map"] == 1:
        a("s_and_b32 s%d, s%d, 7\ns_and_b32 s%d, s%d, 1\ns_lshl_b32 s%d, s%d, 3\ns_add_u32 s%d, s%d, s%d" % (sRot, sT2, sJJ, sT, sJJ, sJJ, sJJ, sJJ, sRot))
        a("s_lshr_b32 s%d, s%d, 3\ns_lshl_b32 s%d, s%d, 1\ns_add_u32 s%d, s%d, s%d" % (sB, sT2, sT3, sB, sRot, sRot, sT3))
        a("s_and_b32 s%d, s%d, 2\ns_lshl_b32 s%d, s%d, 1\ns_add_u32 s%d, s%d, s%d" % (sT3, sT, sT3, sT3, sB, sB, sT3))
        a("s_lshl_b32 s%d, s%d, 3\ns_add_u32 s%d, s%d, s%d" % (sG, sBlk, sG, sG, sB))
    else:
        a("s_and_b32 s%d, s%d, 3\ns_and_b32 s%d, s%d, 3\ns_lshl_b32 s%d, s%d, 2\ns_add_u32 s%d, s%d, s%d" % (sRot, sT2, sJJ, sT, sJJ, sJJ, sJJ, sJJ, sRot))
        a("s_lshr_b32 s%d, s%d, 2\ns_lshl_b32 s%d, s%d, 1\ns_add_u32 s%d, s%d, s%d" % (sB, sT2, sRot, sRot, sRot, sRot, sB))
        if OPT["cls"] == 1: a("s_and_b32 s%d, s%d, 3\ns_lshl_b32 s%d, s%d, 1\ns_lshr_b32 s%d, s%d, 4\ns_add_u32 s%d, s%d, s%d" % (sB, sB, sB, sB, sT3, sT2, sB, sB, sT3))
        a("s_lshl_b32 s%d, s%d, 3\ns_add_u32 s%d, s%d, s%d" % (sG, sBlk, sG, sG, sB))
    if OPT["cls"] == 1: a("s_lshr_b32 s3, s2, 7")
    if OPT["cls"] == 2: a("s_mov_b32 s3, s%d" % sBlk)
    a("v_lshrrev_b32 v12, 6, v0")
    a("v_readfirstlane_b32 s%d, v12" % sW)
    a("s_mul_i32 s62, s%d, 147456" % sB)
    def code_pf():
        a("s_getpc_b64 s[90:91]")
        a.label("L_pf")
        if OPT["pfw"]:
            a("s_lshr_b32 s%d, s2, 3\ns_and_b32 s%d, s%d, 3\ns_min_u32 s%d, s%d, 2\ns_lshl_b32 s%d, s%d, 15" % (sT, sT, sT, sT, sT, sT, sT))
            a("v_lshlrev_b32 v240, 7, v0\nv_add_u32 v240, s%d, v240" % sT)
        else: a("v_lshlrev_b32 v240, 7, v0")
        a.items.append(a._mk("v_min_u32 v240, 0x1234, v240")); a.items[-1].text = "v_min_u32 v240, L_end-L_pf, v240"
        if OPT["pfw"] == 2: a("s_cmp_ge_u32 s2, 32\ns_cbranch_scc1 L_nopf")
        a("global_load_dword v253, v240, s[90:91]")
        if OPT["pfw"] == 2: a.label("L_nopf")
    if not OPT["pfw"]: code_pf()
    if OPT["fast0"]:
        loader_setup(a)
        if OPT["pst"]: a("s_memrealtime s[66:67]")
        srds_first(a)
        if OPT["pst"]: a("s_memrealtime s[68:69]")
        a("s_cmp_lt_u32 s%d, 4\ns_cbranch_scc1 L_arole" % sW)
        st0 = (list(a.lgkm), list(a.vm))
        for x, t in stage_ops_(0, 4): a(x, tag=t)
        st = (list(a.lgkm), list(a.vm))
        a("s_cmp_ge_u32 s%d, 6\ns_cbranch_scc1 L_auxrole\ns_branch L_brole" % sW)
        a.label("L_arole")
        a.lgkm, a.vm = list(st0[0]), list(st0[1])
    else:
        a("s_cmp_ge_u32 s%d, 6\ns_cbranch_scc1 L_auxrole" % sW)
        st = (list(a.lgkm), list(a.vm))
        a("s_cmp_ge_u32 s%d, 4\ns_cbranch_scc1 L_brole" % sW)
    if OPT["pfw"]: code_pf()
    head(a, "A")
    a("s_branch L_att")
    a.lgkm, a.vm = list(st[0]), list(st[1])
    a.raw(".p2align 3"); a.label("L_brole")
    head(a, "B")
    a.label("L_att")
    attention(a)
    a.lgkm, a.vm = list(st[0]), list(st[1])
    a.raw(".p2align 3"); a.label("L_auxrole")
    head(a, "X")
    aux(a)
    vm0 = list(a.vm)
    op_path(a, 5, "a", vm0)
    op_path(a, 4, "b", vm0)
    a.label("L_end"); a("s_endpgm")
    a.pad_hazards()
    a.check_backedge("L_loop", "s_cbranch_scc1 L_loop")
    a.align8()
    return a.text()

out = []
out.append("; " + " ".join(sys.argv[1:]) + " : fused Q-projection + attention + O-projection, one launch (generated by dev/gen11.py)")
out.append("; @launch grid=(256,1,1) block=(512,1,1) lds=163840")
out.append('.amdgcn_target "amdgcn-amd-amdhsa--gfx950"\n.text')
out.append(kernel())
out.append('.section .rodata,"a"\n.p2align 6')
out.append(""".amdhsa_kernel %s
  .amdhsa_next_free_vgpr 256
  .amdhsa_next_free_sgpr 102
  .amdhsa_accum_offset 256
  .amdhsa_group_segment_fixed_size 0
  .amdhsa_kernarg_size 104
  .amdhsa_user_sgpr_count 2
  .amdhsa_user_sgpr_kernarg_segment_ptr 1
  .amdhsa_system_sgpr_workgroup_id_x 1
.end_amdhsa_kernel
""" % NAME)
print("\n".join(out))
```

```python
import sys, math, struct
sys.path.insert(0, "dev")
from asmlib import *

OPT = dict(stamps=0, samekv=0, clk=0, hst=0, nopoll=0, polo=2, polw=0, polx=0, polwo=0, pols=2, polkv=1, slp=4, lo=2,
           auxprio=0, sbs=1, s0=22, kp="3333333322", sst=-1, sstd=1, xo=0, xw=0, map=2, park=2, hprio=1, kv0=5, kv1=6, pk14=0, ck=0, polout=0, ptouch=0, tw0="", tw1="", g0=15, cap=0, capto=16, nol=0, q2mix=2, bst=-1, bw=0, pair=1, mxf=1, p14=1, early=8, tst=0, cpf=1, pfm=-1, pst=0, pfw=1, fast0=1, q2s="22111111111111", q2p=1, q2pr=0, kvc=0, xmf=0, cls=0, capl=0, capl0=2, capl1=17, pubat=18, st1=0)
for a_ in sys.argv[1:]:
    k, v = a_.split("="); assert k in OPT, k; OPT[k] = v if k in ("kp", "tw0", "tw1", "q2s") else int(v)

NAME = "concat_heads__mha_block_cached__gqa_block_cached__near_ridge_kernel"
def f32(x): return "0x%08x" % struct.unpack("<I", struct.pack("<f", x))[0]
CSCALE = math.log2(math.e) / math.sqrt(128.0)
THR = 8.0
KB = 1024
SLOT = 32 * KB
XB = [96 * KB, 114 * KB, 132 * KB]
WB = [32 * KB, 48 * KB, 0]
Q2B = 96 * KB; Q1A = 132 * KB; Q1C = 32 * KB; EX1 = 132 * KB; EX2 = 80 * KB; W2R = 132 * KB
MLB = 156 * KB; CNT = 160 * KB - 128; TAGW = CNT + 8; CLAIM = CNT + 16; PFL = CNT + 32
STAMP_OFF = 0x10000000; FLAG_OFF = 0x2000000
PHM = 0x40000000
OSTR = 128 * 9216 + 1024
MF = "v_mfma_f32_16x16x32_bf16"
NST = 8
POL = ["", " nt", " sc1", " sc0 sc1", " sc1 nt"]
NIN = sum(int(c) for c in OPT["kp"]) // 4
assert NIN * 4 == sum(int(c) for c in OPT["kp"]) and NIN <= 7

SPLIT = OPT["pubat"] + 1
S_FL, S_WQ, S_X, S_O, S_KV, S_WO, S_OUT, S_DBG = 4, 8, 12, 16, 20, 24, 28, 32
S_OL, S_FLL = 8, 12
sW, sG, sJJ, sBlk, sB, sRot, sT, sT2, sT3 = 36, 37, 38, 39, 40, 41, 42, 43, 44
sCnt, sThr, sFl, sSlot, sDelta, sItem, sExS, sBar, sExch, sOoff = 45, 46, 47, 48, 49, 50, 51, 52, 53, 54
sNeg, sPos, sPart, sKg, sRho = 55, 56, 57, 59, 62
sHk, sHo = 46, 47
sOc, sOn, sWn, sBlkP, sRm, sBit, sR, sC = 46, 47, 48, 49, 51, 52, 55, 56
sBlkD, sBc, sBn, sOnn = 45, 53, 58, 86
sOb, sWb, sOutOff, sOpIdx, sTag, sWant, sTagA = 80, 81, 82, 83, 84, 85, 87
sGo, sJo = 94, 95

def srd(a, d, lo, hi, nrec):
    a("s_mov_b32 s%d, s%d\ns_mov_b32 s%d, s%d" % (d, lo, d + 1, hi))
    a("s_mov_b32 s%d, %s\ns_mov_b32 s%d, 0x20000" % (d + 2, nrec, d + 3))
def SR(d): return "s[%d:%d]" % (d, d + 3)

def cstamp(a, e):
    if OPT["clk"]: a("s_memtime s[%d:%d]\ns_memrealtime s[%d:%d]" % (66 + 2 * e, 67 + 2 * e, 70 + 2 * e, 71 + 2 * e))
def stamp(a, k, hs=False):
    if not OPT["stamps"] or OPT["ck"]: return
    if OPT["clk"] and 1 <= k <= 4: return
    if (OPT["sst"] >= 0 or OPT["bst"] >= 0 or OPT["tst"] or OPT["pst"]) and k and k != 7: return
    if OPT["hst"] and k and not hs: return
    if hs and not OPT["hst"]: return
    a("s_memrealtime s[%d:%d]" % (64 + 2 * k, 65 + 2 * k))
BSN = [0]
def bstamp(a, k):
    if OPT["bst"] < 0: return
    BSN[0] += 1
    a("s_cmp_lg_u32 s%d, %d\ns_cbranch_scc1 L_bs%d\ns_memrealtime s[%d:%d]\nL_bs%d:" % (sItem, OPT["bst"], BSN[0], 64 + 2 * k, 65 + 2 * k, BSN[0]))
def stamp_store(a):
    a("s_waitcnt vmcnt(0) lgkmcnt(0)")
    a("s_cmp_eq_u32 s%d, 6\ns_cselect_b32 s%d, 256, 0" % (sW, sT))
    a("s_mul_i32 s%d, s%d, 43\ns_lshr_b32 s%d, s%d, 8\ns_mul_i32 s%d, s%d, 6" % (sT2, sW, sT2, sT2, sT2, sT2))
    a("s_cmp_lg_u32 s%d, s%d\ns_cbranch_scc1 L_end" % (sT2, sW))
    a("s_add_u32 s96, s100, 0x%x\ns_addc_u32 s97, s101, 0" % STAMP_OFF)
    a("s_mov_b32 s98, 0x100000\ns_mov_b32 s99, 0x20000")
    a("s_add_u32 s3, s2, s%d\ns_mul_i32 s3, s3, %d" % (sT, NST * 8))
    a("v_mov_b32 v12, s3\ns_mov_b64 exec, 1")
    for k in range(NST):
        a("v_mov_b32 v14, s%d\nv_mov_b32 v15, s%d" % (64 + 2 * k, 65 + 2 * k))
        a("buffer_store_dwordx2 v[14:15], v12, s[96:99], 0 offen offset:%d" % (8 * k))
        a("s_nop 1")

def lanes(a):
    a("v_and_b32 v12, 63, v0\nv_lshrrev_b32 v13, 4, v12\nv_and_b32 v14, 15, v12\nv_bfe_u32 v15, v12, 2, 2")

vK, vVa, vVb = 1, 2, 3
vX1, vX2, vX3, vX4 = 4, 5, 6, 7
vONE, vT, vQ, vO, vL, vM, vS, vF = 8, 12, 16, 64, 160, 172, 184, 208
def Q(t, s): return vr(vQ + 16 * t + 4 * s, 4)
def O(t, dt): return vr(vO + 32 * t + 4 * dt, 4)
def L(t): return vr(vL + 4 * t, 4)
def M(t): return vr(vM + 4 * t, 4)
def S(t, kt): return vr(vS + 8 * t + 4 * kt, 4)
def F(i): return vF + 4 * i
vD = 128
vFo, vDg, vDg2, vFl, vA_, vB_, vOr, vCl, vCr, vCb = 136, 137, 138, 139, 140, 141, 142, 143, 144, 145

sKo = 50
S_V = 96
CAPN = [0]
def kv_ops(tile):
    slot = (tile + 2) % 3
    o = []
    for grp in range(4):
        for q in range(4):
            if OPT["kvc"]:
                pre_ = "s_add_u32 m0, s%d, %d\ns_add_u32 s%d, s%d, %d\n" % (sKg, slot * SLOT + (grp >> 1) * 16384 + (grp & 1) * 4096, sKo, sKg, tile * 16384 + (grp & 1) * 4096) if q == 0 else ""
                sr_ = SR(S_V if grp >= 2 else S_KV)
            else:
                pre_ = "s_add_u32 m0, s%d, %d\ns_mov_b32 s%d, %d\n" % (sKg, slot * SLOT + grp * 4096, sKo, tile * 16384 + grp * 4096) if q == 0 else ""
                sr_ = SR(S_KV)
            if q == 0 and OPT["capl"] and OPT["capl0"] <= tile <= OPT["capl1"]:
                CAPN[0] += 1
                pre_ = "s_cmp_eq_u32 s3, 0\ns_cbranch_scc1 L_cap%d\nRAW s_waitcnt vmcnt(%d)\nL_cap%d:\n" % (CAPN[0], OPT["capl"] - 4, CAPN[0]) + pre_
            o.append((pre_ + "buffer_load_dwordx4 v%d, %s, s%d offen offset:%d%s lds" % (vD + q + (4 if grp >= 2 else 0), sr_, sKo, q * 1024, POL[OPT["polkv"]]), "t%d" % tile))
    return o
KV_DONE = set()
def kv_tile(a, tile):
    if tile in KV_DONE and tile < 17: return
    for x, t in kv_ops(tile): a(x, tag=t)

def srds_first(a):
    a("s_waitcnt lgkmcnt(0)")
    srd(a, S_WQ, 86, 87, "%d" % (512 * 8192))
    a("s_add_u32 s80, s80, s62\ns_addc_u32 s81, s81, 0")
    srd(a, S_X, 80, 81, "147456")

def srds_rest(a):
    a("s_mul_i32 s%d, s%d, %d\ns_add_u32 s%d, s%d, 1024\ns_add_u32 s90, s92, s%d\ns_addc_u32 s91, s93, 0" % (sT, sG, OSTR, sT, sT, sT))
    srd(a, S_O, 90, 91, "%d" % (128 * 9216))
    if not OPT["kvc"]: a("s_cmp_eq_u32 s%d, 6\ns_cselect_b32 s82, s82, s84\ns_cselect_b32 s83, s83, s85" % sW)
    a("s_lshl_b32 s%d, s%d, 4\ns_add_u32 s%d, s%d, s%d" % (sT, sB, sT, sT, sJJ))
    if OPT["samekv"]: a("s_mov_b32 s%d, 0" % sT)
    a("s_lshl_b32 s%d, s%d, 19" % (sT, sT))
    a("s_add_u32 s82, s82, s%d\ns_addc_u32 s83, s83, 0" % sT)
    srd(a, S_KV, 82, 83, "524288")
    srd(a, S_WO, 88, 89, "%d" % (4096 * 1024))
    srd(a, S_OUT, 96, 97, "%d" % (8 * 144 * 1024 * 2))
    srd(a, S_DBG, 98, 99, "256")
    if OPT["kvc"]:
        a("s_add_u32 s84, s84, s%d\ns_addc_u32 s85, s85, 0" % sT)
        srd(a, S_V, 84, 85, "524288")
    a("s_lshl_b32 s%d, s%d, 8\ns_add_u32 s%d, s%d, 0x%x\ns_add_u32 s90, s92, s%d\ns_addc_u32 s91, s93, 0" % (sT, sG, sT, sT, FLAG_OFF, sT))
    srd(a, S_FL, 90, 91, "64")
    a("s_mov_b32 s100, s92\ns_mov_b32 s101, s93")
    if OPT["pair"]: a("s_and_b32 s%d, s%d, 1\ns_lshr_b32 s%d, s%d, 1" % (sKg, sW, sRho, sW))
    else: a("s_cmp_ge_u32 s%d, 3\ns_cselect_b32 s%d, 1, 0\ns_mul_i32 s%d, s%d, 3\ns_sub_u32 s%d, s%d, s%d" % (sW, sKg, sT, sKg, sRho, sW, sT))
    a("v_and_b32 v236, 31, v0\nv_lshlrev_b32 v236, 2, v236\nv_add_u32 v236, %d, v236\nv_mov_b32 v234, 0" % CNT)
    a("ds_write_b32 v236, v234")

def q_pack(a, b, scale):
    for r in range(0, 8, 2): a("v_pk_mul_f32 %s, %s, %s" % (vr(b + r, 2), vr(b + r, 2), scale))
    for r in range(4): a("v_cvt_pk_bf16_f32 v%d, v%d, v%d" % (b + r, b + 2 * r, b + 2 * r + 1))
def q_swap(a, b):
    a("v_permlane16_swap_b32 v%d, v%d\nv_permlane16_swap_b32 v%d, v%d" % (b, b + 2, b + 1, b + 3))

def loader_setup(a):
    vHW, vHX, vA1 = 224, 248, 231
    lanes(a)
    a("s_and_b32 s60, s%d, 3" % sW)
    a("v_and_b32 v%d, 3, v12\nv_lshlrev_b32 v%d, 4, v%d" % (vHX, vHX, vHX))
    a("v_lshl_add_u32 v%d, v13, 6, v%d" % (vHW, vHX))
    a("v_lshl_add_u32 v%d, v15, 8, v%d" % (vD, vHW))
    a("v_lshl_add_u32 v%d, v15, 13, v%d" % (vHW, vHW))
    a("s_lshl_b32 s%d, s60, 17\ns_lshl_b32 s%d, s%d, 9\ns_add_u32 s%d, s%d, s%d" % (sT, sT2, sJJ, sT, sT, sT2))
    a("v_add_u32 v%d, s%d, v%d" % (vHW, sT, vHW))
    a("v_add_u32 v%d, %d, v%d" % (vHW + 1, 31744, vHW))
    a("v_add_u32 v%d, %d, v%d\nv_xor_b32 v%d, 32, v%d" % (vHW + 2, 2 * 31744, vHW, vHW + 2, vHW + 2))
    a("v_add_u32 v%d, %d, v%d" % (vHW + 3, 31744, vHW + 2))
    a("s_lshl_b32 s63, s60, 12")
    a("s_mul_i32 s61, s60, 5\ns_min_u32 s61, s61, 14")
    a("v_and_b32 v%d, 1, v13\nv_lshl_add_u32 v4, v%d, 6, v%d" % (vA1, vA1, vHX))
    a("v_lshl_add_u32 v%d, v15, 10, v4" % vHX)
    a("v_lshrrev_b32 v%d, 5, v12\nv_lshl_add_u32 v8, v%d, 12, v%d" % (vA1, vA1, vHX))
    a("s_lshl_b32 s%d, s61, 13\ns_and_b32 s%d, s61, 1\ns_lshl_b32 s%d, s%d, 5" % (sT, sT2, sT2, sT2))
    a("v_add_u32 v%d, s%d, v8\nv_xor_b32 v%d, s%d, v%d" % (vHX, sT, vHX, sT2, vHX))
    a("v_add_u32 v%d, 7168, v%d\nv_xor_b32 v%d, 32, v%d" % (vHX + 1, vHX, vHX + 1, vHX + 1))
    a("v_add_u32 v%d, 14336, v%d\nv_add_u32 v%d, 14336, v%d" % (vHX + 2, vHX, vHX + 3, vHX + 1))
    a("v_add_u32 v%d, 32768, v%d" % (vHX + 4, vHX))
    a("s_lshl_b32 s61, s61, 10")

def stage_ops_(j, NX):
    vHW, vHX = 224, 248
    xb = XB[j % 3]; wb = WB[j % 3]
    o = []
    for qq in range(4):
        pre_ = "s_add_u32 s%d, s%d, %d\ns_and_b32 s%d, s%d, 7\ns_lshl_b32 s%d, s%d, 19\ns_add_u32 m0, s63, %d\n" % (sHk, sRot, j, sHk, sHk, sHo, sHk, wb) if qq == 0 else ""
        o.append(pre_ + "buffer_load_dwordx4 v%d, %s, s%d offen offset:%d%s lds" % (vHW + qq, SR(S_WQ), sHo, qq * 1024, POL[OPT["polw"]]))
    for e in range(NX):
        pre_ = "s_add_u32 m0, s61, %d\n" % (xb + 4096) if e == 4 else ("s_add_u32 m0, s61, %d\ns_lshl_b32 s%d, s%d, 7\n" % (xb, sHo, sHk) if e == 0 else "")
        o.append(pre_ + "buffer_load_dwordx4 v%d, %s, s%d offen offset:%d%s lds" % (vHX + e, SR(S_X), sHo, (e & 3) * 1024, POL[OPT["polx"]]))
    return [(x, "h%d" % j) for x in o]

def head(a, role):
    att = role != "X"; ldr = role != "A"
    NRT = 4 if ldr else 5; T0 = 5 if ldr else 0
    vHW, vHX = 224, 248
    vA1, vA2, vBx = 231, 232, 233
    cA1, cA2, cBx = 234, 235, 236
    ACC = lambda t, d: vr(16 + 8 * t + 4 * d, 4)
    BF = lambda u, t: vr(56 + 20 * u + 4 * t, 4)
    AF = lambda u, d: 96 + 8 * u + 4 * d
    NX = 5 if att else 4
    if not OPT["fast0"]: loader_setup(a)
    def stage_ops(j): return stage_ops_(j, NX) if ldr else []
    def stage_load(j):
        for x, t in stage_ops(j): a(x, tag=t)
    if not OPT["fast0"]:
        srds_first(a)
        stage_load(0)
    elif role == "B":
        x, t = stage_ops(0)[8]; a(x, tag=t)
    if OPT["pst"]: a("s_memrealtime s[70:71]")
    if role == "A" and OPT["ptouch"]:
        a("s_cmp_lg_u32 s%d, 0\ns_cbranch_scc1 L_nopt" % sW)
        a("s_lshl_b32 s%d, s%d, 4\ns_add_u32 s%d, s%d, s%d\ns_lshl_b32 s%d, s%d, 19" % (sT, sB, sT, sT, sJJ, sT, sT))
        a("v_mov_b32 v240, s%d" % sT)
        a.autowait = False
        a("global_load_dword v244, v240, s[82:83]\nglobal_load_dword v245, v240, s[84:85]")
        a("v_and_b32 v240, 1, v12\nv_lshlrev_b32 v241, 21, v240")
        a("global_load_dword v246, v241, s[88:89]\nglobal_load_dword v247, v241, s[96:97]")
        a("v_add_u32 v241, s%d, v240\nv_add_u32 v242, s%d, v240\nv_and_b32 v243, 2, v12\nv_cmp_eq_u32 vcc, 0, v243" % (sG, sGo))
        a("v_cndmask_b32 v241, v241, v242, vcc\ns_mov_b32 s%d, %d\nv_mul_lo_u32 v241, s%d, v241" % (sT, OSTR, sT))
        a("v_mov_b32 v242, 0x%x\nv_cmp_lt_u32 vcc, 3, v12\nv_cndmask_b32 v241, v241, v242, vcc" % (FLAG_OFF + 8192))
        a("global_load_dword v248, v241, s[92:93]")
        a.autowait = True
        a.label("L_nopt")
    srds_rest(a)
    a("v_and_b32 v%d, 3, v12\nv_lshlrev_b32 v%d, 3, v%d" % (vA1, vA1, vA1))
    a("v_lshl_add_u32 v%d, v15, 6, v%d" % (vA1, vA1))
    a("v_and_b32 v%d, 1, v13\nv_lshl_add_u32 v%d, v%d, 5, v%d" % (vA2, vA1, vA2, vA1))
    a("v_lshl_add_u32 v%d, v13, 10, v%d" % (vVa, vA1))
    a("v_lshl_add_u32 v%d, v13, 11, v%d" % (vA1, vA1))
    a("s_and_b32 s%d, s%d, 3\ns_lshl_b32 s%d, s%d, 8" % (sT, sW, sT, sT))
    a("v_add_u32 v%d, s%d, v%d\nv_xor_b32 v%d, 32, v%d" % (vA1, sT, vA1, vA2, vA1))
    a("v_lshrrev_b32 v%d, 3, v14\nv_lshlrev_b32 v%d, 1, v%d\nv_xor_b32 v%d, v%d, v13\nv_lshlrev_b32 v%d, 4, v%d" % (vBx, vBx, vBx, vBx, vBx, vBx, vBx))
    a("v_and_b32 v%d, 3, v14\nv_lshl_add_u32 v%d, v%d, 6, v%d" % (cBx, vBx, cBx, vBx))
    a("v_lshl_add_u32 v%d, v15, 9, v%d" % (vBx, vBx))
    if att:
        a("s_lshl_b32 s%d, s%d, 13\ns_add_u32 s%d, s%d, %d" % (sT, sKg, sT, sT, 2 * SLOT))
        a("v_add_u32 v%d, s%d, v%d\nv_add_u32 v%d, 16384, v%d\nv_xor_b32 v%d, 32, v%d" % (vVa, sT, vVa, vVa, vVa, vVb, vVa))
        a("v_lshlrev_b32 v%d, 10, v15" % vK)
        a("v_lshl_add_u32 v%d, v%d, 6, v%d" % (vK, cBx, vK))
        a("v_lshrrev_b32 v%d, 1, v13\nv_and_b32 v%d, 1, v13\nv_lshl_or_b32 v%d, v%d, 1, v%d" % (cA1, cA2, cA1, cA2, cA1))
        a("v_lshrrev_b32 v%d, 3, v14\nv_xor_b32 v%d, v%d, v%d" % (cA2, cA1, cA1, cA2))
        a("v_lshl_add_u32 v%d, v%d, 4, v%d\nv_add_u32 v%d, s%d, v%d" % (vK, cA1, vK, vK, sT, vK))
        for r in range(4): a("v_mov_b32 v%d, 0x3f803f80" % (vONE + r))
    else:
        a("s_cmp_eq_u32 s%d, 6" % sW)
        if OPT["kvc"]:
            a("s_cselect_b32 s60, 0, 128\ns_cselect_b32 s%d, 0, 8192" % sKg)
            a("v_mov_b32 v%d, v%d\nv_xor_b32 v%d, 16, v%d\nv_xor_b32 v%d, 16, v%d" % (vD + 1, vD, vD + 2, vD, vD + 3, vD))
            a("v_xor_b32 v%d, s60, v%d\nv_xor_b32 v%d, 32, v%d\nv_mov_b32 v%d, v%d\nv_mov_b32 v%d, v%d" % (vD + 4, vD, vD + 5, vD + 4, vD + 6, vD + 4, vD + 7, vD + 5))
        else:
            a("s_cselect_b32 s%d, 0, 32\ns_cselect_b32 s%d, 16, 0\ns_cselect_b32 s%d, 16, 32\ns_cselect_b32 s60, 0, 128\ns_cselect_b32 s%d, 0, 16384" % (sT, sT2, sT3, sKg))
            a("v_xor_b32 v%d, s%d, v%d\nv_xor_b32 v%d, s%d, v%d\nv_xor_b32 v%d, s%d, v%d" % (vD + 1, sT, vD, vD + 2, sT2, vD, vD + 3, sT3, vD))
            for q in range(4): a("v_xor_b32 v%d, s60, v%d" % (vD + 4 + q, vD + q))
        a("v_add_u32 v1, %d, v%d" % (XB[0], vBx))
    a("v_mov_b32 v238, %s\nv_mov_b32 v239, %s" % (f32(CSCALE), f32(CSCALE)))
    def reads(u):
        tr = lambda d: ["ds_read_b64_tr_b16 %s, v%d offset:%d" % (vr(AF(u, d) + 2 * rd, 2), cA2 if d else cA1, u * 8192 + rd * 1024) for rd in range(2)]
        return tr(0) + ["ds_read_b128 %s, v%d offset:%d" % (BF(u, t), cBx, (T0 + t) * 2048 + u * 256) for t in range(NRT)] + tr(1)
    def mfmas(u, first):
        return ["%s %s, %s, %s, %s" % (MF, ACC(t, d), vr(AF(u, d), 4), BF(u, t), "0" if first else ACC(t, d)) for d in range(2) for t in range(NRT)]
    if OPT["pst"]: a("s_memrealtime s[72:73]")
    stage_load(1)
    if OPT["pst"]: a("s_memrealtime s[74:75]")
    stamp(a, 1)
    def mix(ms, rs, ds=()):
        di = 0; ri = 0
        for k, x in enumerate(ms):
            a(x)
            for _ in range(2):
                if ri < len(rs): a(rs[ri]); ri += 1
            while di < len(ds) and di * len(ms) <= k * len(ds):
                a(ds[di][0], tag=ds[di][1]); di += 1
        for x, t in ds[di:]: a(x, tag=t)
    if ldr and OPT["hprio"]: a("s_setprio %d" % OPT["hprio"])
    for j in range(8):
        a.wait_vm_tag("h%d" % j)
        if OPT["pst"] and j == 0: a("s_memrealtime s[76:77]")
        a("v_add_u32 v%d, %d, v%d\nv_add_u32 v%d, %d, v%d\nv_add_u32 v%d, %d, v%d" % (cA1, WB[j % 3], vA1, cA2, WB[j % 3], vA2, cBx, XB[j % 3], vBx))
        a("s_waitcnt lgkmcnt(0)")
        a("s_barrier")
        if j < 7: stamp(a, j + 1, hs=True)
        d = stage_ops(j + 2) if j + 2 < 8 else []
        cut = (len(d) + 1) // 2
        if j == 0:
            for x in reads(0): a(x)
            for x, t in d[:cut]: a(x, tag=t)
        else: mix(mfmas(1, False), reads(0), d[:cut])
        a("s_waitcnt lgkmcnt(0)")
        mix(mfmas(0, j == 0), reads(1), d[cut:])
        if not att and j == OPT["kv0"]: kv_tile(a, 0)
        if not att and j == OPT["kv1"] and j < 7: kv_tile(a, 1)
    for x in mfmas(1, False): a(x)
    a("s_and_b32 s60, s%d, 3\ns_lshl_b32 s60, s60, 10" % sW)
    a("v_lshlrev_b32 v%d, 4, v12\nv_add_u32 v%d, s60, v%d" % (cBx, cBx, cBx))
    a("v_add_u32 v%d, %d, v%d\nv_add_u32 v%d, %d, v%d" % (cA1, Q1A, cBx, cA2, Q1C, cBx))
    for t in range(NRT): q_pack(a, 16 + 8 * t, "v[238:239]")
    for t in range(NRT): q_swap(a, 16 + 8 * t)
    for t in range(NRT):
        tg = T0 + t
        a("ds_write_b128 v%d, %s offset:%d" % (cA1 if tg < 6 else cA2, vr(16 + 8 * t, 4), (tg if tg < 6 else tg - 6) * 4096))
    if ldr and OPT["hprio"]: a("s_setprio 0")
    a("s_waitcnt lgkmcnt(0)")
    a("s_barrier")
    if not att and OPT["kv1"] >= 7: kv_tile(a, 1)
    stamp(a, 2)

def pair_signal(a):
    a("s_add_u32 s%d, s%d, 1" % (sBar, sBar))
    a("v_mov_b32 v%d, s%d" % (vT, sBar))
    a("ds_write_b32 v%d, v%d" % (vX3, vT))

def pair_wait(a, name, reads):
    a.label(name)
    a("ds_read_b32 v%d, v%d" % (vT, vX4))
    for x in reads: a(x)
    a("s_waitcnt lgkmcnt(%d)" % len(reads))
    a("v_readfirstlane_b32 s%d, v%d" % (sT, vT))
    a("s_cmp_ge_u32 s%d, s%d" % (sT, sBar))
    a("s_cbranch_scc1 %s_ok" % name)
    a("s_waitcnt lgkmcnt(0)")
    if OPT["sbs"]: a("s_sleep %d" % OPT["sbs"])
    a("s_branch %s" % name)
    a.label(name + "_ok")
    a("s_waitcnt lgkmcnt(0)")

def publish(a, name, t0):
    a("s_waitcnt vmcnt(0)")
    a("s_mov_b64 exec, 1")
    a("v_mov_b32 v%d, %d\nv_mov_b32 v%d, 1" % (t0 + 2, CNT, t0 + 1))
    a("ds_add_rtn_u32 v%d, v%d, v%d offset:4" % (t0, t0 + 2, t0 + 1))
    a("ds_read_b32 v%d, v%d offset:8" % (t0 + 1, t0 + 2))
    a("s_waitcnt lgkmcnt(0)")
    a("v_readfirstlane_b32 s%d, v%d" % (sT, t0))
    a("s_cmp_lg_u32 s%d, 5" % sT)
    a("s_cbranch_scc1 %s" % name)
    a("v_or_b32 v%d, 0x%x, v%d" % (t0 + 1, PHM, t0 + 1))
    a("s_lshl_b32 s%d, s%d, 2" % (sT2, sJJ))
    a("v_mov_b32 v%d, s%d" % (t0, sT2))
    a("buffer_store_dword v%d, v%d, %s, 0 offen sc1" % (t0 + 1, t0, SR(S_FL)))
    a.label(name)
    a("s_mov_b64 exec, -1")

def attention(a):
    NT = 3; TL = 2
    a("s_waitcnt vmcnt(0)")
    a("v_lshlrev_b32 v%d, 4, v12" % vX1)
    a("s_mul_i32 s%d, s%d, %d\ns_add_u32 s%d, s%d, %d" % (sT, sRho, 12 * KB, sT, sT, Q1A))
    a("s_cmp_eq_u32 s%d, 2\ns_cselect_b32 s%d, %d, s%d" % (sRho, sT, Q1C, sT))
    a("v_add_u32 v%d, s%d, v%d" % (vX2, sT, vX1))
    for t in range(3):
        for s in range(4): a("ds_read_b128 %s, v%d offset:%d" % (Q(t, s), vX2, t * 4096 + s * 1024))
    if OPT["pair"]: a("s_xor_b32 s%d, s%d, 1" % (sPart, sW))
    else: a("s_add_u32 s%d, s%d, 3\ns_cmp_ge_u32 s%d, 6\ns_cselect_b32 s%d, 6, 0\ns_sub_u32 s%d, s%d, s%d" % (sPart, sW, sPart, sT2, sPart, sPart, sT2))
    a("s_lshl_b32 s%d, s%d, 2\ns_add_u32 s%d, s%d, %d\ns_lshl_b32 s%d, s%d, 2\ns_add_u32 s%d, s%d, %d" % (sT, sW, sT, sT, PFL, sT2, sPart, sT2, sT2, PFL))
    a("v_mov_b32 v%d, s%d\nv_mov_b32 v%d, s%d" % (vX3, sT, vX4, sT2))
    a("s_mov_b32 s%d, 0x40004000\ns_mov_b32 s%d, %s" % (sThr, sFl, f32(THR)))
    a("s_mov_b32 s%d, 0\ns_mov_b32 s%d, 0\ns_mov_b32 s%d, 2" % (sItem, sBar, sSlot))
    a("s_mul_i32 s%d, s%d, %d\ns_add_u32 s%d, s%d, %d" % (sExch, sRho, 12 * KB, sExch, sExch, Q2B))
    a("s_mov_b32 s%d, 0x%x\ns_mov_b32 s%d, %d" % (sNeg, (-2 * SLOT) & 0xffffffff, sPos, SLOT))
    a("s_lshl_b32 s%d, s%d, 3\ns_lshl_b32 s%d, s%d, 1\ns_add_u32 s%d, s%d, s%d\ns_mul_i32 s%d, s%d, 9" % (sT, sJJ, sT2, sKg, sT, sT, sT2, sT, sT))
    a("s_mul_i32 s%d, s%d, 3\ns_add_u32 s%d, s%d, s%d\ns_lshl_b32 s%d, s%d, 10\ns_add_u32 s%d, s%d, %d" % (sT2, sRho, sT, sT, sT2, sOoff, sT, sOoff, sOoff, 36 * KB))
    cstamp(a, 0)
    a.label("L_item")
    a("s_mov_b32 s%d, 0" % sCnt)
    a("s_waitcnt lgkmcnt(0)")
    Ga, Gb, Gc = 0, 4, 8
    def kread(kt, s):
        slot = (Gc + s) if kt == 0 else (Gb + s)
        return "ds_read_b128 %s, v%d offset:%d" % (vr(F(slot), 4), vK, kt * 4096 + s * 256)
    def vslot(dt): return (Ga + dt) if dt < 4 else (Gb + dt - 4)
    def vread(dt, rd):
        return "ds_read_b64_tr_b16 %s, v%d offset:%d" % (vr(F(vslot(dt)) + 2 * rd, 2), vVb if dt & 1 else vVa, rd * 4096 + (dt >> 1) * 256)
    def pv(t, dt, z=False): return "%s %s, %s, %s, %s" % (MF, O(t, dt), vr(F(vslot(dt)), 4), S(t, 0), "0" if z else O(t, dt))
    def lsum(t, z=False): return "%s %s, %s, %s, %s" % (MF, L(t), vr(vONE, 4), S(t, 0), "0" if z else L(t))
    def qk(t, kt, s, z=False):
        slot = (Gc + s) if kt == 0 else (Gb + s)
        return "%s %s, %s, %s, %s" % (MF, S(t, kt), vr(F(slot), 4), Q(t, s), ("0" if z else M(t)) if s == 0 else S(t, kt))
    EXP = lambda r: "v_exp_f32 v%d, v%d" % (r, r)
    def CVT(b, r): return "v_cvt_pk_bf16_f32 v%d, v%d, v%d" % (b + r, b + 2 * r, b + 2 * r + 1)
    def rowmax(b):
        return ["v_max3_f32 v%d, v%d, v%d, v%d" % (vT, b, b + 1, b + 2), "v_max3_f32 v%d, v%d, v%d, v%d" % (vT + 1, b + 3, b + 4, b + 5),
                "v_max3_f32 v%d, v%d, v%d, v%d" % (vT, vT, b + 6, b + 7), "v_max_f32 v%d, v%d, v%d" % (vT, vT, vT + 1),
                "v_mov_b32 v%d, v%d" % (vT + 1, vT), "v_permlane16_swap_b32 v%d, v%d" % (vT, vT + 1), "v_max_f32 v%d, v%d, v%d" % (vT, vT, vT + 1),
                "v_mov_b32 v%d, v%d" % (vT + 1, vT), "v_permlane32_swap_b32 v%d, v%d" % (vT, vT + 1), "v_max_f32 v%d, v%d, v%d" % (vT, vT, vT + 1)]
    def sm(t):
        b = vS + 8 * t
        g = [[EXP(b + r)] for r in range(4)] + [[CVT(b, 0), CVT(b, 1)]] + [[EXP(b + r)] for r in range(4, 8)] + [[CVT(b, 2), CVT(b, 3)]]
        g.append(["v_or3_b32 v%d, v%d, v%d, v%d" % (b + 4, b, b + 1, b + 2), "v_bitop3_b32 v%d, v%d, v%d, s%d bitop3:0xa8" % (b + 4, b + 4, b + 3, sThr)])
        g.append(["v_cmp_ne_u32 vcc, 0, v%d" % (b + 4)])
        return g
    def step(first):
        mf = []; fill = {}
        def put(idx, ops): fill.setdefault(idx, []).extend(ops)
        if not first: mf += [pv(TL, dt) for dt in (4, 5, 6, 7)] + [pv(TL, dt) for dt in (0, 1, 2, 3)] + [lsum(TL)]
        q0 = len(mf)
        qk_end = {}
        for t in range(NT):
            for kt in ((0, 1) if t < TL else (1, 0)):
                mf += [qk(t, kt, s, first) for s in range(4)]
                if t == TL and kt == 1: v47_at = len(mf) - 1
            qk_end[t] = len(mf) - 1
        pv_start = {}
        for t in range(TL):
            pv_start[t] = len(mf)
            mf += [pv(t, dt, first) for dt in range(4)] + [lsum(t, first)] + [pv(t, dt, first) for dt in range(4, 8)]
        n = len(mf)
        pre = [kread(0, s) for s in range(4)]
        if first:
            pre += [kread(1, s) for s in range(4)] + [vread(dt, rd) for dt in range(4) for rd in range(2)]
            pre += ["v_mov_b64 %s, 0" % vr(r, 2) for r in list(range(vO + 64, vO + 96, 2)) + [vL + 8, vL + 10]]
            pre += ["WAIT " + vr(F(Gc), 16)]
        else:
            for s in range(4): put(s, [kread(1, s)])
            for dt in range(4): put(4 + dt, [vread(dt, 0), vread(dt, 1)])
            put(8, ["WAIT " + vr(F(Gc), 16)])
        put(q0 + 3, ["WAIT " + vr(F(Gb), 16), "s_add_u32 s%d, s%d, 1" % (sSlot, sSlot)])
        put(q0 + 4, ["s_cmp_eq_u32 s%d, 3" % sSlot, "s_cselect_b32 s%d, s%d, s%d" % (sDelta, sNeg, sPos)])
        put(q0 + 5, ["s_cselect_b32 s%d, 0, s%d" % (sSlot, sSlot), "s_add_u32 s%d, s%d, 1" % (sCnt, sCnt)])
        for dt in range(4, 8): put(v47_at - 3 + (dt - 4), [vread(dt, 0), vread(dt, 1)])
        adv = ["v_add_u32 v%d, s%d, v%d" % (r, sDelta, r) for r in (vK, vVa, vVb)]
        tail = []
        if first:
            for t in range(NT):
                b = vS + 8 * t
                ops = rowmax(b) + ["v_add_f32 v%d, s%d, v%d" % (vT, sFl, vT)]
                ops += ["v_sub_f32 v%d, v%d, v%d" % (b + r, b + r, vT) for r in range(8)]
                ops += ["v_sub_f32 v%d, 0, v%d" % (vM + 4 * t + r, vT) for r in range(4)]
                ops += [EXP(b + r) for r in range(8)] + [CVT(b, r) for r in range(4)]
                lo = max(qk_end[t] + 3, [0, 21, 32][t]); hi = [20, 31, n - 1][t]
                for k, x in enumerate(ops): put(lo + k * (hi - lo + 1) // len(ops), [x])
            tail = adv
        else:
            groups = [(t, g) for t in range(NT) for g in sm(t)]
            lo = OPT["g0"]; span = n - lo
            for k, (t, g) in enumerate(groups):
                idx = lo + (k * span) // len(groups)
                assert t == TL or idx + 1 < pv_start[t], (t, idx)
                put(idx, g)
                if k % 12 == 11:
                    br = "s_cbranch_vccnz L_rare%d\nL_back%d:" % (t, t)
                    if t == 0: put(idx, [adv[0]])
                    if t == 1: put(idx, [adv[1]])
                    if t < TL: fill.setdefault(idx + 1, []).insert(0, br)
                    else: tail = [adv[2], "s_cmp_lt_u32 s%d, 16" % sCnt, br]
        put(pv_start[0] - 1, ["WAIT " + vr(F(Ga), 16)])
        put(pv_start[0] + 4, ["WAIT " + vr(F(Gb), 16)])
        a("s_barrier")
        if first and OPT["bst"] == 0:
            a("s_cmp_lg_u32 s%d, 1\ns_cbranch_scc1 L_bsx\ns_memrealtime s[76:77]\nL_bsx:" % sItem)
        for x in pre: a(x)
        for k, m in enumerate(mf):
            a(m)
            for x in fill.get(k, []): a(x)
        if not first:
            for _ in range(OPT["xmf"]): a("%s %s, %s, %s, %s" % (MF, vr(vT, 4), vr(F(0), 4), S(1, 0), vr(vT, 4) if _ else "0"))
        for x in tail: a(x)
    step(True)
    a.raw(".p2align 6")
    a.label("L_loop")
    step(False)
    a("s_cbranch_scc1 L_loop")
    a.label("L_bnd")
    if OPT["stamps"]:
        a("s_cmp_eq_u32 s%d, 0\ns_cbranch_scc0 L_st4" % sItem)
        stamp(a, 3); cstamp(a, 1)
        a("s_branch L_st4b")
        a.label("L_st4"); stamp(a, 4)
        a.label("L_st4b")
    bstamp(a, 1)
    a("s_cmp_eq_u32 s%d, 0" % sItem)
    a("s_cbranch_scc0 L_nomx")
    if OPT["mxf"]:
        a("s_mov_b64 exec, 1")
        a("v_mov_b32 v%d, %d\nv_mov_b32 v%d, 1" % (vT + 2, CNT, vT + 1))
        a("ds_add_u32 v%d, v%d offset:20" % (vT + 2, vT + 1))
        a.label("L_q2w")
        a("ds_read_b32 v%d, v%d offset:24" % (vT, vT + 2))
        a("s_waitcnt lgkmcnt(0)")
        a("v_readfirstlane_b32 s%d, v%d" % (sT, vT))
        a("s_cmp_lt_u32 s%d, 2\ns_cbranch_scc1 L_q2w" % sT)
        a("s_mov_b64 exec, -1")
    else:
        a("s_barrier")
    a("v_add_u32 v%d, s%d, v%d" % (vX2, sExch, vX1))
    for t in range(3):
        for s in range(4): a("ds_read_b128 %s, v%d offset:%d" % (Q(t, s), vX2, t * 4096 + s * 1024))
    pair_signal(a)
    a.label("L_nomx")
    bstamp(a, 2)
    a("s_lshl_b32 s%d, s%d, 12\ns_add_u32 s%d, s%d, %d" % (sT, sW, sT, sT, EX1))
    a("v_add_u32 v%d, s%d, v%d" % (vX2, sT, vX1))
    def send(t, areg, off):
        o = []
        for h in range(2):
            b = vO + 32 * t + 16 + 8 * h
            o += ["v_cvt_pk_bf16_f32 v%d, v%d, v%d" % (b + r, b + 2 * r, b + 2 * r + 1) for r in range(4)]
            o.append("ds_write_b128 v%d, %s offset:%d" % (areg, vr(b, 4), off + h * 1024))
        return o
    fin = [lsum(TL)] + [pv(TL, dt) for dt in (4, 5, 6, 7, 0, 1, 2, 3)]
    ex = send(0, vX2, 0) + send(1, vX2, 2048)
    for k, m in enumerate(fin):
        a(m)
        for x in ex[k * len(ex) // 9:(k + 1) * len(ex) // 9]: a(x)
    a("v_and_b32 v%d, 15, v0\nv_lshlrev_b32 v%d, 3, v%d" % (vT + 2, vT + 2, vT + 2))
    a("s_mul_i32 s%d, s%d, 384\ns_add_u32 s%d, s%d, %d" % (sT, sW, sT, sT, MLB))
    a("v_add_u32 v%d, s%d, v%d" % (vT + 3, sT, vT + 2))
    for t in range(3):
        a("v_mov_b32 v%d, v%d" % (vM + 4 * t + 1, vL + 4 * t))
        a("ds_write_b64 v%d, %s offset:%d" % (vT + 3, vr(vM + 4 * t, 2), t * 128))
    a("s_lshl_b32 s%d, s%d, 11\ns_add_u32 s%d, s%d, s%d" % (sT, sKg, sT, sT, sExch))
    a("v_add_u32 v%d, s%d, v%d" % (vX2, sT, vX1))
    a("s_waitcnt lgkmcnt(0)")
    pair_wait(a, "L_pw0", [])
    bstamp(a, 3)
    for x in send(2, vX2, 0): a(x)
    pair_signal(a)
    a("s_mul_i32 s%d, s%d, 384\ns_add_u32 s%d, s%d, %d" % (sT2, sPart, sT2, sT2, MLB))
    a("v_add_u32 v%d, s%d, v%d" % (vT + 3, sT2, vT + 2))
    a("v_xor_b32 v%d, 2048, v%d" % (vX2, vX2))
    a("s_lshl_b32 s%d, s%d, 12\ns_add_u32 s%d, s%d, %d" % (sT, sPart, sT, sT, EX1))
    a("v_add_u32 v%d, s%d, v%d" % (vT + 2, sT, vX1))
    a("s_waitcnt lgkmcnt(0)")
    rd = ["ds_read_b64 %s, v%d offset:%d" % (vr(vM + 4 * t + 2, 2), vT + 3, t * 128) for t in range(3)]
    for t in range(3):
        for h in range(2):
            rd.append("ds_read_b128 %s, v%d offset:%d" % (vr(vS + 8 * t + 4 * h, 4), vT + 2 if t < 2 else vX2, (t * 2048 if t < 2 else 0) + h * 1024))
    pair_wait(a, "L_pw", rd)
    bstamp(a, 4)
    for t in range(3):
        m = vM + 4 * t; l = vL + 4 * t
        a("v_min_f32 v%d, v%d, v%d" % (l, m, m + 2))
        a("v_sub_f32 v%d, v%d, v%d\nv_sub_f32 v%d, v%d, v%d" % (l + 1, l, m, l + 2, l, m + 2))
        a("v_exp_f32 v%d, v%d\nv_exp_f32 v%d, v%d" % (l + 1, l + 1, l + 2, l + 2))
        a("v_mul_f32 v%d, v%d, v%d" % (l + 3, l + 1, m + 1))
        a("v_fma_f32 v%d, v%d, v%d, v%d" % (l + 3, l + 2, m + 3, l + 3))
        a("v_rcp_f32 v%d, v%d" % (l, l + 3))
        a("v_mul_f32 v%d, v%d, v%d\nv_mul_f32 v%d, v%d, v%d" % (l + 3, l + 2, l, l + 2, l + 2, l))
        a("v_mul_f32 v%d, v%d, v%d\nv_mov_b32 v%d, v%d" % (l + 1, l + 1, l, l, l + 1))
    def combine(out):
        for t in range(3):
            l = vL + 4 * t
            for h in range(2):
                b = vO + 32 * t + 8 * h; u = b + 16; pk = vS + 8 * t + 4 * h
                for r in range(4):
                    a("v_lshlrev_b32 v%d, 16, v%d\nv_and_b32 v%d, 0xffff0000, v%d" % (u + 2 * r, pk + r, u + 2 * r + 1, pk + r))
                for r in range(0, 8, 2): a("v_pk_mul_f32 %s, %s, %s" % (vr(b + r, 2), vr(b + r, 2), vr(l, 2)))
                for r in range(0, 8, 2): a("v_pk_fma_f32 %s, %s, %s, %s" % (vr(b + r, 2), vr(u + r, 2), vr(l + 2, 2), vr(b + r, 2)))
                for r in range(4): a("v_cvt_pk_bf16_f32 v%d, v%d, v%d" % (pk + r, b + 2 * r, b + 2 * r + 1))
                out(t, h, pk)
    a("s_cmp_eq_u32 s%d, 0" % sItem)
    a("s_cbranch_scc0 L_att_done")
    combine(lambda t, h, pk: a("ds_write_b128 v%d, %s offset:%d" % (vT + 2 if t < 2 else vX2, vr(pk, 4), (t * 2048 if t < 2 else 0) + h * 1024)))
    bstamp(a, 5)
    a("s_mov_b32 s%d, 1\ns_lshl_b32 s%d, s%d, 12\ns_add_u32 s%d, s%d, %d" % (sItem, sExch, sRho, sExch, sExch, EX2))
    a("s_waitcnt lgkmcnt(0)")
    a("s_branch L_item")
    a.vm = []; a.lgkm = []
    for t in range(NT):
        b = vS + 8 * t
        a.label("L_rare%d" % t)
        a("s_nop 15")
        a("v_subrev_u32 v%d, s%d, v%d" % (vX2, sDelta, vK))
        for kt in range(2):
            for s in range(4):
                a("ds_read_b128 %s, v%d offset:%d" % (vr(vT, 4), vX2, kt * 4096 + s * 256))
                a("s_waitcnt lgkmcnt(0)")
                a("%s %s, %s, %s, %s" % (MF, S(t, kt), vr(vT, 4), Q(t, s), M(t) if s == 0 else S(t, kt)))
                a("s_nop 3")
        for x in rowmax(b): a(x)
        a("v_add_f32 v%d, s%d, v%d\nv_max_f32 v%d, 0, v%d" % (vT, sFl, vT, vT, vT))
        for r in range(8): a("v_sub_f32 v%d, v%d, v%d" % (b + r, b + r, vT))
        for r in range(4): a("v_sub_f32 v%d, v%d, v%d" % (vM + 4 * t + r, vM + 4 * t + r, vT))
        a("v_exp_f32 v%d, -v%d" % (vT + 1, vT))
        for r in range(4): a("v_mul_f32 v%d, v%d, v%d" % (vL + 4 * t + r, vL + 4 * t + r, vT + 1))
        for r in range(32): a("v_mul_f32 v%d, v%d, v%d" % (vO + 32 * t + r, vO + 32 * t + r, vT + 1))
        for r in range(8): a(EXP(b + r))
        for r in range(4): a(CVT(b, r))
        a("s_nop 3")
        a("s_branch L_back%d" % t)
    a.label("L_att_done")
    a("s_mov_b64 exec, 1")
    a("v_mov_b32 v%d, %d\nv_mov_b32 v%d, 1" % (vT + 2, CNT, vT + 1))
    a("ds_add_u32 v%d, v%d" % (vT + 2, vT + 1))
    a("s_mov_b64 exec, -1")
    combine(lambda t, h, pk: a("s_add_u32 s%d, s%d, %d\nbuffer_store_dwordx4 %s, v%d, %s, s%d offen%s" % (sT, sOoff, (h * 9 + t) * 1024, vr(pk, 4), vX1, SR(S_O), sT, POL[OPT["pols"]])))
    bstamp(a, 5)
    a("s_cmp_lt_u32 s%d, 2" % sW)
    a("s_cbranch_scc1 L_join")
    publish(a, "L_pub_x", vT)
    a("s_endpgm")
    a.label("L_join")
    a("s_mov_b32 s%d, s%d" % (sOpIdx, sW))
    a("s_lshl_b32 s%d, s%d, 14" % (sBlkP, sW))
    a("s_cmp_eq_u32 s%d, 0\ns_cselect_b32 s%d, %d, 0\ns_cselect_b32 s%d, 0, %d\ns_add_u32 s%d, s%d, s%d" % (sW, sBlkD, 64 * KB, sT, 116 * KB, sBlkD, sBlkD, sT))
    op_setup(a)
    publish(a, "L_pub_y", 100)
    bstamp(a, 6)
    stamp(a, 5)
    a("v_mov_b32 v96, %d" % CNT)
    a.label("L_w6")
    a("ds_read_b32 v98, v96")
    a("ds_read_b32 v97, v96 offset:12")
    a("s_waitcnt lgkmcnt(0)")
    a("v_readfirstlane_b32 s%d, v98\nv_readfirstlane_b32 s%d, v97" % (sT, sTag))
    a("s_cmp_lt_u32 s%d, 6\ns_cbranch_scc1 L_w6" % sT)
    a("s_or_b32 s%d, s%d, 0x%x" % (sWant, sTag, PHM))
    a("s_cmp_eq_u32 s60, 0\ns_cbranch_scc1 L_op_a_join\ns_branch L_op_b_join")
    a.vm = []; a.lgkm = []

def wo_touch(a, phase, i):
    a("s_and_b32 s%d, s%d, 1\ns_lshl_b32 s%d, s%d, 4\ns_add_u32 s%d, s%d, s%d" % (sT, sGo, sT, sT, sT, sT, sJo))
    a("s_lshr_b32 s%d, s%d, 1\ns_lshl_b32 s%d, s%d, 18\ns_and_b32 s%d, s%d, 1\ns_lshl_b32 s%d, s%d, 16\ns_add_u32 s%d, s%d, s%d" % (sT2, sT, sT2, sT2, sT, sT, sT, sT, sT, sT, sT2))
    a("s_and_b32 s%d, s%d, 1\ns_lshl_b32 s%d, s%d, 15\ns_add_u32 s%d, s%d, s%d" % (sT2, sW, sT2, sT2, sT, sT, sT2))
    a("s_add_u32 s%d, s%d, %d" % (sT2, sT, phase * 131072 + i * 8192))
    a.autowait = False
    a("buffer_load_dword v147, v146, %s, s%d offen" % (SR(S_WO), sT2), tag="x")
    a.autowait = True

def aux_step(a, step, pre=None, extra=None):
    a.wait_vm_tag("t%d" % step)
    a("s_barrier")
    if OPT["sst"] >= 0 and step >= OPT["sst"] and (step - OPT["sst"]) % OPT["sstd"] == 0 and (step - OPT["sst"]) // OPT["sstd"] < 6:
        k_ = 1 + (step - OPT["sst"]) // OPT["sstd"]
        a("s_memrealtime s[%d:%d]" % (64 + 2 * k_, 65 + 2 * k_))
    if OPT["ck"] and step in (1, 8, 15, 31):
        k_ = (1, 8, 15, 31).index(step)
        a("s_memrealtime s[%d:%d]\ns_memtime s[%d:%d]" % (64 + 4 * k_, 65 + 4 * k_, 66 + 4 * k_, 67 + 4 * k_))
    for ph in (0, 1):
        lst = [int(x) for x in OPT["tw%d" % ph].split(",") if x]
        for i, st_ in enumerate(lst):
            if st_ == step: wo_touch(a, ph, i)
    if pre: pre()
    nxt = step + 2
    if nxt < 32 and nxt != 18: kv_tile(a, nxt)
    if nxt == 18:
        for x, t in kv_ops(18)[OPT["early"]:]: a(x, tag=t)
    if step == OPT["pfm"]:
        a("s_lshl_b32 s%d, s%d, 4\ns_add_u32 s%d, s%d, s%d\ns_lshl_b32 s%d, s%d, 1\ns_and_b32 s%d, s%d, 1\ns_add_u32 s%d, s%d, s%d\ns_lshl_b32 s%d, s%d, 14" % (sT, sB, sT, sT, sJJ, sT, sT, sT2, sW, sT, sT, sT2, sT, sT))
        a.autowait = False
        a("buffer_load_dword v147, v146, %s, s%d offen" % (SR(S_WO), sT), tag="x")
        a("s_add_u32 s%d, s%d, 8192" % (sT, sT))
        a("buffer_load_dword v147, v146, %s, s%d offen" % (SR(S_WO), sT), tag="x")
        a.autowait = True
    if extra: extra()

def aux(a):
    if OPT["auxprio"]: a("s_setprio %d" % OPT["auxprio"])
    a("v_lshlrev_b32 v%d, 2, v14\nv_lshlrev_b32 v146, 7, v12" % vFo)
    a("s_lshl_b32 s%d, s%d, 4\nv_mov_b32 v%d, s%d" % (sT, sG, vDg, sT))
    a("s_lshl_b32 s%d, s%d, 4\nv_mov_b32 v%d, s%d\nv_cmp_eq_u32 vcc, 0, v12\nv_cndmask_b32 v%d, v%d, v%d, vcc" % (sT, sGo, vDg2, sT, vDg2, vDg2, vDg))
    a("s_sub_u32 s%d, s%d, 4" % (sOpIdx, sW))
    def ACC(t, d):
        i = t * 4 + d
        return 16 + 4 * i if i < 28 else 176 + 4 * (i - 28)
    BF = lambda t: vr(208 + 4 * t, 4)
    AF = lambda d: 156 + 4 * d
    sW2, sXq = 60, 61
    a("s_and_b32 s%d, s%d, 1" % (sT3, sW))
    a("v_lshrrev_b32 v9, 5, v12\nv_lshl_add_u32 v4, v15, 13, v4\nv_lshl_add_u32 v4, v9, 15, v4")
    a("s_lshl_b32 s%d, s%d, 9\ns_lshl_b32 s%d, s%d, 7\ns_add_u32 s%d, s%d, s%d\ns_add_u32 s%d, s%d, 256" % (sT, sJJ, sT2, sT3, sT, sT, sT2, sT, sT))
    a("v_add_u32 v4, s%d, v4" % sT)
    a("v_add_u32 v5, 64512, v4\nv_xor_b32 v5, 32, v5\nv_add_u32 v6, 129024, v4\nv_add_u32 v7, 129024, v5")
    a("s_mul_i32 s%d, s%d, %d\ns_add_u32 s%d, s%d, %d" % (sW2, sT3, 12 * KB, sW2, sW2, W2R))
    a("v_add_u32 v2, s%d, v2\nv_xor_b32 v3, 32, v2" % sW2)
    a("s_lshl_b32 s%d, s%d, 5\nv_xor_b32 v8, s%d, v8\nv_xor_b32 v9, 32, v8" % (sT, sT3, sT))
    a("s_mul_i32 s%d, s%d, 9" % (sXq, sT3))
    a("v_mov_b32 v10, %s\nv_mov_b32 v11, %s" % (f32(CSCALE), f32(CSCALE)))
    def chunk(m): a("s_add_u32 s%d, s%d, %d\ns_and_b32 s%d, s%d, 7" % (sT3, sRot, (6 + m) & 7, sT3, sT3))
    def w2_load(n):
        chunk(n // 2)
        a("s_lshl_b32 s%d, s%d, 19\ns_add_u32 s%d, s%d, %d\ns_add_u32 m0, s%d, %d" % (sT2, sT3, sT2, sT2, (n & 1) << 18, sW2, (n % 3) * 4096))
        for q in range(4):
            a("buffer_load_dwordx4 v%d, %s, s%d offen offset:%d%s lds" % (4 + q, SR(S_WQ), sT2, q * 1024, POL[OPT["polw"]]), tag="q%d" % n)
    def x2_load(m):
        chunk(m)
        a("s_lshl_b32 s%d, s%d, 7\ns_lshl_b32 s%d, s%d, 13\ns_add_u32 s%d, s%d, s%d\ns_lshl_b32 s63, s%d, 10" % (sT3, sT3, sT2, sXq, sT3, sT3, sT2, sXq))
        for e in range(9):
            a("s_add_u32 m0, s63, %d\ns_add_u32 s%d, s%d, %d" % (XB[m & 1] + e * 1024, sT2, sT3, e * 8192))
            a("buffer_load_dwordx4 v%d, %s, s%d offen%s lds" % (8 + (e & 1), SR(S_X), sT2, POL[OPT["polx"]]), tag="x%d" % m)
    AF2 = [172, 244, 248, 252]
    def q2_a(n, alt):
        a.wait_vm_tag("q%d" % n)
        for d in range(4):
            for rd in range(2):
                a("ds_read_b64_tr_b16 %s, v%d offset:%d" % (vr((AF2[d] if alt else AF(d)) + 2 * rd, 2), 3 if d & 1 else 2, (n % 3) * 4096 + rd * 512 + (d >> 1) * 256))
    def q2_b(n, t): a("ds_read_b128 %s, v1 offset:%d" % (BF(t), ((n // 2) & 1) * 18 * KB + t * 2048 + (n & 1) * 256))
    def q2_step(n, fill=(), chain=False, chained=False):
        A_ = (lambda d: AF2[d]) if chained else AF
        if not chained:
            q2_a(n, False)
            for t in range(9): q2_b(n, t)
            a("WAIT " + vr(AF(0), 16))
        else: a("WAIT " + " ".join(vr(r, 4) for r in AF2))
        if n + 3 < 16: w2_load(n + 3)
        if not chained: a("s_waitcnt lgkmcnt(0)")
        fi = 0
        def pack_ops(t):
            o = []
            for h in range(2):
                b = ACC(t, 2 * h)
                o += ["v_mul_f32 v%d, v10, v%d" % (b + r, b + r) for r in range(8)]
                o += ["v_cvt_pk_bf16_f32 v%d, v%d, v%d" % (b + r, b + 2 * r, b + 2 * r + 1) for r in range(4)]
            for h in range(2):
                b = ACC(t, 2 * h)
                o += ["v_permlane16_swap_b32 v%d, v%d" % (b, b + 2), "v_permlane16_swap_b32 v%d, v%d" % (b + 1, b + 3)]
            return o
        if n == 15 and OPT["p14"]: a("s_setprio %d" % OPT["p14"])
        for t in range(9):
            po = pack_ops(t - 2) if n == 15 and t >= 2 else []
            for d in range(4):
                c = vr(ACC(t, d), 4)
                a("%s %s, %s, %s, %s" % (MF, c, vr(A_(d), 4), BF(t), "0" if n == 0 else c))
                if chain and d == 3: q2_b(n + 1, t)
                if chain and t == 4 and d == 0: q2_a(n + 1, True)
                i = t * 4 + d
                if i >= 36 - OPT["q2mix"] * len(fill) and (36 - i) % OPT["q2mix"] == 0 and fi < len(fill):
                    a(fill[fi][0], tag=fill[fi][1]); fi += 1
                for x in po[7 * d:7 * d + 7]: a(x)
        assert fi == len(fill)
        if n == 15:
            for x in pack_ops(7) + pack_ops(8): a(x)
    sched = {}; n_ = 0
    for i_, c_ in enumerate(OPT["q2s"]):
        sched[i_ + 1] = list(range(n_, n_ + int(c_))); n_ += int(c_)
    assert n_ == 16 and len(OPT["q2s"]) <= 14
    at = {n: s_ for s_, l_ in sched.items() for n in l_}
    xiss = {m: at[2 * (m - 2) + 1] + 1 for m in range(2, 8)}
    for m in xiss: assert at[2 * m] > xiss[m], m
    QW = at[15] + 1
    def o1_store():
        a("s_and_b32 s%d, s%d, 1" % (sT3, sW))
        a("s_mul_i32 s%d, s%d, %d\ns_add_u32 s%d, s%d, %d\nv_add_u32 v%d, s%d, v1" % (sT, sT3, 4096 if OPT["pair"] else 3 * 4096, sT, sT, EX1, vA_, sT))
        a("s_lshl_b32 s%d, s%d, 11\ns_add_u32 s%d, s%d, %d\nv_add_u32 v%d, s%d, v1" % (sT, sT3, sT, sT, Q2B, vB_, sT))
        fr = [(i, t, h) for i in range(3) for t in range(3) for h in range(2)]
        for n, (i, t, h) in enumerate(fr):
            if t < 2: a("ds_read_b128 %s, v%d offset:%d" % (vr(16 + 4 * n, 4), vA_, i * (8192 if OPT["pair"] else 4096) + t * 2048 + h * 1024))
            else: a("ds_read_b128 %s, v%d offset:%d" % (vr(16 + 4 * n, 4), vB_, i * 12 * KB + h * 1024))
        a("s_mul_i32 s%d, s%d, %d\ns_mul_i32 s%d, s%d, %d\ns_add_u32 s%d, s%d, %d\ns_sub_u32 s%d, s%d, s%d" % (sT2, sJJ, 8 * 9216, sT3, sT3, 2 * 9216, sT2, sT2, 2 * 9216, sT2, sT2, sT3))
        for n, (i, t, h) in enumerate(fr):
            a("s_add_u32 s%d, s%d, %d" % (sT, sT2, (h * 9 + 3 * i + t) * 1024))
            a("buffer_store_dwordx4 %s, v1, %s, s%d offen%s" % (vr(16 + 4 * n, 4), SR(S_O), sT, POL[OPT["pols"]]), tag="st")
    def pre(step):
        if step == 0:
            for n in range(3): w2_load(n)
        for m in xiss:
            if xiss[m] == step: x2_load(m)
        ns = sched.get(step, [])
        ch = OPT["q2p"] and len(ns) == 2 and ns[0] % 2 == 0
        if ns and OPT["q2pr"] and ns[0] == 0: a("s_setprio %d" % OPT["q2pr"])
        for n in ns:
            if OPT["q2mix"] and n == ns[-1]:
                q2_step(n, kv_ops(step + 2), False, ch); KV_DONE.add(step + 2)
            else: q2_step(n, (), ch, False)
        if step == QW:
            a("s_and_b32 s%d, s%d, 1\ns_lshl_b32 s%d, s%d, 11\ns_add_u32 s%d, s%d, %d" % (sT, sW, sT, sT, sT, sT, Q2B))
            a("v_lshlrev_b32 v1, 4, v12\nv_add_u32 v2, s%d, v1" % sT)
            fr = [(t, h) for t in range(9) for h in range(2)]
            for t, h in fr: a("ds_write_b128 v2, %s offset:%d" % (vr(ACC(t, 2 * h), 4), t * 4096 + h * 1024))
            if OPT["mxf"]:
                a("s_mov_b64 exec, 1")
                a("v_mov_b32 v%d, %d\nv_mov_b32 v%d, 1" % (vA_, CNT, vB_))
                a("ds_add_u32 v%d, v%d offset:24" % (vA_, vB_))
                a("s_mov_b64 exec, -1")
            if OPT["p14"]: a("s_setprio %d" % OPT["auxprio"])
        if step == 16 and OPT["st1"]: o1_store()
        if step == OPT["pubat"]:
            a("s_cmp_lg_u32 s%d, 6\ns_cbranch_scc1 L_nopub" % sW)
            a("s_lshl_b32 s%d, s%d, 2\nv_mov_b32 v%d, s%d\nv_mov_b32 v%d, s%d" % (sT, sJJ, vA_, sT, vB_, sTagA))
            keep = list(a.vm)
            a("buffer_store_dword v%d, v%d, %s, 0 offen sc1" % (vB_, vA_, SR(S_FL)))
            a.vm = keep
            a.label("L_nopub")
    def extra(step):
        if step == 0:
            a("buffer_load_dword v%d, v%d, %s, 0 offen sc1" % (vFl, vFo, SR(S_FL)), tag="fl")
        if step == 3:
            cstamp(a, 0)
            a("s_lshl_b32 s%d, s%d, 3\ns_add_u32 s%d, s%d, s%d\ns_cmp_lg_u32 s%d, 6\ns_cbranch_scc1 L_nolead" % (sT, sJJ, sT, sT, sW, sT))
            a("v_lshrrev_b32 v%d, v14, v%d\nv_and_b32 v%d, 1, v%d\nv_cmp_eq_u32 vcc, 0, v%d" % (vFl, vFl, vFl, vFl, vFl))
            a("s_nop 1")
            a("s_and_b32 s%d, vcc_lo, 0xffff\ns_or_b32 s%d, s%d, 0x80000000" % (sT, sT, sT))
            a("v_mov_b32 v%d, s%d" % (vFl, sT))
            keep = list(a.vm)
            a("buffer_store_dword v%d, v%d, %s, 0 offen sc1" % (vFl, vDg, SR(S_DBG)))
            a.vm = keep
            a.label("L_nolead")
        if step == 9:
            a("buffer_load_dword v%d, v%d, %s, 0 offen sc1" % (vFl, vDg2, SR(S_DBG)), tag="fl")
        if step == 12:
            cstamp(a, 1)
            keep = list(a.vm)
            a.label("L_tag")
            a("v_cmp_eq_u32 vcc, 0, v%d" % vFl)
            a("s_cbranch_vccz L_tag_ok")
            a("s_sleep 8")
            a("buffer_load_dword v%d, v%d, %s, 0 offen sc1" % (vFl, vDg2, SR(S_DBG)))
            a("s_waitcnt vmcnt(0)")
            a("s_branch L_tag")
            a.label("L_tag_ok")
            a.vm = keep
            a("v_readlane_b32 s%d, v%d, 0\nv_readlane_b32 s%d, v%d, 1" % (sTagA, vFl, sTag, vFl))
            a("v_min_u32 v%d, 1, v12\nv_lshlrev_b32 v%d, 2, v%d\nv_add_u32 v%d, %d, v%d" % (vA_, vA_, vA_, vA_, TAGW, vA_))
            a("ds_write_b32 v%d, v%d" % (vA_, vFl))
            a("s_mov_b32 s%d, 0x%x\nv_mov_b32 v%d, s%d\nv_mov_b32 v%d, %d" % (sC, ((1 << (2 * (NIN + 1))) - 1) | (0x3f << 16), vB_, sC, vCl, CLAIM))
            a("ds_write_b32 v%d, v%d" % (vCl, vB_))
            a("s_or_b32 s%d, s%d, 0x%x" % (sWant, sTag, PHM))
            a("s_waitcnt lgkmcnt(0)")
        for m in xiss:
            if xiss[m] == step and at[2 * m] == step + 1: a.wait_vm_tag("x%d" % m)
        if step == 15:
            a("s_waitcnt lgkmcnt(0)")
            if OPT["mxf"] and not OPT["early"]: pass
            elif OPT["mxf"]:
                a("v_mov_b32 v%d, %d" % (vA_, CNT))
                a.label("L_mxw")
                a("s_sleep 1")
                a("ds_read_b32 v%d, v%d offset:20" % (vB_, vA_))
                a("s_waitcnt lgkmcnt(0)")
                a("v_readfirstlane_b32 s%d, v%d" % (sT, vB_))
                a("s_cmp_lt_u32 s%d, 6\ns_cbranch_scc1 L_mxw" % sT)
            else: a("s_barrier")
            for x, t in kv_ops(18)[:OPT["early"]]: a(x, tag=t)
        if step == 16:
            if not OPT["st1"]: o1_store()
            a("s_sub_u32 s%d, s%d, 6\ns_lshl_b32 s%d, s%d, 14\ns_add_u32 s%d, s%d, %d" % (sBlkP, sW, sBlkP, sBlkP, sBlkP, sBlkP, 96 * KB))
            a("s_mov_b32 s%d, 0x%x" % (sBlkD, (-64 * KB) & 0xffffffff))
            op_setup(a)
        if step == OPT["pubat"] - 1: a.wait_vm_tag("st")
    for step in range(SPLIT):
        aux_step(a, step, pre=lambda: pre(step), extra=lambda: extra(step))
    a("s_cmp_eq_u32 s60, 0\ns_cbranch_scc0 L_op_b_aux")

def code_touch(a, start, end, n, uniq):
    a("s_getpc_b64 s[88:89]")
    a.label(uniq)
    for i in range(n):
        a.items.append(a._mk("v_add_u32 v148, 0x1234, v146")); a.items[-1].text = "v_add_u32 v148, %s-%s+%d, v146" % (start, uniq, i * 8192)
        a.items.append(a._mk("v_min_i32 v148, 0x1234, v148")); a.items[-1].text = "v_min_i32 v148, %s-%s, v148" % (end, uniq)
        a("v_ashrrev_i32 v149, 31, v148")
        a("v_mov_b32 v151, s89\nv_add_co_u32 v150, vcc, s88, v148\nv_addc_co_u32 v151, vcc, v151, v149, vcc")
        a.autowait = False
        a("global_load_dword v147, v[150:151], off", tag="x")
        a.autowait = True

def op_setup(a):
    if OPT["tst"]: a("s_mov_b32 s62, 0")
    lanes(a)
    a("v_lshlrev_b32 v1, 4, v12\nv_add_u32 v8, 4096, v1")
    a("v_lshrrev_b32 v9, 5, v12")
    a("v_and_b32 v4, 3, v12\nv_lshlrev_b32 v5, 1, v9\nv_xor_b32 v4, v4, v5\nv_lshlrev_b32 v4, 4, v4")
    a("v_and_b32 v5, 1, v13")
    a("v_lshl_add_u32 v4, v5, 6, v4\nv_lshl_add_u32 v4, v15, 10, v4\nv_lshl_add_u32 v4, v9, 12, v4")
    a("v_and_b32 v2, 3, v12\nv_lshlrev_b32 v2, 3, v2\nv_lshl_add_u32 v2, v15, 6, v2\nv_lshl_add_u32 v2, v5, 5, v2\nv_lshl_add_u32 v2, v13, 9, v2")
    a("v_add_u32 v2, s%d, v2\nv_xor_b32 v3, 32, v2" % sBlkP)
    a("v_xor_b32 v%d, 1, v5\nv_lshlrev_b32 v%d, 30, v%d" % (vOr, vOr, vOr))
    for q in range(1, 4): a("v_add_u32 v%d, %d, v4" % (4 + q, 7168 * q))
    for r in range(176, 256, 2): a("v_mov_b64 %s, 0" % vr(r, 2))
    a("s_lshr_b32 s60, s%d, 3\ns_and_b32 s61, s%d, 7" % (sJo, sJo))
    a("s_mul_i32 s%d, s60, 5120\ns_lshl_b32 s%d, s61, 7" % (sOb, sWb))
    a("s_and_b32 s%d, s%d, 7" % (sOutOff, sGo))
    a("s_mul_i32 s%d, s%d, 144\ns_mul_i32 s%d, s60, 80\ns_add_u32 s%d, s%d, s%d\ns_lshl_b32 s%d, s%d, 11" % (sOutOff, sOutOff, sT, sOutOff, sOutOff, sT, sOutOff, sOutOff))
    a("s_lshl_b32 s%d, s%d, 10\ns_add_u32 s%d, s%d, s%d\ns_add_u32 s%d, s%d, s%d" % (sT, sBlk, sOutOff, sOutOff, sT, sOutOff, sOutOff, sWb))
    a("s_lshl_b32 s%d, s%d, 5\ns_add_u32 s%d, s%d, s%d" % (sT, sOpIdx, sOutOff, sOutOff, sT))
    a("v_lshlrev_b32 v10, 11, v14\nv_lshl_add_u32 v10, v13, 3, v10")
    a("s_and_b32 s%d, s%d, 1\ns_lshl_b32 s%d, s%d, 1\ns_add_u32 s%d, s%d, s60\ns_lshl_b32 s%d, s%d, 2" % (sT, sGo, sT, sT, sT, sT, sT, sT))
    a("s_lshl_b32 s%d, s61, 1\ns_add_u32 s%d, s%d, s%d" % (sT2, sRm, sT, sT2))
    a("v_add_u32 v11, s%d, v14\nv_and_b32 v11, 15, v11\nv_lshlrev_b32 v11, 2, v11" % sRm)
    a("v_mov_b32 v%d, %d" % (vCl, CLAIM))
    a("s_mul_i32 s%d, s%d, %d\ns_add_u32 s%d, s%d, 1024\ns_add_u32 s90, s100, s%d\ns_addc_u32 s91, s101, 0" % (sT, sGo, OSTR, sT, sT, sT))
    srd(a, S_OL, 90, 91, "%d" % (128 * 9216))
    a("s_lshl_b32 s%d, s%d, 8\ns_add_u32 s%d, s%d, 0x%x\ns_add_u32 s90, s100, s%d\ns_addc_u32 s91, s101, 0" % (sT, sGo, sT, sT, FLAG_OFF, sT))
    srd(a, S_FLL, 90, 91, "64")

def op_path(a, NR, role, vm0):
    lab = lambda s: "L_op_%s_%s" % (role, s)
    B = lambda k, t: vr(16 + ((k % 4) * 5 + t) * 4, 4)
    ACC = lambda t, ct: vr(176 + (t * 4 + ct) * 4, 4)
    G = NR + 4
    def offs(so, static=None):
        if static is not None:
            a("s_and_b32 s%d, s%d, 1\ns_add_u32 s%d, s%d, s%d\ns_add_u32 s%d, s%d, %d" % (sT, sW, sT, sT, sRm, sT, sT, 2 * static))
            a("s_and_b32 s%d, s%d, 15\ns_lshl_b32 s%d, s%d, 3" % (sT, sT, sT, sT))
        else:
            a("s_ff1_i32_b32 s%d, s%d" % (sT2, sBit))
            a("s_add_u32 s%d, s%d, s%d\ns_and_b32 s%d, s%d, 15\ns_lshl_b32 s%d, s%d, 3" % (sT, sT2, sRm, sT, sT, sT, sT))
            a("s_lshr_b32 s%d, s%d, 4\ns_lshl_b32 s%d, s%d, 2\ns_add_u32 s%d, s%d, s%d" % (sT2, sT2, sT2, sT2, sT, sT, sT2))
        a("s_mul_i32 s%d, s%d, 9216\ns_add_u32 s%d, s%d, s%d" % (so, sT, so, so, sOb))
        a("s_lshl_b32 s%d, s%d, 15\ns_add_u32 s%d, s%d, s%d" % (sWn, sT, sWn, sWn, sWb))
        ph = 1 if static is not None else 2
        if OPT["xo"] & ph: a("s_mov_b32 s%d, s%d" % (so, sOb))
        if OPT["xw"] & ph: a("s_mov_b32 s%d, s%d" % (sWn, sWb))
    def w_ops(n, blk=sBlkP):
        k = n % 4
        o = ["s_add_u32 m0, s%d, %d" % (blk, k * 4096), "s_add_u32 s%d, s%d, %d" % (sT2, sWn, k * 32768)]
        for q in range(4):
            o.append(("buffer_load_dwordx4 v%d, %s, s%d offen offset:%d%s lds" % (4 + q, SR(S_WO), sT2, q * 1024, POL[OPT["polwo"]]), "w%d" % n))
        return o
    def o_ops(n, so):
        k = n % 4
        o = ["s_add_u32 s%d, s%d, %d" % (sT3, so, k * 9216)]
        for t in range(NR):
            if t < 4: o.append(("buffer_load_dwordx4 %s, v1, %s, s%d offen offset:%d%s" % (B(k, t), SR(S_OL), sT3, t * 1024, POL[OPT["polo"]]), "o%d" % n))
            else: o.append(("buffer_load_dwordx4 %s, v8, %s, s%d offen%s" % (B(k, t), SR(S_OL), sT3, POL[OPT["polo"]]), "o%d" % n))
        return o
    def reads(n):
        k = n % 4; buf = 96 + 16 * (k & 1)
        return ["ds_read_b64_tr_b16 %s, v%d offset:%d" % (vr(buf + 4 * ct + 2 * rd, 2), 3 if ct & 1 else 2, k * 4096 + rd * 2048 + (ct >> 1) * 256)
                for ct in range(4) for rd in range(2)]
    def run(ops):
        for x in ops:
            a.autowait = False
            if isinstance(x, tuple): a(x[0], tag=x[1])
            else: a(x)
            a.autowait = True
    def wait_tags(*tags):
        need = None
        for k_, (t_, d_) in enumerate(a.vm):
            if t_ in tags: need = k_
        if need is not None: a("s_waitcnt vmcnt(%d)" % (len(a.vm) - 1 - need))
    FLOAD = "buffer_load_dword v9, v11, %s, 0 offen sc1" % SR(S_FLL)
    def ready():
        run(["v_or_b32 v9, v%d, v9" % vOr, "v_cmp_eq_u32 vcc, s%d, v9" % sWant, "s_nop 1", "s_mov_b32 s%d, vcc_lo" % sR])
        if OPT["nopoll"]: a("s_mov_b32 s%d, -1" % sR)
    def attempt():
        run(["s_sub_u32 s%d, 0, s%d" % (sT2, sT), "s_and_b32 s%d, s%d, s%d" % (sBit, sT, sT2),
             "v_mov_b32 v%d, s%d" % (vCb, sBit), "s_mov_b64 exec, 1", "ds_or_rtn_b32 v%d, v%d, v%d" % (vCr, vCl, vCb), "s_mov_b64 exec, -1"])
    def resolve(fail):
        run(["v_readfirstlane_b32 s%d, v%d" % (sT, vCr), "s_or_b32 s%d, s%d, s%d" % (sC, sC, sT), "s_or_b32 s%d, s%d, s%d" % (sC, sC, sBit),
             "s_and_b32 s%d, s%d, s%d" % (sT, sT, sBit), "s_cbranch_scc1 %s" % fail])
    def cands():
        run(["s_not_b32 s%d, s%d" % (sT2, sC), "s_and_b32 s%d, s%d, s%d" % (sT, sR, sT2), "s_cselect_b32 s%d, s%d, s%d" % (sT, sT, sT2)])
    def toggle(): return ["v_add_u32 v2, s%d, v2" % sBlkD, "v_add_u32 v3, s%d, v3" % sBlkD]
    def toggle_s(): return ["s_add_u32 s%d, s%d, s%d" % (sBlkP, sBlkP, sBlkD), "s_sub_u32 s%d, 0, s%d" % (sBlkD, sBlkD)]
    def kstep(n, hw, ho, wait, dyn=None):
        k = n % 4
        wait()
        a("s_waitcnt lgkmcnt(0)")
        if dyn and k == 0:
            keep = list(a.vm)
            run(["s_cmp_eq_u32 s%d, -1" % sR, "s_cbranch_scc1 %s" % lab("nf" + dyn), FLOAD]); a.label(lab("nf" + dyn))
            a.vm = keep
        if dyn and hw and k == 2: run(["ds_read_b32 v%d, v%d" % (vCr, vCl)])
        if dyn and k == 3:
            run(["s_cmp_eq_u32 s%d, -1" % sR, "s_cbranch_scc1 %s" % lab("nr" + dyn)]); ready(); a.label(lab("nr" + dyn))
            run(["s_mov_b32 s%d, s%d" % (sBc, sBn), "s_mov_b32 s%d, s%d" % (sBn, sBit)])
            if hw:
                run(["v_readfirstlane_b32 s%d, v%d" % (sT, vCr), "s_or_b32 s%d, s%d, s%d" % (sC, sC, sT)])
                cands(); attempt()
            run(toggle())
        fillers = (reads(n + 1) if (ho or k < 3) else []) + (w_ops(n + 4) if hw else []) + (o_ops(n + 3, sOc) if k == 0 else (o_ops(n + 3, sOn) if ho else []))
        buf = 96 + 16 * (k & 1)
        ms = ["%s %s, %s, %s, %s" % (MF, ACC(t, ct), vr(buf + 4 * ct, 4), B(k, t), ACC(t, ct)) for ct in range(4) for t in range(NR)]
        fi = 0
        for i, m in enumerate(ms):
            run([m])
            tgt = ((i + 1) * len(fillers) + len(ms) - 3) // (len(ms) - 2)
            while fi < min(tgt, len(fillers)):
                run([fillers[fi]]); fi += 1
        a.lgkm = []
        if k == 3:
            a("s_mov_b32 s%d, s%d" % (sOc, sOn))
            if dyn: run(["s_mov_b32 s%d, s%d" % (sOn, sOnn)] + toggle_s())
    a.vm = list(vm0)
    a.label(lab("aux"))
    s0 = OPT["s0"]; kp = [int(c) for c in OPT["kp"]]
    assert len(kp) == 32 - s0 and s0 - 3 >= SPLIT
    cnt = [0]
    def pre(step):
        def f():
            if step == SPLIT and OPT["cpf"] & 1: code_touch(a, lab("aux"), lab("retry"), 2, lab("c1"))
            if step == 28 and OPT["cpf"] & 2:
                code_touch(a, lab("retry"), lab("fin"), 1, lab("c2"))
                code_touch(a, "L_bnd", "L_auxrole", 1, lab("c3"))
            if step == s0 - 3: offs(sOc, 0); run(w_ops(0) + w_ops(1))
            if step == s0 - 2:
                run([(FLOAD, "fl")])
                run(w_ops(2) + w_ops(3))
            if step == s0 - 1:
                wait_tags("fl")
                keep = list(a.vm)
                a.label(lab("f1"))
                ready()
                a("s_andn2_b32 s%d, 0x%x, s%d" % (sT, (1 << (2 * (NIN + 1))) - 1, sR))
                a("s_cbranch_scc0 %s" % lab("f1ok"))
                run(["s_sleep %d" % OPT["slp"], FLOAD, "s_waitcnt vmcnt(0)", "s_branch %s" % lab("f1")])
                a.label(lab("f1ok"))
                a.vm = keep
                run(o_ops(0, sOc) + o_ops(1, sOc) + o_ops(2, sOc))
                wait_tags("w0"); run(reads(0))
            if step == 31:
                if OPT["auxprio"]: a("s_setprio 0")
                run([(FLOAD, "fl")])
            if step >= s0:
                for _ in range(kp[step - s0]):
                    n = cnt[0]
                    if n % 4 == 0: offs(sOn, n // 4 + 1)
                    kstep(n, True, True, lambda: wait_tags("o%d" % n, "w%d" % (n + 1))); cnt[0] += 1
        return f
    for step in range(SPLIT, 32): aux_step(a, step, pre=pre(step))
    stamp(a, 3)
    a("s_and_b32 s%d, s%d, 1\ns_lshl_b32 s%d, 0x10000, s%d\ns_mov_b32 s%d, s%d" % (sT, sW, sBit, sT, sBn, sBit))
    offs(sOn)
    a("s_add_u32 s63, s%d, s%d" % (sBlkP, sBlkD))
    for n in range(4): run(w_ops(n, 63))
    wait_tags("fl", "o%d" % (cnt[0] + 2), "w%d" % (cnt[0] + 3))
    ready()
    a.vm = []
    a.label(lab("retry"))
    cands(); attempt()
    a.raw(".p2align 3")
    a.label(lab("top"))
    if OPT["tst"]:
        for r in range(6):
            a("s_cmp_lg_u32 s62, %d\ns_cbranch_scc1 %s\ns_memrealtime s[%d:%d]\n%s:" % (r, lab("ts%d" % r), 66 + 2 * r, 67 + 2 * r, lab("ts%d" % r)))
        a("s_add_u32 s62, s62, 1")
    a("s_waitcnt lgkmcnt(0)")
    a("s_cmp_eq_u32 s%d, 0\ns_cbranch_scc1 %s" % (sBit, lab("now")))
    resolve(lab("retry"))
    offs(sOnn)
    def body(hw, ho):
        g0 = 4 * hw + NR; g = 4 * hw + NR * ho
        for k in range(4): kstep(k, hw, ho, lambda: a("s_waitcnt vmcnt(%d)" % [2 * g0, 2 * g0, g0 + g, 2 * g][k]), dyn="%d%d" % (hw, ho))
        a("s_branch %s" % lab("top" if ho else "wait"))
    a("s_and_b32 s%d, s%d, s%d\ns_cbranch_scc0 %s" % (sT, sR, sBn, lab("b10")))
    body(1, 1)
    a.label(lab("b10")); body(1, 0)
    a.label(lab("now"))
    a("s_and_b32 s%d, s%d, s%d\ns_cbranch_scc0 %s" % (sT, sR, sBn, lab("b00")))
    body(0, 1)
    a.label(lab("b00")); body(0, 0)
    a.vm = []
    a.label(lab("join"))
    run([FLOAD])
    a("s_lshl_b32 s%d, 0x40000, s%d\ns_mov_b32 s%d, s%d" % (sBit, sW, sBc, sBit))
    offs(sOc)
    for n in range(4): run(w_ops(n))
    a("s_lshl_b32 s%d, 0x100000, s%d\ns_mov_b32 s%d, s%d" % (sBit, sW, sBn, sBit))
    offs(sOn)
    a("s_add_u32 s63, s%d, s%d" % (sBlkP, sBlkD))
    for n in range(4): run(w_ops(n, 63))
    run(["ds_read_b32 v%d, v%d" % (vCr, vCl), "s_waitcnt vmcnt(32) lgkmcnt(0)", "v_readfirstlane_b32 s%d, v%d" % (sC, vCr)])
    ready()
    cands(); attempt()
    a.label(lab("wait"))
    a("s_and_b32 s%d, s%d, s%d\ns_cbranch_scc1 %s" % (sT, sR, sBc, lab("go")))
    a("s_and_b32 s%d, s%d, s%d\ns_cbranch_scc1 %s" % (sT, sR, sBn, lab("swap")))
    a("s_or_b32 s%d, s%d, s%d\ns_cbranch_scc0 %s" % (sT, sBc, sBn, lab("done")))
    run(["s_sleep %d" % OPT["slp"], FLOAD, "s_waitcnt vmcnt(0)"])
    ready()
    a("s_branch %s" % lab("wait"))
    a.label(lab("swap"))
    run(["s_mov_b32 s%d, s%d" % (sT, sBc), "s_mov_b32 s%d, s%d" % (sBc, sBn), "s_mov_b32 s%d, s%d" % (sBn, sT),
         "s_mov_b32 s%d, s%d" % (sT, sOc), "s_mov_b32 s%d, s%d" % (sOc, sOn), "s_mov_b32 s%d, s%d" % (sOn, sT)] + toggle() + toggle_s())
    a.label(lab("go"))
    stamp(a, 6)
    run(o_ops(0, sOc) + o_ops(1, sOc) + o_ops(2, sOc))
    a("s_waitcnt vmcnt(%d)" % (3 * NR))
    run(reads(0))
    a("s_waitcnt vmcnt(0)")
    a("s_branch %s" % lab("top"))
    a.label(lab("done"))
    a("s_nop 7")
    a.vm = []; a.lgkm = []
    stamp(a, 1)
    a("s_add_u32 s%d, s%d, s%d\ns_min_u32 s%d, s%d, s%d\ns_max_u32 s%d, s%d, s%d" % (sT, sBlkP, sBlkD, sT2, sT, sBlkP, sT3, sT, sBlkP))
    a("v_add_u32 v9, s%d, v1\nv_add_u32 v8, s%d, v1" % (sT2, sT3))
    for t in range(NR):
        for ct in range(4): a("ds_write_b128 v%d, %s offset:%d" % (9 if ct < 2 else 8, ACC(t, ct), (ct & 1) * 8192 + t * 1024))
    a("s_and_b32 s%d, s%d, 1\ns_lshl_b32 s%d, s%d, 13\ns_cmp_lt_u32 s%d, 2" % (sT, sOpIdx, sT, sT, sOpIdx))
    a("s_cselect_b32 s%d, 0, %d\ns_cselect_b32 s%d, %d, %d" % (sT2, 64 * KB, sT3, 16 * KB, 0) + "\ns_cselect_b32 s63, 0, %d" % (132 * KB))
    a("s_add_u32 s%d, s%d, s%d\ns_add_u32 s%d, s%d, s%d\ns_add_u32 s%d, s%d, s63" % (sT2, sT2, sT, sT3, sT3, sT, sT3, sT3))
    a("v_add_u32 v9, s%d, v1\nv_add_u32 v8, s%d, v1" % (sT2, sT3))
    a("s_waitcnt lgkmcnt(0)")
    a("s_barrier")
    for t in range(NR):
        for w in range(4):
            a("ds_read_b128 %s, v%d offset:%d" % (vr(16 + (t * 4 + w) * 4, 4), 8 if w == 1 else 9, [0, 0, 32 * KB, 48 * KB][w] + t * 1024))
    for t in range(NR):
        b = 16 + t * 16
        for r in range(0, 4, 2):
            a("v_pk_add_f32 %s, %s, %s" % (vr(b + r, 2), vr(b + r, 2), vr(b + 4 + r, 2)))
            a("v_pk_add_f32 %s, %s, %s" % (vr(b + 8 + r, 2), vr(b + 8 + r, 2), vr(b + 12 + r, 2)))
            a("v_pk_add_f32 %s, %s, %s" % (vr(b + r, 2), vr(b + r, 2), vr(b + 8 + r, 2)))
        a("v_cvt_pk_bf16_f32 v%d, v%d, v%d\nv_cvt_pk_bf16_f32 v%d, v%d, v%d" % (b, b, b + 1, b + 1, b + 2, b + 3))
        a("s_add_u32 s%d, s%d, %d" % (sT, sOutOff, t * 32768))
        a("buffer_store_dwordx2 %s, v10, %s, s%d offen%s" % (vr(b, 2), SR(S_OUT), sT, POL[OPT["polout"]]))
    if OPT["stamps"]:
        a("s_waitcnt vmcnt(0)")
        stamp(a, 7)
        stamp_store(a)
    a.label(lab("fin"))
    a("s_endpgm")
    a.vm = []; a.lgkm = []

def kernel():
    a = Asm()
    a.raw(".globl %s\n.p2align 8\n.type %s,@function" % (NAME, NAME)); a.label(NAME)
    a("s_cmp_ge_u32 s2, 256\ns_cbranch_scc1 L_end")
    if OPT["stamps"]:
        for k in range(1 if OPT["pst"] else NST): a("s_memrealtime s[%d:%d]" % (64 + 2 * k, 65 + 2 * k))
    a("s_and_b32 s%d, s2, 7\ns_lshr_b32 s%d, s2, 3\ns_lshr_b32 s%d, s%d, 2" % (sT, sT2, sBlk, sT))
    a("s_mul_i32 s%d, s%d, 40" % (sT3, sBlk))
    a("s_add_u32 s4, s0, s%d\ns_addc_u32 s5, s1, 0" % sT3)
    a("s_load_dwordx8 s[80:87], s[4:5], 0")
    a("s_load_dwordx2 s[88:89], s[4:5], 32")
    a("s_load_dwordx4 s[96:99], s[0:1], 80")
    a("s_load_dwordx2 s[92:93], s[0:1], 96")
    a("s_lshr_b32 s%d, s%d, 4\ns_lshl_b32 s%d, s%d, 1\ns_add_u32 s%d, s%d, s%d" % (sGo, sT2, sT3, sT, sGo, sGo, sT3))
    a("s_and_b32 s%d, s%d, 15" % (sJo, sT2))
    if OPT["map"] == 0:
        a("s_mov_b32 s%d, s%d\ns_mov_b32 s%d, s%d\ns_and_b32 s%d, s%d, 7" % (sG, sGo, sJJ, sJo, sB, sGo))
        a("s_and_b32 s%d, s%d, 1\ns_lshl_b32 s%d, s%d, 2\ns_add_u32 s%d, s%d, s%d" % (sRot, sG, sRot, sRot, sRot, sRot, sJJ))
    elif OPT["map"] == 1:
        a("s_and_b32 s%d, s%d, 7\ns_and_b32 s%d, s%d, 1\ns_lshl_b32 s%d, s%d, 3\ns_add_u32 s%d, s%d, s%d" % (sRot, sT2, sJJ, sT, sJJ, sJJ, sJJ, sJJ, sRot))
        a("s_lshr_b32 s%d, s%d, 3\ns_lshl_b32 s%d, s%d, 1\ns_add_u32 s%d, s%d, s%d" % (sB, sT2, sT3, sB, sRot, sRot, sT3))
        a("s_and_b32 s%d, s%d, 2\ns_lshl_b32 s%d, s%d, 1\ns_add_u32 s%d, s%d, s%d" % (sT3, sT, sT3, sT3, sB, sB, sT3))
        a("s_lshl_b32 s%d, s%d, 3\ns_add_u32 s%d, s%d, s%d" % (sG, sBlk, sG, sG, sB))
    else:
        a("s_and_b32 s%d, s%d, 3\ns_and_b32 s%d, s%d, 3\ns_lshl_b32 s%d, s%d, 2\ns_add_u32 s%d, s%d, s%d" % (sRot, sT2, sJJ, sT, sJJ, sJJ, sJJ, sJJ, sRot))
        a("s_lshr_b32 s%d, s%d, 2\ns_lshl_b32 s%d, s%d, 1\ns_add_u32 s%d, s%d, s%d" % (sB, sT2, sRot, sRot, sRot, sRot, sB))
        if OPT["cls"] == 1: a("s_and_b32 s%d, s%d, 3\ns_lshl_b32 s%d, s%d, 1\ns_lshr_b32 s%d, s%d, 4\ns_add_u32 s%d, s%d, s%d" % (sB, sB, sB, sB, sT3, sT2, sB, sB, sT3))
        a("s_lshl_b32 s%d, s%d, 3\ns_add_u32 s%d, s%d, s%d" % (sG, sBlk, sG, sG, sB))
    if OPT["cls"] == 1: a("s_lshr_b32 s3, s2, 7")
    if OPT["cls"] == 2: a("s_mov_b32 s3, s%d" % sBlk)
    a("v_lshrrev_b32 v12, 6, v0")
    a("v_readfirstlane_b32 s%d, v12" % sW)
    a("s_mul_i32 s62, s%d, 147456" % sB)
    def code_pf():
        a("s_getpc_b64 s[90:91]")
        a.label("L_pf")
        if OPT["pfw"]:
            a("s_lshr_b32 s%d, s2, 3\ns_and_b32 s%d, s%d, 3\ns_min_u32 s%d, s%d, 2\ns_lshl_b32 s%d, s%d, 15" % (sT, sT, sT, sT, sT, sT, sT))
            a("v_lshlrev_b32 v240, 7, v0\nv_add_u32 v240, s%d, v240" % sT)
        else: a("v_lshlrev_b32 v240, 7, v0")
        a.items.append(a._mk("v_min_u32 v240, 0x1234, v240")); a.items[-1].text = "v_min_u32 v240, L_end-L_pf, v240"
        if OPT["pfw"] == 2: a("s_cmp_ge_u32 s2, 32\ns_cbranch_scc1 L_nopf")
        a("global_load_dword v253, v240, s[90:91]")
        if OPT["pfw"] == 2: a.label("L_nopf")
    if not OPT["pfw"]: code_pf()
    if OPT["fast0"]:
        loader_setup(a)
        if OPT["pst"]: a("s_memrealtime s[66:67]")
        srds_first(a)
        if OPT["pst"]: a("s_memrealtime s[68:69]")
        a("s_cmp_lt_u32 s%d, 4\ns_cbranch_scc1 L_arole" % sW)
        st0 = (list(a.lgkm), list(a.vm))
        for x, t in stage_ops_(0, 4): a(x, tag=t)
        st = (list(a.lgkm), list(a.vm))
        a("s_cmp_ge_u32 s%d, 6\ns_cbranch_scc1 L_auxrole\ns_branch L_brole" % sW)
        a.label("L_arole")
        a.lgkm, a.vm = list(st0[0]), list(st0[1])
    else:
        a("s_cmp_ge_u32 s%d, 6\ns_cbranch_scc1 L_auxrole" % sW)
        st = (list(a.lgkm), list(a.vm))
        a("s_cmp_ge_u32 s%d, 4\ns_cbranch_scc1 L_brole" % sW)
    if OPT["pfw"]: code_pf()
    head(a, "A")
    a("s_branch L_att")
    a.lgkm, a.vm = list(st[0]), list(st[1])
    a.raw(".p2align 3"); a.label("L_brole")
    head(a, "B")
    a.label("L_att")
    attention(a)
    a.lgkm, a.vm = list(st[0]), list(st[1])
    a.raw(".p2align 3"); a.label("L_auxrole")
    head(a, "X")
    aux(a)
    vm0 = list(a.vm)
    op_path(a, 5, "a", vm0)
    op_path(a, 4, "b", vm0)
    a.label("L_end"); a("s_endpgm")
    a.pad_hazards()
    a.check_backedge("L_loop", "s_cbranch_scc1 L_loop")
    a.align8()
    return a.text()

out = []
out.append("; " + " ".join(sys.argv[1:]) + " : fused Q-projection + attention + O-projection, one launch (generated by dev/gen11.py)")
out.append("; @launch grid=(256,1,1) block=(512,1,1) lds=163840")
out.append('.amdgcn_target "amdgcn-amd-amdhsa--gfx950"\n.text')
out.append(kernel())
out.append('.section .rodata,"a"\n.p2align 6')
out.append(""".amdhsa_kernel %s
  .amdhsa_next_free_vgpr 256
  .amdhsa_next_free_sgpr 102
  .amdhsa_accum_offset 256
  .amdhsa_group_segment_fixed_size 0
  .amdhsa_kernarg_size 104
  .amdhsa_user_sgpr_count 2
  .amdhsa_user_sgpr_kernarg_segment_ptr 1
  .amdhsa_system_sgpr_workgroup_id_x 1
.end_amdhsa_kernel
""" % NAME)
print("\n".join(out))
```

```python
import sys, math, struct
sys.path.insert(0, "dev")
from asmlib import *

OPT = dict(stamps=0, samekv=0, clk=0, hst=0, nopoll=0, polo=2, polw=0, polx=0, polwo=0, pols=2, polkv=1, slp=4, lo=2,
           auxprio=0, sbs=1, s0=22, kp="3333333322", sst=-1, sstd=1, xo=0, xw=0, map=2, park=2, hprio=1, kv0=5, kv1=6, pk14=0, ck=0, polout=0, ptouch=0, tw0="", tw1="", g0=15, cap=0, capto=16, nol=0, q2mix=2, bst=-1, bw=0, pair=1, mxf=1, p14=1, early=8, tst=0, cpf=1, pfm=-1, pst=0, pfw=1, fast0=1, q2s="22111111111111", q2p=1, q2pr=0, kvc=0, xmf=0, cls=0, capl=0, capl0=2, capl1=17, pubat=18, st1=0, hb=3, k1a=8, k1b=8, pad=0, ypr=2, asym=-1)
for a_ in sys.argv[1:]:
    k, v = a_.split("="); assert k in OPT, k; OPT[k] = v if k in ("kp", "tw0", "tw1", "q2s") else int(v)

NAME = "concat_heads__mha_block_cached__gqa_block_cached__near_ridge_kernel"
def f32(x): return "0x%08x" % struct.unpack("<I", struct.pack("<f", x))[0]
CSCALE = math.log2(math.e) / math.sqrt(128.0)
THR = 8.0
KB = 1024
SLOT = 32 * KB
XB = [96 * KB, 114 * KB, 132 * KB]
WB = [32 * KB, 48 * KB, 0]
Q2B = 96 * KB; Q1A = 132 * KB; Q1C = 32 * KB; EX1 = 132 * KB; EX2 = 80 * KB; W2R = 132 * KB
MLB = 156 * KB; CNT = 160 * KB - 128; TAGW = CNT + 8; CLAIM = CNT + 16; PFL = CNT + 32
STAMP_OFF = 0x10000000; FLAG_OFF = 0x2000000
PHM = 0x40000000
OSTR = 128 * 9216 + 1024
MF = "v_mfma_f32_16x16x32_bf16"
NST = 8
POL = ["", " nt", " sc1", " sc0 sc1", " sc1 nt", " sc0 sc1 nt", " sc0 nt", " sc0"]
NIN = sum(int(c) for c in OPT["kp"]) // 4
assert NIN * 4 == sum(int(c) for c in OPT["kp"]) and NIN <= 7

HD = OPT["hb"]
HX = XB if HD == 3 else [64 * KB, 132 * KB, 96 * KB, 114 * KB]
HW = WB if HD == 3 else [0, 16 * KB, 32 * KB, 48 * KB]
SPLIT = OPT["pubat"] + 1
S_FL, S_WQ, S_X, S_O, S_KV, S_WO, S_OUT, S_DBG = 4, 8, 12, 16, 20, 24, 28, 32
S_OL, S_FLL = 8, 12
sW, sG, sJJ, sBlk, sB, sRot, sT, sT2, sT3 = 36, 37, 38, 39, 40, 41, 42, 43, 44
sCnt, sThr, sFl, sSlot, sDelta, sItem, sExS, sBar, sExch, sOoff = 45, 46, 47, 48, 49, 50, 51, 52, 53, 54
sNeg, sPos, sPart, sKg, sRho = 55, 56, 57, 59, 62
sHk, sHo = 46, 47
sOc, sOn, sWn, sBlkP, sRm, sBit, sR, sC = 46, 47, 48, 49, 51, 52, 55, 56
sBlkD, sBc, sBn, sOnn = 45, 53, 58, 86
sOb, sWb, sOutOff, sOpIdx, sTag, sWant, sTagA = 80, 81, 82, 83, 84, 85, 87
sGo, sJo = 94, 95

def srd(a, d, lo, hi, nrec):
    a("s_mov_b32 s%d, s%d\ns_mov_b32 s%d, s%d" % (d, lo, d + 1, hi))
    a("s_mov_b32 s%d, %s\ns_mov_b32 s%d, 0x20000" % (d + 2, nrec, d + 3))
def SR(d): return "s[%d:%d]" % (d, d + 3)

def cstamp(a, e):
    if OPT["clk"]: a("s_memtime s[%d:%d]\ns_memrealtime s[%d:%d]" % (66 + 2 * e, 67 + 2 * e, 70 + 2 * e, 71 + 2 * e))
def stamp(a, k, hs=False):
    if not OPT["stamps"] or OPT["ck"]: return
    if OPT["clk"] and 1 <= k <= 4: return
    if (OPT["sst"] >= 0 or OPT["bst"] >= 0 or OPT["tst"] or OPT["pst"]) and k and k != 7: return
    if OPT["hst"] and k and not hs: return
    if hs and not OPT["hst"]: return
    a("s_memrealtime s[%d:%d]" % (64 + 2 * k, 65 + 2 * k))
BSN = [0]
def bstamp(a, k):
    if OPT["bst"] < 0: return
    BSN[0] += 1
    a("s_cmp_lg_u32 s%d, %d\ns_cbranch_scc1 L_bs%d\ns_memrealtime s[%d:%d]\nL_bs%d:" % (sItem, OPT["bst"], BSN[0], 64 + 2 * k, 65 + 2 * k, BSN[0]))
def stamp_store(a):
    a("s_waitcnt vmcnt(0) lgkmcnt(0)")
    a("s_cmp_eq_u32 s%d, 6\ns_cselect_b32 s%d, 256, 0" % (sW, sT))
    a("s_mul_i32 s%d, s%d, 43\ns_lshr_b32 s%d, s%d, 8\ns_mul_i32 s%d, s%d, 6" % (sT2, sW, sT2, sT2, sT2, sT2))
    a("s_cmp_lg_u32 s%d, s%d\ns_cbranch_scc1 L_end" % (sT2, sW))
    a("s_add_u32 s96, s100, 0x%x\ns_addc_u32 s97, s101, 0" % STAMP_OFF)
    a("s_mov_b32 s98, 0x100000\ns_mov_b32 s99, 0x20000")
    a("s_add_u32 s3, s2, s%d\ns_mul_i32 s3, s3, %d" % (sT, NST * 8))
    a("v_mov_b32 v12, s3\ns_mov_b64 exec, 1")
    for k in range(NST):
        a("v_mov_b32 v14, s%d\nv_mov_b32 v15, s%d" % (64 + 2 * k, 65 + 2 * k))
        a("buffer_store_dwordx2 v[14:15], v12, s[96:99], 0 offen offset:%d" % (8 * k))
        a("s_nop 1")

def lanes(a):
    a("v_and_b32 v12, 63, v0\nv_lshrrev_b32 v13, 4, v12\nv_and_b32 v14, 15, v12\nv_bfe_u32 v15, v12, 2, 2")

vK, vVa, vVb = 1, 2, 3
vX1, vX2, vX3, vX4 = 4, 5, 6, 7
vONE, vT, vQ, vO, vL, vM, vS, vF = 8, 12, 16, 64, 160, 172, 184, 208
def Q(t, s): return vr(vQ + 16 * t + 4 * s, 4)
def O(t, dt): return vr(vO + 32 * t + 4 * dt, 4)
def L(t): return vr(vL + 4 * t, 4)
def M(t): return vr(vM + 4 * t, 4)
def S(t, kt): return vr(vS + 8 * t + 4 * kt, 4)
def F(i): return vF + 4 * i
vD = 128
vFo, vDg, vDg2, vFl, vA_, vB_, vOr, vCl, vCr, vCb = 136, 137, 138, 139, 140, 141, 142, 143, 144, 145

sKo = 50
S_V = 96
CAPN = [0]
def kv_ops(tile):
    slot = (tile + 2) % 3
    o = []
    for grp in range(4):
        for q in range(4):
            if OPT["kvc"]:
                pre_ = "s_add_u32 m0, s%d, %d\ns_add_u32 s%d, s%d, %d\n" % (sKg, slot * SLOT + (grp >> 1) * 16384 + (grp & 1) * 4096, sKo, sKg, tile * 16384 + (grp & 1) * 4096) if q == 0 else ""
                sr_ = SR(S_V if grp >= 2 else S_KV)
            else:
                pre_ = "s_add_u32 m0, s%d, %d\ns_mov_b32 s%d, %d\n" % (sKg, slot * SLOT + grp * 4096, sKo, tile * 16384 + grp * 4096) if q == 0 else ""
                sr_ = SR(S_KV)
            if q == 0 and OPT["capl"] and OPT["capl0"] <= tile <= OPT["capl1"]:
                CAPN[0] += 1
                pre_ = "s_cmp_eq_u32 s3, 0\ns_cbranch_scc1 L_cap%d\nRAW s_waitcnt vmcnt(%d)\nL_cap%d:\n" % (CAPN[0], OPT["capl"] - 4, CAPN[0]) + pre_
            ld = "buffer_load_dwordx4 v%d, %s, s%d offen offset:%d%%s lds" % (vD + q + (4 if grp >= 2 else 0), sr_, sKo, q * 1024)
            if OPT["asym"] >= 0:
                CAPN[0] += 1
                o.append((pre_ + "s_cmp_eq_u32 s%d, %d\ns_cbranch_scc1 L_as%d\n%s\ns_branch L_at%d\nL_as%d:\nRAW %s\nL_at%d:" % (sBlk, OPT["asym"], CAPN[0], ld % " nt", CAPN[0], CAPN[0], ld % "", CAPN[0]), "t%d" % tile))
            else: o.append((pre_ + ld % POL[OPT["polkv"]], "t%d" % tile))
    return o
KV_DONE = set()
def kv_tile(a, tile):
    if tile in KV_DONE and tile < 17: return
    for x, t in kv_ops(tile): a(x, tag=t)

def srds_first(a):
    a("s_waitcnt lgkmcnt(0)")
    srd(a, S_WQ, 86, 87, "%d" % (512 * 8192))
    a("s_add_u32 s80, s80, s62\ns_addc_u32 s81, s81, 0")
    srd(a, S_X, 80, 81, "147456")

def srds_rest(a):
    a("s_mul_i32 s%d, s%d, %d\ns_add_u32 s%d, s%d, 1024\ns_add_u32 s90, s92, s%d\ns_addc_u32 s91, s93, 0" % (sT, sG, OSTR, sT, sT, sT))
    srd(a, S_O, 90, 91, "%d" % (128 * 9216))
    if not OPT["kvc"]: a("s_cmp_eq_u32 s%d, 6\ns_cselect_b32 s82, s82, s84\ns_cselect_b32 s83, s83, s85" % sW)
    a("s_lshl_b32 s%d, s%d, 4\ns_add_u32 s%d, s%d, s%d" % (sT, sB, sT, sT, sJJ))
    if OPT["samekv"]: a("s_mov_b32 s%d, 0" % sT)
    a("s_lshl_b32 s%d, s%d, 19" % (sT, sT))
    a("s_add_u32 s82, s82, s%d\ns_addc_u32 s83, s83, 0" % sT)
    srd(a, S_KV, 82, 83, "524288")
    srd(a, S_WO, 88, 89, "%d" % (4096 * 1024))
    srd(a, S_OUT, 96, 97, "%d" % (8 * 144 * 1024 * 2))
    srd(a, S_DBG, 98, 99, "256")
    if OPT["kvc"]:
        a("s_add_u32 s84, s84, s%d\ns_addc_u32 s85, s85, 0" % sT)
        srd(a, S_V, 84, 85, "524288")
    a("s_lshl_b32 s%d, s%d, 8\ns_add_u32 s%d, s%d, 0x%x\ns_add_u32 s90, s92, s%d\ns_addc_u32 s91, s93, 0" % (sT, sG, sT, sT, FLAG_OFF, sT))
    srd(a, S_FL, 90, 91, "64")
    a("s_mov_b32 s100, s92\ns_mov_b32 s101, s93")
    if OPT["pair"]: a("s_and_b32 s%d, s%d, 1\ns_lshr_b32 s%d, s%d, 1" % (sKg, sW, sRho, sW))
    else: a("s_cmp_ge_u32 s%d, 3\ns_cselect_b32 s%d, 1, 0\ns_mul_i32 s%d, s%d, 3\ns_sub_u32 s%d, s%d, s%d" % (sW, sKg, sT, sKg, sRho, sW, sT))
    a("v_and_b32 v236, 31, v0\nv_lshlrev_b32 v236, 2, v236\nv_add_u32 v236, %d, v236\nv_mov_b32 v234, 0" % CNT)
    a("ds_write_b32 v236, v234")

def q_pack(a, b, scale):
    for r in range(0, 8, 2): a("v_pk_mul_f32 %s, %s, %s" % (vr(b + r, 2), vr(b + r, 2), scale))
    for r in range(4): a("v_cvt_pk_bf16_f32 v%d, v%d, v%d" % (b + r, b + 2 * r, b + 2 * r + 1))
def q_swap(a, b):
    a("v_permlane16_swap_b32 v%d, v%d\nv_permlane16_swap_b32 v%d, v%d" % (b, b + 2, b + 1, b + 3))

def loader_setup(a):
    vHW, vHX, vA1 = 224, 248, 231
    lanes(a)
    a("s_and_b32 s60, s%d, 3" % sW)
    a("v_and_b32 v%d, 3, v12\nv_lshlrev_b32 v%d, 4, v%d" % (vHX, vHX, vHX))
    a("v_lshl_add_u32 v%d, v13, 6, v%d" % (vHW, vHX))
    a("v_lshl_add_u32 v%d, v15, 8, v%d" % (vD, vHW))
    a("v_lshl_add_u32 v%d, v15, 13, v%d" % (vHW, vHW))
    a("s_lshl_b32 s%d, s60, 17\ns_lshl_b32 s%d, s%d, 9\ns_add_u32 s%d, s%d, s%d" % (sT, sT2, sJJ, sT, sT, sT2))
    a("v_add_u32 v%d, s%d, v%d" % (vHW, sT, vHW))
    a("v_add_u32 v%d, %d, v%d" % (vHW + 1, 31744, vHW))
    a("v_add_u32 v%d, %d, v%d\nv_xor_b32 v%d, 32, v%d" % (vHW + 2, 2 * 31744, vHW, vHW + 2, vHW + 2))
    a("v_add_u32 v%d, %d, v%d" % (vHW + 3, 31744, vHW + 2))
    a("s_lshl_b32 s63, s60, 12")
    a("s_mul_i32 s61, s60, 5\ns_min_u32 s61, s61, 14")
    a("v_and_b32 v%d, 1, v13\nv_lshl_add_u32 v4, v%d, 6, v%d" % (vA1, vA1, vHX))
    a("v_lshl_add_u32 v%d, v15, 10, v4" % vHX)
    a("v_lshrrev_b32 v%d, 5, v12\nv_lshl_add_u32 v8, v%d, 12, v%d" % (vA1, vA1, vHX))
    a("s_lshl_b32 s%d, s61, 13\ns_and_b32 s%d, s61, 1\ns_lshl_b32 s%d, s%d, 5" % (sT, sT2, sT2, sT2))
    a("v_add_u32 v%d, s%d, v8\nv_xor_b32 v%d, s%d, v%d" % (vHX, sT, vHX, sT2, vHX))
    a("v_add_u32 v%d, 7168, v%d\nv_xor_b32 v%d, 32, v%d" % (vHX + 1, vHX, vHX + 1, vHX + 1))
    a("v_add_u32 v%d, 14336, v%d\nv_add_u32 v%d, 14336, v%d" % (vHX + 2, vHX, vHX + 3, vHX + 1))
    a("v_add_u32 v%d, 32768, v%d" % (vHX + 4, vHX))
    a("s_lshl_b32 s61, s61, 10")

def stage_ops_(j, NX):
    vHW, vHX = 224, 248
    xb = HX[j % HD]; wb = HW[j % HD]
    o = []
    for qq in range(4):
        pre_ = "s_add_u32 s%d, s%d, %d\ns_and_b32 s%d, s%d, 7\ns_lshl_b32 s%d, s%d, 19\ns_add_u32 m0, s63, %d\n" % (sHk, sRot, j, sHk, sHk, sHo, sHk, wb) if qq == 0 else ""
        o.append(pre_ + "buffer_load_dwordx4 v%d, %s, s%d offen offset:%d%s lds" % (vHW + qq, SR(S_WQ), sHo, qq * 1024, POL[OPT["polw"]]))
    for e in range(NX):
        pre_ = "s_add_u32 m0, s61, %d\n" % (xb + 4096) if e == 4 else ("s_add_u32 m0, s61, %d\ns_lshl_b32 s%d, s%d, 7\n" % (xb, sHo, sHk) if e == 0 else "")
        o.append(pre_ + "buffer_load_dwordx4 v%d, %s, s%d offen offset:%d%s lds" % (vHX + e, SR(S_X), sHo, (e & 3) * 1024, POL[OPT["polx"]]))
    return [(x, "h%d" % j) for x in o]

def head(a, role):
    att = role != "X"; ldr = role != "A"
    NRT = 4 if ldr else 5; T0 = 5 if ldr else 0
    vHW, vHX = 224, 248
    vA1, vA2, vBx = 231, 232, 233
    cA1, cA2, cBx = 234, 235, 236
    ACC = lambda t, d: vr(16 + 8 * t + 4 * d, 4)
    BF = lambda u, t: vr(56 + 20 * u + 4 * t, 4)
    AF = lambda u, d: 96 + 8 * u + 4 * d
    NX = 5 if att else 4
    if not OPT["fast0"]: loader_setup(a)
    def stage_ops(j): return stage_ops_(j, NX) if ldr else []
    def stage_load(j):
        for x, t in stage_ops(j): a(x, tag=t)
    if not OPT["fast0"]:
        srds_first(a)
        stage_load(0)
    elif role == "B":
        x, t = stage_ops(0)[8]; a(x, tag=t)
    if OPT["pst"]: a("s_memrealtime s[70:71]")
    if role == "A" and OPT["ptouch"]:
        a("s_cmp_lg_u32 s%d, 0\ns_cbranch_scc1 L_nopt" % sW)
        a("s_lshl_b32 s%d, s%d, 4\ns_add_u32 s%d, s%d, s%d\ns_lshl_b32 s%d, s%d, 19" % (sT, sB, sT, sT, sJJ, sT, sT))
        a("v_mov_b32 v240, s%d" % sT)
        a.autowait = False
        a("global_load_dword v244, v240, s[82:83]\nglobal_load_dword v245, v240, s[84:85]")
        a("v_and_b32 v240, 1, v12\nv_lshlrev_b32 v241, 21, v240")
        a("global_load_dword v246, v241, s[88:89]\nglobal_load_dword v247, v241, s[96:97]")
        a("v_add_u32 v241, s%d, v240\nv_add_u32 v242, s%d, v240\nv_and_b32 v243, 2, v12\nv_cmp_eq_u32 vcc, 0, v243" % (sG, sGo))
        a("v_cndmask_b32 v241, v241, v242, vcc\ns_mov_b32 s%d, %d\nv_mul_lo_u32 v241, s%d, v241" % (sT, OSTR, sT))
        a("v_mov_b32 v242, 0x%x\nv_cmp_lt_u32 vcc, 3, v12\nv_cndmask_b32 v241, v241, v242, vcc" % (FLAG_OFF + 8192))
        a("global_load_dword v248, v241, s[92:93]")
        a.autowait = True
        a.label("L_nopt")
    srds_rest(a)
    a("v_and_b32 v%d, 3, v12\nv_lshlrev_b32 v%d, 3, v%d" % (vA1, vA1, vA1))
    a("v_lshl_add_u32 v%d, v15, 6, v%d" % (vA1, vA1))
    a("v_and_b32 v%d, 1, v13\nv_lshl_add_u32 v%d, v%d, 5, v%d" % (vA2, vA1, vA2, vA1))
    a("v_lshl_add_u32 v%d, v13, 10, v%d" % (vVa, vA1))
    a("v_lshl_add_u32 v%d, v13, 11, v%d" % (vA1, vA1))
    a("s_and_b32 s%d, s%d, 3\ns_lshl_b32 s%d, s%d, 8" % (sT, sW, sT, sT))
    a("v_add_u32 v%d, s%d, v%d\nv_xor_b32 v%d, 32, v%d" % (vA1, sT, vA1, vA2, vA1))
    a("v_lshrrev_b32 v%d, 3, v14\nv_lshlrev_b32 v%d, 1, v%d\nv_xor_b32 v%d, v%d, v13\nv_lshlrev_b32 v%d, 4, v%d" % (vBx, vBx, vBx, vBx, vBx, vBx, vBx))
    a("v_and_b32 v%d, 3, v14\nv_lshl_add_u32 v%d, v%d, 6, v%d" % (cBx, vBx, cBx, vBx))
    a("v_lshl_add_u32 v%d, v15, 9, v%d" % (vBx, vBx))
    if att:
        a("s_lshl_b32 s%d, s%d, 13\ns_add_u32 s%d, s%d, %d" % (sT, sKg, sT, sT, 2 * SLOT))
        a("v_add_u32 v%d, s%d, v%d\nv_add_u32 v%d, 16384, v%d\nv_xor_b32 v%d, 32, v%d" % (vVa, sT, vVa, vVa, vVa, vVb, vVa))
        a("v_lshlrev_b32 v%d, 10, v15" % vK)
        a("v_lshl_add_u32 v%d, v%d, 6, v%d" % (vK, cBx, vK))
        a("v_lshrrev_b32 v%d, 1, v13\nv_and_b32 v%d, 1, v13\nv_lshl_or_b32 v%d, v%d, 1, v%d" % (cA1, cA2, cA1, cA2, cA1))
        a("v_lshrrev_b32 v%d, 3, v14\nv_xor_b32 v%d, v%d, v%d" % (cA2, cA1, cA1, cA2))
        a("v_lshl_add_u32 v%d, v%d, 4, v%d\nv_add_u32 v%d, s%d, v%d" % (vK, cA1, vK, vK, sT, vK))
        for r in range(4): a("v_mov_b32 v%d, 0x3f803f80" % (vONE + r))
    else:
        a("s_cmp_eq_u32 s%d, 6" % sW)
        if OPT["kvc"]:
            a("s_cselect_b32 s60, 0, 128\ns_cselect_b32 s%d, 0, 8192" % sKg)
            a("v_mov_b32 v%d, v%d\nv_xor_b32 v%d, 16, v%d\nv_xor_b32 v%d, 16, v%d" % (vD + 1, vD, vD + 2, vD, vD + 3, vD))
            a("v_xor_b32 v%d, s60, v%d\nv_xor_b32 v%d, 32, v%d\nv_mov_b32 v%d, v%d\nv_mov_b32 v%d, v%d" % (vD + 4, vD, vD + 5, vD + 4, vD + 6, vD + 4, vD + 7, vD + 5))
        else:
            a("s_cselect_b32 s%d, 0, 32\ns_cselect_b32 s%d, 16, 0\ns_cselect_b32 s%d, 16, 32\ns_cselect_b32 s60, 0, 128\ns_cselect_b32 s%d, 0, 16384" % (sT, sT2, sT3, sKg))
            a("v_xor_b32 v%d, s%d, v%d\nv_xor_b32 v%d, s%d, v%d\nv_xor_b32 v%d, s%d, v%d" % (vD + 1, sT, vD, vD + 2, sT2, vD, vD + 3, sT3, vD))
            for q in range(4): a("v_xor_b32 v%d, s60, v%d" % (vD + 4 + q, vD + q))
        a("v_add_u32 v1, %d, v%d" % (XB[0], vBx))
    a("v_mov_b32 v238, %s\nv_mov_b32 v239, %s" % (f32(CSCALE), f32(CSCALE)))
    def reads(u):
        tr = lambda d: ["ds_read_b64_tr_b16 %s, v%d offset:%d" % (vr(AF(u, d) + 2 * rd, 2), cA2 if d else cA1, u * 8192 + rd * 1024) for rd in range(2)]
        return tr(0) + ["ds_read_b128 %s, v%d offset:%d" % (BF(u, t), cBx, (T0 + t) * 2048 + u * 256) for t in range(NRT)] + tr(1)
    def mfmas(u, first):
        return ["%s %s, %s, %s, %s" % (MF, ACC(t, d), vr(AF(u, d), 4), BF(u, t), "0" if first else ACC(t, d)) for d in range(2) for t in range(NRT)]
    if OPT["pst"]: a("s_memrealtime s[72:73]")
    stage_load(1)
    if OPT["pst"]: a("s_memrealtime s[74:75]")
    stamp(a, 1)
    def mix(ms, rs, ds=()):
        di = 0; ri = 0
        for k, x in enumerate(ms):
            a(x)
            for _ in range(2):
                if ri < len(rs): a(rs[ri]); ri += 1
            while di < len(ds) and di * len(ms) <= k * len(ds):
                a(ds[di][0], tag=ds[di][1]); di += 1
        for x, t in ds[di:]: a(x, tag=t)
    if ldr and OPT["hprio"]: a("s_setprio %d" % OPT["hprio"])
    for j in range(8):
        a.wait_vm_tag("h%d" % j)
        if OPT["pst"] and j == 0: a("s_memrealtime s[76:77]")
        a("v_add_u32 v%d, %d, v%d\nv_add_u32 v%d, %d, v%d\nv_add_u32 v%d, %d, v%d" % (cA1, HW[j % HD], vA1, cA2, HW[j % HD], vA2, cBx, HX[j % HD], vBx))
        a("s_waitcnt lgkmcnt(0)")
        a("s_barrier")
        if j < 7: stamp(a, j + 1, hs=True)
        d = stage_ops(j + HD - 1) if j + HD - 1 < 8 else []
        if j == 0 and HD == 4: d = stage_ops(2) + d
        cut = (len(d) + 1) // 2
        if j == 0:
            for x in reads(0): a(x)
            for x, t in d[:cut]: a(x, tag=t)
        else: mix(mfmas(1, False), reads(0), d[:cut])
        a("s_waitcnt lgkmcnt(0)")
        mix(mfmas(0, j == 0), reads(1), d[cut:])
        if not att and j == OPT["kv0"]: kv_tile(a, 0)
        if not att and j == 6:
            for x, t in kv_ops(1)[:OPT["k1a"]]: a(x, tag=t)
        if not att and j == 7:
            for x, t in kv_ops(1)[OPT["k1a"]:OPT["k1a"] + OPT["k1b"]]: a(x, tag=t)
    for x in mfmas(1, False): a(x)
    a("s_and_b32 s60, s%d, 3\ns_lshl_b32 s60, s60, 10" % sW)
    a("v_lshlrev_b32 v%d, 4, v12\nv_add_u32 v%d, s60, v%d" % (cBx, cBx, cBx))
    a("v_add_u32 v%d, %d, v%d\nv_add_u32 v%d, %d, v%d" % (cA1, Q1A, cBx, cA2, Q1C, cBx))
    for t in range(NRT): q_pack(a, 16 + 8 * t, "v[238:239]")
    for t in range(NRT): q_swap(a, 16 + 8 * t)
    for t in range(NRT):
        tg = T0 + t
        a("ds_write_b128 v%d, %s offset:%d" % (cA1 if tg < 6 else cA2, vr(16 + 8 * t, 4), (tg if tg < 6 else tg - 6) * 4096))
    if ldr and OPT["hprio"]: a("s_setprio 0")
    a("s_waitcnt lgkmcnt(0)")
    a("s_barrier")
    if not att:
        for x, t in kv_ops(1)[OPT["k1a"] + OPT["k1b"]:]: a(x, tag=t)
    stamp(a, 2)

def pair_signal(a):
    a("s_add_u32 s%d, s%d, 1" % (sBar, sBar))
    a("v_mov_b32 v%d, s%d" % (vT, sBar))
    a("ds_write_b32 v%d, v%d" % (vX3, vT))

def pair_wait(a, name, reads):
    a.label(name)
    a("ds_read_b32 v%d, v%d" % (vT, vX4))
    for x in reads: a(x)
    a("s_waitcnt lgkmcnt(%d)" % len(reads))
    a("v_readfirstlane_b32 s%d, v%d" % (sT, vT))
    a("s_cmp_ge_u32 s%d, s%d" % (sT, sBar))
    a("s_cbranch_scc1 %s_ok" % name)
    a("s_waitcnt lgkmcnt(0)")
    if OPT["sbs"]: a("s_sleep %d" % OPT["sbs"])
    a("s_branch %s" % name)
    a.label(name + "_ok")
    a("s_waitcnt lgkmcnt(0)")

def publish(a, name, t0):
    a("s_waitcnt vmcnt(0)")
    a("s_mov_b64 exec, 1")
    a("v_mov_b32 v%d, %d\nv_mov_b32 v%d, 1" % (t0 + 2, CNT, t0 + 1))
    a("ds_add_rtn_u32 v%d, v%d, v%d offset:4" % (t0, t0 + 2, t0 + 1))
    a("ds_read_b32 v%d, v%d offset:8" % (t0 + 1, t0 + 2))
    a("s_waitcnt lgkmcnt(0)")
    a("v_readfirstlane_b32 s%d, v%d" % (sT, t0))
    a("s_cmp_lg_u32 s%d, 5" % sT)
    a("s_cbranch_scc1 %s" % name)
    a("v_or_b32 v%d, 0x%x, v%d" % (t0 + 1, PHM, t0 + 1))
    a("s_lshl_b32 s%d, s%d, 2" % (sT2, sJJ))
    a("v_mov_b32 v%d, s%d" % (t0, sT2))
    a("buffer_store_dword v%d, v%d, %s, 0 offen sc1" % (t0 + 1, t0, SR(S_FL)))
    a.label(name)
    a("s_mov_b64 exec, -1")

def attention(a):
    NT = 3; TL = 2
    a("s_waitcnt vmcnt(0)")
    a("v_lshlrev_b32 v%d, 4, v12" % vX1)
    a("s_mul_i32 s%d, s%d, %d\ns_add_u32 s%d, s%d, %d" % (sT, sRho, 12 * KB, sT, sT, Q1A))
    a("s_cmp_eq_u32 s%d, 2\ns_cselect_b32 s%d, %d, s%d" % (sRho, sT, Q1C, sT))
    a("v_add_u32 v%d, s%d, v%d" % (vX2, sT, vX1))
    for t in range(3):
        for s in range(4): a("ds_read_b128 %s, v%d offset:%d" % (Q(t, s), vX2, t * 4096 + s * 1024))
    if OPT["pair"]: a("s_xor_b32 s%d, s%d, 1" % (sPart, sW))
    else: a("s_add_u32 s%d, s%d, 3\ns_cmp_ge_u32 s%d, 6\ns_cselect_b32 s%d, 6, 0\ns_sub_u32 s%d, s%d, s%d" % (sPart, sW, sPart, sT2, sPart, sPart, sT2))
    a("s_lshl_b32 s%d, s%d, 2\ns_add_u32 s%d, s%d, %d\ns_lshl_b32 s%d, s%d, 2\ns_add_u32 s%d, s%d, %d" % (sT, sW, sT, sT, PFL, sT2, sPart, sT2, sT2, PFL))
    a("v_mov_b32 v%d, s%d\nv_mov_b32 v%d, s%d" % (vX3, sT, vX4, sT2))
    a("s_mov_b32 s%d, 0x40004000\ns_mov_b32 s%d, %s" % (sThr, sFl, f32(THR)))
    a("s_mov_b32 s%d, 0\ns_mov_b32 s%d, 0\ns_mov_b32 s%d, 2" % (sItem, sBar, sSlot))
    a("s_mul_i32 s%d, s%d, %d\ns_add_u32 s%d, s%d, %d" % (sExch, sRho, 12 * KB, sExch, sExch, Q2B))
    a("s_mov_b32 s%d, 0x%x\ns_mov_b32 s%d, %d" % (sNeg, (-2 * SLOT) & 0xffffffff, sPos, SLOT))
    a("s_lshl_b32 s%d, s%d, 3\ns_lshl_b32 s%d, s%d, 1\ns_add_u32 s%d, s%d, s%d\ns_mul_i32 s%d, s%d, 9" % (sT, sJJ, sT2, sKg, sT, sT, sT2, sT, sT))
    a("s_mul_i32 s%d, s%d, 3\ns_add_u32 s%d, s%d, s%d\ns_lshl_b32 s%d, s%d, 10\ns_add_u32 s%d, s%d, %d" % (sT2, sRho, sT, sT, sT2, sOoff, sT, sOoff, sOoff, 36 * KB))
    cstamp(a, 0)
    a.label("L_item")
    if OPT["ypr"] == 1: a("s_setprio 0")
    if OPT["ypr"] == 2: a("s_setprio 1")
    a("s_mov_b32 s%d, 0" % sCnt)
    a("s_waitcnt lgkmcnt(0)")
    Ga, Gb, Gc = 0, 4, 8
    def kread(kt, s):
        slot = (Gc + s) if kt == 0 else (Gb + s)
        return "ds_read_b128 %s, v%d offset:%d" % (vr(F(slot), 4), vK, kt * 4096 + s * 256)
    def vslot(dt): return (Ga + dt) if dt < 4 else (Gb + dt - 4)
    def vread(dt, rd):
        return "ds_read_b64_tr_b16 %s, v%d offset:%d" % (vr(F(vslot(dt)) + 2 * rd, 2), vVb if dt & 1 else vVa, rd * 4096 + (dt >> 1) * 256)
    def pv(t, dt, z=False): return "%s %s, %s, %s, %s" % (MF, O(t, dt), vr(F(vslot(dt)), 4), S(t, 0), "0" if z else O(t, dt))
    def lsum(t, z=False): return "%s %s, %s, %s, %s" % (MF, L(t), vr(vONE, 4), S(t, 0), "0" if z else L(t))
    def qk(t, kt, s, z=False):
        slot = (Gc + s) if kt == 0 else (Gb + s)
        return "%s %s, %s, %s, %s" % (MF, S(t, kt), vr(F(slot), 4), Q(t, s), ("0" if z else M(t)) if s == 0 else S(t, kt))
    EXP = lambda r: "v_exp_f32 v%d, v%d" % (r, r)
    def CVT(b, r): return "v_cvt_pk_bf16_f32 v%d, v%d, v%d" % (b + r, b + 2 * r, b + 2 * r + 1)
    def rowmax(b):
        return ["v_max3_f32 v%d, v%d, v%d, v%d" % (vT, b, b + 1, b + 2), "v_max3_f32 v%d, v%d, v%d, v%d" % (vT + 1, b + 3, b + 4, b + 5),
                "v_max3_f32 v%d, v%d, v%d, v%d" % (vT, vT, b + 6, b + 7), "v_max_f32 v%d, v%d, v%d" % (vT, vT, vT + 1),
                "v_mov_b32 v%d, v%d" % (vT + 1, vT), "v_permlane16_swap_b32 v%d, v%d" % (vT, vT + 1), "v_max_f32 v%d, v%d, v%d" % (vT, vT, vT + 1),
                "v_mov_b32 v%d, v%d" % (vT + 1, vT), "v_permlane32_swap_b32 v%d, v%d" % (vT, vT + 1), "v_max_f32 v%d, v%d, v%d" % (vT, vT, vT + 1)]
    def sm(t):
        b = vS + 8 * t
        g = [[EXP(b + r)] for r in range(4)] + [[CVT(b, 0), CVT(b, 1)]] + [[EXP(b + r)] for r in range(4, 8)] + [[CVT(b, 2), CVT(b, 3)]]
        g.append(["v_or3_b32 v%d, v%d, v%d, v%d" % (b + 4, b, b + 1, b + 2), "v_bitop3_b32 v%d, v%d, v%d, s%d bitop3:0xa8" % (b + 4, b + 4, b + 3, sThr)])
        g.append(["v_cmp_ne_u32 vcc, 0, v%d" % (b + 4)])
        return g
    def step(first):
        mf = []; fill = {}
        def put(idx, ops): fill.setdefault(idx, []).extend(ops)
        if not first: mf += [pv(TL, dt) for dt in (4, 5, 6, 7)] + [pv(TL, dt) for dt in (0, 1, 2, 3)] + [lsum(TL)]
        q0 = len(mf)
        qk_end = {}
        for t in range(NT):
            for kt in ((0, 1) if t < TL else (1, 0)):
                mf += [qk(t, kt, s, first) for s in range(4)]
                if t == TL and kt == 1: v47_at = len(mf) - 1
            qk_end[t] = len(mf) - 1
        pv_start = {}
        for t in range(TL):
            pv_start[t] = len(mf)
            mf += [pv(t, dt, first) for dt in range(4)] + [lsum(t, first)] + [pv(t, dt, first) for dt in range(4, 8)]
        n = len(mf)
        pre = [kread(0, s) for s in range(4)]
        if first:
            pre += [kread(1, s) for s in range(4)] + [vread(dt, rd) for dt in range(4) for rd in range(2)]
            pre += ["v_mov_b64 %s, 0" % vr(r, 2) for r in list(range(vO + 64, vO + 96, 2)) + [vL + 8, vL + 10]]
            pre += ["WAIT " + vr(F(Gc), 16)]
        else:
            for s in range(4): put(s, [kread(1, s)])
            for dt in range(4): put(4 + dt, [vread(dt, 0), vread(dt, 1)])
            put(8, ["WAIT " + vr(F(Gc), 16)])
        put(q0 + 3, ["WAIT " + vr(F(Gb), 16), "s_add_u32 s%d, s%d, 1" % (sSlot, sSlot)])
        put(q0 + 4, ["s_cmp_eq_u32 s%d, 3" % sSlot, "s_cselect_b32 s%d, s%d, s%d" % (sDelta, sNeg, sPos)])
        put(q0 + 5, ["s_cselect_b32 s%d, 0, s%d" % (sSlot, sSlot), "s_add_u32 s%d, s%d, 1" % (sCnt, sCnt)])
        for dt in range(4, 8): put(v47_at - 3 + (dt - 4), [vread(dt, 0), vread(dt, 1)])
        adv = ["v_add_u32 v%d, s%d, v%d" % (r, sDelta, r) for r in (vK, vVa, vVb)]
        tail = []
        if first:
            for t in range(NT):
                b = vS + 8 * t
                ops = rowmax(b) + ["v_add_f32 v%d, s%d, v%d" % (vT, sFl, vT)]
                ops += ["v_sub_f32 v%d, v%d, v%d" % (b + r, b + r, vT) for r in range(8)]
                ops += ["v_sub_f32 v%d, 0, v%d" % (vM + 4 * t + r, vT) for r in range(4)]
                ops += [EXP(b + r) for r in range(8)] + [CVT(b, r) for r in range(4)]
                lo = max(qk_end[t] + 3, [0, 21, 32][t]); hi = [20, 31, n - 1][t]
                for k, x in enumerate(ops): put(lo + k * (hi - lo + 1) // len(ops), [x])
            tail = adv
        else:
            groups = [(t, g) for t in range(NT) for g in sm(t)]
            lo = OPT["g0"]; span = n - lo
            for k, (t, g) in enumerate(groups):
                idx = lo + (k * span) // len(groups)
                assert t == TL or idx + 1 < pv_start[t], (t, idx)
                put(idx, g)
                if k % 12 == 11:
                    br = "s_cbranch_vccnz L_rare%d\nL_back%d:" % (t, t)
                    if t == 0: put(idx, [adv[0]])
                    if t == 1: put(idx, [adv[1]])
                    if t < TL: fill.setdefault(idx + 1, []).insert(0, br)
                    else: tail = [adv[2], "s_cmp_lt_u32 s%d, 16" % sCnt, br]
        put(pv_start[0] - 1, ["WAIT " + vr(F(Ga), 16)])
        put(pv_start[0] + 4, ["WAIT " + vr(F(Gb), 16)])
        a("s_barrier")
        if first and OPT["bst"] == 0:
            a("s_cmp_lg_u32 s%d, 1\ns_cbranch_scc1 L_bsx\ns_memrealtime s[76:77]\nL_bsx:" % sItem)
        for x in pre: a(x)
        for k, m in enumerate(mf):
            a(m)
            for x in fill.get(k, []): a(x)
        if not first:
            for _ in range(OPT["xmf"]): a("%s %s, %s, %s, %s" % (MF, vr(vT, 4), vr(F(0), 4), S(1, 0), vr(vT, 4) if _ else "0"))
        for x in tail: a(x)
    step(True)
    a.raw(".p2align 6")
    a.label("L_loop")
    step(False)
    a("s_cbranch_scc1 L_loop")
    a.label("L_bnd")
    if OPT["ypr"] == 1: a("s_cmp_lt_u32 s%d, 4\ns_cbranch_scc1 L_ypr\ns_setprio 1\nL_ypr:" % sW)
    if OPT["stamps"]:
        a("s_cmp_eq_u32 s%d, 0\ns_cbranch_scc0 L_st4" % sItem)
        stamp(a, 3); cstamp(a, 1)
        a("s_branch L_st4b")
        a.label("L_st4"); stamp(a, 4)
        a.label("L_st4b")
    if OPT["ypr"] == 2: a("s_setprio 0")
    bstamp(a, 1)
    a("s_cmp_eq_u32 s%d, 0" % sItem)
    a("s_cbranch_scc0 L_nomx")
    if OPT["mxf"]:
        a("s_mov_b64 exec, 1")
        a("v_mov_b32 v%d, %d\nv_mov_b32 v%d, 1" % (vT + 2, CNT, vT + 1))
        a("ds_add_u32 v%d, v%d offset:20" % (vT + 2, vT + 1))
        a.label("L_q2w")
        a("ds_read_b32 v%d, v%d offset:24" % (vT, vT + 2))
        a("s_waitcnt lgkmcnt(0)")
        a("v_readfirstlane_b32 s%d, v%d" % (sT, vT))
        a("s_cmp_lt_u32 s%d, 2\ns_cbranch_scc1 L_q2w" % sT)
        a("s_mov_b64 exec, -1")
    else:
        a("s_barrier")
    a("v_add_u32 v%d, s%d, v%d" % (vX2, sExch, vX1))
    for t in range(3):
        for s in range(4): a("ds_read_b128 %s, v%d offset:%d" % (Q(t, s), vX2, t * 4096 + s * 1024))
    pair_signal(a)
    a.label("L_nomx")
    bstamp(a, 2)
    a("s_lshl_b32 s%d, s%d, 12\ns_add_u32 s%d, s%d, %d" % (sT, sW, sT, sT, EX1))
    a("v_add_u32 v%d, s%d, v%d" % (vX2, sT, vX1))
    def send(t, areg, off):
        o = []
        for h in range(2):
            b = vO + 32 * t + 16 + 8 * h
            o += ["v_cvt_pk_bf16_f32 v%d, v%d, v%d" % (b + r, b + 2 * r, b + 2 * r + 1) for r in range(4)]
            o.append("ds_write_b128 v%d, %s offset:%d" % (areg, vr(b, 4), off + h * 1024))
        return o
    fin = [lsum(TL)] + [pv(TL, dt) for dt in (4, 5, 6, 7, 0, 1, 2, 3)]
    ex = send(0, vX2, 0) + send(1, vX2, 2048)
    for k, m in enumerate(fin):
        a(m)
        for x in ex[k * len(ex) // 9:(k + 1) * len(ex) // 9]: a(x)
    a("v_and_b32 v%d, 15, v0\nv_lshlrev_b32 v%d, 3, v%d" % (vT + 2, vT + 2, vT + 2))
    a("s_mul_i32 s%d, s%d, 384\ns_add_u32 s%d, s%d, %d" % (sT, sW, sT, sT, MLB))
    a("v_add_u32 v%d, s%d, v%d" % (vT + 3, sT, vT + 2))
    for t in range(3):
        a("v_mov_b32 v%d, v%d" % (vM + 4 * t + 1, vL + 4 * t))
        a("ds_write_b64 v%d, %s offset:%d" % (vT + 3, vr(vM + 4 * t, 2), t * 128))
    a("s_lshl_b32 s%d, s%d, 11\ns_add_u32 s%d, s%d, s%d" % (sT, sKg, sT, sT, sExch))
    a("v_add_u32 v%d, s%d, v%d" % (vX2, sT, vX1))
    a("s_waitcnt lgkmcnt(0)")
    pair_wait(a, "L_pw0", [])
    bstamp(a, 3)
    for x in send(2, vX2, 0): a(x)
    pair_signal(a)
    a("s_mul_i32 s%d, s%d, 384\ns_add_u32 s%d, s%d, %d" % (sT2, sPart, sT2, sT2, MLB))
    a("v_add_u32 v%d, s%d, v%d" % (vT + 3, sT2, vT + 2))
    a("v_xor_b32 v%d, 2048, v%d" % (vX2, vX2))
    a("s_lshl_b32 s%d, s%d, 12\ns_add_u32 s%d, s%d, %d" % (sT, sPart, sT, sT, EX1))
    a("v_add_u32 v%d, s%d, v%d" % (vT + 2, sT, vX1))
    a("s_waitcnt lgkmcnt(0)")
    rd = ["ds_read_b64 %s, v%d offset:%d" % (vr(vM + 4 * t + 2, 2), vT + 3, t * 128) for t in range(3)]
    for t in range(3):
        for h in range(2):
            rd.append("ds_read_b128 %s, v%d offset:%d" % (vr(vS + 8 * t + 4 * h, 4), vT + 2 if t < 2 else vX2, (t * 2048 if t < 2 else 0) + h * 1024))
    pair_wait(a, "L_pw", rd)
    bstamp(a, 4)
    for t in range(3):
        m = vM + 4 * t; l = vL + 4 * t
        a("v_min_f32 v%d, v%d, v%d" % (l, m, m + 2))
        a("v_sub_f32 v%d, v%d, v%d\nv_sub_f32 v%d, v%d, v%d" % (l + 1, l, m, l + 2, l, m + 2))
        a("v_exp_f32 v%d, v%d\nv_exp_f32 v%d, v%d" % (l + 1, l + 1, l + 2, l + 2))
        a("v_mul_f32 v%d, v%d, v%d" % (l + 3, l + 1, m + 1))
        a("v_fma_f32 v%d, v%d, v%d, v%d" % (l + 3, l + 2, m + 3, l + 3))
        a("v_rcp_f32 v%d, v%d" % (l, l + 3))
        a("v_mul_f32 v%d, v%d, v%d\nv_mul_f32 v%d, v%d, v%d" % (l + 3, l + 2, l, l + 2, l + 2, l))
        a("v_mul_f32 v%d, v%d, v%d\nv_mov_b32 v%d, v%d" % (l + 1, l + 1, l, l, l + 1))
    def combine(out):
        for t in range(3):
            l = vL + 4 * t
            for h in range(2):
                b = vO + 32 * t + 8 * h; u = b + 16; pk = vS + 8 * t + 4 * h
                for r in range(4):
                    a("v_lshlrev_b32 v%d, 16, v%d\nv_and_b32 v%d, 0xffff0000, v%d" % (u + 2 * r, pk + r, u + 2 * r + 1, pk + r))
                for r in range(0, 8, 2): a("v_pk_mul_f32 %s, %s, %s" % (vr(b + r, 2), vr(b + r, 2), vr(l, 2)))
                for r in range(0, 8, 2): a("v_pk_fma_f32 %s, %s, %s, %s" % (vr(b + r, 2), vr(u + r, 2), vr(l + 2, 2), vr(b + r, 2)))
                for r in range(4): a("v_cvt_pk_bf16_f32 v%d, v%d, v%d" % (pk + r, b + 2 * r, b + 2 * r + 1))
                out(t, h, pk)
    a("s_cmp_eq_u32 s%d, 0" % sItem)
    a("s_cbranch_scc0 L_att_done")
    combine(lambda t, h, pk: a("ds_write_b128 v%d, %s offset:%d" % (vT + 2 if t < 2 else vX2, vr(pk, 4), (t * 2048 if t < 2 else 0) + h * 1024)))
    bstamp(a, 5)
    a("s_mov_b32 s%d, 1\ns_lshl_b32 s%d, s%d, 12\ns_add_u32 s%d, s%d, %d" % (sItem, sExch, sRho, sExch, sExch, EX2))
    a("s_waitcnt lgkmcnt(0)")
    a("s_branch L_item")
    a.vm = []; a.lgkm = []
    for t in range(NT):
        b = vS + 8 * t
        a.label("L_rare%d" % t)
        a("s_nop 15")
        a("v_subrev_u32 v%d, s%d, v%d" % (vX2, sDelta, vK))
        for kt in range(2):
            for s in range(4):
                a("ds_read_b128 %s, v%d offset:%d" % (vr(vT, 4), vX2, kt * 4096 + s * 256))
                a("s_waitcnt lgkmcnt(0)")
                a("%s %s, %s, %s, %s" % (MF, S(t, kt), vr(vT, 4), Q(t, s), M(t) if s == 0 else S(t, kt)))
                a("s_nop 3")
        for x in rowmax(b): a(x)
        a("v_add_f32 v%d, s%d, v%d\nv_max_f32 v%d, 0, v%d" % (vT, sFl, vT, vT, vT))
        for r in range(8): a("v_sub_f32 v%d, v%d, v%d" % (b + r, b + r, vT))
        for r in range(4): a("v_sub_f32 v%d, v%d, v%d" % (vM + 4 * t + r, vM + 4 * t + r, vT))
        a("v_exp_f32 v%d, -v%d" % (vT + 1, vT))
        for r in range(4): a("v_mul_f32 v%d, v%d, v%d" % (vL + 4 * t + r, vL + 4 * t + r, vT + 1))
        for r in range(32): a("v_mul_f32 v%d, v%d, v%d" % (vO + 32 * t + r, vO + 32 * t + r, vT + 1))
        for r in range(8): a(EXP(b + r))
        for r in range(4): a(CVT(b, r))
        a("s_nop 3")
        a("s_branch L_back%d" % t)
    a.label("L_att_done")
    a("s_mov_b64 exec, 1")
    a("v_mov_b32 v%d, %d\nv_mov_b32 v%d, 1" % (vT + 2, CNT, vT + 1))
    a("ds_add_u32 v%d, v%d" % (vT + 2, vT + 1))
    a("s_mov_b64 exec, -1")
    combine(lambda t, h, pk: a("s_add_u32 s%d, s%d, %d\nbuffer_store_dwordx4 %s, v%d, %s, s%d offen%s" % (sT, sOoff, (h * 9 + t) * 1024, vr(pk, 4), vX1, SR(S_O), sT, POL[OPT["pols"]])))
    bstamp(a, 5)
    a("s_cmp_lt_u32 s%d, 2" % sW)
    a("s_cbranch_scc1 L_join")
    publish(a, "L_pub_x", vT)
    a("s_endpgm")
    a.label("L_join")
    a("s_mov_b32 s%d, s%d" % (sOpIdx, sW))
    a("s_lshl_b32 s%d, s%d, 14" % (sBlkP, sW))
    a("s_cmp_eq_u32 s%d, 0\ns_cselect_b32 s%d, %d, 0\ns_cselect_b32 s%d, 0, %d\ns_add_u32 s%d, s%d, s%d" % (sW, sBlkD, 64 * KB, sT, 116 * KB, sBlkD, sBlkD, sT))
    op_setup(a)
    publish(a, "L_pub_y", 100)
    bstamp(a, 6)
    stamp(a, 5)
    a("v_mov_b32 v96, %d" % CNT)
    a.label("L_w6")
    a("ds_read_b32 v98, v96")
    a("ds_read_b32 v97, v96 offset:12")
    a("s_waitcnt lgkmcnt(0)")
    a("v_readfirstlane_b32 s%d, v98\nv_readfirstlane_b32 s%d, v97" % (sT, sTag))
    a("s_cmp_lt_u32 s%d, 6\ns_cbranch_scc1 L_w6" % sT)
    a("s_or_b32 s%d, s%d, 0x%x" % (sWant, sTag, PHM))
    a("s_cmp_eq_u32 s60, 0\ns_cbranch_scc1 L_op_a_join\ns_branch L_op_b_join")
    a.vm = []; a.lgkm = []

def wo_touch(a, phase, i):
    a("s_and_b32 s%d, s%d, 1\ns_lshl_b32 s%d, s%d, 4\ns_add_u32 s%d, s%d, s%d" % (sT, sGo, sT, sT, sT, sT, sJo))
    a("s_lshr_b32 s%d, s%d, 1\ns_lshl_b32 s%d, s%d, 18\ns_and_b32 s%d, s%d, 1\ns_lshl_b32 s%d, s%d, 16\ns_add_u32 s%d, s%d, s%d" % (sT2, sT, sT2, sT2, sT, sT, sT, sT, sT, sT, sT2))
    a("s_and_b32 s%d, s%d, 1\ns_lshl_b32 s%d, s%d, 15\ns_add_u32 s%d, s%d, s%d" % (sT2, sW, sT2, sT2, sT, sT, sT2))
    a("s_add_u32 s%d, s%d, %d" % (sT2, sT, phase * 131072 + i * 8192))
    a.autowait = False
    a("buffer_load_dword v147, v146, %s, s%d offen" % (SR(S_WO), sT2), tag="x")
    a.autowait = True

def aux_step(a, step, pre=None, extra=None):
    a.wait_vm_tag("t%d" % step)
    a("s_barrier")
    if OPT["sst"] >= 0 and step >= OPT["sst"] and (step - OPT["sst"]) % OPT["sstd"] == 0 and (step - OPT["sst"]) // OPT["sstd"] < 6:
        k_ = 1 + (step - OPT["sst"]) // OPT["sstd"]
        a("s_memrealtime s[%d:%d]" % (64 + 2 * k_, 65 + 2 * k_))
    if OPT["ck"] and step in (1, 8, 15, 31):
        k_ = (1, 8, 15, 31).index(step)
        a("s_memrealtime s[%d:%d]\ns_memtime s[%d:%d]" % (64 + 4 * k_, 65 + 4 * k_, 66 + 4 * k_, 67 + 4 * k_))
    for ph in (0, 1):
        lst = [int(x) for x in OPT["tw%d" % ph].split(",") if x]
        for i, st_ in enumerate(lst):
            if st_ == step: wo_touch(a, ph, i)
    if pre: pre()
    nxt = step + 2
    if nxt < 32 and nxt != 18: kv_tile(a, nxt)
    if nxt == 18:
        for x, t in kv_ops(18)[OPT["early"]:]: a(x, tag=t)
    if step == OPT["pfm"]:
        a("s_lshl_b32 s%d, s%d, 4\ns_add_u32 s%d, s%d, s%d\ns_lshl_b32 s%d, s%d, 1\ns_and_b32 s%d, s%d, 1\ns_add_u32 s%d, s%d, s%d\ns_lshl_b32 s%d, s%d, 14" % (sT, sB, sT, sT, sJJ, sT, sT, sT2, sW, sT, sT, sT2, sT, sT))
        a.autowait = False
        a("buffer_load_dword v147, v146, %s, s%d offen" % (SR(S_WO), sT), tag="x")
        a("s_add_u32 s%d, s%d, 8192" % (sT, sT))
        a("buffer_load_dword v147, v146, %s, s%d offen" % (SR(S_WO), sT), tag="x")
        a.autowait = True
    if extra: extra()

def aux(a):
    if OPT["auxprio"]: a("s_setprio %d" % OPT["auxprio"])
    a("v_lshlrev_b32 v%d, 2, v14\nv_lshlrev_b32 v146, 7, v12" % vFo)
    a("s_lshl_b32 s%d, s%d, 4\nv_mov_b32 v%d, s%d" % (sT, sG, vDg, sT))
    a("s_lshl_b32 s%d, s%d, 4\nv_mov_b32 v%d, s%d\nv_cmp_eq_u32 vcc, 0, v12\nv_cndmask_b32 v%d, v%d, v%d, vcc" % (sT, sGo, vDg2, sT, vDg2, vDg2, vDg))
    a("s_sub_u32 s%d, s%d, 4" % (sOpIdx, sW))
    def ACC(t, d):
        i = t * 4 + d
        return 16 + 4 * i if i < 28 else 176 + 4 * (i - 28)
    BF = lambda t: vr(208 + 4 * t, 4)
    AF = lambda d: 156 + 4 * d
    sW2, sXq = 60, 61
    a("s_and_b32 s%d, s%d, 1" % (sT3, sW))
    a("v_lshrrev_b32 v9, 5, v12\nv_lshl_add_u32 v4, v15, 13, v4\nv_lshl_add_u32 v4, v9, 15, v4")
    a("s_lshl_b32 s%d, s%d, 9\ns_lshl_b32 s%d, s%d, 7\ns_add_u32 s%d, s%d, s%d\ns_add_u32 s%d, s%d, 256" % (sT, sJJ, sT2, sT3, sT, sT, sT2, sT, sT))
    a("v_add_u32 v4, s%d, v4" % sT)
    a("v_add_u32 v5, 64512, v4\nv_xor_b32 v5, 32, v5\nv_add_u32 v6, 129024, v4\nv_add_u32 v7, 129024, v5")
    a("s_mul_i32 s%d, s%d, %d\ns_add_u32 s%d, s%d, %d" % (sW2, sT3, 12 * KB, sW2, sW2, W2R))
    a("v_add_u32 v2, s%d, v2\nv_xor_b32 v3, 32, v2" % sW2)
    a("s_lshl_b32 s%d, s%d, 5\nv_xor_b32 v8, s%d, v8\nv_xor_b32 v9, 32, v8" % (sT, sT3, sT))
    a("s_mul_i32 s%d, s%d, 9" % (sXq, sT3))
    a("v_mov_b32 v10, %s\nv_mov_b32 v11, %s" % (f32(CSCALE), f32(CSCALE)))
    def chunk(m): a("s_add_u32 s%d, s%d, %d\ns_and_b32 s%d, s%d, 7" % (sT3, sRot, (6 + m) & 7, sT3, sT3))
    def w2_load(n):
        chunk(n // 2)
        a("s_lshl_b32 s%d, s%d, 19\ns_add_u32 s%d, s%d, %d\ns_add_u32 m0, s%d, %d" % (sT2, sT3, sT2, sT2, (n & 1) << 18, sW2, (n % 3) * 4096))
        for q in range(4):
            a("buffer_load_dwordx4 v%d, %s, s%d offen offset:%d%s lds" % (4 + q, SR(S_WQ), sT2, q * 1024, POL[OPT["polw"]]), tag="q%d" % n)
    def x2_load(m):
        chunk(m)
        a("s_lshl_b32 s%d, s%d, 7\ns_lshl_b32 s%d, s%d, 13\ns_add_u32 s%d, s%d, s%d\ns_lshl_b32 s63, s%d, 10" % (sT3, sT3, sT2, sXq, sT3, sT3, sT2, sXq))
        for e in range(9):
            a("s_add_u32 m0, s63, %d\ns_add_u32 s%d, s%d, %d" % (XB[m & 1] + e * 1024, sT2, sT3, e * 8192))
            a("buffer_load_dwordx4 v%d, %s, s%d offen%s lds" % (8 + (e & 1), SR(S_X), sT2, POL[OPT["polx"]]), tag="x%d" % m)
    AF2 = [172, 244, 248, 252]
    def q2_a(n, alt):
        a.wait_vm_tag("q%d" % n)
        for d in range(4):
            for rd in range(2):
                a("ds_read_b64_tr_b16 %s, v%d offset:%d" % (vr((AF2[d] if alt else AF(d)) + 2 * rd, 2), 3 if d & 1 else 2, (n % 3) * 4096 + rd * 512 + (d >> 1) * 256))
    def q2_b(n, t): a("ds_read_b128 %s, v1 offset:%d" % (BF(t), ((n // 2) & 1) * 18 * KB + t * 2048 + (n & 1) * 256))
    def q2_step(n, fill=(), chain=False, chained=False):
        A_ = (lambda d: AF2[d]) if chained else AF
        if not chained:
            q2_a(n, False)
            for t in range(9): q2_b(n, t)
            a("WAIT " + vr(AF(0), 16))
        else: a("WAIT " + " ".join(vr(r, 4) for r in AF2))
        if n + 3 < 16: w2_load(n + 3)
        if not chained: a("s_waitcnt lgkmcnt(0)")
        fi = 0
        def pack_ops(t):
            o = []
            for h in range(2):
                b = ACC(t, 2 * h)
                o += ["v_mul_f32 v%d, v10, v%d" % (b + r, b + r) for r in range(8)]
                o += ["v_cvt_pk_bf16_f32 v%d, v%d, v%d" % (b + r, b + 2 * r, b + 2 * r + 1) for r in range(4)]
            for h in range(2):
                b = ACC(t, 2 * h)
                o += ["v_permlane16_swap_b32 v%d, v%d" % (b, b + 2), "v_permlane16_swap_b32 v%d, v%d" % (b + 1, b + 3)]
            return o
        if n == 15 and OPT["p14"]: a("s_setprio %d" % OPT["p14"])
        for t in range(9):
            po = pack_ops(t - 2) if n == 15 and t >= 2 else []
            for d in range(4):
                c = vr(ACC(t, d), 4)
                a("%s %s, %s, %s, %s" % (MF, c, vr(A_(d), 4), BF(t), "0" if n == 0 else c))
                if chain and d == 3: q2_b(n + 1, t)
                if chain and t == 4 and d == 0: q2_a(n + 1, True)
                i = t * 4 + d
                if i >= 36 - OPT["q2mix"] * len(fill) and (36 - i) % OPT["q2mix"] == 0 and fi < len(fill):
                    a(fill[fi][0], tag=fill[fi][1]); fi += 1
                for x in po[7 * d:7 * d + 7]: a(x)
        assert fi == len(fill)
        if n == 15:
            for x in pack_ops(7) + pack_ops(8): a(x)
    sched = {}; n_ = 0
    for i_, c_ in enumerate(OPT["q2s"]):
        sched[i_ + 1] = list(range(n_, n_ + int(c_))); n_ += int(c_)
    assert n_ == 16 and len(OPT["q2s"]) <= 14
    at = {n: s_ for s_, l_ in sched.items() for n in l_}
    xiss = {m: at[2 * (m - 2) + 1] + 1 for m in range(2, 8)}
    for m in xiss: assert at[2 * m] > xiss[m], m
    QW = at[15] + 1
    def o1_store():
        a("s_and_b32 s%d, s%d, 1" % (sT3, sW))
        a("s_mul_i32 s%d, s%d, %d\ns_add_u32 s%d, s%d, %d\nv_add_u32 v%d, s%d, v1" % (sT, sT3, 4096 if OPT["pair"] else 3 * 4096, sT, sT, EX1, vA_, sT))
        a("s_lshl_b32 s%d, s%d, 11\ns_add_u32 s%d, s%d, %d\nv_add_u32 v%d, s%d, v1" % (sT, sT3, sT, sT, Q2B, vB_, sT))
        fr = [(i, t, h) for i in range(3) for t in range(3) for h in range(2)]
        for n, (i, t, h) in enumerate(fr):
            if t < 2: a("ds_read_b128 %s, v%d offset:%d" % (vr(16 + 4 * n, 4), vA_, i * (8192 if OPT["pair"] else 4096) + t * 2048 + h * 1024))
            else: a("ds_read_b128 %s, v%d offset:%d" % (vr(16 + 4 * n, 4), vB_, i * 12 * KB + h * 1024))
        a("s_mul_i32 s%d, s%d, %d\ns_mul_i32 s%d, s%d, %d\ns_add_u32 s%d, s%d, %d\ns_sub_u32 s%d, s%d, s%d" % (sT2, sJJ, 8 * 9216, sT3, sT3, 2 * 9216, sT2, sT2, 2 * 9216, sT2, sT2, sT3))
        for n, (i, t, h) in enumerate(fr):
            a("s_add_u32 s%d, s%d, %d" % (sT, sT2, (h * 9 + 3 * i + t) * 1024))
            a("buffer_store_dwordx4 %s, v1, %s, s%d offen%s" % (vr(16 + 4 * n, 4), SR(S_O), sT, POL[OPT["pols"]]), tag="st")
    def pre(step):
        if step == 0:
            for n in range(3): w2_load(n)
        for m in xiss:
            if xiss[m] == step: x2_load(m)
        ns = sched.get(step, [])
        ch = OPT["q2p"] and len(ns) == 2 and ns[0] % 2 == 0
        if ns and OPT["q2pr"] and ns[0] == 0: a("s_setprio %d" % OPT["q2pr"])
        for n in ns:
            if OPT["q2mix"] and n == ns[-1]:
                q2_step(n, kv_ops(step + 2), False, ch); KV_DONE.add(step + 2)
            else: q2_step(n, (), ch, False)
        if step == QW:
            a("s_and_b32 s%d, s%d, 1\ns_lshl_b32 s%d, s%d, 11\ns_add_u32 s%d, s%d, %d" % (sT, sW, sT, sT, sT, sT, Q2B))
            a("v_lshlrev_b32 v1, 4, v12\nv_add_u32 v2, s%d, v1" % sT)
            fr = [(t, h) for t in range(9) for h in range(2)]
            for t, h in fr: a("ds_write_b128 v2, %s offset:%d" % (vr(ACC(t, 2 * h), 4), t * 4096 + h * 1024))
            if OPT["mxf"]:
                a("s_mov_b64 exec, 1")
                a("v_mov_b32 v%d, %d\nv_mov_b32 v%d, 1" % (vA_, CNT, vB_))
                a("ds_add_u32 v%d, v%d offset:24" % (vA_, vB_))
                a("s_mov_b64 exec, -1")
            if OPT["p14"]: a("s_setprio %d" % OPT["auxprio"])
        if step == 16 and OPT["st1"]: o1_store()
        if step == OPT["pubat"]:
            a("s_cmp_lg_u32 s%d, 6\ns_cbranch_scc1 L_nopub" % sW)
            a("s_lshl_b32 s%d, s%d, 2\nv_mov_b32 v%d, s%d\nv_mov_b32 v%d, s%d" % (sT, sJJ, vA_, sT, vB_, sTagA))
            keep = list(a.vm)
            a("buffer_store_dword v%d, v%d, %s, 0 offen sc1" % (vB_, vA_, SR(S_FL)))
            a.vm = keep
            a.label("L_nopub")
    def extra(step):
        if step == 0:
            a("buffer_load_dword v%d, v%d, %s, 0 offen sc1" % (vFl, vFo, SR(S_FL)), tag="fl")
        if step == 3:
            cstamp(a, 0)
            a("s_lshl_b32 s%d, s%d, 3\ns_add_u32 s%d, s%d, s%d\ns_cmp_lg_u32 s%d, 6\ns_cbranch_scc1 L_nolead" % (sT, sJJ, sT, sT, sW, sT))
            a("v_lshrrev_b32 v%d, v14, v%d\nv_and_b32 v%d, 1, v%d\nv_cmp_eq_u32 vcc, 0, v%d" % (vFl, vFl, vFl, vFl, vFl))
            a("s_nop 1")
            a("s_and_b32 s%d, vcc_lo, 0xffff\ns_or_b32 s%d, s%d, 0x80000000" % (sT, sT, sT))
            a("v_mov_b32 v%d, s%d" % (vFl, sT))
            keep = list(a.vm)
            a("buffer_store_dword v%d, v%d, %s, 0 offen sc1" % (vFl, vDg, SR(S_DBG)))
            a.vm = keep
            a.label("L_nolead")
        if step == 9:
            a("buffer_load_dword v%d, v%d, %s, 0 offen sc1" % (vFl, vDg2, SR(S_DBG)), tag="fl")
        if step == 12:
            cstamp(a, 1)
            keep = list(a.vm)
            a.label("L_tag")
            a("v_cmp_eq_u32 vcc, 0, v%d" % vFl)
            a("s_cbranch_vccz L_tag_ok")
            a("s_sleep 8")
            a("buffer_load_dword v%d, v%d, %s, 0 offen sc1" % (vFl, vDg2, SR(S_DBG)))
            a("s_waitcnt vmcnt(0)")
            a("s_branch L_tag")
            a.label("L_tag_ok")
            a.vm = keep
            a("v_readlane_b32 s%d, v%d, 0\nv_readlane_b32 s%d, v%d, 1" % (sTagA, vFl, sTag, vFl))
            a("v_min_u32 v%d, 1, v12\nv_lshlrev_b32 v%d, 2, v%d\nv_add_u32 v%d, %d, v%d" % (vA_, vA_, vA_, vA_, TAGW, vA_))
            a("ds_write_b32 v%d, v%d" % (vA_, vFl))
            a("s_mov_b32 s%d, 0x%x\nv_mov_b32 v%d, s%d\nv_mov_b32 v%d, %d" % (sC, ((1 << (2 * (NIN + 1))) - 1) | (0x3f << 16), vB_, sC, vCl, CLAIM))
            a("ds_write_b32 v%d, v%d" % (vCl, vB_))
            a("s_or_b32 s%d, s%d, 0x%x" % (sWant, sTag, PHM))
            a("s_waitcnt lgkmcnt(0)")
        for m in xiss:
            if xiss[m] == step and at[2 * m] == step + 1: a.wait_vm_tag("x%d" % m)
        if step == 15:
            a("s_waitcnt lgkmcnt(0)")
            if OPT["mxf"] and not OPT["early"]: pass
            elif OPT["mxf"]:
                a("v_mov_b32 v%d, %d" % (vA_, CNT))
                a.label("L_mxw")
                a("s_sleep 1")
                a("ds_read_b32 v%d, v%d offset:20" % (vB_, vA_))
                a("s_waitcnt lgkmcnt(0)")
                a("v_readfirstlane_b32 s%d, v%d" % (sT, vB_))
                a("s_cmp_lt_u32 s%d, 6\ns_cbranch_scc1 L_mxw" % sT)
            else: a("s_barrier")
            for x, t in kv_ops(18)[:OPT["early"]]: a(x, tag=t)
        if step == 16:
            if not OPT["st1"]: o1_store()
            a("s_sub_u32 s%d, s%d, 6\ns_lshl_b32 s%d, s%d, 14\ns_add_u32 s%d, s%d, %d" % (sBlkP, sW, sBlkP, sBlkP, sBlkP, sBlkP, 96 * KB))
            a("s_mov_b32 s%d, 0x%x" % (sBlkD, (-64 * KB) & 0xffffffff))
            op_setup(a)
        if step == OPT["pubat"] - 1: a.wait_vm_tag("st")
    for step in range(SPLIT):
        aux_step(a, step, pre=lambda: pre(step), extra=lambda: extra(step))
    a("s_cmp_eq_u32 s60, 0\ns_cbranch_scc0 L_op_b_aux")

def code_touch(a, start, end, n, uniq):
    a("s_getpc_b64 s[88:89]")
    a.label(uniq)
    for i in range(n):
        a.items.append(a._mk("v_add_u32 v148, 0x1234, v146")); a.items[-1].text = "v_add_u32 v148, %s-%s+%d, v146" % (start, uniq, i * 8192)
        a.items.append(a._mk("v_min_i32 v148, 0x1234, v148")); a.items[-1].text = "v_min_i32 v148, %s-%s, v148" % (end, uniq)
        a("v_ashrrev_i32 v149, 31, v148")
        a("v_mov_b32 v151, s89\nv_add_co_u32 v150, vcc, s88, v148\nv_addc_co_u32 v151, vcc, v151, v149, vcc")
        a.autowait = False
        a("global_load_dword v147, v[150:151], off", tag="x")
        a.autowait = True

def op_setup(a):
    if OPT["tst"]: a("s_mov_b32 s62, 0")
    lanes(a)
    a("v_lshlrev_b32 v1, 4, v12\nv_add_u32 v8, 4096, v1")
    a("v_lshrrev_b32 v9, 5, v12")
    a("v_and_b32 v4, 3, v12\nv_lshlrev_b32 v5, 1, v9\nv_xor_b32 v4, v4, v5\nv_lshlrev_b32 v4, 4, v4")
    a("v_and_b32 v5, 1, v13")
    a("v_lshl_add_u32 v4, v5, 6, v4\nv_lshl_add_u32 v4, v15, 10, v4\nv_lshl_add_u32 v4, v9, 12, v4")
    a("v_and_b32 v2, 3, v12\nv_lshlrev_b32 v2, 3, v2\nv_lshl_add_u32 v2, v15, 6, v2\nv_lshl_add_u32 v2, v5, 5, v2\nv_lshl_add_u32 v2, v13, 9, v2")
    a("v_add_u32 v2, s%d, v2\nv_xor_b32 v3, 32, v2" % sBlkP)
    a("v_xor_b32 v%d, 1, v5\nv_lshlrev_b32 v%d, 30, v%d" % (vOr, vOr, vOr))
    for q in range(1, 4): a("v_add_u32 v%d, %d, v4" % (4 + q, 7168 * q))
    for r in range(176, 256, 2): a("v_mov_b64 %s, 0" % vr(r, 2))
    a("s_lshr_b32 s60, s%d, 3\ns_and_b32 s61, s%d, 7" % (sJo, sJo))
    a("s_mul_i32 s%d, s60, 5120\ns_lshl_b32 s%d, s61, 7" % (sOb, sWb))
    a("s_and_b32 s%d, s%d, 7" % (sOutOff, sGo))
    a("s_mul_i32 s%d, s%d, 144\ns_mul_i32 s%d, s60, 80\ns_add_u32 s%d, s%d, s%d\ns_lshl_b32 s%d, s%d, 11" % (sOutOff, sOutOff, sT, sOutOff, sOutOff, sT, sOutOff, sOutOff))
    a("s_lshl_b32 s%d, s%d, 10\ns_add_u32 s%d, s%d, s%d\ns_add_u32 s%d, s%d, s%d" % (sT, sBlk, sOutOff, sOutOff, sT, sOutOff, sOutOff, sWb))
    a("s_lshl_b32 s%d, s%d, 5\ns_add_u32 s%d, s%d, s%d" % (sT, sOpIdx, sOutOff, sOutOff, sT))
    a("v_lshlrev_b32 v10, 11, v14\nv_lshl_add_u32 v10, v13, 3, v10")
    a("s_and_b32 s%d, s%d, 1\ns_lshl_b32 s%d, s%d, 1\ns_add_u32 s%d, s%d, s60\ns_lshl_b32 s%d, s%d, 2" % (sT, sGo, sT, sT, sT, sT, sT, sT))
    a("s_lshl_b32 s%d, s61, 1\ns_add_u32 s%d, s%d, s%d" % (sT2, sRm, sT, sT2))
    a("v_add_u32 v11, s%d, v14\nv_and_b32 v11, 15, v11\nv_lshlrev_b32 v11, 2, v11" % sRm)
    a("v_mov_b32 v%d, %d" % (vCl, CLAIM))
    a("s_mul_i32 s%d, s%d, %d\ns_add_u32 s%d, s%d, 1024\ns_add_u32 s90, s100, s%d\ns_addc_u32 s91, s101, 0" % (sT, sGo, OSTR, sT, sT, sT))
    srd(a, S_OL, 90, 91, "%d" % (128 * 9216))
    a("s_lshl_b32 s%d, s%d, 8\ns_add_u32 s%d, s%d, 0x%x\ns_add_u32 s90, s100, s%d\ns_addc_u32 s91, s101, 0" % (sT, sGo, sT, sT, FLAG_OFF, sT))
    srd(a, S_FLL, 90, 91, "64")

def op_path(a, NR, role, vm0):
    lab = lambda s: "L_op_%s_%s" % (role, s)
    B = lambda k, t: vr(16 + ((k % 4) * 5 + t) * 4, 4)
    ACC = lambda t, ct: vr(176 + (t * 4 + ct) * 4, 4)
    G = NR + 4
    def offs(so, static=None):
        if static is not None:
            a("s_and_b32 s%d, s%d, 1\ns_add_u32 s%d, s%d, s%d\ns_add_u32 s%d, s%d, %d" % (sT, sW, sT, sT, sRm, sT, sT, 2 * static))
            a("s_and_b32 s%d, s%d, 15\ns_lshl_b32 s%d, s%d, 3" % (sT, sT, sT, sT))
        else:
            a("s_ff1_i32_b32 s%d, s%d" % (sT2, sBit))
            a("s_add_u32 s%d, s%d, s%d\ns_and_b32 s%d, s%d, 15\ns_lshl_b32 s%d, s%d, 3" % (sT, sT2, sRm, sT, sT, sT, sT))
            a("s_lshr_b32 s%d, s%d, 4\ns_lshl_b32 s%d, s%d, 2\ns_add_u32 s%d, s%d, s%d" % (sT2, sT2, sT2, sT2, sT, sT, sT2))
        a("s_mul_i32 s%d, s%d, 9216\ns_add_u32 s%d, s%d, s%d" % (so, sT, so, so, sOb))
        a("s_lshl_b32 s%d, s%d, 15\ns_add_u32 s%d, s%d, s%d" % (sWn, sT, sWn, sWn, sWb))
        ph = 1 if static is not None else 2
        if OPT["xo"] & ph: a("s_mov_b32 s%d, s%d" % (so, sOb))
        if OPT["xw"] & ph: a("s_mov_b32 s%d, s%d" % (sWn, sWb))
    def w_ops(n, blk=sBlkP):
        k = n % 4
        o = ["s_add_u32 m0, s%d, %d" % (blk, k * 4096), "s_add_u32 s%d, s%d, %d" % (sT2, sWn, k * 32768)]
        for q in range(4):
            o.append(("buffer_load_dwordx4 v%d, %s, s%d offen offset:%d%s lds" % (4 + q, SR(S_WO), sT2, q * 1024, POL[OPT["polwo"]]), "w%d" % n))
        return o
    def o_ops(n, so):
        k = n % 4
        o = ["s_add_u32 s%d, s%d, %d" % (sT3, so, k * 9216)]
        for t in range(NR):
            if t < 4: o.append(("buffer_load_dwordx4 %s, v1, %s, s%d offen offset:%d%s" % (B(k, t), SR(S_OL), sT3, t * 1024, POL[OPT["polo"]]), "o%d" % n))
            else: o.append(("buffer_load_dwordx4 %s, v8, %s, s%d offen%s" % (B(k, t), SR(S_OL), sT3, POL[OPT["polo"]]), "o%d" % n))
        return o
    def reads(n):
        k = n % 4; buf = 96 + 16 * (k & 1)
        return ["ds_read_b64_tr_b16 %s, v%d offset:%d" % (vr(buf + 4 * ct + 2 * rd, 2), 3 if ct & 1 else 2, k * 4096 + rd * 2048 + (ct >> 1) * 256)
                for ct in range(4) for rd in range(2)]
    def run(ops):
        for x in ops:
            a.autowait = False
            if isinstance(x, tuple): a(x[0], tag=x[1])
            else: a(x)
            a.autowait = True
    def wait_tags(*tags):
        need = None
        for k_, (t_, d_) in enumerate(a.vm):
            if t_ in tags: need = k_
        if need is not None: a("s_waitcnt vmcnt(%d)" % (len(a.vm) - 1 - need))
    FLOAD = "buffer_load_dword v9, v11, %s, 0 offen sc1" % SR(S_FLL)
    def ready():
        run(["v_or_b32 v9, v%d, v9" % vOr, "v_cmp_eq_u32 vcc, s%d, v9" % sWant, "s_nop 1", "s_mov_b32 s%d, vcc_lo" % sR])
        if OPT["nopoll"]: a("s_mov_b32 s%d, -1" % sR)
    def attempt():
        run(["s_sub_u32 s%d, 0, s%d" % (sT2, sT), "s_and_b32 s%d, s%d, s%d" % (sBit, sT, sT2),
             "v_mov_b32 v%d, s%d" % (vCb, sBit), "s_mov_b64 exec, 1", "ds_or_rtn_b32 v%d, v%d, v%d" % (vCr, vCl, vCb), "s_mov_b64 exec, -1"])
    def resolve(fail):
        run(["v_readfirstlane_b32 s%d, v%d" % (sT, vCr), "s_or_b32 s%d, s%d, s%d" % (sC, sC, sT), "s_or_b32 s%d, s%d, s%d" % (sC, sC, sBit),
             "s_and_b32 s%d, s%d, s%d" % (sT, sT, sBit), "s_cbranch_scc1 %s" % fail])
    def cands():
        run(["s_not_b32 s%d, s%d" % (sT2, sC), "s_and_b32 s%d, s%d, s%d" % (sT, sR, sT2), "s_cselect_b32 s%d, s%d, s%d" % (sT, sT, sT2)])
    def toggle(): return ["v_add_u32 v2, s%d, v2" % sBlkD, "v_add_u32 v3, s%d, v3" % sBlkD]
    def toggle_s(): return ["s_add_u32 s%d, s%d, s%d" % (sBlkP, sBlkP, sBlkD), "s_sub_u32 s%d, 0, s%d" % (sBlkD, sBlkD)]
    def kstep(n, hw, ho, wait, dyn=None):
        k = n % 4
        wait()
        a("s_waitcnt lgkmcnt(0)")
        if dyn and k == 0:
            keep = list(a.vm)
            run(["s_cmp_eq_u32 s%d, -1" % sR, "s_cbranch_scc1 %s" % lab("nf" + dyn), FLOAD]); a.label(lab("nf" + dyn))
            a.vm = keep
        if dyn and hw and k == 2: run(["ds_read_b32 v%d, v%d" % (vCr, vCl)])
        if dyn and k == 3:
            run(["s_cmp_eq_u32 s%d, -1" % sR, "s_cbranch_scc1 %s" % lab("nr" + dyn)]); ready(); a.label(lab("nr" + dyn))
            run(["s_mov_b32 s%d, s%d" % (sBc, sBn), "s_mov_b32 s%d, s%d" % (sBn, sBit)])
            if hw:
                run(["v_readfirstlane_b32 s%d, v%d" % (sT, vCr), "s_or_b32 s%d, s%d, s%d" % (sC, sC, sT)])
                cands(); attempt()
            run(toggle())
        fillers = (reads(n + 1) if (ho or k < 3) else []) + (w_ops(n + 4) if hw else []) + (o_ops(n + 3, sOc) if k == 0 else (o_ops(n + 3, sOn) if ho else []))
        buf = 96 + 16 * (k & 1)
        ms = ["%s %s, %s, %s, %s" % (MF, ACC(t, ct), vr(buf + 4 * ct, 4), B(k, t), ACC(t, ct)) for ct in range(4) for t in range(NR)]
        fi = 0
        for i, m in enumerate(ms):
            run([m])
            tgt = ((i + 1) * len(fillers) + len(ms) - 3) // (len(ms) - 2)
            while fi < min(tgt, len(fillers)):
                run([fillers[fi]]); fi += 1
        a.lgkm = []
        if k == 3:
            a("s_mov_b32 s%d, s%d" % (sOc, sOn))
            if dyn: run(["s_mov_b32 s%d, s%d" % (sOn, sOnn)] + toggle_s())
    a.vm = list(vm0)
    a.label(lab("aux"))
    s0 = OPT["s0"]; kp = [int(c) for c in OPT["kp"]]
    assert len(kp) == 32 - s0 and s0 - 3 >= SPLIT
    cnt = [0]
    def pre(step):
        def f():
            if step == SPLIT and OPT["cpf"] & 1: code_touch(a, lab("aux"), lab("retry"), 2, lab("c1"))
            if step == 28 and OPT["cpf"] & 2:
                code_touch(a, lab("retry"), lab("fin"), 1, lab("c2"))
                code_touch(a, "L_bnd", "L_auxrole", 1, lab("c3"))
            if step == s0 - 3: offs(sOc, 0); run(w_ops(0) + w_ops(1))
            if step == s0 - 2:
                run([(FLOAD, "fl")])
                run(w_ops(2) + w_ops(3))
            if step == s0 - 1:
                wait_tags("fl")
                keep = list(a.vm)
                a.label(lab("f1"))
                ready()
                a("s_andn2_b32 s%d, 0x%x, s%d" % (sT, (1 << (2 * (NIN + 1))) - 1, sR))
                a("s_cbranch_scc0 %s" % lab("f1ok"))
                run(["s_sleep %d" % OPT["slp"], FLOAD, "s_waitcnt vmcnt(0)", "s_branch %s" % lab("f1")])
                a.label(lab("f1ok"))
                a.vm = keep
                run(o_ops(0, sOc) + o_ops(1, sOc) + o_ops(2, sOc))
                wait_tags("w0"); run(reads(0))
            if step == 31:
                if OPT["auxprio"]: a("s_setprio 0")
                run([(FLOAD, "fl")])
            if step >= s0:
                for _ in range(kp[step - s0]):
                    n = cnt[0]
                    if n % 4 == 0: offs(sOn, n // 4 + 1)
                    kstep(n, True, True, lambda: wait_tags("o%d" % n, "w%d" % (n + 1))); cnt[0] += 1
        return f
    for step in range(SPLIT, 32): aux_step(a, step, pre=pre(step))
    stamp(a, 3)
    a("s_and_b32 s%d, s%d, 1\ns_lshl_b32 s%d, 0x10000, s%d\ns_mov_b32 s%d, s%d" % (sT, sW, sBit, sT, sBn, sBit))
    offs(sOn)
    a("s_add_u32 s63, s%d, s%d" % (sBlkP, sBlkD))
    for n in range(4): run(w_ops(n, 63))
    wait_tags("fl", "o%d" % (cnt[0] + 2), "w%d" % (cnt[0] + 3))
    ready()
    a.vm = []
    a.label(lab("retry"))
    cands(); attempt()
    a.raw(".p2align 3")
    a.label(lab("top"))
    if OPT["tst"]:
        for r in range(6):
            a("s_cmp_lg_u32 s62, %d\ns_cbranch_scc1 %s\ns_memrealtime s[%d:%d]\n%s:" % (r, lab("ts%d" % r), 66 + 2 * r, 67 + 2 * r, lab("ts%d" % r)))
        a("s_add_u32 s62, s62, 1")
    a("s_waitcnt lgkmcnt(0)")
    a("s_cmp_eq_u32 s%d, 0\ns_cbranch_scc1 %s" % (sBit, lab("now")))
    resolve(lab("retry"))
    offs(sOnn)
    def body(hw, ho):
        g0 = 4 * hw + NR; g = 4 * hw + NR * ho
        for k in range(4): kstep(k, hw, ho, lambda: a("s_waitcnt vmcnt(%d)" % [2 * g0, 2 * g0, g0 + g, 2 * g][k]), dyn="%d%d" % (hw, ho))
        a("s_branch %s" % lab("top" if ho else "wait"))
    a("s_and_b32 s%d, s%d, s%d\ns_cbranch_scc0 %s" % (sT, sR, sBn, lab("b10")))
    body(1, 1)
    a.label(lab("b10")); body(1, 0)
    a.label(lab("now"))
    a("s_and_b32 s%d, s%d, s%d\ns_cbranch_scc0 %s" % (sT, sR, sBn, lab("b00")))
    body(0, 1)
    a.label(lab("b00")); body(0, 0)
    a.vm = []
    a.label(lab("join"))
    run([FLOAD])
    a("s_lshl_b32 s%d, 0x40000, s%d\ns_mov_b32 s%d, s%d" % (sBit, sW, sBc, sBit))
    offs(sOc)
    for n in range(4): run(w_ops(n))
    a("s_lshl_b32 s%d, 0x100000, s%d\ns_mov_b32 s%d, s%d" % (sBit, sW, sBn, sBit))
    offs(sOn)
    a("s_add_u32 s63, s%d, s%d" % (sBlkP, sBlkD))
    for n in range(4): run(w_ops(n, 63))
    run(["ds_read_b32 v%d, v%d" % (vCr, vCl), "s_waitcnt vmcnt(32) lgkmcnt(0)", "v_readfirstlane_b32 s%d, v%d" % (sC, vCr)])
    ready()
    cands(); attempt()
    a.label(lab("wait"))
    a("s_and_b32 s%d, s%d, s%d\ns_cbranch_scc1 %s" % (sT, sR, sBc, lab("go")))
    a("s_and_b32 s%d, s%d, s%d\ns_cbranch_scc1 %s" % (sT, sR, sBn, lab("swap")))
    a("s_or_b32 s%d, s%d, s%d\ns_cbranch_scc0 %s" % (sT, sBc, sBn, lab("done")))
    run(["s_sleep %d" % OPT["slp"], FLOAD, "s_waitcnt vmcnt(0)"])
    ready()
    a("s_branch %s" % lab("wait"))
    a.label(lab("swap"))
    run(["s_mov_b32 s%d, s%d" % (sT, sBc), "s_mov_b32 s%d, s%d" % (sBc, sBn), "s_mov_b32 s%d, s%d" % (sBn, sT),
         "s_mov_b32 s%d, s%d" % (sT, sOc), "s_mov_b32 s%d, s%d" % (sOc, sOn), "s_mov_b32 s%d, s%d" % (sOn, sT)] + toggle() + toggle_s())
    a.label(lab("go"))
    stamp(a, 6)
    if OPT["pad"]:
        padl = ["s_mov_b64 exec, 1"] + ["buffer_load_dword v%d, v11, %s, 0 offen" % (vA_, SR(S_FLL))] * 4 + ["s_mov_b64 exec, -1"]
        run(o_ops(0, sOc) + padl + o_ops(1, sOc) + padl + o_ops(2, sOc))
        a("s_waitcnt vmcnt(%d)" % (3 * NR + 8))
        run(reads(0))
    else:
        run(o_ops(0, sOc) + o_ops(1, sOc) + o_ops(2, sOc))
        a("s_waitcnt vmcnt(%d)" % (3 * NR))
        run(reads(0))
        a("s_waitcnt vmcnt(0)")
    a("s_branch %s" % lab("top"))
    a.label(lab("done"))
    a("s_nop 7")
    a.vm = []; a.lgkm = []
    stamp(a, 1)
    a("s_add_u32 s%d, s%d, s%d\ns_min_u32 s%d, s%d, s%d\ns_max_u32 s%d, s%d, s%d" % (sT, sBlkP, sBlkD, sT2, sT, sBlkP, sT3, sT, sBlkP))
    a("v_add_u32 v9, s%d, v1\nv_add_u32 v8, s%d, v1" % (sT2, sT3))
    for t in range(NR):
        for ct in range(4): a("ds_write_b128 v%d, %s offset:%d" % (9 if ct < 2 else 8, ACC(t, ct), (ct & 1) * 8192 + t * 1024))
    a("s_and_b32 s%d, s%d, 1\ns_lshl_b32 s%d, s%d, 13\ns_cmp_lt_u32 s%d, 2" % (sT, sOpIdx, sT, sT, sOpIdx))
    a("s_cselect_b32 s%d, 0, %d\ns_cselect_b32 s%d, %d, %d" % (sT2, 64 * KB, sT3, 16 * KB, 0) + "\ns_cselect_b32 s63, 0, %d" % (132 * KB))
    a("s_add_u32 s%d, s%d, s%d\ns_add_u32 s%d, s%d, s%d\ns_add_u32 s%d, s%d, s63" % (sT2, sT2, sT, sT3, sT3, sT, sT3, sT3))
    a("v_add_u32 v9, s%d, v1\nv_add_u32 v8, s%d, v1" % (sT2, sT3))
    a("s_waitcnt lgkmcnt(0)")
    a("s_barrier")
    for t in range(NR):
        for w in range(4):
            a("ds_read_b128 %s, v%d offset:%d" % (vr(16 + (t * 4 + w) * 4, 4), 8 if w == 1 else 9, [0, 0, 32 * KB, 48 * KB][w] + t * 1024))
    for t in range(NR):
        b = 16 + t * 16
        for r in range(0, 4, 2):
            a("v_pk_add_f32 %s, %s, %s" % (vr(b + r, 2), vr(b + r, 2), vr(b + 4 + r, 2)))
            a("v_pk_add_f32 %s, %s, %s" % (vr(b + 8 + r, 2), vr(b + 8 + r, 2), vr(b + 12 + r, 2)))
            a("v_pk_add_f32 %s, %s, %s" % (vr(b + r, 2), vr(b + r, 2), vr(b + 8 + r, 2)))
        a("v_cvt_pk_bf16_f32 v%d, v%d, v%d\nv_cvt_pk_bf16_f32 v%d, v%d, v%d" % (b, b, b + 1, b + 1, b + 2, b + 3))
        a("s_add_u32 s%d, s%d, %d" % (sT, sOutOff, t * 32768))
        a("buffer_store_dwordx2 %s, v10, %s, s%d offen%s" % (vr(b, 2), SR(S_OUT), sT, POL[OPT["polout"]]))
    if OPT["stamps"]:
        a("s_waitcnt vmcnt(0)")
        stamp(a, 7)
        stamp_store(a)
    a.label(lab("fin"))
    a("s_endpgm")
    a.vm = []; a.lgkm = []

def kernel():
    a = Asm()
    a.raw(".globl %s\n.p2align 8\n.type %s,@function" % (NAME, NAME)); a.label(NAME)
    a("s_cmp_ge_u32 s2, 256\ns_cbranch_scc1 L_end")
    if OPT["stamps"]:
        for k in range(1 if OPT["pst"] else NST): a("s_memrealtime s[%d:%d]" % (64 + 2 * k, 65 + 2 * k))
    a("s_and_b32 s%d, s2, 7\ns_lshr_b32 s%d, s2, 3\ns_lshr_b32 s%d, s%d, 2" % (sT, sT2, sBlk, sT))
    a("s_mul_i32 s%d, s%d, 40" % (sT3, sBlk))
    a("s_add_u32 s4, s0, s%d\ns_addc_u32 s5, s1, 0" % sT3)
    a("s_load_dwordx8 s[80:87], s[4:5], 0")
    a("s_load_dwordx2 s[88:89], s[4:5], 32")
    a("s_load_dwordx4 s[96:99], s[0:1], 80")
    a("s_load_dwordx2 s[92:93], s[0:1], 96")
    a("s_lshr_b32 s%d, s%d, 4\ns_lshl_b32 s%d, s%d, 1\ns_add_u32 s%d, s%d, s%d" % (sGo, sT2, sT3, sT, sGo, sGo, sT3))
    a("s_and_b32 s%d, s%d, 15" % (sJo, sT2))
    if OPT["map"] == 0:
        a("s_mov_b32 s%d, s%d\ns_mov_b32 s%d, s%d\ns_and_b32 s%d, s%d, 7" % (sG, sGo, sJJ, sJo, sB, sGo))
        a("s_and_b32 s%d, s%d, 1\ns_lshl_b32 s%d, s%d, 2\ns_add_u32 s%d, s%d, s%d" % (sRot, sG, sRot, sRot, sRot, sRot, sJJ))
    elif OPT["map"] == 1:
        a("s_and_b32 s%d, s%d, 7\ns_and_b32 s%d, s%d, 1\ns_lshl_b32 s%d, s%d, 3\ns_add_u32 s%d, s%d, s%d" % (sRot, sT2, sJJ, sT, sJJ, sJJ, sJJ, sJJ, sRot))
        a("s_lshr_b32 s%d, s%d, 3\ns_lshl_b32 s%d, s%d, 1\ns_add_u32 s%d, s%d, s%d" % (sB, sT2, sT3, sB, sRot, sRot, sT3))
        a("s_and_b32 s%d, s%d, 2\ns_lshl_b32 s%d, s%d, 1\ns_add_u32 s%d, s%d, s%d" % (sT3, sT, sT3, sT3, sB, sB, sT3))
        a("s_lshl_b32 s%d, s%d, 3\ns_add_u32 s%d, s%d, s%d" % (sG, sBlk, sG, sG, sB))
    else:
        a("s_and_b32 s%d, s%d, 3\ns_and_b32 s%d, s%d, 3\ns_lshl_b32 s%d, s%d, 2\ns_add_u32 s%d, s%d, s%d" % (sRot, sT2, sJJ, sT, sJJ, sJJ, sJJ, sJJ, sRot))
        a("s_lshr_b32 s%d, s%d, 2\ns_lshl_b32 s%d, s%d, 1\ns_add_u32 s%d, s%d, s%d" % (sB, sT2, sRot, sRot, sRot, sRot, sB))
        if OPT["cls"] == 1: a("s_and_b32 s%d, s%d, 3\ns_lshl_b32 s%d, s%d, 1\ns_lshr_b32 s%d, s%d, 4\ns_add_u32 s%d, s%d, s%d" % (sB, sB, sB, sB, sT3, sT2, sB, sB, sT3))
        a("s_lshl_b32 s%d, s%d, 3\ns_add_u32 s%d, s%d, s%d" % (sG, sBlk, sG, sG, sB))
    if OPT["cls"] == 1: a("s_lshr_b32 s3, s2, 7")
    if OPT["cls"] == 2: a("s_mov_b32 s3, s%d" % sBlk)
    a("v_lshrrev_b32 v12, 6, v0")
    a("v_readfirstlane_b32 s%d, v12" % sW)
    a("s_mul_i32 s62, s%d, 147456" % sB)
    def code_pf():
        a("s_getpc_b64 s[90:91]")
        a.label("L_pf")
        if OPT["pfw"]:
            a("s_lshr_b32 s%d, s2, 3\ns_and_b32 s%d, s%d, 3\ns_min_u32 s%d, s%d, 2\ns_lshl_b32 s%d, s%d, 15" % (sT, sT, sT, sT, sT, sT, sT))
            a("v_lshlrev_b32 v240, 7, v0\nv_add_u32 v240, s%d, v240" % sT)
        else: a("v_lshlrev_b32 v240, 7, v0")
        a.items.append(a._mk("v_min_u32 v240, 0x1234, v240")); a.items[-1].text = "v_min_u32 v240, L_end-L_pf, v240"
        if OPT["pfw"] == 2: a("s_cmp_ge_u32 s2, 32\ns_cbranch_scc1 L_nopf")
        a("global_load_dword v253, v240, s[90:91]")
        if OPT["pfw"] == 2: a.label("L_nopf")
    if not OPT["pfw"]: code_pf()
    if OPT["fast0"]:
        loader_setup(a)
        if OPT["pst"]: a("s_memrealtime s[66:67]")
        srds_first(a)
        if OPT["pst"]: a("s_memrealtime s[68:69]")
        a("s_cmp_lt_u32 s%d, 4\ns_cbranch_scc1 L_arole" % sW)
        st0 = (list(a.lgkm), list(a.vm))
        for x, t in stage_ops_(0, 4): a(x, tag=t)
        st = (list(a.lgkm), list(a.vm))
        a("s_cmp_ge_u32 s%d, 6\ns_cbranch_scc1 L_auxrole\ns_branch L_brole" % sW)
        a.label("L_arole")
        a.lgkm, a.vm = list(st0[0]), list(st0[1])
    else:
        a("s_cmp_ge_u32 s%d, 6\ns_cbranch_scc1 L_auxrole" % sW)
        st = (list(a.lgkm), list(a.vm))
        a("s_cmp_ge_u32 s%d, 4\ns_cbranch_scc1 L_brole" % sW)
    if OPT["pfw"]: code_pf()
    head(a, "A")
    a("s_branch L_att")
    a.lgkm, a.vm = list(st[0]), list(st[1])
    a.raw(".p2align 3"); a.label("L_brole")
    head(a, "B")
    a.label("L_att")
    attention(a)
    a.lgkm, a.vm = list(st[0]), list(st[1])
    a.raw(".p2align 3"); a.label("L_auxrole")
    head(a, "X")
    aux(a)
    vm0 = list(a.vm)
    op_path(a, 5, "a", vm0)
    op_path(a, 4, "b", vm0)
    a.label("L_end"); a("s_endpgm")
    a.pad_hazards()
    a.check_backedge("L_loop", "s_cbranch_scc1 L_loop")
    a.align8()
    return a.text()

out = []
out.append("; " + " ".join(sys.argv[1:]) + " : fused Q-projection + attention + O-projection, one launch (generated by dev/gen11.py)")
out.append("; @launch grid=(256,1,1) block=(512,1,1) lds=163840")
out.append('.amdgcn_target "amdgcn-amd-amdhsa--gfx950"\n.text')
out.append(kernel())
out.append('.section .rodata,"a"\n.p2align 6')
out.append(""".amdhsa_kernel %s
  .amdhsa_next_free_vgpr 256
  .amdhsa_next_free_sgpr 102
  .amdhsa_accum_offset 256
  .amdhsa_group_segment_fixed_size 0
  .amdhsa_kernarg_size 104
  .amdhsa_user_sgpr_count 2
  .amdhsa_user_sgpr_kernarg_segment_ptr 1
  .amdhsa_system_sgpr_workgroup_id_x 1
.end_amdhsa_kernel
""" % NAME)
print("\n".join(out))
```

```python
import sys, math, struct
sys.path.insert(0, "dev")
from asmlib import *

OPT = dict(stamps=0, samekv=0, clk=0, hst=0, nopoll=0, polo=2, polw=0, polx=0, polwo=0, pols=2, polkv=1, slp=4, lo=2,
           auxprio=0, sbs=1, s0=22, kp="3333333322", sst=-1, sstd=1, xo=0, xw=0, map=2, park=2, hprio=1, kv0=5, kv1=6, pk14=0, ck=0, polout=0, ptouch=0, tw0="", tw1="", g0=15, cap=0, capto=16, nol=0, q2mix=2, bst=-1, bw=0, pair=1, mxf=1, p14=1, early=8, tst=0, cpf=1, pfm=-1, pst=0, pfw=1, fast0=1, q2s="22111111111111", q2p=1, q2pr=0, kvc=0, xmf=0, cls=0, capl=0, capl0=2, capl1=17, pubat=18, st1=0, hb=3, k1a=8, k1b=8, pad=0, ypr=2, asym=-1, p0=18, ps="1111111111222", fl0=19, od=1, pols2=2, polf=2)
for a_ in sys.argv[1:]:
    k, v = a_.split("="); assert k in OPT, k; OPT[k] = v if k in ("kp", "tw0", "tw1", "q2s", "ps") else int(v)

NAME = "concat_heads__mha_block_cached__gqa_block_cached__near_ridge_kernel"
def f32(x): return "0x%08x" % struct.unpack("<I", struct.pack("<f", x))[0]
CSCALE = math.log2(math.e) / math.sqrt(128.0)
THR = 8.0
KB = 1024
SLOT = 32 * KB
XB = [96 * KB, 114 * KB, 132 * KB]
WB = [32 * KB, 48 * KB, 0]
Q2B = 96 * KB; Q1A = 132 * KB; Q1C = 32 * KB; EX1 = 132 * KB; EX2 = 80 * KB; W2R = 132 * KB
MLB = 156 * KB; CNT = 160 * KB - 128; TAGW = CNT + 8; CLAIM = CNT + 16; PFL = CNT + 32
STAMP_OFF = 0x10000000; FLAG_OFF = 0x2000000
PH2 = 0x40000000; PH3 = 0x20000000; PHM = 0x60000000
SLAB_OFF = 0x2800000
S_SL = 8
sR2 = 60
OSTR = 128 * 9216 + 1024
MF = "v_mfma_f32_16x16x32_bf16"
NST = 8
POL = ["", " nt", " sc1", " sc0 sc1", " sc1 nt", " sc0 sc1 nt", " sc0 nt", " sc0"]
NIN = sum(int(c) for c in OPT["kp"]) // 4
assert NIN * 4 == sum(int(c) for c in OPT["kp"]) and NIN <= 7

HD = OPT["hb"]
HX = XB if HD == 3 else [64 * KB, 132 * KB, 96 * KB, 114 * KB]
HW = WB if HD == 3 else [0, 16 * KB, 32 * KB, 48 * KB]
SPLIT = OPT["pubat"] + 1
S_FL, S_WQ, S_X, S_O, S_KV, S_WO, S_OUT, S_DBG = 4, 8, 12, 16, 20, 24, 28, 32
S_OL, S_FLL = 8, 12
sW, sG, sJJ, sBlk, sB, sRot, sT, sT2, sT3 = 36, 37, 38, 39, 40, 41, 42, 43, 44
sCnt, sThr, sFl, sSlot, sDelta, sItem, sExS, sBar, sExch, sOoff = 45, 46, 47, 48, 49, 50, 51, 52, 53, 54
sNeg, sPos, sPart, sKg, sRho = 55, 56, 57, 59, 62
sHk, sHo = 46, 47
sOc, sOn, sWn, sBlkP, sRm, sBit, sR, sC = 46, 47, 48, 49, 51, 52, 55, 56
sBlkD, sBc, sBn, sOnn = 45, 53, 58, 86
sOb, sWb, sOutOff, sOpIdx, sTag, sWant, sTagA = 80, 81, 82, 83, 84, 85, 87
sGo, sJo = 94, 95

def srd(a, d, lo, hi, nrec):
    a("s_mov_b32 s%d, s%d\ns_mov_b32 s%d, s%d" % (d, lo, d + 1, hi))
    a("s_mov_b32 s%d, %s\ns_mov_b32 s%d, 0x20000" % (d + 2, nrec, d + 3))
def SR(d): return "s[%d:%d]" % (d, d + 3)

def cstamp(a, e):
    if OPT["clk"]: a("s_memtime s[%d:%d]\ns_memrealtime s[%d:%d]" % (66 + 2 * e, 67 + 2 * e, 70 + 2 * e, 71 + 2 * e))
def stamp(a, k, hs=False):
    if not OPT["stamps"] or OPT["ck"]: return
    if OPT["clk"] and 1 <= k <= 4: return
    if (OPT["sst"] >= 0 or OPT["bst"] >= 0 or OPT["tst"] or OPT["pst"]) and k and k != 7: return
    if OPT["hst"] and k and not hs: return
    if hs and not OPT["hst"]: return
    a("s_memrealtime s[%d:%d]" % (64 + 2 * k, 65 + 2 * k))
BSN = [0]
def bstamp(a, k):
    if OPT["bst"] < 0: return
    BSN[0] += 1
    a("s_cmp_lg_u32 s%d, %d\ns_cbranch_scc1 L_bs%d\ns_memrealtime s[%d:%d]\nL_bs%d:" % (sItem, OPT["bst"], BSN[0], 64 + 2 * k, 65 + 2 * k, BSN[0]))
def stamp_store(a):
    a("s_waitcnt vmcnt(0) lgkmcnt(0)")
    a("s_cmp_eq_u32 s%d, 6\ns_cselect_b32 s%d, 256, 0" % (sW, sT))
    a("s_mul_i32 s%d, s%d, 43\ns_lshr_b32 s%d, s%d, 8\ns_mul_i32 s%d, s%d, 6" % (sT2, sW, sT2, sT2, sT2, sT2))
    a("s_cmp_lg_u32 s%d, s%d\ns_cbranch_scc1 L_end" % (sT2, sW))
    a("s_add_u32 s96, s100, 0x%x\ns_addc_u32 s97, s101, 0" % STAMP_OFF)
    a("s_mov_b32 s98, 0x100000\ns_mov_b32 s99, 0x20000")
    a("s_add_u32 s3, s2, s%d\ns_mul_i32 s3, s3, %d" % (sT, NST * 8))
    a("v_mov_b32 v12, s3\ns_mov_b64 exec, 1")
    for k in range(NST):
        a("v_mov_b32 v14, s%d\nv_mov_b32 v15, s%d" % (64 + 2 * k, 65 + 2 * k))
        a("buffer_store_dwordx2 v[14:15], v12, s[96:99], 0 offen offset:%d" % (8 * k))
        a("s_nop 1")

def lanes(a):
    a("v_and_b32 v12, 63, v0\nv_lshrrev_b32 v13, 4, v12\nv_and_b32 v14, 15, v12\nv_bfe_u32 v15, v12, 2, 2")

vK, vVa, vVb = 1, 2, 3
vX1, vX2, vX3, vX4 = 4, 5, 6, 7
vONE, vT, vQ, vO, vL, vM, vS, vF = 8, 12, 16, 64, 160, 172, 184, 208
def Q(t, s): return vr(vQ + 16 * t + 4 * s, 4)
def O(t, dt): return vr(vO + 32 * t + 4 * dt, 4)
def L(t): return vr(vL + 4 * t, 4)
def M(t): return vr(vM + 4 * t, 4)
def S(t, kt): return vr(vS + 8 * t + 4 * kt, 4)
def F(i): return vF + 4 * i
vD = 128
vFo, vDg, vDg2, vFl, vA_, vB_, vOr, vCl, vCr, vCb = 136, 137, 138, 139, 140, 141, 142, 143, 144, 145

sKo = 50
S_V = 96
CAPN = [0]
def kv_ops(tile):
    slot = (tile + 2) % 3
    o = []
    for grp in range(4):
        for q in range(4):
            if OPT["kvc"]:
                pre_ = "s_add_u32 m0, s%d, %d\ns_add_u32 s%d, s%d, %d\n" % (sKg, slot * SLOT + (grp >> 1) * 16384 + (grp & 1) * 4096, sKo, sKg, tile * 16384 + (grp & 1) * 4096) if q == 0 else ""
                sr_ = SR(S_V if grp >= 2 else S_KV)
            else:
                pre_ = "s_add_u32 m0, s%d, %d\ns_mov_b32 s%d, %d\n" % (sKg, slot * SLOT + grp * 4096, sKo, tile * 16384 + grp * 4096) if q == 0 else ""
                sr_ = SR(S_KV)
            if q == 0 and OPT["capl"] and OPT["capl0"] <= tile <= OPT["capl1"]:
                CAPN[0] += 1
                pre_ = "s_cmp_eq_u32 s3, 0\ns_cbranch_scc1 L_cap%d\nRAW s_waitcnt vmcnt(%d)\nL_cap%d:\n" % (CAPN[0], OPT["capl"] - 4, CAPN[0]) + pre_
            ld = "buffer_load_dwordx4 v%d, %s, s%d offen offset:%d%%s lds" % (vD + q + (4 if grp >= 2 else 0), sr_, sKo, q * 1024)
            if OPT["asym"] >= 0:
                CAPN[0] += 1
                o.append((pre_ + "s_cmp_eq_u32 s%d, %d\ns_cbranch_scc1 L_as%d\n%s\ns_branch L_at%d\nL_as%d:\nRAW %s\nL_at%d:" % (sBlk, OPT["asym"], CAPN[0], ld % " nt", CAPN[0], CAPN[0], ld % "", CAPN[0]), "t%d" % tile))
            else: o.append((pre_ + ld % POL[OPT["polkv"]], "t%d" % tile))
    return o
KV_DONE = set()
def kv_tile(a, tile):
    if tile in KV_DONE: return
    for x, t in kv_ops(tile): a(x, tag=t)

def srds_first(a):
    a("s_waitcnt lgkmcnt(0)")
    srd(a, S_WQ, 86, 87, "%d" % (512 * 8192))
    a("s_add_u32 s80, s80, s62\ns_addc_u32 s81, s81, 0")
    srd(a, S_X, 80, 81, "147456")

def srds_rest(a):
    a("s_mul_i32 s%d, s%d, %d\ns_add_u32 s%d, s%d, 1024\ns_add_u32 s90, s92, s%d\ns_addc_u32 s91, s93, 0" % (sT, sG, OSTR, sT, sT, sT))
    srd(a, S_O, 90, 91, "%d" % (128 * 9216))
    if not OPT["kvc"]: a("s_cmp_eq_u32 s%d, 6\ns_cselect_b32 s82, s82, s84\ns_cselect_b32 s83, s83, s85" % sW)
    a("s_lshl_b32 s%d, s%d, 4\ns_add_u32 s%d, s%d, s%d" % (sT, sB, sT, sT, sJJ))
    if OPT["samekv"]: a("s_mov_b32 s%d, 0" % sT)
    a("s_lshl_b32 s%d, s%d, 19" % (sT, sT))
    a("s_add_u32 s82, s82, s%d\ns_addc_u32 s83, s83, 0" % sT)
    srd(a, S_KV, 82, 83, "524288")
    srd(a, S_WO, 88, 89, "%d" % (4096 * 1024))
    srd(a, S_OUT, 96, 97, "%d" % (8 * 144 * 1024 * 2))
    srd(a, S_DBG, 98, 99, "256")
    if OPT["kvc"]:
        a("s_add_u32 s84, s84, s%d\ns_addc_u32 s85, s85, 0" % sT)
        srd(a, S_V, 84, 85, "524288")
    a("s_lshl_b32 s%d, s%d, 8\ns_add_u32 s%d, s%d, 0x%x\ns_add_u32 s90, s92, s%d\ns_addc_u32 s91, s93, 0" % (sT, sG, sT, sT, FLAG_OFF, sT))
    srd(a, S_FL, 90, 91, "64")
    a("s_mov_b32 s100, s92\ns_mov_b32 s101, s93")
    if OPT["pair"]: a("s_and_b32 s%d, s%d, 1\ns_lshr_b32 s%d, s%d, 1" % (sKg, sW, sRho, sW))
    else: a("s_cmp_ge_u32 s%d, 3\ns_cselect_b32 s%d, 1, 0\ns_mul_i32 s%d, s%d, 3\ns_sub_u32 s%d, s%d, s%d" % (sW, sKg, sT, sKg, sRho, sW, sT))
    a("v_and_b32 v236, 31, v0\nv_lshlrev_b32 v236, 2, v236\nv_add_u32 v236, %d, v236\nv_mov_b32 v234, 0" % CNT)
    a("ds_write_b32 v236, v234")

def q_pack(a, b, scale):
    for r in range(0, 8, 2): a("v_pk_mul_f32 %s, %s, %s" % (vr(b + r, 2), vr(b + r, 2), scale))
    for r in range(4): a("v_cvt_pk_bf16_f32 v%d, v%d, v%d" % (b + r, b + 2 * r, b + 2 * r + 1))
def q_swap(a, b):
    a("v_permlane16_swap_b32 v%d, v%d\nv_permlane16_swap_b32 v%d, v%d" % (b, b + 2, b + 1, b + 3))

def loader_setup(a):
    vHW, vHX, vA1 = 224, 248, 231
    lanes(a)
    a("s_and_b32 s60, s%d, 3" % sW)
    a("v_and_b32 v%d, 3, v12\nv_lshlrev_b32 v%d, 4, v%d" % (vHX, vHX, vHX))
    a("v_lshl_add_u32 v%d, v13, 6, v%d" % (vHW, vHX))
    a("v_lshl_add_u32 v%d, v15, 8, v%d" % (vD, vHW))
    a("v_lshl_add_u32 v%d, v15, 13, v%d" % (vHW, vHW))
    a("s_lshl_b32 s%d, s60, 17\ns_lshl_b32 s%d, s%d, 9\ns_add_u32 s%d, s%d, s%d" % (sT, sT2, sJJ, sT, sT, sT2))
    a("v_add_u32 v%d, s%d, v%d" % (vHW, sT, vHW))
    a("v_add_u32 v%d, %d, v%d" % (vHW + 1, 31744, vHW))
    a("v_add_u32 v%d, %d, v%d\nv_xor_b32 v%d, 32, v%d" % (vHW + 2, 2 * 31744, vHW, vHW + 2, vHW + 2))
    a("v_add_u32 v%d, %d, v%d" % (vHW + 3, 31744, vHW + 2))
    a("s_lshl_b32 s63, s60, 12")
    a("s_mul_i32 s61, s60, 5\ns_min_u32 s61, s61, 14")
    a("v_and_b32 v%d, 1, v13\nv_lshl_add_u32 v4, v%d, 6, v%d" % (vA1, vA1, vHX))
    a("v_lshl_add_u32 v%d, v15, 10, v4" % vHX)
    a("v_lshrrev_b32 v%d, 5, v12\nv_lshl_add_u32 v8, v%d, 12, v%d" % (vA1, vA1, vHX))
    a("s_lshl_b32 s%d, s61, 13\ns_and_b32 s%d, s61, 1\ns_lshl_b32 s%d, s%d, 5" % (sT, sT2, sT2, sT2))
    a("v_add_u32 v%d, s%d, v8\nv_xor_b32 v%d, s%d, v%d" % (vHX, sT, vHX, sT2, vHX))
    a("v_add_u32 v%d, 7168, v%d\nv_xor_b32 v%d, 32, v%d" % (vHX + 1, vHX, vHX + 1, vHX + 1))
    a("v_add_u32 v%d, 14336, v%d\nv_add_u32 v%d, 14336, v%d" % (vHX + 2, vHX, vHX + 3, vHX + 1))
    a("v_add_u32 v%d, 32768, v%d" % (vHX + 4, vHX))
    a("s_lshl_b32 s61, s61, 10")

def stage_ops_(j, NX):
    vHW, vHX = 224, 248
    xb = HX[j % HD]; wb = HW[j % HD]
    o = []
    for qq in range(4):
        pre_ = "s_add_u32 s%d, s%d, %d\ns_and_b32 s%d, s%d, 7\ns_lshl_b32 s%d, s%d, 19\ns_add_u32 m0, s63, %d\n" % (sHk, sRot, j, sHk, sHk, sHo, sHk, wb) if qq == 0 else ""
        o.append(pre_ + "buffer_load_dwordx4 v%d, %s, s%d offen offset:%d%s lds" % (vHW + qq, SR(S_WQ), sHo, qq * 1024, POL[OPT["polw"]]))
    for e in range(NX):
        pre_ = "s_add_u32 m0, s61, %d\n" % (xb + 4096) if e == 4 else ("s_add_u32 m0, s61, %d\ns_lshl_b32 s%d, s%d, 7\n" % (xb, sHo, sHk) if e == 0 else "")
        o.append(pre_ + "buffer_load_dwordx4 v%d, %s, s%d offen offset:%d%s lds" % (vHX + e, SR(S_X), sHo, (e & 3) * 1024, POL[OPT["polx"]]))
    return [(x, "h%d" % j) for x in o]

def head(a, role):
    att = role != "X"; ldr = role != "A"
    NRT = 4 if ldr else 5; T0 = 5 if ldr else 0
    vHW, vHX = 224, 248
    vA1, vA2, vBx = 231, 232, 233
    cA1, cA2, cBx = 234, 235, 236
    ACC = lambda t, d: vr(16 + 8 * t + 4 * d, 4)
    BF = lambda u, t: vr(56 + 20 * u + 4 * t, 4)
    AF = lambda u, d: 96 + 8 * u + 4 * d
    NX = 5 if att else 4
    if not OPT["fast0"]: loader_setup(a)
    def stage_ops(j): return stage_ops_(j, NX) if ldr else []
    def stage_load(j):
        for x, t in stage_ops(j): a(x, tag=t)
    if not OPT["fast0"]:
        srds_first(a)
        stage_load(0)
    elif role == "B":
        x, t = stage_ops(0)[8]; a(x, tag=t)
    if OPT["pst"]: a("s_memrealtime s[70:71]")
    if role == "A" and OPT["ptouch"]:
        a("s_cmp_lg_u32 s%d, 0\ns_cbranch_scc1 L_nopt" % sW)
        a("s_lshl_b32 s%d, s%d, 4\ns_add_u32 s%d, s%d, s%d\ns_lshl_b32 s%d, s%d, 19" % (sT, sB, sT, sT, sJJ, sT, sT))
        a("v_mov_b32 v240, s%d" % sT)
        a.autowait = False
        a("global_load_dword v244, v240, s[82:83]\nglobal_load_dword v245, v240, s[84:85]")
        a("v_and_b32 v240, 1, v12\nv_lshlrev_b32 v241, 21, v240")
        a("global_load_dword v246, v241, s[88:89]\nglobal_load_dword v247, v241, s[96:97]")
        a("v_add_u32 v241, s%d, v240\nv_add_u32 v242, s%d, v240\nv_and_b32 v243, 2, v12\nv_cmp_eq_u32 vcc, 0, v243" % (sG, sGo))
        a("v_cndmask_b32 v241, v241, v242, vcc\ns_mov_b32 s%d, %d\nv_mul_lo_u32 v241, s%d, v241" % (sT, OSTR, sT))
        a("v_mov_b32 v242, 0x%x\nv_cmp_lt_u32 vcc, 3, v12\nv_cndmask_b32 v241, v241, v242, vcc" % (FLAG_OFF + 8192))
        a("global_load_dword v248, v241, s[92:93]")
        a.autowait = True
        a.label("L_nopt")
    srds_rest(a)
    a("v_and_b32 v%d, 3, v12\nv_lshlrev_b32 v%d, 3, v%d" % (vA1, vA1, vA1))
    a("v_lshl_add_u32 v%d, v15, 6, v%d" % (vA1, vA1))
    a("v_and_b32 v%d, 1, v13\nv_lshl_add_u32 v%d, v%d, 5, v%d" % (vA2, vA1, vA2, vA1))
    a("v_lshl_add_u32 v%d, v13, 10, v%d" % (vVa, vA1))
    a("v_lshl_add_u32 v%d, v13, 11, v%d" % (vA1, vA1))
    a("s_and_b32 s%d, s%d, 3\ns_lshl_b32 s%d, s%d, 8" % (sT, sW, sT, sT))
    a("v_add_u32 v%d, s%d, v%d\nv_xor_b32 v%d, 32, v%d" % (vA1, sT, vA1, vA2, vA1))
    a("v_lshrrev_b32 v%d, 3, v14\nv_lshlrev_b32 v%d, 1, v%d\nv_xor_b32 v%d, v%d, v13\nv_lshlrev_b32 v%d, 4, v%d" % (vBx, vBx, vBx, vBx, vBx, vBx, vBx))
    a("v_and_b32 v%d, 3, v14\nv_lshl_add_u32 v%d, v%d, 6, v%d" % (cBx, vBx, cBx, vBx))
    a("v_lshl_add_u32 v%d, v15, 9, v%d" % (vBx, vBx))
    if att:
        a("s_lshl_b32 s%d, s%d, 13\ns_add_u32 s%d, s%d, %d" % (sT, sKg, sT, sT, 2 * SLOT))
        a("v_add_u32 v%d, s%d, v%d\nv_add_u32 v%d, 16384, v%d\nv_xor_b32 v%d, 32, v%d" % (vVa, sT, vVa, vVa, vVa, vVb, vVa))
        a("v_lshlrev_b32 v%d, 10, v15" % vK)
        a("v_lshl_add_u32 v%d, v%d, 6, v%d" % (vK, cBx, vK))
        a("v_lshrrev_b32 v%d, 1, v13\nv_and_b32 v%d, 1, v13\nv_lshl_or_b32 v%d, v%d, 1, v%d" % (cA1, cA2, cA1, cA2, cA1))
        a("v_lshrrev_b32 v%d, 3, v14\nv_xor_b32 v%d, v%d, v%d" % (cA2, cA1, cA1, cA2))
        a("v_lshl_add_u32 v%d, v%d, 4, v%d\nv_add_u32 v%d, s%d, v%d" % (vK, cA1, vK, vK, sT, vK))
        for r in range(4): a("v_mov_b32 v%d, 0x3f803f80" % (vONE + r))
    else:
        a("s_cmp_eq_u32 s%d, 6" % sW)
        if OPT["kvc"]:
            a("s_cselect_b32 s60, 0, 128\ns_cselect_b32 s%d, 0, 8192" % sKg)
            a("v_mov_b32 v%d, v%d\nv_xor_b32 v%d, 16, v%d\nv_xor_b32 v%d, 16, v%d" % (vD + 1, vD, vD + 2, vD, vD + 3, vD))
            a("v_xor_b32 v%d, s60, v%d\nv_xor_b32 v%d, 32, v%d\nv_mov_b32 v%d, v%d\nv_mov_b32 v%d, v%d" % (vD + 4, vD, vD + 5, vD + 4, vD + 6, vD + 4, vD + 7, vD + 5))
        else:
            a("s_cselect_b32 s%d, 0, 32\ns_cselect_b32 s%d, 16, 0\ns_cselect_b32 s%d, 16, 32\ns_cselect_b32 s60, 0, 128\ns_cselect_b32 s%d, 0, 16384" % (sT, sT2, sT3, sKg))
            a("v_xor_b32 v%d, s%d, v%d\nv_xor_b32 v%d, s%d, v%d\nv_xor_b32 v%d, s%d, v%d" % (vD + 1, sT, vD, vD + 2, sT2, vD, vD + 3, sT3, vD))
            for q in range(4): a("v_xor_b32 v%d, s60, v%d" % (vD + 4 + q, vD + q))
        a("v_add_u32 v1, %d, v%d" % (XB[0], vBx))
    a("v_mov_b32 v238, %s\nv_mov_b32 v239, %s" % (f32(CSCALE), f32(CSCALE)))
    def reads(u):
        tr = lambda d: ["ds_read_b64_tr_b16 %s, v%d offset:%d" % (vr(AF(u, d) + 2 * rd, 2), cA2 if d else cA1, u * 8192 + rd * 1024) for rd in range(2)]
        return tr(0) + ["ds_read_b128 %s, v%d offset:%d" % (BF(u, t), cBx, (T0 + t) * 2048 + u * 256) for t in range(NRT)] + tr(1)
    def mfmas(u, first):
        return ["%s %s, %s, %s, %s" % (MF, ACC(t, d), vr(AF(u, d), 4), BF(u, t), "0" if first else ACC(t, d)) for d in range(2) for t in range(NRT)]
    if OPT["pst"]: a("s_memrealtime s[72:73]")
    stage_load(1)
    if OPT["pst"]: a("s_memrealtime s[74:75]")
    stamp(a, 1)
    def mix(ms, rs, ds=()):
        di = 0; ri = 0
        for k, x in enumerate(ms):
            a(x)
            for _ in range(2):
                if ri < len(rs): a(rs[ri]); ri += 1
            while di < len(ds) and di * len(ms) <= k * len(ds):
                a(ds[di][0], tag=ds[di][1]); di += 1
        for x, t in ds[di:]: a(x, tag=t)
    if ldr and OPT["hprio"]: a("s_setprio %d" % OPT["hprio"])
    for j in range(8):
        a.wait_vm_tag("h%d" % j)
        if OPT["pst"] and j == 0: a("s_memrealtime s[76:77]")
        a("v_add_u32 v%d, %d, v%d\nv_add_u32 v%d, %d, v%d\nv_add_u32 v%d, %d, v%d" % (cA1, HW[j % HD], vA1, cA2, HW[j % HD], vA2, cBx, HX[j % HD], vBx))
        a("s_waitcnt lgkmcnt(0)")
        a("s_barrier")
        if j < 7: stamp(a, j + 1, hs=True)
        d = stage_ops(j + HD - 1) if j + HD - 1 < 8 else []
        if j == 0 and HD == 4: d = stage_ops(2) + d
        cut = (len(d) + 1) // 2
        if j == 0:
            for x in reads(0): a(x)
            for x, t in d[:cut]: a(x, tag=t)
        else: mix(mfmas(1, False), reads(0), d[:cut])
        a("s_waitcnt lgkmcnt(0)")
        mix(mfmas(0, j == 0), reads(1), d[cut:])
        if not att and j == OPT["kv0"]: kv_tile(a, 0)
        if not att and j == 6:
            for x, t in kv_ops(1)[:OPT["k1a"]]: a(x, tag=t)
        if not att and j == 7:
            for x, t in kv_ops(1)[OPT["k1a"]:OPT["k1a"] + OPT["k1b"]]: a(x, tag=t)
    for x in mfmas(1, False): a(x)
    a("s_and_b32 s60, s%d, 3\ns_lshl_b32 s60, s60, 10" % sW)
    a("v_lshlrev_b32 v%d, 4, v12\nv_add_u32 v%d, s60, v%d" % (cBx, cBx, cBx))
    a("v_add_u32 v%d, %d, v%d\nv_add_u32 v%d, %d, v%d" % (cA1, Q1A, cBx, cA2, Q1C, cBx))
    for t in range(NRT): q_pack(a, 16 + 8 * t, "v[238:239]")
    for t in range(NRT): q_swap(a, 16 + 8 * t)
    for t in range(NRT):
        tg = T0 + t
        a("ds_write_b128 v%d, %s offset:%d" % (cA1 if tg < 6 else cA2, vr(16 + 8 * t, 4), (tg if tg < 6 else tg - 6) * 4096))
    if ldr and OPT["hprio"]: a("s_setprio 0")
    a("s_waitcnt lgkmcnt(0)")
    a("s_barrier")
    if not att:
        for x, t in kv_ops(1)[OPT["k1a"] + OPT["k1b"]:]: a(x, tag=t)
    stamp(a, 2)

def ACC(t, d):
    i = t * 4 + d
    return 16 + 4 * i if i < 28 else 176 + 4 * (i - 28)

def pair_signal(a):
    a("s_add_u32 s%d, s%d, 1" % (sBar, sBar))
    a("v_mov_b32 v%d, s%d" % (vT, sBar))
    a("ds_write_b32 v%d, v%d" % (vX3, vT))

def pair_wait(a, name, reads):
    a.label(name)
    a("ds_read_b32 v%d, v%d" % (vT, vX4))
    for x in reads: a(x)
    a("s_waitcnt lgkmcnt(%d)" % len(reads))
    a("v_readfirstlane_b32 s%d, v%d" % (sT, vT))
    a("s_cmp_ge_u32 s%d, s%d" % (sT, sBar))
    a("s_cbranch_scc1 %s_ok" % name)
    a("s_waitcnt lgkmcnt(0)")
    if OPT["sbs"]: a("s_sleep %d" % OPT["sbs"])
    a("s_branch %s" % name)
    a.label(name + "_ok")
    a("s_waitcnt lgkmcnt(0)")

def publish(a, name, t0, off=4, last=5, bits=PH2):
    a("s_waitcnt vmcnt(0)")
    a("s_mov_b64 exec, 1")
    a("v_mov_b32 v%d, %d\nv_mov_b32 v%d, 1" % (t0 + 2, CNT, t0 + 1))
    a("ds_add_rtn_u32 v%d, v%d, v%d offset:%d" % (t0, t0 + 2, t0 + 1, off))
    a("ds_read_b32 v%d, v%d offset:8" % (t0 + 1, t0 + 2))
    a("s_waitcnt lgkmcnt(0)")
    a("v_readfirstlane_b32 s%d, v%d" % (sT, t0))
    a("s_cmp_lg_u32 s%d, %d" % (sT, last))
    a("s_cbranch_scc1 %s" % name)
    a("v_or_b32 v%d, 0x%x, v%d" % (t0 + 1, bits, t0 + 1))
    a("s_lshl_b32 s%d, s%d, 2" % (sT2, sJJ))
    a("v_mov_b32 v%d, s%d" % (t0, sT2))
    a("buffer_store_dword v%d, v%d, %s, 0 offen%s" % (t0 + 1, t0, SR(S_FL), POL[OPT["polf"]] if bits == PH2 else " sc1"))
    a.label(name)
    a("s_mov_b64 exec, -1")

def attention(a):
    NT = 3; TL = 2
    a("s_waitcnt vmcnt(0)")
    a("v_lshlrev_b32 v%d, 4, v12" % vX1)
    a("s_mul_i32 s%d, s%d, %d\ns_add_u32 s%d, s%d, %d" % (sT, sRho, 12 * KB, sT, sT, Q1A))
    a("s_cmp_eq_u32 s%d, 2\ns_cselect_b32 s%d, %d, s%d" % (sRho, sT, Q1C, sT))
    a("v_add_u32 v%d, s%d, v%d" % (vX2, sT, vX1))
    for t in range(3):
        for s in range(4): a("ds_read_b128 %s, v%d offset:%d" % (Q(t, s), vX2, t * 4096 + s * 1024))
    if OPT["pair"]: a("s_xor_b32 s%d, s%d, 1" % (sPart, sW))
    else: a("s_add_u32 s%d, s%d, 3\ns_cmp_ge_u32 s%d, 6\ns_cselect_b32 s%d, 6, 0\ns_sub_u32 s%d, s%d, s%d" % (sPart, sW, sPart, sT2, sPart, sPart, sT2))
    a("s_lshl_b32 s%d, s%d, 2\ns_add_u32 s%d, s%d, %d\ns_lshl_b32 s%d, s%d, 2\ns_add_u32 s%d, s%d, %d" % (sT, sW, sT, sT, PFL, sT2, sPart, sT2, sT2, PFL))
    a("v_mov_b32 v%d, s%d\nv_mov_b32 v%d, s%d" % (vX3, sT, vX4, sT2))
    a("s_mov_b32 s%d, 0x40004000\ns_mov_b32 s%d, %s" % (sThr, sFl, f32(THR)))
    a("s_mov_b32 s%d, 0\ns_mov_b32 s%d, 0\ns_mov_b32 s%d, 2" % (sItem, sBar, sSlot))
    a("s_mul_i32 s%d, s%d, %d\ns_add_u32 s%d, s%d, %d" % (sExch, sRho, 12 * KB, sExch, sExch, Q2B))
    a("s_mov_b32 s%d, 0x%x\ns_mov_b32 s%d, %d" % (sNeg, (-2 * SLOT) & 0xffffffff, sPos, SLOT))
    a("s_lshl_b32 s%d, s%d, 3\ns_lshl_b32 s%d, s%d, 1\ns_add_u32 s%d, s%d, s%d\ns_mul_i32 s%d, s%d, 9" % (sT, sJJ, sT2, sKg, sT, sT, sT2, sT, sT))
    a("s_mul_i32 s%d, s%d, 3\ns_add_u32 s%d, s%d, s%d\ns_lshl_b32 s%d, s%d, 10\ns_add_u32 s%d, s%d, %d" % (sT2, sRho, sT, sT, sT2, sOoff, sT, sOoff, sOoff, 36 * KB))
    cstamp(a, 0)
    a.label("L_item")
    if OPT["ypr"] == 1: a("s_setprio 0")
    if OPT["ypr"] == 2: a("s_setprio 1")
    a("s_mov_b32 s%d, 0" % sCnt)
    a("s_waitcnt lgkmcnt(0)")
    Ga, Gb, Gc = 0, 4, 8
    def kread(kt, s):
        slot = (Gc + s) if kt == 0 else (Gb + s)
        return "ds_read_b128 %s, v%d offset:%d" % (vr(F(slot), 4), vK, kt * 4096 + s * 256)
    def vslot(dt): return (Ga + dt) if dt < 4 else (Gb + dt - 4)
    def vread(dt, rd):
        return "ds_read_b64_tr_b16 %s, v%d offset:%d" % (vr(F(vslot(dt)) + 2 * rd, 2), vVb if dt & 1 else vVa, rd * 4096 + (dt >> 1) * 256)
    def pv(t, dt, z=False): return "%s %s, %s, %s, %s" % (MF, O(t, dt), vr(F(vslot(dt)), 4), S(t, 0), "0" if z else O(t, dt))
    def lsum(t, z=False): return "%s %s, %s, %s, %s" % (MF, L(t), vr(vONE, 4), S(t, 0), "0" if z else L(t))
    def qk(t, kt, s, z=False):
        slot = (Gc + s) if kt == 0 else (Gb + s)
        return "%s %s, %s, %s, %s" % (MF, S(t, kt), vr(F(slot), 4), Q(t, s), ("0" if z else M(t)) if s == 0 else S(t, kt))
    EXP = lambda r: "v_exp_f32 v%d, v%d" % (r, r)
    def CVT(b, r): return "v_cvt_pk_bf16_f32 v%d, v%d, v%d" % (b + r, b + 2 * r, b + 2 * r + 1)
    def rowmax(b):
        return ["v_max3_f32 v%d, v%d, v%d, v%d" % (vT, b, b + 1, b + 2), "v_max3_f32 v%d, v%d, v%d, v%d" % (vT + 1, b + 3, b + 4, b + 5),
                "v_max3_f32 v%d, v%d, v%d, v%d" % (vT, vT, b + 6, b + 7), "v_max_f32 v%d, v%d, v%d" % (vT, vT, vT + 1),
                "v_mov_b32 v%d, v%d" % (vT + 1, vT), "v_permlane16_swap_b32 v%d, v%d" % (vT, vT + 1), "v_max_f32 v%d, v%d, v%d" % (vT, vT, vT + 1),
                "v_mov_b32 v%d, v%d" % (vT + 1, vT), "v_permlane32_swap_b32 v%d, v%d" % (vT, vT + 1), "v_max_f32 v%d, v%d, v%d" % (vT, vT, vT + 1)]
    def sm(t):
        b = vS + 8 * t
        g = [[EXP(b + r)] for r in range(4)] + [[CVT(b, 0), CVT(b, 1)]] + [[EXP(b + r)] for r in range(4, 8)] + [[CVT(b, 2), CVT(b, 3)]]
        g.append(["v_or3_b32 v%d, v%d, v%d, v%d" % (b + 4, b, b + 1, b + 2), "v_bitop3_b32 v%d, v%d, v%d, s%d bitop3:0xa8" % (b + 4, b + 4, b + 3, sThr)])
        g.append(["v_cmp_ne_u32 vcc, 0, v%d" % (b + 4)])
        return g
    def step(first):
        mf = []; fill = {}
        def put(idx, ops): fill.setdefault(idx, []).extend(ops)
        if not first: mf += [pv(TL, dt) for dt in (4, 5, 6, 7)] + [pv(TL, dt) for dt in (0, 1, 2, 3)] + [lsum(TL)]
        q0 = len(mf)
        qk_end = {}
        for t in range(NT):
            for kt in ((0, 1) if t < TL else (1, 0)):
                mf += [qk(t, kt, s, first) for s in range(4)]
                if t == TL and kt == 1: v47_at = len(mf) - 1
            qk_end[t] = len(mf) - 1
        pv_start = {}
        for t in range(TL):
            pv_start[t] = len(mf)
            mf += [pv(t, dt, first) for dt in range(4)] + [lsum(t, first)] + [pv(t, dt, first) for dt in range(4, 8)]
        n = len(mf)
        pre = [kread(0, s) for s in range(4)]
        if first:
            pre += [kread(1, s) for s in range(4)] + [vread(dt, rd) for dt in range(4) for rd in range(2)]
            pre += ["v_mov_b64 %s, 0" % vr(r, 2) for r in list(range(vO + 64, vO + 96, 2)) + [vL + 8, vL + 10]]
            pre += ["WAIT " + vr(F(Gc), 16)]
        else:
            for s in range(4): put(s, [kread(1, s)])
            for dt in range(4): put(4 + dt, [vread(dt, 0), vread(dt, 1)])
            put(8, ["WAIT " + vr(F(Gc), 16)])
        put(q0 + 3, ["WAIT " + vr(F(Gb), 16), "s_add_u32 s%d, s%d, 1" % (sSlot, sSlot)])
        put(q0 + 4, ["s_cmp_eq_u32 s%d, 3" % sSlot, "s_cselect_b32 s%d, s%d, s%d" % (sDelta, sNeg, sPos)])
        put(q0 + 5, ["s_cselect_b32 s%d, 0, s%d" % (sSlot, sSlot), "s_add_u32 s%d, s%d, 1" % (sCnt, sCnt)])
        for dt in range(4, 8): put(v47_at - 3 + (dt - 4), [vread(dt, 0), vread(dt, 1)])
        adv = ["v_add_u32 v%d, s%d, v%d" % (r, sDelta, r) for r in (vK, vVa, vVb)]
        tail = []
        if first:
            for t in range(NT):
                b = vS + 8 * t
                ops = rowmax(b) + ["v_add_f32 v%d, s%d, v%d" % (vT, sFl, vT)]
                ops += ["v_sub_f32 v%d, v%d, v%d" % (b + r, b + r, vT) for r in range(8)]
                ops += ["v_sub_f32 v%d, 0, v%d" % (vM + 4 * t + r, vT) for r in range(4)]
                ops += [EXP(b + r) for r in range(8)] + [CVT(b, r) for r in range(4)]
                lo = max(qk_end[t] + 3, [0, 21, 32][t]); hi = [20, 31, n - 1][t]
                for k, x in enumerate(ops): put(lo + k * (hi - lo + 1) // len(ops), [x])
            tail = adv
        else:
            groups = [(t, g) for t in range(NT) for g in sm(t)]
            lo = OPT["g0"]; span = n - lo
            for k, (t, g) in enumerate(groups):
                idx = lo + (k * span) // len(groups)
                assert t == TL or idx + 1 < pv_start[t], (t, idx)
                put(idx, g)
                if k % 12 == 11:
                    br = "s_cbranch_vccnz L_rare%d\nL_back%d:" % (t, t)
                    if t == 0: put(idx, [adv[0]])
                    if t == 1: put(idx, [adv[1]])
                    if t < TL: fill.setdefault(idx + 1, []).insert(0, br)
                    else: tail = [adv[2], "s_cmp_lt_u32 s%d, 16" % sCnt, br]
        put(pv_start[0] - 1, ["WAIT " + vr(F(Ga), 16)])
        put(pv_start[0] + 4, ["WAIT " + vr(F(Gb), 16)])
        a("s_barrier")
        if first and OPT["bst"] == 0:
            a("s_cmp_lg_u32 s%d, 1\ns_cbranch_scc1 L_bsx\ns_memrealtime s[76:77]\nL_bsx:" % sItem)
        for x in pre: a(x)
        for k, m in enumerate(mf):
            a(m)
            for x in fill.get(k, []): a(x)
        if not first:
            for _ in range(OPT["xmf"]): a("%s %s, %s, %s, %s" % (MF, vr(vT, 4), vr(F(0), 4), S(1, 0), vr(vT, 4) if _ else "0"))
        for x in tail: a(x)
    step(True)
    a.raw(".p2align 6")
    a.label("L_loop")
    step(False)
    a("s_cbranch_scc1 L_loop")
    a.label("L_bnd")
    if OPT["ypr"] == 1: a("s_cmp_lt_u32 s%d, 4\ns_cbranch_scc1 L_ypr\ns_setprio 1\nL_ypr:" % sW)
    if OPT["stamps"]:
        a("s_cmp_eq_u32 s%d, 0\ns_cbranch_scc0 L_st4" % sItem)
        stamp(a, 3); cstamp(a, 1)
        a("s_branch L_st4b")
        a.label("L_st4"); stamp(a, 4)
        a.label("L_st4b")
    if OPT["ypr"] == 2: a("s_setprio 0")
    bstamp(a, 1)
    a("s_cmp_eq_u32 s%d, 0" % sItem)
    a("s_cbranch_scc0 L_nomx")
    if OPT["mxf"]:
        a("s_mov_b64 exec, 1")
        a("v_mov_b32 v%d, %d\nv_mov_b32 v%d, 1" % (vT + 2, CNT, vT + 1))
        a("ds_add_u32 v%d, v%d offset:20" % (vT + 2, vT + 1))
        a.label("L_q2w")
        a("ds_read_b32 v%d, v%d offset:24" % (vT, vT + 2))
        a("s_waitcnt lgkmcnt(0)")
        a("v_readfirstlane_b32 s%d, v%d" % (sT, vT))
        a("s_cmp_lt_u32 s%d, 2\ns_cbranch_scc1 L_q2w" % sT)
        a("s_mov_b64 exec, -1")
    else:
        a("s_barrier")
    a("v_add_u32 v%d, s%d, v%d" % (vX2, sExch, vX1))
    for t in range(3):
        for s in range(4): a("ds_read_b128 %s, v%d offset:%d" % (Q(t, s), vX2, t * 4096 + s * 1024))
    pair_signal(a)
    a.label("L_nomx")
    bstamp(a, 2)
    a("s_lshl_b32 s%d, s%d, 12\ns_add_u32 s%d, s%d, %d" % (sT, sW, sT, sT, EX1))
    a("v_add_u32 v%d, s%d, v%d" % (vX2, sT, vX1))
    def send(t, areg, off):
        o = []
        for h in range(2):
            b = vO + 32 * t + 16 + 8 * h
            o += ["v_cvt_pk_bf16_f32 v%d, v%d, v%d" % (b + r, b + 2 * r, b + 2 * r + 1) for r in range(4)]
            o.append("ds_write_b128 v%d, %s offset:%d" % (areg, vr(b, 4), off + h * 1024))
        return o
    fin = [lsum(TL)] + [pv(TL, dt) for dt in (4, 5, 6, 7, 0, 1, 2, 3)]
    ex = send(0, vX2, 0) + send(1, vX2, 2048)
    for k, m in enumerate(fin):
        a(m)
        for x in ex[k * len(ex) // 9:(k + 1) * len(ex) // 9]: a(x)
    a("v_and_b32 v%d, 15, v0\nv_lshlrev_b32 v%d, 3, v%d" % (vT + 2, vT + 2, vT + 2))
    a("s_mul_i32 s%d, s%d, 384\ns_add_u32 s%d, s%d, %d" % (sT, sW, sT, sT, MLB))
    a("v_add_u32 v%d, s%d, v%d" % (vT + 3, sT, vT + 2))
    for t in range(3):
        a("v_mov_b32 v%d, v%d" % (vM + 4 * t + 1, vL + 4 * t))
        a("ds_write_b64 v%d, %s offset:%d" % (vT + 3, vr(vM + 4 * t, 2), t * 128))
    a("s_lshl_b32 s%d, s%d, 11\ns_add_u32 s%d, s%d, s%d" % (sT, sKg, sT, sT, sExch))
    a("v_add_u32 v%d, s%d, v%d" % (vX2, sT, vX1))
    a("s_waitcnt lgkmcnt(0)")
    pair_wait(a, "L_pw0", [])
    bstamp(a, 3)
    for x in send(2, vX2, 0): a(x)
    pair_signal(a)
    a("s_mul_i32 s%d, s%d, 384\ns_add_u32 s%d, s%d, %d" % (sT2, sPart, sT2, sT2, MLB))
    a("v_add_u32 v%d, s%d, v%d" % (vT + 3, sT2, vT + 2))
    a("v_xor_b32 v%d, 2048, v%d" % (vX2, vX2))
    a("s_lshl_b32 s%d, s%d, 12\ns_add_u32 s%d, s%d, %d" % (sT, sPart, sT, sT, EX1))
    a("v_add_u32 v%d, s%d, v%d" % (vT + 2, sT, vX1))
    a("s_waitcnt lgkmcnt(0)")
    rd = ["ds_read_b64 %s, v%d offset:%d" % (vr(vM + 4 * t + 2, 2), vT + 3, t * 128) for t in range(3)]
    for t in range(3):
        for h in range(2):
            rd.append("ds_read_b128 %s, v%d offset:%d" % (vr(vS + 8 * t + 4 * h, 4), vT + 2 if t < 2 else vX2, (t * 2048 if t < 2 else 0) + h * 1024))
    pair_wait(a, "L_pw", rd)
    bstamp(a, 4)
    for t in range(3):
        m = vM + 4 * t; l = vL + 4 * t
        a("v_min_f32 v%d, v%d, v%d" % (l, m, m + 2))
        a("v_sub_f32 v%d, v%d, v%d\nv_sub_f32 v%d, v%d, v%d" % (l + 1, l, m, l + 2, l, m + 2))
        a("v_exp_f32 v%d, v%d\nv_exp_f32 v%d, v%d" % (l + 1, l + 1, l + 2, l + 2))
        a("v_mul_f32 v%d, v%d, v%d" % (l + 3, l + 1, m + 1))
        a("v_fma_f32 v%d, v%d, v%d, v%d" % (l + 3, l + 2, m + 3, l + 3))
        a("v_rcp_f32 v%d, v%d" % (l, l + 3))
        a("v_mul_f32 v%d, v%d, v%d\nv_mul_f32 v%d, v%d, v%d" % (l + 3, l + 2, l, l + 2, l + 2, l))
        a("v_mul_f32 v%d, v%d, v%d\nv_mov_b32 v%d, v%d" % (l + 1, l + 1, l, l, l + 1))
    def combine(out):
        for t in range(3):
            l = vL + 4 * t
            for h in range(2):
                b = vO + 32 * t + 8 * h; u = b + 16; pk = vS + 8 * t + 4 * h
                for r in range(4):
                    a("v_lshlrev_b32 v%d, 16, v%d\nv_and_b32 v%d, 0xffff0000, v%d" % (u + 2 * r, pk + r, u + 2 * r + 1, pk + r))
                for r in range(0, 8, 2): a("v_pk_mul_f32 %s, %s, %s" % (vr(b + r, 2), vr(b + r, 2), vr(l, 2)))
                for r in range(0, 8, 2): a("v_pk_fma_f32 %s, %s, %s, %s" % (vr(b + r, 2), vr(u + r, 2), vr(l + 2, 2), vr(b + r, 2)))
                for r in range(4): a("v_cvt_pk_bf16_f32 v%d, v%d, v%d" % (pk + r, b + 2 * r, b + 2 * r + 1))
                out(t, h, pk)
    a("s_cmp_eq_u32 s%d, 0" % sItem)
    a("s_cbranch_scc0 L_att_done")
    combine(lambda t, h, pk: a("ds_write_b128 v%d, %s offset:%d" % (vT + 2 if t < 2 else vX2, vr(pk, 4), (t * 2048 if t < 2 else 0) + h * 1024)))
    bstamp(a, 5)
    a("s_mov_b32 s%d, 1\ns_lshl_b32 s%d, s%d, 12\ns_add_u32 s%d, s%d, %d" % (sItem, sExch, sRho, sExch, sExch, EX2))
    a("s_waitcnt lgkmcnt(0)")
    a("s_branch L_item")
    a.vm = []; a.lgkm = []
    for t in range(NT):
        b = vS + 8 * t
        a.label("L_rare%d" % t)
        a("s_nop 15")
        a("v_subrev_u32 v%d, s%d, v%d" % (vX2, sDelta, vK))
        for kt in range(2):
            for s in range(4):
                a("ds_read_b128 %s, v%d offset:%d" % (vr(vT, 4), vX2, kt * 4096 + s * 256))
                a("s_waitcnt lgkmcnt(0)")
                a("%s %s, %s, %s, %s" % (MF, S(t, kt), vr(vT, 4), Q(t, s), M(t) if s == 0 else S(t, kt)))
                a("s_nop 3")
        for x in rowmax(b): a(x)
        a("v_add_f32 v%d, s%d, v%d\nv_max_f32 v%d, 0, v%d" % (vT, sFl, vT, vT, vT))
        for r in range(8): a("v_sub_f32 v%d, v%d, v%d" % (b + r, b + r, vT))
        for r in range(4): a("v_sub_f32 v%d, v%d, v%d" % (vM + 4 * t + r, vM + 4 * t + r, vT))
        a("v_exp_f32 v%d, -v%d" % (vT + 1, vT))
        for r in range(4): a("v_mul_f32 v%d, v%d, v%d" % (vL + 4 * t + r, vL + 4 * t + r, vT + 1))
        for r in range(32): a("v_mul_f32 v%d, v%d, v%d" % (vO + 32 * t + r, vO + 32 * t + r, vT + 1))
        for r in range(8): a(EXP(b + r))
        for r in range(4): a(CVT(b, r))
        a("s_nop 3")
        a("s_branch L_back%d" % t)
    a.label("L_att_done")
    a("s_mov_b64 exec, 1")
    a("v_mov_b32 v%d, %d\nv_mov_b32 v%d, 1" % (vT + 2, CNT, vT + 1))
    a("ds_add_u32 v%d, v%d" % (vT + 2, vT + 1))
    a("s_mov_b64 exec, -1")
    combine(lambda t, h, pk: a("s_add_u32 s%d, s%d, %d\nbuffer_store_dwordx4 %s, v%d, %s, s%d offen%s" % (sT, sOoff, (h * 9 + t) * 1024, vr(pk, 4), vX1, SR(S_O), sT, POL[OPT["pols2"]])))
    bstamp(a, 5)
    a("s_cmp_lt_u32 s%d, 2" % sW)
    a("s_cbranch_scc1 L_join")
    publish(a, "L_pub_x", vT)
    a("s_endpgm")
    a.label("L_join")
    a("s_lshl_b32 s%d, s%d, 14" % (sBlkP, sW))
    a("s_cmp_eq_u32 s%d, 0\ns_cselect_b32 s%d, %d, 0\ns_cselect_b32 s%d, 0, %d\ns_add_u32 s%d, s%d, s%d" % (sW, sBlkD, 64 * KB, sT, 116 * KB, sBlkD, sBlkD, sT))
    op_setup(a, True)
    for i in range(36): a("v_mov_b64 %s, 0\nv_mov_b64 %s, 0" % (vr(ACC(i // 4, i % 4), 2), vr(ACC(i // 4, i % 4) + 2, 2)))
    publish(a, "L_pub_y", 250)
    bstamp(a, 6)
    stamp(a, 5)
    a("v_mov_b32 v250, %d" % CNT)
    a.label("L_w6")
    a("ds_read_b32 v251, v250")
    a("ds_read_b32 v252, v250 offset:8")
    a("s_waitcnt lgkmcnt(0)")
    a("v_readfirstlane_b32 s%d, v251\nv_readfirstlane_b32 s%d, v252" % (sT, sTag))
    a("s_cmp_lt_u32 s%d, 6\ns_cbranch_scc1 L_w6" % sT)
    a("s_or_b32 s%d, s%d, 0x%x" % (sWant, sTag, PHM))
    a("s_branch L_p2")
    a.vm = []; a.lgkm = []

def wo_touch(a, phase, i):
    a("s_and_b32 s%d, s%d, 1\ns_lshl_b32 s%d, s%d, 4\ns_add_u32 s%d, s%d, s%d" % (sT, sGo, sT, sT, sT, sT, sJo))
    a("s_lshr_b32 s%d, s%d, 1\ns_lshl_b32 s%d, s%d, 18\ns_and_b32 s%d, s%d, 1\ns_lshl_b32 s%d, s%d, 16\ns_add_u32 s%d, s%d, s%d" % (sT2, sT, sT2, sT2, sT, sT, sT, sT, sT, sT, sT2))
    a("s_and_b32 s%d, s%d, 1\ns_lshl_b32 s%d, s%d, 15\ns_add_u32 s%d, s%d, s%d" % (sT2, sW, sT2, sT2, sT, sT, sT2))
    a("s_add_u32 s%d, s%d, %d" % (sT2, sT, phase * 131072 + i * 8192))
    a.autowait = False
    a("buffer_load_dword v147, v146, %s, s%d offen" % (SR(S_WO), sT2), tag="x")
    a.autowait = True

def aux_step(a, step, pre=None, extra=None):
    a.wait_vm_tag("t%d" % step)
    a("s_barrier")
    if OPT["sst"] >= 0 and step >= OPT["sst"] and (step - OPT["sst"]) % OPT["sstd"] == 0 and (step - OPT["sst"]) // OPT["sstd"] < 6:
        k_ = 1 + (step - OPT["sst"]) // OPT["sstd"]
        a("s_memrealtime s[%d:%d]" % (64 + 2 * k_, 65 + 2 * k_))
    if OPT["ck"] and step in (1, 8, 15, 31):
        k_ = (1, 8, 15, 31).index(step)
        a("s_memrealtime s[%d:%d]\ns_memtime s[%d:%d]" % (64 + 4 * k_, 65 + 4 * k_, 66 + 4 * k_, 67 + 4 * k_))
    for ph in (0, 1):
        lst = [int(x) for x in OPT["tw%d" % ph].split(",") if x]
        for i, st_ in enumerate(lst):
            if st_ == step: wo_touch(a, ph, i)
    if pre: pre()
    nxt = step + 2
    if nxt < 32 and nxt != 18: kv_tile(a, nxt)
    if nxt == 18:
        for x, t in kv_ops(18)[OPT["early"]:]: a(x, tag=t)
    if step == OPT["pfm"]:
        a("s_lshl_b32 s%d, s%d, 4\ns_add_u32 s%d, s%d, s%d\ns_lshl_b32 s%d, s%d, 1\ns_and_b32 s%d, s%d, 1\ns_add_u32 s%d, s%d, s%d\ns_lshl_b32 s%d, s%d, 14" % (sT, sB, sT, sT, sJJ, sT, sT, sT2, sW, sT, sT, sT2, sT, sT))
        a.autowait = False
        a("buffer_load_dword v147, v146, %s, s%d offen" % (SR(S_WO), sT), tag="x")
        a("s_add_u32 s%d, s%d, 8192" % (sT, sT))
        a("buffer_load_dword v147, v146, %s, s%d offen" % (SR(S_WO), sT), tag="x")
        a.autowait = True
    if extra: extra()

def aux(a):
    if OPT["auxprio"]: a("s_setprio %d" % OPT["auxprio"])
    a("v_lshlrev_b32 v%d, 2, v14\nv_lshlrev_b32 v146, 7, v12" % vFo)
    a("s_lshl_b32 s%d, s%d, 4\nv_mov_b32 v%d, s%d" % (sT, sG, vDg, sT))
    BF = lambda t: vr(208 + 4 * t, 4)
    AF = lambda d: 156 + 4 * d
    sW2, sXq = 58, 61
    a("s_and_b32 s%d, s%d, 1" % (sT3, sW))
    a("v_lshrrev_b32 v9, 5, v12\nv_lshl_add_u32 v4, v15, 13, v4\nv_lshl_add_u32 v4, v9, 15, v4")
    a("s_lshl_b32 s%d, s%d, 9\ns_lshl_b32 s%d, s%d, 7\ns_add_u32 s%d, s%d, s%d\ns_add_u32 s%d, s%d, 256" % (sT, sJJ, sT2, sT3, sT, sT, sT2, sT, sT))
    a("v_add_u32 v4, s%d, v4" % sT)
    a("v_add_u32 v5, 64512, v4\nv_xor_b32 v5, 32, v5\nv_add_u32 v6, 129024, v4\nv_add_u32 v7, 129024, v5")
    a("s_mul_i32 s%d, s%d, %d\ns_add_u32 s%d, s%d, %d" % (sW2, sT3, 12 * KB, sW2, sW2, W2R))
    a("v_add_u32 v2, s%d, v2\nv_xor_b32 v3, 32, v2" % sW2)
    a("s_lshl_b32 s%d, s%d, 5\nv_xor_b32 v8, s%d, v8\nv_xor_b32 v9, 32, v8" % (sT, sT3, sT))
    a("s_mul_i32 s%d, s%d, 9" % (sXq, sT3))
    a("v_mov_b32 v10, %s\nv_mov_b32 v11, %s" % (f32(CSCALE), f32(CSCALE)))
    def chunk(m): a("s_add_u32 s%d, s%d, %d\ns_and_b32 s%d, s%d, 7" % (sT3, sRot, (6 + m) & 7, sT3, sT3))
    PH = [0]
    def hd(i):
        a("s_add_u32 s%d, s%d, %d\ns_and_b32 s%d, s%d, 3\ns_and_b32 s%d, s%d, 12\ns_add_u32 s%d, s%d, s%d\ns_lshl_b32 s%d, s%d, 3" % (sT3, sJJ, i, sT3, sT3, sT2, sJJ, sT3, sT3, sT2, sT3, sT3))
    def wo_load(n):
        hd(n // 4)
        a("s_lshl_b32 s%d, s%d, 15\ns_add_u32 s%d, s%d, %d\ns_add_u32 m0, s%d, %d" % (sT2, sT3, sT2, sT2, (n & 3) << 15, sW2, (n % 3) * 4096))
        for q in range(4):
            a("buffer_load_dwordx4 v%d, %s, s%d offen offset:%d%s lds" % (4 + q, SR(S_WO), sT2, q * 1024, POL[OPT["polwo"]]), tag="q%d" % n)
    def o_load(m):
        hd(m // 2)
        a("s_and_b32 s%d, s%d, 1\ns_add_u32 s%d, s%d, s%d\ns_add_u32 s%d, s%d, %d\ns_mul_i32 s%d, s%d, 9216\ns_mul_i32 s63, s%d, 9216" % (sT2, sW, sT3, sT3, sT2, sT3, sT3, 2 * (m & 1), sT3, sT3, sT2))
        if OPT["xo"] & 1: a("s_mov_b32 s%d, 0" % sT3)
        for e in range(9):
            if e % 4 == 0: a("s_add_u32 m0, s63, %d\ns_add_u32 s%d, s%d, %d" % (XB[m & 1] + e * 1024, sT2, sT3, e * 1024))
            a("buffer_load_dwordx4 v8, %s, s%d offen offset:%d%s lds" % (SR(S_O), sT2, (e & 3) * 1024, POL[OPT["polo"]]), tag="x%d" % m)
    def w2_load(n):
        if PH[0]: return wo_load(n)
        chunk(n // 2)
        a("s_lshl_b32 s%d, s%d, 19\ns_add_u32 s%d, s%d, %d\ns_add_u32 m0, s%d, %d" % (sT2, sT3, sT2, sT2, (n & 1) << 18, sW2, (n % 3) * 4096))
        for q in range(4):
            a("buffer_load_dwordx4 v%d, %s, s%d offen offset:%d%s lds" % (4 + q, SR(S_WQ), sT2, q * 1024, POL[OPT["polw"]]), tag="q%d" % n)
    def x2_load(m):
        chunk(m)
        a("s_lshl_b32 s%d, s%d, 7\ns_lshl_b32 s%d, s%d, 13\ns_add_u32 s%d, s%d, s%d\ns_lshl_b32 s63, s%d, 10" % (sT3, sT3, sT2, sXq, sT3, sT3, sT2, sXq))
        for e in range(9):
            a("s_add_u32 m0, s63, %d\ns_add_u32 s%d, s%d, %d" % (XB[m & 1] + e * 1024, sT2, sT3, e * 8192))
            a("buffer_load_dwordx4 v%d, %s, s%d offen%s lds" % (8 + (e & 1), SR(S_X), sT2, POL[OPT["polx"]]), tag="x%d" % m)
    AF2 = [172, 244, 248, 252]
    def q2_a(n, alt):
        a.wait_vm_tag("q%d" % n)
        for d in range(4):
            for rd in range(2):
                a("ds_read_b64_tr_b16 %s, v%d offset:%d" % (vr((AF2[d] if alt else AF(d)) + 2 * rd, 2), 3 if d & 1 else 2, (n % 3) * 4096 + rd * (2048 if PH[0] else 512) + (d >> 1) * 256))
    def q2_b(n, t): a("ds_read_b128 %s, v%d offset:%d" % (BF(t), 9 if PH[0] else 1, ((n // 2) & 1) * 18 * KB + (((n & 1) * 9 + t) * 1024 if PH[0] else t * 2048 + (n & 1) * 256)))
    def q2_step(n, fill=(), chain=False, chained=False):
        A_ = (lambda d: AF2[d]) if chained else AF
        if not chained:
            q2_a(n, False)
            for t in range(9): q2_b(n, t)
            a("WAIT " + vr(AF(0), 16))
        else: a("WAIT " + " ".join(vr(r, 4) for r in AF2))
        if n + 3 < 16: w2_load(n + 3)
        if not chained: a("s_waitcnt lgkmcnt(0)")
        fi = 0
        def pack_ops(t):
            o = []
            for h in range(2):
                b = ACC(t, 2 * h)
                o += ["v_mul_f32 v%d, v10, v%d" % (b + r, b + r) for r in range(8)]
                o += ["v_cvt_pk_bf16_f32 v%d, v%d, v%d" % (b + r, b + 2 * r, b + 2 * r + 1) for r in range(4)]
            for h in range(2):
                b = ACC(t, 2 * h)
                o += ["v_permlane16_swap_b32 v%d, v%d" % (b, b + 2), "v_permlane16_swap_b32 v%d, v%d" % (b + 1, b + 3)]
            return o
        lastq = n == 15 and not PH[0]
        if lastq and OPT["p14"]: a("s_setprio %d" % OPT["p14"])
        for t in range(9):
            po = pack_ops(t - 2) if lastq and t >= 2 else []
            for d in range(4):
                c = vr(ACC(t, d), 4)
                a("%s %s, %s, %s, %s" % (MF, c, vr(A_(d), 4), BF(t), "0" if n == 0 else c))
                if chain and d == 3: q2_b(n + 1, t)
                if chain and t == 4 and d == 0: q2_a(n + 1, True)
                i = t * 4 + d
                if i >= 36 - OPT["q2mix"] * len(fill) and (36 - i) % OPT["q2mix"] == 0 and fi < len(fill):
                    a(fill[fi][0], tag=fill[fi][1]); fi += 1
                for x in po[7 * d:7 * d + 7]: a(x)
        assert fi == len(fill)
        if lastq:
            for x in pack_ops(7) + pack_ops(8): a(x)
    sched = {}; n_ = 0
    for i_, c_ in enumerate(OPT["q2s"]):
        sched[i_ + 1] = list(range(n_, n_ + int(c_))); n_ += int(c_)
    assert n_ == 16 and len(OPT["q2s"]) <= 14
    at = {n: s_ for s_, l_ in sched.items() for n in l_}
    xiss = {m: at[2 * (m - 2) + 1] + 1 for m in range(2, 8)}
    for m in xiss: assert at[2 * m] > xiss[m], m
    QW = at[15] + 1
    psched = {}; n_ = 0
    for i_, c_ in enumerate(OPT["ps"]):
        psched[i_ + OPT["p0"]] = list(range(n_, n_ + int(c_))); n_ += int(c_)
    assert n_ == 16 and OPT["p0"] >= 18 and OPT["p0"] + len(OPT["ps"]) <= 31
    pat = {n: s_ for s_, l_ in psched.items() for n in l_}
    oiss = {m: pat[2 * (m - 2) + 1] + 1 for m in range(2, 8)}
    if OPT["od"]: oiss[2] = pat[4] - 1
    for m in oiss: assert pat[2 * m] > oiss[m] > OPT["fl0"], m
    def o1_store():
        a("s_and_b32 s%d, s%d, 1" % (sT3, sW))
        a("s_mul_i32 s%d, s%d, %d\ns_add_u32 s%d, s%d, %d\nv_add_u32 v%d, s%d, v1" % (sT, sT3, 4096 if OPT["pair"] else 3 * 4096, sT, sT, EX1, vA_, sT))
        a("s_lshl_b32 s%d, s%d, 11\ns_add_u32 s%d, s%d, %d\nv_add_u32 v%d, s%d, v1" % (sT, sT3, sT, sT, Q2B, vB_, sT))
        fr = [(i, t, h) for i in range(3) for t in range(3) for h in range(2)]
        for n, (i, t, h) in enumerate(fr):
            if t < 2: a("ds_read_b128 %s, v%d offset:%d" % (vr(16 + 4 * n, 4), vA_, i * (8192 if OPT["pair"] else 4096) + t * 2048 + h * 1024))
            else: a("ds_read_b128 %s, v%d offset:%d" % (vr(16 + 4 * n, 4), vB_, i * 12 * KB + h * 1024))
        a("s_mul_i32 s%d, s%d, %d\ns_mul_i32 s%d, s%d, %d\ns_add_u32 s%d, s%d, %d\ns_sub_u32 s%d, s%d, s%d" % (sT2, sJJ, 8 * 9216, sT3, sT3, 2 * 9216, sT2, sT2, 2 * 9216, sT2, sT2, sT3))
        for n, (i, t, h) in enumerate(fr):
            a("s_add_u32 s%d, s%d, %d" % (sT, sT2, (h * 9 + 3 * i + t) * 1024))
            a("buffer_store_dwordx4 %s, v1, %s, s%d offen%s" % (vr(16 + 4 * n, 4), SR(S_O), sT, POL[OPT["pols"]]), tag="st")
    def pre(step):
        if step == 0:
            for n in range(3): w2_load(n)
        for m in xiss:
            if xiss[m] == step: x2_load(m)
        if step == 17:
            PH[0] = 1
            a("s_and_b32 s%d, s%d, 1\ns_xor_b32 s%d, s%d, 1\ns_mul_i32 s%d, s%d, %d\nv_add_u32 v%d, s%d, v9" % (sT, sW, sT, sT, sT, sT, 18 * KB, vA_, sT))
            for n, (i, t, h) in enumerate([(i, t, h) for i in range(3) for t in range(3) for h in range(2)]):
                a("ds_write_b128 v%d, %s offset:%d" % (vA_, vr(16 + 4 * n, 4), (h * 9 + 3 * i + t) * 1024))
            for n in range(3): w2_load(n)
            a("s_waitcnt lgkmcnt(0)")
        for m in oiss:
            if oiss[m] == step:
                if m % 2 == 0:
                    a.wait_vm_tag("fl")
                    keep = list(a.vm)
                    a.label("L_f%d" % m)
                    ready(a)
                    a("s_add_u32 s%d, s%d, %d\ns_and_b32 s%d, s%d, 3\ns_and_b32 s%d, s%d, 12\ns_add_u32 s%d, s%d, s%d" % (sT3, sJJ, m // 2, sT3, sT3, sT2, sJJ, sT3, sT3, sT2))
                    a("s_bitcmp1_b32 s%d, s%d\ns_cbranch_scc1 L_f%dok" % (sR2, sT3, m))
                    a("s_sleep %d" % OPT["slp"]); a(FLOAD); a("s_waitcnt vmcnt(0)\ns_branch L_f%d" % m)
                    a.label("L_f%dok" % m)
                    a.vm = keep
                o_load(m)
            if m % 2 == 0 and oiss[m] - 1 == step: a(FLOAD, tag="fl")
        ns = (psched if PH[0] else sched).get(step, [])
        ch = OPT["q2p"] and len(ns) == 2 and ns[0] % 2 == 0
        for n in ns:
            if OPT["q2mix"] and n == ns[-1] and step + 2 < 32:
                q2_step(n, kv_ops(step + 2), False, ch); KV_DONE.add(step + 2)
            else: q2_step(n, (), ch and n != ns[-1], ch and n == ns[-1])
        if step == QW:
            a("s_and_b32 s%d, s%d, 1\ns_lshl_b32 s%d, s%d, 11\ns_add_u32 s%d, s%d, %d" % (sT, sW, sT, sT, sT, sT, Q2B))
            a("v_lshlrev_b32 v1, 4, v12\nv_add_u32 v2, s%d, v1" % sT)
            fr = [(t, h) for t in range(9) for h in range(2)]
            for t, h in fr: a("ds_write_b128 v2, %s offset:%d" % (vr(ACC(t, 2 * h), 4), t * 4096 + h * 1024))
            if OPT["mxf"]:
                a("s_mov_b64 exec, 1")
                a("v_mov_b32 v%d, %d\nv_mov_b32 v%d, 1" % (vA_, CNT, vB_))
                a("ds_add_u32 v%d, v%d offset:24" % (vA_, vB_))
                a("s_mov_b64 exec, -1")
            if OPT["p14"]: a("s_setprio %d" % OPT["auxprio"])
        if step == 16 and OPT["st1"]: o1_store()
        if step == OPT["pubat"]:
            a("s_cmp_lg_u32 s%d, 6\ns_cbranch_scc1 L_nopub" % sW)
            a("s_lshl_b32 s%d, s%d, 2\nv_mov_b32 v%d, s%d\nv_mov_b32 v%d, s%d" % (sT, sJJ, vA_, sT, vB_, sTag))
            keep = list(a.vm)
            a("buffer_store_dword v%d, v%d, %s, 0 offen sc1" % (vB_, vA_, SR(S_FL)))
            a.vm = keep
            a.label("L_nopub")
    def extra(step):
        if step == 0:
            a("buffer_load_dword v%d, v%d, %s, 0 offen sc1" % (vFl, vFo, SR(S_FL)), tag="fl")
        if step == 3:
            cstamp(a, 0)
            a("s_lshl_b32 s%d, s%d, 3\ns_add_u32 s%d, s%d, s%d\ns_cmp_lg_u32 s%d, 6\ns_cbranch_scc1 L_nolead" % (sT, sJJ, sT, sT, sW, sT))
            a("v_lshrrev_b32 v%d, v14, v%d\nv_and_b32 v%d, 1, v%d\nv_cmp_eq_u32 vcc, 0, v%d" % (vFl, vFl, vFl, vFl, vFl))
            a("s_nop 1")
            a("s_and_b32 s%d, vcc_lo, 0xffff\ns_or_b32 s%d, s%d, 0x80000000" % (sT, sT, sT))
            a("v_mov_b32 v%d, s%d" % (vFl, sT))
            keep = list(a.vm)
            a("buffer_store_dword v%d, v%d, %s, 0 offen sc1" % (vFl, vDg, SR(S_DBG)))
            a.vm = keep
            a.label("L_nolead")
        if step == 9:
            a("buffer_load_dword v%d, v%d, %s, 0 offen sc1" % (vFl, vDg, SR(S_DBG)), tag="fl")
        if step == 12:
            cstamp(a, 1)
            keep = list(a.vm)
            a.label("L_tag")
            a("v_cmp_eq_u32 vcc, 0, v%d" % vFl)
            a("s_cbranch_vccz L_tag_ok")
            a("s_sleep 8")
            a("buffer_load_dword v%d, v%d, %s, 0 offen sc1" % (vFl, vDg, SR(S_DBG)))
            a("s_waitcnt vmcnt(0)")
            a("s_branch L_tag")
            a.label("L_tag_ok")
            a.vm = keep
            a("v_readfirstlane_b32 s%d, v%d" % (sTag, vFl))
            a("v_mov_b32 v%d, %d" % (vA_, TAGW))
            a("ds_write_b32 v%d, v%d" % (vA_, vFl))
            a("s_or_b32 s%d, s%d, 0x%x" % (sWant, sTag, PHM))
            a("s_waitcnt lgkmcnt(0)")
        for m in xiss:
            if xiss[m] == step and at[2 * m] == step + 1: a.wait_vm_tag("x%d" % m)
            if oiss[m] <= step and pat[2 * m] == step + 1: a.wait_vm_tag("x%d" % m)
        if step == 15:
            a("s_waitcnt lgkmcnt(0)")
            if OPT["mxf"] and not OPT["early"]: pass
            elif OPT["mxf"]:
                a("v_mov_b32 v%d, %d" % (vA_, CNT))
                a.label("L_mxw")
                a("s_sleep 1")
                a("ds_read_b32 v%d, v%d offset:20" % (vB_, vA_))
                a("s_waitcnt lgkmcnt(0)")
                a("v_readfirstlane_b32 s%d, v%d" % (sT, vB_))
                a("s_cmp_lt_u32 s%d, 6\ns_cbranch_scc1 L_mxw" % sT)
            else: a("s_barrier")
            for x, t in kv_ops(18)[:OPT["early"]]: a(x, tag=t)
        if step == 16:
            if not OPT["st1"]: o1_store()
            a("s_mov_b32 s%d, s%d" % (sBlkP, sW2))
            op_setup(a, False)
            a("v_mov_b32 v8, v1\nv_add_u32 v9, %d, v1" % XB[0])
        if step == OPT["pubat"] - 1: a.wait_vm_tag("st")
    for step in range(32):
        aux_step(a, step, pre=lambda: pre(step), extra=lambda: extra(step))
    stamp(a, 3)
    a("s_and_b32 s%d, s%d, 1\ns_lshl_b32 s%d, s%d, 14\ns_add_u32 s%d, s%d, %d" % (sT, sW, sT, sT, sT, sT, 96 * KB))
    a("s_sub_u32 s%d, s%d, s%d\ns_mov_b32 s%d, s%d\ns_mov_b32 s%d, 0x%x" % (sT2, sT, sBlkP, sBlkP, sT, sBlkD, (-64 * KB) & 0xffffffff))
    a("v_add_u32 v2, s%d, v2\nv_add_u32 v3, s%d, v3\nv_add_u32 v8, 4096, v1\nv_add_u32 v9, 8192, v1" % (sT2, sT2))

FLOAD = "buffer_load_dword v10, v11, %s, 0 offen sc1" % SR(S_FL)
def ready(a):
    a.autowait = False
    a("v_or_b32 v10, v15, v10\nv_cmp_eq_u32 vcc, s%d, v10\ns_nop 1\ns_mov_b64 s[%d:%d], vcc" % (sWant, sR2, sR2 + 1))
    if OPT["nopoll"]: a("s_mov_b64 s[%d:%d], -1" % (sR2, sR2 + 1))
    a.autowait = True

def op_setup(a, second):
    lanes(a)
    a("v_lshlrev_b32 v1, 4, v12\nv_add_u32 v8, 4096, v1")
    a("v_lshrrev_b32 v9, 5, v12")
    a("v_and_b32 v4, 3, v12\nv_lshlrev_b32 v5, 1, v9\nv_xor_b32 v4, v4, v5\nv_lshlrev_b32 v4, 4, v4")
    a("v_and_b32 v5, 1, v13")
    a("v_lshl_add_u32 v4, v5, 6, v4\nv_lshl_add_u32 v4, v15, 10, v4\nv_lshl_add_u32 v4, v9, 12, v4")
    if second: a("v_xor_b32 v4, 64, v4")
    a("s_and_b32 s%d, s%d, 3\ns_lshl_b32 s%d, s%d, 8\ns_and_b32 s%d, s%d, 1\ns_lshl_b32 s%d, s%d, 7\ns_add_u32 s%d, s%d, s%d" % (sT, sJJ, sT, sT, sT2, sW, sT2, sT2, sT, sT, sT2))
    a("v_add_u32 v4, s%d, v4" % sT)
    a("v_and_b32 v2, 3, v12\nv_lshlrev_b32 v2, 3, v2\nv_lshl_add_u32 v2, v15, 6, v2\nv_lshl_add_u32 v2, v5, 5, v2\nv_lshl_add_u32 v2, v13, 9, v2")
    a("v_add_u32 v2, s%d, v2\nv_xor_b32 v3, 32, v2" % sBlkP)
    for q in range(1, 4): a("v_add_u32 v%d, %d, v4" % (4 + q, 7168 * q))
    a("v_add_u32 v9, 8192, v1\nv_lshlrev_b32 v11, 2, v14")
    a("v_lshrrev_b32 v15, v13, 3\nv_lshlrev_b32 v15, 29, v15" if False else "v_mov_b32 v15, 3\nv_lshrrev_b32 v15, v13, v15\nv_lshlrev_b32 v15, 29, v15")
    a("s_and_b32 s%d, s%d, 1\ns_lshl_b32 s%d, s%d, 1\ns_add_u32 s%d, s%d, %d" % (sOpIdx, sW, sOpIdx, sOpIdx, sOpIdx, sOpIdx, 1 if second else 0))

def op_tail(a):
    B = lambda k, t: vr((208 if k & 1 == 0 else 128) + 4 * t, 4)
    AT = [164, 168, 172, 244]
    def run(ops):
        a.autowait = False
        for x in ops: a(x)
        a.autowait = True
        a.vm = []; a.lgkm = []
    def head_offs(i, so, sb):
        a("s_add_u32 s%d, s%d, s%d\ns_and_b32 s%d, s%d, 3\ns_and_b32 s%d, s%d, 12\ns_add_u32 s%d, s%d, s%d" % (sT3, sJJ, i, sT3, sT3, sT2, sJJ, sT3, sT3, sT2))
        a("s_add_u32 s%d, s%d, 16\ns_lshl_b32 s%d, s%d, 3\ns_add_u32 s%d, s%d, 4" % (sb, sT3, sT3, sT3, sT3, sT3))
        a("s_mul_i32 s%d, s%d, 9216\ns_lshl_b32 s%d, s%d, 15" % (so, sT3, sWn, sT3))
        if OPT["xo"] & 2: a("s_mov_b32 s%d, 0" % so)
    def w_ops(k, blk):
        return ["s_add_u32 m0, s%d, %d" % (blk, k * 4096), "s_add_u32 s%d, s%d, %d" % (sT2, sWn, k * 32768)] + \
               ["buffer_load_dwordx4 v%d, %s, s%d offen offset:%d%s lds" % (4 + q, SR(S_WO), sT2, q * 1024, POL[OPT["polwo"]]) for q in range(4)]
    def o_op(k, t): return "buffer_load_dwordx4 %s, v%d, %s, s%d offen offset:%d%s" % (B(k, t), [1, 8, 9][t >> 2], SR(S_O), sT3, (t & 3) * 1024, POL[OPT["polo"]])
    def a_reads(k, cp):
        return ["ds_read_b64_tr_b16 %s, v%d offset:%d" % (vr(AT[2 * cp + c] + 2 * rd, 2), 3 if c else 2, k * 4096 + rd * 2048 + cp * 256) for c in range(2) for rd in range(2)]
    toggle = ["v_add_u32 v2, s%d, v2" % sBlkD, "v_add_u32 v3, s%d, v3" % sBlkD, "s_add_u32 s%d, s%d, s%d" % (sBlkP, sBlkP, sBlkD), "s_sub_u32 s%d, 0, s%d" % (sBlkD, sBlkD)]
    a.raw(".p2align 3")
    a.label("L_p2")
    run([FLOAD])
    a("s_and_b32 s%d, s%d, 1\ns_lshl_b32 s%d, s%d, 1\ns_add_u32 s62, s%d, 1" % (sT, sOpIdx, sT, sT, sT))
    head_offs(62, sOc, sBc)
    for k in range(4): run(w_ops(k, sBlkP))
    a("s_add_u32 s62, s62, 1\ns_add_u32 s63, s%d, s%d" % (sBlkP, sBlkD))
    head_offs(62, sOn, sBn)
    for k in range(4): run(w_ops(k, 63))
    a("s_waitcnt vmcnt(32)")
    a("s_mov_b32 s%d, 2" % sBit)
    a.label("L_p2_chk")
    ready(a)
    a("s_bitcmp1_b32 s%d, s%d\ns_cbranch_scc1 L_p2_go" % (sR2, sBc))
    a("s_bitcmp1_b32 s%d, s%d\ns_cbranch_scc1 L_p2_swap" % (sR2, sBn))
    run(["s_sleep %d" % OPT["slp"]])
    a.label("L_p2_poll")
    run([FLOAD, "s_waitcnt vmcnt(0)", "s_branch L_p2_chk"])
    a.label("L_p2_swap")
    run(["s_mov_b32 s%d, s%d" % (sT, sBc), "s_mov_b32 s%d, s%d" % (sBc, sBn), "s_mov_b32 s%d, s%d" % (sBn, sT),
         "s_mov_b32 s%d, s%d" % (sT, sOc), "s_mov_b32 s%d, s%d" % (sOc, sOn), "s_mov_b32 s%d, s%d" % (sOn, sT)] + toggle)
    a.label("L_p2_go")
    stamp(a, 6)
    for k in range(2): run(["s_add_u32 s%d, s%d, %d" % (sT3, sOc, k * 9216)] + [o_op(k, t) for t in range(9)])
    run([FLOAD, "s_waitcnt vmcnt(19)"] + a_reads(0, 0))
    def kstep(k, ho, extra):
        more = k < 2 or ho
        run(["s_waitcnt vmcnt(%d) lgkmcnt(0)" % ((9 + extra) if (k < 3 or ho) else 0)] + a_reads(k, 1))
        if more: run(["s_add_u32 s%d, s%d, %d" % (sT3, sOc if k < 2 else sOn, ((k + 2) & 3) * 9216)])
        for cp in range(2):
            if cp == 1:
                run(["s_waitcnt lgkmcnt(0)"])
                if k == 3: run(toggle)
                if k < 3 or ho: run(a_reads((k + 1) & 3, 0))
            for t in range(9):
                for c in range(2):
                    r = vr(ACC(t, 2 * cp + c), 4)
                    run(["%s %s, %s, %s, %s" % (MF, r, vr(AT[2 * cp + c], 4), B(k, t), r)])
                if cp == 1 and more: run([o_op(k, t)])
    kstep(0, False, 1)
    kstep(1, False, 0)
    a("s_cmp_eq_u32 s%d, 1\ns_cbranch_scc1 L_p2_last" % sBit)
    ready(a)
    a("s_bitcmp1_b32 s%d, s%d\ns_cbranch_scc0 L_p2_last" % (sR2, sBn))
    kstep(2, True, 0); kstep(3, True, 0)
    a("s_mov_b32 s%d, s%d\ns_mov_b32 s%d, 1" % (sOc, sOn, sBit))
    kstep(0, False, 0); kstep(1, False, 0)
    a.label("L_p2_last")
    kstep(2, False, 0); kstep(3, False, 0)
    a("s_mov_b32 s%d, s%d\ns_mov_b32 s%d, s%d" % (sOc, sOn, sBc, sBn))
    a("s_sub_u32 s%d, s%d, 1\ns_cmp_lg_u32 s%d, 0\ns_cbranch_scc1 L_p2_poll" % (sBit, sBit, sBit))
    stamp(a, 1)
    a("s_add_u32 s%d, s%d, s%d\ns_min_u32 s%d, s%d, s%d\ns_max_u32 s%d, s%d, s%d" % (sT, sBlkP, sBlkD, sT2, sT, sBlkP, sT3, sT, sBlkP))
    a("v_add_u32 v8, s%d, v1\nv_add_u32 v9, s%d, v1" % (sT2, sT3))
    for t in range(9):
        for c in range(2): a("ds_write_b128 v%d, %s offset:%d" % (8 if t < 8 else 9, vr(ACC(t, 2 + c), 4), ((t & 7) * 2 + c) * 1024))
    a("v_xor_b32 v8, %d, v8" % (32 * KB))
    a("s_mov_b32 s%d, %d\ns_cmp_eq_u32 s%d, 1\ns_cselect_b32 s%d, %d, s%d" % (sT, 64 * KB, sOpIdx, sT, 96 * KB, sT))
    a("s_cmp_eq_u32 s%d, 2\ns_cselect_b32 s%d, %d, s%d\ns_cmp_eq_u32 s%d, 3\ns_cselect_b32 s%d, %d, s%d" % (sOpIdx, sT, 132 * KB, sT, sOpIdx, sT, 112 * KB, sT))
    a("v_add_u32 v9, s%d, v1" % sT)
    a("s_lshl_b32 s%d, s%d, 2\ns_and_b32 s%d, s%d, 3\ns_add_u32 s%d, s%d, s%d\ns_lshl_b32 s%d, s%d, 2\ns_add_u32 s%d, s%d, s%d" % (sT, sG, sT2, sJJ, sT, sT, sT2, sT, sT, sT, sT, sOpIdx))
    a("s_mul_i32 s%d, s%d, %d\ns_add_u32 s%d, s%d, 0x%x\ns_add_u32 s90, s100, s%d\ns_addc_u32 s91, s101, 0" % (sT, sT, 4 * 9216, sT, sT, SLAB_OFF, sT))
    srd(a, S_SL, 90, 91, "%d" % (4 * 9216))
    a("s_waitcnt lgkmcnt(0)")
    a("s_barrier")
    for t in range(9):
        for c in range(2): a("ds_read_b128 %s, v%d offset:%d" % (vr(ACC(t, 2 + c), 4), 8 if t < 8 else 9, ((t & 7) * 2 + c) * 1024))
    a("v_add_u32 v8, 4096, v1\nv_add_u32 v9, 8192, v1")
    a("s_lshr_b32 s62, s%d, 2" % sJJ)
    a("s_cmp_eq_u32 s62, s%d\ns_cbranch_scc1 L_fin" % sOpIdx)
    keepl = list(a.lgkm)
    def addp(t):
        b = ACC(t, 0)
        for r in range(0, 8, 2): a("v_pk_add_f32 %s, %s, %s" % (vr(b + r, 2), vr(b + r, 2), vr(b + 8 + r, 2)))
    def cvt(t):
        b = ACC(t, 0)
        for r in range(4): a("v_cvt_pk_bf16_f32 v%d, v%d, v%d" % (b + r, b + 2 * r, b + 2 * r + 1))
    a("s_mul_i32 s%d, s62, 9216" % sT3)
    for t in range(9):
        addp(t); cvt(t)
        a("buffer_store_dwordx4 %s, v%d, %s, s%d offen offset:%d sc1" % (vr(ACC(t, 0), 4), [1, 8, 9][t >> 2], SR(S_SL), sT3, (t & 3) * 1024))
    publish(a, "L_pub_z", 250, 28, 2, PHM)
    if OPT["stamps"]:
        stamp(a, 7); stamp_store(a)
    a("s_endpgm")
    a.vm = []; a.lgkm = keepl
    a.label("L_fin")
    run([FLOAD]); a.lgkm = keepl
    for t in range(9): addp(t)
    lanes(a)
    a("v_and_b32 v244, 1, v14\nv_lshlrev_b32 v244, 4, v244\nv_mov_b32 v245, 0x3f80\nv_lshlrev_b32 v245, v244, v245")
    a("v_cmp_eq_u32 vcc, v15, v13\nv_mov_b32 v244, 0\nv_cndmask_b32 v245, 0, v245, vcc")
    a("v_and_b32 v246, 2, v14\nv_cmp_eq_u32 vcc, 0, v246\nv_mov_b32 v248, 0\nv_mov_b32 v249, 0")
    a("v_cndmask_b32 v246, 0, v245, vcc\nv_cndmask_b32 v247, v245, v244, vcc\nv_mov_b32 v245, 0")
    a("v_lshrrev_b32 v4, 1, v13\nv_and_b32 v5, 1, v13\nv_lshl_or_b32 v4, v5, 1, v4\nv_lshlrev_b32 v4, 4, v4\nv_lshl_add_u32 v4, v14, 11, v4")
    a("s_mul_i32 s%d, s%d, %d\ns_lshl_b32 s%d, s%d, 10\ns_add_u32 s%d, s%d, s%d" % (sOutOff, sB, 144 * 2048, sT, sBlk, sOutOff, sOutOff, sT))
    a("s_and_b32 s%d, s%d, 3\ns_lshl_b32 s%d, s%d, 8\ns_add_u32 s%d, s%d, s%d\ns_lshl_b32 s%d, s62, 6\ns_add_u32 s%d, s%d, s%d" % (sT2, sJJ, sT, sT2, sOutOff, sOutOff, sT, sT, sOutOff, sOutOff, sT))
    a("v_mov_b32 v15, 3\nv_lshrrev_b32 v15, v13, v15\nv_lshlrev_b32 v15, 29, v15")
    a("s_lshl_b32 s%d, 0x1111, s%d\ns_lshl_b32 s%d, 1, s%d\ns_andn2_b32 s%d, s%d, s%d" % (sBit, sT2, sT, sJJ, sBit, sBit, sT))
    a("s_waitcnt vmcnt(0)")
    a.label("L_fin_chk")
    ready(a)
    a("s_andn2_b32 s%d, s%d, s%d\ns_cbranch_scc0 L_fin_go" % (sT, sBit, sR2 + 1))
    run(["s_sleep %d" % OPT["slp"], FLOAD, "s_waitcnt vmcnt(0)", "s_branch L_fin_chk"])
    a.label("L_fin_go")
    stamp(a, 4)
    SL = lambda i, t: (ACC(t, 2 + i) if i < 2 else 128 + 4 * t)
    for i in range(3): a("s_add_u32 s%d, s62, %d\ns_and_b32 s%d, s%d, 3\ns_mul_i32 s%d, s%d, 9216" % (sOc + i, i + 1, sOc + i, sOc + i, sOc + i, sOc + i))
    for t in range(9):
        for i in range(3):
            a("buffer_load_dwordx4 %s, v%d, %s, s%d offen offset:%d sc1" % (vr(SL(i, t), 4), [1, 8, 9][t >> 2], SR(S_SL), sOc + i, (t & 3) * 1024))
    def fin_out(t):
        cvt(t); q_swap(a, ACC(t, 0))
        a("s_add_u32 s%d, s%d, %d" % (sT, sOutOff, t * 32768))
        a("buffer_store_dwordx4 %s, v4, %s, s%d offen%s" % (vr(ACC(t, 0), 4), SR(S_OUT), sT, POL[OPT["polout"]]))
    for t in range(9):
        for i in range(3):
            for c in range(2):
                r = vr(ACC(t, c), 4)
                a("%s %s, %s, %s, %s" % (MF, r, vr(246 - 2 * c, 4), vr(SL(i, t), 4), r))
        if t: fin_out(t - 1)
    fin_out(8)
    if OPT["stamps"]:
        a("s_waitcnt vmcnt(0)")
        stamp(a, 7); stamp_store(a)
    a("s_endpgm")
    a.vm = []; a.lgkm = []

def kernel():
    a = Asm()
    a.raw(".globl %s\n.p2align 8\n.type %s,@function" % (NAME, NAME)); a.label(NAME)
    a("s_cmp_ge_u32 s2, 256\ns_cbranch_scc1 L_end")
    if OPT["stamps"]:
        for k in range(1 if OPT["pst"] else NST): a("s_memrealtime s[%d:%d]" % (64 + 2 * k, 65 + 2 * k))
    a("s_and_b32 s%d, s2, 7\ns_lshr_b32 s%d, s2, 3\ns_lshr_b32 s%d, s%d, 2" % (sT, sT2, sBlk, sT))
    a("s_mul_i32 s%d, s%d, 40" % (sT3, sBlk))
    a("s_add_u32 s4, s0, s%d\ns_addc_u32 s5, s1, 0" % sT3)
    a("s_load_dwordx8 s[80:87], s[4:5], 0")
    a("s_load_dwordx2 s[88:89], s[4:5], 32")
    a("s_load_dwordx4 s[96:99], s[0:1], 80")
    a("s_load_dwordx2 s[92:93], s[0:1], 96")
    a("s_lshr_b32 s%d, s%d, 4\ns_lshl_b32 s%d, s%d, 1\ns_add_u32 s%d, s%d, s%d" % (sGo, sT2, sT3, sT, sGo, sGo, sT3))
    a("s_and_b32 s%d, s%d, 15" % (sJo, sT2))
    if OPT["map"] == 0:
        a("s_mov_b32 s%d, s%d\ns_mov_b32 s%d, s%d\ns_and_b32 s%d, s%d, 7" % (sG, sGo, sJJ, sJo, sB, sGo))
        a("s_and_b32 s%d, s%d, 1\ns_lshl_b32 s%d, s%d, 2\ns_add_u32 s%d, s%d, s%d" % (sRot, sG, sRot, sRot, sRot, sRot, sJJ))
    elif OPT["map"] == 1:
        a("s_and_b32 s%d, s%d, 7\ns_and_b32 s%d, s%d, 1\ns_lshl_b32 s%d, s%d, 3\ns_add_u32 s%d, s%d, s%d" % (sRot, sT2, sJJ, sT, sJJ, sJJ, sJJ, sJJ, sRot))
        a("s_lshr_b32 s%d, s%d, 3\ns_lshl_b32 s%d, s%d, 1\ns_add_u32 s%d, s%d, s%d" % (sB, sT2, sT3, sB, sRot, sRot, sT3))
        a("s_and_b32 s%d, s%d, 2\ns_lshl_b32 s%d, s%d, 1\ns_add_u32 s%d, s%d, s%d" % (sT3, sT, sT3, sT3, sB, sB, sT3))
        a("s_lshl_b32 s%d, s%d, 3\ns_add_u32 s%d, s%d, s%d" % (sG, sBlk, sG, sG, sB))
    else:
        a("s_and_b32 s%d, s%d, 3\ns_and_b32 s%d, s%d, 3\ns_lshl_b32 s%d, s%d, 2\ns_add_u32 s%d, s%d, s%d" % (sRot, sT2, sJJ, sT, sJJ, sJJ, sJJ, sJJ, sRot))
        a("s_lshr_b32 s%d, s%d, 2\ns_lshl_b32 s%d, s%d, 1\ns_add_u32 s%d, s%d, s%d" % (sB, sT2, sRot, sRot, sRot, sRot, sB))
        if OPT["cls"] == 1: a("s_and_b32 s%d, s%d, 3\ns_lshl_b32 s%d, s%d, 1\ns_lshr_b32 s%d, s%d, 4\ns_add_u32 s%d, s%d, s%d" % (sB, sB, sB, sB, sT3, sT2, sB, sB, sT3))
        a("s_lshl_b32 s%d, s%d, 3\ns_add_u32 s%d, s%d, s%d" % (sG, sBlk, sG, sG, sB))
    if OPT["cls"] == 1: a("s_lshr_b32 s3, s2, 7")
    if OPT["cls"] == 2: a("s_mov_b32 s3, s%d" % sBlk)
    a("v_lshrrev_b32 v12, 6, v0")
    a("v_readfirstlane_b32 s%d, v12" % sW)
    a("s_mul_i32 s62, s%d, 147456" % sB)
    def code_pf():
        a("s_getpc_b64 s[90:91]")
        a.label("L_pf")
        if OPT["pfw"]:
            a("s_lshr_b32 s%d, s2, 3\ns_and_b32 s%d, s%d, 3\ns_min_u32 s%d, s%d, 2\ns_lshl_b32 s%d, s%d, 15" % (sT, sT, sT, sT, sT, sT, sT))
            a("v_lshlrev_b32 v240, 7, v0\nv_add_u32 v240, s%d, v240" % sT)
        else: a("v_lshlrev_b32 v240, 7, v0")
        a.items.append(a._mk("v_min_u32 v240, 0x1234, v240")); a.items[-1].text = "v_min_u32 v240, L_end-L_pf, v240"
        if OPT["pfw"] == 2: a("s_cmp_ge_u32 s2, 32\ns_cbranch_scc1 L_nopf")
        a("global_load_dword v253, v240, s[90:91]")
        if OPT["pfw"] == 2: a.label("L_nopf")
    if not OPT["pfw"]: code_pf()
    if OPT["fast0"]:
        loader_setup(a)
        if OPT["pst"]: a("s_memrealtime s[66:67]")
        srds_first(a)
        if OPT["pst"]: a("s_memrealtime s[68:69]")
        a("s_cmp_lt_u32 s%d, 4\ns_cbranch_scc1 L_arole" % sW)
        st0 = (list(a.lgkm), list(a.vm))
        for x, t in stage_ops_(0, 4): a(x, tag=t)
        st = (list(a.lgkm), list(a.vm))
        a("s_cmp_ge_u32 s%d, 6\ns_cbranch_scc1 L_auxrole\ns_branch L_brole" % sW)
        a.label("L_arole")
        a.lgkm, a.vm = list(st0[0]), list(st0[1])
    else:
        a("s_cmp_ge_u32 s%d, 6\ns_cbranch_scc1 L_auxrole" % sW)
        st = (list(a.lgkm), list(a.vm))
        a("s_cmp_ge_u32 s%d, 4\ns_cbranch_scc1 L_brole" % sW)
    if OPT["pfw"]: code_pf()
    head(a, "A")
    a("s_branch L_att")
    a.lgkm, a.vm = list(st[0]), list(st[1])
    a.raw(".p2align 3"); a.label("L_brole")
    head(a, "B")
    a.label("L_att")
    attention(a)
    a.lgkm, a.vm = list(st[0]), list(st[1])
    a.raw(".p2align 3"); a.label("L_auxrole")
    head(a, "X")
    aux(a)
    a.vm = []
    op_tail(a)
    a.label("L_end"); a("s_endpgm")
    a.pad_hazards()
    a.check_backedge("L_loop", "s_cbranch_scc1 L_loop")
    a.align8()
    return a.text()

out = []
out.append("; " + " ".join(sys.argv[1:]) + " : fused Q-projection + attention + O-projection, one launch (generated by dev/gen13.py)")
out.append("; @launch grid=(256,1,1) block=(512,1,1) lds=163840")
out.append('.amdgcn_target "amdgcn-amd-amdhsa--gfx950"\n.text')
out.append(kernel())
out.append('.section .rodata,"a"\n.p2align 6')
out.append(""".amdhsa_kernel %s
  .amdhsa_next_free_vgpr 256
  .amdhsa_next_free_sgpr 102
  .amdhsa_accum_offset 256
  .amdhsa_group_segment_fixed_size 0
  .amdhsa_kernarg_size 104
  .amdhsa_user_sgpr_count 2
  .amdhsa_user_sgpr_kernarg_segment_ptr 1
  .amdhsa_system_sgpr_workgroup_id_x 1
.end_amdhsa_kernel
""" % NAME)
print("\n".join(out))
```

```python
import sys, math, struct
sys.path.insert(0, "dev")
from asmlib import *

OPT = dict(stamps=0, samekv=0, clk=0, hst=0, nopoll=0, polo=2, polw=0, polx=0, polwo=0, pols=2, polkv=1, slp=4, lo=2,
           auxprio=0, sbs=1, s0=22, kp="3333333322", sst=-1, sstd=1, xo=0, xw=0, map=2, park=2, hprio=1, kv0=5, kv1=6, pk14=0, ck=0, polout=0, ptouch=0, tw0="", tw1="", g0=15, cap=0, capto=16, nol=0, q2mix=2, bst=-1, bw=0, pair=1, mxf=1, p14=1, early=8, tst=0, cpf=1, pfm=-1, pst=0, pfw=1, fast0=1, q2s="22111111111111", q2p=1, q2pr=0, kvc=0, xmf=0, cls=0, capl=0, capl0=2, capl1=17, pubat=18, st1=0, hb=3, k1a=8, k1b=8, pad=0, ypr=2, asym=-1, p0=18, ps="1111111111222", fl0=19, od=1, pols2=2, polf=2)
for a_ in sys.argv[1:]:
    k, v = a_.split("="); assert k in OPT, k; OPT[k] = v if k in ("kp", "tw0", "tw1", "q2s", "ps") else int(v)

NAME = "concat_heads__mha_block_cached__gqa_block_cached__near_ridge_kernel"
def f32(x): return "0x%08x" % struct.unpack("<I", struct.pack("<f", x))[0]
CSCALE = math.log2(math.e) / math.sqrt(128.0)
THR = 8.0
KB = 1024
SLOT = 32 * KB
XB = [96 * KB, 114 * KB, 132 * KB]
WB = [32 * KB, 48 * KB, 0]
Q2B = 96 * KB; Q1A = 132 * KB; Q1C = 32 * KB; EX1 = 132 * KB; EX2 = 80 * KB; W2R = 132 * KB
MLB = 156 * KB; CNT = 160 * KB - 128; TAGW = CNT + 8; CLAIM = CNT + 16; PFL = CNT + 32
STAMP_OFF = 0x10000000; FLAG_OFF = 0x2000000
PH2 = 0x40000000; PH3 = 0x20000000; PHM = 0x60000000
SLAB_OFF = 0x2800000
S_SL = 8
sR2 = 60
OSTR = 128 * 9216 + 1024
MF = "v_mfma_f32_16x16x32_bf16"
NST = 8
POL = ["", " nt", " sc1", " sc0 sc1", " sc1 nt", " sc0 sc1 nt", " sc0 nt", " sc0"]
NIN = sum(int(c) for c in OPT["kp"]) // 4
assert NIN * 4 == sum(int(c) for c in OPT["kp"]) and NIN <= 7

HD = OPT["hb"]
HX = XB if HD == 3 else [64 * KB, 132 * KB, 96 * KB, 114 * KB]
HW = WB if HD == 3 else [0, 16 * KB, 32 * KB, 48 * KB]
SPLIT = OPT["pubat"] + 1
S_FL, S_WQ, S_X, S_O, S_KV, S_WO, S_OUT, S_DBG = 4, 8, 12, 16, 20, 24, 28, 32
S_OL, S_FLL = 8, 12
sW, sG, sJJ, sBlk, sB, sRot, sT, sT2, sT3 = 36, 37, 38, 39, 40, 41, 42, 43, 44
sCnt, sThr, sFl, sSlot, sDelta, sItem, sExS, sBar, sExch, sOoff = 45, 46, 47, 48, 49, 50, 51, 52, 53, 54
sNeg, sPos, sPart, sKg, sRho = 55, 56, 57, 59, 62
sHk, sHo = 46, 47
sOc, sOn, sWn, sBlkP, sRm, sBit, sR, sC = 46, 47, 48, 49, 51, 52, 55, 56
sBlkD, sBc, sBn, sOnn = 45, 53, 58, 86
sOb, sWb, sOutOff, sOpIdx, sTag, sWant, sTagA = 80, 81, 82, 83, 84, 85, 87
sGo, sJo = 94, 95

def srd(a, d, lo, hi, nrec):
    a("s_mov_b32 s%d, s%d\ns_mov_b32 s%d, s%d" % (d, lo, d + 1, hi))
    a("s_mov_b32 s%d, %s\ns_mov_b32 s%d, 0x20000" % (d + 2, nrec, d + 3))
def SR(d): return "s[%d:%d]" % (d, d + 3)

def cstamp(a, e):
    if OPT["clk"]: a("s_memtime s[%d:%d]\ns_memrealtime s[%d:%d]" % (66 + 2 * e, 67 + 2 * e, 70 + 2 * e, 71 + 2 * e))
def stamp(a, k, hs=False):
    if not OPT["stamps"] or OPT["ck"]: return
    if OPT["clk"] and 1 <= k <= 4: return
    if (OPT["sst"] >= 0 or OPT["bst"] >= 0 or OPT["tst"] or OPT["pst"]) and k and k != 7: return
    if OPT["hst"] and k and not hs: return
    if hs and not OPT["hst"]: return
    a("s_memrealtime s[%d:%d]" % (64 + 2 * k, 65 + 2 * k))
BSN = [0]
def bstamp(a, k):
    if OPT["bst"] < 0: return
    BSN[0] += 1
    a("s_cmp_lg_u32 s%d, %d\ns_cbranch_scc1 L_bs%d\ns_memrealtime s[%d:%d]\nL_bs%d:" % (sItem, OPT["bst"], BSN[0], 64 + 2 * k, 65 + 2 * k, BSN[0]))
def stamp_store(a):
    a("s_waitcnt vmcnt(0) lgkmcnt(0)")
    a("s_cmp_eq_u32 s%d, 6\ns_cselect_b32 s%d, 256, 0" % (sW, sT))
    a("s_mul_i32 s%d, s%d, 43\ns_lshr_b32 s%d, s%d, 8\ns_mul_i32 s%d, s%d, 6" % (sT2, sW, sT2, sT2, sT2, sT2))
    a("s_cmp_lg_u32 s%d, s%d\ns_cbranch_scc1 L_end" % (sT2, sW))
    a("s_add_u32 s96, s100, 0x%x\ns_addc_u32 s97, s101, 0" % STAMP_OFF)
    a("s_mov_b32 s98, 0x100000\ns_mov_b32 s99, 0x20000")
    a("s_add_u32 s3, s2, s%d\ns_mul_i32 s3, s3, %d" % (sT, NST * 8))
    a("v_mov_b32 v12, s3\ns_mov_b64 exec, 1")
    for k in range(NST):
        a("v_mov_b32 v14, s%d\nv_mov_b32 v15, s%d" % (64 + 2 * k, 65 + 2 * k))
        a("buffer_store_dwordx2 v[14:15], v12, s[96:99], 0 offen offset:%d" % (8 * k))
        a("s_nop 1")

def lanes(a):
    a("v_and_b32 v12, 63, v0\nv_lshrrev_b32 v13, 4, v12\nv_and_b32 v14, 15, v12\nv_bfe_u32 v15, v12, 2, 2")

vK, vVa, vVb = 1, 2, 3
vX1, vX2, vX3, vX4 = 4, 5, 6, 7
vONE, vT, vQ, vO, vL, vM, vS, vF = 8, 12, 16, 64, 160, 172, 184, 208
def Q(t, s): return vr(vQ + 16 * t + 4 * s, 4)
def O(t, dt): return vr(vO + 32 * t + 4 * dt, 4)
def L(t): return vr(vL + 4 * t, 4)
def M(t): return vr(vM + 4 * t, 4)
def S(t, kt): return vr(vS + 8 * t + 4 * kt, 4)
def F(i): return vF + 4 * i
vD = 128
vFo, vDg, vDg2, vFl, vA_, vB_, vOr, vCl, vCr, vCb = 136, 137, 138, 139, 140, 141, 142, 143, 144, 145

sKo = 50
S_V = 96
CAPN = [0]
def kv_ops(tile):
    slot = (tile + 2) % 3
    o = []
    for grp in range(4):
        for q in range(4):
            if OPT["kvc"]:
                pre_ = "s_add_u32 m0, s%d, %d\ns_add_u32 s%d, s%d, %d\n" % (sKg, slot * SLOT + (grp >> 1) * 16384 + (grp & 1) * 4096, sKo, sKg, tile * 16384 + (grp & 1) * 4096) if q == 0 else ""
                sr_ = SR(S_V if grp >= 2 else S_KV)
            else:
                pre_ = "s_add_u32 m0, s%d, %d\ns_mov_b32 s%d, %d\n" % (sKg, slot * SLOT + grp * 4096, sKo, tile * 16384 + grp * 4096) if q == 0 else ""
                sr_ = SR(S_KV)
            if q == 0 and OPT["capl"] and OPT["capl0"] <= tile <= OPT["capl1"]:
                CAPN[0] += 1
                pre_ = "s_cmp_eq_u32 s3, 0\ns_cbranch_scc1 L_cap%d\nRAW s_waitcnt vmcnt(%d)\nL_cap%d:\n" % (CAPN[0], OPT["capl"] - 4, CAPN[0]) + pre_
            ld = "buffer_load_dwordx4 v%d, %s, s%d offen offset:%d%%s lds" % (vD + q + (4 if grp >= 2 else 0), sr_, sKo, q * 1024)
            if OPT["asym"] >= 0:
                CAPN[0] += 1
                o.append((pre_ + "s_cmp_eq_u32 s%d, %d\ns_cbranch_scc1 L_as%d\n%s\ns_branch L_at%d\nL_as%d:\nRAW %s\nL_at%d:" % (sBlk, OPT["asym"], CAPN[0], ld % " nt", CAPN[0], CAPN[0], ld % "", CAPN[0]), "t%d" % tile))
            else: o.append((pre_ + ld % POL[OPT["polkv"]], "t%d" % tile))
    return o
KV_DONE = set()
def kv_tile(a, tile):
    if tile in KV_DONE: return
    for x, t in kv_ops(tile): a(x, tag=t)

def srds_first(a):
    a("s_waitcnt lgkmcnt(0)")
    srd(a, S_WQ, 86, 87, "%d" % (512 * 8192))
    a("s_add_u32 s80, s80, s62\ns_addc_u32 s81, s81, 0")
    srd(a, S_X, 80, 81, "147456")

def srds_rest(a):
    a("s_mul_i32 s%d, s%d, %d\ns_add_u32 s%d, s%d, 1024\ns_add_u32 s90, s92, s%d\ns_addc_u32 s91, s93, 0" % (sT, sG, OSTR, sT, sT, sT))
    srd(a, S_O, 90, 91, "%d" % (128 * 9216))
    if not OPT["kvc"]: a("s_cmp_eq_u32 s%d, 6\ns_cselect_b32 s82, s82, s84\ns_cselect_b32 s83, s83, s85" % sW)
    a("s_lshl_b32 s%d, s%d, 4\ns_add_u32 s%d, s%d, s%d" % (sT, sB, sT, sT, sJJ))
    if OPT["samekv"]: a("s_mov_b32 s%d, 0" % sT)
    a("s_lshl_b32 s%d, s%d, 19" % (sT, sT))
    a("s_add_u32 s82, s82, s%d\ns_addc_u32 s83, s83, 0" % sT)
    srd(a, S_KV, 82, 83, "524288")
    srd(a, S_WO, 88, 89, "%d" % (4096 * 1024))
    srd(a, S_OUT, 96, 97, "%d" % (8 * 144 * 1024 * 2))
    srd(a, S_DBG, 98, 99, "256")
    if OPT["kvc"]:
        a("s_add_u32 s84, s84, s%d\ns_addc_u32 s85, s85, 0" % sT)
        srd(a, S_V, 84, 85, "524288")
    a("s_lshl_b32 s%d, s%d, 8\ns_add_u32 s%d, s%d, 0x%x\ns_add_u32 s90, s92, s%d\ns_addc_u32 s91, s93, 0" % (sT, sG, sT, sT, FLAG_OFF, sT))
    srd(a, S_FL, 90, 91, "64")
    a("s_mov_b32 s100, s92\ns_mov_b32 s101, s93")
    if OPT["pair"]: a("s_and_b32 s%d, s%d, 1\ns_lshr_b32 s%d, s%d, 1" % (sKg, sW, sRho, sW))
    else: a("s_cmp_ge_u32 s%d, 3\ns_cselect_b32 s%d, 1, 0\ns_mul_i32 s%d, s%d, 3\ns_sub_u32 s%d, s%d, s%d" % (sW, sKg, sT, sKg, sRho, sW, sT))
    a("v_and_b32 v236, 31, v0\nv_lshlrev_b32 v236, 2, v236\nv_add_u32 v236, %d, v236\nv_mov_b32 v234, 0" % CNT)
    a("ds_write_b32 v236, v234")

def q_pack(a, b, scale):
    for r in range(0, 8, 2): a("v_pk_mul_f32 %s, %s, %s" % (vr(b + r, 2), vr(b + r, 2), scale))
    for r in range(4): a("v_cvt_pk_bf16_f32 v%d, v%d, v%d" % (b + r, b + 2 * r, b + 2 * r + 1))
def q_swap(a, b):
    a("v_permlane16_swap_b32 v%d, v%d\nv_permlane16_swap_b32 v%d, v%d" % (b, b + 2, b + 1, b + 3))

def loader_setup(a):
    vHW, vHX, vA1 = 224, 248, 231
    lanes(a)
    a("s_and_b32 s60, s%d, 3" % sW)
    a("v_and_b32 v%d, 3, v12\nv_lshlrev_b32 v%d, 4, v%d" % (vHX, vHX, vHX))
    a("v_lshl_add_u32 v%d, v13, 6, v%d" % (vHW, vHX))
    a("v_lshl_add_u32 v%d, v15, 8, v%d" % (vD, vHW))
    a("v_lshl_add_u32 v%d, v15, 13, v%d" % (vHW, vHW))
    a("s_lshl_b32 s%d, s60, 17\ns_lshl_b32 s%d, s%d, 9\ns_add_u32 s%d, s%d, s%d" % (sT, sT2, sJJ, sT, sT, sT2))
    a("v_add_u32 v%d, s%d, v%d" % (vHW, sT, vHW))
    a("v_add_u32 v%d, %d, v%d" % (vHW + 1, 31744, vHW))
    a("v_add_u32 v%d, %d, v%d\nv_xor_b32 v%d, 32, v%d" % (vHW + 2, 2 * 31744, vHW, vHW + 2, vHW + 2))
    a("v_add_u32 v%d, %d, v%d" % (vHW + 3, 31744, vHW + 2))
    a("s_lshl_b32 s63, s60, 12")
    a("s_mul_i32 s61, s60, 5\ns_min_u32 s61, s61, 14")
    a("v_and_b32 v%d, 1, v13\nv_lshl_add_u32 v4, v%d, 6, v%d" % (vA1, vA1, vHX))
    a("v_lshl_add_u32 v%d, v15, 10, v4" % vHX)
    a("v_lshrrev_b32 v%d, 5, v12\nv_lshl_add_u32 v8, v%d, 12, v%d" % (vA1, vA1, vHX))
    a("s_lshl_b32 s%d, s61, 13\ns_and_b32 s%d, s61, 1\ns_lshl_b32 s%d, s%d, 5" % (sT, sT2, sT2, sT2))
    a("v_add_u32 v%d, s%d, v8\nv_xor_b32 v%d, s%d, v%d" % (vHX, sT, vHX, sT2, vHX))
    a("v_add_u32 v%d, 7168, v%d\nv_xor_b32 v%d, 32, v%d" % (vHX + 1, vHX, vHX + 1, vHX + 1))
    a("v_add_u32 v%d, 14336, v%d\nv_add_u32 v%d, 14336, v%d" % (vHX + 2, vHX, vHX + 3, vHX + 1))
    a("v_add_u32 v%d, 32768, v%d" % (vHX + 4, vHX))
    a("s_lshl_b32 s61, s61, 10")

def stage_ops_(j, NX):
    vHW, vHX = 224, 248
    xb = HX[j % HD]; wb = HW[j % HD]
    o = []
    for qq in range(4):
        pre_ = "s_add_u32 s%d, s%d, %d\ns_and_b32 s%d, s%d, 7\ns_lshl_b32 s%d, s%d, 19\ns_add_u32 m0, s63, %d\n" % (sHk, sRot, j, sHk, sHk, sHo, sHk, wb) if qq == 0 else ""
        o.append(pre_ + "buffer_load_dwordx4 v%d, %s, s%d offen offset:%d%s lds" % (vHW + qq, SR(S_WQ), sHo, qq * 1024, POL[OPT["polw"]]))
    for e in range(NX):
        pre_ = "s_add_u32 m0, s61, %d\n" % (xb + 4096) if e == 4 else ("s_add_u32 m0, s61, %d\ns_lshl_b32 s%d, s%d, 7\n" % (xb, sHo, sHk) if e == 0 else "")
        o.append(pre_ + "buffer_load_dwordx4 v%d, %s, s%d offen offset:%d%s lds" % (vHX + e, SR(S_X), sHo, (e & 3) * 1024, POL[OPT["polx"]]))
    return [(x, "h%d" % j) for x in o]

def head(a, role):
    att = role != "X"; ldr = role != "A"
    NRT = 4 if ldr else 5; T0 = 5 if ldr else 0
    vHW, vHX = 224, 248
    vA1, vA2, vBx = 231, 232, 233
    cA1, cA2, cBx = 234, 235, 236
    ACC = lambda t, d: vr(16 + 8 * t + 4 * d, 4)
    BF = lambda u, t: vr(56 + 20 * u + 4 * t, 4)
    AF = lambda u, d: 96 + 8 * u + 4 * d
    NX = 5 if att else 4
    if not OPT["fast0"]: loader_setup(a)
    def stage_ops(j): return stage_ops_(j, NX) if ldr else []
    def stage_load(j):
        for x, t in stage_ops(j): a(x, tag=t)
    if not OPT["fast0"]:
        srds_first(a)
        stage_load(0)
    elif role == "B":
        x, t = stage_ops(0)[8]; a(x, tag=t)
    if OPT["pst"]: a("s_memrealtime s[70:71]")
    if role == "A" and OPT["ptouch"]:
        a("s_cmp_lg_u32 s%d, 0\ns_cbranch_scc1 L_nopt" % sW)
        a("s_lshl_b32 s%d, s%d, 4\ns_add_u32 s%d, s%d, s%d\ns_lshl_b32 s%d, s%d, 19" % (sT, sB, sT, sT, sJJ, sT, sT))
        a("v_mov_b32 v240, s%d" % sT)
        a.autowait = False
        a("global_load_dword v244, v240, s[82:83]\nglobal_load_dword v245, v240, s[84:85]")
        a("v_and_b32 v240, 1, v12\nv_lshlrev_b32 v241, 21, v240")
        a("global_load_dword v246, v241, s[88:89]\nglobal_load_dword v247, v241, s[96:97]")
        a("v_add_u32 v241, s%d, v240\nv_add_u32 v242, s%d, v240\nv_and_b32 v243, 2, v12\nv_cmp_eq_u32 vcc, 0, v243" % (sG, sGo))
        a("v_cndmask_b32 v241, v241, v242, vcc\ns_mov_b32 s%d, %d\nv_mul_lo_u32 v241, s%d, v241" % (sT, OSTR, sT))
        a("v_mov_b32 v242, 0x%x\nv_cmp_lt_u32 vcc, 3, v12\nv_cndmask_b32 v241, v241, v242, vcc" % (FLAG_OFF + 8192))
        a("global_load_dword v248, v241, s[92:93]")
        a.autowait = True
        a.label("L_nopt")
    srds_rest(a)
    a("v_and_b32 v%d, 3, v12\nv_lshlrev_b32 v%d, 3, v%d" % (vA1, vA1, vA1))
    a("v_lshl_add_u32 v%d, v15, 6, v%d" % (vA1, vA1))
    a("v_and_b32 v%d, 1, v13\nv_lshl_add_u32 v%d, v%d, 5, v%d" % (vA2, vA1, vA2, vA1))
    a("v_lshl_add_u32 v%d, v13, 10, v%d" % (vVa, vA1))
    a("v_lshl_add_u32 v%d, v13, 11, v%d" % (vA1, vA1))
    a("s_and_b32 s%d, s%d, 3\ns_lshl_b32 s%d, s%d, 8" % (sT, sW, sT, sT))
    a("v_add_u32 v%d, s%d, v%d\nv_xor_b32 v%d, 32, v%d" % (vA1, sT, vA1, vA2, vA1))
    a("v_lshrrev_b32 v%d, 3, v14\nv_lshlrev_b32 v%d, 1, v%d\nv_xor_b32 v%d, v%d, v13\nv_lshlrev_b32 v%d, 4, v%d" % (vBx, vBx, vBx, vBx, vBx, vBx, vBx))
    a("v_and_b32 v%d, 3, v14\nv_lshl_add_u32 v%d, v%d, 6, v%d" % (cBx, vBx, cBx, vBx))
    a("v_lshl_add_u32 v%d, v15, 9, v%d" % (vBx, vBx))
    if att:
        a("s_lshl_b32 s%d, s%d, 13\ns_add_u32 s%d, s%d, %d" % (sT, sKg, sT, sT, 2 * SLOT))
        a("v_add_u32 v%d, s%d, v%d\nv_add_u32 v%d, 16384, v%d\nv_xor_b32 v%d, 32, v%d" % (vVa, sT, vVa, vVa, vVa, vVb, vVa))
        a("v_lshlrev_b32 v%d, 10, v15" % vK)
        a("v_lshl_add_u32 v%d, v%d, 6, v%d" % (vK, cBx, vK))
        a("v_lshrrev_b32 v%d, 1, v13\nv_and_b32 v%d, 1, v13\nv_lshl_or_b32 v%d, v%d, 1, v%d" % (cA1, cA2, cA1, cA2, cA1))
        a("v_lshrrev_b32 v%d, 3, v14\nv_xor_b32 v%d, v%d, v%d" % (cA2, cA1, cA1, cA2))
        a("v_lshl_add_u32 v%d, v%d, 4, v%d\nv_add_u32 v%d, s%d, v%d" % (vK, cA1, vK, vK, sT, vK))
        for r in range(4): a("v_mov_b32 v%d, 0x3f803f80" % (vONE + r))
    else:
        a("s_cmp_eq_u32 s%d, 6" % sW)
        if OPT["kvc"]:
            a("s_cselect_b32 s60, 0, 128\ns_cselect_b32 s%d, 0, 8192" % sKg)
            a("v_mov_b32 v%d, v%d\nv_xor_b32 v%d, 16, v%d\nv_xor_b32 v%d, 16, v%d" % (vD + 1, vD, vD + 2, vD, vD + 3, vD))
            a("v_xor_b32 v%d, s60, v%d\nv_xor_b32 v%d, 32, v%d\nv_mov_b32 v%d, v%d\nv_mov_b32 v%d, v%d" % (vD + 4, vD, vD + 5, vD + 4, vD + 6, vD + 4, vD + 7, vD + 5))
        else:
            a("s_cselect_b32 s%d, 0, 32\ns_cselect_b32 s%d, 16, 0\ns_cselect_b32 s%d, 16, 32\ns_cselect_b32 s60, 0, 128\ns_cselect_b32 s%d, 0, 16384" % (sT, sT2, sT3, sKg))
            a("v_xor_b32 v%d, s%d, v%d\nv_xor_b32 v%d, s%d, v%d\nv_xor_b32 v%d, s%d, v%d" % (vD + 1, sT, vD, vD + 2, sT2, vD, vD + 3, sT3, vD))
            for q in range(4): a("v_xor_b32 v%d, s60, v%d" % (vD + 4 + q, vD + q))
        a("v_add_u32 v1, %d, v%d" % (XB[0], vBx))
    a("v_mov_b32 v238, %s\nv_mov_b32 v239, %s" % (f32(CSCALE), f32(CSCALE)))
    def reads(u):
        tr = lambda d: ["ds_read_b64_tr_b16 %s, v%d offset:%d" % (vr(AF(u, d) + 2 * rd, 2), cA2 if d else cA1, u * 8192 + rd * 1024) for rd in range(2)]
        return tr(0) + ["ds_read_b128 %s, v%d offset:%d" % (BF(u, t), cBx, (T0 + t) * 2048 + u * 256) for t in range(NRT)] + tr(1)
    def mfmas(u, first):
        return ["%s %s, %s, %s, %s" % (MF, ACC(t, d), vr(AF(u, d), 4), BF(u, t), "0" if first else ACC(t, d)) for d in range(2) for t in range(NRT)]
    if OPT["pst"]: a("s_memrealtime s[72:73]")
    stage_load(1)
    if OPT["pst"]: a("s_memrealtime s[74:75]")
    stamp(a, 1)
    def mix(ms, rs, ds=()):
        di = 0; ri = 0
        for k, x in enumerate(ms):
            a(x)
            for _ in range(2):
                if ri < len(rs): a(rs[ri]); ri += 1
            while di < len(ds) and di * len(ms) <= k * len(ds):
                a(ds[di][0], tag=ds[di][1]); di += 1
        for x, t in ds[di:]: a(x, tag=t)
    if ldr and OPT["hprio"]: a("s_setprio %d" % OPT["hprio"])
    for j in range(8):
        a.wait_vm_tag("h%d" % j)
        if OPT["pst"] and j == 0: a("s_memrealtime s[76:77]")
        a("v_add_u32 v%d, %d, v%d\nv_add_u32 v%d, %d, v%d\nv_add_u32 v%d, %d, v%d" % (cA1, HW[j % HD], vA1, cA2, HW[j % HD], vA2, cBx, HX[j % HD], vBx))
        a("s_waitcnt lgkmcnt(0)")
        a("s_barrier")
        if j < 7: stamp(a, j + 1, hs=True)
        d = stage_ops(j + HD - 1) if j + HD - 1 < 8 else []
        if j == 0 and HD == 4: d = stage_ops(2) + d
        cut = (len(d) + 1) // 2
        if j == 0:
            for x in reads(0): a(x)
            for x, t in d[:cut]: a(x, tag=t)
        else: mix(mfmas(1, False), reads(0), d[:cut])
        a("s_waitcnt lgkmcnt(0)")
        mix(mfmas(0, j == 0), reads(1), d[cut:])
        if not att and j == OPT["kv0"]: kv_tile(a, 0)
        if not att and j == 6:
            for x, t in kv_ops(1)[:OPT["k1a"]]: a(x, tag=t)
        if not att and j == 7:
            for x, t in kv_ops(1)[OPT["k1a"]:OPT["k1a"] + OPT["k1b"]]: a(x, tag=t)
    for x in mfmas(1, False): a(x)
    a("s_and_b32 s60, s%d, 3\ns_lshl_b32 s60, s60, 10" % sW)
    a("v_lshlrev_b32 v%d, 4, v12\nv_add_u32 v%d, s60, v%d" % (cBx, cBx, cBx))
    a("v_add_u32 v%d, %d, v%d\nv_add_u32 v%d, %d, v%d" % (cA1, Q1A, cBx, cA2, Q1C, cBx))
    for t in range(NRT): q_pack(a, 16 + 8 * t, "v[238:239]")
    for t in range(NRT): q_swap(a, 16 + 8 * t)
    for t in range(NRT):
        tg = T0 + t
        a("ds_write_b128 v%d, %s offset:%d" % (cA1 if tg < 6 else cA2, vr(16 + 8 * t, 4), (tg if tg < 6 else tg - 6) * 4096))
    if ldr and OPT["hprio"]: a("s_setprio 0")
    a("s_waitcnt lgkmcnt(0)")
    a("s_barrier")
    if not att:
        for x, t in kv_ops(1)[OPT["k1a"] + OPT["k1b"]:]: a(x, tag=t)
    stamp(a, 2)

def ACC(t, d):
    i = t * 4 + d
    return 16 + 4 * i if i < 28 else 176 + 4 * (i - 28)

def pair_signal(a):
    a("s_add_u32 s%d, s%d, 1" % (sBar, sBar))
    a("v_mov_b32 v%d, s%d" % (vT, sBar))
    a("ds_write_b32 v%d, v%d" % (vX3, vT))

def pair_wait(a, name, reads):
    a.label(name)
    a("ds_read_b32 v%d, v%d" % (vT, vX4))
    for x in reads: a(x)
    a("s_waitcnt lgkmcnt(%d)" % len(reads))
    a("v_readfirstlane_b32 s%d, v%d" % (sT, vT))
    a("s_cmp_ge_u32 s%d, s%d" % (sT, sBar))
    a("s_cbranch_scc1 %s_ok" % name)
    a("s_waitcnt lgkmcnt(0)")
    if OPT["sbs"]: a("s_sleep %d" % OPT["sbs"])
    a("s_branch %s" % name)
    a.label(name + "_ok")
    a("s_waitcnt lgkmcnt(0)")

def publish(a, name, t0, off=4, last=5, bits=PH2):
    a("s_waitcnt vmcnt(0)")
    a("s_mov_b64 exec, 1")
    a("v_mov_b32 v%d, %d\nv_mov_b32 v%d, 1" % (t0 + 2, CNT, t0 + 1))
    a("ds_add_rtn_u32 v%d, v%d, v%d offset:%d" % (t0, t0 + 2, t0 + 1, off))
    a("ds_read_b32 v%d, v%d offset:8" % (t0 + 1, t0 + 2))
    a("s_waitcnt lgkmcnt(0)")
    a("v_readfirstlane_b32 s%d, v%d" % (sT, t0))
    a("s_cmp_lg_u32 s%d, %d" % (sT, last))
    a("s_cbranch_scc1 %s" % name)
    a("v_or_b32 v%d, 0x%x, v%d" % (t0 + 1, bits, t0 + 1))
    a("s_lshl_b32 s%d, s%d, 2" % (sT2, sJJ))
    a("v_mov_b32 v%d, s%d" % (t0, sT2))
    a("buffer_store_dword v%d, v%d, %s, 0 offen%s" % (t0 + 1, t0, SR(S_FL), POL[OPT["polf"]] if bits == PH2 else " sc1"))
    if OPT["stamps"]:
        a("s_memrealtime s[88:89]\ns_add_u32 s96, s100, 0x%x\ns_addc_u32 s97, s101, 0\ns_mov_b32 s98, 0x100000\ns_mov_b32 s99, 0x20000" % (STAMP_OFF + 512 * 64))
        a("s_lshl_b32 s%d, s2, 6\ns_waitcnt lgkmcnt(0)\nv_mov_b32 v%d, s%d\nv_mov_b32 v%d, s88\nv_mov_b32 v%d, s89" % (sT, t0 + 3, sT, t0, t0 + 1))
        a("buffer_store_dwordx2 %s, v%d, s[96:99], 0 offen offset:%d" % (vr(t0, 2), t0 + 3, 0 if bits == PH2 else 8))
    a.label(name)
    a("s_mov_b64 exec, -1")

def attention(a):
    NT = 3; TL = 2
    a("s_waitcnt vmcnt(0)")
    a("v_lshlrev_b32 v%d, 4, v12" % vX1)
    a("s_mul_i32 s%d, s%d, %d\ns_add_u32 s%d, s%d, %d" % (sT, sRho, 12 * KB, sT, sT, Q1A))
    a("s_cmp_eq_u32 s%d, 2\ns_cselect_b32 s%d, %d, s%d" % (sRho, sT, Q1C, sT))
    a("v_add_u32 v%d, s%d, v%d" % (vX2, sT, vX1))
    for t in range(3):
        for s in range(4): a("ds_read_b128 %s, v%d offset:%d" % (Q(t, s), vX2, t * 4096 + s * 1024))
    if OPT["pair"]: a("s_xor_b32 s%d, s%d, 1" % (sPart, sW))
    else: a("s_add_u32 s%d, s%d, 3\ns_cmp_ge_u32 s%d, 6\ns_cselect_b32 s%d, 6, 0\ns_sub_u32 s%d, s%d, s%d" % (sPart, sW, sPart, sT2, sPart, sPart, sT2))
    a("s_lshl_b32 s%d, s%d, 2\ns_add_u32 s%d, s%d, %d\ns_lshl_b32 s%d, s%d, 2\ns_add_u32 s%d, s%d, %d" % (sT, sW, sT, sT, PFL, sT2, sPart, sT2, sT2, PFL))
    a("v_mov_b32 v%d, s%d\nv_mov_b32 v%d, s%d" % (vX3, sT, vX4, sT2))
    a("s_mov_b32 s%d, 0x40004000\ns_mov_b32 s%d, %s" % (sThr, sFl, f32(THR)))
    a("s_mov_b32 s%d, 0\ns_mov_b32 s%d, 0\ns_mov_b32 s%d, 2" % (sItem, sBar, sSlot))
    a("s_mul_i32 s%d, s%d, %d\ns_add_u32 s%d, s%d, %d" % (sExch, sRho, 12 * KB, sExch, sExch, Q2B))
    a("s_mov_b32 s%d, 0x%x\ns_mov_b32 s%d, %d" % (sNeg, (-2 * SLOT) & 0xffffffff, sPos, SLOT))
    a("s_lshl_b32 s%d, s%d, 3\ns_lshl_b32 s%d, s%d, 1\ns_add_u32 s%d, s%d, s%d\ns_mul_i32 s%d, s%d, 9" % (sT, sJJ, sT2, sKg, sT, sT, sT2, sT, sT))
    a("s_mul_i32 s%d, s%d, 3\ns_add_u32 s%d, s%d, s%d\ns_lshl_b32 s%d, s%d, 10\ns_add_u32 s%d, s%d, %d" % (sT2, sRho, sT, sT, sT2, sOoff, sT, sOoff, sOoff, 36 * KB))
    cstamp(a, 0)
    a.label("L_item")
    if OPT["ypr"] == 1: a("s_setprio 0")
    if OPT["ypr"] == 2: a("s_setprio 1")
    a("s_mov_b32 s%d, 0" % sCnt)
    a("s_waitcnt lgkmcnt(0)")
    Ga, Gb, Gc = 0, 4, 8
    def kread(kt, s):
        slot = (Gc + s) if kt == 0 else (Gb + s)
        return "ds_read_b128 %s, v%d offset:%d" % (vr(F(slot), 4), vK, kt * 4096 + s * 256)
    def vslot(dt): return (Ga + dt) if dt < 4 else (Gb + dt - 4)
    def vread(dt, rd):
        return "ds_read_b64_tr_b16 %s, v%d offset:%d" % (vr(F(vslot(dt)) + 2 * rd, 2), vVb if dt & 1 else vVa, rd * 4096 + (dt >> 1) * 256)
    def pv(t, dt, z=False): return "%s %s, %s, %s, %s" % (MF, O(t, dt), vr(F(vslot(dt)), 4), S(t, 0), "0" if z else O(t, dt))
    def lsum(t, z=False): return "%s %s, %s, %s, %s" % (MF, L(t), vr(vONE, 4), S(t, 0), "0" if z else L(t))
    def qk(t, kt, s, z=False):
        slot = (Gc + s) if kt == 0 else (Gb + s)
        return "%s %s, %s, %s, %s" % (MF, S(t, kt), vr(F(slot), 4), Q(t, s), ("0" if z else M(t)) if s == 0 else S(t, kt))
    EXP = lambda r: "v_exp_f32 v%d, v%d" % (r, r)
    def CVT(b, r): return "v_cvt_pk_bf16_f32 v%d, v%d, v%d" % (b + r, b + 2 * r, b + 2 * r + 1)
    def rowmax(b):
        return ["v_max3_f32 v%d, v%d, v%d, v%d" % (vT, b, b + 1, b + 2), "v_max3_f32 v%d, v%d, v%d, v%d" % (vT + 1, b + 3, b + 4, b + 5),
                "v_max3_f32 v%d, v%d, v%d, v%d" % (vT, vT, b + 6, b + 7), "v_max_f32 v%d, v%d, v%d" % (vT, vT, vT + 1),
                "v_mov_b32 v%d, v%d" % (vT + 1, vT), "v_permlane16_swap_b32 v%d, v%d" % (vT, vT + 1), "v_max_f32 v%d, v%d, v%d" % (vT, vT, vT + 1),
                "v_mov_b32 v%d, v%d" % (vT + 1, vT), "v_permlane32_swap_b32 v%d, v%d" % (vT, vT + 1), "v_max_f32 v%d, v%d, v%d" % (vT, vT, vT + 1)]
    def sm(t):
        b = vS + 8 * t
        g = [[EXP(b + r)] for r in range(4)] + [[CVT(b, 0), CVT(b, 1)]] + [[EXP(b + r)] for r in range(4, 8)] + [[CVT(b, 2), CVT(b, 3)]]
        g.append(["v_or3_b32 v%d, v%d, v%d, v%d" % (b + 4, b, b + 1, b + 2), "v_bitop3_b32 v%d, v%d, v%d, s%d bitop3:0xa8" % (b + 4, b + 4, b + 3, sThr)])
        g.append(["v_cmp_ne_u32 vcc, 0, v%d" % (b + 4)])
        return g
    def step(first):
        mf = []; fill = {}
        def put(idx, ops): fill.setdefault(idx, []).extend(ops)
        if not first: mf += [pv(TL, dt) for dt in (4, 5, 6, 7)] + [pv(TL, dt) for dt in (0, 1, 2, 3)] + [lsum(TL)]
        q0 = len(mf)
        qk_end = {}
        for t in range(NT):
            for kt in ((0, 1) if t < TL else (1, 0)):
                mf += [qk(t, kt, s, first) for s in range(4)]
                if t == TL and kt == 1: v47_at = len(mf) - 1
            qk_end[t] = len(mf) - 1
        pv_start = {}
        for t in range(TL):
            pv_start[t] = len(mf)
            mf += [pv(t, dt, first) for dt in range(4)] + [lsum(t, first)] + [pv(t, dt, first) for dt in range(4, 8)]
        n = len(mf)
        pre = [kread(0, s) for s in range(4)]
        if first:
            pre += [kread(1, s) for s in range(4)] + [vread(dt, rd) for dt in range(4) for rd in range(2)]
            pre += ["v_mov_b64 %s, 0" % vr(r, 2) for r in list(range(vO + 64, vO + 96, 2)) + [vL + 8, vL + 10]]
            pre += ["WAIT " + vr(F(Gc), 16)]
        else:
            for s in range(4): put(s, [kread(1, s)])
            for dt in range(4): put(4 + dt, [vread(dt, 0), vread(dt, 1)])
            put(8, ["WAIT " + vr(F(Gc), 16)])
        put(q0 + 3, ["WAIT " + vr(F(Gb), 16), "s_add_u32 s%d, s%d, 1" % (sSlot, sSlot)])
        put(q0 + 4, ["s_cmp_eq_u32 s%d, 3" % sSlot, "s_cselect_b32 s%d, s%d, s%d" % (sDelta, sNeg, sPos)])
        put(q0 + 5, ["s_cselect_b32 s%d, 0, s%d" % (sSlot, sSlot), "s_add_u32 s%d, s%d, 1" % (sCnt, sCnt)])
        for dt in range(4, 8): put(v47_at - 3 + (dt - 4), [vread(dt, 0), vread(dt, 1)])
        adv = ["v_add_u32 v%d, s%d, v%d" % (r, sDelta, r) for r in (vK, vVa, vVb)]
        tail = []
        if first:
            for t in range(NT):
                b = vS + 8 * t
                ops = rowmax(b) + ["v_add_f32 v%d, s%d, v%d" % (vT, sFl, vT)]
                ops += ["v_sub_f32 v%d, v%d, v%d" % (b + r, b + r, vT) for r in range(8)]
                ops += ["v_sub_f32 v%d, 0, v%d" % (vM + 4 * t + r, vT) for r in range(4)]
                ops += [EXP(b + r) for r in range(8)] + [CVT(b, r) for r in range(4)]
                lo = max(qk_end[t] + 3, [0, 21, 32][t]); hi = [20, 31, n - 1][t]
                for k, x in enumerate(ops): put(lo + k * (hi - lo + 1) // len(ops), [x])
            tail = adv
        else:
            groups = [(t, g) for t in range(NT) for g in sm(t)]
            lo = OPT["g0"]; span = n - lo
            for k, (t, g) in enumerate(groups):
                idx = lo + (k * span) // len(groups)
                assert t == TL or idx + 1 < pv_start[t], (t, idx)
                put(idx, g)
                if k % 12 == 11:
                    br = "s_cbranch_vccnz L_rare%d\nL_back%d:" % (t, t)
                    if t == 0: put(idx, [adv[0]])
                    if t == 1: put(idx, [adv[1]])
                    if t < TL: fill.setdefault(idx + 1, []).insert(0, br)
                    else: tail = [adv[2], "s_cmp_lt_u32 s%d, 16" % sCnt, br]
        put(pv_start[0] - 1, ["WAIT " + vr(F(Ga), 16)])
        put(pv_start[0] + 4, ["WAIT " + vr(F(Gb), 16)])
        a("s_barrier")
        if first and OPT["bst"] == 0:
            a("s_cmp_lg_u32 s%d, 1\ns_cbranch_scc1 L_bsx\ns_memrealtime s[76:77]\nL_bsx:" % sItem)
        for x in pre: a(x)
        for k, m in enumerate(mf):
            a(m)
            for x in fill.get(k, []): a(x)
        if not first:
            for _ in range(OPT["xmf"]): a("%s %s, %s, %s, %s" % (MF, vr(vT, 4), vr(F(0), 4), S(1, 0), vr(vT, 4) if _ else "0"))
        for x in tail: a(x)
    step(True)
    a.raw(".p2align 6")
    a.label("L_loop")
    step(False)
    a("s_cbranch_scc1 L_loop")
    a.label("L_bnd")
    if OPT["ypr"] == 1: a("s_cmp_lt_u32 s%d, 4\ns_cbranch_scc1 L_ypr\ns_setprio 1\nL_ypr:" % sW)
    if OPT["stamps"]:
        a("s_cmp_eq_u32 s%d, 0\ns_cbranch_scc0 L_st4" % sItem)
        stamp(a, 3); cstamp(a, 1)
        a("s_branch L_st4b")
        a.label("L_st4"); stamp(a, 4)
        a.label("L_st4b")
    if OPT["ypr"] == 2: a("s_setprio 0")
    bstamp(a, 1)
    a("s_cmp_eq_u32 s%d, 0" % sItem)
    a("s_cbranch_scc0 L_nomx")
    if OPT["mxf"]:
        a("s_mov_b64 exec, 1")
        a("v_mov_b32 v%d, %d\nv_mov_b32 v%d, 1" % (vT + 2, CNT, vT + 1))
        a("ds_add_u32 v%d, v%d offset:20" % (vT + 2, vT + 1))
        a.label("L_q2w")
        a("ds_read_b32 v%d, v%d offset:24" % (vT, vT + 2))
        a("s_waitcnt lgkmcnt(0)")
        a("v_readfirstlane_b32 s%d, v%d" % (sT, vT))
        a("s_cmp_lt_u32 s%d, 2\ns_cbranch_scc1 L_q2w" % sT)
        a("s_mov_b64 exec, -1")
    else:
        a("s_barrier")
    a("v_add_u32 v%d, s%d, v%d" % (vX2, sExch, vX1))
    for t in range(3):
        for s in range(4): a("ds_read_b128 %s, v%d offset:%d" % (Q(t, s), vX2, t * 4096 + s * 1024))
    pair_signal(a)
    a.label("L_nomx")
    bstamp(a, 2)
    a("s_lshl_b32 s%d, s%d, 12\ns_add_u32 s%d, s%d, %d" % (sT, sW, sT, sT, EX1))
    a("v_add_u32 v%d, s%d, v%d" % (vX2, sT, vX1))
    def send(t, areg, off):
        o = []
        for h in range(2):
            b = vO + 32 * t + 16 + 8 * h
            o += ["v_cvt_pk_bf16_f32 v%d, v%d, v%d" % (b + r, b + 2 * r, b + 2 * r + 1) for r in range(4)]
            o.append("ds_write_b128 v%d, %s offset:%d" % (areg, vr(b, 4), off + h * 1024))
        return o
    fin = [lsum(TL)] + [pv(TL, dt) for dt in (4, 5, 6, 7, 0, 1, 2, 3)]
    ex = send(0, vX2, 0) + send(1, vX2, 2048)
    for k, m in enumerate(fin):
        a(m)
        for x in ex[k * len(ex) // 9:(k + 1) * len(ex) // 9]: a(x)
    a("v_and_b32 v%d, 15, v0\nv_lshlrev_b32 v%d, 3, v%d" % (vT + 2, vT + 2, vT + 2))
    a("s_mul_i32 s%d, s%d, 384\ns_add_u32 s%d, s%d, %d" % (sT, sW, sT, sT, MLB))
    a("v_add_u32 v%d, s%d, v%d" % (vT + 3, sT, vT + 2))
    for t in range(3):
        a("v_mov_b32 v%d, v%d" % (vM + 4 * t + 1, vL + 4 * t))
        a("ds_write_b64 v%d, %s offset:%d" % (vT + 3, vr(vM + 4 * t, 2), t * 128))
    a("s_lshl_b32 s%d, s%d, 11\ns_add_u32 s%d, s%d, s%d" % (sT, sKg, sT, sT, sExch))
    a("v_add_u32 v%d, s%d, v%d" % (vX2, sT, vX1))
    a("s_waitcnt lgkmcnt(0)")
    pair_wait(a, "L_pw0", [])
    bstamp(a, 3)
    for x in send(2, vX2, 0): a(x)
    pair_signal(a)
    a("s_mul_i32 s%d, s%d, 384\ns_add_u32 s%d, s%d, %d" % (sT2, sPart, sT2, sT2, MLB))
    a("v_add_u32 v%d, s%d, v%d" % (vT + 3, sT2, vT + 2))
    a("v_xor_b32 v%d, 2048, v%d" % (vX2, vX2))
    a("s_lshl_b32 s%d, s%d, 12\ns_add_u32 s%d, s%d, %d" % (sT, sPart, sT, sT, EX1))
    a("v_add_u32 v%d, s%d, v%d" % (vT + 2, sT, vX1))
    a("s_waitcnt lgkmcnt(0)")
    rd = ["ds_read_b64 %s, v%d offset:%d" % (vr(vM + 4 * t + 2, 2), vT + 3, t * 128) for t in range(3)]
    for t in range(3):
        for h in range(2):
            rd.append("ds_read_b128 %s, v%d offset:%d" % (vr(vS + 8 * t + 4 * h, 4), vT + 2 if t < 2 else vX2, (t * 2048 if t < 2 else 0) + h * 1024))
    pair_wait(a, "L_pw", rd)
    bstamp(a, 4)
    for t in range(3):
        m = vM + 4 * t; l = vL + 4 * t
        a("v_min_f32 v%d, v%d, v%d" % (l, m, m + 2))
        a("v_sub_f32 v%d, v%d, v%d\nv_sub_f32 v%d, v%d, v%d" % (l + 1, l, m, l + 2, l, m + 2))
        a("v_exp_f32 v%d, v%d\nv_exp_f32 v%d, v%d" % (l + 1, l + 1, l + 2, l + 2))
        a("v_mul_f32 v%d, v%d, v%d" % (l + 3, l + 1, m + 1))
        a("v_fma_f32 v%d, v%d, v%d, v%d" % (l + 3, l + 2, m + 3, l + 3))
        a("v_rcp_f32 v%d, v%d" % (l, l + 3))
        a("v_mul_f32 v%d, v%d, v%d\nv_mul_f32 v%d, v%d, v%d" % (l + 3, l + 2, l, l + 2, l + 2, l))
        a("v_mul_f32 v%d, v%d, v%d\nv_mov_b32 v%d, v%d" % (l + 1, l + 1, l, l, l + 1))
    def combine(out):
        for t in range(3):
            l = vL + 4 * t
            for h in range(2):
                b = vO + 32 * t + 8 * h; u = b + 16; pk = vS + 8 * t + 4 * h
                for r in range(4):
                    a("v_lshlrev_b32 v%d, 16, v%d\nv_and_b32 v%d, 0xffff0000, v%d" % (u + 2 * r, pk + r, u + 2 * r + 1, pk + r))
                for r in range(0, 8, 2): a("v_pk_mul_f32 %s, %s, %s" % (vr(b + r, 2), vr(b + r, 2), vr(l, 2)))
                for r in range(0, 8, 2): a("v_pk_fma_f32 %s, %s, %s, %s" % (vr(b + r, 2), vr(u + r, 2), vr(l + 2, 2), vr(b + r, 2)))
                for r in range(4): a("v_cvt_pk_bf16_f32 v%d, v%d, v%d" % (pk + r, b + 2 * r, b + 2 * r + 1))
                out(t, h, pk)
    a("s_cmp_eq_u32 s%d, 0" % sItem)
    a("s_cbranch_scc0 L_att_done")
    combine(lambda t, h, pk: a("ds_write_b128 v%d, %s offset:%d" % (vT + 2 if t < 2 else vX2, vr(pk, 4), (t * 2048 if t < 2 else 0) + h * 1024)))
    bstamp(a, 5)
    a("s_mov_b32 s%d, 1\ns_lshl_b32 s%d, s%d, 12\ns_add_u32 s%d, s%d, %d" % (sItem, sExch, sRho, sExch, sExch, EX2))
    a("s_waitcnt lgkmcnt(0)")
    a("s_branch L_item")
    a.vm = []; a.lgkm = []
    for t in range(NT):
        b = vS + 8 * t
        a.label("L_rare%d" % t)
        a("s_nop 15")
        a("v_subrev_u32 v%d, s%d, v%d" % (vX2, sDelta, vK))
        for kt in range(2):
            for s in range(4):
                a("ds_read_b128 %s, v%d offset:%d" % (vr(vT, 4), vX2, kt * 4096 + s * 256))
                a("s_waitcnt lgkmcnt(0)")
                a("%s %s, %s, %s, %s" % (MF, S(t, kt), vr(vT, 4), Q(t, s), M(t) if s == 0 else S(t, kt)))
                a("s_nop 3")
        for x in rowmax(b): a(x)
        a("v_add_f32 v%d, s%d, v%d\nv_max_f32 v%d, 0, v%d" % (vT, sFl, vT, vT, vT))
        for r in range(8): a("v_sub_f32 v%d, v%d, v%d" % (b + r, b + r, vT))
        for r in range(4): a("v_sub_f32 v%d, v%d, v%d" % (vM + 4 * t + r, vM + 4 * t + r, vT))
        a("v_exp_f32 v%d, -v%d" % (vT + 1, vT))
        for r in range(4): a("v_mul_f32 v%d, v%d, v%d" % (vL + 4 * t + r, vL + 4 * t + r, vT + 1))
        for r in range(32): a("v_mul_f32 v%d, v%d, v%d" % (vO + 32 * t + r, vO + 32 * t + r, vT + 1))
        for r in range(8): a(EXP(b + r))
        for r in range(4): a(CVT(b, r))
        a("s_nop 3")
        a("s_branch L_back%d" % t)
    a.label("L_att_done")
    a("s_mov_b64 exec, 1")
    a("v_mov_b32 v%d, %d\nv_mov_b32 v%d, 1" % (vT + 2, CNT, vT + 1))
    a("ds_add_u32 v%d, v%d" % (vT + 2, vT + 1))
    a("s_mov_b64 exec, -1")
    combine(lambda t, h, pk: a("s_add_u32 s%d, s%d, %d\nbuffer_store_dwordx4 %s, v%d, %s, s%d offen%s" % (sT, sOoff, (h * 9 + t) * 1024, vr(pk, 4), vX1, SR(S_O), sT, POL[OPT["pols2"]])))
    bstamp(a, 5)
    a("s_cmp_lt_u32 s%d, 2" % sW)
    a("s_cbranch_scc1 L_join")
    publish(a, "L_pub_x", vT)
    a("s_endpgm")
    a.label("L_join")
    a("s_lshl_b32 s%d, s%d, 14" % (sBlkP, sW))
    a("s_cmp_eq_u32 s%d, 0\ns_cselect_b32 s%d, %d, 0\ns_cselect_b32 s%d, 0, %d\ns_add_u32 s%d, s%d, s%d" % (sW, sBlkD, 64 * KB, sT, 116 * KB, sBlkD, sBlkD, sT))
    op_setup(a, True)
    for i in range(36): a("v_mov_b64 %s, 0\nv_mov_b64 %s, 0" % (vr(ACC(i // 4, i % 4), 2), vr(ACC(i // 4, i % 4) + 2, 2)))
    publish(a, "L_pub_y", 250)
    bstamp(a, 6)
    stamp(a, 5)
    a("v_mov_b32 v250, %d" % CNT)
    a.label("L_w6")
    a("ds_read_b32 v251, v250")
    a("ds_read_b32 v252, v250 offset:8")
    a("s_waitcnt lgkmcnt(0)")
    a("v_readfirstlane_b32 s%d, v251\nv_readfirstlane_b32 s%d, v252" % (sT, sTag))
    a("s_cmp_lt_u32 s%d, 6\ns_cbranch_scc1 L_w6" % sT)
    a("s_or_b32 s%d, s%d, 0x%x" % (sWant, sTag, PHM))
    a("s_branch L_p2")
    a.vm = []; a.lgkm = []

def wo_touch(a, phase, i):
    a("s_lshr_b32 s%d, s%d, 1\ns_and_b32 s%d, s%d, 12\ns_add_u32 s%d, s%d, s%d\ns_lshl_b32 s%d, s%d, 18" % (sT, sB, sT2, sJJ, sT, sT, sT2, sT, sT))
    a("s_and_b32 s%d, s%d, 1\ns_lshl_b32 s%d, s%d, 16\ns_add_u32 s%d, s%d, s%d" % (sT2, sB, sT2, sT2, sT, sT, sT2))
    a("s_and_b32 s%d, s%d, 3\ns_lshl_b32 s%d, s%d, 14\ns_add_u32 s%d, s%d, s%d" % (sT2, sJJ, sT2, sT2, sT, sT, sT2))
    a("s_and_b32 s%d, s%d, 1\ns_lshl_b32 s%d, s%d, 13\ns_add_u32 s%d, s%d, s%d" % (sT2, sW, sT2, sT2, sT, sT, sT2))
    a("s_add_u32 s%d, s%d, %d" % (sT2, sT, phase * 131072))
    a.autowait = False
    a("buffer_load_dword v147, v146, %s, s%d offen" % (SR(S_WO), sT2), tag="x")
    a.autowait = True

def aux_step(a, step, pre=None, extra=None):
    a.wait_vm_tag("t%d" % step)
    a("s_barrier")
    if OPT["sst"] >= 0 and step >= OPT["sst"] and (step - OPT["sst"]) % OPT["sstd"] == 0 and (step - OPT["sst"]) // OPT["sstd"] < 6:
        k_ = 1 + (step - OPT["sst"]) // OPT["sstd"]
        a("s_memrealtime s[%d:%d]" % (64 + 2 * k_, 65 + 2 * k_))
    if OPT["ck"] and step in (1, 8, 15, 31):
        k_ = (1, 8, 15, 31).index(step)
        a("s_memrealtime s[%d:%d]\ns_memtime s[%d:%d]" % (64 + 4 * k_, 65 + 4 * k_, 66 + 4 * k_, 67 + 4 * k_))
    for ph in (0, 1):
        lst = [int(x) for x in OPT["tw%d" % ph].split(",") if x]
        for i, st_ in enumerate(lst):
            if st_ == step: wo_touch(a, ph, i)
    if pre: pre()
    nxt = step + 2
    if nxt < 32 and nxt != 18: kv_tile(a, nxt)
    if nxt == 18:
        for x, t in kv_ops(18)[OPT["early"]:]: a(x, tag=t)
    if step == OPT["pfm"]:
        a("s_lshl_b32 s%d, s%d, 4\ns_add_u32 s%d, s%d, s%d\ns_lshl_b32 s%d, s%d, 1\ns_and_b32 s%d, s%d, 1\ns_add_u32 s%d, s%d, s%d\ns_lshl_b32 s%d, s%d, 14" % (sT, sB, sT, sT, sJJ, sT, sT, sT2, sW, sT, sT, sT2, sT, sT))
        a.autowait = False
        a("buffer_load_dword v147, v146, %s, s%d offen" % (SR(S_WO), sT), tag="x")
        a("s_add_u32 s%d, s%d, 8192" % (sT, sT))
        a("buffer_load_dword v147, v146, %s, s%d offen" % (SR(S_WO), sT), tag="x")
        a.autowait = True
    if extra: extra()

def aux(a):
    if OPT["auxprio"]: a("s_setprio %d" % OPT["auxprio"])
    a("v_lshlrev_b32 v%d, 2, v14\nv_lshlrev_b32 v146, 7, v12" % vFo)
    a("s_lshl_b32 s%d, s%d, 4\nv_mov_b32 v%d, s%d" % (sT, sG, vDg, sT))
    BF = lambda t: vr(208 + 4 * t, 4)
    AF = lambda d: 156 + 4 * d
    sW2, sXq = 58, 61
    a("s_and_b32 s%d, s%d, 1" % (sT3, sW))
    a("v_lshrrev_b32 v9, 5, v12\nv_lshl_add_u32 v4, v15, 13, v4\nv_lshl_add_u32 v4, v9, 15, v4")
    a("s_lshl_b32 s%d, s%d, 9\ns_lshl_b32 s%d, s%d, 7\ns_add_u32 s%d, s%d, s%d\ns_add_u32 s%d, s%d, 256" % (sT, sJJ, sT2, sT3, sT, sT, sT2, sT, sT))
    a("v_add_u32 v4, s%d, v4" % sT)
    a("v_add_u32 v5, 64512, v4\nv_xor_b32 v5, 32, v5\nv_add_u32 v6, 129024, v4\nv_add_u32 v7, 129024, v5")
    a("s_mul_i32 s%d, s%d, %d\ns_add_u32 s%d, s%d, %d" % (sW2, sT3, 12 * KB, sW2, sW2, W2R))
    a("v_add_u32 v2, s%d, v2\nv_xor_b32 v3, 32, v2" % sW2)
    a("s_lshl_b32 s%d, s%d, 5\nv_xor_b32 v8, s%d, v8\nv_xor_b32 v9, 32, v8" % (sT, sT3, sT))
    a("s_mul_i32 s%d, s%d, 9" % (sXq, sT3))
    a("v_mov_b32 v10, %s\nv_mov_b32 v11, %s" % (f32(CSCALE), f32(CSCALE)))
    def chunk(m): a("s_add_u32 s%d, s%d, %d\ns_and_b32 s%d, s%d, 7" % (sT3, sRot, (6 + m) & 7, sT3, sT3))
    PH = [0]
    def hd(i):
        a("s_add_u32 s%d, s%d, %d\ns_and_b32 s%d, s%d, 3\ns_and_b32 s%d, s%d, 12\ns_add_u32 s%d, s%d, s%d\ns_lshl_b32 s%d, s%d, 3" % (sT3, sJJ, i, sT3, sT3, sT2, sJJ, sT3, sT3, sT2, sT3, sT3))
    def wo_load(n):
        hd(n // 4)
        a("s_lshl_b32 s%d, s%d, 15\ns_add_u32 s%d, s%d, %d\ns_add_u32 m0, s%d, %d" % (sT2, sT3, sT2, sT2, (n & 3) << 15, sW2, (n % 3) * 4096))
        for q in range(4):
            a("buffer_load_dwordx4 v%d, %s, s%d offen offset:%d%s lds" % (4 + q, SR(S_WO), sT2, q * 1024, POL[OPT["polwo"]]), tag="q%d" % n)
    def o_load(m):
        hd(m // 2)
        a("s_and_b32 s%d, s%d, 1\ns_add_u32 s%d, s%d, s%d\ns_add_u32 s%d, s%d, %d\ns_mul_i32 s%d, s%d, 9216\ns_mul_i32 s63, s%d, 9216" % (sT2, sW, sT3, sT3, sT2, sT3, sT3, 2 * (m & 1), sT3, sT3, sT2))
        if OPT["xo"] & 1: a("s_mov_b32 s%d, 0" % sT3)
        for e in range(9):
            if e % 4 == 0: a("s_add_u32 m0, s63, %d\ns_add_u32 s%d, s%d, %d" % (XB[m & 1] + e * 1024, sT2, sT3, e * 1024))
            a("buffer_load_dwordx4 v8, %s, s%d offen offset:%d%s lds" % (SR(S_O), sT2, (e & 3) * 1024, POL[OPT["polo"]]), tag="x%d" % m)
    def w2_load(n):
        if PH[0]: return wo_load(n)
        chunk(n // 2)
        a("s_lshl_b32 s%d, s%d, 19\ns_add_u32 s%d, s%d, %d\ns_add_u32 m0, s%d, %d" % (sT2, sT3, sT2, sT2, (n & 1) << 18, sW2, (n % 3) * 4096))
        for q in range(4):
            a("buffer_load_dwordx4 v%d, %s, s%d offen offset:%d%s lds" % (4 + q, SR(S_WQ), sT2, q * 1024, POL[OPT["polw"]]), tag="q%d" % n)
    def x2_load(m):
        chunk(m)
        a("s_lshl_b32 s%d, s%d, 7\ns_lshl_b32 s%d, s%d, 13\ns_add_u32 s%d, s%d, s%d\ns_lshl_b32 s63, s%d, 10" % (sT3, sT3, sT2, sXq, sT3, sT3, sT2, sXq))
        for e in range(9):
            a("s_add_u32 m0, s63, %d\ns_add_u32 s%d, s%d, %d" % (XB[m & 1] + e * 1024, sT2, sT3, e * 8192))
            a("buffer_load_dwordx4 v%d, %s, s%d offen%s lds" % (8 + (e & 1), SR(S_X), sT2, POL[OPT["polx"]]), tag="x%d" % m)
    AF2 = [172, 244, 248, 252]
    def q2_a(n, alt):
        a.wait_vm_tag("q%d" % n)
        for d in range(4):
            for rd in range(2):
                a("ds_read_b64_tr_b16 %s, v%d offset:%d" % (vr((AF2[d] if alt else AF(d)) + 2 * rd, 2), 3 if d & 1 else 2, (n % 3) * 4096 + rd * (2048 if PH[0] else 512) + (d >> 1) * 256))
    def q2_b(n, t): a("ds_read_b128 %s, v%d offset:%d" % (BF(t), 9 if PH[0] else 1, ((n // 2) & 1) * 18 * KB + (((n & 1) * 9 + t) * 1024 if PH[0] else t * 2048 + (n & 1) * 256)))
    def q2_step(n, fill=(), chain=False, chained=False):
        A_ = (lambda d: AF2[d]) if chained else AF
        if not chained:
            q2_a(n, False)
            for t in range(9): q2_b(n, t)
            a("WAIT " + vr(AF(0), 16))
        else: a("WAIT " + " ".join(vr(r, 4) for r in AF2))
        if n + 3 < 16: w2_load(n + 3)
        if not chained: a("s_waitcnt lgkmcnt(0)")
        fi = 0
        def pack_ops(t):
            o = []
            for h in range(2):
                b = ACC(t, 2 * h)
                o += ["v_mul_f32 v%d, v10, v%d" % (b + r, b + r) for r in range(8)]
                o += ["v_cvt_pk_bf16_f32 v%d, v%d, v%d" % (b + r, b + 2 * r, b + 2 * r + 1) for r in range(4)]
            for h in range(2):
                b = ACC(t, 2 * h)
                o += ["v_permlane16_swap_b32 v%d, v%d" % (b, b + 2), "v_permlane16_swap_b32 v%d, v%d" % (b + 1, b + 3)]
            return o
        lastq = n == 15 and not PH[0]
        if lastq and OPT["p14"]: a("s_setprio %d" % OPT["p14"])
        for t in range(9):
            po = pack_ops(t - 2) if lastq and t >= 2 else []
            for d in range(4):
                c = vr(ACC(t, d), 4)
                a("%s %s, %s, %s, %s" % (MF, c, vr(A_(d), 4), BF(t), "0" if n == 0 else c))
                if chain and d == 3: q2_b(n + 1, t)
                if chain and t == 4 and d == 0: q2_a(n + 1, True)
                i = t * 4 + d
                if i >= 36 - OPT["q2mix"] * len(fill) and (36 - i) % OPT["q2mix"] == 0 and fi < len(fill):
                    a(fill[fi][0], tag=fill[fi][1]); fi += 1
                for x in po[7 * d:7 * d + 7]: a(x)
        assert fi == len(fill)
        if lastq:
            for x in pack_ops(7) + pack_ops(8): a(x)
    sched = {}; n_ = 0
    for i_, c_ in enumerate(OPT["q2s"]):
        sched[i_ + 1] = list(range(n_, n_ + int(c_))); n_ += int(c_)
    assert n_ == 16 and len(OPT["q2s"]) <= 14
    at = {n: s_ for s_, l_ in sched.items() for n in l_}
    xiss = {m: at[2 * (m - 2) + 1] + 1 for m in range(2, 8)}
    for m in xiss: assert at[2 * m] > xiss[m], m
    QW = at[15] + 1
    psched = {}; n_ = 0
    for i_, c_ in enumerate(OPT["ps"]):
        psched[i_ + OPT["p0"]] = list(range(n_, n_ + int(c_))); n_ += int(c_)
    assert n_ == 16 and OPT["p0"] >= 18 and OPT["p0"] + len(OPT["ps"]) <= 31
    pat = {n: s_ for s_, l_ in psched.items() for n in l_}
    oiss = {m: pat[2 * (m - 2) + 1] + 1 for m in range(2, 8)}
    if OPT["od"]: oiss[2] = pat[4] - 1
    for m in oiss: assert pat[2 * m] > oiss[m] > OPT["fl0"], m
    def o1_store():
        a("s_and_b32 s%d, s%d, 1" % (sT3, sW))
        a("s_mul_i32 s%d, s%d, %d\ns_add_u32 s%d, s%d, %d\nv_add_u32 v%d, s%d, v1" % (sT, sT3, 4096 if OPT["pair"] else 3 * 4096, sT, sT, EX1, vA_, sT))
        a("s_lshl_b32 s%d, s%d, 11\ns_add_u32 s%d, s%d, %d\nv_add_u32 v%d, s%d, v1" % (sT, sT3, sT, sT, Q2B, vB_, sT))
        fr = [(i, t, h) for i in range(3) for t in range(3) for h in range(2)]
        for n, (i, t, h) in enumerate(fr):
            if t < 2: a("ds_read_b128 %s, v%d offset:%d" % (vr(16 + 4 * n, 4), vA_, i * (8192 if OPT["pair"] else 4096) + t * 2048 + h * 1024))
            else: a("ds_read_b128 %s, v%d offset:%d" % (vr(16 + 4 * n, 4), vB_, i * 12 * KB + h * 1024))
        a("s_mul_i32 s%d, s%d, %d\ns_mul_i32 s%d, s%d, %d\ns_add_u32 s%d, s%d, %d\ns_sub_u32 s%d, s%d, s%d" % (sT2, sJJ, 8 * 9216, sT3, sT3, 2 * 9216, sT2, sT2, 2 * 9216, sT2, sT2, sT3))
        for n, (i, t, h) in enumerate(fr):
            a("s_add_u32 s%d, s%d, %d" % (sT, sT2, (h * 9 + 3 * i + t) * 1024))
            a("buffer_store_dwordx4 %s, v1, %s, s%d offen%s" % (vr(16 + 4 * n, 4), SR(S_O), sT, POL[OPT["pols"]]), tag="st")
    def pre(step):
        if step == 0:
            for n in range(3): w2_load(n)
        for m in xiss:
            if xiss[m] == step: x2_load(m)
        if step == 17:
            PH[0] = 1
            a("s_and_b32 s%d, s%d, 1\ns_xor_b32 s%d, s%d, 1\ns_mul_i32 s%d, s%d, %d\nv_add_u32 v%d, s%d, v9" % (sT, sW, sT, sT, sT, sT, 18 * KB, vA_, sT))
            for n, (i, t, h) in enumerate([(i, t, h) for i in range(3) for t in range(3) for h in range(2)]):
                a("ds_write_b128 v%d, %s offset:%d" % (vA_, vr(16 + 4 * n, 4), (h * 9 + 3 * i + t) * 1024))
            for n in range(3): w2_load(n)
            a("s_waitcnt lgkmcnt(0)")
        for m in oiss:
            if oiss[m] == step:
                if m % 2 == 0:
                    a.wait_vm_tag("fl")
                    keep = list(a.vm)
                    a.label("L_f%d" % m)
                    ready(a)
                    a("s_add_u32 s%d, s%d, %d\ns_and_b32 s%d, s%d, 3\ns_and_b32 s%d, s%d, 12\ns_add_u32 s%d, s%d, s%d" % (sT3, sJJ, m // 2, sT3, sT3, sT2, sJJ, sT3, sT3, sT2))
                    a("s_bitcmp1_b32 s%d, s%d\ns_cbranch_scc1 L_f%dok" % (sR2, sT3, m))
                    a("s_sleep %d" % OPT["slp"]); a(FLOAD); a("s_waitcnt vmcnt(0)\ns_branch L_f%d" % m)
                    a.label("L_f%dok" % m)
                    a.vm = keep
                o_load(m)
            if m % 2 == 0 and oiss[m] - 1 == step: a(FLOAD, tag="fl")
        ns = (psched if PH[0] else sched).get(step, [])
        ch = OPT["q2p"] and len(ns) == 2 and ns[0] % 2 == 0
        for n in ns:
            if OPT["q2mix"] and n == ns[-1] and step + 2 < 32:
                q2_step(n, kv_ops(step + 2), False, ch); KV_DONE.add(step + 2)
            else: q2_step(n, (), ch and n != ns[-1], ch and n == ns[-1])
        if step == QW:
            a("s_and_b32 s%d, s%d, 1\ns_lshl_b32 s%d, s%d, 11\ns_add_u32 s%d, s%d, %d" % (sT, sW, sT, sT, sT, sT, Q2B))
            a("v_lshlrev_b32 v1, 4, v12\nv_add_u32 v2, s%d, v1" % sT)
            fr = [(t, h) for t in range(9) for h in range(2)]
            for t, h in fr: a("ds_write_b128 v2, %s offset:%d" % (vr(ACC(t, 2 * h), 4), t * 4096 + h * 1024))
            if OPT["mxf"]:
                a("s_mov_b64 exec, 1")
                a("v_mov_b32 v%d, %d\nv_mov_b32 v%d, 1" % (vA_, CNT, vB_))
                a("ds_add_u32 v%d, v%d offset:24" % (vA_, vB_))
                a("s_mov_b64 exec, -1")
            if OPT["p14"]: a("s_setprio %d" % OPT["auxprio"])
        if step == 16 and OPT["st1"]: o1_store()
        if step == OPT["pubat"]:
            a("s_cmp_lg_u32 s%d, 6\ns_cbranch_scc1 L_nopub" % sW)
            a("s_lshl_b32 s%d, s%d, 2\nv_mov_b32 v%d, s%d\nv_mov_b32 v%d, s%d" % (sT, sJJ, vA_, sT, vB_, sTag))
            keep = list(a.vm)
            a("buffer_store_dword v%d, v%d, %s, 0 offen sc1" % (vB_, vA_, SR(S_FL)))
            a.vm = keep
            a.label("L_nopub")
    def extra(step):
        if step == 0:
            a("buffer_load_dword v%d, v%d, %s, 0 offen sc1" % (vFl, vFo, SR(S_FL)), tag="fl")
        if step == 3:
            cstamp(a, 0)
            a("s_lshl_b32 s%d, s%d, 3\ns_add_u32 s%d, s%d, s%d\ns_cmp_lg_u32 s%d, 6\ns_cbranch_scc1 L_nolead" % (sT, sJJ, sT, sT, sW, sT))
            a("v_lshrrev_b32 v%d, v14, v%d\nv_and_b32 v%d, 1, v%d\nv_cmp_eq_u32 vcc, 0, v%d" % (vFl, vFl, vFl, vFl, vFl))
            a("s_nop 1")
            a("s_and_b32 s%d, vcc_lo, 0xffff\ns_or_b32 s%d, s%d, 0x80000000" % (sT, sT, sT))
            a("v_mov_b32 v%d, s%d" % (vFl, sT))
            keep = list(a.vm)
            a("buffer_store_dword v%d, v%d, %s, 0 offen sc1" % (vFl, vDg, SR(S_DBG)))
            a.vm = keep
            a.label("L_nolead")
        if step == 9:
            a("buffer_load_dword v%d, v%d, %s, 0 offen sc1" % (vFl, vDg, SR(S_DBG)), tag="fl")
        if step == 12:
            cstamp(a, 1)
            keep = list(a.vm)
            a.label("L_tag")
            a("v_cmp_eq_u32 vcc, 0, v%d" % vFl)
            a("s_cbranch_vccz L_tag_ok")
            a("s_sleep 8")
            a("buffer_load_dword v%d, v%d, %s, 0 offen sc1" % (vFl, vDg, SR(S_DBG)))
            a("s_waitcnt vmcnt(0)")
            a("s_branch L_tag")
            a.label("L_tag_ok")
            a.vm = keep
            a("v_readfirstlane_b32 s%d, v%d" % (sTag, vFl))
            a("v_mov_b32 v%d, %d" % (vA_, TAGW))
            a("ds_write_b32 v%d, v%d" % (vA_, vFl))
            a("s_or_b32 s%d, s%d, 0x%x" % (sWant, sTag, PHM))
            a("s_waitcnt lgkmcnt(0)")
        for m in xiss:
            if xiss[m] == step and at[2 * m] == step + 1: a.wait_vm_tag("x%d" % m)
            if oiss[m] <= step and pat[2 * m] == step + 1: a.wait_vm_tag("x%d" % m)
        if step == 15:
            a("s_waitcnt lgkmcnt(0)")
            if OPT["mxf"] and not OPT["early"]: pass
            elif OPT["mxf"]:
                a("v_mov_b32 v%d, %d" % (vA_, CNT))
                a.label("L_mxw")
                a("s_sleep 1")
                a("ds_read_b32 v%d, v%d offset:20" % (vB_, vA_))
                a("s_waitcnt lgkmcnt(0)")
                a("v_readfirstlane_b32 s%d, v%d" % (sT, vB_))
                a("s_cmp_lt_u32 s%d, 6\ns_cbranch_scc1 L_mxw" % sT)
            else: a("s_barrier")
            for x, t in kv_ops(18)[:OPT["early"]]: a(x, tag=t)
        if step == 16:
            if not OPT["st1"]: o1_store()
            a("s_mov_b32 s%d, s%d" % (sBlkP, sW2))
            op_setup(a, False)
            a("v_mov_b32 v8, v1\nv_add_u32 v9, %d, v1" % XB[0])
        if step == OPT["pubat"] - 1: a.wait_vm_tag("st")
    for step in range(32):
        aux_step(a, step, pre=lambda: pre(step), extra=lambda: extra(step))
    stamp(a, 3)
    a("s_and_b32 s%d, s%d, 1\ns_lshl_b32 s%d, s%d, 14\ns_add_u32 s%d, s%d, %d" % (sT, sW, sT, sT, sT, sT, 96 * KB))
    a("s_sub_u32 s%d, s%d, s%d\ns_mov_b32 s%d, s%d\ns_mov_b32 s%d, 0x%x" % (sT2, sT, sBlkP, sBlkP, sT, sBlkD, (-64 * KB) & 0xffffffff))
    a("v_add_u32 v2, s%d, v2\nv_add_u32 v3, s%d, v3\nv_add_u32 v8, 4096, v1\nv_add_u32 v9, 8192, v1" % (sT2, sT2))

FLOAD = "buffer_load_dword v10, v11, %s, 0 offen sc1" % SR(S_FL)
def ready(a):
    a.autowait = False
    a("v_or_b32 v10, v15, v10\nv_cmp_eq_u32 vcc, s%d, v10\ns_nop 1\ns_mov_b64 s[%d:%d], vcc" % (sWant, sR2, sR2 + 1))
    if OPT["nopoll"]: a("s_mov_b64 s[%d:%d], -1" % (sR2, sR2 + 1))
    a.autowait = True

def op_setup(a, second):
    lanes(a)
    a("v_lshlrev_b32 v1, 4, v12\nv_add_u32 v8, 4096, v1")
    a("v_lshrrev_b32 v9, 5, v12")
    a("v_and_b32 v4, 3, v12\nv_lshlrev_b32 v5, 1, v9\nv_xor_b32 v4, v4, v5\nv_lshlrev_b32 v4, 4, v4")
    a("v_and_b32 v5, 1, v13")
    a("v_lshl_add_u32 v4, v5, 6, v4\nv_lshl_add_u32 v4, v15, 10, v4\nv_lshl_add_u32 v4, v9, 12, v4")
    if second: a("v_xor_b32 v4, 64, v4")
    a("s_and_b32 s%d, s%d, 3\ns_lshl_b32 s%d, s%d, 8\ns_and_b32 s%d, s%d, 1\ns_lshl_b32 s%d, s%d, 7\ns_add_u32 s%d, s%d, s%d" % (sT, sJJ, sT, sT, sT2, sW, sT2, sT2, sT, sT, sT2))
    a("v_add_u32 v4, s%d, v4" % sT)
    a("v_and_b32 v2, 3, v12\nv_lshlrev_b32 v2, 3, v2\nv_lshl_add_u32 v2, v15, 6, v2\nv_lshl_add_u32 v2, v5, 5, v2\nv_lshl_add_u32 v2, v13, 9, v2")
    a("v_add_u32 v2, s%d, v2\nv_xor_b32 v3, 32, v2" % sBlkP)
    for q in range(1, 4): a("v_add_u32 v%d, %d, v4" % (4 + q, 7168 * q))
    a("v_add_u32 v9, 8192, v1\nv_lshlrev_b32 v11, 2, v14")
    a("v_lshrrev_b32 v15, v13, 3\nv_lshlrev_b32 v15, 29, v15" if False else "v_mov_b32 v15, 3\nv_lshrrev_b32 v15, v13, v15\nv_lshlrev_b32 v15, 29, v15")
    a("s_and_b32 s%d, s%d, 1\ns_lshl_b32 s%d, s%d, 1\ns_add_u32 s%d, s%d, %d" % (sOpIdx, sW, sOpIdx, sOpIdx, sOpIdx, sOpIdx, 1 if second else 0))

def op_tail(a):
    B = lambda k, t: vr((208 if k & 1 == 0 else 128) + 4 * t, 4)
    AT = [164, 168, 172, 244]
    def run(ops):
        a.autowait = False
        for x in ops: a(x)
        a.autowait = True
        a.vm = []; a.lgkm = []
    def head_offs(i, so, sb):
        a("s_add_u32 s%d, s%d, s%d\ns_and_b32 s%d, s%d, 3\ns_and_b32 s%d, s%d, 12\ns_add_u32 s%d, s%d, s%d" % (sT3, sJJ, i, sT3, sT3, sT2, sJJ, sT3, sT3, sT2))
        a("s_add_u32 s%d, s%d, 16\ns_lshl_b32 s%d, s%d, 3\ns_add_u32 s%d, s%d, 4" % (sb, sT3, sT3, sT3, sT3, sT3))
        a("s_mul_i32 s%d, s%d, 9216\ns_lshl_b32 s%d, s%d, 15" % (so, sT3, sWn, sT3))
        if OPT["xo"] & 2: a("s_mov_b32 s%d, 0" % so)
    def w_ops(k, blk):
        return ["s_add_u32 m0, s%d, %d" % (blk, k * 4096), "s_add_u32 s%d, s%d, %d" % (sT2, sWn, k * 32768)] + \
               ["buffer_load_dwordx4 v%d, %s, s%d offen offset:%d%s lds" % (4 + q, SR(S_WO), sT2, q * 1024, POL[OPT["polwo"]]) for q in range(4)]
    def o_op(k, t): return "buffer_load_dwordx4 %s, v%d, %s, s%d offen offset:%d%s" % (B(k, t), [1, 8, 9][t >> 2], SR(S_O), sT3, (t & 3) * 1024, POL[OPT["polo"]])
    def a_reads(k, cp):
        return ["ds_read_b64_tr_b16 %s, v%d offset:%d" % (vr(AT[2 * cp + c] + 2 * rd, 2), 3 if c else 2, k * 4096 + rd * 2048 + cp * 256) for c in range(2) for rd in range(2)]
    toggle = ["v_add_u32 v2, s%d, v2" % sBlkD, "v_add_u32 v3, s%d, v3" % sBlkD, "s_add_u32 s%d, s%d, s%d" % (sBlkP, sBlkP, sBlkD), "s_sub_u32 s%d, 0, s%d" % (sBlkD, sBlkD)]
    a.raw(".p2align 3")
    a.label("L_p2")
    run([FLOAD])
    a("s_and_b32 s%d, s%d, 1\ns_lshl_b32 s%d, s%d, 1\ns_add_u32 s62, s%d, 1" % (sT, sOpIdx, sT, sT, sT))
    head_offs(62, sOc, sBc)
    for k in range(4): run(w_ops(k, sBlkP))
    a("s_add_u32 s62, s62, 1\ns_add_u32 s63, s%d, s%d" % (sBlkP, sBlkD))
    head_offs(62, sOn, sBn)
    for k in range(4): run(w_ops(k, 63))
    a("s_waitcnt vmcnt(32)")
    a("s_mov_b32 s%d, 2" % sBit)
    a.label("L_p2_chk")
    ready(a)
    a("s_bitcmp1_b32 s%d, s%d\ns_cbranch_scc1 L_p2_go" % (sR2, sBc))
    a("s_bitcmp1_b32 s%d, s%d\ns_cbranch_scc1 L_p2_swap" % (sR2, sBn))
    run(["s_sleep %d" % OPT["slp"]])
    a.label("L_p2_poll")
    run([FLOAD, "s_waitcnt vmcnt(0)", "s_branch L_p2_chk"])
    a.label("L_p2_swap")
    run(["s_mov_b32 s%d, s%d" % (sT, sBc), "s_mov_b32 s%d, s%d" % (sBc, sBn), "s_mov_b32 s%d, s%d" % (sBn, sT),
         "s_mov_b32 s%d, s%d" % (sT, sOc), "s_mov_b32 s%d, s%d" % (sOc, sOn), "s_mov_b32 s%d, s%d" % (sOn, sT)] + toggle)
    a.label("L_p2_go")
    stamp(a, 6)
    if OPT["stamps"]: a("s_cmp_lg_u32 s%d, 2\ns_cbranch_scc1 L_p2_st\ns_memrealtime s[68:69]\nL_p2_st:" % sBit)
    for k in range(2): run(["s_add_u32 s%d, s%d, %d" % (sT3, sOc, k * 9216)] + [o_op(k, t) for t in range(9)])
    run([FLOAD, "s_waitcnt vmcnt(19)"] + a_reads(0, 0))
    def kstep(k, ho, extra):
        more = k < 2 or ho
        run(["s_waitcnt vmcnt(%d) lgkmcnt(0)" % ((9 + extra) if (k < 3 or ho) else 0)] + a_reads(k, 1))
        if more: run(["s_add_u32 s%d, s%d, %d" % (sT3, sOc if k < 2 else sOn, ((k + 2) & 3) * 9216)])
        for cp in range(2):
            if cp == 1:
                run(["s_waitcnt lgkmcnt(0)"])
                if k == 3: run(toggle)
                if k < 3 or ho: run(a_reads((k + 1) & 3, 0))
            for t in range(9):
                for c in range(2):
                    r = vr(ACC(t, 2 * cp + c), 4)
                    run(["%s %s, %s, %s, %s" % (MF, r, vr(AT[2 * cp + c], 4), B(k, t), r)])
                if cp == 1 and more: run([o_op(k, t)])
    kstep(0, False, 1)
    kstep(1, False, 0)
    a("s_cmp_eq_u32 s%d, 1\ns_cbranch_scc1 L_p2_last" % sBit)
    ready(a)
    a("s_bitcmp1_b32 s%d, s%d\ns_cbranch_scc0 L_p2_last" % (sR2, sBn))
    kstep(2, True, 0); kstep(3, True, 0)
    a("s_mov_b32 s%d, s%d\ns_mov_b32 s%d, 1" % (sOc, sOn, sBit))
    kstep(0, False, 0); kstep(1, False, 0)
    a.label("L_p2_last")
    kstep(2, False, 0); kstep(3, False, 0)
    a("s_mov_b32 s%d, s%d\ns_mov_b32 s%d, s%d" % (sOc, sOn, sBc, sBn))
    a("s_sub_u32 s%d, s%d, 1\ns_cmp_lg_u32 s%d, 0\ns_cbranch_scc1 L_p2_poll" % (sBit, sBit, sBit))
    stamp(a, 1)
    a("s_add_u32 s%d, s%d, s%d\ns_min_u32 s%d, s%d, s%d\ns_max_u32 s%d, s%d, s%d" % (sT, sBlkP, sBlkD, sT2, sT, sBlkP, sT3, sT, sBlkP))
    a("v_add_u32 v8, s%d, v1\nv_add_u32 v9, s%d, v1" % (sT2, sT3))
    for t in range(9):
        for c in range(2): a("ds_write_b128 v%d, %s offset:%d" % (8 if t < 8 else 9, vr(ACC(t, 2 + c), 4), ((t & 7) * 2 + c) * 1024))
    a("v_xor_b32 v8, %d, v8" % (32 * KB))
    a("s_mov_b32 s%d, %d\ns_cmp_eq_u32 s%d, 1\ns_cselect_b32 s%d, %d, s%d" % (sT, 64 * KB, sOpIdx, sT, 96 * KB, sT))
    a("s_cmp_eq_u32 s%d, 2\ns_cselect_b32 s%d, %d, s%d\ns_cmp_eq_u32 s%d, 3\ns_cselect_b32 s%d, %d, s%d" % (sOpIdx, sT, 132 * KB, sT, sOpIdx, sT, 112 * KB, sT))
    a("v_add_u32 v9, s%d, v1" % sT)
    a("s_lshl_b32 s%d, s%d, 2\ns_and_b32 s%d, s%d, 3\ns_add_u32 s%d, s%d, s%d\ns_lshl_b32 s%d, s%d, 2\ns_add_u32 s%d, s%d, s%d" % (sT, sG, sT2, sJJ, sT, sT, sT2, sT, sT, sT, sT, sOpIdx))
    a("s_mul_i32 s%d, s%d, %d\ns_add_u32 s%d, s%d, 0x%x\ns_add_u32 s90, s100, s%d\ns_addc_u32 s91, s101, 0" % (sT, sT, 4 * 9216, sT, sT, SLAB_OFF, sT))
    srd(a, S_SL, 90, 91, "%d" % (4 * 9216))
    a("s_waitcnt lgkmcnt(0)")
    a("s_barrier")
    for t in range(9):
        for c in range(2): a("ds_read_b128 %s, v%d offset:%d" % (vr(ACC(t, 2 + c), 4), 8 if t < 8 else 9, ((t & 7) * 2 + c) * 1024))
    a("v_add_u32 v8, 4096, v1\nv_add_u32 v9, 8192, v1")
    a("s_lshr_b32 s62, s%d, 2" % sJJ)
    a("s_cmp_eq_u32 s62, s%d\ns_cbranch_scc1 L_fin" % sOpIdx)
    keepl = list(a.lgkm)
    def addp(t):
        b = ACC(t, 0)
        for r in range(0, 8, 2): a("v_pk_add_f32 %s, %s, %s" % (vr(b + r, 2), vr(b + r, 2), vr(b + 8 + r, 2)))
    def cvt(t):
        b = ACC(t, 0)
        for r in range(4): a("v_cvt_pk_bf16_f32 v%d, v%d, v%d" % (b + r, b + 2 * r, b + 2 * r + 1))
    a("s_mul_i32 s%d, s62, 9216" % sT3)
    for t in range(9):
        addp(t); cvt(t)
        a("buffer_store_dwordx4 %s, v%d, %s, s%d offen offset:%d sc1" % (vr(ACC(t, 0), 4), [1, 8, 9][t >> 2], SR(S_SL), sT3, (t & 3) * 1024))
    publish(a, "L_pub_z", 250, 28, 2, PHM)
    if OPT["stamps"]:
        stamp(a, 7); stamp_store(a)
    a("s_endpgm")
    a.vm = []; a.lgkm = keepl
    a.label("L_fin")
    for t in range(9): addp(t)
    lanes(a)
    a("v_and_b32 v244, 1, v14\nv_lshlrev_b32 v244, 4, v244\nv_mov_b32 v245, 0x3f80\nv_lshlrev_b32 v245, v244, v245")
    a("v_cmp_eq_u32 vcc, v15, v13\nv_mov_b32 v244, 0\nv_cndmask_b32 v245, 0, v245, vcc")
    a("v_and_b32 v246, 2, v14\nv_cmp_eq_u32 vcc, 0, v246\nv_mov_b32 v248, 0\nv_mov_b32 v249, 0")
    a("v_cndmask_b32 v246, 0, v245, vcc\nv_cndmask_b32 v247, v245, v244, vcc\nv_mov_b32 v245, 0")
    a("v_lshrrev_b32 v4, 1, v13\nv_and_b32 v5, 1, v13\nv_lshl_or_b32 v4, v5, 1, v4\nv_lshlrev_b32 v4, 4, v4\nv_lshl_add_u32 v4, v14, 11, v4")
    a("s_mul_i32 s%d, s%d, %d\ns_lshl_b32 s%d, s%d, 10\ns_add_u32 s%d, s%d, s%d" % (sOutOff, sB, 144 * 2048, sT, sBlk, sOutOff, sOutOff, sT))
    a("s_and_b32 s%d, s%d, 3\ns_lshl_b32 s%d, s%d, 8\ns_add_u32 s%d, s%d, s%d\ns_lshl_b32 s%d, s62, 6\ns_add_u32 s%d, s%d, s%d" % (sT2, sJJ, sT, sT2, sOutOff, sOutOff, sT, sT, sOutOff, sOutOff, sT))
    a("v_mov_b32 v15, 3\nv_lshrrev_b32 v15, v13, v15\nv_lshlrev_b32 v15, 29, v15")
    a("s_lshl_b32 s%d, 0x1111, s%d\ns_lshl_b32 s%d, 1, s%d\ns_andn2_b32 s%d, s%d, s%d" % (sBit, sT2, sT, sJJ, sBit, sBit, sT))
    run([FLOAD, "s_waitcnt vmcnt(0)"])
    a.label("L_fin_chk")
    ready(a)
    a("s_andn2_b32 s%d, s%d, s%d\ns_cbranch_scc0 L_fin_go" % (sT, sBit, sR2 + 1))
    run(["s_sleep %d" % OPT["slp"], FLOAD, "s_waitcnt vmcnt(0)", "s_branch L_fin_chk"])
    a.label("L_fin_go")
    stamp(a, 4)
    SL = lambda i, t: (ACC(t, 2 + i) if i < 2 else 128 + 4 * t)
    for i in range(3): a("s_add_u32 s%d, s62, %d\ns_and_b32 s%d, s%d, 3\ns_mul_i32 s%d, s%d, 9216" % (sOc + i, i + 1, sOc + i, sOc + i, sOc + i, sOc + i))
    for t in range(9):
        for i in range(3):
            a("buffer_load_dwordx4 %s, v%d, %s, s%d offen offset:%d sc1" % (vr(SL(i, t), 4), [1, 8, 9][t >> 2], SR(S_SL), sOc + i, (t & 3) * 1024))
    def fin_out(t):
        cvt(t); q_swap(a, ACC(t, 0))
        a("s_add_u32 s%d, s%d, %d" % (sT, sOutOff, t * 32768))
        a("buffer_store_dwordx4 %s, v4, %s, s%d offen%s" % (vr(ACC(t, 0), 4), SR(S_OUT), sT, POL[OPT["polout"]]))
    for t in range(9):
        for i in range(3):
            for c in range(2):
                r = vr(ACC(t, c), 4)
                a("%s %s, %s, %s, %s" % (MF, r, vr(246 - 2 * c, 4), vr(SL(i, t), 4), r))
        if t: fin_out(t - 1)
    fin_out(8)
    if OPT["stamps"]:
        a("s_waitcnt vmcnt(0)")
        stamp(a, 7); stamp_store(a)
    a("s_endpgm")
    a.vm = []; a.lgkm = []

def kernel():
    a = Asm()
    a.raw(".globl %s\n.p2align 8\n.type %s,@function" % (NAME, NAME)); a.label(NAME)
    a("s_cmp_ge_u32 s2, 256\ns_cbranch_scc1 L_end")
    if OPT["stamps"]:
        for k in range(1 if OPT["pst"] else NST): a("s_memrealtime s[%d:%d]" % (64 + 2 * k, 65 + 2 * k))
    a("s_and_b32 s%d, s2, 7\ns_lshr_b32 s%d, s2, 3\ns_lshr_b32 s%d, s%d, 2" % (sT, sT2, sBlk, sT))
    a("s_mul_i32 s%d, s%d, 40" % (sT3, sBlk))
    a("s_add_u32 s4, s0, s%d\ns_addc_u32 s5, s1, 0" % sT3)
    a("s_load_dwordx8 s[80:87], s[4:5], 0")
    a("s_load_dwordx2 s[88:89], s[4:5], 32")
    a("s_load_dwordx4 s[96:99], s[0:1], 80")
    a("s_load_dwordx2 s[92:93], s[0:1], 96")
    a("s_lshr_b32 s%d, s%d, 4\ns_lshl_b32 s%d, s%d, 1\ns_add_u32 s%d, s%d, s%d" % (sGo, sT2, sT3, sT, sGo, sGo, sT3))
    a("s_and_b32 s%d, s%d, 15" % (sJo, sT2))
    if OPT["map"] == 0:
        a("s_mov_b32 s%d, s%d\ns_mov_b32 s%d, s%d\ns_and_b32 s%d, s%d, 7" % (sG, sGo, sJJ, sJo, sB, sGo))
        a("s_and_b32 s%d, s%d, 1\ns_lshl_b32 s%d, s%d, 2\ns_add_u32 s%d, s%d, s%d" % (sRot, sG, sRot, sRot, sRot, sRot, sJJ))
    elif OPT["map"] == 1:
        a("s_and_b32 s%d, s%d, 7\ns_and_b32 s%d, s%d, 1\ns_lshl_b32 s%d, s%d, 3\ns_add_u32 s%d, s%d, s%d" % (sRot, sT2, sJJ, sT, sJJ, sJJ, sJJ, sJJ, sRot))
        a("s_lshr_b32 s%d, s%d, 3\ns_lshl_b32 s%d, s%d, 1\ns_add_u32 s%d, s%d, s%d" % (sB, sT2, sT3, sB, sRot, sRot, sT3))
        a("s_and_b32 s%d, s%d, 2\ns_lshl_b32 s%d, s%d, 1\ns_add_u32 s%d, s%d, s%d" % (sT3, sT, sT3, sT3, sB, sB, sT3))
        a("s_lshl_b32 s%d, s%d, 3\ns_add_u32 s%d, s%d, s%d" % (sG, sBlk, sG, sG, sB))
    else:
        a("s_and_b32 s%d, s%d, 3\ns_and_b32 s%d, s%d, 3\ns_lshl_b32 s%d, s%d, 2\ns_add_u32 s%d, s%d, s%d" % (sRot, sT2, sJJ, sT, sJJ, sJJ, sJJ, sJJ, sRot))
        a("s_lshr_b32 s%d, s%d, 2\ns_lshl_b32 s%d, s%d, 1\ns_add_u32 s%d, s%d, s%d" % (sB, sT2, sRot, sRot, sRot, sRot, sB))
        if OPT["cls"] == 1: a("s_and_b32 s%d, s%d, 3\ns_lshl_b32 s%d, s%d, 1\ns_lshr_b32 s%d, s%d, 4\ns_add_u32 s%d, s%d, s%d" % (sB, sB, sB, sB, sT3, sT2, sB, sB, sT3))
        a("s_lshl_b32 s%d, s%d, 3\ns_add_u32 s%d, s%d, s%d" % (sG, sBlk, sG, sG, sB))
    if OPT["cls"] == 1: a("s_lshr_b32 s3, s2, 7")
    if OPT["cls"] == 2: a("s_mov_b32 s3, s%d" % sBlk)
    a("v_lshrrev_b32 v12, 6, v0")
    a("v_readfirstlane_b32 s%d, v12" % sW)
    a("s_mul_i32 s62, s%d, 147456" % sB)
    def code_pf():
        a("s_getpc_b64 s[90:91]")
        a.label("L_pf")
        if OPT["pfw"]:
            a("s_lshr_b32 s%d, s2, 3\ns_and_b32 s%d, s%d, 3\ns_min_u32 s%d, s%d, 2\ns_lshl_b32 s%d, s%d, 15" % (sT, sT, sT, sT, sT, sT, sT))
            a("v_lshlrev_b32 v240, 7, v0\nv_add_u32 v240, s%d, v240" % sT)
        else: a("v_lshlrev_b32 v240, 7, v0")
        a.items.append(a._mk("v_min_u32 v240, 0x1234, v240")); a.items[-1].text = "v_min_u32 v240, L_end-L_pf, v240"
        if OPT["pfw"] == 2: a("s_cmp_ge_u32 s2, 32\ns_cbranch_scc1 L_nopf")
        a("global_load_dword v253, v240, s[90:91]")
        if OPT["pfw"] == 2: a.label("L_nopf")
    if not OPT["pfw"]: code_pf()
    if OPT["fast0"]:
        loader_setup(a)
        if OPT["pst"]: a("s_memrealtime s[66:67]")
        srds_first(a)
        if OPT["pst"]: a("s_memrealtime s[68:69]")
        a("s_cmp_lt_u32 s%d, 4\ns_cbranch_scc1 L_arole" % sW)
        st0 = (list(a.lgkm), list(a.vm))
        for x, t in stage_ops_(0, 4): a(x, tag=t)
        st = (list(a.lgkm), list(a.vm))
        a("s_cmp_ge_u32 s%d, 6\ns_cbranch_scc1 L_auxrole\ns_branch L_brole" % sW)
        a.label("L_arole")
        a.lgkm, a.vm = list(st0[0]), list(st0[1])
    else:
        a("s_cmp_ge_u32 s%d, 6\ns_cbranch_scc1 L_auxrole" % sW)
        st = (list(a.lgkm), list(a.vm))
        a("s_cmp_ge_u32 s%d, 4\ns_cbranch_scc1 L_brole" % sW)
    if OPT["pfw"]: code_pf()
    head(a, "A")
    a("s_branch L_att")
    a.lgkm, a.vm = list(st[0]), list(st[1])
    a.raw(".p2align 3"); a.label("L_brole")
    head(a, "B")
    a.label("L_att")
    attention(a)
    a.lgkm, a.vm = list(st[0]), list(st[1])
    a.raw(".p2align 3"); a.label("L_auxrole")
    head(a, "X")
    aux(a)
    a.vm = []
    op_tail(a)
    a.label("L_end"); a("s_endpgm")
    a.pad_hazards()
    a.check_backedge("L_loop", "s_cbranch_scc1 L_loop")
    a.align8()
    return a.text()

out = []
out.append("; " + " ".join(sys.argv[1:]) + " : fused Q-projection + attention + O-projection, one launch (generated by dev/gen13.py)")
out.append("; @launch grid=(256,1,1) block=(512,1,1) lds=163840")
out.append('.amdgcn_target "amdgcn-amd-amdhsa--gfx950"\n.text')
out.append(kernel())
out.append('.section .rodata,"a"\n.p2align 6')
out.append(""".amdhsa_kernel %s
  .amdhsa_next_free_vgpr 256
  .amdhsa_next_free_sgpr 102
  .amdhsa_accum_offset 256
  .amdhsa_group_segment_fixed_size 0
  .amdhsa_kernarg_size 104
  .amdhsa_user_sgpr_count 2
  .amdhsa_user_sgpr_kernarg_segment_ptr 1
  .amdhsa_system_sgpr_workgroup_id_x 1
.end_amdhsa_kernel
""" % NAME)
print("\n".join(out))
```

```python
import sys, math, struct
sys.path.insert(0, "dev")
from asmlib import *

OPT = dict(stamps=0, samekv=0, clk=0, hst=0, nopoll=0, polo=2, polw=0, polx=0, polwo=0, pols=2, polkv=1, slp=4, lo=2,
           auxprio=0, sbs=1, s0=22, kp="3333333322", sst=-1, sstd=1, xo=0, xw=0, map=2, park=2, hprio=1, kv0=5, kv1=6, pk14=0, ck=0, polout=0, ptouch=0, tw0="", tw1="", g0=15, cap=0, capto=16, nol=0, q2mix=2, bst=-1, bw=0, pair=1, mxf=1, p14=1, early=8, tst=0, cpf=1, pfm=-1, pst=0, pfw=1, fast0=1, q2s="22111111111111", q2p=1, q2pr=0, kvc=0, xmf=0, cls=0, capl=0, capl0=2, capl1=17, pubat=18, st1=0, hb=3, k1a=8, k1b=8, pad=0, ypr=2, asym=-1, p0=18, ps="1111112222110", fl0=19, od=1, pols2=2, polf=2)
for a_ in sys.argv[1:]:
    k, v = a_.split("="); assert k in OPT, k; OPT[k] = v if k in ("kp", "tw0", "tw1", "q2s", "ps") else int(v)

NAME = "concat_heads__mha_block_cached__gqa_block_cached__near_ridge_kernel"
def f32(x): return "0x%08x" % struct.unpack("<I", struct.pack("<f", x))[0]
CSCALE = math.log2(math.e) / math.sqrt(128.0)
THR = 8.0
KB = 1024
SLOT = 32 * KB
XB = [96 * KB, 114 * KB, 132 * KB]
WB = [32 * KB, 48 * KB, 0]
Q2B = 96 * KB; Q1A = 132 * KB; Q1C = 32 * KB; EX1 = 132 * KB; EX2 = 80 * KB; W2R = 132 * KB
MLB = 156 * KB; CNT = 160 * KB - 128; TAGW = CNT + 8; CLAIM = CNT + 16; PFL = CNT + 32
STAMP_OFF = 0x10000000; FLAG_OFF = 0x2000000
PH2 = 0x40000000; PH3 = 0x20000000; PHM = 0x60000000
SLAB_OFF = 0x2800000
S_SL = 8
sR2 = 60
OSTR = 128 * 9216 + 1024
MF = "v_mfma_f32_16x16x32_bf16"
NST = 8
POL = ["", " nt", " sc1", " sc0 sc1", " sc1 nt", " sc0 sc1 nt", " sc0 nt", " sc0"]
NIN = sum(int(c) for c in OPT["kp"]) // 4
assert NIN * 4 == sum(int(c) for c in OPT["kp"]) and NIN <= 7

HD = OPT["hb"]
HX = XB if HD == 3 else [64 * KB, 132 * KB, 96 * KB, 114 * KB]
HW = WB if HD == 3 else [0, 16 * KB, 32 * KB, 48 * KB]
SPLIT = OPT["pubat"] + 1
S_FL, S_WQ, S_X, S_O, S_KV, S_WO, S_OUT, S_DBG = 4, 8, 12, 16, 20, 24, 28, 32
S_OL, S_FLL = 8, 12
sW, sG, sJJ, sBlk, sB, sRot, sT, sT2, sT3 = 36, 37, 38, 39, 40, 41, 42, 43, 44
sCnt, sThr, sFl, sSlot, sDelta, sItem, sExS, sBar, sExch, sOoff = 45, 46, 47, 48, 49, 50, 51, 52, 53, 54
sNeg, sPos, sPart, sKg, sRho = 55, 56, 57, 59, 62
sHk, sHo = 46, 47
sOc, sOn, sWn, sBlkP, sRm, sBit, sR, sC = 46, 47, 48, 49, 51, 52, 55, 56
sBlkD, sBc, sBn, sOnn = 45, 53, 58, 86
sOb, sWb, sOutOff, sOpIdx, sTag, sWant, sTagA = 80, 81, 82, 83, 84, 85, 87
sGo, sJo = 94, 95

def srd(a, d, lo, hi, nrec):
    a("s_mov_b32 s%d, s%d\ns_mov_b32 s%d, s%d" % (d, lo, d + 1, hi))
    a("s_mov_b32 s%d, %s\ns_mov_b32 s%d, 0x20000" % (d + 2, nrec, d + 3))
def SR(d): return "s[%d:%d]" % (d, d + 3)

def cstamp(a, e):
    if OPT["clk"]: a("s_memtime s[%d:%d]\ns_memrealtime s[%d:%d]" % (66 + 2 * e, 67 + 2 * e, 70 + 2 * e, 71 + 2 * e))
def stamp(a, k, hs=False):
    if not OPT["stamps"] or OPT["ck"]: return
    if OPT["clk"] and 1 <= k <= 4: return
    if (OPT["sst"] >= 0 or OPT["bst"] >= 0 or OPT["tst"] or OPT["pst"]) and k and k != 7: return
    if OPT["hst"] and k and not hs: return
    if hs and not OPT["hst"]: return
    a("s_memrealtime s[%d:%d]" % (64 + 2 * k, 65 + 2 * k))
BSN = [0]
def bstamp(a, k):
    if OPT["bst"] < 0: return
    BSN[0] += 1
    a("s_cmp_lg_u32 s%d, %d\ns_cbranch_scc1 L_bs%d\ns_memrealtime s[%d:%d]\nL_bs%d:" % (sItem, OPT["bst"], BSN[0], 64 + 2 * k, 65 + 2 * k, BSN[0]))
def stamp_store(a):
    a("s_waitcnt vmcnt(0) lgkmcnt(0)")
    a("s_cmp_eq_u32 s%d, 6\ns_cselect_b32 s%d, 256, 0" % (sW, sT))
    a("s_mul_i32 s%d, s%d, 43\ns_lshr_b32 s%d, s%d, 8\ns_mul_i32 s%d, s%d, 6" % (sT2, sW, sT2, sT2, sT2, sT2))
    a("s_cmp_lg_u32 s%d, s%d\ns_cbranch_scc1 L_end" % (sT2, sW))
    a("s_add_u32 s96, s100, 0x%x\ns_addc_u32 s97, s101, 0" % STAMP_OFF)
    a("s_mov_b32 s98, 0x100000\ns_mov_b32 s99, 0x20000")
    a("s_add_u32 s3, s2, s%d\ns_mul_i32 s3, s3, %d" % (sT, NST * 8))
    a("v_mov_b32 v12, s3\ns_mov_b64 exec, 1")
    for k in range(NST):
        a("v_mov_b32 v14, s%d\nv_mov_b32 v15, s%d" % (64 + 2 * k, 65 + 2 * k))
        a("buffer_store_dwordx2 v[14:15], v12, s[96:99], 0 offen offset:%d" % (8 * k))
        a("s_nop 1")

def lanes(a):
    a("v_and_b32 v12, 63, v0\nv_lshrrev_b32 v13, 4, v12\nv_and_b32 v14, 15, v12\nv_bfe_u32 v15, v12, 2, 2")

vK, vVa, vVb = 1, 2, 3
vX1, vX2, vX3, vX4 = 4, 5, 6, 7
vONE, vT, vQ, vO, vL, vM, vS, vF = 8, 12, 16, 64, 160, 172, 184, 208
def Q(t, s): return vr(vQ + 16 * t + 4 * s, 4)
def O(t, dt): return vr(vO + 32 * t + 4 * dt, 4)
def L(t): return vr(vL + 4 * t, 4)
def M(t): return vr(vM + 4 * t, 4)
def S(t, kt): return vr(vS + 8 * t + 4 * kt, 4)
def F(i): return vF + 4 * i
vD = 128
vFo, vDg, vDg2, vFl, vA_, vB_, vOr, vCl, vCr, vCb = 136, 137, 138, 139, 140, 141, 142, 143, 144, 145

sKo = 50
S_V = 96
CAPN = [0]
def kv_ops(tile):
    slot = (tile + 2) % 3
    o = []
    for grp in range(4):
        for q in range(4):
            if OPT["kvc"]:
                pre_ = "s_add_u32 m0, s%d, %d\ns_add_u32 s%d, s%d, %d\n" % (sKg, slot * SLOT + (grp >> 1) * 16384 + (grp & 1) * 4096, sKo, sKg, tile * 16384 + (grp & 1) * 4096) if q == 0 else ""
                sr_ = SR(S_V if grp >= 2 else S_KV)
            else:
                pre_ = "s_add_u32 m0, s%d, %d\ns_mov_b32 s%d, %d\n" % (sKg, slot * SLOT + grp * 4096, sKo, tile * 16384 + grp * 4096) if q == 0 else ""
                sr_ = SR(S_KV)
            if q == 0 and OPT["capl"] and OPT["capl0"] <= tile <= OPT["capl1"]:
                CAPN[0] += 1
                pre_ = "s_cmp_eq_u32 s3, 0\ns_cbranch_scc1 L_cap%d\nRAW s_waitcnt vmcnt(%d)\nL_cap%d:\n" % (CAPN[0], OPT["capl"] - 4, CAPN[0]) + pre_
            ld = "buffer_load_dwordx4 v%d, %s, s%d offen offset:%d%%s lds" % (vD + q + (4 if grp >= 2 else 0), sr_, sKo, q * 1024)
            if OPT["asym"] >= 0:
                CAPN[0] += 1
                o.append((pre_ + "s_cmp_eq_u32 s%d, %d\ns_cbranch_scc1 L_as%d\n%s\ns_branch L_at%d\nL_as%d:\nRAW %s\nL_at%d:" % (sBlk, OPT["asym"], CAPN[0], ld % " nt", CAPN[0], CAPN[0], ld % "", CAPN[0]), "t%d" % tile))
            else: o.append((pre_ + ld % POL[OPT["polkv"]], "t%d" % tile))
    return o
KV_DONE = set()
def kv_tile(a, tile):
    if tile in KV_DONE: return
    for x, t in kv_ops(tile): a(x, tag=t)

def srds_first(a):
    a("s_waitcnt lgkmcnt(0)")
    srd(a, S_WQ, 86, 87, "%d" % (512 * 8192))
    a("s_add_u32 s80, s80, s62\ns_addc_u32 s81, s81, 0")
    srd(a, S_X, 80, 81, "147456")

def srds_rest(a):
    a("s_mul_i32 s%d, s%d, %d\ns_add_u32 s%d, s%d, 1024\ns_add_u32 s90, s92, s%d\ns_addc_u32 s91, s93, 0" % (sT, sG, OSTR, sT, sT, sT))
    srd(a, S_O, 90, 91, "%d" % (128 * 9216))
    if not OPT["kvc"]: a("s_cmp_eq_u32 s%d, 6\ns_cselect_b32 s82, s82, s84\ns_cselect_b32 s83, s83, s85" % sW)
    a("s_lshl_b32 s%d, s%d, 4\ns_add_u32 s%d, s%d, s%d" % (sT, sB, sT, sT, sJJ))
    if OPT["samekv"]: a("s_mov_b32 s%d, 0" % sT)
    a("s_lshl_b32 s%d, s%d, 19" % (sT, sT))
    a("s_add_u32 s82, s82, s%d\ns_addc_u32 s83, s83, 0" % sT)
    srd(a, S_KV, 82, 83, "524288")
    srd(a, S_WO, 88, 89, "%d" % (4096 * 1024))
    srd(a, S_OUT, 96, 97, "%d" % (8 * 144 * 1024 * 2))
    srd(a, S_DBG, 98, 99, "256")
    if OPT["kvc"]:
        a("s_add_u32 s84, s84, s%d\ns_addc_u32 s85, s85, 0" % sT)
        srd(a, S_V, 84, 85, "524288")
    a("s_lshl_b32 s%d, s%d, 8\ns_add_u32 s%d, s%d, 0x%x\ns_add_u32 s90, s92, s%d\ns_addc_u32 s91, s93, 0" % (sT, sG, sT, sT, FLAG_OFF, sT))
    srd(a, S_FL, 90, 91, "64")
    a("s_mov_b32 s100, s92\ns_mov_b32 s101, s93")
    if OPT["pair"]: a("s_and_b32 s%d, s%d, 1\ns_lshr_b32 s%d, s%d, 1" % (sKg, sW, sRho, sW))
    else: a("s_cmp_ge_u32 s%d, 3\ns_cselect_b32 s%d, 1, 0\ns_mul_i32 s%d, s%d, 3\ns_sub_u32 s%d, s%d, s%d" % (sW, sKg, sT, sKg, sRho, sW, sT))
    a("v_and_b32 v236, 31, v0\nv_lshlrev_b32 v236, 2, v236\nv_add_u32 v236, %d, v236\nv_mov_b32 v234, 0" % CNT)
    a("ds_write_b32 v236, v234")

def q_pack(a, b, scale):
    for r in range(0, 8, 2): a("v_pk_mul_f32 %s, %s, %s" % (vr(b + r, 2), vr(b + r, 2), scale))
    for r in range(4): a("v_cvt_pk_bf16_f32 v%d, v%d, v%d" % (b + r, b + 2 * r, b + 2 * r + 1))
def q_swap(a, b):
    a("v_permlane16_swap_b32 v%d, v%d\nv_permlane16_swap_b32 v%d, v%d" % (b, b + 2, b + 1, b + 3))

def loader_setup(a):
    vHW, vHX, vA1 = 224, 248, 231
    lanes(a)
    a("s_and_b32 s60, s%d, 3" % sW)
    a("v_and_b32 v%d, 3, v12\nv_lshlrev_b32 v%d, 4, v%d" % (vHX, vHX, vHX))
    a("v_lshl_add_u32 v%d, v13, 6, v%d" % (vHW, vHX))
    a("v_lshl_add_u32 v%d, v15, 8, v%d" % (vD, vHW))
    a("v_lshl_add_u32 v%d, v15, 13, v%d" % (vHW, vHW))
    a("s_lshl_b32 s%d, s60, 17\ns_lshl_b32 s%d, s%d, 9\ns_add_u32 s%d, s%d, s%d" % (sT, sT2, sJJ, sT, sT, sT2))
    a("v_add_u32 v%d, s%d, v%d" % (vHW, sT, vHW))
    a("v_add_u32 v%d, %d, v%d" % (vHW + 1, 31744, vHW))
    a("v_add_u32 v%d, %d, v%d\nv_xor_b32 v%d, 32, v%d" % (vHW + 2, 2 * 31744, vHW, vHW + 2, vHW + 2))
    a("v_add_u32 v%d, %d, v%d" % (vHW + 3, 31744, vHW + 2))
    a("s_lshl_b32 s63, s60, 12")
    a("s_mul_i32 s61, s60, 5\ns_min_u32 s61, s61, 14")
    a("v_and_b32 v%d, 1, v13\nv_lshl_add_u32 v4, v%d, 6, v%d" % (vA1, vA1, vHX))
    a("v_lshl_add_u32 v%d, v15, 10, v4" % vHX)
    a("v_lshrrev_b32 v%d, 5, v12\nv_lshl_add_u32 v8, v%d, 12, v%d" % (vA1, vA1, vHX))
    a("s_lshl_b32 s%d, s61, 13\ns_and_b32 s%d, s61, 1\ns_lshl_b32 s%d, s%d, 5" % (sT, sT2, sT2, sT2))
    a("v_add_u32 v%d, s%d, v8\nv_xor_b32 v%d, s%d, v%d" % (vHX, sT, vHX, sT2, vHX))
    a("v_add_u32 v%d, 7168, v%d\nv_xor_b32 v%d, 32, v%d" % (vHX + 1, vHX, vHX + 1, vHX + 1))
    a("v_add_u32 v%d, 14336, v%d\nv_add_u32 v%d, 14336, v%d" % (vHX + 2, vHX, vHX + 3, vHX + 1))
    a("v_add_u32 v%d, 32768, v%d" % (vHX + 4, vHX))
    a("s_lshl_b32 s61, s61, 10")

def stage_ops_(j, NX):
    vHW, vHX = 224, 248
    xb = HX[j % HD]; wb = HW[j % HD]
    o = []
    for qq in range(4):
        pre_ = "s_add_u32 s%d, s%d, %d\ns_and_b32 s%d, s%d, 7\ns_lshl_b32 s%d, s%d, 19\ns_add_u32 m0, s63, %d\n" % (sHk, sRot, j, sHk, sHk, sHo, sHk, wb) if qq == 0 else ""
        o.append(pre_ + "buffer_load_dwordx4 v%d, %s, s%d offen offset:%d%s lds" % (vHW + qq, SR(S_WQ), sHo, qq * 1024, POL[OPT["polw"]]))
    for e in range(NX):
        pre_ = "s_add_u32 m0, s61, %d\n" % (xb + 4096) if e == 4 else ("s_add_u32 m0, s61, %d\ns_lshl_b32 s%d, s%d, 7\n" % (xb, sHo, sHk) if e == 0 else "")
        o.append(pre_ + "buffer_load_dwordx4 v%d, %s, s%d offen offset:%d%s lds" % (vHX + e, SR(S_X), sHo, (e & 3) * 1024, POL[OPT["polx"]]))
    return [(x, "h%d" % j) for x in o]

def head(a, role):
    att = role != "X"; ldr = role != "A"
    NRT = 4 if ldr else 5; T0 = 5 if ldr else 0
    vHW, vHX = 224, 248
    vA1, vA2, vBx = 231, 232, 233
    cA1, cA2, cBx = 234, 235, 236
    ACC = lambda t, d: vr(16 + 8 * t + 4 * d, 4)
    BF = lambda u, t: vr(56 + 20 * u + 4 * t, 4)
    AF = lambda u, d: 96 + 8 * u + 4 * d
    NX = 5 if att else 4
    if not OPT["fast0"]: loader_setup(a)
    def stage_ops(j): return stage_ops_(j, NX) if ldr else []
    def stage_load(j):
        for x, t in stage_ops(j): a(x, tag=t)
    if not OPT["fast0"]:
        srds_first(a)
        stage_load(0)
    elif role == "B":
        x, t = stage_ops(0)[8]; a(x, tag=t)
    if OPT["pst"]: a("s_memrealtime s[70:71]")
    if role == "A" and OPT["ptouch"]:
        a("s_cmp_lg_u32 s%d, 0\ns_cbranch_scc1 L_nopt" % sW)
        a("s_lshl_b32 s%d, s%d, 4\ns_add_u32 s%d, s%d, s%d\ns_lshl_b32 s%d, s%d, 19" % (sT, sB, sT, sT, sJJ, sT, sT))
        a("v_mov_b32 v240, s%d" % sT)
        a.autowait = False
        a("global_load_dword v244, v240, s[82:83]\nglobal_load_dword v245, v240, s[84:85]")
        a("v_and_b32 v240, 1, v12\nv_lshlrev_b32 v241, 21, v240")
        a("global_load_dword v246, v241, s[88:89]\nglobal_load_dword v247, v241, s[96:97]")
        a("v_add_u32 v241, s%d, v240\nv_add_u32 v242, s%d, v240\nv_and_b32 v243, 2, v12\nv_cmp_eq_u32 vcc, 0, v243" % (sG, sGo))
        a("v_cndmask_b32 v241, v241, v242, vcc\ns_mov_b32 s%d, %d\nv_mul_lo_u32 v241, s%d, v241" % (sT, OSTR, sT))
        a("v_mov_b32 v242, 0x%x\nv_cmp_lt_u32 vcc, 3, v12\nv_cndmask_b32 v241, v241, v242, vcc" % (FLAG_OFF + 8192))
        a("global_load_dword v248, v241, s[92:93]")
        a.autowait = True
        a.label("L_nopt")
    srds_rest(a)
    a("v_and_b32 v%d, 3, v12\nv_lshlrev_b32 v%d, 3, v%d" % (vA1, vA1, vA1))
    a("v_lshl_add_u32 v%d, v15, 6, v%d" % (vA1, vA1))
    a("v_and_b32 v%d, 1, v13\nv_lshl_add_u32 v%d, v%d, 5, v%d" % (vA2, vA1, vA2, vA1))
    a("v_lshl_add_u32 v%d, v13, 10, v%d" % (vVa, vA1))
    a("v_lshl_add_u32 v%d, v13, 11, v%d" % (vA1, vA1))
    a("s_and_b32 s%d, s%d, 3\ns_lshl_b32 s%d, s%d, 8" % (sT, sW, sT, sT))
    a("v_add_u32 v%d, s%d, v%d\nv_xor_b32 v%d, 32, v%d" % (vA1, sT, vA1, vA2, vA1))
    a("v_lshrrev_b32 v%d, 3, v14\nv_lshlrev_b32 v%d, 1, v%d\nv_xor_b32 v%d, v%d, v13\nv_lshlrev_b32 v%d, 4, v%d" % (vBx, vBx, vBx, vBx, vBx, vBx, vBx))
    a("v_and_b32 v%d, 3, v14\nv_lshl_add_u32 v%d, v%d, 6, v%d" % (cBx, vBx, cBx, vBx))
    a("v_lshl_add_u32 v%d, v15, 9, v%d" % (vBx, vBx))
    if att:
        a("s_lshl_b32 s%d, s%d, 13\ns_add_u32 s%d, s%d, %d" % (sT, sKg, sT, sT, 2 * SLOT))
        a("v_add_u32 v%d, s%d, v%d\nv_add_u32 v%d, 16384, v%d\nv_xor_b32 v%d, 32, v%d" % (vVa, sT, vVa, vVa, vVa, vVb, vVa))
        a("v_lshlrev_b32 v%d, 10, v15" % vK)
        a("v_lshl_add_u32 v%d, v%d, 6, v%d" % (vK, cBx, vK))
        a("v_lshrrev_b32 v%d, 1, v13\nv_and_b32 v%d, 1, v13\nv_lshl_or_b32 v%d, v%d, 1, v%d" % (cA1, cA2, cA1, cA2, cA1))
        a("v_lshrrev_b32 v%d, 3, v14\nv_xor_b32 v%d, v%d, v%d" % (cA2, cA1, cA1, cA2))
        a("v_lshl_add_u32 v%d, v%d, 4, v%d\nv_add_u32 v%d, s%d, v%d" % (vK, cA1, vK, vK, sT, vK))
        for r in range(4): a("v_mov_b32 v%d, 0x3f803f80" % (vONE + r))
    else:
        a("s_cmp_eq_u32 s%d, 6" % sW)
        if OPT["kvc"]:
            a("s_cselect_b32 s60, 0, 128\ns_cselect_b32 s%d, 0, 8192" % sKg)
            a("v_mov_b32 v%d, v%d\nv_xor_b32 v%d, 16, v%d\nv_xor_b32 v%d, 16, v%d" % (vD + 1, vD, vD + 2, vD, vD + 3, vD))
            a("v_xor_b32 v%d, s60, v%d\nv_xor_b32 v%d, 32, v%d\nv_mov_b32 v%d, v%d\nv_mov_b32 v%d, v%d" % (vD + 4, vD, vD + 5, vD + 4, vD + 6, vD + 4, vD + 7, vD + 5))
        else:
            a("s_cselect_b32 s%d, 0, 32\ns_cselect_b32 s%d, 16, 0\ns_cselect_b32 s%d, 16, 32\ns_cselect_b32 s60, 0, 128\ns_cselect_b32 s%d, 0, 16384" % (sT, sT2, sT3, sKg))
            a("v_xor_b32 v%d, s%d, v%d\nv_xor_b32 v%d, s%d, v%d\nv_xor_b32 v%d, s%d, v%d" % (vD + 1, sT, vD, vD + 2, sT2, vD, vD + 3, sT3, vD))
            for q in range(4): a("v_xor_b32 v%d, s60, v%d" % (vD + 4 + q, vD + q))
        a("v_add_u32 v1, %d, v%d" % (XB[0], vBx))
    a("v_mov_b32 v238, %s\nv_mov_b32 v239, %s" % (f32(CSCALE), f32(CSCALE)))
    def reads(u):
        tr = lambda d: ["ds_read_b64_tr_b16 %s, v%d offset:%d" % (vr(AF(u, d) + 2 * rd, 2), cA2 if d else cA1, u * 8192 + rd * 1024) for rd in range(2)]
        return tr(0) + ["ds_read_b128 %s, v%d offset:%d" % (BF(u, t), cBx, (T0 + t) * 2048 + u * 256) for t in range(NRT)] + tr(1)
    def mfmas(u, first):
        return ["%s %s, %s, %s, %s" % (MF, ACC(t, d), vr(AF(u, d), 4), BF(u, t), "0" if first else ACC(t, d)) for d in range(2) for t in range(NRT)]
    if OPT["pst"]: a("s_memrealtime s[72:73]")
    stage_load(1)
    if OPT["pst"]: a("s_memrealtime s[74:75]")
    stamp(a, 1)
    def mix(ms, rs, ds=()):
        di = 0; ri = 0
        for k, x in enumerate(ms):
            a(x)
            for _ in range(2):
                if ri < len(rs): a(rs[ri]); ri += 1
            while di < len(ds) and di * len(ms) <= k * len(ds):
                a(ds[di][0], tag=ds[di][1]); di += 1
        for x, t in ds[di:]: a(x, tag=t)
    if ldr and OPT["hprio"]: a("s_setprio %d" % OPT["hprio"])
    for j in range(8):
        a.wait_vm_tag("h%d" % j)
        if OPT["pst"] and j == 0: a("s_memrealtime s[76:77]")
        a("v_add_u32 v%d, %d, v%d\nv_add_u32 v%d, %d, v%d\nv_add_u32 v%d, %d, v%d" % (cA1, HW[j % HD], vA1, cA2, HW[j % HD], vA2, cBx, HX[j % HD], vBx))
        a("s_waitcnt lgkmcnt(0)")
        a("s_barrier")
        if j < 7: stamp(a, j + 1, hs=True)
        d = stage_ops(j + HD - 1) if j + HD - 1 < 8 else []
        if j == 0 and HD == 4: d = stage_ops(2) + d
        cut = (len(d) + 1) // 2
        if j == 0:
            for x in reads(0): a(x)
            for x, t in d[:cut]: a(x, tag=t)
        else: mix(mfmas(1, False), reads(0), d[:cut])
        a("s_waitcnt lgkmcnt(0)")
        mix(mfmas(0, j == 0), reads(1), d[cut:])
        if not att and j == OPT["kv0"]: kv_tile(a, 0)
        if not att and j == 6:
            for x, t in kv_ops(1)[:OPT["k1a"]]: a(x, tag=t)
        if not att and j == 7:
            for x, t in kv_ops(1)[OPT["k1a"]:OPT["k1a"] + OPT["k1b"]]: a(x, tag=t)
    for x in mfmas(1, False): a(x)
    a("s_and_b32 s60, s%d, 3\ns_lshl_b32 s60, s60, 10" % sW)
    a("v_lshlrev_b32 v%d, 4, v12\nv_add_u32 v%d, s60, v%d" % (cBx, cBx, cBx))
    a("v_add_u32 v%d, %d, v%d\nv_add_u32 v%d, %d, v%d" % (cA1, Q1A, cBx, cA2, Q1C, cBx))
    for t in range(NRT): q_pack(a, 16 + 8 * t, "v[238:239]")
    for t in range(NRT): q_swap(a, 16 + 8 * t)
    for t in range(NRT):
        tg = T0 + t
        a("ds_write_b128 v%d, %s offset:%d" % (cA1 if tg < 6 else cA2, vr(16 + 8 * t, 4), (tg if tg < 6 else tg - 6) * 4096))
    if ldr and OPT["hprio"]: a("s_setprio 0")
    a("s_waitcnt lgkmcnt(0)")
    a("s_barrier")
    if not att:
        for x, t in kv_ops(1)[OPT["k1a"] + OPT["k1b"]:]: a(x, tag=t)
    stamp(a, 2)

def ACC(t, d):
    i = t * 4 + d
    return 16 + 4 * i if i < 28 else 176 + 4 * (i - 28)

def pair_signal(a):
    a("s_add_u32 s%d, s%d, 1" % (sBar, sBar))
    a("v_mov_b32 v%d, s%d" % (vT, sBar))
    a("ds_write_b32 v%d, v%d" % (vX3, vT))

def pair_wait(a, name, reads):
    a.label(name)
    a("ds_read_b32 v%d, v%d" % (vT, vX4))
    for x in reads: a(x)
    a("s_waitcnt lgkmcnt(%d)" % len(reads))
    a("v_readfirstlane_b32 s%d, v%d" % (sT, vT))
    a("s_cmp_ge_u32 s%d, s%d" % (sT, sBar))
    a("s_cbranch_scc1 %s_ok" % name)
    a("s_waitcnt lgkmcnt(0)")
    if OPT["sbs"]: a("s_sleep %d" % OPT["sbs"])
    a("s_branch %s" % name)
    a.label(name + "_ok")
    a("s_waitcnt lgkmcnt(0)")

def publish(a, name, t0, off=4, last=5, bits=PH2, nw=0):
    a("s_waitcnt vmcnt(%d)" % nw)
    a("s_mov_b64 exec, 1")
    a("v_mov_b32 v%d, %d\nv_mov_b32 v%d, 1" % (t0 + 2, CNT, t0 + 1))
    a("ds_add_rtn_u32 v%d, v%d, v%d offset:%d" % (t0, t0 + 2, t0 + 1, off))
    a("ds_read_b32 v%d, v%d offset:8" % (t0 + 1, t0 + 2))
    a("s_waitcnt lgkmcnt(0)")
    a("v_readfirstlane_b32 s%d, v%d" % (sT, t0))
    a("s_cmp_lg_u32 s%d, %d" % (sT, last))
    a("s_cbranch_scc1 %s" % name)
    a("v_or_b32 v%d, 0x%x, v%d" % (t0 + 1, bits, t0 + 1))
    a("s_lshl_b32 s%d, s%d, 2" % (sT2, sJJ))
    a("v_mov_b32 v%d, s%d" % (t0, sT2))
    a("buffer_store_dword v%d, v%d, %s, 0 offen%s" % (t0 + 1, t0, SR(S_FL), POL[OPT["polf"]] if bits == PH2 else " sc1"))
    if OPT["stamps"]:
        a("s_memrealtime s[88:89]\ns_add_u32 s96, s100, 0x%x\ns_addc_u32 s97, s101, 0\ns_mov_b32 s98, 0x100000\ns_mov_b32 s99, 0x20000" % (STAMP_OFF + 512 * 64))
        a("s_lshl_b32 s%d, s2, 6\ns_waitcnt lgkmcnt(0)\nv_mov_b32 v%d, s%d\nv_mov_b32 v%d, s88\nv_mov_b32 v%d, s89" % (sT, t0 + 3, sT, t0, t0 + 1))
        a("buffer_store_dwordx2 %s, v%d, s[96:99], 0 offen offset:%d" % (vr(t0, 2), t0 + 3, 0 if bits == PH2 else 8))
    a.label(name)
    a("s_mov_b64 exec, -1")

def attention(a):
    NT = 3; TL = 2
    a("s_waitcnt vmcnt(0)")
    a("v_lshlrev_b32 v%d, 4, v12" % vX1)
    a("s_mul_i32 s%d, s%d, %d\ns_add_u32 s%d, s%d, %d" % (sT, sRho, 12 * KB, sT, sT, Q1A))
    a("s_cmp_eq_u32 s%d, 2\ns_cselect_b32 s%d, %d, s%d" % (sRho, sT, Q1C, sT))
    a("v_add_u32 v%d, s%d, v%d" % (vX2, sT, vX1))
    for t in range(3):
        for s in range(4): a("ds_read_b128 %s, v%d offset:%d" % (Q(t, s), vX2, t * 4096 + s * 1024))
    if OPT["pair"]: a("s_xor_b32 s%d, s%d, 1" % (sPart, sW))
    else: a("s_add_u32 s%d, s%d, 3\ns_cmp_ge_u32 s%d, 6\ns_cselect_b32 s%d, 6, 0\ns_sub_u32 s%d, s%d, s%d" % (sPart, sW, sPart, sT2, sPart, sPart, sT2))
    a("s_lshl_b32 s%d, s%d, 2\ns_add_u32 s%d, s%d, %d\ns_lshl_b32 s%d, s%d, 2\ns_add_u32 s%d, s%d, %d" % (sT, sW, sT, sT, PFL, sT2, sPart, sT2, sT2, PFL))
    a("v_mov_b32 v%d, s%d\nv_mov_b32 v%d, s%d" % (vX3, sT, vX4, sT2))
    a("s_mov_b32 s%d, 0x40004000\ns_mov_b32 s%d, %s" % (sThr, sFl, f32(THR)))
    a("s_mov_b32 s%d, 0\ns_mov_b32 s%d, 0\ns_mov_b32 s%d, 2" % (sItem, sBar, sSlot))
    a("s_mul_i32 s%d, s%d, %d\ns_add_u32 s%d, s%d, %d" % (sExch, sRho, 12 * KB, sExch, sExch, Q2B))
    a("s_mov_b32 s%d, 0x%x\ns_mov_b32 s%d, %d" % (sNeg, (-2 * SLOT) & 0xffffffff, sPos, SLOT))
    a("s_lshl_b32 s%d, s%d, 3\ns_lshl_b32 s%d, s%d, 1\ns_add_u32 s%d, s%d, s%d\ns_mul_i32 s%d, s%d, 9" % (sT, sJJ, sT2, sKg, sT, sT, sT2, sT, sT))
    a("s_mul_i32 s%d, s%d, 3\ns_add_u32 s%d, s%d, s%d\ns_lshl_b32 s%d, s%d, 10\ns_add_u32 s%d, s%d, %d" % (sT2, sRho, sT, sT, sT2, sOoff, sT, sOoff, sOoff, 36 * KB))
    cstamp(a, 0)
    a.label("L_item")
    if OPT["ypr"] == 1: a("s_setprio 0")
    if OPT["ypr"] == 2: a("s_setprio 1")
    a("s_mov_b32 s%d, 0" % sCnt)
    a("s_waitcnt lgkmcnt(0)")
    Ga, Gb, Gc = 0, 4, 8
    def kread(kt, s):
        slot = (Gc + s) if kt == 0 else (Gb + s)
        return "ds_read_b128 %s, v%d offset:%d" % (vr(F(slot), 4), vK, kt * 4096 + s * 256)
    def vslot(dt): return (Ga + dt) if dt < 4 else (Gb + dt - 4)
    def vread(dt, rd):
        return "ds_read_b64_tr_b16 %s, v%d offset:%d" % (vr(F(vslot(dt)) + 2 * rd, 2), vVb if dt & 1 else vVa, rd * 4096 + (dt >> 1) * 256)
    def pv(t, dt, z=False): return "%s %s, %s, %s, %s" % (MF, O(t, dt), vr(F(vslot(dt)), 4), S(t, 0), "0" if z else O(t, dt))
    def lsum(t, z=False): return "%s %s, %s, %s, %s" % (MF, L(t), vr(vONE, 4), S(t, 0), "0" if z else L(t))
    def qk(t, kt, s, z=False):
        slot = (Gc + s) if kt == 0 else (Gb + s)
        return "%s %s, %s, %s, %s" % (MF, S(t, kt), vr(F(slot), 4), Q(t, s), ("0" if z else M(t)) if s == 0 else S(t, kt))
    EXP = lambda r: "v_exp_f32 v%d, v%d" % (r, r)
    def CVT(b, r): return "v_cvt_pk_bf16_f32 v%d, v%d, v%d" % (b + r, b + 2 * r, b + 2 * r + 1)
    def rowmax(b):
        return ["v_max3_f32 v%d, v%d, v%d, v%d" % (vT, b, b + 1, b + 2), "v_max3_f32 v%d, v%d, v%d, v%d" % (vT + 1, b + 3, b + 4, b + 5),
                "v_max3_f32 v%d, v%d, v%d, v%d" % (vT, vT, b + 6, b + 7), "v_max_f32 v%d, v%d, v%d" % (vT, vT, vT + 1),
                "v_mov_b32 v%d, v%d" % (vT + 1, vT), "v_permlane16_swap_b32 v%d, v%d" % (vT, vT + 1), "v_max_f32 v%d, v%d, v%d" % (vT, vT, vT + 1),
                "v_mov_b32 v%d, v%d" % (vT + 1, vT), "v_permlane32_swap_b32 v%d, v%d" % (vT, vT + 1), "v_max_f32 v%d, v%d, v%d" % (vT, vT, vT + 1)]
    def sm(t):
        b = vS + 8 * t
        g = [[EXP(b + r)] for r in range(4)] + [[CVT(b, 0), CVT(b, 1)]] + [[EXP(b + r)] for r in range(4, 8)] + [[CVT(b, 2), CVT(b, 3)]]
        g.append(["v_or3_b32 v%d, v%d, v%d, v%d" % (b + 4, b, b + 1, b + 2), "v_bitop3_b32 v%d, v%d, v%d, s%d bitop3:0xa8" % (b + 4, b + 4, b + 3, sThr)])
        g.append(["v_cmp_ne_u32 vcc, 0, v%d" % (b + 4)])
        return g
    def step(first):
        mf = []; fill = {}
        def put(idx, ops): fill.setdefault(idx, []).extend(ops)
        if not first: mf += [pv(TL, dt) for dt in (4, 5, 6, 7)] + [pv(TL, dt) for dt in (0, 1, 2, 3)] + [lsum(TL)]
        q0 = len(mf)
        qk_end = {}
        for t in range(NT):
            for kt in ((0, 1) if t < TL else (1, 0)):
                mf += [qk(t, kt, s, first) for s in range(4)]
                if t == TL and kt == 1: v47_at = len(mf) - 1
            qk_end[t] = len(mf) - 1
        pv_start = {}
        for t in range(TL):
            pv_start[t] = len(mf)
            mf += [pv(t, dt, first) for dt in range(4)] + [lsum(t, first)] + [pv(t, dt, first) for dt in range(4, 8)]
        n = len(mf)
        pre = [kread(0, s) for s in range(4)]
        if first:
            pre += [kread(1, s) for s in range(4)] + [vread(dt, rd) for dt in range(4) for rd in range(2)]
            pre += ["v_mov_b64 %s, 0" % vr(r, 2) for r in list(range(vO + 64, vO + 96, 2)) + [vL + 8, vL + 10]]
            pre += ["WAIT " + vr(F(Gc), 16)]
        else:
            for s in range(4): put(s, [kread(1, s)])
            for dt in range(4): put(4 + dt, [vread(dt, 0), vread(dt, 1)])
            put(8, ["WAIT " + vr(F(Gc), 16)])
        put(q0 + 3, ["WAIT " + vr(F(Gb), 16), "s_add_u32 s%d, s%d, 1" % (sSlot, sSlot)])
        put(q0 + 4, ["s_cmp_eq_u32 s%d, 3" % sSlot, "s_cselect_b32 s%d, s%d, s%d" % (sDelta, sNeg, sPos)])
        put(q0 + 5, ["s_cselect_b32 s%d, 0, s%d" % (sSlot, sSlot), "s_add_u32 s%d, s%d, 1" % (sCnt, sCnt)])
        for dt in range(4, 8): put(v47_at - 3 + (dt - 4), [vread(dt, 0), vread(dt, 1)])
        adv = ["v_add_u32 v%d, s%d, v%d" % (r, sDelta, r) for r in (vK, vVa, vVb)]
        tail = []
        if first:
            for t in range(NT):
                b = vS + 8 * t
                ops = rowmax(b) + ["v_add_f32 v%d, s%d, v%d" % (vT, sFl, vT)]
                ops += ["v_sub_f32 v%d, v%d, v%d" % (b + r, b + r, vT) for r in range(8)]
                ops += ["v_sub_f32 v%d, 0, v%d" % (vM + 4 * t + r, vT) for r in range(4)]
                ops += [EXP(b + r) for r in range(8)] + [CVT(b, r) for r in range(4)]
                lo = max(qk_end[t] + 3, [0, 21, 32][t]); hi = [20, 31, n - 1][t]
                for k, x in enumerate(ops): put(lo + k * (hi - lo + 1) // len(ops), [x])
            tail = adv
        else:
            groups = [(t, g) for t in range(NT) for g in sm(t)]
            lo = OPT["g0"]; span = n - lo
            for k, (t, g) in enumerate(groups):
                idx = lo + (k * span) // len(groups)
                assert t == TL or idx + 1 < pv_start[t], (t, idx)
                put(idx, g)
                if k % 12 == 11:
                    br = "s_cbranch_vccnz L_rare%d\nL_back%d:" % (t, t)
                    if t == 0: put(idx, [adv[0]])
                    if t == 1: put(idx, [adv[1]])
                    if t < TL: fill.setdefault(idx + 1, []).insert(0, br)
                    else: tail = [adv[2], "s_cmp_lt_u32 s%d, 16" % sCnt, br]
        put(pv_start[0] - 1, ["WAIT " + vr(F(Ga), 16)])
        put(pv_start[0] + 4, ["WAIT " + vr(F(Gb), 16)])
        a("s_barrier")
        if first and OPT["bst"] == 0:
            a("s_cmp_lg_u32 s%d, 1\ns_cbranch_scc1 L_bsx\ns_memrealtime s[76:77]\nL_bsx:" % sItem)
        for x in pre: a(x)
        for k, m in enumerate(mf):
            a(m)
            for x in fill.get(k, []): a(x)
        if not first:
            for _ in range(OPT["xmf"]): a("%s %s, %s, %s, %s" % (MF, vr(vT, 4), vr(F(0), 4), S(1, 0), vr(vT, 4) if _ else "0"))
        for x in tail: a(x)
    step(True)
    a.raw(".p2align 6")
    a.label("L_loop")
    step(False)
    a("s_cbranch_scc1 L_loop")
    a.label("L_bnd")
    if OPT["ypr"] == 1: a("s_cmp_lt_u32 s%d, 4\ns_cbranch_scc1 L_ypr\ns_setprio 1\nL_ypr:" % sW)
    if OPT["stamps"]:
        a("s_cmp_eq_u32 s%d, 0\ns_cbranch_scc0 L_st4" % sItem)
        stamp(a, 3); cstamp(a, 1)
        a("s_branch L_st4b")
        a.label("L_st4"); stamp(a, 4)
        a.label("L_st4b")
    if OPT["ypr"] == 2: a("s_setprio 0")
    bstamp(a, 1)
    a("s_cmp_eq_u32 s%d, 0" % sItem)
    a("s_cbranch_scc0 L_nomx")
    if OPT["mxf"]:
        a("s_mov_b64 exec, 1")
        a("v_mov_b32 v%d, %d\nv_mov_b32 v%d, 1" % (vT + 2, CNT, vT + 1))
        a("ds_add_u32 v%d, v%d offset:20" % (vT + 2, vT + 1))
        a.label("L_q2w")
        a("ds_read_b32 v%d, v%d offset:24" % (vT, vT + 2))
        a("s_waitcnt lgkmcnt(0)")
        a("v_readfirstlane_b32 s%d, v%d" % (sT, vT))
        a("s_cmp_lt_u32 s%d, 2\ns_cbranch_scc1 L_q2w" % sT)
        a("s_mov_b64 exec, -1")
    else:
        a("s_barrier")
    a("v_add_u32 v%d, s%d, v%d" % (vX2, sExch, vX1))
    for t in range(3):
        for s in range(4): a("ds_read_b128 %s, v%d offset:%d" % (Q(t, s), vX2, t * 4096 + s * 1024))
    pair_signal(a)
    a.label("L_nomx")
    bstamp(a, 2)
    a("s_lshl_b32 s%d, s%d, 12\ns_add_u32 s%d, s%d, %d" % (sT, sW, sT, sT, EX1))
    a("v_add_u32 v%d, s%d, v%d" % (vX2, sT, vX1))
    def send(t, areg, off):
        o = []
        for h in range(2):
            b = vO + 32 * t + 16 + 8 * h
            o += ["v_cvt_pk_bf16_f32 v%d, v%d, v%d" % (b + r, b + 2 * r, b + 2 * r + 1) for r in range(4)]
            o.append("ds_write_b128 v%d, %s offset:%d" % (areg, vr(b, 4), off + h * 1024))
        return o
    fin = [lsum(TL)] + [pv(TL, dt) for dt in (4, 5, 6, 7, 0, 1, 2, 3)]
    ex = send(0, vX2, 0) + send(1, vX2, 2048)
    for k, m in enumerate(fin):
        a(m)
        for x in ex[k * len(ex) // 9:(k + 1) * len(ex) // 9]: a(x)
    a("v_and_b32 v%d, 15, v0\nv_lshlrev_b32 v%d, 3, v%d" % (vT + 2, vT + 2, vT + 2))
    a("s_mul_i32 s%d, s%d, 384\ns_add_u32 s%d, s%d, %d" % (sT, sW, sT, sT, MLB))
    a("v_add_u32 v%d, s%d, v%d" % (vT + 3, sT, vT + 2))
    for t in range(3):
        a("v_mov_b32 v%d, v%d" % (vM + 4 * t + 1, vL + 4 * t))
        a("ds_write_b64 v%d, %s offset:%d" % (vT + 3, vr(vM + 4 * t, 2), t * 128))
    a("s_lshl_b32 s%d, s%d, 11\ns_add_u32 s%d, s%d, s%d" % (sT, sKg, sT, sT, sExch))
    a("v_add_u32 v%d, s%d, v%d" % (vX2, sT, vX1))
    a("s_waitcnt lgkmcnt(0)")
    pair_wait(a, "L_pw0", [])
    bstamp(a, 3)
    for x in send(2, vX2, 0): a(x)
    pair_signal(a)
    a("s_mul_i32 s%d, s%d, 384\ns_add_u32 s%d, s%d, %d" % (sT2, sPart, sT2, sT2, MLB))
    a("v_add_u32 v%d, s%d, v%d" % (vT + 3, sT2, vT + 2))
    a("v_xor_b32 v%d, 2048, v%d" % (vX2, vX2))
    a("s_lshl_b32 s%d, s%d, 12\ns_add_u32 s%d, s%d, %d" % (sT, sPart, sT, sT, EX1))
    a("v_add_u32 v%d, s%d, v%d" % (vT + 2, sT, vX1))
    a("s_waitcnt lgkmcnt(0)")
    rd = ["ds_read_b64 %s, v%d offset:%d" % (vr(vM + 4 * t + 2, 2), vT + 3, t * 128) for t in range(3)]
    for t in range(3):
        for h in range(2):
            rd.append("ds_read_b128 %s, v%d offset:%d" % (vr(vS + 8 * t + 4 * h, 4), vT + 2 if t < 2 else vX2, (t * 2048 if t < 2 else 0) + h * 1024))
    pair_wait(a, "L_pw", rd)
    bstamp(a, 4)
    for t in range(3):
        m = vM + 4 * t; l = vL + 4 * t
        a("v_min_f32 v%d, v%d, v%d" % (l, m, m + 2))
        a("v_sub_f32 v%d, v%d, v%d\nv_sub_f32 v%d, v%d, v%d" % (l + 1, l, m, l + 2, l, m + 2))
        a("v_exp_f32 v%d, v%d\nv_exp_f32 v%d, v%d" % (l + 1, l + 1, l + 2, l + 2))
        a("v_mul_f32 v%d, v%d, v%d" % (l + 3, l + 1, m + 1))
        a("v_fma_f32 v%d, v%d, v%d, v%d" % (l + 3, l + 2, m + 3, l + 3))
        a("v_rcp_f32 v%d, v%d" % (l, l + 3))
        a("v_mul_f32 v%d, v%d, v%d\nv_mul_f32 v%d, v%d, v%d" % (l + 3, l + 2, l, l + 2, l + 2, l))
        a("v_mul_f32 v%d, v%d, v%d\nv_mov_b32 v%d, v%d" % (l + 1, l + 1, l, l, l + 1))
    def combine(out):
        for t in range(3):
            l = vL + 4 * t
            for h in range(2):
                b = vO + 32 * t + 8 * h; u = b + 16; pk = vS + 8 * t + 4 * h
                for r in range(4):
                    a("v_lshlrev_b32 v%d, 16, v%d\nv_and_b32 v%d, 0xffff0000, v%d" % (u + 2 * r, pk + r, u + 2 * r + 1, pk + r))
                for r in range(0, 8, 2): a("v_pk_mul_f32 %s, %s, %s" % (vr(b + r, 2), vr(b + r, 2), vr(l, 2)))
                for r in range(0, 8, 2): a("v_pk_fma_f32 %s, %s, %s, %s" % (vr(b + r, 2), vr(u + r, 2), vr(l + 2, 2), vr(b + r, 2)))
                for r in range(4): a("v_cvt_pk_bf16_f32 v%d, v%d, v%d" % (pk + r, b + 2 * r, b + 2 * r + 1))
                out(t, h, pk)
    a("s_cmp_eq_u32 s%d, 0" % sItem)
    a("s_cbranch_scc0 L_att_done")
    combine(lambda t, h, pk: a("ds_write_b128 v%d, %s offset:%d" % (vT + 2 if t < 2 else vX2, vr(pk, 4), (t * 2048 if t < 2 else 0) + h * 1024)))
    bstamp(a, 5)
    a("s_mov_b32 s%d, 1\ns_lshl_b32 s%d, s%d, 12\ns_add_u32 s%d, s%d, %d" % (sItem, sExch, sRho, sExch, sExch, EX2))
    a("s_waitcnt lgkmcnt(0)")
    a("s_branch L_item")
    a.vm = []; a.lgkm = []
    for t in range(NT):
        b = vS + 8 * t
        a.label("L_rare%d" % t)
        a("s_nop 15")
        a("v_subrev_u32 v%d, s%d, v%d" % (vX2, sDelta, vK))
        for kt in range(2):
            for s in range(4):
                a("ds_read_b128 %s, v%d offset:%d" % (vr(vT, 4), vX2, kt * 4096 + s * 256))
                a("s_waitcnt lgkmcnt(0)")
                a("%s %s, %s, %s, %s" % (MF, S(t, kt), vr(vT, 4), Q(t, s), M(t) if s == 0 else S(t, kt)))
                a("s_nop 3")
        for x in rowmax(b): a(x)
        a("v_add_f32 v%d, s%d, v%d\nv_max_f32 v%d, 0, v%d" % (vT, sFl, vT, vT, vT))
        for r in range(8): a("v_sub_f32 v%d, v%d, v%d" % (b + r, b + r, vT))
        for r in range(4): a("v_sub_f32 v%d, v%d, v%d" % (vM + 4 * t + r, vM + 4 * t + r, vT))
        a("v_exp_f32 v%d, -v%d" % (vT + 1, vT))
        for r in range(4): a("v_mul_f32 v%d, v%d, v%d" % (vL + 4 * t + r, vL + 4 * t + r, vT + 1))
        for r in range(32): a("v_mul_f32 v%d, v%d, v%d" % (vO + 32 * t + r, vO + 32 * t + r, vT + 1))
        for r in range(8): a(EXP(b + r))
        for r in range(4): a(CVT(b, r))
        a("s_nop 3")
        a("s_branch L_back%d" % t)
    a.label("L_att_done")
    a("s_mov_b64 exec, 1")
    a("v_mov_b32 v%d, %d\nv_mov_b32 v%d, 1" % (vT + 2, CNT, vT + 1))
    a("ds_add_u32 v%d, v%d" % (vT + 2, vT + 1))
    a("s_mov_b64 exec, -1")
    combine(lambda t, h, pk: a("s_add_u32 s%d, s%d, %d\nbuffer_store_dwordx4 %s, v%d, %s, s%d offen%s" % (sT, sOoff, (h * 9 + t) * 1024, vr(pk, 4), vX1, SR(S_O), sT, POL[OPT["pols2"]])))
    bstamp(a, 5)
    a("s_cmp_lt_u32 s%d, 2" % sW)
    a("s_cbranch_scc1 L_join")
    publish(a, "L_pub_x", vT)
    a("s_endpgm")
    a.label("L_join")
    a("s_lshl_b32 s%d, s%d, 14" % (sBlkP, sW))
    a("s_cmp_eq_u32 s%d, 0\ns_cselect_b32 s%d, %d, 0\ns_cselect_b32 s%d, 0, %d\ns_add_u32 s%d, s%d, s%d" % (sW, sBlkD, 64 * KB, sT, 116 * KB, sBlkD, sBlkD, sT))
    op_setup(a, True)
    if not OPT["latep"]:
        for i in range(36): a("v_mov_b64 %s, 0\nv_mov_b64 %s, 0" % (vr(ACC(i // 4, i % 4), 2), vr(ACC(i // 4, i % 4) + 2, 2)))
        publish(a, "L_pub_y", 250)
        stamp(a, 5)
    a("v_mov_b32 v250, %d" % CNT)
    a.label("L_w6")
    a("ds_read_b32 v251, v250")
    a("ds_read_b32 v252, v250 offset:8")
    a("s_waitcnt lgkmcnt(0)")
    a("v_readfirstlane_b32 s%d, v251\nv_readfirstlane_b32 s%d, v252" % (sT, sTag))
    a("s_cmp_lt_u32 s%d, 6\ns_cbranch_scc1 L_w6" % sT)
    a("s_or_b32 s%d, s%d, 0x%x" % (sWant, sTag, PHM))
    a("s_branch L_p2")
    a.vm = []; a.lgkm = []

def wo_touch(a, phase, i):
    a("s_lshr_b32 s%d, s%d, 1\ns_and_b32 s%d, s%d, 12\ns_add_u32 s%d, s%d, s%d\ns_lshl_b32 s%d, s%d, 18" % (sT, sB, sT2, sJJ, sT, sT, sT2, sT, sT))
    a("s_and_b32 s%d, s%d, 1\ns_lshl_b32 s%d, s%d, 16\ns_add_u32 s%d, s%d, s%d" % (sT2, sB, sT2, sT2, sT, sT, sT2))
    a("s_and_b32 s%d, s%d, 3\ns_lshl_b32 s%d, s%d, 14\ns_add_u32 s%d, s%d, s%d" % (sT2, sJJ, sT2, sT2, sT, sT, sT2))
    a("s_and_b32 s%d, s%d, 1\ns_lshl_b32 s%d, s%d, 13\ns_add_u32 s%d, s%d, s%d" % (sT2, sW, sT2, sT2, sT, sT, sT2))
    a("s_add_u32 s%d, s%d, %d" % (sT2, sT, phase * 131072))
    a.autowait = False
    a("buffer_load_dword v147, v146, %s, s%d offen" % (SR(S_WO), sT2), tag="x")
    a.autowait = True

def aux_step(a, step, pre=None, extra=None):
    a.wait_vm_tag("t%d" % step)
    a("s_barrier")
    if OPT["sst"] >= 0 and step >= OPT["sst"] and (step - OPT["sst"]) % OPT["sstd"] == 0 and (step - OPT["sst"]) // OPT["sstd"] < 6:
        k_ = 1 + (step - OPT["sst"]) // OPT["sstd"]
        a("s_memrealtime s[%d:%d]" % (64 + 2 * k_, 65 + 2 * k_))
    if OPT["ck"] and step in (1, 8, 15, 31):
        k_ = (1, 8, 15, 31).index(step)
        a("s_memrealtime s[%d:%d]\ns_memtime s[%d:%d]" % (64 + 4 * k_, 65 + 4 * k_, 66 + 4 * k_, 67 + 4 * k_))
    for ph in (0, 1):
        lst = [int(x) for x in OPT["tw%d" % ph].split(",") if x]
        for i, st_ in enumerate(lst):
            if st_ == step: wo_touch(a, ph, i)
    if pre: pre()
    nxt = step + 2
    if nxt < 32 and nxt != 18: kv_tile(a, nxt)
    if nxt == 18:
        for x, t in kv_ops(18)[OPT["early"]:]: a(x, tag=t)
    if step == OPT["pfm"]:
        a("s_lshl_b32 s%d, s%d, 4\ns_add_u32 s%d, s%d, s%d\ns_lshl_b32 s%d, s%d, 1\ns_and_b32 s%d, s%d, 1\ns_add_u32 s%d, s%d, s%d\ns_lshl_b32 s%d, s%d, 14" % (sT, sB, sT, sT, sJJ, sT, sT, sT2, sW, sT, sT, sT2, sT, sT))
        a.autowait = False
        a("buffer_load_dword v147, v146, %s, s%d offen" % (SR(S_WO), sT), tag="x")
        a("s_add_u32 s%d, s%d, 8192" % (sT, sT))
        a("buffer_load_dword v147, v146, %s, s%d offen" % (SR(S_WO), sT), tag="x")
        a.autowait = True
    if extra: extra()

def aux(a):
    if OPT["auxprio"]: a("s_setprio %d" % OPT["auxprio"])
    a("v_lshlrev_b32 v%d, 2, v14\nv_lshlrev_b32 v146, 7, v12" % vFo)
    a("s_lshl_b32 s%d, s%d, 4\nv_mov_b32 v%d, s%d" % (sT, sG, vDg, sT))
    BF = lambda t: vr(208 + 4 * t, 4)
    AF = lambda d: 156 + 4 * d
    sW2, sXq = 58, 61
    a("s_and_b32 s%d, s%d, 1" % (sT3, sW))
    a("v_lshrrev_b32 v9, 5, v12\nv_lshl_add_u32 v4, v15, 13, v4\nv_lshl_add_u32 v4, v9, 15, v4")
    a("s_lshl_b32 s%d, s%d, 9\ns_lshl_b32 s%d, s%d, 7\ns_add_u32 s%d, s%d, s%d\ns_add_u32 s%d, s%d, 256" % (sT, sJJ, sT2, sT3, sT, sT, sT2, sT, sT))
    a("v_add_u32 v4, s%d, v4" % sT)
    a("v_add_u32 v5, 64512, v4\nv_xor_b32 v5, 32, v5\nv_add_u32 v6, 129024, v4\nv_add_u32 v7, 129024, v5")
    a("s_mul_i32 s%d, s%d, %d\ns_add_u32 s%d, s%d, %d" % (sW2, sT3, 12 * KB, sW2, sW2, W2R))
    a("v_add_u32 v2, s%d, v2\nv_xor_b32 v3, 32, v2" % sW2)
    a("s_lshl_b32 s%d, s%d, 5\nv_xor_b32 v8, s%d, v8\nv_xor_b32 v9, 32, v8" % (sT, sT3, sT))
    a("s_mul_i32 s%d, s%d, 9" % (sXq, sT3))
    a("v_mov_b32 v10, %s\nv_mov_b32 v11, %s" % (f32(CSCALE), f32(CSCALE)))
    def chunk(m): a("s_add_u32 s%d, s%d, %d\ns_and_b32 s%d, s%d, 7" % (sT3, sRot, (6 + m) & 7, sT3, sT3))
    PH = [0]
    def hd(i):
        a("s_add_u32 s%d, s%d, %d\ns_and_b32 s%d, s%d, 3\ns_and_b32 s%d, s%d, 12\ns_add_u32 s%d, s%d, s%d\ns_lshl_b32 s%d, s%d, 3" % (sT3, sJJ, i, sT3, sT3, sT2, sJJ, sT3, sT3, sT2, sT3, sT3))
    def wo_load(n):
        hd(n // 4)
        a("s_lshl_b32 s%d, s%d, 15\ns_add_u32 s%d, s%d, %d\ns_add_u32 m0, s%d, %d" % (sT2, sT3, sT2, sT2, (n & 3) << 15, sW2, (n % 3) * 4096))
        for q in range(4):
            a("buffer_load_dwordx4 v%d, %s, s%d offen offset:%d%s lds" % (4 + q, SR(S_WO), sT2, q * 1024, POL[OPT["polwo"]]), tag="q%d" % n)
    def o_load(m):
        hd(m // 2)
        a("s_and_b32 s%d, s%d, 1\ns_add_u32 s%d, s%d, s%d\ns_add_u32 s%d, s%d, %d\ns_mul_i32 s%d, s%d, 9216\ns_mul_i32 s63, s%d, 9216" % (sT2, sW, sT3, sT3, sT2, sT3, sT3, 2 * (m & 1), sT3, sT3, sT2))
        if OPT["xo"] & 1: a("s_mov_b32 s%d, 0" % sT3)
        for e in range(9):
            if e % 4 == 0: a("s_add_u32 m0, s63, %d\ns_add_u32 s%d, s%d, %d" % (XB[m & 1] + e * 1024, sT2, sT3, e * 1024))
            a("buffer_load_dwordx4 v8, %s, s%d offen offset:%d%s lds" % (SR(S_O), sT2, (e & 3) * 1024, POL[OPT["polo"]]), tag="x%d" % m)
    def w2_load(n):
        if PH[0]: return wo_load(n)
        chunk(n // 2)
        a("s_lshl_b32 s%d, s%d, 19\ns_add_u32 s%d, s%d, %d\ns_add_u32 m0, s%d, %d" % (sT2, sT3, sT2, sT2, (n & 1) << 18, sW2, (n % 3) * 4096))
        for q in range(4):
            a("buffer_load_dwordx4 v%d, %s, s%d offen offset:%d%s lds" % (4 + q, SR(S_WQ), sT2, q * 1024, POL[OPT["polw"]]), tag="q%d" % n)
    def x2_load(m):
        chunk(m)
        a("s_lshl_b32 s%d, s%d, 7\ns_lshl_b32 s%d, s%d, 13\ns_add_u32 s%d, s%d, s%d\ns_lshl_b32 s63, s%d, 10" % (sT3, sT3, sT2, sXq, sT3, sT3, sT2, sXq))
        for e in range(9):
            a("s_add_u32 m0, s63, %d\ns_add_u32 s%d, s%d, %d" % (XB[m & 1] + e * 1024, sT2, sT3, e * 8192))
            a("buffer_load_dwordx4 v%d, %s, s%d offen%s lds" % (8 + (e & 1), SR(S_X), sT2, POL[OPT["polx"]]), tag="x%d" % m)
    AF2 = [172, 244, 248, 252]
    def q2_a(n, alt):
        a.wait_vm_tag("q%d" % n)
        for d in range(4):
            for rd in range(2):
                a("ds_read_b64_tr_b16 %s, v%d offset:%d" % (vr((AF2[d] if alt else AF(d)) + 2 * rd, 2), 3 if d & 1 else 2, (n % 3) * 4096 + rd * (2048 if PH[0] else 512) + (d >> 1) * 256))
    def q2_b(n, t): a("ds_read_b128 %s, v%d offset:%d" % (BF(t), 9 if PH[0] else 1, ((n // 2) & 1) * 18 * KB + (((n & 1) * 9 + t) * 1024 if PH[0] else t * 2048 + (n & 1) * 256)))
    def q2_step(n, fill=(), chain=False, chained=False):
        A_ = (lambda d: AF2[d]) if chained else AF
        if not chained:
            q2_a(n, False)
            for t in range(9): q2_b(n, t)
            a("WAIT " + vr(AF(0), 16))
        else: a("WAIT " + " ".join(vr(r, 4) for r in AF2))
        if n + 3 < 16: w2_load(n + 3)
        if not chained: a("s_waitcnt lgkmcnt(0)")
        fi = 0
        def pack_ops(t):
            o = []
            for h in range(2):
                b = ACC(t, 2 * h)
                o += ["v_mul_f32 v%d, v10, v%d" % (b + r, b + r) for r in range(8)]
                o += ["v_cvt_pk_bf16_f32 v%d, v%d, v%d" % (b + r, b + 2 * r, b + 2 * r + 1) for r in range(4)]
            for h in range(2):
                b = ACC(t, 2 * h)
                o += ["v_permlane16_swap_b32 v%d, v%d" % (b, b + 2), "v_permlane16_swap_b32 v%d, v%d" % (b + 1, b + 3)]
            return o
        lastq = n == 15 and not PH[0]
        if lastq and OPT["p14"]: a("s_setprio %d" % OPT["p14"])
        for t in range(9):
            po = pack_ops(t - 2) if lastq and t >= 2 else []
            for d in range(4):
                c = vr(ACC(t, d), 4)
                a("%s %s, %s, %s, %s" % (MF, c, vr(A_(d), 4), BF(t), "0" if n == 0 else c))
                if chain and d == 3: q2_b(n + 1, t)
                if chain and t == 4 and d == 0: q2_a(n + 1, True)
                i = t * 4 + d
                if i >= 36 - OPT["q2mix"] * len(fill) and (36 - i) % OPT["q2mix"] == 0 and fi < len(fill):
                    a(fill[fi][0], tag=fill[fi][1]); fi += 1
                for x in po[7 * d:7 * d + 7]: a(x)
        assert fi == len(fill)
        if lastq:
            for x in pack_ops(7) + pack_ops(8): a(x)
    sched = {}; n_ = 0
    for i_, c_ in enumerate(OPT["q2s"]):
        sched[i_ + 1] = list(range(n_, n_ + int(c_))); n_ += int(c_)
    assert n_ == 16 and len(OPT["q2s"]) <= 14
    at = {n: s_ for s_, l_ in sched.items() for n in l_}
    xiss = {m: at[2 * (m - 2) + 1] + 1 for m in range(2, 8)}
    for m in xiss: assert at[2 * m] > xiss[m], m
    QW = at[15] + 1
    psched = {}; n_ = 0
    for i_, c_ in enumerate(OPT["ps"]):
        psched[i_ + OPT["p0"]] = list(range(n_, n_ + int(c_))); n_ += int(c_)
    assert n_ == 16 and OPT["p0"] >= 18 and OPT["p0"] + len(OPT["ps"]) <= 31
    pat = {n: s_ for s_, l_ in psched.items() for n in l_}
    oiss = {m: pat[2 * (m - 2) + 1] + 1 for m in range(2, 8)}
    if OPT["od"]: oiss[2] = pat[4] - 1
    for m in oiss: assert pat[2 * m] > oiss[m] > OPT["fl0"] and (m == 2 or oiss[m] >= oiss[m - 1]), m
    def o1_store():
        a("s_and_b32 s%d, s%d, 1" % (sT3, sW))
        a("s_mul_i32 s%d, s%d, %d\ns_add_u32 s%d, s%d, %d\nv_add_u32 v%d, s%d, v1" % (sT, sT3, 4096 if OPT["pair"] else 3 * 4096, sT, sT, EX1, vA_, sT))
        a("s_lshl_b32 s%d, s%d, 11\ns_add_u32 s%d, s%d, %d\nv_add_u32 v%d, s%d, v1" % (sT, sT3, sT, sT, Q2B, vB_, sT))
        fr = [(i, t, h) for i in range(3) for t in range(3) for h in range(2)]
        for n, (i, t, h) in enumerate(fr):
            if t < 2: a("ds_read_b128 %s, v%d offset:%d" % (vr(16 + 4 * n, 4), vA_, i * (8192 if OPT["pair"] else 4096) + t * 2048 + h * 1024))
            else: a("ds_read_b128 %s, v%d offset:%d" % (vr(16 + 4 * n, 4), vB_, i * 12 * KB + h * 1024))
        a("s_mul_i32 s%d, s%d, %d\ns_mul_i32 s%d, s%d, %d\ns_add_u32 s%d, s%d, %d\ns_sub_u32 s%d, s%d, s%d" % (sT2, sJJ, 8 * 9216, sT3, sT3, 2 * 9216, sT2, sT2, 2 * 9216, sT2, sT2, sT3))
        for n, (i, t, h) in enumerate(fr):
            a("s_add_u32 s%d, s%d, %d" % (sT, sT2, (h * 9 + 3 * i + t) * 1024))
            a("buffer_store_dwordx4 %s, v1, %s, s%d offen%s" % (vr(16 + 4 * n, 4), SR(S_O), sT, POL[OPT["pols"]]), tag="st")
    def pre(step):
        if step == 0:
            for n in range(3): w2_load(n)
        for m in xiss:
            if xiss[m] == step: x2_load(m)
        if step == 17:
            PH[0] = 1
            a("s_and_b32 s%d, s%d, 1\ns_xor_b32 s%d, s%d, 1\ns_mul_i32 s%d, s%d, %d\nv_add_u32 v%d, s%d, v9" % (sT, sW, sT, sT, sT, sT, 18 * KB, vA_, sT))
            for n, (i, t, h) in enumerate([(i, t, h) for i in range(3) for t in range(3) for h in range(2)]):
                a("ds_write_b128 v%d, %s offset:%d" % (vA_, vr(16 + 4 * n, 4), (h * 9 + 3 * i + t) * 1024))
            for n in range(3): w2_load(n)
            a("s_waitcnt lgkmcnt(0)")
        for m in oiss:
            if oiss[m] == step:
                if m % 2 == 0:
                    a.wait_vm_tag("fl")
                    keep = list(a.vm)
                    a.label("L_f%d" % m)
                    ready(a)
                    a("s_add_u32 s%d, s%d, %d\ns_and_b32 s%d, s%d, 3\ns_and_b32 s%d, s%d, 12\ns_add_u32 s%d, s%d, s%d" % (sT3, sJJ, m // 2, sT3, sT3, sT2, sJJ, sT3, sT3, sT2))
                    a("s_bitcmp1_b32 s%d, s%d\ns_cbranch_scc1 L_f%dok" % (sR2, sT3, m))
                    a("s_sleep %d" % OPT["slp"]); a(FLOAD); a("s_waitcnt vmcnt(0)\ns_branch L_f%d" % m)
                    a.label("L_f%dok" % m)
                    a.vm = keep
                o_load(m)
            if m % 2 == 0 and oiss[m] - 1 == step: a(FLOAD, tag="fl")
        ns = (psched if PH[0] else sched).get(step, [])
        ch = OPT["q2p"] and len(ns) == 2 and ns[0] % 2 == 0
        for n in ns:
            if OPT["q2mix"] and n == ns[-1] and step + 2 < 32:
                q2_step(n, kv_ops(step + 2), False, ch); KV_DONE.add(step + 2)
            else: q2_step(n, (), ch and n != ns[-1], ch and n == ns[-1])
        if step == QW:
            a("s_and_b32 s%d, s%d, 1\ns_lshl_b32 s%d, s%d, 11\ns_add_u32 s%d, s%d, %d" % (sT, sW, sT, sT, sT, sT, Q2B))
            a("v_lshlrev_b32 v1, 4, v12\nv_add_u32 v2, s%d, v1" % sT)
            fr = [(t, h) for t in range(9) for h in range(2)]
            for t, h in fr: a("ds_write_b128 v2, %s offset:%d" % (vr(ACC(t, 2 * h), 4), t * 4096 + h * 1024))
            if OPT["mxf"]:
                a("s_mov_b64 exec, 1")
                a("v_mov_b32 v%d, %d\nv_mov_b32 v%d, 1" % (vA_, CNT, vB_))
                a("ds_add_u32 v%d, v%d offset:24" % (vA_, vB_))
                a("s_mov_b64 exec, -1")
            if OPT["p14"]: a("s_setprio %d" % OPT["auxprio"])
        if step == 16 and OPT["st1"]: o1_store()
        if step == OPT["pubat"]:
            a("s_cmp_lg_u32 s%d, 6\ns_cbranch_scc1 L_nopub" % sW)
            a("s_lshl_b32 s%d, s%d, 2\nv_mov_b32 v%d, s%d\nv_mov_b32 v%d, s%d" % (sT, sJJ, vA_, sT, vB_, sTag))
            keep = list(a.vm)
            a("buffer_store_dword v%d, v%d, %s, 0 offen sc1" % (vB_, vA_, SR(S_FL)))
            a.vm = keep
            a.label("L_nopub")
    def extra(step):
        if step == 0:
            a("buffer_load_dword v%d, v%d, %s, 0 offen sc1" % (vFl, vFo, SR(S_FL)), tag="fl")
        if step == 3:
            cstamp(a, 0)
            a("s_lshl_b32 s%d, s%d, 3\ns_add_u32 s%d, s%d, s%d\ns_cmp_lg_u32 s%d, 6\ns_cbranch_scc1 L_nolead" % (sT, sJJ, sT, sT, sW, sT))
            a("v_lshrrev_b32 v%d, v14, v%d\nv_and_b32 v%d, 1, v%d\nv_cmp_eq_u32 vcc, 0, v%d" % (vFl, vFl, vFl, vFl, vFl))
            a("s_nop 1")
            a("s_and_b32 s%d, vcc_lo, 0xffff\ns_or_b32 s%d, s%d, 0x80000000" % (sT, sT, sT))
            a("v_mov_b32 v%d, s%d" % (vFl, sT))
            keep = list(a.vm)
            a("buffer_store_dword v%d, v%d, %s, 0 offen sc1" % (vFl, vDg, SR(S_DBG)))
            a.vm = keep
            a.label("L_nolead")
        if step == 9:
            a("buffer_load_dword v%d, v%d, %s, 0 offen sc1" % (vFl, vDg, SR(S_DBG)), tag="fl")
        if step == 12:
            cstamp(a, 1)
            keep = list(a.vm)
            a.label("L_tag")
            a("v_cmp_eq_u32 vcc, 0, v%d" % vFl)
            a("s_cbranch_vccz L_tag_ok")
            a("s_sleep 8")
            a("buffer_load_dword v%d, v%d, %s, 0 offen sc1" % (vFl, vDg, SR(S_DBG)))
            a("s_waitcnt vmcnt(0)")
            a("s_branch L_tag")
            a.label("L_tag_ok")
            a.vm = keep
            a("v_readfirstlane_b32 s%d, v%d" % (sTag, vFl))
            a("v_mov_b32 v%d, %d" % (vA_, TAGW))
            a("ds_write_b32 v%d, v%d" % (vA_, vFl))
            a("s_or_b32 s%d, s%d, 0x%x" % (sWant, sTag, PHM))
            a("s_waitcnt lgkmcnt(0)")
        for m in xiss:
            if xiss[m] == step and at[2 * m] == step + 1: a.wait_vm_tag("x%d" % m)
            if oiss[m] <= step and pat[2 * m] == step + 1: a.wait_vm_tag("x%d" % m)
        if step == 15:
            a("s_waitcnt lgkmcnt(0)")
            if OPT["mxf"] and not OPT["early"]: pass
            elif OPT["mxf"]:
                a("v_mov_b32 v%d, %d" % (vA_, CNT))
                a.label("L_mxw")
                a("s_sleep 1")
                a("ds_read_b32 v%d, v%d offset:20" % (vB_, vA_))
                a("s_waitcnt lgkmcnt(0)")
                a("v_readfirstlane_b32 s%d, v%d" % (sT, vB_))
                a("s_cmp_lt_u32 s%d, 6\ns_cbranch_scc1 L_mxw" % sT)
            else: a("s_barrier")
            for x, t in kv_ops(18)[:OPT["early"]]: a(x, tag=t)
        if step == 16:
            if not OPT["st1"]: o1_store()
            a("s_mov_b32 s%d, s%d" % (sBlkP, sW2))
            op_setup(a, False)
            a("v_mov_b32 v8, v1\nv_add_u32 v9, %d, v1" % XB[0])
        if step == OPT["pubat"] - 1: a.wait_vm_tag("st")
    for step in range(32):
        aux_step(a, step, pre=lambda: pre(step), extra=lambda: extra(step))
    stamp(a, 3)
    a("s_and_b32 s%d, s%d, 1\ns_lshl_b32 s%d, s%d, 14\ns_add_u32 s%d, s%d, %d" % (sT, sW, sT, sT, sT, sT, 96 * KB))
    a("s_sub_u32 s%d, s%d, s%d\ns_mov_b32 s%d, s%d\ns_mov_b32 s%d, 0x%x" % (sT2, sT, sBlkP, sBlkP, sT, sBlkD, (-64 * KB) & 0xffffffff))
    a("v_add_u32 v2, s%d, v2\nv_add_u32 v3, s%d, v3\nv_add_u32 v8, 4096, v1\nv_add_u32 v9, 8192, v1" % (sT2, sT2))

FLOAD = "buffer_load_dword v10, v11, %s, 0 offen sc1" % SR(S_FL)
def ready(a):
    a.autowait = False
    a("v_or_b32 v10, v15, v10\nv_cmp_eq_u32 vcc, s%d, v10\ns_nop 1\ns_mov_b64 s[%d:%d], vcc" % (sWant, sR2, sR2 + 1))
    if OPT["nopoll"]: a("s_mov_b64 s[%d:%d], -1" % (sR2, sR2 + 1))
    a.autowait = True

def op_setup(a, second):
    lanes(a)
    a("v_lshlrev_b32 v1, 4, v12\nv_add_u32 v8, 4096, v1")
    a("v_lshrrev_b32 v9, 5, v12")
    a("v_and_b32 v4, 3, v12\nv_lshlrev_b32 v5, 1, v9\nv_xor_b32 v4, v4, v5\nv_lshlrev_b32 v4, 4, v4")
    a("v_and_b32 v5, 1, v13")
    a("v_lshl_add_u32 v4, v5, 6, v4\nv_lshl_add_u32 v4, v15, 10, v4\nv_lshl_add_u32 v4, v9, 12, v4")
    if second: a("v_xor_b32 v4, 64, v4")
    a("s_and_b32 s%d, s%d, 3\ns_lshl_b32 s%d, s%d, 8\ns_and_b32 s%d, s%d, 1\ns_lshl_b32 s%d, s%d, 7\ns_add_u32 s%d, s%d, s%d" % (sT, sJJ, sT, sT, sT2, sW, sT2, sT2, sT, sT, sT2))
    a("v_add_u32 v4, s%d, v4" % sT)
    a("v_and_b32 v2, 3, v12\nv_lshlrev_b32 v2, 3, v2\nv_lshl_add_u32 v2, v15, 6, v2\nv_lshl_add_u32 v2, v5, 5, v2\nv_lshl_add_u32 v2, v13, 9, v2")
    a("v_add_u32 v2, s%d, v2\nv_xor_b32 v3, 32, v2" % sBlkP)
    for q in range(1, 4): a("v_add_u32 v%d, %d, v4" % (4 + q, 7168 * q))
    a("v_add_u32 v9, 8192, v1\nv_lshlrev_b32 v11, 2, v14")
    a("v_lshrrev_b32 v15, v13, 3\nv_lshlrev_b32 v15, 29, v15" if False else "v_mov_b32 v15, 3\nv_lshrrev_b32 v15, v13, v15\nv_lshlrev_b32 v15, 29, v15")
    a("s_and_b32 s%d, s%d, 1\ns_lshl_b32 s%d, s%d, 1\ns_add_u32 s%d, s%d, %d" % (sOpIdx, sW, sOpIdx, sOpIdx, sOpIdx, sOpIdx, 1 if second else 0))

def op_tail(a):
    B = lambda k, t: vr((208 if k & 1 == 0 else 128) + 4 * t, 4)
    AT = [164, 168, 172, 244]
    def run(ops):
        a.autowait = False
        for x in ops: a(x)
        a.autowait = True
        a.vm = []; a.lgkm = []
    def head_offs(i, so, sb):
        a("s_add_u32 s%d, s%d, s%d\ns_and_b32 s%d, s%d, 3\ns_and_b32 s%d, s%d, 12\ns_add_u32 s%d, s%d, s%d" % (sT3, sJJ, i, sT3, sT3, sT2, sJJ, sT3, sT3, sT2))
        a("s_add_u32 s%d, s%d, 16\ns_lshl_b32 s%d, s%d, 3\ns_add_u32 s%d, s%d, 4" % (sb, sT3, sT3, sT3, sT3, sT3))
        a("s_mul_i32 s%d, s%d, 9216\ns_lshl_b32 s%d, s%d, 15" % (so, sT3, sWn, sT3))
        if OPT["xo"] & 2: a("s_mov_b32 s%d, 0" % so)
    def w_ops(k, blk):
        return ["s_add_u32 m0, s%d, %d" % (blk, k * 4096), "s_add_u32 s%d, s%d, %d" % (sT2, sWn, k * 32768)] + \
               ["buffer_load_dwordx4 v%d, %s, s%d offen offset:%d%s lds" % (4 + q, SR(S_WO), sT2, q * 1024, POL[OPT["polwo"]]) for q in range(4)]
    def o_op(k, t): return "buffer_load_dwordx4 %s, v%d, %s, s%d offen offset:%d%s" % (B(k, t), [1, 8, 9][t >> 2], SR(S_O), sT3, (t & 3) * 1024, POL[OPT["polo"]])
    def a_reads(k, cp):
        return ["ds_read_b64_tr_b16 %s, v%d offset:%d" % (vr(AT[2 * cp + c] + 2 * rd, 2), 3 if c else 2, k * 4096 + rd * 2048 + cp * 256) for c in range(2) for rd in range(2)]
    toggle = ["v_add_u32 v2, s%d, v2" % sBlkD, "v_add_u32 v3, s%d, v3" % sBlkD, "s_add_u32 s%d, s%d, s%d" % (sBlkP, sBlkP, sBlkD), "s_sub_u32 s%d, 0, s%d" % (sBlkD, sBlkD)]
    a.raw(".p2align 3")
    a.label("L_p2")
    run([FLOAD])
    a("s_and_b32 s%d, s%d, 1\ns_lshl_b32 s%d, s%d, 1\ns_add_u32 s62, s%d, 1" % (sT, sOpIdx, sT, sT, sT))
    head_offs(62, sOc, sBc)
    for k in range(4): run(w_ops(k, sBlkP))
    a("s_add_u32 s62, s62, 1\ns_add_u32 s63, s%d, s%d" % (sBlkP, sBlkD))
    head_offs(62, sOn, sBn)
    for k in range(4): run(w_ops(k, 63))
    if OPT["latep"]:
        a("s_cmp_ge_u32 s%d, 6\ns_cbranch_scc1 L_p2_np" % sW)
        publish(a, "L_pub_y", 250, nw=33)
        stamp(a, 5)
        for i in range(36): a("v_mov_b64 %s, 0\nv_mov_b64 %s, 0" % (vr(ACC(i // 4, i % 4), 2), vr(ACC(i // 4, i % 4) + 2, 2)))
        a.label("L_p2_np")
        a.vm = []; a.lgkm = []
    a("s_waitcnt vmcnt(32)")
    a("s_mov_b32 s%d, 2" % sBit)
    a.label("L_p2_chk")
    ready(a)
    a("s_bitcmp1_b32 s%d, s%d\ns_cbranch_scc1 L_p2_go" % (sR2, sBc))
    a("s_bitcmp1_b32 s%d, s%d\ns_cbranch_scc1 L_p2_swap" % (sR2, sBn))
    run(["s_sleep %d" % OPT["slp"]])
    a.label("L_p2_poll")
    run([FLOAD, "s_waitcnt vmcnt(0)", "s_branch L_p2_chk"])
    a.label("L_p2_swap")
    run(["s_mov_b32 s%d, s%d" % (sT, sBc), "s_mov_b32 s%d, s%d" % (sBc, sBn), "s_mov_b32 s%d, s%d" % (sBn, sT),
         "s_mov_b32 s%d, s%d" % (sT, sOc), "s_mov_b32 s%d, s%d" % (sOc, sOn), "s_mov_b32 s%d, s%d" % (sOn, sT)] + toggle)
    a.label("L_p2_go")
    stamp(a, 6)
    if OPT["stamps"]: a("s_cmp_lg_u32 s%d, 2\ns_cbranch_scc1 L_p2_st\ns_memrealtime s[68:69]\nL_p2_st:" % sBit)
    for k in range(2): run(["s_add_u32 s%d, s%d, %d" % (sT3, sOc, k * 9216)] + [o_op(k, t) for t in range(9)])
    run([FLOAD, "s_waitcnt vmcnt(19)"] + a_reads(0, 0))
    def kstep(k, ho, extra):
        more = k < 2 or ho
        run(["s_waitcnt vmcnt(%d) lgkmcnt(0)" % ((9 + extra) if (k < 3 or ho) else 0)] + a_reads(k, 1))
        if more: run(["s_add_u32 s%d, s%d, %d" % (sT3, sOc if k < 2 else sOn, ((k + 2) & 3) * 9216)])
        for cp in range(2):
            if cp == 1:
                run(["s_waitcnt lgkmcnt(0)"])
                if k == 3: run(toggle)
                if k < 3 or ho: run(a_reads((k + 1) & 3, 0))
            for t in range(9):
                for c in range(2):
                    r = vr(ACC(t, 2 * cp + c), 4)
                    run(["%s %s, %s, %s, %s" % (MF, r, vr(AT[2 * cp + c], 4), B(k, t), r)])
                if cp == 1 and more: run([o_op(k, t)])
    kstep(0, False, 1)
    kstep(1, False, 0)
    a("s_cmp_eq_u32 s%d, 1\ns_cbranch_scc1 L_p2_last" % sBit)
    ready(a)
    a("s_bitcmp1_b32 s%d, s%d\ns_cbranch_scc0 L_p2_last" % (sR2, sBn))
    kstep(2, True, 0); kstep(3, True, 0)
    a("s_mov_b32 s%d, s%d\ns_mov_b32 s%d, 1" % (sOc, sOn, sBit))
    kstep(0, False, 0); kstep(1, False, 0)
    a.label("L_p2_last")
    kstep(2, False, 0); kstep(3, False, 0)
    a("s_mov_b32 s%d, s%d\ns_mov_b32 s%d, s%d" % (sOc, sOn, sBc, sBn))
    a("s_sub_u32 s%d, s%d, 1\ns_cmp_lg_u32 s%d, 0\ns_cbranch_scc1 L_p2_poll" % (sBit, sBit, sBit))
    stamp(a, 1)
    a("s_add_u32 s%d, s%d, s%d\ns_min_u32 s%d, s%d, s%d\ns_max_u32 s%d, s%d, s%d" % (sT, sBlkP, sBlkD, sT2, sT, sBlkP, sT3, sT, sBlkP))
    a("v_add_u32 v8, s%d, v1\nv_add_u32 v9, s%d, v1" % (sT2, sT3))
    for t in range(9):
        for c in range(2): a("ds_write_b128 v%d, %s offset:%d" % (8 if t < 8 else 9, vr(ACC(t, 2 + c), 4), ((t & 7) * 2 + c) * 1024))
    a("v_xor_b32 v8, %d, v8" % (32 * KB))
    a("s_mov_b32 s%d, %d\ns_cmp_eq_u32 s%d, 1\ns_cselect_b32 s%d, %d, s%d" % (sT, 64 * KB, sOpIdx, sT, 96 * KB, sT))
    a("s_cmp_eq_u32 s%d, 2\ns_cselect_b32 s%d, %d, s%d\ns_cmp_eq_u32 s%d, 3\ns_cselect_b32 s%d, %d, s%d" % (sOpIdx, sT, 132 * KB, sT, sOpIdx, sT, 112 * KB, sT))
    a("v_add_u32 v9, s%d, v1" % sT)
    a("s_lshl_b32 s%d, s%d, 2\ns_and_b32 s%d, s%d, 3\ns_add_u32 s%d, s%d, s%d\ns_lshl_b32 s%d, s%d, 2\ns_add_u32 s%d, s%d, s%d" % (sT, sG, sT2, sJJ, sT, sT, sT2, sT, sT, sT, sT, sOpIdx))
    a("s_mul_i32 s%d, s%d, %d\ns_add_u32 s%d, s%d, 0x%x\ns_add_u32 s90, s100, s%d\ns_addc_u32 s91, s101, 0" % (sT, sT, 4 * 9216, sT, sT, SLAB_OFF, sT))
    srd(a, S_SL, 90, 91, "%d" % (4 * 9216))
    a("s_waitcnt lgkmcnt(0)")
    a("s_barrier")
    for t in range(9):
        for c in range(2): a("ds_read_b128 %s, v%d offset:%d" % (vr(ACC(t, 2 + c), 4), 8 if t < 8 else 9, ((t & 7) * 2 + c) * 1024))
    a("v_add_u32 v8, 4096, v1\nv_add_u32 v9, 8192, v1")
    a("s_lshr_b32 s62, s%d, 2" % sJJ)
    a("s_cmp_eq_u32 s62, s%d\ns_cbranch_scc1 L_fin" % sOpIdx)
    keepl = list(a.lgkm)
    def addp(t):
        b = ACC(t, 0)
        for r in range(0, 8, 2): a("v_pk_add_f32 %s, %s, %s" % (vr(b + r, 2), vr(b + r, 2), vr(b + 8 + r, 2)))
    def cvt(t):
        b = ACC(t, 0)
        for r in range(4): a("v_cvt_pk_bf16_f32 v%d, v%d, v%d" % (b + r, b + 2 * r, b + 2 * r + 1))
    a("s_mul_i32 s%d, s62, 9216" % sT3)
    for t in range(9):
        addp(t); cvt(t)
        a("buffer_store_dwordx4 %s, v%d, %s, s%d offen offset:%d sc1" % (vr(ACC(t, 0), 4), [1, 8, 9][t >> 2], SR(S_SL), sT3, (t & 3) * 1024))
    publish(a, "L_pub_z", 250, 28, 2, PHM)
    if OPT["stamps"]:
        stamp(a, 7); stamp_store(a)
    a("s_endpgm")
    a.vm = []; a.lgkm = keepl
    a.label("L_fin")
    for t in range(9): addp(t)
    lanes(a)
    a("v_and_b32 v244, 1, v14\nv_lshlrev_b32 v244, 4, v244\nv_mov_b32 v245, 0x3f80\nv_lshlrev_b32 v245, v244, v245")
    a("v_cmp_eq_u32 vcc, v15, v13\nv_mov_b32 v244, 0\nv_cndmask_b32 v245, 0, v245, vcc")
    a("v_and_b32 v246, 2, v14\nv_cmp_eq_u32 vcc, 0, v246\nv_mov_b32 v248, 0\nv_mov_b32 v249, 0")
    a("v_cndmask_b32 v246, 0, v245, vcc\nv_cndmask_b32 v247, v245, v244, vcc\nv_mov_b32 v245, 0")
    a("v_lshrrev_b32 v4, 1, v13\nv_and_b32 v5, 1, v13\nv_lshl_or_b32 v4, v5, 1, v4\nv_lshlrev_b32 v4, 4, v4\nv_lshl_add_u32 v4, v14, 11, v4")
    a("s_mul_i32 s%d, s%d, %d\ns_lshl_b32 s%d, s%d, 10\ns_add_u32 s%d, s%d, s%d" % (sOutOff, sB, 144 * 2048, sT, sBlk, sOutOff, sOutOff, sT))
    a("s_and_b32 s%d, s%d, 3\ns_lshl_b32 s%d, s%d, 8\ns_add_u32 s%d, s%d, s%d\ns_lshl_b32 s%d, s62, 6\ns_add_u32 s%d, s%d, s%d" % (sT2, sJJ, sT, sT2, sOutOff, sOutOff, sT, sT, sOutOff, sOutOff, sT))
    a("v_mov_b32 v15, 3\nv_lshrrev_b32 v15, v13, v15\nv_lshlrev_b32 v15, 29, v15")
    a("s_lshl_b32 s%d, 0x1111, s%d\ns_lshl_b32 s%d, 1, s%d\ns_andn2_b32 s%d, s%d, s%d" % (sBit, sT2, sT, sJJ, sBit, sBit, sT))
    run([FLOAD, "s_waitcnt vmcnt(0)"])
    a.label("L_fin_chk")
    ready(a)
    a("s_andn2_b32 s%d, s%d, s%d\ns_cbranch_scc0 L_fin_go" % (sT, sBit, sR2 + 1))
    run(["s_sleep %d" % OPT["slp"], FLOAD, "s_waitcnt vmcnt(0)", "s_branch L_fin_chk"])
    a.label("L_fin_go")
    stamp(a, 4)
    SL = lambda i, t: (ACC(t, 2 + i) if i < 2 else 128 + 4 * t)
    for i in range(3): a("s_add_u32 s%d, s62, %d\ns_and_b32 s%d, s%d, 3\ns_mul_i32 s%d, s%d, 9216" % (sOc + i, i + 1, sOc + i, sOc + i, sOc + i, sOc + i))
    for t in range(9):
        for i in range(3):
            a("buffer_load_dwordx4 %s, v%d, %s, s%d offen offset:%d sc1" % (vr(SL(i, t), 4), [1, 8, 9][t >> 2], SR(S_SL), sOc + i, (t & 3) * 1024))
    def fin_out(t):
        cvt(t); q_swap(a, ACC(t, 0))
        a("s_add_u32 s%d, s%d, %d" % (sT, sOutOff, t * 32768))
        a("buffer_store_dwordx4 %s, v4, %s, s%d offen%s" % (vr(ACC(t, 0), 4), SR(S_OUT), sT, POL[OPT["polout"]]))
    for t in range(9):
        for i in range(3):
            for c in range(2):
                r = vr(ACC(t, c), 4)
                a("%s %s, %s, %s, %s" % (MF, r, vr(246 - 2 * c, 4), vr(SL(i, t), 4), r))
        if t: fin_out(t - 1)
    fin_out(8)
    if OPT["stamps"]:
        a("s_waitcnt vmcnt(0)")
        stamp(a, 7); stamp_store(a)
    a("s_endpgm")
    a.vm = []; a.lgkm = []

def kernel():
    a = Asm()
    a.raw(".globl %s\n.p2align 8\n.type %s,@function" % (NAME, NAME)); a.label(NAME)
    a("s_cmp_ge_u32 s2, 256\ns_cbranch_scc1 L_end")
    if OPT["stamps"]:
        for k in range(1 if OPT["pst"] else NST): a("s_memrealtime s[%d:%d]" % (64 + 2 * k, 65 + 2 * k))
    a("s_and_b32 s%d, s2, 7\ns_lshr_b32 s%d, s2, 3\ns_lshr_b32 s%d, s%d, 2" % (sT, sT2, sBlk, sT))
    a("s_mul_i32 s%d, s%d, 40" % (sT3, sBlk))
    a("s_add_u32 s4, s0, s%d\ns_addc_u32 s5, s1, 0" % sT3)
    a("s_load_dwordx8 s[80:87], s[4:5], 0")
    a("s_load_dwordx2 s[88:89], s[4:5], 32")
    a("s_load_dwordx4 s[96:99], s[0:1], 80")
    a("s_load_dwordx2 s[92:93], s[0:1], 96")
    a("s_lshr_b32 s%d, s%d, 4\ns_lshl_b32 s%d, s%d, 1\ns_add_u32 s%d, s%d, s%d" % (sGo, sT2, sT3, sT, sGo, sGo, sT3))
    a("s_and_b32 s%d, s%d, 15" % (sJo, sT2))
    if OPT["map"] == 0:
        a("s_mov_b32 s%d, s%d\ns_mov_b32 s%d, s%d\ns_and_b32 s%d, s%d, 7" % (sG, sGo, sJJ, sJo, sB, sGo))
        a("s_and_b32 s%d, s%d, 1\ns_lshl_b32 s%d, s%d, 2\ns_add_u32 s%d, s%d, s%d" % (sRot, sG, sRot, sRot, sRot, sRot, sJJ))
    elif OPT["map"] == 1:
        a("s_and_b32 s%d, s%d, 7\ns_and_b32 s%d, s%d, 1\ns_lshl_b32 s%d, s%d, 3\ns_add_u32 s%d, s%d, s%d" % (sRot, sT2, sJJ, sT, sJJ, sJJ, sJJ, sJJ, sRot))
        a("s_lshr_b32 s%d, s%d, 3\ns_lshl_b32 s%d, s%d, 1\ns_add_u32 s%d, s%d, s%d" % (sB, sT2, sT3, sB, sRot, sRot, sT3))
        a("s_and_b32 s%d, s%d, 2\ns_lshl_b32 s%d, s%d, 1\ns_add_u32 s%d, s%d, s%d" % (sT3, sT, sT3, sT3, sB, sB, sT3))
        a("s_lshl_b32 s%d, s%d, 3\ns_add_u32 s%d, s%d, s%d" % (sG, sBlk, sG, sG, sB))
    else:
        a("s_and_b32 s%d, s%d, 3\ns_and_b32 s%d, s%d, 3\ns_lshl_b32 s%d, s%d, 2\ns_add_u32 s%d, s%d, s%d" % (sRot, sT2, sJJ, sT, sJJ, sJJ, sJJ, sJJ, sRot))
        a("s_lshr_b32 s%d, s%d, 2\ns_lshl_b32 s%d, s%d, 1\ns_add_u32 s%d, s%d, s%d" % (sB, sT2, sRot, sRot, sRot, sRot, sB))
        if OPT["cls"] == 1: a("s_and_b32 s%d, s%d, 3\ns_lshl_b32 s%d, s%d, 1\ns_lshr_b32 s%d, s%d, 4\ns_add_u32 s%d, s%d, s%d" % (sB, sB, sB, sB, sT3, sT2, sB, sB, sT3))
        a("s_lshl_b32 s%d, s%d, 3\ns_add_u32 s%d, s%d, s%d" % (sG, sBlk, sG, sG, sB))
    if OPT["cls"] == 1: a("s_lshr_b32 s3, s2, 7")
    if OPT["cls"] == 2: a("s_mov_b32 s3, s%d" % sBlk)
    a("v_lshrrev_b32 v12, 6, v0")
    a("v_readfirstlane_b32 s%d, v12" % sW)
    a("s_mul_i32 s62, s%d, 147456" % sB)
    def code_pf():
        a("s_getpc_b64 s[90:91]")
        a.label("L_pf")
        if OPT["pfw"]:
            a("s_lshr_b32 s%d, s2, 3\ns_and_b32 s%d, s%d, 3\ns_min_u32 s%d, s%d, 2\ns_lshl_b32 s%d, s%d, 15" % (sT, sT, sT, sT, sT, sT, sT))
            a("v_lshlrev_b32 v240, 7, v0\nv_add_u32 v240, s%d, v240" % sT)
        else: a("v_lshlrev_b32 v240, 7, v0")
        a.items.append(a._mk("v_min_u32 v240, 0x1234, v240")); a.items[-1].text = "v_min_u32 v240, L_end-L_pf, v240"
        if OPT["pfw"] == 2: a("s_cmp_ge_u32 s2, 32\ns_cbranch_scc1 L_nopf")
        a("global_load_dword v253, v240, s[90:91]")
        if OPT["pfw"] == 2: a.label("L_nopf")
    if not OPT["pfw"]: code_pf()
    if OPT["fast0"]:
        loader_setup(a)
        if OPT["pst"]: a("s_memrealtime s[66:67]")
        srds_first(a)
        if OPT["pst"]: a("s_memrealtime s[68:69]")
        a("s_cmp_lt_u32 s%d, 4\ns_cbranch_scc1 L_arole" % sW)
        st0 = (list(a.lgkm), list(a.vm))
        for x, t in stage_ops_(0, 4): a(x, tag=t)
        st = (list(a.lgkm), list(a.vm))
        a("s_cmp_ge_u32 s%d, 6\ns_cbranch_scc1 L_auxrole\ns_branch L_brole" % sW)
        a.label("L_arole")
        a.lgkm, a.vm = list(st0[0]), list(st0[1])
    else:
        a("s_cmp_ge_u32 s%d, 6\ns_cbranch_scc1 L_auxrole" % sW)
        st = (list(a.lgkm), list(a.vm))
        a("s_cmp_ge_u32 s%d, 4\ns_cbranch_scc1 L_brole" % sW)
    if OPT["pfw"]: code_pf()
    head(a, "A")
    a("s_branch L_att")
    a.lgkm, a.vm = list(st[0]), list(st[1])
    a.raw(".p2align 3"); a.label("L_brole")
    head(a, "B")
    a.label("L_att")
    attention(a)
    a.lgkm, a.vm = list(st[0]), list(st[1])
    a.raw(".p2align 3"); a.label("L_auxrole")
    head(a, "X")
    aux(a)
    a.vm = []
    op_tail(a)
    a.label("L_end"); a("s_endpgm")
    a.pad_hazards()
    a.check_backedge("L_loop", "s_cbranch_scc1 L_loop")
    a.align8()
    return a.text()

out = []
out.append("; " + " ".join(sys.argv[1:]) + " : fused Q-projection + attention + O-projection, one launch (generated by dev/gen13.py)")
out.append("; @launch grid=(256,1,1) block=(512,1,1) lds=163840")
out.append('.amdgcn_target "amdgcn-amd-amdhsa--gfx950"\n.text')
out.append(kernel())
out.append('.section .rodata,"a"\n.p2align 6')
out.append(""".amdhsa_kernel %s
  .amdhsa_next_free_vgpr 256
  .amdhsa_next_free_sgpr 102
  .amdhsa_accum_offset 256
  .amdhsa_group_segment_fixed_size 0
  .amdhsa_kernarg_size 104
  .amdhsa_user_sgpr_count 2
  .amdhsa_user_sgpr_kernarg_segment_ptr 1
  .amdhsa_system_sgpr_workgroup_id_x 1
.end_amdhsa_kernel
""" % NAME)
print("\n".join(out))
```

```python
import sys, math, struct
sys.path.insert(0, "dev")
from asmlib import *

OPT = dict(stamps=0, samekv=0, clk=0, hst=0, nopoll=0, polo=2, polw=0, polx=0, polwo=0, pols=2, polkv=1, slp=4, lo=2,
           auxprio=0, sbs=1, s0=22, kp="3333333322", sst=-1, sstd=1, xo=0, xw=0, map=2, park=2, hprio=1, kv0=5, kv1=6, pk14=0, ck=0, polout=0, ptouch=0, tw0="", tw1="", g0=15, cap=0, capto=16, nol=0, q2mix=2, bst=-1, bw=0, pair=1, mxf=1, p14=1, early=8, tst=0, cpf=1, pfm=-1, pst=0, pfw=1, fast0=1, q2s="22111111111111", q2p=1, q2pr=0, kvc=0, xmf=0, cls=0, capl=0, capl0=2, capl1=17, pubat=18, st1=0, hb=3, k1a=8, k1b=8, pad=0, ypr=2, asym=-1, p0=18, ps="1111112222110", fl0=19, od=1, pols2=2, polf=2)
for a_ in sys.argv[1:]:
    k, v = a_.split("="); assert k in OPT, k; OPT[k] = v if k in ("kp", "tw0", "tw1", "q2s", "ps") else int(v)

NAME = "concat_heads__mha_block_cached__gqa_block_cached__near_ridge_kernel"
def f32(x): return "0x%08x" % struct.unpack("<I", struct.pack("<f", x))[0]
CSCALE = math.log2(math.e) / math.sqrt(128.0)
THR = 8.0
KB = 1024
SLOT = 32 * KB
XB = [96 * KB, 114 * KB, 132 * KB]
WB = [32 * KB, 48 * KB, 0]
Q2B = 96 * KB; Q1A = 132 * KB; Q1C = 32 * KB; EX1 = 132 * KB; EX2 = 80 * KB; W2R = 132 * KB
MLB = 156 * KB; CNT = 160 * KB - 128; TAGW = CNT + 8; CLAIM = CNT + 16; PFL = CNT + 32
STAMP_OFF = 0x10000000; FLAG_OFF = 0x2000000
PH2 = 0x40000000; PH3 = 0x20000000; PHM = 0x60000000
SLAB_OFF = 0x2800000
S_SL = 8
sR2 = 60
OSTR = 128 * 9216 + 1024
MF = "v_mfma_f32_16x16x32_bf16"
NST = 8
POL = ["", " nt", " sc1", " sc0 sc1", " sc1 nt", " sc0 sc1 nt", " sc0 nt", " sc0"]
NIN = sum(int(c) for c in OPT["kp"]) // 4
assert NIN * 4 == sum(int(c) for c in OPT["kp"]) and NIN <= 7

HD = OPT["hb"]
HX = XB if HD == 3 else [64 * KB, 132 * KB, 96 * KB, 114 * KB]
HW = WB if HD == 3 else [0, 16 * KB, 32 * KB, 48 * KB]
SPLIT = OPT["pubat"] + 1
S_FL, S_WQ, S_X, S_O, S_KV, S_WO, S_OUT, S_DBG = 4, 8, 12, 16, 20, 24, 28, 32
S_OL, S_FLL = 8, 12
sW, sG, sJJ, sBlk, sB, sRot, sT, sT2, sT3 = 36, 37, 38, 39, 40, 41, 42, 43, 44
sCnt, sThr, sFl, sSlot, sDelta, sItem, sExS, sBar, sExch, sOoff = 45, 46, 47, 48, 49, 50, 51, 52, 53, 54
sNeg, sPos, sPart, sKg, sRho = 55, 56, 57, 59, 62
sHk, sHo = 46, 47
sOc, sOn, sWn, sBlkP, sRm, sBit, sR, sC = 46, 47, 48, 49, 51, 52, 55, 56
sBlkD, sBc, sBn, sOnn = 45, 53, 58, 86
sOb, sWb, sOutOff, sOpIdx, sTag, sWant, sTagA = 80, 81, 82, 83, 84, 85, 87
sGo, sJo = 94, 95

def srd(a, d, lo, hi, nrec):
    a("s_mov_b32 s%d, s%d\ns_mov_b32 s%d, s%d" % (d, lo, d + 1, hi))
    a("s_mov_b32 s%d, %s\ns_mov_b32 s%d, 0x20000" % (d + 2, nrec, d + 3))
def SR(d): return "s[%d:%d]" % (d, d + 3)

def cstamp(a, e):
    if OPT["clk"]: a("s_memtime s[%d:%d]\ns_memrealtime s[%d:%d]" % (66 + 2 * e, 67 + 2 * e, 70 + 2 * e, 71 + 2 * e))
def stamp(a, k, hs=False):
    if not OPT["stamps"] or OPT["ck"]: return
    if OPT["clk"] and 1 <= k <= 4: return
    if (OPT["sst"] >= 0 or OPT["bst"] >= 0 or OPT["tst"] or OPT["pst"]) and k and k != 7: return
    if OPT["hst"] and k and not hs: return
    if hs and not OPT["hst"]: return
    a("s_memrealtime s[%d:%d]" % (64 + 2 * k, 65 + 2 * k))
BSN = [0]
def bstamp(a, k):
    if OPT["bst"] < 0: return
    BSN[0] += 1
    a("s_cmp_lg_u32 s%d, %d\ns_cbranch_scc1 L_bs%d\ns_memrealtime s[%d:%d]\nL_bs%d:" % (sItem, OPT["bst"], BSN[0], 64 + 2 * k, 65 + 2 * k, BSN[0]))
def stamp_store(a):
    a("s_waitcnt vmcnt(0) lgkmcnt(0)")
    a("s_cmp_eq_u32 s%d, 6\ns_cselect_b32 s%d, 256, 0" % (sW, sT))
    a("s_mul_i32 s%d, s%d, 43\ns_lshr_b32 s%d, s%d, 8\ns_mul_i32 s%d, s%d, 6" % (sT2, sW, sT2, sT2, sT2, sT2))
    a("s_cmp_lg_u32 s%d, s%d\ns_cbranch_scc1 L_end" % (sT2, sW))
    a("s_add_u32 s96, s100, 0x%x\ns_addc_u32 s97, s101, 0" % STAMP_OFF)
    a("s_mov_b32 s98, 0x100000\ns_mov_b32 s99, 0x20000")
    a("s_add_u32 s3, s2, s%d\ns_mul_i32 s3, s3, %d" % (sT, NST * 8))
    a("v_mov_b32 v12, s3\ns_mov_b64 exec, 1")
    for k in range(NST):
        a("v_mov_b32 v14, s%d\nv_mov_b32 v15, s%d" % (64 + 2 * k, 65 + 2 * k))
        a("buffer_store_dwordx2 v[14:15], v12, s[96:99], 0 offen offset:%d" % (8 * k))
        a("s_nop 1")

def lanes(a):
    a("v_and_b32 v12, 63, v0\nv_lshrrev_b32 v13, 4, v12\nv_and_b32 v14, 15, v12\nv_bfe_u32 v15, v12, 2, 2")

vK, vVa, vVb = 1, 2, 3
vX1, vX2, vX3, vX4 = 4, 5, 6, 7
vONE, vT, vQ, vO, vL, vM, vS, vF = 8, 12, 16, 64, 160, 172, 184, 208
def Q(t, s): return vr(vQ + 16 * t + 4 * s, 4)
def O(t, dt): return vr(vO + 32 * t + 4 * dt, 4)
def L(t): return vr(vL + 4 * t, 4)
def M(t): return vr(vM + 4 * t, 4)
def S(t, kt): return vr(vS + 8 * t + 4 * kt, 4)
def F(i): return vF + 4 * i
vD = 128
vFo, vDg, vDg2, vFl, vA_, vB_, vOr, vCl, vCr, vCb = 136, 137, 138, 139, 140, 141, 142, 143, 144, 145

sKo = 50
KVN = [0]
def kv_one(a, capped=True):
    n = KVN[0]
    if n >= 512: return
    KVN[0] += 1
    tile, e = divmod(n, 16); grp, q = divmod(e, 4)
    slot = (tile + 2) % 3
    a("s_add_u32 m0, s%d, %d\ns_mov_b32 s%d, %d" % (sKg, slot * SLOT + grp * 4096, sKo, tile * 16384 + grp * 4096))
    if capped: a.wait_vm_tag("k%d" % (n - OPT["lead"]))
    a("buffer_load_dwordx4 v%d, %s, s%d offen offset:%d%s lds" % (vD + q + (4 if grp >= 2 else 0), SR(S_KV), sKo, q * 1024, POL[OPT["polkv"]]), tag="k%d" % n)
def kv_upto(a, n, capped=True):
    while KVN[0] < min(n, 512): kv_one(a, capped)

def srds_first(a):
    a("s_waitcnt lgkmcnt(0)")
    srd(a, S_WQ, 86, 87, "%d" % (512 * 8192))
    a("s_add_u32 s80, s80, s62\ns_addc_u32 s81, s81, 0")
    srd(a, S_X, 80, 81, "147456")

def srds_rest(a):
    a("s_mul_i32 s%d, s%d, %d\ns_add_u32 s%d, s%d, 1024\ns_add_u32 s90, s92, s%d\ns_addc_u32 s91, s93, 0" % (sT, sG, OSTR, sT, sT, sT))
    srd(a, S_O, 90, 91, "%d" % (128 * 9216))
    if not OPT["kvc"]: a("s_cmp_eq_u32 s%d, 6\ns_cselect_b32 s82, s82, s84\ns_cselect_b32 s83, s83, s85" % sW)
    a("s_lshl_b32 s%d, s%d, 4\ns_add_u32 s%d, s%d, s%d" % (sT, sB, sT, sT, sJJ))
    if OPT["samekv"]: a("s_mov_b32 s%d, 0" % sT)
    a("s_lshl_b32 s%d, s%d, 19" % (sT, sT))
    a("s_add_u32 s82, s82, s%d\ns_addc_u32 s83, s83, 0" % sT)
    srd(a, S_KV, 82, 83, "524288")
    srd(a, S_WO, 88, 89, "%d" % (4096 * 1024))
    srd(a, S_OUT, 96, 97, "%d" % (8 * 144 * 1024 * 2))
    srd(a, S_DBG, 98, 99, "256")
    if OPT["kvc"]:
        a("s_add_u32 s84, s84, s%d\ns_addc_u32 s85, s85, 0" % sT)
        srd(a, S_V, 84, 85, "524288")
    a("s_lshl_b32 s%d, s%d, 8\ns_add_u32 s%d, s%d, 0x%x\ns_add_u32 s90, s92, s%d\ns_addc_u32 s91, s93, 0" % (sT, sG, sT, sT, FLAG_OFF, sT))
    srd(a, S_FL, 90, 91, "64")
    a("s_mov_b32 s100, s92\ns_mov_b32 s101, s93")
    if OPT["pair"]: a("s_and_b32 s%d, s%d, 1\ns_lshr_b32 s%d, s%d, 1" % (sKg, sW, sRho, sW))
    else: a("s_cmp_ge_u32 s%d, 3\ns_cselect_b32 s%d, 1, 0\ns_mul_i32 s%d, s%d, 3\ns_sub_u32 s%d, s%d, s%d" % (sW, sKg, sT, sKg, sRho, sW, sT))
    a("v_and_b32 v236, 31, v0\nv_lshlrev_b32 v236, 2, v236\nv_add_u32 v236, %d, v236\nv_mov_b32 v234, 0" % CNT)
    a("ds_write_b32 v236, v234")

def q_pack(a, b, scale):
    for r in range(0, 8, 2): a("v_pk_mul_f32 %s, %s, %s" % (vr(b + r, 2), vr(b + r, 2), scale))
    for r in range(4): a("v_cvt_pk_bf16_f32 v%d, v%d, v%d" % (b + r, b + 2 * r, b + 2 * r + 1))
def q_swap(a, b):
    a("v_permlane16_swap_b32 v%d, v%d\nv_permlane16_swap_b32 v%d, v%d" % (b, b + 2, b + 1, b + 3))

def loader_setup(a):
    vHW, vHX, vA1 = 224, 248, 231
    lanes(a)
    a("s_and_b32 s60, s%d, 3" % sW)
    a("v_and_b32 v%d, 3, v12\nv_lshlrev_b32 v%d, 4, v%d" % (vHX, vHX, vHX))
    a("v_lshl_add_u32 v%d, v13, 6, v%d" % (vHW, vHX))
    a("v_lshl_add_u32 v%d, v15, 8, v%d" % (vD, vHW))
    a("v_lshl_add_u32 v%d, v15, 13, v%d" % (vHW, vHW))
    a("s_lshl_b32 s%d, s60, 17\ns_lshl_b32 s%d, s%d, 9\ns_add_u32 s%d, s%d, s%d" % (sT, sT2, sJJ, sT, sT, sT2))
    a("v_add_u32 v%d, s%d, v%d" % (vHW, sT, vHW))
    a("v_add_u32 v%d, %d, v%d" % (vHW + 1, 31744, vHW))
    a("v_add_u32 v%d, %d, v%d\nv_xor_b32 v%d, 32, v%d" % (vHW + 2, 2 * 31744, vHW, vHW + 2, vHW + 2))
    a("v_add_u32 v%d, %d, v%d" % (vHW + 3, 31744, vHW + 2))
    a("s_lshl_b32 s63, s60, 12")
    a("s_mul_i32 s61, s60, 5\ns_min_u32 s61, s61, 14")
    a("v_and_b32 v%d, 1, v13\nv_lshl_add_u32 v4, v%d, 6, v%d" % (vA1, vA1, vHX))
    a("v_lshl_add_u32 v%d, v15, 10, v4" % vHX)
    a("v_lshrrev_b32 v%d, 5, v12\nv_lshl_add_u32 v8, v%d, 12, v%d" % (vA1, vA1, vHX))
    a("s_lshl_b32 s%d, s61, 13\ns_and_b32 s%d, s61, 1\ns_lshl_b32 s%d, s%d, 5" % (sT, sT2, sT2, sT2))
    a("v_add_u32 v%d, s%d, v8\nv_xor_b32 v%d, s%d, v%d" % (vHX, sT, vHX, sT2, vHX))
    a("v_add_u32 v%d, 7168, v%d\nv_xor_b32 v%d, 32, v%d" % (vHX + 1, vHX, vHX + 1, vHX + 1))
    a("v_add_u32 v%d, 14336, v%d\nv_add_u32 v%d, 14336, v%d" % (vHX + 2, vHX, vHX + 3, vHX + 1))
    a("v_add_u32 v%d, 32768, v%d" % (vHX + 4, vHX))
    a("s_lshl_b32 s61, s61, 10")

def stage_ops_(j, NX):
    vHW, vHX = 224, 248
    xb = HX[j % HD]; wb = HW[j % HD]
    o = []
    for qq in range(4):
        pre_ = "s_add_u32 s%d, s%d, %d\ns_and_b32 s%d, s%d, 7\ns_lshl_b32 s%d, s%d, 19\ns_add_u32 m0, s63, %d\n" % (sHk, sRot, j, sHk, sHk, sHo, sHk, wb) if qq == 0 else ""
        o.append(pre_ + "buffer_load_dwordx4 v%d, %s, s%d offen offset:%d%s lds" % (vHW + qq, SR(S_WQ), sHo, qq * 1024, POL[OPT["polw"]]))
    for e in range(NX):
        pre_ = "s_add_u32 m0, s61, %d\n" % (xb + 4096) if e == 4 else ("s_add_u32 m0, s61, %d\ns_lshl_b32 s%d, s%d, 7\n" % (xb, sHo, sHk) if e == 0 else "")
        o.append(pre_ + "buffer_load_dwordx4 v%d, %s, s%d offen offset:%d%s lds" % (vHX + e, SR(S_X), sHo, (e & 3) * 1024, POL[OPT["polx"]]))
    return [(x, "h%d" % j) for x in o]

def head(a, role):
    att = role != "X"; ldr = role != "A"
    NRT = 4 if ldr else 5; T0 = 5 if ldr else 0
    vHW, vHX = 224, 248
    vA1, vA2, vBx = 231, 232, 233
    cA1, cA2, cBx = 234, 235, 236
    ACC = lambda t, d: vr(16 + 8 * t + 4 * d, 4)
    BF = lambda u, t: vr(56 + 20 * u + 4 * t, 4)
    AF = lambda u, d: 96 + 8 * u + 4 * d
    NX = 5 if att else 4
    if not OPT["fast0"]: loader_setup(a)
    def stage_ops(j): return stage_ops_(j, NX) if ldr else []
    def stage_load(j):
        for x, t in stage_ops(j): a(x, tag=t)
    if not OPT["fast0"]:
        srds_first(a)
        stage_load(0)
    elif role == "B":
        x, t = stage_ops(0)[8]; a(x, tag=t)
    if OPT["pst"]: a("s_memrealtime s[70:71]")
    if role == "A" and OPT["ptouch"]:
        a("s_cmp_lg_u32 s%d, 0\ns_cbranch_scc1 L_nopt" % sW)
        a("s_lshl_b32 s%d, s%d, 4\ns_add_u32 s%d, s%d, s%d\ns_lshl_b32 s%d, s%d, 19" % (sT, sB, sT, sT, sJJ, sT, sT))
        a("v_mov_b32 v240, s%d" % sT)
        a.autowait = False
        a("global_load_dword v244, v240, s[82:83]\nglobal_load_dword v245, v240, s[84:85]")
        a("v_and_b32 v240, 1, v12\nv_lshlrev_b32 v241, 21, v240")
        a("global_load_dword v246, v241, s[88:89]\nglobal_load_dword v247, v241, s[96:97]")
        a("v_add_u32 v241, s%d, v240\nv_add_u32 v242, s%d, v240\nv_and_b32 v243, 2, v12\nv_cmp_eq_u32 vcc, 0, v243" % (sG, sGo))
        a("v_cndmask_b32 v241, v241, v242, vcc\ns_mov_b32 s%d, %d\nv_mul_lo_u32 v241, s%d, v241" % (sT, OSTR, sT))
        a("v_mov_b32 v242, 0x%x\nv_cmp_lt_u32 vcc, 3, v12\nv_cndmask_b32 v241, v241, v242, vcc" % (FLAG_OFF + 8192))
        a("global_load_dword v248, v241, s[92:93]")
        a.autowait = True
        a.label("L_nopt")
    srds_rest(a)
    a("v_and_b32 v%d, 3, v12\nv_lshlrev_b32 v%d, 3, v%d" % (vA1, vA1, vA1))
    a("v_lshl_add_u32 v%d, v15, 6, v%d" % (vA1, vA1))
    a("v_and_b32 v%d, 1, v13\nv_lshl_add_u32 v%d, v%d, 5, v%d" % (vA2, vA1, vA2, vA1))
    a("v_lshl_add_u32 v%d, v13, 10, v%d" % (vVa, vA1))
    a("v_lshl_add_u32 v%d, v13, 11, v%d" % (vA1, vA1))
    a("s_and_b32 s%d, s%d, 3\ns_lshl_b32 s%d, s%d, 8" % (sT, sW, sT, sT))
    a("v_add_u32 v%d, s%d, v%d\nv_xor_b32 v%d, 32, v%d" % (vA1, sT, vA1, vA2, vA1))
    a("v_lshrrev_b32 v%d, 3, v14\nv_lshlrev_b32 v%d, 1, v%d\nv_xor_b32 v%d, v%d, v13\nv_lshlrev_b32 v%d, 4, v%d" % (vBx, vBx, vBx, vBx, vBx, vBx, vBx))
    a("v_and_b32 v%d, 3, v14\nv_lshl_add_u32 v%d, v%d, 6, v%d" % (cBx, vBx, cBx, vBx))
    a("v_lshl_add_u32 v%d, v15, 9, v%d" % (vBx, vBx))
    if att:
        a("s_lshl_b32 s%d, s%d, 13\ns_add_u32 s%d, s%d, %d" % (sT, sKg, sT, sT, 2 * SLOT))
        a("v_add_u32 v%d, s%d, v%d\nv_add_u32 v%d, 16384, v%d\nv_xor_b32 v%d, 32, v%d" % (vVa, sT, vVa, vVa, vVa, vVb, vVa))
        a("v_lshlrev_b32 v%d, 10, v15" % vK)
        a("v_lshl_add_u32 v%d, v%d, 6, v%d" % (vK, cBx, vK))
        a("v_lshrrev_b32 v%d, 1, v13\nv_and_b32 v%d, 1, v13\nv_lshl_or_b32 v%d, v%d, 1, v%d" % (cA1, cA2, cA1, cA2, cA1))
        a("v_lshrrev_b32 v%d, 3, v14\nv_xor_b32 v%d, v%d, v%d" % (cA2, cA1, cA1, cA2))
        a("v_lshl_add_u32 v%d, v%d, 4, v%d\nv_add_u32 v%d, s%d, v%d" % (vK, cA1, vK, vK, sT, vK))
        for r in range(4): a("v_mov_b32 v%d, 0x3f803f80" % (vONE + r))
    else:
        a("s_cmp_eq_u32 s%d, 6" % sW)
        if OPT["kvc"]:
            a("s_cselect_b32 s60, 0, 128\ns_cselect_b32 s%d, 0, 8192" % sKg)
            a("v_mov_b32 v%d, v%d\nv_xor_b32 v%d, 16, v%d\nv_xor_b32 v%d, 16, v%d" % (vD + 1, vD, vD + 2, vD, vD + 3, vD))
            a("v_xor_b32 v%d, s60, v%d\nv_xor_b32 v%d, 32, v%d\nv_mov_b32 v%d, v%d\nv_mov_b32 v%d, v%d" % (vD + 4, vD, vD + 5, vD + 4, vD + 6, vD + 4, vD + 7, vD + 5))
        else:
            a("s_cselect_b32 s%d, 0, 32\ns_cselect_b32 s%d, 16, 0\ns_cselect_b32 s%d, 16, 32\ns_cselect_b32 s60, 0, 128\ns_cselect_b32 s%d, 0, 16384" % (sT, sT2, sT3, sKg))
            a("v_xor_b32 v%d, s%d, v%d\nv_xor_b32 v%d, s%d, v%d\nv_xor_b32 v%d, s%d, v%d" % (vD + 1, sT, vD, vD + 2, sT2, vD, vD + 3, sT3, vD))
            for q in range(4): a("v_xor_b32 v%d, s60, v%d" % (vD + 4 + q, vD + q))
        a("v_add_u32 v1, %d, v%d" % (XB[0], vBx))
    a("v_mov_b32 v238, %s\nv_mov_b32 v239, %s" % (f32(CSCALE), f32(CSCALE)))
    def reads(u):
        tr = lambda d: ["ds_read_b64_tr_b16 %s, v%d offset:%d" % (vr(AF(u, d) + 2 * rd, 2), cA2 if d else cA1, u * 8192 + rd * 1024) for rd in range(2)]
        return tr(0) + ["ds_read_b128 %s, v%d offset:%d" % (BF(u, t), cBx, (T0 + t) * 2048 + u * 256) for t in range(NRT)] + tr(1)
    def mfmas(u, first):
        return ["%s %s, %s, %s, %s" % (MF, ACC(t, d), vr(AF(u, d), 4), BF(u, t), "0" if first else ACC(t, d)) for d in range(2) for t in range(NRT)]
    if OPT["pst"]: a("s_memrealtime s[72:73]")
    stage_load(1)
    if OPT["pst"]: a("s_memrealtime s[74:75]")
    stamp(a, 1)
    def mix(ms, rs, ds=()):
        di = 0; ri = 0
        for k, x in enumerate(ms):
            a(x)
            for _ in range(2):
                if ri < len(rs): a(rs[ri]); ri += 1
            while di < len(ds) and di * len(ms) <= k * len(ds):
                a(ds[di][0], tag=ds[di][1]); di += 1
        for x, t in ds[di:]: a(x, tag=t)
    if ldr and OPT["hprio"]: a("s_setprio %d" % OPT["hprio"])
    for j in range(8):
        a.wait_vm_tag("h%d" % j)
        if OPT["pst"] and j == 0: a("s_memrealtime s[76:77]")
        a("v_add_u32 v%d, %d, v%d\nv_add_u32 v%d, %d, v%d\nv_add_u32 v%d, %d, v%d" % (cA1, HW[j % HD], vA1, cA2, HW[j % HD], vA2, cBx, HX[j % HD], vBx))
        a("s_waitcnt lgkmcnt(0)")
        a("s_barrier")
        if j < 7: stamp(a, j + 1, hs=True)
        d = stage_ops(j + HD - 1) if j + HD - 1 < 8 else []
        if j == 0 and HD == 4: d = stage_ops(2) + d
        cut = (len(d) + 1) // 2
        if j == 0:
            for x in reads(0): a(x)
            for x, t in d[:cut]: a(x, tag=t)
        else: mix(mfmas(1, False), reads(0), d[:cut])
        a("s_waitcnt lgkmcnt(0)")
        mix(mfmas(0, j == 0), reads(1), d[cut:])
        if not att and j == OPT["kv0"]: kv_upto(a, 16, False)
        if not att and j == 6:
            kv_upto(a, 16 + OPT["k1a"], False)
        if not att and j == 7:
            kv_upto(a, 16 + OPT["k1a"] + OPT["k1b"], False)
    for x in mfmas(1, False): a(x)
    a("s_and_b32 s60, s%d, 3\ns_lshl_b32 s60, s60, 10" % sW)
    a("v_lshlrev_b32 v%d, 4, v12\nv_add_u32 v%d, s60, v%d" % (cBx, cBx, cBx))
    a("v_add_u32 v%d, %d, v%d\nv_add_u32 v%d, %d, v%d" % (cA1, Q1A, cBx, cA2, Q1C, cBx))
    for t in range(NRT): q_pack(a, 16 + 8 * t, "v[238:239]")
    for t in range(NRT): q_swap(a, 16 + 8 * t)
    for t in range(NRT):
        tg = T0 + t
        a("ds_write_b128 v%d, %s offset:%d" % (cA1 if tg < 6 else cA2, vr(16 + 8 * t, 4), (tg if tg < 6 else tg - 6) * 4096))
    if ldr and OPT["hprio"]: a("s_setprio 0")
    a("s_waitcnt lgkmcnt(0)")
    a("s_barrier")
    if not att:
        kv_upto(a, 32, False)
    stamp(a, 2)

def ACC(t, d):
    i = t * 4 + d
    return 16 + 4 * i if i < 28 else 176 + 4 * (i - 28)

def pair_signal(a):
    a("s_add_u32 s%d, s%d, 1" % (sBar, sBar))
    a("v_mov_b32 v%d, s%d" % (vT, sBar))
    a("ds_write_b32 v%d, v%d" % (vX3, vT))

def pair_wait(a, name, reads):
    a.label(name)
    a("ds_read_b32 v%d, v%d" % (vT, vX4))
    for x in reads: a(x)
    a("s_waitcnt lgkmcnt(%d)" % len(reads))
    a("v_readfirstlane_b32 s%d, v%d" % (sT, vT))
    a("s_cmp_ge_u32 s%d, s%d" % (sT, sBar))
    a("s_cbranch_scc1 %s_ok" % name)
    a("s_waitcnt lgkmcnt(0)")
    if OPT["sbs"]: a("s_sleep %d" % OPT["sbs"])
    a("s_branch %s" % name)
    a.label(name + "_ok")
    a("s_waitcnt lgkmcnt(0)")

def publish(a, name, t0, off=4, last=5, bits=PH2, nw=0):
    a("s_waitcnt vmcnt(%d)" % nw)
    a("s_mov_b64 exec, 1")
    a("v_mov_b32 v%d, %d\nv_mov_b32 v%d, 1" % (t0 + 2, CNT, t0 + 1))
    a("ds_add_rtn_u32 v%d, v%d, v%d offset:%d" % (t0, t0 + 2, t0 + 1, off))
    a("ds_read_b32 v%d, v%d offset:8" % (t0 + 1, t0 + 2))
    a("s_waitcnt lgkmcnt(0)")
    a("v_readfirstlane_b32 s%d, v%d" % (sT, t0))
    a("s_cmp_lg_u32 s%d, %d" % (sT, last))
    a("s_cbranch_scc1 %s" % name)
    a("v_or_b32 v%d, 0x%x, v%d" % (t0 + 1, bits, t0 + 1))
    a("s_lshl_b32 s%d, s%d, 2" % (sT2, sJJ))
    a("v_mov_b32 v%d, s%d" % (t0, sT2))
    a("buffer_store_dword v%d, v%d, %s, 0 offen%s" % (t0 + 1, t0, SR(S_FL), POL[OPT["polf"]] if bits == PH2 else " sc1"))
    if OPT["stamps"]:
        a("s_memrealtime s[88:89]\ns_add_u32 s96, s100, 0x%x\ns_addc_u32 s97, s101, 0\ns_mov_b32 s98, 0x100000\ns_mov_b32 s99, 0x20000" % (STAMP_OFF + 512 * 64))
        a("s_lshl_b32 s%d, s2, 6\ns_waitcnt lgkmcnt(0)\nv_mov_b32 v%d, s%d\nv_mov_b32 v%d, s88\nv_mov_b32 v%d, s89" % (sT, t0 + 3, sT, t0, t0 + 1))
        a("buffer_store_dwordx2 %s, v%d, s[96:99], 0 offen offset:%d" % (vr(t0, 2), t0 + 3, 0 if bits == PH2 else 8))
    a.label(name)
    a("s_mov_b64 exec, -1")

def attention(a):
    NT = 3; TL = 2
    a("s_waitcnt vmcnt(0)")
    a("v_lshlrev_b32 v%d, 4, v12" % vX1)
    a("s_mul_i32 s%d, s%d, %d\ns_add_u32 s%d, s%d, %d" % (sT, sRho, 12 * KB, sT, sT, Q1A))
    a("s_cmp_eq_u32 s%d, 2\ns_cselect_b32 s%d, %d, s%d" % (sRho, sT, Q1C, sT))
    a("v_add_u32 v%d, s%d, v%d" % (vX2, sT, vX1))
    for t in range(3):
        for s in range(4): a("ds_read_b128 %s, v%d offset:%d" % (Q(t, s), vX2, t * 4096 + s * 1024))
    if OPT["pair"]: a("s_xor_b32 s%d, s%d, 1" % (sPart, sW))
    else: a("s_add_u32 s%d, s%d, 3\ns_cmp_ge_u32 s%d, 6\ns_cselect_b32 s%d, 6, 0\ns_sub_u32 s%d, s%d, s%d" % (sPart, sW, sPart, sT2, sPart, sPart, sT2))
    a("s_lshl_b32 s%d, s%d, 2\ns_add_u32 s%d, s%d, %d\ns_lshl_b32 s%d, s%d, 2\ns_add_u32 s%d, s%d, %d" % (sT, sW, sT, sT, PFL, sT2, sPart, sT2, sT2, PFL))
    a("v_mov_b32 v%d, s%d\nv_mov_b32 v%d, s%d" % (vX3, sT, vX4, sT2))
    a("s_mov_b32 s%d, 0x40004000\ns_mov_b32 s%d, %s" % (sThr, sFl, f32(THR)))
    a("s_mov_b32 s%d, 0\ns_mov_b32 s%d, 0\ns_mov_b32 s%d, 2" % (sItem, sBar, sSlot))
    a("s_mul_i32 s%d, s%d, %d\ns_add_u32 s%d, s%d, %d" % (sExch, sRho, 12 * KB, sExch, sExch, Q2B))
    a("s_mov_b32 s%d, 0x%x\ns_mov_b32 s%d, %d" % (sNeg, (-2 * SLOT) & 0xffffffff, sPos, SLOT))
    a("s_lshl_b32 s%d, s%d, 3\ns_lshl_b32 s%d, s%d, 1\ns_add_u32 s%d, s%d, s%d\ns_mul_i32 s%d, s%d, 9" % (sT, sJJ, sT2, sKg, sT, sT, sT2, sT, sT))
    a("s_mul_i32 s%d, s%d, 3\ns_add_u32 s%d, s%d, s%d\ns_lshl_b32 s%d, s%d, 10\ns_add_u32 s%d, s%d, %d" % (sT2, sRho, sT, sT, sT2, sOoff, sT, sOoff, sOoff, 36 * KB))
    cstamp(a, 0)
    a.label("L_item")
    if OPT["ypr"] == 1: a("s_setprio 0")
    if OPT["ypr"] == 2: a("s_setprio 1")
    a("s_mov_b32 s%d, 0" % sCnt)
    a("s_waitcnt lgkmcnt(0)")
    Ga, Gb, Gc = 0, 4, 8
    def kread(kt, s):
        slot = (Gc + s) if kt == 0 else (Gb + s)
        return "ds_read_b128 %s, v%d offset:%d" % (vr(F(slot), 4), vK, kt * 4096 + s * 256)
    def vslot(dt): return (Ga + dt) if dt < 4 else (Gb + dt - 4)
    def vread(dt, rd):
        return "ds_read_b64_tr_b16 %s, v%d offset:%d" % (vr(F(vslot(dt)) + 2 * rd, 2), vVb if dt & 1 else vVa, rd * 4096 + (dt >> 1) * 256)
    def pv(t, dt, z=False): return "%s %s, %s, %s, %s" % (MF, O(t, dt), vr(F(vslot(dt)), 4), S(t, 0), "0" if z else O(t, dt))
    def lsum(t, z=False): return "%s %s, %s, %s, %s" % (MF, L(t), vr(vONE, 4), S(t, 0), "0" if z else L(t))
    def qk(t, kt, s, z=False):
        slot = (Gc + s) if kt == 0 else (Gb + s)
        return "%s %s, %s, %s, %s" % (MF, S(t, kt), vr(F(slot), 4), Q(t, s), ("0" if z else M(t)) if s == 0 else S(t, kt))
    EXP = lambda r: "v_exp_f32 v%d, v%d" % (r, r)
    def CVT(b, r): return "v_cvt_pk_bf16_f32 v%d, v%d, v%d" % (b + r, b + 2 * r, b + 2 * r + 1)
    def rowmax(b):
        return ["v_max3_f32 v%d, v%d, v%d, v%d" % (vT, b, b + 1, b + 2), "v_max3_f32 v%d, v%d, v%d, v%d" % (vT + 1, b + 3, b + 4, b + 5),
                "v_max3_f32 v%d, v%d, v%d, v%d" % (vT, vT, b + 6, b + 7), "v_max_f32 v%d, v%d, v%d" % (vT, vT, vT + 1),
                "v_mov_b32 v%d, v%d" % (vT + 1, vT), "v_permlane16_swap_b32 v%d, v%d" % (vT, vT + 1), "v_max_f32 v%d, v%d, v%d" % (vT, vT, vT + 1),
                "v_mov_b32 v%d, v%d" % (vT + 1, vT), "v_permlane32_swap_b32 v%d, v%d" % (vT, vT + 1), "v_max_f32 v%d, v%d, v%d" % (vT, vT, vT + 1)]
    def sm(t):
        b = vS + 8 * t
        g = [[EXP(b + r)] for r in range(4)] + [[CVT(b, 0), CVT(b, 1)]] + [[EXP(b + r)] for r in range(4, 8)] + [[CVT(b, 2), CVT(b, 3)]]
        g.append(["v_or3_b32 v%d, v%d, v%d, v%d" % (b + 4, b, b + 1, b + 2), "v_bitop3_b32 v%d, v%d, v%d, s%d bitop3:0xa8" % (b + 4, b + 4, b + 3, sThr)])
        g.append(["v_cmp_ne_u32 vcc, 0, v%d" % (b + 4)])
        return g
    def step(first):
        mf = []; fill = {}
        def put(idx, ops): fill.setdefault(idx, []).extend(ops)
        if not first: mf += [pv(TL, dt) for dt in (4, 5, 6, 7)] + [pv(TL, dt) for dt in (0, 1, 2, 3)] + [lsum(TL)]
        q0 = len(mf)
        qk_end = {}
        for t in range(NT):
            for kt in ((0, 1) if t < TL else (1, 0)):
                mf += [qk(t, kt, s, first) for s in range(4)]
                if t == TL and kt == 1: v47_at = len(mf) - 1
            qk_end[t] = len(mf) - 1
        pv_start = {}
        for t in range(TL):
            pv_start[t] = len(mf)
            mf += [pv(t, dt, first) for dt in range(4)] + [lsum(t, first)] + [pv(t, dt, first) for dt in range(4, 8)]
        n = len(mf)
        pre = [kread(0, s) for s in range(4)]
        if first:
            pre += [kread(1, s) for s in range(4)] + [vread(dt, rd) for dt in range(4) for rd in range(2)]
            pre += ["v_mov_b64 %s, 0" % vr(r, 2) for r in list(range(vO + 64, vO + 96, 2)) + [vL + 8, vL + 10]]
            pre += ["WAIT " + vr(F(Gc), 16)]
        else:
            for s in range(4): put(s, [kread(1, s)])
            for dt in range(4): put(4 + dt, [vread(dt, 0), vread(dt, 1)])
            put(8, ["WAIT " + vr(F(Gc), 16)])
        put(q0 + 3, ["WAIT " + vr(F(Gb), 16), "s_add_u32 s%d, s%d, 1" % (sSlot, sSlot)])
        put(q0 + 4, ["s_cmp_eq_u32 s%d, 3" % sSlot, "s_cselect_b32 s%d, s%d, s%d" % (sDelta, sNeg, sPos)])
        put(q0 + 5, ["s_cselect_b32 s%d, 0, s%d" % (sSlot, sSlot), "s_add_u32 s%d, s%d, 1" % (sCnt, sCnt)])
        for dt in range(4, 8): put(v47_at - 3 + (dt - 4), [vread(dt, 0), vread(dt, 1)])
        adv = ["v_add_u32 v%d, s%d, v%d" % (r, sDelta, r) for r in (vK, vVa, vVb)]
        tail = []
        if first:
            for t in range(NT):
                b = vS + 8 * t
                ops = rowmax(b) + ["v_add_f32 v%d, s%d, v%d" % (vT, sFl, vT)]
                ops += ["v_sub_f32 v%d, v%d, v%d" % (b + r, b + r, vT) for r in range(8)]
                ops += ["v_sub_f32 v%d, 0, v%d" % (vM + 4 * t + r, vT) for r in range(4)]
                ops += [EXP(b + r) for r in range(8)] + [CVT(b, r) for r in range(4)]
                lo = max(qk_end[t] + 3, [0, 21, 32][t]); hi = [20, 31, n - 1][t]
                for k, x in enumerate(ops): put(lo + k * (hi - lo + 1) // len(ops), [x])
            tail = adv
        else:
            groups = [(t, g) for t in range(NT) for g in sm(t)]
            lo = OPT["g0"]; span = n - lo
            for k, (t, g) in enumerate(groups):
                idx = lo + (k * span) // len(groups)
                assert t == TL or idx + 1 < pv_start[t], (t, idx)
                put(idx, g)
                if k % 12 == 11:
                    br = "s_cbranch_vccnz L_rare%d\nL_back%d:" % (t, t)
                    if t == 0: put(idx, [adv[0]])
                    if t == 1: put(idx, [adv[1]])
                    if t < TL: fill.setdefault(idx + 1, []).insert(0, br)
                    else: tail = [adv[2], "s_cmp_lt_u32 s%d, 16" % sCnt, br]
        put(pv_start[0] - 1, ["WAIT " + vr(F(Ga), 16)])
        put(pv_start[0] + 4, ["WAIT " + vr(F(Gb), 16)])
        a("s_barrier")
        if first and OPT["bst"] == 0:
            a("s_cmp_lg_u32 s%d, 1\ns_cbranch_scc1 L_bsx\ns_memrealtime s[76:77]\nL_bsx:" % sItem)
        for x in pre: a(x)
        for k, m in enumerate(mf):
            a(m)
            for x in fill.get(k, []): a(x)
        if not first:
            for _ in range(OPT["xmf"]): a("%s %s, %s, %s, %s" % (MF, vr(vT, 4), vr(F(0), 4), S(1, 0), vr(vT, 4) if _ else "0"))
        for x in tail: a(x)
    step(True)
    a.raw(".p2align 6")
    a.label("L_loop")
    step(False)
    a("s_cbranch_scc1 L_loop")
    a.label("L_bnd")
    if OPT["ypr"] == 1: a("s_cmp_lt_u32 s%d, 4\ns_cbranch_scc1 L_ypr\ns_setprio 1\nL_ypr:" % sW)
    if OPT["stamps"]:
        a("s_cmp_eq_u32 s%d, 0\ns_cbranch_scc0 L_st4" % sItem)
        stamp(a, 3); cstamp(a, 1)
        a("s_branch L_st4b")
        a.label("L_st4"); stamp(a, 4)
        a.label("L_st4b")
    if OPT["ypr"] == 2: a("s_setprio 0")
    bstamp(a, 1)
    a("s_cmp_eq_u32 s%d, 0" % sItem)
    a("s_cbranch_scc0 L_nomx")
    if OPT["mxf"]:
        a("s_mov_b64 exec, 1")
        a("v_mov_b32 v%d, %d\nv_mov_b32 v%d, 1" % (vT + 2, CNT, vT + 1))
        a("ds_add_u32 v%d, v%d offset:20" % (vT + 2, vT + 1))
        a.label("L_q2w")
        a("ds_read_b32 v%d, v%d offset:24" % (vT, vT + 2))
        a("s_waitcnt lgkmcnt(0)")
        a("v_readfirstlane_b32 s%d, v%d" % (sT, vT))
        a("s_cmp_lt_u32 s%d, 2\ns_cbranch_scc1 L_q2w" % sT)
        a("s_mov_b64 exec, -1")
    else:
        a("s_barrier")
    a("v_add_u32 v%d, s%d, v%d" % (vX2, sExch, vX1))
    for t in range(3):
        for s in range(4): a("ds_read_b128 %s, v%d offset:%d" % (Q(t, s), vX2, t * 4096 + s * 1024))
    pair_signal(a)
    a.label("L_nomx")
    bstamp(a, 2)
    a("s_lshl_b32 s%d, s%d, 12\ns_add_u32 s%d, s%d, %d" % (sT, sW, sT, sT, EX1))
    a("v_add_u32 v%d, s%d, v%d" % (vX2, sT, vX1))
    def send(t, areg, off):
        o = []
        for h in range(2):
            b = vO + 32 * t + 16 + 8 * h
            o += ["v_cvt_pk_bf16_f32 v%d, v%d, v%d" % (b + r, b + 2 * r, b + 2 * r + 1) for r in range(4)]
            o.append("ds_write_b128 v%d, %s offset:%d" % (areg, vr(b, 4), off + h * 1024))
        return o
    fin = [lsum(TL)] + [pv(TL, dt) for dt in (4, 5, 6, 7, 0, 1, 2, 3)]
    ex = send(0, vX2, 0) + send(1, vX2, 2048)
    for k, m in enumerate(fin):
        a(m)
        for x in ex[k * len(ex) // 9:(k + 1) * len(ex) // 9]: a(x)
    a("v_and_b32 v%d, 15, v0\nv_lshlrev_b32 v%d, 3, v%d" % (vT + 2, vT + 2, vT + 2))
    a("s_mul_i32 s%d, s%d, 384\ns_add_u32 s%d, s%d, %d" % (sT, sW, sT, sT, MLB))
    a("v_add_u32 v%d, s%d, v%d" % (vT + 3, sT, vT + 2))
    for t in range(3):
        a("v_mov_b32 v%d, v%d" % (vM + 4 * t + 1, vL + 4 * t))
        a("ds_write_b64 v%d, %s offset:%d" % (vT + 3, vr(vM + 4 * t, 2), t * 128))
    a("s_lshl_b32 s%d, s%d, 11\ns_add_u32 s%d, s%d, s%d" % (sT, sKg, sT, sT, sExch))
    a("v_add_u32 v%d, s%d, v%d" % (vX2, sT, vX1))
    a("s_waitcnt lgkmcnt(0)")
    pair_wait(a, "L_pw0", [])
    bstamp(a, 3)
    for x in send(2, vX2, 0): a(x)
    pair_signal(a)
    a("s_mul_i32 s%d, s%d, 384\ns_add_u32 s%d, s%d, %d" % (sT2, sPart, sT2, sT2, MLB))
    a("v_add_u32 v%d, s%d, v%d" % (vT + 3, sT2, vT + 2))
    a("v_xor_b32 v%d, 2048, v%d" % (vX2, vX2))
    a("s_lshl_b32 s%d, s%d, 12\ns_add_u32 s%d, s%d, %d" % (sT, sPart, sT, sT, EX1))
    a("v_add_u32 v%d, s%d, v%d" % (vT + 2, sT, vX1))
    a("s_waitcnt lgkmcnt(0)")
    rd = ["ds_read_b64 %s, v%d offset:%d" % (vr(vM + 4 * t + 2, 2), vT + 3, t * 128) for t in range(3)]
    for t in range(3):
        for h in range(2):
            rd.append("ds_read_b128 %s, v%d offset:%d" % (vr(vS + 8 * t + 4 * h, 4), vT + 2 if t < 2 else vX2, (t * 2048 if t < 2 else 0) + h * 1024))
    pair_wait(a, "L_pw", rd)
    bstamp(a, 4)
    for t in range(3):
        m = vM + 4 * t; l = vL + 4 * t
        a("v_min_f32 v%d, v%d, v%d" % (l, m, m + 2))
        a("v_sub_f32 v%d, v%d, v%d\nv_sub_f32 v%d, v%d, v%d" % (l + 1, l, m, l + 2, l, m + 2))
        a("v_exp_f32 v%d, v%d\nv_exp_f32 v%d, v%d" % (l + 1, l + 1, l + 2, l + 2))
        a("v_mul_f32 v%d, v%d, v%d" % (l + 3, l + 1, m + 1))
        a("v_fma_f32 v%d, v%d, v%d, v%d" % (l + 3, l + 2, m + 3, l + 3))
        a("v_rcp_f32 v%d, v%d" % (l, l + 3))
        a("v_mul_f32 v%d, v%d, v%d\nv_mul_f32 v%d, v%d, v%d" % (l + 3, l + 2, l, l + 2, l + 2, l))
        a("v_mul_f32 v%d, v%d, v%d\nv_mov_b32 v%d, v%d" % (l + 1, l + 1, l, l, l + 1))
    def combine(out):
        for t in range(3):
            l = vL + 4 * t
            for h in range(2):
                b = vO + 32 * t + 8 * h; u = b + 16; pk = vS + 8 * t + 4 * h
                for r in range(4):
                    a("v_lshlrev_b32 v%d, 16, v%d\nv_and_b32 v%d, 0xffff0000, v%d" % (u + 2 * r, pk + r, u + 2 * r + 1, pk + r))
                for r in range(0, 8, 2): a("v_pk_mul_f32 %s, %s, %s" % (vr(b + r, 2), vr(b + r, 2), vr(l, 2)))
                for r in range(0, 8, 2): a("v_pk_fma_f32 %s, %s, %s, %s" % (vr(b + r, 2), vr(u + r, 2), vr(l + 2, 2), vr(b + r, 2)))
                for r in range(4): a("v_cvt_pk_bf16_f32 v%d, v%d, v%d" % (pk + r, b + 2 * r, b + 2 * r + 1))
                out(t, h, pk)
    a("s_cmp_eq_u32 s%d, 0" % sItem)
    a("s_cbranch_scc0 L_att_done")
    combine(lambda t, h, pk: a("ds_write_b128 v%d, %s offset:%d" % (vT + 2 if t < 2 else vX2, vr(pk, 4), (t * 2048 if t < 2 else 0) + h * 1024)))
    bstamp(a, 5)
    a("s_mov_b32 s%d, 1\ns_lshl_b32 s%d, s%d, 12\ns_add_u32 s%d, s%d, %d" % (sItem, sExch, sRho, sExch, sExch, EX2))
    a("s_waitcnt lgkmcnt(0)")
    a("s_branch L_item")
    a.vm = []; a.lgkm = []
    for t in range(NT):
        b = vS + 8 * t
        a.label("L_rare%d" % t)
        a("s_nop 15")
        a("v_subrev_u32 v%d, s%d, v%d" % (vX2, sDelta, vK))
        for kt in range(2):
            for s in range(4):
                a("ds_read_b128 %s, v%d offset:%d" % (vr(vT, 4), vX2, kt * 4096 + s * 256))
                a("s_waitcnt lgkmcnt(0)")
                a("%s %s, %s, %s, %s" % (MF, S(t, kt), vr(vT, 4), Q(t, s), M(t) if s == 0 else S(t, kt)))
                a("s_nop 3")
        for x in rowmax(b): a(x)
        a("v_add_f32 v%d, s%d, v%d\nv_max_f32 v%d, 0, v%d" % (vT, sFl, vT, vT, vT))
        for r in range(8): a("v_sub_f32 v%d, v%d, v%d" % (b + r, b + r, vT))
        for r in range(4): a("v_sub_f32 v%d, v%d, v%d" % (vM + 4 * t + r, vM + 4 * t + r, vT))
        a("v_exp_f32 v%d, -v%d" % (vT + 1, vT))
        for r in range(4): a("v_mul_f32 v%d, v%d, v%d" % (vL + 4 * t + r, vL + 4 * t + r, vT + 1))
        for r in range(32): a("v_mul_f32 v%d, v%d, v%d" % (vO + 32 * t + r, vO + 32 * t + r, vT + 1))
        for r in range(8): a(EXP(b + r))
        for r in range(4): a(CVT(b, r))
        a("s_nop 3")
        a("s_branch L_back%d" % t)
    a.label("L_att_done")
    a("s_mov_b64 exec, 1")
    a("v_mov_b32 v%d, %d\nv_mov_b32 v%d, 1" % (vT + 2, CNT, vT + 1))
    a("ds_add_u32 v%d, v%d" % (vT + 2, vT + 1))
    a("s_mov_b64 exec, -1")
    combine(lambda t, h, pk: a("s_add_u32 s%d, s%d, %d\nbuffer_store_dwordx4 %s, v%d, %s, s%d offen%s" % (sT, sOoff, (h * 9 + t) * 1024, vr(pk, 4), vX1, SR(S_O), sT, POL[OPT["pols2"]])))
    bstamp(a, 5)
    a("s_cmp_lt_u32 s%d, 2" % sW)
    a("s_cbranch_scc1 L_join")
    publish(a, "L_pub_x", vT)
    a("s_endpgm")
    a.label("L_join")
    a("s_lshl_b32 s%d, s%d, 14" % (sBlkP, sW))
    a("s_cmp_eq_u32 s%d, 0\ns_cselect_b32 s%d, %d, 0\ns_cselect_b32 s%d, 0, %d\ns_add_u32 s%d, s%d, s%d" % (sW, sBlkD, 64 * KB, sT, 116 * KB, sBlkD, sBlkD, sT))
    op_setup(a, True)
    if not OPT["latep"]:
        for i in range(36): a("v_mov_b64 %s, 0\nv_mov_b64 %s, 0" % (vr(ACC(i // 4, i % 4), 2), vr(ACC(i // 4, i % 4) + 2, 2)))
        publish(a, "L_pub_y", 250)
        stamp(a, 5)
    a("v_mov_b32 v250, %d" % CNT)
    a.label("L_w6")
    a("ds_read_b32 v251, v250")
    a("ds_read_b32 v252, v250 offset:8")
    a("s_waitcnt lgkmcnt(0)")
    a("v_readfirstlane_b32 s%d, v251\nv_readfirstlane_b32 s%d, v252" % (sT, sTag))
    a("s_cmp_lt_u32 s%d, 6\ns_cbranch_scc1 L_w6" % sT)
    a("s_or_b32 s%d, s%d, 0x%x" % (sWant, sTag, PHM))
    a("s_branch L_p2")
    a.vm = []; a.lgkm = []

def wo_touch(a, phase, i):
    a("s_lshr_b32 s%d, s%d, 1\ns_and_b32 s%d, s%d, 12\ns_add_u32 s%d, s%d, s%d\ns_lshl_b32 s%d, s%d, 18" % (sT, sB, sT2, sJJ, sT, sT, sT2, sT, sT))
    a("s_and_b32 s%d, s%d, 1\ns_lshl_b32 s%d, s%d, 16\ns_add_u32 s%d, s%d, s%d" % (sT2, sB, sT2, sT2, sT, sT, sT2))
    a("s_and_b32 s%d, s%d, 3\ns_lshl_b32 s%d, s%d, 14\ns_add_u32 s%d, s%d, s%d" % (sT2, sJJ, sT2, sT2, sT, sT, sT2))
    a("s_and_b32 s%d, s%d, 1\ns_lshl_b32 s%d, s%d, 13\ns_add_u32 s%d, s%d, s%d" % (sT2, sW, sT2, sT2, sT, sT, sT2))
    a("s_add_u32 s%d, s%d, %d" % (sT2, sT, phase * 131072))
    a.autowait = False
    a("buffer_load_dword v147, v146, %s, s%d offen" % (SR(S_WO), sT2), tag="x")
    a.autowait = True

LIM = [0]
def aux_step(a, step, pre=None, extra=None):
    a.wait_vm_tag("k%d" % (16 * step + 15))
    a("s_barrier")
    LIM[0] = 16 * (step + 2) + (16 if step in (15,) else OPT["pp"])
    kv_upto(a, min(LIM[0], KVN[0] + OPT["f0"]))
    if OPT["sst"] >= 0 and step >= OPT["sst"] and (step - OPT["sst"]) % OPT["sstd"] == 0 and (step - OPT["sst"]) // OPT["sstd"] < 6:
        k_ = 1 + (step - OPT["sst"]) // OPT["sstd"]
        a("s_memrealtime s[%d:%d]" % (64 + 2 * k_, 65 + 2 * k_))
    if OPT["ck"] and step in (1, 8, 15, 31):
        k_ = (1, 8, 15, 31).index(step)
        a("s_memrealtime s[%d:%d]\ns_memtime s[%d:%d]" % (64 + 4 * k_, 65 + 4 * k_, 66 + 4 * k_, 67 + 4 * k_))
    for ph in (0, 1):
        lst = [int(x) for x in OPT["tw%d" % ph].split(",") if x]
        for i, st_ in enumerate(lst):
            if st_ == step: wo_touch(a, ph, i)
    if OPT["bal"] and OPT["bal0"] - 3 <= step <= OPT["bal1"]:
        BN = "L_bal%d" % step
        a("s_lshl_b32 s%d, s%d, 8\ns_add_u32 s%d, s%d, s2\ns_sub_u32 s%d, s%d, 1536\ns_cmp_ge_u32 s%d, 8\ns_cbranch_scc1 %s" % (sT, sW, sT, sT, sT, sT, sT, BN))
        a("s_lshl_b32 s%d, s%d, 4\nv_mov_b32 v150, s%d\nv_mov_b32 v151, %d" % (sT, sT, sT, step))
        a("RAW buffer_store_dword v151, v150, %s, 0 offen offset:4 sc1" % SR(S_DBG))
        a.label(BN)
        if step >= OPT["bal0"] and (step - OPT["bal0"]) % OPT["balp"] == 0:
            a.wait_vm_tag("pg")
            a("v_cmp_gt_u32 vcc, %d, v149\ns_nop 1\ns_cmp_lg_u64 vcc, 0\ns_cselect_b32 s3, 1, 0" % max(0, step - OPT["bal"]))
        if step + 1 >= OPT["bal0"] and (step + 1 - OPT["bal0"]) % OPT["balp"] == 0 and step < OPT["bal1"]:
            a("buffer_load_dword v149, v148, %s, 0 offen offset:4 sc1" % SR(S_DBG), tag="pg")
    if pre: pre()
    kv_upto(a, LIM[0])
    if step == OPT["pfm"]:
        a("s_lshl_b32 s%d, s%d, 4\ns_add_u32 s%d, s%d, s%d\ns_lshl_b32 s%d, s%d, 1\ns_and_b32 s%d, s%d, 1\ns_add_u32 s%d, s%d, s%d\ns_lshl_b32 s%d, s%d, 14" % (sT, sB, sT, sT, sJJ, sT, sT, sT2, sW, sT, sT, sT2, sT, sT))
        a.autowait = False
        a("buffer_load_dword v147, v146, %s, s%d offen" % (SR(S_WO), sT), tag="x")
        a("s_add_u32 s%d, s%d, 8192" % (sT, sT))
        a("buffer_load_dword v147, v146, %s, s%d offen" % (SR(S_WO), sT), tag="x")
        a.autowait = True
    if extra: extra()

def aux(a):
    if OPT["bal"]: a("s_mov_b32 s3, 0\nv_and_b32 v148, 7, v12\nv_lshlrev_b32 v148, 4, v148")
    if OPT["auxprio"]: a("s_setprio %d" % OPT["auxprio"])
    a("v_lshlrev_b32 v%d, 2, v14\nv_lshlrev_b32 v146, 7, v12" % vFo)
    a("s_lshl_b32 s%d, s%d, 4\nv_mov_b32 v%d, s%d" % (sT, sG, vDg, sT))
    BF = lambda t: vr(208 + 4 * t, 4)
    AF = lambda d: 156 + 4 * d
    sW2, sXq = 58, 61
    a("s_and_b32 s%d, s%d, 1" % (sT3, sW))
    a("v_lshrrev_b32 v9, 5, v12\nv_lshl_add_u32 v4, v15, 13, v4\nv_lshl_add_u32 v4, v9, 15, v4")
    a("s_lshl_b32 s%d, s%d, 9\ns_lshl_b32 s%d, s%d, 7\ns_add_u32 s%d, s%d, s%d\ns_add_u32 s%d, s%d, 256" % (sT, sJJ, sT2, sT3, sT, sT, sT2, sT, sT))
    a("v_add_u32 v4, s%d, v4" % sT)
    a("v_add_u32 v5, 64512, v4\nv_xor_b32 v5, 32, v5\nv_add_u32 v6, 129024, v4\nv_add_u32 v7, 129024, v5")
    a("s_mul_i32 s%d, s%d, %d\ns_add_u32 s%d, s%d, %d" % (sW2, sT3, 12 * KB, sW2, sW2, W2R))
    a("v_add_u32 v2, s%d, v2\nv_xor_b32 v3, 32, v2" % sW2)
    a("s_lshl_b32 s%d, s%d, 5\nv_xor_b32 v8, s%d, v8\nv_xor_b32 v9, 32, v8" % (sT, sT3, sT))
    a("s_mul_i32 s%d, s%d, 9" % (sXq, sT3))
    a("v_mov_b32 v10, %s\nv_mov_b32 v11, %s" % (f32(CSCALE), f32(CSCALE)))
    def chunk(m): a("s_add_u32 s%d, s%d, %d\ns_and_b32 s%d, s%d, 7" % (sT3, sRot, (6 + m) & 7, sT3, sT3))
    PH = [0]
    def hd(i):
        a("s_add_u32 s%d, s%d, %d\ns_and_b32 s%d, s%d, 3\ns_and_b32 s%d, s%d, 12\ns_add_u32 s%d, s%d, s%d\ns_lshl_b32 s%d, s%d, 3" % (sT3, sJJ, i, sT3, sT3, sT2, sJJ, sT3, sT3, sT2, sT3, sT3))
    def wo_load(n):
        hd(n // 4)
        a("s_lshl_b32 s%d, s%d, 15\ns_add_u32 s%d, s%d, %d\ns_add_u32 m0, s%d, %d" % (sT2, sT3, sT2, sT2, (n & 3) << 15, sW2, (n % 3) * 4096))
        for q in range(4):
            a("buffer_load_dwordx4 v%d, %s, s%d offen offset:%d%s lds" % (4 + q, SR(S_WO), sT2, q * 1024, POL[OPT["polwo"]]), tag="q%d" % n)
    def o_load(m):
        hd(m // 2)
        a("s_and_b32 s%d, s%d, 1\ns_add_u32 s%d, s%d, s%d\ns_add_u32 s%d, s%d, %d\ns_mul_i32 s%d, s%d, 9216\ns_mul_i32 s63, s%d, 9216" % (sT2, sW, sT3, sT3, sT2, sT3, sT3, 2 * (m & 1), sT3, sT3, sT2))
        if OPT["xo"] & 1: a("s_mov_b32 s%d, 0" % sT3)
        for e in range(9):
            if e % 4 == 0: a("s_add_u32 m0, s63, %d\ns_add_u32 s%d, s%d, %d" % (XB[m & 1] + e * 1024, sT2, sT3, e * 1024))
            a("buffer_load_dwordx4 v8, %s, s%d offen offset:%d%s lds" % (SR(S_O), sT2, (e & 3) * 1024, POL[OPT["polo"]]), tag="x%d" % m)
    def w2_load(n):
        if PH[0]: return wo_load(n)
        chunk(n // 2)
        a("s_lshl_b32 s%d, s%d, 19\ns_add_u32 s%d, s%d, %d\ns_add_u32 m0, s%d, %d" % (sT2, sT3, sT2, sT2, (n & 1) << 18, sW2, (n % 3) * 4096))
        for q in range(4):
            a("buffer_load_dwordx4 v%d, %s, s%d offen offset:%d%s lds" % (4 + q, SR(S_WQ), sT2, q * 1024, POL[OPT["polw"]]), tag="q%d" % n)
    def x2_load(m):
        chunk(m)
        a("s_lshl_b32 s%d, s%d, 7\ns_lshl_b32 s%d, s%d, 13\ns_add_u32 s%d, s%d, s%d\ns_lshl_b32 s63, s%d, 10" % (sT3, sT3, sT2, sXq, sT3, sT3, sT2, sXq))
        for e in range(9):
            a("s_add_u32 m0, s63, %d\ns_add_u32 s%d, s%d, %d" % (XB[m & 1] + e * 1024, sT2, sT3, e * 8192))
            a("buffer_load_dwordx4 v%d, %s, s%d offen%s lds" % (8 + (e & 1), SR(S_X), sT2, POL[OPT["polx"]]), tag="x%d" % m)
    AF2 = [172, 244, 248, 252]
    def q2_a(n, alt):
        a.wait_vm_tag("q%d" % n)
        for d in range(4):
            for rd in range(2):
                a("ds_read_b64_tr_b16 %s, v%d offset:%d" % (vr((AF2[d] if alt else AF(d)) + 2 * rd, 2), 3 if d & 1 else 2, (n % 3) * 4096 + rd * (2048 if PH[0] else 512) + (d >> 1) * 256))
    def q2_b(n, t): a("ds_read_b128 %s, v%d offset:%d" % (BF(t), 9 if PH[0] else 1, ((n // 2) & 1) * 18 * KB + (((n & 1) * 9 + t) * 1024 if PH[0] else t * 2048 + (n & 1) * 256)))
    def q2_step(n, nfill=0, chain=False, chained=False):
        A_ = (lambda d: AF2[d]) if chained else AF
        if not chained:
            q2_a(n, False)
            for t in range(9): q2_b(n, t)
            k_ = min(OPT["f1"], nfill); nfill -= k_
            kv_upto(a, KVN[0] + k_)
            a("WAIT " + vr(AF(0), 16))
        else: a("WAIT " + " ".join(vr(r, 4) for r in AF2))
        if n + 3 < 16: w2_load(n + 3)
        if not chained: a("s_waitcnt lgkmcnt(0)")
        fi = 0
        def pack_ops(t):
            o = []
            for h in range(2):
                b = ACC(t, 2 * h)
                o += ["v_mul_f32 v%d, v10, v%d" % (b + r, b + r) for r in range(8)]
                o += ["v_cvt_pk_bf16_f32 v%d, v%d, v%d" % (b + r, b + 2 * r, b + 2 * r + 1) for r in range(4)]
            for h in range(2):
                b = ACC(t, 2 * h)
                o += ["v_permlane16_swap_b32 v%d, v%d" % (b, b + 2), "v_permlane16_swap_b32 v%d, v%d" % (b + 1, b + 3)]
            return o
        lastq = n == 15 and not PH[0]
        if lastq and OPT["p14"]: a("s_setprio %d" % OPT["p14"])
        for t in range(9):
            po = pack_ops(t - 2) if lastq and t >= 2 else []
            for d in range(4):
                c = vr(ACC(t, d), 4)
                a("%s %s, %s, %s, %s" % (MF, c, vr(A_(d), 4), BF(t), "0" if n == 0 else c))
                if chain and d == 3: q2_b(n + 1, t)
                if chain and t == 4 and d == 0: q2_a(n + 1, True)
                i = t * 4 + d
                while fi < nfill and fi * 36 <= i * nfill:
                    kv_one(a); fi += 1
                for x in po[7 * d:7 * d + 7]: a(x)
        if lastq:
            for x in pack_ops(7) + pack_ops(8): a(x)
    sched = {}; n_ = 0
    for i_, c_ in enumerate(OPT["q2s"]):
        sched[i_ + 1] = list(range(n_, n_ + int(c_))); n_ += int(c_)
    assert n_ == 16 and len(OPT["q2s"]) <= 14
    at = {n: s_ for s_, l_ in sched.items() for n in l_}
    xiss = {m: at[2 * (m - 2) + 1] + 1 for m in range(2, 8)}
    for m in xiss: assert at[2 * m] > xiss[m], m
    QW = at[15] + 1
    psched = {}; n_ = 0
    for i_, c_ in enumerate(OPT["ps"]):
        psched[i_ + OPT["p0"]] = list(range(n_, n_ + int(c_))); n_ += int(c_)
    assert n_ == 16 and OPT["p0"] >= 18 and OPT["p0"] + len(OPT["ps"]) <= 31
    pat = {n: s_ for s_, l_ in psched.items() for n in l_}
    oiss = {m: pat[2 * (m - 2) + 1] + 1 for m in range(2, 8)}
    if OPT["od"]: oiss[2] = pat[4] - 1
    for m in oiss: assert pat[2 * m] > oiss[m] > OPT["fl0"] and (m == 2 or oiss[m] >= oiss[m - 1]), m
    def o1_store():
        a("s_and_b32 s%d, s%d, 1" % (sT3, sW))
        a("s_mul_i32 s%d, s%d, %d\ns_add_u32 s%d, s%d, %d\nv_add_u32 v%d, s%d, v1" % (sT, sT3, 4096 if OPT["pair"] else 3 * 4096, sT, sT, EX1, vA_, sT))
        a("s_lshl_b32 s%d, s%d, 11\ns_add_u32 s%d, s%d, %d\nv_add_u32 v%d, s%d, v1" % (sT, sT3, sT, sT, Q2B, vB_, sT))
        fr = [(i, t, h) for i in range(3) for t in range(3) for h in range(2)]
        for n, (i, t, h) in enumerate(fr):
            if t < 2: a("ds_read_b128 %s, v%d offset:%d" % (vr(16 + 4 * n, 4), vA_, i * (8192 if OPT["pair"] else 4096) + t * 2048 + h * 1024))
            else: a("ds_read_b128 %s, v%d offset:%d" % (vr(16 + 4 * n, 4), vB_, i * 12 * KB + h * 1024))
        a("s_mul_i32 s%d, s%d, %d\ns_mul_i32 s%d, s%d, %d\ns_add_u32 s%d, s%d, %d\ns_sub_u32 s%d, s%d, s%d" % (sT2, sJJ, 8 * 9216, sT3, sT3, 2 * 9216, sT2, sT2, 2 * 9216, sT2, sT2, sT3))
        for n, (i, t, h) in enumerate(fr):
            a("s_add_u32 s%d, s%d, %d" % (sT, sT2, (h * 9 + 3 * i + t) * 1024))
            a("buffer_store_dwordx4 %s, v1, %s, s%d offen%s" % (vr(16 + 4 * n, 4), SR(S_O), sT, POL[OPT["pols"]]), tag="st")
    def pre(step):
        if step == 0:
            for n in range(3): w2_load(n)
        for m in xiss:
            if xiss[m] == step: x2_load(m)
        if step == 17:
            PH[0] = 1
            a("s_and_b32 s%d, s%d, 1\ns_xor_b32 s%d, s%d, 1\ns_mul_i32 s%d, s%d, %d\nv_add_u32 v%d, s%d, v9" % (sT, sW, sT, sT, sT, sT, 18 * KB, vA_, sT))
            for n, (i, t, h) in enumerate([(i, t, h) for i in range(3) for t in range(3) for h in range(2)]):
                a("ds_write_b128 v%d, %s offset:%d" % (vA_, vr(16 + 4 * n, 4), (h * 9 + 3 * i + t) * 1024))
            for n in range(3): w2_load(n)
            a("s_waitcnt lgkmcnt(0)")
        for m in oiss:
            if oiss[m] == step:
                if m % 2 == 0:
                    a.wait_vm_tag("fl")
                    keep = list(a.vm)
                    a.label("L_f%d" % m)
                    ready(a)
                    a("s_add_u32 s%d, s%d, %d\ns_and_b32 s%d, s%d, 3\ns_and_b32 s%d, s%d, 12\ns_add_u32 s%d, s%d, s%d" % (sT3, sJJ, m // 2, sT3, sT3, sT2, sJJ, sT3, sT3, sT2))
                    a("s_bitcmp1_b32 s%d, s%d\ns_cbranch_scc1 L_f%dok" % (sR2, sT3, m))
                    a("s_sleep %d" % OPT["slp"]); a(FLOAD); a("s_waitcnt vmcnt(0)\ns_branch L_f%d" % m)
                    a.label("L_f%dok" % m)
                    a.vm = keep
                o_load(m)
            if m % 2 == 0 and oiss[m] - 1 == step: a(FLOAD, tag="fl")
        ns = (psched if PH[0] else sched).get(step, [])
        ch = OPT["q2p"] and len(ns) == 2 and ns[0] % 2 == 0
        for i_, n in enumerate(ns):
            left = max(0, min(LIM[0], 512) - KVN[0])
            q2_step(n, left // (len(ns) - i_), ch and n != ns[-1], ch and n == ns[-1])
        if step == QW:
            a("s_and_b32 s%d, s%d, 1\ns_lshl_b32 s%d, s%d, 11\ns_add_u32 s%d, s%d, %d" % (sT, sW, sT, sT, sT, sT, Q2B))
            a("v_lshlrev_b32 v1, 4, v12\nv_add_u32 v2, s%d, v1" % sT)
            fr = [(t, h) for t in range(9) for h in range(2)]
            for t, h in fr: a("ds_write_b128 v2, %s offset:%d" % (vr(ACC(t, 2 * h), 4), t * 4096 + h * 1024))
            if OPT["mxf"]:
                a("s_mov_b64 exec, 1")
                a("v_mov_b32 v%d, %d\nv_mov_b32 v%d, 1" % (vA_, CNT, vB_))
                a("ds_add_u32 v%d, v%d offset:24" % (vA_, vB_))
                a("s_mov_b64 exec, -1")
            if OPT["p14"]: a("s_setprio %d" % OPT["auxprio"])
        if step == 16 and OPT["st1"]: o1_store()
        if step == OPT["pubat"]:
            a("s_cmp_lg_u32 s%d, 6\ns_cbranch_scc1 L_nopub" % sW)
            a("s_lshl_b32 s%d, s%d, 2\nv_mov_b32 v%d, s%d\nv_mov_b32 v%d, s%d" % (sT, sJJ, vA_, sT, vB_, sTag))
            keep = list(a.vm)
            a("buffer_store_dword v%d, v%d, %s, 0 offen sc1" % (vB_, vA_, SR(S_FL)))
            a.vm = keep
            a.label("L_nopub")
    def extra(step):
        if step == 0:
            if OPT["lean"]:
                a("s_lshl_b32 s%d, s%d, 3\ns_add_u32 s%d, s%d, s%d\ns_cmp_lg_u32 s%d, 6\ns_cbranch_scc1 L_nosnap" % (sT, sJJ, sT, sT, sW, sT))
                a("RAW buffer_load_dword v%d, v%d, %s, 0 offen sc1" % (vFl, vFo, SR(S_FL)))
                a.label("L_nosnap")
            else: a("buffer_load_dword v%d, v%d, %s, 0 offen sc1" % (vFl, vFo, SR(S_FL)), tag="fl")
        if step == 3:
            cstamp(a, 0)
            a("s_lshl_b32 s%d, s%d, 3\ns_add_u32 s%d, s%d, s%d\ns_cmp_lg_u32 s%d, 6\ns_cbranch_scc1 L_nolead" % (sT, sJJ, sT, sT, sW, sT))
            a("v_lshrrev_b32 v%d, v14, v%d\nv_and_b32 v%d, 1, v%d\nv_cmp_eq_u32 vcc, 0, v%d" % (vFl, vFl, vFl, vFl, vFl))
            a("s_nop 1")
            a("s_and_b32 s%d, vcc_lo, 0xffff\ns_or_b32 s%d, s%d, 0x80000000" % (sT, sT, sT))
            a("v_mov_b32 v%d, s%d" % (vFl, sT))
            keep = list(a.vm)
            a("buffer_store_dword v%d, v%d, %s, 0 offen sc1" % (vFl, vDg, SR(S_DBG)))
            a.vm = keep
            a.label("L_nolead")
        if step == 9:
            a("buffer_load_dword v%d, v%d, %s, 0 offen sc1" % (vFl, vDg, SR(S_DBG)), tag="fl")
        if step == 12:
            cstamp(a, 1)
            keep = list(a.vm)
            a.label("L_tag")
            a("v_cmp_eq_u32 vcc, 0, v%d" % vFl)
            a("s_cbranch_vccz L_tag_ok")
            a("s_sleep 8")
            a("buffer_load_dword v%d, v%d, %s, 0 offen sc1" % (vFl, vDg, SR(S_DBG)))
            a("s_waitcnt vmcnt(0)")
            a("s_branch L_tag")
            a.label("L_tag_ok")
            a.vm = keep
            a("v_readfirstlane_b32 s%d, v%d" % (sTag, vFl))
            a("v_mov_b32 v%d, %d" % (vA_, TAGW))
            a("ds_write_b32 v%d, v%d" % (vA_, vFl))
            a("s_or_b32 s%d, s%d, 0x%x" % (sWant, sTag, PHM))
            a("s_waitcnt lgkmcnt(0)")
        for m in xiss:
            if xiss[m] <= step and at[2 * m] == step + 1: a.wait_vm_tag("x%d" % m)
            if oiss[m] <= step and pat[2 * m] == step + 1: a.wait_vm_tag("x%d" % m)
        if step == 15:
            a("s_waitcnt lgkmcnt(0)")
            if OPT["mxf"] and not OPT["early"]: pass
            elif OPT["mxf"]:
                a("v_mov_b32 v%d, %d" % (vA_, CNT))
                a.label("L_mxw")
                a("s_sleep 1")
                a("ds_read_b32 v%d, v%d offset:20" % (vB_, vA_))
                a("s_waitcnt lgkmcnt(0)")
                a("v_readfirstlane_b32 s%d, v%d" % (sT, vB_))
                a("s_cmp_lt_u32 s%d, 6\ns_cbranch_scc1 L_mxw" % sT)
            else: a("s_barrier")
            kv_upto(a, 16 * 18 + OPT["early"])
        if step == 16:
            if not OPT["st1"]: o1_store()
            a("s_mov_b32 s%d, s%d" % (sBlkP, sW2))
            op_setup(a, False)
            a("v_mov_b32 v8, v1\nv_add_u32 v9, %d, v1" % XB[0])
        if step == OPT["pubat"] - 1: a.wait_vm_tag("st")
    for step in range(32):
        aux_step(a, step, pre=lambda: pre(step), extra=lambda: extra(step))
    stamp(a, 3)
    a("s_and_b32 s%d, s%d, 1\ns_lshl_b32 s%d, s%d, 14\ns_add_u32 s%d, s%d, %d" % (sT, sW, sT, sT, sT, sT, 96 * KB))
    a("s_sub_u32 s%d, s%d, s%d\ns_mov_b32 s%d, s%d\ns_mov_b32 s%d, 0x%x" % (sT2, sT, sBlkP, sBlkP, sT, sBlkD, (-64 * KB) & 0xffffffff))
    a("v_add_u32 v2, s%d, v2\nv_add_u32 v3, s%d, v3\nv_add_u32 v8, 4096, v1\nv_add_u32 v9, 8192, v1" % (sT2, sT2))

FLOAD = "buffer_load_dword v10, v11, %s, 0 offen sc1" % SR(S_FL)
def ready(a):
    a.autowait = False
    a("v_or_b32 v10, v15, v10\nv_cmp_eq_u32 vcc, s%d, v10\ns_nop 1\ns_mov_b64 s[%d:%d], vcc" % (sWant, sR2, sR2 + 1))
    if OPT["nopoll"]: a("s_mov_b64 s[%d:%d], -1" % (sR2, sR2 + 1))
    a.autowait = True

def op_setup(a, second):
    lanes(a)
    a("v_lshlrev_b32 v1, 4, v12\nv_add_u32 v8, 4096, v1")
    a("v_lshrrev_b32 v9, 5, v12")
    a("v_and_b32 v4, 3, v12\nv_lshlrev_b32 v5, 1, v9\nv_xor_b32 v4, v4, v5\nv_lshlrev_b32 v4, 4, v4")
    a("v_and_b32 v5, 1, v13")
    a("v_lshl_add_u32 v4, v5, 6, v4\nv_lshl_add_u32 v4, v15, 10, v4\nv_lshl_add_u32 v4, v9, 12, v4")
    if second: a("v_xor_b32 v4, 64, v4")
    a("s_and_b32 s%d, s%d, 3\ns_lshl_b32 s%d, s%d, 8\ns_and_b32 s%d, s%d, 1\ns_lshl_b32 s%d, s%d, 7\ns_add_u32 s%d, s%d, s%d" % (sT, sJJ, sT, sT, sT2, sW, sT2, sT2, sT, sT, sT2))
    a("v_add_u32 v4, s%d, v4" % sT)
    a("v_and_b32 v2, 3, v12\nv_lshlrev_b32 v2, 3, v2\nv_lshl_add_u32 v2, v15, 6, v2\nv_lshl_add_u32 v2, v5, 5, v2\nv_lshl_add_u32 v2, v13, 9, v2")
    a("v_add_u32 v2, s%d, v2\nv_xor_b32 v3, 32, v2" % sBlkP)
    for q in range(1, 4): a("v_add_u32 v%d, %d, v4" % (4 + q, 7168 * q))
    a("v_add_u32 v9, 8192, v1\nv_lshlrev_b32 v11, 2, v14")
    a("v_lshrrev_b32 v15, v13, 3\nv_lshlrev_b32 v15, 29, v15" if False else "v_mov_b32 v15, 3\nv_lshrrev_b32 v15, v13, v15\nv_lshlrev_b32 v15, 29, v15")
    a("s_and_b32 s%d, s%d, 1\ns_lshl_b32 s%d, s%d, 1\ns_add_u32 s%d, s%d, %d" % (sOpIdx, sW, sOpIdx, sOpIdx, sOpIdx, sOpIdx, 1 if second else 0))

def op_tail(a):
    B = lambda k, t: vr((208 if k & 1 == 0 else 128) + 4 * t, 4)
    AT = [164, 168, 172, 244]
    def run(ops):
        a.autowait = False
        for x in ops: a(x)
        a.autowait = True
        a.vm = []; a.lgkm = []
    def head_offs(i, so, sb):
        a("s_add_u32 s%d, s%d, s%d\ns_and_b32 s%d, s%d, 3\ns_and_b32 s%d, s%d, 12\ns_add_u32 s%d, s%d, s%d" % (sT3, sJJ, i, sT3, sT3, sT2, sJJ, sT3, sT3, sT2))
        a("s_add_u32 s%d, s%d, 16\ns_lshl_b32 s%d, s%d, 3\ns_add_u32 s%d, s%d, 4" % (sb, sT3, sT3, sT3, sT3, sT3))
        a("s_mul_i32 s%d, s%d, 9216\ns_lshl_b32 s%d, s%d, 15" % (so, sT3, sWn, sT3))
        if OPT["xo"] & 2: a("s_mov_b32 s%d, 0" % so)
    def w_ops(k, blk):
        return ["s_add_u32 m0, s%d, %d" % (blk, k * 4096), "s_add_u32 s%d, s%d, %d" % (sT2, sWn, k * 32768)] + \
               ["buffer_load_dwordx4 v%d, %s, s%d offen offset:%d%s lds" % (4 + q, SR(S_WO), sT2, q * 1024, POL[OPT["polwo"]]) for q in range(4)]
    def o_op(k, t): return "buffer_load_dwordx4 %s, v%d, %s, s%d offen offset:%d%s" % (B(k, t), [1, 8, 9][t >> 2], SR(S_O), sT3, (t & 3) * 1024, POL[OPT["polo"]])
    def a_reads(k, cp):
        return ["ds_read_b64_tr_b16 %s, v%d offset:%d" % (vr(AT[2 * cp + c] + 2 * rd, 2), 3 if c else 2, k * 4096 + rd * 2048 + cp * 256) for c in range(2) for rd in range(2)]
    toggle = ["v_add_u32 v2, s%d, v2" % sBlkD, "v_add_u32 v3, s%d, v3" % sBlkD, "s_add_u32 s%d, s%d, s%d" % (sBlkP, sBlkP, sBlkD), "s_sub_u32 s%d, 0, s%d" % (sBlkD, sBlkD)]
    a.raw(".p2align 3")
    a.label("L_p2")
    run([FLOAD])
    a("s_and_b32 s%d, s%d, 1\ns_lshl_b32 s%d, s%d, 1\ns_add_u32 s62, s%d, 1" % (sT, sOpIdx, sT, sT, sT))
    head_offs(62, sOc, sBc)
    for k in range(4): run(w_ops(k, sBlkP))
    a("s_add_u32 s62, s62, 1\ns_add_u32 s63, s%d, s%d" % (sBlkP, sBlkD))
    head_offs(62, sOn, sBn)
    for k in range(4): run(w_ops(k, 63))
    if OPT["latep"]:
        a("s_cmp_ge_u32 s%d, 6\ns_cbranch_scc1 L_p2_np" % sW)
        publish(a, "L_pub_y", 250, nw=33)
        stamp(a, 5)
        for i in range(36): a("v_mov_b64 %s, 0\nv_mov_b64 %s, 0" % (vr(ACC(i // 4, i % 4), 2), vr(ACC(i // 4, i % 4) + 2, 2)))
        a.label("L_p2_np")
        a.vm = []; a.lgkm = []
    a("s_waitcnt vmcnt(32)")
    a("s_mov_b32 s%d, 2" % sBit)
    a.label("L_p2_chk")
    ready(a)
    a("s_bitcmp1_b32 s%d, s%d\ns_cbranch_scc1 L_p2_go" % (sR2, sBc))
    a("s_bitcmp1_b32 s%d, s%d\ns_cbranch_scc1 L_p2_swap" % (sR2, sBn))
    run(["s_sleep %d" % OPT["slp"]])
    a.label("L_p2_poll")
    run([FLOAD, "s_waitcnt vmcnt(0)", "s_branch L_p2_chk"])
    a.label("L_p2_swap")
    run(["s_mov_b32 s%d, s%d" % (sT, sBc), "s_mov_b32 s%d, s%d" % (sBc, sBn), "s_mov_b32 s%d, s%d" % (sBn, sT),
         "s_mov_b32 s%d, s%d" % (sT, sOc), "s_mov_b32 s%d, s%d" % (sOc, sOn), "s_mov_b32 s%d, s%d" % (sOn, sT)] + toggle)
    a.label("L_p2_go")
    stamp(a, 6)
    if OPT["stamps"]: a("s_cmp_lg_u32 s%d, 2\ns_cbranch_scc1 L_p2_st\ns_memrealtime s[68:69]\nL_p2_st:" % sBit)
    for k in range(2): run(["s_add_u32 s%d, s%d, %d" % (sT3, sOc, k * 9216)] + [o_op(k, t) for t in range(9)])
    run([FLOAD, "s_waitcnt vmcnt(19)"] + a_reads(0, 0))
    def kstep(k, ho, extra):
        more = k < 2 or ho
        run(["s_waitcnt vmcnt(%d) lgkmcnt(0)" % ((9 + extra) if (k < 3 or ho) else 0)] + a_reads(k, 1))
        if more: run(["s_add_u32 s%d, s%d, %d" % (sT3, sOc if k < 2 else sOn, ((k + 2) & 3) * 9216)])
        for cp in range(2):
            if cp == 1:
                run(["s_waitcnt lgkmcnt(0)"])
                if k == 3: run(toggle)
                if k < 3 or ho: run(a_reads((k + 1) & 3, 0))
            for t in range(9):
                for c in range(2):
                    r = vr(ACC(t, 2 * cp + c), 4)
                    run(["%s %s, %s, %s, %s" % (MF, r, vr(AT[2 * cp + c], 4), B(k, t), r)])
                if cp == 1 and more: run([o_op(k, t)])
    kstep(0, False, 1)
    kstep(1, False, 0)
    a("s_cmp_eq_u32 s%d, 1\ns_cbranch_scc1 L_p2_last" % sBit)
    ready(a)
    a("s_bitcmp1_b32 s%d, s%d\ns_cbranch_scc0 L_p2_last" % (sR2, sBn))
    kstep(2, True, 0); kstep(3, True, 0)
    a("s_mov_b32 s%d, s%d\ns_mov_b32 s%d, 1" % (sOc, sOn, sBit))
    kstep(0, False, 0); kstep(1, False, 0)
    a.label("L_p2_last")
    kstep(2, False, 0); kstep(3, False, 0)
    a("s_mov_b32 s%d, s%d\ns_mov_b32 s%d, s%d" % (sOc, sOn, sBc, sBn))
    a("s_sub_u32 s%d, s%d, 1\ns_cmp_lg_u32 s%d, 0\ns_cbranch_scc1 L_p2_poll" % (sBit, sBit, sBit))
    stamp(a, 1)
    a("s_add_u32 s%d, s%d, s%d\ns_min_u32 s%d, s%d, s%d\ns_max_u32 s%d, s%d, s%d" % (sT, sBlkP, sBlkD, sT2, sT, sBlkP, sT3, sT, sBlkP))
    a("v_add_u32 v8, s%d, v1\nv_add_u32 v9, s%d, v1" % (sT2, sT3))
    for t in range(9):
        for c in range(2): a("ds_write_b128 v%d, %s offset:%d" % (8 if t < 8 else 9, vr(ACC(t, 2 + c), 4), ((t & 7) * 2 + c) * 1024))
    a("v_xor_b32 v8, %d, v8" % (32 * KB))
    a("s_mov_b32 s%d, %d\ns_cmp_eq_u32 s%d, 1\ns_cselect_b32 s%d, %d, s%d" % (sT, 64 * KB, sOpIdx, sT, 96 * KB, sT))
    a("s_cmp_eq_u32 s%d, 2\ns_cselect_b32 s%d, %d, s%d\ns_cmp_eq_u32 s%d, 3\ns_cselect_b32 s%d, %d, s%d" % (sOpIdx, sT, 132 * KB, sT, sOpIdx, sT, 112 * KB, sT))
    a("v_add_u32 v9, s%d, v1" % sT)
    a("s_lshl_b32 s%d, s%d, 2\ns_and_b32 s%d, s%d, 3\ns_add_u32 s%d, s%d, s%d\ns_lshl_b32 s%d, s%d, 2\ns_add_u32 s%d, s%d, s%d" % (sT, sG, sT2, sJJ, sT, sT, sT2, sT, sT, sT, sT, sOpIdx))
    a("s_mul_i32 s%d, s%d, %d\ns_add_u32 s%d, s%d, 0x%x\ns_add_u32 s90, s100, s%d\ns_addc_u32 s91, s101, 0" % (sT, sT, 4 * 9216, sT, sT, SLAB_OFF, sT))
    srd(a, S_SL, 90, 91, "%d" % (4 * 9216))
    a("s_waitcnt lgkmcnt(0)")
    a("s_barrier")
    for t in range(9):
        for c in range(2): a("ds_read_b128 %s, v%d offset:%d" % (vr(ACC(t, 2 + c), 4), 8 if t < 8 else 9, ((t & 7) * 2 + c) * 1024))
    a("v_add_u32 v8, 4096, v1\nv_add_u32 v9, 8192, v1")
    a("s_lshr_b32 s62, s%d, 2" % sJJ)
    a("s_cmp_eq_u32 s62, s%d\ns_cbranch_scc1 L_fin" % sOpIdx)
    keepl = list(a.lgkm)
    def addp(t):
        b = ACC(t, 0)
        for r in range(0, 8, 2): a("v_pk_add_f32 %s, %s, %s" % (vr(b + r, 2), vr(b + r, 2), vr(b + 8 + r, 2)))
    def cvt(t):
        b = ACC(t, 0)
        for r in range(4): a("v_cvt_pk_bf16_f32 v%d, v%d, v%d" % (b + r, b + 2 * r, b + 2 * r + 1))
    a("s_mul_i32 s%d, s62, 9216" % sT3)
    for t in range(9):
        addp(t); cvt(t)
        a("buffer_store_dwordx4 %s, v%d, %s, s%d offen offset:%d sc1" % (vr(ACC(t, 0), 4), [1, 8, 9][t >> 2], SR(S_SL), sT3, (t & 3) * 1024))
    publish(a, "L_pub_z", 250, 28, 2, PHM)
    if OPT["stamps"]:
        stamp(a, 7); stamp_store(a)
    a("s_endpgm")
    a.vm = []; a.lgkm = keepl
    a.label("L_fin")
    for t in range(9): addp(t)
    lanes(a)
    a("v_and_b32 v244, 1, v14\nv_lshlrev_b32 v244, 4, v244\nv_mov_b32 v245, 0x3f80\nv_lshlrev_b32 v245, v244, v245")
    a("v_cmp_eq_u32 vcc, v15, v13\nv_mov_b32 v244, 0\nv_cndmask_b32 v245, 0, v245, vcc")
    a("v_and_b32 v246, 2, v14\nv_cmp_eq_u32 vcc, 0, v246\nv_mov_b32 v248, 0\nv_mov_b32 v249, 0")
    a("v_cndmask_b32 v246, 0, v245, vcc\nv_cndmask_b32 v247, v245, v244, vcc\nv_mov_b32 v245, 0")
    a("v_lshrrev_b32 v4, 1, v13\nv_and_b32 v5, 1, v13\nv_lshl_or_b32 v4, v5, 1, v4\nv_lshlrev_b32 v4, 4, v4\nv_lshl_add_u32 v4, v14, 11, v4")
    a("s_mul_i32 s%d, s%d, %d\ns_lshl_b32 s%d, s%d, 10\ns_add_u32 s%d, s%d, s%d" % (sOutOff, sB, 144 * 2048, sT, sBlk, sOutOff, sOutOff, sT))
    a("s_and_b32 s%d, s%d, 3\ns_lshl_b32 s%d, s%d, 8\ns_add_u32 s%d, s%d, s%d\ns_lshl_b32 s%d, s62, 6\ns_add_u32 s%d, s%d, s%d" % (sT2, sJJ, sT, sT2, sOutOff, sOutOff, sT, sT, sOutOff, sOutOff, sT))
    a("v_mov_b32 v15, 3\nv_lshrrev_b32 v15, v13, v15\nv_lshlrev_b32 v15, 29, v15")
    a("s_lshl_b32 s%d, 0x1111, s%d\ns_lshl_b32 s%d, 1, s%d\ns_andn2_b32 s%d, s%d, s%d" % (sBit, sT2, sT, sJJ, sBit, sBit, sT))
    run([FLOAD, "s_waitcnt vmcnt(0)"])
    a.label("L_fin_chk")
    ready(a)
    a("s_andn2_b32 s%d, s%d, s%d\ns_cbranch_scc0 L_fin_go" % (sT, sBit, sR2 + 1))
    run(["s_sleep %d" % OPT["slp"], FLOAD, "s_waitcnt vmcnt(0)", "s_branch L_fin_chk"])
    a.label("L_fin_go")
    stamp(a, 4)
    SL = lambda i, t: (ACC(t, 2 + i) if i < 2 else 128 + 4 * t)
    for i in range(3): a("s_add_u32 s%d, s62, %d\ns_and_b32 s%d, s%d, 3\ns_mul_i32 s%d, s%d, 9216" % (sOc + i, i + 1, sOc + i, sOc + i, sOc + i, sOc + i))
    for t in range(9):
        for i in range(3):
            a("buffer_load_dwordx4 %s, v%d, %s, s%d offen offset:%d sc1" % (vr(SL(i, t), 4), [1, 8, 9][t >> 2], SR(S_SL), sOc + i, (t & 3) * 1024))
    def fin_out(t):
        cvt(t); q_swap(a, ACC(t, 0))
        a("s_add_u32 s%d, s%d, %d" % (sT, sOutOff, t * 32768))
        a("buffer_store_dwordx4 %s, v4, %s, s%d offen%s" % (vr(ACC(t, 0), 4), SR(S_OUT), sT, POL[OPT["polout"]]))
    for t in range(9):
        for i in range(3):
            for c in range(2):
                r = vr(ACC(t, c), 4)
                a("%s %s, %s, %s, %s" % (MF, r, vr(246 - 2 * c, 4), vr(SL(i, t), 4), r))
        if t: fin_out(t - 1)
    fin_out(8)
    if OPT["stamps"]:
        a("s_waitcnt vmcnt(0)")
        stamp(a, 7); stamp_store(a)
    a("s_endpgm")
    a.vm = []; a.lgkm = []

def kernel():
    a = Asm()
    a.raw(".globl %s\n.p2align 8\n.type %s,@function" % (NAME, NAME)); a.label(NAME)
    a("s_cmp_ge_u32 s2, 256\ns_cbranch_scc1 L_end")
    if OPT["stamps"]:
        for k in range(1 if OPT["pst"] else NST): a("s_memrealtime s[%d:%d]" % (64 + 2 * k, 65 + 2 * k))
    a("s_and_b32 s%d, s2, 7\ns_lshr_b32 s%d, s2, 3\ns_lshr_b32 s%d, s%d, 2" % (sT, sT2, sBlk, sT))
    a("s_mul_i32 s%d, s%d, 40" % (sT3, sBlk))
    a("s_add_u32 s4, s0, s%d\ns_addc_u32 s5, s1, 0" % sT3)
    a("s_load_dwordx8 s[80:87], s[4:5], 0")
    a("s_load_dwordx2 s[88:89], s[4:5], 32")
    a("s_load_dwordx4 s[96:99], s[0:1], 80")
    a("s_load_dwordx2 s[92:93], s[0:1], 96")
    a("s_lshr_b32 s%d, s%d, 4\ns_lshl_b32 s%d, s%d, 1\ns_add_u32 s%d, s%d, s%d" % (sGo, sT2, sT3, sT, sGo, sGo, sT3))
    a("s_and_b32 s%d, s%d, 15" % (sJo, sT2))
    if OPT["map"] == 0:
        a("s_mov_b32 s%d, s%d\ns_mov_b32 s%d, s%d\ns_and_b32 s%d, s%d, 7" % (sG, sGo, sJJ, sJo, sB, sGo))
        a("s_and_b32 s%d, s%d, 1\ns_lshl_b32 s%d, s%d, 2\ns_add_u32 s%d, s%d, s%d" % (sRot, sG, sRot, sRot, sRot, sRot, sJJ))
    elif OPT["map"] == 1:
        a("s_and_b32 s%d, s%d, 7\ns_and_b32 s%d, s%d, 1\ns_lshl_b32 s%d, s%d, 3\ns_add_u32 s%d, s%d, s%d" % (sRot, sT2, sJJ, sT, sJJ, sJJ, sJJ, sJJ, sRot))
        a("s_lshr_b32 s%d, s%d, 3\ns_lshl_b32 s%d, s%d, 1\ns_add_u32 s%d, s%d, s%d" % (sB, sT2, sT3, sB, sRot, sRot, sT3))
        a("s_and_b32 s%d, s%d, 2\ns_lshl_b32 s%d, s%d, 1\ns_add_u32 s%d, s%d, s%d" % (sT3, sT, sT3, sT3, sB, sB, sT3))
        a("s_lshl_b32 s%d, s%d, 3\ns_add_u32 s%d, s%d, s%d" % (sG, sBlk, sG, sG, sB))
    else:
        a("s_and_b32 s%d, s%d, 3\ns_and_b32 s%d, s%d, 3\ns_lshl_b32 s%d, s%d, 2\ns_add_u32 s%d, s%d, s%d" % (sRot, sT2, sJJ, sT, sJJ, sJJ, sJJ, sJJ, sRot))
        a("s_lshr_b32 s%d, s%d, 2\ns_lshl_b32 s%d, s%d, 1\ns_add_u32 s%d, s%d, s%d" % (sB, sT2, sRot, sRot, sRot, sRot, sB))
        if OPT["cls"] == 1: a("s_and_b32 s%d, s%d, 3\ns_lshl_b32 s%d, s%d, 1\ns_lshr_b32 s%d, s%d, 4\ns_add_u32 s%d, s%d, s%d" % (sB, sB, sB, sB, sT3, sT2, sB, sB, sT3))
        a("s_lshl_b32 s%d, s%d, 3\ns_add_u32 s%d, s%d, s%d" % (sG, sBlk, sG, sG, sB))
    if OPT["cls"] == 1: a("s_lshr_b32 s3, s2, 7")
    if OPT["cls"] == 2: a("s_mov_b32 s3, s%d" % sBlk)
    a("v_lshrrev_b32 v12, 6, v0")
    a("v_readfirstlane_b32 s%d, v12" % sW)
    a("s_mul_i32 s62, s%d, 147456" % sB)
    def code_pf():
        a("s_getpc_b64 s[90:91]")
        a.label("L_pf")
        if OPT["pfw"]:
            a("s_lshr_b32 s%d, s2, 3\ns_and_b32 s%d, s%d, 3\ns_min_u32 s%d, s%d, 2\ns_lshl_b32 s%d, s%d, 15" % (sT, sT, sT, sT, sT, sT, sT))
            a("v_lshlrev_b32 v240, 7, v0\nv_add_u32 v240, s%d, v240" % sT)
        else: a("v_lshlrev_b32 v240, 7, v0")
        a.items.append(a._mk("v_min_u32 v240, 0x1234, v240")); a.items[-1].text = "v_min_u32 v240, L_end-L_pf, v240"
        if OPT["pfw"] == 2: a("s_cmp_ge_u32 s2, 32\ns_cbranch_scc1 L_nopf")
        a("global_load_dword v253, v240, s[90:91]")
        if OPT["pfw"] == 2: a.label("L_nopf")
    if not OPT["pfw"]: code_pf()
    if OPT["fast0"]:
        loader_setup(a)
        if OPT["pst"]: a("s_memrealtime s[66:67]")
        srds_first(a)
        if OPT["pst"]: a("s_memrealtime s[68:69]")
        a("s_cmp_lt_u32 s%d, 4\ns_cbranch_scc1 L_arole" % sW)
        st0 = (list(a.lgkm), list(a.vm))
        for x, t in stage_ops_(0, 4): a(x, tag=t)
        st = (list(a.lgkm), list(a.vm))
        a("s_cmp_ge_u32 s%d, 6\ns_cbranch_scc1 L_auxrole\ns_branch L_brole" % sW)
        a.label("L_arole")
        a.lgkm, a.vm = list(st0[0]), list(st0[1])
    else:
        a("s_cmp_ge_u32 s%d, 6\ns_cbranch_scc1 L_auxrole" % sW)
        st = (list(a.lgkm), list(a.vm))
        a("s_cmp_ge_u32 s%d, 4\ns_cbranch_scc1 L_brole" % sW)
    if OPT["pfw"]: code_pf()
    head(a, "A")
    a("s_branch L_att")
    a.lgkm, a.vm = list(st[0]), list(st[1])
    a.raw(".p2align 3"); a.label("L_brole")
    head(a, "B")
    a.label("L_att")
    attention(a)
    a.lgkm, a.vm = list(st[0]), list(st[1])
    a.raw(".p2align 3"); a.label("L_auxrole")
    head(a, "X")
    aux(a)
    a.vm = []
    op_tail(a)
    a.label("L_end"); a("s_endpgm")
    a.pad_hazards()
    a.check_backedge("L_loop", "s_cbranch_scc1 L_loop")
    a.align8()
    return a.text()

out = []
out.append("; " + " ".join(sys.argv[1:]) + " : fused Q-projection + attention + O-projection, one launch (generated by dev/gen15.py)")
out.append("; @launch grid=(256,1,1) block=(512,1,1) lds=163840")
out.append('.amdgcn_target "amdgcn-amd-amdhsa--gfx950"\n.text')
out.append(kernel())
out.append('.section .rodata,"a"\n.p2align 6')
out.append(""".amdhsa_kernel %s
  .amdhsa_next_free_vgpr 256
  .amdhsa_next_free_sgpr 102
  .amdhsa_accum_offset 256
  .amdhsa_group_segment_fixed_size 0
  .amdhsa_kernarg_size 104
  .amdhsa_user_sgpr_count 2
  .amdhsa_user_sgpr_kernarg_segment_ptr 1
  .amdhsa_system_sgpr_workgroup_id_x 1
.end_amdhsa_kernel
""" % NAME)
print("\n".join(out))
```

```python
import re

def vr(a, n=1):
    return "v%d" % a if n == 1 else "v[%d:%d]" % (a, a + n - 1)
def ar(a, n=1):
    return "a%d" % a if n == 1 else "a[%d:%d]" % (a, a + n - 1)
def sr(a, n=1):
    return "s%d" % a if n == 1 else "s[%d:%d]" % (a, a + n - 1)

_REG = re.compile(r"\b([vas])(\d+)\b|\b([vas])\[(\d+):(\d+)\]")
def regs_of(tok):
    out = []
    for m in _REG.finditer(tok):
        if m.group(1):
            out.append((m.group(1), int(m.group(2))))
        else:
            out += [(m.group(3), i) for i in range(int(m.group(4)), int(m.group(5)) + 1)]
    if re.search(r"\bvcc\b", tok): out.append(("s", "vcc"))
    if re.search(r"\bm0\b", tok): out.append(("s", "m0"))
    if re.search(r"\bexec\b", tok): out.append(("s", "exec"))
    return out

TRANS = ("v_exp_f32", "v_log_f32", "v_rcp_f32", "v_rsq_f32", "v_sqrt_f32")
VOP3_ONLY = ("v_max3_f32", "v_min3_f32", "v_fma_f32", "v_cvt_pk_bf16_f32", "v_add3_u32", "v_lshl_add_u32",
             "v_lshl_or_b32", "v_and_or_b32", "v_bfe_u32", "v_mul_lo_u32", "v_mad_u32_u24", "v_perm_b32",
             "v_pk_mul_f32", "v_pk_add_f32", "v_accvgpr_read_b32", "v_accvgpr_write_b32", "v_add_lshl_u32",
             "v_readlane_b32", "v_or3_b32", "v_xad_u32", "v_med3_f32", "v_mbcnt_lo_u32_b32", "v_mbcnt_hi_u32_b32",
             "v_pk_fma_f32", "v_mul_hi_u32", "v_bitop3_b32")
INLINE_F = {"0.5", "-0.5", "1.0", "-1.0", "2.0", "-2.0", "4.0", "-4.0"}

def is_literal(tok):
    tok = tok.strip()
    if tok in INLINE_F: return False
    try:
        v = int(tok, 0)
    except ValueError:
        return False
    if v in (0x3f000000, 0xbf000000, 0x3f800000, 0xbf800000, 0x40000000, 0xc0000000, 0x40800000, 0xc0800000, 0x3e22f983): return False
    if v >= 0xfffffff0: return False
    return not (-16 <= v <= 64)

class I:
    __slots__ = ("op", "args", "kind", "wr", "rd", "size", "text", "srcC", "e64ok", "mods")

class Asm:
    def __init__(self):
        self.items = []
        self.lgkm = []
        self.vm = []
        self.autowait = True

    def raw(self, s): self.items.append(s)
    def label(self, l): self.items.append(l + ":")
    def comment(self, s): self.items.append("; " + s)

    def ins(self, line, tag=None):
        line = line.strip()
        op, _, rest = line.partition(" ")
        toks = [t.strip() for t in rest.split(",")] if rest else []
        i = I(); i.op = op; i.text = line; i.srcC = []; i.e64ok = False
        base = op.replace("_e32", "").replace("_e64", "").replace("_dpp", "")
        R = [regs_of(t) for t in toks]
        flat = lambda xs: [r for x in xs for r in x]
        if op.startswith("v_mfma"):
            i.kind = "mfma"; i.wr = R[0]; i.rd = flat(R[1:]); i.srcC = R[3]; i.size = 8
        elif op.startswith("ds_read") or op.startswith("ds_bpermute") or op.startswith("ds_swizzle"):
            i.kind = "ds"; i.wr = R[0]; i.rd = flat(R[1:]); i.size = 8
        elif op.startswith("ds_"):
            i.kind = "ds"; i.wr = []; i.rd = flat(R); i.size = 8
        elif op.startswith("buffer_load") or op.startswith("global_load"):
            i.size = 8; i.kind = "vmem"
            if re.search(r"\blds\b", line):
                i.wr = []; i.rd = flat(R) + [("s", "m0")]; i.kind = "dma"
            else:
                i.wr = R[0]; i.rd = flat(R[1:])
        elif op.startswith("buffer_store") or op.startswith("global_store"):
            i.size = 8; i.kind = "store"; i.wr = []; i.rd = flat(R)
        elif op.startswith("buffer_atomic") or op.startswith("global_atomic"):
            i.size = 8; i.kind = "store"; i.rd = flat(R); i.wr = R[0] if " sc0" in line else []
        elif op.startswith("buffer_"):
            i.size = 8; i.kind = "vmem"; i.wr = []; i.rd = []
        elif op.startswith("v_"):
            i.kind = "trans" if base in TRANS else "valu"
            if op.startswith("v_cmp"):
                i.wr = R[0]; i.rd = flat(R[1:])
                e32 = toks[0] == "vcc"
            elif base in ("v_permlane16_swap_b32", "v_permlane32_swap_b32"):
                i.kind = "perm"; i.wr = R[0] + R[1]; i.rd = R[0] + R[1]; e32 = True
            elif base in ("v_readfirstlane_b32", "v_readlane_b32"):
                i.kind = "rdlane"; i.wr = R[0]; i.rd = flat(R[1:]); e32 = True
            else:
                i.wr = R[0]; i.rd = flat(R[1:]); e32 = True
                if base in ("v_fmac_f32",): i.rd = i.rd + R[0]
                if base in ("v_add_co_u32", "v_addc_co_u32"): i.wr = R[0] + R[1]; i.rd = flat(R[2:])
            lit = any(is_literal(t) for t in toks[1:])
            if "_dpp" in op:
                i.size = 8; i.kind = "dpp"
            elif base in VOP3_ONLY or op.endswith("_e64") or not e32:
                i.size = 8
            else:
                force3 = False
                if len(toks) >= 3 and base not in ("v_cndmask_b32", "v_add_co_u32", "v_addc_co_u32"):
                    if not re.fullmatch(r"v\d+", toks[2]): force3 = True
                if any(t.startswith("-v") or t.startswith("-s") or "abs(" in t or "|" in t for t in toks[1:]): force3 = True
                if force3: i.size = 8
                else:
                    i.size = 8 if lit else 4
                    i.e64ok = (not lit) and i.kind in ("valu", "trans") and base not in ("v_fmac_f32", "v_add_co_u32", "v_addc_co_u32", "v_cndmask_b32") and not op.endswith("_e32")
        elif op.startswith("s_load") or op in ("s_memtime", "s_memrealtime") or op.startswith("s_atomic"):
            i.kind = "smem"; i.wr = R[0]; i.rd = flat(R[1:]); i.size = 8
        elif op.startswith("s_"):
            sopp = op in ("s_nop", "s_waitcnt", "s_barrier", "s_branch", "s_endpgm", "s_sleep", "s_setprio") or op.startswith("s_cbranch")
            if sopp:
                i.kind = "sopp"; i.wr = []; i.rd = []; i.size = 4
            else:
                i.kind = "salu"
                if op.startswith("s_cmp"):
                    i.wr = []; i.rd = flat(R)
                else:
                    i.wr = R[0]; i.rd = flat(R[1:])
                lit = any(is_literal(t) for t in toks) and not op.endswith("k_i32") and not op.startswith("s_getreg")
                i.size = 8 if lit else 4
        else:
            raise ValueError(line)
        if self.autowait: self._autowait(i)
        self.items.append(i)
        if i.kind == "ds": self.lgkm.append(set(i.wr))
        if i.kind in ("vmem", "dma", "store"): self.vm.append((tag, set(i.wr)))
        if op == "s_waitcnt":
            m = re.search(r"lgkmcnt\((\d+)\)", line)
            if m:
                n = int(m.group(1)); self.lgkm = self.lgkm[len(self.lgkm) - n:] if n and n < len(self.lgkm) else ([] if n == 0 else self.lgkm)
            m = re.search(r"vmcnt\((\d+)\)", line)
            if m:
                n = int(m.group(1)); self.vm = self.vm[len(self.vm) - n:] if n and n < len(self.vm) else ([] if n == 0 else self.vm)
        return i

    cap = None
    def capture(self, f):
        self.cap = []
        f()
        r, self.cap = self.cap, None
        return r

    def __call__(self, text, tag=None):
        for l in text.strip().split("\n"):
            l = l.split(";")[0].strip()
            if not l: continue
            if self.cap is not None:
                self.cap.append((l, tag)); continue
            if l.startswith("WAITTAG "):
                self.wait_vm_tag(l[8:]); continue
            if l.startswith("WAIT "): self.wait_regs(l[5:])
            elif l.startswith("RAW "): self.items.append(self._mk(l[4:]))
            elif l.endswith(":"): self.label(l[:-1])
            else: self.ins(l, tag)

    def _autowait(self, i):
        touched = set(i.rd) | set(i.wr)
        need = None
        for k, d in enumerate(self.lgkm):
            if d & touched: need = k
        w = []
        if need is not None:
            n = len(self.lgkm) - 1 - need
            w.append("lgkmcnt(%d)" % min(n, 14))
        need = None
        for k, (t, d) in enumerate(self.vm):
            if d & touched: need = k
        if need is not None:
            n = len(self.vm) - 1 - need
            w.insert(0, "vmcnt(%d)" % min(n, 63))
        if w:
            self.autowait = False
            self.ins("s_waitcnt " + " ".join(w))
            self.autowait = True

    def wait_regs(self, tok):
        i = I(); i.rd = regs_of(tok); i.wr = []
        self._autowait(i)

    def wait_vm_tag(self, tag):
        if self.cap is not None:
            self.cap.append(("WAITTAG " + tag, None)); return
        need = None
        for k, (t, d) in enumerate(self.vm):
            if t == tag: need = k
        if need is not None:
            n = len(self.vm) - 1 - need
            assert n <= 63
            self.ins("s_waitcnt vmcnt(%d)" % n)

    @staticmethod
    def _need(p, c):
        n = 0
        pw = set(p.wr); cr = set(c.rd); cw = set(c.wr)
        vw = {r for r in pw if r[0] in "va"}
        sw = {r for r in pw if r[0] == "s"}
        valu_like = ("valu", "trans", "perm", "dpp", "rdlane")
        if p.kind in valu_like:
            if c.kind == "mfma" and vw & cr: n = max(n, 2)
            if c.kind in ("perm", "dpp") and vw & cr: n = max(n, 2)
            if c.kind == "rdlane" and vw & cr: n = max(n, 1)
            if p.kind == "trans" and c.kind in valu_like and c.kind != "trans" and vw & cr: n = max(n, 1)
            if sw & cr:
                if c.kind in valu_like: n = max(n, 2 if c.kind != "rdlane" else 4)
                if c.kind in ("vmem", "dma", "store"): n = max(n, 5)
                if c.kind in ("salu", "smem"): n = max(n, 1)
        if p.kind == "mfma":
            passes = 8 if "32x32" in p.op else 4
            big = {4: 8, 8: 12}[passes]
            if c.kind == "mfma":
                ab = cr - set(c.srcC)
                if vw & ab: n = max(n, big)
                if vw & set(c.srcC) and set(c.srcC) != vw: n = max(n, {4: 6, 8: 10}[passes])
                if vw & cw and not (set(c.srcC) == vw): n = max(n, big)
            elif c.kind in valu_like or c.kind in ("ds", "vmem", "dma", "store"):
                if vw & (cr | cw): n = max(n, big)
            if c.kind in valu_like and set(p.srcC) & cw: n = max(n, {4: 3, 8: 7}[passes])
        if p.kind == "salu" and ("s", "m0") in pw and c.kind == "dma": n = max(n, 1)
        if p.kind == "store" and ("x4" in p.op or "x3" in p.op):
            if {r for r in p.rd if r[0] in "va"} & cw: n = max(n, 2)
        return n

    @staticmethod
    def _states(i):
        if i.op == "s_nop": return int(i.text.split()[1], 0) + 1
        return 1

    def pad_hazards(self):
        out = []; hist = []
        for it in self.items:
            if isinstance(it, str):
                out.append(it); continue
            need = 0; dist = 0
            for p in reversed(hist):
                r = self._need(p, it)
                if r > dist: need = max(need, r - dist)
                dist += self._states(p)
                if dist >= 16: break
            while need > 0:
                k = min(need, 16)
                nop = self._mk("s_nop %d" % (k - 1)); out.append(nop); hist.append(nop); need -= k
            out.append(it); hist.append(it)
            if len(hist) > 40: hist = hist[-24:]
        self.items = out

    def check_backedge(self, head, branch_idx_text):
        idx_h = next(k for k, it in enumerate(self.items) if it == head + ":")
        idx_b = max(k for k, it in enumerate(self.items) if not isinstance(it, str) and it.text == branch_idx_text)
        tail = [it for it in self.items[idx_h:idx_b + 1] if not isinstance(it, str)][-20:]
        headl = [it for it in self.items[idx_h:idx_b + 1] if not isinstance(it, str)][:20]
        seq = tail + headl
        for ci in range(len(tail), len(seq)):
            dist = 0
            for pi in range(ci - 1, -1, -1):
                r = self._need(seq[pi], seq[ci])
                assert r <= dist, ("backedge hazard", seq[pi].text, seq[ci].text, r, dist)
                dist += self._states(seq[pi])

    def _mk(self, line):
        t = Asm(); t.autowait = False
        return t.ins(line)

    def align8(self):
        out = []; pc = 0
        cand = []
        for it in self.items:
            if isinstance(it, str):
                if it.startswith(".p2align"):
                    pc = 0; cand = []
                out.append(it); continue
            if it.size == 8 and pc % 8 == 4:
                good = [c for c in cand if c[1] % 8 == 0]
                pick = good[-1] if good else (cand[-1] if cand else None)
                if pick is not None:
                    p = out[pick[0]]
                    p.text = p.text.replace(p.op, p.op + "_e64", 1); p.op = p.op + "_e64"; p.size = 8; p.e64ok = False
                else:
                    out.append(self._mk("s_nop 0"))
                pc += 4
            if it.size == 8: cand = []
            elif it.e64ok: cand.append((len(out), pc))
            out.append(it); pc += it.size
        self.items = out

    def text(self):
        o = []
        for it in self.items:
            o.append(it if isinstance(it, str) else "    " + it.text)
        return "\n".join(o) + "\n"
```

```python
import sys, math, struct
sys.path.insert(0, "dev")
from asmlib import *

OPT = dict(stamps=0, samekv=0, clk=0, hst=0, nopoll=0, polo=2, polw=0, polx=0, polwo=0, pols=2, polkv=1, slp=4, lo=2,
           auxprio=0, sbs=1, s0=22, kp="3333333322", sst=-1, sstd=1, xo=0, xw=0, map=2, park=2, hprio=1, kv0=5, kv1=6, pk14=0, ck=0, polout=0, ptouch=0, tw0="15", tw1="", g0=15, cap=0, capto=16, nol=0, q2mix=2, bst=-1, bw=0, pair=1, mxf=1, p14=1, early=8, tst=0, cpf=1, pfm=-1, pst=0, pfw=1, fast0=1, q2s="22111111111111", q2p=1, q2pr=0, kvc=0, xmf=0, cls=0, capl=0, capl0=2, capl1=17, pubat=18, st1=0, hb=3, k1a=8, k1b=8, pad=0, ypr=2, asym=-1, p0=18, ps="1111000000002222220", fl0=19, od=1, pols2=2, polf=2)
for a_ in sys.argv[1:]:
    k, v = a_.split("="); assert k in OPT, k; OPT[k] = v if k in ("kp", "tw0", "tw1", "q2s", "ps", "ftb") else int(v)

NAME = "concat_heads__mha_block_cached__gqa_block_cached__near_ridge_kernel"
def f32(x): return "0x%08x" % struct.unpack("<I", struct.pack("<f", x))[0]
CSCALE = math.log2(math.e) / math.sqrt(128.0)
THR = 8.0
KB = 1024
SLOT = 32 * KB
XB = [96 * KB, 114 * KB, 132 * KB]
WB = [32 * KB, 48 * KB, 0]
Q2B = 96 * KB; Q1A = 132 * KB; Q1C = 32 * KB; EX1 = 132 * KB; EX2 = 56 * KB; EX1B = 32 * KB; W2R = 132 * KB
MLB = 156 * KB; CNT = 160 * KB - 128; TAGW = CNT + 8; CLAIM = CNT + 16; PFL = CNT + 32
STAMP_OFF = 0x10000000; FLAG_OFF = 0x2000000
PH2 = 0x40000000; PH3 = 0x20000000; PHM = 0x60000000
SLAB_OFF = 0x2800000
S_SL = 8
sR2 = 60
OSTR = 128 * 9216 + 1024
MF = "v_mfma_f32_16x16x32_bf16"
NST = 8
POL = ["", " nt", " sc1", " sc0 sc1", " sc1 nt", " sc0 sc1 nt", " sc0 nt", " sc0"]
NIN = sum(int(c) for c in OPT["kp"]) // 4
assert NIN * 4 == sum(int(c) for c in OPT["kp"]) and NIN <= 7

HD = OPT["hb"]
HX = XB if HD == 3 else [64 * KB, 132 * KB, 96 * KB, 114 * KB]
HW = WB if HD == 3 else [0, 16 * KB, 32 * KB, 48 * KB]
SPLIT = OPT["pubat"] + 1
S_FL, S_WQ, S_X, S_O, S_KV, S_WO, S_OUT, S_DBG = 4, 8, 12, 16, 20, 24, 28, 32
S_OL, S_FLL = 8, 12
sW, sG, sJJ, sBlk, sB, sRot, sT, sT2, sT3 = 36, 37, 38, 39, 40, 41, 42, 43, 44
sCnt, sThr, sFl, sSlot, sDelta, sItem, sExS, sBar, sExch, sOoff = 45, 46, 47, 48, 49, 50, 51, 52, 53, 54
sNeg, sPos, sPart, sKg, sRho = 55, 56, 57, 59, 62
sHk, sHo = 46, 47
sOc, sOn, sWn, sBlkP, sRm, sBit, sR, sC = 46, 47, 48, 49, 51, 52, 55, 56
sBlkD, sBc, sBn, sOnn = 45, 53, 58, 86
sOb, sWb, sOutOff, sOpIdx, sTag, sWant, sTagA = 80, 81, 82, 83, 84, 85, 87
sGo, sJo = 94, 95

def srd(a, d, lo, hi, nrec):
    a("s_mov_b32 s%d, s%d\ns_mov_b32 s%d, s%d" % (d, lo, d + 1, hi))
    a("s_mov_b32 s%d, %s\ns_mov_b32 s%d, 0x20000" % (d + 2, nrec, d + 3))
def SR(d): return "s[%d:%d]" % (d, d + 3)

def cstamp(a, e):
    if OPT["clk"]: a("s_memtime s[%d:%d]\ns_memrealtime s[%d:%d]" % (66 + 2 * e, 67 + 2 * e, 70 + 2 * e, 71 + 2 * e))
def stamp(a, k, hs=False):
    if not OPT["stamps"] or OPT["ck"]: return
    if OPT["clk"] and 1 <= k <= 4: return
    if (OPT["sst"] >= 0 or OPT["bst"] >= 0 or OPT["tst"] or OPT["pst"]) and k and k != 7: return
    if OPT["hst"] and k and not hs: return
    if hs and not OPT["hst"]: return
    a("s_memrealtime s[%d:%d]" % (64 + 2 * k, 65 + 2 * k))
BSN = [0]
def bstamp(a, k):
    if OPT["bst"] < 0: return
    BSN[0] += 1
    a("s_cmp_lg_u32 s%d, %d\ns_cbranch_scc1 L_bs%d\ns_memrealtime s[%d:%d]\nL_bs%d:" % (sItem, OPT["bst"], BSN[0], 64 + 2 * k, 65 + 2 * k, BSN[0]))
def stamp_store(a):
    a("s_waitcnt vmcnt(0) lgkmcnt(0)")
    a("s_cmp_eq_u32 s%d, 6\ns_cselect_b32 s%d, 256, 0" % (sW, sT))
    a("s_mul_i32 s%d, s%d, 43\ns_lshr_b32 s%d, s%d, 8\ns_mul_i32 s%d, s%d, 6" % (sT2, sW, sT2, sT2, sT2, sT2))
    a("s_cmp_lg_u32 s%d, s%d\ns_cbranch_scc1 L_end" % (sT2, sW))
    a("s_add_u32 s96, s100, 0x%x\ns_addc_u32 s97, s101, 0" % STAMP_OFF)
    a("s_mov_b32 s98, 0x100000\ns_mov_b32 s99, 0x20000")
    a("s_add_u32 s3, s2, s%d\ns_mul_i32 s3, s3, %d" % (sT, NST * 8))
    a("v_mov_b32 v12, s3\ns_mov_b64 exec, 1")
    for k in range(NST):
        a("v_mov_b32 v14, s%d\nv_mov_b32 v15, s%d" % (64 + 2 * k, 65 + 2 * k))
        a("buffer_store_dwordx2 v[14:15], v12, s[96:99], 0 offen offset:%d" % (8 * k))
        a("s_nop 1")

def lanes(a):
    a("v_and_b32 v12, 63, v0\nv_lshrrev_b32 v13, 4, v12\nv_and_b32 v14, 15, v12\nv_bfe_u32 v15, v12, 2, 2")

vK, vVa, vVb = 1, 2, 3
vX1, vX2, vX3, vX4 = 4, 5, 6, 7
vONE, vT, vQ, vO, vL, vM, vS, vF = 8, 12, 16, 64, 160, 172, 184, 208
def Q(t, s): return vr(vQ + 16 * t + 4 * s, 4)
def O(t, dt): return vr(vO + 32 * t + 4 * dt, 4)
def L(t): return vr(vL + 4 * t, 4)
def M(t): return vr(vM + 4 * t, 4)
def S(t, kt): return vr(vS + 8 * t + 4 * kt, 4)
def F(i): return vF + 4 * i
vD = 128
vFo, vDg, vDg2, vFl, vA_, vB_, vOr, vCl, vCr, vCb = 136, 137, 138, 139, 140, 141, 142, 143, 144, 145

sKo = 50
S_V = 96
CUR = [0]
KVN = [0]
def kv_one(a, capped=True):
    n = KVN[0]
    if n >= 512: return
    KVN[0] += 1
    tile, e = divmod(n, 16); grp, q = divmod(e, 4)
    LEAD = OPT["lead2"] if CUR[0] >= OPT["ls0"] else OPT["lead"]
    slot = (tile + 2) % 3
    if OPT["kvc"]:
        isv, i = divmod(e, 8)
        a("s_add_u32 m0, s%d, %d\ns_add_u32 s%d, s%d, %d" % (sKg, slot * SLOT + isv * 16384 + i * 2048, sKo, sKg, tile * 16384 + i * 2048))
        if capped: a.wait_vm_tag("k%d" % (n - LEAD))
        a("buffer_load_dwordx4 v%d, %s, s%d offen%s lds" % (vD + (2 + (i >> 2) if isv else i & 1), SR(S_V if isv else S_KV), sKo, POL[OPT["polkv"]]), tag="k%d" % n)
        return
    a("s_add_u32 m0, s%d, %d\ns_mov_b32 s%d, %d" % (sKg, slot * SLOT + grp * 4096, sKo, tile * 16384 + grp * 4096))
    if capped: a.wait_vm_tag("k%d" % (n - LEAD))
    a("buffer_load_dwordx4 v%d, %s, s%d offen offset:%d%s lds" % (vD + q + (4 if grp >= 2 else 0), SR(S_KV), sKo, q * 1024, POL[OPT["polkv"]]), tag="k%d" % n)
def kv_upto(a, n, capped=True):
    while KVN[0] < min(n, 512): kv_one(a, capped)

def srds_first(a):
    a("s_waitcnt lgkmcnt(0)")
    srd(a, S_WQ, 86, 87, "%d" % (512 * 8192))
    a("s_add_u32 s80, s80, s62\ns_addc_u32 s81, s81, 0")
    srd(a, S_X, 80, 81, "147456")

def srds_rest(a):
    a("s_mul_i32 s%d, s%d, %d\ns_add_u32 s%d, s%d, 1024\ns_add_u32 s90, s92, s%d\ns_addc_u32 s91, s93, 0" % (sT, sG, OSTR, sT, sT, sT))
    srd(a, S_O, 90, 91, "%d" % (128 * 9216))
    if not OPT["kvc"]: a("s_cmp_eq_u32 s%d, 6\ns_cselect_b32 s82, s82, s84\ns_cselect_b32 s83, s83, s85" % sW)
    a("s_lshl_b32 s%d, s%d, 4\ns_add_u32 s%d, s%d, s%d" % (sT, sB, sT, sT, sJJ))
    if OPT["samekv"]: a("s_mov_b32 s%d, 0" % sT)
    a("s_lshl_b32 s%d, s%d, 19" % (sT, sT))
    a("s_add_u32 s82, s82, s%d\ns_addc_u32 s83, s83, 0" % sT)
    srd(a, S_KV, 82, 83, "524288")
    srd(a, S_WO, 88, 89, "%d" % (4096 * 1024))
    srd(a, S_OUT, 96, 97, "%d" % (8 * 144 * 1024 * 2))
    srd(a, S_DBG, 98, 99, "256")
    if OPT["kvc"]:
        a("s_add_u32 s84, s84, s%d\ns_addc_u32 s85, s85, 0" % sT)
        srd(a, S_V, 84, 85, "524288")
    a("s_lshl_b32 s%d, s%d, 8\ns_add_u32 s%d, s%d, 0x%x\ns_add_u32 s90, s92, s%d\ns_addc_u32 s91, s93, 0" % (sT, sG, sT, sT, FLAG_OFF, sT))
    srd(a, S_FL, 90, 91, "64")
    a("s_mov_b32 s100, s92\ns_mov_b32 s101, s93")
    if OPT["pair"]: a("s_and_b32 s%d, s%d, 1\ns_lshr_b32 s%d, s%d, 1" % (sKg, sW, sRho, sW))
    else: a("s_cmp_ge_u32 s%d, 3\ns_cselect_b32 s%d, 1, 0\ns_mul_i32 s%d, s%d, 3\ns_sub_u32 s%d, s%d, s%d" % (sW, sKg, sT, sKg, sRho, sW, sT))
    a("v_and_b32 v236, 31, v0\nv_lshlrev_b32 v236, 2, v236\nv_add_u32 v236, %d, v236\nv_mov_b32 v234, 0" % CNT)
    a("ds_write_b32 v236, v234")

def q_pack(a, b, scale):
    for r in range(0, 8, 2): a("v_pk_mul_f32 %s, %s, %s" % (vr(b + r, 2), vr(b + r, 2), scale))
    for r in range(4): a("v_cvt_pk_bf16_f32 v%d, v%d, v%d" % (b + r, b + 2 * r, b + 2 * r + 1))
def q_swap(a, b):
    a("v_permlane16_swap_b32 v%d, v%d\nv_permlane16_swap_b32 v%d, v%d" % (b, b + 2, b + 1, b + 3))

def loader_setup(a):
    vHW, vHX, vA1 = 224, 248, 231
    lanes(a)
    a("s_and_b32 s60, s%d, 3" % sW)
    a("v_and_b32 v%d, 3, v12\nv_lshlrev_b32 v%d, 4, v%d" % (vHX, vHX, vHX))
    a("v_lshl_add_u32 v%d, v13, 6, v%d" % (vHW, vHX))
    a("v_lshl_add_u32 v%d, v15, 8, v%d" % (vD, vHW))
    a("v_lshl_add_u32 v%d, v15, 13, v%d" % (vHW, vHW))
    a("s_lshl_b32 s%d, s60, 17\ns_lshl_b32 s%d, s%d, 9\ns_add_u32 s%d, s%d, s%d" % (sT, sT2, sJJ, sT, sT, sT2))
    a("v_add_u32 v%d, s%d, v%d" % (vHW, sT, vHW))
    a("v_add_u32 v%d, %d, v%d" % (vHW + 1, 31744, vHW))
    a("v_add_u32 v%d, %d, v%d\nv_xor_b32 v%d, 32, v%d" % (vHW + 2, 2 * 31744, vHW, vHW + 2, vHW + 2))
    a("v_add_u32 v%d, %d, v%d" % (vHW + 3, 31744, vHW + 2))
    a("s_lshl_b32 s63, s60, 12")
    a("s_mul_i32 s61, s60, 5\ns_min_u32 s61, s61, 14")
    a("v_and_b32 v%d, 1, v13\nv_lshl_add_u32 v4, v%d, 6, v%d" % (vA1, vA1, vHX))
    a("v_lshl_add_u32 v%d, v15, 10, v4" % vHX)
    a("v_lshrrev_b32 v%d, 5, v12\nv_lshl_add_u32 v8, v%d, 12, v%d" % (vA1, vA1, vHX))
    a("s_lshl_b32 s%d, s61, 13\ns_and_b32 s%d, s61, 1\ns_lshl_b32 s%d, s%d, 5" % (sT, sT2, sT2, sT2))
    a("v_add_u32 v%d, s%d, v8\nv_xor_b32 v%d, s%d, v%d" % (vHX, sT, vHX, sT2, vHX))
    a("v_add_u32 v%d, 7168, v%d\nv_xor_b32 v%d, 32, v%d" % (vHX + 1, vHX, vHX + 1, vHX + 1))
    a("v_add_u32 v%d, 14336, v%d\nv_add_u32 v%d, 14336, v%d" % (vHX + 2, vHX, vHX + 3, vHX + 1))
    a("v_add_u32 v%d, 32768, v%d" % (vHX + 4, vHX))
    a("s_lshl_b32 s61, s61, 10")

def stage_ops_(j, NX):
    vHW, vHX = 224, 248
    xb = HX[j % HD]; wb = HW[j % HD]
    o = []
    for qq in range(4):
        pre_ = "s_add_u32 s%d, s%d, %d\ns_and_b32 s%d, s%d, 7\ns_lshl_b32 s%d, s%d, 19\ns_add_u32 m0, s63, %d\n" % (sHk, sRot, j, sHk, sHk, sHo, sHk, wb) if qq == 0 else ""
        o.append(pre_ + "buffer_load_dwordx4 v%d, %s, s%d offen offset:%d%s lds" % (vHW + qq, SR(S_WQ), sHo, qq * 1024, POL[OPT["polw"]]))
    for e in range(NX):
        pre_ = "s_add_u32 m0, s61, %d\n" % (xb + 4096) if e == 4 else ("s_add_u32 m0, s61, %d\ns_lshl_b32 s%d, s%d, 7\n" % (xb, sHo, sHk) if e == 0 else "")
        o.append(pre_ + "buffer_load_dwordx4 v%d, %s, s%d offen offset:%d%s lds" % (vHX + e, SR(S_X), sHo, (e & 3) * 1024, POL[OPT["polx"]]))
    return [(x, "h%d" % j) for x in o]

def head(a, role):
    att = role != "X"; ldr = role != "A"
    NRT = 4 if ldr else 5; T0 = 5 if ldr else 0
    vHW, vHX = 224, 248
    vA1, vA2, vBx = 231, 232, 233
    cA1, cA2, cBx = 234, 235, 236
    ACC = lambda t, d: vr(16 + 8 * t + 4 * d, 4)
    BF = lambda u, t: vr(56 + 20 * u + 4 * t, 4)
    AF = lambda u, d: 96 + 8 * u + 4 * d
    NX = 5 if att else 4
    if not OPT["fast0"]: loader_setup(a)
    def stage_ops(j): return stage_ops_(j, NX) if ldr else []
    def stage_load(j):
        for x, t in stage_ops(j): a(x, tag=t)
    if not OPT["fast0"]:
        srds_first(a)
        stage_load(0)
    elif role == "B":
        x, t = stage_ops(0)[8]; a(x, tag=t)
    if OPT["pst"]: a("s_memrealtime s[70:71]")
    if role == "A" and OPT["ptouch"]:
        a("s_cmp_lg_u32 s%d, 0\ns_cbranch_scc1 L_nopt" % sW)
        a("s_lshl_b32 s%d, s%d, 4\ns_add_u32 s%d, s%d, s%d\ns_lshl_b32 s%d, s%d, 19" % (sT, sB, sT, sT, sJJ, sT, sT))
        a("v_mov_b32 v240, s%d" % sT)
        a.autowait = False
        a("global_load_dword v244, v240, s[82:83]\nglobal_load_dword v245, v240, s[84:85]")
        a("v_and_b32 v240, 1, v12\nv_lshlrev_b32 v241, 21, v240")
        a("global_load_dword v246, v241, s[88:89]\nglobal_load_dword v247, v241, s[96:97]")
        a("v_add_u32 v241, s%d, v240\nv_add_u32 v242, s%d, v240\nv_and_b32 v243, 2, v12\nv_cmp_eq_u32 vcc, 0, v243" % (sG, sGo))
        a("v_cndmask_b32 v241, v241, v242, vcc\ns_mov_b32 s%d, %d\nv_mul_lo_u32 v241, s%d, v241" % (sT, OSTR, sT))
        a("v_mov_b32 v242, 0x%x\nv_cmp_lt_u32 vcc, 3, v12\nv_cndmask_b32 v241, v241, v242, vcc" % (FLAG_OFF + 8192))
        a("global_load_dword v248, v241, s[92:93]")
        a.autowait = True
        a.label("L_nopt")
    srds_rest(a)
    a("v_and_b32 v%d, 3, v12\nv_lshlrev_b32 v%d, 3, v%d" % (vA1, vA1, vA1))
    a("v_lshl_add_u32 v%d, v15, 6, v%d" % (vA1, vA1))
    a("v_and_b32 v%d, 1, v13\nv_lshl_add_u32 v%d, v%d, 5, v%d" % (vA2, vA1, vA2, vA1))
    a("v_lshl_add_u32 v%d, v13, 10, v%d" % (vVa, vA1))
    a("v_lshl_add_u32 v%d, v13, 11, v%d" % (vA1, vA1))
    a("s_and_b32 s%d, s%d, 3\ns_lshl_b32 s%d, s%d, 8" % (sT, sW, sT, sT))
    a("v_add_u32 v%d, s%d, v%d\nv_xor_b32 v%d, 32, v%d" % (vA1, sT, vA1, vA2, vA1))
    a("v_lshrrev_b32 v%d, 3, v14\nv_lshlrev_b32 v%d, 1, v%d\nv_xor_b32 v%d, v%d, v13\nv_lshlrev_b32 v%d, 4, v%d" % (vBx, vBx, vBx, vBx, vBx, vBx, vBx))
    a("v_and_b32 v%d, 3, v14\nv_lshl_add_u32 v%d, v%d, 6, v%d" % (cBx, vBx, cBx, vBx))
    a("v_lshl_add_u32 v%d, v15, 9, v%d" % (vBx, vBx))
    if att:
        a("s_lshl_b32 s%d, s%d, 13\ns_add_u32 s%d, s%d, %d" % (sT, sKg, sT, sT, 2 * SLOT))
        a("v_add_u32 v%d, s%d, v%d\nv_add_u32 v%d, 16384, v%d\nv_xor_b32 v%d, 32, v%d" % (vVa, sT, vVa, vVa, vVa, vVb, vVa))
        a("v_lshlrev_b32 v%d, 10, v15" % vK)
        a("v_lshl_add_u32 v%d, v%d, 6, v%d" % (vK, cBx, vK))
        a("v_lshrrev_b32 v%d, 1, v13\nv_and_b32 v%d, 1, v13\nv_lshl_or_b32 v%d, v%d, 1, v%d" % (cA1, cA2, cA1, cA2, cA1))
        a("v_lshrrev_b32 v%d, 3, v14\nv_xor_b32 v%d, v%d, v%d" % (cA2, cA1, cA1, cA2))
        a("v_lshl_add_u32 v%d, v%d, 4, v%d\nv_add_u32 v%d, s%d, v%d" % (vK, cA1, vK, vK, sT, vK))
        for r in range(4): a("v_mov_b32 v%d, 0x3f803f80" % (vONE + r))
    else:
        a("s_cmp_eq_u32 s%d, 6" % sW)
        if OPT["kvc"]:
            a("s_cselect_b32 s60, 0, 32\ns_cselect_b32 s%d, 0, 1024" % sKg)
            a("v_xor_b32 v%d, 16, v%d\nv_xor_b32 v%d, s60, v%d\nv_xor_b32 v%d, 128, v%d" % (vD + 1, vD, vD + 2, vD, vD + 3, vD + 2))
        else:
            a("s_cselect_b32 s%d, 0, 32\ns_cselect_b32 s%d, 16, 0\ns_cselect_b32 s%d, 16, 32\ns_cselect_b32 s60, 0, 128\ns_cselect_b32 s%d, 0, 16384" % (sT, sT2, sT3, sKg))
            a("v_xor_b32 v%d, s%d, v%d\nv_xor_b32 v%d, s%d, v%d\nv_xor_b32 v%d, s%d, v%d" % (vD + 1, sT, vD, vD + 2, sT2, vD, vD + 3, sT3, vD))
            for q in range(4): a("v_xor_b32 v%d, s60, v%d" % (vD + 4 + q, vD + q))
        a("v_add_u32 v1, %d, v%d" % (XB[0], vBx))
    a("v_mov_b32 v238, %s\nv_mov_b32 v239, %s" % (f32(CSCALE), f32(CSCALE)))
    def reads(u):
        tr = lambda d: ["ds_read_b64_tr_b16 %s, v%d offset:%d" % (vr(AF(u, d) + 2 * rd, 2), cA2 if d else cA1, u * 8192 + rd * 1024) for rd in range(2)]
        return tr(0) + ["ds_read_b128 %s, v%d offset:%d" % (BF(u, t), cBx, (T0 + t) * 2048 + u * 256) for t in range(NRT)] + tr(1)
    def mfmas(u, first):
        return ["%s %s, %s, %s, %s" % (MF, ACC(t, d), vr(AF(u, d), 4), BF(u, t), "0" if first else ACC(t, d)) for d in range(2) for t in range(NRT)]
    if OPT["pst"]: a("s_memrealtime s[72:73]")
    stage_load(1)
    if OPT["pst"]: a("s_memrealtime s[74:75]")
    stamp(a, 1)
    def mix(ms, rs, ds=()):
        di = 0; ri = 0
        for k, x in enumerate(ms):
            a(x)
            for _ in range(2):
                if ri < len(rs): a(rs[ri]); ri += 1
            while di < len(ds) and di * len(ms) <= k * len(ds):
                a(ds[di][0], tag=ds[di][1]); di += 1
        for x, t in ds[di:]: a(x, tag=t)
    if ldr and OPT["hprio"]: a("s_setprio %d" % OPT["hprio"])
    for j in range(8):
        a.wait_vm_tag("h%d" % j)
        if OPT["pst"] and j == 0: a("s_memrealtime s[76:77]")
        a("v_add_u32 v%d, %d, v%d\nv_add_u32 v%d, %d, v%d\nv_add_u32 v%d, %d, v%d" % (cA1, HW[j % HD], vA1, cA2, HW[j % HD], vA2, cBx, HX[j % HD], vBx))
        a("s_waitcnt lgkmcnt(0)")
        a("s_barrier")
        if j < 7: stamp(a, j + 1, hs=True)
        d = stage_ops(j + HD - 1) if j + HD - 1 < 8 else []
        if j == 0 and HD == 4: d = stage_ops(2) + d
        cut = (len(d) + 1) // 2
        if j == 0:
            for x in reads(0): a(x)
            for x, t in d[:cut]: a(x, tag=t)
        else: mix(mfmas(1, False), reads(0), d[:cut])
        a("s_waitcnt lgkmcnt(0)")
        mix(mfmas(0, j == 0), reads(1), d[cut:])
        if not att and j == OPT["kv0"]: kv_upto(a, 16, False)
        if not att and j == 6:
            kv_upto(a, 16 + OPT["k1a"], False)
        if not att and j == 7:
            kv_upto(a, 16 + OPT["k1a"] + OPT["k1b"], False)
    for x in mfmas(1, False): a(x)
    a("s_and_b32 s60, s%d, 3\ns_lshl_b32 s60, s60, 10" % sW)
    a("v_lshlrev_b32 v%d, 4, v12\nv_add_u32 v%d, s60, v%d" % (cBx, cBx, cBx))
    a("v_add_u32 v%d, %d, v%d\nv_add_u32 v%d, %d, v%d" % (cA1, Q1A, cBx, cA2, Q1C, cBx))
    for t in range(NRT): q_pack(a, 16 + 8 * t, "v[238:239]")
    for t in range(NRT): q_swap(a, 16 + 8 * t)
    for t in range(NRT):
        tg = T0 + t
        a("ds_write_b128 v%d, %s offset:%d" % (cA1 if tg < 6 else cA2, vr(16 + 8 * t, 4), (tg if tg < 6 else tg - 6) * 4096))
    if ldr and OPT["hprio"]: a("s_setprio 0")
    a("s_waitcnt lgkmcnt(0)")
    a("s_barrier")
    if not att:
        kv_upto(a, 32, False)
    stamp(a, 2)

def ACC(t, d):
    i = t * 4 + d
    return 16 + 4 * i if i < 28 else 176 + 4 * (i - 28)

def pair_signal(a):
    a("s_add_u32 s%d, s%d, 1" % (sBar, sBar))
    a("v_mov_b32 v%d, s%d" % (vT, sBar))
    a("ds_write_b32 v%d, v%d" % (vX3, vT))

def pair_wait(a, name, reads):
    a.label(name)
    a("ds_read_b32 v%d, v%d" % (vT, vX4))
    for x in reads: a(x)
    a("s_waitcnt lgkmcnt(%d)" % len(reads))
    a("v_readfirstlane_b32 s%d, v%d" % (sT, vT))
    a("s_cmp_ge_u32 s%d, s%d" % (sT, sBar))
    a("s_cbranch_scc1 %s_ok" % name)
    a("s_waitcnt lgkmcnt(0)")
    if OPT["sbs"]: a("s_sleep %d" % OPT["sbs"])
    a("s_branch %s" % name)
    a.label(name + "_ok")
    a("s_waitcnt lgkmcnt(0)")

def publish(a, name, t0, off=4, last=5, bits=PH2, nw=0):
    a("s_waitcnt vmcnt(%d)" % nw)
    a("s_mov_b64 exec, 1")
    a("v_mov_b32 v%d, %d\nv_mov_b32 v%d, 1" % (t0 + 2, CNT, t0 + 1))
    a("ds_add_rtn_u32 v%d, v%d, v%d offset:%d" % (t0, t0 + 2, t0 + 1, off))
    a("ds_read_b32 v%d, v%d offset:8" % (t0 + 1, t0 + 2))
    a("s_waitcnt lgkmcnt(0)")
    a("v_readfirstlane_b32 s%d, v%d" % (sT, t0))
    a("s_cmp_lg_u32 s%d, %d" % (sT, last))
    a("s_cbranch_scc1 %s" % name)
    a("v_or_b32 v%d, 0x%x, v%d" % (t0 + 1, bits, t0 + 1))
    a("s_lshl_b32 s%d, s%d, 2" % (sT2, sJJ))
    a("v_mov_b32 v%d, s%d" % (t0, sT2))
    a("buffer_store_dword v%d, v%d, %s, 0 offen%s" % (t0 + 1, t0, SR(S_FL), POL[OPT["polf"]] if bits == PH2 else " sc1"))
    if OPT["stamps"]:
        a("s_memrealtime s[88:89]\ns_add_u32 s96, s100, 0x%x\ns_addc_u32 s97, s101, 0\ns_mov_b32 s98, 0x100000\ns_mov_b32 s99, 0x20000" % (STAMP_OFF + 512 * 64))
        a("s_lshl_b32 s%d, s2, 6\ns_waitcnt lgkmcnt(0)\nv_mov_b32 v%d, s%d\nv_mov_b32 v%d, s88\nv_mov_b32 v%d, s89" % (sT, t0 + 3, sT, t0, t0 + 1))
        a("buffer_store_dwordx2 %s, v%d, s[96:99], 0 offen offset:%d" % (vr(t0, 2), t0 + 3, 0 if bits == PH2 else 8))
    a.label(name)
    a("s_mov_b64 exec, -1")

def attention(a):
    NT = 3; TL = 2
    a("s_waitcnt vmcnt(0)")
    a("v_lshlrev_b32 v%d, 4, v12" % vX1)
    a("s_mul_i32 s%d, s%d, %d\ns_add_u32 s%d, s%d, %d" % (sT, sRho, 12 * KB, sT, sT, Q1A))
    a("s_cmp_eq_u32 s%d, 2\ns_cselect_b32 s%d, %d, s%d" % (sRho, sT, Q1C, sT))
    a("v_add_u32 v%d, s%d, v%d" % (vX2, sT, vX1))
    for t in range(3):
        for s in range(4): a("ds_read_b128 %s, v%d offset:%d" % (Q(t, s), vX2, t * 4096 + s * 1024))
    if OPT["pair"]: a("s_xor_b32 s%d, s%d, 1" % (sPart, sW))
    else: a("s_add_u32 s%d, s%d, 3\ns_cmp_ge_u32 s%d, 6\ns_cselect_b32 s%d, 6, 0\ns_sub_u32 s%d, s%d, s%d" % (sPart, sW, sPart, sT2, sPart, sPart, sT2))
    a("s_lshl_b32 s%d, s%d, 2\ns_add_u32 s%d, s%d, %d\ns_lshl_b32 s%d, s%d, 2\ns_add_u32 s%d, s%d, %d" % (sT, sW, sT, sT, PFL, sT2, sPart, sT2, sT2, PFL))
    a("v_mov_b32 v%d, s%d\nv_mov_b32 v%d, s%d" % (vX3, sT, vX4, sT2))
    a("s_mov_b32 s%d, 0x40004000\ns_mov_b32 s%d, %s" % (sThr, sFl, f32(THR)))
    a("s_mov_b32 s%d, 0\ns_mov_b32 s%d, 0\ns_mov_b32 s%d, 2\ns_mov_b32 s%d, %d" % (sItem, sBar, sSlot, sExS, EX1))
    a("s_mul_i32 s%d, s%d, %d\ns_add_u32 s%d, s%d, %d" % (sExch, sRho, 12 * KB, sExch, sExch, Q2B))
    a("s_mov_b32 s%d, 0x%x\ns_mov_b32 s%d, %d" % (sNeg, (-2 * SLOT) & 0xffffffff, sPos, SLOT))
    a("s_lshl_b32 s%d, s%d, 3\ns_lshl_b32 s%d, s%d, 1\ns_add_u32 s%d, s%d, s%d\ns_mul_i32 s%d, s%d, 9" % (sT, sJJ, sT2, sKg, sT, sT, sT2, sT, sT))
    a("s_mul_i32 s%d, s%d, 3\ns_add_u32 s%d, s%d, s%d\ns_lshl_b32 s%d, s%d, 10\ns_add_u32 s%d, s%d, %d" % (sT2, sRho, sT, sT, sT2, sOoff, sT, sOoff, sOoff, 36 * KB))
    cstamp(a, 0)
    a.label("L_item")
    if OPT["ypr"] == 1: a("s_setprio 0")
    if OPT["ypr"] == 2: a("s_setprio 1")
    a("s_mov_b32 s%d, 0" % sCnt)
    a("s_waitcnt lgkmcnt(0)")
    Ga, Gb, Gc = 0, 4, 8
    def kread(kt, s):
        slot = (Gc + s) if kt == 0 else (Gb + s)
        return "ds_read_b128 %s, v%d offset:%d" % (vr(F(slot), 4), vK, kt * 4096 + s * 256)
    def vslot(dt): return (Ga + dt) if dt < 4 else (Gb + dt - 4)
    def vread(dt, rd):
        return "ds_read_b64_tr_b16 %s, v%d offset:%d" % (vr(F(vslot(dt)) + 2 * rd, 2), vVb if dt & 1 else vVa, rd * 4096 + (dt >> 1) * 256)
    def pv(t, dt, z=False): return "%s %s, %s, %s, %s" % (MF, O(t, dt), vr(F(vslot(dt)), 4), S(t, 0), "0" if z else O(t, dt))
    def lsum(t, z=False): return "%s %s, %s, %s, %s" % (MF, L(t), vr(vONE, 4), S(t, 0), "0" if z else L(t))
    def qk(t, kt, s, z=False):
        slot = (Gc + s) if kt == 0 else (Gb + s)
        return "%s %s, %s, %s, %s" % (MF, S(t, kt), vr(F(slot), 4), Q(t, s), ("0" if z else M(t)) if s == 0 else S(t, kt))
    EXP = lambda r: "v_exp_f32 v%d, v%d" % (r, r)
    def CVT(b, r): return "v_cvt_pk_bf16_f32 v%d, v%d, v%d" % (b + r, b + 2 * r, b + 2 * r + 1)
    def rowmax(b):
        return ["v_max3_f32 v%d, v%d, v%d, v%d" % (vT, b, b + 1, b + 2), "v_max3_f32 v%d, v%d, v%d, v%d" % (vT + 1, b + 3, b + 4, b + 5),
                "v_max3_f32 v%d, v%d, v%d, v%d" % (vT, vT, b + 6, b + 7), "v_max_f32 v%d, v%d, v%d" % (vT, vT, vT + 1),
                "v_mov_b32 v%d, v%d" % (vT + 1, vT), "v_permlane16_swap_b32 v%d, v%d" % (vT, vT + 1), "v_max_f32 v%d, v%d, v%d" % (vT, vT, vT + 1),
                "v_mov_b32 v%d, v%d" % (vT + 1, vT), "v_permlane32_swap_b32 v%d, v%d" % (vT, vT + 1), "v_max_f32 v%d, v%d, v%d" % (vT, vT, vT + 1)]
    def sm(t):
        b = vS + 8 * t
        g = [[EXP(b + r)] for r in range(4)] + [[CVT(b, 0), CVT(b, 1)]] + [[EXP(b + r)] for r in range(4, 8)] + [[CVT(b, 2), CVT(b, 3)]]
        g.append(["v_or3_b32 v%d, v%d, v%d, v%d" % (b + 4, b, b + 1, b + 2), "v_bitop3_b32 v%d, v%d, v%d, s%d bitop3:0xa8" % (b + 4, b + 4, b + 3, sThr)])
        g.append(["v_cmp_ne_u32 vcc, 0, v%d" % (b + 4)])
        return g
    def step(first):
        mf = []; fill = {}
        def put(idx, ops): fill.setdefault(idx, []).extend(ops)
        if not first: mf += [pv(TL, dt) for dt in (4, 5, 6, 7)] + [pv(TL, dt) for dt in (0, 1, 2, 3)] + [lsum(TL)]
        q0 = len(mf)
        qk_end = {}
        for t in range(NT):
            for kt in ((0, 1) if t < TL else (1, 0)):
                mf += [qk(t, kt, s, first) for s in range(4)]
                if t == TL and kt == 1: v47_at = len(mf) - 1
            qk_end[t] = len(mf) - 1
        pv_start = {}
        for t in range(TL):
            pv_start[t] = len(mf)
            mf += [pv(t, dt, first) for dt in range(4)] + [lsum(t, first)] + [pv(t, dt, first) for dt in range(4, 8)]
        n = len(mf)
        pre = [kread(0, s) for s in range(4)]
        if first:
            pre += [kread(1, s) for s in range(4)] + [vread(dt, rd) for dt in range(4) for rd in range(2)]
            pre += ["v_mov_b64 %s, 0" % vr(r, 2) for r in list(range(vO + 64, vO + 96, 2)) + [vL + 8, vL + 10]]
            pre += ["WAIT " + vr(F(Gc), 16)]
        else:
            for s in range(4): put(s, [kread(1, s)])
            for dt in range(4): put(4 + dt, [vread(dt, 0), vread(dt, 1)])
            put(8, ["WAIT " + vr(F(Gc), 16)])
        put(q0 + 3, ["WAIT " + vr(F(Gb), 16), "s_add_u32 s%d, s%d, 1" % (sSlot, sSlot)])
        put(q0 + 4, ["s_cmp_eq_u32 s%d, 3" % sSlot, "s_cselect_b32 s%d, s%d, s%d" % (sDelta, sNeg, sPos)])
        put(q0 + 5, ["s_cselect_b32 s%d, 0, s%d" % (sSlot, sSlot), "s_add_u32 s%d, s%d, 1" % (sCnt, sCnt)])
        for dt in range(4, 8): put(v47_at - 3 + (dt - 4), [vread(dt, 0), vread(dt, 1)])
        adv = ["v_add_u32 v%d, s%d, v%d" % (r, sDelta, r) for r in (vK, vVa, vVb)]
        tail = []
        if first:
            for t in range(NT):
                b = vS + 8 * t
                ops = rowmax(b) + ["v_add_f32 v%d, s%d, v%d" % (vT, sFl, vT)]
                ops += ["v_sub_f32 v%d, v%d, v%d" % (b + r, b + r, vT) for r in range(8)]
                ops += ["v_sub_f32 v%d, 0, v%d" % (vM + 4 * t + r, vT) for r in range(4)]
                ops += [EXP(b + r) for r in range(8)] + [CVT(b, r) for r in range(4)]
                lo = max(qk_end[t] + 3, [0, 21, 32][t]); hi = [20, 31, n - 1][t]
                for k, x in enumerate(ops): put(lo + k * (hi - lo + 1) // len(ops), [x])
            tail = adv
        else:
            groups = [(t, g) for t in range(NT) for g in sm(t)]
            lo = OPT["g0"]; span = n - lo
            for k, (t, g) in enumerate(groups):
                idx = lo + (k * span) // len(groups)
                assert t == TL or idx + 1 < pv_start[t], (t, idx)
                put(idx, g)
                if k % 12 == 11:
                    br = "s_cbranch_vccnz L_rare%d\nL_back%d:" % (t, t)
                    if t == 0: put(idx, [adv[0]])
                    if t == 1: put(idx, [adv[1]])
                    if t < TL: fill.setdefault(idx + 1, []).insert(0, br)
                    else: tail = [adv[2], "s_cmp_lt_u32 s%d, 16" % sCnt, br]
        put(pv_start[0] - 1, ["WAIT " + vr(F(Ga), 16)])
        put(pv_start[0] + 4, ["WAIT " + vr(F(Gb), 16)])
        a("s_barrier")
        if first and OPT["bst"] == 0:
            a("s_cmp_lg_u32 s%d, 1\ns_cbranch_scc1 L_bsx\ns_memrealtime s[76:77]\nL_bsx:" % sItem)
        for x in pre: a(x)
        for k, m in enumerate(mf):
            a(m)
            for x in fill.get(k, []): a(x)
        if not first:
            for _ in range(OPT["xmf"]): a("%s %s, %s, %s, %s" % (MF, vr(vT, 4), vr(F(0), 4), S(1, 0), vr(vT, 4) if _ else "0"))
        for x in tail: a(x)
    step(True)
    a.raw(".p2align 6")
    a.label("L_loop")
    step(False)
    a("s_cbranch_scc1 L_loop")
    a.label("L_bnd")
    if OPT["ypr"] == 1: a("s_cmp_lt_u32 s%d, 4\ns_cbranch_scc1 L_ypr\ns_setprio 1\nL_ypr:" % sW)
    if OPT["stamps"]:
        a("s_cmp_eq_u32 s%d, 0\ns_cbranch_scc0 L_st4" % sItem)
        stamp(a, 3); cstamp(a, 1)
        a("s_branch L_st4b")
        a.label("L_st4"); stamp(a, 4)
        a.label("L_st4b")
    if OPT["ypr"] == 2: a("s_setprio 0")
    bstamp(a, 1)
    a("s_cmp_eq_u32 s%d, 0" % sItem)
    a("s_cbranch_scc0 L_nomx")
    if OPT["mxf"]:
        a("s_mov_b64 exec, 1")
        a("v_mov_b32 v%d, %d\nv_mov_b32 v%d, 1" % (vT + 2, CNT, vT + 1))
        a("ds_add_u32 v%d, v%d offset:20" % (vT + 2, vT + 1))
        a.label("L_q2w")
        a("ds_read_b32 v%d, v%d offset:24" % (vT, vT + 2))
        a("s_waitcnt lgkmcnt(0)")
        a("v_readfirstlane_b32 s%d, v%d" % (sT, vT))
        a("s_cmp_lt_u32 s%d, 2\ns_cbranch_scc1 L_q2w" % sT)
        a("s_mov_b64 exec, -1")
    else:
        a("s_barrier")
    a("v_add_u32 v%d, s%d, v%d" % (vX2, sExch, vX1))
    for t in range(3):
        for s in range(4): a("ds_read_b128 %s, v%d offset:%d" % (Q(t, s), vX2, t * 4096 + s * 1024))
    pair_signal(a)
    a.label("L_nomx")
    bstamp(a, 2)
    a("s_lshl_b32 s%d, s%d, 12\ns_add_u32 s%d, s%d, s%d" % (sT, sW, sT, sT, sExS))
    a("v_add_u32 v%d, s%d, v%d" % (vX2, sT, vX1))
    def send(t, areg, off):
        o = []
        for h in range(2):
            b = vO + 32 * t + 16 + 8 * h
            o += ["v_cvt_pk_bf16_f32 v%d, v%d, v%d" % (b + r, b + 2 * r, b + 2 * r + 1) for r in range(4)]
            o.append("ds_write_b128 v%d, %s offset:%d" % (areg, vr(b, 4), off + h * 1024))
        return o
    fin = [lsum(TL)] + [pv(TL, dt) for dt in (4, 5, 6, 7, 0, 1, 2, 3)]
    ex = send(0, vX2, 0) + send(1, vX2, 2048)
    for k, m in enumerate(fin):
        a(m)
        for x in ex[k * len(ex) // 9:(k + 1) * len(ex) // 9]: a(x)
    a("v_and_b32 v%d, 15, v0\nv_lshlrev_b32 v%d, 3, v%d" % (vT + 2, vT + 2, vT + 2))
    a("s_mul_i32 s%d, s%d, 384\ns_add_u32 s%d, s%d, %d" % (sT, sW, sT, sT, MLB))
    a("v_add_u32 v%d, s%d, v%d" % (vT + 3, sT, vT + 2))
    for t in range(3):
        a("v_mov_b32 v%d, v%d" % (vM + 4 * t + 1, vL + 4 * t))
        a("ds_write_b64 v%d, %s offset:%d" % (vT + 3, vr(vM + 4 * t, 2), t * 128))
    a("s_lshl_b32 s%d, s%d, 11\ns_add_u32 s%d, s%d, s%d" % (sT, sKg, sT, sT, sExch))
    a("v_add_u32 v%d, s%d, v%d" % (vX2, sT, vX1))
    a("s_waitcnt lgkmcnt(0)")
    pair_wait(a, "L_pw0", [])
    bstamp(a, 3)
    for x in send(2, vX2, 0): a(x)
    pair_signal(a)
    a("s_mul_i32 s%d, s%d, 384\ns_add_u32 s%d, s%d, %d" % (sT2, sPart, sT2, sT2, MLB))
    a("v_add_u32 v%d, s%d, v%d" % (vT + 3, sT2, vT + 2))
    a("v_xor_b32 v%d, 2048, v%d" % (vX2, vX2))
    a("s_lshl_b32 s%d, s%d, 12\ns_add_u32 s%d, s%d, s%d" % (sT, sPart, sT, sT, sExS))
    a("v_add_u32 v%d, s%d, v%d" % (vT + 2, sT, vX1))
    a("s_waitcnt lgkmcnt(0)")
    rd = ["ds_read_b64 %s, v%d offset:%d" % (vr(vM + 4 * t + 2, 2), vT + 3, t * 128) for t in range(3)]
    for t in range(3):
        for h in range(2):
            rd.append("ds_read_b128 %s, v%d offset:%d" % (vr(vS + 8 * t + 4 * h, 4), vT + 2 if t < 2 else vX2, (t * 2048 if t < 2 else 0) + h * 1024))
    pair_wait(a, "L_pw", rd)
    bstamp(a, 4)
    for t in range(3):
        m = vM + 4 * t; l = vL + 4 * t
        a("v_min_f32 v%d, v%d, v%d" % (l, m, m + 2))
        a("v_sub_f32 v%d, v%d, v%d\nv_sub_f32 v%d, v%d, v%d" % (l + 1, l, m, l + 2, l, m + 2))
        a("v_exp_f32 v%d, v%d\nv_exp_f32 v%d, v%d" % (l + 1, l + 1, l + 2, l + 2))
        a("v_mul_f32 v%d, v%d, v%d" % (l + 3, l + 1, m + 1))
        a("v_fma_f32 v%d, v%d, v%d, v%d" % (l + 3, l + 2, m + 3, l + 3))
        a("v_rcp_f32 v%d, v%d" % (l, l + 3))
        a("v_mul_f32 v%d, v%d, v%d\nv_mul_f32 v%d, v%d, v%d" % (l + 3, l + 2, l, l + 2, l + 2, l))
        a("v_mul_f32 v%d, v%d, v%d\nv_mov_b32 v%d, v%d" % (l + 1, l + 1, l, l, l + 1))
    def combine(out):
        for t in range(3):
            l = vL + 4 * t
            for h in range(2):
                b = vO + 32 * t + 8 * h; u = b + 16; pk = vS + 8 * t + 4 * h
                for r in range(4):
                    a("v_lshlrev_b32 v%d, 16, v%d\nv_and_b32 v%d, 0xffff0000, v%d" % (u + 2 * r, pk + r, u + 2 * r + 1, pk + r))
                for r in range(0, 8, 2): a("v_pk_mul_f32 %s, %s, %s" % (vr(b + r, 2), vr(b + r, 2), vr(l, 2)))
                for r in range(0, 8, 2): a("v_pk_fma_f32 %s, %s, %s, %s" % (vr(b + r, 2), vr(u + r, 2), vr(l + 2, 2), vr(b + r, 2)))
                for r in range(4): a("v_cvt_pk_bf16_f32 v%d, v%d, v%d" % (pk + r, b + 2 * r, b + 2 * r + 1))
                out(t, h, pk)
    a("s_cmp_eq_u32 s%d, 0" % sItem)
    a("s_cbranch_scc0 L_att_done")
    combine(lambda t, h, pk: a("ds_write_b128 v%d, %s offset:%d" % (vT + 2 if t < 2 else vX2, vr(pk, 4), (t * 2048 if t < 2 else 0) + h * 1024)))
    bstamp(a, 5)
    a("s_mov_b32 s%d, 1\ns_lshl_b32 s%d, s%d, 12\ns_add_u32 s%d, s%d, %d" % (sItem, sExch, sRho, sExch, sExch, EX2))
    a("s_mov_b32 s%d, %d" % (sExS, EX1B))
    a("s_waitcnt lgkmcnt(0)")
    a("s_branch L_item")
    a.vm = []; a.lgkm = []
    for t in range(NT):
        b = vS + 8 * t
        a.label("L_rare%d" % t)
        a("s_nop 15")
        a("v_subrev_u32 v%d, s%d, v%d" % (vX2, sDelta, vK))
        for kt in range(2):
            for s in range(4):
                a("ds_read_b128 %s, v%d offset:%d" % (vr(vT, 4), vX2, kt * 4096 + s * 256))
                a("s_waitcnt lgkmcnt(0)")
                a("%s %s, %s, %s, %s" % (MF, S(t, kt), vr(vT, 4), Q(t, s), M(t) if s == 0 else S(t, kt)))
                a("s_nop 3")
        for x in rowmax(b): a(x)
        a("v_add_f32 v%d, s%d, v%d\nv_max_f32 v%d, 0, v%d" % (vT, sFl, vT, vT, vT))
        for r in range(8): a("v_sub_f32 v%d, v%d, v%d" % (b + r, b + r, vT))
        for r in range(4): a("v_sub_f32 v%d, v%d, v%d" % (vM + 4 * t + r, vM + 4 * t + r, vT))
        a("v_exp_f32 v%d, -v%d" % (vT + 1, vT))
        for r in range(4): a("v_mul_f32 v%d, v%d, v%d" % (vL + 4 * t + r, vL + 4 * t + r, vT + 1))
        for r in range(32): a("v_mul_f32 v%d, v%d, v%d" % (vO + 32 * t + r, vO + 32 * t + r, vT + 1))
        for r in range(8): a(EXP(b + r))
        for r in range(4): a(CVT(b, r))
        a("s_nop 3")
        a("s_branch L_back%d" % t)
    a.label("L_att_done")
    a("s_mov_b64 exec, 1")
    a("v_mov_b32 v%d, %d\nv_mov_b32 v%d, 1" % (vT + 2, CNT, vT + 1))
    a("ds_add_u32 v%d, v%d" % (vT + 2, vT + 1))
    a("s_mov_b64 exec, -1")
    combine(lambda t, h, pk: a("s_add_u32 s%d, s%d, %d\nbuffer_store_dwordx4 %s, v%d, %s, s%d offen%s" % (sT, sOoff, (h * 9 + t) * 1024, vr(pk, 4), vX1, SR(S_O), sT, POL[OPT["pols2"]])))
    bstamp(a, 5)
    a("s_cmp_lt_u32 s%d, 2" % sW)
    a("s_cbranch_scc1 L_join")
    publish(a, "L_pub_x", vT)
    a("s_endpgm")
    a.label("L_join")
    a("s_lshl_b32 s%d, s%d, 14" % (sBlkP, sW))
    a("s_mov_b32 s%d, %d" % (sBlkD, 32 * KB))
    op_setup(a, True)
    if not OPT["latep"]:
        for i in range(36): a("v_mov_b64 %s, 0\nv_mov_b64 %s, 0" % (vr(ACC(i // 4, i % 4), 2), vr(ACC(i // 4, i % 4) + 2, 2)))
        publish(a, "L_pub_y", 250)
        stamp(a, 5)
    a("v_mov_b32 v250, %d" % CNT)
    a.label("L_w6")
    a("ds_read_b32 v251, v250")
    a("ds_read_b32 v252, v250 offset:8")
    a("s_waitcnt lgkmcnt(0)")
    a("v_readfirstlane_b32 s%d, v251\nv_readfirstlane_b32 s%d, v252" % (sT, sTag))
    a("s_cmp_lt_u32 s%d, 6\ns_cbranch_scc1 L_w6" % sT)
    a("s_or_b32 s%d, s%d, 0x%x" % (sWant, sTag, PHM))
    a("s_branch L_p2")
    a.vm = []; a.lgkm = []

def wo_touch(a, phase, i):
    a("s_lshr_b32 s%d, s%d, 1\ns_and_b32 s%d, s%d, 12\ns_add_u32 s%d, s%d, s%d\ns_lshl_b32 s%d, s%d, 18" % (sT, sB, sT2, sJJ, sT, sT, sT2, sT, sT))
    a("s_and_b32 s%d, s%d, 1\ns_lshl_b32 s%d, s%d, 16\ns_add_u32 s%d, s%d, s%d" % (sT2, sB, sT2, sT2, sT, sT, sT2))
    a("s_and_b32 s%d, s%d, 3\ns_lshl_b32 s%d, s%d, 14\ns_add_u32 s%d, s%d, s%d" % (sT2, sJJ, sT2, sT2, sT, sT, sT2))
    a("s_and_b32 s%d, s%d, 1\ns_lshl_b32 s%d, s%d, 13\ns_add_u32 s%d, s%d, s%d" % (sT2, sW, sT2, sT2, sT, sT, sT2))
    a("s_add_u32 s%d, s%d, %d" % (sT2, sT, phase * 131072))
    a.autowait = False
    a("buffer_load_dword v147, v146, %s, s%d offen" % (SR(S_WO), sT2), tag="x")
    a.autowait = True

LIM = [0]
def aux_step(a, step, pre=None, extra=None):
    if step < 32:
        a.wait_vm_tag("k%d" % (16 * step + 15))
        a("s_barrier")
    else:
        a("s_lshl_b32 s%d, s%d, 2\ns_add_u32 s%d, s%d, %d\nv_mov_b32 v%d, s%d\nv_mov_b32 v%d, %d" % (sT, sW, sT, sT, PFL, vA_, sT, vB_, step))
        a("ds_write_b32 v%d, v%d\nv_xor_b32 v%d, 4, v%d" % (vA_, vB_, vA_, vA_))
        a.label("L_ax%d" % step)
        a("ds_read_b32 v%d, v%d\ns_waitcnt lgkmcnt(0)\nv_readfirstlane_b32 s%d, v%d" % (vB_, vA_, sT, vB_))
        a("s_cmp_lt_u32 s%d, %d\ns_cbranch_scc1 L_ax%d" % (sT, step, step))
    if step == 31: stamp(a, 3)
    if step == OPT["fts"] and OPT["tpr"]: a("s_setprio %d" % OPT["tpr"])
    CUR[0] = step
    LIM[0] = 16 * (step + 2) + (16 if step in (15,) else (OPT["pp2"] if step >= OPT["ls0"] else OPT["pp"]))
    kv_upto(a, min(LIM[0], KVN[0] + OPT["f0"]))
    if OPT["sst"] >= 0 and step >= OPT["sst"] and (step - OPT["sst"]) % OPT["sstd"] == 0 and (step - OPT["sst"]) // OPT["sstd"] < 6:
        k_ = 1 + (step - OPT["sst"]) // OPT["sstd"]
        a("s_memrealtime s[%d:%d]" % (64 + 2 * k_, 65 + 2 * k_))
    if OPT["ck"] and step in (1, 8, 15, 31):
        k_ = (1, 8, 15, 31).index(step)
        a("s_memrealtime s[%d:%d]\ns_memtime s[%d:%d]" % (64 + 4 * k_, 65 + 4 * k_, 66 + 4 * k_, 67 + 4 * k_))
    for ph in (0, 1):
        lst = [int(x) for x in OPT["tw%d" % ph].split(",") if x]
        for i, st_ in enumerate(lst):
            if st_ == step: wo_touch(a, ph, i)
    if OPT["bal"] and OPT["bal0"] - 3 <= step <= OPT["bal1"]:
        BN = "L_bal%d" % step
        a("s_lshl_b32 s%d, s%d, 8\ns_add_u32 s%d, s%d, s2\ns_sub_u32 s%d, s%d, 1536\ns_cmp_ge_u32 s%d, 8\ns_cbranch_scc1 %s" % (sT, sW, sT, sT, sT, sT, sT, BN))
        a("s_lshl_b32 s%d, s%d, 4\nv_mov_b32 v150, s%d\nv_mov_b32 v151, %d" % (sT, sT, sT, step))
        a("RAW buffer_store_dword v151, v150, %s, 0 offen offset:4 sc1" % SR(S_DBG))
        a.label(BN)
        if step >= OPT["bal0"] and (step - OPT["bal0"]) % OPT["balp"] == 0:
            a.wait_vm_tag("pg")
            a("v_cmp_gt_u32 vcc, %d, v149\ns_nop 1\ns_cmp_lg_u64 vcc, 0\ns_cselect_b32 s3, 1, 0" % max(0, step - OPT["bal"]))
        if step + 1 >= OPT["bal0"] and (step + 1 - OPT["bal0"]) % OPT["balp"] == 0 and step < OPT["bal1"]:
            a("buffer_load_dword v149, v148, %s, 0 offen offset:4 sc1" % SR(S_DBG), tag="pg")
    if pre: pre()
    kv_upto(a, LIM[0])
    if step == OPT["pfm"]:
        a("s_lshl_b32 s%d, s%d, 4\ns_add_u32 s%d, s%d, s%d\ns_lshl_b32 s%d, s%d, 1\ns_and_b32 s%d, s%d, 1\ns_add_u32 s%d, s%d, s%d\ns_lshl_b32 s%d, s%d, 14" % (sT, sB, sT, sT, sJJ, sT, sT, sT2, sW, sT, sT, sT2, sT, sT))
        a.autowait = False
        a("buffer_load_dword v147, v146, %s, s%d offen" % (SR(S_WO), sT), tag="x")
        a("s_add_u32 s%d, s%d, 8192" % (sT, sT))
        a("buffer_load_dword v147, v146, %s, s%d offen" % (SR(S_WO), sT), tag="x")
        a.autowait = True
    if extra: extra()

def aux(a):
    if OPT["bal"]: a("s_mov_b32 s3, 0\nv_and_b32 v148, 7, v12\nv_lshlrev_b32 v148, 4, v148")
    if OPT["auxprio"]: a("s_setprio %d" % OPT["auxprio"])
    a("v_lshlrev_b32 v%d, 2, v14\nv_lshlrev_b32 v146, 7, v12" % vFo)
    a("s_lshl_b32 s%d, s%d, 4\nv_mov_b32 v%d, s%d" % (sT, sG, vDg, sT))
    BF = lambda t: vr(208 + 4 * t, 4)
    AF = lambda d: 156 + 4 * d
    sW2, sXq = 58, 61
    a("s_and_b32 s%d, s%d, 1" % (sT3, sW))
    a("v_lshrrev_b32 v9, 5, v12\nv_lshl_add_u32 v4, v15, 13, v4\nv_lshl_add_u32 v4, v9, 15, v4")
    a("s_lshl_b32 s%d, s%d, 9\ns_lshl_b32 s%d, s%d, 7\ns_add_u32 s%d, s%d, s%d\ns_add_u32 s%d, s%d, 256" % (sT, sJJ, sT2, sT3, sT, sT, sT2, sT, sT))
    a("v_add_u32 v4, s%d, v4" % sT)
    a("v_add_u32 v5, 64512, v4\nv_xor_b32 v5, 32, v5\nv_add_u32 v6, 129024, v4\nv_add_u32 v7, 129024, v5")
    a("s_mul_i32 s%d, s%d, %d\ns_add_u32 s%d, s%d, %d" % (sW2, sT3, 12 * KB, sW2, sW2, W2R))
    a("v_add_u32 v2, s%d, v2\nv_xor_b32 v3, 32, v2" % sW2)
    a("s_lshl_b32 s%d, s%d, 5\nv_xor_b32 v8, s%d, v8\nv_xor_b32 v9, 32, v8" % (sT, sT3, sT))
    a("s_mul_i32 s%d, s%d, 9" % (sXq, sT3))
    a("v_mov_b32 v10, %s\nv_mov_b32 v11, %s" % (f32(CSCALE), f32(CSCALE)))
    def chunk(m): a("s_add_u32 s%d, s%d, %d\ns_and_b32 s%d, s%d, 7" % (sT3, sRot, (6 + m) & 7, sT3, sT3))
    PH = [0]
    OB = {}
    def hd(i):
        a("s_add_u32 s%d, s%d, %d\ns_and_b32 s%d, s%d, 3\ns_and_b32 s%d, s%d, 12\ns_add_u32 s%d, s%d, s%d\ns_lshl_b32 s%d, s%d, 3" % (sT3, sJJ, i, sT3, sT3, sT2, sJJ, sT3, sT3, sT2, sT3, sT3))
    def wo_load(n):
        hd(n // 4)
        a("s_lshl_b32 s%d, s%d, 15\ns_add_u32 s%d, s%d, %d\ns_add_u32 m0, s%d, %d" % (sT2, sT3, sT2, sT2, (n & 3) << 15, sW2, (n % 3) * 4096))
        for q in range(4):
            a("buffer_load_dwordx4 v%d, %s, s%d offen offset:%d%s lds" % (4 + q, SR(S_WO), sT2, q * 1024, POL[OPT["polwo"]]), tag="q%d" % n)
    def o_load(m):
        if OPT["abl"] & (2 | 8 | 32): return
        hd(m // 2)
        a("s_and_b32 s%d, s%d, 1\ns_add_u32 s%d, s%d, s%d\ns_add_u32 s%d, s%d, %d\ns_mul_i32 s%d, s%d, 9216\ns_mul_i32 s63, s%d, 9216" % (sT2, sW, sT3, sT3, sT2, sT3, sT3, 2 * (m & 1), sT3, sT3, sT2))
        if OPT["xo"] & 1: a("s_mov_b32 s%d, 0" % sT3)
        for e in range(9):
            if e % 4 == 0: a("s_add_u32 m0, s63, %d\ns_add_u32 s%d, s%d, %d" % (OB[m] + e * 1024, sT2, sT3, e * 1024))
            a("buffer_load_dwordx4 v8, %s, s%d offen offset:%d%s lds" % (SR(S_O), sT2, (e & 3) * 1024, POL[OPT["polo"]]), tag="x%d" % m)
    def w2_load(n):
        if OPT["abl"] & ((2 | 16) if PH[0] else 1): return
        if PH[0] and OPT["abl"] & 32 and n >= 4: return
        if PH[0]: return wo_load(n)
        chunk(n // 2)
        a("s_lshl_b32 s%d, s%d, 19\ns_add_u32 s%d, s%d, %d\ns_add_u32 m0, s%d, %d" % (sT2, sT3, sT2, sT2, (n & 1) << 18, sW2, (n % 3) * 4096))
        for q in range(4):
            a("buffer_load_dwordx4 v%d, %s, s%d offen offset:%d%s lds" % (4 + q, SR(S_WQ), sT2, q * 1024, POL[OPT["polw"]]), tag="q%d" % n)
    def x2_load(m):
        if OPT["abl"] & 1: return
        chunk(m)
        a("s_lshl_b32 s%d, s%d, 7\ns_lshl_b32 s%d, s%d, 13\ns_add_u32 s%d, s%d, s%d\ns_lshl_b32 s63, s%d, 10" % (sT3, sT3, sT2, sXq, sT3, sT3, sT2, sXq))
        for e in range(9):
            a("s_add_u32 m0, s63, %d\ns_add_u32 s%d, s%d, %d" % (XB[m & 1] + e * 1024, sT2, sT3, e * 8192))
            a("buffer_load_dwordx4 v%d, %s, s%d offen%s lds" % (8 + (e & 1), SR(S_X), sT2, POL[OPT["polx"]]), tag="x%d" % m)
    AF2 = [172, 244, 248, 252]
    def q2_a(n, alt):
        a.wait_vm_tag("q%d" % n)
        for d in range(4):
            for rd in range(2):
                a("ds_read_b64_tr_b16 %s, v%d offset:%d" % (vr((AF2[d] if alt else AF(d)) + 2 * rd, 2), 3 if d & 1 else 2, (n % 3) * 4096 + rd * (2048 if PH[0] else 512) + (d >> 1) * 256))
    def q2_b(n, t): a("ds_read_b128 %s, v%d offset:%d" % (BF(t), 9 if PH[0] else 1, (OB[n // 2] - 68 * KB + ((n & 1) * 9 + t) * 1024) if PH[0] else ((n // 2) & 1) * 18 * KB + t * 2048 + (n & 1) * 256))
    def q2_step(n, nfill=0, chain=False, chained=False):
        A_ = (lambda d: AF2[d]) if chained else AF
        if not chained:
            q2_a(n, False)
            for t in range(9): q2_b(n, t)
            k_ = min(OPT["f1"], nfill); nfill -= k_
            kv_upto(a, KVN[0] + k_)
            a("WAIT " + vr(AF(0), 16))
        else: a("WAIT " + " ".join(vr(r, 4) for r in AF2))
        if n + 3 < 16: w2_load(n + 3)
        if not chained: a("s_waitcnt lgkmcnt(0)")
        fi = 0
        def pack_ops(t):
            o = []
            for h in range(2):
                b = ACC(t, 2 * h)
                o += ["v_mul_f32 v%d, v10, v%d" % (b + r, b + r) for r in range(8)]
                o += ["v_cvt_pk_bf16_f32 v%d, v%d, v%d" % (b + r, b + 2 * r, b + 2 * r + 1) for r in range(4)]
            for h in range(2):
                b = ACC(t, 2 * h)
                o += ["v_permlane16_swap_b32 v%d, v%d" % (b, b + 2), "v_permlane16_swap_b32 v%d, v%d" % (b + 1, b + 3)]
            return o
        lastq = n == 15 and not PH[0]
        if lastq and OPT["p14"]: a("s_setprio %d" % OPT["p14"])
        for t in range(9):
            po = pack_ops(t - 2) if lastq and t >= 2 else []
            for d in range(4):
                c = vr(ACC(t, d), 4)
                a("%s %s, %s, %s, %s" % (MF, c, vr(A_(d), 4), BF(t), "0" if n == 0 else c))
                if chain and d == 3: q2_b(n + 1, t)
                if chain and t == 4 and d == 0: q2_a(n + 1, True)
                i = t * 4 + d
                while fi < nfill and fi * 36 <= i * nfill:
                    kv_one(a); fi += 1
                for x in po[7 * d:7 * d + 7]: a(x)
        if lastq:
            for x in pack_ops(7) + pack_ops(8): a(x)
    sched = {}; n_ = 0
    for i_, c_ in enumerate(OPT["q2s"]):
        sched[i_ + 1] = list(range(n_, n_ + int(c_))); n_ += int(c_)
    assert n_ == 16 and len(OPT["q2s"]) <= 14
    at = {n: s_ for s_, l_ in sched.items() for n in l_}
    xiss = {m: at[2 * (m - 2) + 1] + 1 for m in range(2, 8)}
    for m in xiss: assert at[2 * m] > xiss[m], m
    QW = at[15] + 1
    psched = {}; n_ = 0
    if OPT["ft"]:
        head_ = OPT["ps"][:OPT["fts"] - OPT["p0"]]
        assert sum(int(c) for c in head_) == OPT["ftn"] and OPT["ftn"] % 2 == 0
        OPT["ps"] = head_ + "2" * ((16 - OPT["ftn"]) // 2)
    for i_, c_ in enumerate(OPT["ps"]):
        psched[i_ + OPT["p0"]] = list(range(n_, n_ + int(c_))); n_ += int(c_)
    assert n_ == 16 and OPT["p0"] >= 18
    pat = {n: s_ for s_, l_ in psched.items() for n in l_}
    free = {XB[0]: pat[1] + 1, XB[1]: pat[3] + 1}
    if OPT["nb3"]: free[68 * KB] = 31
    OB[0], OB[1] = XB[0], XB[1]
    oiss = {}
    for m in range(2, 8):
        b_ = min(free, key=lambda k: free[k])
        oiss[m] = max(free[b_], pat[4] - OPT["od"], pat[2 * m] - OPT["od"] - OPT["od3"])
        OB[m] = b_; free[b_] = pat[2 * m + 1] + 1
        assert pat[2 * m] > oiss[m] > OPT["fl0"] and (m == 2 or oiss[m] >= oiss[m - 1]), m
    once = oiss[2] >= 25
    def o1_store():
        if OPT["abl"] & 2: return
        a("s_and_b32 s%d, s%d, 1" % (sT3, sW))
        a("s_mul_i32 s%d, s%d, %d\ns_add_u32 s%d, s%d, %d\nv_add_u32 v%d, s%d, v1" % (sT, sT3, 4096 if OPT["pair"] else 3 * 4096, sT, sT, EX1, vA_, sT))
        a("s_lshl_b32 s%d, s%d, 11\ns_add_u32 s%d, s%d, %d\nv_add_u32 v%d, s%d, v1" % (sT, sT3, sT, sT, Q2B, vB_, sT))
        fr = [(i, t, h) for i in range(3) for t in range(3) for h in range(2)]
        for n, (i, t, h) in enumerate(fr):
            if t < 2: a("ds_read_b128 %s, v%d offset:%d" % (vr(16 + 4 * n, 4), vA_, i * (8192 if OPT["pair"] else 4096) + t * 2048 + h * 1024))
            else: a("ds_read_b128 %s, v%d offset:%d" % (vr(16 + 4 * n, 4), vB_, i * 12 * KB + h * 1024))
        a("s_mul_i32 s%d, s%d, %d\ns_mul_i32 s%d, s%d, %d\ns_add_u32 s%d, s%d, %d\ns_sub_u32 s%d, s%d, s%d" % (sT2, sJJ, 8 * 9216, sT3, sT3, 2 * 9216, sT2, sT2, 2 * 9216, sT2, sT2, sT3))
        for n, (i, t, h) in enumerate(fr):
            a("s_add_u32 s%d, s%d, %d" % (sT, sT2, (h * 9 + 3 * i + t) * 1024))
            if not OPT["abl"] & 4: a("buffer_store_dwordx4 %s, v1, %s, s%d offen%s" % (vr(16 + 4 * n, 4), SR(S_O), sT, POL[OPT["pols"]]), tag="st")
    def pre(step):
        if step == 0:
            for n in range(3): w2_load(n)
        for m in xiss:
            if xiss[m] == step: x2_load(m)
        if step == 17:
            PH[0] = 1
            a("s_and_b32 s%d, s%d, 1\ns_xor_b32 s%d, s%d, 1\ns_mul_i32 s%d, s%d, %d\ns_add_u32 s%d, s%d, %d\nv_add_u32 v%d, s%d, v1" % (sT, sW, sT, sT, sT, sT, 18 * KB, sT, sT, XB[0], vA_, sT))
            for n, (i, t, h) in enumerate([(i, t, h) for i in range(3) for t in range(3) for h in range(2)]):
                a("ds_write_b128 v%d, %s offset:%d" % (vA_, vr(16 + 4 * n, 4), (h * 9 + 3 * i + t) * 1024))
            for n in range(3): w2_load(n)
            a("s_waitcnt lgkmcnt(0)")
        for m in oiss:
            if oiss[m] == step:
                if m % 2 == 0 and not (once and m > 2):
                    a.wait_vm_tag("fl")
                    keep = list(a.vm)
                    a.label("L_f%d" % m)
                    ready(a)
                    a("s_add_u32 s%d, s%d, %d\ns_and_b32 s%d, s%d, 3\ns_and_b32 s%d, s%d, 12\ns_add_u32 s%d, s%d, s%d" % (sT3, sJJ, m // 2, sT3, sT3, sT2, sJJ, sT3, sT3, sT2))
                    if once: a("s_lshl_b32 s%d, 15, s%d\ns_andn2_b32 s%d, s%d, s%d\ns_cbranch_scc0 L_f%dok" % (sT3, sT2, sT3, sT3, sR2, m))
                    else: a("s_bitcmp1_b32 s%d, s%d\ns_cbranch_scc1 L_f%dok" % (sR2, sT3, m))
                    a("s_sleep %d" % OPT["slp"]); a(FLOAD); a("s_waitcnt vmcnt(0)\ns_branch L_f%d" % m)
                    a.label("L_f%dok" % m)
                    a.vm = keep
                o_load(m)
            if m % 2 == 0 and oiss[m] - 1 == step and not (once and m > 2): a(FLOAD, tag="fl")
        ns = (psched if PH[0] else sched).get(step, [])
        if OPT["abl"] & ((2 | 16) if PH[0] else 1): ns = []
        if PH[0] and OPT["abl"] & 32: ns = [n for n in ns if n < 4]
        ch = OPT["q2p"] and len(ns) == 2 and ns[0] % 2 == 0
        for i_, n in enumerate(ns):
            left = max(0, min(LIM[0], 512) - KVN[0])
            q2_step(n, left // (len(ns) - i_), ch and n != ns[-1], ch and n == ns[-1])
        if step == QW:
            a("s_and_b32 s%d, s%d, 1\ns_lshl_b32 s%d, s%d, 11\ns_add_u32 s%d, s%d, %d" % (sT, sW, sT, sT, sT, sT, Q2B))
            a("v_lshlrev_b32 v1, 4, v12\nv_add_u32 v2, s%d, v1" % sT)
            fr = [(t, h) for t in range(9) for h in range(2)]
            for t, h in fr: a("ds_write_b128 v2, %s offset:%d" % (vr(ACC(t, 2 * h), 4), t * 4096 + h * 1024))
            if OPT["mxf"]:
                a("s_mov_b64 exec, 1")
                a("v_mov_b32 v%d, %d\nv_mov_b32 v%d, 1" % (vA_, CNT, vB_))
                a("ds_add_u32 v%d, v%d offset:24" % (vA_, vB_))
                a("s_mov_b64 exec, -1")
            if OPT["p14"]: a("s_setprio %d" % OPT["auxprio"])
        if step == 16 and OPT["st1"]: o1_store()
        if step == OPT["pubat"]:
            a("s_cmp_lg_u32 s%d, 6\ns_cbranch_scc1 L_nopub" % sW)
            a("s_lshl_b32 s%d, s%d, 2\nv_mov_b32 v%d, s%d\nv_mov_b32 v%d, s%d" % (sT, sJJ, vA_, sT, vB_, sTag))
            keep = list(a.vm)
            a("buffer_store_dword v%d, v%d, %s, 0 offen sc1" % (vB_, vA_, SR(S_FL)))
            a.vm = keep
            a.label("L_nopub")
    def extra(step):
        if step == 0:
            if OPT["lean"]:
                a("s_lshl_b32 s%d, s%d, 3\ns_add_u32 s%d, s%d, s%d\ns_cmp_lg_u32 s%d, 6\ns_cbranch_scc1 L_nosnap" % (sT, sJJ, sT, sT, sW, sT))
                a("RAW buffer_load_dword v%d, v%d, %s, 0 offen sc1" % (vFl, vFo, SR(S_FL)))
                a.label("L_nosnap")
            else: a("buffer_load_dword v%d, v%d, %s, 0 offen sc1" % (vFl, vFo, SR(S_FL)), tag="fl")
        if step == 3:
            cstamp(a, 0)
            a("s_lshl_b32 s%d, s%d, 3\ns_add_u32 s%d, s%d, s%d\ns_cmp_lg_u32 s%d, 6\ns_cbranch_scc1 L_nolead" % (sT, sJJ, sT, sT, sW, sT))
            a("v_lshrrev_b32 v%d, v14, v%d\nv_and_b32 v%d, 1, v%d\nv_cmp_eq_u32 vcc, 0, v%d" % (vFl, vFl, vFl, vFl, vFl))
            a("s_nop 1")
            a("s_and_b32 s%d, vcc_lo, 0xffff\ns_or_b32 s%d, s%d, 0x80000000" % (sT, sT, sT))
            a("v_mov_b32 v%d, s%d" % (vFl, sT))
            keep = list(a.vm)
            a("buffer_store_dword v%d, v%d, %s, 0 offen sc1" % (vFl, vDg, SR(S_DBG)))
            a.vm = keep
            a.label("L_nolead")
        if step == 9:
            a("buffer_load_dword v%d, v%d, %s, 0 offen sc1" % (vFl, vDg, SR(S_DBG)), tag="fl")
        if step == 12:
            cstamp(a, 1)
            keep = list(a.vm)
            a.label("L_tag")
            a("v_cmp_eq_u32 vcc, 0, v%d" % vFl)
            a("s_cbranch_vccz L_tag_ok")
            a("s_sleep 8")
            a("buffer_load_dword v%d, v%d, %s, 0 offen sc1" % (vFl, vDg, SR(S_DBG)))
            a("s_waitcnt vmcnt(0)")
            a("s_branch L_tag")
            a.label("L_tag_ok")
            a.vm = keep
            a("v_readfirstlane_b32 s%d, v%d" % (sTag, vFl))
            a("v_mov_b32 v%d, %d" % (vA_, TAGW))
            a("ds_write_b32 v%d, v%d" % (vA_, vFl))
            a("s_or_b32 s%d, s%d, 0x%x" % (sWant, sTag, PHM))
            a("s_waitcnt lgkmcnt(0)")
        for m in xiss:
            if xiss[m] <= step and at[2 * m] == step + 1: a.wait_vm_tag("x%d" % m)
            if oiss[m] <= step and pat[2 * m] == step + 1: a.wait_vm_tag("x%d" % m)
        if step == 15:
            a("s_waitcnt lgkmcnt(0)")
            if OPT["mxf"] and not OPT["early"]: pass
            elif OPT["mxf"]:
                a("v_mov_b32 v%d, %d" % (vA_, CNT))
                a.label("L_mxw")
                a("s_sleep 1")
                a("ds_read_b32 v%d, v%d offset:20" % (vB_, vA_))
                a("s_waitcnt lgkmcnt(0)")
                a("v_readfirstlane_b32 s%d, v%d" % (sT, vB_))
                a("s_cmp_lt_u32 s%d, 6\ns_cbranch_scc1 L_mxw" % sT)
            else: a("s_barrier")
            kv_upto(a, 16 * 18 + OPT["early"])
        if step == 16:
            if not OPT["st1"]: o1_store()
            a("s_mov_b32 s%d, s%d" % (sBlkP, sW2))
            op_setup(a, False)
            a("v_mov_b32 v8, v1\nv_add_u32 v9, %d, v1" % (68 * KB))
        if step == OPT["pubat"] - 1: a.wait_vm_tag("st")
    def capture(f):
        rec = []
        class R:
            def __call__(self, t, tag=None): rec.append((t, tag))
        return rec, R()
    def fast():
        n0 = OPT["ftn"]; m0 = n0 // 2
        bars = [n0 + int(c) for c in OPT["ftb"].split(",")]
        nbar = OPT["fts"] + 1
        bufs = [OB[m0], OB[m0 + 1]]
        nxt = [m0 + 2]
        AFx = lambda n, d: (AF2[d] if n & 1 else AF(d))
        q2_a(n0, False)
        for t in range(9): q2_b(n0, t)
        a("s_lshl_b32 s%d, s%d, 2\ns_add_u32 s%d, s%d, %d\nv_mov_b32 v%d, s%d\nv_xor_b32 v%d, 4, v%d" % (sT, sW, sT, sT, PFL, vA_, sT, vCl, vA_))
        def signal(v):
            a("v_mov_b32 v%d, %d\nds_write_b32 v%d, v%d\nds_read_b32 v%d, v%d" % (vB_, v, vA_, vB_, vCr, vCl))
        def check(v):
            a("WAIT v%d" % vCr)
            keep = list(a.lgkm)
            a.label("L_fs%d" % v)
            a("v_readfirstlane_b32 s%d, v%d\ns_cmp_ge_u32 s%d, %d\ns_cbranch_scc1 L_fs%dk" % (sT, vCr, sT, v, v))
            a("ds_read_b32 v%d, v%d\ns_waitcnt lgkmcnt(0)\ns_branch L_fs%d" % (vCr, vCl, v))
            a.label("L_fs%dk" % v)
            a.lgkm = keep
        for n in range(n0, 16):
            while bars and bars[0] == n:
                bars.pop(0)
                kv_upto(a, 16 * (nbar + 1) + 16)
                a.wait_vm_tag("k%d" % (16 * nbar + 15)); a("s_barrier")
                if nbar == 31:
                    stamp(a, 3)
                    if OPT["nb3"] and nxt[0] < 8:
                        OB[nxt[0]] = 68 * KB; o_load(nxt[0]); nxt[0] += 1
                nbar += 1
            odd = n & 1; m = n // 2
            a("WAIT " + " ".join(vr(AFx(n, d), 4) for d in range(4)) + " " + vr(208, 24))
            if odd:
                if m + 1 < 8: a.wait_vm_tag("x%d" % (m + 1))
                signal(n)
            def others():
                if n + 3 < 16: w2_load(n + 3)
                if n + 1 < 16: q2_a(n + 1, (n + 1) & 1)
                if odd and nxt[0] < 8:
                    OB[nxt[0]] = OB[m]; o_load(nxt[0]); nxt[0] += 1
                kv_upto(a, min(16 * (nbar + 1) + 16, KVN[0] + 8))
            fl = a.capture(others); fi = 0
            slots = [i for i in range(34) if i % 4 != 3]
            for t in range(9):
                for d in range(4):
                    c = vr(ACC(t, d), 4)
                    a("%s %s, %s, %s, %s" % (MF, c, vr(AFx(n, d), 4), BF(t), c))
                    i = 4 * t + d
                    if i in slots:
                        tgt = (slots.index(i) + 1) * len(fl) // len(slots)
                        while fi < tgt: a(fl[fi][0], tag=fl[fi][1]); fi += 1
                if t == 0 and odd: check(n)
                if n + 1 < 16: q2_b(n + 1, t)
            assert fi == len(fl)
        assert not bars and nbar == 32
    last_ = OPT["fts"] if OPT["ft"] else max(32, pat[15] + 2) - 1
    for step in range(last_ + 1):
        if OPT["ft"] and step == last_: aux_step(a, step, pre=fast)
        else: aux_step(a, step, pre=lambda: pre(step), extra=lambda: extra(step))
    stamp(a, 5)
    a("s_and_b32 s%d, s%d, 1\ns_lshl_b32 s%d, s%d, 14\ns_lshl_b32 s%d, s%d, 1\ns_sub_u32 s%d, s%d, %d\ns_add_u32 s%d, s%d, %d" % (sT, sW, sT, sT, sBlkD, sT, sBlkD, sBlkD, 16 * KB, sT, sT, 96 * KB))
    a("s_sub_u32 s%d, s%d, s%d\ns_mov_b32 s%d, s%d" % (sT2, sT, sBlkP, sBlkP, sT))
    a("v_add_u32 v2, s%d, v2\nv_add_u32 v3, s%d, v3\nv_add_u32 v8, 4096, v1\nv_add_u32 v9, 8192, v1" % (sT2, sT2))

FLOAD = "buffer_load_dword v10, v11, %s, 0 offen sc1" % SR(S_FL)
def ready(a):
    a.autowait = False
    a("v_or_b32 v10, v15, v10\nv_cmp_eq_u32 vcc, s%d, v10\ns_nop 1\ns_mov_b64 s[%d:%d], vcc" % (sWant, sR2, sR2 + 1))
    if OPT["nopoll"]: a("s_mov_b64 s[%d:%d], -1" % (sR2, sR2 + 1))
    a.autowait = True

def op_setup(a, second):
    lanes(a)
    a("v_lshlrev_b32 v1, 4, v12\nv_add_u32 v8, 4096, v1")
    a("v_lshrrev_b32 v9, 5, v12")
    a("v_and_b32 v4, 3, v12\nv_lshlrev_b32 v5, 1, v9\nv_xor_b32 v4, v4, v5\nv_lshlrev_b32 v4, 4, v4")
    a("v_and_b32 v5, 1, v13")
    a("v_lshl_add_u32 v4, v5, 6, v4\nv_lshl_add_u32 v4, v15, 10, v4\nv_lshl_add_u32 v4, v9, 12, v4")
    if second: a("v_xor_b32 v4, 64, v4")
    a("s_and_b32 s%d, s%d, 3\ns_lshl_b32 s%d, s%d, 8\ns_and_b32 s%d, s%d, 1\ns_lshl_b32 s%d, s%d, 7\ns_add_u32 s%d, s%d, s%d" % (sT, sJJ, sT, sT, sT2, sW, sT2, sT2, sT, sT, sT2))
    a("v_add_u32 v4, s%d, v4" % sT)
    a("v_and_b32 v2, 3, v12\nv_lshlrev_b32 v2, 3, v2\nv_lshl_add_u32 v2, v15, 6, v2\nv_lshl_add_u32 v2, v5, 5, v2\nv_lshl_add_u32 v2, v13, 9, v2")
    a("v_add_u32 v2, s%d, v2\nv_xor_b32 v3, 32, v2" % sBlkP)
    for q in range(1, 4): a("v_add_u32 v%d, %d, v4" % (4 + q, 7168 * q))
    a("v_add_u32 v9, 8192, v1\nv_lshlrev_b32 v11, 2, v14")
    a("v_lshrrev_b32 v15, v13, 3\nv_lshlrev_b32 v15, 29, v15" if False else "v_mov_b32 v15, 3\nv_lshrrev_b32 v15, v13, v15\nv_lshlrev_b32 v15, 29, v15")
    a("s_and_b32 s%d, s%d, 1\ns_lshl_b32 s%d, s%d, 1\ns_add_u32 s%d, s%d, %d" % (sOpIdx, sW, sOpIdx, sOpIdx, sOpIdx, sOpIdx, 1 if second else 0))

def op_tail(a):
    B = lambda k, t: vr((208 if k & 1 == 0 else 128) + 4 * t, 4)
    AT = [164, 168, 172, 244]
    def run(ops):
        a.autowait = False
        for x in ops: a(x)
        a.autowait = True
        a.vm = []; a.lgkm = []
    def head_offs(i, so, sb):
        a("s_add_u32 s%d, s%d, s%d\ns_and_b32 s%d, s%d, 3\ns_and_b32 s%d, s%d, 12\ns_add_u32 s%d, s%d, s%d" % (sT3, sJJ, i, sT3, sT3, sT2, sJJ, sT3, sT3, sT2))
        a("s_add_u32 s%d, s%d, 16\ns_lshl_b32 s%d, s%d, 3\ns_add_u32 s%d, s%d, 4" % (sb, sT3, sT3, sT3, sT3, sT3))
        a("s_mul_i32 s%d, s%d, 9216\ns_lshl_b32 s%d, s%d, 15" % (so, sT3, sWn, sT3))
        if OPT["xo"] & 2: a("s_mov_b32 s%d, 0" % so)
    def w_ops(k, blk):
        return ["s_add_u32 m0, s%d, %d" % (blk, k * 4096), "s_add_u32 s%d, s%d, %d" % (sT2, sWn, k * 32768)] + \
               ["buffer_load_dwordx4 v%d, %s, s%d offen offset:%d%s lds" % (4 + q, SR(S_WO), sT2, q * 1024, POL[OPT["polwo"]]) for q in range(4)]
    def o_op(k, t): return "buffer_load_dwordx4 %s, v%d, %s, s%d offen offset:%d%s" % (B(k, t), [1, 8, 9][t >> 2], SR(S_O), sT3, (t & 3) * 1024, POL[OPT["polo"]])
    def a_reads(k, cp):
        return ["ds_read_b64_tr_b16 %s, v%d offset:%d" % (vr(AT[2 * cp + c] + 2 * rd, 2), 3 if c else 2, k * 4096 + rd * 2048 + cp * 256) for c in range(2) for rd in range(2)]
    toggle = ["v_add_u32 v2, s%d, v2" % sBlkD, "v_add_u32 v3, s%d, v3" % sBlkD, "s_add_u32 s%d, s%d, s%d" % (sBlkP, sBlkP, sBlkD), "s_sub_u32 s%d, 0, s%d" % (sBlkD, sBlkD)]
    a.raw(".p2align 3")
    a.label("L_p2")
    run([FLOAD])
    a("s_and_b32 s%d, s%d, 1\ns_lshl_b32 s%d, s%d, 1\ns_add_u32 s62, s%d, 1" % (sT, sOpIdx, sT, sT, sT))
    head_offs(62, sOc, sBc)
    for k in range(4): run(w_ops(k, sBlkP))
    a("s_add_u32 s62, s62, 1\ns_add_u32 s63, s%d, s%d" % (sBlkP, sBlkD))
    head_offs(62, sOn, sBn)
    for k in range(4): run(w_ops(k, 63))
    if OPT["latep"]:
        a("s_cmp_ge_u32 s%d, 6\ns_cbranch_scc1 L_p2_np" % sW)
        publish(a, "L_pub_y", 250, nw=33)
        stamp(a, 5)
        for i in range(36): a("v_mov_b64 %s, 0\nv_mov_b64 %s, 0" % (vr(ACC(i // 4, i % 4), 2), vr(ACC(i // 4, i % 4) + 2, 2)))
        a.label("L_p2_np")
        a.vm = []; a.lgkm = []
    a("s_waitcnt vmcnt(32)")
    a("s_mov_b32 s%d, 2" % sBit)
    a.label("L_p2_chk")
    ready(a)
    a("s_bitcmp1_b32 s%d, s%d\ns_cbranch_scc1 L_p2_go" % (sR2, sBc))
    a("s_bitcmp1_b32 s%d, s%d\ns_cbranch_scc1 L_p2_swap" % (sR2, sBn))
    run(["s_sleep %d" % OPT["slp"]])
    a.label("L_p2_poll")
    run([FLOAD, "s_waitcnt vmcnt(0)", "s_branch L_p2_chk"])
    a.label("L_p2_swap")
    run(["s_mov_b32 s%d, s%d" % (sT, sBc), "s_mov_b32 s%d, s%d" % (sBc, sBn), "s_mov_b32 s%d, s%d" % (sBn, sT),
         "s_mov_b32 s%d, s%d" % (sT, sOc), "s_mov_b32 s%d, s%d" % (sOc, sOn), "s_mov_b32 s%d, s%d" % (sOn, sT)] + toggle)
    a.label("L_p2_go")
    stamp(a, 6)
    if OPT["stamps"]: a("s_cmp_lg_u32 s%d, 2\ns_cbranch_scc1 L_p2_st\ns_memrealtime s[68:69]\nL_p2_st:" % sBit)
    for k in range(2): run(["s_add_u32 s%d, s%d, %d" % (sT3, sOc, k * 9216)] + [o_op(k, t) for t in range(9)])
    run([FLOAD, "s_waitcnt vmcnt(19)"] + a_reads(0, 0))
    def kstep(k, ho, extra):
        more = k < 2 or ho
        run(["s_waitcnt vmcnt(%d) lgkmcnt(0)" % ((9 + extra) if (k < 3 or ho) else 0)] + a_reads(k, 1))
        if more: run(["s_add_u32 s%d, s%d, %d" % (sT3, sOc if k < 2 else sOn, ((k + 2) & 3) * 9216)])
        for cp in range(2):
            if cp == 1:
                run(["s_waitcnt lgkmcnt(0)"])
                if k == 3: run(toggle)
                if k < 3 or ho: run(a_reads((k + 1) & 3, 0))
            for t in range(9):
                for c in range(2):
                    r = vr(ACC(t, 2 * cp + c), 4)
                    run(["%s %s, %s, %s, %s" % (MF, r, vr(AT[2 * cp + c], 4), B(k, t), r)])
                if cp == 1 and more: run([o_op(k, t)])
    kstep(0, False, 1)
    kstep(1, False, 0)
    a("s_cmp_eq_u32 s%d, 1\ns_cbranch_scc1 L_p2_last" % sBit)
    ready(a)
    a("s_bitcmp1_b32 s%d, s%d\ns_cbranch_scc0 L_p2_last" % (sR2, sBn))
    kstep(2, True, 0); kstep(3, True, 0)
    a("s_mov_b32 s%d, s%d\ns_mov_b32 s%d, 1" % (sOc, sOn, sBit))
    kstep(0, False, 0); kstep(1, False, 0)
    a.label("L_p2_last")
    kstep(2, False, 0); kstep(3, False, 0)
    a("s_mov_b32 s%d, s%d\ns_mov_b32 s%d, s%d" % (sOc, sOn, sBc, sBn))
    a("s_sub_u32 s%d, s%d, 1\ns_cmp_lg_u32 s%d, 0\ns_cbranch_scc1 L_p2_poll" % (sBit, sBit, sBit))
    stamp(a, 1)
    a("s_add_u32 s%d, s%d, s%d\ns_min_u32 s%d, s%d, s%d\ns_max_u32 s%d, s%d, s%d" % (sT, sBlkP, sBlkD, sT2, sT, sBlkP, sT3, sT, sBlkP))
    a("v_add_u32 v8, s%d, v1\nv_add_u32 v9, s%d, v1" % (sT2, sT3))
    for t in range(9):
        for c in range(2): a("ds_write_b128 v%d, %s offset:%d" % (8 if t < 8 else 9, vr(ACC(t, 2 + c), 4), ((t & 7) * 2 + c) * 1024))
    a("s_mov_b32 s%d, 0\ns_cmp_eq_u32 s%d, 1\ns_cselect_b32 s%d, %d, s%d" % (sT, sOpIdx, sT, 80 * KB, sT))
    a("s_cmp_eq_u32 s%d, 2\ns_cselect_b32 s%d, %d, s%d\ns_cmp_eq_u32 s%d, 3\ns_cselect_b32 s%d, %d, s%d" % (sOpIdx, sT, 16 * KB, sT, sOpIdx, sT, 112 * KB, sT))
    a("s_and_b32 s%d, s%d, 1\ns_lshr_b32 s%d, %d, s%d\ns_add_u32 s%d, s%d, s%d" % (sT2, sOpIdx, sT2, 32 * KB, sT2, sT2, sT2, sT))
    a("v_add_u32 v8, s%d, v1\nv_add_u32 v9, s%d, v1" % (sT, sT2))
    a("s_lshl_b32 s%d, s%d, 2\ns_and_b32 s%d, s%d, 3\ns_add_u32 s%d, s%d, s%d\ns_lshl_b32 s%d, s%d, 2\ns_add_u32 s%d, s%d, s%d" % (sT, sG, sT2, sJJ, sT, sT, sT2, sT, sT, sT, sT, sOpIdx))
    a("s_mul_i32 s%d, s%d, %d\ns_add_u32 s%d, s%d, 0x%x\ns_add_u32 s90, s100, s%d\ns_addc_u32 s91, s101, 0" % (sT, sT, 4 * 9216, sT, sT, SLAB_OFF, sT))
    srd(a, S_SL, 90, 91, "%d" % (4 * 9216))
    a("s_waitcnt lgkmcnt(0)")
    a("s_barrier")
    for t in range(9):
        for c in range(2): a("ds_read_b128 %s, v%d offset:%d" % (vr(ACC(t, 2 + c), 4), 8 if t < 8 else 9, ((t & 7) * 2 + c) * 1024))
    a("v_add_u32 v8, 4096, v1\nv_add_u32 v9, 8192, v1")
    a("s_lshr_b32 s62, s%d, 2" % sJJ)
    a("s_cmp_eq_u32 s62, s%d\ns_cbranch_scc1 L_fin" % sOpIdx)
    keepl = list(a.lgkm)
    def addp(t):
        b = ACC(t, 0)
        for r in range(0, 8, 2): a("v_pk_add_f32 %s, %s, %s" % (vr(b + r, 2), vr(b + r, 2), vr(b + 8 + r, 2)))
    def cvt(t):
        b = ACC(t, 0)
        for r in range(4): a("v_cvt_pk_bf16_f32 v%d, v%d, v%d" % (b + r, b + 2 * r, b + 2 * r + 1))
    a("s_mul_i32 s%d, s62, 9216" % sT3)
    for t in range(9):
        addp(t); cvt(t)
        a("buffer_store_dwordx4 %s, v%d, %s, s%d offen offset:%d sc1" % (vr(ACC(t, 0), 4), [1, 8, 9][t >> 2], SR(S_SL), sT3, (t & 3) * 1024))
    publish(a, "L_pub_z", 250, 28, 2, PHM)
    if OPT["stamps"]:
        stamp(a, 7); stamp_store(a)
    a("s_endpgm")
    a.vm = []; a.lgkm = keepl
    a.label("L_fin")
    for t in range(9): addp(t)
    lanes(a)
    a("v_and_b32 v244, 1, v14\nv_lshlrev_b32 v244, 4, v244\nv_mov_b32 v245, 0x3f80\nv_lshlrev_b32 v245, v244, v245")
    a("v_cmp_eq_u32 vcc, v15, v13\nv_mov_b32 v244, 0\nv_cndmask_b32 v245, 0, v245, vcc")
    a("v_and_b32 v246, 2, v14\nv_cmp_eq_u32 vcc, 0, v246\nv_mov_b32 v248, 0\nv_mov_b32 v249, 0")
    a("v_cndmask_b32 v246, 0, v245, vcc\nv_cndmask_b32 v247, v245, v244, vcc\nv_mov_b32 v245, 0")
    a("v_lshrrev_b32 v4, 1, v13\nv_and_b32 v5, 1, v13\nv_lshl_or_b32 v4, v5, 1, v4\nv_lshlrev_b32 v4, 4, v4\nv_lshl_add_u32 v4, v14, 11, v4")
    a("s_mul_i32 s%d, s%d, %d\ns_lshl_b32 s%d, s%d, 10\ns_add_u32 s%d, s%d, s%d" % (sOutOff, sB, 144 * 2048, sT, sBlk, sOutOff, sOutOff, sT))
    a("s_and_b32 s%d, s%d, 3\ns_lshl_b32 s%d, s%d, 8\ns_add_u32 s%d, s%d, s%d\ns_lshl_b32 s%d, s62, 6\ns_add_u32 s%d, s%d, s%d" % (sT2, sJJ, sT, sT2, sOutOff, sOutOff, sT, sT, sOutOff, sOutOff, sT))
    a("v_mov_b32 v15, 3\nv_lshrrev_b32 v15, v13, v15\nv_lshlrev_b32 v15, 29, v15")
    a("s_lshl_b32 s%d, 0x1111, s%d\ns_lshl_b32 s%d, 1, s%d\ns_andn2_b32 s%d, s%d, s%d" % (sBit, sT2, sT, sJJ, sBit, sBit, sT))
    run([FLOAD, "s_waitcnt vmcnt(0)"])
    a.label("L_fin_chk")
    ready(a)
    a("s_andn2_b32 s%d, s%d, s%d\ns_cbranch_scc0 L_fin_go" % (sT, sBit, sR2 + 1))
    run(["s_sleep %d" % OPT["slp"], FLOAD, "s_waitcnt vmcnt(0)", "s_branch L_fin_chk"])
    a.label("L_fin_go")
    stamp(a, 4)
    SL = lambda i, t: (ACC(t, 2 + i) if i < 2 else 128 + 4 * t)
    for i in range(3): a("s_add_u32 s%d, s62, %d\ns_and_b32 s%d, s%d, 3\ns_mul_i32 s%d, s%d, 9216" % (sOc + i, i + 1, sOc + i, sOc + i, sOc + i, sOc + i))
    for t in range(9):
        for i in range(3):
            a("buffer_load_dwordx4 %s, v%d, %s, s%d offen offset:%d sc1" % (vr(SL(i, t), 4), [1, 8, 9][t >> 2], SR(S_SL), sOc + i, (t & 3) * 1024))
    def fin_out(t):
        cvt(t); q_swap(a, ACC(t, 0))
        a("s_add_u32 s%d, s%d, %d" % (sT, sOutOff, t * 32768))
        a("buffer_store_dwordx4 %s, v4, %s, s%d offen%s" % (vr(ACC(t, 0), 4), SR(S_OUT), sT, POL[OPT["polout"]]))
    for t in range(9):
        for i in range(3):
            for c in range(2):
                r = vr(ACC(t, c), 4)
                a("%s %s, %s, %s, %s" % (MF, r, vr(246 - 2 * c, 4), vr(SL(i, t), 4), r))
        if t: fin_out(t - 1)
    fin_out(8)
    if OPT["stamps"]:
        a("s_waitcnt vmcnt(0)")
        stamp(a, 7); stamp_store(a)
    a("s_endpgm")
    a.vm = []; a.lgkm = []

def kernel():
    a = Asm()
    a.raw(".globl %s\n.p2align 8\n.type %s,@function" % (NAME, NAME)); a.label(NAME)
    a("s_cmp_ge_u32 s2, 256\ns_cbranch_scc1 L_end")
    if OPT["stamps"]:
        for k in range(1 if OPT["pst"] else NST): a("s_memrealtime s[%d:%d]" % (64 + 2 * k, 65 + 2 * k))
    a("s_and_b32 s%d, s2, 7\ns_lshr_b32 s%d, s2, 3\ns_lshr_b32 s%d, s%d, 2" % (sT, sT2, sBlk, sT))
    a("s_mul_i32 s%d, s%d, 40" % (sT3, sBlk))
    a("s_add_u32 s4, s0, s%d\ns_addc_u32 s5, s1, 0" % sT3)
    a("s_load_dwordx8 s[80:87], s[4:5], 0")
    a("s_load_dwordx2 s[88:89], s[4:5], 32")
    a("s_load_dwordx4 s[96:99], s[0:1], 80")
    a("s_load_dwordx2 s[92:93], s[0:1], 96")
    a("s_lshr_b32 s%d, s%d, 4\ns_lshl_b32 s%d, s%d, 1\ns_add_u32 s%d, s%d, s%d" % (sGo, sT2, sT3, sT, sGo, sGo, sT3))
    a("s_and_b32 s%d, s%d, 15" % (sJo, sT2))
    if OPT["map"] == 0:
        a("s_mov_b32 s%d, s%d\ns_mov_b32 s%d, s%d\ns_and_b32 s%d, s%d, 7" % (sG, sGo, sJJ, sJo, sB, sGo))
        a("s_and_b32 s%d, s%d, 1\ns_lshl_b32 s%d, s%d, 2\ns_add_u32 s%d, s%d, s%d" % (sRot, sG, sRot, sRot, sRot, sRot, sJJ))
    elif OPT["map"] == 1:
        a("s_and_b32 s%d, s%d, 7\ns_and_b32 s%d, s%d, 1\ns_lshl_b32 s%d, s%d, 3\ns_add_u32 s%d, s%d, s%d" % (sRot, sT2, sJJ, sT, sJJ, sJJ, sJJ, sJJ, sRot))
        a("s_lshr_b32 s%d, s%d, 3\ns_lshl_b32 s%d, s%d, 1\ns_add_u32 s%d, s%d, s%d" % (sB, sT2, sT3, sB, sRot, sRot, sT3))
        a("s_and_b32 s%d, s%d, 2\ns_lshl_b32 s%d, s%d, 1\ns_add_u32 s%d, s%d, s%d" % (sT3, sT, sT3, sT3, sB, sB, sT3))
        a("s_lshl_b32 s%d, s%d, 3\ns_add_u32 s%d, s%d, s%d" % (sG, sBlk, sG, sG, sB))
    else:
        a("s_and_b32 s%d, s%d, 3\ns_and_b32 s%d, s%d, 3\ns_lshl_b32 s%d, s%d, 2\ns_add_u32 s%d, s%d, s%d" % (sRot, sT2, sJJ, sT, sJJ, sJJ, sJJ, sJJ, sRot))
        a("s_lshr_b32 s%d, s%d, 2\ns_lshl_b32 s%d, s%d, 1\ns_add_u32 s%d, s%d, s%d" % (sB, sT2, sRot, sRot, sRot, sRot, sB))
        if OPT["cls"] == 1: a("s_and_b32 s%d, s%d, 3\ns_lshl_b32 s%d, s%d, 1\ns_lshr_b32 s%d, s%d, 4\ns_add_u32 s%d, s%d, s%d" % (sB, sB, sB, sB, sT3, sT2, sB, sB, sT3))
        a("s_lshl_b32 s%d, s%d, 3\ns_add_u32 s%d, s%d, s%d" % (sG, sBlk, sG, sG, sB))
    if OPT["cls"] == 1: a("s_lshr_b32 s3, s2, 7")
    if OPT["cls"] == 2: a("s_mov_b32 s3, s%d" % sBlk)
    a("v_lshrrev_b32 v12, 6, v0")
    a("v_readfirstlane_b32 s%d, v12" % sW)
    a("s_mul_i32 s62, s%d, 147456" % sB)
    def code_pf():
        a("s_getpc_b64 s[90:91]")
        a.label("L_pf")
        if OPT["pfw"]:
            a("s_lshr_b32 s%d, s2, 3\ns_and_b32 s%d, s%d, 3\ns_min_u32 s%d, s%d, 2\ns_lshl_b32 s%d, s%d, 15" % (sT, sT, sT, sT, sT, sT, sT))
            a("v_lshlrev_b32 v240, 7, v0\nv_add_u32 v240, s%d, v240" % sT)
        else: a("v_lshlrev_b32 v240, 7, v0")
        a.items.append(a._mk("v_min_u32 v240, 0x1234, v240")); a.items[-1].text = "v_min_u32 v240, L_end-L_pf, v240"
        if OPT["pfw"] == 2: a("s_cmp_ge_u32 s2, 32\ns_cbranch_scc1 L_nopf")
        a("global_load_dword v253, v240, s[90:91]")
        if OPT["pfw"] == 2: a.label("L_nopf")
    if not OPT["pfw"]: code_pf()
    if OPT["fast0"]:
        loader_setup(a)
        if OPT["pst"]: a("s_memrealtime s[66:67]")
        srds_first(a)
        if OPT["pst"]: a("s_memrealtime s[68:69]")
        a("s_cmp_lt_u32 s%d, 4\ns_cbranch_scc1 L_arole" % sW)
        st0 = (list(a.lgkm), list(a.vm))
        for x, t in stage_ops_(0, 4): a(x, tag=t)
        st = (list(a.lgkm), list(a.vm))
        a("s_cmp_ge_u32 s%d, 6\ns_cbranch_scc1 L_auxrole\ns_branch L_brole" % sW)
        a.label("L_arole")
        a.lgkm, a.vm = list(st0[0]), list(st0[1])
    else:
        a("s_cmp_ge_u32 s%d, 6\ns_cbranch_scc1 L_auxrole" % sW)
        st = (list(a.lgkm), list(a.vm))
        a("s_cmp_ge_u32 s%d, 4\ns_cbranch_scc1 L_brole" % sW)
    if OPT["pfw"]: code_pf()
    head(a, "A")
    a("s_branch L_att")
    a.lgkm, a.vm = list(st[0]), list(st[1])
    a.raw(".p2align 3"); a.label("L_brole")
    head(a, "B")
    a.label("L_att")
    attention(a)
    a.lgkm, a.vm = list(st[0]), list(st[1])
    a.raw(".p2align 3"); a.label("L_auxrole")
    head(a, "X")
    aux(a)
    a.vm = []
    op_tail(a)
    a.label("L_end"); a("s_endpgm")
    a.pad_hazards()
    a.check_backedge("L_loop", "s_cbranch_scc1 L_loop")
    a.align8()
    return a.text()

out = []
out.append("; " + " ".join(sys.argv[1:]) + " : fused Q-projection + attention + O-projection, one launch (generated by dev/gen16.py)")
out.append("; @launch grid=(256,1,1) block=(512,1,1) lds=163840")
out.append('.amdgcn_target "amdgcn-amd-amdhsa--gfx950"\n.text')
out.append(kernel())
out.append('.section .rodata,"a"\n.p2align 6')
out.append(""".amdhsa_kernel %s
  .amdhsa_next_free_vgpr 256
  .amdhsa_next_free_sgpr 102
  .amdhsa_accum_offset 256
  .amdhsa_group_segment_fixed_size 0
  .amdhsa_kernarg_size 104
  .amdhsa_user_sgpr_count 2
  .amdhsa_user_sgpr_kernarg_segment_ptr 1
  .amdhsa_system_sgpr_workgroup_id_x 1
.end_amdhsa_kernel
""" % NAME)
print("\n".join(out))
```

```python
import sys, math, struct
sys.path.insert(0, "dev")
from asmlib import *

OPT = dict(stamps=0, samekv=0, clk=0, hst=0, nopoll=0, polo=2, polw=0, polx=0, polwo=0, pols=2, polkv=1, slp=4, lo=2,
           auxprio=0, sbs=1, s0=22, kp="3333333322", sst=-1, sstd=1, xo=0, xw=0, map=2, park=2, hprio=1, kv0=5, kv1=6, pk14=0, ck=0, polout=0, ptouch=0, tw0="15", tw1="", g0=15, cap=0, capto=16, nol=0, q2mix=2, bst=-1, bw=0, pair=1, mxf=1, p14=1, early=8, tst=0, cpf=1, pfm=-1, pst=0, pfw=1, fast0=1, q2s="22111111111111", q2p=1, q2pr=0, kvc=0, xmf=0, cls=0, capl=0, capl0=2, capl1=17, pubat=18, st1=0, hb=3, k1a=8, k1b=8, pad=0, ypr=2, asym=-1, p0=18, ps="1111000000002222220", fl0=19, od=1, pols2=2, polf=2)
for a_ in sys.argv[1:]:
    k, v = a_.split("="); assert k in OPT, k; OPT[k] = v if k in ("kp", "tw0", "tw1", "q2s", "ps", "ftb") else int(v)

NAME = "concat_heads__mha_block_cached__gqa_block_cached__near_ridge_kernel"
def f32(x): return "0x%08x" % struct.unpack("<I", struct.pack("<f", x))[0]
CSCALE = math.log2(math.e) / math.sqrt(128.0)
THR = 8.0
KB = 1024
SLOT = 32 * KB
XB = [96 * KB, 114 * KB, 132 * KB]
WB = [32 * KB, 48 * KB, 0]
Q2B = 96 * KB; Q1A = 132 * KB; Q1C = 32 * KB; EX1 = 132 * KB; EX2 = 56 * KB; EX1B = 32 * KB; W2R = 132 * KB
MLB = 156 * KB; CNT = 160 * KB - 128; TAGW = CNT + 8; CLAIM = CNT + 16; PFL = CNT + 32
STAMP_OFF = 0x10000000; FLAG_OFF = 0x2000000
PH2 = 0x40000000; PH3 = 0x20000000; PHM = 0x60000000
SLAB_OFF = 0x2800000
S_SL = 8
sR2 = 60
OSTR = 128 * 9216 + 1024
MF = "v_mfma_f32_16x16x32_bf16"
NST = 8
POL = ["", " nt", " sc1", " sc0 sc1", " sc1 nt", " sc0 sc1 nt", " sc0 nt", " sc0"]
NIN = sum(int(c) for c in OPT["kp"]) // 4
assert NIN * 4 == sum(int(c) for c in OPT["kp"]) and NIN <= 7

HD = OPT["hb"]
HX = XB if HD == 3 else [64 * KB, 132 * KB, 96 * KB, 114 * KB]
HW = WB if HD == 3 else [0, 16 * KB, 32 * KB, 48 * KB]
SPLIT = OPT["pubat"] + 1
S_FL, S_WQ, S_X, S_O, S_KV, S_WO, S_OUT, S_DBG = 4, 8, 12, 16, 20, 24, 28, 32
S_OL, S_FLL = 8, 12
sW, sG, sJJ, sBlk, sB, sRot, sT, sT2, sT3 = 36, 37, 38, 39, 40, 41, 42, 43, 44
sCnt, sThr, sFl, sSlot, sDelta, sItem, sExS, sBar, sExch, sOoff = 45, 46, 47, 48, 49, 50, 51, 52, 53, 54
sNeg, sPos, sPart, sKg, sRho = 55, 56, 57, 59, 62
sHk, sHo = 46, 47
sOc, sOn, sWn, sBlkP, sRm, sBit, sR, sC = 46, 47, 48, 49, 51, 52, 55, 56
sBlkD, sBc, sBn, sOnn = 45, 53, 58, 86
sOb, sWb, sOutOff, sOpIdx, sTag, sWant, sTagA = 80, 81, 82, 83, 84, 85, 87
sGo, sJo = 94, 95

def srd(a, d, lo, hi, nrec):
    a("s_mov_b32 s%d, s%d\ns_mov_b32 s%d, s%d" % (d, lo, d + 1, hi))
    a("s_mov_b32 s%d, %s\ns_mov_b32 s%d, 0x20000" % (d + 2, nrec, d + 3))
def SR(d): return "s[%d:%d]" % (d, d + 3)

def cstamp(a, e):
    if OPT["clk"]: a("s_memtime s[%d:%d]\ns_memrealtime s[%d:%d]" % (66 + 2 * e, 67 + 2 * e, 70 + 2 * e, 71 + 2 * e))
def stamp(a, k, hs=False):
    if not OPT["stamps"] or OPT["ck"]: return
    if OPT["clk"] and 1 <= k <= 4: return
    if (OPT["sst"] >= 0 or OPT["bst"] >= 0 or OPT["tst"] or OPT["pst"]) and k and k != 7: return
    if OPT["hst"] and k and not hs: return
    if hs and not OPT["hst"]: return
    a("s_memrealtime s[%d:%d]" % (64 + 2 * k, 65 + 2 * k))
BSN = [0]
def bstamp(a, k):
    if OPT["bst"] < 0: return
    BSN[0] += 1
    a("s_cmp_lg_u32 s%d, %d\ns_cbranch_scc1 L_bs%d\ns_memrealtime s[%d:%d]\nL_bs%d:" % (sItem, OPT["bst"], BSN[0], 64 + 2 * k, 65 + 2 * k, BSN[0]))
def stamp_store(a):
    a("s_waitcnt vmcnt(0) lgkmcnt(0)")
    a("s_cmp_eq_u32 s%d, 6\ns_cselect_b32 s%d, 256, 0" % (sW, sT))
    a("s_mul_i32 s%d, s%d, 43\ns_lshr_b32 s%d, s%d, 8\ns_mul_i32 s%d, s%d, 6" % (sT2, sW, sT2, sT2, sT2, sT2))
    a("s_cmp_lg_u32 s%d, s%d\ns_cbranch_scc1 L_end" % (sT2, sW))
    a("s_add_u32 s96, s100, 0x%x\ns_addc_u32 s97, s101, 0" % STAMP_OFF)
    a("s_mov_b32 s98, 0x100000\ns_mov_b32 s99, 0x20000")
    a("s_add_u32 s3, s2, s%d\ns_mul_i32 s3, s3, %d" % (sT, NST * 8))
    a("v_mov_b32 v12, s3\ns_mov_b64 exec, 1")
    for k in range(NST):
        a("v_mov_b32 v14, s%d\nv_mov_b32 v15, s%d" % (64 + 2 * k, 65 + 2 * k))
        a("buffer_store_dwordx2 v[14:15], v12, s[96:99], 0 offen offset:%d" % (8 * k))
        a("s_nop 1")

def lanes(a):
    a("v_and_b32 v12, 63, v0\nv_lshrrev_b32 v13, 4, v12\nv_and_b32 v14, 15, v12\nv_bfe_u32 v15, v12, 2, 2")

vK, vVa, vVb = 1, 2, 3
vX1, vX2, vX3, vX4 = 4, 5, 6, 7
vONE, vT, vQ, vO, vL, vM, vS, vF = 8, 12, 16, 64, 160, 172, 184, 208
def Q(t, s): return vr(vQ + 16 * t + 4 * s, 4)
def O(t, dt): return vr(vO + 32 * t + 4 * dt, 4)
def L(t): return vr(vL + 4 * t, 4)
def M(t): return vr(vM + 4 * t, 4)
def S(t, kt): return vr(vS + 8 * t + 4 * kt, 4)
def F(i): return vF + 4 * i
vD = 128
vFo, vDg, vDg2, vFl, vA_, vB_, vOr, vCl, vCr, vCb = 136, 137, 138, 139, 140, 141, 142, 143, 144, 145

sKo = 50
S_V = 96
CUR = [0]
KVN = [0]
def kv_one(a, capped=True):
    n = KVN[0]
    if n >= 512: return
    KVN[0] += 1
    tile, e = divmod(n, 16); grp, q = divmod(e, 4)
    LEAD = OPT["lead2"] if CUR[0] >= OPT["ls0"] else OPT["lead"]
    slot = (tile + 2) % 3
    if OPT["kvc"]:
        isv, i = divmod(e, 8)
        a("s_add_u32 m0, s%d, %d\ns_add_u32 s%d, s%d, %d" % (sKg, slot * SLOT + isv * 16384 + i * 2048, sKo, sKg, tile * 16384 + i * 2048))
        if capped: a.wait_vm_tag("k%d" % (n - LEAD))
        a("buffer_load_dwordx4 v%d, %s, s%d offen%s lds" % (vD + (2 + (i >> 2) if isv else i & 1), SR(S_V if isv else S_KV), sKo, POL[OPT["polkv"]]), tag="k%d" % n)
        return
    if capped and OPT["cs"] >= 0 and CUR[0] > OPT["cs"] and a.cap is None:
        idx = [k for k, (t_, d_) in enumerate(a.vm) if t_ == "k%d" % (n - OPT["leads"])]
        if idx: a("s_cmp_eq_u32 s3, 0\ns_cbranch_scc1 L_ld%d\nRAW s_waitcnt vmcnt(%d)\nL_ld%d:" % (n, len(a.vm) - 1 - idx[0], n))
    a("s_add_u32 m0, s%d, %d\ns_mov_b32 s%d, %d" % (sKg, slot * SLOT + grp * 4096, sKo, tile * 16384 + grp * 4096))
    if capped: a.wait_vm_tag("k%d" % (n - LEAD))
    a("buffer_load_dwordx4 v%d, %s, s%d offen offset:%d%s lds" % (vD + q + (4 if grp >= 2 else 0), SR(S_KV), sKo, q * 1024, POL[OPT["polkv"]]), tag="k%d" % n)
def kv_upto(a, n, capped=True):
    while KVN[0] < min(n, 512): kv_one(a, capped)

def srds_first(a):
    a("s_waitcnt lgkmcnt(0)")
    srd(a, S_WQ, 86, 87, "%d" % (512 * 8192))
    a("s_add_u32 s80, s80, s62\ns_addc_u32 s81, s81, 0")
    srd(a, S_X, 80, 81, "147456")

def srds_rest(a):
    a("s_mul_i32 s%d, s%d, %d\ns_add_u32 s%d, s%d, 1024\ns_add_u32 s90, s92, s%d\ns_addc_u32 s91, s93, 0" % (sT, sG, OSTR, sT, sT, sT))
    srd(a, S_O, 90, 91, "%d" % (128 * 9216))
    if not OPT["kvc"]: a("s_cmp_eq_u32 s%d, 6\ns_cselect_b32 s82, s82, s84\ns_cselect_b32 s83, s83, s85" % sW)
    a("s_lshl_b32 s%d, s%d, 4\ns_add_u32 s%d, s%d, s%d" % (sT, sB, sT, sT, sJJ))
    if OPT["samekv"]: a("s_mov_b32 s%d, 0" % sT)
    a("s_lshl_b32 s%d, s%d, 19" % (sT, sT))
    a("s_add_u32 s82, s82, s%d\ns_addc_u32 s83, s83, 0" % sT)
    srd(a, S_KV, 82, 83, "524288")
    srd(a, S_WO, 88, 89, "%d" % (4096 * 1024))
    srd(a, S_OUT, 96, 97, "%d" % (8 * 144 * 1024 * 2))
    srd(a, S_DBG, 98, 99, "256")
    if OPT["kvc"]:
        a("s_add_u32 s84, s84, s%d\ns_addc_u32 s85, s85, 0" % sT)
        srd(a, S_V, 84, 85, "524288")
    a("s_lshl_b32 s%d, s%d, 8\ns_add_u32 s%d, s%d, 0x%x\ns_add_u32 s90, s92, s%d\ns_addc_u32 s91, s93, 0" % (sT, sG, sT, sT, FLAG_OFF, sT))
    srd(a, S_FL, 90, 91, "64")
    a("s_mov_b32 s100, s92\ns_mov_b32 s101, s93")
    if OPT["pair"]: a("s_and_b32 s%d, s%d, 1\ns_lshr_b32 s%d, s%d, 1" % (sKg, sW, sRho, sW))
    else: a("s_cmp_ge_u32 s%d, 3\ns_cselect_b32 s%d, 1, 0\ns_mul_i32 s%d, s%d, 3\ns_sub_u32 s%d, s%d, s%d" % (sW, sKg, sT, sKg, sRho, sW, sT))
    a("v_and_b32 v236, 31, v0\nv_lshlrev_b32 v236, 2, v236\nv_add_u32 v236, %d, v236\nv_mov_b32 v234, 0" % CNT)
    a("ds_write_b32 v236, v234")

def q_pack(a, b, scale):
    for r in range(0, 8, 2): a("v_pk_mul_f32 %s, %s, %s" % (vr(b + r, 2), vr(b + r, 2), scale))
    for r in range(4): a("v_cvt_pk_bf16_f32 v%d, v%d, v%d" % (b + r, b + 2 * r, b + 2 * r + 1))
def q_swap(a, b):
    a("v_permlane16_swap_b32 v%d, v%d\nv_permlane16_swap_b32 v%d, v%d" % (b, b + 2, b + 1, b + 3))

def loader_setup(a):
    vHW, vHX, vA1 = 224, 248, 231
    lanes(a)
    a("s_and_b32 s60, s%d, 3" % sW)
    a("v_and_b32 v%d, 3, v12\nv_lshlrev_b32 v%d, 4, v%d" % (vHX, vHX, vHX))
    a("v_lshl_add_u32 v%d, v13, 6, v%d" % (vHW, vHX))
    a("v_lshl_add_u32 v%d, v15, 8, v%d" % (vD, vHW))
    a("v_lshl_add_u32 v%d, v15, 13, v%d" % (vHW, vHW))
    a("s_lshl_b32 s%d, s60, 17\ns_lshl_b32 s%d, s%d, 9\ns_add_u32 s%d, s%d, s%d" % (sT, sT2, sJJ, sT, sT, sT2))
    a("v_add_u32 v%d, s%d, v%d" % (vHW, sT, vHW))
    a("v_add_u32 v%d, %d, v%d" % (vHW + 1, 31744, vHW))
    a("v_add_u32 v%d, %d, v%d\nv_xor_b32 v%d, 32, v%d" % (vHW + 2, 2 * 31744, vHW, vHW + 2, vHW + 2))
    a("v_add_u32 v%d, %d, v%d" % (vHW + 3, 31744, vHW + 2))
    a("s_lshl_b32 s63, s60, 12")
    a("s_mul_i32 s61, s60, 5\ns_min_u32 s61, s61, 14")
    a("v_and_b32 v%d, 1, v13\nv_lshl_add_u32 v4, v%d, 6, v%d" % (vA1, vA1, vHX))
    a("v_lshl_add_u32 v%d, v15, 10, v4" % vHX)
    a("v_lshrrev_b32 v%d, 5, v12\nv_lshl_add_u32 v8, v%d, 12, v%d" % (vA1, vA1, vHX))
    a("s_lshl_b32 s%d, s61, 13\ns_and_b32 s%d, s61, 1\ns_lshl_b32 s%d, s%d, 5" % (sT, sT2, sT2, sT2))
    a("v_add_u32 v%d, s%d, v8\nv_xor_b32 v%d, s%d, v%d" % (vHX, sT, vHX, sT2, vHX))
    a("v_add_u32 v%d, 7168, v%d\nv_xor_b32 v%d, 32, v%d" % (vHX + 1, vHX, vHX + 1, vHX + 1))
    a("v_add_u32 v%d, 14336, v%d\nv_add_u32 v%d, 14336, v%d" % (vHX + 2, vHX, vHX + 3, vHX + 1))
    a("v_add_u32 v%d, 32768, v%d" % (vHX + 4, vHX))
    a("s_lshl_b32 s61, s61, 10")

def stage_ops_(j, NX):
    vHW, vHX = 224, 248
    xb = HX[j % HD]; wb = HW[j % HD]
    o = []
    for qq in range(4):
        pre_ = "s_add_u32 s%d, s%d, %d\ns_and_b32 s%d, s%d, 7\ns_lshl_b32 s%d, s%d, 19\ns_add_u32 m0, s63, %d\n" % (sHk, sRot, j, sHk, sHk, sHo, sHk, wb) if qq == 0 else ""
        o.append(pre_ + "buffer_load_dwordx4 v%d, %s, s%d offen offset:%d%s lds" % (vHW + qq, SR(S_WQ), sHo, qq * 1024, POL[OPT["polw"]]))
    for e in range(NX):
        pre_ = "s_add_u32 m0, s61, %d\n" % (xb + 4096) if e == 4 else ("s_add_u32 m0, s61, %d\ns_lshl_b32 s%d, s%d, 7\n" % (xb, sHo, sHk) if e == 0 else "")
        o.append(pre_ + "buffer_load_dwordx4 v%d, %s, s%d offen offset:%d%s lds" % (vHX + e, SR(S_X), sHo, (e & 3) * 1024, POL[OPT["polx"]]))
    return [(x, "h%d" % j) for x in o]

def head(a, role):
    att = role != "X"; ldr = role != "A"
    NRT = 4 if ldr else 5; T0 = 5 if ldr else 0
    vHW, vHX = 224, 248
    vA1, vA2, vBx = 231, 232, 233
    cA1, cA2, cBx = 234, 235, 236
    ACC = lambda t, d: vr(16 + 8 * t + 4 * d, 4)
    BF = lambda u, t: vr(56 + 20 * u + 4 * t, 4)
    AF = lambda u, d: 96 + 8 * u + 4 * d
    NX = 5 if att else 4
    if not OPT["fast0"]: loader_setup(a)
    def stage_ops(j): return stage_ops_(j, NX) if ldr else []
    def stage_load(j):
        for x, t in stage_ops(j): a(x, tag=t)
    if not OPT["fast0"]:
        srds_first(a)
        stage_load(0)
    elif role == "B":
        x, t = stage_ops(0)[8]; a(x, tag=t)
    if OPT["pst"]: a("s_memrealtime s[70:71]")
    if role == "A" and OPT["ptouch"]:
        a("s_cmp_lg_u32 s%d, 0\ns_cbranch_scc1 L_nopt" % sW)
        a("s_lshl_b32 s%d, s%d, 4\ns_add_u32 s%d, s%d, s%d\ns_lshl_b32 s%d, s%d, 19" % (sT, sB, sT, sT, sJJ, sT, sT))
        a("v_mov_b32 v240, s%d" % sT)
        a.autowait = False
        a("global_load_dword v244, v240, s[82:83]\nglobal_load_dword v245, v240, s[84:85]")
        a("v_and_b32 v240, 1, v12\nv_lshlrev_b32 v241, 21, v240")
        a("global_load_dword v246, v241, s[88:89]\nglobal_load_dword v247, v241, s[96:97]")
        a("v_add_u32 v241, s%d, v240\nv_add_u32 v242, s%d, v240\nv_and_b32 v243, 2, v12\nv_cmp_eq_u32 vcc, 0, v243" % (sG, sGo))
        a("v_cndmask_b32 v241, v241, v242, vcc\ns_mov_b32 s%d, %d\nv_mul_lo_u32 v241, s%d, v241" % (sT, OSTR, sT))
        a("v_mov_b32 v242, 0x%x\nv_cmp_lt_u32 vcc, 3, v12\nv_cndmask_b32 v241, v241, v242, vcc" % (FLAG_OFF + 8192))
        a("global_load_dword v248, v241, s[92:93]")
        a.autowait = True
        a.label("L_nopt")
    srds_rest(a)
    a("v_and_b32 v%d, 3, v12\nv_lshlrev_b32 v%d, 3, v%d" % (vA1, vA1, vA1))
    a("v_lshl_add_u32 v%d, v15, 6, v%d" % (vA1, vA1))
    a("v_and_b32 v%d, 1, v13\nv_lshl_add_u32 v%d, v%d, 5, v%d" % (vA2, vA1, vA2, vA1))
    a("v_lshl_add_u32 v%d, v13, 10, v%d" % (vVa, vA1))
    a("v_lshl_add_u32 v%d, v13, 11, v%d" % (vA1, vA1))
    a("s_and_b32 s%d, s%d, 3\ns_lshl_b32 s%d, s%d, 8" % (sT, sW, sT, sT))
    a("v_add_u32 v%d, s%d, v%d\nv_xor_b32 v%d, 32, v%d" % (vA1, sT, vA1, vA2, vA1))
    a("v_lshrrev_b32 v%d, 3, v14\nv_lshlrev_b32 v%d, 1, v%d\nv_xor_b32 v%d, v%d, v13\nv_lshlrev_b32 v%d, 4, v%d" % (vBx, vBx, vBx, vBx, vBx, vBx, vBx))
    a("v_and_b32 v%d, 3, v14\nv_lshl_add_u32 v%d, v%d, 6, v%d" % (cBx, vBx, cBx, vBx))
    a("v_lshl_add_u32 v%d, v15, 9, v%d" % (vBx, vBx))
    if att:
        a("s_lshl_b32 s%d, s%d, 13\ns_add_u32 s%d, s%d, %d" % (sT, sKg, sT, sT, 2 * SLOT))
        a("v_add_u32 v%d, s%d, v%d\nv_add_u32 v%d, 16384, v%d\nv_xor_b32 v%d, 32, v%d" % (vVa, sT, vVa, vVa, vVa, vVb, vVa))
        a("v_lshlrev_b32 v%d, 10, v15" % vK)
        a("v_lshl_add_u32 v%d, v%d, 6, v%d" % (vK, cBx, vK))
        a("v_lshrrev_b32 v%d, 1, v13\nv_and_b32 v%d, 1, v13\nv_lshl_or_b32 v%d, v%d, 1, v%d" % (cA1, cA2, cA1, cA2, cA1))
        a("v_lshrrev_b32 v%d, 3, v14\nv_xor_b32 v%d, v%d, v%d" % (cA2, cA1, cA1, cA2))
        a("v_lshl_add_u32 v%d, v%d, 4, v%d\nv_add_u32 v%d, s%d, v%d" % (vK, cA1, vK, vK, sT, vK))
        for r in range(4): a("v_mov_b32 v%d, 0x3f803f80" % (vONE + r))
    else:
        a("s_cmp_eq_u32 s%d, 6" % sW)
        if OPT["kvc"]:
            a("s_cselect_b32 s60, 0, 32\ns_cselect_b32 s%d, 0, 1024" % sKg)
            a("v_xor_b32 v%d, 16, v%d\nv_xor_b32 v%d, s60, v%d\nv_xor_b32 v%d, 128, v%d" % (vD + 1, vD, vD + 2, vD, vD + 3, vD + 2))
        else:
            a("s_cselect_b32 s%d, 0, 32\ns_cselect_b32 s%d, 16, 0\ns_cselect_b32 s%d, 16, 32\ns_cselect_b32 s60, 0, 128\ns_cselect_b32 s%d, 0, 16384" % (sT, sT2, sT3, sKg))
            a("v_xor_b32 v%d, s%d, v%d\nv_xor_b32 v%d, s%d, v%d\nv_xor_b32 v%d, s%d, v%d" % (vD + 1, sT, vD, vD + 2, sT2, vD, vD + 3, sT3, vD))
            for q in range(4): a("v_xor_b32 v%d, s60, v%d" % (vD + 4 + q, vD + q))
        a("v_add_u32 v1, %d, v%d" % (XB[0], vBx))
    a("v_mov_b32 v238, %s\nv_mov_b32 v239, %s" % (f32(CSCALE), f32(CSCALE)))
    def reads(u):
        tr = lambda d: ["ds_read_b64_tr_b16 %s, v%d offset:%d" % (vr(AF(u, d) + 2 * rd, 2), cA2 if d else cA1, u * 8192 + rd * 1024) for rd in range(2)]
        return tr(0) + ["ds_read_b128 %s, v%d offset:%d" % (BF(u, t), cBx, (T0 + t) * 2048 + u * 256) for t in range(NRT)] + tr(1)
    def mfmas(u, first):
        return ["%s %s, %s, %s, %s" % (MF, ACC(t, d), vr(AF(u, d), 4), BF(u, t), "0" if first else ACC(t, d)) for d in range(2) for t in range(NRT)]
    if OPT["pst"]: a("s_memrealtime s[72:73]")
    stage_load(1)
    if OPT["pst"]: a("s_memrealtime s[74:75]")
    stamp(a, 1)
    def mix(ms, rs, ds=()):
        di = 0; ri = 0
        for k, x in enumerate(ms):
            a(x)
            for _ in range(2):
                if ri < len(rs): a(rs[ri]); ri += 1
            while di < len(ds) and di * len(ms) <= k * len(ds):
                a(ds[di][0], tag=ds[di][1]); di += 1
        for x, t in ds[di:]: a(x, tag=t)
    if ldr and OPT["hprio"]: a("s_setprio %d" % OPT["hprio"])
    for j in range(8):
        a.wait_vm_tag("h%d" % j)
        if OPT["pst"] and j == 0: a("s_memrealtime s[76:77]")
        a("v_add_u32 v%d, %d, v%d\nv_add_u32 v%d, %d, v%d\nv_add_u32 v%d, %d, v%d" % (cA1, HW[j % HD], vA1, cA2, HW[j % HD], vA2, cBx, HX[j % HD], vBx))
        a("s_waitcnt lgkmcnt(0)")
        a("s_barrier")
        if j < 7: stamp(a, j + 1, hs=True)
        d = stage_ops(j + HD - 1) if j + HD - 1 < 8 else []
        if j == 0 and HD == 4: d = stage_ops(2) + d
        cut = (len(d) + 1) // 2
        if j == 0:
            for x in reads(0): a(x)
            for x, t in d[:cut]: a(x, tag=t)
        else: mix(mfmas(1, False), reads(0), d[:cut])
        a("s_waitcnt lgkmcnt(0)")
        mix(mfmas(0, j == 0), reads(1), d[cut:])
        if not att and j == OPT["kv0"]: kv_upto(a, 16, False)
        if not att and j == 6:
            kv_upto(a, 16 + OPT["k1a"], False)
        if not att and j == 7:
            kv_upto(a, 16 + OPT["k1a"] + OPT["k1b"], False)
    for x in mfmas(1, False): a(x)
    a("s_and_b32 s60, s%d, 3\ns_lshl_b32 s60, s60, 10" % sW)
    a("v_lshlrev_b32 v%d, 4, v12\nv_add_u32 v%d, s60, v%d" % (cBx, cBx, cBx))
    a("v_add_u32 v%d, %d, v%d\nv_add_u32 v%d, %d, v%d" % (cA1, Q1A, cBx, cA2, Q1C, cBx))
    for t in range(NRT): q_pack(a, 16 + 8 * t, "v[238:239]")
    for t in range(NRT): q_swap(a, 16 + 8 * t)
    for t in range(NRT):
        tg = T0 + t
        a("ds_write_b128 v%d, %s offset:%d" % (cA1 if tg < 6 else cA2, vr(16 + 8 * t, 4), (tg if tg < 6 else tg - 6) * 4096))
    if ldr and OPT["hprio"]: a("s_setprio 0")
    a("s_waitcnt lgkmcnt(0)")
    a("s_barrier")
    if not att:
        kv_upto(a, 32, False)
    stamp(a, 2)

def ACC(t, d):
    i = t * 4 + d
    return 16 + 4 * i if i < 28 else 176 + 4 * (i - 28)

def pair_signal(a):
    a("s_add_u32 s%d, s%d, 1" % (sBar, sBar))
    a("v_mov_b32 v%d, s%d" % (vT, sBar))
    a("ds_write_b32 v%d, v%d" % (vX3, vT))

def pair_wait(a, name, reads):
    a.label(name)
    a("ds_read_b32 v%d, v%d" % (vT, vX4))
    for x in reads: a(x)
    a("s_waitcnt lgkmcnt(%d)" % len(reads))
    a("v_readfirstlane_b32 s%d, v%d" % (sT, vT))
    a("s_cmp_ge_u32 s%d, s%d" % (sT, sBar))
    a("s_cbranch_scc1 %s_ok" % name)
    a("s_waitcnt lgkmcnt(0)")
    if OPT["sbs"]: a("s_sleep %d" % OPT["sbs"])
    a("s_branch %s" % name)
    a.label(name + "_ok")
    a("s_waitcnt lgkmcnt(0)")

def publish(a, name, t0, off=4, last=5, bits=PH2, nw=0):
    a("s_waitcnt vmcnt(%d)" % nw)
    a("s_mov_b64 exec, 1")
    a("v_mov_b32 v%d, %d\nv_mov_b32 v%d, 1" % (t0 + 2, CNT, t0 + 1))
    a("ds_add_rtn_u32 v%d, v%d, v%d offset:%d" % (t0, t0 + 2, t0 + 1, off))
    a("ds_read_b32 v%d, v%d offset:8" % (t0 + 1, t0 + 2))
    a("s_waitcnt lgkmcnt(0)")
    a("v_readfirstlane_b32 s%d, v%d" % (sT, t0))
    a("s_cmp_lg_u32 s%d, %d" % (sT, last))
    a("s_cbranch_scc1 %s" % name)
    a("v_or_b32 v%d, 0x%x, v%d" % (t0 + 1, bits, t0 + 1))
    a("s_lshl_b32 s%d, s%d, 2" % (sT2, sJJ))
    a("v_mov_b32 v%d, s%d" % (t0, sT2))
    a("buffer_store_dword v%d, v%d, %s, 0 offen%s" % (t0 + 1, t0, SR(S_FL), POL[OPT["polf"]] if bits == PH2 else " sc1"))
    if OPT["stamps"]:
        a("s_memrealtime s[88:89]\ns_add_u32 s96, s100, 0x%x\ns_addc_u32 s97, s101, 0\ns_mov_b32 s98, 0x100000\ns_mov_b32 s99, 0x20000" % (STAMP_OFF + 512 * 64))
        a("s_lshl_b32 s%d, s2, 6\ns_waitcnt lgkmcnt(0)\nv_mov_b32 v%d, s%d\nv_mov_b32 v%d, s88\nv_mov_b32 v%d, s89" % (sT, t0 + 3, sT, t0, t0 + 1))
        a("buffer_store_dwordx2 %s, v%d, s[96:99], 0 offen offset:%d" % (vr(t0, 2), t0 + 3, 0 if bits == PH2 else 8))
    a.label(name)
    a("s_mov_b64 exec, -1")

def attention(a):
    NT = 3; TL = 2
    a("s_waitcnt vmcnt(0)")
    a("v_lshlrev_b32 v%d, 4, v12" % vX1)
    a("s_mul_i32 s%d, s%d, %d\ns_add_u32 s%d, s%d, %d" % (sT, sRho, 12 * KB, sT, sT, Q1A))
    a("s_cmp_eq_u32 s%d, 2\ns_cselect_b32 s%d, %d, s%d" % (sRho, sT, Q1C, sT))
    a("v_add_u32 v%d, s%d, v%d" % (vX2, sT, vX1))
    for t in range(3):
        for s in range(4): a("ds_read_b128 %s, v%d offset:%d" % (Q(t, s), vX2, t * 4096 + s * 1024))
    if OPT["pair"]: a("s_xor_b32 s%d, s%d, 1" % (sPart, sW))
    else: a("s_add_u32 s%d, s%d, 3\ns_cmp_ge_u32 s%d, 6\ns_cselect_b32 s%d, 6, 0\ns_sub_u32 s%d, s%d, s%d" % (sPart, sW, sPart, sT2, sPart, sPart, sT2))
    a("s_lshl_b32 s%d, s%d, 2\ns_add_u32 s%d, s%d, %d\ns_lshl_b32 s%d, s%d, 2\ns_add_u32 s%d, s%d, %d" % (sT, sW, sT, sT, PFL, sT2, sPart, sT2, sT2, PFL))
    a("v_mov_b32 v%d, s%d\nv_mov_b32 v%d, s%d" % (vX3, sT, vX4, sT2))
    a("s_mov_b32 s%d, 0x40004000\ns_mov_b32 s%d, %s" % (sThr, sFl, f32(THR)))
    a("s_mov_b32 s%d, 0\ns_mov_b32 s%d, 0\ns_mov_b32 s%d, 2\ns_mov_b32 s%d, %d" % (sItem, sBar, sSlot, sExS, EX1))
    a("s_mul_i32 s%d, s%d, %d\ns_add_u32 s%d, s%d, %d" % (sExch, sRho, 12 * KB, sExch, sExch, Q2B))
    a("s_mov_b32 s%d, 0x%x\ns_mov_b32 s%d, %d" % (sNeg, (-2 * SLOT) & 0xffffffff, sPos, SLOT))
    a("s_lshl_b32 s%d, s%d, 3\ns_lshl_b32 s%d, s%d, 1\ns_add_u32 s%d, s%d, s%d\ns_mul_i32 s%d, s%d, 9" % (sT, sJJ, sT2, sKg, sT, sT, sT2, sT, sT))
    a("s_mul_i32 s%d, s%d, 3\ns_add_u32 s%d, s%d, s%d\ns_lshl_b32 s%d, s%d, 10\ns_add_u32 s%d, s%d, %d" % (sT2, sRho, sT, sT, sT2, sOoff, sT, sOoff, sOoff, 36 * KB))
    cstamp(a, 0)
    a.label("L_item")
    if OPT["ypr"] == 1: a("s_setprio 0")
    if OPT["ypr"] == 2: a("s_setprio 1")
    a("s_mov_b32 s%d, 0" % sCnt)
    a("s_waitcnt lgkmcnt(0)")
    Ga, Gb, Gc = 0, 4, 8
    def kread(kt, s):
        slot = (Gc + s) if kt == 0 else (Gb + s)
        return "ds_read_b128 %s, v%d offset:%d" % (vr(F(slot), 4), vK, kt * 4096 + s * 256)
    def vslot(dt): return (Ga + dt) if dt < 4 else (Gb + dt - 4)
    def vread(dt, rd):
        return "ds_read_b64_tr_b16 %s, v%d offset:%d" % (vr(F(vslot(dt)) + 2 * rd, 2), vVb if dt & 1 else vVa, rd * 4096 + (dt >> 1) * 256)
    def pv(t, dt, z=False): return "%s %s, %s, %s, %s" % (MF, O(t, dt), vr(F(vslot(dt)), 4), S(t, 0), "0" if z else O(t, dt))
    def lsum(t, z=False): return "%s %s, %s, %s, %s" % (MF, L(t), vr(vONE, 4), S(t, 0), "0" if z else L(t))
    def qk(t, kt, s, z=False):
        slot = (Gc + s) if kt == 0 else (Gb + s)
        return "%s %s, %s, %s, %s" % (MF, S(t, kt), vr(F(slot), 4), Q(t, s), ("0" if z else M(t)) if s == 0 else S(t, kt))
    EXP = lambda r: "v_exp_f32 v%d, v%d" % (r, r)
    def CVT(b, r): return "v_cvt_pk_bf16_f32 v%d, v%d, v%d" % (b + r, b + 2 * r, b + 2 * r + 1)
    def rowmax(b):
        return ["v_max3_f32 v%d, v%d, v%d, v%d" % (vT, b, b + 1, b + 2), "v_max3_f32 v%d, v%d, v%d, v%d" % (vT + 1, b + 3, b + 4, b + 5),
                "v_max3_f32 v%d, v%d, v%d, v%d" % (vT, vT, b + 6, b + 7), "v_max_f32 v%d, v%d, v%d" % (vT, vT, vT + 1),
                "v_mov_b32 v%d, v%d" % (vT + 1, vT), "v_permlane16_swap_b32 v%d, v%d" % (vT, vT + 1), "v_max_f32 v%d, v%d, v%d" % (vT, vT, vT + 1),
                "v_mov_b32 v%d, v%d" % (vT + 1, vT), "v_permlane32_swap_b32 v%d, v%d" % (vT, vT + 1), "v_max_f32 v%d, v%d, v%d" % (vT, vT, vT + 1)]
    def sm(t):
        b = vS + 8 * t
        g = [[EXP(b + r)] for r in range(4)] + [[CVT(b, 0), CVT(b, 1)]] + [[EXP(b + r)] for r in range(4, 8)] + [[CVT(b, 2), CVT(b, 3)]]
        g.append(["v_or3_b32 v%d, v%d, v%d, v%d" % (b + 4, b, b + 1, b + 2), "v_bitop3_b32 v%d, v%d, v%d, s%d bitop3:0xa8" % (b + 4, b + 4, b + 3, sThr)])
        g.append(["v_cmp_ne_u32 vcc, 0, v%d" % (b + 4)])
        return g
    def step(first):
        mf = []; fill = {}
        def put(idx, ops): fill.setdefault(idx, []).extend(ops)
        if not first: mf += [pv(TL, dt) for dt in (4, 5, 6, 7)] + [pv(TL, dt) for dt in (0, 1, 2, 3)] + [lsum(TL)]
        q0 = len(mf)
        qk_end = {}
        for t in range(NT):
            for kt in ((0, 1) if t < TL else (1, 0)):
                mf += [qk(t, kt, s, first) for s in range(4)]
                if t == TL and kt == 1: v47_at = len(mf) - 1
            qk_end[t] = len(mf) - 1
        pv_start = {}
        for t in range(TL):
            pv_start[t] = len(mf)
            mf += [pv(t, dt, first) for dt in range(4)] + [lsum(t, first)] + [pv(t, dt, first) for dt in range(4, 8)]
        n = len(mf)
        pre = [kread(0, s) for s in range(4)]
        if first:
            pre += [kread(1, s) for s in range(4)] + [vread(dt, rd) for dt in range(4) for rd in range(2)]
            pre += ["v_mov_b64 %s, 0" % vr(r, 2) for r in list(range(vO + 64, vO + 96, 2)) + [vL + 8, vL + 10]]
            pre += ["WAIT " + vr(F(Gc), 16)]
        else:
            for s in range(4): put(s, [kread(1, s)])
            for dt in range(4): put(4 + dt, [vread(dt, 0), vread(dt, 1)])
            put(8, ["WAIT " + vr(F(Gc), 16)])
        put(q0 + 3, ["WAIT " + vr(F(Gb), 16), "s_add_u32 s%d, s%d, 1" % (sSlot, sSlot)])
        put(q0 + 4, ["s_cmp_eq_u32 s%d, 3" % sSlot, "s_cselect_b32 s%d, s%d, s%d" % (sDelta, sNeg, sPos)])
        put(q0 + 5, ["s_cselect_b32 s%d, 0, s%d" % (sSlot, sSlot), "s_add_u32 s%d, s%d, 1" % (sCnt, sCnt)])
        for dt in range(4, 8): put(v47_at - 3 + (dt - 4), [vread(dt, 0), vread(dt, 1)])
        adv = ["v_add_u32 v%d, s%d, v%d" % (r, sDelta, r) for r in (vK, vVa, vVb)]
        tail = []
        if first:
            for t in range(NT):
                b = vS + 8 * t
                ops = rowmax(b) + ["v_add_f32 v%d, s%d, v%d" % (vT, sFl, vT)]
                ops += ["v_sub_f32 v%d, v%d, v%d" % (b + r, b + r, vT) for r in range(8)]
                ops += ["v_sub_f32 v%d, 0, v%d" % (vM + 4 * t + r, vT) for r in range(4)]
                ops += [EXP(b + r) for r in range(8)] + [CVT(b, r) for r in range(4)]
                lo = max(qk_end[t] + 3, [0, 21, 32][t]); hi = [20, 31, n - 1][t]
                for k, x in enumerate(ops): put(lo + k * (hi - lo + 1) // len(ops), [x])
            tail = adv
        else:
            groups = [(t, g) for t in range(NT) for g in sm(t)]
            lo = OPT["g0"]; span = n - lo
            for k, (t, g) in enumerate(groups):
                idx = lo + (k * span) // len(groups)
                assert t == TL or idx + 1 < pv_start[t], (t, idx)
                put(idx, g)
                if k % 12 == 11:
                    br = "s_cbranch_vccnz L_rare%d\nL_back%d:" % (t, t)
                    if t == 0: put(idx, [adv[0]])
                    if t == 1: put(idx, [adv[1]])
                    if t < TL: fill.setdefault(idx + 1, []).insert(0, br)
                    else: tail = [adv[2], "s_cmp_lt_u32 s%d, 16" % sCnt, br]
        put(pv_start[0] - 1, ["WAIT " + vr(F(Ga), 16)])
        put(pv_start[0] + 4, ["WAIT " + vr(F(Gb), 16)])
        a("s_barrier")
        if first and OPT["bst"] == 0:
            a("s_cmp_lg_u32 s%d, 1\ns_cbranch_scc1 L_bsx\ns_memrealtime s[76:77]\nL_bsx:" % sItem)
        for x in pre: a(x)
        for k, m in enumerate(mf):
            a(m)
            for x in fill.get(k, []): a(x)
        if not first:
            for _ in range(OPT["xmf"]): a("%s %s, %s, %s, %s" % (MF, vr(vT, 4), vr(F(0), 4), S(1, 0), vr(vT, 4) if _ else "0"))
        for x in tail: a(x)
    step(True)
    a.raw(".p2align 6")
    a.label("L_loop")
    step(False)
    a("s_cbranch_scc1 L_loop")
    a.label("L_bnd")
    if OPT["ypr"] == 1: a("s_cmp_lt_u32 s%d, 4\ns_cbranch_scc1 L_ypr\ns_setprio 1\nL_ypr:" % sW)
    if OPT["stamps"]:
        a("s_cmp_eq_u32 s%d, 0\ns_cbranch_scc0 L_st4" % sItem)
        stamp(a, 3); cstamp(a, 1)
        a("s_branch L_st4b")
        a.label("L_st4"); stamp(a, 4)
        a.label("L_st4b")
    if OPT["ypr"] == 2: a("s_setprio 0")
    bstamp(a, 1)
    a("s_cmp_eq_u32 s%d, 0" % sItem)
    a("s_cbranch_scc0 L_nomx")
    if OPT["mxf"]:
        a("s_mov_b64 exec, 1")
        a("v_mov_b32 v%d, %d\nv_mov_b32 v%d, 1" % (vT + 2, CNT, vT + 1))
        a("ds_add_u32 v%d, v%d offset:20" % (vT + 2, vT + 1))
        a.label("L_q2w")
        a("ds_read_b32 v%d, v%d offset:24" % (vT, vT + 2))
        a("s_waitcnt lgkmcnt(0)")
        a("v_readfirstlane_b32 s%d, v%d" % (sT, vT))
        a("s_cmp_lt_u32 s%d, 2\ns_cbranch_scc1 L_q2w" % sT)
        a("s_mov_b64 exec, -1")
    else:
        a("s_barrier")
    a("v_add_u32 v%d, s%d, v%d" % (vX2, sExch, vX1))
    for t in range(0 if OPT["abl"] & 1 else 3):
        for s in range(4): a("ds_read_b128 %s, v%d offset:%d" % (Q(t, s), vX2, t * 4096 + s * 1024))
    pair_signal(a)
    a.label("L_nomx")
    bstamp(a, 2)
    a("s_lshl_b32 s%d, s%d, 12\ns_add_u32 s%d, s%d, s%d" % (sT, sW, sT, sT, sExS))
    a("v_add_u32 v%d, s%d, v%d" % (vX2, sT, vX1))
    def send(t, areg, off):
        o = []
        for h in range(2):
            b = vO + 32 * t + 16 + 8 * h
            o += ["v_cvt_pk_bf16_f32 v%d, v%d, v%d" % (b + r, b + 2 * r, b + 2 * r + 1) for r in range(4)]
            o.append("ds_write_b128 v%d, %s offset:%d" % (areg, vr(b, 4), off + h * 1024))
        return o
    fin = [lsum(TL)] + [pv(TL, dt) for dt in (4, 5, 6, 7, 0, 1, 2, 3)]
    ex = send(0, vX2, 0) + send(1, vX2, 2048)
    for k, m in enumerate(fin):
        a(m)
        for x in ex[k * len(ex) // 9:(k + 1) * len(ex) // 9]: a(x)
    a("v_and_b32 v%d, 15, v0\nv_lshlrev_b32 v%d, 3, v%d" % (vT + 2, vT + 2, vT + 2))
    a("s_mul_i32 s%d, s%d, 384\ns_add_u32 s%d, s%d, %d" % (sT, sW, sT, sT, MLB))
    a("v_add_u32 v%d, s%d, v%d" % (vT + 3, sT, vT + 2))
    for t in range(3):
        a("v_mov_b32 v%d, v%d" % (vM + 4 * t + 1, vL + 4 * t))
        a("ds_write_b64 v%d, %s offset:%d" % (vT + 3, vr(vM + 4 * t, 2), t * 128))
    a("s_lshl_b32 s%d, s%d, 11\ns_add_u32 s%d, s%d, s%d" % (sT, sKg, sT, sT, sExch))
    a("v_add_u32 v%d, s%d, v%d" % (vX2, sT, vX1))
    a("s_waitcnt lgkmcnt(0)")
    pair_wait(a, "L_pw0", [])
    bstamp(a, 3)
    for x in send(2, vX2, 0): a(x)
    pair_signal(a)
    a("s_mul_i32 s%d, s%d, 384\ns_add_u32 s%d, s%d, %d" % (sT2, sPart, sT2, sT2, MLB))
    a("v_add_u32 v%d, s%d, v%d" % (vT + 3, sT2, vT + 2))
    a("v_xor_b32 v%d, 2048, v%d" % (vX2, vX2))
    a("s_lshl_b32 s%d, s%d, 12\ns_add_u32 s%d, s%d, s%d" % (sT, sPart, sT, sT, sExS))
    a("v_add_u32 v%d, s%d, v%d" % (vT + 2, sT, vX1))
    a("s_waitcnt lgkmcnt(0)")
    rd = ["ds_read_b64 %s, v%d offset:%d" % (vr(vM + 4 * t + 2, 2), vT + 3, t * 128) for t in range(3)]
    for t in range(3):
        for h in range(2):
            rd.append("ds_read_b128 %s, v%d offset:%d" % (vr(vS + 8 * t + 4 * h, 4), vT + 2 if t < 2 else vX2, (t * 2048 if t < 2 else 0) + h * 1024))
    pair_wait(a, "L_pw", rd)
    bstamp(a, 4)
    for t in range(3):
        m = vM + 4 * t; l = vL + 4 * t
        a("v_min_f32 v%d, v%d, v%d" % (l, m, m + 2))
        a("v_sub_f32 v%d, v%d, v%d\nv_sub_f32 v%d, v%d, v%d" % (l + 1, l, m, l + 2, l, m + 2))
        a("v_exp_f32 v%d, v%d\nv_exp_f32 v%d, v%d" % (l + 1, l + 1, l + 2, l + 2))
        a("v_mul_f32 v%d, v%d, v%d" % (l + 3, l + 1, m + 1))
        a("v_fma_f32 v%d, v%d, v%d, v%d" % (l + 3, l + 2, m + 3, l + 3))
        a("v_rcp_f32 v%d, v%d" % (l, l + 3))
        a("v_mul_f32 v%d, v%d, v%d\nv_mul_f32 v%d, v%d, v%d" % (l + 3, l + 2, l, l + 2, l + 2, l))
        a("v_mul_f32 v%d, v%d, v%d\nv_mov_b32 v%d, v%d" % (l + 1, l + 1, l, l, l + 1))
    def combine(out):
        for t in range(3):
            l = vL + 4 * t
            for h in range(2):
                b = vO + 32 * t + 8 * h; u = b + 16; pk = vS + 8 * t + 4 * h
                for r in range(4):
                    a("v_lshlrev_b32 v%d, 16, v%d\nv_and_b32 v%d, 0xffff0000, v%d" % (u + 2 * r, pk + r, u + 2 * r + 1, pk + r))
                for r in range(0, 8, 2): a("v_pk_mul_f32 %s, %s, %s" % (vr(b + r, 2), vr(b + r, 2), vr(l, 2)))
                for r in range(0, 8, 2): a("v_pk_fma_f32 %s, %s, %s, %s" % (vr(b + r, 2), vr(u + r, 2), vr(l + 2, 2), vr(b + r, 2)))
                for r in range(4): a("v_cvt_pk_bf16_f32 v%d, v%d, v%d" % (pk + r, b + 2 * r, b + 2 * r + 1))
                out(t, h, pk)
    a("s_cmp_eq_u32 s%d, 0" % sItem)
    a("s_cbranch_scc0 L_att_done")
    combine(lambda t, h, pk: a("ds_write_b128 v%d, %s offset:%d" % (vT + 2 if t < 2 else vX2, vr(pk, 4), (t * 2048 if t < 2 else 0) + h * 1024)))
    bstamp(a, 5)
    a("s_mov_b32 s%d, 1\ns_lshl_b32 s%d, s%d, 12\ns_add_u32 s%d, s%d, %d" % (sItem, sExch, sRho, sExch, sExch, EX2))
    a("s_mov_b32 s%d, %d" % (sExS, EX1B))
    a("s_waitcnt lgkmcnt(0)")
    a("s_branch L_item")
    a.vm = []; a.lgkm = []
    for t in range(NT):
        b = vS + 8 * t
        a.label("L_rare%d" % t)
        a("s_nop 15")
        a("v_subrev_u32 v%d, s%d, v%d" % (vX2, sDelta, vK))
        for kt in range(2):
            for s in range(4):
                a("ds_read_b128 %s, v%d offset:%d" % (vr(vT, 4), vX2, kt * 4096 + s * 256))
                a("s_waitcnt lgkmcnt(0)")
                a("%s %s, %s, %s, %s" % (MF, S(t, kt), vr(vT, 4), Q(t, s), M(t) if s == 0 else S(t, kt)))
                a("s_nop 3")
        for x in rowmax(b): a(x)
        a("v_add_f32 v%d, s%d, v%d\nv_max_f32 v%d, 0, v%d" % (vT, sFl, vT, vT, vT))
        for r in range(8): a("v_sub_f32 v%d, v%d, v%d" % (b + r, b + r, vT))
        for r in range(4): a("v_sub_f32 v%d, v%d, v%d" % (vM + 4 * t + r, vM + 4 * t + r, vT))
        a("v_exp_f32 v%d, -v%d" % (vT + 1, vT))
        for r in range(4): a("v_mul_f32 v%d, v%d, v%d" % (vL + 4 * t + r, vL + 4 * t + r, vT + 1))
        for r in range(32): a("v_mul_f32 v%d, v%d, v%d" % (vO + 32 * t + r, vO + 32 * t + r, vT + 1))
        for r in range(8): a(EXP(b + r))
        for r in range(4): a(CVT(b, r))
        a("s_nop 3")
        a("s_branch L_back%d" % t)
    a.label("L_att_done")
    a("s_mov_b64 exec, 1")
    a("v_mov_b32 v%d, %d\nv_mov_b32 v%d, 1" % (vT + 2, CNT, vT + 1))
    a("ds_add_u32 v%d, v%d" % (vT + 2, vT + 1))
    a("s_mov_b64 exec, -1")
    combine(lambda t, h, pk: a("s_add_u32 s%d, s%d, %d\nbuffer_store_dwordx4 %s, v%d, %s, s%d offen%s" % (sT, sOoff, (h * 9 + t) * 1024, vr(pk, 4), vX1, SR(S_O), sT, POL[OPT["pols2"]])))
    bstamp(a, 5)
    a("s_cmp_lt_u32 s%d, 2" % sW)
    a("s_cbranch_scc1 L_join")
    publish(a, "L_pub_x", vT)
    a("s_endpgm")
    a.label("L_join")
    a("s_lshl_b32 s%d, s%d, 14" % (sBlkP, sW))
    a("s_mov_b32 s%d, %d" % (sBlkD, 32 * KB))
    op_setup(a, True)
    if not OPT["latep"]:
        for i in range(36): a("v_mov_b64 %s, 0\nv_mov_b64 %s, 0" % (vr(ACC(i // 4, i % 4), 2), vr(ACC(i // 4, i % 4) + 2, 2)))
        publish(a, "L_pub_y", 250)
        stamp(a, 5)
    a("v_mov_b32 v250, %d" % CNT)
    a.label("L_w6")
    a("ds_read_b32 v251, v250")
    a("ds_read_b32 v252, v250 offset:8")
    a("s_waitcnt lgkmcnt(0)")
    a("v_readfirstlane_b32 s%d, v251\nv_readfirstlane_b32 s%d, v252" % (sT, sTag))
    a("s_cmp_lt_u32 s%d, 6\ns_cbranch_scc1 L_w6" % sT)
    a("s_or_b32 s%d, s%d, 0x%x" % (sWant, sTag, PHM))
    a("s_branch L_p2")
    a.vm = []; a.lgkm = []

def wo_touch(a, phase, i):
    a("s_lshr_b32 s%d, s%d, 1\ns_and_b32 s%d, s%d, 12\ns_add_u32 s%d, s%d, s%d\ns_lshl_b32 s%d, s%d, 18" % (sT, sB, sT2, sJJ, sT, sT, sT2, sT, sT))
    a("s_and_b32 s%d, s%d, 1\ns_lshl_b32 s%d, s%d, 16\ns_add_u32 s%d, s%d, s%d" % (sT2, sB, sT2, sT2, sT, sT, sT2))
    a("s_and_b32 s%d, s%d, 3\ns_lshl_b32 s%d, s%d, 14\ns_add_u32 s%d, s%d, s%d" % (sT2, sJJ, sT2, sT2, sT, sT, sT2))
    a("s_and_b32 s%d, s%d, 1\ns_lshl_b32 s%d, s%d, 13\ns_add_u32 s%d, s%d, s%d" % (sT2, sW, sT2, sT2, sT, sT, sT2))
    a("s_add_u32 s%d, s%d, %d" % (sT2, sT, phase * 131072))
    a.autowait = False
    a("buffer_load_dword v147, v146, %s, s%d offen" % (SR(S_WO), sT2), tag="x")
    a.autowait = True

LIM = [0]
def aux_step(a, step, pre=None, extra=None):
    if step < 32:
        a.wait_vm_tag("k%d" % (16 * step + 15))
        a("s_barrier")
    else:
        a("s_lshl_b32 s%d, s%d, 2\ns_add_u32 s%d, s%d, %d\nv_mov_b32 v%d, s%d\nv_mov_b32 v%d, %d" % (sT, sW, sT, sT, PFL, vA_, sT, vB_, step))
        a("ds_write_b32 v%d, v%d\nv_xor_b32 v%d, 4, v%d" % (vA_, vB_, vA_, vA_))
        a.label("L_ax%d" % step)
        a("ds_read_b32 v%d, v%d\ns_waitcnt lgkmcnt(0)\nv_readfirstlane_b32 s%d, v%d" % (vB_, vA_, sT, vB_))
        a("s_cmp_lt_u32 s%d, %d\ns_cbranch_scc1 L_ax%d" % (sT, step, step))
    if step == 31: stamp(a, 3)
    if step == OPT["fts"] and OPT["tpr"]: a("s_setprio %d" % OPT["tpr"])
    if step == OPT["cs"]:
        a("s_and_b32 s%d, s%d, 3\nv_and_b32 v152, 3, v12\nv_lshlrev_b32 v152, 2, v152\nv_add_u32 v152, s%d, v152\nv_lshlrev_b32 v152, %d, v152" % (sT, sJJ, sT, FS))
        a("buffer_load_dword v153, v152, %s, 0 offen sc1" % SR(S_FL), tag="pg")
    if OPT["cs"] >= 0 and step == OPT["cs"] + 1:
        a("v_or_b32 v153, 0x%x, v153\nv_cmp_ne_u32 vcc, s%d, v153\ns_nop 1\ns_cmp_lg_u64 vcc, 0\ns_cselect_b32 s3, 1, 0" % (PHM, sWant))
    CUR[0] = step
    LIM[0] = 16 * (step + 2) + (16 if step in (15,) else (OPT["pp2"] if step >= OPT["ls0"] else OPT["pp"]))
    kv_upto(a, min(LIM[0], KVN[0] + OPT["f0"]))
    if OPT["sst"] >= 0 and step >= OPT["sst"] and (step - OPT["sst"]) % OPT["sstd"] == 0 and (step - OPT["sst"]) // OPT["sstd"] < 6:
        k_ = 1 + (step - OPT["sst"]) // OPT["sstd"]
        a("s_memrealtime s[%d:%d]" % (64 + 2 * k_, 65 + 2 * k_))
    if OPT["ck"] and step in (1, 8, 15, 31):
        k_ = (1, 8, 15, 31).index(step)
        a("s_memrealtime s[%d:%d]\ns_memtime s[%d:%d]" % (64 + 4 * k_, 65 + 4 * k_, 66 + 4 * k_, 67 + 4 * k_))
    for ph in (0, 1):
        lst = [int(x) for x in OPT["tw%d" % ph].split(",") if x]
        for i, st_ in enumerate(lst):
            if st_ == step: wo_touch(a, ph, i)
    if OPT["bal"] and OPT["bal0"] - 3 <= step <= OPT["bal1"]:
        BN = "L_bal%d" % step
        a("s_lshl_b32 s%d, s%d, 8\ns_add_u32 s%d, s%d, s2\ns_sub_u32 s%d, s%d, 1536\ns_cmp_ge_u32 s%d, 8\ns_cbranch_scc1 %s" % (sT, sW, sT, sT, sT, sT, sT, BN))
        a("s_lshl_b32 s%d, s%d, 4\nv_mov_b32 v150, s%d\nv_mov_b32 v151, %d" % (sT, sT, sT, step))
        a("RAW buffer_store_dword v151, v150, %s, 0 offen offset:4 sc1" % SR(S_DBG))
        a.label(BN)
        if step >= OPT["bal0"] and (step - OPT["bal0"]) % OPT["balp"] == 0:
            a.wait_vm_tag("pg")
            a("v_cmp_gt_u32 vcc, %d, v149\ns_nop 1\ns_cmp_lg_u64 vcc, 0\ns_cselect_b32 s3, 1, 0" % max(0, step - OPT["bal"]))
        if step + 1 >= OPT["bal0"] and (step + 1 - OPT["bal0"]) % OPT["balp"] == 0 and step < OPT["bal1"]:
            a("buffer_load_dword v149, v148, %s, 0 offen offset:4 sc1" % SR(S_DBG), tag="pg")
    if pre: pre()
    kv_upto(a, LIM[0])
    if step == OPT["pfm"]:
        a("s_lshl_b32 s%d, s%d, 4\ns_add_u32 s%d, s%d, s%d\ns_lshl_b32 s%d, s%d, 1\ns_and_b32 s%d, s%d, 1\ns_add_u32 s%d, s%d, s%d\ns_lshl_b32 s%d, s%d, 14" % (sT, sB, sT, sT, sJJ, sT, sT, sT2, sW, sT, sT, sT2, sT, sT))
        a.autowait = False
        a("buffer_load_dword v147, v146, %s, s%d offen" % (SR(S_WO), sT), tag="x")
        a("s_add_u32 s%d, s%d, 8192" % (sT, sT))
        a("buffer_load_dword v147, v146, %s, s%d offen" % (SR(S_WO), sT), tag="x")
        a.autowait = True
    if extra: extra()

def aux(a):
    if OPT["bal"]: a("s_mov_b32 s3, 0\nv_and_b32 v148, 7, v12\nv_lshlrev_b32 v148, 4, v148")
    if OPT["auxprio"]: a("s_setprio %d" % OPT["auxprio"])
    a("v_lshlrev_b32 v%d, 2, v14\nv_lshlrev_b32 v146, 7, v12" % vFo)
    a("s_lshl_b32 s%d, s%d, 4\nv_mov_b32 v%d, s%d" % (sT, sG, vDg, sT))
    BF = lambda t: vr(208 + 4 * t, 4)
    AF = lambda d: 156 + 4 * d
    sW2, sXq = 58, 61
    a("s_and_b32 s%d, s%d, 1" % (sT3, sW))
    a("v_lshrrev_b32 v9, 5, v12\nv_lshl_add_u32 v4, v15, 13, v4\nv_lshl_add_u32 v4, v9, 15, v4")
    a("s_lshl_b32 s%d, s%d, 9\ns_lshl_b32 s%d, s%d, 7\ns_add_u32 s%d, s%d, s%d\ns_add_u32 s%d, s%d, 256" % (sT, sJJ, sT2, sT3, sT, sT, sT2, sT, sT))
    a("v_add_u32 v4, s%d, v4" % sT)
    a("v_add_u32 v5, 64512, v4\nv_xor_b32 v5, 32, v5\nv_add_u32 v6, 129024, v4\nv_add_u32 v7, 129024, v5")
    a("s_mul_i32 s%d, s%d, %d\ns_add_u32 s%d, s%d, %d" % (sW2, sT3, 12 * KB, sW2, sW2, W2R))
    a("v_add_u32 v2, s%d, v2\nv_xor_b32 v3, 32, v2" % sW2)
    a("s_lshl_b32 s%d, s%d, 5\nv_xor_b32 v8, s%d, v8\nv_xor_b32 v9, 32, v8" % (sT, sT3, sT))
    a("s_mul_i32 s%d, s%d, 9" % (sXq, sT3))
    a("v_mov_b32 v10, %s\nv_mov_b32 v11, %s" % (f32(CSCALE), f32(CSCALE)))
    def chunk(m): a("s_add_u32 s%d, s%d, %d\ns_and_b32 s%d, s%d, 7" % (sT3, sRot, (6 + m) & 7, sT3, sT3))
    PH = [0]
    OB = {}
    def hd(i):
        a("s_add_u32 s%d, s%d, %d\ns_and_b32 s%d, s%d, 3\ns_and_b32 s%d, s%d, 12\ns_add_u32 s%d, s%d, s%d\ns_lshl_b32 s%d, s%d, 3" % (sT3, sJJ, i, sT3, sT3, sT2, sJJ, sT3, sT3, sT2, sT3, sT3))
    def wo_load(n):
        hd(n // 4)
        a("s_lshl_b32 s%d, s%d, 15\ns_add_u32 s%d, s%d, %d\ns_add_u32 m0, s%d, %d" % (sT2, sT3, sT2, sT2, (n & 3) << 15, sW2, (n % 3) * 4096))
        for q in range(4):
            a("buffer_load_dwordx4 v%d, %s, s%d offen offset:%d%s lds" % (4 + q, SR(S_WO), sT2, q * 1024, POL[OPT["polwo"]]), tag="q%d" % n)
    def o_load(m):
        if OPT["abl"] & (2 | 8 | 32): return
        hd(m // 2)
        a("s_and_b32 s%d, s%d, 1\ns_add_u32 s%d, s%d, s%d\ns_add_u32 s%d, s%d, %d\ns_mul_i32 s%d, s%d, 9216\ns_mul_i32 s63, s%d, 9216" % (sT2, sW, sT3, sT3, sT2, sT3, sT3, 2 * (m & 1), sT3, sT3, sT2))
        if OPT["xo"] & 1: a("s_mov_b32 s%d, 0" % sT3)
        for e in range(9):
            if e % 4 == 0: a("s_add_u32 m0, s63, %d\ns_add_u32 s%d, s%d, %d" % (OB[m] + e * 1024, sT2, sT3, e * 1024))
            a("buffer_load_dwordx4 v8, %s, s%d offen offset:%d%s lds" % (SR(S_O), sT2, (e & 3) * 1024, POL[OPT["polo"]]), tag="x%d" % m)
    def w2_load(n):
        if OPT["abl"] & ((2 | 16) if PH[0] else 1): return
        if PH[0] and OPT["abl"] & 32 and n >= 4: return
        if PH[0]: return wo_load(n)
        chunk(n // 2)
        a("s_lshl_b32 s%d, s%d, 19\ns_add_u32 s%d, s%d, %d\ns_add_u32 m0, s%d, %d" % (sT2, sT3, sT2, sT2, (n & 1) << 18, sW2, (n % 3) * 4096))
        for q in range(4):
            a("buffer_load_dwordx4 v%d, %s, s%d offen offset:%d%s lds" % (4 + q, SR(S_WQ), sT2, q * 1024, POL[OPT["polw"]]), tag="q%d" % n)
    def x2_load(m):
        if OPT["abl"] & 1: return
        chunk(m)
        a("s_lshl_b32 s%d, s%d, 7\ns_lshl_b32 s%d, s%d, 13\ns_add_u32 s%d, s%d, s%d\ns_lshl_b32 s63, s%d, 10" % (sT3, sT3, sT2, sXq, sT3, sT3, sT2, sXq))
        for e in range(9):
            a("s_add_u32 m0, s63, %d\ns_add_u32 s%d, s%d, %d" % (XB[m & 1] + e * 1024, sT2, sT3, e * 8192))
            a("buffer_load_dwordx4 v%d, %s, s%d offen%s lds" % (8 + (e & 1), SR(S_X), sT2, POL[OPT["polx"]]), tag="x%d" % m)
    AF2 = [172, 244, 248, 252]
    def q2_a(n, alt):
        a.wait_vm_tag("q%d" % n)
        for d in range(4):
            for rd in range(2):
                a("ds_read_b64_tr_b16 %s, v%d offset:%d" % (vr((AF2[d] if alt else AF(d)) + 2 * rd, 2), 3 if d & 1 else 2, (n % 3) * 4096 + rd * (2048 if PH[0] else 512) + (d >> 1) * 256))
    def q2_b(n, t): a("ds_read_b128 %s, v%d offset:%d" % (BF(t), 9 if PH[0] else 1, (OB[n // 2] - 68 * KB + ((n & 1) * 9 + t) * 1024) if PH[0] else ((n // 2) & 1) * 18 * KB + t * 2048 + (n & 1) * 256))
    def q2_step(n, nfill=0, chain=False, chained=False):
        A_ = (lambda d: AF2[d]) if chained else AF
        if not chained:
            q2_a(n, False)
            for t in range(9): q2_b(n, t)
            k_ = min(OPT["f1"], nfill); nfill -= k_
            kv_upto(a, KVN[0] + k_)
            a("WAIT " + vr(AF(0), 16))
        else: a("WAIT " + " ".join(vr(r, 4) for r in AF2))
        if n + 3 < 16: w2_load(n + 3)
        if not chained: a("s_waitcnt lgkmcnt(0)")
        fi = 0
        def pack_ops(t):
            o = []
            for h in range(2):
                b = ACC(t, 2 * h)
                o += ["v_mul_f32 v%d, v10, v%d" % (b + r, b + r) for r in range(8)]
                o += ["v_cvt_pk_bf16_f32 v%d, v%d, v%d" % (b + r, b + 2 * r, b + 2 * r + 1) for r in range(4)]
            for h in range(2):
                b = ACC(t, 2 * h)
                o += ["v_permlane16_swap_b32 v%d, v%d" % (b, b + 2), "v_permlane16_swap_b32 v%d, v%d" % (b + 1, b + 3)]
            return o
        lastq = n == 15 and not PH[0]
        if lastq and OPT["p14"]: a("s_setprio %d" % OPT["p14"])
        for t in range(9):
            po = pack_ops(t - 2) if lastq and t >= 2 else []
            for d in range(4):
                c = vr(ACC(t, d), 4)
                a("%s %s, %s, %s, %s" % (MF, c, vr(A_(d), 4), BF(t), "0" if n == 0 else c))
                if chain and d == 3: q2_b(n + 1, t)
                if chain and t == 4 and d == 0: q2_a(n + 1, True)
                i = t * 4 + d
                while fi < nfill and fi * 36 <= i * nfill:
                    kv_one(a); fi += 1
                for x in po[7 * d:7 * d + 7]: a(x)
        if lastq:
            for x in pack_ops(7) + pack_ops(8): a(x)
    sched = {}; n_ = 0
    for i_, c_ in enumerate(OPT["q2s"]):
        sched[i_ + 1] = list(range(n_, n_ + int(c_))); n_ += int(c_)
    assert n_ == 16 and len(OPT["q2s"]) <= 14
    at = {n: s_ for s_, l_ in sched.items() for n in l_}
    xiss = {m: at[2 * (m - 2) + 1] + 1 for m in range(2, 8)}
    for m in xiss: assert at[2 * m] > xiss[m], m
    QW = at[15] + 1
    psched = {}; n_ = 0
    if OPT["ft"]:
        head_ = OPT["ps"][:OPT["fts"] - OPT["p0"]]
        assert sum(int(c) for c in head_) == OPT["ftn"] and OPT["ftn"] % 2 == 0
        OPT["ps"] = head_ + "2" * ((16 - OPT["ftn"]) // 2)
    for i_, c_ in enumerate(OPT["ps"]):
        psched[i_ + OPT["p0"]] = list(range(n_, n_ + int(c_))); n_ += int(c_)
    assert n_ == 16 and OPT["p0"] >= 18
    pat = {n: s_ for s_, l_ in psched.items() for n in l_}
    free = {XB[0]: pat[1] + 1, XB[1]: pat[3] + 1}
    if OPT["nb3"]: free[68 * KB] = 31
    OB[0], OB[1] = XB[0], XB[1]
    oiss = {}
    for m in range(2, 8):
        b_ = min(free, key=lambda k: free[k])
        oiss[m] = max(free[b_], pat[4] - OPT["od"], pat[2 * m] - OPT["od"] - OPT["od3"])
        OB[m] = b_; free[b_] = pat[2 * m + 1] + 1
        assert pat[2 * m] > oiss[m] > OPT["fl0"] and (m == 2 or oiss[m] >= oiss[m - 1]), m
    once = oiss[2] >= 25
    def o1_store():
        if OPT["abl"] & 2: return
        a("s_and_b32 s%d, s%d, 1" % (sT3, sW))
        a("s_mul_i32 s%d, s%d, %d\ns_add_u32 s%d, s%d, %d\nv_add_u32 v%d, s%d, v1" % (sT, sT3, 4096 if OPT["pair"] else 3 * 4096, sT, sT, EX1, vA_, sT))
        a("s_lshl_b32 s%d, s%d, 11\ns_add_u32 s%d, s%d, %d\nv_add_u32 v%d, s%d, v1" % (sT, sT3, sT, sT, Q2B, vB_, sT))
        fr = [(i, t, h) for i in range(3) for t in range(3) for h in range(2)]
        for n, (i, t, h) in enumerate(fr):
            if t < 2: a("ds_read_b128 %s, v%d offset:%d" % (vr(16 + 4 * n, 4), vA_, i * (8192 if OPT["pair"] else 4096) + t * 2048 + h * 1024))
            else: a("ds_read_b128 %s, v%d offset:%d" % (vr(16 + 4 * n, 4), vB_, i * 12 * KB + h * 1024))
        a("s_mul_i32 s%d, s%d, %d\ns_mul_i32 s%d, s%d, %d\ns_add_u32 s%d, s%d, %d\ns_sub_u32 s%d, s%d, s%d" % (sT2, sJJ, 8 * 9216, sT3, sT3, 2 * 9216, sT2, sT2, 2 * 9216, sT2, sT2, sT3))
        for n, (i, t, h) in enumerate(fr):
            a("s_add_u32 s%d, s%d, %d" % (sT, sT2, (h * 9 + 3 * i + t) * 1024))
            if not OPT["abl"] & 4: a("buffer_store_dwordx4 %s, v1, %s, s%d offen%s" % (vr(16 + 4 * n, 4), SR(S_O), sT, POL[OPT["pols"]]), tag="st")
    def pre(step):
        if step == 0:
            for n in range(3): w2_load(n)
        for m in xiss:
            if xiss[m] == step: x2_load(m)
        if step == 17:
            PH[0] = 1
            a("s_and_b32 s%d, s%d, 1\ns_xor_b32 s%d, s%d, 1\ns_mul_i32 s%d, s%d, %d\ns_add_u32 s%d, s%d, %d\nv_add_u32 v%d, s%d, v1" % (sT, sW, sT, sT, sT, sT, 18 * KB, sT, sT, XB[0], vA_, sT))
            for n, (i, t, h) in enumerate([(i, t, h) for i in range(3) for t in range(3) for h in range(2)]):
                a("ds_write_b128 v%d, %s offset:%d" % (vA_, vr(16 + 4 * n, 4), (h * 9 + 3 * i + t) * 1024))
            for n in range(3): w2_load(n)
            a("s_waitcnt lgkmcnt(0)")
        for m in oiss:
            if oiss[m] == step:
                if m % 2 == 0 and not (once and m > 2):
                    a.wait_vm_tag("fl")
                    keep = list(a.vm)
                    a.label("L_f%d" % m)
                    ready(a)
                    a("s_add_u32 s%d, s%d, %d\ns_and_b32 s%d, s%d, 3\ns_and_b32 s%d, s%d, 12\ns_add_u32 s%d, s%d, s%d" % (sT3, sJJ, m // 2, sT3, sT3, sT2, sJJ, sT3, sT3, sT2))
                    if once: a("s_lshl_b32 s%d, 15, s%d\ns_andn2_b32 s%d, s%d, s%d\ns_cbranch_scc0 L_f%dok" % (sT3, sT2, sT3, sT3, sR2, m))
                    else: a("s_bitcmp1_b32 s%d, s%d\ns_cbranch_scc1 L_f%dok" % (sR2, sT3, m))
                    a("s_sleep %d" % OPT["slp"]); a(FLOAD); a("s_waitcnt vmcnt(0)\ns_branch L_f%d" % m)
                    a.label("L_f%dok" % m)
                    a.vm = keep
                o_load(m)
            if m % 2 == 0 and oiss[m] - 1 == step and not (once and m > 2): a(FLOAD, tag="fl")
        ns = (psched if PH[0] else sched).get(step, [])
        if OPT["abl"] & ((2 | 16) if PH[0] else 1): ns = []
        if PH[0] and OPT["abl"] & 32: ns = [n for n in ns if n < 4]
        ch = OPT["q2p"] and len(ns) == 2 and ns[0] % 2 == 0
        for i_, n in enumerate(ns):
            left = max(0, min(LIM[0], 512) - KVN[0])
            q2_step(n, left // (len(ns) - i_), ch and n != ns[-1], ch and n == ns[-1])
        if step == QW:
            a("s_and_b32 s%d, s%d, 1\ns_lshl_b32 s%d, s%d, 11\ns_add_u32 s%d, s%d, %d" % (sT, sW, sT, sT, sT, sT, Q2B))
            a("v_lshlrev_b32 v1, 4, v12\nv_add_u32 v2, s%d, v1" % sT)
            fr = [(t, h) for t in range(9) for h in range(2)]
            for t, h in fr: a("ds_write_b128 v2, %s offset:%d" % (vr(ACC(t, 2 * h), 4), t * 4096 + h * 1024))
            if OPT["mxf"]:
                a("s_mov_b64 exec, 1")
                a("v_mov_b32 v%d, %d\nv_mov_b32 v%d, 1" % (vA_, CNT, vB_))
                a("ds_add_u32 v%d, v%d offset:24" % (vA_, vB_))
                a("s_mov_b64 exec, -1")
            if OPT["p14"]: a("s_setprio %d" % OPT["auxprio"])
        if step == 16 and OPT["st1"]: o1_store()
        if step == OPT["pubat"]:
            a("s_cmp_lg_u32 s%d, 6\ns_cbranch_scc1 L_nopub" % sW)
            a("s_lshl_b32 s%d, s%d, 2\nv_mov_b32 v%d, s%d\nv_mov_b32 v%d, s%d" % (sT, sJJ, vA_, sT, vB_, sTag))
            keep = list(a.vm)
            a("buffer_store_dword v%d, v%d, %s, 0 offen sc1" % (vB_, vA_, SR(S_FL)))
            a.vm = keep
            a.label("L_nopub")
    def extra(step):
        if step == 0:
            if OPT["lean"]:
                a("s_lshl_b32 s%d, s%d, 3\ns_add_u32 s%d, s%d, s%d\ns_cmp_lg_u32 s%d, 6\ns_cbranch_scc1 L_nosnap" % (sT, sJJ, sT, sT, sW, sT))
                a("RAW buffer_load_dword v%d, v%d, %s, 0 offen sc1" % (vFl, vFo, SR(S_FL)))
                a.label("L_nosnap")
            else: a("buffer_load_dword v%d, v%d, %s, 0 offen sc1" % (vFl, vFo, SR(S_FL)), tag="fl")
        if step == 3:
            cstamp(a, 0)
            a("s_lshl_b32 s%d, s%d, 3\ns_add_u32 s%d, s%d, s%d\ns_cmp_lg_u32 s%d, 6\ns_cbranch_scc1 L_nolead" % (sT, sJJ, sT, sT, sW, sT))
            a("v_lshrrev_b32 v%d, v14, v%d\nv_and_b32 v%d, 1, v%d\nv_cmp_eq_u32 vcc, 0, v%d" % (vFl, vFl, vFl, vFl, vFl))
            a("s_nop 1")
            a("s_and_b32 s%d, vcc_lo, 0xffff\ns_or_b32 s%d, s%d, 0x80000000" % (sT, sT, sT))
            a("v_mov_b32 v%d, s%d" % (vFl, sT))
            keep = list(a.vm)
            a("buffer_store_dword v%d, v%d, %s, 0 offen sc1" % (vFl, vDg, SR(S_DBG)))
            a.vm = keep
            a.label("L_nolead")
        if step == 9:
            a("buffer_load_dword v%d, v%d, %s, 0 offen sc1" % (vFl, vDg, SR(S_DBG)), tag="fl")
        if step == 12:
            cstamp(a, 1)
            keep = list(a.vm)
            a.label("L_tag")
            a("v_cmp_eq_u32 vcc, 0, v%d" % vFl)
            a("s_cbranch_vccz L_tag_ok")
            a("s_sleep 8")
            a("buffer_load_dword v%d, v%d, %s, 0 offen sc1" % (vFl, vDg, SR(S_DBG)))
            a("s_waitcnt vmcnt(0)")
            a("s_branch L_tag")
            a.label("L_tag_ok")
            a.vm = keep
            a("v_readfirstlane_b32 s%d, v%d" % (sTag, vFl))
            a("v_mov_b32 v%d, %d" % (vA_, TAGW))
            a("ds_write_b32 v%d, v%d" % (vA_, vFl))
            a("s_or_b32 s%d, s%d, 0x%x" % (sWant, sTag, PHM))
            a("s_waitcnt lgkmcnt(0)")
        for m in xiss:
            if xiss[m] <= step and at[2 * m] == step + 1: a.wait_vm_tag("x%d" % m)
            if oiss[m] <= step and pat[2 * m] == step + 1: a.wait_vm_tag("x%d" % m)
        if step == 15:
            a("s_waitcnt lgkmcnt(0)")
            if OPT["mxf"] and not OPT["early"]: pass
            elif OPT["mxf"]:
                a("v_mov_b32 v%d, %d" % (vA_, CNT))
                a.label("L_mxw")
                a("s_sleep 1")
                a("ds_read_b32 v%d, v%d offset:20" % (vB_, vA_))
                a("s_waitcnt lgkmcnt(0)")
                a("v_readfirstlane_b32 s%d, v%d" % (sT, vB_))
                a("s_cmp_lt_u32 s%d, 6\ns_cbranch_scc1 L_mxw" % sT)
            else: a("s_barrier")
            kv_upto(a, 16 * 18 + OPT["early"])
        if step == 16:
            if not OPT["st1"]: o1_store()
            a("s_mov_b32 s%d, s%d" % (sBlkP, sW2))
            op_setup(a, False)
            a("v_mov_b32 v8, v1\nv_add_u32 v9, %d, v1" % (68 * KB))
        if step == OPT["pubat"] - 1: a.wait_vm_tag("st")
    def capture(f):
        rec = []
        class R:
            def __call__(self, t, tag=None): rec.append((t, tag))
        return rec, R()
    def fast():
        n0 = OPT["ftn"]; m0 = n0 // 2
        bars = [n0 + int(c) for c in OPT["ftb"].split(",")]
        nbar = OPT["fts"] + 1
        bufs = [OB[m0], OB[m0 + 1]]
        nxt = [m0 + 2]
        AFx = lambda n, d: (AF2[d] if n & 1 else AF(d))
        q2_a(n0, False)
        for t in range(9): q2_b(n0, t)
        a("s_lshl_b32 s%d, s%d, 2\ns_add_u32 s%d, s%d, %d\nv_mov_b32 v%d, s%d\nv_xor_b32 v%d, 4, v%d" % (sT, sW, sT, sT, PFL, vA_, sT, vCl, vA_))
        def signal(v):
            a("v_mov_b32 v%d, %d\nds_write_b32 v%d, v%d\nds_read_b32 v%d, v%d" % (vB_, v, vA_, vB_, vCr, vCl))
        def check(v):
            a("WAIT v%d" % vCr)
            keep = list(a.lgkm)
            a.label("L_fs%d" % v)
            a("v_readfirstlane_b32 s%d, v%d\ns_cmp_ge_u32 s%d, %d\ns_cbranch_scc1 L_fs%dk" % (sT, vCr, sT, v, v))
            a("ds_read_b32 v%d, v%d\ns_waitcnt lgkmcnt(0)\ns_branch L_fs%d" % (vCr, vCl, v))
            a.label("L_fs%dk" % v)
            a.lgkm = keep
        for n in range(n0, 16):
            while bars and bars[0] == n:
                bars.pop(0)
                kv_upto(a, 16 * (nbar + 1) + 16)
                a.wait_vm_tag("k%d" % (16 * nbar + 15)); a("s_barrier")
                if nbar == 31:
                    stamp(a, 3)
                    if OPT["nb3"] and nxt[0] < 8:
                        OB[nxt[0]] = 68 * KB; o_load(nxt[0]); nxt[0] += 1
                nbar += 1
            odd = n & 1; m = n // 2
            a("WAIT " + " ".join(vr(AFx(n, d), 4) for d in range(4)) + " " + vr(208, 24))
            if odd:
                if m + 1 < 8: a.wait_vm_tag("x%d" % (m + 1))
                signal(n)
            def others():
                if n + 3 < 16: w2_load(n + 3)
                if n + 1 < 16: q2_a(n + 1, (n + 1) & 1)
                if odd and nxt[0] < 8:
                    OB[nxt[0]] = OB[m]; o_load(nxt[0]); nxt[0] += 1
                kv_upto(a, min(16 * (nbar + 1) + 16, KVN[0] + 8))
            fl = a.capture(others); fi = 0
            slots = [i for i in range(34) if i % 4 != 3]
            for t in range(9):
                for d in range(4):
                    c = vr(ACC(t, d), 4)
                    a("%s %s, %s, %s, %s" % (MF, c, vr(AFx(n, d), 4), BF(t), c))
                    i = 4 * t + d
                    if i in slots:
                        tgt = (slots.index(i) + 1) * len(fl) // len(slots)
                        while fi < tgt: a(fl[fi][0], tag=fl[fi][1]); fi += 1
                if t == 0 and odd: check(n)
                if n + 1 < 16: q2_b(n + 1, t)
            assert fi == len(fl)
        assert not bars and nbar == 32
    last_ = OPT["fts"] if OPT["ft"] else max(32, pat[15] + 2) - 1
    for step in range(last_ + 1):
        if OPT["ft"] and step == last_: aux_step(a, step, pre=fast)
        else: aux_step(a, step, pre=lambda: pre(step), extra=lambda: extra(step))
    stamp(a, 5)
    a("s_and_b32 s%d, s%d, 1\ns_lshl_b32 s%d, s%d, 14\ns_lshl_b32 s%d, s%d, 1\ns_sub_u32 s%d, s%d, %d\ns_add_u32 s%d, s%d, %d" % (sT, sW, sT, sT, sBlkD, sT, sBlkD, sBlkD, 16 * KB, sT, sT, 96 * KB))
    a("s_sub_u32 s%d, s%d, s%d\ns_mov_b32 s%d, s%d" % (sT2, sT, sBlkP, sBlkP, sT))
    a("v_add_u32 v2, s%d, v2\nv_add_u32 v3, s%d, v3\nv_add_u32 v8, 4096, v1\nv_add_u32 v9, 8192, v1" % (sT2, sT2))

FLOAD = "buffer_load_dword v10, v11, %s, 0 offen sc1" % SR(S_FL)
def ready(a):
    a.autowait = False
    a("v_or_b32 v10, v15, v10\nv_cmp_eq_u32 vcc, s%d, v10\ns_nop 1\ns_mov_b64 s[%d:%d], vcc" % (sWant, sR2, sR2 + 1))
    if OPT["nopoll"]: a("s_mov_b64 s[%d:%d], -1" % (sR2, sR2 + 1))
    a.autowait = True

def op_setup(a, second):
    lanes(a)
    a("v_lshlrev_b32 v1, 4, v12\nv_add_u32 v8, 4096, v1")
    a("v_lshrrev_b32 v9, 5, v12")
    a("v_and_b32 v4, 3, v12\nv_lshlrev_b32 v5, 1, v9\nv_xor_b32 v4, v4, v5\nv_lshlrev_b32 v4, 4, v4")
    a("v_and_b32 v5, 1, v13")
    a("v_lshl_add_u32 v4, v5, 6, v4\nv_lshl_add_u32 v4, v15, 10, v4\nv_lshl_add_u32 v4, v9, 12, v4")
    if second: a("v_xor_b32 v4, 64, v4")
    a("s_and_b32 s%d, s%d, 3\ns_lshl_b32 s%d, s%d, 8\ns_and_b32 s%d, s%d, 1\ns_lshl_b32 s%d, s%d, 7\ns_add_u32 s%d, s%d, s%d" % (sT, sJJ, sT, sT, sT2, sW, sT2, sT2, sT, sT, sT2))
    a("v_add_u32 v4, s%d, v4" % sT)
    a("v_and_b32 v2, 3, v12\nv_lshlrev_b32 v2, 3, v2\nv_lshl_add_u32 v2, v15, 6, v2\nv_lshl_add_u32 v2, v5, 5, v2\nv_lshl_add_u32 v2, v13, 9, v2")
    a("v_add_u32 v2, s%d, v2\nv_xor_b32 v3, 32, v2" % sBlkP)
    for q in range(1, 4): a("v_add_u32 v%d, %d, v4" % (4 + q, 7168 * q))
    a("v_add_u32 v9, 8192, v1\nv_lshlrev_b32 v11, 2, v14")
    a("v_lshrrev_b32 v15, v13, 3\nv_lshlrev_b32 v15, 29, v15" if False else "v_mov_b32 v15, 3\nv_lshrrev_b32 v15, v13, v15\nv_lshlrev_b32 v15, 29, v15")
    a("s_and_b32 s%d, s%d, 1\ns_lshl_b32 s%d, s%d, 1\ns_add_u32 s%d, s%d, %d" % (sOpIdx, sW, sOpIdx, sOpIdx, sOpIdx, sOpIdx, 1 if second else 0))

def op_tail(a):
    B = lambda k, t: vr((208 if k & 1 == 0 else 128) + 4 * t, 4)
    AT = [164, 168, 172, 244]
    def run(ops):
        a.autowait = False
        for x in ops: a(x)
        a.autowait = True
        a.vm = []; a.lgkm = []
    def head_offs(i, so, sb):
        a("s_add_u32 s%d, s%d, s%d\ns_and_b32 s%d, s%d, 3\ns_and_b32 s%d, s%d, 12\ns_add_u32 s%d, s%d, s%d" % (sT3, sJJ, i, sT3, sT3, sT2, sJJ, sT3, sT3, sT2))
        a("s_add_u32 s%d, s%d, 16\ns_lshl_b32 s%d, s%d, 3\ns_add_u32 s%d, s%d, 4" % (sb, sT3, sT3, sT3, sT3, sT3))
        a("s_mul_i32 s%d, s%d, 9216\ns_lshl_b32 s%d, s%d, 15" % (so, sT3, sWn, sT3))
        if OPT["xo"] & 2: a("s_mov_b32 s%d, 0" % so)
    def w_ops(k, blk):
        return ["s_add_u32 m0, s%d, %d" % (blk, k * 4096), "s_add_u32 s%d, s%d, %d" % (sT2, sWn, k * 32768)] + \
               ["buffer_load_dwordx4 v%d, %s, s%d offen offset:%d%s lds" % (4 + q, SR(S_WO), sT2, q * 1024, POL[OPT["polwo"]]) for q in range(4)]
    def o_op(k, t): return "buffer_load_dwordx4 %s, v%d, %s, s%d offen offset:%d%s" % (B(k, t), [1, 8, 9][t >> 2], SR(S_O), sT3, (t & 3) * 1024, POL[OPT["polo"]])
    def a_reads(k, cp):
        return ["ds_read_b64_tr_b16 %s, v%d offset:%d" % (vr(AT[2 * cp + c] + 2 * rd, 2), 3 if c else 2, k * 4096 + rd * 2048 + cp * 256) for c in range(2) for rd in range(2)]
    toggle = ["v_add_u32 v2, s%d, v2" % sBlkD, "v_add_u32 v3, s%d, v3" % sBlkD, "s_add_u32 s%d, s%d, s%d" % (sBlkP, sBlkP, sBlkD), "s_sub_u32 s%d, 0, s%d" % (sBlkD, sBlkD)]
    a.raw(".p2align 3")
    a.label("L_p2")
    run([FLOAD])
    a("s_and_b32 s%d, s%d, 1\ns_lshl_b32 s%d, s%d, 1\ns_add_u32 s62, s%d, 1" % (sT, sOpIdx, sT, sT, sT))
    head_offs(62, sOc, sBc)
    for k in range(4): run(w_ops(k, sBlkP))
    a("s_add_u32 s62, s62, 1\ns_add_u32 s63, s%d, s%d" % (sBlkP, sBlkD))
    head_offs(62, sOn, sBn)
    for k in range(4): run(w_ops(k, 63))
    if OPT["latep"]:
        a("s_cmp_ge_u32 s%d, 6\ns_cbranch_scc1 L_p2_np" % sW)
        publish(a, "L_pub_y", 250, nw=33)
        stamp(a, 5)
        for i in range(36): a("v_mov_b64 %s, 0\nv_mov_b64 %s, 0" % (vr(ACC(i // 4, i % 4), 2), vr(ACC(i // 4, i % 4) + 2, 2)))
        a.label("L_p2_np")
        a.vm = []; a.lgkm = []
    a("s_waitcnt vmcnt(32)")
    a("s_mov_b32 s%d, 2" % sBit)
    a.label("L_p2_chk")
    ready(a)
    a("s_bitcmp1_b32 s%d, s%d\ns_cbranch_scc1 L_p2_go" % (sR2, sBc))
    a("s_bitcmp1_b32 s%d, s%d\ns_cbranch_scc1 L_p2_swap" % (sR2, sBn))
    run(["s_sleep %d" % OPT["slp"]])
    a.label("L_p2_poll")
    run([FLOAD, "s_waitcnt vmcnt(0)", "s_branch L_p2_chk"])
    a.label("L_p2_swap")
    run(["s_mov_b32 s%d, s%d" % (sT, sBc), "s_mov_b32 s%d, s%d" % (sBc, sBn), "s_mov_b32 s%d, s%d" % (sBn, sT),
         "s_mov_b32 s%d, s%d" % (sT, sOc), "s_mov_b32 s%d, s%d" % (sOc, sOn), "s_mov_b32 s%d, s%d" % (sOn, sT)] + toggle)
    a.label("L_p2_go")
    stamp(a, 6)
    if OPT["stamps"]: a("s_cmp_lg_u32 s%d, 2\ns_cbranch_scc1 L_p2_st\ns_memrealtime s[68:69]\nL_p2_st:" % sBit)
    for k in range(2): run(["s_add_u32 s%d, s%d, %d" % (sT3, sOc, k * 9216)] + [o_op(k, t) for t in range(9)])
    run([FLOAD, "s_waitcnt vmcnt(19)"] + a_reads(0, 0))
    def kstep(k, ho, extra):
        more = k < 2 or ho
        run(["s_waitcnt vmcnt(%d) lgkmcnt(0)" % ((9 + extra) if (k < 3 or ho) else 0)] + a_reads(k, 1))
        if more: run(["s_add_u32 s%d, s%d, %d" % (sT3, sOc if k < 2 else sOn, ((k + 2) & 3) * 9216)])
        for cp in range(2):
            if cp == 1:
                run(["s_waitcnt lgkmcnt(0)"])
                if k == 3: run(toggle)
                if k < 3 or ho: run(a_reads((k + 1) & 3, 0))
            for t in range(9):
                for c in range(2):
                    r = vr(ACC(t, 2 * cp + c), 4)
                    run(["%s %s, %s, %s, %s" % (MF, r, vr(AT[2 * cp + c], 4), B(k, t), r)])
                if cp == 1 and more: run([o_op(k, t)])
    kstep(0, False, 1)
    kstep(1, False, 0)
    a("s_cmp_eq_u32 s%d, 1\ns_cbranch_scc1 L_p2_last" % sBit)
    ready(a)
    a("s_bitcmp1_b32 s%d, s%d\ns_cbranch_scc0 L_p2_last" % (sR2, sBn))
    kstep(2, True, 0); kstep(3, True, 0)
    a("s_mov_b32 s%d, s%d\ns_mov_b32 s%d, 1" % (sOc, sOn, sBit))
    kstep(0, False, 0); kstep(1, False, 0)
    a.label("L_p2_last")
    kstep(2, False, 0); kstep(3, False, 0)
    a("s_mov_b32 s%d, s%d\ns_mov_b32 s%d, s%d" % (sOc, sOn, sBc, sBn))
    a("s_sub_u32 s%d, s%d, 1\ns_cmp_lg_u32 s%d, 0\ns_cbranch_scc1 L_p2_poll" % (sBit, sBit, sBit))
    stamp(a, 1)
    a("s_add_u32 s%d, s%d, s%d\ns_min_u32 s%d, s%d, s%d\ns_max_u32 s%d, s%d, s%d" % (sT, sBlkP, sBlkD, sT2, sT, sBlkP, sT3, sT, sBlkP))
    a("v_add_u32 v8, s%d, v1\nv_add_u32 v9, s%d, v1" % (sT2, sT3))
    for t in range(9):
        for c in range(2): a("ds_write_b128 v%d, %s offset:%d" % (8 if t < 8 else 9, vr(ACC(t, 2 + c), 4), ((t & 7) * 2 + c) * 1024))
    a("s_mov_b32 s%d, 0\ns_cmp_eq_u32 s%d, 1\ns_cselect_b32 s%d, %d, s%d" % (sT, sOpIdx, sT, 80 * KB, sT))
    a("s_cmp_eq_u32 s%d, 2\ns_cselect_b32 s%d, %d, s%d\ns_cmp_eq_u32 s%d, 3\ns_cselect_b32 s%d, %d, s%d" % (sOpIdx, sT, 16 * KB, sT, sOpIdx, sT, 112 * KB, sT))
    a("s_and_b32 s%d, s%d, 1\ns_lshr_b32 s%d, %d, s%d\ns_add_u32 s%d, s%d, s%d" % (sT2, sOpIdx, sT2, 32 * KB, sT2, sT2, sT2, sT))
    a("v_add_u32 v8, s%d, v1\nv_add_u32 v9, s%d, v1" % (sT, sT2))
    a("s_lshl_b32 s%d, s%d, 2\ns_and_b32 s%d, s%d, 3\ns_add_u32 s%d, s%d, s%d\ns_lshl_b32 s%d, s%d, 2\ns_add_u32 s%d, s%d, s%d" % (sT, sG, sT2, sJJ, sT, sT, sT2, sT, sT, sT, sT, sOpIdx))
    a("s_mul_i32 s%d, s%d, %d\ns_add_u32 s%d, s%d, 0x%x\ns_add_u32 s90, s100, s%d\ns_addc_u32 s91, s101, 0" % (sT, sT, 4 * 9216, sT, sT, SLAB_OFF, sT))
    srd(a, S_SL, 90, 91, "%d" % (4 * 9216))
    a("s_waitcnt lgkmcnt(0)")
    a("s_barrier")
    for t in range(9):
        for c in range(2): a("ds_read_b128 %s, v%d offset:%d" % (vr(ACC(t, 2 + c), 4), 8 if t < 8 else 9, ((t & 7) * 2 + c) * 1024))
    a("v_add_u32 v8, 4096, v1\nv_add_u32 v9, 8192, v1")
    a("s_lshr_b32 s62, s%d, 2" % sJJ)
    a("s_cmp_eq_u32 s62, s%d\ns_cbranch_scc1 L_fin" % sOpIdx)
    keepl = list(a.lgkm)
    def addp(t):
        b = ACC(t, 0)
        for r in range(0, 8, 2): a("v_pk_add_f32 %s, %s, %s" % (vr(b + r, 2), vr(b + r, 2), vr(b + 8 + r, 2)))
    def cvt(t):
        b = ACC(t, 0)
        for r in range(4): a("v_cvt_pk_bf16_f32 v%d, v%d, v%d" % (b + r, b + 2 * r, b + 2 * r + 1))
    a("s_mul_i32 s%d, s62, 9216" % sT3)
    for t in range(9):
        addp(t); cvt(t)
        a("buffer_store_dwordx4 %s, v%d, %s, s%d offen offset:%d sc1" % (vr(ACC(t, 0), 4), [1, 8, 9][t >> 2], SR(S_SL), sT3, (t & 3) * 1024))
    publish(a, "L_pub_z", 250, 28, 2, PHM)
    if OPT["stamps"]:
        stamp(a, 7); stamp_store(a)
    a("s_endpgm")
    a.vm = []; a.lgkm = keepl
    a.label("L_fin")
    for t in range(9): addp(t)
    lanes(a)
    a("v_and_b32 v244, 1, v14\nv_lshlrev_b32 v244, 4, v244\nv_mov_b32 v245, 0x3f80\nv_lshlrev_b32 v245, v244, v245")
    a("v_cmp_eq_u32 vcc, v15, v13\nv_mov_b32 v244, 0\nv_cndmask_b32 v245, 0, v245, vcc")
    a("v_and_b32 v246, 2, v14\nv_cmp_eq_u32 vcc, 0, v246\nv_mov_b32 v248, 0\nv_mov_b32 v249, 0")
    a("v_cndmask_b32 v246, 0, v245, vcc\nv_cndmask_b32 v247, v245, v244, vcc\nv_mov_b32 v245, 0")
    a("v_lshrrev_b32 v4, 1, v13\nv_and_b32 v5, 1, v13\nv_lshl_or_b32 v4, v5, 1, v4\nv_lshlrev_b32 v4, 4, v4\nv_lshl_add_u32 v4, v14, 11, v4")
    a("s_mul_i32 s%d, s%d, %d\ns_lshl_b32 s%d, s%d, 10\ns_add_u32 s%d, s%d, s%d" % (sOutOff, sB, 144 * 2048, sT, sBlk, sOutOff, sOutOff, sT))
    a("s_and_b32 s%d, s%d, 3\ns_lshl_b32 s%d, s%d, 8\ns_add_u32 s%d, s%d, s%d\ns_lshl_b32 s%d, s62, 6\ns_add_u32 s%d, s%d, s%d" % (sT2, sJJ, sT, sT2, sOutOff, sOutOff, sT, sT, sOutOff, sOutOff, sT))
    a("v_mov_b32 v15, 3\nv_lshrrev_b32 v15, v13, v15\nv_lshlrev_b32 v15, 29, v15")
    a("s_lshl_b32 s%d, 0x1111, s%d\ns_lshl_b32 s%d, 1, s%d\ns_andn2_b32 s%d, s%d, s%d" % (sBit, sT2, sT, sJJ, sBit, sBit, sT))
    run([FLOAD, "s_waitcnt vmcnt(0)"])
    a.label("L_fin_chk")
    ready(a)
    a("s_andn2_b32 s%d, s%d, s%d\ns_cbranch_scc0 L_fin_go" % (sT, sBit, sR2 + 1))
    run(["s_sleep %d" % OPT["slp"], FLOAD, "s_waitcnt vmcnt(0)", "s_branch L_fin_chk"])
    a.label("L_fin_go")
    stamp(a, 4)
    SL = lambda i, t: (ACC(t, 2 + i) if i < 2 else 128 + 4 * t)
    for i in range(3): a("s_add_u32 s%d, s62, %d\ns_and_b32 s%d, s%d, 3\ns_mul_i32 s%d, s%d, 9216" % (sOc + i, i + 1, sOc + i, sOc + i, sOc + i, sOc + i))
    for t in range(9):
        for i in range(3):
            a("buffer_load_dwordx4 %s, v%d, %s, s%d offen offset:%d sc1" % (vr(SL(i, t), 4), [1, 8, 9][t >> 2], SR(S_SL), sOc + i, (t & 3) * 1024))
    def fin_out(t):
        cvt(t); q_swap(a, ACC(t, 0))
        a("s_add_u32 s%d, s%d, %d" % (sT, sOutOff, t * 32768))
        a("buffer_store_dwordx4 %s, v4, %s, s%d offen%s" % (vr(ACC(t, 0), 4), SR(S_OUT), sT, POL[OPT["polout"]]))
    for t in range(9):
        for i in range(3):
            for c in range(2):
                r = vr(ACC(t, c), 4)
                a("%s %s, %s, %s, %s" % (MF, r, vr(246 - 2 * c, 4), vr(SL(i, t), 4), r))
        if t: fin_out(t - 1)
    fin_out(8)
    if OPT["stamps"]:
        a("s_waitcnt vmcnt(0)")
        stamp(a, 7); stamp_store(a)
    a("s_endpgm")
    a.vm = []; a.lgkm = []

def kernel():
    a = Asm()
    a.raw(".globl %s\n.p2align 8\n.type %s,@function" % (NAME, NAME)); a.label(NAME)
    a("s_cmp_ge_u32 s2, 256\ns_cbranch_scc1 L_end")
    if OPT["stamps"]:
        for k in range(1 if OPT["pst"] else NST): a("s_memrealtime s[%d:%d]" % (64 + 2 * k, 65 + 2 * k))
    a("s_and_b32 s%d, s2, 7\ns_lshr_b32 s%d, s2, 3\ns_lshr_b32 s%d, s%d, 2" % (sT, sT2, sBlk, sT))
    a("s_mul_i32 s%d, s%d, 40" % (sT3, sBlk))
    a("s_add_u32 s4, s0, s%d\ns_addc_u32 s5, s1, 0" % sT3)
    a("s_load_dwordx8 s[80:87], s[4:5], 0")
    a("s_load_dwordx2 s[88:89], s[4:5], 32")
    a("s_load_dwordx4 s[96:99], s[0:1], 80")
    a("s_load_dwordx2 s[92:93], s[0:1], 96")
    a("s_lshr_b32 s%d, s%d, 4\ns_lshl_b32 s%d, s%d, 1\ns_add_u32 s%d, s%d, s%d" % (sGo, sT2, sT3, sT, sGo, sGo, sT3))
    a("s_and_b32 s%d, s%d, 15" % (sJo, sT2))
    if OPT["map"] == 0:
        a("s_mov_b32 s%d, s%d\ns_mov_b32 s%d, s%d\ns_and_b32 s%d, s%d, 7" % (sG, sGo, sJJ, sJo, sB, sGo))
        a("s_and_b32 s%d, s%d, 1\ns_lshl_b32 s%d, s%d, 2\ns_add_u32 s%d, s%d, s%d" % (sRot, sG, sRot, sRot, sRot, sRot, sJJ))
    elif OPT["map"] == 1:
        a("s_and_b32 s%d, s%d, 7\ns_and_b32 s%d, s%d, 1\ns_lshl_b32 s%d, s%d, 3\ns_add_u32 s%d, s%d, s%d" % (sRot, sT2, sJJ, sT, sJJ, sJJ, sJJ, sJJ, sRot))
        a("s_lshr_b32 s%d, s%d, 3\ns_lshl_b32 s%d, s%d, 1\ns_add_u32 s%d, s%d, s%d" % (sB, sT2, sT3, sB, sRot, sRot, sT3))
        a("s_and_b32 s%d, s%d, 2\ns_lshl_b32 s%d, s%d, 1\ns_add_u32 s%d, s%d, s%d" % (sT3, sT, sT3, sT3, sB, sB, sT3))
        a("s_lshl_b32 s%d, s%d, 3\ns_add_u32 s%d, s%d, s%d" % (sG, sBlk, sG, sG, sB))
    else:
        a("s_and_b32 s%d, s%d, 3\ns_and_b32 s%d, s%d, 3\ns_lshl_b32 s%d, s%d, 2\ns_add_u32 s%d, s%d, s%d" % (sRot, sT2, sJJ, sT, sJJ, sJJ, sJJ, sJJ, sRot))
        a("s_lshr_b32 s%d, s%d, 2\ns_lshl_b32 s%d, s%d, 1\ns_add_u32 s%d, s%d, s%d" % (sB, sT2, sRot, sRot, sRot, sRot, sB))
        if OPT["cls"] == 1: a("s_and_b32 s%d, s%d, 3\ns_lshl_b32 s%d, s%d, 1\ns_lshr_b32 s%d, s%d, 4\ns_add_u32 s%d, s%d, s%d" % (sB, sB, sB, sB, sT3, sT2, sB, sB, sT3))
        a("s_lshl_b32 s%d, s%d, 3\ns_add_u32 s%d, s%d, s%d" % (sG, sBlk, sG, sG, sB))
    if OPT["cls"] == 1: a("s_lshr_b32 s3, s2, 7")
    if OPT["cls"] == 2: a("s_mov_b32 s3, s%d" % sBlk)
    a("v_lshrrev_b32 v12, 6, v0")
    a("v_readfirstlane_b32 s%d, v12" % sW)
    a("s_mul_i32 s62, s%d, 147456" % sB)
    def code_pf():
        a("s_getpc_b64 s[90:91]")
        a.label("L_pf")
        if OPT["pfw"]:
            a("s_lshr_b32 s%d, s2, 3\ns_and_b32 s%d, s%d, 3\ns_min_u32 s%d, s%d, 2\ns_lshl_b32 s%d, s%d, 15" % (sT, sT, sT, sT, sT, sT, sT))
            a("v_lshlrev_b32 v240, 7, v0\nv_add_u32 v240, s%d, v240" % sT)
        else: a("v_lshlrev_b32 v240, 7, v0")
        a.items.append(a._mk("v_min_u32 v240, 0x1234, v240")); a.items[-1].text = "v_min_u32 v240, L_end-L_pf, v240"
        if OPT["pfw"] == 2: a("s_cmp_ge_u32 s2, 32\ns_cbranch_scc1 L_nopf")
        a("global_load_dword v253, v240, s[90:91]")
        if OPT["pfw"] == 2: a.label("L_nopf")
    if not OPT["pfw"]: code_pf()
    if OPT["fast0"]:
        loader_setup(a)
        if OPT["pst"]: a("s_memrealtime s[66:67]")
        srds_first(a)
        if OPT["pst"]: a("s_memrealtime s[68:69]")
        a("s_cmp_lt_u32 s%d, 4\ns_cbranch_scc1 L_arole" % sW)
        st0 = (list(a.lgkm), list(a.vm))
        for x, t in stage_ops_(0, 4): a(x, tag=t)
        st = (list(a.lgkm), list(a.vm))
        a("s_cmp_ge_u32 s%d, 6\ns_cbranch_scc1 L_auxrole\ns_branch L_brole" % sW)
        a.label("L_arole")
        a.lgkm, a.vm = list(st0[0]), list(st0[1])
    else:
        a("s_cmp_ge_u32 s%d, 6\ns_cbranch_scc1 L_auxrole" % sW)
        st = (list(a.lgkm), list(a.vm))
        a("s_cmp_ge_u32 s%d, 4\ns_cbranch_scc1 L_brole" % sW)
    if OPT["pfw"]: code_pf()
    head(a, "A")
    a("s_branch L_att")
    a.lgkm, a.vm = list(st[0]), list(st[1])
    a.raw(".p2align 3"); a.label("L_brole")
    head(a, "B")
    a.label("L_att")
    attention(a)
    a.lgkm, a.vm = list(st[0]), list(st[1])
    a.raw(".p2align 3"); a.label("L_auxrole")
    head(a, "X")
    aux(a)
    a.vm = []
    op_tail(a)
    a.label("L_end"); a("s_endpgm")
    a.pad_hazards()
    a.check_backedge("L_loop", "s_cbranch_scc1 L_loop")
    a.align8()
    return a.text()

out = []
out.append("; " + " ".join(sys.argv[1:]) + " : fused Q-projection + attention + O-projection, one launch (generated by dev/gen16.py)")
out.append("""; Kernarg: A_x A_k A_v A_wq A_wo B_x B_k B_v B_wq B_wo out debug ws (13 pointers).
; 256 workgroups of 8 waves, one per CU; each handles two heads (2jj, 2jj+1) of one (block, batch), one after the other.
;  waves 0..5  attention: 3 row groups (48 rows) x 2 key halves, S^T = K Q^T and O^T = V^T P^T with 16x16x32 MFMA.
; O projection: the four workgroups that share a batch and a head quad exchange o through d_ws; each covers 128 columns
; tagged with a value chosen to differ from whatever the flag words held at launch (published through d_debug).""")
out.append("; @launch grid=(256,1,1) block=(512,1,1) lds=163840")
out.append('.amdgcn_target "amdgcn-amd-amdhsa--gfx950"\n.text')
out.append(kernel())
out.append('.section .rodata,"a"\n.p2align 6')
out.append(""".amdhsa_kernel %s
  .amdhsa_next_free_vgpr 256
  .amdhsa_next_free_sgpr 102
  .amdhsa_accum_offset 256
  .amdhsa_group_segment_fixed_size 0
  .amdhsa_kernarg_size 104
  .amdhsa_user_sgpr_count 2
  .amdhsa_user_sgpr_kernarg_segment_ptr 1
  .amdhsa_system_sgpr_workgroup_id_x 1
.end_amdhsa_kernel
""" % NAME)
print("\n".join(out))
```
